```python
import torch

def _softmax(x, axis=-1):
    return torch.softmax(x, dim=axis)

def _gelu(x):
    return torch.nn.functional.gelu(x, approximate='tanh')

def _silu(x):
    return torch.nn.functional.silu(x)

def _sigmoid(x):
    return torch.sigmoid(x)

def _layernorm(x, axis=-1, eps=1e-05):
    m = x.mean(dim=axis, keepdim=True)
    v = x.var(dim=axis, keepdim=True, unbiased=False)
    return (x - m) / torch.sqrt(v + eps)

def _scatter_add(tgt, idx, src, axis=0):
    return tgt.clone().index_add_(axis, idx, src)

def _segment_sum(src, seg, n):
    out = torch.zeros((n,) + src.shape[1:], dtype=src.dtype)
    return out.index_add_(0, seg, src)

def _pad(x, pw):
    flat = tuple((v for pair in reversed(pw) for v in pair))
    return torch.nn.functional.pad(x, flat)
kernel_name = 'adaLN_cond__gqa_block_cached__dense_activation_relu__decode'

def setup_inputs():

    _w = lambda a: (lambda t: t.to(torch.bfloat16) if t.is_floating_point() else t)(torch.as_tensor(a))

    def _A_setup():
        B, Sq, D = (1, 1, 512)
        Hq, Hkv, Sk, Dh = (32, 8, 32768, 128)
        assert Hq % Hkv == 0, (Hq, Hkv)
        return {'x': _w((lambda *s: torch.randn(*s, dtype=torch.bfloat16) * 0.1)(B, Sq, D)), 'k_cache': _w((lambda *s: torch.randn(*s, dtype=torch.bfloat16) * 0.8)(B, Hkv, Sk, Dh)), 'v_cache': _w((lambda *s: torch.randn(*s, dtype=torch.bfloat16) * 1.6)(B, Hkv, Sk, Dh)), 'wq': _w((lambda *s: torch.randn(*s, dtype=torch.bfloat16) * 0.8)(D, Hq * Dh) * D ** (-0.5)), 'wo': _w((lambda *s: torch.randn(*s, dtype=torch.bfloat16) * 1.6)(Hq * Dh, D) * (Hq * Dh) ** (-0.5))}
    _A_in = _A_setup()

    def _B_setup():
        B, S, D, Dff = (1, 1, 512, 1792)
        return {'x': _w((lambda *s: torch.randn(*s, dtype=torch.bfloat16) * 0.1)(B, S, D)), 'w1': _w((lambda *s: torch.randn(*s, dtype=torch.bfloat16) * 0.1)(D, Dff)), 'w2': _w((lambda *s: torch.randn(*s, dtype=torch.bfloat16) * 0.1)(Dff, D))}
    _B_in = _B_setup()
    return {'A_x': _A_in['x'], 'A_k_cache': _A_in['k_cache'], 'A_v_cache': _A_in['v_cache'], 'A_wq': _A_in['wq'], 'A_wo': _A_in['wo'], 'B_x': _B_in['x'], 'B_w1': _B_in['w1'], 'B_w2': _B_in['w2'], 'c': _w((lambda *s: torch.randn(*s, dtype=torch.bfloat16) * 0.2)(1, 512) * 8.0), 'w_mod': _w((lambda *s: torch.randn(*s, dtype=torch.bfloat16) * 0.2)(512, 6 * 512) * 512 ** (-0.5) * 8.0)}

def reference(A_x, A_k_cache, A_v_cache, A_wq, A_wo, B_x, B_w1, B_w2, c, w_mod):

    def _A_ref(x, k_cache, v_cache, wq, wo):
        B, Sq, D = x.shape
        Hq, Dh = (32, 128)
        Hkv = k_cache.shape[1]
        rep = Hq // Hkv
        q = (lambda x, *d: x.permute(*d))((x @ wq).reshape(B, Sq, Hq, Dh), 0, 2, 1, 3)
        k = (lambda x, n, axis: torch.repeat_interleave(x, n, dim=axis))(k_cache, rep, axis=1)
        v = (lambda x, n, axis: torch.repeat_interleave(x, n, dim=axis))(v_cache, rep, axis=1)
        scores = torch.einsum('bhqd,bhkd->bhqk', q, k) * Dh ** (-0.5)
        p = _softmax(scores, axis=-1)
        o = torch.einsum('bhqk,bhkd->bhqd', p, v)
        return (lambda x, *d: x.permute(*d))(o, 0, 2, 1, 3).reshape(B, Sq, Hq * Dh) @ wo

    def _B_ref(x, w1, w2):
        h = torch.einsum('bsd,df->bsf', x, w1)
        zero = torch.zeros_like(h)
        h = torch.maximum(h, zero)
        return torch.einsum('bsf,fd->bsd', h, w2)
    x = A_x
    mod = (_silu(c) @ w_mod).reshape(c.shape[0], 6, 1, -1)
    sa, ca, ga, sb, cb, gb = (mod[:, 0].clone(), mod[:, 1].clone(), mod[:, 2].clone(), mod[:, 3].clone(), mod[:, 4].clone(), mod[:, 5].clone())
    h = _layernorm(x, axis=-1) * (1 + ca) + sa
    x = x + ga * _A_ref(h, A_k_cache, A_v_cache, A_wq, A_wo)
    h = _layernorm(x, axis=-1) * (1 + cb) + sb
    x = x + gb * _B_ref(h, B_w1, B_w2)
    return x
```

```python
import re

def _regs(tok):
    tok = tok.strip()
    tok = re.sub(r'^-', '', tok)
    m = re.match(r'^abs\((.*)\)$', tok)
    if m: tok = m.group(1)
    m = re.match(r'^\|(.*)\|$', tok)
    if m: tok = m.group(1)
    m = re.match(r'^([vsa])(\d+)$', tok)
    if m: return [(m.group(1), int(m.group(2)))]
    m = re.match(r'^([vsa])\[(\d+):(\d+)\]$', tok)
    if m: return [(m.group(1), i) for i in range(int(m.group(2)), int(m.group(3)) + 1)]
    if tok == 'vcc': return [('s', 106), ('s', 107)]
    if tok == 'vcc_lo': return [('s', 106)]
    if tok == 'vcc_hi': return [('s', 107)]
    if tok == 'exec': return [('s', 126), ('s', 127)]
    if tok == 'm0': return [('s', 124)]
    return []

TRANS = ('v_exp_f32', 'v_log_f32', 'v_rcp_f32', 'v_rsq_f32', 'v_sqrt_f32', 'v_sin_f32', 'v_cos_f32')

class Ins:
    def __init__(self, text):
        self.text = text
        t = text.split(';')[0].strip()
        self.label = t.endswith(':')
        self.directive = t.startswith('.') and not self.label
        self.empty = (t == '')
        self.w = []; self.r = []; self.kind = 'other'; self.states = 1
        self.mA = []; self.mB = []; self.mC = []; self.sdata = []; self.lanesel = []
        if self.label or self.directive or self.empty:
            self.states = 0; return
        parts = t.split(None, 1)
        op = parts[0]; self.op = op
        rest = parts[1] if len(parts) > 1 else ''
        ops = []; cur = ''; depth = 0
        for ch in rest:
            if ch in '[(': depth += 1
            if ch in '])': depth -= 1
            if ch == ',' and depth == 0: ops.append(cur.strip()); cur = ''
            else: cur += ch
        if cur.strip(): ops.append(cur.strip())
        mods = ''
        if ops:
            sp = ops[-1].split(None, 1)
            if len(sp) > 1 and not ops[-1].startswith('hwreg'):
                ops[-1] = sp[0]; mods = sp[1]
        self.ops = ops; self.mods = mods
        R = [_regs(o) for o in ops]
        base = re.sub(r'_(e32|e64|dpp|sdwa)$', '', op)
        self.base = base
        if op == 's_nop':
            self.states = int(ops[0], 0) + 1; self.kind = 'salu'; return
        if op.startswith('s_'):
            self.kind = 'salu'
            if op.startswith(('s_cmp', 's_cbranch', 's_branch', 's_waitcnt', 's_barrier', 's_sleep', 's_setprio', 's_endpgm', 's_bitcmp')):
                for x in R: self.r += x
            else:
                if R: self.w += R[0]
                for x in R[1:]: self.r += x
            return
        if op.startswith('v_mfma'):
            self.kind = 'mfma'; self.w = R[0]; self.mA = R[1]; self.mB = R[2]; self.mC = R[3]
            self.r = R[1] + R[2] + R[3]; return
        if op.startswith(('buffer_load', 'global_load')):
            self.kind = 'vmem'
            if 'lds' in mods.split() or op.startswith('global_load_lds'):
                for x in R: self.r += x
                self.r += [('s', 124)]; self.kind = 'vmemlds'
            else:
                self.w = R[0]
                for x in R[1:]: self.r += x
            return
        if op.startswith(('buffer_store', 'buffer_atomic')):
            self.kind = 'vmem'
            for x in R: self.r += x
            if op.endswith(('x3', 'x4')): self.sdata = R[0]
            if 'atomic' in op and 'sc0' in mods.split(): self.w = R[0]
            return
        if op.startswith(('global_store', 'global_atomic')):
            self.kind = 'vmem'
            if 'atomic' in op and 'sc0' in mods.split():
                self.w = R[0]
                for x in R[1:]: self.r += x
            else:
                for x in R: self.r += x
                if op.endswith(('x3', 'x4')): self.sdata = R[1]
            return
        if op.startswith('ds_'):
            self.kind = 'ds'
            if op.startswith(('ds_read', 'ds_bpermute', 'ds_permute', 'ds_swizzle')) or '_rtn' in op:
                self.w = R[0]
                for x in R[1:]: self.r += x
            else:
                for x in R: self.r += x
            return
        if op.startswith('v_'):
            self.kind = 'valu'
            self.dpp = op.endswith('_dpp') or any(k in mods for k in ('quad_perm', 'row_shl', 'row_shr', 'row_ror', 'row_bcast', 'row_mirror', 'row_half_mirror', 'row_newbcast', 'wave_'))
            self.trans = base in TRANS
            self.dot = base.startswith('v_dot')
            self.perml = base.startswith('v_permlane')
            self.rdl = base in ('v_readlane_b32', 'v_readfirstlane_b32')
            self.w = list(R[0])
            srcs = R[1:]
            if base in ('v_add_co_u32', 'v_sub_co_u32', 'v_addc_co_u32', 'v_subb_co_u32', 'v_mad_u64_u32', 'v_div_scale_f32'):
                self.w += R[1]; srcs = R[2:]
            for x in srcs: self.r += x
            if base in ('v_fmac_f32', 'v_dot2c_f32_bf16', 'v_writelane_b32', 'v_pk_fmac_f16') or self.dpp:
                self.r += R[0]
            if self.perml:
                self.w += R[1]; self.r += R[0]
            if base in ('v_readlane_b32', 'v_writelane_b32'):
                self.lanesel = R[2]
            if self.dot:
                self.dotC = R[3] if len(R) > 3 else R[0]
                self.dotAB = R[1] + R[2]
            return
        raise ValueError("unparsed: " + text)

def need(prev, cur):
    n = 0
    pw = set(prev.w); cr = set(cur.r); cw = set(cur.w)
    pv = {x for x in pw if x[0] != 's'}; ps = {x for x in pw if x[0] == 's'}
    if prev.kind == 'valu':
        if cur.kind == 'mfma' and pv & cr: n = max(n, 2)
        if cur.kind == 'valu':
            if (cur.dpp or cur.perml) and pv & cr: n = max(n, 2)
            if prev.trans and pv & cr: n = max(n, 1)
            if cur.rdl and pv & cr: n = max(n, 1)
            if ps & cr: n = max(n, 2)
            if ps & set(cur.lanesel): n = max(n, 4)
        if cur.kind in ('vmem', 'vmemlds') and ps & cr: n = max(n, 5)
        if cur.kind == 'salu' and ps & cr: n = max(n, 1)
        if prev.dot:
            if cur.kind == 'valu' and cur.dot and cur.base == prev.base:
                if pv & set(cur.dotAB): n = max(n, 3)
            elif pv & (cr | cw): n = max(n, 3)
        if prev.trans and cur.kind in ('vmem', 'ds') and pv & cr: n = max(n, 1)
    if prev.kind == 'mfma':
        passes = 8 if '32x32' in prev.op else 4
        big = {4: 8, 8: 12}[passes]
        if cur.kind == 'mfma':
            if pv & set(cur.mA + cur.mB): n = max(n, big)
            if pv & set(cur.mC):
                if not (cur.mC == prev.w and cur.op == prev.op): n = max(n, {4: 6, 8: 10}[passes])
            elif pv & cw: n = max(n, {4: 6, 8: 10}[passes])
        elif cur.kind in ('valu', 'vmem', 'vmemlds', 'ds'):
            if pv & (cr | cw): n = max(n, big)
        if cur.kind == 'valu' and set(prev.mC) & cw: n = max(n, {4: 3, 8: 7}[passes])
    if prev.kind == 'vmem' and prev.sdata and set(prev.sdata) & cw:
        n = max(n, 2 if cur.kind == 'valu' else 1)
    if prev.kind == 'salu' and ('s', 124) in pw and cur.kind == 'vmemlds': n = max(n, 1)
    return n

class Asm:
    def __init__(self):
        self.lines = []
        self.uid = 0
    def __call__(self, text):
        for t in text.split('\n'):
            self.lines.append(t.strip())
    def label(self, base):
        self.uid += 1
        return f"L_{base}_{self.uid}"
    def finish(self):
        out = []; hist = []
        nn = 0
        for t in self.lines:
            ins = Ins(t)
            if ins.states == 0:
                out.append(t); continue
            dist = 0; req = 0
            for p in reversed(hist[-14:]):
                k = need(p, ins)
                if k - dist > req: req = k - dist
                dist += p.states
                if dist >= 12: break
            if req > 0:
                nop = Ins(f"s_nop {req-1}")
                out.append(f"    s_nop {req-1}"); hist.append(nop); nn += 1
            out.append("    " + t); hist.append(ins)
            if ins.op in ('s_endpgm', 's_branch'): hist = []
        return "\n".join(out) + "\n"
```

```python
import sys, struct, ast
from asmlib import Asm
NAME = "adaLN_cond__gqa_block_cached__dense_activation_relu__decode_kernel"
def f2x(f): return "0x%08x" % struct.unpack("<I", struct.pack("<f", f))[0]

WS_H = 0x1000; WS_MOD = 0x2000; WS_Q = 0x4000; WS_ST = 0x8000
WS_PRE = 0x100000; WS_A = WS_PRE; WS_B = WS_PRE + 0x40000; WS_C = WS_PRE + 0x44000
WS_STAMP = 0x8000000
L_Q = 0; L_ST = 1024; L_RED = 1536; L_H2 = 2048; L_EX = 6144; L_OP = 16384; L_WT = 32768; LDS_SIZE = 65536
DPPF = "row_mask:0xf bank_mask:0xf"
P_X, P_K, P_V, P_WQ, P_WO, P_BX, P_W1, P_W2, P_C, P_WM, P_OUT, P_DBG, P_WS = [36 + 2 * i for i in range(13)]
def sp(n): return f"s[{n}:{n+1}]"
def v4(n): return f"v[{n}:{n+3}]"
def v2(n): return f"v[{n}:{n+1}]"

def gen(win=6, wpol="", stamps=0, spin=200000, hsleep=2, tsleep=0, alayout=1):
    A = Asm()
    hdr = open("cdna_kernels/" + NAME[:-7] + ".s.ref").read().split("; Override")[0]
    A(hdr.rstrip())
    A(f"; @launch grid=(256,1,1) block=(768,1,1) lds={LDS_SIZE}")
    A('.amdgcn_target "amdgcn-amd-amdhsa--gfx950"')
    A(f".text\n.globl {NAME}\n.p2align 8\n.type {NAME},@function\n{NAME}:")
    def stamp(k):
        if stamps:
            A("s_memrealtime s[62:63]\ns_waitcnt lgkmcnt(0)")
            A(f"v_writelane_b32 v3, s62, {k}")
    def end_wave():
        if stamps:
            A("s_mov_b64 exec, 0xff")
            A("s_mul_i32 s20, s2, 12\ns_add_u32 s20, s20, s3\ns_lshl_b32 s20, s20, 5")
            A(f"s_add_u32 s20, s20, {WS_STAMP}")
            A("v_lshl_add_u32 v1, v0, 2, s20")
            A(f"global_store_dword v1, v3, {sp(P_WS)}")
        A("s_endpgm")
    def srd(d, p, size):
        A(f"s_mov_b32 s{d}, s{p}\ns_mov_b32 s{d+1}, s{p+1}\ns_mov_b32 s{d+2}, {size}\ns_mov_b32 s{d+3}, 0x20000")
    def poll(name, loads, check, sleep):
        top = A.label(name); done = A.label(name + "d")
        A(f"s_mov_b32 s7, {spin}")
        A(f"{top}:")
        loads()
        A("s_waitcnt vmcnt(0)")
        check()
        A(f"s_cbranch_vccz {done}")
        if sleep: A(f"s_sleep {sleep}")
        A("s_sub_u32 s7, s7, 1")
        A(f"s_cbranch_scc0 {top}")
        A(f"{done}:")
    def chk_tags(regs, tmp):
        A(f"v_xor_b32 v{tmp}, s6, v{regs[0]}")
        for r in regs[1:]:
            A(f"v_xor_b32 v{tmp+1}, s6, v{r}")
            A(f"v_or_b32 v{tmp}, v{tmp}, v{tmp+1}")
        A(f"v_cmp_ne_u32 vcc, 0, v{tmp}")
    def chk_sent(regs, tmp):
        regs = list(regs)
        if len(regs) == 1:
            A(f"v_cmp_eq_u32 vcc, -1, v{regs[0]}"); return
        if len(regs) == 2:
            A(f"v_max_u32 v{tmp}, v{regs[0]}, v{regs[1]}"); rest = []
        else:
            A(f"v_max3_u32 v{tmp}, v{regs[0]}, v{regs[1]}, v{regs[2]}"); rest = regs[3:]
        while rest:
            if len(rest) == 1:
                A(f"v_max_u32 v{tmp}, v{tmp}, v{rest[0]}"); rest = []
            else:
                A(f"v_max3_u32 v{tmp}, v{tmp}, v{rest[0]}, v{rest[1]}"); rest = rest[2:]
        A(f"v_cmp_eq_u32 vcc, -1, v{tmp}")
    def xrow(op, v, tmp, which):
        A(f"v_mov_b32 v{tmp}, v{v}")
        A(f"v_permlane{which}_swap_b32 v{v}, v{tmp}")
        A(f"{op} v{v}, v{v}, v{tmp}")
    def inrow(op, v, steps):
        for s in steps:
            A(f"{op}_dpp v{v}, v{v}, v{v} {s} {DPPF}")
    def wave_reduce(op, v, tmp):
        inrow(op, v, ["row_ror:8", "row_ror:4", "row_ror:2", "row_ror:1"])
        xrow(op, v, tmp, 16); xrow(op, v, tmp, 32)
    def unpack(dst, src, n):
        for i in range(n):
            A(f"v_lshlrev_b32 v{dst+2*i}, 16, v{src[i]}")
            A(f"v_and_b32 v{dst+2*i+1}, 0xffff0000, v{src[i]}")
    def gemv16_perm(W, T):
        for u in range(8):
            for w in range(4):
                a = W + 8 * u + w; b = W + 8 * u + 4 + w
                A(f"v_perm_b32 v{T+8*u+2*w}, v{b}, v{a}, s24")
                A(f"v_perm_b32 v{T+8*u+2*w+1}, v{b}, v{a}, s25")
    def gemv16_dot(T, X, acc):
        for u in range(8):
            for e in range(8):
                c = "0" if u == 0 else f"v{acc+e}"
                A(f"v_dot2_f32_bf16 v{acc+e}, v{T+8*u+e}, v{X[u]}, {c}")
        for e in range(4): A(f"v_permlane32_swap_b32 v{acc+e}, v{acc+e+4}")
        for e in range(4): A(f"v_add_f32 v{acc+e}, v{acc+e}, v{acc+e+4}")
        for e in range(2): A(f"v_permlane16_swap_b32 v{acc+e}, v{acc+e+2}")
        for e in range(2): A(f"v_add_f32 v{acc+e}, v{acc+e}, v{acc+e+2}")
        for s in ["row_ror:8", "row_ror:4", "quad_perm:[2,3,0,1]"]:
            for e in range(2): A(f"v_add_f32_dpp v{acc+e}, v{acc+e}, v{acc+e} {s} {DPPF}")

    A("s_cmp_ge_u32 s2, 256\ns_cbranch_scc1 L_exit")
    A("s_load_dwordx16 s[36:51], s[0:1], 0\ns_load_dwordx8 s[52:59], s[0:1], 64\ns_load_dwordx2 s[60:61], s[0:1], 96")
    A("v_lshrrev_b32 v1, 6, v0\nv_and_b32 v0, 63, v0\nv_readfirstlane_b32 s3, v1")
    A("s_and_b32 s4, s2, 7\ns_lshr_b32 s5, s2, 3")
    A("s_mov_b32 s24, 0x05040100\ns_mov_b32 s25, 0x07060302")
    if stamps:
        A("v_mov_b32 v3, 0"); stamp(0)
    A("s_cmp_lt_u32 s3, 4\ns_cbranch_scc1 L_service")
    A("s_sub_u32 s21, s3, 4")
    A("v_bfe_u32 v1, v0, 2, 2\nv_lshlrev_b32 v1, 8, v1\nv_lshrrev_b32 v2, 4, v0\nv_lshl_add_u32 v1, v2, 6, v1\nv_and_b32 v2, 3, v0\nv_lshl_add_u32 v1, v2, 4, v1")
    A("v_lshlrev_b32 v2, 4, v0")
    A("s_lshl_b32 s16, s4, 23\ns_lshl_b32 s17, s5, 18\ns_add_u32 s16, s16, s17\ns_lshl_b32 s17, s21, 12\ns_add_u32 s16, s16, s17")
    A("s_waitcnt lgkmcnt(0)")
    srd(8, P_K, 0x4000000); srd(12, P_V, 0x4000000)
    KR = lambda t: 40 + 4 * t
    def VR(t):
        if t < 7: return 12 + 4 * t
        if t < 27: return KR(12 + t - 7)
        return 12 + 4 * (t - 27)
    st = {"cur": None, "n": 0}
    def ld(which, t):
        key = t >> 2
        if st["cur"] != key:
            A(f"s_add_u32 s20, s16, {key*32768}"); st["cur"] = key
        if which == "K": A(f"buffer_load_dwordx4 {v4(KR(t))}, v1, s[8:11], s20 offen offset:{(t&3)*1024} nt")
        else: A(f"buffer_load_dwordx4 {v4(VR(t))}, v2, s[12:15], s20 offen offset:{(t&3)*1024} nt")
        st["n"] += 1
    seq = [("K", t) for t in range(32)] + [("V", t) for t in range(7)]
    for i, (wh, t) in enumerate(seq):
        if i >= win: A(f"s_waitcnt vmcnt({win-1})")
        ld(wh, t)
    viss = 7
    A("v_and_b32 v8, 3, v0\nv_lshlrev_b32 v8, 8, v8\nv_lshrrev_b32 v9, 4, v0\nv_lshl_add_u32 v8, v9, 6, v8\nv_bfe_u32 v9, v0, 2, 2\nv_lshl_add_u32 v8, v9, 4, v8")
    A(f"s_mov_b32 s22, {f2x(128**-0.5*1.4426950408889634)}")
    stamp(1)
    A("s_barrier")
    A(f"ds_read_b128 v[4:7], v8 offset:{L_Q}")
    A("s_waitcnt vmcnt(7) lgkmcnt(0)")
    stamp(2)
    DR = lambda t: 8 if t == 0 else KR(t - 1)
    SR = lambda t: (8 + t) if t < 4 else KR((t >> 2) - 1) + (t & 3)
    def M(t): A(f"v_mfma_f32_16x16x32_bf16 {v4(DR(t))}, {v4(KR(t))}, v[4:7], 0")
    def AB(t):
        d = DR(t)
        A(f"v_add_f32_dpp v{d}, v{d+1}, v{d} row_shl:4 {DPPF} bound_ctrl:0")
        A(f"v_add_f32_dpp v{d+2}, v{d+3}, v{d+2} row_shl:4 {DPPF} bound_ctrl:0")
    def S(t):
        d = DR(t)
        A(f"v_add_f32_dpp v{SR(t)}, v{d+2}, v{d} row_shl:8 {DPPF} bound_ctrl:0")
    M(0); M(1); M(2)
    for t in range(33):
        if t < 32: AB(t)
        if t >= 1:
            S(t - 1)
            if t - 1 >= 14 and (t - 1) % 4 == 2:
                ld("V", viss); viss += 1
        if t + 3 < 32: M(t + 3)
    TM = KR(11)
    Sl = [SR(t) for t in range(32)]
    A(f"v_max3_f32 v{TM}, v{Sl[0]}, v{Sl[1]}, v{Sl[2]}")
    A(f"v_max3_f32 v{TM+1}, v{Sl[3]}, v{Sl[4]}, v{Sl[5]}")
    i = 6; k = 0
    while i < 32:
        A(f"v_max3_f32 v{TM+k}, v{TM+k}, v{Sl[i]}, v{Sl[i+1]}"); i += 2; k ^= 1
    A(f"v_max_f32 v{TM}, v{TM}, v{TM+1}")
    xrow("v_max_f32", TM, TM + 1, 16); xrow("v_max_f32", TM, TM + 1, 32)
    A(f"v_mul_f32 v{TM}, s22, v{TM}")
    ld("V", viss); viss += 1
    for t in range(32): A(f"v_fma_f32 v{Sl[t]}, v{Sl[t]}, s22, -v{TM}")
    for t in range(32): A(f"v_exp_f32 v{Sl[t]}, v{Sl[t]}")
    ld("V", viss); viss += 1
    A(f"v_add_f32 v{TM+1}, v{Sl[0]}, v{Sl[1]}\nv_add_f32 v{TM+2}, v{Sl[2]}, v{Sl[3]}")
    for t in range(4, 32): A(f"v_add_f32 v{TM+1+(t&1)}, v{TM+1+(t&1)}, v{Sl[t]}")
    A(f"v_add_f32 v{TM+1}, v{TM+1}, v{TM+2}")
    PR = lambda u: KR(7 + u)
    for u in range(4):
        for j in range(4): A(f"v_cvt_pk_bf16_f32 v{PR(u)+j}, v{Sl[8*u+2*j]}, v{Sl[8*u+2*j+1]}")
    xrow("v_add_f32", TM + 1, TM + 2, 16); xrow("v_add_f32", TM + 1, TM + 2, 32)
    A(f"s_lshl_b32 s17, s21, 5\nv_lshl_add_u32 v{TM+2}, v0, 3, s17")
    A("s_mov_b64 exec, 0xf")
    A(f"ds_write_b64 v{TM+2}, {v2(TM)} offset:{L_ST}")
    A("s_mov_b64 exec, -1")
    ld("V", viss); viss += 1
    A("s_waitcnt lgkmcnt(0)")
    stamp(3)
    A("s_barrier")
    ACC = [8] + [KR(i) for i in range(7)]
    TT = [KR(11), 4]
    def pv(u):
        for e in range(8):
            T = TT[e & 1]
            for p in range(4):
                a = VR(8 * u + 2 * p) + (e >> 1); b = VR(8 * u + 2 * p + 1) + (e >> 1)
                A(f"v_perm_b32 v{T+p}, v{b}, v{a}, s{24+(e&1)}")
            c = "0" if u == 0 else v4(ACC[e])
            A(f"v_mfma_f32_16x16x32_bf16 {v4(ACC[e])}, {v4(PR(u))}, {v4(T)}, {c}")
    Lstart = max(0, viss - win)
    done_u = 0
    for L in range(32):
        if L >= Lstart or L % 8 == 7:
            A(f"s_waitcnt vmcnt({viss-1-L})")
            if L >= Lstart and viss < 32 and (viss < 27 or done_u >= 1):
                ld("V", viss); viss += 1
        if L % 8 == 7:
            if L == 31: stamp(4)
            pv(L // 8); done_u += 1
    assert viss == 32
    A(f"s_lshl_b32 s17, s21, 11\nv_lshl_add_u32 v1, v0, 4, s17")
    A("s_mov_b64 exec, 0xffff")
    for e in range(8): A(f"ds_write_b128 v1, {v4(ACC[e])} offset:{L_OP+e*256}")
    A("s_waitcnt lgkmcnt(0)")
    stamp(5)
    A("s_barrier")
    end_wave()

    A("L_service:")
    A("s_setprio 3")
    A("v_lshlrev_b32 v2, 4, v0\nv_mov_b32 v5, 0")
    A("s_waitcnt lgkmcnt(0)")
    A(f"s_load_dword s6, {sp(P_WS)}, 0")
    A("s_cmp_eq_u32 s3, 0\ns_cbranch_scc1 L_sw0\ns_cmp_eq_u32 s3, 1\ns_cbranch_scc1 L_sw1")
    def mktag():
        A("s_waitcnt lgkmcnt(0)\ns_mul_i32 s6, s6, 0x9E3779B1\ns_add_u32 s6, s6, 0x7F4A7C15")
    mktag()
    A("s_branch L_b1")
    A("L_sw0:")
    A("s_cmp_lt_u32 s5, 8\ns_cbranch_scc1 L_sw0h\ns_cmp_lt_u32 s5, 24\ns_cbranch_scc1 L_sw0m")
    mktag()
    A("s_branch L_b1")
    def sw0(hrole):
        srd(8, P_WM, 512 * 6144)
        A("v_lshrrev_b32 v1, 1, v0\ns_mov_b32 s20, 98304\nv_mul_lo_u32 v1, v1, s20\nv_and_b32 v13, 1, v0")
        if hrole:
            A("s_lshl_b32 s20, s4, 7\ns_lshl_b32 s21, s5, 4\ns_add_u32 s20, s20, s21")
            A("v_lshl_add_u32 v1, v13, 10, v1")
        else:
            A("s_lshl_b32 s20, s4, 9\ns_lshl_b32 s21, s5, 5\ns_add_u32 s20, s20, s21\ns_add_u32 s20, s20, 1792")
            A("v_lshl_add_u32 v1, v13, 4, v1")
        A("v_add_u32 v1, s20, v1")
        A(f"global_load_dwordx4 v[4:7], v2, {sp(P_C)}")
        nl = 16
        if hrole:
            A(f"global_load_dwordx4 v[8:11], v2, {sp(P_X)}")
            A("v_lshrrev_b32 v14, 4, v0\nv_lshl_add_u32 v14, v14, 2, s20")
            A(f"global_load_dword v12, v14, {sp(P_X)}")
        for i in range(16):
            A(f"s_mov_b32 s21, {i*6144}")
            A(f"buffer_load_dwordx4 {v4(40+4*i)}, v1, s[8:11], s21 offen {wpol}")
        if hrole:
            A("s_lshl_b32 s21, s4, 3\ns_add_u32 s21, s21, s5\ns_lshl_b32 s21, s21, 13")
            A(f"s_add_u32 s21, s21, {WS_PRE}")
            A("v_add_u32 v15, s21, v2\nv_add_u32 v20, 4096, v15")
            for i in range(4): A(f"v_mov_b32 v{16+i}, -1")
            for i in range(8): A(f"global_store_dwordx4 v{15 if i<4 else 20}, v[16:19], {sp(P_WS)} offset:{(i&3)*1024} sc1")
            nl += 8
        A(f"s_waitcnt vmcnt({nl + (2 if hrole else 0)})")
        unpack(24, [4, 5, 6, 7], 4)
        A(f"s_mov_b32 s21, {f2x(-1.4426950408889634)}")
        for i in range(8): A(f"v_mul_f32 v{32+i}, s21, v{24+i}")
        for i in range(8): A(f"v_exp_f32 v{32+i}, v{32+i}")
        for i in range(8): A(f"v_add_f32 v{32+i}, 1.0, v{32+i}")
        for i in range(8): A(f"v_rcp_f32 v{32+i}, v{32+i}")
        for i in range(8): A(f"v_mul_f32 v{24+i}, v{24+i}, v{32+i}")
        for i in range(4): A(f"v_cvt_pk_bf16_f32 v{4+i}, v{24+2*i}, v{25+2*i}")
        for i in range(4): A(f"v_mov_b32_dpp v{24+i}, v{4+i} quad_perm:[0,0,2,2] {DPPF}")
        for i in range(4): A(f"v_mov_b32_dpp v{28+i}, v{4+i} quad_perm:[1,1,3,3] {DPPF}")
        if hrole:
            A(f"s_waitcnt vmcnt({nl})")
            unpack(32, [8, 9, 10, 11], 4)
            A("v_add_f32 v4, v32, v33")
            for i in range(2, 8): A(f"v_add_f32 v4, v4, v{32+i}")
            wave_reduce("v_add_f32", 4, 5)
            A(f"v_mul_f32 v4, {f2x(1/512)}, v4")
            for i in range(8): A(f"v_sub_f32 v{32+i}, v{32+i}, v4")
            A("v_mul_f32 v6, v32, v32")
            for i in range(1, 8): A(f"v_fmac_f32 v6, v{32+i}, v{32+i}")
            wave_reduce("v_add_f32", 6, 5)
            A(f"v_mov_b32 v5, {f2x(1e-5)}")
            A(f"v_fmac_f32 v5, {f2x(1/512)}, v6")
            A("v_rsq_f32 v5, v5")
            unpack(8, [12], 1)
            A("v_sub_f32 v8, v8, v4\nv_sub_f32 v9, v9, v4\nv_mul_f32 v8, v8, v5\nv_mul_f32 v9, v9, v5")
        mktag()
        A(f"s_waitcnt vmcnt({nl-16})")
        stamp(1)
        gemv16_perm(40, 104)
        gemv16_dot(104, list(range(24, 32)), 32)
        if hrole:
            A(f"v_mov_b32_dpp v34, v32 quad_perm:[1,1,3,3] {DPPF}\nv_mov_b32_dpp v35, v33 quad_perm:[1,1,3,3] {DPPF}")
            A("v_add_f32 v34, 1.0, v34\nv_add_f32 v35, 1.0, v35")
            A("v_fma_f32 v32, v8, v34, v32\nv_fma_f32 v33, v9, v35, v33")
            A("v_cvt_pk_bf16_f32 v32, v32, v33\nv_mov_b32 v33, s6")
            A(f"s_lshl_b32 s21, s20, 1\ns_add_u32 s21, s21, {WS_H}")
            A("v_lshrrev_b32 v14, 4, v0\nv_lshl_add_u32 v14, v14, 3, s21")
            A("s_waitcnt vmcnt(0)")
            A("s_mov_b32 exec_lo, 0x00010001\ns_mov_b32 exec_hi, 0x00010001")
        else:
            A("v_cvt_pk_bf16_f32 v32, v32, v33\nv_mov_b32 v33, s6")
            A(f"s_lshl_b32 s21, s20, 1\ns_add_u32 s21, s21, {WS_MOD-4096}")
            A("v_lshrrev_b32 v14, 4, v0\nv_lshl_add_u32 v14, v14, 3, s21\nv_lshl_add_u32 v14, v13, 5, v14")
            A("s_mov_b32 exec_lo, 0x00030003\ns_mov_b32 exec_hi, 0x00030003")
        A(f"global_store_dwordx2 v14, v[32:33], {sp(P_WS)} sc1")
        A("s_mov_b64 exec, -1")
        stamp(2)
        A("s_branch L_b1")
    A("L_sw0h:"); sw0(True)
    A("L_sw0m:"); sw0(False)
    A("L_sw1:")
    srd(8, P_WQ, 512 * 8192)
    A("v_lshrrev_b32 v12, 1, v0\nv_lshlrev_b32 v1, 17, v12\nv_and_b32 v13, 1, v0\nv_lshl_add_u32 v1, v13, 4, v1")
    A("s_lshl_b32 s20, s4, 10\ns_lshl_b32 s21, s5, 5\ns_add_u32 s20, s20, s21\nv_add_u32 v1, s20, v1")
    for i in range(16):
        A(f"s_mov_b32 s21, {i*8192}")
        A(f"buffer_load_dwordx4 {v4(40+4*i)}, v1, s[8:11], s21 offen {wpol}")
    A(f"v_lshlrev_b32 v12, 6, v12\nv_add_u32 v12, {WS_H}, v12")
    mktag()
    A("s_waitcnt vmcnt(0)")
    stamp(1)
    gemv16_perm(40, 104)
    poll("ph", lambda: [A(f"global_load_dwordx4 {v4(16+4*i)}, v12, {sp(P_WS)} offset:{16*i} sc1") for i in range(4)],
         lambda: chk_tags([17 + 2 * i for i in range(8)], 4), hsleep)
    stamp(2)
    gemv16_dot(104, [16 + 2 * i for i in range(8)], 32)
    A("v_cvt_pk_bf16_f32 v32, v32, v33\nv_mov_b32 v33, s6")
    A(f"s_lshl_b32 s21, s20, 1\ns_add_u32 s21, s21, {WS_Q}")
    A("v_lshrrev_b32 v14, 4, v0\nv_lshl_add_u32 v14, v14, 3, s21\nv_lshl_add_u32 v14, v13, 5, v14")
    A("s_mov_b32 exec_lo, 0x00030003\ns_mov_b32 exec_hi, 0x00030003")
    A(f"global_store_dwordx2 v14, v[32:33], {sp(P_WS)} sc1")
    A("s_mov_b64 exec, -1")
    stamp(3)
    A(f"s_lshl_b32 s21, s4, 11\ns_add_u32 s21, s21, {WS_Q}\nv_lshl_add_u32 v12, v0, 5, s21")
    poll("pq", lambda: [A(f"global_load_dwordx4 {v4(16+4*i)}, v12, {sp(P_WS)} offset:{16*i} sc1") for i in range(2)],
         lambda: chk_tags([17, 19, 21, 23], 4), hsleep)
    A("v_mov_b32 v17, v18\nv_mov_b32 v18, v20\nv_mov_b32 v19, v22")
    A(f"ds_write_b128 v2, v[16:19] offset:{L_Q}")
    A("s_waitcnt lgkmcnt(0)")
    stamp(4)
    A("L_b1:")
    A("s_barrier")
    A("s_cmp_ge_u32 s5, 16\ns_cbranch_scc1 L_wb\ns_cmp_ge_u32 s5, 14\ns_cbranch_scc1 L_b2")
    A("s_mul_i32 s26, s4, 14\ns_add_u32 s26, s26, s5")
    srd(8, P_W1, 512 * 3584); srd(12, P_W2, 1792 * 1024)
    A("v_lshrrev_b32 v1, 1, v0\ns_mov_b32 s20, 3584\nv_mul_lo_u32 v1, v1, s20\nv_and_b32 v4, 1, v0\nv_lshl_add_u32 v1, v4, 4, v1")
    A(f"s_mul_i32 s20, s3, {128*3584}\ns_lshl_b32 s21, s26, 5\ns_add_u32 s20, s20, s21")
    for i in range(4):
        A(f"buffer_load_dwordx4 {v4(104+4*i)}, v1, s[8:11], s20 offen {wpol}")
        if i < 3: A(f"s_add_u32 s20, s20, {32*3584}")
    A("v_lshrrev_b32 v4, 4, v0\nv_lshlrev_b32 v4, 12, v4\nv_and_b32 v5, 15, v0\nv_lshl_add_u32 v4, v5, 4, v4")
    A("s_lshl_b32 s20, s26, 14\ns_lshl_b32 s21, s3, 8\ns_add_u32 s20, s20, s21")
    for r in range(4): A(f"buffer_load_dwordx4 {v4(120+4*r)}, v4, s[12:15], s20 offen offset:{r*1024} nt")
    A("s_branch L_b2")
    A("L_wb:")
    srd(8, P_WO, 4096 * 1024)
    A("v_lshrrev_b32 v1, 2, v0\nv_lshlrev_b32 v1, 12, v1\nv_and_b32 v4, 3, v0\nv_lshl_add_u32 v1, v4, 4, v1")
    A("s_lshl_b32 s20, s4, 19\ns_lshl_b32 s21, s3, 10\ns_add_u32 s20, s20, s21\ns_sub_u32 s21, s5, 16\ns_lshl_b32 s21, s21, 6\ns_add_u32 s20, s20, s21")
    for i in range(8):
        A(f"buffer_load_dwordx4 {v4(104+4*i)}, v1, s[8:11], s20 offen {wpol}")
        if i < 7: A(f"s_add_u32 s20, s20, {65536}")
    A("L_b2:")
    A("s_barrier")
    A("s_cmp_lg_u32 s3, 2\ns_cbranch_scc1 L_prep")
    stamp(1)
    A("v_and_b32 v4, 31, v0\nv_lshlrev_b32 v4, 3, v4")
    A(f"ds_read_b64 v[6:7], v4 offset:{L_ST}")
    A("s_waitcnt lgkmcnt(0)")
    A("v_mov_b32 v8, v6")
    inrow("v_max_f32", 8, ["row_ror:4", "row_ror:8"]); xrow("v_max_f32", 8, 5, 16)
    A("v_sub_f32 v10, v6, v8\nv_exp_f32 v10, v10\nv_mul_f32 v10, v10, v7")
    inrow("v_add_f32", 10, ["row_ror:4", "row_ror:8"]); xrow("v_add_f32", 10, 5, 16)
    A("v_mov_b32 v9, s6\nv_mov_b32 v11, s6")
    A(f"s_lshl_b32 s20, s4, 11\ns_add_u32 s20, s20, {WS_ST}\ns_lshl_b32 s21, s5, 6\ns_add_u32 s21, s21, s20")
    A("v_add_u32 v4, s21, v2\nv_add_u32 v12, s20, v2")
    A("s_mov_b64 exec, 0xf")
    A(f"global_store_dwordx4 v4, v[8:11], {sp(P_WS)} sc1")
    A("s_mov_b64 exec, -1")
    poll("ps", lambda: [A(f"global_load_dwordx4 {v4(16+4*i)}, v12, {sp(P_WS)} offset:{1024*i} sc1") for i in range(2)],
         lambda: chk_tags([17, 19, 21, 23], 4), hsleep)
    A("v_max_f32 v8, v16, v20")
    inrow("v_max_f32", 8, ["row_ror:4", "row_ror:8"]); xrow("v_max_f32", 8, 5, 16); xrow("v_max_f32", 8, 5, 32)
    A("v_sub_f32 v16, v16, v8\nv_sub_f32 v20, v20, v8\nv_exp_f32 v16, v16\nv_exp_f32 v20, v20\nv_mul_f32 v10, v16, v18\nv_fmac_f32 v10, v20, v22")
    inrow("v_add_f32", 10, ["row_ror:4", "row_ror:8"]); xrow("v_add_f32", 10, 5, 16); xrow("v_add_f32", 10, 5, 32)
    A("v_rcp_f32 v10, v10\nv_sub_f32 v6, v6, v8\nv_exp_f32 v6, v6\nv_mul_f32 v6, v6, v10")
    for i in range(32): A(f"v_readlane_b32 s{64+i}, v6, {i}")
    stamp(2)
    A("L_prep:")
    A("s_cmp_ge_u32 s5, 16\ns_cbranch_scc1 L_prepb\ns_cmp_ge_u32 s5, 14\ns_cbranch_scc1 L_prepf")
    A("s_waitcnt vmcnt(0)")
    A(f"s_lshl_b32 s20, s3, 12\nv_add_u32 v1, s20, v2")
    for i in range(4): A(f"ds_write_b128 v1, {v4(104+4*i)} offset:{L_WT+i*1024}")
    for e in range(8):
        for p in range(2):
            a = 120 + 8 * p + (e >> 1); b = a + 4
            A(f"v_perm_b32 v{136+2*e+p}, v{b}, v{a}, s{24+(e&1)}")
    A("v_lshlrev_b32 v1, 3, v0")
    A(f"global_load_dwordx2 v[152:153], v1, {sp(P_X)}\nglobal_load_dwordx2 v[154:155], v1, {sp(P_X)} offset:512")
    A(f"v_add_u32 v36, {WS_MOD}, v2\nv_add_u32 v37, {WS_MOD+4096}, v2")
    def ldmod():
        for i in range(6): A(f"global_load_dwordx4 {v4(104+4*i)}, v{36+(i>>2)}, {sp(P_WS)} offset:{(i&3)*1024} sc1")
    A("s_waitcnt lgkmcnt(0)")
    poll("pm", ldmod, lambda: chk_tags([105 + 2 * i for i in range(12)], 38), hsleep)
    unpack(4, [152, 153, 154, 155], 4)
    unpack(12, [104, 106, 108, 110], 4)
    unpack(20, [112, 114, 116, 118], 4)
    unpack(28, [120, 122, 124, 126], 4)
    for i in range(8): A(f"v_add_f32 v{28+i}, 1.0, v{28+i}")
    A("s_branch L_b3")
    A("L_prepb:")
    A("s_waitcnt vmcnt(0)")
    A(f"s_lshl_b32 s20, s3, 13\nv_add_u32 v1, s20, v2")
    for i in range(8): A(f"ds_write_b128 v1, {v4(104+4*i)} offset:{L_WT+i*1024}")
    A("v_bfe_u32 v1, v0, 2, 2\nv_lshlrev_b32 v1, 11, v1\nv_lshrrev_b32 v4, 4, v0\nv_lshl_add_u32 v1, v4, 7, v1\nv_and_b32 v4, 3, v0\nv_lshl_add_u32 v1, v4, 3, v1\nv_add_u32 v1, s20, v1")
    A("s_waitcnt lgkmcnt(0)")
    for c in range(4):
        for nt in range(2):
            for hi in range(2):
                A(f"ds_read_b64_tr_b16 {v2(136+8*c+4*nt+2*hi)}, v1 offset:{L_WT+(8*c+hi)*64+nt*32}")
    A("s_waitcnt lgkmcnt(0)")
    A("s_branch L_b3")
    A("L_prepf:")
    A("s_lshl_b32 s26, s4, 1\ns_add_u32 s26, s26, s5\ns_sub_u32 s26, s26, 14\ns_lshl_b32 s26, s26, 5\ns_lshl_b32 s20, s3, 3\ns_add_u32 s26, s26, s20")
    A("v_and_b32 v4, 1, v0\nv_lshrrev_b32 v5, 4, v0\nv_lshl_add_u32 v4, v4, 2, v5\nv_add_u32 v4, s26, v4")
    A("v_lshlrev_b32 v5, 1, v4")
    A(f"global_load_ushort v8, v5, {sp(P_X)}")
    A(f"v_lshrrev_b32 v6, 1, v4\nv_lshlrev_b32 v6, 3, v6\nv_add_u32 v6, {WS_MOD}, v6\nv_add_u32 v7, 6144, v6")
    poll("pg", lambda: A(f"global_load_dwordx2 v[10:11], v6, {sp(P_WS)} sc1\nglobal_load_dwordx2 v[12:13], v7, {sp(P_WS)} sc1"),
         lambda: chk_tags([11, 13], 14), hsleep)
    A("v_lshlrev_b32 v8, 16, v8")
    A("v_and_b32 v14, 1, v4\nv_cmp_eq_u32 vcc, 0, v14")
    A("v_lshlrev_b32 v14, 16, v10\nv_and_b32 v15, 0xffff0000, v10\nv_cndmask_b32 v9, v15, v14, vcc")
    A("v_lshlrev_b32 v14, 16, v12\nv_and_b32 v15, 0xffff0000, v12\nv_cndmask_b32 v10, v15, v14, vcc")
    A("L_b3:")
    stamp(5)
    A("s_barrier")
    A("s_cmp_lg_u32 s3, 2\ns_cbranch_scc1 L_tail")
    for w in range(8):
        A(f"ds_read_b128 {v4(40+8*w)}, v2 offset:{L_OP+w*2048}")
        A(f"ds_read_b128 {v4(44+8*w)}, v2 offset:{L_OP+w*2048+1024}")
    if alayout == 1:
        A(f"s_lshl_b32 s20, s4, 15\ns_lshl_b32 s21, s5, 10\ns_add_u32 s20, s20, s21\ns_add_u32 s20, s20, {WS_A}\nv_add_u32 v1, s20, v2")
    else:
        A(f"s_lshl_b32 s20, s4, 15\ns_lshl_b32 s21, s5, 6\ns_add_u32 s20, s20, s21\ns_add_u32 s20, s20, {WS_A}")
        A("v_lshrrev_b32 v1, 2, v0\nv_lshlrev_b32 v1, 11, v1\nv_and_b32 v39, 3, v0\nv_lshl_add_u32 v1, v39, 4, v1\nv_add_u32 v1, s20, v1")
    for w in range(8):
        A(f"s_waitcnt lgkmcnt({14-2*w})")
        for q in range(4):
            f = sp(64 + 4 * w + 2 * (q & 1))
            if w == 0: A(f"v_pk_mul_f32 {v2(40+2*q)}, {v2(40+2*q)}, {f}")
            else: A(f"v_pk_fma_f32 {v2(40+2*q)}, {v2(40+8*w+2*q)}, {f}, {v2(40+2*q)}")
    for q in range(4): A(f"v_cvt_pk_bf16_f32 v{48+q}, v{40+2*q}, v{41+2*q}")
    for q in range(4): A(f"v_min_u32 v{48+q}, -2, v{48+q}")
    A(f"global_store_dwordx4 v1, v[48:51], {sp(P_WS)} sc1")
    stamp(3)
    A("L_tail:")
    A("s_cmp_ge_u32 s5, 16\ns_cbranch_scc1 L_tb\ns_cmp_ge_u32 s5, 14\ns_cbranch_scc1 L_tf")
    A("v_lshrrev_b32 v1, 4, v0\nv_lshlrev_b32 v1, 8, v1\nv_bfe_u32 v36, v0, 2, 2\nv_lshl_add_u32 v1, v36, 5, v1\nv_and_b32 v36, 3, v0\nv_lshl_add_u32 v1, v36, 3, v1")
    for c in range(16):
        for hi in range(2):
            A(f"ds_read_b64_tr_b16 {v2(40+4*c+2*hi)}, v1 offset:{L_WT+(32*c+4*hi)*32}")
        if c % 4 == 3: A("s_waitcnt lgkmcnt(0)")
    for i in range(4):
        A(f"s_mov_b32 s{28+2*i}, {0x11111111<<i:#x}\ns_mov_b32 s{29+2*i}, {0x11111111<<i:#x}")
    A(f"s_lshl_b32 s20, s3, 12\ns_add_u32 s20, s20, {WS_B}\nv_add_u32 v36, s20, v2")
    A(f"s_lshl_b32 s20, s3, 11\nv_add_u32 v37, s20, v2")
    A(f"s_lshl_b32 s20, s3, 10\nv_lshl_add_u32 v38, v0, 3, s20")
    A(f"v_lshrrev_b32 v39, 4, v0\nv_lshl_add_u32 v39, v39, 4, s20")
    A(f"s_lshl_b32 s20, s26, 11\ns_lshl_b32 s21, s3, 9\ns_add_u32 s20, s20, s21\ns_add_u32 s20, s20, {WS_C}\nv_lshl_add_u32 v1, v0, 5, s20")
    G = 104
    poll("pb", lambda: [A(f"global_load_dwordx4 {v4(G+4*i)}, v36, {sp(P_WS)} offset:{1024*i} sc1") for i in range(4)],
         lambda: chk_sent(range(G, G + 16), 152), tsleep)
    stamp(6)
    for q in range(4): A(f"v_pk_add_f32 {v2(G+2*q)}, {v2(G+2*q)}, {v2(G+8+2*q)}")
    A(f"ds_write_b128 v37, {v4(G)} offset:{L_EX}\nds_write_b128 v37, {v4(G+4)} offset:{L_EX+1024}")
    A("s_waitcnt lgkmcnt(0)\ns_barrier")
    for w in range(4):
        A(f"ds_read_b128 {v4(G+8*w)}, v2 offset:{L_EX+2048*w}\nds_read_b128 {v4(G+8*w+4)}, v2 offset:{L_EX+2048*w+1024}")
    for w in range(1, 4):
        A(f"s_waitcnt lgkmcnt({6-2*w})")
        for q in range(4): A(f"v_pk_add_f32 {v2(G+2*q)}, {v2(G+2*q)}, {v2(G+8*w+2*q)}")
    for q in range(4): A(f"v_pk_fma_f32 {v2(4+2*q)}, {v2(G+2*q)}, {v2(12+2*q)}, {v2(4+2*q)}")
    A("v_pk_add_f32 v[152:153], v[4:5], v[6:7]\nv_pk_add_f32 v[154:155], v[8:9], v[10:11]\nv_pk_add_f32 v[152:153], v[152:153], v[154:155]\nv_add_f32 v152, v152, v153")
    wave_reduce("v_add_f32", 152, 153)
    A(f"v_mul_f32 v152, {f2x(1/512)}, v152")
    for i in range(8): A(f"v_sub_f32 v{4+i}, v{4+i}, v152")
    A("v_mul_f32 v154, v4, v4\nv_mul_f32 v155, v5, v5")
    for i in range(2, 8): A(f"v_fmac_f32 v{154+(i&1)}, v{4+i}, v{4+i}")
    A("v_add_f32 v154, v154, v155")
    for i in range(8): A(f"v_mul_f32 v{4+i}, v{4+i}, v{28+i}")
    wave_reduce("v_add_f32", 154, 153)
    A(f"v_mov_b32 v153, {f2x(1e-5)}\nv_fmac_f32 v153, {f2x(1/512)}, v154\nv_rsq_f32 v153, v153")
    for i in range(8): A(f"v_fma_f32 v{4+i}, v{4+i}, v153, v{20+i}")
    for q in range(4): A(f"v_cvt_pk_bf16_f32 v{4+q}, v{4+2*q}, v{5+2*q}")
    A(f"ds_write_b64 v38, v[4:5] offset:{L_H2}\nds_write_b64 v38, v[6:7] offset:{L_H2+512}")
    HB = lambda c: (104 + 4 * c) if c < 8 else (8 + 4 * (c - 8)) if c < 15 else 152
    for c in range(16):
        A(f"ds_read_b128 {v4(HB(c))}, v39 offset:{L_H2+64*c}")
        if c == 11: A("s_waitcnt lgkmcnt(10)")
    for c in range(16):
        A(f"s_waitcnt lgkmcnt({min(15-c,15)})")
        A(f"v_mfma_f32_16x16x32_bf16 v[156:159], {v4(40+4*c)}, {v4(HB(c))}, {'0' if c==0 else 'v[156:159]'}")
    for i in range(4): A(f"v_max_f32 v{156+i}, 0, v{156+i}")
    A("v_cvt_pk_bf16_f32 v156, v156, v157\nv_cvt_pk_bf16_f32 v157, v158, v159")
    for i in range(4):
        A(f"v_cndmask_b32 v{104+2*i}, 0, v156, {sp(28+2*i)}\nv_cndmask_b32 v{105+2*i}, 0, v157, {sp(28+2*i)}")
    for i in range(4):
        for hf in range(2):
            d = 160 + 4 * hf
            A(f"v_mfma_f32_16x16x16_bf16 {v4(d)}, {v2(104+2*i)}, {v2(136+2*(4*hf+i))}, {'0' if i==0 else v4(d)}")
    for i in range(8): A(f"v_min_u32 v{160+i}, -2, v{160+i}")
    A("s_mov_b64 exec, 0xffff")
    A(f"global_store_dwordx4 v1, v[160:163], {sp(P_WS)} sc1\nglobal_store_dwordx4 v1, v[164:167], {sp(P_WS)} offset:16 sc1")
    stamp(7)
    end_wave()
    A("L_tb:")
    if alayout == 1:
        A("v_and_b32 v1, 15, v0\nv_lshlrev_b32 v1, 10, v1\nv_lshrrev_b32 v4, 4, v0\nv_lshl_add_u32 v1, v4, 4, v1")
        A(f"s_lshl_b32 s20, s4, 15\ns_lshl_b32 s21, s3, 8\ns_add_u32 s20, s20, s21\ns_add_u32 s20, s20, {WS_A}\nv_add_u32 v1, s20, v1\nv_add_u32 v12, 16384, v1")
        lda = lambda: [A(f"global_load_dwordx4 {v4(40+8*c+4*s_)}, v{1 if s_==0 else 12}, {sp(P_WS)} offset:{64*c} sc1") for c in range(4) for s_ in range(2)]
    else:
        A("v_and_b32 v1, 15, v0\nv_lshlrev_b32 v1, 6, v1\nv_lshrrev_b32 v4, 4, v0\nv_lshl_add_u32 v1, v4, 4, v1")
        A(f"s_lshl_b32 s20, s4, 15\ns_lshl_b32 s21, s3, 13\ns_add_u32 s20, s20, s21\ns_add_u32 s20, s20, {WS_A}\nv_add_u32 v1, s20, v1\nv_add_u32 v12, 4096, v1")
        lda = lambda: [A(f"global_load_dwordx4 {v4(40+8*c+4*s_)}, v{1 if c<2 else 12}, {sp(P_WS)} offset:{2048*(c&1)+1024*s_} sc1") for c in range(4) for s_ in range(2)]
    A("v_and_b32 v13, 15, v0\nv_lshrrev_b32 v14, 5, v0\nv_lshl_add_u32 v13, v14, 4, v13\ns_lshl_b32 s20, s3, 7\nv_lshl_add_u32 v13, v13, 2, s20")
    A(f"s_lshl_b32 s20, s4, 11\ns_sub_u32 s21, s5, 16\ns_lshl_b32 s21, s21, 7\ns_add_u32 s20, s20, s21\ns_add_u32 s20, s20, {WS_B}\nv_add_u32 v14, s20, v2")
    poll("pa", lda, lambda: chk_sent(range(40, 72), 15), tsleep)
    stamp(6)
    first = True
    for c in range(4):
        for s_ in range(2):
            for nt in range(2):
                d = 4 + 4 * nt
                A(f"v_mfma_f32_16x16x32_bf16 {v4(d)}, {v4(40+8*c+4*s_)}, {v4(136+8*c+4*nt)}, {'0' if first else v4(d)}")
            first = False
    A("v_add_f32 v4, v4, v5\nv_add_f32 v6, v6, v7\nv_add_f32 v8, v8, v9\nv_add_f32 v10, v10, v11\nv_add_f32 v4, v4, v6\nv_add_f32 v8, v8, v10")
    A("v_permlane32_swap_b32 v4, v8\nv_add_f32 v4, v4, v8")
    xrow("v_add_f32", 4, 5, 16)
    A(f"ds_write_b32 v13, v4 offset:{L_RED}")
    A("s_waitcnt lgkmcnt(0)\ns_barrier")
    A("s_cmp_lg_u32 s3, 0\ns_cbranch_scc1 L_tbe")
    A("s_mov_b64 exec, 0xff")
    for w in range(4): A(f"ds_read_b128 {v4(16+4*w)}, v2 offset:{L_RED+128*w}")
    A("s_waitcnt lgkmcnt(2)\nv_pk_add_f32 v[16:17], v[16:17], v[20:21]\nv_pk_add_f32 v[18:19], v[18:19], v[22:23]")
    A("s_waitcnt lgkmcnt(0)\nv_pk_add_f32 v[24:25], v[24:25], v[28:29]\nv_pk_add_f32 v[26:27], v[26:27], v[30:31]")
    A("v_pk_add_f32 v[16:17], v[16:17], v[24:25]\nv_pk_add_f32 v[18:19], v[18:19], v[26:27]")
    for i in range(4): A(f"v_min_u32 v{16+i}, -2, v{16+i}")
    A(f"global_store_dwordx4 v14, v[16:19], {sp(P_WS)} sc1")
    stamp(7)
    A("L_tbe:")
    end_wave()
    A("L_tf:")
    A(f"v_bfe_u32 v6, v0, 1, 3\nv_lshlrev_b32 v6, 11, v6\nv_lshl_add_u32 v6, v4, 2, v6\nv_add_u32 v6, {WS_B}, v6")
    A(f"v_lshrrev_b32 v7, 1, v0\nv_lshlrev_b32 v7, 11, v7\nv_and_b32 v11, 1, v0\nv_lshl_add_u32 v7, v11, 4, v7\ns_lshl_b32 s20, s26, 2\ns_add_u32 s20, s20, {WS_C}\nv_add_u32 v7, s20, v7")
    for i in range(1, 4): A(f"v_add_u32 v{11+i}, {65536*i}, v7")
    for i in range(4): A(f"v_mov_b32 v{28+i}, 0")
    poll("pxb", lambda: A(f"global_load_dword v11, v6, {sp(P_WS)} sc1"), lambda: chk_sent([11], 15), 4)
    inrow("v_add_f32", 11, ["row_ror:8", "row_ror:4", "quad_perm:[2,3,0,1]"])
    A("v_fma_f32 v8, v9, v11, v8")
    stamp(6)
    def ldc():
        for i in range(3): A(f"global_load_dwordx4 {v4(16+4*i)}, v{7 if i==0 else 11+i}, {sp(P_WS)} sc1")
        A("s_mov_b32 exec_hi, 0")
        A(f"global_load_dwordx4 v[28:31], v14, {sp(P_WS)} sc1")
        A("s_mov_b32 exec_hi, -1")
    poll("pc", ldc, lambda: chk_sent(range(16, 32), 15), tsleep)
    stamp(7)
    A("v_pk_add_f32 v[16:17], v[16:17], v[20:21]\nv_pk_add_f32 v[18:19], v[18:19], v[22:23]\nv_pk_add_f32 v[24:25], v[24:25], v[28:29]\nv_pk_add_f32 v[26:27], v[26:27], v[30:31]")
    A("v_pk_add_f32 v[16:17], v[16:17], v[24:25]\nv_pk_add_f32 v[18:19], v[18:19], v[26:27]")
    A("v_permlane32_swap_b32 v16, v18\nv_permlane32_swap_b32 v17, v19\nv_add_f32 v16, v16, v18\nv_add_f32 v17, v17, v19")
    A("v_permlane16_swap_b32 v16, v17\nv_add_f32 v16, v16, v17")
    inrow("v_add_f32", 16, ["row_ror:8", "row_ror:4", "quad_perm:[2,3,0,1]"])
    A("v_fma_f32 v16, v10, v16, v8\nv_cvt_pk_bf16_f32 v16, v16, v16")
    A("s_mov_b32 exec_lo, 0x00030003\ns_mov_b32 exec_hi, 0x00030003")
    A(f"global_store_short v5, v16, {sp(P_OUT)}")
    A("s_cmp_lg_u32 s26, 0\ns_cbranch_scc1 L_tfe")
    A("s_mov_b64 exec, 1\nv_mov_b32 v17, 0\nv_mov_b32 v18, s6")
    A(f"global_store_dword v17, v18, {sp(P_WS)}")
    A("L_tfe:")
    stamp(4)
    end_wave()
    A("L_exit:\ns_endpgm")
    A('.section .rodata,"a"\n.p2align 6')
    A(f".amdhsa_kernel {NAME}")
    for l in ["next_free_vgpr 168", "next_free_sgpr 102", "accum_offset 168", "group_segment_fixed_size 0", "kernarg_size 104",
              "user_sgpr_count 2", "user_sgpr_kernarg_segment_ptr 1", "system_sgpr_workgroup_id_x 1"]:
        A("  .amdhsa_" + l)
    A(".end_amdhsa_kernel")
    return A.finish()

if __name__ == "__main__":
    out = sys.argv[1]; kw = {}
    for a in sys.argv[2:]:
        k, v = a.split("=", 1)
        try: v = ast.literal_eval(v)
        except Exception: pass
        kw[k] = v
    open(out, "w").write(gen(**kw))
```

```python
import sys, struct, ast
from asmlib import Asm
NAME = "adaLN_cond__gqa_block_cached__dense_activation_relu__decode_kernel"
def f2x(f): return "0x%08x" % struct.unpack("<I", struct.pack("<f", f))[0]

WS_QL = 0x10000; WS_H = 0x1000; WS_MOD = 0x4000; WS_Q = 0x8000; WS_ST = 0xC000
WS_AL = 0x180000; WS_A = 0x100000; WS_B = 0x140000; WS_C = 0x160000
WS_STAMP = 0x8000000
L_CG = 0; L_FQ = 4; L_CS = 8; L_CO = 12; L_CP = 16; L_FK = 20; L_CV = 24; L_CW = 28; L_MK = 32
L_ST = 256; L_Q = 1024; L_GP = 2048; L_X = 3072; L_RED = 4096; L_U = 5120; L_GS = 8192
L_OP = 16384; L_WT = 32768; LDS_SIZE = 98304
DPPF = "row_mask:0xf bank_mask:0xf"
P_X, P_K, P_V, P_WQ, P_WO, P_BX, P_W1, P_W2, P_C, P_WM, P_OUT, P_DBG, P_WS = [36 + 2 * i for i in range(13)]
def sp(n): return f"s[{n}:{n+1}]"
def v4(n): return f"v[{n}:{n+3}]"
def v2(n): return f"v[{n}:{n+1}]"
WS = sp(P_WS)

def gen(win=5, win2=6, wpol="nt", stamps=0, spin=200000, hsleep=4, qsleep=8, tsleep=1, pace=4, cpre=1, kprio=0, skipw=0, vmid=4, nopoll='', qtrig=22, R=4, cdefer=1, csleep=2, nH=33, nX=31, nL=34, loc=1, lpol='sc1', w1pol='nt', nocomp=0, nosvc=0, sprio=3, nopre=0, nocw=0, lmul=1, xit='', qloc=1, strig=1, qtrig2=38, kpol='nt', vpol='nt', slowfb=0):
    A = Asm()
    hdr = open("cdna_kernels/" + NAME[:-7] + ".s.ref").read().split("; Override")[0]
    A(hdr.rstrip())
    A(f"; @launch grid=(256,1,1) block=(768,1,1) lds={LDS_SIZE}")
    A('.amdgcn_target "amdgcn-amd-amdhsa--gfx950"')
    A(f".text\n.globl {NAME}\n.p2align 8\n.type {NAME},@function\n{NAME}:")
    def stamp(k):
        if stamps:
            A("s_memrealtime s[62:63]\ns_waitcnt lgkmcnt(0)")
            A(f"v_writelane_b32 v3, s62, {k}")
    def end_wave():
        if stamps:
            A("s_branch L_stampout")
        else:
            A("s_endpgm")
    def srd(d, p, size):
        A(f"s_mov_b32 s{d}, s{p}\ns_mov_b32 s{d+1}, s{p+1}\ns_mov_b32 s{d+2}, {size}\ns_mov_b32 s{d+3}, 0x20000")
    def poll(name, loads, check, sleep):
        if name in nopoll.split('+'): return
        top = A.label(name); done = A.label(name + "d")
        A(f"s_mov_b32 s7, {spin}")
        A(f"{top}:")
        loads()
        A("s_waitcnt vmcnt(0)")
        check()
        A(f"s_cbranch_vccz {done}")
        A("s_mov_b64 exec, vcc")
        if sleep: A(f"s_sleep {sleep}")
        A("s_sub_u32 s7, s7, 1")
        A(f"s_cbranch_scc0 {top}")
        A(f"{done}:")
        A("s_mov_b64 exec, -1")
    def lspin(name, off, n, vz, vt, sleep=1, extra=None):
        top = A.label(name); done = A.label(name + "d")
        A(f"s_mov_b32 s7, {spin*20}")
        A(f"{top}:")
        A(f"ds_read_b32 v{vt}, v{vz} offset:{off}")
        if extra: extra()
        A("s_waitcnt lgkmcnt(0)")
        A(f"v_cmp_gt_u32 vcc, {n}, v{vt}")
        A(f"s_cbranch_vccz {done}")
        if lmul > 1: sleep = min(127, max(sleep, 1) * lmul)
        if sleep: A(f"s_sleep {sleep}")
        A("s_sub_u32 s7, s7, 1")
        A(f"s_cbranch_scc0 {top}")
        A(f"{done}:")
    def chk_tags(regs, tmp):
        A(f"v_xor_b32 v{tmp}, s6, v{regs[0]}")
        for r in regs[1:]:
            A(f"v_xor_b32 v{tmp+1}, s6, v{r}")
            A(f"v_or_b32 v{tmp}, v{tmp}, v{tmp+1}")
        A(f"v_cmp_ne_u32 vcc, 0, v{tmp}")
    def chk_sent(regs, tmp):
        regs = list(regs)
        if len(regs) == 1:
            A(f"v_cmp_eq_u32 vcc, -1, v{regs[0]}"); return
        if len(regs) == 2:
            A(f"v_max_u32 v{tmp}, v{regs[0]}, v{regs[1]}"); rest = []
        else:
            A(f"v_max3_u32 v{tmp}, v{regs[0]}, v{regs[1]}, v{regs[2]}"); rest = regs[3:]
        while rest:
            if len(rest) == 1:
                A(f"v_max_u32 v{tmp}, v{tmp}, v{rest[0]}"); rest = []
            else:
                A(f"v_max3_u32 v{tmp}, v{tmp}, v{rest[0]}, v{rest[1]}"); rest = rest[2:]
        A(f"v_cmp_eq_u32 vcc, -1, v{tmp}")
    def xrow(op, v, tmp, which):
        A(f"v_mov_b32 v{tmp}, v{v}")
        A(f"v_permlane{which}_swap_b32 v{v}, v{tmp}")
        A(f"{op} v{v}, v{v}, v{tmp}")
    def inrow(op, v, steps):
        for s in steps:
            A(f"{op}_dpp v{v}, v{v}, v{v} {s} {DPPF}")
    def wave_reduce(op, v, tmp):
        inrow(op, v, ["row_ror:8", "row_ror:4", "row_ror:2", "row_ror:1"])
        xrow(op, v, tmp, 16); xrow(op, v, tmp, 32)
    def unpack(dst, src, n):
        for i in range(n):
            A(f"v_lshlrev_b32 v{dst+2*i}, 16, v{src[i]}")
            A(f"v_and_b32 v{dst+2*i+1}, 0xffff0000, v{src[i]}")
    def silu(x, t, n):
        A(f"s_mov_b32 s21, {f2x(-1.4426950408889634)}")
        for i in range(n): A(f"v_mul_f32 v{t+i}, s21, v{x+i}")
        for i in range(n): A(f"v_exp_f32 v{t+i}, v{t+i}")
        for i in range(n): A(f"v_add_f32 v{t+i}, 1.0, v{t+i}")
        for i in range(n): A(f"v_rcp_f32 v{t+i}, v{t+i}")
        for i in range(n): A(f"v_mul_f32 v{x+i}, v{x+i}, v{t+i}")
    def gemv_perm(W, T, npair):
        for u in range(npair):
            for w in range(4):
                a = W + 8 * u + w; b = W + 8 * u + 4 + w
                A(f"v_perm_b32 v{T+8*u+2*w}, v{b}, v{a}, s24")
                A(f"v_perm_b32 v{T+8*u+2*w+1}, v{b}, v{a}, s25")
    def gemv_dot(T, X, acc):
        for u in range(len(X)):
            for e in range(8):
                c = "0" if u == 0 else f"v{acc+e}"
                A(f"v_dot2_f32_bf16 v{acc+e}, v{T+8*u+e}, v{X[u]}, {c}")
    def mktag():
        A("s_waitcnt lgkmcnt(0)\ns_mul_i32 s6, s6, 0x9E3779B1\ns_add_u32 s6, s6, 0x7F4A7C15")
    def paced(loads, w):
        if skipw and (w or skipw > 1): return
        for i, l in enumerate(loads):
            if w and i >= w: A(f"s_waitcnt vmcnt({w-1})")
            A(l)

    A("s_cmp_ge_u32 s2, 256\ns_cbranch_scc1 L_exit")
    A("s_load_dwordx16 s[36:51], s[0:1], 0\ns_load_dwordx8 s[52:59], s[0:1], 64\ns_load_dwordx2 s[60:61], s[0:1], 96")
    A("v_lshrrev_b32 v1, 6, v0\nv_and_b32 v0, 63, v0\nv_readfirstlane_b32 s3, v1")
    A("s_and_b32 s4, s2, 7\ns_lshr_b32 s5, s2, 3")
    A("s_mov_b32 s24, 0x05040100\ns_mov_b32 s25, 0x07060302")
    A("v_lshlrev_b32 v2, 4, v0")
    if stamps:
        A("v_mov_b32 v3, 0"); stamp(0)
    A("s_cmp_ge_u32 s3, 4\ns_cbranch_scc1 L_stream")
    A(f"s_setprio {sprio}")
    if cpre:
        A("s_lshl_b32 s20, s5, 2\ns_add_u32 s20, s20, s3\ns_sub_u32 s20, s20, 96\ns_cmp_ge_u32 s20, 20\ns_cbranch_scc1 L_ncp")
        A(f"s_getpc_b64 s[30:31]\nL_pc:\ns_sub_u32 s30, s30, L_pc-{NAME}\ns_subb_u32 s31, s31, 0")
        A("s_lshl_b32 s20, s20, 10\nv_add_u32 v14, s20, v2")
        A("global_load_dwordx4 v[164:167], v14, s[30:31]")
        A("L_ncp:")
    A("v_lshrrev_b32 v12, 3, v0\nv_and_b32 v13, 7, v0\nv_mov_b32 v16, 0\nv_mov_b32 v17, 0\nv_mov_b32 v18, 0\nv_mov_b32 v19, 0")
    A("ds_write_b128 v16, v[16:19]\nds_write_b128 v16, v[16:19] offset:16")
    A("s_cmp_ge_u32 s5, 4\ns_cbranch_scc1 L_nh")
    A("s_lshr_b32 s20, s5, 1\ns_lshl_b32 s20, s20, 8\ns_lshl_b32 s21, s3, 6\ns_add_u32 s20, s20, s21")
    A("v_lshl_add_u32 v14, v12, 3, s20")
    A("s_mov_b32 s21, 6144\nv_mul_lo_u32 v1, v14, s21\nv_lshl_add_u32 v1, v13, 4, v1\nv_lshlrev_b32 v14, 1, v14")
    A("s_and_b32 s20, s5, 1\ns_lshl_b32 s20, s20, 10\ns_lshl_b32 s21, s4, 7\ns_add_u32 s20, s20, s21")
    A("s_waitcnt lgkmcnt(0)")
    srd(8, P_WM, 512 * 6144)
    A(f"global_load_dwordx4 v[4:7], v14, {sp(P_C)}")
    for i in range(8):
        A(f"buffer_load_dwordx4 {v4(40+4*i)}, v1, s[8:11], s20 offen {wpol}")
        if i < 7: A("s_add_u32 s20, s20, 6144")
    A(f"s_load_dword s6, {WS}, 0")
    A("s_barrier")
    A("s_lshl_b32 s20, s4, 2\ns_add_u32 s20, s20, s5\ns_lshl_b32 s20, s20, 2\ns_add_u32 s20, s20, s3")
    A(f"s_lshl_b32 s21, s20, 10\ns_add_u32 s21, s21, {WS_C}\nv_add_u32 v14, s21, v2")
    A(f"s_lshl_b32 s21, s20, 9\ns_add_u32 s21, s21, {WS_B}\nv_add_u32 v15, s21, v2")
    A("s_cmp_eq_u32 s3, 3\ns_cselect_b32 exec_hi, 0, -1")
    for i in range(4): A(f"v_mov_b32 v{16+i}, -1")
    A("s_mov_b64 exec, -1")
    A(f"global_store_dwordx4 v14, v[16:19], {WS} sc1")
    A("s_mov_b32 exec_hi, 0")
    A(f"global_store_dwordx4 v15, v[16:19], {WS} sc1")
    A("s_mov_b64 exec, -1")
    A("s_waitcnt vmcnt(10)")
    unpack(24, [4, 5, 6, 7], 4); silu(24, 32, 8)
    for i in range(4): A(f"v_cvt_pk_bf16_f32 v{24+i}, v{24+2*i}, v{25+2*i}")
    mktag()
    A(f"s_and_b32 s26, s5, 1\ns_lshl_b32 s26, s26, 12\ns_lshr_b32 s21, s5, 1\ns_lshl_b32 s21, s21, 11\ns_add_u32 s26, s26, s21\ns_lshl_b32 s21, s4, 8\ns_add_u32 s26, s26, s21\ns_add_u32 s26, s26, {WS_H}")
    A("s_waitcnt vmcnt(2)")
    stamp(1)
    gemv_perm(40, 104, 4)
    gemv_dot(104, [24, 25, 26, 27], 32)
    A("L_gfin:")
    acc = 32
    for e in range(4): A(f"v_permlane32_swap_b32 v{acc+e}, v{acc+e+4}")
    for e in range(4): A(f"v_add_f32 v{acc+e}, v{acc+e}, v{acc+e+4}")
    for e in range(2): A(f"v_permlane16_swap_b32 v{acc+e}, v{acc+e+2}")
    for e in range(2): A(f"v_add_f32 v{acc+e}, v{acc+e}, v{acc+e+2}")
    for e in range(2): A(f"v_add_f32_dpp v{acc+e}, v{acc+e}, v{acc+e} row_ror:8 {DPPF}")
    A("v_lshrrev_b32 v14, 4, v0\nv_lshlrev_b32 v14, 3, v14\nv_lshl_add_u32 v14, v13, 5, v14\ns_lshl_b32 s21, s3, 8\nv_add_u32 v14, s21, v14")
    A(f"ds_write_b64 v14, v[32:33] offset:{L_GP}")
    A("v_mov_b32 v14, 0\nv_mov_b32 v15, 1")
    A("s_waitcnt vmcnt(0)")
    A("s_mov_b64 exec, 1")
    A(f"ds_add_rtn_u32 v15, v14, v15 offset:{L_CG}")
    A("s_mov_b64 exec, -1")
    A("v_lshlrev_b32 v14, 3, v0")
    A("s_waitcnt lgkmcnt(0)")
    A("v_readfirstlane_b32 s21, v15")
    A("s_cmp_lg_u32 s21, 3\ns_cbranch_scc1 L_gdone")
    A("s_mov_b32 exec_hi, 0")
    for w in range(4): A(f"ds_read_b64 {v2(32+2*w)}, v14 offset:{L_GP+256*w}")
    A("v_add_u32 v14, s26, v14")
    A("s_waitcnt lgkmcnt(0)")
    A("v_pk_add_f32 v[32:33], v[32:33], v[34:35]\nv_pk_add_f32 v[36:37], v[36:37], v[38:39]\nv_pk_add_f32 v[32:33], v[32:33], v[36:37]")
    A("v_cvt_pk_bf16_f32 v32, v32, v33\nv_mov_b32 v33, s6")
    if qloc:
        A("s_sub_u32 s21, s5, 4\ns_cmp_ge_u32 s21, 8\ns_cbranch_scc1 L_gnl")
        A(f"v_add_u32 v15, {WS_QL-WS_Q}, v14\nglobal_store_dwordx2 v15, v[32:33], {WS}")
        A("L_gnl:")
    A(f"global_store_dwordx2 v14, v[32:33], {WS} sc1")
    A("s_mov_b64 exec, -1")
    A("L_gdone:")
    stamp(3)
    A("s_branch L_qpoll")

    assert 4 * nH + 20 * nX + 8 * nL == 1024
    T = max(nH, nX, nL); T += T & 1
    NM = max(T - 28, 0)
    nmask = T - min(nH, nX, nL)
    NW = 39 - T
    A("L_stream:")
    if kprio: A(f"s_setprio {kprio}")
    A("s_sub_u32 s21, s3, 4")
    A("v_bfe_u32 v1, v0, 2, 2\nv_lshlrev_b32 v1, 8, v1\nv_lshrrev_b32 v4, 4, v0\nv_lshl_add_u32 v1, v4, 6, v1\nv_and_b32 v4, 3, v0\nv_lshl_add_u32 v1, v4, 4, v1")
    A(f"s_mul_i32 s17, s5, {nX}\ns_add_u32 s17, s17, {(4*nH-4*nX-(T-nX)) & 0xffffffff}\ns_mov_b32 s18, {T-nX}")
    A(f"s_mul_i32 s19, s5, {nH}\ns_add_u32 s19, s19, {(-(T-nH)) & 0xffffffff}\ns_cmp_lt_u32 s5, 4\ns_cselect_b32 s17, s19, s17\ns_cselect_b32 s18, {T-nH}, s18")
    A(f"s_mul_i32 s19, s5, {nL}\ns_add_u32 s19, s19, {(4*nH+20*nX-24*nL-(T-nL)) & 0xffffffff}\ns_cmp_ge_u32 s5, 24\ns_cselect_b32 s17, s19, s17\ns_cselect_b32 s18, {T-nL}, s18")
    A("s_lshl_b32 s17, s17, 13\ns_lshl_b32 s16, s4, 23\ns_add_u32 s17, s17, s16")
    A(f"s_lshl_b32 s16, s21, 12\ns_add_u32 s16, s16, s17\ns_add_u32 s16, s16, {NM*8192}\ns_lshl_b32 s19, s21, 10\ns_add_u32 s17, s17, s19")
    A("s_cmp_ge_u32 s5, 4\ns_cbranch_scc1 L_s1\ns_barrier\nL_s1:")
    A("s_waitcnt lgkmcnt(0)")
    srd(8, P_K, 0x4000000); srd(12, P_V, 0x4000000)
    KR = lambda t: 168 - 4 * T + 4 * t
    nS = (T + 3) // 4; nP = (T + 7) // 8
    first_v = nS - 1 + nP + 1
    vslots = [12 + 4 * i for i in range(NW)] + [KR(i) for i in range(first_v, T)]
    VR = lambda t: vslots[t % len(vslots)]
    st = {"cur": None}
    MP = NM - nmask + 12
    perm = list(range(nmask, nmask + MP)) + list(range(nmask)) + list(range(nmask + MP, T))
    def ld(which, t):
        o = perm[t]
        if o < NM:
            A(f"s_add_u32 s20, s17, {o*8192}"); st["cur"] = None; imm = 0
            if o < nmask: A(f"s_cmp_gt_u32 s18, {o}\ns_cselect_b32 s20, 0x4000000, s20")
        else:
            key = (o - NM) >> 2; imm = ((o - NM) & 3) * 1024
            if st["cur"] != key:
                A(f"s_add_u32 s20, s16, {key*32768}"); st["cur"] = key
        if which == "K": A(f"buffer_load_dwordx4 {v4(KR(t))}, v1, s[8:11], s20 offen offset:{imm} {kpol}")
        else: A(f"buffer_load_dwordx4 {v4(VR(t))}, v2, s[12:15], s20 offen offset:{imm} {vpol}")
    korder = list(range(T))
    seq = [("K", t) for t in korder] + [("V", t) for t in range(NW)]
    for i, (wh, t) in enumerate(seq):
        if i == win: A("s_cmp_lt_u32 s5, 4\ns_cbranch_scc1 L_s2\ns_barrier\nL_s2:")
        if i == T and kprio: A("s_setprio 0")
        if i >= win: A(f"s_waitcnt vmcnt({win-1})")
        ld(wh, t)
        if i == qtrig: A(f"v_mov_b32 v8, 0\nv_mov_b32 v9, 1\nds_max_u32 v8, v9 offset:{L_FK}")
        if i == qtrig2 and qloc: A(f"v_mov_b32 v8, 0\nv_mov_b32 v9, 2\nds_max_u32 v8, v9 offset:{L_FK}")
    viss = NW
    A("v_and_b32 v8, 3, v0\nv_lshlrev_b32 v8, 8, v8\nv_lshrrev_b32 v9, 4, v0\nv_lshl_add_u32 v8, v9, 6, v8\nv_bfe_u32 v9, v0, 2, 2\nv_lshl_add_u32 v8, v9, 4, v8\nv_mov_b32 v9, 0")
    A(f"s_mov_b32 s22, {f2x(128**-0.5*1.4426950408889634)}")
    for t in range(nmask): A(f"s_cmp_gt_u32 s18, {t}\ns_cselect_b32 s{28+t}, 0xff800000, 0")
    stamp(1)
    lspin("sq", L_FQ, 1, 9, 10, 2, lambda: A(f"ds_read_b128 v[4:7], v8 offset:{L_Q}"))
    A(f"s_waitcnt vmcnt({NW})")
    stamp(2)
    DR = lambda t: 8 if t == 0 else KR(t - 1)
    SR = lambda t: (8 + t) if t < 4 else KR((t >> 2) - 1) + (t & 3)
    def M(t): A(f"v_mfma_f32_16x16x32_bf16 {v4(DR(t))}, {v4(KR(t))}, v[4:7], 0")
    def AB(t):
        d = DR(t)
        A(f"v_add_f32_dpp v{d}, v{d+1}, v{d} row_shl:4 {DPPF} bound_ctrl:0")
        A(f"v_add_f32_dpp v{d+2}, v{d+3}, v{d+2} row_shl:4 {DPPF} bound_ctrl:0")
    def S(t):
        d = DR(t)
        A(f"v_add_f32_dpp v{SR(t)}, v{d+2}, v{d} row_shl:8 {DPPF} bound_ctrl:0")
    mark0 = len(A.lines)
    M(0); M(1); M(2)
    for t in range(T + 1):
        if t < T: AB(t)
        if t >= 1:
            S(t - 1)
            if vmid and t - 2 >= first_v and (t - 2 - first_v) % vmid == 0:
                ld("V", viss); viss += 1
        if t + 3 < T: M(t + 3)
    TM = KR(first_v - 1)
    Sl = [SR(t) for t in range(T)]
    for t in range(nmask): A(f"v_add_f32 v{Sl[MP+t]}, s{28+t}, v{Sl[MP+t]}")
    A(f"v_max3_f32 v{TM}, v{Sl[0]}, v{Sl[1]}, v{Sl[2]}")
    A(f"v_max3_f32 v{TM+1}, v{Sl[3]}, v{Sl[4]}, v{Sl[5]}")
    i = 6; k = 0
    while i < T:
        A(f"v_max3_f32 v{TM+k}, v{TM+k}, v{Sl[i]}, v{Sl[i+1]}"); i += 2; k ^= 1
    A(f"v_max_f32 v{TM}, v{TM}, v{TM+1}")
    xrow("v_max_f32", TM, TM + 1, 16); xrow("v_max_f32", TM, TM + 1, 32)
    A(f"v_mul_f32 v{TM}, s22, v{TM}")
    for t in range(T): A(f"v_fma_f32 v{Sl[t]}, v{Sl[t]}, s22, -v{TM}")
    for t in range(T): A(f"v_exp_f32 v{Sl[t]}, v{Sl[t]}")
    if vmid: ld("V", viss); viss += 1
    A(f"v_add_f32 v{TM+1}, v{Sl[0]}, v{Sl[1]}\nv_add_f32 v{TM+2}, v{Sl[2]}, v{Sl[3]}")
    for t in range(4, T): A(f"v_add_f32 v{TM+1+(t&1)}, v{TM+1+(t&1)}, v{Sl[t]}")
    A(f"v_add_f32 v{TM+1}, v{TM+1}, v{TM+2}")
    xrow("v_add_f32", TM + 1, TM + 2, 16); xrow("v_add_f32", TM + 1, TM + 2, 32)
    A(f"s_lshl_b32 s19, s21, 5\nv_lshl_add_u32 v{TM+2}, v0, 3, s19\nv_mov_b32 v4, 0\nv_mov_b32 v5, 1")
    A("s_mov_b64 exec, 0xf")
    A(f"ds_write_b64 v{TM+2}, {v2(TM)} offset:{L_ST}")
    A("s_mov_b64 exec, 1")
    A(f"ds_add_u32 v4, v5 offset:{L_CS}")
    A("s_mov_b64 exec, -1")
    PR = lambda u: KR(nS - 1 + u)
    for t in range(0, T, 2): A(f"v_cvt_pk_bf16_f32 v{PR(t//8)+(t%8)//2}, v{Sl[t]}, v{Sl[t+1]}")
    rem = T % 8
    assert rem in (0, 2, 4)
    if rem == 2: A(f"v_mov_b32 v{PR(nP-1)+1}, 0")
    A("s_waitcnt lgkmcnt(0)")
    stamp(3)
    ACC = [8] + [KR(i) for i in range(7)]
    TT = [TM, 4]
    def pv(u):
        n = min(8, T - 8 * u)
        for e in range(8):
            Tm = TT[e & 1]
            for p in range(n // 2):
                a = VR(8 * u + 2 * p) + (e >> 1); b = VR(8 * u + 2 * p + 1) + (e >> 1)
                A(f"v_perm_b32 v{Tm+p}, v{b}, v{a}, s{24+(e&1)}")
            c = "0" if u == 0 else v4(ACC[e])
            if n == 8: A(f"v_mfma_f32_16x16x32_bf16 {v4(ACC[e])}, {v4(Tm)}, {v4(PR(u))}, {c}")
            else: A(f"v_mfma_f32_16x16x16_bf16 {v4(ACC[e])}, {v2(Tm)}, {v2(PR(u))}, {c}")
    ns = len(vslots)
    while viss < min(win2, ns):
        ld("V", viss); viss += 1
    done_u = 0
    for L in range(T):
        last = (L % 8 == 7) or L == T - 1
        if L == T - 1:
            A(f"s_waitcnt lgkmcnt(0)\ns_lshl_b32 s19, s21, 11\nv_and_b32 v1, 3, v0\nv_lshlrev_b32 v1, 6, v1\nv_lshrrev_b32 v2, 4, v0\nv_lshl_add_u32 v1, v2, 4, v1\nv_add_u32 v1, s19, v1\nv_mov_b32 v{PR(0)}, 0\nv_mov_b32 v{PR(0)+1}, 1")
        can = lambda: viss < T and viss - 1 - L < win2 and (viss < ns or done_u > (viss - ns) // 8)
        if can() or last:
            A(f"s_waitcnt vmcnt({viss-1-L})")
        while can():
            ld("V", viss); viss += 1
            if viss == T:
                A(f"v_mov_b32 v1, 0\nv_mov_b32 v2, 1\ns_mov_b64 exec, 1\nds_add_u32 v1, v2 offset:{L_CV}\ns_mov_b64 exec, -1")
        if last:
            if L == T - 1: stamp(4)
            pv(L // 8); done_u += 1
    assert viss == T
    if nocomp:
        keep = [l for l in A.lines[mark0:] if not l.startswith(("v_mfma", "v_perm_b32", "v_add_f32", "v_exp", "v_fma", "v_max", "v_cvt", "v_permlane"))]
        A.lines[mark0:] = keep
    A("s_mov_b32 exec_lo, 0x000f000f\ns_mov_b32 exec_hi, 0x000f000f")
    for e in range(8): A(f"ds_write_b128 v1, {v4(ACC[e])} offset:{L_OP+e*256}")
    A("s_mov_b64 exec, 1")
    A(f"ds_add_u32 v{PR(0)}, v{PR(0)+1} offset:{L_CO}")
    if stamps: A("s_waitcnt lgkmcnt(0)")
    stamp(5)
    end_wave()

    A("L_nh:")
    A("s_cmp_ge_u32 s5, 12\ns_cbranch_scc1 L_nq")
    A("v_lshlrev_b32 v1, 17, v12\nv_lshl_add_u32 v1, v13, 4, v1")
    A("s_lshl_b32 s20, s3, 20\ns_lshl_b32 s21, s4, 10\ns_add_u32 s20, s20, s21\ns_sub_u32 s26, s5, 4\ns_lshl_b32 s21, s26, 7\ns_add_u32 s20, s20, s21")
    A("s_lshl_b32 s21, s3, 8\nv_lshl_add_u32 v14, v0, 2, s21")
    A("s_waitcnt lgkmcnt(0)")
    srd(8, P_WQ, 512 * 8192)
    A(f"global_load_dwordx4 v[8:11], v2, {sp(P_X)}\nglobal_load_dword v15, v14, {sp(P_X)}")
    for i in range(16):
        A(f"buffer_load_dwordx4 {v4(40+4*i)}, v1, s[8:11], s20 offen {wpol}")
        if i < 15: A("s_add_u32 s20, s20, 8192")
    A(f"s_load_dword s6, {WS}, 0")
    A("s_barrier")
    A(f"s_lshl_b32 s26, s26, 8\ns_lshl_b32 s21, s4, 11\ns_add_u32 s26, s26, s21\ns_add_u32 s26, s26, {WS_Q}")
    A("s_waitcnt vmcnt(16)")
    unpack(32, [8, 9, 10, 11], 4)
    A("v_add_f32 v4, v32, v33")
    for i in range(2, 8): A(f"v_add_f32 v4, v4, v{32+i}")
    wave_reduce("v_add_f32", 4, 5)
    A(f"v_mul_f32 v4, {f2x(1/512)}, v4")
    for i in range(8): A(f"v_sub_f32 v{32+i}, v{32+i}, v4")
    A("v_mul_f32 v6, v32, v32")
    for i in range(1, 8): A(f"v_fmac_f32 v6, v{32+i}, v{32+i}")
    wave_reduce("v_add_f32", 6, 5)
    A(f"v_mov_b32 v5, {f2x(1e-5)}\nv_fmac_f32 v5, {f2x(1/512)}, v6\nv_rsq_f32 v5, v5")
    unpack(8, [15], 1)
    A("v_sub_f32 v8, v8, v4\nv_sub_f32 v9, v9, v4\nv_mul_f32 v8, v8, v5\nv_mul_f32 v9, v9, v5")
    A(f"v_lshlrev_b32 v15, 1, v14\nv_add_u32 v15, {WS_H}, v15\nv_add_u32 v10, 4096, v15")
    mktag()
    A("s_waitcnt vmcnt(0)")
    stamp(1)
    gemv_perm(40, 104, 8)
    poll("ph", lambda: [A(f"global_load_dwordx2 {v2(16+2*k)}, v{15 if k<2 else 10}, {WS} offset:{2048*(k&1)} sc1") for k in range(4)],
         lambda: chk_tags([17, 19, 21, 23], 4), hsleep)
    stamp(2)
    unpack(24, [16, 18, 20, 22], 4)
    A("v_pk_add_f32 v[24:25], v[24:25], v[26:27]\nv_pk_add_f32 v[28:29], v[28:29], v[30:31]")
    A("v_add_f32 v28, 1.0, v28\nv_add_f32 v29, 1.0, v29\nv_pk_fma_f32 v[24:25], v[8:9], v[28:29], v[24:25]")
    A("L_gx:")
    A("v_cvt_pk_bf16_f32 v24, v24, v25")
    A(f"ds_write_b32 v14, v24 offset:{L_X}")
    A("s_lshl_b32 s21, s3, 8\nv_lshl_add_u32 v15, v12, 5, s21")
    A(f"ds_read_b128 v[24:27], v15 offset:{L_X}\nds_read_b128 v[28:31], v15 offset:{L_X+16}")
    A("s_waitcnt lgkmcnt(0)")
    gemv_dot(104, list(range(24, 32)), 32)
    A("s_branch L_gfin")

    A("L_nq:")
    A("s_waitcnt lgkmcnt(0)")
    A(f"s_load_dword s6, {WS}, 0")
    A("s_barrier")
    mktag()
    A("L_role:")
    A("s_cmp_ge_u32 s5, 24\ns_cbranch_scc1 L_qpoll")
    A("s_cmp_ge_u32 s5, 16\ns_cbranch_scc1 L_wb")
    A("s_mov_b32 s21, 98304\nv_mul_lo_u32 v1, v12, s21\nv_lshl_add_u32 v1, v13, 4, v1")
    A(f"s_mul_i32 s20, s3, {128*6144}\ns_sub_u32 s26, s5, 10\ns_lshl_b32 s26, s26, 10\ns_lshl_b32 s21, s4, 7\ns_add_u32 s26, s26, s21\ns_add_u32 s20, s20, s26")
    A("s_lshl_b32 s21, s3, 8\nv_lshl_add_u32 v14, v0, 2, s21")
    srd(8, P_WM, 512 * 6144)
    A(f"global_load_dword v15, v14, {sp(P_C)}")
    paced([f"buffer_load_dwordx4 {v4(40+4*i)}, v1, s[8:11], s20 offen {wpol}\ns_add_u32 s20, s20, 6144" for i in range(16)], 0)
    A(f"s_lshl_b32 s26, s26, 1\ns_add_u32 s26, s26, {WS_MOD-4096}")
    A("s_waitcnt vmcnt(0)")
    unpack(24, [15], 1); silu(24, 32, 2)
    gemv_perm(40, 104, 8)
    A("s_branch L_gx")
    def dma(loads, w):
        if skipw: return
        for i, l in enumerate(loads):
            if w and i >= w: A(f"s_waitcnt vmcnt({w-1})")
            A(f"s_add_u32 m0, s23, {1024*i}")
            A(l)
    A("L_wb:")
    srd(8, P_WO, 4096 * 1024)
    A("v_lshlrev_b32 v1, 10, v12\nv_lshl_add_u32 v1, v13, 4, v1")
    A("s_lshl_b32 s20, s4, 19\ns_lshl_b32 s21, s3, 17\ns_add_u32 s20, s20, s21\ns_sub_u32 s21, s5, 16\ns_lshl_b32 s21, s21, 7\ns_add_u32 s20, s20, s21")
    A(f"s_lshl_b32 s23, s3, 14\ns_add_u32 s23, s23, {L_WT}")
    dma([f"buffer_load_dwordx4 v1, s[8:11], s20 offen {wpol} lds\ns_add_u32 s20, s20, 8192" for i in range(16)], pace)
    A("v_bfe_u32 v1, v0, 2, 2\nv_lshlrev_b32 v1, 10, v1\nv_lshrrev_b32 v4, 4, v0\nv_lshl_add_u32 v1, v4, 12, v1\nv_and_b32 v4, 3, v0\nv_lshl_add_u32 v1, v4, 3, v1\nv_add_u32 v1, s23, v1")
    A("s_waitcnt vmcnt(0)")
    for c in range(4):
        for nt in range(4):
            for hi in range(2):
                A(f"ds_read_b64_tr_b16 {v2(104+16*c+4*nt+2*hi)}, v1 offset:{(c+4*hi)*128+nt*32}")
        A("s_waitcnt lgkmcnt(0)")
    A("L_qpoll:")
    if nosvc:
        A(f"v_mov_b32 v10, 0\nv_mov_b32 v5, 1\nds_write_b32 v10, v5 offset:{L_FQ}")
        end_wave()
    A("v_mov_b32 v10, 0\nv_mov_b32 v23, 0\nv_mov_b32 v37, 64\nv_mov_b32 v39, 64")
    A("s_cmp_lg_u32 s3, 1\ns_cbranch_scc1 L_np")
    A(f"s_lshl_b32 s21, s4, 11\ns_add_u32 s21, s21, {WS_Q}\nv_add_u32 v14, s21, v2")
    lspin("sk", L_FK, 1, 10, 11, 4)
    def ldq():
        if qloc:
            A(f"ds_read_b32 v11, v10 offset:{L_FK}\ns_waitcnt lgkmcnt(0)\nv_readfirstlane_b32 s21, v11\ns_lshr_b32 s21, s21, 1\ns_and_b32 s21, s21, s7")
            if slowfb: A(f"s_cmp_lt_u32 s7, {spin-slowfb}")
            A(f"s_cselect_b32 s21, 0, {WS_QL-WS_Q}\nv_add_u32 v15, s21, v14")
        for i in range(2): A(f"global_load_dwordx4 {v4(16+4*i)}, v{15 if qloc else 14}, {WS} offset:{1024*i} sc1")
    poll("pq", ldq, lambda: chk_tags([17, 19, 21, 23], 4), qsleep)
    A("v_mov_b32 v17, v18\nv_mov_b32 v21, v22\nv_lshlrev_b32 v14, 3, v0\nv_mov_b32 v5, 1")
    A(f"ds_write_b64 v14, v[16:17] offset:{L_Q}\nds_write_b64 v14, v[20:21] offset:{L_Q+512}")
    A(f"ds_write_b32 v10, v5 offset:{L_FQ}")
    stamp(4)
    A("L_np:")
    if xit == 'np': end_wave()
    A("s_cmp_eq_u32 s3, 2\ns_cbranch_scc1 L_post")
    A("s_cmp_ge_u32 s5, 31\ns_cbranch_scc1 L_done")
    A("s_cmp_ge_u32 s5, 16\ns_cbranch_scc1 L_ws")
    A("s_cmp_lg_u32 s3, 0\ns_cbranch_scc1 L_done\ns_cmp_lt_u32 s5, 4\ns_cbranch_scc1 L_done\ns_cmp_ge_u32 s5, 8\ns_cbranch_scc1 L_done")
    A("L_ws:")
    lspin("ss0", L_CS, 8, 10, 11, 16)
    A("s_branch L_pre")
    A("L_done:")
    end_wave()
    A("L_post:")
    A(f"s_lshl_b32 s20, s4, 15\ns_lshl_b32 s21, s5, 6\ns_add_u32 s20, s20, s21\ns_add_u32 s20, s20, {WS_A}")
    A("v_bfe_u32 v36, v0, 2, 2\nv_lshlrev_b32 v37, 13, v36\nv_lshrrev_b32 v15, 4, v0\nv_lshl_add_u32 v37, v15, 11, v37\nv_and_b32 v15, 3, v0\nv_lshl_add_u32 v37, v15, 4, v37\nv_add_u32 v37, s20, v37")
    for i in range(4): A(f"v_mov_b32 v{16+i}, -1")
    if not nopre: A(f"global_store_dwordx4 v37, v[16:19], {WS} sc1")
    if loc: A(f"v_add_u32 v39, {WS_AL-WS_A}, v37")
    if loc and not nopre: A(f"global_store_dwordx4 v39, v[16:19], {WS}")
    A("v_lshlrev_b32 v38, 3, v36")
    A(f"s_lshl_b32 s20, s4, 11\ns_lshl_b32 s21, s5, 4\ns_add_u32 s20, s20, s21\ns_add_u32 s20, s20, {WS_ST}\nv_lshl_add_u32 v36, v36, 9, s20")
    lspin("ss", L_CS, 8, 10, 11, 8)
    stamp(1)
    for w in range(8): A(f"ds_read_b64 {v2(40+2*w)}, v38 offset:{L_ST+32*w}")
    A("s_waitcnt lgkmcnt(0)")
    A("v_max3_f32 v56, v40, v42, v44\nv_max3_f32 v56, v56, v46, v48\nv_max3_f32 v56, v56, v50, v52\nv_max_f32 v56, v56, v54")
    for w in range(8): A(f"v_sub_f32 v{28+w}, v{40+2*w}, v56")
    for w in range(8): A(f"v_exp_f32 v{28+w}, v{28+w}")
    A("v_mul_f32 v58, v28, v41")
    for w in range(1, 8): A(f"v_fmac_f32 v58, v{28+w}, v{41+2*w}")
    A("s_getreg_b32 s20, hwreg(HW_REG_XCC_ID, 0, 4)\ns_add_u32 s20, s20, s6\nv_mov_b32 v57, s6\nv_mov_b32 v59, s20")
    A("s_waitcnt vmcnt(0)")
    A("s_mov_b64 exec, 0x1111")
    A(f"global_store_dwordx4 v36, v[56:59], {WS} sc1")
    A("s_mov_b64 exec, -1")
    stamp(2)
    A("s_cmp_lt_u32 s5, 16\ns_cbranch_scc1 L_red\ns_cmp_ge_u32 s5, 31\ns_cbranch_scc1 L_red")
    A("L_pre:")
    if xit == 'pre': end_wave()
    A("s_cmp_lt_u32 s5, 16\ns_cbranch_scc1 L_tf")
    A("s_cmp_ge_u32 s5, 24\ns_cbranch_scc1 L_prec")
    A("s_cmp_ge_u32 s3, 2\ns_cbranch_scc1 L_wait")
    A(f"s_lshl_b32 s20, s4, 11\ns_lshl_b32 s21, s3, 10\ns_add_u32 s20, s20, s21\ns_add_u32 s20, s20, {WS_ST}\nv_add_u32 v5, s20, v2")
    lspin("sb", L_CV, strig, 10, 11, 4)
    poll("ps", lambda: A(f"global_load_dwordx4 v[40:43], v5, {WS} sc1"), lambda: A("v_subrev_u32 v43, s6, v43\nv_xor_b32 v6, s6, v41\nv_lshrrev_b32 v7, 4, v43\nv_or_b32 v6, v6, v7\nv_cmp_ne_u32 vcc, 0, v6"), 8)
    A("s_getreg_b32 s20, hwreg(HW_REG_XCC_ID, 0, 4)\nv_cmp_eq_u32 vcc, s20, v43")
    A("v_mov_b32 v46, vcc_lo")
    A("v_mov_b32 v44, v40")
    inrow("v_max_f32", 44, ["row_ror:8", "row_ror:4", "row_ror:2", "row_ror:1"]); xrow("v_max_f32", 44, 45, 16)
    A("v_sub_f32 v40, v40, v44\nv_exp_f32 v40, v40\nv_mul_f32 v44, v40, v42")
    inrow("v_add_f32", 44, ["row_ror:8", "row_ror:4", "row_ror:2", "row_ror:1"]); xrow("v_add_f32", 44, 45, 16)
    A("v_rcp_f32 v44, v44\nv_mul_f32 v40, v40, v44")
    A("s_lshl_b32 s20, s3, 8\nv_lshl_add_u32 v4, v0, 2, s20\nv_mov_b32 v5, 1")
    A(f"ds_write_b32 v4, v40 offset:{L_X}\ns_mov_b64 exec, 1\nds_write_b32 v10, v46 offset:{L_MK}\nds_add_u32 v10, v5 offset:{L_CW}\ns_mov_b64 exec, -1")
    A("s_branch L_wait")
    A("L_prec:")
    A("s_mul_i32 s26, s4, 7\ns_add_u32 s26, s26, s5\ns_sub_u32 s26, s26, 24")
    A("v_and_b32 v20, 31, v0\nv_lshlrev_b32 v20, 3, v20\nv_lshrrev_b32 v21, 5, v0\nv_lshl_add_u32 v20, v21, 2, v20")
    A("s_lshl_b32 s20, s3, 8\nv_add_u32 v20, s20, v20")
    A(f"global_load_dword v22, v20, {sp(P_X)}")
    A(f"v_lshlrev_b32 v21, 1, v20\nv_add_u32 v21, {WS_MOD}, v21\nv_add_u32 v23, 4096, v21")
    poll("pm", lambda: A(f"global_load_dwordx2 v[40:41], v21, {WS} sc1\nglobal_load_dwordx2 v[42:43], v21, {WS} offset:2048 sc1\nglobal_load_dwordx2 v[44:45], v23, {WS} sc1"),
         lambda: chk_tags([41, 43, 45], 46), 16)
    unpack(4, [22, 40, 44], 3)
    A("v_add_f32 v8, 1.0, v8\nv_add_f32 v9, 1.0, v9\nv_cvt_pk_bf16_f32 v44, v8, v9")
    unpack(8, [44], 1)
    A(f"ds_write_b32 v20, v44 offset:{L_U}\nds_write_b32 v20, v42 offset:{L_U+1024}")
    A("v_lshrrev_b32 v23, 4, v0\nv_lshlrev_b32 v23, 4, v23\nv_add_u32 v21, s20, v23\nv_and_b32 v22, 1, v0\nv_lshl_add_u32 v22, v22, 10, v21")
    A("s_cmp_eq_u32 s3, 2\ns_cbranch_scc1 L_red")
    A("s_setprio 1")
    if cdefer: lspin("sv", L_CV, cdefer, 10, 11, 4)
    A("s_branch L_tc")
    A("L_wait:")
    stamp(5)
    A("s_cmp_eq_u32 s3, 2\ns_cbranch_scc1 L_red")
    A("s_branch L_tb")
    A("L_red:")
    if xit in ('pre', 'red'): end_wave()
    lspin("so", L_CO, 8, 10, 11, 0)
    for w in range(8):
        A(f"ds_read_b128 {v4(40+8*w)}, v2 offset:{L_OP+w*2048}")
        A(f"ds_read_b128 {v4(44+8*w)}, v2 offset:{L_OP+w*2048+1024}")
    for w in range(8):
        A(f"s_waitcnt lgkmcnt({14-2*w})")
        f = v2(28 + (w & ~1)); o = w & 1
        for q in range(4):
            if w == 0: A(f"v_pk_mul_f32 {v2(40+2*q)}, {v2(40+2*q)}, {f} op_sel:[0,{o}] op_sel_hi:[1,{o}]")
            else: A(f"v_pk_fma_f32 {v2(40+2*q)}, {v2(40+8*w+2*q)}, {f}, {v2(40+2*q)} op_sel:[0,{o},0] op_sel_hi:[1,{o},1]")
    for q in range(4): A(f"v_cvt_pk_bf16_f32 v{48+q}, v{40+2*q}, v{41+2*q}")
    if loc: A(f"global_store_dwordx4 v39, v[48:51], {WS}")
    A(f"global_store_dwordx4 v37, v[48:51], {WS} sc1")
    stamp(3)
    A("s_cmp_lt_u32 s5, 16\ns_cbranch_scc1 L_done\ns_cmp_ge_u32 s5, 31\ns_cbranch_scc1 L_done")
    A("s_cmp_lt_u32 s5, 24\ns_cbranch_scc1 L_tb")
    A("L_tc:")
    A("s_mul_i32 s26, s4, 7\ns_add_u32 s26, s26, s5\ns_sub_u32 s26, s26, 24")
    srd(8, P_W1, 512 * 3584); srd(12, P_W2, 1792 * 1024)
    A("v_lshrrev_b32 v1, 2, v0\ns_mov_b32 s20, 3584\nv_mul_lo_u32 v1, v1, s20\nv_and_b32 v12, 3, v0\nv_lshl_add_u32 v1, v12, 4, v1")
    A(f"s_mul_i32 s20, s3, {128*3584}\ns_lshl_b32 s21, s26, 6\ns_add_u32 s20, s20, s21")
    A("v_lshlrev_b32 v12, 6, v23\nv_and_b32 v13, 15, v0\nv_lshl_add_u32 v12, v13, 4, v12")
    A("s_lshl_b32 s22, s26, 15\ns_lshl_b32 s21, s3, 8\ns_add_u32 s22, s22, s21")
    A(f"s_lshl_b32 s23, s3, 14\ns_add_u32 s23, s23, {L_WT}")
    if not nocw: dma([f"buffer_load_dwordx4 v1, s[8:11], s20 offen {w1pol} lds\ns_add_u32 s20, s20, {16*3584}" for i in range(8)] +
        [f"buffer_load_dwordx4 v12, s[12:15], s22 offen {wpol} lds\ns_add_u32 s22, s22, 4096" for i in range(8)], 0)
    A("s_setprio 3")
    A("v_lshrrev_b32 v12, 4, v0\nv_bfe_u32 v13, v0, 2, 2\nv_and_b32 v14, 3, v0\nv_lshl_add_u32 v14, v14, 3, s23")
    A("v_lshl_add_u32 v1, v12, 9, v14\nv_lshl_add_u32 v1, v13, 6, v1")
    A("v_lshl_add_u32 v15, v12, 10, v14\nv_lshl_add_u32 v15, v13, 8, v15")
    for c in range(4): A(f"ds_read_b128 {v4(40+4*c)}, v22 offset:{L_U+64*c}")
    A("s_waitcnt vmcnt(0)")
    stamp(4)
    for c in range(4):
        for mt in range(2):
            for hi in range(2):
                A(f"ds_read_b64_tr_b16 {v2(104+8*c+4*mt+2*hi)}, v1 offset:{(32*c+4*hi)*64+mt*32}")
        if c & 1: A("s_waitcnt lgkmcnt(0)")
    for c in range(4):
        for mt in range(2):
            A(f"v_mfma_f32_16x16x32_bf16 {v4(24+4*mt)}, {v4(104+8*c+4*mt)}, {v4(40+4*c)}, {'0' if c==0 else v4(24+4*mt)}")
    for tau in range(8):
        for hi in range(2):
            A(f"ds_read_b64_tr_b16 {v2(136+4*tau+2*hi)}, v15 offset:{8192+hi*4096+tau*32}")
        if tau % 4 == 3: A("s_waitcnt lgkmcnt(0)")
    A("s_mov_b32 exec_lo, 0x00030003\ns_mov_b32 exec_hi, 0x00030003")
    A(f"ds_write_b128 v22, v[24:27] offset:{L_GS}\nds_write_b128 v22, v[28:31] offset:{L_GS+64}")
    A("s_mov_b64 exec, 1\nv_mov_b32 v33, 1")
    A(f"ds_add_u32 v10, v33 offset:{L_CP}")
    A("s_mov_b64 exec, -1")
    A("v_and_b32 v1, 31, v0\nv_lshlrev_b32 v1, 4, v1\nv_lshrrev_b32 v16, 5, v0\nv_lshl_add_u32 v1, v16, 11, v1")
    A(f"s_and_b32 s21, s26, {R-1}\ns_lshl_b32 s21, s21, 14\ns_lshl_b32 s20, s3, 9\ns_add_u32 s20, s20, s21\ns_add_u32 s20, s20, {WS_B}\nv_add_u32 v1, s20, v1")
    A("v_add_u32 v12, 4096, v1\nv_add_u32 v13, 8192, v1\nv_add_u32 v14, 12288, v1")
    A(f"s_lshl_b32 s20, s3, 8\nv_lshl_add_u32 v22, v16, 2, s20")
    A(f"s_lshl_b32 s20, s3, 15\ns_lshl_b32 s21, s26, 6\ns_add_u32 s20, s20, s21\ns_add_u32 s20, s20, {WS_C}")
    srd(8, P_WS, 0x1000000)
    for tau in range(8): A(f"s_add_u32 s{28+tau}, s20, {4096*tau}")
    A(f"s_mov_b32 s22, {f2x(1/512)}")
    lspin("sp", L_CP, 4, 10, 11, 1)
    for kind in range(2):
        for w in range(4):
            for mt in range(2):
                A(f"ds_read_b128 {v4(40+8*w+4*mt)}, v23 offset:{L_GS+1024*kind+256*w+64*mt}")
        A("s_waitcnt lgkmcnt(0)")
        d = 24 + 8 * kind
        for q in range(4):
            A(f"v_pk_add_f32 {v2(40+2*q)}, {v2(40+2*q)}, {v2(48+2*q)}\nv_pk_add_f32 {v2(56+2*q)}, {v2(56+2*q)}, {v2(64+2*q)}\nv_pk_add_f32 {v2(d+2*q)}, {v2(40+2*q)}, {v2(56+2*q)}")
    stamp(5)
    G = 40
    poll("pb", lambda: [A(f"global_load_dwordx4 {v4(G+4*i)}, v{1 if i==0 else 11+i}, {WS} sc1") for i in range(4)],
         lambda: chk_sent(range(G, G + 16), 15), csleep)
    stamp(6)
    A(f"v_pk_add_f32 {v2(G)}, {v2(G)}, {v2(G+4)}\nv_pk_add_f32 {v2(G+2)}, {v2(G+2)}, {v2(G+6)}\nv_pk_add_f32 {v2(G+8)}, {v2(G+8)}, {v2(G+12)}\nv_pk_add_f32 {v2(G+10)}, {v2(G+10)}, {v2(G+14)}")
    A(f"v_pk_add_f32 {v2(G)}, {v2(G)}, {v2(G+8)}\nv_pk_add_f32 {v2(G+2)}, {v2(G+2)}, {v2(G+10)}")
    A(f"v_permlane32_swap_b32 v{G}, v{G+2}\nv_permlane32_swap_b32 v{G+1}, v{G+3}")
    A(f"v_pk_add_f32 {v2(G)}, {v2(G)}, {v2(G+2)}")
    A(f"v_pk_fma_f32 v[4:5], {v2(G)}, v[6:7], v[4:5]")
    A("v_pk_mul_f32 v[6:7], v[4:5], v[8:9]\nv_cvt_pk_bf16_f32 v6, v6, v7")
    A(f"ds_write_b32 v20, v6 offset:{L_U}")
    for c in range(4): A(f"ds_read_b128 {v4(44+4*c)}, v21 offset:{L_U+64*c}")
    A("v_add_f32 v16, v4, v5\nv_mul_f32 v17, v4, v4\nv_fmac_f32 v17, v5, v5")
    A("v_permlane32_swap_b32 v16, v17\nv_add_f32 v16, v16, v17")
    xrow("v_add_f32", 16, 17, 16)
    inrow("v_add_f32", 16, ["row_ror:8", "row_ror:4"])
    for c in range(4):
        A(f"s_waitcnt lgkmcnt({3-c})")
        for mt in range(2):
            A(f"v_mfma_f32_16x16x32_bf16 {v4(60+4*mt)}, {v4(104+8*c+4*mt)}, {v4(44+4*c)}, {'0' if c==0 else v4(60+4*mt)}")
        if c == 0: inrow("v_add_f32", 16, ["row_ror:2"])
        if c == 1: inrow("v_add_f32", 16, ["row_ror:1"])
    A("s_mov_b32 exec_lo, 0x00010001\ns_mov_b32 exec_hi, 0x00010001")
    A(f"ds_write_b32 v22, v16 offset:{L_RED+128}")
    A(f"ds_write_b128 v21, v[60:63] offset:{L_RED}\nds_write_b128 v21, v[64:67] offset:{L_RED+64}")
    A("s_mov_b64 exec, -1")
    A("s_waitcnt lgkmcnt(0)\ns_barrier")
    for w in range(4): A(f"ds_read_b64 {v2(12+2*w)}, v10 offset:{L_RED+256*w+128}")
    for w in range(4):
        for mt in range(2): A(f"ds_read_b128 {v4(40+8*w+4*mt)}, v23 offset:{L_RED+256*w+64*mt}")
    A("s_waitcnt lgkmcnt(8)")
    A("v_pk_add_f32 v[12:13], v[12:13], v[14:15]\nv_pk_add_f32 v[16:17], v[16:17], v[18:19]\nv_pk_add_f32 v[12:13], v[12:13], v[16:17]")
    A(f"v_mul_f32 v12, s22, v12\nv_mov_b32 v14, {f2x(1e-5)}\nv_fmac_f32 v14, s22, v13\nv_fma_f32 v14, -v12, v12, v14\nv_rsq_f32 v14, v14")
    A("s_waitcnt lgkmcnt(4)")
    for q in range(4): A(f"v_pk_add_f32 {v2(40+2*q)}, {v2(40+2*q)}, {v2(48+2*q)}")
    for q in range(4): A(f"v_pk_fma_f32 {v2(40+2*q)}, {v2(24+2*q)}, v[12:13], {v2(40+2*q)} op_sel_hi:[1,0,1] neg_lo:[0,1,0] neg_hi:[0,1,0]")
    A("s_waitcnt lgkmcnt(0)")
    for q in range(4): A(f"v_pk_add_f32 {v2(56+2*q)}, {v2(56+2*q)}, {v2(64+2*q)}")
    for q in range(4): A(f"v_pk_add_f32 {v2(40+2*q)}, {v2(40+2*q)}, {v2(56+2*q)}")
    for q in range(4): A(f"v_pk_fma_f32 {v2(40+2*q)}, {v2(40+2*q)}, v[14:15], {v2(32+2*q)} op_sel_hi:[1,0,1]")
    for q in range(4): A(f"v_cvt_pk_bf16_f32 v{48+q}, v{40+2*q}, v{41+2*q}")
    for q in range(4): A(f"v_pk_max_i16 v{48+q}, v{48+q}, 0")
    for tau in range(8): A(f"v_mfma_f32_16x16x32_bf16 {v4(56+4*tau)}, {v4(136+4*tau)}, v[48:51], 0")
    A("s_mov_b32 exec_lo, 0x00010001\ns_mov_b32 exec_hi, 0x00010001")
    for tau in range(8): A(f"buffer_store_dwordx4 {v4(56+4*tau)}, v23, s[8:11], s{28+tau} offen sc1")
    stamp(7)
    end_wave()
    A("L_tb:")
    A("s_lshl_b32 s20, s3, 7\nv_lshrrev_b32 v5, 4, v0\nv_lshl_add_u32 v5, v5, 4, s20")
    lspin("sx", L_CW, 2, 10, 11, 1, lambda: A(f"ds_read_b32 v6, v10 offset:{L_MK}\nds_read_b128 v[12:15], v5 offset:{L_X}\nds_read_b128 v[16:19], v5 offset:{L_X+64}"))
    A("v_readfirstlane_b32 s30, v6")
    A("s_and_b32 s28, s30, 0xffff\ns_mul_i32 s28, s28, 0x10001\ns_mov_b32 s29, s28\ns_lshr_b32 s30, s30, 16\ns_mul_i32 s30, s30, 0x10001\ns_mov_b32 s31, s30")
    A("v_and_b32 v1, 15, v0\nv_lshrrev_b32 v4, 4, v0\nv_lshlrev_b32 v24, 4, v1\nv_lshl_add_u32 v22, v4, 14, v24\nv_lshlrev_b32 v1, 6, v1\nv_lshl_add_u32 v1, v4, 4, v1")
    A(f"s_lshl_b32 s20, s4, 15\ns_lshl_b32 s21, s3, 13\ns_add_u32 s20, s20, s21\ns_add_u32 s20, s20, {WS_A}\nv_add_u32 v1, s20, v1\nv_add_u32 v20, 4096, v1")
    A(f"v_add_u32 v5, {(WS_AL-WS_A) if loc else 0}, v1\nv_cndmask_b32 v6, v1, v5, s[28:29]\nv_cndmask_b32 v7, v1, v5, s[30:31]\nv_add_u32 v8, 4096, v6\nv_add_u32 v9, 4096, v7")
    lda = lambda: [A(f"global_load_dwordx4 {v4(40+8*c+4*s_)}, v{6+s_+(0 if c<2 else 2)}, {WS} offset:{2048*(c&1)+1024*s_} {lpol}") for c in range(4) for s_ in range(2)]
    A("s_lshl_b32 s20, s3, 8\nv_lshl_add_u32 v21, v0, 2, s20")
    A(f"s_lshl_b32 s20, s4, 11\ns_sub_u32 s21, s5, 16\ns_lshl_b32 s21, s21, 8\ns_add_u32 s20, s20, s21\ns_add_u32 s20, s20, {WS_B}\nv_add_u32 v22, s20, v22")
    poll("pa", lda, lambda: chk_sent(range(40, 72), 23), tsleep)
    stamp(6)
    D = lambda s_, nt: 72 + 16 * s_ + 4 * nt
    for s_ in range(2):
        for c in range(4):
            for nt in range(4):
                d = D(s_, nt)
                A(f"v_mfma_f32_16x16x32_bf16 {v4(d)}, {v4(40+8*c+4*s_)}, {v4(104+16*c+4*nt)}, {'0' if c==0 else v4(d)}")
                if s_ == 1 and c == 2:
                    A(f"v_pk_mul_f32 {v2(D(0,nt))}, {v2(D(0,nt))}, v[12:13]\nv_pk_fma_f32 {v2(D(0,nt))}, {v2(D(0,nt)+2)}, v[14:15], {v2(D(0,nt))}")
    for nt in range(4):
        A(f"v_pk_fma_f32 {v2(D(0,nt))}, {v2(D(1,nt))}, v[16:17], {v2(D(0,nt))}\nv_pk_fma_f32 {v2(D(0,nt))}, {v2(D(1,nt)+2)}, v[18:19], {v2(D(0,nt))}")
    for nt in range(4): A(f"v_add_f32 v{D(0,nt)}, v{D(0,nt)}, v{D(0,nt)+1}")
    A("v_permlane32_swap_b32 v72, v80\nv_permlane32_swap_b32 v76, v84\nv_add_f32 v72, v72, v80\nv_add_f32 v76, v76, v84")
    A("v_permlane16_swap_b32 v72, v76\nv_add_f32 v72, v72, v76")
    A(f"ds_write_b32 v21, v72 offset:{L_RED}")
    A("s_waitcnt lgkmcnt(0)\ns_barrier")
    A("s_cmp_lg_u32 s3, 0\ns_cbranch_scc1 L_done")
    if R < 4: A(f"s_mov_b64 exec, {(1<<(16*R))-1:#x}")
    for w in range(4): A(f"ds_read_b128 {v4(40+4*w)}, v24 offset:{L_RED+256*w}")
    A("s_waitcnt lgkmcnt(2)\nv_pk_add_f32 v[40:41], v[40:41], v[44:45]\nv_pk_add_f32 v[42:43], v[42:43], v[46:47]")
    A("s_waitcnt lgkmcnt(0)\nv_pk_add_f32 v[48:49], v[48:49], v[52:53]\nv_pk_add_f32 v[50:51], v[50:51], v[54:55]")
    A("v_pk_add_f32 v[40:41], v[40:41], v[48:49]\nv_pk_add_f32 v[42:43], v[42:43], v[50:51]")
    A(f"global_store_dwordx4 v22, v[40:43], {WS} sc1")
    stamp(7)
    end_wave()
    A("L_tf:")
    A("s_lshl_b32 s26, s4, 2\ns_add_u32 s26, s26, s5\ns_sub_u32 s26, s26, 4\ns_lshl_b32 s20, s26, 4")
    A("v_and_b32 v4, 3, v0\nv_lshrrev_b32 v5, 4, v0\nv_lshl_add_u32 v4, v4, 2, v5\nv_add_u32 v4, s20, v4\nv_lshlrev_b32 v5, 1, v4")
    A(f"global_load_ushort v8, v5, {sp(P_X)}")
    A(f"v_lshrrev_b32 v6, 1, v4\nv_lshlrev_b32 v6, 3, v6\nv_add_u32 v6, {WS_MOD}, v6\nv_add_u32 v7, 6144, v6")
    poll("pg", lambda: A(f"global_load_dwordx2 v[12:13], v6, {WS} sc1\nglobal_load_dwordx2 v[14:15], v7, {WS} sc1"),
         lambda: chk_tags([13, 15], 16), 16)
    A("v_lshlrev_b32 v8, 16, v8")
    A("v_and_b32 v16, 1, v4\nv_cmp_eq_u32 vcc, 0, v16")
    A("v_lshlrev_b32 v16, 16, v12\nv_and_b32 v17, 0xffff0000, v12\nv_cndmask_b32 v9, v17, v16, vcc")
    A("v_lshlrev_b32 v16, 16, v14\nv_and_b32 v17, 0xffff0000, v14\nv_cndmask_b32 v12, v17, v16, vcc")
    A(f"v_bfe_u32 v6, v0, 2, 2\nv_lshlrev_b32 v6, 12, v6\nv_lshl_add_u32 v6, v4, 2, v6\nv_add_u32 v6, {WS_B}, v6")
    A(f"s_lshl_b32 s20, s26, 12\ns_add_u32 s20, s20, {WS_C}\nv_add_u32 v7, s20, v2")
    lspin("sf", L_CO, 8, 10, 11, 4)
    poll("pxb", lambda: A(f"global_load_dword v13, v6, {WS} sc1\nglobal_load_dword v14, v6, {WS} offset:2048 sc1"), lambda: chk_sent([13, 14], 15), 4)
    A("v_add_f32 v13, v13, v14")
    inrow("v_add_f32", 13, ["row_ror:8", "row_ror:4"])
    A("v_fma_f32 v8, v9, v13, v8")
    stamp(6)
    poll("pc", lambda: [A(f"global_load_dwordx4 {v4(16+4*i)}, v7, {WS} offset:{1024*i} sc1") for i in range(4)],
         lambda: chk_sent(range(16, 32), 15), tsleep)
    stamp(7)
    A("v_pk_add_f32 v[16:17], v[16:17], v[20:21]\nv_pk_add_f32 v[18:19], v[18:19], v[22:23]\nv_pk_add_f32 v[24:25], v[24:25], v[28:29]\nv_pk_add_f32 v[26:27], v[26:27], v[30:31]")
    A("v_pk_add_f32 v[16:17], v[16:17], v[24:25]\nv_pk_add_f32 v[18:19], v[18:19], v[26:27]")
    A("v_permlane32_swap_b32 v16, v18\nv_permlane32_swap_b32 v17, v19\nv_pk_add_f32 v[16:17], v[16:17], v[18:19]")
    A("v_permlane16_swap_b32 v16, v17\nv_add_f32 v16, v16, v17")
    inrow("v_add_f32", 16, ["row_ror:8", "row_ror:4"])
    A("v_fma_f32 v16, v12, v16, v8\nv_cvt_pk_bf16_f32 v16, v16, v16")
    A("s_mov_b32 exec_lo, 0x000f000f\ns_mov_b32 exec_hi, 0x000f000f")
    A(f"global_store_short v5, v16, {sp(P_OUT)}")
    A("s_cmp_lg_u32 s26, 0\ns_cbranch_scc1 L_tfe")
    A("s_mov_b64 exec, 1\nv_mov_b32 v18, s6")
    A(f"global_store_dword v10, v18, {WS}")
    A("L_tfe:")
    stamp(4)
    end_wave()
    if stamps:
        A("L_stampout:")
        A("s_mov_b64 exec, 0xff")
        A("s_mul_i32 s20, s2, 12\ns_add_u32 s20, s20, s3\ns_lshl_b32 s20, s20, 5")
        A(f"s_add_u32 s20, s20, {WS_STAMP}")
        A("v_lshl_add_u32 v1, v0, 2, s20")
        A(f"global_store_dword v1, v3, {WS}")
    A("L_exit:\ns_endpgm")
    A(f"L_endcode:\n.fill (20480-(L_endcode-{NAME}))/4, 4, 0xbf800000")
    A('.section .rodata,"a"\n.p2align 6')
    A(f".amdhsa_kernel {NAME}")
    for l in ["next_free_vgpr 168", "next_free_sgpr 102", "accum_offset 168", "group_segment_fixed_size 0", "kernarg_size 104",
              "user_sgpr_count 2", "user_sgpr_kernarg_segment_ptr 1", "system_sgpr_workgroup_id_x 1"]:
        A("  .amdhsa_" + l)
    A(".end_amdhsa_kernel")
    return A.finish()

if __name__ == "__main__":
    out = sys.argv[1]; kw = {}
    for a in sys.argv[2:]:
        k, v = a.split("=", 1)
        try: v = ast.literal_eval(v)
        except Exception: pass
        kw[k] = v
    open(out, "w").write(gen(**kw))
```

```python
import sys, struct, ast
from asmlib import Asm
NAME = "adaLN_cond__gqa_block_cached__dense_activation_relu__decode_kernel"
def f2x(f): return "0x%08x" % struct.unpack("<I", struct.pack("<f", f))[0]

WS_QL = 0x10000; WS_H = 0x1000; WS_MOD = 0x4000; WS_Q = 0x8000; WS_ST = 0xC000
WS_AL = 0x180000; WS_A = 0x100000; WS_B = 0x140000; WS_C = 0x160000
WS_STAMP = 0x8000000
L_CG = 0; L_FQ = 4; L_CS = 8; L_CO = 12; L_CP = 16; L_FK = 20; L_CV = 24; L_CW = 28; L_MK = 32
L_ST = 256; L_Q = 1024; L_GP = 2048; L_X = 3072; L_RED = 4096; L_U = 5120; L_GS = 8192
L_OP = 16384; L_WT = 32768; LDS_SIZE = 98304
DPPF = "row_mask:0xf bank_mask:0xf"
P_X, P_K, P_V, P_WQ, P_WO, P_BX, P_W1, P_W2, P_C, P_WM, P_OUT, P_DBG, P_WS = [36 + 2 * i for i in range(13)]
def sp(n): return f"s[{n}:{n+1}]"
def v4(n): return f"v[{n}:{n+3}]"
def v2(n): return f"v[{n}:{n+1}]"
WS = sp(P_WS)

def gen(win=5, win2=6, wpol="nt", stamps=0, spin=200000, hsleep=4, qsleep=8, tsleep=1, pace=4, cpre=1, kprio=0, skipw=0, vmid=4, nopoll='', qtrig=22, R=4, cdefer=1, csleep=2, nH=33, nX=31, nL=34, loc=1, lpol='sc1', w1pol='nt', nocomp=0, nosvc=0, sprio=3, nopre=0, nocw=0, lmul=1, xit='', qloc=1, strig=1, qtrig2=38, kpol='nt', vpol='nt', slowfb=0):
    A = Asm()
    hdr = open("cdna_kernels/" + NAME[:-7] + ".s.ref").read().split("; Override")[0]
    A(hdr.rstrip())
    A(f"; @launch grid=(256,1,1) block=(768,1,1) lds={LDS_SIZE}")
    A('.amdgcn_target "amdgcn-amd-amdhsa--gfx950"')
    A(f".text\n.globl {NAME}\n.p2align 8\n.type {NAME},@function\n{NAME}:")
    def stamp(k):
        if stamps:
            A("s_memrealtime s[62:63]\ns_waitcnt lgkmcnt(0)")
            A(f"v_writelane_b32 v3, s62, {k}")
    def end_wave():
        if stamps:
            A("s_branch L_stampout")
        else:
            A("s_endpgm")
    def srd(d, p, size):
        A(f"s_mov_b32 s{d}, s{p}\ns_mov_b32 s{d+1}, s{p+1}\ns_mov_b32 s{d+2}, {size}\ns_mov_b32 s{d+3}, 0x20000")
    def poll(name, loads, check, sleep):
        if name in nopoll.split('+'): return
        top = A.label(name); done = A.label(name + "d")
        A(f"s_mov_b32 s7, {spin}")
        A(f"{top}:")
        loads()
        A("s_waitcnt vmcnt(0)")
        check()
        A(f"s_cbranch_vccz {done}")
        A("s_mov_b64 exec, vcc")
        if sleep: A(f"s_sleep {sleep}")
        A("s_sub_u32 s7, s7, 1")
        A(f"s_cbranch_scc0 {top}")
        A(f"{done}:")
        A("s_mov_b64 exec, -1")
    def lspin(name, off, n, vz, vt, sleep=1, extra=None):
        top = A.label(name); done = A.label(name + "d")
        A(f"s_mov_b32 s7, {spin*20}")
        A(f"{top}:")
        A(f"ds_read_b32 v{vt}, v{vz} offset:{off}")
        if extra: extra()
        A("s_waitcnt lgkmcnt(0)")
        A(f"v_cmp_gt_u32 vcc, {n}, v{vt}")
        A(f"s_cbranch_vccz {done}")
        if lmul > 1: sleep = min(127, max(sleep, 1) * lmul)
        if sleep: A(f"s_sleep {sleep}")
        A("s_sub_u32 s7, s7, 1")
        A(f"s_cbranch_scc0 {top}")
        A(f"{done}:")
    def chk_tags(regs, tmp):
        A(f"v_xor_b32 v{tmp}, s6, v{regs[0]}")
        for r in regs[1:]:
            A(f"v_xor_b32 v{tmp+1}, s6, v{r}")
            A(f"v_or_b32 v{tmp}, v{tmp}, v{tmp+1}")
        A(f"v_cmp_ne_u32 vcc, 0, v{tmp}")
    def chk_sent(regs, tmp):
        regs = list(regs)
        if len(regs) == 1:
            A(f"v_cmp_eq_u32 vcc, -1, v{regs[0]}"); return
        if len(regs) == 2:
            A(f"v_max_u32 v{tmp}, v{regs[0]}, v{regs[1]}"); rest = []
        else:
            A(f"v_max3_u32 v{tmp}, v{regs[0]}, v{regs[1]}, v{regs[2]}"); rest = regs[3:]
        while rest:
            if len(rest) == 1:
                A(f"v_max_u32 v{tmp}, v{tmp}, v{rest[0]}"); rest = []
            else:
                A(f"v_max3_u32 v{tmp}, v{tmp}, v{rest[0]}, v{rest[1]}"); rest = rest[2:]
        A(f"v_cmp_eq_u32 vcc, -1, v{tmp}")
    def xrow(op, v, tmp, which):
        A(f"v_mov_b32 v{tmp}, v{v}")
        A(f"v_permlane{which}_swap_b32 v{v}, v{tmp}")
        A(f"{op} v{v}, v{v}, v{tmp}")
    def inrow(op, v, steps):
        for s in steps:
            A(f"{op}_dpp v{v}, v{v}, v{v} {s} {DPPF}")
    def wave_reduce(op, v, tmp):
        inrow(op, v, ["row_ror:8", "row_ror:4", "row_ror:2", "row_ror:1"])
        xrow(op, v, tmp, 16); xrow(op, v, tmp, 32)
    def unpack(dst, src, n):
        for i in range(n):
            A(f"v_lshlrev_b32 v{dst+2*i}, 16, v{src[i]}")
            A(f"v_and_b32 v{dst+2*i+1}, 0xffff0000, v{src[i]}")
    def silu(x, t, n):
        A(f"s_mov_b32 s21, {f2x(-1.4426950408889634)}")
        for i in range(n): A(f"v_mul_f32 v{t+i}, s21, v{x+i}")
        for i in range(n): A(f"v_exp_f32 v{t+i}, v{t+i}")
        for i in range(n): A(f"v_add_f32 v{t+i}, 1.0, v{t+i}")
        for i in range(n): A(f"v_rcp_f32 v{t+i}, v{t+i}")
        for i in range(n): A(f"v_mul_f32 v{x+i}, v{x+i}, v{t+i}")
    def gemv_perm(W, T, npair):
        for u in range(npair):
            for w in range(4):
                a = W + 8 * u + w; b = W + 8 * u + 4 + w
                A(f"v_perm_b32 v{T+8*u+2*w}, v{b}, v{a}, s24")
                A(f"v_perm_b32 v{T+8*u+2*w+1}, v{b}, v{a}, s25")
    def gemv_dot(T, X, acc):
        for u in range(len(X)):
            for e in range(8):
                c = "0" if u == 0 else f"v{acc+e}"
                A(f"v_dot2_f32_bf16 v{acc+e}, v{T+8*u+e}, v{X[u]}, {c}")
    def mktag():
        A("s_waitcnt lgkmcnt(0)\ns_mul_i32 s6, s6, 0x9E3779B1\ns_add_u32 s6, s6, 0x7F4A7C15")
    def paced(loads, w):
        if skipw and (w or skipw > 1): return
        for i, l in enumerate(loads):
            if w and i >= w: A(f"s_waitcnt vmcnt({w-1})")
            A(l)

    A("s_cmp_ge_u32 s2, 256\ns_cbranch_scc1 L_exit")
    A("s_load_dwordx16 s[36:51], s[0:1], 0\ns_load_dwordx8 s[52:59], s[0:1], 64\ns_load_dwordx2 s[60:61], s[0:1], 96")
    A("v_lshrrev_b32 v1, 6, v0\nv_and_b32 v0, 63, v0\nv_readfirstlane_b32 s3, v1")
    A("s_and_b32 s4, s2, 7\ns_lshr_b32 s5, s2, 3")
    A("s_mov_b32 s24, 0x05040100\ns_mov_b32 s25, 0x07060302")
    A("v_lshlrev_b32 v2, 4, v0")
    if stamps:
        A("v_mov_b32 v3, 0"); stamp(0)
    A("s_cmp_ge_u32 s3, 4\ns_cbranch_scc1 L_stream")
    A(f"s_setprio {sprio}")
    if cpre:
        A("s_lshl_b32 s20, s5, 2\ns_add_u32 s20, s20, s3\ns_sub_u32 s20, s20, 96\ns_cmp_ge_u32 s20, 20\ns_cbranch_scc1 L_ncp")
        A(f"s_getpc_b64 s[30:31]\nL_pc:\ns_sub_u32 s30, s30, L_pc-{NAME}\ns_subb_u32 s31, s31, 0")
        A("s_lshl_b32 s20, s20, 10\nv_add_u32 v14, s20, v2")
        A("global_load_dwordx4 v[164:167], v14, s[30:31]")
        A("L_ncp:")
    A("v_lshrrev_b32 v12, 3, v0\nv_and_b32 v13, 7, v0\nv_mov_b32 v16, 0\nv_mov_b32 v17, 0\nv_mov_b32 v18, 0\nv_mov_b32 v19, 0")
    A("ds_write_b128 v16, v[16:19]\nds_write_b128 v16, v[16:19] offset:16")
    A("s_cmp_ge_u32 s5, 4\ns_cbranch_scc1 L_nh")
    A("s_lshr_b32 s20, s5, 1\ns_lshl_b32 s20, s20, 8\ns_lshl_b32 s21, s3, 6\ns_add_u32 s20, s20, s21")
    A("v_lshl_add_u32 v14, v12, 3, s20")
    A("s_mov_b32 s21, 6144\nv_mul_lo_u32 v1, v14, s21\nv_lshl_add_u32 v1, v13, 4, v1\nv_lshlrev_b32 v14, 1, v14")
    A("s_and_b32 s20, s5, 1\ns_lshl_b32 s20, s20, 10\ns_lshl_b32 s21, s4, 7\ns_add_u32 s20, s20, s21")
    A("s_waitcnt lgkmcnt(0)")
    srd(8, P_WM, 512 * 6144)
    A(f"global_load_dwordx4 v[4:7], v14, {sp(P_C)}")
    for i in range(8):
        A(f"buffer_load_dwordx4 {v4(40+4*i)}, v1, s[8:11], s20 offen {wpol}")
        if i < 7: A("s_add_u32 s20, s20, 6144")
    A(f"s_load_dword s6, {WS}, 0")
    A("s_barrier")
    A("s_lshl_b32 s20, s4, 2\ns_add_u32 s20, s20, s5\ns_lshl_b32 s20, s20, 2\ns_add_u32 s20, s20, s3")
    A(f"s_lshl_b32 s21, s20, 10\ns_add_u32 s21, s21, {WS_C}\nv_add_u32 v14, s21, v2")
    A(f"s_lshl_b32 s21, s20, 9\ns_add_u32 s21, s21, {WS_B}\nv_add_u32 v15, s21, v2")
    A("s_cmp_eq_u32 s3, 3\ns_cselect_b32 exec_hi, 0, -1")
    for i in range(4): A(f"v_mov_b32 v{16+i}, -1")
    A("s_mov_b64 exec, -1")
    A(f"global_store_dwordx4 v14, v[16:19], {WS} sc1")
    A("s_mov_b32 exec_hi, 0")
    A(f"global_store_dwordx4 v15, v[16:19], {WS} sc1")
    A("s_mov_b64 exec, -1")
    A("s_waitcnt vmcnt(10)")
    unpack(24, [4, 5, 6, 7], 4); silu(24, 32, 8)
    for i in range(4): A(f"v_cvt_pk_bf16_f32 v{24+i}, v{24+2*i}, v{25+2*i}")
    mktag()
    A(f"s_and_b32 s26, s5, 1\ns_lshl_b32 s26, s26, 12\ns_lshr_b32 s21, s5, 1\ns_lshl_b32 s21, s21, 11\ns_add_u32 s26, s26, s21\ns_lshl_b32 s21, s4, 8\ns_add_u32 s26, s26, s21\ns_add_u32 s26, s26, {WS_H}")
    A("s_waitcnt vmcnt(2)")
    stamp(1)
    gemv_perm(40, 104, 4)
    gemv_dot(104, [24, 25, 26, 27], 32)
    A("L_gfin:")
    acc = 32
    for e in range(4): A(f"v_permlane32_swap_b32 v{acc+e}, v{acc+e+4}")
    for e in range(4): A(f"v_add_f32 v{acc+e}, v{acc+e}, v{acc+e+4}")
    for e in range(2): A(f"v_permlane16_swap_b32 v{acc+e}, v{acc+e+2}")
    for e in range(2): A(f"v_add_f32 v{acc+e}, v{acc+e}, v{acc+e+2}")
    for e in range(2): A(f"v_add_f32_dpp v{acc+e}, v{acc+e}, v{acc+e} row_ror:8 {DPPF}")
    A("v_lshrrev_b32 v14, 4, v0\nv_lshlrev_b32 v14, 3, v14\nv_lshl_add_u32 v14, v13, 5, v14\ns_lshl_b32 s21, s3, 8\nv_add_u32 v14, s21, v14")
    A(f"ds_write_b64 v14, v[32:33] offset:{L_GP}")
    A("v_mov_b32 v14, 0\nv_mov_b32 v15, 1")
    A("s_waitcnt vmcnt(0)")
    A("s_mov_b64 exec, 1")
    A(f"ds_add_rtn_u32 v15, v14, v15 offset:{L_CG}")
    A("s_mov_b64 exec, -1")
    A("v_lshlrev_b32 v14, 3, v0")
    A("s_waitcnt lgkmcnt(0)")
    A("v_readfirstlane_b32 s21, v15")
    A("s_cmp_lg_u32 s21, 3\ns_cbranch_scc1 L_gdone")
    A("s_mov_b32 exec_hi, 0")
    for w in range(4): A(f"ds_read_b64 {v2(32+2*w)}, v14 offset:{L_GP+256*w}")
    A("v_add_u32 v14, s26, v14")
    A("s_waitcnt lgkmcnt(0)")
    A("v_pk_add_f32 v[32:33], v[32:33], v[34:35]\nv_pk_add_f32 v[36:37], v[36:37], v[38:39]\nv_pk_add_f32 v[32:33], v[32:33], v[36:37]")
    A("v_cvt_pk_bf16_f32 v32, v32, v33\nv_mov_b32 v33, s6")
    if qloc:
        A("s_sub_u32 s21, s5, 4\ns_cmp_ge_u32 s21, 8\ns_cbranch_scc1 L_gnl")
        A(f"v_add_u32 v15, {WS_QL-WS_Q}, v14\nglobal_store_dwordx2 v15, v[32:33], {WS}")
        A("L_gnl:")
    A(f"global_store_dwordx2 v14, v[32:33], {WS} sc1")
    A("s_mov_b64 exec, -1")
    A("L_gdone:")
    stamp(3)
    A("s_branch L_qpoll")

    assert 4 * nH + 20 * nX + 8 * nL == 1024
    T = max(nH, nX, nL); T += T & 1
    NM = max(T - 28, 0)
    nmask = T - min(nH, nX, nL)
    NW = 39 - T
    A("L_stream:")
    if kprio: A(f"s_setprio {kprio}")
    A("s_sub_u32 s21, s3, 4")
    A("v_bfe_u32 v1, v0, 2, 2\nv_lshlrev_b32 v1, 8, v1\nv_lshrrev_b32 v4, 4, v0\nv_lshl_add_u32 v1, v4, 6, v1\nv_and_b32 v4, 3, v0\nv_lshl_add_u32 v1, v4, 4, v1")
    A(f"s_mul_i32 s17, s5, {nX}\ns_add_u32 s17, s17, {(4*nH-4*nX-(T-nX)) & 0xffffffff}\ns_mov_b32 s18, {T-nX}")
    A(f"s_mul_i32 s19, s5, {nH}\ns_add_u32 s19, s19, {(-(T-nH)) & 0xffffffff}\ns_cmp_lt_u32 s5, 4\ns_cselect_b32 s17, s19, s17\ns_cselect_b32 s18, {T-nH}, s18")
    A(f"s_mul_i32 s19, s5, {nL}\ns_add_u32 s19, s19, {(4*nH+20*nX-24*nL-(T-nL)) & 0xffffffff}\ns_cmp_ge_u32 s5, 24\ns_cselect_b32 s17, s19, s17\ns_cselect_b32 s18, {T-nL}, s18")
    A("s_lshl_b32 s17, s17, 13\ns_lshl_b32 s16, s4, 23\ns_add_u32 s17, s17, s16")
    A(f"s_lshl_b32 s16, s21, 12\ns_add_u32 s16, s16, s17\ns_add_u32 s16, s16, {NM*8192}\ns_lshl_b32 s19, s21, 10\ns_add_u32 s17, s17, s19")
    A("s_cmp_ge_u32 s5, 4\ns_cbranch_scc1 L_s1\ns_barrier\nL_s1:")
    A("s_waitcnt lgkmcnt(0)")
    srd(8, P_K, 0x4000000); srd(12, P_V, 0x4000000)
    KR = lambda t: 168 - 4 * T + 4 * t
    nS = (T + 3) // 4; nP = (T + 7) // 8
    first_v = nS - 1 + nP + 1
    vslots = [12 + 4 * i for i in range(NW)] + [KR(i) for i in range(first_v, T)]
    VR = lambda t: vslots[t % len(vslots)]
    st = {"cur": None}
    MP = NM - nmask + 12
    perm = list(range(nmask, nmask + MP)) + list(range(nmask)) + list(range(nmask + MP, T))
    def ld(which, t):
        o = perm[t]
        if o < NM:
            A(f"s_add_u32 s20, s17, {o*8192}"); st["cur"] = None; imm = 0
            if o < nmask: A(f"s_cmp_gt_u32 s18, {o}\ns_cselect_b32 s20, 0x4000000, s20")
        else:
            key = (o - NM) >> 2; imm = ((o - NM) & 3) * 1024
            if st["cur"] != key:
                A(f"s_add_u32 s20, s16, {key*32768}"); st["cur"] = key
        if which == "K": A(f"buffer_load_dwordx4 {v4(KR(t))}, v1, s[8:11], s20 offen offset:{imm} {kpol}")
        else: A(f"buffer_load_dwordx4 {v4(VR(t))}, v2, s[12:15], s20 offen offset:{imm} {vpol}")
    korder = list(range(T))
    seq = [("K", t) for t in korder] + [("V", t) for t in range(NW)]
    for i, (wh, t) in enumerate(seq):
        if i == win: A("s_cmp_lt_u32 s5, 4\ns_cbranch_scc1 L_s2\ns_barrier\nL_s2:")
        if i == T and kprio: A("s_setprio 0")
        if i >= win: A(f"s_waitcnt vmcnt({win-1})")
        ld(wh, t)
        if i == qtrig: A(f"v_mov_b32 v8, 0\nv_mov_b32 v9, 1\nds_max_u32 v8, v9 offset:{L_FK}")
        if i == qtrig2 and qloc: A(f"v_mov_b32 v8, 0\nv_mov_b32 v9, 2\nds_max_u32 v8, v9 offset:{L_FK}")
    viss = NW
    A("v_and_b32 v8, 3, v0\nv_lshlrev_b32 v8, 8, v8\nv_lshrrev_b32 v9, 4, v0\nv_lshl_add_u32 v8, v9, 6, v8\nv_bfe_u32 v9, v0, 2, 2\nv_lshl_add_u32 v8, v9, 4, v8\nv_mov_b32 v9, 0")
    A(f"s_mov_b32 s22, {f2x(128**-0.5*1.4426950408889634)}")
    for t in range(nmask): A(f"s_cmp_gt_u32 s18, {t}\ns_cselect_b32 s{28+t}, 0xff800000, 0")
    stamp(1)
    lspin("sq", L_FQ, 1, 9, 10, 2, lambda: A(f"ds_read_b128 v[4:7], v8 offset:{L_Q}"))
    A(f"s_waitcnt vmcnt({NW})")
    stamp(2)
    DR = lambda t: 8 if t == 0 else KR(t - 1)
    SR = lambda t: (8 + t) if t < 4 else KR((t >> 2) - 1) + (t & 3)
    def M(t): A(f"v_mfma_f32_16x16x32_bf16 {v4(DR(t))}, {v4(KR(t))}, v[4:7], 0")
    def AB(t):
        d = DR(t)
        A(f"v_add_f32_dpp v{d}, v{d+1}, v{d} row_shl:4 {DPPF} bound_ctrl:0")
        A(f"v_add_f32_dpp v{d+2}, v{d+3}, v{d+2} row_shl:4 {DPPF} bound_ctrl:0")
    def S(t):
        d = DR(t)
        A(f"v_add_f32_dpp v{SR(t)}, v{d+2}, v{d} row_shl:8 {DPPF} bound_ctrl:0")
    mark0 = len(A.lines)
    M(0); M(1); M(2)
    for t in range(T + 1):
        if t < T: AB(t)
        if t >= 1:
            S(t - 1)
            if vmid and t - 2 >= first_v and (t - 2 - first_v) % vmid == 0:
                ld("V", viss); viss += 1
        if t + 3 < T: M(t + 3)
    TM = KR(first_v - 1)
    Sl = [SR(t) for t in range(T)]
    for t in range(nmask): A(f"v_add_f32 v{Sl[MP+t]}, s{28+t}, v{Sl[MP+t]}")
    A(f"v_max3_f32 v{TM}, v{Sl[0]}, v{Sl[1]}, v{Sl[2]}")
    A(f"v_max3_f32 v{TM+1}, v{Sl[3]}, v{Sl[4]}, v{Sl[5]}")
    i = 6; k = 0
    while i < T:
        A(f"v_max3_f32 v{TM+k}, v{TM+k}, v{Sl[i]}, v{Sl[i+1]}"); i += 2; k ^= 1
    A(f"v_max_f32 v{TM}, v{TM}, v{TM+1}")
    xrow("v_max_f32", TM, TM + 1, 16); xrow("v_max_f32", TM, TM + 1, 32)
    A(f"v_mul_f32 v{TM}, s22, v{TM}")
    for t in range(T): A(f"v_fma_f32 v{Sl[t]}, v{Sl[t]}, s22, -v{TM}")
    for t in range(T): A(f"v_exp_f32 v{Sl[t]}, v{Sl[t]}")
    if vmid: ld("V", viss); viss += 1
    A(f"v_add_f32 v{TM+1}, v{Sl[0]}, v{Sl[1]}\nv_add_f32 v{TM+2}, v{Sl[2]}, v{Sl[3]}")
    for t in range(4, T): A(f"v_add_f32 v{TM+1+(t&1)}, v{TM+1+(t&1)}, v{Sl[t]}")
    A(f"v_add_f32 v{TM+1}, v{TM+1}, v{TM+2}")
    xrow("v_add_f32", TM + 1, TM + 2, 16); xrow("v_add_f32", TM + 1, TM + 2, 32)
    A(f"s_lshl_b32 s19, s21, 5\nv_lshl_add_u32 v{TM+2}, v0, 3, s19\nv_mov_b32 v4, 0\nv_mov_b32 v5, 1")
    A("s_mov_b64 exec, 0xf")
    A(f"ds_write_b64 v{TM+2}, {v2(TM)} offset:{L_ST}")
    A("s_mov_b64 exec, 1")
    A(f"ds_add_u32 v4, v5 offset:{L_CS}")
    A("s_mov_b64 exec, -1")
    PR = lambda u: KR(nS - 1 + u)
    for t in range(0, T, 2): A(f"v_cvt_pk_bf16_f32 v{PR(t//8)+(t%8)//2}, v{Sl[t]}, v{Sl[t+1]}")
    rem = T % 8
    assert rem in (0, 2, 4)
    if rem == 2: A(f"v_mov_b32 v{PR(nP-1)+1}, 0")
    A("s_waitcnt lgkmcnt(0)")
    stamp(3)
    ACC = [8] + [KR(i) for i in range(7)]
    TT = [TM, 4]
    def pv(u):
        n = min(8, T - 8 * u)
        for e in range(8):
            Tm = TT[e & 1]
            for p in range(n // 2):
                a = VR(8 * u + 2 * p) + (e >> 1); b = VR(8 * u + 2 * p + 1) + (e >> 1)
                A(f"v_perm_b32 v{Tm+p}, v{b}, v{a}, s{24+(e&1)}")
            c = "0" if u == 0 else v4(ACC[e])
            if n == 8: A(f"v_mfma_f32_16x16x32_bf16 {v4(ACC[e])}, {v4(Tm)}, {v4(PR(u))}, {c}")
            else: A(f"v_mfma_f32_16x16x16_bf16 {v4(ACC[e])}, {v2(Tm)}, {v2(PR(u))}, {c}")
    ns = len(vslots)
    while viss < min(win2, ns):
        ld("V", viss); viss += 1
    done_u = 0
    for L in range(T):
        last = (L % 8 == 7) or L == T - 1
        if L == T - 1:
            A(f"s_waitcnt lgkmcnt(0)\ns_lshl_b32 s19, s21, 11\nv_and_b32 v1, 3, v0\nv_lshlrev_b32 v1, 6, v1\nv_lshrrev_b32 v2, 4, v0\nv_lshl_add_u32 v1, v2, 4, v1\nv_add_u32 v1, s19, v1\nv_mov_b32 v{PR(0)}, 0\nv_mov_b32 v{PR(0)+1}, 1")
        can = lambda: viss < T and viss - 1 - L < win2 and (viss < ns or done_u > (viss - ns) // 8)
        if can() or last:
            A(f"s_waitcnt vmcnt({viss-1-L})")
        while can():
            ld("V", viss); viss += 1
            if viss == T:
                A(f"v_mov_b32 v1, 0\nv_mov_b32 v2, 1\ns_mov_b64 exec, 1\nds_add_u32 v1, v2 offset:{L_CV}\ns_mov_b64 exec, -1")
        if last:
            if L == T - 1: stamp(4)
            pv(L // 8); done_u += 1
    assert viss == T
    if nocomp:
        keep = [l for l in A.lines[mark0:] if not l.startswith(("v_mfma", "v_perm_b32", "v_add_f32", "v_exp", "v_fma", "v_max", "v_cvt", "v_permlane"))]
        A.lines[mark0:] = keep
    A("s_mov_b32 exec_lo, 0x000f000f\ns_mov_b32 exec_hi, 0x000f000f")
    for e in range(8): A(f"ds_write_b128 v1, {v4(ACC[e])} offset:{L_OP+e*256}")
    A("s_mov_b64 exec, 1")
    A(f"ds_add_u32 v{PR(0)}, v{PR(0)+1} offset:{L_CO}")
    if stamps: A("s_waitcnt lgkmcnt(0)")
    stamp(5)
    end_wave()

    A("L_nh:")
    A("s_cmp_ge_u32 s5, 12\ns_cbranch_scc1 L_nq")
    A("v_lshlrev_b32 v1, 17, v12\nv_lshl_add_u32 v1, v13, 4, v1")
    A("s_lshl_b32 s20, s3, 20\ns_lshl_b32 s21, s4, 10\ns_add_u32 s20, s20, s21\ns_sub_u32 s26, s5, 4\ns_lshl_b32 s21, s26, 7\ns_add_u32 s20, s20, s21")
    A("s_lshl_b32 s21, s3, 8\nv_lshl_add_u32 v14, v0, 2, s21")
    A("s_waitcnt lgkmcnt(0)")
    srd(8, P_WQ, 512 * 8192)
    A(f"global_load_dwordx4 v[8:11], v2, {sp(P_X)}\nglobal_load_dword v15, v14, {sp(P_X)}")
    for i in range(16):
        A(f"buffer_load_dwordx4 {v4(40+4*i)}, v1, s[8:11], s20 offen {wpol}")
        if i < 15: A("s_add_u32 s20, s20, 8192")
    A(f"s_load_dword s6, {WS}, 0")
    A("s_barrier")
    A(f"s_lshl_b32 s26, s26, 8\ns_lshl_b32 s21, s4, 11\ns_add_u32 s26, s26, s21\ns_add_u32 s26, s26, {WS_Q}")
    A("s_waitcnt vmcnt(16)")
    unpack(32, [8, 9, 10, 11], 4)
    A("v_add_f32 v4, v32, v33")
    for i in range(2, 8): A(f"v_add_f32 v4, v4, v{32+i}")
    wave_reduce("v_add_f32", 4, 5)
    A(f"v_mul_f32 v4, {f2x(1/512)}, v4")
    for i in range(8): A(f"v_sub_f32 v{32+i}, v{32+i}, v4")
    A("v_mul_f32 v6, v32, v32")
    for i in range(1, 8): A(f"v_fmac_f32 v6, v{32+i}, v{32+i}")
    wave_reduce("v_add_f32", 6, 5)
    A(f"v_mov_b32 v5, {f2x(1e-5)}\nv_fmac_f32 v5, {f2x(1/512)}, v6\nv_rsq_f32 v5, v5")
    unpack(8, [15], 1)
    A("v_sub_f32 v8, v8, v4\nv_sub_f32 v9, v9, v4\nv_mul_f32 v8, v8, v5\nv_mul_f32 v9, v9, v5")
    A(f"v_lshlrev_b32 v15, 1, v14\nv_add_u32 v15, {WS_H}, v15\nv_add_u32 v10, 4096, v15")
    mktag()
    A("s_waitcnt vmcnt(0)")
    stamp(1)
    gemv_perm(40, 104, 8)
    poll("ph", lambda: [A(f"global_load_dwordx2 {v2(16+2*k)}, v{15 if k<2 else 10}, {WS} offset:{2048*(k&1)} sc1") for k in range(4)],
         lambda: chk_tags([17, 19, 21, 23], 4), hsleep)
    stamp(2)
    unpack(24, [16, 18, 20, 22], 4)
    A("v_pk_add_f32 v[24:25], v[24:25], v[26:27]\nv_pk_add_f32 v[28:29], v[28:29], v[30:31]")
    A("v_add_f32 v28, 1.0, v28\nv_add_f32 v29, 1.0, v29\nv_pk_fma_f32 v[24:25], v[8:9], v[28:29], v[24:25]")
    A("L_gx:")
    A("v_cvt_pk_bf16_f32 v24, v24, v25")
    A(f"ds_write_b32 v14, v24 offset:{L_X}")
    A("s_lshl_b32 s21, s3, 8\nv_lshl_add_u32 v15, v12, 5, s21")
    A(f"ds_read_b128 v[24:27], v15 offset:{L_X}\nds_read_b128 v[28:31], v15 offset:{L_X+16}")
    A("s_waitcnt lgkmcnt(0)")
    gemv_dot(104, list(range(24, 32)), 32)
    A("s_branch L_gfin")

    A("L_nq:")
    A("s_waitcnt lgkmcnt(0)")
    A(f"s_load_dword s6, {WS}, 0")
    A("s_barrier")
    mktag()
    A("L_role:")
    A("s_cmp_ge_u32 s5, 24\ns_cbranch_scc1 L_qpoll")
    A("s_cmp_ge_u32 s5, 16\ns_cbranch_scc1 L_wb")
    A("s_mov_b32 s21, 98304\nv_mul_lo_u32 v1, v12, s21\nv_lshl_add_u32 v1, v13, 4, v1")
    A(f"s_mul_i32 s20, s3, {128*6144}\ns_sub_u32 s26, s5, 10\ns_lshl_b32 s26, s26, 10\ns_lshl_b32 s21, s4, 7\ns_add_u32 s26, s26, s21\ns_add_u32 s20, s20, s26")
    A("s_lshl_b32 s21, s3, 8\nv_lshl_add_u32 v14, v0, 2, s21")
    srd(8, P_WM, 512 * 6144)
    A(f"global_load_dword v15, v14, {sp(P_C)}")
    paced([f"buffer_load_dwordx4 {v4(40+4*i)}, v1, s[8:11], s20 offen {wpol}\ns_add_u32 s20, s20, 6144" for i in range(16)], 0)
    A(f"s_lshl_b32 s26, s26, 1\ns_add_u32 s26, s26, {WS_MOD-4096}")
    A("s_waitcnt vmcnt(0)")
    unpack(24, [15], 1); silu(24, 32, 2)
    gemv_perm(40, 104, 8)
    A("s_branch L_gx")
    def dma(loads, w):
        if skipw: return
        for i, l in enumerate(loads):
            if w and i >= w: A(f"s_waitcnt vmcnt({w-1})")
            A(f"s_add_u32 m0, s23, {1024*i}")
            A(l)
    A("L_wb:")
    srd(8, P_WO, 4096 * 1024)
    A("v_lshlrev_b32 v1, 10, v12\nv_lshl_add_u32 v1, v13, 4, v1")
    A("s_lshl_b32 s20, s4, 19\ns_lshl_b32 s21, s3, 17\ns_add_u32 s20, s20, s21\ns_sub_u32 s21, s5, 16\ns_lshl_b32 s21, s21, 7\ns_add_u32 s20, s20, s21")
    A(f"s_lshl_b32 s23, s3, 14\ns_add_u32 s23, s23, {L_WT}")
    dma([f"buffer_load_dwordx4 v1, s[8:11], s20 offen {wpol} lds\ns_add_u32 s20, s20, 8192" for i in range(16)], pace)
    A("v_bfe_u32 v1, v0, 2, 2\nv_lshlrev_b32 v1, 10, v1\nv_lshrrev_b32 v4, 4, v0\nv_lshl_add_u32 v1, v4, 12, v1\nv_and_b32 v4, 3, v0\nv_lshl_add_u32 v1, v4, 3, v1\nv_add_u32 v1, s23, v1")
    A("s_waitcnt vmcnt(0)")
    for c in range(4):
        for nt in range(4):
            for hi in range(2):
                A(f"ds_read_b64_tr_b16 {v2(104+16*c+4*nt+2*hi)}, v1 offset:{(c+4*hi)*128+nt*32}")
        A("s_waitcnt lgkmcnt(0)")
    A("L_qpoll:")
    if nosvc:
        A(f"v_mov_b32 v10, 0\nv_mov_b32 v5, 1\nds_write_b32 v10, v5 offset:{L_FQ}")
        end_wave()
    A("v_mov_b32 v10, 0\nv_mov_b32 v23, 0\nv_mov_b32 v37, 64\nv_mov_b32 v39, 64")
    A("s_cmp_lg_u32 s3, 1\ns_cbranch_scc1 L_np")
    A(f"s_lshl_b32 s21, s4, 11\ns_add_u32 s21, s21, {WS_Q}\nv_add_u32 v14, s21, v2")
    lspin("sk", L_FK, 1, 10, 11, 4)
    def ldq():
        if qloc:
            A(f"ds_read_b32 v11, v10 offset:{L_FK}\ns_waitcnt lgkmcnt(0)\nv_readfirstlane_b32 s21, v11\ns_lshr_b32 s21, s21, 1\ns_and_b32 s21, s21, s7")
            if slowfb: A(f"s_cmp_lt_u32 s7, {spin-slowfb}")
            A(f"s_cselect_b32 s21, 0, {WS_QL-WS_Q}\nv_add_u32 v15, s21, v14")
        for i in range(2): A(f"global_load_dwordx4 {v4(16+4*i)}, v{15 if qloc else 14}, {WS} offset:{1024*i} sc1")
    poll("pq", ldq, lambda: chk_tags([17, 19, 21, 23], 4), qsleep)
    A("v_mov_b32 v17, v18\nv_mov_b32 v21, v22\nv_lshlrev_b32 v14, 3, v0\nv_mov_b32 v5, 1")
    A(f"ds_write_b64 v14, v[16:17] offset:{L_Q}\nds_write_b64 v14, v[20:21] offset:{L_Q+512}")
    A(f"ds_write_b32 v10, v5 offset:{L_FQ}")
    stamp(4)
    A("L_np:")
    if xit == 'np': end_wave()
    A("s_cmp_eq_u32 s3, 2\ns_cbranch_scc1 L_post")
    A("s_cmp_ge_u32 s5, 31\ns_cbranch_scc1 L_done")
    A("s_cmp_ge_u32 s5, 16\ns_cbranch_scc1 L_ws")
    A("s_cmp_lg_u32 s3, 0\ns_cbranch_scc1 L_done\ns_cmp_lt_u32 s5, 4\ns_cbranch_scc1 L_done\ns_cmp_ge_u32 s5, 8\ns_cbranch_scc1 L_done")
    A("L_ws:")
    lspin("ss0", L_CS, 8, 10, 11, 16)
    A("s_branch L_pre")
    A("L_done:")
    end_wave()
    A("L_post:")
    A(f"s_lshl_b32 s20, s4, 15\ns_lshl_b32 s21, s5, 6\ns_add_u32 s20, s20, s21\ns_add_u32 s20, s20, {WS_A}")
    A("v_bfe_u32 v36, v0, 2, 2\nv_lshlrev_b32 v37, 13, v36\nv_lshrrev_b32 v15, 4, v0\nv_lshl_add_u32 v37, v15, 11, v37\nv_and_b32 v15, 3, v0\nv_lshl_add_u32 v37, v15, 4, v37\nv_add_u32 v37, s20, v37")
    for i in range(4): A(f"v_mov_b32 v{16+i}, -1")
    if not nopre: A(f"global_store_dwordx4 v37, v[16:19], {WS} sc1")
    if loc: A(f"v_add_u32 v39, {WS_AL-WS_A}, v37")
    if loc and not nopre: A(f"global_store_dwordx4 v39, v[16:19], {WS}")
    A("v_lshlrev_b32 v38, 3, v36")
    A(f"s_lshl_b32 s20, s4, 11\ns_lshl_b32 s21, s5, 4\ns_add_u32 s20, s20, s21\ns_add_u32 s20, s20, {WS_ST}\nv_lshl_add_u32 v36, v36, 9, s20")
    lspin("ss", L_CS, 8, 10, 11, 8)
    stamp(1)
    for w in range(8): A(f"ds_read_b64 {v2(40+2*w)}, v38 offset:{L_ST+32*w}")
    A("s_waitcnt lgkmcnt(0)")
    A("v_max3_f32 v56, v40, v42, v44\nv_max3_f32 v56, v56, v46, v48\nv_max3_f32 v56, v56, v50, v52\nv_max_f32 v56, v56, v54")
    for w in range(8): A(f"v_sub_f32 v{28+w}, v{40+2*w}, v56")
    for w in range(8): A(f"v_exp_f32 v{28+w}, v{28+w}")
    A("v_mul_f32 v58, v28, v41")
    for w in range(1, 8): A(f"v_fmac_f32 v58, v{28+w}, v{41+2*w}")
    A("s_getreg_b32 s20, hwreg(HW_REG_XCC_ID, 0, 4)\ns_add_u32 s20, s20, s6\nv_mov_b32 v57, s6\nv_mov_b32 v59, s20")
    A("s_waitcnt vmcnt(0)")
    A("s_mov_b64 exec, 0x1111")
    A(f"global_store_dwordx4 v36, v[56:59], {WS} sc1")
    A("s_mov_b64 exec, -1")
    stamp(2)
    A("s_cmp_lt_u32 s5, 16\ns_cbranch_scc1 L_red\ns_cmp_ge_u32 s5, 31\ns_cbranch_scc1 L_red")
    A("L_pre:")
    if xit == 'pre': end_wave()
    A("s_cmp_lt_u32 s5, 16\ns_cbranch_scc1 L_tf")
    A("s_cmp_ge_u32 s5, 24\ns_cbranch_scc1 L_prec")
    A("s_cmp_ge_u32 s3, 2\ns_cbranch_scc1 L_wait")
    A(f"s_lshl_b32 s20, s4, 11\ns_lshl_b32 s21, s3, 10\ns_add_u32 s20, s20, s21\ns_add_u32 s20, s20, {WS_ST}\nv_add_u32 v5, s20, v2")
    lspin("sb", L_CV, strig, 10, 11, 4)
    poll("ps", lambda: A(f"global_load_dwordx4 v[40:43], v5, {WS} sc1"), lambda: A("v_subrev_u32 v43, s6, v43\nv_xor_b32 v6, s6, v41\nv_lshrrev_b32 v7, 4, v43\nv_or_b32 v6, v6, v7\nv_cmp_ne_u32 vcc, 0, v6"), 8)
    A("s_getreg_b32 s20, hwreg(HW_REG_XCC_ID, 0, 4)\nv_cmp_eq_u32 vcc, s20, v43")
    A("v_mov_b32 v46, vcc_lo")
    A("v_mov_b32 v44, v40")
    inrow("v_max_f32", 44, ["row_ror:8", "row_ror:4", "row_ror:2", "row_ror:1"]); xrow("v_max_f32", 44, 45, 16)
    A("v_sub_f32 v40, v40, v44\nv_exp_f32 v40, v40\nv_mul_f32 v44, v40, v42")
    inrow("v_add_f32", 44, ["row_ror:8", "row_ror:4", "row_ror:2", "row_ror:1"]); xrow("v_add_f32", 44, 45, 16)
    A("v_rcp_f32 v44, v44\nv_mul_f32 v40, v40, v44")
    A("s_lshl_b32 s20, s3, 8\nv_lshl_add_u32 v4, v0, 2, s20\nv_mov_b32 v5, 1")
    A(f"ds_write_b32 v4, v40 offset:{L_X}\ns_mov_b64 exec, 1\nds_write_b32 v10, v46 offset:{L_MK}\nds_add_u32 v10, v5 offset:{L_CW}\ns_mov_b64 exec, -1")
    A("s_branch L_wait")
    A("L_prec:")
    A("s_mul_i32 s26, s4, 7\ns_add_u32 s26, s26, s5\ns_sub_u32 s26, s26, 24")
    A("v_and_b32 v20, 31, v0\nv_lshlrev_b32 v20, 3, v20\nv_lshrrev_b32 v21, 5, v0\nv_lshl_add_u32 v20, v21, 2, v20")
    A("s_lshl_b32 s20, s3, 8\nv_add_u32 v20, s20, v20")
    A(f"global_load_dword v22, v20, {sp(P_X)}")
    A(f"v_lshlrev_b32 v21, 1, v20\nv_add_u32 v21, {WS_MOD}, v21\nv_add_u32 v23, 4096, v21")
    poll("pm", lambda: A(f"global_load_dwordx2 v[40:41], v21, {WS} sc1\nglobal_load_dwordx2 v[42:43], v21, {WS} offset:2048 sc1\nglobal_load_dwordx2 v[44:45], v23, {WS} sc1"),
         lambda: chk_tags([41, 43, 45], 46), 16)
    unpack(4, [22, 40, 44], 3)
    A("v_add_f32 v8, 1.0, v8\nv_add_f32 v9, 1.0, v9\nv_cvt_pk_bf16_f32 v44, v8, v9")
    unpack(8, [44], 1)
    A(f"ds_write_b32 v20, v44 offset:{L_U}\nds_write_b32 v20, v42 offset:{L_U+1024}")
    A("v_lshrrev_b32 v23, 4, v0\nv_lshlrev_b32 v23, 4, v23\nv_add_u32 v21, s20, v23\nv_and_b32 v22, 1, v0\nv_lshl_add_u32 v22, v22, 10, v21")
    A("s_cmp_eq_u32 s3, 2\ns_cbranch_scc1 L_red")
    A("s_setprio 1")
    if cdefer: lspin("sv", L_CV, cdefer, 10, 11, 4)
    A("s_branch L_tc")
    A("L_wait:")
    stamp(5)
    A("s_cmp_eq_u32 s3, 2\ns_cbranch_scc1 L_red")
    A("s_branch L_tb")
    A("L_red:")
    if xit in ('pre', 'red'): end_wave()
    lspin("so", L_CO, 8, 10, 11, 0)
    for w in range(8):
        A(f"ds_read_b128 {v4(40+8*w)}, v2 offset:{L_OP+w*2048}")
        A(f"ds_read_b128 {v4(44+8*w)}, v2 offset:{L_OP+w*2048+1024}")
    for w in range(8):
        A(f"s_waitcnt lgkmcnt({14-2*w})")
        f = v2(28 + (w & ~1)); o = w & 1
        for q in range(4):
            if w == 0: A(f"v_pk_mul_f32 {v2(40+2*q)}, {v2(40+2*q)}, {f} op_sel:[0,{o}] op_sel_hi:[1,{o}]")
            else: A(f"v_pk_fma_f32 {v2(40+2*q)}, {v2(40+8*w+2*q)}, {f}, {v2(40+2*q)} op_sel:[0,{o},0] op_sel_hi:[1,{o},1]")
    for q in range(4): A(f"v_cvt_pk_bf16_f32 v{48+q}, v{40+2*q}, v{41+2*q}")
    if loc: A(f"global_store_dwordx4 v39, v[48:51], {WS}")
    A(f"global_store_dwordx4 v37, v[48:51], {WS} sc1")
    stamp(3)
    A("s_cmp_lt_u32 s5, 16\ns_cbranch_scc1 L_done\ns_cmp_ge_u32 s5, 31\ns_cbranch_scc1 L_done")
    A("s_cmp_lt_u32 s5, 24\ns_cbranch_scc1 L_tb")
    A("L_tc:")
    A("s_mul_i32 s26, s4, 7\ns_add_u32 s26, s26, s5\ns_sub_u32 s26, s26, 24")
    srd(8, P_W1, 512 * 3584); srd(12, P_W2, 1792 * 1024)
    A("v_lshrrev_b32 v1, 2, v0\ns_mov_b32 s20, 3584\nv_mul_lo_u32 v1, v1, s20\nv_and_b32 v12, 3, v0\nv_lshl_add_u32 v1, v12, 4, v1")
    A(f"s_mul_i32 s20, s3, {128*3584}\ns_lshl_b32 s21, s26, 6\ns_add_u32 s20, s20, s21")
    A("v_lshlrev_b32 v12, 6, v23\nv_and_b32 v13, 15, v0\nv_lshl_add_u32 v12, v13, 4, v12")
    A("s_lshl_b32 s22, s26, 15\ns_lshl_b32 s21, s3, 8\ns_add_u32 s22, s22, s21")
    A(f"s_lshl_b32 s23, s3, 14\ns_add_u32 s23, s23, {L_WT}")
    if not nocw: dma([f"buffer_load_dwordx4 v1, s[8:11], s20 offen {w1pol} lds\ns_add_u32 s20, s20, {16*3584}" for i in range(8)] +
        [f"buffer_load_dwordx4 v12, s[12:15], s22 offen {wpol} lds\ns_add_u32 s22, s22, 4096" for i in range(8)], 0)
    A("s_setprio 3")
    A("v_lshrrev_b32 v12, 4, v0\nv_bfe_u32 v13, v0, 2, 2\nv_and_b32 v14, 3, v0\nv_lshl_add_u32 v14, v14, 3, s23")
    A("v_lshl_add_u32 v1, v12, 9, v14\nv_lshl_add_u32 v1, v13, 6, v1")
    A("v_lshl_add_u32 v15, v12, 10, v14\nv_lshl_add_u32 v15, v13, 8, v15")
    for c in range(4): A(f"ds_read_b128 {v4(40+4*c)}, v22 offset:{L_U+64*c}")
    A("s_waitcnt vmcnt(0)")
    stamp(4)
    for c in range(4):
        for mt in range(2):
            for hi in range(2):
                A(f"ds_read_b64_tr_b16 {v2(104+8*c+4*mt+2*hi)}, v1 offset:{(32*c+4*hi)*64+mt*32}")
        if c & 1: A("s_waitcnt lgkmcnt(0)")
    for c in range(4):
        for mt in range(2):
            A(f"v_mfma_f32_16x16x32_bf16 {v4(24+4*mt)}, {v4(104+8*c+4*mt)}, {v4(40+4*c)}, {'0' if c==0 else v4(24+4*mt)}")
    for tau in range(8):
        for hi in range(2):
            A(f"ds_read_b64_tr_b16 {v2(136+4*tau+2*hi)}, v15 offset:{8192+hi*4096+tau*32}")
        if tau % 4 == 3: A("s_waitcnt lgkmcnt(0)")
    A("s_mov_b32 exec_lo, 0x00030003\ns_mov_b32 exec_hi, 0x00030003")
    A(f"ds_write_b128 v22, v[24:27] offset:{L_GS}\nds_write_b128 v22, v[28:31] offset:{L_GS+64}")
    A("s_mov_b64 exec, 1\nv_mov_b32 v33, 1")
    A(f"ds_add_u32 v10, v33 offset:{L_CP}")
    A("s_mov_b64 exec, -1")
    A("v_and_b32 v1, 31, v0\nv_lshlrev_b32 v1, 4, v1\nv_lshrrev_b32 v16, 5, v0\nv_lshl_add_u32 v1, v16, 11, v1")
    A(f"s_and_b32 s21, s26, {R-1}\ns_lshl_b32 s21, s21, 14\ns_lshl_b32 s20, s3, 9\ns_add_u32 s20, s20, s21\ns_add_u32 s20, s20, {WS_B}\nv_add_u32 v1, s20, v1")
    A("v_add_u32 v12, 4096, v1\nv_add_u32 v13, 8192, v1\nv_add_u32 v14, 12288, v1")
    A(f"s_lshl_b32 s20, s3, 8\nv_lshl_add_u32 v22, v16, 2, s20")
    A(f"s_lshl_b32 s20, s3, 15\ns_lshl_b32 s21, s26, 6\ns_add_u32 s20, s20, s21\ns_add_u32 s20, s20, {WS_C}")
    srd(8, P_WS, 0x1000000)
    for tau in range(8): A(f"s_add_u32 s{28+tau}, s20, {4096*tau}")
    A(f"s_mov_b32 s22, {f2x(1/512)}")
    lspin("sp", L_CP, 4, 10, 11, 1)
    for kind in range(2):
        for w in range(4):
            for mt in range(2):
                A(f"ds_read_b128 {v4(40+8*w+4*mt)}, v23 offset:{L_GS+1024*kind+256*w+64*mt}")
        A("s_waitcnt lgkmcnt(0)")
        d = 24 + 8 * kind
        for q in range(4):
            A(f"v_pk_add_f32 {v2(40+2*q)}, {v2(40+2*q)}, {v2(48+2*q)}\nv_pk_add_f32 {v2(56+2*q)}, {v2(56+2*q)}, {v2(64+2*q)}\nv_pk_add_f32 {v2(d+2*q)}, {v2(40+2*q)}, {v2(56+2*q)}")
    stamp(5)
    G = 40
    poll("pb", lambda: [A(f"global_load_dwordx4 {v4(G+4*i)}, v{1 if i==0 else 11+i}, {WS} sc1") for i in range(4)],
         lambda: chk_sent(range(G, G + 16), 15), csleep)
    stamp(6)
    A(f"v_pk_add_f32 {v2(G)}, {v2(G)}, {v2(G+4)}\nv_pk_add_f32 {v2(G+2)}, {v2(G+2)}, {v2(G+6)}\nv_pk_add_f32 {v2(G+8)}, {v2(G+8)}, {v2(G+12)}\nv_pk_add_f32 {v2(G+10)}, {v2(G+10)}, {v2(G+14)}")
    A(f"v_pk_add_f32 {v2(G)}, {v2(G)}, {v2(G+8)}\nv_pk_add_f32 {v2(G+2)}, {v2(G+2)}, {v2(G+10)}")
    A(f"v_permlane32_swap_b32 v{G}, v{G+2}\nv_permlane32_swap_b32 v{G+1}, v{G+3}")
    A(f"v_pk_add_f32 {v2(G)}, {v2(G)}, {v2(G+2)}")
    A(f"v_pk_fma_f32 v[4:5], {v2(G)}, v[6:7], v[4:5]")
    A("v_pk_mul_f32 v[6:7], v[4:5], v[8:9]\nv_cvt_pk_bf16_f32 v6, v6, v7")
    A(f"ds_write_b32 v20, v6 offset:{L_U}")
    for c in range(4): A(f"ds_read_b128 {v4(44+4*c)}, v21 offset:{L_U+64*c}")
    A("v_add_f32 v16, v4, v5\nv_mul_f32 v17, v4, v4\nv_fmac_f32 v17, v5, v5")
    A("v_permlane32_swap_b32 v16, v17\nv_add_f32 v16, v16, v17")
    xrow("v_add_f32", 16, 17, 16)
    inrow("v_add_f32", 16, ["row_ror:8", "row_ror:4"])
    for c in range(4):
        A(f"s_waitcnt lgkmcnt({3-c})")
        for mt in range(2):
            A(f"v_mfma_f32_16x16x32_bf16 {v4(60+4*mt)}, {v4(104+8*c+4*mt)}, {v4(44+4*c)}, {'0' if c==0 else v4(60+4*mt)}")
        if c == 0: inrow("v_add_f32", 16, ["row_ror:2"])
        if c == 1: inrow("v_add_f32", 16, ["row_ror:1"])
    A("s_mov_b32 exec_lo, 0x00010001\ns_mov_b32 exec_hi, 0x00010001")
    A(f"ds_write_b32 v22, v16 offset:{L_RED+128}")
    A(f"ds_write_b128 v21, v[60:63] offset:{L_RED}\nds_write_b128 v21, v[64:67] offset:{L_RED+64}")
    A("s_mov_b64 exec, -1")
    A("s_waitcnt lgkmcnt(0)\ns_barrier")
    for w in range(4): A(f"ds_read_b64 {v2(12+2*w)}, v10 offset:{L_RED+256*w+128}")
    for w in range(4):
        for mt in range(2): A(f"ds_read_b128 {v4(40+8*w+4*mt)}, v23 offset:{L_RED+256*w+64*mt}")
    A("s_waitcnt lgkmcnt(8)")
    A("v_pk_add_f32 v[12:13], v[12:13], v[14:15]\nv_pk_add_f32 v[16:17], v[16:17], v[18:19]\nv_pk_add_f32 v[12:13], v[12:13], v[16:17]")
    A(f"v_mul_f32 v12, s22, v12\nv_mov_b32 v14, {f2x(1e-5)}\nv_fmac_f32 v14, s22, v13\nv_fma_f32 v14, -v12, v12, v14\nv_rsq_f32 v14, v14")
    A("s_waitcnt lgkmcnt(4)")
    for q in range(4): A(f"v_pk_add_f32 {v2(40+2*q)}, {v2(40+2*q)}, {v2(48+2*q)}")
    for q in range(4): A(f"v_pk_fma_f32 {v2(40+2*q)}, {v2(24+2*q)}, v[12:13], {v2(40+2*q)} op_sel_hi:[1,0,1] neg_lo:[0,1,0] neg_hi:[0,1,0]")
    A("s_waitcnt lgkmcnt(0)")
    for q in range(4): A(f"v_pk_add_f32 {v2(56+2*q)}, {v2(56+2*q)}, {v2(64+2*q)}")
    for q in range(4): A(f"v_pk_add_f32 {v2(40+2*q)}, {v2(40+2*q)}, {v2(56+2*q)}")
    for q in range(4): A(f"v_pk_fma_f32 {v2(40+2*q)}, {v2(40+2*q)}, v[14:15], {v2(32+2*q)} op_sel_hi:[1,0,1]")
    for q in range(4): A(f"v_cvt_pk_bf16_f32 v{48+q}, v{40+2*q}, v{41+2*q}")
    for q in range(4): A(f"v_pk_max_i16 v{48+q}, v{48+q}, 0")
    for tau in range(8): A(f"v_mfma_f32_16x16x32_bf16 {v4(56+4*tau)}, {v4(136+4*tau)}, v[48:51], 0")
    A("s_mov_b32 exec_lo, 0x00010001\ns_mov_b32 exec_hi, 0x00010001")
    for tau in range(8): A(f"buffer_store_dwordx4 {v4(56+4*tau)}, v23, s[8:11], s{28+tau} offen sc1")
    stamp(7)
    end_wave()
    A("L_tb:")
    A("s_lshl_b32 s20, s3, 7\nv_lshrrev_b32 v5, 4, v0\nv_lshl_add_u32 v5, v5, 4, s20")
    lspin("sx", L_CW, 2, 10, 11, 1, lambda: A(f"ds_read_b32 v6, v10 offset:{L_MK}\nds_read_b128 v[12:15], v5 offset:{L_X}\nds_read_b128 v[16:19], v5 offset:{L_X+64}"))
    A("v_readfirstlane_b32 s30, v6")
    A("s_and_b32 s28, s30, 0xffff\ns_mul_i32 s28, s28, 0x10001\ns_mov_b32 s29, s28\ns_lshr_b32 s30, s30, 16\ns_mul_i32 s30, s30, 0x10001\ns_mov_b32 s31, s30")
    A("v_and_b32 v1, 15, v0\nv_lshrrev_b32 v4, 4, v0\nv_lshlrev_b32 v24, 4, v1\nv_lshl_add_u32 v22, v4, 14, v24\nv_lshlrev_b32 v1, 6, v1\nv_lshl_add_u32 v1, v4, 4, v1")
    A(f"s_lshl_b32 s20, s4, 15\ns_lshl_b32 s21, s3, 13\ns_add_u32 s20, s20, s21\ns_add_u32 s20, s20, {WS_A}\nv_add_u32 v1, s20, v1\nv_add_u32 v20, 4096, v1")
    A(f"v_add_u32 v5, {(WS_AL-WS_A) if loc else 0}, v1\nv_cndmask_b32 v6, v1, v5, s[28:29]\nv_cndmask_b32 v7, v1, v5, s[30:31]\nv_add_u32 v8, 4096, v6\nv_add_u32 v9, 4096, v7")
    lda = lambda: [A(f"global_load_dwordx4 {v4(40+8*c+4*s_)}, v{6+s_+(0 if c<2 else 2)}, {WS} offset:{2048*(c&1)+1024*s_} {lpol}") for c in range(4) for s_ in range(2)]
    A("s_lshl_b32 s20, s3, 8\nv_lshl_add_u32 v21, v0, 2, s20")
    A(f"s_lshl_b32 s20, s4, 11\ns_sub_u32 s21, s5, 16\ns_lshl_b32 s21, s21, 8\ns_add_u32 s20, s20, s21\ns_add_u32 s20, s20, {WS_B}\nv_add_u32 v22, s20, v22")
    poll("pa", lda, lambda: chk_sent(range(40, 72), 23), tsleep)
    stamp(6)
    D = lambda s_, nt: 72 + 16 * s_ + 4 * nt
    for s_ in range(2):
        for c in range(4):
            for nt in range(4):
                d = D(s_, nt)
                A(f"v_mfma_f32_16x16x32_bf16 {v4(d)}, {v4(40+8*c+4*s_)}, {v4(104+16*c+4*nt)}, {'0' if c==0 else v4(d)}")
                if s_ == 1 and c == 2:
                    A(f"v_pk_mul_f32 {v2(D(0,nt))}, {v2(D(0,nt))}, v[12:13]\nv_pk_fma_f32 {v2(D(0,nt))}, {v2(D(0,nt)+2)}, v[14:15], {v2(D(0,nt))}")
    for nt in range(4):
        A(f"v_pk_fma_f32 {v2(D(0,nt))}, {v2(D(1,nt))}, v[16:17], {v2(D(0,nt))}\nv_pk_fma_f32 {v2(D(0,nt))}, {v2(D(1,nt)+2)}, v[18:19], {v2(D(0,nt))}")
    for nt in range(4): A(f"v_add_f32 v{D(0,nt)}, v{D(0,nt)}, v{D(0,nt)+1}")
    A("v_permlane32_swap_b32 v72, v80\nv_permlane32_swap_b32 v76, v84\nv_add_f32 v72, v72, v80\nv_add_f32 v76, v76, v84")
    A("v_permlane16_swap_b32 v72, v76\nv_add_f32 v72, v72, v76")
    A(f"ds_write_b32 v21, v72 offset:{L_RED}")
    A("s_waitcnt lgkmcnt(0)\ns_barrier")
    A("s_cmp_lg_u32 s3, 0\ns_cbranch_scc1 L_done")
    if R < 4: A(f"s_mov_b64 exec, {(1<<(16*R))-1:#x}")
    for w in range(4): A(f"ds_read_b128 {v4(40+4*w)}, v24 offset:{L_RED+256*w}")
    A("s_waitcnt lgkmcnt(2)\nv_pk_add_f32 v[40:41], v[40:41], v[44:45]\nv_pk_add_f32 v[42:43], v[42:43], v[46:47]")
    A("s_waitcnt lgkmcnt(0)\nv_pk_add_f32 v[48:49], v[48:49], v[52:53]\nv_pk_add_f32 v[50:51], v[50:51], v[54:55]")
    A("v_pk_add_f32 v[40:41], v[40:41], v[48:49]\nv_pk_add_f32 v[42:43], v[42:43], v[50:51]")
    A(f"global_store_dwordx4 v22, v[40:43], {WS} sc1")
    stamp(7)
    end_wave()
    A("L_tf:")
    A("s_lshl_b32 s26, s4, 2\ns_add_u32 s26, s26, s5\ns_sub_u32 s26, s26, 4\ns_lshl_b32 s20, s26, 4")
    A("v_and_b32 v4, 3, v0\nv_lshrrev_b32 v5, 4, v0\nv_lshl_add_u32 v4, v4, 2, v5\nv_add_u32 v4, s20, v4\nv_lshlrev_b32 v5, 1, v4")
    A(f"global_load_ushort v8, v5, {sp(P_X)}")
    A(f"v_lshrrev_b32 v6, 1, v4\nv_lshlrev_b32 v6, 3, v6\nv_add_u32 v6, {WS_MOD}, v6\nv_add_u32 v7, 6144, v6")
    poll("pg", lambda: A(f"global_load_dwordx2 v[12:13], v6, {WS} sc1\nglobal_load_dwordx2 v[14:15], v7, {WS} sc1"),
         lambda: chk_tags([13, 15], 16), 16)
    A("v_lshlrev_b32 v8, 16, v8")
    A("v_and_b32 v16, 1, v4\nv_cmp_eq_u32 vcc, 0, v16")
    A("v_lshlrev_b32 v16, 16, v12\nv_and_b32 v17, 0xffff0000, v12\nv_cndmask_b32 v9, v17, v16, vcc")
    A("v_lshlrev_b32 v16, 16, v14\nv_and_b32 v17, 0xffff0000, v14\nv_cndmask_b32 v12, v17, v16, vcc")
    A(f"v_bfe_u32 v6, v0, 2, 2\nv_lshlrev_b32 v6, 12, v6\nv_lshl_add_u32 v6, v4, 2, v6\nv_add_u32 v6, {WS_B}, v6")
    A(f"s_lshl_b32 s20, s26, 12\ns_add_u32 s20, s20, {WS_C}\nv_add_u32 v7, s20, v2")
    lspin("sf", L_CO, 8, 10, 11, 4)
    poll("pxb", lambda: A(f"global_load_dword v13, v6, {WS} sc1\nglobal_load_dword v14, v6, {WS} offset:2048 sc1"), lambda: chk_sent([13, 14], 15), 4)
    A("v_add_f32 v13, v13, v14")
    inrow("v_add_f32", 13, ["row_ror:8", "row_ror:4"])
    A("v_fma_f32 v8, v9, v13, v8")
    stamp(6)
    poll("pc", lambda: [A(f"global_load_dwordx4 {v4(16+4*i)}, v7, {WS} offset:{1024*i} sc1") for i in range(4)],
         lambda: chk_sent(range(16, 32), 15), tsleep)
    stamp(7)
    A("v_pk_add_f32 v[16:17], v[16:17], v[20:21]\nv_pk_add_f32 v[18:19], v[18:19], v[22:23]\nv_pk_add_f32 v[24:25], v[24:25], v[28:29]\nv_pk_add_f32 v[26:27], v[26:27], v[30:31]")
    A("v_pk_add_f32 v[16:17], v[16:17], v[24:25]\nv_pk_add_f32 v[18:19], v[18:19], v[26:27]")
    A("v_permlane32_swap_b32 v16, v18\nv_permlane32_swap_b32 v17, v19\nv_pk_add_f32 v[16:17], v[16:17], v[18:19]")
    A("v_permlane16_swap_b32 v16, v17\nv_add_f32 v16, v16, v17")
    inrow("v_add_f32", 16, ["row_ror:8", "row_ror:4"])
    A("v_fma_f32 v16, v12, v16, v8\nv_cvt_pk_bf16_f32 v16, v16, v16")
    A("s_mov_b32 exec_lo, 0x000f000f\ns_mov_b32 exec_hi, 0x000f000f")
    A(f"global_store_short v5, v16, {sp(P_OUT)}")
    A("s_cmp_lg_u32 s26, 0\ns_cbranch_scc1 L_tfe")
    A("s_mov_b64 exec, 1\nv_mov_b32 v18, s6")
    A(f"global_store_dword v10, v18, {WS}")
    A("L_tfe:")
    stamp(4)
    end_wave()
    if stamps:
        A("L_stampout:")
        if stamps == 2:
            A("s_cmp_lg_u32 s2, 32\ns_cbranch_scc1 L_exit\ns_and_b32 s20, s3, 11\ns_cbranch_scc1 L_exit")
            A("s_mov_b64 exec, 0xff\ns_lshl_b32 s20, s3, 3\nv_lshl_add_u32 v1, v0, 2, s20")
            A(f"global_store_dword v1, v3, {sp(P_DBG)}\ns_endpgm")
        A("s_mov_b64 exec, 0xff")
        A("s_mul_i32 s20, s2, 12\ns_add_u32 s20, s20, s3\ns_lshl_b32 s20, s20, 5")
        A(f"s_add_u32 s20, s20, {WS_STAMP}")
        A("v_lshl_add_u32 v1, v0, 2, s20")
        A(f"global_store_dword v1, v3, {WS}")
    A("L_exit:\ns_endpgm")
    A(f"L_endcode:\n.fill (20480-(L_endcode-{NAME}))/4, 4, 0xbf800000")
    A('.section .rodata,"a"\n.p2align 6')
    A(f".amdhsa_kernel {NAME}")
    for l in ["next_free_vgpr 168", "next_free_sgpr 102", "accum_offset 168", "group_segment_fixed_size 0", "kernarg_size 104",
              "user_sgpr_count 2", "user_sgpr_kernarg_segment_ptr 1", "system_sgpr_workgroup_id_x 1"]:
        A("  .amdhsa_" + l)
    A(".end_amdhsa_kernel")
    return A.finish()

if __name__ == "__main__":
    out = sys.argv[1]; kw = {}
    for a in sys.argv[2:]:
        k, v = a.split("=", 1)
        try: v = ast.literal_eval(v)
        except Exception: pass
        kw[k] = v
    open(out, "w").write(gen(**kw))
```

```python
import sys, struct, ast
from asmlib import Asm
NAME = "adaLN_cond__gqa_block_cached__dense_activation_relu__decode_kernel"
def f2x(f): return "0x%08x" % struct.unpack("<I", struct.pack("<f", f))[0]

WS_QL = 0x10000; WS_H = 0x1000; WS_MOD = 0x4000; WS_Q = 0x8000; WS_ST = 0xC000
WS_AL = 0x180000; WS_A = 0x100000; WS_B = 0x140000; WS_C = 0x160000
WS_STAMP = 0x8000000
L_CG = 0; L_FQ = 4; L_CS = 8; L_CO = 12; L_CP = 16; L_FK = 20; L_CV = 24; L_CW = 28; L_MK = 32
L_ST = 256; L_Q = 1024; L_GP = 2048; L_X = 3072; L_RED = 4096; L_U = 5120; L_GS = 8192
L_OP = 16384; L_WT = 32768; LDS_SIZE = 98304
DPPF = "row_mask:0xf bank_mask:0xf"
P_X, P_K, P_V, P_WQ, P_WO, P_BX, P_W1, P_W2, P_C, P_WM, P_OUT, P_DBG, P_WS = [36 + 2 * i for i in range(13)]
def sp(n): return f"s[{n}:{n+1}]"
def v4(n): return f"v[{n}:{n+3}]"
def v2(n): return f"v[{n}:{n+1}]"
WS = sp(P_WS)

def gen(win=5, win2=6, wpol="nt", stamps=0, spin=200000, hsleep=4, qsleep=8, tsleep=1, pace=4, cpre=1, kprio=0, skipw=0, vmid=4, nopoll='', qtrig=22, R=4, cdefer=1, csleep=2, nH=33, nX=31, nL=34, loc=1, lpol='sc1', w1pol='nt', nocomp=0, nosvc=0, sprio=3, nopre=0, nocw=0, lmul=1, xit='', qloc=1, strig=1, qtrig2=38, kpol='nt', vpol='nt', slowfb=0, fixend=0):
    A = Asm()
    hdr = open("cdna_kernels/" + NAME[:-7] + ".s.ref").read().split("; Override")[0]
    A(hdr.rstrip())
    A(f"; @launch grid=(256,1,1) block=(768,1,1) lds={LDS_SIZE}")
    A('.amdgcn_target "amdgcn-amd-amdhsa--gfx950"')
    A(f".text\n.globl {NAME}\n.p2align 8\n.type {NAME},@function\n{NAME}:")
    def stamp(k):
        if stamps:
            A("s_memrealtime s[62:63]\ns_waitcnt lgkmcnt(0)")
            A(f"v_writelane_b32 v3, s62, {k}")
    def end_wave():
        if stamps:
            A("s_branch L_stampout")
        else:
            A("s_endpgm")
    def srd(d, p, size):
        A(f"s_mov_b32 s{d}, s{p}\ns_mov_b32 s{d+1}, s{p+1}\ns_mov_b32 s{d+2}, {size}\ns_mov_b32 s{d+3}, 0x20000")
    def poll(name, loads, check, sleep):
        if name in nopoll.split('+'): return
        top = A.label(name); done = A.label(name + "d")
        A(f"s_mov_b32 s7, {spin}")
        A(f"{top}:")
        loads()
        A("s_waitcnt vmcnt(0)")
        check()
        A(f"s_cbranch_vccz {done}")
        A("s_mov_b64 exec, vcc")
        if sleep: A(f"s_sleep {sleep}")
        A("s_sub_u32 s7, s7, 1")
        A(f"s_cbranch_scc0 {top}")
        A(f"{done}:")
        A("s_mov_b64 exec, -1")
    def lspin(name, off, n, vz, vt, sleep=1, extra=None):
        top = A.label(name); done = A.label(name + "d")
        A(f"s_mov_b32 s7, {spin*20}")
        A(f"{top}:")
        A(f"ds_read_b32 v{vt}, v{vz} offset:{off}")
        if extra: extra()
        A("s_waitcnt lgkmcnt(0)")
        A(f"v_cmp_gt_u32 vcc, {n}, v{vt}")
        A(f"s_cbranch_vccz {done}")
        if lmul > 1: sleep = min(127, max(sleep, 1) * lmul)
        if sleep: A(f"s_sleep {sleep}")
        A("s_sub_u32 s7, s7, 1")
        A(f"s_cbranch_scc0 {top}")
        A(f"{done}:")
    def chk_tags(regs, tmp):
        A(f"v_xor_b32 v{tmp}, s6, v{regs[0]}")
        for r in regs[1:]:
            A(f"v_xor_b32 v{tmp+1}, s6, v{r}")
            A(f"v_or_b32 v{tmp}, v{tmp}, v{tmp+1}")
        A(f"v_cmp_ne_u32 vcc, 0, v{tmp}")
    def chk_sent(regs, tmp):
        regs = list(regs)
        if len(regs) == 1:
            A(f"v_cmp_eq_u32 vcc, -1, v{regs[0]}"); return
        if len(regs) == 2:
            A(f"v_max_u32 v{tmp}, v{regs[0]}, v{regs[1]}"); rest = []
        else:
            A(f"v_max3_u32 v{tmp}, v{regs[0]}, v{regs[1]}, v{regs[2]}"); rest = regs[3:]
        while rest:
            if len(rest) == 1:
                A(f"v_max_u32 v{tmp}, v{tmp}, v{rest[0]}"); rest = []
            else:
                A(f"v_max3_u32 v{tmp}, v{tmp}, v{rest[0]}, v{rest[1]}"); rest = rest[2:]
        A(f"v_cmp_eq_u32 vcc, -1, v{tmp}")
    def xrow(op, v, tmp, which):
        A(f"v_mov_b32 v{tmp}, v{v}")
        A(f"v_permlane{which}_swap_b32 v{v}, v{tmp}")
        A(f"{op} v{v}, v{v}, v{tmp}")
    def inrow(op, v, steps):
        for s in steps:
            A(f"{op}_dpp v{v}, v{v}, v{v} {s} {DPPF}")
    def wave_reduce(op, v, tmp):
        inrow(op, v, ["row_ror:8", "row_ror:4", "row_ror:2", "row_ror:1"])
        xrow(op, v, tmp, 16); xrow(op, v, tmp, 32)
    def unpack(dst, src, n):
        for i in range(n):
            A(f"v_lshlrev_b32 v{dst+2*i}, 16, v{src[i]}")
            A(f"v_and_b32 v{dst+2*i+1}, 0xffff0000, v{src[i]}")
    def silu(x, t, n):
        A(f"s_mov_b32 s21, {f2x(-1.4426950408889634)}")
        for i in range(n): A(f"v_mul_f32 v{t+i}, s21, v{x+i}")
        for i in range(n): A(f"v_exp_f32 v{t+i}, v{t+i}")
        for i in range(n): A(f"v_add_f32 v{t+i}, 1.0, v{t+i}")
        for i in range(n): A(f"v_rcp_f32 v{t+i}, v{t+i}")
        for i in range(n): A(f"v_mul_f32 v{x+i}, v{x+i}, v{t+i}")
    def gemv_perm(W, T, npair):
        for u in range(npair):
            for w in range(4):
                a = W + 8 * u + w; b = W + 8 * u + 4 + w
                A(f"v_perm_b32 v{T+8*u+2*w}, v{b}, v{a}, s24")
                A(f"v_perm_b32 v{T+8*u+2*w+1}, v{b}, v{a}, s25")
    def gemv_dot(T, X, acc):
        for u in range(len(X)):
            for e in range(8):
                c = "0" if u == 0 else f"v{acc+e}"
                A(f"v_dot2_f32_bf16 v{acc+e}, v{T+8*u+e}, v{X[u]}, {c}")
    def mktag():
        A("s_waitcnt lgkmcnt(0)\ns_mul_i32 s6, s6, 0x9E3779B1\ns_add_u32 s6, s6, 0x7F4A7C15")
    def paced(loads, w):
        if skipw and (w or skipw > 1): return
        for i, l in enumerate(loads):
            if w and i >= w: A(f"s_waitcnt vmcnt({w-1})")
            A(l)

    A("s_cmp_ge_u32 s2, 256\ns_cbranch_scc1 L_exit")
    A("s_load_dwordx16 s[36:51], s[0:1], 0\ns_load_dwordx8 s[52:59], s[0:1], 64\ns_load_dwordx2 s[60:61], s[0:1], 96")
    A("v_lshrrev_b32 v1, 6, v0\nv_and_b32 v0, 63, v0\nv_readfirstlane_b32 s3, v1")
    A("s_and_b32 s4, s2, 7\ns_lshr_b32 s5, s2, 3")
    if fixend: A("s_memrealtime s[96:97]")
    A("s_mov_b32 s24, 0x05040100\ns_mov_b32 s25, 0x07060302")
    A("v_lshlrev_b32 v2, 4, v0")
    if stamps:
        A("v_mov_b32 v3, 0"); stamp(0)
    A("s_cmp_ge_u32 s3, 4\ns_cbranch_scc1 L_stream")
    A(f"s_setprio {sprio}")
    if cpre:
        A("s_lshl_b32 s20, s5, 2\ns_add_u32 s20, s20, s3\ns_sub_u32 s20, s20, 96\ns_cmp_ge_u32 s20, 20\ns_cbranch_scc1 L_ncp")
        A(f"s_getpc_b64 s[30:31]\nL_pc:\ns_sub_u32 s30, s30, L_pc-{NAME}\ns_subb_u32 s31, s31, 0")
        A("s_lshl_b32 s20, s20, 10\nv_add_u32 v14, s20, v2")
        A("global_load_dwordx4 v[164:167], v14, s[30:31]")
        A("L_ncp:")
    A("v_lshrrev_b32 v12, 3, v0\nv_and_b32 v13, 7, v0\nv_mov_b32 v16, 0\nv_mov_b32 v17, 0\nv_mov_b32 v18, 0\nv_mov_b32 v19, 0")
    A("ds_write_b128 v16, v[16:19]\nds_write_b128 v16, v[16:19] offset:16")
    A("s_cmp_ge_u32 s5, 4\ns_cbranch_scc1 L_nh")
    A("s_lshr_b32 s20, s5, 1\ns_lshl_b32 s20, s20, 8\ns_lshl_b32 s21, s3, 6\ns_add_u32 s20, s20, s21")
    A("v_lshl_add_u32 v14, v12, 3, s20")
    A("s_mov_b32 s21, 6144\nv_mul_lo_u32 v1, v14, s21\nv_lshl_add_u32 v1, v13, 4, v1\nv_lshlrev_b32 v14, 1, v14")
    A("s_and_b32 s20, s5, 1\ns_lshl_b32 s20, s20, 10\ns_lshl_b32 s21, s4, 7\ns_add_u32 s20, s20, s21")
    A("s_waitcnt lgkmcnt(0)")
    srd(8, P_WM, 512 * 6144)
    A(f"global_load_dwordx4 v[4:7], v14, {sp(P_C)}")
    for i in range(8):
        A(f"buffer_load_dwordx4 {v4(40+4*i)}, v1, s[8:11], s20 offen {wpol}")
        if i < 7: A("s_add_u32 s20, s20, 6144")
    A(f"s_load_dword s6, {WS}, 0")
    A("s_barrier")
    A("s_lshl_b32 s20, s4, 2\ns_add_u32 s20, s20, s5\ns_lshl_b32 s20, s20, 2\ns_add_u32 s20, s20, s3")
    A(f"s_lshl_b32 s21, s20, 10\ns_add_u32 s21, s21, {WS_C}\nv_add_u32 v14, s21, v2")
    A(f"s_lshl_b32 s21, s20, 9\ns_add_u32 s21, s21, {WS_B}\nv_add_u32 v15, s21, v2")
    A("s_cmp_eq_u32 s3, 3\ns_cselect_b32 exec_hi, 0, -1")
    for i in range(4): A(f"v_mov_b32 v{16+i}, -1")
    A("s_mov_b64 exec, -1")
    A(f"global_store_dwordx4 v14, v[16:19], {WS} sc1")
    A("s_mov_b32 exec_hi, 0")
    A(f"global_store_dwordx4 v15, v[16:19], {WS} sc1")
    A("s_mov_b64 exec, -1")
    A("s_waitcnt vmcnt(10)")
    unpack(24, [4, 5, 6, 7], 4); silu(24, 32, 8)
    for i in range(4): A(f"v_cvt_pk_bf16_f32 v{24+i}, v{24+2*i}, v{25+2*i}")
    mktag()
    A(f"s_and_b32 s26, s5, 1\ns_lshl_b32 s26, s26, 12\ns_lshr_b32 s21, s5, 1\ns_lshl_b32 s21, s21, 11\ns_add_u32 s26, s26, s21\ns_lshl_b32 s21, s4, 8\ns_add_u32 s26, s26, s21\ns_add_u32 s26, s26, {WS_H}")
    A("s_waitcnt vmcnt(2)")
    stamp(1)
    gemv_perm(40, 104, 4)
    gemv_dot(104, [24, 25, 26, 27], 32)
    A("L_gfin:")
    acc = 32
    for e in range(4): A(f"v_permlane32_swap_b32 v{acc+e}, v{acc+e+4}")
    for e in range(4): A(f"v_add_f32 v{acc+e}, v{acc+e}, v{acc+e+4}")
    for e in range(2): A(f"v_permlane16_swap_b32 v{acc+e}, v{acc+e+2}")
    for e in range(2): A(f"v_add_f32 v{acc+e}, v{acc+e}, v{acc+e+2}")
    for e in range(2): A(f"v_add_f32_dpp v{acc+e}, v{acc+e}, v{acc+e} row_ror:8 {DPPF}")
    A("v_lshrrev_b32 v14, 4, v0\nv_lshlrev_b32 v14, 3, v14\nv_lshl_add_u32 v14, v13, 5, v14\ns_lshl_b32 s21, s3, 8\nv_add_u32 v14, s21, v14")
    A(f"ds_write_b64 v14, v[32:33] offset:{L_GP}")
    A("v_mov_b32 v14, 0\nv_mov_b32 v15, 1")
    A("s_waitcnt vmcnt(0)")
    A("s_mov_b64 exec, 1")
    A(f"ds_add_rtn_u32 v15, v14, v15 offset:{L_CG}")
    A("s_mov_b64 exec, -1")
    A("v_lshlrev_b32 v14, 3, v0")
    A("s_waitcnt lgkmcnt(0)")
    A("v_readfirstlane_b32 s21, v15")
    A("s_cmp_lg_u32 s21, 3\ns_cbranch_scc1 L_gdone")
    A("s_mov_b32 exec_hi, 0")
    for w in range(4): A(f"ds_read_b64 {v2(32+2*w)}, v14 offset:{L_GP+256*w}")
    A("v_add_u32 v14, s26, v14")
    A("s_waitcnt lgkmcnt(0)")
    A("v_pk_add_f32 v[32:33], v[32:33], v[34:35]\nv_pk_add_f32 v[36:37], v[36:37], v[38:39]\nv_pk_add_f32 v[32:33], v[32:33], v[36:37]")
    A("v_cvt_pk_bf16_f32 v32, v32, v33\nv_mov_b32 v33, s6")
    if qloc:
        A("s_sub_u32 s21, s5, 4\ns_cmp_ge_u32 s21, 8\ns_cbranch_scc1 L_gnl")
        A(f"v_add_u32 v15, {WS_QL-WS_Q}, v14\nglobal_store_dwordx2 v15, v[32:33], {WS}")
        A("L_gnl:")
    A(f"global_store_dwordx2 v14, v[32:33], {WS} sc1")
    A("s_mov_b64 exec, -1")
    A("L_gdone:")
    stamp(3)
    A("s_branch L_qpoll")

    assert 4 * nH + 20 * nX + 8 * nL == 1024
    T = max(nH, nX, nL); T += T & 1
    NM = max(T - 28, 0)
    nmask = T - min(nH, nX, nL)
    NW = 39 - T
    A("L_stream:")
    if kprio: A(f"s_setprio {kprio}")
    A("s_sub_u32 s21, s3, 4")
    A("v_bfe_u32 v1, v0, 2, 2\nv_lshlrev_b32 v1, 8, v1\nv_lshrrev_b32 v4, 4, v0\nv_lshl_add_u32 v1, v4, 6, v1\nv_and_b32 v4, 3, v0\nv_lshl_add_u32 v1, v4, 4, v1")
    A(f"s_mul_i32 s17, s5, {nX}\ns_add_u32 s17, s17, {(4*nH-4*nX-(T-nX)) & 0xffffffff}\ns_mov_b32 s18, {T-nX}")
    A(f"s_mul_i32 s19, s5, {nH}\ns_add_u32 s19, s19, {(-(T-nH)) & 0xffffffff}\ns_cmp_lt_u32 s5, 4\ns_cselect_b32 s17, s19, s17\ns_cselect_b32 s18, {T-nH}, s18")
    A(f"s_mul_i32 s19, s5, {nL}\ns_add_u32 s19, s19, {(4*nH+20*nX-24*nL-(T-nL)) & 0xffffffff}\ns_cmp_ge_u32 s5, 24\ns_cselect_b32 s17, s19, s17\ns_cselect_b32 s18, {T-nL}, s18")
    A("s_lshl_b32 s17, s17, 13\ns_lshl_b32 s16, s4, 23\ns_add_u32 s17, s17, s16")
    A(f"s_lshl_b32 s16, s21, 12\ns_add_u32 s16, s16, s17\ns_add_u32 s16, s16, {NM*8192}\ns_lshl_b32 s19, s21, 10\ns_add_u32 s17, s17, s19")
    A("s_cmp_ge_u32 s5, 4\ns_cbranch_scc1 L_s1\ns_barrier\nL_s1:")
    A("s_waitcnt lgkmcnt(0)")
    srd(8, P_K, 0x4000000); srd(12, P_V, 0x4000000)
    KR = lambda t: 168 - 4 * T + 4 * t
    nS = (T + 3) // 4; nP = (T + 7) // 8
    first_v = nS - 1 + nP + 1
    vslots = [12 + 4 * i for i in range(NW)] + [KR(i) for i in range(first_v, T)]
    VR = lambda t: vslots[t % len(vslots)]
    st = {"cur": None}
    MP = NM - nmask + 12
    perm = list(range(nmask, nmask + MP)) + list(range(nmask)) + list(range(nmask + MP, T))
    def ld(which, t):
        o = perm[t]
        if o < NM:
            A(f"s_add_u32 s20, s17, {o*8192}"); st["cur"] = None; imm = 0
            if o < nmask: A(f"s_cmp_gt_u32 s18, {o}\ns_cselect_b32 s20, 0x4000000, s20")
        else:
            key = (o - NM) >> 2; imm = ((o - NM) & 3) * 1024
            if st["cur"] != key:
                A(f"s_add_u32 s20, s16, {key*32768}"); st["cur"] = key
        if which == "K": A(f"buffer_load_dwordx4 {v4(KR(t))}, v1, s[8:11], s20 offen offset:{imm} {kpol}")
        else: A(f"buffer_load_dwordx4 {v4(VR(t))}, v2, s[12:15], s20 offen offset:{imm} {vpol}")
    korder = list(range(T))
    seq = [("K", t) for t in korder] + [("V", t) for t in range(NW)]
    for i, (wh, t) in enumerate(seq):
        if i == win: A("s_cmp_lt_u32 s5, 4\ns_cbranch_scc1 L_s2\ns_barrier\nL_s2:")
        if i == T and kprio: A("s_setprio 0")
        if i >= win: A(f"s_waitcnt vmcnt({win-1})")
        ld(wh, t)
        if i == qtrig: A(f"v_mov_b32 v8, 0\nv_mov_b32 v9, 1\nds_max_u32 v8, v9 offset:{L_FK}")
        if i == qtrig2 and qloc: A(f"v_mov_b32 v8, 0\nv_mov_b32 v9, 2\nds_max_u32 v8, v9 offset:{L_FK}")
    viss = NW
    A("v_and_b32 v8, 3, v0\nv_lshlrev_b32 v8, 8, v8\nv_lshrrev_b32 v9, 4, v0\nv_lshl_add_u32 v8, v9, 6, v8\nv_bfe_u32 v9, v0, 2, 2\nv_lshl_add_u32 v8, v9, 4, v8\nv_mov_b32 v9, 0")
    A(f"s_mov_b32 s22, {f2x(128**-0.5*1.4426950408889634)}")
    for t in range(nmask): A(f"s_cmp_gt_u32 s18, {t}\ns_cselect_b32 s{28+t}, 0xff800000, 0")
    stamp(1)
    lspin("sq", L_FQ, 1, 9, 10, 2, lambda: A(f"ds_read_b128 v[4:7], v8 offset:{L_Q}"))
    A(f"s_waitcnt vmcnt({NW})")
    stamp(2)
    DR = lambda t: 8 if t == 0 else KR(t - 1)
    SR = lambda t: (8 + t) if t < 4 else KR((t >> 2) - 1) + (t & 3)
    def M(t): A(f"v_mfma_f32_16x16x32_bf16 {v4(DR(t))}, {v4(KR(t))}, v[4:7], 0")
    def AB(t):
        d = DR(t)
        A(f"v_add_f32_dpp v{d}, v{d+1}, v{d} row_shl:4 {DPPF} bound_ctrl:0")
        A(f"v_add_f32_dpp v{d+2}, v{d+3}, v{d+2} row_shl:4 {DPPF} bound_ctrl:0")
    def S(t):
        d = DR(t)
        A(f"v_add_f32_dpp v{SR(t)}, v{d+2}, v{d} row_shl:8 {DPPF} bound_ctrl:0")
    mark0 = len(A.lines)
    M(0); M(1); M(2)
    for t in range(T + 1):
        if t < T: AB(t)
        if t >= 1:
            S(t - 1)
            if vmid and t - 2 >= first_v and (t - 2 - first_v) % vmid == 0:
                ld("V", viss); viss += 1
        if t + 3 < T: M(t + 3)
    TM = KR(first_v - 1)
    Sl = [SR(t) for t in range(T)]
    for t in range(nmask): A(f"v_add_f32 v{Sl[MP+t]}, s{28+t}, v{Sl[MP+t]}")
    A(f"v_max3_f32 v{TM}, v{Sl[0]}, v{Sl[1]}, v{Sl[2]}")
    A(f"v_max3_f32 v{TM+1}, v{Sl[3]}, v{Sl[4]}, v{Sl[5]}")
    i = 6; k = 0
    while i < T:
        A(f"v_max3_f32 v{TM+k}, v{TM+k}, v{Sl[i]}, v{Sl[i+1]}"); i += 2; k ^= 1
    A(f"v_max_f32 v{TM}, v{TM}, v{TM+1}")
    xrow("v_max_f32", TM, TM + 1, 16); xrow("v_max_f32", TM, TM + 1, 32)
    A(f"v_mul_f32 v{TM}, s22, v{TM}")
    for t in range(T): A(f"v_fma_f32 v{Sl[t]}, v{Sl[t]}, s22, -v{TM}")
    for t in range(T): A(f"v_exp_f32 v{Sl[t]}, v{Sl[t]}")
    if vmid: ld("V", viss); viss += 1
    A(f"v_add_f32 v{TM+1}, v{Sl[0]}, v{Sl[1]}\nv_add_f32 v{TM+2}, v{Sl[2]}, v{Sl[3]}")
    for t in range(4, T): A(f"v_add_f32 v{TM+1+(t&1)}, v{TM+1+(t&1)}, v{Sl[t]}")
    A(f"v_add_f32 v{TM+1}, v{TM+1}, v{TM+2}")
    xrow("v_add_f32", TM + 1, TM + 2, 16); xrow("v_add_f32", TM + 1, TM + 2, 32)
    A(f"s_lshl_b32 s19, s21, 5\nv_lshl_add_u32 v{TM+2}, v0, 3, s19\nv_mov_b32 v4, 0\nv_mov_b32 v5, 1")
    A("s_mov_b64 exec, 0xf")
    A(f"ds_write_b64 v{TM+2}, {v2(TM)} offset:{L_ST}")
    A("s_mov_b64 exec, 1")
    A(f"ds_add_u32 v4, v5 offset:{L_CS}")
    A("s_mov_b64 exec, -1")
    PR = lambda u: KR(nS - 1 + u)
    for t in range(0, T, 2): A(f"v_cvt_pk_bf16_f32 v{PR(t//8)+(t%8)//2}, v{Sl[t]}, v{Sl[t+1]}")
    rem = T % 8
    assert rem in (0, 2, 4)
    if rem == 2: A(f"v_mov_b32 v{PR(nP-1)+1}, 0")
    A("s_waitcnt lgkmcnt(0)")
    stamp(3)
    ACC = [8] + [KR(i) for i in range(7)]
    TT = [TM, 4]
    def pv(u):
        n = min(8, T - 8 * u)
        for e in range(8):
            Tm = TT[e & 1]
            for p in range(n // 2):
                a = VR(8 * u + 2 * p) + (e >> 1); b = VR(8 * u + 2 * p + 1) + (e >> 1)
                A(f"v_perm_b32 v{Tm+p}, v{b}, v{a}, s{24+(e&1)}")
            c = "0" if u == 0 else v4(ACC[e])
            if n == 8: A(f"v_mfma_f32_16x16x32_bf16 {v4(ACC[e])}, {v4(Tm)}, {v4(PR(u))}, {c}")
            else: A(f"v_mfma_f32_16x16x16_bf16 {v4(ACC[e])}, {v2(Tm)}, {v2(PR(u))}, {c}")
    ns = len(vslots)
    while viss < min(win2, ns):
        ld("V", viss); viss += 1
    done_u = 0
    for L in range(T):
        last = (L % 8 == 7) or L == T - 1
        if L == T - 1:
            A(f"s_waitcnt lgkmcnt(0)\ns_lshl_b32 s19, s21, 11\nv_and_b32 v1, 3, v0\nv_lshlrev_b32 v1, 6, v1\nv_lshrrev_b32 v2, 4, v0\nv_lshl_add_u32 v1, v2, 4, v1\nv_add_u32 v1, s19, v1\nv_mov_b32 v{PR(0)}, 0\nv_mov_b32 v{PR(0)+1}, 1")
        can = lambda: viss < T and viss - 1 - L < win2 and (viss < ns or done_u > (viss - ns) // 8)
        if can() or last:
            A(f"s_waitcnt vmcnt({viss-1-L})")
        while can():
            ld("V", viss); viss += 1
            if viss == T:
                A(f"v_mov_b32 v1, 0\nv_mov_b32 v2, 1\ns_mov_b64 exec, 1\nds_add_u32 v1, v2 offset:{L_CV}\ns_mov_b64 exec, -1")
        if last:
            if L == T - 1: stamp(4)
            pv(L // 8); done_u += 1
    assert viss == T
    if nocomp:
        keep = [l for l in A.lines[mark0:] if not l.startswith(("v_mfma", "v_perm_b32", "v_add_f32", "v_exp", "v_fma", "v_max", "v_cvt", "v_permlane"))]
        A.lines[mark0:] = keep
    A("s_mov_b32 exec_lo, 0x000f000f\ns_mov_b32 exec_hi, 0x000f000f")
    for e in range(8): A(f"ds_write_b128 v1, {v4(ACC[e])} offset:{L_OP+e*256}")
    A("s_mov_b64 exec, 1")
    A(f"ds_add_u32 v{PR(0)}, v{PR(0)+1} offset:{L_CO}")
    if stamps: A("s_waitcnt lgkmcnt(0)")
    stamp(5)
    end_wave()

    A("L_nh:")
    A("s_cmp_ge_u32 s5, 12\ns_cbranch_scc1 L_nq")
    A("v_lshlrev_b32 v1, 17, v12\nv_lshl_add_u32 v1, v13, 4, v1")
    A("s_lshl_b32 s20, s3, 20\ns_lshl_b32 s21, s4, 10\ns_add_u32 s20, s20, s21\ns_sub_u32 s26, s5, 4\ns_lshl_b32 s21, s26, 7\ns_add_u32 s20, s20, s21")
    A("s_lshl_b32 s21, s3, 8\nv_lshl_add_u32 v14, v0, 2, s21")
    A("s_waitcnt lgkmcnt(0)")
    srd(8, P_WQ, 512 * 8192)
    A(f"global_load_dwordx4 v[8:11], v2, {sp(P_X)}\nglobal_load_dword v15, v14, {sp(P_X)}")
    for i in range(16):
        A(f"buffer_load_dwordx4 {v4(40+4*i)}, v1, s[8:11], s20 offen {wpol}")
        if i < 15: A("s_add_u32 s20, s20, 8192")
    A(f"s_load_dword s6, {WS}, 0")
    A("s_barrier")
    A(f"s_lshl_b32 s26, s26, 8\ns_lshl_b32 s21, s4, 11\ns_add_u32 s26, s26, s21\ns_add_u32 s26, s26, {WS_Q}")
    A("s_waitcnt vmcnt(16)")
    unpack(32, [8, 9, 10, 11], 4)
    A("v_add_f32 v4, v32, v33")
    for i in range(2, 8): A(f"v_add_f32 v4, v4, v{32+i}")
    wave_reduce("v_add_f32", 4, 5)
    A(f"v_mul_f32 v4, {f2x(1/512)}, v4")
    for i in range(8): A(f"v_sub_f32 v{32+i}, v{32+i}, v4")
    A("v_mul_f32 v6, v32, v32")
    for i in range(1, 8): A(f"v_fmac_f32 v6, v{32+i}, v{32+i}")
    wave_reduce("v_add_f32", 6, 5)
    A(f"v_mov_b32 v5, {f2x(1e-5)}\nv_fmac_f32 v5, {f2x(1/512)}, v6\nv_rsq_f32 v5, v5")
    unpack(8, [15], 1)
    A("v_sub_f32 v8, v8, v4\nv_sub_f32 v9, v9, v4\nv_mul_f32 v8, v8, v5\nv_mul_f32 v9, v9, v5")
    A(f"v_lshlrev_b32 v15, 1, v14\nv_add_u32 v15, {WS_H}, v15\nv_add_u32 v10, 4096, v15")
    mktag()
    A("s_waitcnt vmcnt(0)")
    stamp(1)
    gemv_perm(40, 104, 8)
    poll("ph", lambda: [A(f"global_load_dwordx2 {v2(16+2*k)}, v{15 if k<2 else 10}, {WS} offset:{2048*(k&1)} sc1") for k in range(4)],
         lambda: chk_tags([17, 19, 21, 23], 4), hsleep)
    stamp(2)
    unpack(24, [16, 18, 20, 22], 4)
    A("v_pk_add_f32 v[24:25], v[24:25], v[26:27]\nv_pk_add_f32 v[28:29], v[28:29], v[30:31]")
    A("v_add_f32 v28, 1.0, v28\nv_add_f32 v29, 1.0, v29\nv_pk_fma_f32 v[24:25], v[8:9], v[28:29], v[24:25]")
    A("L_gx:")
    A("v_cvt_pk_bf16_f32 v24, v24, v25")
    A(f"ds_write_b32 v14, v24 offset:{L_X}")
    A("s_lshl_b32 s21, s3, 8\nv_lshl_add_u32 v15, v12, 5, s21")
    A(f"ds_read_b128 v[24:27], v15 offset:{L_X}\nds_read_b128 v[28:31], v15 offset:{L_X+16}")
    A("s_waitcnt lgkmcnt(0)")
    gemv_dot(104, list(range(24, 32)), 32)
    A("s_branch L_gfin")

    A("L_nq:")
    A("s_waitcnt lgkmcnt(0)")
    A(f"s_load_dword s6, {WS}, 0")
    A("s_barrier")
    mktag()
    A("L_role:")
    A("s_cmp_ge_u32 s5, 24\ns_cbranch_scc1 L_qpoll")
    A("s_cmp_ge_u32 s5, 16\ns_cbranch_scc1 L_wb")
    A("s_mov_b32 s21, 98304\nv_mul_lo_u32 v1, v12, s21\nv_lshl_add_u32 v1, v13, 4, v1")
    A(f"s_mul_i32 s20, s3, {128*6144}\ns_sub_u32 s26, s5, 10\ns_lshl_b32 s26, s26, 10\ns_lshl_b32 s21, s4, 7\ns_add_u32 s26, s26, s21\ns_add_u32 s20, s20, s26")
    A("s_lshl_b32 s21, s3, 8\nv_lshl_add_u32 v14, v0, 2, s21")
    srd(8, P_WM, 512 * 6144)
    A(f"global_load_dword v15, v14, {sp(P_C)}")
    paced([f"buffer_load_dwordx4 {v4(40+4*i)}, v1, s[8:11], s20 offen {wpol}\ns_add_u32 s20, s20, 6144" for i in range(16)], 0)
    A(f"s_lshl_b32 s26, s26, 1\ns_add_u32 s26, s26, {WS_MOD-4096}")
    A("s_waitcnt vmcnt(0)")
    unpack(24, [15], 1); silu(24, 32, 2)
    gemv_perm(40, 104, 8)
    A("s_branch L_gx")
    def dma(loads, w):
        if skipw: return
        for i, l in enumerate(loads):
            if w and i >= w: A(f"s_waitcnt vmcnt({w-1})")
            A(f"s_add_u32 m0, s23, {1024*i}")
            A(l)
    A("L_wb:")
    srd(8, P_WO, 4096 * 1024)
    A("v_lshlrev_b32 v1, 10, v12\nv_lshl_add_u32 v1, v13, 4, v1")
    A("s_lshl_b32 s20, s4, 19\ns_lshl_b32 s21, s3, 17\ns_add_u32 s20, s20, s21\ns_sub_u32 s21, s5, 16\ns_lshl_b32 s21, s21, 7\ns_add_u32 s20, s20, s21")
    A(f"s_lshl_b32 s23, s3, 14\ns_add_u32 s23, s23, {L_WT}")
    dma([f"buffer_load_dwordx4 v1, s[8:11], s20 offen {wpol} lds\ns_add_u32 s20, s20, 8192" for i in range(16)], pace)
    A("v_bfe_u32 v1, v0, 2, 2\nv_lshlrev_b32 v1, 10, v1\nv_lshrrev_b32 v4, 4, v0\nv_lshl_add_u32 v1, v4, 12, v1\nv_and_b32 v4, 3, v0\nv_lshl_add_u32 v1, v4, 3, v1\nv_add_u32 v1, s23, v1")
    A("s_waitcnt vmcnt(0)")
    for c in range(4):
        for nt in range(4):
            for hi in range(2):
                A(f"ds_read_b64_tr_b16 {v2(104+16*c+4*nt+2*hi)}, v1 offset:{(c+4*hi)*128+nt*32}")
        A("s_waitcnt lgkmcnt(0)")
    A("L_qpoll:")
    if nosvc:
        A(f"v_mov_b32 v10, 0\nv_mov_b32 v5, 1\nds_write_b32 v10, v5 offset:{L_FQ}")
        end_wave()
    A("v_mov_b32 v10, 0\nv_mov_b32 v23, 0\nv_mov_b32 v37, 64\nv_mov_b32 v39, 64")
    A("s_cmp_lg_u32 s3, 1\ns_cbranch_scc1 L_np")
    A(f"s_lshl_b32 s21, s4, 11\ns_add_u32 s21, s21, {WS_Q}\nv_add_u32 v14, s21, v2")
    lspin("sk", L_FK, 1, 10, 11, 4)
    def ldq():
        if qloc:
            A(f"ds_read_b32 v11, v10 offset:{L_FK}\ns_waitcnt lgkmcnt(0)\nv_readfirstlane_b32 s21, v11\ns_lshr_b32 s21, s21, 1\ns_and_b32 s21, s21, s7")
            if slowfb: A(f"s_cmp_lt_u32 s7, {spin-slowfb}")
            A(f"s_cselect_b32 s21, 0, {WS_QL-WS_Q}\nv_add_u32 v15, s21, v14")
        for i in range(2): A(f"global_load_dwordx4 {v4(16+4*i)}, v{15 if qloc else 14}, {WS} offset:{1024*i} sc1")
    poll("pq", ldq, lambda: chk_tags([17, 19, 21, 23], 4), qsleep)
    A("v_mov_b32 v17, v18\nv_mov_b32 v21, v22\nv_lshlrev_b32 v14, 3, v0\nv_mov_b32 v5, 1")
    A(f"ds_write_b64 v14, v[16:17] offset:{L_Q}\nds_write_b64 v14, v[20:21] offset:{L_Q+512}")
    A(f"ds_write_b32 v10, v5 offset:{L_FQ}")
    stamp(4)
    A("L_np:")
    if xit == 'np': end_wave()
    A("s_cmp_eq_u32 s3, 2\ns_cbranch_scc1 L_post")
    A("s_cmp_ge_u32 s5, 31\ns_cbranch_scc1 L_done")
    A("s_cmp_ge_u32 s5, 16\ns_cbranch_scc1 L_ws")
    A("s_cmp_lg_u32 s3, 0\ns_cbranch_scc1 L_done\ns_cmp_lt_u32 s5, 4\ns_cbranch_scc1 L_done\ns_cmp_ge_u32 s5, 8\ns_cbranch_scc1 L_done")
    A("L_ws:")
    lspin("ss0", L_CS, 8, 10, 11, 16)
    A("s_branch L_pre")
    A("L_done:")
    end_wave()
    A("L_post:")
    A(f"s_lshl_b32 s20, s4, 15\ns_lshl_b32 s21, s5, 6\ns_add_u32 s20, s20, s21\ns_add_u32 s20, s20, {WS_A}")
    A("v_bfe_u32 v36, v0, 2, 2\nv_lshlrev_b32 v37, 13, v36\nv_lshrrev_b32 v15, 4, v0\nv_lshl_add_u32 v37, v15, 11, v37\nv_and_b32 v15, 3, v0\nv_lshl_add_u32 v37, v15, 4, v37\nv_add_u32 v37, s20, v37")
    for i in range(4): A(f"v_mov_b32 v{16+i}, -1")
    if not nopre: A(f"global_store_dwordx4 v37, v[16:19], {WS} sc1")
    if loc: A(f"v_add_u32 v39, {WS_AL-WS_A}, v37")
    if loc and not nopre: A(f"global_store_dwordx4 v39, v[16:19], {WS}")
    A("v_lshlrev_b32 v38, 3, v36")
    A(f"s_lshl_b32 s20, s4, 11\ns_lshl_b32 s21, s5, 4\ns_add_u32 s20, s20, s21\ns_add_u32 s20, s20, {WS_ST}\nv_lshl_add_u32 v36, v36, 9, s20")
    lspin("ss", L_CS, 8, 10, 11, 8)
    stamp(1)
    for w in range(8): A(f"ds_read_b64 {v2(40+2*w)}, v38 offset:{L_ST+32*w}")
    A("s_waitcnt lgkmcnt(0)")
    A("v_max3_f32 v56, v40, v42, v44\nv_max3_f32 v56, v56, v46, v48\nv_max3_f32 v56, v56, v50, v52\nv_max_f32 v56, v56, v54")
    for w in range(8): A(f"v_sub_f32 v{28+w}, v{40+2*w}, v56")
    for w in range(8): A(f"v_exp_f32 v{28+w}, v{28+w}")
    A("v_mul_f32 v58, v28, v41")
    for w in range(1, 8): A(f"v_fmac_f32 v58, v{28+w}, v{41+2*w}")
    A("s_getreg_b32 s20, hwreg(HW_REG_XCC_ID, 0, 4)\ns_add_u32 s20, s20, s6\nv_mov_b32 v57, s6\nv_mov_b32 v59, s20")
    A("s_waitcnt vmcnt(0)")
    A("s_mov_b64 exec, 0x1111")
    A(f"global_store_dwordx4 v36, v[56:59], {WS} sc1")
    A("s_mov_b64 exec, -1")
    stamp(2)
    A("s_cmp_lt_u32 s5, 16\ns_cbranch_scc1 L_red\ns_cmp_ge_u32 s5, 31\ns_cbranch_scc1 L_red")
    A("L_pre:")
    if xit == 'pre': end_wave()
    A("s_cmp_lt_u32 s5, 16\ns_cbranch_scc1 L_tf")
    A("s_cmp_ge_u32 s5, 24\ns_cbranch_scc1 L_prec")
    A("s_cmp_ge_u32 s3, 2\ns_cbranch_scc1 L_wait")
    A(f"s_lshl_b32 s20, s4, 11\ns_lshl_b32 s21, s3, 10\ns_add_u32 s20, s20, s21\ns_add_u32 s20, s20, {WS_ST}\nv_add_u32 v5, s20, v2")
    lspin("sb", L_CV, strig, 10, 11, 4)
    poll("ps", lambda: A(f"global_load_dwordx4 v[40:43], v5, {WS} sc1"), lambda: A("v_subrev_u32 v43, s6, v43\nv_xor_b32 v6, s6, v41\nv_lshrrev_b32 v7, 4, v43\nv_or_b32 v6, v6, v7\nv_cmp_ne_u32 vcc, 0, v6"), 8)
    A("s_getreg_b32 s20, hwreg(HW_REG_XCC_ID, 0, 4)\nv_cmp_eq_u32 vcc, s20, v43")
    A("v_mov_b32 v46, vcc_lo")
    A("v_mov_b32 v44, v40")
    inrow("v_max_f32", 44, ["row_ror:8", "row_ror:4", "row_ror:2", "row_ror:1"]); xrow("v_max_f32", 44, 45, 16)
    A("v_sub_f32 v40, v40, v44\nv_exp_f32 v40, v40\nv_mul_f32 v44, v40, v42")
    inrow("v_add_f32", 44, ["row_ror:8", "row_ror:4", "row_ror:2", "row_ror:1"]); xrow("v_add_f32", 44, 45, 16)
    A("v_rcp_f32 v44, v44\nv_mul_f32 v40, v40, v44")
    A("s_lshl_b32 s20, s3, 8\nv_lshl_add_u32 v4, v0, 2, s20\nv_mov_b32 v5, 1")
    A(f"ds_write_b32 v4, v40 offset:{L_X}\ns_mov_b64 exec, 1\nds_write_b32 v10, v46 offset:{L_MK}\nds_add_u32 v10, v5 offset:{L_CW}\ns_mov_b64 exec, -1")
    A("s_branch L_wait")
    A("L_prec:")
    A("s_mul_i32 s26, s4, 7\ns_add_u32 s26, s26, s5\ns_sub_u32 s26, s26, 24")
    A("v_and_b32 v20, 31, v0\nv_lshlrev_b32 v20, 3, v20\nv_lshrrev_b32 v21, 5, v0\nv_lshl_add_u32 v20, v21, 2, v20")
    A("s_lshl_b32 s20, s3, 8\nv_add_u32 v20, s20, v20")
    A(f"global_load_dword v22, v20, {sp(P_X)}")
    A(f"v_lshlrev_b32 v21, 1, v20\nv_add_u32 v21, {WS_MOD}, v21\nv_add_u32 v23, 4096, v21")
    poll("pm", lambda: A(f"global_load_dwordx2 v[40:41], v21, {WS} sc1\nglobal_load_dwordx2 v[42:43], v21, {WS} offset:2048 sc1\nglobal_load_dwordx2 v[44:45], v23, {WS} sc1"),
         lambda: chk_tags([41, 43, 45], 46), 16)
    unpack(4, [22, 40, 44], 3)
    A("v_add_f32 v8, 1.0, v8\nv_add_f32 v9, 1.0, v9\nv_cvt_pk_bf16_f32 v44, v8, v9")
    unpack(8, [44], 1)
    A(f"ds_write_b32 v20, v44 offset:{L_U}\nds_write_b32 v20, v42 offset:{L_U+1024}")
    A("v_lshrrev_b32 v23, 4, v0\nv_lshlrev_b32 v23, 4, v23\nv_add_u32 v21, s20, v23\nv_and_b32 v22, 1, v0\nv_lshl_add_u32 v22, v22, 10, v21")
    A("s_cmp_eq_u32 s3, 2\ns_cbranch_scc1 L_red")
    A("s_setprio 1")
    if cdefer: lspin("sv", L_CV, cdefer, 10, 11, 4)
    A("s_branch L_tc")
    A("L_wait:")
    stamp(5)
    A("s_cmp_eq_u32 s3, 2\ns_cbranch_scc1 L_red")
    A("s_branch L_tb")
    A("L_red:")
    if xit in ('pre', 'red'): end_wave()
    lspin("so", L_CO, 8, 10, 11, 0)
    for w in range(8):
        A(f"ds_read_b128 {v4(40+8*w)}, v2 offset:{L_OP+w*2048}")
        A(f"ds_read_b128 {v4(44+8*w)}, v2 offset:{L_OP+w*2048+1024}")
    for w in range(8):
        A(f"s_waitcnt lgkmcnt({14-2*w})")
        f = v2(28 + (w & ~1)); o = w & 1
        for q in range(4):
            if w == 0: A(f"v_pk_mul_f32 {v2(40+2*q)}, {v2(40+2*q)}, {f} op_sel:[0,{o}] op_sel_hi:[1,{o}]")
            else: A(f"v_pk_fma_f32 {v2(40+2*q)}, {v2(40+8*w+2*q)}, {f}, {v2(40+2*q)} op_sel:[0,{o},0] op_sel_hi:[1,{o},1]")
    for q in range(4): A(f"v_cvt_pk_bf16_f32 v{48+q}, v{40+2*q}, v{41+2*q}")
    if loc: A(f"global_store_dwordx4 v39, v[48:51], {WS}")
    A(f"global_store_dwordx4 v37, v[48:51], {WS} sc1")
    stamp(3)
    A("s_cmp_lt_u32 s5, 16\ns_cbranch_scc1 L_done\ns_cmp_ge_u32 s5, 31\ns_cbranch_scc1 L_done")
    A("s_cmp_lt_u32 s5, 24\ns_cbranch_scc1 L_tb")
    A("L_tc:")
    A("s_mul_i32 s26, s4, 7\ns_add_u32 s26, s26, s5\ns_sub_u32 s26, s26, 24")
    srd(8, P_W1, 512 * 3584); srd(12, P_W2, 1792 * 1024)
    A("v_lshrrev_b32 v1, 2, v0\ns_mov_b32 s20, 3584\nv_mul_lo_u32 v1, v1, s20\nv_and_b32 v12, 3, v0\nv_lshl_add_u32 v1, v12, 4, v1")
    A(f"s_mul_i32 s20, s3, {128*3584}\ns_lshl_b32 s21, s26, 6\ns_add_u32 s20, s20, s21")
    A("v_lshlrev_b32 v12, 6, v23\nv_and_b32 v13, 15, v0\nv_lshl_add_u32 v12, v13, 4, v12")
    A("s_lshl_b32 s22, s26, 15\ns_lshl_b32 s21, s3, 8\ns_add_u32 s22, s22, s21")
    A(f"s_lshl_b32 s23, s3, 14\ns_add_u32 s23, s23, {L_WT}")
    if not nocw: dma([f"buffer_load_dwordx4 v1, s[8:11], s20 offen {w1pol} lds\ns_add_u32 s20, s20, {16*3584}" for i in range(8)] +
        [f"buffer_load_dwordx4 v12, s[12:15], s22 offen {wpol} lds\ns_add_u32 s22, s22, 4096" for i in range(8)], 0)
    A("s_setprio 3")
    A("v_lshrrev_b32 v12, 4, v0\nv_bfe_u32 v13, v0, 2, 2\nv_and_b32 v14, 3, v0\nv_lshl_add_u32 v14, v14, 3, s23")
    A("v_lshl_add_u32 v1, v12, 9, v14\nv_lshl_add_u32 v1, v13, 6, v1")
    A("v_lshl_add_u32 v15, v12, 10, v14\nv_lshl_add_u32 v15, v13, 8, v15")
    for c in range(4): A(f"ds_read_b128 {v4(40+4*c)}, v22 offset:{L_U+64*c}")
    A("s_waitcnt vmcnt(0)")
    stamp(4)
    for c in range(4):
        for mt in range(2):
            for hi in range(2):
                A(f"ds_read_b64_tr_b16 {v2(104+8*c+4*mt+2*hi)}, v1 offset:{(32*c+4*hi)*64+mt*32}")
        if c & 1: A("s_waitcnt lgkmcnt(0)")
    for c in range(4):
        for mt in range(2):
            A(f"v_mfma_f32_16x16x32_bf16 {v4(24+4*mt)}, {v4(104+8*c+4*mt)}, {v4(40+4*c)}, {'0' if c==0 else v4(24+4*mt)}")
    for tau in range(8):
        for hi in range(2):
            A(f"ds_read_b64_tr_b16 {v2(136+4*tau+2*hi)}, v15 offset:{8192+hi*4096+tau*32}")
        if tau % 4 == 3: A("s_waitcnt lgkmcnt(0)")
    A("s_mov_b32 exec_lo, 0x00030003\ns_mov_b32 exec_hi, 0x00030003")
    A(f"ds_write_b128 v22, v[24:27] offset:{L_GS}\nds_write_b128 v22, v[28:31] offset:{L_GS+64}")
    A("s_mov_b64 exec, 1\nv_mov_b32 v33, 1")
    A(f"ds_add_u32 v10, v33 offset:{L_CP}")
    A("s_mov_b64 exec, -1")
    A("v_and_b32 v1, 31, v0\nv_lshlrev_b32 v1, 4, v1\nv_lshrrev_b32 v16, 5, v0\nv_lshl_add_u32 v1, v16, 11, v1")
    A(f"s_and_b32 s21, s26, {R-1}\ns_lshl_b32 s21, s21, 14\ns_lshl_b32 s20, s3, 9\ns_add_u32 s20, s20, s21\ns_add_u32 s20, s20, {WS_B}\nv_add_u32 v1, s20, v1")
    A("v_add_u32 v12, 4096, v1\nv_add_u32 v13, 8192, v1\nv_add_u32 v14, 12288, v1")
    A(f"s_lshl_b32 s20, s3, 8\nv_lshl_add_u32 v22, v16, 2, s20")
    A(f"s_lshl_b32 s20, s3, 15\ns_lshl_b32 s21, s26, 6\ns_add_u32 s20, s20, s21\ns_add_u32 s20, s20, {WS_C}")
    srd(8, P_WS, 0x1000000)
    for tau in range(8): A(f"s_add_u32 s{28+tau}, s20, {4096*tau}")
    A(f"s_mov_b32 s22, {f2x(1/512)}")
    lspin("sp", L_CP, 4, 10, 11, 1)
    for kind in range(2):
        for w in range(4):
            for mt in range(2):
                A(f"ds_read_b128 {v4(40+8*w+4*mt)}, v23 offset:{L_GS+1024*kind+256*w+64*mt}")
        A("s_waitcnt lgkmcnt(0)")
        d = 24 + 8 * kind
        for q in range(4):
            A(f"v_pk_add_f32 {v2(40+2*q)}, {v2(40+2*q)}, {v2(48+2*q)}\nv_pk_add_f32 {v2(56+2*q)}, {v2(56+2*q)}, {v2(64+2*q)}\nv_pk_add_f32 {v2(d+2*q)}, {v2(40+2*q)}, {v2(56+2*q)}")
    stamp(5)
    G = 40
    poll("pb", lambda: [A(f"global_load_dwordx4 {v4(G+4*i)}, v{1 if i==0 else 11+i}, {WS} sc1") for i in range(4)],
         lambda: chk_sent(range(G, G + 16), 15), csleep)
    stamp(6)
    A(f"v_pk_add_f32 {v2(G)}, {v2(G)}, {v2(G+4)}\nv_pk_add_f32 {v2(G+2)}, {v2(G+2)}, {v2(G+6)}\nv_pk_add_f32 {v2(G+8)}, {v2(G+8)}, {v2(G+12)}\nv_pk_add_f32 {v2(G+10)}, {v2(G+10)}, {v2(G+14)}")
    A(f"v_pk_add_f32 {v2(G)}, {v2(G)}, {v2(G+8)}\nv_pk_add_f32 {v2(G+2)}, {v2(G+2)}, {v2(G+10)}")
    A(f"v_permlane32_swap_b32 v{G}, v{G+2}\nv_permlane32_swap_b32 v{G+1}, v{G+3}")
    A(f"v_pk_add_f32 {v2(G)}, {v2(G)}, {v2(G+2)}")
    A(f"v_pk_fma_f32 v[4:5], {v2(G)}, v[6:7], v[4:5]")
    A("v_pk_mul_f32 v[6:7], v[4:5], v[8:9]\nv_cvt_pk_bf16_f32 v6, v6, v7")
    A(f"ds_write_b32 v20, v6 offset:{L_U}")
    for c in range(4): A(f"ds_read_b128 {v4(44+4*c)}, v21 offset:{L_U+64*c}")
    A("v_add_f32 v16, v4, v5\nv_mul_f32 v17, v4, v4\nv_fmac_f32 v17, v5, v5")
    A("v_permlane32_swap_b32 v16, v17\nv_add_f32 v16, v16, v17")
    xrow("v_add_f32", 16, 17, 16)
    inrow("v_add_f32", 16, ["row_ror:8", "row_ror:4"])
    for c in range(4):
        A(f"s_waitcnt lgkmcnt({3-c})")
        for mt in range(2):
            A(f"v_mfma_f32_16x16x32_bf16 {v4(60+4*mt)}, {v4(104+8*c+4*mt)}, {v4(44+4*c)}, {'0' if c==0 else v4(60+4*mt)}")
        if c == 0: inrow("v_add_f32", 16, ["row_ror:2"])
        if c == 1: inrow("v_add_f32", 16, ["row_ror:1"])
    A("s_mov_b32 exec_lo, 0x00010001\ns_mov_b32 exec_hi, 0x00010001")
    A(f"ds_write_b32 v22, v16 offset:{L_RED+128}")
    A(f"ds_write_b128 v21, v[60:63] offset:{L_RED}\nds_write_b128 v21, v[64:67] offset:{L_RED+64}")
    A("s_mov_b64 exec, -1")
    A("s_waitcnt lgkmcnt(0)\ns_barrier")
    for w in range(4): A(f"ds_read_b64 {v2(12+2*w)}, v10 offset:{L_RED+256*w+128}")
    for w in range(4):
        for mt in range(2): A(f"ds_read_b128 {v4(40+8*w+4*mt)}, v23 offset:{L_RED+256*w+64*mt}")
    A("s_waitcnt lgkmcnt(8)")
    A("v_pk_add_f32 v[12:13], v[12:13], v[14:15]\nv_pk_add_f32 v[16:17], v[16:17], v[18:19]\nv_pk_add_f32 v[12:13], v[12:13], v[16:17]")
    A(f"v_mul_f32 v12, s22, v12\nv_mov_b32 v14, {f2x(1e-5)}\nv_fmac_f32 v14, s22, v13\nv_fma_f32 v14, -v12, v12, v14\nv_rsq_f32 v14, v14")
    A("s_waitcnt lgkmcnt(4)")
    for q in range(4): A(f"v_pk_add_f32 {v2(40+2*q)}, {v2(40+2*q)}, {v2(48+2*q)}")
    for q in range(4): A(f"v_pk_fma_f32 {v2(40+2*q)}, {v2(24+2*q)}, v[12:13], {v2(40+2*q)} op_sel_hi:[1,0,1] neg_lo:[0,1,0] neg_hi:[0,1,0]")
    A("s_waitcnt lgkmcnt(0)")
    for q in range(4): A(f"v_pk_add_f32 {v2(56+2*q)}, {v2(56+2*q)}, {v2(64+2*q)}")
    for q in range(4): A(f"v_pk_add_f32 {v2(40+2*q)}, {v2(40+2*q)}, {v2(56+2*q)}")
    for q in range(4): A(f"v_pk_fma_f32 {v2(40+2*q)}, {v2(40+2*q)}, v[14:15], {v2(32+2*q)} op_sel_hi:[1,0,1]")
    for q in range(4): A(f"v_cvt_pk_bf16_f32 v{48+q}, v{40+2*q}, v{41+2*q}")
    for q in range(4): A(f"v_pk_max_i16 v{48+q}, v{48+q}, 0")
    for tau in range(8): A(f"v_mfma_f32_16x16x32_bf16 {v4(56+4*tau)}, {v4(136+4*tau)}, v[48:51], 0")
    A("s_mov_b32 exec_lo, 0x00010001\ns_mov_b32 exec_hi, 0x00010001")
    for tau in range(8): A(f"buffer_store_dwordx4 {v4(56+4*tau)}, v23, s[8:11], s{28+tau} offen sc1")
    stamp(7)
    end_wave()
    A("L_tb:")
    A("s_lshl_b32 s20, s3, 7\nv_lshrrev_b32 v5, 4, v0\nv_lshl_add_u32 v5, v5, 4, s20")
    lspin("sx", L_CW, 2, 10, 11, 1, lambda: A(f"ds_read_b32 v6, v10 offset:{L_MK}\nds_read_b128 v[12:15], v5 offset:{L_X}\nds_read_b128 v[16:19], v5 offset:{L_X+64}"))
    A("v_readfirstlane_b32 s30, v6")
    A("s_and_b32 s28, s30, 0xffff\ns_mul_i32 s28, s28, 0x10001\ns_mov_b32 s29, s28\ns_lshr_b32 s30, s30, 16\ns_mul_i32 s30, s30, 0x10001\ns_mov_b32 s31, s30")
    A("v_and_b32 v1, 15, v0\nv_lshrrev_b32 v4, 4, v0\nv_lshlrev_b32 v24, 4, v1\nv_lshl_add_u32 v22, v4, 14, v24\nv_lshlrev_b32 v1, 6, v1\nv_lshl_add_u32 v1, v4, 4, v1")
    A(f"s_lshl_b32 s20, s4, 15\ns_lshl_b32 s21, s3, 13\ns_add_u32 s20, s20, s21\ns_add_u32 s20, s20, {WS_A}\nv_add_u32 v1, s20, v1\nv_add_u32 v20, 4096, v1")
    A(f"v_add_u32 v5, {(WS_AL-WS_A) if loc else 0}, v1\nv_cndmask_b32 v6, v1, v5, s[28:29]\nv_cndmask_b32 v7, v1, v5, s[30:31]\nv_add_u32 v8, 4096, v6\nv_add_u32 v9, 4096, v7")
    lda = lambda: [A(f"global_load_dwordx4 {v4(40+8*c+4*s_)}, v{6+s_+(0 if c<2 else 2)}, {WS} offset:{2048*(c&1)+1024*s_} {lpol}") for c in range(4) for s_ in range(2)]
    A("s_lshl_b32 s20, s3, 8\nv_lshl_add_u32 v21, v0, 2, s20")
    A(f"s_lshl_b32 s20, s4, 11\ns_sub_u32 s21, s5, 16\ns_lshl_b32 s21, s21, 8\ns_add_u32 s20, s20, s21\ns_add_u32 s20, s20, {WS_B}\nv_add_u32 v22, s20, v22")
    poll("pa", lda, lambda: chk_sent(range(40, 72), 23), tsleep)
    stamp(6)
    D = lambda s_, nt: 72 + 16 * s_ + 4 * nt
    for s_ in range(2):
        for c in range(4):
            for nt in range(4):
                d = D(s_, nt)
                A(f"v_mfma_f32_16x16x32_bf16 {v4(d)}, {v4(40+8*c+4*s_)}, {v4(104+16*c+4*nt)}, {'0' if c==0 else v4(d)}")
                if s_ == 1 and c == 2:
                    A(f"v_pk_mul_f32 {v2(D(0,nt))}, {v2(D(0,nt))}, v[12:13]\nv_pk_fma_f32 {v2(D(0,nt))}, {v2(D(0,nt)+2)}, v[14:15], {v2(D(0,nt))}")
    for nt in range(4):
        A(f"v_pk_fma_f32 {v2(D(0,nt))}, {v2(D(1,nt))}, v[16:17], {v2(D(0,nt))}\nv_pk_fma_f32 {v2(D(0,nt))}, {v2(D(1,nt)+2)}, v[18:19], {v2(D(0,nt))}")
    for nt in range(4): A(f"v_add_f32 v{D(0,nt)}, v{D(0,nt)}, v{D(0,nt)+1}")
    A("v_permlane32_swap_b32 v72, v80\nv_permlane32_swap_b32 v76, v84\nv_add_f32 v72, v72, v80\nv_add_f32 v76, v76, v84")
    A("v_permlane16_swap_b32 v72, v76\nv_add_f32 v72, v72, v76")
    A(f"ds_write_b32 v21, v72 offset:{L_RED}")
    A("s_waitcnt lgkmcnt(0)\ns_barrier")
    A("s_cmp_lg_u32 s3, 0\ns_cbranch_scc1 L_done")
    if R < 4: A(f"s_mov_b64 exec, {(1<<(16*R))-1:#x}")
    for w in range(4): A(f"ds_read_b128 {v4(40+4*w)}, v24 offset:{L_RED+256*w}")
    A("s_waitcnt lgkmcnt(2)\nv_pk_add_f32 v[40:41], v[40:41], v[44:45]\nv_pk_add_f32 v[42:43], v[42:43], v[46:47]")
    A("s_waitcnt lgkmcnt(0)\nv_pk_add_f32 v[48:49], v[48:49], v[52:53]\nv_pk_add_f32 v[50:51], v[50:51], v[54:55]")
    A("v_pk_add_f32 v[40:41], v[40:41], v[48:49]\nv_pk_add_f32 v[42:43], v[42:43], v[50:51]")
    A(f"global_store_dwordx4 v22, v[40:43], {WS} sc1")
    stamp(7)
    end_wave()
    A("L_tf:")
    A("s_lshl_b32 s26, s4, 2\ns_add_u32 s26, s26, s5\ns_sub_u32 s26, s26, 4\ns_lshl_b32 s20, s26, 4")
    A("v_and_b32 v4, 3, v0\nv_lshrrev_b32 v5, 4, v0\nv_lshl_add_u32 v4, v4, 2, v5\nv_add_u32 v4, s20, v4\nv_lshlrev_b32 v5, 1, v4")
    A(f"global_load_ushort v8, v5, {sp(P_X)}")
    A(f"v_lshrrev_b32 v6, 1, v4\nv_lshlrev_b32 v6, 3, v6\nv_add_u32 v6, {WS_MOD}, v6\nv_add_u32 v7, 6144, v6")
    poll("pg", lambda: A(f"global_load_dwordx2 v[12:13], v6, {WS} sc1\nglobal_load_dwordx2 v[14:15], v7, {WS} sc1"),
         lambda: chk_tags([13, 15], 16), 16)
    A("v_lshlrev_b32 v8, 16, v8")
    A("v_and_b32 v16, 1, v4\nv_cmp_eq_u32 vcc, 0, v16")
    A("v_lshlrev_b32 v16, 16, v12\nv_and_b32 v17, 0xffff0000, v12\nv_cndmask_b32 v9, v17, v16, vcc")
    A("v_lshlrev_b32 v16, 16, v14\nv_and_b32 v17, 0xffff0000, v14\nv_cndmask_b32 v12, v17, v16, vcc")
    A(f"v_bfe_u32 v6, v0, 2, 2\nv_lshlrev_b32 v6, 12, v6\nv_lshl_add_u32 v6, v4, 2, v6\nv_add_u32 v6, {WS_B}, v6")
    A(f"s_lshl_b32 s20, s26, 12\ns_add_u32 s20, s20, {WS_C}\nv_add_u32 v7, s20, v2")
    lspin("sf", L_CO, 8, 10, 11, 4)
    poll("pxb", lambda: A(f"global_load_dword v13, v6, {WS} sc1\nglobal_load_dword v14, v6, {WS} offset:2048 sc1"), lambda: chk_sent([13, 14], 15), 4)
    A("v_add_f32 v13, v13, v14")
    inrow("v_add_f32", 13, ["row_ror:8", "row_ror:4"])
    A("v_fma_f32 v8, v9, v13, v8")
    stamp(6)
    poll("pc", lambda: [A(f"global_load_dwordx4 {v4(16+4*i)}, v7, {WS} offset:{1024*i} sc1") for i in range(4)],
         lambda: chk_sent(range(16, 32), 15), tsleep)
    stamp(7)
    A("v_pk_add_f32 v[16:17], v[16:17], v[20:21]\nv_pk_add_f32 v[18:19], v[18:19], v[22:23]\nv_pk_add_f32 v[24:25], v[24:25], v[28:29]\nv_pk_add_f32 v[26:27], v[26:27], v[30:31]")
    A("v_pk_add_f32 v[16:17], v[16:17], v[24:25]\nv_pk_add_f32 v[18:19], v[18:19], v[26:27]")
    A("v_permlane32_swap_b32 v16, v18\nv_permlane32_swap_b32 v17, v19\nv_pk_add_f32 v[16:17], v[16:17], v[18:19]")
    A("v_permlane16_swap_b32 v16, v17\nv_add_f32 v16, v16, v17")
    inrow("v_add_f32", 16, ["row_ror:8", "row_ror:4"])
    A("v_fma_f32 v16, v12, v16, v8\nv_cvt_pk_bf16_f32 v16, v16, v16")
    A("s_mov_b32 exec_lo, 0x000f000f\ns_mov_b32 exec_hi, 0x000f000f")
    A(f"global_store_short v5, v16, {sp(P_OUT)}")
    A("s_cmp_lg_u32 s26, 0\ns_cbranch_scc1 L_tfe")
    A("s_mov_b64 exec, 1\nv_mov_b32 v18, s6")
    A(f"global_store_dword v10, v18, {WS}")
    if fixend:
        A(f"L_fx:\ns_memrealtime s[98:99]\ns_waitcnt lgkmcnt(0)\ns_sub_u32 s98, s98, s96\ns_cmp_lt_u32 s98, {fixend}\ns_cbranch_scc1 L_fx")
    A("L_tfe:")
    stamp(4)
    end_wave()
    if stamps:
        A("L_stampout:")
        if stamps == 2:
            A("s_cmp_lg_u32 s2, 32\ns_cbranch_scc1 L_exit\ns_and_b32 s20, s3, 11\ns_cbranch_scc1 L_exit")
            A("s_mov_b64 exec, 0xff\ns_lshl_b32 s20, s3, 3\nv_lshl_add_u32 v1, v0, 2, s20")
            A(f"global_store_dword v1, v3, {sp(P_DBG)}\ns_endpgm")
        A("s_mov_b64 exec, 0xff")
        A("s_mul_i32 s20, s2, 12\ns_add_u32 s20, s20, s3\ns_lshl_b32 s20, s20, 5")
        A(f"s_add_u32 s20, s20, {WS_STAMP}")
        A("v_lshl_add_u32 v1, v0, 2, s20")
        A(f"global_store_dword v1, v3, {WS}")
    A("L_exit:\ns_endpgm")
    A(f"L_endcode:\n.fill (20480-(L_endcode-{NAME}))/4, 4, 0xbf800000")
    A('.section .rodata,"a"\n.p2align 6')
    A(f".amdhsa_kernel {NAME}")
    for l in ["next_free_vgpr 168", "next_free_sgpr 102", "accum_offset 168", "group_segment_fixed_size 0", "kernarg_size 104",
              "user_sgpr_count 2", "user_sgpr_kernarg_segment_ptr 1", "system_sgpr_workgroup_id_x 1"]:
        A("  .amdhsa_" + l)
    A(".end_amdhsa_kernel")
    return A.finish()

if __name__ == "__main__":
    out = sys.argv[1]; kw = {}
    for a in sys.argv[2:]:
        k, v = a.split("=", 1)
        try: v = ast.literal_eval(v)
        except Exception: pass
        kw[k] = v
    open(out, "w").write(gen(**kw))
```

```python
import sys, struct, ast
from asmlib import Asm
NAME = "adaLN_cond__gqa_block_cached__dense_activation_relu__decode_kernel"
def f2x(f): return "0x%08x" % struct.unpack("<I", struct.pack("<f", f))[0]

WS_QL = 0x10000; WS_H = 0x1000; WS_MOD = 0x4000; WS_Q = 0x8000; WS_ST = 0xC000
WS_AL = 0x180000; WS_A = 0x100000; WS_B = 0x140000; WS_C = 0x200000
WS_STAMP = 0x8000000
L_CG = 0; L_FQ = 4; L_CS = 8; L_CT = 68; L_CP = 16; L_FK = 20; L_CV = 24; L_CW = 28; L_FO = 32; L_MK = 64; L_FP = 12
L_ST = 256; L_Q = 1024; L_GP = 2048; L_X = 3072; L_RED = 4096; L_U = 5120; L_GS = 8192
L_OP = 16384; L_WT = 32768; LDS_SIZE = 98304
DPPF = "row_mask:0xf bank_mask:0xf"
P_X, P_K, P_V, P_WQ, P_WO, P_BX, P_W1, P_W2, P_C, P_WM, P_OUT, P_DBG, P_WS = [36 + 2 * i for i in range(13)]
def sp(n): return f"s[{n}:{n+1}]"
def v4(n): return f"v[{n}:{n+3}]"
def v2(n): return f"v[{n}:{n+1}]"
WS = sp(P_WS)

E_H, E_Q, E_M, E_B = 1, 2, 3, 4
R_B, R_C, R_F = 1, 2, 3
def make_plan(plan, **pk):
    P = dict(PLANS[plan]); P.update(pk)
    roles = {(x, a): dict(e=0, ei=0, l=0, li=0) for x in range(8) for a in range(32)}
    hi = mi = ci = fi = 0
    for x in range(8):
        a = 0
        for _ in range(P['H'][x]): roles[x, a].update(e=E_H, ei=hi); hi += 1; a += 1
        for c in range(8):
            roles[x, a].update(e=E_Q, ei=c)
            if c in (0, 1, 4, 5): roles[x, a].update(l=R_F, li=fi); fi += 1
            a += 1
        for c in range(8): roles[x, a].update(e=E_B, ei=c, l=R_B, li=c); a += 1
        for _ in range(P['M'][x]): roles[x, a].update(e=E_M, ei=mi); mi += 1; a += 1
        assert a <= 32
        cand = [b for b in range(31, -1, -1) if roles[x, b]['e'] == 0] + [b for b in range(32) if roles[x, b]['e'] == E_H] + [b for b in range(32) if roles[x, b]['e'] == E_M]
        for b in cand[:P['C'][x]]: roles[x, b].update(l=R_C, li=ci); ci += 1
    assert (hi, mi, ci, fi) == (32, 32, 56, 32), (hi, mi, ci, fi)
    for x in range(8):
        cost = []
        for a in range(32):
            r = roles[x, a]
            c = {0: 0, E_H: P['cH'], E_Q: P['cQ'], E_M: P['cM'], E_B: P['cB']}[r['e']]
            cb = r['ei'] if r['e'] in (E_Q, E_B) else (r['ei'] >> 2)
            if r['e'] and cb == 3: c += P['c3'][r['e']]
            if r['l'] == R_C: c += P['cC']
            cost.append(c)
        n = [28] * 32
        for _ in range(1024 - 28 * 32):
            b = min((a for a in range(32) if n[a] < P['T']), key=lambda a: (n[a] + cost[a], -a))
            n[b] += 1
        pre = 0
        for a in range(32):
            roles[x, a].update(n=n[a], pre=pre); pre += n[a] - 28
    T = max(r['n'] for r in roles.values()); T += T & 1
    return roles, T
base = dict(cH=2.0, cQ=3.6, cM=4.2, cB=3.6, cC=4.0, c3={E_H: 0.5, E_Q: 1.7, E_M: 1.5, E_B: 1.0}, T=34)
PLANS = {
 'A': dict(base, H=[4]*8, M=[4]*8, C=[7]*8),
 'B': dict(base, H=[8,0,8,0,8,0,8,0], M=[8,0,8,0,8,0,8,0], C=[14,0,14,0,14,0,14,0]),
 'C': dict(base, H=[8,0,8,0,8,0,8,0], M=[8,0,8,0,8,0,8,0], C=[7]*8),
 'D': dict(base, H=[8,8,8,8,0,0,0,0], M=[8,0,8,0,8,0,8,0], C=[14,0,14,0,14,0,14,0]),
 'E': dict(base, H=[8,8,8,8,0,0,0,0], M=[8,0,8,0,8,0,8,0], C=[8,6,8,6,8,6,8,6]),
 'F': dict(base, H=[8,4,8,4,4,0,4,0], M=[8,0,8,0,8,0,8,0], C=[10,4,10,4,10,4,10,4]),
}

def gen(win=5, win2=6, wpol="nt", stamps=0, spin=200000, hsleep=4, qsleep=8, tsleep=1, pace=4, cpre=1, kprio=0, skipw=0, vmid=4, nopoll='', qtrig=22, R=4, cdefer=1, csleep=2, nH=33, nX=31, nL=34, loc=1, lpol='sc1', w1pol='nt', nocomp=0, nosvc=0, sprio=3, nopre=0, nocw=0, lmul=1, xit='', qloc=1, strig=1, qtrig2=38, kpol='nt', vpol='nt', slowfb=0, fixend=0, plan='A', hfirst=1, cpad=1, w2late=1, fsleep=1, dry=0, yprio=0, burst=0, bwin=8, **pk):
    A = Asm()
    roles, T = make_plan(plan, **pk)
    hdr = open("cdna_kernels/" + NAME[:-7] + ".s.ref").read().split("; Override")[0]
    A(hdr.rstrip())
    A(f"; @launch grid=(256,1,1) block=(768,1,1) lds={LDS_SIZE}")
    A('.amdgcn_target "amdgcn-amd-amdhsa--gfx950"')
    A(f".text\n.globl {NAME}\n.p2align 8\n.type {NAME},@function\n{NAME}:")
    def stamp(k):
        if stamps:
            A("s_memrealtime s[62:63]\ns_waitcnt lgkmcnt(0)")
            A(f"v_writelane_b32 v3, s62, {k}")
    def end_wave():
        if stamps:
            A("s_branch L_stampout")
        else:
            A("s_endpgm")
    def srd(d, p, size):
        A(f"s_mov_b32 s{d}, s{p}\ns_mov_b32 s{d+1}, s{p+1}\ns_mov_b32 s{d+2}, {size}\ns_mov_b32 s{d+3}, 0x20000")
    def poll(name, loads, check, sleep):
        if name in nopoll.split('+'): return
        top = A.label(name); done = A.label(name + "d")
        A(f"s_mov_b32 s7, {spin}")
        A(f"{top}:")
        loads()
        A("s_waitcnt vmcnt(0)")
        check()
        A(f"s_cbranch_vccz {done}")
        A("s_mov_b64 exec, vcc")
        if sleep: A(f"s_sleep {sleep}")
        A("s_sub_u32 s7, s7, 1")
        A(f"s_cbranch_scc0 {top}")
        A(f"{done}:")
        A("s_mov_b64 exec, -1")
    def lspin(name, off, n, vz, vt, sleep=1, extra=None):
        top = A.label(name); done = A.label(name + "d")
        A(f"s_mov_b32 s7, {spin*20}")
        A(f"{top}:")
        A(f"ds_read_b32 v{vt}, v{vz} offset:{off}")
        if extra: extra()
        A("s_waitcnt lgkmcnt(0)")
        A(f"v_cmp_gt_u32 vcc, {n}, v{vt}")
        A(f"s_cbranch_vccz {done}")
        if lmul > 1: sleep = min(127, max(sleep, 1) * lmul)
        if sleep: A(f"s_sleep {sleep}")
        A("s_sub_u32 s7, s7, 1")
        A(f"s_cbranch_scc0 {top}")
        A(f"{done}:")
    def chk_tags(regs, tmp):
        A(f"v_xor_b32 v{tmp}, s6, v{regs[0]}")
        for r in regs[1:]:
            A(f"v_xor_b32 v{tmp+1}, s6, v{r}")
            A(f"v_or_b32 v{tmp}, v{tmp}, v{tmp+1}")
        A(f"v_cmp_ne_u32 vcc, 0, v{tmp}")
    def chk_sent(regs, tmp):
        regs = list(regs)
        if len(regs) == 1:
            A(f"v_cmp_eq_u32 vcc, -1, v{regs[0]}"); return
        if len(regs) == 2:
            A(f"v_max_u32 v{tmp}, v{regs[0]}, v{regs[1]}"); rest = []
        else:
            A(f"v_max3_u32 v{tmp}, v{regs[0]}, v{regs[1]}, v{regs[2]}"); rest = regs[3:]
        while rest:
            if len(rest) == 1:
                A(f"v_max_u32 v{tmp}, v{tmp}, v{rest[0]}"); rest = []
            else:
                A(f"v_max3_u32 v{tmp}, v{tmp}, v{rest[0]}, v{rest[1]}"); rest = rest[2:]
        A(f"v_cmp_eq_u32 vcc, -1, v{tmp}")
    def xrow(op, v, tmp, which):
        A(f"v_mov_b32 v{tmp}, v{v}")
        A(f"v_permlane{which}_swap_b32 v{v}, v{tmp}")
        A(f"{op} v{v}, v{v}, v{tmp}")
    def inrow(op, v, steps):
        for s in steps:
            A(f"{op}_dpp v{v}, v{v}, v{v} {s} {DPPF}")
    def wave_reduce(op, v, tmp):
        inrow(op, v, ["row_ror:8", "row_ror:4", "row_ror:2", "row_ror:1"])
        xrow(op, v, tmp, 16); xrow(op, v, tmp, 32)
    def unpack(dst, src, n):
        for i in range(n):
            A(f"v_lshlrev_b32 v{dst+2*i}, 16, v{src[i]}")
            A(f"v_and_b32 v{dst+2*i+1}, 0xffff0000, v{src[i]}")
    def silu(x, t, n):
        A(f"s_mov_b32 s21, {f2x(-1.4426950408889634)}")
        for i in range(n): A(f"v_mul_f32 v{t+i}, s21, v{x+i}")
        for i in range(n): A(f"v_exp_f32 v{t+i}, v{t+i}")
        for i in range(n): A(f"v_add_f32 v{t+i}, 1.0, v{t+i}")
        for i in range(n): A(f"v_rcp_f32 v{t+i}, v{t+i}")
        for i in range(n): A(f"v_mul_f32 v{x+i}, v{x+i}, v{t+i}")
    def gemv_perm(W, T, npair):
        for u in range(npair):
            for w in range(4):
                a = W + 8 * u + w; b = W + 8 * u + 4 + w
                A(f"v_perm_b32 v{T+8*u+2*w}, v{b}, v{a}, s24")
                A(f"v_perm_b32 v{T+8*u+2*w+1}, v{b}, v{a}, s25")
    def gemv_dot(T, X, acc):
        for u in range(len(X)):
            for e in range(8):
                c = "0" if u == 0 else f"v{acc+e}"
                A(f"v_dot2_f32_bf16 v{acc+e}, v{T+8*u+e}, v{X[u]}, {c}")
    def mktag():
        A("s_waitcnt lgkmcnt(0)\ns_mul_i32 s6, s6, 0x9E3779B1\ns_add_u32 s6, s6, 0x7F4A7C15")
    def paced(loads, w):
        if skipw and (w or skipw > 1): return
        for i, l in enumerate(loads):
            if w and i >= w: A(f"s_waitcnt vmcnt({w-1})")
            A(l)

    A("s_cmp_ge_u32 s2, 256\ns_cbranch_scc1 L_exit")
    A("s_load_dwordx16 s[36:51], s[0:1], 0\ns_load_dwordx8 s[52:59], s[0:1], 64\ns_load_dwordx2 s[60:61], s[0:1], 96")
    A("v_lshrrev_b32 v1, 6, v0\nv_and_b32 v0, 63, v0\nv_readfirstlane_b32 s3, v1")
    A("s_and_b32 s4, s2, 7\ns_lshr_b32 s5, s2, 3")
    if fixend: A("s_memrealtime s[96:97]")
    A("s_mov_b32 s24, 0x05040100\ns_mov_b32 s25, 0x07060302")
    A("v_lshlrev_b32 v2, 4, v0")
    if stamps:
        A("v_mov_b32 v3, 0"); stamp(0)
    A("s_getpc_b64 s[30:31]\nL_pc:\ns_add_u32 s32, s30, L_tab-L_pc\ns_addc_u32 s33, s31, 0\ns_lshl_b32 s20, s2, 2")
    A("s_cmp_lt_u32 s3, 4\ns_cbranch_scc1 L_service")
    STREAM_MARK = len(A.lines)
    A("L_service:")
    A("s_load_dword s68, s[32:33], s20")
    A(f"s_setprio {sprio}")
    if cpre:
        A("s_lshl_b32 s20, s5, 2\ns_add_u32 s20, s20, s3\ns_sub_u32 s20, s20, 108\ns_cmp_ge_u32 s20, 20\ns_cbranch_scc1 L_ncp")
        A(f"s_sub_u32 s30, s30, L_pc-{NAME}\ns_subb_u32 s31, s31, 0")
        A("s_lshl_b32 s20, s20, 10\nv_add_u32 v14, s20, v2")
        A("global_load_dwordx4 v[164:167], v14, s[30:31]")
        A("L_ncp:")
    A("v_lshrrev_b32 v12, 3, v0\nv_and_b32 v13, 7, v0\nv_mov_b32 v16, 0\nv_mov_b32 v17, 0\nv_mov_b32 v18, 0\nv_mov_b32 v19, 0")
    A("s_mov_b64 exec, 0x1f\nds_write_b128 v2, v[16:19]\ns_mov_b64 exec, -1")
    A("s_waitcnt lgkmcnt(0)")
    A("s_bfe_u32 s64, s68, 0x3000f\ns_bfe_u32 s65, s68, 0x50012\ns_bfe_u32 s66, s68, 0x20017\ns_bfe_u32 s67, s68, 0x60019")
    A("s_lshr_b32 s69, s65, 2\ns_and_b32 s70, s65, 3")
    A(f"s_cmp_lg_u32 s64, {E_H}\ns_cbranch_scc1 L_nh")
    A("s_lshr_b32 s20, s70, 1\ns_lshl_b32 s20, s20, 8\ns_lshl_b32 s21, s3, 6\ns_add_u32 s20, s20, s21")
    A("v_lshl_add_u32 v14, v12, 3, s20")
    A("s_mov_b32 s21, 6144\nv_mul_lo_u32 v1, v14, s21\nv_lshl_add_u32 v1, v13, 4, v1\nv_lshlrev_b32 v14, 1, v14")
    A("s_and_b32 s20, s70, 1\ns_lshl_b32 s20, s20, 10\ns_lshl_b32 s21, s69, 7\ns_add_u32 s20, s20, s21")
    A("s_waitcnt lgkmcnt(0)")
    srd(8, P_WM, 512 * 6144)
    A(f"global_load_dwordx4 v[4:7], v14, {sp(P_C)}")
    for i in range(8):
        A(f"buffer_load_dwordx4 {v4(40+4*i)}, v1, s[8:11], s20 offen {wpol}")
        if i < 7: A("s_add_u32 s20, s20, 6144")
    A(f"s_load_dword s6, {WS}, 0")
    A("s_barrier")
    A("s_lshl_b32 s20, s65, 2\ns_add_u32 s20, s20, s3")
    if cpad: A(f"s_lshl_b32 s21, s20, 11\ns_add_u32 s21, s21, {WS_C}\nv_lshrrev_b32 v14, 2, v0\nv_lshl_add_u32 v14, v14, 6, v2\nv_add_u32 v14, s21, v14")
    else: A(f"s_lshl_b32 s21, s20, 10\ns_add_u32 s21, s21, {WS_C}\nv_add_u32 v14, s21, v2")
    A(f"s_mul_i32 s21, s20, {128*R}\ns_add_u32 s21, s21, {WS_B}\nv_add_u32 v15, s21, v2")
    A("s_cmp_eq_u32 s3, 3\ns_cselect_b32 exec_hi, 0, -1")
    for i in range(4): A(f"v_mov_b32 v{16+i}, -1")
    A("s_mov_b64 exec, -1")
    A(f"global_store_dwordx4 v14, v[16:19], {WS} sc1")
    for i in range(4): A(f"v_mov_b32 v{20+i}, -1")
    if R < 8: A(f"s_mov_b32 exec_hi, 0\ns_mov_b32 exec_lo, {(1<<(8*R))-1:#x}")
    A(f"global_store_dwordx4 v15, v[20:23], {WS} sc1")
    A("s_mov_b64 exec, -1")
    A("s_waitcnt vmcnt(10)")
    unpack(24, [4, 5, 6, 7], 4); silu(24, 32, 8)
    for i in range(4): A(f"v_cvt_pk_bf16_f32 v{24+i}, v{24+2*i}, v{25+2*i}")
    mktag()
    A(f"s_and_b32 s26, s70, 1\ns_lshl_b32 s26, s26, 12\ns_lshr_b32 s21, s70, 1\ns_lshl_b32 s21, s21, 11\ns_add_u32 s26, s26, s21\ns_lshl_b32 s21, s69, 8\ns_add_u32 s26, s26, s21\ns_add_u32 s26, s26, {WS_H}")
    A("s_waitcnt vmcnt(2)")
    stamp(1)
    gemv_perm(40, 104, 4)
    gemv_dot(104, [24, 25, 26, 27], 32)
    A("L_gfin:")
    acc = 32
    for e in range(4): A(f"v_permlane32_swap_b32 v{acc+e}, v{acc+e+4}")
    for e in range(4): A(f"v_add_f32 v{acc+e}, v{acc+e}, v{acc+e+4}")
    for e in range(2): A(f"v_permlane16_swap_b32 v{acc+e}, v{acc+e+2}")
    for e in range(2): A(f"v_add_f32 v{acc+e}, v{acc+e}, v{acc+e+2}")
    for e in range(2): A(f"v_add_f32_dpp v{acc+e}, v{acc+e}, v{acc+e} row_ror:8 {DPPF}")
    A("v_lshrrev_b32 v14, 4, v0\nv_lshlrev_b32 v14, 3, v14\nv_lshl_add_u32 v14, v13, 5, v14\ns_lshl_b32 s21, s3, 8\nv_add_u32 v14, s21, v14")
    A(f"ds_write_b64 v14, v[32:33] offset:{L_GP}")
    A("v_mov_b32 v14, 0\nv_mov_b32 v15, 1")
    A("s_waitcnt vmcnt(0)")
    A("s_mov_b64 exec, 1")
    A(f"ds_add_rtn_u32 v15, v14, v15 offset:{L_CG}")
    A("s_mov_b64 exec, -1")
    A("v_lshlrev_b32 v14, 3, v0")
    A("s_waitcnt lgkmcnt(0)")
    A("v_readfirstlane_b32 s21, v15")
    A("s_cmp_lg_u32 s21, 3\ns_cbranch_scc1 L_gdone")
    A("s_mov_b32 exec_hi, 0")
    for w in range(4): A(f"ds_read_b64 {v2(32+2*w)}, v14 offset:{L_GP+256*w}")
    A("v_add_u32 v14, s26, v14")
    A("s_waitcnt lgkmcnt(0)")
    A("v_pk_add_f32 v[32:33], v[32:33], v[34:35]\nv_pk_add_f32 v[36:37], v[36:37], v[38:39]\nv_pk_add_f32 v[32:33], v[32:33], v[36:37]")
    A("v_cvt_pk_bf16_f32 v32, v32, v33\nv_mov_b32 v33, s6")
    if qloc:
        A(f"s_cmp_lg_u32 s64, {E_Q}\ns_cbranch_scc1 L_gnl")
        A(f"v_add_u32 v15, {WS_QL-WS_Q}, v14\nglobal_store_dwordx2 v15, v[32:33], {WS}")
        A("L_gnl:")
    A(f"global_store_dwordx2 v14, v[32:33], {WS} sc1")
    A("s_mov_b64 exec, -1")
    A("L_gdone:")
    stamp(3)
    A("s_branch L_qpoll")

    NM = T - 28; nmask = T - min(r['n'] for r in roles.values())
    NW = 39 - T
    S0 = len(A.lines)
    A("L_stream:")
    if kprio: A(f"s_setprio {kprio}")
    A("s_sub_u32 s21, s3, 4")
    if yprio == 1: A("s_cmp_lt_u32 s21, 4\ns_cbranch_scc1 L_yp\ns_setprio 1\nL_yp:")
    A("v_bfe_u32 v1, v0, 2, 2\nv_lshlrev_b32 v1, 8, v1\nv_lshrrev_b32 v4, 4, v0\nv_lshl_add_u32 v1, v4, 6, v1\nv_and_b32 v4, 3, v0\nv_lshl_add_u32 v1, v4, 4, v1")
    A(f"s_lshl_b32 s19, s4, 23\ns_mul_i32 s16, s5, {28*8192}\ns_add_u32 s16, s16, s19\ns_lshl_b32 s17, s21, 12\ns_add_u32 s16, s16, s17\ns_mov_b32 s34, s20")
    hcnt = sum(PLANS[plan]['H'][x] << (4 * x) for x in range(8))
    A(f"s_lshl_b32 s17, s4, 2\ns_lshr_b32 s35, {hcnt:#x}, s17\ns_and_b32 s35, s35, {15 if hfirst else 0}")
    A("s_cmp_ge_u32 s5, s35\ns_cbranch_scc1 L_s1\ns_barrier\nL_s1:")
    A("s_waitcnt lgkmcnt(0)")
    srd(8, P_K, 0x4000000); srd(12, P_V, 0x4000000)
    KR = lambda t: 168 - 4 * T + 4 * t
    nS = (T + 3) // 4; nP = (T + 7) // 8
    first_v = nS - 1 + nP + 1
    vslots = [12 + 4 * i for i in range(NW)] + [KR(i) for i in range(first_v, T)]
    VR = lambda t: vslots[t % len(vslots)]
    st = {"cur": None}
    mpos = [6 + (j * (T - 12)) // max(nmask, 1) for j in range(nmask)]
    rest = list(range(NM, NM + 6)) + list(range(nmask, NM)) + list(range(NM + 6, T))
    perm = []
    for t in range(T):
        if t in mpos: perm.append(mpos.index(t))
        else: perm.append(rest.pop(0))
    first_nm = min(t for t in range(T) if perm[t] < NM)
    assert first_nm > win
    hist = []
    def wcount(w):
        c = 0
        for n_, m_ in enumerate(reversed(hist)):
            if not m_:
                if c == w - 1: return n_
                c += 1
        return None
    def ld(which, t):
        o = perm[t]
        hist.append(o < nmask)
        if o < NM:
            A(f"s_add_u32 s20, s17, {o*8192}"); st["cur"] = None; imm = 0
            if o < nmask: A(f"s_cmp_gt_u32 s18, {o}\ns_cselect_b32 s20, 0x4000000, s20")
        else:
            key = (o - NM) >> 2; imm = ((o - NM) & 3) * 1024
            if st["cur"] != key:
                A(f"s_add_u32 s20, s16, {key*32768}"); st["cur"] = key
        if which == "K": A(f"buffer_load_dwordx4 {v4(KR(t))}, v1, s[8:11], s20 offen offset:{imm} {kpol}")
        else: A(f"buffer_load_dwordx4 {v4(VR(t))}, v2, s[12:15], s20 offen offset:{imm} {vpol}")
    korder = list(range(T))
    seq = [("K", t) for t in korder] + [("V", t) for t in range(NW)]
    for i, (wh, t) in enumerate(seq):
        if i == win:
            A("s_load_dword s68, s[32:33], s34\ns_cmp_lt_u32 s5, s35\ns_cbranch_scc1 L_s2\ns_barrier\nL_s2:")
        if i == first_nm:
            A(f"s_waitcnt lgkmcnt(0)\ns_and_b32 s17, s68, 0xfff\ns_bfe_u32 s18, s68, 0x3000c\ns_add_u32 s17, s17, {896-16}\ns_lshl_b32 s17, s17, 13\ns_add_u32 s17, s17, s19\ns_lshl_b32 s19, s21, 10\ns_add_u32 s17, s17, s19")
        if i == T and kprio: A("s_setprio 0")
        if wcount(win) is not None and perm[t] >= nmask: A(f"s_waitcnt vmcnt({wcount(win)})")
        ld(wh, t)
        if i == qtrig: A(f"v_mov_b32 v8, 0\nv_mov_b32 v9, 1\nds_max_u32 v8, v9 offset:{L_FK}")
        if i == qtrig2 and qloc: A(f"v_mov_b32 v8, 0\nv_mov_b32 v9, 2\nds_max_u32 v8, v9 offset:{L_FK}")
    viss = NW
    A("v_and_b32 v8, 3, v0\nv_lshlrev_b32 v8, 8, v8\nv_lshrrev_b32 v9, 4, v0\nv_lshl_add_u32 v8, v9, 6, v8\nv_bfe_u32 v9, v0, 2, 2\nv_lshl_add_u32 v8, v9, 4, v8\nv_mov_b32 v9, 0")
    A(f"s_mov_b32 s22, {f2x(128**-0.5*1.4426950408889634)}")
    for t in range(nmask): A(f"s_cmp_gt_u32 s18, {t}\ns_cselect_b32 s{28+t}, 0xff800000, 0")
    stamp(1)
    lspin("sq", L_FQ, 1, 9, 10, 2, lambda: A(f"ds_read_b128 v[4:7], v8 offset:{L_Q}"))
    A(f"s_waitcnt vmcnt({NW})")
    stamp(2)
    DR = lambda t: 8 if t == 0 else KR(t - 1)
    SR = lambda t: (8 + t) if t < 4 else KR((t >> 2) - 1) + (t & 3)
    def M(t): A(f"v_mfma_f32_16x16x32_bf16 {v4(DR(t))}, {v4(KR(t))}, v[4:7], 0")
    def AB(t):
        d = DR(t)
        A(f"v_add_f32_dpp v{d}, v{d+1}, v{d} row_shl:4 {DPPF} bound_ctrl:0")
        A(f"v_add_f32_dpp v{d+2}, v{d+3}, v{d+2} row_shl:4 {DPPF} bound_ctrl:0")
    def S(t):
        d = DR(t)
        A(f"v_add_f32_dpp v{SR(t)}, v{d+2}, v{d} row_shl:8 {DPPF} bound_ctrl:0")
    mark0 = len(A.lines)
    if yprio == 2: A("s_cmp_lt_u32 s21, 4\ns_cbranch_scc1 L_yp\ns_setprio 1\nL_yp:")
    M(0); M(1); M(2)
    for t in range(T + 1):
        if t < T: AB(t)
        if t >= 1:
            S(t - 1)
            if vmid and t - 2 >= first_v and (t - 2 - first_v) % vmid == 0:
                ld("V", viss); viss += 1
        if t + 3 < T: M(t + 3)
    TM = KR(first_v - 1)
    Sl = [SR(t) for t in range(T)]
    for t in range(nmask): A(f"v_add_f32 v{Sl[mpos[t]]}, s{28+t}, v{Sl[mpos[t]]}")
    A(f"v_max3_f32 v{TM}, v{Sl[0]}, v{Sl[1]}, v{Sl[2]}")
    A(f"v_max3_f32 v{TM+1}, v{Sl[3]}, v{Sl[4]}, v{Sl[5]}")
    i = 6; k = 0
    while i < T:
        A(f"v_max3_f32 v{TM+k}, v{TM+k}, v{Sl[i]}, v{Sl[i+1]}"); i += 2; k ^= 1
    A(f"v_max_f32 v{TM}, v{TM}, v{TM+1}")
    xrow("v_max_f32", TM, TM + 1, 16); xrow("v_max_f32", TM, TM + 1, 32)
    A(f"v_mul_f32 v{TM}, s22, v{TM}")
    for t in range(T): A(f"v_fma_f32 v{Sl[t]}, v{Sl[t]}, s22, -v{TM}")
    for t in range(T): A(f"v_exp_f32 v{Sl[t]}, v{Sl[t]}")
    if vmid: ld("V", viss); viss += 1
    A(f"v_add_f32 v{TM+1}, v{Sl[0]}, v{Sl[1]}\nv_add_f32 v{TM+2}, v{Sl[2]}, v{Sl[3]}")
    for t in range(4, T): A(f"v_add_f32 v{TM+1+(t&1)}, v{TM+1+(t&1)}, v{Sl[t]}")
    A(f"v_add_f32 v{TM+1}, v{TM+1}, v{TM+2}")
    xrow("v_add_f32", TM + 1, TM + 2, 16); xrow("v_add_f32", TM + 1, TM + 2, 32)
    A(f"s_lshl_b32 s19, s21, 5\nv_lshl_add_u32 v{TM+2}, v0, 3, s19\nv_mov_b32 v4, 0\nv_mov_b32 v5, 1")
    A("s_mov_b64 exec, 0xf")
    A(f"ds_write_b64 v{TM+2}, {v2(TM)} offset:{L_ST}")
    A("s_mov_b64 exec, 1")
    A(f"ds_add_u32 v4, v5 offset:{L_CS}")
    A("s_mov_b64 exec, -1")
    PR = lambda u: KR(nS - 1 + u)
    rem = T % 8
    assert rem in (2, 4)
    for t in range(0, T - rem, 2): A(f"v_cvt_pk_bf16_f32 v{PR(t//8)+(t%8)//2}, v{Sl[t]}, v{Sl[t+1]}")
    if rem == 2: A(f"v_mov_b32 v{PR(nP-1)+1}, 0")
    A("s_waitcnt lgkmcnt(0)")
    stamp(3)
    ACC = [8] + [KR(i) for i in range(7)]
    TT = [TM, 4]
    def pv(u):
        n = min(8, T - 8 * u)
        if n < 8:
            tb = [VR(8 * u - 8 + j) for j in range(4)]
            for e in range(8):
                Tm = tb[e >> 1] + 2 * (e & 1)
                for p in range(n // 2):
                    a = VR(8 * u + 2 * p) + (e >> 1); b = VR(8 * u + 2 * p + 1) + (e >> 1)
                    A(f"v_perm_b32 v{Tm+p}, v{b}, v{a}, s{24+(e&1)}")
            for e in range(8):
                Tm = tb[e >> 1] + 2 * (e & 1)
                A(f"v_mfma_f32_16x16x16_bf16 {v4(ACC[e])}, {v2(Tm)}, {v2(PR(u))}, {v4(ACC[e])}")
            return
        for e in range(8):
            Tm = TT[e & 1]
            for p in range(n // 2):
                a = VR(8 * u + 2 * p) + (e >> 1); b = VR(8 * u + 2 * p + 1) + (e >> 1)
                A(f"v_perm_b32 v{Tm+p}, v{b}, v{a}, s{24+(e&1)}")
            c = "0" if u == 0 else v4(ACC[e])
            if n == 8: A(f"v_mfma_f32_16x16x32_bf16 {v4(ACC[e])}, {v4(Tm)}, {v4(PR(u))}, {c}")
            else: A(f"v_mfma_f32_16x16x16_bf16 {v4(ACC[e])}, {v2(Tm)}, {v2(PR(u))}, {c}")
    ns = len(vslots)
    while viss < min(win2, ns):
        ld("V", viss); viss += 1
    done_u = 0
    for L in range(T):
        last = (L % 8 == 7) or L == T - 1
        if L == T - 1:
            X = PR(0)
            A(f"s_waitcnt lgkmcnt(0)\nv_and_b32 v1, 3, v0\nv_lshlrev_b32 v2, 3, v1\nv_mov_b32 v{X+10}, 0\nv_mov_b32 v{X+11}, 1\ns_lshl_b32 s19, s21, 5\nv_add_u32 v{X+9}, s19, v2")
            def rd():
                for w in range(8): A(f"ds_read_b32 v{X+w}, v2 offset:{L_ST+32*w}")
                A(f"ds_read_b32 v{X+8}, v{X+9} offset:{L_ST}")
            lspin("sm", L_CS, 9, X + 10, X + 12, 1, rd)
            A(f"s_mov_b64 exec, 1\nds_add_rtn_u32 v{X+12}, v{X+10}, v{X+11} offset:{L_CT}\ns_mov_b64 exec, -1")
            A(f"v_max3_f32 v{X}, v{X}, v{X+1}, v{X+2}\nv_max3_f32 v{X+3}, v{X+3}, v{X+4}, v{X+5}\nv_max3_f32 v{X}, v{X}, v{X+6}, v{X+7}\nv_max_f32 v{X}, v{X}, v{X+3}")
            A(f"v_sub_f32 v{X}, v{X+8}, v{X}\nv_exp_f32 v{X}, v{X}")
            A(f"v_lshlrev_b32 v1, 6, v1\nv_lshrrev_b32 v2, 4, v0\nv_lshl_add_u32 v1, v2, 4, v1\nv_lshlrev_b32 v2, 4, v0")
            for e in range(8):
                for q in range(2): A(f"v_pk_mul_f32 {v2(ACC[e]+2*q)}, {v2(ACC[e]+2*q)}, {v2(X)} op_sel_hi:[1,0]")
            for t in range(T - rem, T, 2):
                A(f"v_pk_mul_f32 {v2(Sl[t])}, {v2(Sl[t])}, {v2(X)} op_sel_hi:[1,0]\nv_cvt_pk_bf16_f32 v{PR(t//8)+(t%8)//2}, v{Sl[t]}, v{Sl[t+1]}")
            A(f"s_waitcnt lgkmcnt(0)\nv_readfirstlane_b32 s23, v{X+12}\ns_lshl_b32 s19, s23, 11\nv_add_u32 v1, s19, v1\ns_lshl_b32 s19, s23, 2\nv_mov_b32 v{X+9}, s19")
        can = lambda: viss < T and sum(1 for j in range(L + 1, viss) if perm[j] >= nmask) < (bwin if L >= T - burst else win2) + (perm[viss] < nmask) and (viss < ns or done_u > (viss - ns) // 8)
        if can() or last:
            A(f"s_waitcnt vmcnt({viss-1-L})")
        while can():
            ld("V", viss); viss += 1
            if viss == T:
                A(f"v_mov_b32 v1, 0\nv_mov_b32 v2, 1\ns_mov_b64 exec, 1\nds_add_u32 v1, v2 offset:{L_CV}\ns_mov_b64 exec, -1")
        if last:
            if L == T - 1: stamp(4)
            pv(L // 8); done_u += 1
    assert viss == T
    if nocomp:
        keep = [l for l in A.lines[mark0:] if not l.startswith(("v_mfma", "v_perm_b32", "v_add_f32", "v_exp", "v_fma", "v_max", "v_cvt", "v_permlane"))]
        A.lines[mark0:] = keep
    A("s_mov_b32 exec_lo, 0x000f000f\ns_mov_b32 exec_hi, 0x000f000f")
    for e in range(8): A(f"ds_write_b128 v1, {v4(ACC[e])} offset:{L_OP+e*256}")
    X = PR(0)
    A(f"ds_write_b32 v{X+9}, v{X+11} offset:{L_FO}")
    A("s_mov_b64 exec, -1")
    if stamps: A("s_waitcnt lgkmcnt(0)")
    stamp(5)
    A("s_cmp_lg_u32 s23, 0\ns_cbranch_scc1 L_done")
    A("s_setprio 3")
    A(f"s_lshl_b32 s20, s4, 15\ns_lshl_b32 s19, s5, 6\ns_add_u32 s20, s20, s19\ns_add_u32 s20, s20, {WS_A}")
    A("v_bfe_u32 v36, v0, 2, 2\nv_lshlrev_b32 v36, 13, v36\nv_lshrrev_b32 v37, 4, v0\nv_lshl_add_u32 v36, v37, 11, v36\nv_and_b32 v37, 3, v0\nv_lshl_add_u32 v36, v37, 4, v36\nv_add_u32 v36, s20, v36")
    A(f"v_add_u32 v37, {WS_AL-WS_A}, v36\nv_mov_b32 v38, 0\nv_mov_b32 v39, 1")
    for i in range(8):
        d = 12 if i == 0 else 20
        lspin("so", L_FO + 4 * i, 1, 38, 28, 0, lambda: A(f"ds_read_b128 {v4(d)}, v2 offset:{L_OP+i*2048}\nds_read_b128 {v4(d+4)}, v2 offset:{L_OP+i*2048+1024}"))
        if i:
            for q in range(4): A(f"v_pk_add_f32 {v2(12+2*q)}, {v2(12+2*q)}, {v2(20+2*q)}")
    for q in range(4): A(f"v_cvt_pk_bf16_f32 v{12+q}, v{12+2*q}, v{13+2*q}")
    if loc: A(f"global_store_dwordx4 v37, v[12:15], {WS}")
    A(f"global_store_dwordx4 v36, v[12:15], {WS} sc1")
    A(f"ds_write_b32 v38, v39 offset:{L_FP}")
    stamp(6)
    end_wave()
    blk = A.lines[S0:]; del A.lines[S0:]; A.lines[STREAM_MARK:STREAM_MARK] = blk

    A("L_nh:")
    A(f"s_cmp_lg_u32 s64, {E_Q}\ns_cbranch_scc1 L_nq")
    A("v_lshlrev_b32 v1, 17, v12\nv_lshl_add_u32 v1, v13, 4, v1")
    A("s_lshl_b32 s20, s3, 20\ns_lshl_b32 s21, s4, 10\ns_add_u32 s20, s20, s21\ns_mov_b32 s26, s65\ns_lshl_b32 s21, s26, 7\ns_add_u32 s20, s20, s21")
    A("s_lshl_b32 s21, s3, 8\nv_lshl_add_u32 v14, v0, 2, s21")
    A("s_waitcnt lgkmcnt(0)")
    srd(8, P_WQ, 512 * 8192)
    A(f"global_load_dwordx4 v[8:11], v2, {sp(P_X)}\nglobal_load_dword v15, v14, {sp(P_X)}")
    for i in range(16):
        A(f"buffer_load_dwordx4 {v4(40+4*i)}, v1, s[8:11], s20 offen {wpol}")
        if i < 15: A("s_add_u32 s20, s20, 8192")
    A(f"s_load_dword s6, {WS}, 0")
    A("s_barrier")
    A(f"s_lshl_b32 s26, s26, 8\ns_lshl_b32 s21, s4, 11\ns_add_u32 s26, s26, s21\ns_add_u32 s26, s26, {WS_Q}")
    A("s_waitcnt vmcnt(16)")
    unpack(32, [8, 9, 10, 11], 4)
    A("v_add_f32 v4, v32, v33")
    for i in range(2, 8): A(f"v_add_f32 v4, v4, v{32+i}")
    wave_reduce("v_add_f32", 4, 5)
    A(f"v_mul_f32 v4, {f2x(1/512)}, v4")
    for i in range(8): A(f"v_sub_f32 v{32+i}, v{32+i}, v4")
    A("v_mul_f32 v6, v32, v32")
    for i in range(1, 8): A(f"v_fmac_f32 v6, v{32+i}, v{32+i}")
    wave_reduce("v_add_f32", 6, 5)
    A(f"v_mov_b32 v5, {f2x(1e-5)}\nv_fmac_f32 v5, {f2x(1/512)}, v6\nv_rsq_f32 v5, v5")
    unpack(8, [15], 1)
    A("v_sub_f32 v8, v8, v4\nv_sub_f32 v9, v9, v4\nv_mul_f32 v8, v8, v5\nv_mul_f32 v9, v9, v5")
    A(f"v_lshlrev_b32 v15, 1, v14\nv_add_u32 v15, {WS_H}, v15\nv_add_u32 v10, 4096, v15")
    mktag()
    A("s_waitcnt vmcnt(0)")
    stamp(1)
    gemv_perm(40, 104, 8)
    poll("ph", lambda: [A(f"global_load_dwordx2 {v2(16+2*k)}, v{15 if k<2 else 10}, {WS} offset:{2048*(k&1)} sc1") for k in range(4)],
         lambda: chk_tags([17, 19, 21, 23], 4), hsleep)
    stamp(2)
    unpack(24, [16, 18, 20, 22], 4)
    A("v_pk_add_f32 v[24:25], v[24:25], v[26:27]\nv_pk_add_f32 v[28:29], v[28:29], v[30:31]")
    A("v_add_f32 v28, 1.0, v28\nv_add_f32 v29, 1.0, v29\nv_pk_fma_f32 v[24:25], v[8:9], v[28:29], v[24:25]")
    A("L_gx:")
    A("v_cvt_pk_bf16_f32 v24, v24, v25")
    A(f"ds_write_b32 v14, v24 offset:{L_X}")
    A("s_lshl_b32 s21, s3, 8\nv_lshl_add_u32 v15, v12, 5, s21")
    A(f"ds_read_b128 v[24:27], v15 offset:{L_X}\nds_read_b128 v[28:31], v15 offset:{L_X+16}")
    A("s_waitcnt lgkmcnt(0)")
    gemv_dot(104, list(range(24, 32)), 32)
    A("s_branch L_gfin")

    A("L_nq:")
    A("s_waitcnt lgkmcnt(0)")
    A(f"s_load_dword s6, {WS}, 0")
    A("s_barrier")
    mktag()
    A("L_role:")
    A("s_cmp_eq_u32 s64, 0\ns_cbranch_scc1 L_qpoll")
    A(f"s_cmp_eq_u32 s64, {E_B}\ns_cbranch_scc1 L_wb")
    A("s_mov_b32 s21, 98304\nv_mul_lo_u32 v1, v12, s21\nv_lshl_add_u32 v1, v13, 4, v1")
    A(f"s_mul_i32 s20, s3, {128*6144}\ns_add_u32 s26, s70, 2\ns_lshl_b32 s26, s26, 10\ns_lshl_b32 s21, s69, 7\ns_add_u32 s26, s26, s21\ns_add_u32 s20, s20, s26")
    A("s_lshl_b32 s21, s3, 8\nv_lshl_add_u32 v14, v0, 2, s21")
    srd(8, P_WM, 512 * 6144)
    A(f"global_load_dword v15, v14, {sp(P_C)}")
    paced([f"buffer_load_dwordx4 {v4(40+4*i)}, v1, s[8:11], s20 offen {wpol}\ns_add_u32 s20, s20, 6144" for i in range(16)], 0)
    A(f"s_lshl_b32 s26, s26, 1\ns_add_u32 s26, s26, {WS_MOD-4096}")
    A("s_waitcnt vmcnt(0)")
    unpack(24, [15], 1); silu(24, 32, 2)
    gemv_perm(40, 104, 8)
    A("s_branch L_gx")
    def dma(loads, w):
        if skipw: return
        for i, l in enumerate(loads):
            if w and i >= w: A(f"s_waitcnt vmcnt({w-1})")
            A(f"s_add_u32 m0, s23, {1024*i}")
            A(l)
    A("L_wb:")
    srd(8, P_WO, 4096 * 1024)
    A("v_lshlrev_b32 v1, 10, v12\nv_lshl_add_u32 v1, v13, 4, v1")
    A("s_lshl_b32 s20, s4, 19\ns_lshl_b32 s21, s3, 17\ns_add_u32 s20, s20, s21\ns_lshl_b32 s21, s65, 7\ns_add_u32 s20, s20, s21")
    A(f"s_lshl_b32 s23, s3, 14\ns_add_u32 s23, s23, {L_WT}")
    dma([f"buffer_load_dwordx4 v1, s[8:11], s20 offen {wpol} lds\ns_add_u32 s20, s20, 8192" for i in range(16)], pace)
    A("v_bfe_u32 v1, v0, 2, 2\nv_lshlrev_b32 v1, 10, v1\nv_lshrrev_b32 v4, 4, v0\nv_lshl_add_u32 v1, v4, 12, v1\nv_and_b32 v4, 3, v0\nv_lshl_add_u32 v1, v4, 3, v1\nv_add_u32 v1, s23, v1")
    A("s_waitcnt vmcnt(0)")
    for c in range(4):
        for nt in range(4):
            for hi in range(2):
                A(f"ds_read_b64_tr_b16 {v2(104+16*c+4*nt+2*hi)}, v1 offset:{(c+4*hi)*128+nt*32}")
        A("s_waitcnt lgkmcnt(0)")
    A("L_qpoll:")
    if nosvc:
        A(f"v_mov_b32 v10, 0\nv_mov_b32 v5, 1\nds_write_b32 v10, v5 offset:{L_FQ}\ns_mov_b64 exec, 1\nds_add_u32 v10, v5 offset:{L_CS}")
        end_wave()
    A("v_mov_b32 v10, 0\nv_mov_b32 v23, 0\nv_mov_b32 v35, 64")
    A("s_cmp_lg_u32 s3, 1\ns_cbranch_scc1 L_np")
    A(f"s_lshl_b32 s21, s4, 11\ns_add_u32 s21, s21, {WS_Q}\nv_add_u32 v14, s21, v2")
    lspin("sk", L_FK, 1, 10, 11, 4)
    def ldq():
        if qloc:
            A(f"ds_read_b32 v11, v10 offset:{L_FK}\ns_waitcnt lgkmcnt(0)\nv_readfirstlane_b32 s21, v11\ns_lshr_b32 s21, s21, 1\ns_and_b32 s21, s21, s7")
            if slowfb: A(f"s_cmp_lt_u32 s7, {spin-slowfb}")
            A(f"s_cselect_b32 s21, 0, {WS_QL-WS_Q}\nv_add_u32 v15, s21, v14")
        for i in range(2): A(f"global_load_dwordx4 {v4(16+4*i)}, v{15 if qloc else 14}, {WS} offset:{1024*i} sc1")
    poll("pq", ldq, lambda: chk_tags([17, 19, 21, 23], 4), qsleep)
    A("v_mov_b32 v17, v18\nv_mov_b32 v21, v22\nv_lshlrev_b32 v14, 3, v0\nv_mov_b32 v5, 1")
    A(f"ds_write_b64 v14, v[16:17] offset:{L_Q}\nds_write_b64 v14, v[20:21] offset:{L_Q+512}")
    A(f"ds_write_b32 v10, v5 offset:{L_FQ}")
    stamp(4)
    A("L_np:")
    if xit == 'np': end_wave()
    A("s_cmp_eq_u32 s3, 2\ns_cbranch_scc1 L_post")
    A("s_cmp_eq_u32 s66, 0\ns_cbranch_scc1 L_done")
    A(f"s_cmp_lg_u32 s66, {R_F}\ns_cbranch_scc1 L_ws")
    A("s_cmp_lg_u32 s3, 0\ns_cbranch_scc1 L_done")
    A("L_ws:")
    lspin("ss0", L_CS, 9, 10, 11, 16)
    A("s_branch L_pre")
    A("L_done:")
    end_wave()
    A("L_post:")
    A(f"s_lshl_b32 s20, s4, 15\ns_lshl_b32 s21, s5, 6\ns_add_u32 s20, s20, s21\ns_add_u32 s20, s20, {WS_A}")
    A("v_bfe_u32 v36, v0, 2, 2\nv_lshlrev_b32 v37, 13, v36\nv_lshrrev_b32 v15, 4, v0\nv_lshl_add_u32 v37, v15, 11, v37\nv_and_b32 v15, 3, v0\nv_lshl_add_u32 v37, v15, 4, v37\nv_add_u32 v37, s20, v37")
    for i in range(4): A(f"v_mov_b32 v{16+i}, -1")
    A(f"global_store_dwordx4 v37, v[16:19], {WS} sc1")
    if loc: A(f"v_add_u32 v39, {WS_AL-WS_A}, v37\nglobal_store_dwordx4 v39, v[16:19], {WS}")
    A("v_lshlrev_b32 v38, 3, v36\nv_mov_b32 v5, 1")
    A(f"s_lshl_b32 s20, s4, 11\ns_lshl_b32 s21, s5, 4\ns_add_u32 s20, s20, s21\ns_add_u32 s20, s20, {WS_ST}\nv_lshl_add_u32 v36, v36, 9, s20")
    A(f"s_waitcnt vmcnt(0)\ns_mov_b64 exec, 1\nds_add_u32 v10, v5 offset:{L_CS}\ns_mov_b64 exec, -1")
    lspin("ss", L_CS, 9, 10, 11, 8)
    stamp(1)
    for w in range(8): A(f"ds_read_b64 {v2(40+2*w)}, v38 offset:{L_ST+32*w}")
    A("s_waitcnt lgkmcnt(0)")
    A("v_max3_f32 v56, v40, v42, v44\nv_max3_f32 v56, v56, v46, v48\nv_max3_f32 v56, v56, v50, v52\nv_max_f32 v56, v56, v54")
    for w in range(8): A(f"v_sub_f32 v{28+w}, v{40+2*w}, v56")
    for w in range(8): A(f"v_exp_f32 v{28+w}, v{28+w}")
    A("v_mul_f32 v58, v28, v41")
    for w in range(1, 8): A(f"v_fmac_f32 v58, v{28+w}, v{41+2*w}")
    A("s_getreg_b32 s20, hwreg(HW_REG_XCC_ID, 0, 4)\ns_add_u32 s20, s20, s6\nv_mov_b32 v57, s6\nv_mov_b32 v59, s20")
    A("s_mov_b64 exec, 0x1111")
    A(f"global_store_dwordx4 v36, v[56:59], {WS} sc1")
    A("s_mov_b64 exec, -1")
    stamp(2)
    A(f"s_cmp_eq_u32 s66, 0\ns_cbranch_scc1 L_done\ns_cmp_eq_u32 s66, {R_F}\ns_cbranch_scc1 L_done")
    A("L_pre:")
    if xit == 'pre': end_wave()
    A(f"s_cmp_eq_u32 s66, {R_F}\ns_cbranch_scc1 L_tf")
    A(f"s_cmp_eq_u32 s66, {R_C}\ns_cbranch_scc1 L_tc")
    A(f"s_lshl_b32 s20, s4, 11\ns_lshl_b32 s21, s3, 9\ns_add_u32 s20, s20, s21\ns_add_u32 s20, s20, {WS_ST}")
    A("v_and_b32 v4, 31, v0\nv_lshl_add_u32 v5, v4, 4, s20")
    lspin("sb", L_CV, strig, 10, 11, 4)
    poll("ps", lambda: A(f"global_load_dwordx4 v[40:43], v5, {WS} sc1"), lambda: A("v_subrev_u32 v43, s6, v43\nv_xor_b32 v6, s6, v41\nv_lshrrev_b32 v7, 4, v43\nv_or_b32 v6, v6, v7\nv_cmp_ne_u32 vcc, 0, v6"), 8)
    A("s_getreg_b32 s20, hwreg(HW_REG_XCC_ID, 0, 4)\nv_cmp_eq_u32 vcc, s20, v43")
    A("s_and_b32 s28, vcc_lo, 0xffff\ns_mul_i32 s28, s28, 0x10001\ns_mov_b32 s29, s28\ns_lshr_b32 s30, vcc_lo, 16\ns_mul_i32 s30, s30, 0x10001\ns_mov_b32 s31, s30")
    A("v_mov_b32 v44, v40")
    inrow("v_max_f32", 44, ["row_ror:8", "row_ror:4", "row_ror:2", "row_ror:1"]); xrow("v_max_f32", 44, 45, 16)
    A("v_sub_f32 v40, v40, v44\nv_exp_f32 v40, v40\nv_mul_f32 v44, v40, v42")
    inrow("v_add_f32", 44, ["row_ror:8", "row_ror:4", "row_ror:2", "row_ror:1"]); xrow("v_add_f32", 44, 45, 16)
    A("v_rcp_f32 v44, v44\nv_mul_f32 v40, v40, v44")
    A("s_lshl_b32 s20, s3, 8\nv_lshl_add_u32 v4, v4, 2, s20\nv_lshrrev_b32 v5, 4, v0\nv_lshl_add_u32 v5, v5, 4, s20")
    A(f"ds_write_b32 v4, v40 offset:{L_X}\nds_read_b128 v[12:15], v5 offset:{L_X}\nds_read_b128 v[16:19], v5 offset:{L_X+64}")
    A("v_and_b32 v1, 15, v0\nv_lshrrev_b32 v4, 4, v0\nv_lshlrev_b32 v24, 4, v1\nv_lshl_add_u32 v22, v4, 14, v24\nv_lshlrev_b32 v1, 6, v1\nv_lshl_add_u32 v1, v4, 4, v1")
    A(f"s_lshl_b32 s20, s4, 15\ns_lshl_b32 s21, s3, 13\ns_add_u32 s20, s20, s21\ns_add_u32 s20, s20, {WS_A}\nv_add_u32 v1, s20, v1")
    A(f"v_add_u32 v5, {(WS_AL-WS_A) if loc else 0}, v1\nv_cndmask_b32 v6, v1, v5, s[28:29]\nv_cndmask_b32 v7, v1, v5, s[30:31]\nv_add_u32 v8, 4096, v6\nv_add_u32 v9, 4096, v7")
    A("s_lshl_b32 s20, s3, 8\nv_lshl_add_u32 v21, v0, 2, s20")
    A(f"s_lshl_b32 s20, s4, 11\ns_lshl_b32 s21, s67, 8\ns_add_u32 s20, s20, s21\ns_add_u32 s20, s20, {WS_B}\ns_lshl_b32 s21, s3, 16\ns_add_u32 s20, s20, s21\nv_add_u32 v22, s20, v22")
    A("s_waitcnt lgkmcnt(0)")
    stamp(5)
    AR = lambda c, s_: 40 + 16 * s_ + 4 * c
    D = lambda s_, nt: 72 + 16 * s_ + 4 * nt
    def lda(s_):
        for c in range(4): A(f"global_load_dwordx4 {v4(AR(c,s_))}, v{6+s_+(0 if c<2 else 2)}, {WS} offset:{2048*(c&1)+1024*s_} {lpol}")
    def mm(s_, other_done):
        for c in range(4):
            for nt in range(4):
                d = D(s_, nt)
                A(f"v_mfma_f32_16x16x32_bf16 {v4(d)}, {v4(AR(c,s_))}, {v4(104+16*c+4*nt)}, {'0' if c==0 else v4(d)}")
        wr = 12 + 4 * s_
        for nt in range(4):
            d = D(s_, nt); o = D(1 - s_, nt); t = D(0, nt) if other_done else d
            if other_done: A(f"v_pk_fma_f32 {v2(o)}, {v2(d)}, {v2(wr)}, {v2(o)}\nv_pk_fma_f32 {v2(t)}, {v2(d+2)}, {v2(wr+2)}, {v2(o)}")
            else: A(f"v_pk_mul_f32 {v2(d)}, {v2(d)}, {v2(wr)}\nv_pk_fma_f32 {v2(d)}, {v2(d+2)}, {v2(wr+2)}, {v2(d)}")
    if dry:
        A("s_mov_b64 s[80:81], 0\ns_mov_b64 s[32:33], 0\ns_mov_b64 s[34:35], 0\ns_mov_b32 s84, 0\ns_mov_b64 exec, 0\ns_branch L_pb0")
        A("L_bdr:\ns_cmp_eq_u32 s84, 0\ns_mov_b32 s84, 1\ns_cbranch_scc1 L_pb1\ns_mov_b64 exec, -1")
    A("s_mov_b64 s[80:81], -1")
    A(f"s_mov_b32 s7, {spin}\ns_mov_b64 s[32:33], -1\ns_mov_b64 s[34:35], -1")
    A("L_pa:")
    A("s_mov_b64 exec, s[32:33]"); lda(0)
    A("s_mov_b64 exec, s[34:35]"); lda(1)
    A("s_mov_b64 exec, -1")
    A("s_waitcnt vmcnt(4)")
    chk_sent(range(40, 56), 23); A("s_mov_b64 s[32:33], vcc")
    A("s_waitcnt vmcnt(0)")
    chk_sent(range(56, 72), 23); A("s_mov_b64 s[34:35], vcc")
    A("s_cbranch_vccz L_pa1\ns_cmp_eq_u64 s[32:33], 0\ns_cbranch_scc1 L_pa0")
    if tsleep: A(f"s_sleep {tsleep}")
    A("s_sub_u32 s7, s7, 1\ns_cbranch_scc0 L_pa")
    for first in (0, 1):
        sec = 1 - first
        A(f"L_pa{first}:")
        mk = sp(32 + 2 * sec)
        A(f"s_cmp_eq_u64 {mk}, 0\ns_cbranch_scc1 L_pb{first}")
        A(f"s_mov_b64 exec, {mk}"); lda(sec); A("s_mov_b64 exec, -1")
        A(f"L_pb{first}:")
        mm(first, False)
        A(f"s_mov_b64 exec, {mk}\ns_cbranch_execz L_pd{first}")
        A(f"L_pc{first}:")
        A("s_waitcnt vmcnt(0)")
        chk_sent(range(40 + 16 * sec, 56 + 16 * sec), 23)
        A(f"s_cbranch_vccz L_pd{first}\ns_mov_b64 exec, vcc")
        lda(sec)
        A(f"s_sub_u32 s7, s7, 1\ns_cbranch_scc0 L_pc{first}\ns_waitcnt vmcnt(0)")
        A(f"L_pd{first}:")
        A("s_mov_b64 exec, s[80:81]")
        stamp(6)
        mm(sec, True)
        if first == 0: A("s_branch L_pe")
    A("L_pe:\ns_nop 0")
    for nt in range(4): A(f"v_add_f32 v{D(0,nt)}, v{D(0,nt)}, v{D(0,nt)+1}")
    A("v_permlane32_swap_b32 v72, v80\nv_permlane32_swap_b32 v76, v84\nv_add_f32 v72, v72, v80\nv_add_f32 v76, v76, v84")
    A("v_permlane16_swap_b32 v72, v76\nv_add_f32 v72, v72, v76")
    A(f"ds_write_b32 v21, v72 offset:{L_RED}")
    A("s_waitcnt lgkmcnt(0)")
    if dry: A("s_cbranch_execz L_bnb")
    A("s_barrier")
    A(f"s_cmp_ge_u32 s3, {2 if R == 8 else 1}\ns_cbranch_scc1 L_done")
    A("L_bnb:")
    for w in range(4): A(f"ds_read_b128 {v4(40+4*w)}, v24 offset:{L_RED+256*w}")
    assert R in (4, 8)
    A("s_waitcnt lgkmcnt(2)\nv_pk_add_f32 v[40:41], v[40:41], v[44:45]\nv_pk_add_f32 v[42:43], v[42:43], v[46:47]")
    A("s_waitcnt lgkmcnt(0)\nv_pk_add_f32 v[48:49], v[48:49], v[52:53]\nv_pk_add_f32 v[50:51], v[50:51], v[54:55]")
    A("v_pk_add_f32 v[40:41], v[40:41], v[48:49]\nv_pk_add_f32 v[42:43], v[42:43], v[50:51]")
    if dry: A("s_cbranch_execz L_bdr")
    A(f"global_store_dwordx4 v22, v[40:43], {WS} sc1")
    stamp(7)
    end_wave()
    A("L_tc:")
    A("s_mov_b32 s26, s67")
    srd(8, P_W1, 512 * 3584); srd(12, P_W2, 1792 * 1024)
    A("v_lshrrev_b32 v23, 4, v0\nv_lshlrev_b32 v23, 4, v23")
    A("v_lshrrev_b32 v1, 2, v0\ns_mov_b32 s20, 3584\nv_mul_lo_u32 v1, v1, s20\nv_and_b32 v12, 3, v0\nv_lshl_add_u32 v1, v12, 4, v1")
    A(f"s_mul_i32 s20, s3, {128*3584}\ns_lshl_b32 s21, s26, 6\ns_add_u32 s20, s20, s21")
    A("v_lshlrev_b32 v18, 6, v23\nv_and_b32 v13, 15, v0\nv_lshl_add_u32 v18, v13, 4, v18")
    A("s_lshl_b32 s27, s26, 15\ns_lshl_b32 s21, s3, 8\ns_add_u32 s27, s27, s21")
    A(f"s_lshl_b32 s23, s3, 14\ns_add_u32 s23, s23, {L_WT}")
    dma([f"buffer_load_dwordx4 v1, s[8:11], s20 offen {w1pol} lds\ns_add_u32 s20, s20, {16*3584}" for i in range(8)], 0)
    def w2load():
        A("s_add_u32 s23, s23, 8192")
        dma([f"buffer_load_dwordx4 v18, s[12:15], s27 offen {wpol} lds\ns_add_u32 s27, s27, 4096" for i in range(8)], 0)
    A("v_lshrrev_b32 v12, 4, v0\nv_bfe_u32 v13, v0, 2, 2\nv_and_b32 v14, 3, v0\nv_lshl_add_u32 v14, v14, 3, s23")
    A("v_lshl_add_u32 v1, v12, 9, v14\nv_lshl_add_u32 v1, v13, 6, v1")
    A("v_lshl_add_u32 v19, v12, 10, v14\nv_lshl_add_u32 v19, v13, 8, v19")
    if not w2late: w2load()
    A("v_and_b32 v20, 31, v0\nv_lshlrev_b32 v20, 3, v20\nv_lshrrev_b32 v21, 5, v0\nv_lshl_add_u32 v20, v21, 2, v20")
    A("s_lshl_b32 s20, s3, 8\nv_add_u32 v20, s20, v20")
    A(f"global_load_dword v22, v20, {sp(P_X)}")
    A(f"v_lshlrev_b32 v21, 1, v20\nv_add_u32 v21, {WS_MOD}, v21\nv_add_u32 v24, 4096, v21")
    poll("pm", lambda: A(f"global_load_dwordx2 v[40:41], v21, {WS} sc1\nglobal_load_dwordx2 v[42:43], v21, {WS} offset:2048 sc1\nglobal_load_dwordx2 v[44:45], v24, {WS} sc1"),
         lambda: chk_tags([41, 43, 45], 46), 16)
    unpack(4, [22, 40, 44], 3)
    A("v_add_f32 v8, 1.0, v8\nv_add_f32 v9, 1.0, v9\nv_cvt_pk_bf16_f32 v44, v8, v9")
    unpack(8, [44], 1)
    A(f"ds_write_b32 v20, v44 offset:{L_U}\nds_write_b32 v20, v42 offset:{L_U+1024}")
    A("v_add_u32 v21, s20, v23\nv_and_b32 v22, 1, v0\nv_lshl_add_u32 v22, v22, 10, v21")
    for c in range(4): A(f"ds_read_b128 {v4(48+4*c)}, v22 offset:{L_U+64*c}")
    for c in range(4):
        for mt in range(2):
            for hi in range(2):
                A(f"ds_read_b64_tr_b16 {v2(104+8*c+4*mt+2*hi)}, v1 offset:{(32*c+4*hi)*64+mt*32}")
        if c & 1: A("s_waitcnt lgkmcnt(0)")
    for c in range(4):
        for mt in range(2):
            A(f"v_mfma_f32_16x16x32_bf16 {v4(24+4*mt)}, {v4(104+8*c+4*mt)}, {v4(48+4*c)}, {'0' if c==0 else v4(24+4*mt)}")
    A("s_mov_b32 exec_lo, 0x00030003\ns_mov_b32 exec_hi, 0x00030003")
    A(f"ds_write_b128 v22, v[24:27] offset:{L_GS}\nds_write_b128 v22, v[28:31] offset:{L_GS+64}")
    A("s_mov_b64 exec, 1\nv_mov_b32 v33, 1")
    A(f"ds_add_u32 v10, v33 offset:{L_CP}")
    A("s_mov_b64 exec, -1")
    A("v_and_b32 v1, 31, v0\nv_lshlrev_b32 v1, 4, v1\nv_lshrrev_b32 v16, 5, v0\nv_lshl_add_u32 v1, v16, 11, v1")
    A(f"s_and_b32 s21, {'s4' if R == 8 else 's26'}, {R-1}\ns_lshl_b32 s21, s21, 14\ns_lshl_b32 s20, s3, 9\ns_add_u32 s20, s20, s21\ns_add_u32 s20, s20, {WS_B}\nv_add_u32 v1, s20, v1")
    A("v_add_u32 v12, 4096, v1\nv_add_u32 v13, 8192, v1\nv_add_u32 v14, 12288, v1")
    A(f"s_lshl_b32 s20, s3, 8\nv_lshl_add_u32 v22, v16, 2, s20")
    A("v_and_b32 v33, 3, v0\nv_lshlrev_b32 v33, 8, v33\nv_bfe_u32 v32, v0, 3, 1\nv_lshl_add_u32 v32, v32, 6, v33\nv_add_u32 v32, v32, v23")
    A(f"s_mov_b32 s22, {f2x(1/512)}\nv_mov_b32 v34, {f2x(1e-5)}")
    lspin("sp", L_CP, 4, 10, 11, 4, lambda: A(f"ds_read_b128 v[24:27], v32 offset:{L_GS}\nds_read_b128 v[28:31], v32 offset:{L_GS+1024}"))
    for qp in ("[1,0,3,2]", "[2,3,0,1]"):
        for i in range(8): A(f"v_add_f32_dpp v{24+i}, v{24+i}, v{24+i} quad_perm:{qp} {DPPF}")
    if dry:
        A("s_mov_b64 s[80:81], 0\ns_mov_b64 s[82:83], 0\ns_mov_b64 exec, 0\ns_branch L_pbd\nL_cdr:\ns_mov_b64 exec, -1")
    A("s_mov_b64 s[80:81], -1\ns_mov_b32 s82, 0x00010001\ns_mov_b32 s83, 0x00010001")
    stamp(4)
    lspin("sv", L_FP, 1, 10, 11, 2)
    if w2late: w2load()
    cs = 13 if cpad else 12
    A(f"s_lshl_b32 s20, s3, {cs+3}\ns_lshl_b32 s21, s26, {cs-6}\ns_add_u32 s20, s20, s21\ns_add_u32 s20, s20, {WS_C}")
    A(f"v_bfe_u32 v35, v0, 2, 3\nv_lshlrev_b32 v35, {cs}, v35\nv_and_b32 v36, 3, v0\nv_lshl_add_u32 v35, v36, 4, v35\nv_add_u32 v35, s20, v35")
    A("s_waitcnt vmcnt(0)")
    for tau in range(8):
        for hi in range(2):
            A(f"ds_read_b64_tr_b16 {v2(136+4*tau+2*hi)}, v19 offset:{8192+hi*4096+tau*32}")
        if tau % 4 == 3: A("s_waitcnt lgkmcnt(0)")
    stamp(5)
    G = 40
    A(f"s_mov_b32 s7, {spin}")
    for i in range(4): A(f"s_mov_b64 {sp(28+2*i)}, -1")
    A("L_pbt:")
    for i in range(4):
        A(f"s_mov_b64 exec, {sp(28+2*i)}\ns_cbranch_execz L_pbs{i}\nglobal_load_dwordx4 {v4(G+4*i)}, v{1 if i==0 else 11+i}, {WS} sc1\nL_pbs{i}:")
    A("s_mov_b64 exec, -1\ns_waitcnt vmcnt(0)")
    for i in range(4): A(f"v_max3_u32 v{56+i}, v{G+4*i}, v{G+4*i+1}, v{G+4*i+2}")
    for i in range(4): A(f"v_max_u32 v{56+i}, v{56+i}, v{G+4*i+3}")
    A("v_max3_u32 v60, v56, v57, v58\nv_max_u32 v60, v60, v59\nv_cmp_eq_u32 vcc, -1, v60\ns_cbranch_vccz L_pbd")
    for i in range(4): A(f"v_cmp_eq_u32 {sp(28+2*i)}, -1, v{56+i}")
    if csleep: A(f"s_sleep {csleep}")
    A("s_sub_u32 s7, s7, 1\ns_cbranch_scc0 L_pbt")
    A("L_pbd:")
    stamp(6)
    A(f"v_pk_add_f32 {v2(G)}, {v2(G)}, {v2(G+4)}\nv_pk_add_f32 {v2(G+2)}, {v2(G+2)}, {v2(G+6)}\nv_pk_add_f32 {v2(G+8)}, {v2(G+8)}, {v2(G+12)}\nv_pk_add_f32 {v2(G+10)}, {v2(G+10)}, {v2(G+14)}")
    A(f"v_pk_add_f32 {v2(G)}, {v2(G)}, {v2(G+8)}\nv_pk_add_f32 {v2(G+2)}, {v2(G+2)}, {v2(G+10)}")
    A(f"v_permlane32_swap_b32 v{G}, v{G+2}\nv_permlane32_swap_b32 v{G+1}, v{G+3}")
    A(f"v_pk_add_f32 {v2(G)}, {v2(G)}, {v2(G+2)}")
    A(f"v_pk_fma_f32 v[4:5], {v2(G)}, v[6:7], v[4:5]")
    A("v_pk_mul_f32 v[6:7], v[4:5], v[8:9]\nv_cvt_pk_bf16_f32 v6, v6, v7")
    A(f"ds_write_b32 v20, v6 offset:{L_U}")
    for c in range(4): A(f"ds_read_b128 {v4(44+4*c)}, v21 offset:{L_U+64*c}")
    A("v_add_f32 v16, v4, v5\nv_mul_f32 v17, v4, v4\nv_fmac_f32 v17, v5, v5")
    A("v_permlane32_swap_b32 v16, v17\nv_add_f32 v16, v16, v17")
    xrow("v_add_f32", 16, 17, 16)
    steps = ["row_ror:8", "row_ror:4", "row_ror:2", "row_ror:1"]
    for c in range(4):
        A(f"s_waitcnt lgkmcnt({3-c})")
        for mt in range(2):
            A(f"v_mfma_f32_16x16x32_bf16 {v4(60+4*mt)}, {v4(104+8*c+4*mt)}, {v4(44+4*c)}, {'0' if c==0 else v4(60+4*mt)}")
        inrow("v_add_f32", 16, [steps[c]])
    A("s_mov_b64 exec, s[82:83]")
    A(f"ds_write_b32 v22, v16 offset:{L_RED+128}")
    A(f"ds_write_b128 v21, v[60:63] offset:{L_RED}\nds_write_b128 v21, v[64:67] offset:{L_RED+64}")
    A("s_mov_b64 exec, s[80:81]")
    A("s_waitcnt lgkmcnt(0)")
    if dry: A("s_cbranch_execz L_cnb")
    A("s_barrier\nL_cnb:")
    A(f"ds_read_b64 v[12:13], v33 offset:{L_RED+128}\nds_read_b128 v[40:43], v32 offset:{L_RED}")
    A("s_waitcnt lgkmcnt(0)")
    for qp in ("[1,0,3,2]", "[2,3,0,1]"):
        for r in (12, 13, 40, 41, 42, 43): A(f"v_add_f32_dpp v{r}, v{r}, v{r} quad_perm:{qp} {DPPF}")
    A("v_mul_f32 v12, s22, v12\nv_fma_f32 v14, v13, s22, v34\nv_fma_f32 v14, -v12, v12, v14\nv_rsq_f32 v14, v14")
    for q in range(2): A(f"v_pk_fma_f32 {v2(40+2*q)}, {v2(24+2*q)}, v[12:13], {v2(40+2*q)} op_sel_hi:[1,0,1] neg_lo:[0,1,0] neg_hi:[0,1,0]")
    for q in range(2): A(f"v_pk_fma_f32 {v2(40+2*q)}, {v2(40+2*q)}, v[14:15], {v2(28+2*q)} op_sel_hi:[1,0,1]")
    for q in range(2): A(f"v_cvt_pk_bf16_f32 v{48+q}, v{40+2*q}, v{41+2*q}")
    for q in range(2): A(f"v_pk_max_i16 v{48+q}, v{48+q}, 0")
    for q in range(2): A(f"v_mov_b32_dpp v{50+q}, v{48+q} row_shl:8 {DPPF} bound_ctrl:0")
    for tau in range(8): A(f"v_mfma_f32_16x16x32_bf16 {v4(56+4*tau)}, v[48:51], {v4(136+4*tau)}, 0")
    for tau in range(1, 8):
        A(f"v_mov_b32_dpp v{56+(tau>>1)}, v{56+4*tau} quad_perm:[0,1,2,3] row_mask:{1<<(tau&1):#x} bank_mask:0xf")
    if dry: A("s_cbranch_execz L_cdr")
    A("s_mov_b32 exec_hi, 0")
    A(f"global_store_dwordx4 v35, v[56:59], {WS} sc1")
    stamp(7)
    end_wave()
    A("L_tf:")
    A("s_mov_b32 s26, s67\ns_lshr_b32 s20, s26, 3\ns_lshl_b32 s20, s20, 7\ns_and_b32 s21, s26, 7\ns_lshl_b32 s21, s21, 2\ns_add_u32 s20, s20, s21")
    A("v_and_b32 v4, 3, v0\nv_lshrrev_b32 v5, 4, v0\nv_lshl_add_u32 v4, v5, 5, v4\nv_add_u32 v4, s20, v4\nv_lshlrev_b32 v5, 1, v4")
    A(f"global_load_ushort v8, v5, {sp(P_X)}")
    A(f"v_lshrrev_b32 v6, 1, v4\nv_lshlrev_b32 v6, 3, v6\nv_add_u32 v6, {WS_MOD}, v6\nv_add_u32 v7, 6144, v6")
    poll("pg", lambda: A(f"global_load_dwordx2 v[12:13], v6, {WS} sc1\nglobal_load_dwordx2 v[14:15], v7, {WS} sc1"),
         lambda: chk_tags([13, 15], 16), 16)
    A("v_lshlrev_b32 v8, 16, v8")
    A("v_and_b32 v16, 1, v4\nv_cmp_eq_u32 vcc, 0, v16")
    A("v_lshlrev_b32 v16, 16, v12\nv_and_b32 v17, 0xffff0000, v12\nv_cndmask_b32 v9, v17, v16, vcc")
    A("v_lshlrev_b32 v16, 16, v14\nv_and_b32 v17, 0xffff0000, v14\nv_cndmask_b32 v12, v17, v16, vcc")
    A(f"v_bfe_u32 v6, v0, 2, 2\nv_lshlrev_b32 v6, 12, v6\nv_lshl_add_u32 v6, v4, 2, v6\nv_add_u32 v6, {WS_B}, v6")
    if R == 8: A("s_lshl_b32 s20, s4, 14\nv_add_u32 v6, s20, v6")
    if cpad: A(f"s_lshl_b32 s20, s26, 13\ns_add_u32 s20, s20, {WS_C}\nv_lshrrev_b32 v7, 2, v0\nv_lshl_add_u32 v7, v7, 6, v2\nv_add_u32 v7, s20, v7\nv_add_u32 v32, 4096, v7")
    else: A(f"s_lshl_b32 s20, s26, 12\ns_add_u32 s20, s20, {WS_C}\nv_add_u32 v7, s20, v2")
    if dry: A("s_mov_b64 exec, 0\ns_branch L_fd\nL_fdr:\ns_mov_b64 exec, -1")
    lspin("sf", L_FP, 1, 10, 11, 4)
    poll("pxb", lambda: A(f"global_load_dword v13, v6, {WS} sc1\nglobal_load_dword v14, v6, {WS} offset:2048 sc1"), lambda: chk_sent([13, 14], 15), 4)
    A("v_add_f32 v13, v13, v14")
    inrow("v_add_f32", 13, ["row_ror:8", "row_ror:4"])
    A("v_fma_f32 v8, v9, v13, v8")
    stamp(6)
    poll("pc", lambda: [A(f"global_load_dwordx4 {v4(16+4*i)}, v{(7 if i<2 else 32) if cpad else 7}, {WS} offset:{2048*(i&1) if cpad else 1024*i} sc1") for i in range(4)],
         lambda: chk_sent(range(16, 32), 15), fsleep)
    A("L_fd:")
    stamp(7)
    A("v_pk_add_f32 v[16:17], v[16:17], v[20:21]\nv_pk_add_f32 v[18:19], v[18:19], v[22:23]\nv_pk_add_f32 v[24:25], v[24:25], v[28:29]\nv_pk_add_f32 v[26:27], v[26:27], v[30:31]")
    A("v_pk_add_f32 v[16:17], v[16:17], v[24:25]\nv_pk_add_f32 v[18:19], v[18:19], v[26:27]")
    A("v_permlane32_swap_b32 v16, v18\nv_permlane32_swap_b32 v17, v19\nv_pk_add_f32 v[16:17], v[16:17], v[18:19]")
    A("v_permlane16_swap_b32 v16, v17\nv_add_f32 v16, v16, v17")
    inrow("v_add_f32", 16, ["row_ror:8", "row_ror:4"])
    A("v_fma_f32 v16, v12, v16, v8\nv_cvt_pk_bf16_f32 v16, v16, v16")
    if dry: A("s_cbranch_execz L_fdr")
    A("s_mov_b32 exec_lo, 0x000f000f\ns_mov_b32 exec_hi, 0x000f000f")
    A(f"global_store_short v5, v16, {sp(P_OUT)}")
    A("s_cmp_lg_u32 s26, 0\ns_cbranch_scc1 L_tfe")
    A("s_mov_b64 exec, 1\nv_mov_b32 v18, s6")
    A(f"global_store_dword v10, v18, {WS}")
    if fixend:
        A(f"L_fx:\ns_memrealtime s[98:99]\ns_waitcnt lgkmcnt(0)\ns_sub_u32 s98, s98, s96\ns_cmp_lt_u32 s98, {fixend}\ns_cbranch_scc1 L_fx")
    A("L_tfe:")
    stamp(4)
    end_wave()
    if stamps:
        A("L_stampout:")
        if stamps == 2:
            A("s_cmp_lg_u32 s2, 32\ns_cbranch_scc1 L_exit\ns_and_b32 s20, s3, 11\ns_cbranch_scc1 L_exit")
            A("s_mov_b64 exec, 0xff\ns_lshl_b32 s20, s3, 3\nv_lshl_add_u32 v1, v0, 2, s20")
            A(f"global_store_dword v1, v3, {sp(P_DBG)}\ns_endpgm")
        A("s_mov_b64 exec, 0xff")
        A("s_mul_i32 s20, s2, 12\ns_add_u32 s20, s20, s3\ns_lshl_b32 s20, s20, 5")
        A(f"s_add_u32 s20, s20, {WS_STAMP}")
        A("v_lshl_add_u32 v1, v0, 2, s20")
        A(f"global_store_dword v1, v3, {WS}")
    A("L_exit:\ns_endpgm")
    A(".p2align 6\n.type L_tab,@object\nL_tab:")
    for wg in range(256):
        r = roles[wg & 7, wg >> 3]; skip = T - r['n']
        assert skip < 8
        A(f".long {(r['pre'] - skip + 16) | skip << 12 | r['e'] << 15 | r['ei'] << 18 | r['l'] << 23 | r['li'] << 25:#x}")
    A(f"L_endcode:\n.fill (20480-(L_endcode-{NAME}))/4, 4, 0xbf800000")
    A('.section .rodata,"a"\n.p2align 6')
    A(f".amdhsa_kernel {NAME}")
    for l in ["next_free_vgpr 168", "next_free_sgpr 102", "accum_offset 168", "group_segment_fixed_size 0", "kernarg_size 104",
              "user_sgpr_count 2", "user_sgpr_kernarg_segment_ptr 1", "system_sgpr_workgroup_id_x 1"]:
        A("  .amdhsa_" + l)
    A(".end_amdhsa_kernel")
    return A.finish()

if __name__ == "__main__":
    out = sys.argv[1]; kw = {}
    for a in sys.argv[2:]:
        k, v = a.split("=", 1)
        try: v = ast.literal_eval(v)
        except Exception: pass
        kw[k] = v
    open(out, "w").write(gen(**kw))
    import json
    roles, T = make_plan(kw.get('plan', 'A'), **{k: v for k, v in kw.items() if k in ('cH','cQ','cM','cB','cC','T')})
    json.dump([[roles[wg & 7, wg >> 3][k] for k in ('e', 'l', 'n')] for wg in range(256)], open(out + ".roles", "w"))
```

```python
import sys, struct, ast
from asmlib import Asm
NAME = "adaLN_cond__gqa_block_cached__dense_activation_relu__decode_kernel"
def f2x(f): return "0x%08x" % struct.unpack("<I", struct.pack("<f", f))[0]

WS_XB = 0x14000; WS_QL = 0x10000; WS_H = 0x1000; WS_MOD = 0x4000; WS_Q = 0x8000; WS_ST = 0xC000
WS_AL = 0x180000; WS_A = 0x100000; WS_B = 0x140000; WS_C = 0x200000
WS_STAMP = 0x8000000
L_CG = 0; L_FQ = 4; L_CS = 8; L_CT = 68; L_CP = 16; L_FK = 20; L_CV = 24; L_CW = 28; L_FO = 32; L_MK = 64; L_FP = 12
L_ST = 256; L_Q = 1024; L_GP = 2048; L_X = 3072; L_RED = 4096; L_U = 5120; L_GS = 8192
L_OP = 16384; L_WT = 32768; LDS_SIZE = 98304
DPPF = "row_mask:0xf bank_mask:0xf"
P_X, P_K, P_V, P_WQ, P_WO, P_BX, P_W1, P_W2, P_C, P_WM, P_OUT, P_DBG, P_WS = [36 + 2 * i for i in range(13)]
def sp(n): return f"s[{n}:{n+1}]"
def v4(n): return f"v[{n}:{n+3}]"
def v2(n): return f"v[{n}:{n+1}]"
WS = sp(P_WS)

E_H, E_Q, E_M, E_B = 1, 2, 3, 4
R_B, R_C, R_F = 1, 2, 3
def make_plan(plan, **pk):
    P = dict(PLANS[plan]); P.update(pk)
    roles = {(x, a): dict(e=0, ei=0, l=0, li=0) for x in range(8) for a in range(32)}
    hi = mi = ci = fi = 0
    for x in range(8):
        a = 0
        for _ in range(P['H'][x]): roles[x, a].update(e=E_H, ei=hi); hi += 1; a += 1
        for c in range(8):
            roles[x, a].update(e=E_Q, ei=c)
            if c in (0, 1, 4, 5): roles[x, a].update(l=R_F, li=fi); fi += 1
            a += 1
        for c in range(8): roles[x, a].update(e=E_B, ei=c, l=R_B, li=c); a += 1
        for _ in range(P['M'][x]): roles[x, a].update(e=E_M, ei=mi); mi += 1; a += 1
        assert a <= 32
        cand = [b for b in range(31, -1, -1) if roles[x, b]['e'] == 0] + [b for b in range(32) if roles[x, b]['e'] == E_H] + [b for b in range(32) if roles[x, b]['e'] == E_M]
        for b in cand[:P['C'][x]]: roles[x, b].update(l=R_C, li=ci); ci += 1
    assert (hi, mi, ci, fi) == (32, 32, 56, 32), (hi, mi, ci, fi)
    for x in range(8):
        cost = []
        for a in range(32):
            r = roles[x, a]
            c = {0: 0, E_H: P['cH'], E_Q: P['cQ'], E_M: P['cM'], E_B: P['cB']}[r['e']]
            cb = r['ei'] if r['e'] in (E_Q, E_B) else (r['ei'] >> 2)
            if r['e'] and cb == 3: c += P['c3'][r['e']]
            if r['l'] == R_C: c += P['cC']
            cost.append(c)
        n = [max(28, P['T'] - 7)] * 32
        for _ in range(1024 - sum(n)):
            b = min((a for a in range(32) if n[a] < P['T']), key=lambda a: (n[a] + cost[a], -a))
            n[b] += 1
        pre = 0
        for a in range(32):
            roles[x, a].update(n=n[a], pre=pre); pre += n[a] - 28
    T = max(r['n'] for r in roles.values()); T += T & 1
    return roles, T
base = dict(cH=2.0, cQ=3.6, cM=4.2, cB=3.6, cC=4.0, c3={E_H: 0.5, E_Q: 1.7, E_M: 1.5, E_B: 1.0}, T=34)
base2 = dict(cH=1.6, cQ=4.0, cM=4.5, cB=3.4, cC=5.3, c3={E_H: 0.7, E_Q: 2.3, E_M: 1.8, E_B: 2.4}, T=36)
PLANS = {
 'A': dict(base, H=[4]*8, M=[4]*8, C=[7]*8),
 'B': dict(base, H=[8,0,8,0,8,0,8,0], M=[8,0,8,0,8,0,8,0], C=[14,0,14,0,14,0,14,0]),
 'C': dict(base, H=[8,0,8,0,8,0,8,0], M=[8,0,8,0,8,0,8,0], C=[7]*8),
 'D': dict(base, H=[8,8,8,8,0,0,0,0], M=[8,0,8,0,8,0,8,0], C=[14,0,14,0,14,0,14,0]),
 'E': dict(base, H=[8,8,8,8,0,0,0,0], M=[8,0,8,0,8,0,8,0], C=[8,6,8,6,8,6,8,6]),
 'G': dict(base2, H=[8,0,8,0,8,0,8,0], M=[8,0,8,0,8,0,8,0], C=[7]*8),
 'H': dict(base2, H=[8,0,8,0,8,0,8,0], M=[8,0,8,0,8,0,8,0], C=[8,8,8,12,8,2,8,2]),
 'I': dict(base2, H=[8,0,8,8,4,0,4,0], M=[8,0,8,0,8,0,8,0], C=[8,8,8,8,8,4,8,4]),
 'F': dict(base, H=[8,4,8,4,4,0,4,0], M=[8,0,8,0,8,0,8,0], C=[10,4,10,4,10,4,10,4]),
}

def gen(win=5, win2=6, wpol="nt", stamps=0, spin=200000, hsleep=4, qsleep=8, tsleep=1, pace=4, cpre=1, kprio=0, skipw=0, vmid=4, nopoll='', qtrig=22, R=4, cdefer=1, csleep=2, nH=33, nX=31, nL=34, loc=1, lpol='sc1', w1pol='nt', nocomp=0, nosvc=0, sprio=3, nopre=0, nocw=0, lmul=1, xit='', qloc=1, strig=1, qtrig2=38, kpol='nt', vpol='nt', slowfb=0, fixend=0, plan='A', hfirst=1, cpad=1, w2late=1, fsleep=1, dry=0, yprio=0, burst=0, bwin=8, bhold=1, xl=1, bearly=0, pd=1, fdelay=0, xsleep=4, bdefer=0, hwait=0, **pk):
    A = Asm()
    roles, T = make_plan(plan, **pk)
    hdr = open("cdna_kernels/" + NAME[:-7] + ".s.ref").read().split("; Override")[0]
    A(hdr.rstrip())
    A(f"; @launch grid=(256,1,1) block=(768,1,1) lds={LDS_SIZE}")
    A('.amdgcn_target "amdgcn-amd-amdhsa--gfx950"')
    A(f".text\n.globl {NAME}\n.p2align 8\n.type {NAME},@function\n{NAME}:")
    def stamp(k):
        if stamps:
            A("s_memrealtime s[62:63]\ns_waitcnt lgkmcnt(0)")
            A(f"v_writelane_b32 v3, s62, {k}")
    def end_wave():
        if stamps:
            A("s_branch L_stampout")
        else:
            A("s_endpgm")
    def srd(d, p, size):
        A(f"s_mov_b32 s{d}, s{p}\ns_mov_b32 s{d+1}, s{p+1}\ns_mov_b32 s{d+2}, {size}\ns_mov_b32 s{d+3}, 0x20000")
    def poll(name, loads, check, sleep):
        if name in nopoll.split('+'): return
        top = A.label(name); done = A.label(name + "d")
        A(f"s_mov_b32 s7, {spin}")
        A(f"{top}:")
        loads()
        A("s_waitcnt vmcnt(0)")
        check()
        A(f"s_cbranch_vccz {done}")
        A("s_mov_b64 exec, vcc")
        if sleep: A(f"s_sleep {sleep}")
        A("s_sub_u32 s7, s7, 1")
        A(f"s_cbranch_scc0 {top}")
        A(f"{done}:")
        A("s_mov_b64 exec, -1")
    def lspin(name, off, n, vz, vt, sleep=1, extra=None):
        top = A.label(name); done = A.label(name + "d")
        A(f"s_mov_b32 s7, {spin*20}")
        A(f"{top}:")
        A(f"ds_read_b32 v{vt}, v{vz} offset:{off}")
        if extra: extra()
        A("s_waitcnt lgkmcnt(0)")
        A(f"v_cmp_gt_u32 vcc, {n}, v{vt}")
        A(f"s_cbranch_vccz {done}")
        if lmul > 1: sleep = min(127, max(sleep, 1) * lmul)
        if sleep: A(f"s_sleep {sleep}")
        A("s_sub_u32 s7, s7, 1")
        A(f"s_cbranch_scc0 {top}")
        A(f"{done}:")
    def chk_tags(regs, tmp):
        A(f"v_xor_b32 v{tmp}, s6, v{regs[0]}")
        for r in regs[1:]:
            A(f"v_xor_b32 v{tmp+1}, s6, v{r}")
            A(f"v_or_b32 v{tmp}, v{tmp}, v{tmp+1}")
        A(f"v_cmp_ne_u32 vcc, 0, v{tmp}")
    def chk_sent(regs, tmp):
        regs = list(regs)
        if len(regs) == 1:
            A(f"v_cmp_eq_u32 vcc, -1, v{regs[0]}"); return
        if len(regs) == 2:
            A(f"v_max_u32 v{tmp}, v{regs[0]}, v{regs[1]}"); rest = []
        else:
            A(f"v_max3_u32 v{tmp}, v{regs[0]}, v{regs[1]}, v{regs[2]}"); rest = regs[3:]
        while rest:
            if len(rest) == 1:
                A(f"v_max_u32 v{tmp}, v{tmp}, v{rest[0]}"); rest = []
            else:
                A(f"v_max3_u32 v{tmp}, v{tmp}, v{rest[0]}, v{rest[1]}"); rest = rest[2:]
        A(f"v_cmp_eq_u32 vcc, -1, v{tmp}")
    def xrow(op, v, tmp, which):
        A(f"v_mov_b32 v{tmp}, v{v}")
        A(f"v_permlane{which}_swap_b32 v{v}, v{tmp}")
        A(f"{op} v{v}, v{v}, v{tmp}")
    def inrow(op, v, steps):
        for s in steps:
            A(f"{op}_dpp v{v}, v{v}, v{v} {s} {DPPF}")
    def wave_reduce(op, v, tmp):
        inrow(op, v, ["row_ror:8", "row_ror:4", "row_ror:2", "row_ror:1"])
        xrow(op, v, tmp, 16); xrow(op, v, tmp, 32)
    def unpack(dst, src, n):
        for i in range(n):
            A(f"v_lshlrev_b32 v{dst+2*i}, 16, v{src[i]}")
            A(f"v_and_b32 v{dst+2*i+1}, 0xffff0000, v{src[i]}")
    def silu(x, t, n):
        A(f"s_mov_b32 s21, {f2x(-1.4426950408889634)}")
        for i in range(n): A(f"v_mul_f32 v{t+i}, s21, v{x+i}")
        for i in range(n): A(f"v_exp_f32 v{t+i}, v{t+i}")
        for i in range(n): A(f"v_add_f32 v{t+i}, 1.0, v{t+i}")
        for i in range(n): A(f"v_rcp_f32 v{t+i}, v{t+i}")
        for i in range(n): A(f"v_mul_f32 v{x+i}, v{x+i}, v{t+i}")
    def gemv_perm(W, T, npair):
        for u in range(npair):
            for w in range(4):
                a = W + 8 * u + w; b = W + 8 * u + 4 + w
                A(f"v_perm_b32 v{T+8*u+2*w}, v{b}, v{a}, s24")
                A(f"v_perm_b32 v{T+8*u+2*w+1}, v{b}, v{a}, s25")
    def gemv_dot(T, X, acc):
        for u in range(len(X)):
            for e in range(8):
                c = "0" if u == 0 else f"v{acc+e}"
                A(f"v_dot2_f32_bf16 v{acc+e}, v{T+8*u+e}, v{X[u]}, {c}")
    def mktag():
        A("s_waitcnt lgkmcnt(0)\ns_mul_i32 s6, s6, 0x9E3779B1\ns_add_u32 s6, s6, 0x7F4A7C15")
    def paced(loads, w):
        if skipw and (w or skipw > 1): return
        for i, l in enumerate(loads):
            if w and i >= w: A(f"s_waitcnt vmcnt({w-1})")
            A(l)

    A("s_cmp_ge_u32 s2, 256\ns_cbranch_scc1 L_exit")
    A("s_load_dwordx16 s[36:51], s[0:1], 0\ns_load_dwordx8 s[52:59], s[0:1], 64\ns_load_dwordx2 s[60:61], s[0:1], 96")
    A("s_getpc_b64 s[30:31]\nL_pc:\ns_add_u32 s32, s30, L_tab-L_pc\ns_addc_u32 s33, s31, 0\ns_lshl_b32 s20, s2, 2\ns_load_dword s68, s[32:33], s20")
    A("v_lshrrev_b32 v1, 6, v0\nv_and_b32 v0, 63, v0\nv_readfirstlane_b32 s3, v1")
    A("s_and_b32 s4, s2, 7\ns_lshr_b32 s5, s2, 3")
    if fixend: A("s_memrealtime s[96:97]")
    A("s_mov_b32 s24, 0x05040100\ns_mov_b32 s25, 0x07060302")
    A("v_lshlrev_b32 v2, 4, v0")
    if stamps:
        A("v_mov_b32 v3, 0"); stamp(0)
    A("s_cmp_lt_u32 s3, 4\ns_cbranch_scc1 L_service")
    STREAM_MARK = len(A.lines)
    A("L_service:")
    A(f"s_setprio {sprio}")
    if cpre:
        A("s_lshl_b32 s20, s5, 2\ns_add_u32 s20, s20, s3\ns_sub_u32 s20, s20, 104\ns_cmp_ge_u32 s20, 24\ns_cbranch_scc1 L_ncp")
        A(f"s_sub_u32 s30, s30, L_pc-{NAME}\ns_subb_u32 s31, s31, 0")
        A("s_lshl_b32 s20, s20, 10\nv_add_u32 v14, s20, v2")
        A("global_load_dwordx4 v[164:167], v14, s[30:31]")
        A("L_ncp:")
    A("v_lshrrev_b32 v12, 3, v0\nv_and_b32 v13, 7, v0\nv_mov_b32 v16, 0\nv_mov_b32 v17, 0\nv_mov_b32 v18, 0\nv_mov_b32 v19, 0")
    A("s_mov_b64 exec, 0x1f\nds_write_b128 v2, v[16:19]\ns_mov_b64 exec, -1")
    A("s_waitcnt lgkmcnt(0)")
    A("s_bfe_u32 s64, s68, 0x3000f\ns_bfe_u32 s65, s68, 0x50012\ns_bfe_u32 s66, s68, 0x20017\ns_bfe_u32 s67, s68, 0x60019")
    A("s_lshr_b32 s69, s65, 2\ns_and_b32 s70, s65, 3")
    A(f"s_cmp_lg_u32 s64, {E_H}\ns_cbranch_scc1 L_nh")
    A("s_lshr_b32 s20, s70, 1\ns_lshl_b32 s20, s20, 8\ns_lshl_b32 s21, s3, 6\ns_add_u32 s20, s20, s21")
    A("v_lshl_add_u32 v14, v12, 3, s20")
    A("s_mov_b32 s21, 6144\nv_mul_lo_u32 v1, v14, s21\nv_lshl_add_u32 v1, v13, 4, v1\nv_lshlrev_b32 v14, 1, v14")
    A("s_and_b32 s20, s70, 1\ns_lshl_b32 s20, s20, 10\ns_lshl_b32 s21, s69, 7\ns_add_u32 s20, s20, s21")
    A("s_waitcnt lgkmcnt(0)")
    srd(8, P_WM, 512 * 6144)
    A(f"global_load_dwordx4 v[4:7], v14, {sp(P_C)}")
    for i in range(8):
        A(f"buffer_load_dwordx4 {v4(40+4*i)}, v1, s[8:11], s20 offen {wpol}")
        if i < 7: A("s_add_u32 s20, s20, 6144")
    A(f"s_load_dword s6, {WS}, 0")
    A("s_barrier")
    A("s_lshl_b32 s20, s65, 2\ns_add_u32 s20, s20, s3")
    if cpad: A(f"s_lshl_b32 s21, s20, 11\ns_add_u32 s21, s21, {WS_C}\nv_lshrrev_b32 v14, 2, v0\nv_lshl_add_u32 v14, v14, 6, v2\nv_add_u32 v14, s21, v14")
    else: A(f"s_lshl_b32 s21, s20, 10\ns_add_u32 s21, s21, {WS_C}\nv_add_u32 v14, s21, v2")
    A(f"s_mul_i32 s21, s20, {128*R}\ns_add_u32 s21, s21, {WS_B}\nv_add_u32 v15, s21, v2")
    A("s_cmp_eq_u32 s3, 3\ns_cselect_b32 exec_hi, 0, -1")
    for i in range(4): A(f"v_mov_b32 v{16+i}, -1")
    A("s_mov_b64 exec, -1")
    A(f"global_store_dwordx4 v14, v[16:19], {WS} sc1")
    for i in range(4): A(f"v_mov_b32 v{20+i}, -1")
    if R < 8: A(f"s_mov_b32 exec_hi, 0\ns_mov_b32 exec_lo, {(1<<(8*R))-1:#x}")
    A(f"global_store_dwordx4 v15, v[20:23], {WS} sc1")
    A("s_mov_b64 exec, -1")
    A("s_waitcnt vmcnt(10)")
    unpack(24, [4, 5, 6, 7], 4); silu(24, 32, 8)
    for i in range(4): A(f"v_cvt_pk_bf16_f32 v{24+i}, v{24+2*i}, v{25+2*i}")
    mktag()
    A(f"s_and_b32 s26, s70, 1\ns_lshl_b32 s26, s26, 12\ns_lshr_b32 s21, s70, 1\ns_lshl_b32 s21, s21, 11\ns_add_u32 s26, s26, s21\ns_lshl_b32 s21, s69, 8\ns_add_u32 s26, s26, s21\ns_add_u32 s26, s26, {WS_H}")
    A("s_waitcnt vmcnt(2)")
    stamp(1)
    gemv_perm(40, 104, 4)
    gemv_dot(104, [24, 25, 26, 27], 32)
    A("L_gfin:")
    acc = 32
    for e in range(4): A(f"v_permlane32_swap_b32 v{acc+e}, v{acc+e+4}")
    for e in range(4): A(f"v_add_f32 v{acc+e}, v{acc+e}, v{acc+e+4}")
    for e in range(2): A(f"v_permlane16_swap_b32 v{acc+e}, v{acc+e+2}")
    for e in range(2): A(f"v_add_f32 v{acc+e}, v{acc+e}, v{acc+e+2}")
    for e in range(2): A(f"v_add_f32_dpp v{acc+e}, v{acc+e}, v{acc+e} row_ror:8 {DPPF}")
    A("v_lshrrev_b32 v14, 4, v0\nv_lshlrev_b32 v14, 3, v14\nv_lshl_add_u32 v14, v13, 5, v14\ns_lshl_b32 s21, s3, 8\nv_add_u32 v14, s21, v14")
    A(f"ds_write_b64 v14, v[32:33] offset:{L_GP}")
    A("v_mov_b32 v14, 0\nv_mov_b32 v15, 1")
    A("s_waitcnt vmcnt(0)")
    A("s_mov_b64 exec, 1")
    A(f"ds_add_rtn_u32 v15, v14, v15 offset:{L_CG}")
    A("s_mov_b64 exec, -1")
    A("v_lshlrev_b32 v14, 3, v0")
    A("s_waitcnt lgkmcnt(0)")
    A("v_readfirstlane_b32 s21, v15")
    A("s_cmp_lg_u32 s21, 3\ns_cbranch_scc1 L_gdone")
    A("s_mov_b32 exec_hi, 0")
    for w in range(4): A(f"ds_read_b64 {v2(32+2*w)}, v14 offset:{L_GP+256*w}")
    A("v_add_u32 v14, s26, v14")
    A("s_waitcnt lgkmcnt(0)")
    A("v_pk_add_f32 v[32:33], v[32:33], v[34:35]\nv_pk_add_f32 v[36:37], v[36:37], v[38:39]\nv_pk_add_f32 v[32:33], v[32:33], v[36:37]")
    A("v_cvt_pk_bf16_f32 v32, v32, v33\nv_mov_b32 v33, s6")
    if qloc:
        A(f"s_cmp_lg_u32 s64, {E_Q}\ns_cbranch_scc1 L_gnl")
        A(f"v_add_u32 v15, {WS_QL-WS_Q}, v14\nglobal_store_dwordx2 v15, v[32:33], {WS}")
        A("L_gnl:")
    A(f"global_store_dwordx2 v14, v[32:33], {WS} sc1")
    A("s_mov_b64 exec, -1")
    A("L_gdone:")
    stamp(3)
    A("s_branch L_qpoll")

    NM = T - 28; nmask = T - min(r['n'] for r in roles.values())
    NW = 39 - T
    S0 = len(A.lines)
    A("L_stream:")
    if kprio: A(f"s_setprio {kprio}")
    A("s_sub_u32 s21, s3, 4")
    if yprio == 1: A("s_cmp_lt_u32 s21, 4\ns_cbranch_scc1 L_yp\ns_setprio 1\nL_yp:")
    A("v_bfe_u32 v1, v0, 2, 2\nv_lshlrev_b32 v1, 8, v1\nv_lshrrev_b32 v4, 4, v0\nv_lshl_add_u32 v1, v4, 6, v1\nv_and_b32 v4, 3, v0\nv_lshl_add_u32 v1, v4, 4, v1")
    A(f"s_lshl_b32 s19, s4, 23\ns_mul_i32 s16, s5, {28*8192}\ns_add_u32 s16, s16, s19\ns_lshl_b32 s17, s21, 12\ns_add_u32 s16, s16, s17")
    A("s_mov_b32 s10, 0x4000000\ns_mov_b32 s11, 0x20000")
    A("s_waitcnt lgkmcnt(0)")
    A(f"s_mov_b32 s8, s{P_K}\ns_mov_b32 s9, s{P_K+1}\ns_bfe_u32 s35, s68, 0x3000f")
    A(f"s_cmp_lg_u32 s35, {E_H if hfirst else 7}\ns_cbranch_scc1 L_s1\ns_barrier\nL_s1:")
    KR = lambda t: 168 - 4 * T + 4 * t
    nS = (T + 3) // 4; nP = (T + 7) // 8
    first_v = nS - 1 + nP + 1
    vslots = [12 + 4 * i for i in range(NW)] + [KR(i) for i in range(first_v, T)]
    VR = lambda t: vslots[t % len(vslots)]
    st = {"cur": None}
    mpos = [6 + (j * (T - 12)) // max(nmask, 1) for j in range(nmask)]
    rest = list(range(NM, NM + 6)) + list(range(nmask, NM)) + list(range(NM + 6, T))
    perm = []
    for t in range(T):
        if t in mpos: perm.append(mpos.index(t))
        else: perm.append(rest.pop(0))
    first_nm = min(t for t in range(T) if perm[t] < NM)
    assert first_nm >= win
    hist = []
    def wcount(w):
        c = 0
        for n_, m_ in enumerate(reversed(hist)):
            if not m_:
                if c == w - 1: return n_
                c += 1
        return None
    def ld(which, t):
        o = perm[t]
        hist.append(o < nmask)
        if o < NM:
            A(f"s_add_u32 s20, s17, {o*8192}"); st["cur"] = None; imm = 0
            if o < nmask: A(f"s_cmp_gt_u32 s18, {o}\ns_cselect_b32 s20, 0x4000000, s20")
        else:
            key = (o - NM) >> 2; imm = ((o - NM) & 3) * 1024
            if st["cur"] != key:
                A(f"s_add_u32 s20, s16, {key*32768}"); st["cur"] = key
        if which == "K": A(f"buffer_load_dwordx4 {v4(KR(t))}, v1, s[8:11], s20 offen offset:{imm} {kpol}")
        else: A(f"buffer_load_dwordx4 {v4(VR(t))}, v2, s[12:15], s20 offen offset:{imm} {vpol}")
    korder = list(range(T))
    seq = [("K", t) for t in korder] + [("V", t) for t in range(NW)]
    for i, (wh, t) in enumerate(seq):
        if i == win:
            A("s_branch L_body")
            S1 = len(A.lines)
            A("L_body:")
            srd(12, P_V, 0x4000000)
            A(f"s_cmp_eq_u32 s35, {E_H if hfirst else 7}\ns_cbranch_scc1 L_s2\ns_barrier\nL_s2:")
            A(f"s_and_b32 s17, s68, 0xfff\ns_bfe_u32 s18, s68, 0x3000c\ns_add_u32 s17, s17, {896-16}\ns_lshl_b32 s17, s17, 13\ns_add_u32 s17, s17, s19\ns_lshl_b32 s19, s21, 10\ns_add_u32 s17, s17, s19")
        if i == T and kprio: A("s_setprio 0")
        if wcount(win) is not None and perm[t] >= nmask: A(f"s_waitcnt vmcnt({wcount(win)})")
        ld(wh, t)
        if i == qtrig: A(f"v_mov_b32 v8, 0\nv_mov_b32 v9, 1\nds_max_u32 v8, v9 offset:{L_FK}")
        if i == qtrig2 and qloc: A(f"v_mov_b32 v8, 0\nv_mov_b32 v9, 2\nds_max_u32 v8, v9 offset:{L_FK}")
    viss = NW
    A("v_and_b32 v8, 3, v0\nv_lshlrev_b32 v8, 8, v8\nv_lshrrev_b32 v9, 4, v0\nv_lshl_add_u32 v8, v9, 6, v8\nv_bfe_u32 v9, v0, 2, 2\nv_lshl_add_u32 v8, v9, 4, v8\nv_mov_b32 v9, 0")
    A(f"s_mov_b32 s22, {f2x(128**-0.5*1.4426950408889634)}")
    for t in range(nmask): A(f"s_cmp_gt_u32 s18, {t}\ns_cselect_b32 s{28+t}, 0xff800000, 0")
    stamp(1)
    lspin("sq", L_FQ, 1, 9, 10, 2, lambda: A(f"ds_read_b128 v[4:7], v8 offset:{L_Q}"))
    stamp(2)
    kl = {"landed": T + NW - win - 3}
    DR = lambda t: 8 if t == 0 else KR(t - 1)
    SR = lambda t: (8 + t) if t < 4 else KR((t >> 2) - 1) + (t & 3)
    def M(t):
        if t >= kl["landed"]:
            A(f"s_waitcnt vmcnt({len(hist)-1-t})"); kl["landed"] = t + 1
        A(f"v_mfma_f32_16x16x32_bf16 {v4(DR(t))}, {v4(KR(t))}, v[4:7], 0")
    def AB(t):
        d = DR(t)
        A(f"v_add_f32_dpp v{d}, v{d+1}, v{d} row_shl:4 {DPPF} bound_ctrl:0")
        A(f"v_add_f32_dpp v{d+2}, v{d+3}, v{d+2} row_shl:4 {DPPF} bound_ctrl:0")
    def S(t):
        d = DR(t)
        A(f"v_add_f32_dpp v{SR(t)}, v{d+2}, v{d} row_shl:8 {DPPF} bound_ctrl:0")
    mark0 = len(A.lines)
    if yprio == 2: A("s_cmp_lt_u32 s21, 4\ns_cbranch_scc1 L_yp\ns_setprio 1\nL_yp:")
    M(0); M(1); M(2)
    for t in range(T + 1):
        if t < T: AB(t)
        if t >= 1:
            S(t - 1)
            if vmid and t - 2 >= first_v and (t - 2 - first_v) % vmid == 0:
                ld("V", viss); viss += 1
        if t + 3 < T: M(t + 3)
    TM = KR(first_v - 1)
    Sl = [SR(t) for t in range(T)]
    for t in range(nmask): A(f"v_add_f32 v{Sl[mpos[t]]}, s{28+t}, v{Sl[mpos[t]]}")
    A(f"v_max3_f32 v{TM}, v{Sl[0]}, v{Sl[1]}, v{Sl[2]}")
    A(f"v_max3_f32 v{TM+1}, v{Sl[3]}, v{Sl[4]}, v{Sl[5]}")
    i = 6; k = 0
    while i < T:
        A(f"v_max3_f32 v{TM+k}, v{TM+k}, v{Sl[i]}, v{Sl[i+1]}"); i += 2; k ^= 1
    A(f"v_max_f32 v{TM}, v{TM}, v{TM+1}")
    xrow("v_max_f32", TM, TM + 1, 16); xrow("v_max_f32", TM, TM + 1, 32)
    A(f"v_mul_f32 v{TM}, s22, v{TM}")
    for t in range(T): A(f"v_fma_f32 v{Sl[t]}, v{Sl[t]}, s22, -v{TM}")
    for t in range(T): A(f"v_exp_f32 v{Sl[t]}, v{Sl[t]}")
    if vmid: ld("V", viss); viss += 1
    A(f"v_add_f32 v{TM+1}, v{Sl[0]}, v{Sl[1]}\nv_add_f32 v{TM+2}, v{Sl[2]}, v{Sl[3]}")
    for t in range(4, T): A(f"v_add_f32 v{TM+1+(t&1)}, v{TM+1+(t&1)}, v{Sl[t]}")
    A(f"v_add_f32 v{TM+1}, v{TM+1}, v{TM+2}")
    xrow("v_add_f32", TM + 1, TM + 2, 16); xrow("v_add_f32", TM + 1, TM + 2, 32)
    A(f"s_lshl_b32 s19, s21, 5\nv_lshl_add_u32 v{TM+2}, v0, 3, s19\nv_mov_b32 v4, 0\nv_mov_b32 v5, 1")
    A("s_mov_b64 exec, 0xf")
    A(f"ds_write_b64 v{TM+2}, {v2(TM)} offset:{L_ST}")
    A("s_mov_b64 exec, 1")
    A(f"ds_add_u32 v4, v5 offset:{L_CS}")
    A("s_mov_b64 exec, -1")
    PR = lambda u: KR(nS - 1 + u)
    rem = T % 8
    assert rem in (2, 4)
    for t in range(0, T - rem, 2): A(f"v_cvt_pk_bf16_f32 v{PR(t//8)+(t%8)//2}, v{Sl[t]}, v{Sl[t+1]}")
    if rem == 2: A(f"v_mov_b32 v{PR(nP-1)+1}, 0")
    A("s_waitcnt lgkmcnt(0)")
    stamp(3)
    ACC = [8] + [KR(i) for i in range(7)]
    TT = [TM, 4]
    def pv(u):
        n = min(8, T - 8 * u)
        if n < 8:
            tb = [VR(8 * u - 8 + j) for j in range(4)]
            for e in range(8):
                Tm = tb[e >> 1] + 2 * (e & 1)
                for p in range(n // 2):
                    a = VR(8 * u + 2 * p) + (e >> 1); b = VR(8 * u + 2 * p + 1) + (e >> 1)
                    A(f"v_perm_b32 v{Tm+p}, v{b}, v{a}, s{24+(e&1)}")
            for e in range(8):
                Tm = tb[e >> 1] + 2 * (e & 1)
                A(f"v_mfma_f32_16x16x16_bf16 {v4(ACC[e])}, {v2(Tm)}, {v2(PR(u))}, {v4(ACC[e])}")
            return
        for e in range(8):
            Tm = TT[e & 1]
            for p in range(n // 2):
                a = VR(8 * u + 2 * p) + (e >> 1); b = VR(8 * u + 2 * p + 1) + (e >> 1)
                A(f"v_perm_b32 v{Tm+p}, v{b}, v{a}, s{24+(e&1)}")
            c = "0" if u == 0 else v4(ACC[e])
            if n == 8: A(f"v_mfma_f32_16x16x32_bf16 {v4(ACC[e])}, {v4(Tm)}, {v4(PR(u))}, {c}")
            else: A(f"v_mfma_f32_16x16x16_bf16 {v4(ACC[e])}, {v2(Tm)}, {v2(PR(u))}, {c}")
    ns = len(vslots)
    while viss < min(win2, ns):
        ld("V", viss); viss += 1
    done_u = 0
    for L in range(T):
        last = (L % 8 == 7) or L == T - 1
        if L == T - 1:
            X = PR(0)
            A(f"s_waitcnt lgkmcnt(0)\nv_and_b32 v1, 3, v0\nv_lshlrev_b32 v2, 3, v1\nv_mov_b32 v{X+10}, 0\nv_mov_b32 v{X+11}, 1\ns_lshl_b32 s19, s21, 5\nv_add_u32 v{X+9}, s19, v2")
            def rd():
                for w in range(8): A(f"ds_read_b32 v{X+w}, v2 offset:{L_ST+32*w}")
                A(f"ds_read_b32 v{X+8}, v{X+9} offset:{L_ST}")
            lspin("sm", L_CS, 9, X + 10, X + 12, 1, rd)
            A(f"s_mov_b64 exec, 1\nds_add_rtn_u32 v{X+12}, v{X+10}, v{X+11} offset:{L_CT}\ns_mov_b64 exec, -1")
            A(f"v_max3_f32 v{X}, v{X}, v{X+1}, v{X+2}\nv_max3_f32 v{X+3}, v{X+3}, v{X+4}, v{X+5}\nv_max3_f32 v{X}, v{X}, v{X+6}, v{X+7}\nv_max_f32 v{X}, v{X}, v{X+3}")
            A(f"v_sub_f32 v{X}, v{X+8}, v{X}\nv_exp_f32 v{X}, v{X}")
            A(f"v_lshlrev_b32 v1, 6, v1\nv_lshrrev_b32 v2, 4, v0\nv_lshl_add_u32 v1, v2, 4, v1\nv_lshlrev_b32 v2, 4, v0")
            for e in range(8):
                for q in range(2): A(f"v_pk_mul_f32 {v2(ACC[e]+2*q)}, {v2(ACC[e]+2*q)}, {v2(X)} op_sel_hi:[1,0]")
            for t in range(T - rem, T, 2):
                A(f"v_pk_mul_f32 {v2(Sl[t])}, {v2(Sl[t])}, {v2(X)} op_sel_hi:[1,0]\nv_cvt_pk_bf16_f32 v{PR(t//8)+(t%8)//2}, v{Sl[t]}, v{Sl[t+1]}")
            A(f"s_waitcnt lgkmcnt(0)\nv_readfirstlane_b32 s23, v{X+12}\ns_lshl_b32 s19, s23, 11\nv_add_u32 v1, s19, v1\ns_lshl_b32 s19, s23, 2\nv_mov_b32 v{X+9}, s19")
        can = lambda: viss < T and sum(1 for j in range(L + 1, viss) if perm[j] >= nmask) < (bwin if L >= T - burst else win2) + (perm[viss] < nmask) and (viss < ns or done_u > (viss - ns) // 8)
        if can() or last:
            A(f"s_waitcnt vmcnt({viss-1-L})")
        while can():
            ld("V", viss); viss += 1
            if viss == T:
                A(f"v_mov_b32 v1, 0\nv_mov_b32 v2, 1\ns_mov_b64 exec, 1\nds_add_u32 v1, v2 offset:{L_CV}\ns_mov_b64 exec, -1")
        if last:
            if L == T - 1: stamp(4)
            pv(L // 8); done_u += 1
    assert viss == T
    if nocomp:
        keep = [l for l in A.lines[mark0:] if not l.startswith(("v_mfma", "v_perm_b32", "v_add_f32", "v_exp", "v_fma", "v_max", "v_cvt", "v_permlane"))]
        A.lines[mark0:] = keep
    A("s_mov_b32 exec_lo, 0x000f000f\ns_mov_b32 exec_hi, 0x000f000f")
    for e in range(8): A(f"ds_write_b128 v1, {v4(ACC[e])} offset:{L_OP+e*256}")
    X = PR(0)
    A(f"ds_write_b32 v{X+9}, v{X+11} offset:{L_FO}")
    A("s_mov_b64 exec, -1")
    if stamps: A("s_waitcnt lgkmcnt(0)")
    stamp(5)
    A("s_cmp_lg_u32 s23, 0\ns_cbranch_scc1 L_done")
    A("s_setprio 3")
    A(f"s_lshl_b32 s20, s4, 15\ns_lshl_b32 s19, s5, 6\ns_add_u32 s20, s20, s19\ns_add_u32 s20, s20, {WS_A}")
    A("v_bfe_u32 v36, v0, 2, 2\nv_lshlrev_b32 v36, 13, v36\nv_lshrrev_b32 v37, 4, v0\nv_lshl_add_u32 v36, v37, 11, v36\nv_and_b32 v37, 3, v0\nv_lshl_add_u32 v36, v37, 4, v36\nv_add_u32 v36, s20, v36")
    A(f"v_add_u32 v37, {WS_AL-WS_A}, v36\nv_mov_b32 v38, 0\nv_mov_b32 v39, 1")
    if xl: A(f"ds_read_b32 v29, v38 offset:{L_MK}\ns_waitcnt lgkmcnt(0)\nv_readfirstlane_b32 s26, v29")
    for i in range(8):
        d = 12 if i == 0 else 20
        lspin("so", L_FO + 4 * i, 1, 38, 28, 0, lambda: A(f"ds_read_b128 {v4(d)}, v2 offset:{L_OP+i*2048}\nds_read_b128 {v4(d+4)}, v2 offset:{L_OP+i*2048+1024}"))
        if i:
            for q in range(4): A(f"v_pk_add_f32 {v2(12+2*q)}, {v2(12+2*q)}, {v2(20+2*q)}")
    for q in range(4): A(f"v_cvt_pk_bf16_f32 v{12+q}, v{12+2*q}, v{13+2*q}")
    if loc: A(f"global_store_dwordx4 v37, v[12:15], {WS}")
    if xl: A("s_cmp_eq_u32 s26, 0\ns_cbranch_scc1 L_ng2")
    A(f"global_store_dwordx4 v36, v[12:15], {WS} sc1")
    A("L_ng2:")
    A(f"ds_write_b32 v38, v39 offset:{L_FP}")
    stamp(6)
    end_wave()
    blk = A.lines[S0:S1]; del A.lines[S0:S1]; A.lines[STREAM_MARK:STREAM_MARK] = blk

    A("L_nh:")
    A(f"s_cmp_lg_u32 s64, {E_Q}\ns_cbranch_scc1 L_nq")
    A("v_lshlrev_b32 v1, 17, v12\nv_lshl_add_u32 v1, v13, 4, v1")
    A("s_lshl_b32 s20, s3, 20\ns_lshl_b32 s21, s4, 10\ns_add_u32 s20, s20, s21\ns_mov_b32 s26, s65\ns_lshl_b32 s21, s26, 7\ns_add_u32 s20, s20, s21")
    A("s_lshl_b32 s21, s3, 8\nv_lshl_add_u32 v14, v0, 2, s21")
    A("s_waitcnt lgkmcnt(0)")
    srd(8, P_WQ, 512 * 8192)
    A(f"global_load_dwordx4 v[8:11], v2, {sp(P_X)}\nglobal_load_dword v15, v14, {sp(P_X)}")
    for i in range(16):
        A(f"buffer_load_dwordx4 {v4(40+4*i)}, v1, s[8:11], s20 offen {wpol}")
        if i < 15: A("s_add_u32 s20, s20, 8192")
    A(f"s_load_dword s6, {WS}, 0")
    A("s_barrier")
    A(f"s_lshl_b32 s26, s26, 8\ns_lshl_b32 s21, s4, 11\ns_add_u32 s26, s26, s21\ns_add_u32 s26, s26, {WS_Q}")
    A("s_waitcnt vmcnt(16)")
    unpack(32, [8, 9, 10, 11], 4)
    A("v_add_f32 v4, v32, v33")
    for i in range(2, 8): A(f"v_add_f32 v4, v4, v{32+i}")
    wave_reduce("v_add_f32", 4, 5)
    A(f"v_mul_f32 v4, {f2x(1/512)}, v4")
    for i in range(8): A(f"v_sub_f32 v{32+i}, v{32+i}, v4")
    A("v_mul_f32 v6, v32, v32")
    for i in range(1, 8): A(f"v_fmac_f32 v6, v{32+i}, v{32+i}")
    wave_reduce("v_add_f32", 6, 5)
    A(f"v_mov_b32 v5, {f2x(1e-5)}\nv_fmac_f32 v5, {f2x(1/512)}, v6\nv_rsq_f32 v5, v5")
    unpack(8, [15], 1)
    A("v_sub_f32 v8, v8, v4\nv_sub_f32 v9, v9, v4\nv_mul_f32 v8, v8, v5\nv_mul_f32 v9, v9, v5")
    A(f"v_lshlrev_b32 v15, 1, v14\nv_add_u32 v15, {WS_H}, v15\nv_add_u32 v10, 4096, v15")
    mktag()
    A("s_waitcnt vmcnt(0)")
    stamp(1)
    gemv_perm(40, 104, 8)
    if hwait: A("v_mov_b32 v4, 0"); lspin("sh", L_FK, 1, 4, 5, 2)
    poll("ph", lambda: [A(f"global_load_dwordx2 {v2(16+2*k)}, v{15 if k<2 else 10}, {WS} offset:{2048*(k&1)} sc1") for k in range(4)],
         lambda: chk_tags([17, 19, 21, 23], 4), hsleep)
    stamp(2)
    unpack(24, [16, 18, 20, 22], 4)
    A("v_pk_add_f32 v[24:25], v[24:25], v[26:27]\nv_pk_add_f32 v[28:29], v[28:29], v[30:31]")
    A("v_add_f32 v28, 1.0, v28\nv_add_f32 v29, 1.0, v29\nv_pk_fma_f32 v[24:25], v[8:9], v[28:29], v[24:25]")
    A("L_gx:")
    A("v_cvt_pk_bf16_f32 v24, v24, v25")
    A(f"ds_write_b32 v14, v24 offset:{L_X}")
    A("s_lshl_b32 s21, s3, 8\nv_lshl_add_u32 v15, v12, 5, s21")
    A(f"ds_read_b128 v[24:27], v15 offset:{L_X}\nds_read_b128 v[28:31], v15 offset:{L_X+16}")
    A("s_waitcnt lgkmcnt(0)")
    gemv_dot(104, list(range(24, 32)), 32)
    A("s_branch L_gfin")

    A("L_nq:")
    A("s_waitcnt lgkmcnt(0)")
    A(f"s_load_dword s6, {WS}, 0")
    A("s_barrier")
    mktag()
    A("L_role:")
    A("s_cmp_eq_u32 s64, 0\ns_cbranch_scc1 L_qpoll")
    A(f"s_cmp_eq_u32 s64, {E_B}\ns_cbranch_scc1 L_wb")
    A("s_mov_b32 s21, 98304\nv_mul_lo_u32 v1, v12, s21\nv_lshl_add_u32 v1, v13, 4, v1")
    A(f"s_mul_i32 s20, s3, {128*6144}\ns_add_u32 s26, s70, 2\ns_lshl_b32 s26, s26, 10\ns_lshl_b32 s21, s69, 7\ns_add_u32 s26, s26, s21\ns_add_u32 s20, s20, s26")
    A("s_lshl_b32 s21, s3, 8\nv_lshl_add_u32 v14, v0, 2, s21")
    srd(8, P_WM, 512 * 6144)
    A(f"global_load_dword v15, v14, {sp(P_C)}")
    paced([f"buffer_load_dwordx4 {v4(40+4*i)}, v1, s[8:11], s20 offen {wpol}\ns_add_u32 s20, s20, 6144" for i in range(16)], 0)
    A(f"s_lshl_b32 s26, s26, 1\ns_add_u32 s26, s26, {WS_MOD-4096}")
    A("s_waitcnt vmcnt(0)")
    unpack(24, [15], 1); silu(24, 32, 2)
    gemv_perm(40, 104, 8)
    A("s_branch L_gx")
    def dma(loads, w):
        if skipw: return
        for i, l in enumerate(loads):
            if w and i >= w: A(f"s_waitcnt vmcnt({w-1})")
            A(f"s_add_u32 m0, s23, {1024*i}")
            A(l)
    def wo_issue(lo, hi):
        srd(8, P_WO, 4096 * 1024)
        A("v_lshrrev_b32 v1, 3, v0\nv_lshlrev_b32 v1, 10, v1\nv_and_b32 v4, 7, v0\nv_lshl_add_u32 v1, v4, 4, v1")
        A(f"s_lshl_b32 s20, s4, 19\ns_lshl_b32 s21, s3, 17\ns_add_u32 s20, s20, s21\ns_lshl_b32 s21, s65, 7\ns_add_u32 s20, s20, s21\ns_add_u32 s20, s20, {8192*lo}")
        A(f"s_lshl_b32 s23, s3, 14\ns_add_u32 s23, s23, {L_WT+1024*lo}")
        dma([f"buffer_load_dwordx4 v1, s[8:11], s20 offen {wpol} lds\ns_add_u32 s20, s20, 8192" for i in range(lo, hi)], pace)
    def wo_finish(w):
        A(f"s_lshl_b32 s23, s3, 14\ns_add_u32 s23, s23, {L_WT}")
        A("v_bfe_u32 v1, v0, 2, 2\nv_lshlrev_b32 v1, 10, v1\nv_lshrrev_b32 v4, 4, v0\nv_lshl_add_u32 v1, v4, 12, v1\nv_and_b32 v4, 3, v0\nv_lshl_add_u32 v1, v4, 3, v1\nv_add_u32 v1, s23, v1")
        A(f"s_waitcnt vmcnt({w})")
        k = 0
        for c in range(4):
            for nt in range(4):
                for hi in range(2):
                    A(f"ds_read_b64_tr_b16 {v2(104+16*c+4*nt+2*hi)}, v1 offset:{(c+4*hi)*128+nt*32}")
                    k += 1
                    if k >= 12 and k % 4 == 0: A("s_waitcnt lgkmcnt(8)")
        A("s_waitcnt lgkmcnt(0)")
    A("L_wb:")
    if xl:
        A("s_cmp_lg_u32 s3, 0\ns_cbranch_scc1 L_wb1")
        A(f"s_getreg_b32 s20, hwreg(HW_REG_XCC_ID, 0, 4)\nv_mov_b32 v4, s20\nv_mov_b32 v5, s6\ns_lshl_b32 s20, s4, 7\ns_lshl_b32 s21, s65, 3\ns_add_u32 s20, s20, s21\ns_add_u32 s20, s20, {WS_XB}\nv_mov_b32 v6, s20")
        A(f"s_mov_b64 exec, 1\nglobal_store_dwordx2 v6, v[4:5], {WS} sc1\ns_mov_b64 exec, -1\ns_nop 0")
        A("L_wb1:")
    if not bdefer: wo_issue(0, 16); wo_finish(0)
    elif bearly: wo_issue(0, bearly)
    A("L_qpoll:")
    if nosvc:
        A(f"v_mov_b32 v10, 0\nv_mov_b32 v5, 1\nds_write_b32 v10, v5 offset:{L_FQ}\ns_mov_b64 exec, 1\nds_add_u32 v10, v5 offset:{L_CS}")
        end_wave()
    A("v_mov_b32 v10, 0\nv_mov_b32 v23, 0\nv_mov_b32 v35, 64")
    A("s_cmp_lg_u32 s3, 1\ns_cbranch_scc1 L_np")
    A(f"s_lshl_b32 s21, s4, 11\ns_add_u32 s21, s21, {WS_Q}\nv_add_u32 v14, s21, v2")
    lspin("sk", L_FK, 1, 10, 11, 4)
    def ldq():
        if qloc:
            A(f"ds_read_b32 v11, v10 offset:{L_FK}\ns_waitcnt lgkmcnt(0)\nv_readfirstlane_b32 s21, v11\ns_lshr_b32 s21, s21, 1\ns_and_b32 s21, s21, s7")
            if slowfb: A(f"s_cmp_lt_u32 s7, {spin-slowfb}")
            A(f"s_cselect_b32 s21, 0, {WS_QL-WS_Q}\nv_add_u32 v15, s21, v14")
        for i in range(2): A(f"global_load_dwordx4 {v4(16+4*i)}, v{15 if qloc else 14}, {WS} offset:{1024*i} sc1")
    poll("pq", ldq, lambda: chk_tags([17, 19, 21, 23], 4), qsleep)
    A("v_mov_b32 v17, v18\nv_mov_b32 v21, v22\nv_lshlrev_b32 v14, 3, v0\nv_mov_b32 v5, 1")
    A(f"ds_write_b64 v14, v[16:17] offset:{L_Q}\nds_write_b64 v14, v[20:21] offset:{L_Q+512}")
    A(f"ds_write_b32 v10, v5 offset:{L_FQ}")
    stamp(4)
    A("L_np:")
    if xit == 'np': end_wave()
    A("s_cmp_eq_u32 s3, 2\ns_cbranch_scc1 L_post")
    A("s_cmp_eq_u32 s66, 0\ns_cbranch_scc1 L_done")
    A(f"s_cmp_lg_u32 s66, {R_F}\ns_cbranch_scc1 L_ws")
    A("s_cmp_lg_u32 s3, 0\ns_cbranch_scc1 L_done")
    A("L_ws:")
    lspin("ss0", L_CS, 9, 10, 11, 16)
    A("s_branch L_pre")
    A("L_done:")
    end_wave()
    A("L_post:")
    A(f"s_lshl_b32 s20, s4, 15\ns_lshl_b32 s21, s5, 6\ns_add_u32 s20, s20, s21\ns_add_u32 s20, s20, {WS_A}")
    A("v_bfe_u32 v36, v0, 2, 2\nv_lshlrev_b32 v37, 13, v36\nv_lshrrev_b32 v15, 4, v0\nv_lshl_add_u32 v37, v15, 11, v37\nv_and_b32 v15, 3, v0\nv_lshl_add_u32 v37, v15, 4, v37\nv_add_u32 v37, s20, v37")
    for i in range(4): A(f"v_mov_b32 v{16+i}, -1")
    if xl:
        A(f"v_and_b32 v20, 7, v0\ns_lshl_b32 s20, s4, 7\ns_add_u32 s20, s20, {WS_XB}\nv_lshl_add_u32 v20, v20, 3, s20")
        lspin("sg", L_FK, 1, 10, 11, 8)
        poll("px", lambda: A(f"global_load_dwordx2 v[22:23], v20, {WS} sc1"), lambda: chk_tags([23], 21), 8)
        A("s_getreg_b32 s20, hwreg(HW_REG_XCC_ID, 0, 4)\nv_cmp_ne_u32 vcc, s20, v22\ns_cbranch_vccz L_ng")
        A(f"v_mov_b32 v5, 1\nds_write_b32 v10, v5 offset:{L_MK}")
    A(f"global_store_dwordx4 v37, v[16:19], {WS} sc1")
    A("L_ng:")
    if loc: A(f"v_add_u32 v39, {WS_AL-WS_A}, v37\nglobal_store_dwordx4 v39, v[16:19], {WS}")
    A("v_lshlrev_b32 v38, 3, v36\nv_mov_b32 v5, 1")
    A(f"s_lshl_b32 s20, s4, 11\ns_lshl_b32 s21, s5, 4\ns_add_u32 s20, s20, s21\ns_add_u32 s20, s20, {WS_ST}\nv_lshl_add_u32 v36, v36, 9, s20")
    A(f"s_waitcnt vmcnt(0)\ns_mov_b64 exec, 1\nds_add_u32 v10, v5 offset:{L_CS}\ns_mov_b64 exec, -1")
    lspin("ss", L_CS, 9, 10, 11, 8)
    stamp(1)
    for w in range(8): A(f"ds_read_b64 {v2(40+2*w)}, v38 offset:{L_ST+32*w}")
    A("s_waitcnt lgkmcnt(0)")
    A("v_max3_f32 v56, v40, v42, v44\nv_max3_f32 v56, v56, v46, v48\nv_max3_f32 v56, v56, v50, v52\nv_max_f32 v56, v56, v54")
    for w in range(8): A(f"v_sub_f32 v{28+w}, v{40+2*w}, v56")
    for w in range(8): A(f"v_exp_f32 v{28+w}, v{28+w}")
    A("v_mul_f32 v58, v28, v41")
    for w in range(1, 8): A(f"v_fmac_f32 v58, v{28+w}, v{41+2*w}")
    A("s_getreg_b32 s20, hwreg(HW_REG_XCC_ID, 0, 4)\ns_add_u32 s20, s20, s6\nv_mov_b32 v57, s6\nv_mov_b32 v59, s20")
    A("s_mov_b64 exec, 0x1111")
    A(f"global_store_dwordx4 v36, v[56:59], {WS} sc1")
    A("s_mov_b64 exec, -1")
    stamp(2)
    A(f"s_cmp_eq_u32 s66, 0\ns_cbranch_scc1 L_done\ns_cmp_eq_u32 s66, {R_F}\ns_cbranch_scc1 L_done")
    A("L_pre:")
    if xit == 'pre': end_wave()
    A(f"s_cmp_eq_u32 s66, {R_F}\ns_cbranch_scc1 L_tf")
    A(f"s_cmp_eq_u32 s66, {R_C}\ns_cbranch_scc1 L_tc")
    A(f"s_lshl_b32 s20, s4, 11\ns_lshl_b32 s21, s3, 9\ns_add_u32 s20, s20, s21\ns_add_u32 s20, s20, {WS_ST}")
    A("v_and_b32 v4, 31, v0\nv_lshl_add_u32 v5, v4, 4, s20")
    lspin("sb", L_CV, strig, 10, 11, 4)
    poll("ps", lambda: A(f"global_load_dwordx4 v[40:43], v5, {WS} sc1"), lambda: A("v_subrev_u32 v43, s6, v43\nv_xor_b32 v6, s6, v41\nv_lshrrev_b32 v7, 4, v43\nv_or_b32 v6, v6, v7\nv_cmp_ne_u32 vcc, 0, v6"), 8)
    A("s_getreg_b32 s20, hwreg(HW_REG_XCC_ID, 0, 4)\nv_cmp_eq_u32 vcc, s20, v43")
    A("s_and_b32 s28, vcc_lo, 0xffff\ns_mul_i32 s28, s28, 0x10001\ns_mov_b32 s29, s28\ns_lshr_b32 s30, vcc_lo, 16\ns_mul_i32 s30, s30, 0x10001\ns_mov_b32 s31, s30")
    A("v_mov_b32 v44, v40")
    inrow("v_max_f32", 44, ["row_ror:8", "row_ror:4", "row_ror:2", "row_ror:1"]); xrow("v_max_f32", 44, 45, 16)
    A("v_sub_f32 v40, v40, v44\nv_exp_f32 v40, v40\nv_mul_f32 v44, v40, v42")
    inrow("v_add_f32", 44, ["row_ror:8", "row_ror:4", "row_ror:2", "row_ror:1"]); xrow("v_add_f32", 44, 45, 16)
    A("v_rcp_f32 v44, v44\nv_mul_f32 v40, v40, v44")
    A("s_lshl_b32 s20, s3, 8\nv_lshl_add_u32 v4, v4, 2, s20\nv_lshrrev_b32 v5, 4, v0\nv_lshl_add_u32 v5, v5, 4, s20")
    A(f"ds_write_b32 v4, v40 offset:{L_X}\nds_read_b128 v[12:15], v5 offset:{L_X}\nds_read_b128 v[16:19], v5 offset:{L_X+64}")
    A("v_and_b32 v1, 15, v0\nv_lshrrev_b32 v4, 4, v0\nv_lshlrev_b32 v24, 4, v1\nv_lshl_add_u32 v22, v4, 14, v24\nv_lshlrev_b32 v1, 6, v1\nv_lshl_add_u32 v1, v4, 4, v1")
    A(f"s_lshl_b32 s20, s4, 15\ns_lshl_b32 s21, s3, 13\ns_add_u32 s20, s20, s21\ns_add_u32 s20, s20, {WS_A}\nv_add_u32 v1, s20, v1")
    A(f"v_add_u32 v5, {(WS_AL-WS_A) if loc else 0}, v1\nv_cndmask_b32 v6, v1, v5, s[28:29]\nv_cndmask_b32 v7, v1, v5, s[30:31]\nv_add_u32 v8, 4096, v6\nv_add_u32 v9, 4096, v7")
    A("s_lshl_b32 s20, s3, 8\nv_lshl_add_u32 v21, v0, 2, s20")
    A(f"s_lshl_b32 s20, s4, 11\ns_lshl_b32 s21, s67, 8\ns_add_u32 s20, s20, s21\ns_add_u32 s20, s20, {WS_B}\ns_lshl_b32 s21, s3, 16\ns_add_u32 s20, s20, s21\nv_add_u32 v22, s20, v22")
    A("s_waitcnt lgkmcnt(0)")
    stamp(5)
    AR = lambda c, s_: 40 + 16 * s_ + 4 * c
    D = lambda s_, nt: 72 + 16 * s_ + 4 * nt
    def lda(s_):
        for c in range(4): A(f"global_load_dwordx4 {v4(AR(c,s_))}, v{6+s_+(0 if c<2 else 2)}, {WS} offset:{2048*(c&1)+1024*s_} {lpol}")
    def mm(s_, other_done):
        for c in range(4):
            for nt in range(4):
                d = D(s_, nt)
                A(f"v_mfma_f32_16x16x32_bf16 {v4(d)}, {v4(AR(c,s_))}, {v4(104+16*c+4*nt)}, {'0' if c==0 else v4(d)}")
        wr = 12 + 4 * s_
        for nt in range(4):
            d = D(s_, nt); o = D(1 - s_, nt); t = D(0, nt) if other_done else d
            if other_done: A(f"v_pk_fma_f32 {v2(o)}, {v2(d)}, {v2(wr)}, {v2(o)}\nv_pk_fma_f32 {v2(t)}, {v2(d+2)}, {v2(wr+2)}, {v2(o)}")
            else: A(f"v_pk_mul_f32 {v2(d)}, {v2(d)}, {v2(wr)}\nv_pk_fma_f32 {v2(d)}, {v2(d+2)}, {v2(wr+2)}, {v2(d)}")
    if dry:
        A("s_mov_b64 s[80:81], 0\ns_mov_b64 s[32:33], 0\ns_mov_b64 s[34:35], 0\ns_mov_b32 s84, 0\ns_mov_b64 exec, 0\ns_branch L_pb0")
        A("L_bdr:\ns_cmp_eq_u32 s84, 0\ns_mov_b32 s84, 1\ns_cbranch_scc1 L_pb1\ns_mov_b64 exec, -1")
    A("s_mov_b64 s[80:81], -1")
    if bdefer:
        if bdefer <= 8: lspin("sd", L_CV, bdefer, 10, 11, 1)
        else: lspin("sd", L_FP, 1, 10, 11, 1)
        A("s_setprio 1"); wo_issue(bearly, 16); lda(0); lda(1); A("s_setprio 3"); wo_finish(8)
        stamp(4)
        A(f"s_mov_b32 s7, {spin}\ns_branch L_pa2")
    A(f"s_mov_b32 s7, {spin}\ns_mov_b64 s[32:33], -1\ns_mov_b64 s[34:35], -1")
    A("L_pa:")
    A("s_mov_b64 exec, s[32:33]"); lda(0)
    A("s_mov_b64 exec, s[34:35]"); lda(1)
    A("s_mov_b64 exec, -1")
    A("L_pa2:")
    A("s_waitcnt vmcnt(4)")
    chk_sent(range(40, 56), 23); A("s_mov_b64 s[32:33], vcc")
    A("s_waitcnt vmcnt(0)")
    chk_sent(range(56, 72), 23); A("s_mov_b64 s[34:35], vcc")
    A("s_cbranch_vccz L_pa1\ns_cmp_eq_u64 s[32:33], 0\ns_cbranch_scc1 L_pa0")
    if tsleep: A(f"s_sleep {tsleep}")
    if bhold:
        A("s_mov_b32 s85, s7"); lspin("sy", L_FO + 4 * (bhold - 1), 1, 10, 11, 2); A("s_mov_b32 s7, s85")
    A("s_sub_u32 s7, s7, 1\ns_cbranch_scc0 L_pa")
    for first in (0, 1):
        sec = 1 - first
        A(f"L_pa{first}:")
        mk = sp(32 + 2 * sec)
        A(f"s_cmp_eq_u64 {mk}, 0\ns_cbranch_scc1 L_pb{first}")
        A(f"s_mov_b64 exec, {mk}"); lda(sec); A("s_mov_b64 exec, -1")
        A(f"L_pb{first}:")
        mm(first, False)
        A(f"s_mov_b64 exec, {mk}\ns_cbranch_execz L_pd{first}")
        for _ in range(pd - 1): lda(sec)
        A(f"L_pc{first}:")
        A(f"s_waitcnt vmcnt({4*(pd-1)})")
        chk_sent(range(40 + 16 * sec, 56 + 16 * sec), 23)
        A(f"s_cbranch_vccz L_pd{first}\ns_mov_b64 exec, vcc")
        lda(sec)
        A(f"s_sub_u32 s7, s7, 1\ns_cbranch_scc0 L_pc{first}\ns_waitcnt vmcnt(0)")
        A(f"L_pd{first}:")
        A("s_mov_b64 exec, s[80:81]")
        stamp(6)
        mm(sec, True)
        if first == 0: A("s_branch L_pe")
    A("L_pe:\ns_nop 0")
    for nt in range(4): A(f"v_add_f32 v{D(0,nt)}, v{D(0,nt)}, v{D(0,nt)+1}")
    A("v_permlane32_swap_b32 v72, v80\nv_permlane32_swap_b32 v76, v84\nv_add_f32 v72, v72, v80\nv_add_f32 v76, v76, v84")
    A("v_permlane16_swap_b32 v72, v76\nv_add_f32 v72, v72, v76")
    A(f"ds_write_b32 v21, v72 offset:{L_RED}")
    A("s_waitcnt lgkmcnt(0)")
    if dry: A("s_cbranch_execz L_bnb")
    A("s_barrier")
    A(f"s_cmp_ge_u32 s3, {2 if R == 8 else 1}\ns_cbranch_scc1 L_done")
    A("L_bnb:")
    for w in range(4): A(f"ds_read_b128 {v4(88+4*w)}, v24 offset:{L_RED+256*w}")
    assert R in (4, 8)
    A("s_waitcnt lgkmcnt(2)\nv_pk_add_f32 v[88:89], v[88:89], v[92:93]\nv_pk_add_f32 v[90:91], v[90:91], v[94:95]")
    A("s_waitcnt lgkmcnt(0)\nv_pk_add_f32 v[96:97], v[96:97], v[100:101]\nv_pk_add_f32 v[98:99], v[98:99], v[102:103]")
    A("v_pk_add_f32 v[88:89], v[88:89], v[96:97]\nv_pk_add_f32 v[90:91], v[90:91], v[98:99]")
    if dry: A("s_cbranch_execz L_bdr")
    A(f"global_store_dwordx4 v22, v[88:91], {WS} sc1")
    stamp(7)
    end_wave()
    A("L_tc:")
    A("s_mov_b32 s26, s67")
    srd(8, P_W1, 512 * 3584); srd(12, P_W2, 1792 * 1024)
    A("v_lshrrev_b32 v23, 4, v0\nv_lshlrev_b32 v23, 4, v23")
    A("v_lshrrev_b32 v1, 2, v0\ns_mov_b32 s20, 3584\nv_mul_lo_u32 v1, v1, s20\nv_and_b32 v12, 3, v0\nv_lshl_add_u32 v1, v12, 4, v1")
    A(f"s_mul_i32 s20, s3, {128*3584}\ns_lshl_b32 s21, s26, 6\ns_add_u32 s20, s20, s21")
    A("v_lshlrev_b32 v18, 6, v23\nv_and_b32 v13, 15, v0\nv_lshl_add_u32 v18, v13, 4, v18")
    A("s_lshl_b32 s27, s26, 15\ns_lshl_b32 s21, s3, 8\ns_add_u32 s27, s27, s21")
    A(f"s_lshl_b32 s23, s3, 14\ns_add_u32 s23, s23, {L_WT}")
    dma([f"buffer_load_dwordx4 v1, s[8:11], s20 offen {w1pol} lds\ns_add_u32 s20, s20, {16*3584}" for i in range(8)], 0)
    def w2load():
        A("s_add_u32 s23, s23, 8192")
        dma([f"buffer_load_dwordx4 v18, s[12:15], s27 offen {wpol} lds\ns_add_u32 s27, s27, 4096" for i in range(8)], 0)
    A("v_lshrrev_b32 v12, 4, v0\nv_bfe_u32 v13, v0, 2, 2\nv_and_b32 v14, 3, v0\nv_lshl_add_u32 v14, v14, 3, s23")
    A("v_lshl_add_u32 v1, v12, 9, v14\nv_lshl_add_u32 v1, v13, 6, v1")
    A("v_lshl_add_u32 v19, v12, 10, v14\nv_lshl_add_u32 v19, v13, 8, v19")
    if not w2late: w2load()
    A("v_and_b32 v20, 31, v0\nv_lshlrev_b32 v20, 3, v20\nv_lshrrev_b32 v21, 5, v0\nv_lshl_add_u32 v20, v21, 2, v20")
    A("s_lshl_b32 s20, s3, 8\nv_add_u32 v20, s20, v20")
    A(f"global_load_dword v22, v20, {sp(P_X)}\nglobal_load_dwordx4 v[28:31], v2, {sp(P_X)}")
    A(f"v_lshlrev_b32 v21, 1, v20\nv_add_u32 v21, {WS_MOD}, v21\nv_add_u32 v24, 4096, v21")
    poll("pm", lambda: A(f"global_load_dwordx2 v[40:41], v21, {WS} sc1\nglobal_load_dwordx2 v[42:43], v21, {WS} offset:2048 sc1\nglobal_load_dwordx2 v[44:45], v24, {WS} sc1"),
         lambda: chk_tags([41, 43, 45], 46), 16)
    unpack(4, [22, 40, 44], 3)
    unpack(48, [28, 29, 30, 31], 4)
    A("v_pk_add_f32 v[48:49], v[48:49], v[50:51]\nv_pk_add_f32 v[52:53], v[52:53], v[54:55]\nv_pk_add_f32 v[48:49], v[48:49], v[52:53]\nv_add_f32 v48, v48, v49")
    wave_reduce("v_add_f32", 48, 49)
    A(f"v_mul_f32 v48, {f2x(1/512)}, v48\nv_sub_f32 v4, v4, v48\nv_sub_f32 v5, v5, v48")
    A("v_add_f32 v8, 1.0, v8\nv_add_f32 v9, 1.0, v9\nv_cvt_pk_bf16_f32 v44, v8, v9")
    unpack(8, [44], 1)
    A(f"ds_write_b32 v20, v44 offset:{L_U}\nds_write_b32 v20, v42 offset:{L_U+1024}")
    A("v_add_u32 v21, s20, v23\nv_and_b32 v22, 1, v0\nv_lshl_add_u32 v22, v22, 10, v21")
    for c in range(4): A(f"ds_read_b128 {v4(48+4*c)}, v22 offset:{L_U+64*c}")
    for c in range(4):
        for mt in range(2):
            for hi in range(2):
                A(f"ds_read_b64_tr_b16 {v2(104+8*c+4*mt+2*hi)}, v1 offset:{(32*c+4*hi)*64+mt*32}")
        if c & 1: A("s_waitcnt lgkmcnt(0)")
    for c in range(4):
        for mt in range(2):
            A(f"v_mfma_f32_16x16x32_bf16 {v4(24+4*mt)}, {v4(104+8*c+4*mt)}, {v4(48+4*c)}, {'0' if c==0 else v4(24+4*mt)}")
    A("s_mov_b32 exec_lo, 0x00030003\ns_mov_b32 exec_hi, 0x00030003")
    A(f"ds_write_b128 v22, v[24:27] offset:{L_GS}\nds_write_b128 v22, v[28:31] offset:{L_GS+64}")
    A("s_mov_b64 exec, 1\nv_mov_b32 v33, 1")
    A(f"ds_add_u32 v10, v33 offset:{L_CP}")
    A("s_mov_b64 exec, -1")
    A("v_and_b32 v1, 31, v0\nv_lshlrev_b32 v1, 4, v1\nv_lshrrev_b32 v16, 5, v0\nv_lshl_add_u32 v1, v16, 11, v1")
    A(f"s_and_b32 s21, {'s4' if R == 8 else 's26'}, {R-1}\ns_lshl_b32 s21, s21, 14\ns_lshl_b32 s20, s3, 9\ns_add_u32 s20, s20, s21\ns_add_u32 s20, s20, {WS_B}\nv_add_u32 v1, s20, v1")
    A("v_add_u32 v12, 4096, v1\nv_add_u32 v13, 8192, v1\nv_add_u32 v14, 12288, v1")
    A(f"s_lshl_b32 s20, s3, 8\nv_lshl_add_u32 v22, v16, 2, s20")
    A("v_and_b32 v33, 3, v0\nv_lshlrev_b32 v33, 8, v33\nv_bfe_u32 v32, v0, 3, 1\nv_lshl_add_u32 v32, v32, 6, v33\nv_add_u32 v32, v32, v23")
    A(f"s_mov_b32 s22, {f2x(1/512)}\nv_mov_b32 v34, {f2x(1e-5)}")
    lspin("sp", L_CP, 4, 10, 11, 4, lambda: A(f"ds_read_b128 v[24:27], v32 offset:{L_GS}\nds_read_b128 v[28:31], v32 offset:{L_GS+1024}"))
    for qp in ("[1,0,3,2]", "[2,3,0,1]"):
        for i in range(8): A(f"v_add_f32_dpp v{24+i}, v{24+i}, v{24+i} quad_perm:{qp} {DPPF}")
    if dry:
        A("s_mov_b64 s[80:81], 0\ns_mov_b64 s[82:83], 0\ns_mov_b64 exec, 0\ns_branch L_pbd\nL_cdr:\ns_mov_b64 exec, -1")
    A("s_mov_b64 s[80:81], -1\ns_mov_b32 s82, 0x00010001\ns_mov_b32 s83, 0x00010001")
    stamp(4)
    lspin("sv", L_FP, 1, 10, 11, 2)
    if w2late: w2load()
    cs = 13 if cpad else 12
    A(f"s_lshl_b32 s20, s3, {cs+3}\ns_lshl_b32 s21, s26, {cs-6}\ns_add_u32 s20, s20, s21\ns_add_u32 s20, s20, {WS_C}")
    A(f"v_bfe_u32 v35, v0, 2, 3\nv_lshlrev_b32 v35, {cs}, v35\nv_and_b32 v36, 3, v0\nv_lshl_add_u32 v35, v36, 4, v35\nv_add_u32 v35, s20, v35")
    A("s_waitcnt vmcnt(0)")
    for tau in range(8):
        for hi in range(2):
            A(f"ds_read_b64_tr_b16 {v2(136+4*tau+2*hi)}, v19 offset:{8192+hi*4096+tau*32}")
        if tau % 4 == 3: A("s_waitcnt lgkmcnt(0)")
    stamp(5)
    G = 40; Hh = 88
    def gather4(name, base, addr, tmp, sleep):
        A(f"s_mov_b32 s7, {spin}")
        for _ in range(pd):
            for i in range(4): A(f"global_load_dwordx4 {v4(base+4*i)}, {addr(i)} sc1")
        A(f"L_{name}t:")
        A(f"s_waitcnt vmcnt({4*(pd-1)})")
        for i in range(4): A(f"v_max3_u32 v{tmp+i}, v{base+4*i}, v{base+4*i+1}, v{base+4*i+2}")
        for i in range(4): A(f"v_max_u32 v{tmp+i}, v{tmp+i}, v{base+4*i+3}")
        A(f"v_max3_u32 v{tmp+4}, v{tmp}, v{tmp+1}, v{tmp+2}\nv_max_u32 v{tmp+4}, v{tmp+4}, v{tmp+3}\nv_cmp_eq_u32 vcc, -1, v{tmp+4}\ns_cbranch_vccz L_{name}d")
        for i in range(4): A(f"v_cmp_eq_u32 {sp(28+2*i)}, -1, v{tmp+i}")
        if sleep: A(f"s_sleep {sleep}")
        for i in range(4):
            A(f"s_or_b64 exec, {sp(28+2*i)}, 1\nglobal_load_dwordx4 {v4(base+4*i)}, {addr(i)} sc1")
        A(f"s_mov_b64 exec, -1\ns_sub_u32 s7, s7, 1\ns_cbranch_scc0 L_{name}t")
        A(f"L_{name}d:")
    gather4("pb", Hh, lambda i: f"v{1 if i==0 else 11+i}, {WS}", 56, csleep)
    stamp(6)
    A(f"v_pk_add_f32 {v2(G)}, {v2(Hh)}, {v2(Hh+4)}\nv_pk_add_f32 {v2(G+2)}, {v2(Hh+2)}, {v2(Hh+6)}\nv_pk_add_f32 {v2(G+8)}, {v2(Hh+8)}, {v2(Hh+12)}\nv_pk_add_f32 {v2(G+10)}, {v2(Hh+10)}, {v2(Hh+14)}")
    A(f"v_pk_add_f32 {v2(G)}, {v2(G)}, {v2(G+8)}\nv_pk_add_f32 {v2(G+2)}, {v2(G+2)}, {v2(G+10)}")
    A(f"v_permlane32_swap_b32 v{G}, v{G+2}\nv_permlane32_swap_b32 v{G+1}, v{G+3}")
    A(f"v_pk_add_f32 {v2(G)}, {v2(G)}, {v2(G+2)}")
    A(f"v_pk_fma_f32 v[4:5], {v2(G)}, v[6:7], v[4:5]")
    A("v_pk_mul_f32 v[6:7], v[4:5], v[8:9]\nv_cvt_pk_bf16_f32 v6, v6, v7")
    A(f"ds_write_b32 v20, v6 offset:{L_U}")
    for c in range(4): A(f"ds_read_b128 {v4(44+4*c)}, v21 offset:{L_U+64*c}")
    A("v_add_f32 v16, v4, v5\nv_mul_f32 v17, v4, v4\nv_fmac_f32 v17, v5, v5")
    A("v_permlane32_swap_b32 v16, v17\nv_add_f32 v16, v16, v17")
    xrow("v_add_f32", 16, 17, 16)
    steps = ["row_ror:8", "row_ror:4", "row_ror:2", "row_ror:1"]
    for c in range(4):
        A(f"s_waitcnt lgkmcnt({3-c})")
        for mt in range(2):
            A(f"v_mfma_f32_16x16x32_bf16 {v4(60+4*mt)}, {v4(104+8*c+4*mt)}, {v4(44+4*c)}, {'0' if c==0 else v4(60+4*mt)}")
        inrow("v_add_f32", 16, [steps[c]])
    A("s_mov_b64 exec, s[82:83]")
    A(f"ds_write_b32 v22, v16 offset:{L_RED+128}")
    A(f"ds_write_b128 v21, v[60:63] offset:{L_RED}\nds_write_b128 v21, v[64:67] offset:{L_RED+64}")
    A("s_mov_b64 exec, s[80:81]")
    A("s_waitcnt lgkmcnt(0)")
    if dry: A("s_cbranch_execz L_cnb")
    A("s_barrier\nL_cnb:")
    A(f"ds_read_b64 v[12:13], v33 offset:{L_RED+128}\nds_read_b128 v[40:43], v32 offset:{L_RED}")
    A("s_waitcnt lgkmcnt(0)")
    for qp in ("[1,0,3,2]", "[2,3,0,1]"):
        for r in (12, 13, 40, 41, 42, 43): A(f"v_add_f32_dpp v{r}, v{r}, v{r} quad_perm:{qp} {DPPF}")
    A("v_mul_f32 v12, s22, v12\nv_fma_f32 v14, v13, s22, v34\nv_fma_f32 v14, -v12, v12, v14\nv_max_f32 v14, v14, v34\nv_rsq_f32 v14, v14")
    for q in range(2): A(f"v_pk_fma_f32 {v2(40+2*q)}, {v2(24+2*q)}, v[12:13], {v2(40+2*q)} op_sel_hi:[1,0,1] neg_lo:[0,1,0] neg_hi:[0,1,0]")
    for q in range(2): A(f"v_pk_fma_f32 {v2(40+2*q)}, {v2(40+2*q)}, v[14:15], {v2(28+2*q)} op_sel_hi:[1,0,1]")
    for q in range(2): A(f"v_cvt_pk_bf16_f32 v{48+q}, v{40+2*q}, v{41+2*q}")
    for q in range(2): A(f"v_pk_max_i16 v{48+q}, v{48+q}, 0")
    for q in range(2): A(f"v_mov_b32_dpp v{50+q}, v{48+q} row_shl:8 {DPPF} bound_ctrl:0")
    for tau in range(8): A(f"v_mfma_f32_16x16x32_bf16 {v4(56+4*tau)}, v[48:51], {v4(136+4*tau)}, 0")
    for tau in range(1, 8):
        A(f"v_mov_b32_dpp v{56+(tau>>1)}, v{56+4*tau} quad_perm:[0,1,2,3] row_mask:{1<<(tau&1):#x} bank_mask:0xf")
    if dry: A("s_cbranch_execz L_cdr")
    A("s_mov_b32 exec_hi, 0")
    A(f"global_store_dwordx4 v35, v[56:59], {WS} sc1")
    stamp(7)
    end_wave()
    A("L_tf:")
    A("s_mov_b32 s26, s67\ns_lshr_b32 s20, s26, 3\ns_lshl_b32 s20, s20, 7\ns_and_b32 s21, s26, 7\ns_lshl_b32 s21, s21, 2\ns_add_u32 s20, s20, s21")
    A("v_and_b32 v4, 3, v0\nv_lshrrev_b32 v5, 4, v0\nv_lshl_add_u32 v4, v5, 5, v4\nv_add_u32 v4, s20, v4\nv_lshlrev_b32 v5, 1, v4")
    A(f"global_load_ushort v8, v5, {sp(P_X)}")
    A(f"v_lshrrev_b32 v6, 1, v4\nv_lshlrev_b32 v6, 3, v6\nv_add_u32 v6, {WS_MOD}, v6\nv_add_u32 v7, 6144, v6")
    poll("pg", lambda: A(f"global_load_dwordx2 v[12:13], v6, {WS} sc1\nglobal_load_dwordx2 v[14:15], v7, {WS} sc1"),
         lambda: chk_tags([13, 15], 16), 16)
    A("v_lshlrev_b32 v8, 16, v8")
    A("v_and_b32 v16, 1, v4\nv_cmp_eq_u32 vcc, 0, v16")
    A("v_lshlrev_b32 v16, 16, v12\nv_and_b32 v17, 0xffff0000, v12\nv_cndmask_b32 v9, v17, v16, vcc")
    A("v_lshlrev_b32 v16, 16, v14\nv_and_b32 v17, 0xffff0000, v14\nv_cndmask_b32 v12, v17, v16, vcc")
    A(f"v_bfe_u32 v6, v0, 2, 2\nv_lshlrev_b32 v6, 12, v6\nv_lshl_add_u32 v6, v4, 2, v6\nv_add_u32 v6, {WS_B}, v6")
    if R == 8: A("s_lshl_b32 s20, s4, 14\nv_add_u32 v6, s20, v6")
    if cpad: A(f"s_lshl_b32 s20, s26, 13\ns_add_u32 s20, s20, {WS_C}\nv_lshrrev_b32 v7, 2, v0\nv_lshl_add_u32 v7, v7, 6, v2\nv_add_u32 v7, s20, v7\nv_add_u32 v32, 4096, v7")
    else: A(f"s_lshl_b32 s20, s26, 12\ns_add_u32 s20, s20, {WS_C}\nv_add_u32 v7, s20, v2")
    if dry: A("s_mov_b64 exec, 0\ns_branch L_fd\nL_fdr:\ns_mov_b64 exec, -1")
    lspin("sf", L_FP, 1, 10, 11, 4)
    poll("pxb", lambda: A(f"global_load_dword v13, v6, {WS} sc1\nglobal_load_dword v14, v6, {WS} offset:2048 sc1"), lambda: chk_sent([13, 14], 15), xsleep)
    A("v_add_f32 v13, v13, v14")
    inrow("v_add_f32", 13, ["row_ror:8", "row_ror:4"])
    A("v_fma_f32 v8, v9, v13, v8")
    stamp(6)
    if fdelay: A(f"s_sleep {fdelay}")
    gather4("pc", 40, lambda i: f"v{(7 if i<2 else 32) if cpad else 7}, {WS} offset:{2048*(i&1) if cpad else 1024*i}", 56, fsleep)
    A("L_fd:")
    stamp(7)
    A("v_pk_add_f32 v[16:17], v[40:41], v[44:45]\nv_pk_add_f32 v[18:19], v[42:43], v[46:47]\nv_pk_add_f32 v[24:25], v[48:49], v[52:53]\nv_pk_add_f32 v[26:27], v[50:51], v[54:55]")
    A("v_pk_add_f32 v[16:17], v[16:17], v[24:25]\nv_pk_add_f32 v[18:19], v[18:19], v[26:27]")
    A("v_permlane32_swap_b32 v16, v18\nv_permlane32_swap_b32 v17, v19\nv_pk_add_f32 v[16:17], v[16:17], v[18:19]")
    A("v_permlane16_swap_b32 v16, v17\nv_add_f32 v16, v16, v17")
    inrow("v_add_f32", 16, ["row_ror:8", "row_ror:4"])
    A("v_fma_f32 v16, v12, v16, v8\nv_cvt_pk_bf16_f32 v16, v16, v16")
    if dry: A("s_cbranch_execz L_fdr")
    A("s_mov_b32 exec_lo, 0x000f000f\ns_mov_b32 exec_hi, 0x000f000f")
    A(f"global_store_short v5, v16, {sp(P_OUT)}")
    A("s_cmp_lg_u32 s26, 0\ns_cbranch_scc1 L_tfe")
    A("s_mov_b64 exec, 1\nv_mov_b32 v18, s6")
    A(f"global_store_dword v10, v18, {WS}")
    if fixend:
        A(f"L_fx:\ns_memrealtime s[98:99]\ns_waitcnt lgkmcnt(0)\ns_sub_u32 s98, s98, s96\ns_cmp_lt_u32 s98, {fixend}\ns_cbranch_scc1 L_fx")
    A("L_tfe:")
    stamp(4)
    end_wave()
    if stamps:
        A("L_stampout:")
        if stamps == 2:
            A("s_cmp_lg_u32 s2, 32\ns_cbranch_scc1 L_exit\ns_and_b32 s20, s3, 11\ns_cbranch_scc1 L_exit")
            A("s_mov_b64 exec, 0xff\ns_lshl_b32 s20, s3, 3\nv_lshl_add_u32 v1, v0, 2, s20")
            A(f"global_store_dword v1, v3, {sp(P_DBG)}\ns_endpgm")
        A("s_mov_b64 exec, 0xff")
        A("s_mul_i32 s20, s2, 12\ns_add_u32 s20, s20, s3\ns_lshl_b32 s20, s20, 5")
        A(f"s_add_u32 s20, s20, {WS_STAMP}")
        A("v_lshl_add_u32 v1, v0, 2, s20")
        A(f"global_store_dword v1, v3, {WS}")
    A("L_exit:\ns_endpgm")
    A(".p2align 6\n.type L_tab,@object\nL_tab:")
    for wg in range(256):
        r = roles[wg & 7, wg >> 3]; skip = T - r['n']
        assert skip < 8, (wg, r)
        A(f".long {(r['pre'] - skip + 16) | skip << 12 | r['e'] << 15 | r['ei'] << 18 | r['l'] << 23 | r['li'] << 25:#x}")
    A(f"L_endcode:\n.fill (24576-(L_endcode-{NAME}))/4, 4, 0xbf800000")
    A('.section .rodata,"a"\n.p2align 6')
    A(f".amdhsa_kernel {NAME}")
    for l in ["next_free_vgpr 168", "next_free_sgpr 102", "accum_offset 168", "group_segment_fixed_size 0", "kernarg_size 104",
              "user_sgpr_count 2", "user_sgpr_kernarg_segment_ptr 1", "system_sgpr_workgroup_id_x 1"]:
        A("  .amdhsa_" + l)
    A(".end_amdhsa_kernel")
    return A.finish()

if __name__ == "__main__":
    out = sys.argv[1]; kw = {}
    for a in sys.argv[2:]:
        k, v = a.split("=", 1)
        try: v = ast.literal_eval(v)
        except Exception: pass
        kw[k] = v
    open(out, "w").write(gen(**kw))
    import json
    roles, T = make_plan(kw.get('plan', 'A'), **{k: v for k, v in kw.items() if k in ('cH','cQ','cM','cB','cC','T')})
    json.dump([[roles[wg & 7, wg >> 3][k] for k in ('e', 'l', 'n')] for wg in range(256)], open(out + ".roles", "w"))
```

```python
import sys, struct, ast
from asmlib import Asm
NAME = "adaLN_cond__gqa_block_cached__dense_activation_relu__decode_kernel"
def f2x(f): return "0x%08x" % struct.unpack("<I", struct.pack("<f", f))[0]

WS_XB = 0x14000; WS_QL = 0x10000; WS_H = 0x1000; WS_MOD = 0x4000; WS_Q = 0x8000; WS_ST = 0xC000
WS_AL = 0x180000; WS_A = 0x100000; WS_B = 0x140000; WS_C = 0x200000
WS_STAMP = 0x8000000
L_CG = 0; L_FQ = 4; L_CS = 8; L_CT = 68; L_CP = 16; L_FK = 20; L_CV = 24; L_CW = 28; L_FO = 32; L_MK = 64; L_FP = 12
L_ST = 256; L_Q = 1024; L_GP = 2048; L_X = 3072; L_RED = 4096; L_U = 5120; L_GS = 8192
L_OP = 16384; L_WT = 32768; LDS_SIZE = 98304
DPPF = "row_mask:0xf bank_mask:0xf"
P_X, P_K, P_V, P_WQ, P_WO, P_BX, P_W1, P_W2, P_C, P_WM, P_OUT, P_DBG, P_WS = [36 + 2 * i for i in range(13)]
def sp(n): return f"s[{n}:{n+1}]"
def v4(n): return f"v[{n}:{n+3}]"
def v2(n): return f"v[{n}:{n+1}]"
WS = sp(P_WS)

E_H, E_Q, E_M, E_B = 1, 2, 3, 4
R_B, R_C, R_F = 1, 2, 3
def make_plan(plan, **pk):
    P = dict(PLANS[plan]); P.update(pk)
    roles = {(x, a): dict(e=0, ei=0, l=0, li=0) for x in range(8) for a in range(32)}
    hi = mi = ci = fi = 0
    for x in range(8):
        a = 0
        for _ in range(P['H'][x]): roles[x, a].update(e=E_H, ei=hi); hi += 1; a += 1
        for c in range(8):
            roles[x, a].update(e=E_Q, ei=c)
            if (x & 1 == P['Fx'] if 'Fx' in P else c in (0, 1, 4, 5)): roles[x, a].update(l=R_F, li=fi); fi += 1
            a += 1
        for c in range(8): roles[x, a].update(e=E_B, ei=c, l=R_B, li=c); a += 1
        for _ in range(P['M'][x]): roles[x, a].update(e=E_M, ei=mi); mi += 1; a += 1
        assert a <= 32
        cand = [b for b in range(31, -1, -1) if roles[x, b]['e'] == 0] + [b for b in range(32) if roles[x, b]['e'] == E_H] + [b for b in range(32) if roles[x, b]['e'] == E_M]
        for b in cand[:P['C'][x]]: roles[x, b].update(l=R_C, li=ci); ci += 1
    assert (hi, mi, ci, fi) == (32, 32, 56, 32), (hi, mi, ci, fi)
    for x in range(8):
        cost = []
        for a in range(32):
            r = roles[x, a]
            c = {0: 0, E_H: P['cH'], E_Q: P['cQ'], E_M: P['cM'], E_B: P['cB']}[r['e']]
            cb = r['ei'] if r['e'] in (E_Q, E_B) else (r['ei'] >> 2)
            if r['e'] and cb == 3: c += P['c3'][r['e']]
            if r['l'] == R_C: c += P['cC']
            cost.append(c)
        n = [max(28, P['T'] - 7)] * 32
        for _ in range(1024 - sum(n)):
            b = min((a for a in range(32) if n[a] < P['T']), key=lambda a: (n[a] + cost[a], -a))
            n[b] += 1
        pre = 0
        for a in range(32):
            roles[x, a].update(n=n[a], pre=pre); pre += n[a] - 28
    T = max(r['n'] for r in roles.values()); T += T & 1
    return roles, T
base = dict(cH=2.0, cQ=3.6, cM=4.2, cB=3.6, cC=4.0, c3={E_H: 0.5, E_Q: 1.7, E_M: 1.5, E_B: 1.0}, T=34)
base2 = dict(cH=1.6, cQ=4.0, cM=4.5, cB=3.4, cC=5.3, c3={E_H: 0.7, E_Q: 2.3, E_M: 1.8, E_B: 2.4}, T=36)
PLANS = {
 'A': dict(base, H=[4]*8, M=[4]*8, C=[7]*8),
 'B': dict(base, H=[8,0,8,0,8,0,8,0], M=[8,0,8,0,8,0,8,0], C=[14,0,14,0,14,0,14,0]),
 'C': dict(base, H=[8,0,8,0,8,0,8,0], M=[8,0,8,0,8,0,8,0], C=[7]*8),
 'D': dict(base, H=[8,8,8,8,0,0,0,0], M=[8,0,8,0,8,0,8,0], C=[14,0,14,0,14,0,14,0]),
 'E': dict(base, H=[8,8,8,8,0,0,0,0], M=[8,0,8,0,8,0,8,0], C=[8,6,8,6,8,6,8,6]),
 'G': dict(base2, H=[8,0,8,0,8,0,8,0], M=[8,0,8,0,8,0,8,0], C=[7]*8),
 'H': dict(base2, H=[8,0,8,0,8,0,8,0], M=[8,0,8,0,8,0,8,0], C=[8,8,8,12,8,2,8,2]),
 'I': dict(base2, H=[8,0,8,8,4,0,4,0], M=[8,0,8,0,8,0,8,0], C=[8,8,8,8,8,4,8,4]),
 'J': dict(base2, H=[8,0,8,0,8,0,8,0], M=[8,0,8,0,8,0,8,0], C=[0,14,0,14,0,14,0,14]),
 'K': dict(base2, H=[8,0,8,0,8,0,8,0], M=[8,0,8,0,8,0,8,0], C=[4,10,4,10,4,10,4,10]),
 'L': dict(base2, H=[8,0,8,0,8,0,8,0], M=[8,0,8,0,8,0,8,0], C=[8,6,8,6,8,6,8,6]),
 'F': dict(base, H=[8,4,8,4,4,0,4,0], M=[8,0,8,0,8,0,8,0], C=[10,4,10,4,10,4,10,4]),
}

def gen(win=5, win2=6, wpol="nt", stamps=0, spin=200000, hsleep=4, qsleep=8, tsleep=1, pace=4, cpre=1, kprio=0, skipw=0, vmid=4, nopoll='', qtrig=22, R=4, cdefer=1, csleep=2, nH=33, nX=31, nL=34, loc=1, lpol='sc1', w1pol='nt', nocomp=0, nosvc=0, sprio=3, nopre=0, nocw=0, lmul=1, xit='', qloc=1, strig=1, qtrig2=38, kpol='nt', vpol='nt', slowfb=0, fixend=0, plan='A', hfirst=1, cpad=1, w2late=1, fsleep=1, dry=0, yprio=0, burst=0, bwin=8, det=1, rx=0, fl=0, w1early=1, nohp=0, ws1=0, ws2=0, bp=0, calm=0, ltab=1, st0=0, bhold=0, xl=1, bearly=0, pd=1, fdelay=0, xsleep=4, bdefer=0, hwait=0, **pk):
    A = Asm()
    roles, T = make_plan(plan, **pk)
    hdr = open("cdna_kernels/" + NAME[:-7] + ".s.ref").read().split("; Override")[0]
    A(hdr.rstrip())
    A(f"; @launch grid=(256,1,1) block=(768,1,1) lds={LDS_SIZE}")
    A('.amdgcn_target "amdgcn-amd-amdhsa--gfx950"')
    A(f".text\n.globl {NAME}\n.p2align 8\n.type {NAME},@function\n{NAME}:")
    def stamp(k):
        if stamps:
            A("s_memrealtime s[62:63]\ns_waitcnt lgkmcnt(0)")
            A(f"v_writelane_b32 v3, s62, {k}")
    def end_wave():
        if stamps:
            A("s_branch L_stampout")
        else:
            A("s_endpgm")
    def srd(d, p, size):
        A(f"s_mov_b32 s{d}, s{p}\ns_mov_b32 s{d+1}, s{p+1}\ns_mov_b32 s{d+2}, {size}\ns_mov_b32 s{d+3}, 0x20000")
    def poll(name, loads, check, sleep):
        if name in nopoll.split('+'): return
        top = A.label(name); done = A.label(name + "d")
        A(f"s_mov_b32 s7, {spin}")
        A(f"{top}:")
        loads()
        A("s_waitcnt vmcnt(0)")
        check()
        A(f"s_cbranch_vccz {done}")
        A("s_mov_b64 exec, vcc")
        if sleep: A(f"s_sleep {sleep}")
        A("s_sub_u32 s7, s7, 1")
        A(f"s_cbranch_scc0 {top}")
        A(f"{done}:")
        A("s_mov_b64 exec, -1")
    def lspin(name, off, n, vz, vt, sleep=1, extra=None):
        top = A.label(name); done = A.label(name + "d")
        A(f"s_mov_b32 s7, {spin*20}")
        A(f"{top}:")
        A(f"ds_read_b32 v{vt}, v{vz} offset:{off}")
        if extra: extra()
        A("s_waitcnt lgkmcnt(0)")
        A(f"v_cmp_gt_u32 vcc, {n}, v{vt}")
        A(f"s_cbranch_vccz {done}")
        if lmul > 1: sleep = min(127, max(sleep, 1) * lmul)
        if sleep: A(f"s_sleep {sleep}")
        A("s_sub_u32 s7, s7, 1")
        A(f"s_cbranch_scc0 {top}")
        A(f"{done}:")
    def chk_tags(regs, tmp):
        A(f"v_xor_b32 v{tmp}, s6, v{regs[0]}")
        for r in regs[1:]:
            A(f"v_xor_b32 v{tmp+1}, s6, v{r}")
            A(f"v_or_b32 v{tmp}, v{tmp}, v{tmp+1}")
        A(f"v_cmp_ne_u32 vcc, 0, v{tmp}")
    def chk_sent(regs, tmp):
        regs = list(regs)
        if len(regs) == 1:
            A(f"v_cmp_eq_u32 vcc, -1, v{regs[0]}"); return
        if len(regs) == 2:
            A(f"v_max_u32 v{tmp}, v{regs[0]}, v{regs[1]}"); rest = []
        else:
            A(f"v_max3_u32 v{tmp}, v{regs[0]}, v{regs[1]}, v{regs[2]}"); rest = regs[3:]
        while rest:
            if len(rest) == 1:
                A(f"v_max_u32 v{tmp}, v{tmp}, v{rest[0]}"); rest = []
            else:
                A(f"v_max3_u32 v{tmp}, v{tmp}, v{rest[0]}, v{rest[1]}"); rest = rest[2:]
        A(f"v_cmp_eq_u32 vcc, -1, v{tmp}")
    def xrow(op, v, tmp, which):
        A(f"v_mov_b32 v{tmp}, v{v}")
        A(f"v_permlane{which}_swap_b32 v{v}, v{tmp}")
        A(f"{op} v{v}, v{v}, v{tmp}")
    def inrow(op, v, steps):
        for s in steps:
            A(f"{op}_dpp v{v}, v{v}, v{v} {s} {DPPF}")
    def wave_reduce(op, v, tmp):
        inrow(op, v, ["row_ror:8", "row_ror:4", "row_ror:2", "row_ror:1"])
        xrow(op, v, tmp, 16); xrow(op, v, tmp, 32)
    def unpack(dst, src, n):
        for i in range(n):
            A(f"v_lshlrev_b32 v{dst+2*i}, 16, v{src[i]}")
            A(f"v_and_b32 v{dst+2*i+1}, 0xffff0000, v{src[i]}")
    def silu(x, t, n):
        A(f"s_mov_b32 s21, {f2x(-1.4426950408889634)}")
        for i in range(n): A(f"v_mul_f32 v{t+i}, s21, v{x+i}")
        for i in range(n): A(f"v_exp_f32 v{t+i}, v{t+i}")
        for i in range(n): A(f"v_add_f32 v{t+i}, 1.0, v{t+i}")
        for i in range(n): A(f"v_rcp_f32 v{t+i}, v{t+i}")
        for i in range(n): A(f"v_mul_f32 v{x+i}, v{x+i}, v{t+i}")
    def gemv_perm(W, T, npair):
        for u in range(npair):
            for w in range(4):
                a = W + 8 * u + w; b = W + 8 * u + 4 + w
                A(f"v_perm_b32 v{T+8*u+2*w}, v{b}, v{a}, s24")
                A(f"v_perm_b32 v{T+8*u+2*w+1}, v{b}, v{a}, s25")
    def gemv_dot(T, X, acc):
        for u in range(len(X)):
            for e in range(8):
                c = "0" if u == 0 else f"v{acc+e}"
                A(f"v_dot2_f32_bf16 v{acc+e}, v{T+8*u+e}, v{X[u]}, {c}")
    def mktag():
        A("s_waitcnt lgkmcnt(0)\ns_mul_i32 s6, s6, 0x9E3779B1\ns_add_u32 s6, s6, 0x7F4A7C15")
    def paced(loads, w):
        if skipw and (w or skipw > 1): return
        for i, l in enumerate(loads):
            if w and i >= w: A(f"s_waitcnt vmcnt({w-1})")
            A(l)

    if st0: A("s_memrealtime s[90:91]")
    A("s_cmp_ge_u32 s2, 256\ns_cbranch_scc1 L_exit")
    A("s_load_dwordx16 s[36:51], s[0:1], 0")
    rest_ld = "s_load_dwordx8 s[52:59], s[0:1], 64\ns_load_dwordx2 s[60:61], s[0:1], 96\ns_load_dword s68, s[32:33], s34"
    A("s_getpc_b64 s[30:31]\nL_pc:\ns_add_u32 s32, s30, L_tab-L_pc\ns_addc_u32 s33, s31, 0\ns_lshl_b32 s34, s2, 2")
    if not ltab: A(rest_ld)
    A("v_lshrrev_b32 v1, 6, v0\nv_and_b32 v0, 63, v0\nv_readfirstlane_b32 s3, v1")
    A("s_and_b32 s4, s2, 7\ns_lshr_b32 s5, s2, 3")
    if fixend: A("s_memrealtime s[96:97]")
    A("s_mov_b32 s24, 0x05040100\ns_mov_b32 s25, 0x07060302")
    A("v_lshlrev_b32 v2, 4, v0")
    if stamps:
        A("v_mov_b32 v3, 0")
        if not st0: stamp(0)
    A("s_cmp_lt_u32 s3, 4\ns_cbranch_scc1 L_service")
    STREAM_MARK = len(A.lines)
    A("L_service:")
    if ltab: A(rest_ld)
    A(f"s_setprio {sprio}")
    if cpre:
        A("s_lshl_b32 s20, s5, 2\ns_add_u32 s20, s20, s3\ns_sub_u32 s20, s20, 104\ns_cmp_ge_u32 s20, 24\ns_cbranch_scc1 L_ncp")
        A(f"s_sub_u32 s30, s30, L_pc-{NAME}\ns_subb_u32 s31, s31, 0")
        A("s_lshl_b32 s20, s20, 10\nv_add_u32 v14, s20, v2")
        A("global_load_dwordx4 v[164:167], v14, s[30:31]")
        A("L_ncp:")
    A("v_lshrrev_b32 v12, 3, v0\nv_and_b32 v13, 7, v0\nv_mov_b32 v16, 0\nv_mov_b32 v17, 0\nv_mov_b32 v18, 0\nv_mov_b32 v19, 0")
    A("s_mov_b64 exec, 0x1f\nds_write_b128 v2, v[16:19]\ns_mov_b64 exec, -1")
    A("s_waitcnt lgkmcnt(0)")
    A("s_bfe_u32 s64, s68, 0x3000f\ns_bfe_u32 s65, s68, 0x50012\ns_bfe_u32 s66, s68, 0x20017\ns_bfe_u32 s67, s68, 0x60019")
    A("s_lshr_b32 s69, s65, 2\ns_and_b32 s70, s65, 3")
    A(f"s_cmp_lg_u32 s64, {E_H}\ns_cbranch_scc1 L_nh")
    A("s_lshr_b32 s20, s70, 1\ns_lshl_b32 s20, s20, 8\ns_lshl_b32 s21, s3, 6\ns_add_u32 s20, s20, s21")
    A("v_lshl_add_u32 v14, v12, 3, s20")
    A("s_mov_b32 s21, 6144\nv_mul_lo_u32 v1, v14, s21\nv_lshl_add_u32 v1, v13, 4, v1\nv_lshlrev_b32 v14, 1, v14")
    A("s_and_b32 s20, s70, 1\ns_lshl_b32 s20, s20, 10\ns_lshl_b32 s21, s69, 7\ns_add_u32 s20, s20, s21")
    A("s_waitcnt lgkmcnt(0)")
    srd(8, P_WM, 512 * 6144)
    A(f"global_load_dwordx4 v[4:7], v14, {sp(P_C)}")
    for i in range(8):
        A(f"buffer_load_dwordx4 {v4(40+4*i)}, v1, s[8:11], s20 offen {wpol}")
        if i < 7: A("s_add_u32 s20, s20, 6144")
    A(f"s_load_dword s6, {WS}, 0")
    A("s_barrier")
    A("s_lshl_b32 s20, s65, 2\ns_add_u32 s20, s20, s3")
    if cpad: A(f"s_lshl_b32 s21, s20, 11\ns_add_u32 s21, s21, {WS_C}\nv_lshrrev_b32 v14, 2, v0\nv_lshl_add_u32 v14, v14, 6, v2\nv_add_u32 v14, s21, v14")
    else: A(f"s_lshl_b32 s21, s20, 10\ns_add_u32 s21, s21, {WS_C}\nv_add_u32 v14, s21, v2")
    A(f"s_mul_i32 s21, s20, {128*R}\ns_add_u32 s21, s21, {WS_B}\nv_add_u32 v15, s21, v2")
    A("s_cmp_eq_u32 s3, 3\ns_cselect_b32 exec_hi, 0, -1")
    for i in range(4): A(f"v_mov_b32 v{16+i}, -1")
    A("s_mov_b64 exec, -1")
    if nohp: A("s_mov_b64 exec, 1")
    A(f"global_store_dwordx4 v14, v[16:19], {WS} sc1")
    for i in range(4): A(f"v_mov_b32 v{20+i}, -1")
    if R < 8: A(f"s_mov_b32 exec_hi, 0\ns_mov_b32 exec_lo, {(1<<(8*R))-1:#x}")
    A(f"global_store_dwordx4 v15, v[20:23], {WS} sc1")
    A("s_mov_b64 exec, -1")
    A("s_waitcnt vmcnt(10)")
    unpack(24, [4, 5, 6, 7], 4); silu(24, 32, 8)
    for i in range(4): A(f"v_cvt_pk_bf16_f32 v{24+i}, v{24+2*i}, v{25+2*i}")
    mktag()
    A(f"s_and_b32 s26, s70, 1\ns_lshl_b32 s26, s26, 12\ns_lshr_b32 s21, s70, 1\ns_lshl_b32 s21, s21, 11\ns_add_u32 s26, s26, s21\ns_lshl_b32 s21, s69, 8\ns_add_u32 s26, s26, s21\ns_add_u32 s26, s26, {WS_H}")
    A("s_waitcnt vmcnt(2)")
    stamp(1)
    gemv_perm(40, 104, 4)
    gemv_dot(104, [24, 25, 26, 27], 32)
    A("L_gfin:")
    acc = 32
    for e in range(4): A(f"v_permlane32_swap_b32 v{acc+e}, v{acc+e+4}")
    for e in range(4): A(f"v_add_f32 v{acc+e}, v{acc+e}, v{acc+e+4}")
    for e in range(2): A(f"v_permlane16_swap_b32 v{acc+e}, v{acc+e+2}")
    for e in range(2): A(f"v_add_f32 v{acc+e}, v{acc+e}, v{acc+e+2}")
    for e in range(2): A(f"v_add_f32_dpp v{acc+e}, v{acc+e}, v{acc+e} row_ror:8 {DPPF}")
    A("v_lshrrev_b32 v14, 4, v0\nv_lshlrev_b32 v14, 3, v14\nv_lshl_add_u32 v14, v13, 5, v14\ns_lshl_b32 s21, s3, 8\nv_add_u32 v14, s21, v14")
    A(f"ds_write_b64 v14, v[32:33] offset:{L_GP}")
    A("v_mov_b32 v14, 0\nv_mov_b32 v15, 1")
    A("s_waitcnt vmcnt(0)")
    A("s_mov_b64 exec, 1")
    A(f"ds_add_rtn_u32 v15, v14, v15 offset:{L_CG}")
    A("s_mov_b64 exec, -1")
    A("v_lshlrev_b32 v14, 3, v0")
    A("s_waitcnt lgkmcnt(0)")
    A("v_readfirstlane_b32 s21, v15")
    A("s_cmp_lg_u32 s21, 3\ns_cbranch_scc1 L_gdone")
    A("s_mov_b32 exec_hi, 0")
    for w in range(4): A(f"ds_read_b64 {v2(32+2*w)}, v14 offset:{L_GP+256*w}")
    A("v_add_u32 v14, s26, v14")
    A("s_waitcnt lgkmcnt(0)")
    A("v_pk_add_f32 v[32:33], v[32:33], v[34:35]\nv_pk_add_f32 v[36:37], v[36:37], v[38:39]\nv_pk_add_f32 v[32:33], v[32:33], v[36:37]")
    A("v_cvt_pk_bf16_f32 v32, v32, v33\nv_mov_b32 v33, s6")
    if qloc:
        A(f"s_cmp_lg_u32 s64, {E_Q}\ns_cbranch_scc1 L_gnl")
        A(f"v_add_u32 v15, {WS_QL-WS_Q}, v14\nglobal_store_dwordx2 v15, v[32:33], {WS}")
        A("L_gnl:")
    A(f"global_store_dwordx2 v14, v[32:33], {WS} sc1")
    A("s_mov_b64 exec, -1")
    A("L_gdone:")
    stamp(3)
    A("s_branch L_qpoll")

    NM = T - 28; nmask = T - min(r['n'] for r in roles.values())
    NW = 39 - T
    S0 = len(A.lines)
    A("L_stream:")
    if kprio: A(f"s_setprio {kprio}")
    A("s_sub_u32 s21, s3, 4")
    if yprio == 1: A("s_cmp_lt_u32 s21, 4\ns_cbranch_scc1 L_yp\ns_setprio 1\nL_yp:")
    A("v_bfe_u32 v1, v0, 2, 2\nv_lshlrev_b32 v1, 8, v1\nv_lshrrev_b32 v4, 4, v0\nv_lshl_add_u32 v1, v4, 6, v1\nv_and_b32 v4, 3, v0\nv_lshl_add_u32 v1, v4, 4, v1")
    A(f"s_lshl_b32 s19, s4, 23\ns_mul_i32 s16, s5, {28*8192}\ns_add_u32 s16, s16, s19\ns_lshl_b32 s17, s21, 12\ns_add_u32 s16, s16, s17")
    A("s_mov_b32 s10, 0x4000000\ns_mov_b32 s11, 0x20000")
    hcnt = sum(PLANS[plan]['H'][x] << (4 * x) for x in range(8))
    A(f"s_lshl_b32 s17, s4, 2\ns_lshr_b32 s35, {hcnt:#x}, s17\ns_and_b32 s35, s35, {15 if hfirst else 0}")
    A("s_waitcnt lgkmcnt(0)")
    A(f"s_mov_b32 s8, s{P_K}\ns_mov_b32 s9, s{P_K+1}")
    A("s_cmp_ge_u32 s5, s35\ns_cbranch_scc1 L_s1\ns_barrier\nL_s1:")
    KR = lambda t: 168 - 4 * T + 4 * t
    nS = (T + 3) // 4; nP = (T + 7) // 8
    first_v = nS - 1 + nP + 1
    vslots = [12 + 4 * i for i in range(NW)] + [KR(i) for i in range(first_v, T)]
    VR = lambda t: vslots[t % len(vslots)]
    st = {"cur": None}
    mpos = [6 + (j * (T - 12)) // max(nmask, 1) for j in range(nmask)]
    rest = list(range(NM, NM + 6)) + list(range(nmask, NM)) + list(range(NM + 6, T))
    perm = []
    for t in range(T):
        if t in mpos: perm.append(mpos.index(t))
        else: perm.append(rest.pop(0))
    first_nm = min(t for t in range(T) if perm[t] < NM)
    assert first_nm >= win
    hist = []
    def wcount(w):
        c = 0
        for n_, m_ in enumerate(reversed(hist)):
            if not m_:
                if c == w - 1: return n_
                c += 1
        return None
    def ld(which, t):
        o = perm[t]
        hist.append(o < nmask)
        if o < NM:
            A(f"s_add_u32 s20, s17, {o*8192}"); st["cur"] = None; imm = 0
            if o < nmask: A(f"s_cmp_gt_u32 s18, {o}\ns_cselect_b32 s20, 0x4000000, s20")
        else:
            key = (o - NM) >> 2; imm = ((o - NM) & 3) * 1024
            if st["cur"] != key:
                A(f"s_add_u32 s20, s16, {key*32768}"); st["cur"] = key
        if which == "K": A(f"buffer_load_dwordx4 {v4(KR(t))}, v1, s[8:11], s20 offen offset:{imm} {kpol}")
        else: A(f"buffer_load_dwordx4 {v4(VR(t))}, v2, s[12:15], s20 offen offset:{imm} {vpol}")
    korder = list(range(T))
    seq = [("K", t) for t in korder] + [("V", t) for t in range(NW)]
    for i, (wh, t) in enumerate(seq):
        if i == win:
            if st0: A("s_memrealtime s[92:93]")
            if ltab: A(rest_ld)
            A("s_branch L_body")
            S1 = len(A.lines)
            A("L_body:")
            srd(12, P_V, 0x4000000)
            if ws1: A(f"s_cmp_lt_u32 s21, {ws1}\ns_cselect_b64 vcc, -1, 0")
            if st0: A("s_waitcnt vmcnt(3)\ns_memrealtime s[94:95]")
            A("s_cmp_lt_u32 s5, s35\ns_cbranch_scc1 L_s2\ns_barrier\nL_s2:\ns_waitcnt lgkmcnt(0)")
            A(f"s_and_b32 s17, s68, 0xfff\ns_bfe_u32 s18, s68, 0x3000c\ns_add_u32 s17, s17, {896-16}\ns_lshl_b32 s17, s17, 13\ns_add_u32 s17, s17, s19\ns_lshl_b32 s19, s21, 10\ns_add_u32 s17, s17, s19")
        if i == T and kprio: A("s_setprio 0")
        if wcount(win) is not None and perm[t] >= nmask:
            if ws1:
                lb = A.label("w"); A(f"s_cbranch_vccz {lb}\ns_waitcnt vmcnt({wcount(win-1)})\n{lb}:")
            A(f"s_waitcnt vmcnt({wcount(win)})")
        ld(wh, t)
        if i == qtrig: A(f"v_mov_b32 v8, 0\nv_mov_b32 v9, 1\ns_mov_b64 exec, 1\nds_max_u32 v8, v9 offset:{L_FK}\ns_mov_b64 exec, -1")
        if i == qtrig2 and qloc: A(f"v_mov_b32 v8, 0\nv_mov_b32 v9, 2\ns_mov_b64 exec, 1\nds_max_u32 v8, v9 offset:{L_FK}\ns_mov_b64 exec, -1")
    viss = NW
    A("v_and_b32 v8, 3, v0\nv_lshlrev_b32 v8, 8, v8\nv_lshrrev_b32 v9, 4, v0\nv_lshl_add_u32 v8, v9, 6, v8\nv_bfe_u32 v9, v0, 2, 2\nv_lshl_add_u32 v8, v9, 4, v8\nv_mov_b32 v9, 0")
    A(f"s_mov_b32 s22, {f2x(128**-0.5*1.4426950408889634)}")
    for t in range(nmask): A(f"s_cmp_gt_u32 s18, {t}\ns_cselect_b32 s{28+t}, 0xff800000, 0")
    stamp(1)
    lspin("sq", L_FQ, 1, 9, 10, 2, lambda: A(f"ds_read_b128 v[4:7], v8 offset:{L_Q}"))
    stamp(2)
    kl = {"landed": T + NW - win - 3}
    DR = lambda t: 8 if t == 0 else KR(t - 1)
    SR = lambda t: (8 + t) if t < 4 else KR((t >> 2) - 1) + (t & 3)
    def M(t):
        if t >= kl["landed"]:
            A(f"s_waitcnt vmcnt({len(hist)-1-t})"); kl["landed"] = t + 1
        A(f"v_mfma_f32_16x16x32_bf16 {v4(DR(t))}, {v4(KR(t))}, v[4:7], 0")
    def AB(t):
        d = DR(t)
        A(f"v_add_f32_dpp v{d}, v{d+1}, v{d} row_shl:4 {DPPF} bound_ctrl:0")
        A(f"v_add_f32_dpp v{d+2}, v{d+3}, v{d+2} row_shl:4 {DPPF} bound_ctrl:0")
    def S(t):
        d = DR(t)
        A(f"v_add_f32_dpp v{SR(t)}, v{d+2}, v{d} row_shl:8 {DPPF} bound_ctrl:0")
    mark0 = len(A.lines)
    if yprio == 2: A("s_cmp_lt_u32 s21, 4\ns_cbranch_scc1 L_yp\ns_setprio 1\nL_yp:")
    M(0); M(1); M(2)
    for t in range(T + 1):
        if t < T: AB(t)
        if t >= 1:
            S(t - 1)
            if vmid and t - 2 >= first_v and (t - 2 - first_v) % vmid == 0:
                ld("V", viss); viss += 1
        if t + 3 < T: M(t + 3)
    TM = KR(first_v - 1)
    Sl = [SR(t) for t in range(T)]
    for t in range(nmask): A(f"v_add_f32 v{Sl[mpos[t]]}, s{28+t}, v{Sl[mpos[t]]}")
    A(f"v_max3_f32 v{TM}, v{Sl[0]}, v{Sl[1]}, v{Sl[2]}")
    A(f"v_max3_f32 v{TM+1}, v{Sl[3]}, v{Sl[4]}, v{Sl[5]}")
    i = 6; k = 0
    while i < T:
        A(f"v_max3_f32 v{TM+k}, v{TM+k}, v{Sl[i]}, v{Sl[i+1]}"); i += 2; k ^= 1
    A(f"v_max_f32 v{TM}, v{TM}, v{TM+1}")
    xrow("v_max_f32", TM, TM + 1, 16); xrow("v_max_f32", TM, TM + 1, 32)
    A(f"v_mul_f32 v{TM}, s22, v{TM}")
    for t in range(T): A(f"v_fma_f32 v{Sl[t]}, v{Sl[t]}, s22, -v{TM}")
    for t in range(T): A(f"v_exp_f32 v{Sl[t]}, v{Sl[t]}")
    if vmid: ld("V", viss); viss += 1
    A(f"v_add_f32 v{TM+1}, v{Sl[0]}, v{Sl[1]}\nv_add_f32 v{TM+2}, v{Sl[2]}, v{Sl[3]}")
    for t in range(4, T): A(f"v_add_f32 v{TM+1+(t&1)}, v{TM+1+(t&1)}, v{Sl[t]}")
    A(f"v_add_f32 v{TM+1}, v{TM+1}, v{TM+2}")
    xrow("v_add_f32", TM + 1, TM + 2, 16); xrow("v_add_f32", TM + 1, TM + 2, 32)
    A(f"s_lshl_b32 s19, s21, 5\nv_lshl_add_u32 v{TM+2}, v0, 3, s19\nv_mov_b32 v4, 0\nv_mov_b32 v5, 1")
    A("s_mov_b64 exec, 0xf")
    A(f"ds_write_b64 v{TM+2}, {v2(TM)} offset:{L_ST}")
    A("s_mov_b64 exec, 1")
    A(f"ds_add_u32 v4, v5 offset:{L_CS}")
    A("s_mov_b64 exec, -1")
    PR = lambda u: KR(nS - 1 + u)
    rem = T % 8
    assert rem in (2, 4)
    for t in range(0, T - rem, 2): A(f"v_cvt_pk_bf16_f32 v{PR(t//8)+(t%8)//2}, v{Sl[t]}, v{Sl[t+1]}")
    if rem == 2: A(f"v_mov_b32 v{PR(nP-1)+1}, 0")
    A("s_waitcnt lgkmcnt(0)")
    stamp(3)
    ACC = [8] + [KR(i) for i in range(7)]
    TT = [TM, 4]
    def pv(u):
        n = min(8, T - 8 * u)
        if n < 8:
            tb = [VR(8 * u - 8 + j) for j in range(4)]
            for e in range(8):
                Tm = tb[e >> 1] + 2 * (e & 1)
                for p in range(n // 2):
                    a = VR(8 * u + 2 * p) + (e >> 1); b = VR(8 * u + 2 * p + 1) + (e >> 1)
                    A(f"v_perm_b32 v{Tm+p}, v{b}, v{a}, s{24+(e&1)}")
            for e in range(8):
                Tm = tb[e >> 1] + 2 * (e & 1)
                A(f"v_mfma_f32_16x16x16_bf16 {v4(ACC[e])}, {v2(Tm)}, {v2(PR(u))}, {v4(ACC[e])}")
            return
        for e in range(8):
            Tm = TT[e & 1]
            for p in range(n // 2):
                a = VR(8 * u + 2 * p) + (e >> 1); b = VR(8 * u + 2 * p + 1) + (e >> 1)
                A(f"v_perm_b32 v{Tm+p}, v{b}, v{a}, s{24+(e&1)}")
            c = "0" if u == 0 else v4(ACC[e])
            if n == 8: A(f"v_mfma_f32_16x16x32_bf16 {v4(ACC[e])}, {v4(Tm)}, {v4(PR(u))}, {c}")
            else: A(f"v_mfma_f32_16x16x16_bf16 {v4(ACC[e])}, {v2(Tm)}, {v2(PR(u))}, {c}")
    ns = len(vslots)
    if ws2: A(f"s_cmp_lt_u32 s21, {ws2}\ns_cselect_b64 vcc, -1, 0")
    while viss < min(win2, ns):
        ld("V", viss); viss += 1
    done_u = 0
    for L in range(T):
        last = (L % 8 == 7) or L == T - 1
        if L == T - 1:
            X = PR(0)
            A(f"s_waitcnt lgkmcnt(0)\nv_and_b32 v1, 3, v0\nv_lshlrev_b32 v2, 3, v1\nv_mov_b32 v{X+10}, 0\nv_mov_b32 v{X+11}, 1\ns_lshl_b32 s19, s21, 5\nv_add_u32 v{X+9}, s19, v2")
            def rd():
                for w in range(8): A(f"ds_read_b32 v{X+w}, v2 offset:{L_ST+32*w}")
                A(f"ds_read_b32 v{X+8}, v{X+9} offset:{L_ST}")
            lspin("sm", L_CS, 9, X + 10, X + 12, 1, rd)
            A(f"s_mov_b64 exec, 1\nds_add_rtn_u32 v{X+12}, v{X+10}, v{X+11} offset:{L_CT}\ns_mov_b64 exec, -1")
            A(f"v_max3_f32 v{X}, v{X}, v{X+1}, v{X+2}\nv_max3_f32 v{X+3}, v{X+3}, v{X+4}, v{X+5}\nv_max3_f32 v{X}, v{X}, v{X+6}, v{X+7}\nv_max_f32 v{X}, v{X}, v{X+3}")
            A(f"v_sub_f32 v{X}, v{X+8}, v{X}\nv_exp_f32 v{X}, v{X}")
            A(f"v_lshlrev_b32 v1, 6, v1\nv_lshrrev_b32 v2, 4, v0\nv_lshl_add_u32 v1, v2, 4, v1\nv_lshlrev_b32 v2, 4, v0")
            for e in range(8):
                for q in range(2): A(f"v_pk_mul_f32 {v2(ACC[e]+2*q)}, {v2(ACC[e]+2*q)}, {v2(X)} op_sel_hi:[1,0]")
            for t in range(T - rem, T, 2):
                A(f"v_pk_mul_f32 {v2(Sl[t])}, {v2(Sl[t])}, {v2(X)} op_sel_hi:[1,0]\nv_cvt_pk_bf16_f32 v{PR(t//8)+(t%8)//2}, v{Sl[t]}, v{Sl[t+1]}")
            if det: A(f"s_waitcnt lgkmcnt(0)\nv_readfirstlane_b32 s23, v{X+12}\ns_lshl_b32 s19, s21, 11\nv_add_u32 v1, s19, v1\ns_and_b32 s19, s21, 4\nv_mov_b32 v{X+9}, s19")
            else: A(f"s_waitcnt lgkmcnt(0)\nv_readfirstlane_b32 s23, v{X+12}\ns_lshl_b32 s19, s23, 11\nv_add_u32 v1, s19, v1\ns_lshl_b32 s19, s23, 2\nv_mov_b32 v{X+9}, s19")
        can = lambda: viss < T and sum(1 for j in range(L + 1, viss) if perm[j] >= nmask) < (bwin if L >= T - burst else win2) + (perm[viss] < nmask) and (viss < ns or done_u > (viss - ns) // 8)
        if can() and ws2 and viss - 2 - L >= 0:
            lb = A.label("w"); A(f"s_cbranch_vccz {lb}\ns_waitcnt vmcnt({viss-2-L})\n{lb}:")
        if can() or last:
            A(f"s_waitcnt vmcnt({viss-1-L})")
        while can():
            ld("V", viss); viss += 1
            if viss == T:
                A(f"v_mov_b32 v1, 0\nv_mov_b32 v2, 1\ns_mov_b64 exec, 1\nds_add_u32 v1, v2 offset:{L_CV}\ns_mov_b64 exec, -1")
        if last:
            if L == T - 1: stamp(4)
            pv(L // 8); done_u += 1
    assert viss == T
    if nocomp:
        keep = [l for l in A.lines[mark0:] if not l.startswith(("v_mfma", "v_perm_b32", "v_add_f32", "v_exp", "v_fma", "v_max", "v_cvt", "v_permlane"))]
        A.lines[mark0:] = keep
    A("s_mov_b32 exec_lo, 0x000f000f\ns_mov_b32 exec_hi, 0x000f000f")
    for e in range(8): A(f"ds_write_b128 v1, {v4(ACC[e])} offset:{L_OP+e*256}")
    X = PR(0)
    if det: A(f"s_mov_b64 exec, 1\nds_add_u32 v{X+9}, v{X+11} offset:{L_FO}")
    else: A(f"ds_write_b32 v{X+9}, v{X+11} offset:{L_FO}")
    A("s_mov_b64 exec, -1")
    if stamps: A("s_waitcnt lgkmcnt(0)")
    stamp(5)
    A("s_cmp_lg_u32 s23, 0\ns_cbranch_scc1 L_done")
    A("s_setprio 3")
    def a_addr(d, t):
        A(f"s_lshl_b32 s20, s4, 15\ns_lshl_b32 s19, s5, {7 if fl else 6}\ns_add_u32 s20, s20, s19\ns_add_u32 s20, s20, {WS_A}")
        A(f"v_bfe_u32 v{d}, v0, 2, 2\nv_lshlrev_b32 v{d}, 13, v{d}")
        if fl: A(f"v_lshrrev_b32 v{t}, 5, v0\nv_lshl_add_u32 v{d}, v{t}, 12, v{d}\nv_bfe_u32 v{t}, v0, 4, 1\nv_lshl_add_u32 v{d}, v{t}, 6, v{d}")
        else: A(f"v_lshrrev_b32 v{t}, 4, v0\nv_lshl_add_u32 v{d}, v{t}, 11, v{d}")
        A(f"v_and_b32 v{t}, 3, v0\nv_lshl_add_u32 v{d}, v{t}, 4, v{d}\nv_add_u32 v{d}, s20, v{d}")
    a_addr(36, 37)
    A(f"v_add_u32 v37, {WS_AL-WS_A}, v36\nv_mov_b32 v38, 0\nv_mov_b32 v39, 1")
    if xl: A(f"ds_read_b32 v29, v38 offset:{L_MK}\ns_waitcnt lgkmcnt(0)\nv_readfirstlane_b32 s26, v29")
    for hf in range(2 if det else 0):
        def rd8():
            for j in range(4): A(f"ds_read_b128 {v4(40+8*j)}, v2 offset:{L_OP+(4*hf+j)*2048}\nds_read_b128 {v4(44+8*j)}, v2 offset:{L_OP+(4*hf+j)*2048+1024}")
        lspin("so", L_FO + 4 * hf, 4, 38, 28, 1 - hf, rd8)
        for q in range(4): A(f"v_pk_add_f32 {v2(40+2*q)}, {v2(40+2*q)}, {v2(48+2*q)}")
        for q in range(4): A(f"v_pk_add_f32 {v2(56+2*q)}, {v2(56+2*q)}, {v2(64+2*q)}")
        for q in range(4): A(f"v_pk_add_f32 {v2((12 if hf == 0 else 40)+2*q)}, {v2(40+2*q)}, {v2(56+2*q)}")
        if hf:
            for q in range(4): A(f"v_pk_add_f32 {v2(12+2*q)}, {v2(12+2*q)}, {v2(40+2*q)}")
    for i in range(0 if det else 8):
        d = 12 if i == 0 else 20
        lspin("so", L_FO + 4 * i, 1, 38, 28, 1 if (calm and i < 6) else 0, lambda: A(f"ds_read_b128 {v4(d)}, v2 offset:{L_OP+i*2048}\nds_read_b128 {v4(d+4)}, v2 offset:{L_OP+i*2048+1024}"))
        if i:
            for q in range(4): A(f"v_pk_add_f32 {v2(12+2*q)}, {v2(12+2*q)}, {v2(20+2*q)}")
    for q in range(4): A(f"v_cvt_pk_bf16_f32 v{12+q}, v{12+2*q}, v{13+2*q}")
    if loc: A(f"global_store_dwordx4 v37, v[12:15], {WS}")
    if xl: A("s_cmp_eq_u32 s26, 0\ns_cbranch_scc1 L_ng2")
    A(f"global_store_dwordx4 v36, v[12:15], {WS} sc1")
    A("L_ng2:")
    A(f"ds_write_b32 v38, v39 offset:{L_FP}")
    stamp(6)
    end_wave()
    blk = A.lines[S0:S1]; del A.lines[S0:S1]; A.lines[STREAM_MARK:STREAM_MARK] = blk

    A("L_nh:")
    A(f"s_cmp_lg_u32 s64, {E_Q}\ns_cbranch_scc1 L_nq")
    A("v_lshlrev_b32 v1, 17, v12\nv_lshl_add_u32 v1, v13, 4, v1")
    A("s_lshl_b32 s20, s3, 20\ns_lshl_b32 s21, s4, 10\ns_add_u32 s20, s20, s21\ns_mov_b32 s26, s65\ns_lshl_b32 s21, s26, 7\ns_add_u32 s20, s20, s21")
    A("s_lshl_b32 s21, s3, 8\nv_lshl_add_u32 v14, v0, 2, s21")
    A("s_waitcnt lgkmcnt(0)")
    srd(8, P_WQ, 512 * 8192)
    A(f"global_load_dwordx4 v[8:11], v2, {sp(P_X)}\nglobal_load_dword v15, v14, {sp(P_X)}")
    for i in range(16):
        A(f"buffer_load_dwordx4 {v4(40+4*i)}, v1, s[8:11], s20 offen {wpol}")
        if i < 15: A("s_add_u32 s20, s20, 8192")
    A(f"s_load_dword s6, {WS}, 0")
    A("s_barrier")
    A(f"s_lshl_b32 s26, s26, 8\ns_lshl_b32 s21, s4, 11\ns_add_u32 s26, s26, s21\ns_add_u32 s26, s26, {WS_Q}")
    A("s_waitcnt vmcnt(16)")
    unpack(32, [8, 9, 10, 11], 4)
    A("v_add_f32 v4, v32, v33")
    for i in range(2, 8): A(f"v_add_f32 v4, v4, v{32+i}")
    wave_reduce("v_add_f32", 4, 5)
    A(f"v_mul_f32 v4, {f2x(1/512)}, v4")
    for i in range(8): A(f"v_sub_f32 v{32+i}, v{32+i}, v4")
    A("v_mul_f32 v6, v32, v32")
    for i in range(1, 8): A(f"v_fmac_f32 v6, v{32+i}, v{32+i}")
    wave_reduce("v_add_f32", 6, 5)
    A(f"v_mov_b32 v5, {f2x(1e-5)}\nv_fmac_f32 v5, {f2x(1/512)}, v6\nv_rsq_f32 v5, v5")
    unpack(8, [15], 1)
    A("v_sub_f32 v8, v8, v4\nv_sub_f32 v9, v9, v4\nv_mul_f32 v8, v8, v5\nv_mul_f32 v9, v9, v5")
    A(f"v_lshlrev_b32 v15, 1, v14\nv_add_u32 v15, {WS_H}, v15\nv_add_u32 v10, 4096, v15")
    mktag()
    A("s_waitcnt vmcnt(0)")
    stamp(1)
    gemv_perm(40, 104, 8)
    if hwait: A("v_mov_b32 v4, 0"); lspin("sh", L_FK, 1, 4, 5, 2)
    poll("ph", lambda: [A(f"global_load_dwordx2 {v2(16+2*k)}, v{15 if k<2 else 10}, {WS} offset:{2048*(k&1)} sc1") for k in range(4)],
         lambda: chk_tags([17, 19, 21, 23], 4), hsleep)
    stamp(2)
    unpack(24, [16, 18, 20, 22], 4)
    A("v_pk_add_f32 v[24:25], v[24:25], v[26:27]\nv_pk_add_f32 v[28:29], v[28:29], v[30:31]")
    A("v_add_f32 v28, 1.0, v28\nv_add_f32 v29, 1.0, v29\nv_pk_fma_f32 v[24:25], v[8:9], v[28:29], v[24:25]")
    A("L_gx:")
    A("v_cvt_pk_bf16_f32 v24, v24, v25")
    A(f"ds_write_b32 v14, v24 offset:{L_X}")
    A("s_lshl_b32 s21, s3, 8\nv_lshl_add_u32 v15, v12, 5, s21")
    A(f"ds_read_b128 v[24:27], v15 offset:{L_X}\nds_read_b128 v[28:31], v15 offset:{L_X+16}")
    A("s_waitcnt lgkmcnt(0)")
    gemv_dot(104, list(range(24, 32)), 32)
    A("s_branch L_gfin")

    A("L_nq:")
    A("s_waitcnt lgkmcnt(0)")
    A(f"s_load_dword s6, {WS}, 0")
    A("s_barrier")
    mktag()
    A("L_role:")
    A("s_cmp_eq_u32 s64, 0\ns_cbranch_scc1 L_qpoll")
    A(f"s_cmp_eq_u32 s64, {E_B}\ns_cbranch_scc1 L_wb")
    A("s_mov_b32 s21, 98304\nv_mul_lo_u32 v1, v12, s21\nv_lshl_add_u32 v1, v13, 4, v1")
    A(f"s_mul_i32 s20, s3, {128*6144}\ns_add_u32 s26, s70, 2\ns_lshl_b32 s26, s26, 10\ns_lshl_b32 s21, s69, 7\ns_add_u32 s26, s26, s21\ns_add_u32 s20, s20, s26")
    A("s_lshl_b32 s21, s3, 8\nv_lshl_add_u32 v14, v0, 2, s21")
    srd(8, P_WM, 512 * 6144)
    A(f"global_load_dword v15, v14, {sp(P_C)}")
    paced([f"buffer_load_dwordx4 {v4(40+4*i)}, v1, s[8:11], s20 offen {wpol}\ns_add_u32 s20, s20, 6144" for i in range(16)], 0)
    A(f"s_lshl_b32 s26, s26, 1\ns_add_u32 s26, s26, {WS_MOD-4096}")
    A("s_waitcnt vmcnt(0)")
    unpack(24, [15], 1); silu(24, 32, 2)
    gemv_perm(40, 104, 8)
    A("s_branch L_gx")
    def dma(loads, w):
        if skipw: return
        for i, l in enumerate(loads):
            if w and i >= w: A(f"s_waitcnt vmcnt({w-1})")
            A(f"s_add_u32 m0, s23, {1024*i}")
            A(l)
    def wo_issue(lo, hi):
        srd(8, P_WO, 4096 * 1024)
        A("v_lshrrev_b32 v1, 3, v0\nv_lshlrev_b32 v1, 10, v1\nv_and_b32 v4, 7, v0\nv_lshl_add_u32 v1, v4, 4, v1")
        A(f"s_lshl_b32 s20, s4, 19\ns_lshl_b32 s21, s3, 17\ns_add_u32 s20, s20, s21\ns_lshl_b32 s21, s65, 7\ns_add_u32 s20, s20, s21\ns_add_u32 s20, s20, {8192*lo}")
        A(f"s_lshl_b32 s23, s3, 14\ns_add_u32 s23, s23, {L_WT+1024*lo}")
        dma([f"buffer_load_dwordx4 v1, s[8:11], s20 offen {wpol} lds\ns_add_u32 s20, s20, 8192" for i in range(lo, hi)], pace)
    def wo_finish(w):
        A(f"s_lshl_b32 s23, s3, 14\ns_add_u32 s23, s23, {L_WT}")
        A("v_bfe_u32 v1, v0, 2, 2\nv_lshlrev_b32 v1, 10, v1\nv_lshrrev_b32 v4, 4, v0\nv_lshl_add_u32 v1, v4, 12, v1\nv_and_b32 v4, 3, v0\nv_lshl_add_u32 v1, v4, 3, v1\nv_add_u32 v1, s23, v1")
        A(f"s_waitcnt vmcnt({w})")
        k = 0
        for c in range(4):
            for nt in range(4):
                for hi in range(2):
                    A(f"ds_read_b64_tr_b16 {v2(104+16*c+4*nt+2*hi)}, v1 offset:{(c+4*hi)*128+nt*32}")
                    k += 1
                    if k >= 12 and k % 4 == 0: A("s_waitcnt lgkmcnt(8)")
        A("s_waitcnt lgkmcnt(0)")
    A("L_wb:")
    if xl:
        A("s_cmp_lg_u32 s3, 0\ns_cbranch_scc1 L_wb1")
        A(f"s_getreg_b32 s20, hwreg(HW_REG_XCC_ID, 0, 4)\nv_mov_b32 v4, s20\nv_mov_b32 v5, s6\ns_lshl_b32 s20, s4, 7\ns_lshl_b32 s21, s65, 3\ns_add_u32 s20, s20, s21\ns_add_u32 s20, s20, {WS_XB}\nv_mov_b32 v6, s20")
        A(f"s_mov_b64 exec, 1\nglobal_store_dwordx2 v6, v[4:5], {WS} sc1\ns_mov_b64 exec, -1\ns_nop 0")
        A("L_wb1:")
    if bp:
        A("s_cmp_eq_u32 s3, 1\ns_cbranch_scc1 L_qpoll\ns_cmp_eq_u32 s3, 2\ns_cbranch_scc1 L_qpoll")
        srd(8, P_WO, 4096 * 1024)
        A("v_lshrrev_b32 v1, 3, v0\nv_lshlrev_b32 v1, 10, v1\nv_and_b32 v4, 7, v0\nv_lshl_add_u32 v1, v4, 4, v1\ns_lshr_b32 s22, s3, 1")
        A(f"s_lshl_b32 s20, s4, 19\ns_lshl_b32 s21, s22, 18\ns_add_u32 s20, s20, s21\ns_lshl_b32 s21, s65, 7\ns_add_u32 s20, s20, s21")
        A(f"s_lshl_b32 s23, s22, 15\ns_add_u32 s23, s23, {L_WT}\ns_mov_b32 s22, 31")
        A(f"L_wbl:\ns_mov_b32 m0, s23\ns_waitcnt vmcnt({bp-1})\nbuffer_load_dwordx4 v1, s[8:11], s20 offen {wpol} lds\ns_add_u32 s20, s20, 8192\ns_add_u32 s23, s23, 1024\ns_sub_u32 s22, s22, 1\ns_cbranch_scc0 L_wbl")
        A(f"v_mov_b32 v4, 0\nv_mov_b32 v5, 1\ns_waitcnt vmcnt(0)\ns_mov_b64 exec, 1\nds_add_u32 v4, v5 offset:{L_CW}\ns_mov_b64 exec, -1")
    elif not bdefer: wo_issue(0, 16); wo_finish(0)
    elif bearly: wo_issue(0, bearly)
    A("L_qpoll:")
    if w1early:
        A(f"s_cmp_lg_u32 s66, {R_C}\ns_cbranch_scc1 L_qp1\ns_mov_b32 s26, s67")
        srd(8, P_W1, 512 * 3584)
        A("v_lshrrev_b32 v1, 2, v0\ns_mov_b32 s20, 3584\nv_mul_lo_u32 v1, v1, s20\nv_and_b32 v12, 3, v0\nv_lshl_add_u32 v1, v12, 4, v1")
        A(f"s_mul_i32 s20, s3, {128*3584}\ns_lshl_b32 s21, s26, 6\ns_add_u32 s20, s20, s21")
        A(f"s_lshl_b32 s23, s3, 14\ns_add_u32 s23, s23, {L_WT}")
        dma([f"buffer_load_dwordx4 v1, s[8:11], s20 offen {w1pol} lds\ns_add_u32 s20, s20, {16*3584}" for i in range(8)], 0)
        A("L_qp1:")
    if nosvc:
        A(f"v_mov_b32 v10, 0\nv_mov_b32 v5, 1\nds_write_b32 v10, v5 offset:{L_FQ}\ns_mov_b64 exec, 1\nds_add_u32 v10, v5 offset:{L_CS}")
        end_wave()
    A("v_mov_b32 v10, 0\nv_mov_b32 v23, 0\nv_mov_b32 v35, 64")
    A("s_cmp_lg_u32 s3, 1\ns_cbranch_scc1 L_np")
    A(f"s_lshl_b32 s21, s4, 11\ns_add_u32 s21, s21, {WS_Q}\nv_add_u32 v14, s21, v2")
    lspin("sk", L_FK, 1, 10, 11, 16 if calm else 4)
    def ldq():
        if qloc:
            A(f"ds_read_b32 v11, v10 offset:{L_FK}\ns_waitcnt lgkmcnt(0)\nv_readfirstlane_b32 s21, v11\ns_lshr_b32 s21, s21, 1\ns_and_b32 s21, s21, s7")
            if slowfb: A(f"s_cmp_lt_u32 s7, {spin-slowfb}")
            A(f"s_cselect_b32 s21, 0, {WS_QL-WS_Q}\nv_add_u32 v15, s21, v14")
        for i in range(2): A(f"global_load_dwordx4 {v4(16+4*i)}, v{15 if qloc else 14}, {WS} offset:{1024*i} sc1")
    poll("pq", ldq, lambda: chk_tags([17, 19, 21, 23], 4), qsleep)
    A("v_mov_b32 v17, v18\nv_mov_b32 v21, v22\nv_lshlrev_b32 v14, 3, v0\nv_mov_b32 v5, 1")
    A(f"ds_write_b64 v14, v[16:17] offset:{L_Q}\nds_write_b64 v14, v[20:21] offset:{L_Q+512}")
    A(f"ds_write_b32 v10, v5 offset:{L_FQ}")
    stamp(4)
    A("L_np:")
    if xit == 'np': end_wave()
    A("s_cmp_eq_u32 s3, 2\ns_cbranch_scc1 L_post")
    A("s_cmp_eq_u32 s66, 0\ns_cbranch_scc1 L_done")
    A(f"s_cmp_lg_u32 s66, {R_F}\ns_cbranch_scc1 L_ws")
    A("s_cmp_lg_u32 s3, 0\ns_cbranch_scc1 L_done")
    A("L_ws:")
    lspin("ss0", L_CS, 9, 10, 11, 32 if calm else 16)
    A("s_branch L_pre")
    A("L_done:")
    end_wave()
    A("L_post:")
    a_addr(37, 15)
    A("v_bfe_u32 v36, v0, 2, 2")
    for i in range(4): A(f"v_mov_b32 v{16+i}, -1")
    if xl:
        A(f"v_and_b32 v20, 7, v0\ns_lshl_b32 s20, s4, 7\ns_add_u32 s20, s20, {WS_XB}\nv_lshl_add_u32 v20, v20, 3, s20")
        lspin("sg", L_FK, 1, 10, 11, 32 if calm else 8)
        poll("px", lambda: A(f"global_load_dwordx2 v[22:23], v20, {WS} sc1"), lambda: chk_tags([23], 21), 8)
        A("s_getreg_b32 s20, hwreg(HW_REG_XCC_ID, 0, 4)\nv_cmp_ne_u32 vcc, s20, v22\ns_cbranch_vccz L_ng")
        A(f"v_mov_b32 v5, 1\nds_write_b32 v10, v5 offset:{L_MK}")
    A(f"global_store_dwordx4 v37, v[16:19], {WS} sc1")
    A("L_ng:")
    if loc: A(f"v_add_u32 v39, {WS_AL-WS_A}, v37\nglobal_store_dwordx4 v39, v[16:19], {WS}")
    A("v_lshlrev_b32 v38, 3, v36\nv_mov_b32 v5, 1")
    A(f"s_lshl_b32 s20, s4, 11\ns_lshl_b32 s21, s5, {6 if fl else 4}\ns_add_u32 s20, s20, s21\ns_add_u32 s20, s20, {WS_ST}\nv_lshl_add_u32 v36, v36, {4 if fl else 9}, s20")
    A(f"s_waitcnt vmcnt(0)\ns_mov_b64 exec, 1\nds_add_u32 v10, v5 offset:{L_CS}\ns_mov_b64 exec, -1")
    lspin("ss", L_CS, 9, 10, 11, 16 if calm else 8)
    stamp(1)
    for w in range(8): A(f"ds_read_b64 {v2(40+2*w)}, v38 offset:{L_ST+32*w}")
    A("s_waitcnt lgkmcnt(0)")
    A("v_max3_f32 v56, v40, v42, v44\nv_max3_f32 v56, v56, v46, v48\nv_max3_f32 v56, v56, v50, v52\nv_max_f32 v56, v56, v54")
    for w in range(8): A(f"v_sub_f32 v{28+w}, v{40+2*w}, v56")
    for w in range(8): A(f"v_exp_f32 v{28+w}, v{28+w}")
    A("v_mul_f32 v58, v28, v41")
    for w in range(1, 8): A(f"v_fmac_f32 v58, v{28+w}, v{41+2*w}")
    A("s_getreg_b32 s20, hwreg(HW_REG_XCC_ID, 0, 4)\ns_add_u32 s20, s20, s6\nv_mov_b32 v57, s6\nv_mov_b32 v59, s20")
    A("s_mov_b64 exec, 0x1111")
    A(f"global_store_dwordx4 v36, v[56:59], {WS} sc1")
    A("s_mov_b64 exec, -1")
    stamp(2)
    A(f"s_cmp_eq_u32 s66, 0\ns_cbranch_scc1 L_done\ns_cmp_eq_u32 s66, {R_F}\ns_cbranch_scc1 L_done")
    A("L_pre:")
    if xit == 'pre': end_wave()
    A(f"s_cmp_eq_u32 s66, {R_F}\ns_cbranch_scc1 L_tf")
    A(f"s_cmp_eq_u32 s66, {R_C}\ns_cbranch_scc1 L_tc")
    if bp: lspin("sz", L_CW, 2, 10, 11, 16); wo_finish(0)
    A(f"s_lshl_b32 s20, s4, 11\ns_lshl_b32 s21, s3, {4 if fl else 9}\ns_add_u32 s20, s20, s21\ns_add_u32 s20, s20, {WS_ST}")
    A(f"v_and_b32 v4, 31, v0\nv_lshl_add_u32 v5, v4, {6 if fl else 4}, s20")
    lspin("sb", L_CV, strig, 10, 11, 12 if calm else 4)
    poll("ps", lambda: A(f"global_load_dwordx4 v[40:43], v5, {WS} sc1"), lambda: A("v_subrev_u32 v43, s6, v43\nv_xor_b32 v6, s6, v41\nv_lshrrev_b32 v7, 4, v43\nv_or_b32 v6, v6, v7\nv_cmp_ne_u32 vcc, 0, v6"), 8)
    A("s_getreg_b32 s20, hwreg(HW_REG_XCC_ID, 0, 4)\nv_cmp_eq_u32 vcc, s20, v43")
    A("s_and_b32 s28, vcc_lo, 0xffff\ns_mul_i32 s28, s28, 0x10001\ns_mov_b32 s29, s28\ns_lshr_b32 s30, vcc_lo, 16\ns_mul_i32 s30, s30, 0x10001\ns_mov_b32 s31, s30")
    A("v_mov_b32 v44, v40")
    inrow("v_max_f32", 44, ["row_ror:8", "row_ror:4", "row_ror:2", "row_ror:1"]); xrow("v_max_f32", 44, 45, 16)
    A("v_sub_f32 v40, v40, v44\nv_exp_f32 v40, v40\nv_mul_f32 v44, v40, v42")
    inrow("v_add_f32", 44, ["row_ror:8", "row_ror:4", "row_ror:2", "row_ror:1"]); xrow("v_add_f32", 44, 45, 16)
    A("v_rcp_f32 v44, v44\nv_mul_f32 v40, v40, v44")
    A("s_lshl_b32 s20, s3, 8\nv_lshl_add_u32 v4, v4, 2, s20\nv_lshrrev_b32 v5, 4, v0\nv_lshl_add_u32 v5, v5, 4, s20")
    A(f"ds_write_b32 v4, v40 offset:{L_X}\nds_read_b128 v[12:15], v5 offset:{L_X}\nds_read_b128 v[16:19], v5 offset:{L_X+64}")
    A("v_and_b32 v1, 15, v0\nv_lshrrev_b32 v4, 4, v0\nv_lshlrev_b32 v24, 4, v1\nv_lshl_add_u32 v22, v4, 14, v24\nv_lshlrev_b32 v1, %d, v1\nv_lshl_add_u32 v1, v4, 4, v1" % (7 if fl else 6))
    A(f"s_lshl_b32 s20, s4, 15\ns_lshl_b32 s21, s3, 13\ns_add_u32 s20, s20, s21\ns_add_u32 s20, s20, {WS_A}\nv_add_u32 v1, s20, v1")
    A(f"v_add_u32 v5, {(WS_AL-WS_A) if loc else 0}, v1\nv_cndmask_b32 v6, v1, v5, s[28:29]\nv_cndmask_b32 v7, v1, v5, s[30:31]\nv_add_u32 v8, 4096, v6\nv_add_u32 v9, 4096, v7")
    A("s_lshl_b32 s20, s3, 8\nv_lshl_add_u32 v21, v0, 2, s20")
    A(f"s_lshl_b32 s20, s4, 11\ns_lshl_b32 s21, s67, 8\ns_add_u32 s20, s20, s21\ns_add_u32 s20, s20, {WS_B}\ns_lshl_b32 s21, s3, 16\ns_add_u32 s20, s20, s21\nv_add_u32 v22, s20, v22")
    A("s_waitcnt lgkmcnt(0)")
    stamp(5)
    AR = lambda c, s_: 40 + 16 * s_ + 4 * c
    D = lambda s_, nt: 72 + 16 * s_ + 4 * nt
    def lda(s_):
        for c in range(4): A(f"global_load_dwordx4 {v4(AR(c,s_))}, v{6+s_+(0 if c<2 else 2)}, {WS} offset:{(64*(c&1)+2048*s_) if fl else (2048*(c&1)+1024*s_)} {lpol}")
    def mm(s_, other_done):
        for c in range(4):
            for nt in range(4):
                d = D(s_, nt)
                A(f"v_mfma_f32_16x16x32_bf16 {v4(d)}, {v4(AR(c,s_))}, {v4(104+16*c+4*nt)}, {'0' if c==0 else v4(d)}")
        wr = 12 + 4 * s_
        for nt in range(4):
            d = D(s_, nt); o = D(1 - s_, nt); t = D(0, nt) if other_done else d
            if det:
                A(f"v_pk_mul_f32 {v2(d)}, {v2(d)}, {v2(wr)}\nv_pk_fma_f32 {v2(d)}, {v2(d+2)}, {v2(wr+2)}, {v2(d)}\nv_add_f32 v{d}, v{d}, v{d+1}")
            elif other_done: A(f"v_pk_fma_f32 {v2(o)}, {v2(d)}, {v2(wr)}, {v2(o)}\nv_pk_fma_f32 {v2(t)}, {v2(d+2)}, {v2(wr+2)}, {v2(o)}")
            else: A(f"v_pk_mul_f32 {v2(d)}, {v2(d)}, {v2(wr)}\nv_pk_fma_f32 {v2(d)}, {v2(d+2)}, {v2(wr+2)}, {v2(d)}")
    if dry:
        A("s_mov_b64 s[80:81], 0\ns_mov_b64 s[32:33], 0\ns_mov_b64 s[34:35], 0\ns_mov_b32 s84, 0\ns_mov_b64 exec, 0\ns_branch L_pb0")
        A("L_bdr:\ns_cmp_eq_u32 s84, 0\ns_mov_b32 s84, 1\ns_cbranch_scc1 L_pb1\ns_mov_b64 exec, -1")
    A("s_mov_b64 s[80:81], -1")
    if bdefer:
        if bdefer <= 8: lspin("sd", L_CV, bdefer, 10, 11, 1)
        else: lspin("sd", L_FP, 1, 10, 11, 1)
        A("s_setprio 1"); wo_issue(bearly, 16); lda(0); lda(1); A("s_setprio 3"); wo_finish(8)
        stamp(4)
        A(f"s_mov_b32 s7, {spin}\ns_branch L_pa2")
    A(f"s_mov_b32 s7, {spin}\ns_mov_b64 s[32:33], -1\ns_mov_b64 s[34:35], -1")
    A("L_pa:")
    A("s_mov_b64 exec, s[32:33]"); lda(0)
    A("s_mov_b64 exec, s[34:35]"); lda(1)
    A("s_mov_b64 exec, -1")
    A("L_pa2:")
    A("s_waitcnt vmcnt(4)")
    chk_sent(range(40, 56), 23); A("s_mov_b64 s[32:33], vcc")
    A("s_waitcnt vmcnt(0)")
    chk_sent(range(56, 72), 23); A("s_mov_b64 s[34:35], vcc")
    A("s_cbranch_vccz L_pa1\ns_cmp_eq_u64 s[32:33], 0\ns_cbranch_scc1 L_pa0")
    if tsleep: A(f"s_sleep {tsleep}")
    if bhold:
        A("s_mov_b32 s85, s7"); lspin("sy", L_FO + 4 * (bhold - 1), 1, 10, 11, 2); A("s_mov_b32 s7, s85")
    A("s_sub_u32 s7, s7, 1\ns_cbranch_scc0 L_pa")
    for first in (0, 1):
        sec = 1 - first
        A(f"L_pa{first}:")
        mk = sp(32 + 2 * sec)
        A(f"s_cmp_eq_u64 {mk}, 0\ns_cbranch_scc1 L_pb{first}")
        A(f"s_mov_b64 exec, {mk}"); lda(sec); A("s_mov_b64 exec, -1")
        A(f"L_pb{first}:")
        mm(first, False)
        A(f"s_mov_b64 exec, {mk}\ns_cbranch_execz L_pd{first}")
        for _ in range(pd - 1): lda(sec)
        A(f"L_pc{first}:")
        A(f"s_waitcnt vmcnt({4*(pd-1)})")
        chk_sent(range(40 + 16 * sec, 56 + 16 * sec), 23)
        A(f"s_cbranch_vccz L_pd{first}\ns_mov_b64 exec, vcc")
        lda(sec)
        A(f"s_sub_u32 s7, s7, 1\ns_cbranch_scc0 L_pc{first}\ns_waitcnt vmcnt(0)")
        A(f"L_pd{first}:")
        A("s_mov_b64 exec, s[80:81]")
        stamp(6)
        mm(sec, True)
        if first == 0: A("s_branch L_pe")
    A("L_pe:\ns_nop 0")
    for nt in range(4): A(f"v_add_f32 v{D(0,nt)}, v{D(0,nt)}, v{D(1,nt) if det else D(0,nt)+1}")
    A("v_permlane32_swap_b32 v72, v80\nv_permlane32_swap_b32 v76, v84\nv_add_f32 v72, v72, v80\nv_add_f32 v76, v76, v84")
    A("v_permlane16_swap_b32 v72, v76\nv_add_f32 v72, v72, v76")
    A(f"ds_write_b32 v21, v72 offset:{L_RED}")
    A("s_waitcnt lgkmcnt(0)")
    if dry: A("s_cbranch_execz L_bnb")
    A("s_barrier")
    A(f"s_cmp_ge_u32 s3, {2 if R == 8 else 1}\ns_cbranch_scc1 L_done")
    A("L_bnb:")
    for w in range(4): A(f"ds_read_b128 {v4(88+4*w)}, v24 offset:{L_RED+256*w}")
    assert R in (4, 8)
    A("s_waitcnt lgkmcnt(2)\nv_pk_add_f32 v[88:89], v[88:89], v[92:93]\nv_pk_add_f32 v[90:91], v[90:91], v[94:95]")
    A("s_waitcnt lgkmcnt(0)\nv_pk_add_f32 v[96:97], v[96:97], v[100:101]\nv_pk_add_f32 v[98:99], v[98:99], v[102:103]")
    A("v_pk_add_f32 v[88:89], v[88:89], v[96:97]\nv_pk_add_f32 v[90:91], v[90:91], v[98:99]")
    if dry: A("s_cbranch_execz L_bdr")
    A(f"global_store_dwordx4 v22, v[88:91], {WS} sc1")
    stamp(7)
    end_wave()
    A("L_tc:")
    A("s_mov_b32 s26, s67")
    srd(8, P_W1, 512 * 3584); srd(12, P_W2, 1792 * 1024)
    A("v_lshrrev_b32 v23, 4, v0\nv_lshlrev_b32 v23, 4, v23")
    A("v_lshrrev_b32 v1, 2, v0\ns_mov_b32 s20, 3584\nv_mul_lo_u32 v1, v1, s20\nv_and_b32 v12, 3, v0\nv_lshl_add_u32 v1, v12, 4, v1")
    A(f"s_mul_i32 s20, s3, {128*3584}\ns_lshl_b32 s21, s26, 6\ns_add_u32 s20, s20, s21")
    A("v_lshlrev_b32 v18, 6, v23\nv_and_b32 v13, 15, v0\nv_lshl_add_u32 v18, v13, 4, v18")
    A("s_lshl_b32 s27, s26, 15\ns_lshl_b32 s21, s3, 8\ns_add_u32 s27, s27, s21")
    A(f"s_lshl_b32 s23, s3, 14\ns_add_u32 s23, s23, {L_WT}")
    if not w1early: dma([f"buffer_load_dwordx4 v1, s[8:11], s20 offen {w1pol} lds\ns_add_u32 s20, s20, {16*3584}" for i in range(8)], 0)
    def w2load():
        A("s_add_u32 s23, s23, 8192")
        dma([f"buffer_load_dwordx4 v18, s[12:15], s27 offen {wpol} lds\ns_add_u32 s27, s27, 4096" for i in range(8)], 0)
    A("v_lshrrev_b32 v12, 4, v0\nv_bfe_u32 v13, v0, 2, 2\nv_and_b32 v14, 3, v0\nv_lshl_add_u32 v14, v14, 3, s23")
    A("v_lshl_add_u32 v1, v12, 9, v14\nv_lshl_add_u32 v1, v13, 6, v1")
    A("v_lshl_add_u32 v19, v12, 10, v14\nv_lshl_add_u32 v19, v13, 8, v19")
    if not w2late: w2load()
    A("v_and_b32 v20, 31, v0\nv_lshlrev_b32 v20, 3, v20\nv_lshrrev_b32 v21, 5, v0\nv_lshl_add_u32 v20, v21, 2, v20")
    A("s_lshl_b32 s20, s3, 8\nv_add_u32 v20, s20, v20")
    A(f"global_load_dword v22, v20, {sp(P_X)}\nglobal_load_dwordx4 v[28:31], v2, {sp(P_X)}")
    A(f"v_lshlrev_b32 v21, 1, v20\nv_add_u32 v21, {WS_MOD}, v21\nv_add_u32 v24, 4096, v21")
    poll("pm", lambda: A(f"global_load_dwordx2 v[40:41], v21, {WS} sc1\nglobal_load_dwordx2 v[42:43], v21, {WS} offset:2048 sc1\nglobal_load_dwordx2 v[44:45], v24, {WS} sc1"),
         lambda: chk_tags([41, 43, 45], 46), 16)
    unpack(4, [22, 40, 44], 3)
    unpack(48, [28, 29, 30, 31], 4)
    A("v_pk_add_f32 v[48:49], v[48:49], v[50:51]\nv_pk_add_f32 v[52:53], v[52:53], v[54:55]\nv_pk_add_f32 v[48:49], v[48:49], v[52:53]\nv_add_f32 v48, v48, v49")
    wave_reduce("v_add_f32", 48, 49)
    A(f"v_mul_f32 v48, {f2x(1/512)}, v48\nv_sub_f32 v4, v4, v48\nv_sub_f32 v5, v5, v48")
    A("v_add_f32 v8, 1.0, v8\nv_add_f32 v9, 1.0, v9\nv_cvt_pk_bf16_f32 v44, v8, v9")
    unpack(8, [44], 1)
    A(f"ds_write_b32 v20, v44 offset:{L_U}\nds_write_b32 v20, v42 offset:{L_U+1024}")
    A("v_add_u32 v21, s20, v23\nv_and_b32 v22, 1, v0\nv_lshl_add_u32 v22, v22, 10, v21")
    for c in range(4): A(f"ds_read_b128 {v4(48+4*c)}, v22 offset:{L_U+64*c}")
    for c in range(4):
        for mt in range(2):
            for hi in range(2):
                A(f"ds_read_b64_tr_b16 {v2(104+8*c+4*mt+2*hi)}, v1 offset:{(32*c+4*hi)*64+mt*32}")
        if c & 1: A("s_waitcnt lgkmcnt(0)")
    for c in range(4):
        for mt in range(2):
            A(f"v_mfma_f32_16x16x32_bf16 {v4(24+4*mt)}, {v4(104+8*c+4*mt)}, {v4(48+4*c)}, {'0' if c==0 else v4(24+4*mt)}")
    A("s_mov_b32 exec_lo, 0x00030003\ns_mov_b32 exec_hi, 0x00030003")
    A(f"ds_write_b128 v22, v[24:27] offset:{L_GS}\nds_write_b128 v22, v[28:31] offset:{L_GS+64}")
    A("s_mov_b64 exec, 1\nv_mov_b32 v33, 1")
    A(f"ds_add_u32 v10, v33 offset:{L_CP}")
    A("s_mov_b64 exec, -1")
    A("v_and_b32 v1, 31, v0\nv_lshlrev_b32 v1, 4, v1\nv_lshrrev_b32 v16, 5, v0\nv_lshl_add_u32 v1, v16, 11, v1")
    A(("s_lshr_b32 s21, s4, 1" if rx else f"s_and_b32 s21, {'s4' if R == 8 else 's26'}, {R-1}") + f"\ns_lshl_b32 s21, s21, 14\ns_lshl_b32 s20, s3, 9\ns_add_u32 s20, s20, s21\ns_add_u32 s20, s20, {WS_B}\nv_add_u32 v1, s20, v1")
    A("v_add_u32 v12, 4096, v1\nv_add_u32 v13, 8192, v1\nv_add_u32 v14, 12288, v1")
    A(f"s_lshl_b32 s20, s3, 8\nv_lshl_add_u32 v22, v16, 2, s20")
    A("v_and_b32 v33, 3, v0\nv_lshlrev_b32 v33, 8, v33\nv_bfe_u32 v32, v0, 3, 1\nv_lshl_add_u32 v32, v32, 6, v33\nv_add_u32 v32, v32, v23")
    A(f"s_mov_b32 s22, {f2x(1/512)}\nv_mov_b32 v34, {f2x(1e-5)}")
    lspin("sp", L_CP, 4, 10, 11, 4, lambda: A(f"ds_read_b128 v[24:27], v32 offset:{L_GS}\nds_read_b128 v[28:31], v32 offset:{L_GS+1024}"))
    for qp in ("[1,0,3,2]", "[2,3,0,1]"):
        for i in range(8): A(f"v_add_f32_dpp v{24+i}, v{24+i}, v{24+i} quad_perm:{qp} {DPPF}")
    if dry:
        A("s_mov_b64 s[80:81], 0\ns_mov_b64 s[82:83], 0\ns_mov_b64 exec, 0\ns_branch L_pbd\nL_cdr:\ns_mov_b64 exec, -1")
    A("s_mov_b64 s[80:81], -1\ns_mov_b32 s82, 0x00010001\ns_mov_b32 s83, 0x00010001")
    stamp(4)
    if calm: lspin("sv0", L_CV, 4, 10, 11, 16)
    if w2late > 1:
        lspin("sv1", L_FO + 4 * (w2late - 2), 1, 10, 11, 2); A("s_setprio 0"); w2load(); A("s_setprio 3")
    else:
        lspin("sv", L_FP, 1, 10, 11, 2)
        if w2late: w2load()
    cs = 13 if cpad else 12
    A(f"s_lshl_b32 s20, s3, {cs+3}\ns_lshl_b32 s21, s26, {cs-6}\ns_add_u32 s20, s20, s21\ns_add_u32 s20, s20, {WS_C}")
    A(f"v_bfe_u32 v35, v0, 2, 3\nv_lshlrev_b32 v35, {cs}, v35\nv_and_b32 v36, 3, v0\nv_lshl_add_u32 v35, v36, 4, v35\nv_add_u32 v35, s20, v35")
    A("s_waitcnt vmcnt(0)")
    for tau in range(8):
        for hi in range(2):
            A(f"ds_read_b64_tr_b16 {v2(136+4*tau+2*hi)}, v19 offset:{8192+hi*4096+tau*32}")
        if tau % 4 == 3: A("s_waitcnt lgkmcnt(0)")
    stamp(5)
    G = 40; Hh = 88
    def gather4(name, base, addr, tmp, sleep):
        A(f"s_mov_b32 s7, {spin}")
        for _ in range(pd):
            for i in range(4): A(f"global_load_dwordx4 {v4(base+4*i)}, {addr(i)} sc1")
        A(f"L_{name}t:")
        A(f"s_waitcnt vmcnt({4*(pd-1)})")
        for i in range(4): A(f"v_max3_u32 v{tmp+i}, v{base+4*i}, v{base+4*i+1}, v{base+4*i+2}")
        for i in range(4): A(f"v_max_u32 v{tmp+i}, v{tmp+i}, v{base+4*i+3}")
        A(f"v_max3_u32 v{tmp+4}, v{tmp}, v{tmp+1}, v{tmp+2}\nv_max_u32 v{tmp+4}, v{tmp+4}, v{tmp+3}\nv_cmp_eq_u32 vcc, -1, v{tmp+4}\ns_cbranch_vccz L_{name}d")
        for i in range(4): A(f"v_cmp_eq_u32 {sp(28+2*i)}, -1, v{tmp+i}")
        if sleep: A(f"s_sleep {sleep}")
        for i in range(4):
            A(f"s_or_b64 exec, {sp(28+2*i)}, 1\nglobal_load_dwordx4 {v4(base+4*i)}, {addr(i)} sc1")
        A(f"s_mov_b64 exec, -1\ns_sub_u32 s7, s7, 1\ns_cbranch_scc0 L_{name}t")
        A(f"L_{name}d:")
    gather4("pb", Hh, lambda i: f"v{1 if i==0 else 11+i}, {WS}", 56, csleep)
    stamp(6)
    A(f"v_pk_add_f32 {v2(G)}, {v2(Hh)}, {v2(Hh+4)}\nv_pk_add_f32 {v2(G+2)}, {v2(Hh+2)}, {v2(Hh+6)}\nv_pk_add_f32 {v2(G+8)}, {v2(Hh+8)}, {v2(Hh+12)}\nv_pk_add_f32 {v2(G+10)}, {v2(Hh+10)}, {v2(Hh+14)}")
    A(f"v_pk_add_f32 {v2(G)}, {v2(G)}, {v2(G+8)}\nv_pk_add_f32 {v2(G+2)}, {v2(G+2)}, {v2(G+10)}")
    A(f"v_permlane32_swap_b32 v{G}, v{G+2}\nv_permlane32_swap_b32 v{G+1}, v{G+3}")
    A(f"v_pk_add_f32 {v2(G)}, {v2(G)}, {v2(G+2)}")
    A(f"v_pk_fma_f32 v[4:5], {v2(G)}, v[6:7], v[4:5]")
    A("v_pk_mul_f32 v[6:7], v[4:5], v[8:9]\nv_cvt_pk_bf16_f32 v6, v6, v7")
    A(f"ds_write_b32 v20, v6 offset:{L_U}")
    for c in range(4): A(f"ds_read_b128 {v4(44+4*c)}, v21 offset:{L_U+64*c}")
    A("v_add_f32 v16, v4, v5\nv_mul_f32 v17, v4, v4\nv_fmac_f32 v17, v5, v5")
    A("v_permlane32_swap_b32 v16, v17\nv_add_f32 v16, v16, v17")
    xrow("v_add_f32", 16, 17, 16)
    steps = ["row_ror:8", "row_ror:4", "row_ror:2", "row_ror:1"]
    for c in range(4):
        A(f"s_waitcnt lgkmcnt({3-c})")
        for mt in range(2):
            A(f"v_mfma_f32_16x16x32_bf16 {v4(60+4*mt)}, {v4(104+8*c+4*mt)}, {v4(44+4*c)}, {'0' if c==0 else v4(60+4*mt)}")
        inrow("v_add_f32", 16, [steps[c]])
    A("s_mov_b64 exec, s[82:83]")
    A(f"ds_write_b32 v22, v16 offset:{L_RED+128}")
    A(f"ds_write_b128 v21, v[60:63] offset:{L_RED}\nds_write_b128 v21, v[64:67] offset:{L_RED+64}")
    A("s_mov_b64 exec, s[80:81]")
    A("s_waitcnt lgkmcnt(0)")
    if dry: A("s_cbranch_execz L_cnb")
    A("s_barrier\nL_cnb:")
    A(f"ds_read_b64 v[12:13], v33 offset:{L_RED+128}\nds_read_b128 v[40:43], v32 offset:{L_RED}")
    A("s_waitcnt lgkmcnt(0)")
    for qp in ("[1,0,3,2]", "[2,3,0,1]"):
        for r in (12, 13, 40, 41, 42, 43): A(f"v_add_f32_dpp v{r}, v{r}, v{r} quad_perm:{qp} {DPPF}")
    A("v_mul_f32 v12, s22, v12\nv_fma_f32 v14, v13, s22, v34\nv_fma_f32 v14, -v12, v12, v14\nv_max_f32 v14, v14, v34\nv_rsq_f32 v14, v14")
    for q in range(2): A(f"v_pk_fma_f32 {v2(40+2*q)}, {v2(24+2*q)}, v[12:13], {v2(40+2*q)} op_sel_hi:[1,0,1] neg_lo:[0,1,0] neg_hi:[0,1,0]")
    for q in range(2): A(f"v_pk_fma_f32 {v2(40+2*q)}, {v2(40+2*q)}, v[14:15], {v2(28+2*q)} op_sel_hi:[1,0,1]")
    for q in range(2): A(f"v_cvt_pk_bf16_f32 v{48+q}, v{40+2*q}, v{41+2*q}")
    for q in range(2): A(f"v_pk_max_i16 v{48+q}, v{48+q}, 0")
    for q in range(2): A(f"v_mov_b32_dpp v{50+q}, v{48+q} row_shl:8 {DPPF} bound_ctrl:0")
    for tau in range(8): A(f"v_mfma_f32_16x16x32_bf16 {v4(56+4*tau)}, v[48:51], {v4(136+4*tau)}, 0")
    for tau in range(1, 8):
        A(f"v_mov_b32_dpp v{56+(tau>>1)}, v{56+4*tau} quad_perm:[0,1,2,3] row_mask:{1<<(tau&1):#x} bank_mask:0xf")
    if dry: A("s_cbranch_execz L_cdr")
    A("s_mov_b32 exec_hi, 0")
    A(f"global_store_dwordx4 v35, v[56:59], {WS} sc1")
    stamp(7)
    end_wave()
    A("L_tf:")
    A("s_mov_b32 s26, s67\ns_lshr_b32 s20, s26, 3\ns_lshl_b32 s20, s20, 7\ns_and_b32 s21, s26, 7\ns_lshl_b32 s21, s21, 2\ns_add_u32 s20, s20, s21")
    A("v_and_b32 v4, 3, v0\nv_lshrrev_b32 v5, 4, v0\nv_lshl_add_u32 v4, v5, 5, v4\nv_add_u32 v4, s20, v4\nv_lshlrev_b32 v5, 1, v4")
    A(f"global_load_ushort v8, v5, {sp(P_X)}")
    A(f"v_lshrrev_b32 v6, 1, v4\nv_lshlrev_b32 v6, 3, v6\nv_add_u32 v6, {WS_MOD}, v6\nv_add_u32 v7, 6144, v6")
    poll("pg", lambda: A(f"global_load_dwordx2 v[12:13], v6, {WS} sc1\nglobal_load_dwordx2 v[14:15], v7, {WS} sc1"),
         lambda: chk_tags([13, 15], 16), 16)
    A("v_lshlrev_b32 v8, 16, v8")
    A("v_and_b32 v16, 1, v4\nv_cmp_eq_u32 vcc, 0, v16")
    A("v_lshlrev_b32 v16, 16, v12\nv_and_b32 v17, 0xffff0000, v12\nv_cndmask_b32 v9, v17, v16, vcc")
    A("v_lshlrev_b32 v16, 16, v14\nv_and_b32 v17, 0xffff0000, v14\nv_cndmask_b32 v12, v17, v16, vcc")
    A(f"v_bfe_u32 v6, v0, 2, 2\nv_lshlrev_b32 v6, 12, v6\nv_lshl_add_u32 v6, v4, 2, v6\nv_add_u32 v6, {WS_B}, v6")
    if R == 8: A("s_lshl_b32 s20, s4, 14\nv_add_u32 v6, s20, v6")
    if rx: A("s_lshr_b32 s20, s4, 1\ns_lshl_b32 s20, s20, 14\nv_add_u32 v6, s20, v6")
    if cpad: A(f"s_lshl_b32 s20, s26, 13\ns_add_u32 s20, s20, {WS_C}\nv_lshrrev_b32 v7, 2, v0\nv_lshl_add_u32 v7, v7, 6, v2\nv_add_u32 v7, s20, v7\nv_add_u32 v32, 4096, v7")
    else: A(f"s_lshl_b32 s20, s26, 12\ns_add_u32 s20, s20, {WS_C}\nv_add_u32 v7, s20, v2")
    if dry: A("s_mov_b64 exec, 0\ns_branch L_fd\nL_fdr:\ns_mov_b64 exec, -1")
    lspin("sf", L_FP, 1, 10, 11, 16 if calm else 4)
    poll("pxb", lambda: A(f"global_load_dword v13, v6, {WS} sc1\nglobal_load_dword v14, v6, {WS} offset:2048 sc1"), lambda: chk_sent([13, 14], 15), xsleep)
    A("v_add_f32 v13, v13, v14")
    inrow("v_add_f32", 13, ["row_ror:8", "row_ror:4"])
    A("v_fma_f32 v8, v9, v13, v8")
    stamp(6)
    if fdelay: A(f"s_sleep {fdelay}")
    gather4("pc", 40, lambda i: f"v{(7 if i<2 else 32) if cpad else 7}, {WS} offset:{2048*(i&1) if cpad else 1024*i}", 56, fsleep)
    A("L_fd:")
    stamp(7)
    A("v_pk_add_f32 v[16:17], v[40:41], v[44:45]\nv_pk_add_f32 v[18:19], v[42:43], v[46:47]\nv_pk_add_f32 v[24:25], v[48:49], v[52:53]\nv_pk_add_f32 v[26:27], v[50:51], v[54:55]")
    A("v_pk_add_f32 v[16:17], v[16:17], v[24:25]\nv_pk_add_f32 v[18:19], v[18:19], v[26:27]")
    A("v_permlane32_swap_b32 v16, v18\nv_permlane32_swap_b32 v17, v19\nv_pk_add_f32 v[16:17], v[16:17], v[18:19]")
    A("v_permlane16_swap_b32 v16, v17\nv_add_f32 v16, v16, v17")
    inrow("v_add_f32", 16, ["row_ror:8", "row_ror:4"])
    A("v_fma_f32 v16, v12, v16, v8\nv_cvt_pk_bf16_f32 v16, v16, v16")
    if dry: A("s_cbranch_execz L_fdr")
    A("s_mov_b32 exec_lo, 0x000f000f\ns_mov_b32 exec_hi, 0x000f000f")
    A(f"global_store_short v5, v16, {sp(P_OUT)}")
    A("s_cmp_lg_u32 s26, 0\ns_cbranch_scc1 L_tfe")
    A("s_mov_b64 exec, 1\nv_mov_b32 v18, s6")
    A(f"global_store_dword v10, v18, {WS}")
    if fixend:
        A(f"L_fx:\ns_memrealtime s[98:99]\ns_waitcnt lgkmcnt(0)\ns_sub_u32 s98, s98, s96\ns_cmp_lt_u32 s98, {fixend}\ns_cbranch_scc1 L_fx")
    A("L_tfe:")
    stamp(4)
    end_wave()
    if stamps:
        A("L_stampout:")
        if st0: A("s_waitcnt lgkmcnt(0)\nv_writelane_b32 v3, s90, 0\ns_cmp_lt_u32 s3, 4\ns_cbranch_scc1 L_so9\nv_writelane_b32 v3, s92, 1\nv_writelane_b32 v3, s94, 2\nL_so9:")
        if stamps == 2:
            A("s_cmp_lg_u32 s2, 32\ns_cbranch_scc1 L_exit\ns_and_b32 s20, s3, 11\ns_cbranch_scc1 L_exit")
            A("s_mov_b64 exec, 0xff\ns_lshl_b32 s20, s3, 3\nv_lshl_add_u32 v1, v0, 2, s20")
            A(f"global_store_dword v1, v3, {sp(P_DBG)}\ns_endpgm")
        A("s_mov_b64 exec, 0xff")
        A("s_mul_i32 s20, s2, 12\ns_add_u32 s20, s20, s3\ns_lshl_b32 s20, s20, 5")
        A(f"s_add_u32 s20, s20, {WS_STAMP}")
        A("v_lshl_add_u32 v1, v0, 2, s20")
        A(f"global_store_dword v1, v3, {WS}")
    A("L_exit:\ns_endpgm")
    A(".p2align 6\n.type L_tab,@object\nL_tab:")
    for wg in range(256):
        r = roles[wg & 7, wg >> 3]; skip = T - r['n']
        assert skip < 8, (wg, r)
        A(f".long {(r['pre'] - skip + 16) | skip << 12 | r['e'] << 15 | r['ei'] << 18 | r['l'] << 23 | r['li'] << 25:#x}")
    A(f"L_endcode:\n.fill (24576-(L_endcode-{NAME}))/4, 4, 0xbf800000")
    A('.section .rodata,"a"\n.p2align 6')
    A(f".amdhsa_kernel {NAME}")
    for l in ["next_free_vgpr 168", "next_free_sgpr 102", "accum_offset 168", "group_segment_fixed_size 0", "kernarg_size 104",
              "user_sgpr_count 2", "user_sgpr_kernarg_segment_ptr 1", "system_sgpr_workgroup_id_x 1"]:
        A("  .amdhsa_" + l)
    A(".end_amdhsa_kernel")
    return A.finish()

if __name__ == "__main__":
    out = sys.argv[1]; kw = {}
    for a in sys.argv[2:]:
        k, v = a.split("=", 1)
        try: v = ast.literal_eval(v)
        except Exception: pass
        kw[k] = v
    open(out, "w").write(gen(**kw))
    import json
    roles, T = make_plan(kw.get('plan', 'A'), **{k: v for k, v in kw.items() if k in ('cH','cQ','cM','cB','cC','T','c3','Fx')})
    json.dump([[roles[wg & 7, wg >> 3][k] for k in ('e', 'l', 'n')] for wg in range(256)], open(out + ".roles", "w"))
```

```python
import sys, struct, ast
from asmlib import Asm
NAME = "adaLN_cond__gqa_block_cached__dense_activation_relu__decode_kernel"
def f2x(f): return "0x%08x" % struct.unpack("<I", struct.pack("<f", f))[0]

WS_XB = 0x14000; WS_QL = 0x10000; WS_H = 0x1000; WS_MOD = 0x4000; WS_Q = 0x8000; WS_ST = 0xC000
WS_AL = 0x180000; WS_A = 0x100000; WS_B = 0x140000; WS_C = 0x200000
WS_STAMP = 0x8000000
L_CG = 0; L_FQ = 4; L_CS = 8; L_CT = 68; L_CP = 16; L_FK = 20; L_CV = 24; L_CW = 28; L_FO = 32; L_MK = 64; L_FP = 12
L_ST = 256; L_Q = 1024; L_GP = 2048; L_X = 3072; L_RED = 4096; L_U = 5120; L_GS = 8192
L_OP = 16384; L_WT = 32768; LDS_SIZE = 98304
DPPF = "row_mask:0xf bank_mask:0xf"
P_X, P_K, P_V, P_WQ, P_WO, P_BX, P_W1, P_W2, P_C, P_WM, P_OUT, P_DBG, P_WS = [36 + 2 * i for i in range(13)]
def sp(n): return f"s[{n}:{n+1}]"
def v4(n): return f"v[{n}:{n+3}]"
def v2(n): return f"v[{n}:{n+1}]"
WS = sp(P_WS)

E_H, E_Q, E_M, E_B = 1, 2, 3, 4
R_B, R_C, R_F = 1, 2, 3
def make_plan(plan, **pk):
    P = dict(PLANS[plan]); P.update(pk)
    roles = {(x, a): dict(e=0, ei=0, l=0, li=0) for x in range(8) for a in range(32)}
    hi = mi = ci = fi = 0
    for x in range(8):
        a = 0
        for _ in range(P['H'][x]): roles[x, a].update(e=E_H, ei=hi); hi += 1; a += 1
        for c in range(8):
            roles[x, a].update(e=E_Q, ei=c)
            if (x & 1 == P['Fx'] if 'Fx' in P else c in (0, 1, 4, 5)): roles[x, a].update(l=R_F, li=fi); fi += 1
            a += 1
        for c in range(8): roles[x, a].update(e=E_B, ei=c, l=R_B, li=c); a += 1
        for _ in range(P['M'][x]): roles[x, a].update(e=E_M, ei=mi); mi += 1; a += 1
        assert a <= 32
        cand = [b for b in range(31, -1, -1) if roles[x, b]['e'] == 0] + [b for b in range(32) if roles[x, b]['e'] == E_H] + [b for b in range(32) if roles[x, b]['e'] == E_M]
        for b in cand[:P['C'][x]]: roles[x, b].update(l=R_C, li=ci); ci += 1
    assert (hi, mi, ci, fi) == (32, 32, 56, 32), (hi, mi, ci, fi)
    for x in range(8):
        cost = []
        for a in range(32):
            r = roles[x, a]
            c = {0: 0, E_H: P['cH'], E_Q: P['cQ'], E_M: P['cM'], E_B: P['cB']}[r['e']]
            cb = r['ei'] if r['e'] in (E_Q, E_B) else (r['ei'] >> 2)
            if r['e'] and cb == 3: c += P['c3'][r['e']]
            if r['l'] == R_C: c += P['cC']
            cost.append(c)
        n = [max(28, P['T'] - 7)] * 32
        for _ in range(1024 - sum(n)):
            b = min((a for a in range(32) if n[a] < P['T']), key=lambda a: (n[a] + cost[a], -a))
            n[b] += 1
        pre = 0
        for a in range(32):
            roles[x, a].update(n=n[a], pre=pre); pre += n[a] - 28
    T = max(r['n'] for r in roles.values()); T += T & 1
    return roles, T
base = dict(cH=2.0, cQ=3.6, cM=4.2, cB=3.6, cC=4.0, c3={E_H: 0.5, E_Q: 1.7, E_M: 1.5, E_B: 1.0}, T=34)
base2 = dict(cH=1.6, cQ=4.0, cM=4.5, cB=3.4, cC=5.3, c3={E_H: 0.7, E_Q: 2.3, E_M: 1.8, E_B: 2.4}, T=36)
PLANS = {
 'A': dict(base, H=[4]*8, M=[4]*8, C=[7]*8),
 'B': dict(base, H=[8,0,8,0,8,0,8,0], M=[8,0,8,0,8,0,8,0], C=[14,0,14,0,14,0,14,0]),
 'C': dict(base, H=[8,0,8,0,8,0,8,0], M=[8,0,8,0,8,0,8,0], C=[7]*8),
 'D': dict(base, H=[8,8,8,8,0,0,0,0], M=[8,0,8,0,8,0,8,0], C=[14,0,14,0,14,0,14,0]),
 'E': dict(base, H=[8,8,8,8,0,0,0,0], M=[8,0,8,0,8,0,8,0], C=[8,6,8,6,8,6,8,6]),
 'G': dict(base2, H=[8,0,8,0,8,0,8,0], M=[8,0,8,0,8,0,8,0], C=[7]*8),
 'H': dict(base2, H=[8,0,8,0,8,0,8,0], M=[8,0,8,0,8,0,8,0], C=[8,8,8,12,8,2,8,2]),
 'I': dict(base2, H=[8,0,8,8,4,0,4,0], M=[8,0,8,0,8,0,8,0], C=[8,8,8,8,8,4,8,4]),
 'J': dict(base2, H=[8,0,8,0,8,0,8,0], M=[8,0,8,0,8,0,8,0], C=[0,14,0,14,0,14,0,14]),
 'K': dict(base2, H=[8,0,8,0,8,0,8,0], M=[8,0,8,0,8,0,8,0], C=[4,10,4,10,4,10,4,10]),
 'L': dict(base2, H=[8,0,8,0,8,0,8,0], M=[8,0,8,0,8,0,8,0], C=[8,6,8,6,8,6,8,6]),
 'F': dict(base, H=[8,4,8,4,4,0,4,0], M=[8,0,8,0,8,0,8,0], C=[10,4,10,4,10,4,10,4]),
}

def gen(win=5, win2=6, wpol="nt", stamps=0, spin=200000, hsleep=4, qsleep=8, tsleep=1, pace=4, cpre=1, kprio=0, skipw=0, vmid=4, nopoll='', qtrig=22, R=4, cdefer=1, csleep=2, nH=33, nX=31, nL=34, loc=1, lpol='sc1', w1pol='nt', nocomp=0, nosvc=0, sprio=3, nopre=0, nocw=0, lmul=1, xit='', qloc=1, strig=1, qtrig2=38, kpol='nt', vpol='nt', slowfb=0, fixend=0, plan='A', hfirst=1, cpad=1, w2late=1, fsleep=1, dry=0, yprio=0, burst=0, bwin=8, probe='', det=1, rx=0, fl=0, w1early=1, nohp=0, ws1=0, ws2=0, bp=0, calm=0, ltab=1, st0=0, bhold=0, xl=1, bearly=0, pd=1, fdelay=0, xsleep=4, bdefer=0, hwait=0, **pk):
    A = Asm()
    roles, T = make_plan(plan, **pk)
    hdr = open("cdna_kernels/" + NAME[:-7] + ".s.ref").read().split("; Override")[0]
    A(hdr.rstrip())
    A(f"; @launch grid=(256,1,1) block=(768,1,1) lds={LDS_SIZE}")
    A('.amdgcn_target "amdgcn-amd-amdhsa--gfx950"')
    A(f".text\n.globl {NAME}\n.p2align 8\n.type {NAME},@function\n{NAME}:")
    def stamp(k):
        if stamps:
            A("s_memrealtime s[62:63]\ns_waitcnt lgkmcnt(0)")
            A(f"v_writelane_b32 v3, s62, {k}")
    def prb(name):
        if probe == name: A("s_memrealtime s[94:95]\ns_waitcnt lgkmcnt(0)")
    def end_wave():
        if stamps:
            A("s_branch L_stampout")
        else:
            A("s_endpgm")
    def srd(d, p, size):
        A(f"s_mov_b32 s{d}, s{p}\ns_mov_b32 s{d+1}, s{p+1}\ns_mov_b32 s{d+2}, {size}\ns_mov_b32 s{d+3}, 0x20000")
    def poll(name, loads, check, sleep):
        if name in nopoll.split('+'): return
        top = A.label(name); done = A.label(name + "d")
        A(f"s_mov_b32 s7, {spin}")
        A(f"{top}:")
        loads()
        A("s_waitcnt vmcnt(0)")
        check()
        A(f"s_cbranch_vccz {done}")
        A("s_mov_b64 exec, vcc")
        if sleep: A(f"s_sleep {sleep}")
        A("s_sub_u32 s7, s7, 1")
        A(f"s_cbranch_scc0 {top}")
        A(f"{done}:")
        A("s_mov_b64 exec, -1")
    def lspin(name, off, n, vz, vt, sleep=1, extra=None):
        top = A.label(name); done = A.label(name + "d")
        A(f"s_mov_b32 s7, {spin*20}")
        A(f"{top}:")
        A(f"ds_read_b32 v{vt}, v{vz} offset:{off}")
        if extra: extra()
        A("s_waitcnt lgkmcnt(0)")
        A(f"v_cmp_gt_u32 vcc, {n}, v{vt}")
        A(f"s_cbranch_vccz {done}")
        if lmul > 1: sleep = min(127, max(sleep, 1) * lmul)
        if sleep: A(f"s_sleep {sleep}")
        A("s_sub_u32 s7, s7, 1")
        A(f"s_cbranch_scc0 {top}")
        A(f"{done}:")
    def chk_tags(regs, tmp):
        A(f"v_xor_b32 v{tmp}, s6, v{regs[0]}")
        for r in regs[1:]:
            A(f"v_xor_b32 v{tmp+1}, s6, v{r}")
            A(f"v_or_b32 v{tmp}, v{tmp}, v{tmp+1}")
        A(f"v_cmp_ne_u32 vcc, 0, v{tmp}")
    def chk_sent(regs, tmp):
        regs = list(regs)
        if len(regs) == 1:
            A(f"v_cmp_eq_u32 vcc, -1, v{regs[0]}"); return
        if len(regs) == 2:
            A(f"v_max_u32 v{tmp}, v{regs[0]}, v{regs[1]}"); rest = []
        else:
            A(f"v_max3_u32 v{tmp}, v{regs[0]}, v{regs[1]}, v{regs[2]}"); rest = regs[3:]
        while rest:
            if len(rest) == 1:
                A(f"v_max_u32 v{tmp}, v{tmp}, v{rest[0]}"); rest = []
            else:
                A(f"v_max3_u32 v{tmp}, v{tmp}, v{rest[0]}, v{rest[1]}"); rest = rest[2:]
        A(f"v_cmp_eq_u32 vcc, -1, v{tmp}")
    def xrow(op, v, tmp, which):
        A(f"v_mov_b32 v{tmp}, v{v}")
        A(f"v_permlane{which}_swap_b32 v{v}, v{tmp}")
        A(f"{op} v{v}, v{v}, v{tmp}")
    def inrow(op, v, steps):
        for s in steps:
            A(f"{op}_dpp v{v}, v{v}, v{v} {s} {DPPF}")
    def wave_reduce(op, v, tmp):
        inrow(op, v, ["row_ror:8", "row_ror:4", "row_ror:2", "row_ror:1"])
        xrow(op, v, tmp, 16); xrow(op, v, tmp, 32)
    def unpack(dst, src, n):
        for i in range(n):
            A(f"v_lshlrev_b32 v{dst+2*i}, 16, v{src[i]}")
            A(f"v_and_b32 v{dst+2*i+1}, 0xffff0000, v{src[i]}")
    def silu(x, t, n):
        A(f"s_mov_b32 s21, {f2x(-1.4426950408889634)}")
        for i in range(n): A(f"v_mul_f32 v{t+i}, s21, v{x+i}")
        for i in range(n): A(f"v_exp_f32 v{t+i}, v{t+i}")
        for i in range(n): A(f"v_add_f32 v{t+i}, 1.0, v{t+i}")
        for i in range(n): A(f"v_rcp_f32 v{t+i}, v{t+i}")
        for i in range(n): A(f"v_mul_f32 v{x+i}, v{x+i}, v{t+i}")
    def gemv_perm(W, T, npair):
        for u in range(npair):
            for w in range(4):
                a = W + 8 * u + w; b = W + 8 * u + 4 + w
                A(f"v_perm_b32 v{T+8*u+2*w}, v{b}, v{a}, s24")
                A(f"v_perm_b32 v{T+8*u+2*w+1}, v{b}, v{a}, s25")
    def gemv_dot(T, X, acc):
        for u in range(len(X)):
            for e in range(8):
                c = "0" if u == 0 else f"v{acc+e}"
                A(f"v_dot2_f32_bf16 v{acc+e}, v{T+8*u+e}, v{X[u]}, {c}")
    def mktag():
        A("s_waitcnt lgkmcnt(0)\ns_mul_i32 s6, s6, 0x9E3779B1\ns_add_u32 s6, s6, 0x7F4A7C15")
    def paced(loads, w):
        if skipw and (w or skipw > 1): return
        for i, l in enumerate(loads):
            if w and i >= w: A(f"s_waitcnt vmcnt({w-1})")
            A(l)

    if st0: A("s_memrealtime s[90:91]")
    A("s_cmp_ge_u32 s2, 256\ns_cbranch_scc1 L_exit")
    A("s_load_dwordx16 s[36:51], s[0:1], 0")
    rest_ld = "s_load_dwordx8 s[52:59], s[0:1], 64\ns_load_dwordx2 s[60:61], s[0:1], 96\ns_load_dword s68, s[32:33], s34"
    A("s_getpc_b64 s[30:31]\nL_pc:\ns_add_u32 s32, s30, L_tab-L_pc\ns_addc_u32 s33, s31, 0\ns_lshl_b32 s34, s2, 2")
    if not ltab: A(rest_ld)
    A("v_lshrrev_b32 v1, 6, v0\nv_and_b32 v0, 63, v0\nv_readfirstlane_b32 s3, v1")
    A("s_and_b32 s4, s2, 7\ns_lshr_b32 s5, s2, 3")
    if fixend: A("s_memrealtime s[96:97]")
    A("s_mov_b32 s24, 0x05040100\ns_mov_b32 s25, 0x07060302")
    A("v_lshlrev_b32 v2, 4, v0")
    if stamps:
        A("v_mov_b32 v3, 0")
        if not st0: stamp(0)
    A("s_cmp_lt_u32 s3, 4\ns_cbranch_scc1 L_service")
    STREAM_MARK = len(A.lines)
    A("L_service:")
    if ltab: A(rest_ld)
    A(f"s_setprio {sprio}")
    if cpre:
        A("s_lshl_b32 s20, s5, 2\ns_add_u32 s20, s20, s3\ns_sub_u32 s20, s20, 104\ns_cmp_ge_u32 s20, 24\ns_cbranch_scc1 L_ncp")
        A(f"s_sub_u32 s30, s30, L_pc-{NAME}\ns_subb_u32 s31, s31, 0")
        A("s_lshl_b32 s20, s20, 10\nv_add_u32 v14, s20, v2")
        A("global_load_dwordx4 v[164:167], v14, s[30:31]")
        A("L_ncp:")
    A("v_lshrrev_b32 v12, 3, v0\nv_and_b32 v13, 7, v0\nv_mov_b32 v16, 0\nv_mov_b32 v17, 0\nv_mov_b32 v18, 0\nv_mov_b32 v19, 0")
    A("s_mov_b64 exec, 0x1f\nds_write_b128 v2, v[16:19]\ns_mov_b64 exec, -1")
    A("s_waitcnt lgkmcnt(0)")
    A("s_bfe_u32 s64, s68, 0x3000f\ns_bfe_u32 s65, s68, 0x50012\ns_bfe_u32 s66, s68, 0x20017\ns_bfe_u32 s67, s68, 0x60019")
    A("s_lshr_b32 s69, s65, 2\ns_and_b32 s70, s65, 3")
    A(f"s_cmp_lg_u32 s64, {E_H}\ns_cbranch_scc1 L_nh")
    A("s_lshr_b32 s20, s70, 1\ns_lshl_b32 s20, s20, 8\ns_lshl_b32 s21, s3, 6\ns_add_u32 s20, s20, s21")
    A("v_lshl_add_u32 v14, v12, 3, s20")
    A("s_mov_b32 s21, 6144\nv_mul_lo_u32 v1, v14, s21\nv_lshl_add_u32 v1, v13, 4, v1\nv_lshlrev_b32 v14, 1, v14")
    A("s_and_b32 s20, s70, 1\ns_lshl_b32 s20, s20, 10\ns_lshl_b32 s21, s69, 7\ns_add_u32 s20, s20, s21")
    A("s_waitcnt lgkmcnt(0)")
    srd(8, P_WM, 512 * 6144)
    A(f"global_load_dwordx4 v[4:7], v14, {sp(P_C)}")
    for i in range(8):
        A(f"buffer_load_dwordx4 {v4(40+4*i)}, v1, s[8:11], s20 offen {wpol}")
        if i < 7: A("s_add_u32 s20, s20, 6144")
    A(f"s_load_dword s6, {WS}, 0")
    A("s_barrier")
    A("s_lshl_b32 s20, s65, 2\ns_add_u32 s20, s20, s3")
    if cpad: A(f"s_lshl_b32 s21, s20, 11\ns_add_u32 s21, s21, {WS_C}\nv_lshrrev_b32 v14, 2, v0\nv_lshl_add_u32 v14, v14, 6, v2\nv_add_u32 v14, s21, v14")
    else: A(f"s_lshl_b32 s21, s20, 10\ns_add_u32 s21, s21, {WS_C}\nv_add_u32 v14, s21, v2")
    A(f"s_mul_i32 s21, s20, {128*R}\ns_add_u32 s21, s21, {WS_B}\nv_add_u32 v15, s21, v2")
    A("s_cmp_eq_u32 s3, 3\ns_cselect_b32 exec_hi, 0, -1")
    for i in range(4): A(f"v_mov_b32 v{16+i}, -1")
    A("s_mov_b64 exec, -1")
    if nohp: A("s_mov_b64 exec, 1")
    A(f"global_store_dwordx4 v14, v[16:19], {WS} sc1")
    for i in range(4): A(f"v_mov_b32 v{20+i}, -1")
    if R < 8: A(f"s_mov_b32 exec_hi, 0\ns_mov_b32 exec_lo, {(1<<(8*R))-1:#x}")
    A(f"global_store_dwordx4 v15, v[20:23], {WS} sc1")
    A("s_mov_b64 exec, -1")
    A("s_waitcnt vmcnt(10)")
    unpack(24, [4, 5, 6, 7], 4); silu(24, 32, 8)
    for i in range(4): A(f"v_cvt_pk_bf16_f32 v{24+i}, v{24+2*i}, v{25+2*i}")
    mktag()
    A(f"s_and_b32 s26, s70, 1\ns_lshl_b32 s26, s26, 12\ns_lshr_b32 s21, s70, 1\ns_lshl_b32 s21, s21, 11\ns_add_u32 s26, s26, s21\ns_lshl_b32 s21, s69, 8\ns_add_u32 s26, s26, s21\ns_add_u32 s26, s26, {WS_H}")
    A("s_waitcnt vmcnt(2)")
    stamp(1)
    gemv_perm(40, 104, 4)
    gemv_dot(104, [24, 25, 26, 27], 32)
    A("L_gfin:")
    acc = 32
    for e in range(4): A(f"v_permlane32_swap_b32 v{acc+e}, v{acc+e+4}")
    for e in range(4): A(f"v_add_f32 v{acc+e}, v{acc+e}, v{acc+e+4}")
    for e in range(2): A(f"v_permlane16_swap_b32 v{acc+e}, v{acc+e+2}")
    for e in range(2): A(f"v_add_f32 v{acc+e}, v{acc+e}, v{acc+e+2}")
    for e in range(2): A(f"v_add_f32_dpp v{acc+e}, v{acc+e}, v{acc+e} row_ror:8 {DPPF}")
    A("v_lshrrev_b32 v14, 4, v0\nv_lshlrev_b32 v14, 3, v14\nv_lshl_add_u32 v14, v13, 5, v14\ns_lshl_b32 s21, s3, 8\nv_add_u32 v14, s21, v14")
    A(f"ds_write_b64 v14, v[32:33] offset:{L_GP}")
    A("v_mov_b32 v14, 0\nv_mov_b32 v15, 1")
    A("s_waitcnt vmcnt(0)")
    A("s_mov_b64 exec, 1")
    A(f"ds_add_rtn_u32 v15, v14, v15 offset:{L_CG}")
    A("s_mov_b64 exec, -1")
    A("v_lshlrev_b32 v14, 3, v0")
    A("s_waitcnt lgkmcnt(0)")
    A("v_readfirstlane_b32 s21, v15")
    A("s_cmp_lg_u32 s21, 3\ns_cbranch_scc1 L_gdone")
    A("s_mov_b32 exec_hi, 0")
    for w in range(4): A(f"ds_read_b64 {v2(32+2*w)}, v14 offset:{L_GP+256*w}")
    A("v_add_u32 v14, s26, v14")
    A("s_waitcnt lgkmcnt(0)")
    A("v_pk_add_f32 v[32:33], v[32:33], v[34:35]\nv_pk_add_f32 v[36:37], v[36:37], v[38:39]\nv_pk_add_f32 v[32:33], v[32:33], v[36:37]")
    A("v_cvt_pk_bf16_f32 v32, v32, v33\nv_mov_b32 v33, s6")
    if qloc:
        A(f"s_cmp_lg_u32 s64, {E_Q}\ns_cbranch_scc1 L_gnl")
        A(f"v_add_u32 v15, {WS_QL-WS_Q}, v14\nglobal_store_dwordx2 v15, v[32:33], {WS}")
        A("L_gnl:")
    A(f"global_store_dwordx2 v14, v[32:33], {WS} sc1")
    A("s_mov_b64 exec, -1")
    A("L_gdone:")
    stamp(3)
    A("s_branch L_qpoll")

    NM = T - 28; nmask = T - min(r['n'] for r in roles.values())
    NW = 39 - T
    S0 = len(A.lines)
    A("L_stream:")
    if kprio: A(f"s_setprio {kprio}")
    A("s_sub_u32 s21, s3, 4")
    if yprio == 1: A("s_cmp_lt_u32 s21, 4\ns_cbranch_scc1 L_yp\ns_setprio 1\nL_yp:")
    A("v_bfe_u32 v1, v0, 2, 2\nv_lshlrev_b32 v1, 8, v1\nv_lshrrev_b32 v4, 4, v0\nv_lshl_add_u32 v1, v4, 6, v1\nv_and_b32 v4, 3, v0\nv_lshl_add_u32 v1, v4, 4, v1")
    A(f"s_lshl_b32 s19, s4, 23\ns_mul_i32 s16, s5, {28*8192}\ns_add_u32 s16, s16, s19\ns_lshl_b32 s17, s21, 12\ns_add_u32 s16, s16, s17")
    A("s_mov_b32 s10, 0x4000000\ns_mov_b32 s11, 0x20000")
    hcnt = sum(PLANS[plan]['H'][x] << (4 * x) for x in range(8))
    A(f"s_lshl_b32 s17, s4, 2\ns_lshr_b32 s35, {hcnt:#x}, s17\ns_and_b32 s35, s35, {15 if hfirst else 0}")
    A("s_waitcnt lgkmcnt(0)")
    A(f"s_mov_b32 s8, s{P_K}\ns_mov_b32 s9, s{P_K+1}")
    A("s_cmp_ge_u32 s5, s35\ns_cbranch_scc1 L_s1\ns_barrier\nL_s1:")
    KR = lambda t: 168 - 4 * T + 4 * t
    nS = (T + 3) // 4; nP = (T + 7) // 8
    first_v = nS - 1 + nP + 1
    vslots = [12 + 4 * i for i in range(NW)] + [KR(i) for i in range(first_v, T)]
    VR = lambda t: vslots[t % len(vslots)]
    st = {"cur": None}
    mpos = [6 + (j * (T - 12)) // max(nmask, 1) for j in range(nmask)]
    rest = list(range(NM, NM + 6)) + list(range(nmask, NM)) + list(range(NM + 6, T))
    perm = []
    for t in range(T):
        if t in mpos: perm.append(mpos.index(t))
        else: perm.append(rest.pop(0))
    first_nm = min(t for t in range(T) if perm[t] < NM)
    assert first_nm >= win
    hist = []
    def wcount(w):
        c = 0
        for n_, m_ in enumerate(reversed(hist)):
            if not m_:
                if c == w - 1: return n_
                c += 1
        return None
    def ld(which, t):
        o = perm[t]
        hist.append(o < nmask)
        if o < NM:
            A(f"s_add_u32 s20, s17, {o*8192}"); st["cur"] = None; imm = 0
            if o < nmask: A(f"s_cmp_gt_u32 s18, {o}\ns_cselect_b32 s20, 0x4000000, s20")
        else:
            key = (o - NM) >> 2; imm = ((o - NM) & 3) * 1024
            if st["cur"] != key:
                A(f"s_add_u32 s20, s16, {key*32768}"); st["cur"] = key
        if which == "K": A(f"buffer_load_dwordx4 {v4(KR(t))}, v1, s[8:11], s20 offen offset:{imm} {kpol}")
        else: A(f"buffer_load_dwordx4 {v4(VR(t))}, v2, s[12:15], s20 offen offset:{imm} {vpol}")
    korder = list(range(T))
    seq = [("K", t) for t in korder] + [("V", t) for t in range(NW)]
    for i, (wh, t) in enumerate(seq):
        if i == win:
            if st0: A("s_memrealtime s[92:93]")
            if ltab: A(rest_ld)
            A("s_branch L_body")
            S1 = len(A.lines)
            A("L_body:")
            srd(12, P_V, 0x4000000)
            if ws1: A(f"s_cmp_lt_u32 s21, {ws1}\ns_cselect_b64 vcc, -1, 0")
            if st0: A("s_waitcnt vmcnt(3)\ns_memrealtime s[94:95]")
            A("s_cmp_lt_u32 s5, s35\ns_cbranch_scc1 L_s2\ns_barrier\nL_s2:\ns_waitcnt lgkmcnt(0)")
            A(f"s_and_b32 s17, s68, 0xfff\ns_bfe_u32 s18, s68, 0x3000c\ns_add_u32 s17, s17, {896-16}\ns_lshl_b32 s17, s17, 13\ns_add_u32 s17, s17, s19\ns_lshl_b32 s19, s21, 10\ns_add_u32 s17, s17, s19")
        if i == T and kprio: A("s_setprio 0")
        if wcount(win) is not None and perm[t] >= nmask:
            if ws1:
                lb = A.label("w"); A(f"s_cbranch_vccz {lb}\ns_waitcnt vmcnt({wcount(win-1)})\n{lb}:")
            A(f"s_waitcnt vmcnt({wcount(win)})")
        ld(wh, t)
        if i == qtrig: A(f"v_mov_b32 v8, 0\nv_mov_b32 v9, 1\ns_mov_b64 exec, 1\nds_max_u32 v8, v9 offset:{L_FK}\ns_mov_b64 exec, -1")
        if i == qtrig2 and qloc: A(f"v_mov_b32 v8, 0\nv_mov_b32 v9, 2\ns_mov_b64 exec, 1\nds_max_u32 v8, v9 offset:{L_FK}\ns_mov_b64 exec, -1")
    viss = NW
    A("v_and_b32 v8, 3, v0\nv_lshlrev_b32 v8, 8, v8\nv_lshrrev_b32 v9, 4, v0\nv_lshl_add_u32 v8, v9, 6, v8\nv_bfe_u32 v9, v0, 2, 2\nv_lshl_add_u32 v8, v9, 4, v8\nv_mov_b32 v9, 0")
    A(f"s_mov_b32 s22, {f2x(128**-0.5*1.4426950408889634)}")
    for t in range(nmask): A(f"s_cmp_gt_u32 s18, {t}\ns_cselect_b32 s{28+t}, 0xff800000, 0")
    stamp(1)
    lspin("sq", L_FQ, 1, 9, 10, 2, lambda: A(f"ds_read_b128 v[4:7], v8 offset:{L_Q}"))
    stamp(2)
    kl = {"landed": T + NW - win - 3}
    DR = lambda t: 8 if t == 0 else KR(t - 1)
    SR = lambda t: (8 + t) if t < 4 else KR((t >> 2) - 1) + (t & 3)
    def M(t):
        if t >= kl["landed"]:
            A(f"s_waitcnt vmcnt({len(hist)-1-t})"); kl["landed"] = t + 1
        A(f"v_mfma_f32_16x16x32_bf16 {v4(DR(t))}, {v4(KR(t))}, v[4:7], 0")
    def AB(t):
        d = DR(t)
        A(f"v_add_f32_dpp v{d}, v{d+1}, v{d} row_shl:4 {DPPF} bound_ctrl:0")
        A(f"v_add_f32_dpp v{d+2}, v{d+3}, v{d+2} row_shl:4 {DPPF} bound_ctrl:0")
    def S(t):
        d = DR(t)
        A(f"v_add_f32_dpp v{SR(t)}, v{d+2}, v{d} row_shl:8 {DPPF} bound_ctrl:0")
    mark0 = len(A.lines)
    if yprio == 2: A("s_cmp_lt_u32 s21, 4\ns_cbranch_scc1 L_yp\ns_setprio 1\nL_yp:")
    M(0); M(1); M(2)
    for t in range(T + 1):
        if t < T: AB(t)
        if t >= 1:
            S(t - 1)
            if vmid and t - 2 >= first_v and (t - 2 - first_v) % vmid == 0:
                ld("V", viss); viss += 1
        if t + 3 < T: M(t + 3)
    TM = KR(first_v - 1)
    Sl = [SR(t) for t in range(T)]
    for t in range(nmask): A(f"v_add_f32 v{Sl[mpos[t]]}, s{28+t}, v{Sl[mpos[t]]}")
    A(f"v_max3_f32 v{TM}, v{Sl[0]}, v{Sl[1]}, v{Sl[2]}")
    A(f"v_max3_f32 v{TM+1}, v{Sl[3]}, v{Sl[4]}, v{Sl[5]}")
    i = 6; k = 0
    while i < T:
        A(f"v_max3_f32 v{TM+k}, v{TM+k}, v{Sl[i]}, v{Sl[i+1]}"); i += 2; k ^= 1
    A(f"v_max_f32 v{TM}, v{TM}, v{TM+1}")
    xrow("v_max_f32", TM, TM + 1, 16); xrow("v_max_f32", TM, TM + 1, 32)
    A(f"v_mul_f32 v{TM}, s22, v{TM}")
    for t in range(T): A(f"v_fma_f32 v{Sl[t]}, v{Sl[t]}, s22, -v{TM}")
    for t in range(T): A(f"v_exp_f32 v{Sl[t]}, v{Sl[t]}")
    if vmid: ld("V", viss); viss += 1
    A(f"v_add_f32 v{TM+1}, v{Sl[0]}, v{Sl[1]}\nv_add_f32 v{TM+2}, v{Sl[2]}, v{Sl[3]}")
    for t in range(4, T): A(f"v_add_f32 v{TM+1+(t&1)}, v{TM+1+(t&1)}, v{Sl[t]}")
    A(f"v_add_f32 v{TM+1}, v{TM+1}, v{TM+2}")
    xrow("v_add_f32", TM + 1, TM + 2, 16); xrow("v_add_f32", TM + 1, TM + 2, 32)
    A(f"s_lshl_b32 s19, s21, 5\nv_lshl_add_u32 v{TM+2}, v0, 3, s19\nv_mov_b32 v4, 0\nv_mov_b32 v5, 1")
    A("s_mov_b64 exec, 0xf")
    A(f"ds_write_b64 v{TM+2}, {v2(TM)} offset:{L_ST}")
    A("s_mov_b64 exec, 1")
    A(f"ds_add_u32 v4, v5 offset:{L_CS}")
    A("s_mov_b64 exec, -1")
    PR = lambda u: KR(nS - 1 + u)
    rem = T % 8
    assert rem in (2, 4)
    for t in range(0, T - rem, 2): A(f"v_cvt_pk_bf16_f32 v{PR(t//8)+(t%8)//2}, v{Sl[t]}, v{Sl[t+1]}")
    if rem == 2: A(f"v_mov_b32 v{PR(nP-1)+1}, 0")
    A("s_waitcnt lgkmcnt(0)")
    stamp(3)
    ACC = [8] + [KR(i) for i in range(7)]
    TT = [TM, 4]
    def pv(u):
        n = min(8, T - 8 * u)
        if n < 8:
            tb = [VR(8 * u - 8 + j) for j in range(4)]
            for e in range(8):
                Tm = tb[e >> 1] + 2 * (e & 1)
                for p in range(n // 2):
                    a = VR(8 * u + 2 * p) + (e >> 1); b = VR(8 * u + 2 * p + 1) + (e >> 1)
                    A(f"v_perm_b32 v{Tm+p}, v{b}, v{a}, s{24+(e&1)}")
            for e in range(8):
                Tm = tb[e >> 1] + 2 * (e & 1)
                A(f"v_mfma_f32_16x16x16_bf16 {v4(ACC[e])}, {v2(Tm)}, {v2(PR(u))}, {v4(ACC[e])}")
            return
        for e in range(8):
            Tm = TT[e & 1]
            for p in range(n // 2):
                a = VR(8 * u + 2 * p) + (e >> 1); b = VR(8 * u + 2 * p + 1) + (e >> 1)
                A(f"v_perm_b32 v{Tm+p}, v{b}, v{a}, s{24+(e&1)}")
            c = "0" if u == 0 else v4(ACC[e])
            if n == 8: A(f"v_mfma_f32_16x16x32_bf16 {v4(ACC[e])}, {v4(Tm)}, {v4(PR(u))}, {c}")
            else: A(f"v_mfma_f32_16x16x16_bf16 {v4(ACC[e])}, {v2(Tm)}, {v2(PR(u))}, {c}")
    ns = len(vslots)
    if ws2: A(f"s_cmp_lt_u32 s21, {ws2}\ns_cselect_b64 vcc, -1, 0")
    while viss < min(win2, ns):
        ld("V", viss); viss += 1
    done_u = 0
    for L in range(T):
        last = (L % 8 == 7) or L == T - 1
        if L == T - 1:
            X = PR(0)
            A(f"s_waitcnt lgkmcnt(0)\nv_and_b32 v1, 3, v0\nv_lshlrev_b32 v2, 3, v1\nv_mov_b32 v{X+10}, 0\nv_mov_b32 v{X+11}, 1\ns_lshl_b32 s19, s21, 5\nv_add_u32 v{X+9}, s19, v2")
            def rd():
                for w in range(8): A(f"ds_read_b32 v{X+w}, v2 offset:{L_ST+32*w}")
                A(f"ds_read_b32 v{X+8}, v{X+9} offset:{L_ST}")
            lspin("sm", L_CS, 9, X + 10, X + 12, 1, rd)
            A(f"s_mov_b64 exec, 1\nds_add_rtn_u32 v{X+12}, v{X+10}, v{X+11} offset:{L_CT}\ns_mov_b64 exec, -1")
            A(f"v_max3_f32 v{X}, v{X}, v{X+1}, v{X+2}\nv_max3_f32 v{X+3}, v{X+3}, v{X+4}, v{X+5}\nv_max3_f32 v{X}, v{X}, v{X+6}, v{X+7}\nv_max_f32 v{X}, v{X}, v{X+3}")
            A(f"v_sub_f32 v{X}, v{X+8}, v{X}\nv_exp_f32 v{X}, v{X}")
            A(f"v_lshlrev_b32 v1, 6, v1\nv_lshrrev_b32 v2, 4, v0\nv_lshl_add_u32 v1, v2, 4, v1\nv_lshlrev_b32 v2, 4, v0")
            for e in range(8):
                for q in range(2): A(f"v_pk_mul_f32 {v2(ACC[e]+2*q)}, {v2(ACC[e]+2*q)}, {v2(X)} op_sel_hi:[1,0]")
            for t in range(T - rem, T, 2):
                A(f"v_pk_mul_f32 {v2(Sl[t])}, {v2(Sl[t])}, {v2(X)} op_sel_hi:[1,0]\nv_cvt_pk_bf16_f32 v{PR(t//8)+(t%8)//2}, v{Sl[t]}, v{Sl[t+1]}")
            if det: A(f"s_waitcnt lgkmcnt(0)\nv_readfirstlane_b32 s23, v{X+12}\ns_lshl_b32 s19, s21, 11\nv_add_u32 v1, s19, v1\ns_and_b32 s19, s21, 4\nv_mov_b32 v{X+9}, s19")
            else: A(f"s_waitcnt lgkmcnt(0)\nv_readfirstlane_b32 s23, v{X+12}\ns_lshl_b32 s19, s23, 11\nv_add_u32 v1, s19, v1\ns_lshl_b32 s19, s23, 2\nv_mov_b32 v{X+9}, s19")
        can = lambda: viss < T and sum(1 for j in range(L + 1, viss) if perm[j] >= nmask) < (bwin if L >= T - burst else win2) + (perm[viss] < nmask) and (viss < ns or done_u > (viss - ns) // 8)
        if can() and ws2 and viss - 2 - L >= 0:
            lb = A.label("w"); A(f"s_cbranch_vccz {lb}\ns_waitcnt vmcnt({viss-2-L})\n{lb}:")
        if can() or last:
            A(f"s_waitcnt vmcnt({viss-1-L})")
        while can():
            ld("V", viss); viss += 1
            if viss == T:
                A(f"v_mov_b32 v1, 0\nv_mov_b32 v2, 1\ns_mov_b64 exec, 1\nds_add_u32 v1, v2 offset:{L_CV}\ns_mov_b64 exec, -1")
        if last:
            if L == T - 1: stamp(4)
            pv(L // 8); done_u += 1
    assert viss == T
    if nocomp:
        keep = [l for l in A.lines[mark0:] if not l.startswith(("v_mfma", "v_perm_b32", "v_add_f32", "v_exp", "v_fma", "v_max", "v_cvt", "v_permlane"))]
        A.lines[mark0:] = keep
    A("s_mov_b32 exec_lo, 0x000f000f\ns_mov_b32 exec_hi, 0x000f000f")
    for e in range(8): A(f"ds_write_b128 v1, {v4(ACC[e])} offset:{L_OP+e*256}")
    X = PR(0)
    if det: A(f"s_mov_b64 exec, 1\nds_add_u32 v{X+9}, v{X+11} offset:{L_FO}")
    else: A(f"ds_write_b32 v{X+9}, v{X+11} offset:{L_FO}")
    A("s_mov_b64 exec, -1")
    if stamps: A("s_waitcnt lgkmcnt(0)")
    stamp(5)
    A("s_cmp_lg_u32 s23, 0\ns_cbranch_scc1 L_done")
    A("s_setprio 3")
    def a_addr(d, t):
        A(f"s_lshl_b32 s20, s4, 15\ns_lshl_b32 s19, s5, {7 if fl else 6}\ns_add_u32 s20, s20, s19\ns_add_u32 s20, s20, {WS_A}")
        A(f"v_bfe_u32 v{d}, v0, 2, 2\nv_lshlrev_b32 v{d}, 13, v{d}")
        if fl: A(f"v_lshrrev_b32 v{t}, 5, v0\nv_lshl_add_u32 v{d}, v{t}, 12, v{d}\nv_bfe_u32 v{t}, v0, 4, 1\nv_lshl_add_u32 v{d}, v{t}, 6, v{d}")
        else: A(f"v_lshrrev_b32 v{t}, 4, v0\nv_lshl_add_u32 v{d}, v{t}, 11, v{d}")
        A(f"v_and_b32 v{t}, 3, v0\nv_lshl_add_u32 v{d}, v{t}, 4, v{d}\nv_add_u32 v{d}, s20, v{d}")
    a_addr(36, 37)
    A(f"v_add_u32 v37, {WS_AL-WS_A}, v36\nv_mov_b32 v38, 0\nv_mov_b32 v39, 1")
    if xl: A(f"ds_read_b32 v29, v38 offset:{L_MK}\ns_waitcnt lgkmcnt(0)\nv_readfirstlane_b32 s26, v29")
    for hf in range(2 if det else 0):
        def rd8():
            for j in range(4): A(f"ds_read_b128 {v4(40+8*j)}, v2 offset:{L_OP+(4*hf+j)*2048}\nds_read_b128 {v4(44+8*j)}, v2 offset:{L_OP+(4*hf+j)*2048+1024}")
        lspin("so", L_FO + 4 * hf, 4, 38, 28, 1 - hf, rd8)
        for q in range(4): A(f"v_pk_add_f32 {v2(40+2*q)}, {v2(40+2*q)}, {v2(48+2*q)}")
        for q in range(4): A(f"v_pk_add_f32 {v2(56+2*q)}, {v2(56+2*q)}, {v2(64+2*q)}")
        for q in range(4): A(f"v_pk_add_f32 {v2((12 if hf == 0 else 40)+2*q)}, {v2(40+2*q)}, {v2(56+2*q)}")
        if hf:
            for q in range(4): A(f"v_pk_add_f32 {v2(12+2*q)}, {v2(12+2*q)}, {v2(40+2*q)}")
    for i in range(0 if det else 8):
        d = 12 if i == 0 else 20
        lspin("so", L_FO + 4 * i, 1, 38, 28, 1 if (calm and i < 6) else 0, lambda: A(f"ds_read_b128 {v4(d)}, v2 offset:{L_OP+i*2048}\nds_read_b128 {v4(d+4)}, v2 offset:{L_OP+i*2048+1024}"))
        if i:
            for q in range(4): A(f"v_pk_add_f32 {v2(12+2*q)}, {v2(12+2*q)}, {v2(20+2*q)}")
    for q in range(4): A(f"v_cvt_pk_bf16_f32 v{12+q}, v{12+2*q}, v{13+2*q}")
    if loc: A(f"global_store_dwordx4 v37, v[12:15], {WS}")
    if xl: A("s_cmp_eq_u32 s26, 0\ns_cbranch_scc1 L_ng2")
    A(f"global_store_dwordx4 v36, v[12:15], {WS} sc1")
    A("L_ng2:")
    A(f"ds_write_b32 v38, v39 offset:{L_FP}")
    stamp(6)
    end_wave()
    blk = A.lines[S0:S1]; del A.lines[S0:S1]; A.lines[STREAM_MARK:STREAM_MARK] = blk

    A("L_nh:")
    A(f"s_cmp_lg_u32 s64, {E_Q}\ns_cbranch_scc1 L_nq")
    A("v_lshlrev_b32 v1, 17, v12\nv_lshl_add_u32 v1, v13, 4, v1")
    A("s_lshl_b32 s20, s3, 20\ns_lshl_b32 s21, s4, 10\ns_add_u32 s20, s20, s21\ns_mov_b32 s26, s65\ns_lshl_b32 s21, s26, 7\ns_add_u32 s20, s20, s21")
    A("s_lshl_b32 s21, s3, 8\nv_lshl_add_u32 v14, v0, 2, s21")
    A("s_waitcnt lgkmcnt(0)")
    srd(8, P_WQ, 512 * 8192)
    A(f"global_load_dwordx4 v[8:11], v2, {sp(P_X)}\nglobal_load_dword v15, v14, {sp(P_X)}")
    for i in range(16):
        A(f"buffer_load_dwordx4 {v4(40+4*i)}, v1, s[8:11], s20 offen {wpol}")
        if i < 15: A("s_add_u32 s20, s20, 8192")
    A(f"s_load_dword s6, {WS}, 0")
    A("s_barrier")
    A(f"s_lshl_b32 s26, s26, 8\ns_lshl_b32 s21, s4, 11\ns_add_u32 s26, s26, s21\ns_add_u32 s26, s26, {WS_Q}")
    A("s_waitcnt vmcnt(16)")
    unpack(32, [8, 9, 10, 11], 4)
    A("v_add_f32 v4, v32, v33")
    for i in range(2, 8): A(f"v_add_f32 v4, v4, v{32+i}")
    wave_reduce("v_add_f32", 4, 5)
    A(f"v_mul_f32 v4, {f2x(1/512)}, v4")
    for i in range(8): A(f"v_sub_f32 v{32+i}, v{32+i}, v4")
    A("v_mul_f32 v6, v32, v32")
    for i in range(1, 8): A(f"v_fmac_f32 v6, v{32+i}, v{32+i}")
    wave_reduce("v_add_f32", 6, 5)
    A(f"v_mov_b32 v5, {f2x(1e-5)}\nv_fmac_f32 v5, {f2x(1/512)}, v6\nv_rsq_f32 v5, v5")
    unpack(8, [15], 1)
    A("v_sub_f32 v8, v8, v4\nv_sub_f32 v9, v9, v4\nv_mul_f32 v8, v8, v5\nv_mul_f32 v9, v9, v5")
    A(f"v_lshlrev_b32 v15, 1, v14\nv_add_u32 v15, {WS_H}, v15\nv_add_u32 v10, 4096, v15")
    mktag()
    A("s_waitcnt vmcnt(0)")
    stamp(1)
    prb("wq")
    gemv_perm(40, 104, 8)
    if hwait: A("v_mov_b32 v4, 0"); lspin("sh", L_FK, 1, 4, 5, 2)
    poll("ph", lambda: [A(f"global_load_dwordx2 {v2(16+2*k)}, v{15 if k<2 else 10}, {WS} offset:{2048*(k&1)} sc1") for k in range(4)],
         lambda: chk_tags([17, 19, 21, 23], 4), hsleep)
    stamp(2)
    prb("h")
    unpack(24, [16, 18, 20, 22], 4)
    A("v_pk_add_f32 v[24:25], v[24:25], v[26:27]\nv_pk_add_f32 v[28:29], v[28:29], v[30:31]")
    A("v_add_f32 v28, 1.0, v28\nv_add_f32 v29, 1.0, v29\nv_pk_fma_f32 v[24:25], v[8:9], v[28:29], v[24:25]")
    A("L_gx:")
    A("v_cvt_pk_bf16_f32 v24, v24, v25")
    A(f"ds_write_b32 v14, v24 offset:{L_X}")
    A("s_lshl_b32 s21, s3, 8\nv_lshl_add_u32 v15, v12, 5, s21")
    A(f"ds_read_b128 v[24:27], v15 offset:{L_X}\nds_read_b128 v[28:31], v15 offset:{L_X+16}")
    A("s_waitcnt lgkmcnt(0)")
    gemv_dot(104, list(range(24, 32)), 32)
    A("s_branch L_gfin")

    A("L_nq:")
    A("s_waitcnt lgkmcnt(0)")
    A(f"s_load_dword s6, {WS}, 0")
    A("s_barrier")
    mktag()
    A("L_role:")
    A("s_cmp_eq_u32 s64, 0\ns_cbranch_scc1 L_qpoll")
    A(f"s_cmp_eq_u32 s64, {E_B}\ns_cbranch_scc1 L_wb")
    A("s_mov_b32 s21, 98304\nv_mul_lo_u32 v1, v12, s21\nv_lshl_add_u32 v1, v13, 4, v1")
    A(f"s_mul_i32 s20, s3, {128*6144}\ns_add_u32 s26, s70, 2\ns_lshl_b32 s26, s26, 10\ns_lshl_b32 s21, s69, 7\ns_add_u32 s26, s26, s21\ns_add_u32 s20, s20, s26")
    A("s_lshl_b32 s21, s3, 8\nv_lshl_add_u32 v14, v0, 2, s21")
    srd(8, P_WM, 512 * 6144)
    A(f"global_load_dword v15, v14, {sp(P_C)}")
    paced([f"buffer_load_dwordx4 {v4(40+4*i)}, v1, s[8:11], s20 offen {wpol}\ns_add_u32 s20, s20, 6144" for i in range(16)], 0)
    A(f"s_lshl_b32 s26, s26, 1\ns_add_u32 s26, s26, {WS_MOD-4096}")
    A("s_waitcnt vmcnt(0)")
    unpack(24, [15], 1); silu(24, 32, 2)
    gemv_perm(40, 104, 8)
    A("s_branch L_gx")
    def dma(loads, w):
        if skipw: return
        for i, l in enumerate(loads):
            if w and i >= w: A(f"s_waitcnt vmcnt({w-1})")
            A(f"s_add_u32 m0, s23, {1024*i}")
            A(l)
    def wo_issue(lo, hi):
        srd(8, P_WO, 4096 * 1024)
        A("v_lshrrev_b32 v1, 3, v0\nv_lshlrev_b32 v1, 10, v1\nv_and_b32 v4, 7, v0\nv_lshl_add_u32 v1, v4, 4, v1")
        A(f"s_lshl_b32 s20, s4, 19\ns_lshl_b32 s21, s3, 17\ns_add_u32 s20, s20, s21\ns_lshl_b32 s21, s65, 7\ns_add_u32 s20, s20, s21\ns_add_u32 s20, s20, {8192*lo}")
        A(f"s_lshl_b32 s23, s3, 14\ns_add_u32 s23, s23, {L_WT+1024*lo}")
        dma([f"buffer_load_dwordx4 v1, s[8:11], s20 offen {wpol} lds\ns_add_u32 s20, s20, 8192" for i in range(lo, hi)], pace)
    def wo_finish(w):
        A(f"s_lshl_b32 s23, s3, 14\ns_add_u32 s23, s23, {L_WT}")
        A("v_bfe_u32 v1, v0, 2, 2\nv_lshlrev_b32 v1, 10, v1\nv_lshrrev_b32 v4, 4, v0\nv_lshl_add_u32 v1, v4, 12, v1\nv_and_b32 v4, 3, v0\nv_lshl_add_u32 v1, v4, 3, v1\nv_add_u32 v1, s23, v1")
        A(f"s_waitcnt vmcnt({w})")
        k = 0
        for c in range(4):
            for nt in range(4):
                for hi in range(2):
                    A(f"ds_read_b64_tr_b16 {v2(104+16*c+4*nt+2*hi)}, v1 offset:{(c+4*hi)*128+nt*32}")
                    k += 1
                    if k >= 12 and k % 4 == 0: A("s_waitcnt lgkmcnt(8)")
        A("s_waitcnt lgkmcnt(0)")
    A("L_wb:")
    if xl:
        A("s_cmp_lg_u32 s3, 0\ns_cbranch_scc1 L_wb1")
        A(f"s_getreg_b32 s20, hwreg(HW_REG_XCC_ID, 0, 4)\nv_mov_b32 v4, s20\nv_mov_b32 v5, s6\ns_lshl_b32 s20, s4, 7\ns_lshl_b32 s21, s65, 3\ns_add_u32 s20, s20, s21\ns_add_u32 s20, s20, {WS_XB}\nv_mov_b32 v6, s20")
        A(f"s_mov_b64 exec, 1\nglobal_store_dwordx2 v6, v[4:5], {WS} sc1\ns_mov_b64 exec, -1\ns_nop 0")
        A("L_wb1:")
    if bp:
        A("s_cmp_eq_u32 s3, 1\ns_cbranch_scc1 L_qpoll\ns_cmp_eq_u32 s3, 2\ns_cbranch_scc1 L_qpoll")
        srd(8, P_WO, 4096 * 1024)
        A("v_lshrrev_b32 v1, 3, v0\nv_lshlrev_b32 v1, 10, v1\nv_and_b32 v4, 7, v0\nv_lshl_add_u32 v1, v4, 4, v1\ns_lshr_b32 s22, s3, 1")
        A(f"s_lshl_b32 s20, s4, 19\ns_lshl_b32 s21, s22, 18\ns_add_u32 s20, s20, s21\ns_lshl_b32 s21, s65, 7\ns_add_u32 s20, s20, s21")
        A(f"s_lshl_b32 s23, s22, 15\ns_add_u32 s23, s23, {L_WT}\ns_mov_b32 s22, 31")
        A(f"L_wbl:\ns_mov_b32 m0, s23\ns_waitcnt vmcnt({bp-1})\nbuffer_load_dwordx4 v1, s[8:11], s20 offen {wpol} lds\ns_add_u32 s20, s20, 8192\ns_add_u32 s23, s23, 1024\ns_sub_u32 s22, s22, 1\ns_cbranch_scc0 L_wbl")
        A(f"v_mov_b32 v4, 0\nv_mov_b32 v5, 1\ns_waitcnt vmcnt(0)\ns_mov_b64 exec, 1\nds_add_u32 v4, v5 offset:{L_CW}\ns_mov_b64 exec, -1")
    elif not bdefer: wo_issue(0, 16); wo_finish(0)
    elif bearly: wo_issue(0, bearly)
    A("L_qpoll:")
    if w1early:
        A(f"s_cmp_lg_u32 s66, {R_C}\ns_cbranch_scc1 L_qp1\ns_mov_b32 s26, s67")
        srd(8, P_W1, 512 * 3584)
        A("v_lshrrev_b32 v1, 2, v0\ns_mov_b32 s20, 3584\nv_mul_lo_u32 v1, v1, s20\nv_and_b32 v12, 3, v0\nv_lshl_add_u32 v1, v12, 4, v1")
        A(f"s_mul_i32 s20, s3, {128*3584}\ns_lshl_b32 s21, s26, 6\ns_add_u32 s20, s20, s21")
        A(f"s_lshl_b32 s23, s3, 14\ns_add_u32 s23, s23, {L_WT}")
        dma([f"buffer_load_dwordx4 v1, s[8:11], s20 offen {w1pol} lds\ns_add_u32 s20, s20, {16*3584}" for i in range(8)], 0)
        A("L_qp1:")
    if nosvc:
        A(f"v_mov_b32 v10, 0\nv_mov_b32 v5, 1\nds_write_b32 v10, v5 offset:{L_FQ}\ns_mov_b64 exec, 1\nds_add_u32 v10, v5 offset:{L_CS}")
        end_wave()
    A("v_mov_b32 v10, 0\nv_mov_b32 v23, 0\nv_mov_b32 v35, 64")
    A("s_cmp_lg_u32 s3, 1\ns_cbranch_scc1 L_np")
    A(f"s_lshl_b32 s21, s4, 11\ns_add_u32 s21, s21, {WS_Q}\nv_add_u32 v14, s21, v2")
    lspin("sk", L_FK, 1, 10, 11, 16 if calm else 4)
    def ldq():
        if qloc:
            A(f"ds_read_b32 v11, v10 offset:{L_FK}\ns_waitcnt lgkmcnt(0)\nv_readfirstlane_b32 s21, v11\ns_lshr_b32 s21, s21, 1\ns_and_b32 s21, s21, s7")
            if slowfb: A(f"s_cmp_lt_u32 s7, {spin-slowfb}")
            A(f"s_cselect_b32 s21, 0, {WS_QL-WS_Q}\nv_add_u32 v15, s21, v14")
        for i in range(2): A(f"global_load_dwordx4 {v4(16+4*i)}, v{15 if qloc else 14}, {WS} offset:{1024*i} sc1")
    poll("pq", ldq, lambda: chk_tags([17, 19, 21, 23], 4), qsleep)
    A("v_mov_b32 v17, v18\nv_mov_b32 v21, v22\nv_lshlrev_b32 v14, 3, v0\nv_mov_b32 v5, 1")
    A(f"ds_write_b64 v14, v[16:17] offset:{L_Q}\nds_write_b64 v14, v[20:21] offset:{L_Q+512}")
    A(f"ds_write_b32 v10, v5 offset:{L_FQ}")
    stamp(4)
    A("L_np:")
    if xit == 'np': end_wave()
    A("s_cmp_eq_u32 s3, 2\ns_cbranch_scc1 L_post")
    A("s_cmp_eq_u32 s66, 0\ns_cbranch_scc1 L_done")
    A(f"s_cmp_lg_u32 s66, {R_F}\ns_cbranch_scc1 L_ws")
    A("s_cmp_lg_u32 s3, 0\ns_cbranch_scc1 L_done")
    A("L_ws:")
    lspin("ss0", L_CS, 9, 10, 11, 32 if calm else 16)
    A("s_branch L_pre")
    A("L_done:")
    end_wave()
    A("L_post:")
    a_addr(37, 15)
    A("v_bfe_u32 v36, v0, 2, 2")
    for i in range(4): A(f"v_mov_b32 v{16+i}, -1")
    if xl:
        A(f"v_and_b32 v20, 7, v0\ns_lshl_b32 s20, s4, 7\ns_add_u32 s20, s20, {WS_XB}\nv_lshl_add_u32 v20, v20, 3, s20")
        lspin("sg", L_FK, 1, 10, 11, 32 if calm else 8)
        poll("px", lambda: A(f"global_load_dwordx2 v[22:23], v20, {WS} sc1"), lambda: chk_tags([23], 21), 8)
        A("s_getreg_b32 s20, hwreg(HW_REG_XCC_ID, 0, 4)\nv_cmp_ne_u32 vcc, s20, v22\ns_cbranch_vccz L_ng")
        A(f"v_mov_b32 v5, 1\nds_write_b32 v10, v5 offset:{L_MK}")
    A(f"global_store_dwordx4 v37, v[16:19], {WS} sc1")
    A("L_ng:")
    if loc: A(f"v_add_u32 v39, {WS_AL-WS_A}, v37\nglobal_store_dwordx4 v39, v[16:19], {WS}")
    A("v_lshlrev_b32 v38, 3, v36\nv_mov_b32 v5, 1")
    A(f"s_lshl_b32 s20, s4, 11\ns_lshl_b32 s21, s5, {6 if fl else 4}\ns_add_u32 s20, s20, s21\ns_add_u32 s20, s20, {WS_ST}\nv_lshl_add_u32 v36, v36, {4 if fl else 9}, s20")
    A(f"s_waitcnt vmcnt(0)\ns_mov_b64 exec, 1\nds_add_u32 v10, v5 offset:{L_CS}\ns_mov_b64 exec, -1")
    lspin("ss", L_CS, 9, 10, 11, 16 if calm else 8)
    stamp(1)
    for w in range(8): A(f"ds_read_b64 {v2(40+2*w)}, v38 offset:{L_ST+32*w}")
    A("s_waitcnt lgkmcnt(0)")
    A("v_max3_f32 v56, v40, v42, v44\nv_max3_f32 v56, v56, v46, v48\nv_max3_f32 v56, v56, v50, v52\nv_max_f32 v56, v56, v54")
    for w in range(8): A(f"v_sub_f32 v{28+w}, v{40+2*w}, v56")
    for w in range(8): A(f"v_exp_f32 v{28+w}, v{28+w}")
    A("v_mul_f32 v58, v28, v41")
    for w in range(1, 8): A(f"v_fmac_f32 v58, v{28+w}, v{41+2*w}")
    A("s_getreg_b32 s20, hwreg(HW_REG_XCC_ID, 0, 4)\ns_add_u32 s20, s20, s6\nv_mov_b32 v57, s6\nv_mov_b32 v59, s20")
    A("s_mov_b64 exec, 0x1111")
    A(f"global_store_dwordx4 v36, v[56:59], {WS} sc1")
    A("s_mov_b64 exec, -1")
    stamp(2)
    A(f"s_cmp_eq_u32 s66, 0\ns_cbranch_scc1 L_done\ns_cmp_eq_u32 s66, {R_F}\ns_cbranch_scc1 L_done")
    A("L_pre:")
    if xit == 'pre': end_wave()
    A(f"s_cmp_eq_u32 s66, {R_F}\ns_cbranch_scc1 L_tf")
    A(f"s_cmp_eq_u32 s66, {R_C}\ns_cbranch_scc1 L_tc")
    if bp: lspin("sz", L_CW, 2, 10, 11, 16); wo_finish(0)
    A(f"s_lshl_b32 s20, s4, 11\ns_lshl_b32 s21, s3, {4 if fl else 9}\ns_add_u32 s20, s20, s21\ns_add_u32 s20, s20, {WS_ST}")
    A(f"v_and_b32 v4, 31, v0\nv_lshl_add_u32 v5, v4, {6 if fl else 4}, s20")
    lspin("sb", L_CV, strig, 10, 11, 12 if calm else 4)
    poll("ps", lambda: A(f"global_load_dwordx4 v[40:43], v5, {WS} sc1"), lambda: A("v_subrev_u32 v43, s6, v43\nv_xor_b32 v6, s6, v41\nv_lshrrev_b32 v7, 4, v43\nv_or_b32 v6, v6, v7\nv_cmp_ne_u32 vcc, 0, v6"), 8)
    A("s_getreg_b32 s20, hwreg(HW_REG_XCC_ID, 0, 4)\nv_cmp_eq_u32 vcc, s20, v43")
    A("s_and_b32 s28, vcc_lo, 0xffff\ns_mul_i32 s28, s28, 0x10001\ns_mov_b32 s29, s28\ns_lshr_b32 s30, vcc_lo, 16\ns_mul_i32 s30, s30, 0x10001\ns_mov_b32 s31, s30")
    A("v_mov_b32 v44, v40")
    inrow("v_max_f32", 44, ["row_ror:8", "row_ror:4", "row_ror:2", "row_ror:1"]); xrow("v_max_f32", 44, 45, 16)
    A("v_sub_f32 v40, v40, v44\nv_exp_f32 v40, v40\nv_mul_f32 v44, v40, v42")
    inrow("v_add_f32", 44, ["row_ror:8", "row_ror:4", "row_ror:2", "row_ror:1"]); xrow("v_add_f32", 44, 45, 16)
    A("v_rcp_f32 v44, v44\nv_mul_f32 v40, v40, v44")
    A("s_lshl_b32 s20, s3, 8\nv_lshl_add_u32 v4, v4, 2, s20\nv_lshrrev_b32 v5, 4, v0\nv_lshl_add_u32 v5, v5, 4, s20")
    A(f"ds_write_b32 v4, v40 offset:{L_X}\nds_read_b128 v[12:15], v5 offset:{L_X}\nds_read_b128 v[16:19], v5 offset:{L_X+64}")
    A("v_and_b32 v1, 15, v0\nv_lshrrev_b32 v4, 4, v0\nv_lshlrev_b32 v24, 4, v1\nv_lshl_add_u32 v22, v4, 14, v24\nv_lshlrev_b32 v1, %d, v1\nv_lshl_add_u32 v1, v4, 4, v1" % (7 if fl else 6))
    A(f"s_lshl_b32 s20, s4, 15\ns_lshl_b32 s21, s3, 13\ns_add_u32 s20, s20, s21\ns_add_u32 s20, s20, {WS_A}\nv_add_u32 v1, s20, v1")
    A(f"v_add_u32 v5, {(WS_AL-WS_A) if loc else 0}, v1\nv_cndmask_b32 v6, v1, v5, s[28:29]\nv_cndmask_b32 v7, v1, v5, s[30:31]\nv_add_u32 v8, 4096, v6\nv_add_u32 v9, 4096, v7")
    A("s_lshl_b32 s20, s3, 8\nv_lshl_add_u32 v21, v0, 2, s20")
    A(f"s_lshl_b32 s20, s4, 11\ns_lshl_b32 s21, s67, 8\ns_add_u32 s20, s20, s21\ns_add_u32 s20, s20, {WS_B}\ns_lshl_b32 s21, s3, 16\ns_add_u32 s20, s20, s21\nv_add_u32 v22, s20, v22")
    A("s_waitcnt lgkmcnt(0)")
    stamp(5)
    AR = lambda c, s_: 40 + 16 * s_ + 4 * c
    D = lambda s_, nt: 72 + 16 * s_ + 4 * nt
    def lda(s_):
        for c in range(4): A(f"global_load_dwordx4 {v4(AR(c,s_))}, v{6+s_+(0 if c<2 else 2)}, {WS} offset:{(64*(c&1)+2048*s_) if fl else (2048*(c&1)+1024*s_)} {lpol}")
    def mm(s_, other_done):
        for c in range(4):
            for nt in range(4):
                d = D(s_, nt)
                A(f"v_mfma_f32_16x16x32_bf16 {v4(d)}, {v4(AR(c,s_))}, {v4(104+16*c+4*nt)}, {'0' if c==0 else v4(d)}")
        wr = 12 + 4 * s_
        for nt in range(4):
            d = D(s_, nt); o = D(1 - s_, nt); t = D(0, nt) if other_done else d
            if det:
                A(f"v_pk_mul_f32 {v2(d)}, {v2(d)}, {v2(wr)}\nv_pk_fma_f32 {v2(d)}, {v2(d+2)}, {v2(wr+2)}, {v2(d)}\nv_add_f32 v{d}, v{d}, v{d+1}")
            elif other_done: A(f"v_pk_fma_f32 {v2(o)}, {v2(d)}, {v2(wr)}, {v2(o)}\nv_pk_fma_f32 {v2(t)}, {v2(d+2)}, {v2(wr+2)}, {v2(o)}")
            else: A(f"v_pk_mul_f32 {v2(d)}, {v2(d)}, {v2(wr)}\nv_pk_fma_f32 {v2(d)}, {v2(d+2)}, {v2(wr+2)}, {v2(d)}")
    if dry:
        A("s_mov_b64 s[80:81], 0\ns_mov_b64 s[32:33], 0\ns_mov_b64 s[34:35], 0\ns_mov_b32 s84, 0\ns_mov_b64 exec, 0\ns_branch L_pb0")
        A("L_bdr:\ns_cmp_eq_u32 s84, 0\ns_mov_b32 s84, 1\ns_cbranch_scc1 L_pb1\ns_mov_b64 exec, -1")
    A("s_mov_b64 s[80:81], -1")
    if bdefer:
        if bdefer <= 8: lspin("sd", L_CV, bdefer, 10, 11, 1)
        else: lspin("sd", L_FP, 1, 10, 11, 1)
        A("s_setprio 1"); wo_issue(bearly, 16); lda(0); lda(1); A("s_setprio 3"); wo_finish(8)
        stamp(4)
        A(f"s_mov_b32 s7, {spin}\ns_branch L_pa2")
    A(f"s_mov_b32 s7, {spin}\ns_mov_b64 s[32:33], -1\ns_mov_b64 s[34:35], -1")
    A("L_pa:")
    A("s_mov_b64 exec, s[32:33]"); lda(0)
    A("s_mov_b64 exec, s[34:35]"); lda(1)
    A("s_mov_b64 exec, -1")
    A("L_pa2:")
    A("s_waitcnt vmcnt(4)")
    chk_sent(range(40, 56), 23); A("s_mov_b64 s[32:33], vcc")
    A("s_waitcnt vmcnt(0)")
    chk_sent(range(56, 72), 23); A("s_mov_b64 s[34:35], vcc")
    A("s_cbranch_vccz L_pa1\ns_cmp_eq_u64 s[32:33], 0\ns_cbranch_scc1 L_pa0")
    if tsleep: A(f"s_sleep {tsleep}")
    if bhold:
        A("s_mov_b32 s85, s7"); lspin("sy", L_FO + 4 * (bhold - 1), 1, 10, 11, 2); A("s_mov_b32 s7, s85")
    A("s_sub_u32 s7, s7, 1\ns_cbranch_scc0 L_pa")
    for first in (0, 1):
        sec = 1 - first
        A(f"L_pa{first}:")
        mk = sp(32 + 2 * sec)
        A(f"s_cmp_eq_u64 {mk}, 0\ns_cbranch_scc1 L_pb{first}")
        A(f"s_mov_b64 exec, {mk}"); lda(sec); A("s_mov_b64 exec, -1")
        A(f"L_pb{first}:")
        mm(first, False)
        A(f"s_mov_b64 exec, {mk}\ns_cbranch_execz L_pd{first}")
        for _ in range(pd - 1): lda(sec)
        A(f"L_pc{first}:")
        A(f"s_waitcnt vmcnt({4*(pd-1)})")
        chk_sent(range(40 + 16 * sec, 56 + 16 * sec), 23)
        A(f"s_cbranch_vccz L_pd{first}\ns_mov_b64 exec, vcc")
        lda(sec)
        A(f"s_sub_u32 s7, s7, 1\ns_cbranch_scc0 L_pc{first}\ns_waitcnt vmcnt(0)")
        A(f"L_pd{first}:")
        A("s_mov_b64 exec, s[80:81]")
        stamp(6)
        mm(sec, True)
        if first == 0: A("s_branch L_pe")
    A("L_pe:\ns_nop 0")
    for nt in range(4): A(f"v_add_f32 v{D(0,nt)}, v{D(0,nt)}, v{D(1,nt) if det else D(0,nt)+1}")
    A("v_permlane32_swap_b32 v72, v80\nv_permlane32_swap_b32 v76, v84\nv_add_f32 v72, v72, v80\nv_add_f32 v76, v76, v84")
    A("v_permlane16_swap_b32 v72, v76\nv_add_f32 v72, v72, v76")
    A(f"ds_write_b32 v21, v72 offset:{L_RED}")
    A("s_waitcnt lgkmcnt(0)")
    if dry: A("s_cbranch_execz L_bnb")
    A("s_barrier")
    A(f"s_cmp_ge_u32 s3, {2 if R == 8 else 1}\ns_cbranch_scc1 L_done")
    A("L_bnb:")
    for w in range(4): A(f"ds_read_b128 {v4(88+4*w)}, v24 offset:{L_RED+256*w}")
    assert R in (4, 8)
    A("s_waitcnt lgkmcnt(2)\nv_pk_add_f32 v[88:89], v[88:89], v[92:93]\nv_pk_add_f32 v[90:91], v[90:91], v[94:95]")
    A("s_waitcnt lgkmcnt(0)\nv_pk_add_f32 v[96:97], v[96:97], v[100:101]\nv_pk_add_f32 v[98:99], v[98:99], v[102:103]")
    A("v_pk_add_f32 v[88:89], v[88:89], v[96:97]\nv_pk_add_f32 v[90:91], v[90:91], v[98:99]")
    if dry: A("s_cbranch_execz L_bdr")
    A(f"global_store_dwordx4 v22, v[88:91], {WS} sc1")
    stamp(7)
    end_wave()
    A("L_tc:")
    A("s_mov_b32 s26, s67")
    srd(8, P_W1, 512 * 3584); srd(12, P_W2, 1792 * 1024)
    A("v_lshrrev_b32 v23, 4, v0\nv_lshlrev_b32 v23, 4, v23")
    A("v_lshrrev_b32 v1, 2, v0\ns_mov_b32 s20, 3584\nv_mul_lo_u32 v1, v1, s20\nv_and_b32 v12, 3, v0\nv_lshl_add_u32 v1, v12, 4, v1")
    A(f"s_mul_i32 s20, s3, {128*3584}\ns_lshl_b32 s21, s26, 6\ns_add_u32 s20, s20, s21")
    A("v_lshlrev_b32 v18, 6, v23\nv_and_b32 v13, 15, v0\nv_lshl_add_u32 v18, v13, 4, v18")
    A("s_lshl_b32 s27, s26, 15\ns_lshl_b32 s21, s3, 8\ns_add_u32 s27, s27, s21")
    A(f"s_lshl_b32 s23, s3, 14\ns_add_u32 s23, s23, {L_WT}")
    if not w1early: dma([f"buffer_load_dwordx4 v1, s[8:11], s20 offen {w1pol} lds\ns_add_u32 s20, s20, {16*3584}" for i in range(8)], 0)
    def w2load():
        A("s_add_u32 s23, s23, 8192")
        dma([f"buffer_load_dwordx4 v18, s[12:15], s27 offen {wpol} lds\ns_add_u32 s27, s27, 4096" for i in range(8)], 0)
    A("v_lshrrev_b32 v12, 4, v0\nv_bfe_u32 v13, v0, 2, 2\nv_and_b32 v14, 3, v0\nv_lshl_add_u32 v14, v14, 3, s23")
    A("v_lshl_add_u32 v1, v12, 9, v14\nv_lshl_add_u32 v1, v13, 6, v1")
    A("v_lshl_add_u32 v19, v12, 10, v14\nv_lshl_add_u32 v19, v13, 8, v19")
    if not w2late: w2load()
    A("v_and_b32 v20, 31, v0\nv_lshlrev_b32 v20, 3, v20\nv_lshrrev_b32 v21, 5, v0\nv_lshl_add_u32 v20, v21, 2, v20")
    A("s_lshl_b32 s20, s3, 8\nv_add_u32 v20, s20, v20")
    A(f"global_load_dword v22, v20, {sp(P_X)}\nglobal_load_dwordx4 v[28:31], v2, {sp(P_X)}")
    A(f"v_lshlrev_b32 v21, 1, v20\nv_add_u32 v21, {WS_MOD}, v21\nv_add_u32 v24, 4096, v21")
    poll("pm", lambda: A(f"global_load_dwordx2 v[40:41], v21, {WS} sc1\nglobal_load_dwordx2 v[42:43], v21, {WS} offset:2048 sc1\nglobal_load_dwordx2 v[44:45], v24, {WS} sc1"),
         lambda: chk_tags([41, 43, 45], 46), 16)
    unpack(4, [22, 40, 44], 3)
    unpack(48, [28, 29, 30, 31], 4)
    A("v_pk_add_f32 v[48:49], v[48:49], v[50:51]\nv_pk_add_f32 v[52:53], v[52:53], v[54:55]\nv_pk_add_f32 v[48:49], v[48:49], v[52:53]\nv_add_f32 v48, v48, v49")
    wave_reduce("v_add_f32", 48, 49)
    A(f"v_mul_f32 v48, {f2x(1/512)}, v48\nv_sub_f32 v4, v4, v48\nv_sub_f32 v5, v5, v48")
    A("v_add_f32 v8, 1.0, v8\nv_add_f32 v9, 1.0, v9\nv_cvt_pk_bf16_f32 v44, v8, v9")
    unpack(8, [44], 1)
    A(f"ds_write_b32 v20, v44 offset:{L_U}\nds_write_b32 v20, v42 offset:{L_U+1024}")
    A("v_add_u32 v21, s20, v23\nv_and_b32 v22, 1, v0\nv_lshl_add_u32 v22, v22, 10, v21")
    for c in range(4): A(f"ds_read_b128 {v4(48+4*c)}, v22 offset:{L_U+64*c}")
    for c in range(4):
        for mt in range(2):
            for hi in range(2):
                A(f"ds_read_b64_tr_b16 {v2(104+8*c+4*mt+2*hi)}, v1 offset:{(32*c+4*hi)*64+mt*32}")
        if c & 1: A("s_waitcnt lgkmcnt(0)")
    for c in range(4):
        for mt in range(2):
            A(f"v_mfma_f32_16x16x32_bf16 {v4(24+4*mt)}, {v4(104+8*c+4*mt)}, {v4(48+4*c)}, {'0' if c==0 else v4(24+4*mt)}")
    A("s_mov_b32 exec_lo, 0x00030003\ns_mov_b32 exec_hi, 0x00030003")
    A(f"ds_write_b128 v22, v[24:27] offset:{L_GS}\nds_write_b128 v22, v[28:31] offset:{L_GS+64}")
    A("s_mov_b64 exec, 1\nv_mov_b32 v33, 1")
    A(f"ds_add_u32 v10, v33 offset:{L_CP}")
    A("s_mov_b64 exec, -1")
    A("v_and_b32 v1, 31, v0\nv_lshlrev_b32 v1, 4, v1\nv_lshrrev_b32 v16, 5, v0\nv_lshl_add_u32 v1, v16, 11, v1")
    A(("s_lshr_b32 s21, s4, 1" if rx else f"s_and_b32 s21, {'s4' if R == 8 else 's26'}, {R-1}") + f"\ns_lshl_b32 s21, s21, 14\ns_lshl_b32 s20, s3, 9\ns_add_u32 s20, s20, s21\ns_add_u32 s20, s20, {WS_B}\nv_add_u32 v1, s20, v1")
    A("v_add_u32 v12, 4096, v1\nv_add_u32 v13, 8192, v1\nv_add_u32 v14, 12288, v1")
    A(f"s_lshl_b32 s20, s3, 8\nv_lshl_add_u32 v22, v16, 2, s20")
    A("v_and_b32 v33, 3, v0\nv_lshlrev_b32 v33, 8, v33\nv_bfe_u32 v32, v0, 3, 1\nv_lshl_add_u32 v32, v32, 6, v33\nv_add_u32 v32, v32, v23")
    A(f"s_mov_b32 s22, {f2x(1/512)}\nv_mov_b32 v34, {f2x(1e-5)}")
    lspin("sp", L_CP, 4, 10, 11, 4, lambda: A(f"ds_read_b128 v[24:27], v32 offset:{L_GS}\nds_read_b128 v[28:31], v32 offset:{L_GS+1024}"))
    for qp in ("[1,0,3,2]", "[2,3,0,1]"):
        for i in range(8): A(f"v_add_f32_dpp v{24+i}, v{24+i}, v{24+i} quad_perm:{qp} {DPPF}")
    if dry:
        A("s_mov_b64 s[80:81], 0\ns_mov_b64 s[82:83], 0\ns_mov_b64 exec, 0\ns_branch L_pbd\nL_cdr:\ns_mov_b64 exec, -1")
    A("s_mov_b64 s[80:81], -1\ns_mov_b32 s82, 0x00010001\ns_mov_b32 s83, 0x00010001")
    stamp(4)
    if calm: lspin("sv0", L_CV, 4, 10, 11, 16)
    if w2late > 1:
        lspin("sv1", L_FO + 4 * (w2late - 2), 1, 10, 11, 2); A("s_setprio 0"); w2load(); A("s_setprio 3")
    else:
        lspin("sv", L_FP, 1, 10, 11, 2)
        if w2late: w2load()
    cs = 13 if cpad else 12
    A(f"s_lshl_b32 s20, s3, {cs+3}\ns_lshl_b32 s21, s26, {cs-6}\ns_add_u32 s20, s20, s21\ns_add_u32 s20, s20, {WS_C}")
    A(f"v_bfe_u32 v35, v0, 2, 3\nv_lshlrev_b32 v35, {cs}, v35\nv_and_b32 v36, 3, v0\nv_lshl_add_u32 v35, v36, 4, v35\nv_add_u32 v35, s20, v35")
    A("s_waitcnt vmcnt(0)")
    for tau in range(8):
        for hi in range(2):
            A(f"ds_read_b64_tr_b16 {v2(136+4*tau+2*hi)}, v19 offset:{8192+hi*4096+tau*32}")
        if tau % 4 == 3: A("s_waitcnt lgkmcnt(0)")
    stamp(5)
    G = 40; Hh = 88
    def gather4(name, base, addr, tmp, sleep):
        A(f"s_mov_b32 s7, {spin}")
        for _ in range(pd):
            for i in range(4): A(f"global_load_dwordx4 {v4(base+4*i)}, {addr(i)} sc1")
        A(f"L_{name}t:")
        A(f"s_waitcnt vmcnt({4*(pd-1)})")
        for i in range(4): A(f"v_max3_u32 v{tmp+i}, v{base+4*i}, v{base+4*i+1}, v{base+4*i+2}")
        for i in range(4): A(f"v_max_u32 v{tmp+i}, v{tmp+i}, v{base+4*i+3}")
        A(f"v_max3_u32 v{tmp+4}, v{tmp}, v{tmp+1}, v{tmp+2}\nv_max_u32 v{tmp+4}, v{tmp+4}, v{tmp+3}\nv_cmp_eq_u32 vcc, -1, v{tmp+4}\ns_cbranch_vccz L_{name}d")
        for i in range(4): A(f"v_cmp_eq_u32 {sp(28+2*i)}, -1, v{tmp+i}")
        if sleep: A(f"s_sleep {sleep}")
        for i in range(4):
            A(f"s_or_b64 exec, {sp(28+2*i)}, 1\nglobal_load_dwordx4 {v4(base+4*i)}, {addr(i)} sc1")
        A(f"s_mov_b64 exec, -1\ns_sub_u32 s7, s7, 1\ns_cbranch_scc0 L_{name}t")
        A(f"L_{name}d:")
    gather4("pb", Hh, lambda i: f"v{1 if i==0 else 11+i}, {WS}", 56, csleep)
    stamp(6)
    A(f"v_pk_add_f32 {v2(G)}, {v2(Hh)}, {v2(Hh+4)}\nv_pk_add_f32 {v2(G+2)}, {v2(Hh+2)}, {v2(Hh+6)}\nv_pk_add_f32 {v2(G+8)}, {v2(Hh+8)}, {v2(Hh+12)}\nv_pk_add_f32 {v2(G+10)}, {v2(Hh+10)}, {v2(Hh+14)}")
    A(f"v_pk_add_f32 {v2(G)}, {v2(G)}, {v2(G+8)}\nv_pk_add_f32 {v2(G+2)}, {v2(G+2)}, {v2(G+10)}")
    A(f"v_permlane32_swap_b32 v{G}, v{G+2}\nv_permlane32_swap_b32 v{G+1}, v{G+3}")
    A(f"v_pk_add_f32 {v2(G)}, {v2(G)}, {v2(G+2)}")
    A(f"v_pk_fma_f32 v[4:5], {v2(G)}, v[6:7], v[4:5]")
    A("v_pk_mul_f32 v[6:7], v[4:5], v[8:9]\nv_cvt_pk_bf16_f32 v6, v6, v7")
    A(f"ds_write_b32 v20, v6 offset:{L_U}")
    for c in range(4): A(f"ds_read_b128 {v4(44+4*c)}, v21 offset:{L_U+64*c}")
    A("v_add_f32 v16, v4, v5\nv_mul_f32 v17, v4, v4\nv_fmac_f32 v17, v5, v5")
    A("v_permlane32_swap_b32 v16, v17\nv_add_f32 v16, v16, v17")
    xrow("v_add_f32", 16, 17, 16)
    steps = ["row_ror:8", "row_ror:4", "row_ror:2", "row_ror:1"]
    for c in range(4):
        A(f"s_waitcnt lgkmcnt({3-c})")
        for mt in range(2):
            A(f"v_mfma_f32_16x16x32_bf16 {v4(60+4*mt)}, {v4(104+8*c+4*mt)}, {v4(44+4*c)}, {'0' if c==0 else v4(60+4*mt)}")
        inrow("v_add_f32", 16, [steps[c]])
    A("s_mov_b64 exec, s[82:83]")
    A(f"ds_write_b32 v22, v16 offset:{L_RED+128}")
    A(f"ds_write_b128 v21, v[60:63] offset:{L_RED}\nds_write_b128 v21, v[64:67] offset:{L_RED+64}")
    A("s_mov_b64 exec, s[80:81]")
    A("s_waitcnt lgkmcnt(0)")
    if dry: A("s_cbranch_execz L_cnb")
    A("s_barrier\nL_cnb:")
    A(f"ds_read_b64 v[12:13], v33 offset:{L_RED+128}\nds_read_b128 v[40:43], v32 offset:{L_RED}")
    A("s_waitcnt lgkmcnt(0)")
    for qp in ("[1,0,3,2]", "[2,3,0,1]"):
        for r in (12, 13, 40, 41, 42, 43): A(f"v_add_f32_dpp v{r}, v{r}, v{r} quad_perm:{qp} {DPPF}")
    A("v_mul_f32 v12, s22, v12\nv_fma_f32 v14, v13, s22, v34\nv_fma_f32 v14, -v12, v12, v14\nv_max_f32 v14, v14, v34\nv_rsq_f32 v14, v14")
    for q in range(2): A(f"v_pk_fma_f32 {v2(40+2*q)}, {v2(24+2*q)}, v[12:13], {v2(40+2*q)} op_sel_hi:[1,0,1] neg_lo:[0,1,0] neg_hi:[0,1,0]")
    for q in range(2): A(f"v_pk_fma_f32 {v2(40+2*q)}, {v2(40+2*q)}, v[14:15], {v2(28+2*q)} op_sel_hi:[1,0,1]")
    for q in range(2): A(f"v_cvt_pk_bf16_f32 v{48+q}, v{40+2*q}, v{41+2*q}")
    for q in range(2): A(f"v_pk_max_i16 v{48+q}, v{48+q}, 0")
    for q in range(2): A(f"v_mov_b32_dpp v{50+q}, v{48+q} row_shl:8 {DPPF} bound_ctrl:0")
    for tau in range(8): A(f"v_mfma_f32_16x16x32_bf16 {v4(56+4*tau)}, v[48:51], {v4(136+4*tau)}, 0")
    for tau in range(1, 8):
        A(f"v_mov_b32_dpp v{56+(tau>>1)}, v{56+4*tau} quad_perm:[0,1,2,3] row_mask:{1<<(tau&1):#x} bank_mask:0xf")
    if dry: A("s_cbranch_execz L_cdr")
    A("s_mov_b32 exec_hi, 0")
    A(f"global_store_dwordx4 v35, v[56:59], {WS} sc1")
    stamp(7)
    end_wave()
    A("L_tf:")
    prb("cs")
    A("s_mov_b32 s26, s67\ns_lshr_b32 s20, s26, 3\ns_lshl_b32 s20, s20, 7\ns_and_b32 s21, s26, 7\ns_lshl_b32 s21, s21, 2\ns_add_u32 s20, s20, s21")
    A("v_and_b32 v4, 3, v0\nv_lshrrev_b32 v5, 4, v0\nv_lshl_add_u32 v4, v5, 5, v4\nv_add_u32 v4, s20, v4\nv_lshlrev_b32 v5, 1, v4")
    A(f"global_load_ushort v8, v5, {sp(P_X)}")
    A(f"v_lshrrev_b32 v6, 1, v4\nv_lshlrev_b32 v6, 3, v6\nv_add_u32 v6, {WS_MOD}, v6\nv_add_u32 v7, 6144, v6")
    poll("pg", lambda: A(f"global_load_dwordx2 v[12:13], v6, {WS} sc1\nglobal_load_dwordx2 v[14:15], v7, {WS} sc1"),
         lambda: chk_tags([13, 15], 16), 16)
    A("v_lshlrev_b32 v8, 16, v8")
    A("v_and_b32 v16, 1, v4\nv_cmp_eq_u32 vcc, 0, v16")
    A("v_lshlrev_b32 v16, 16, v12\nv_and_b32 v17, 0xffff0000, v12\nv_cndmask_b32 v9, v17, v16, vcc")
    A("v_lshlrev_b32 v16, 16, v14\nv_and_b32 v17, 0xffff0000, v14\nv_cndmask_b32 v12, v17, v16, vcc")
    A(f"v_bfe_u32 v6, v0, 2, 2\nv_lshlrev_b32 v6, 12, v6\nv_lshl_add_u32 v6, v4, 2, v6\nv_add_u32 v6, {WS_B}, v6")
    if R == 8: A("s_lshl_b32 s20, s4, 14\nv_add_u32 v6, s20, v6")
    if rx: A("s_lshr_b32 s20, s4, 1\ns_lshl_b32 s20, s20, 14\nv_add_u32 v6, s20, v6")
    if cpad: A(f"s_lshl_b32 s20, s26, 13\ns_add_u32 s20, s20, {WS_C}\nv_lshrrev_b32 v7, 2, v0\nv_lshl_add_u32 v7, v7, 6, v2\nv_add_u32 v7, s20, v7\nv_add_u32 v32, 4096, v7")
    else: A(f"s_lshl_b32 s20, s26, 12\ns_add_u32 s20, s20, {WS_C}\nv_add_u32 v7, s20, v2")
    if dry: A("s_mov_b64 exec, 0\ns_branch L_fd\nL_fdr:\ns_mov_b64 exec, -1")
    lspin("sf", L_FP, 1, 10, 11, 16 if calm else 4)
    prb("fp")
    poll("pxb", lambda: A(f"global_load_dword v13, v6, {WS} sc1\nglobal_load_dword v14, v6, {WS} offset:2048 sc1"), lambda: chk_sent([13, 14], 15), xsleep)
    A("v_add_f32 v13, v13, v14")
    inrow("v_add_f32", 13, ["row_ror:8", "row_ror:4"])
    A("v_fma_f32 v8, v9, v13, v8")
    prb("b")
    stamp(6)
    if fdelay: A(f"s_sleep {fdelay}")
    gather4("pc", 40, lambda i: f"v{(7 if i<2 else 32) if cpad else 7}, {WS} offset:{2048*(i&1) if cpad else 1024*i}", 56, fsleep)
    A("L_fd:")
    stamp(7)
    A("v_pk_add_f32 v[16:17], v[40:41], v[44:45]\nv_pk_add_f32 v[18:19], v[42:43], v[46:47]\nv_pk_add_f32 v[24:25], v[48:49], v[52:53]\nv_pk_add_f32 v[26:27], v[50:51], v[54:55]")
    A("v_pk_add_f32 v[16:17], v[16:17], v[24:25]\nv_pk_add_f32 v[18:19], v[18:19], v[26:27]")
    A("v_permlane32_swap_b32 v16, v18\nv_permlane32_swap_b32 v17, v19\nv_pk_add_f32 v[16:17], v[16:17], v[18:19]")
    A("v_permlane16_swap_b32 v16, v17\nv_add_f32 v16, v16, v17")
    inrow("v_add_f32", 16, ["row_ror:8", "row_ror:4"])
    A("v_fma_f32 v16, v12, v16, v8\nv_cvt_pk_bf16_f32 v16, v16, v16")
    if dry: A("s_cbranch_execz L_fdr")
    A("s_mov_b32 exec_lo, 0x000f000f\ns_mov_b32 exec_hi, 0x000f000f")
    A(f"global_store_short v5, v16, {sp(P_OUT)}")
    A("s_cmp_lg_u32 s26, 0\ns_cbranch_scc1 L_tfe")
    A("s_mov_b64 exec, 1\nv_mov_b32 v18, s6")
    A(f"global_store_dword v10, v18, {WS}")
    if fixend:
        prb("end")
        A(f"L_fx:\ns_memrealtime s[98:99]\ns_waitcnt lgkmcnt(0)\ns_sub_u32 s98, s98, {'s94' if probe else 's96'}\ns_cmp_lt_u32 s98, {fixend}\ns_cbranch_scc1 L_fx")
    A("L_tfe:")
    stamp(4)
    end_wave()
    if stamps:
        A("L_stampout:")
        if st0: A("s_waitcnt lgkmcnt(0)\nv_writelane_b32 v3, s90, 0\ns_cmp_lt_u32 s3, 4\ns_cbranch_scc1 L_so9\nv_writelane_b32 v3, s92, 1\nv_writelane_b32 v3, s94, 2\nL_so9:")
        if stamps == 2:
            A("s_cmp_lg_u32 s2, 32\ns_cbranch_scc1 L_exit\ns_and_b32 s20, s3, 11\ns_cbranch_scc1 L_exit")
            A("s_mov_b64 exec, 0xff\ns_lshl_b32 s20, s3, 3\nv_lshl_add_u32 v1, v0, 2, s20")
            A(f"global_store_dword v1, v3, {sp(P_DBG)}\ns_endpgm")
        A("s_mov_b64 exec, 0xff")
        A("s_mul_i32 s20, s2, 12\ns_add_u32 s20, s20, s3\ns_lshl_b32 s20, s20, 5")
        A(f"s_add_u32 s20, s20, {WS_STAMP}")
        A("v_lshl_add_u32 v1, v0, 2, s20")
        A(f"global_store_dword v1, v3, {WS}")
    A("L_exit:\ns_endpgm")
    A(".p2align 6\n.type L_tab,@object\nL_tab:")
    for wg in range(256):
        r = roles[wg & 7, wg >> 3]; skip = T - r['n']
        assert skip < 8, (wg, r)
        A(f".long {(r['pre'] - skip + 16) | skip << 12 | r['e'] << 15 | r['ei'] << 18 | r['l'] << 23 | r['li'] << 25:#x}")
    A(f"L_endcode:\n.fill (24576-(L_endcode-{NAME}))/4, 4, 0xbf800000")
    A('.section .rodata,"a"\n.p2align 6')
    A(f".amdhsa_kernel {NAME}")
    for l in ["next_free_vgpr 168", "next_free_sgpr 102", "accum_offset 168", "group_segment_fixed_size 0", "kernarg_size 104",
              "user_sgpr_count 2", "user_sgpr_kernarg_segment_ptr 1", "system_sgpr_workgroup_id_x 1"]:
        A("  .amdhsa_" + l)
    A(".end_amdhsa_kernel")
    return A.finish()

if __name__ == "__main__":
    out = sys.argv[1]; kw = {}
    for a in sys.argv[2:]:
        k, v = a.split("=", 1)
        try: v = ast.literal_eval(v)
        except Exception: pass
        kw[k] = v
    open(out, "w").write(gen(**kw))
    import json
    roles, T = make_plan(kw.get('plan', 'A'), **{k: v for k, v in kw.items() if k in ('cH','cQ','cM','cB','cC','T','c3','Fx')})
    json.dump([[roles[wg & 7, wg >> 3][k] for k in ('e', 'l', 'n')] for wg in range(256)], open(out + ".roles", "w"))
```

```python
import sys, struct, ast
from asmlib import Asm
NAME = "adaLN_cond__gqa_block_cached__dense_activation_relu__decode_kernel"
def f2x(f): return "0x%08x" % struct.unpack("<I", struct.pack("<f", f))[0]

WS_XB = 0x14000; WS_QL = 0x10000; WS_H = 0x1000; WS_MOD = 0x4000; WS_Q = 0x8000; WS_ST = 0xC000
WS_AL = 0xC0000; WS_A = 0x80000; WS_B = 0x20000; WS_C = 0x40000
WS_STAMP = 0x8000000
L_CG = 0; L_FQ = 4; L_CS = 8; L_CT = 68; L_CP = 16; L_FK = 20; L_CV = 24; L_CW = 28; L_FO = 32; L_MK = 64; L_FP = 12
L_ST = 256; L_Q = 1024; L_GP = 2048; L_X = 3072; L_RED = 4096; L_U = 5120; L_GS = 8192
L_OP = 16384; L_WT = 32768; LDS_SIZE = 98304
DPPF = "row_mask:0xf bank_mask:0xf"
P_X, P_K, P_V, P_WQ, P_WO, P_BX, P_W1, P_W2, P_C, P_WM, P_OUT, P_DBG, P_WS = [36 + 2 * i for i in range(13)]
def sp(n): return f"s[{n}:{n+1}]"
def v4(n): return f"v[{n}:{n+3}]"
def v2(n): return f"v[{n}:{n+1}]"
WS = sp(P_WS)

E_H, E_Q, E_M, E_B = 1, 2, 3, 4
R_B, R_C, R_F = 1, 2, 3
def make_plan(plan, **pk):
    P = dict(PLANS[plan]); P.update(pk)
    roles = {(x, a): dict(e=0, ei=0, l=0, li=0) for x in range(8) for a in range(32)}
    hi = mi = ci = fi = 0
    for x in range(8):
        a = 0
        for _ in range(P['H'][x]): roles[x, a].update(e=E_H, ei=hi); hi += 1; a += 1
        for c in range(8):
            roles[x, a].update(e=E_Q, ei=c)
            if (x & 1 == P['Fx'] if 'Fx' in P else c in (0, 1, 4, 5)): roles[x, a].update(l=R_F, li=fi); fi += 1
            a += 1
        for c in range(8): roles[x, a].update(e=E_B, ei=c, l=R_B, li=c); a += 1
        for _ in range(P['M'][x]): roles[x, a].update(e=E_M, ei=mi); mi += 1; a += 1
        assert a <= 32
        cand = [b for b in range(31, -1, -1) if roles[x, b]['e'] == 0] + [b for b in range(32) if roles[x, b]['e'] == E_H] + [b for b in range(32) if roles[x, b]['e'] == E_M]
        for b in cand[:P['C'][x]]: roles[x, b].update(l=R_C, li=ci); ci += 1
    assert (hi, mi, ci, fi) == (32, 32, 56, 32), (hi, mi, ci, fi)
    for x in range(8):
        cost = []
        for a in range(32):
            r = roles[x, a]
            c = {0: 0, E_H: P['cH'], E_Q: P['cQ'], E_M: P['cM'], E_B: P['cB']}[r['e']]
            cb = r['ei'] if r['e'] in (E_Q, E_B) else (r['ei'] >> 2)
            if r['e'] and cb == 3: c += P['c3'][r['e']]
            if r['l'] == R_C: c += P['cC']
            cost.append(c)
        n = [max(28, P['T'] - 7)] * 32
        for _ in range(1024 - sum(n)):
            b = min((a for a in range(32) if n[a] < P['T']), key=lambda a: (n[a] + cost[a], -a))
            n[b] += 1
        pre = 0
        for a in range(32):
            roles[x, a].update(n=n[a], pre=pre); pre += n[a] - 28
    T = max(r['n'] for r in roles.values()); T += T & 1
    return roles, T
base = dict(cH=2.0, cQ=3.6, cM=4.2, cB=3.6, cC=4.0, c3={E_H: 0.5, E_Q: 1.7, E_M: 1.5, E_B: 1.0}, T=34)
base2 = dict(cH=1.6, cQ=4.0, cM=4.5, cB=3.4, cC=5.3, c3={E_H: 0.7, E_Q: 2.3, E_M: 1.8, E_B: 2.4}, T=36)
PLANS = {
 'A': dict(base, H=[4]*8, M=[4]*8, C=[7]*8),
 'B': dict(base, H=[8,0,8,0,8,0,8,0], M=[8,0,8,0,8,0,8,0], C=[14,0,14,0,14,0,14,0]),
 'C': dict(base, H=[8,0,8,0,8,0,8,0], M=[8,0,8,0,8,0,8,0], C=[7]*8),
 'D': dict(base, H=[8,8,8,8,0,0,0,0], M=[8,0,8,0,8,0,8,0], C=[14,0,14,0,14,0,14,0]),
 'E': dict(base, H=[8,8,8,8,0,0,0,0], M=[8,0,8,0,8,0,8,0], C=[8,6,8,6,8,6,8,6]),
 'G': dict(base2, H=[8,0,8,0,8,0,8,0], M=[8,0,8,0,8,0,8,0], C=[7]*8),
 'H': dict(base2, H=[8,0,8,0,8,0,8,0], M=[8,0,8,0,8,0,8,0], C=[8,8,8,12,8,2,8,2]),
 'I': dict(base2, H=[8,0,8,8,4,0,4,0], M=[8,0,8,0,8,0,8,0], C=[8,8,8,8,8,4,8,4]),
 'J': dict(base2, H=[8,0,8,0,8,0,8,0], M=[8,0,8,0,8,0,8,0], C=[0,14,0,14,0,14,0,14]),
 'K': dict(base2, H=[8,0,8,0,8,0,8,0], M=[8,0,8,0,8,0,8,0], C=[4,10,4,10,4,10,4,10]),
 'L': dict(base2, H=[8,0,8,0,8,0,8,0], M=[8,0,8,0,8,0,8,0], C=[8,6,8,6,8,6,8,6]),
 'N': dict(base2, H=[8,0,8,0,8,0,8,0], M=[2,6,2,6,2,6,2,6], C=[14,0,14,0,14,0,14,0]),
 'O': dict(base2, H=[0,8,0,8,0,8,0,8], M=[2,6,2,6,2,6,2,6], C=[14,0,14,0,14,0,14,0]),
 'P': dict(base2, H=[4,4,4,4,4,4,4,4], M=[2,6,2,6,2,6,2,6], C=[14,0,14,0,14,0,14,0]),
 'F': dict(base, H=[8,4,8,4,4,0,4,0], M=[8,0,8,0,8,0,8,0], C=[10,4,10,4,10,4,10,4]),
}

def gen(win=5, win2=6, wpol="nt", stamps=0, spin=200000, hsleep=4, qsleep=8, tsleep=1, pace=4, cpre=1, kprio=0, skipw=0, vmid=4, nopoll='', qtrig=22, R=4, cdefer=1, csleep=2, nH=33, nX=31, nL=34, loc=1, lpol='sc1', w1pol='nt', nocomp=0, nosvc=0, sprio=3, nopre=0, nocw=0, lmul=1, xit='', qloc=1, strig=1, qtrig2=38, kpol='nt', vpol='nt', slowfb=0, fixend=0, plan='A', hfirst=1, cpad=1, w2late=1, fsleep=1, dry=0, yprio=0, burst=0, bwin=8, lin=1, atrig=0, pre=0, g4=0, alt1=0, alt2=0, tw=0, probe='', det=1, rx=0, fl=0, w1early=1, nohp=0, ws1=0, ws2=0, bp=0, calm=0, ltab=1, st0=0, bhold=0, xl=1, bearly=0, pd=1, fdelay=0, xsleep=4, bdefer=0, hwait=0, **pk):
    A = Asm()
    roles, T = make_plan(plan, **pk)
    hdr = open("cdna_kernels/" + NAME[:-7] + ".s.ref").read().split("; Override")[0]
    A(hdr.rstrip())
    A(f"; @launch grid=(256,1,1) block=(768,1,1) lds={LDS_SIZE}")
    A('.amdgcn_target "amdgcn-amd-amdhsa--gfx950"')
    A(f".text\n.globl {NAME}\n.p2align 8\n.type {NAME},@function\n{NAME}:")
    def stamp(k):
        if stamps:
            A("s_memrealtime s[62:63]\ns_waitcnt lgkmcnt(0)")
            A(f"v_writelane_b32 v3, s62, {k}")
    def prb(name):
        if probe == name: A("s_memrealtime s[94:95]\ns_waitcnt lgkmcnt(0)")
    def end_wave():
        if stamps:
            A("s_branch L_stampout")
        else:
            A("s_endpgm")
    def srd(d, p, size):
        A(f"s_mov_b32 s{d}, s{p}\ns_mov_b32 s{d+1}, s{p+1}\ns_mov_b32 s{d+2}, {size}\ns_mov_b32 s{d+3}, 0x20000")
    def poll(name, loads, check, sleep):
        if name in nopoll.split('+'): return
        top = A.label(name); done = A.label(name + "d")
        A(f"s_mov_b32 s7, {spin}")
        A(f"{top}:")
        loads()
        A("s_waitcnt vmcnt(0)")
        check()
        A(f"s_cbranch_vccz {done}")
        A("s_mov_b64 exec, vcc")
        if sleep: A(f"s_sleep {sleep}")
        A("s_sub_u32 s7, s7, 1")
        A(f"s_cbranch_scc0 {top}")
        A(f"{done}:")
        A("s_mov_b64 exec, -1")
    def lspin(name, off, n, vz, vt, sleep=1, extra=None):
        top = A.label(name); done = A.label(name + "d")
        A(f"s_mov_b32 s7, {spin*20}")
        A(f"{top}:")
        A(f"ds_read_b32 v{vt}, v{vz} offset:{off}")
        if extra: extra()
        A("s_waitcnt lgkmcnt(0)")
        A(f"v_cmp_gt_u32 vcc, {n}, v{vt}")
        A(f"s_cbranch_vccz {done}")
        if lmul > 1: sleep = min(127, max(sleep, 1) * lmul)
        if sleep: A(f"s_sleep {sleep}")
        A("s_sub_u32 s7, s7, 1")
        A(f"s_cbranch_scc0 {top}")
        A(f"{done}:")
    def chk_tags(regs, tmp):
        A(f"v_xor_b32 v{tmp}, s6, v{regs[0]}")
        for r in regs[1:]:
            A(f"v_xor_b32 v{tmp+1}, s6, v{r}")
            A(f"v_or_b32 v{tmp}, v{tmp}, v{tmp+1}")
        A(f"v_cmp_ne_u32 vcc, 0, v{tmp}")
    def chk_sent(regs, tmp):
        regs = list(regs)
        if len(regs) == 1:
            A(f"v_cmp_eq_u32 vcc, -1, v{regs[0]}"); return
        if len(regs) == 2:
            A(f"v_max_u32 v{tmp}, v{regs[0]}, v{regs[1]}"); rest = []
        else:
            A(f"v_max3_u32 v{tmp}, v{regs[0]}, v{regs[1]}, v{regs[2]}"); rest = regs[3:]
        while rest:
            if len(rest) == 1:
                A(f"v_max_u32 v{tmp}, v{tmp}, v{rest[0]}"); rest = []
            else:
                A(f"v_max3_u32 v{tmp}, v{tmp}, v{rest[0]}, v{rest[1]}"); rest = rest[2:]
        A(f"v_cmp_eq_u32 vcc, -1, v{tmp}")
    def xrow(op, v, tmp, which):
        A(f"v_mov_b32 v{tmp}, v{v}")
        A(f"v_permlane{which}_swap_b32 v{v}, v{tmp}")
        A(f"{op} v{v}, v{v}, v{tmp}")
    def inrow(op, v, steps):
        for s in steps:
            A(f"{op}_dpp v{v}, v{v}, v{v} {s} {DPPF}")
    def wave_reduce(op, v, tmp):
        inrow(op, v, ["row_ror:8", "row_ror:4", "row_ror:2", "row_ror:1"])
        xrow(op, v, tmp, 16); xrow(op, v, tmp, 32)
    def unpack(dst, src, n):
        for i in range(n):
            A(f"v_lshlrev_b32 v{dst+2*i}, 16, v{src[i]}")
            A(f"v_and_b32 v{dst+2*i+1}, 0xffff0000, v{src[i]}")
    def silu(x, t, n):
        A(f"s_mov_b32 s21, {f2x(-1.4426950408889634)}")
        for i in range(n): A(f"v_mul_f32 v{t+i}, s21, v{x+i}")
        for i in range(n): A(f"v_exp_f32 v{t+i}, v{t+i}")
        for i in range(n): A(f"v_add_f32 v{t+i}, 1.0, v{t+i}")
        for i in range(n): A(f"v_rcp_f32 v{t+i}, v{t+i}")
        for i in range(n): A(f"v_mul_f32 v{x+i}, v{x+i}, v{t+i}")
    def gemv_perm(W, T, npair):
        for u in range(npair):
            for w in range(4):
                a = W + 8 * u + w; b = W + 8 * u + 4 + w
                A(f"v_perm_b32 v{T+8*u+2*w}, v{b}, v{a}, s24")
                A(f"v_perm_b32 v{T+8*u+2*w+1}, v{b}, v{a}, s25")
    def gemv_dot(T, X, acc):
        for u in range(len(X)):
            for e in range(8):
                c = "0" if u == 0 else f"v{acc+e}"
                A(f"v_dot2_f32_bf16 v{acc+e}, v{T+8*u+e}, v{X[u]}, {c}")
    def mktag():
        A("s_waitcnt lgkmcnt(0)\ns_mul_i32 s6, s6, 0x9E3779B1\ns_add_u32 s6, s6, 0x7F4A7C15")
    def paced(loads, w):
        if skipw and (w or skipw > 1): return
        for i, l in enumerate(loads):
            if w and i >= w: A(f"s_waitcnt vmcnt({w-1})")
            A(l)

    if st0: A("s_memrealtime s[90:91]")
    A("s_cmp_ge_u32 s2, 256\ns_cbranch_scc1 L_exit")
    A("s_load_dwordx16 s[36:51], s[0:1], 0")
    rest_ld = "s_load_dwordx8 s[52:59], s[0:1], 64\ns_load_dwordx2 s[60:61], s[0:1], 96\ns_load_dword s68, s[32:33], s34"
    A("s_getpc_b64 s[30:31]\nL_pc:\ns_add_u32 s32, s30, L_tab-L_pc\ns_addc_u32 s33, s31, 0\ns_lshl_b32 s34, s2, 2")
    if not ltab: A(rest_ld)
    A("v_lshrrev_b32 v1, 6, v0\nv_and_b32 v0, 63, v0\nv_readfirstlane_b32 s3, v1")
    A("s_and_b32 s4, s2, 7\ns_lshr_b32 s5, s2, 3")
    if fixend: A("s_memrealtime s[96:97]")
    A("s_mov_b32 s24, 0x05040100\ns_mov_b32 s25, 0x07060302")
    A("v_lshlrev_b32 v2, 4, v0")
    if stamps:
        A("v_mov_b32 v3, 0")
        if not st0: stamp(0)
    A("s_cmp_lt_u32 s3, 4\ns_cbranch_scc1 L_service")
    STREAM_MARK = len(A.lines)
    A("L_service:")
    if ltab: A(rest_ld)
    A(f"s_setprio {sprio}")
    if cpre:
        A("s_lshl_b32 s20, s5, 2\ns_add_u32 s20, s20, s3\ns_sub_u32 s20, s20, 104\ns_cmp_ge_u32 s20, 24\ns_cbranch_scc1 L_ncp")
        A(f"s_sub_u32 s30, s30, L_pc-{NAME}\ns_subb_u32 s31, s31, 0")
        A("s_lshl_b32 s20, s20, 10\nv_add_u32 v14, s20, v2")
        A("global_load_dwordx4 v[164:167], v14, s[30:31]")
        A("L_ncp:")
    A("v_lshrrev_b32 v12, 3, v0\nv_and_b32 v13, 7, v0\nv_mov_b32 v16, 0\nv_mov_b32 v17, 0\nv_mov_b32 v18, 0\nv_mov_b32 v19, 0")
    A("s_mov_b64 exec, 0x1f\nds_write_b128 v2, v[16:19]\ns_mov_b64 exec, -1")
    A("s_waitcnt lgkmcnt(0)")
    A("s_bfe_u32 s64, s68, 0x3000f\ns_bfe_u32 s65, s68, 0x50012\ns_bfe_u32 s66, s68, 0x20017\ns_bfe_u32 s67, s68, 0x60019")
    A("s_lshr_b32 s69, s65, 2\ns_and_b32 s70, s65, 3")
    A(f"s_cmp_lg_u32 s64, {E_H}\ns_cbranch_scc1 L_nh")
    A("s_lshr_b32 s20, s70, 1\ns_lshl_b32 s20, s20, 8\ns_lshl_b32 s21, s3, 6\ns_add_u32 s20, s20, s21")
    A("v_lshl_add_u32 v14, v12, 3, s20")
    A("s_mov_b32 s21, 6144\nv_mul_lo_u32 v1, v14, s21\nv_lshl_add_u32 v1, v13, 4, v1\nv_lshlrev_b32 v14, 1, v14")
    A("s_and_b32 s20, s70, 1\ns_lshl_b32 s20, s20, 10\ns_lshl_b32 s21, s69, 7\ns_add_u32 s20, s20, s21")
    A("s_waitcnt lgkmcnt(0)")
    srd(8, P_WM, 512 * 6144)
    A(f"global_load_dwordx4 v[4:7], v14, {sp(P_C)}")
    for i in range(8):
        A(f"buffer_load_dwordx4 {v4(40+4*i)}, v1, s[8:11], s20 offen {wpol}")
        if i < 7: A("s_add_u32 s20, s20, 6144")
    A(f"s_load_dword s6, {WS}, 0")
    A("s_barrier")
    A("s_lshl_b32 s20, s65, 2\ns_add_u32 s20, s20, s3")
    if cpad: A(f"s_lshl_b32 s21, s20, 11\ns_add_u32 s21, s21, {WS_C}\nv_lshrrev_b32 v14, 2, v0\nv_lshl_add_u32 v14, v14, 6, v2\nv_add_u32 v14, s21, v14")
    else: A(f"s_lshl_b32 s21, s20, 10\ns_add_u32 s21, s21, {WS_C}\nv_add_u32 v14, s21, v2")
    A(f"s_mul_i32 s21, s20, {128*R}\ns_add_u32 s21, s21, {WS_B}\nv_add_u32 v15, s21, v2")
    A("s_cmp_eq_u32 s3, 3\ns_cselect_b32 exec_hi, 0, -1")
    for i in range(4): A(f"v_mov_b32 v{16+i}, -1")
    A("s_mov_b64 exec, -1")
    if nohp: A("s_mov_b64 exec, 1")
    A(f"global_store_dwordx4 v14, v[16:19], {WS} sc1")
    for i in range(4): A(f"v_mov_b32 v{20+i}, -1")
    if R < 8: A(f"s_mov_b32 exec_hi, 0\ns_mov_b32 exec_lo, {(1<<(8*R))-1:#x}")
    A(f"global_store_dwordx4 v15, v[20:23], {WS} sc1")
    A("s_mov_b64 exec, -1")
    A("s_waitcnt vmcnt(10)")
    unpack(24, [4, 5, 6, 7], 4); silu(24, 32, 8)
    for i in range(4): A(f"v_cvt_pk_bf16_f32 v{24+i}, v{24+2*i}, v{25+2*i}")
    mktag()
    A(f"s_and_b32 s26, s70, 1\ns_lshl_b32 s26, s26, 12\ns_lshr_b32 s21, s70, 1\ns_lshl_b32 s21, s21, 11\ns_add_u32 s26, s26, s21\ns_lshl_b32 s21, s69, 8\ns_add_u32 s26, s26, s21\ns_add_u32 s26, s26, {WS_H}")
    A("s_waitcnt vmcnt(2)")
    stamp(1)
    gemv_perm(40, 104, 4)
    gemv_dot(104, [24, 25, 26, 27], 32)
    A("L_gfin:")
    acc = 32
    for e in range(4): A(f"v_permlane32_swap_b32 v{acc+e}, v{acc+e+4}")
    for e in range(4): A(f"v_add_f32 v{acc+e}, v{acc+e}, v{acc+e+4}")
    for e in range(2): A(f"v_permlane16_swap_b32 v{acc+e}, v{acc+e+2}")
    for e in range(2): A(f"v_add_f32 v{acc+e}, v{acc+e}, v{acc+e+2}")
    for e in range(2): A(f"v_add_f32_dpp v{acc+e}, v{acc+e}, v{acc+e} row_ror:8 {DPPF}")
    A("v_lshrrev_b32 v14, 4, v0\nv_lshlrev_b32 v14, 3, v14\nv_lshl_add_u32 v14, v13, 5, v14\ns_lshl_b32 s21, s3, 8\nv_add_u32 v14, s21, v14")
    A(f"ds_write_b64 v14, v[32:33] offset:{L_GP}")
    A("v_mov_b32 v14, 0\nv_mov_b32 v15, 1")
    A("s_waitcnt vmcnt(0)")
    A("s_mov_b64 exec, 1")
    A(f"ds_add_rtn_u32 v15, v14, v15 offset:{L_CG}")
    A("s_mov_b64 exec, -1")
    A("v_lshlrev_b32 v14, 3, v0")
    A("s_waitcnt lgkmcnt(0)")
    A("v_readfirstlane_b32 s21, v15")
    A("s_cmp_lg_u32 s21, 3\ns_cbranch_scc1 L_gdone")
    A("s_mov_b32 exec_hi, 0")
    for w in range(4): A(f"ds_read_b64 {v2(32+2*w)}, v14 offset:{L_GP+256*w}")
    A("v_add_u32 v14, s26, v14")
    A("s_waitcnt lgkmcnt(0)")
    A("v_pk_add_f32 v[32:33], v[32:33], v[34:35]\nv_pk_add_f32 v[36:37], v[36:37], v[38:39]\nv_pk_add_f32 v[32:33], v[32:33], v[36:37]")
    A("v_cvt_pk_bf16_f32 v32, v32, v33\nv_mov_b32 v33, s6")
    if qloc:
        A(f"s_cmp_lg_u32 s64, {E_Q}\ns_cbranch_scc1 L_gnl")
        A(f"v_add_u32 v15, {WS_QL-WS_Q}, v14\nglobal_store_dwordx2 v15, v[32:33], {WS}")
        A("L_gnl:")
    A(f"global_store_dwordx2 v14, v[32:33], {WS} sc1")
    A("s_mov_b64 exec, -1")
    A("L_gdone:")
    stamp(3)
    A("s_branch L_qpoll")

    NM = T - 28; nmask = T - min(r['n'] for r in roles.values())
    NW = 39 - T
    S0 = len(A.lines)
    A("L_stream:")
    if kprio: A(f"s_setprio {kprio}")
    A("s_sub_u32 s21, s3, 4")
    if yprio == 1: A("s_cmp_lt_u32 s21, 4\ns_cbranch_scc1 L_yp\ns_setprio 1\nL_yp:")
    A("v_bfe_u32 v1, v0, 2, 2\nv_lshlrev_b32 v1, 8, v1\nv_lshrrev_b32 v4, 4, v0\nv_lshl_add_u32 v1, v4, 6, v1\nv_and_b32 v4, 3, v0\nv_lshl_add_u32 v1, v4, 4, v1")
    A(f"s_lshl_b32 s19, s4, 23\ns_mul_i32 s16, s5, {28*8192}\ns_add_u32 s16, s16, s19\ns_lshl_b32 s17, s21, 12\ns_add_u32 s16, s16, s17")
    A("s_mov_b32 s10, 0x4000000\ns_mov_b32 s11, 0x20000")
    hcnt = sum(PLANS[plan]['H'][x] << (4 * x) for x in range(8))
    A(f"s_lshl_b32 s17, s4, 2\ns_lshr_b32 s35, {hcnt:#x}, s17\ns_and_b32 s35, s35, {15 if hfirst else 0}")
    A("s_waitcnt lgkmcnt(0)")
    A(f"s_mov_b32 s8, s{P_K}\ns_mov_b32 s9, s{P_K+1}")
    A("s_cmp_ge_u32 s5, s35\ns_cbranch_scc1 L_s1\ns_barrier\nL_s1:")
    KR = lambda t: 168 - 4 * T + 4 * t
    nS = (T + 3) // 4; nP = (T + 7) // 8
    nkeep = nS - (T - 8) // 4
    nxa = 8 - (nS - nkeep)
    first_v = nS - 1 + nP + 1 + nxa
    vslots = [12 + 4 * i for i in range(NW)] + [KR(i) for i in range(first_v, T)]
    VR = lambda t: vslots[t % len(vslots)]
    st = {"cur": None}
    mpos = [6 + (j * (T - 12)) // max(nmask, 1) for j in range(nmask)]
    rest = list(range(NM, NM + 6)) + list(range(nmask, NM)) + list(range(NM + 6, T))
    perm = []
    for t in range(T):
        if t in mpos: perm.append(mpos.index(t))
        else: perm.append(rest.pop(0))
    first_nm = min(t for t in range(T) if perm[t] < NM)
    assert first_nm >= win
    hist = []
    def wcount(w):
        c = 0
        for n_, m_ in enumerate(reversed(hist)):
            if not m_:
                if c == w - 1: return n_
                c += 1
        return None
    def ld(which, t):
        o = perm[t]
        hist.append(o < nmask)
        if o < NM:
            A(f"s_add_u32 s20, s17, {o*8192}"); st["cur"] = None; imm = 0
            if o < nmask: A(f"s_cmp_gt_u32 s18, {o}\ns_cselect_b32 s20, 0x4000000, s20")
        else:
            key = (o - NM) >> 2; imm = ((o - NM) & 3) * 1024
            if st["cur"] != key:
                A(f"s_add_u32 s20, s16, {key*32768}"); st["cur"] = key
        if which == "K": A(f"buffer_load_dwordx4 {v4(KR(t))}, v1, s[8:11], s20 offen offset:{imm} {kpol}")
        else: A(f"buffer_load_dwordx4 {v4(VR(t))}, v2, s[12:15], s20 offen offset:{imm} {vpol}")
    korder = list(range(T))
    seq = [("K", t) for t in korder] + [("V", t) for t in range(NW)]
    for i, (wh, t) in enumerate(seq):
        if i == win:
            if st0: A("s_memrealtime s[92:93]")
            if ltab: A(rest_ld)
            A("s_branch L_body")
            S1 = len(A.lines)
            A("L_body:")
            srd(12, P_V, 0x4000000)
            if ws1: A(f"s_cmp_lt_u32 s21, {ws1}\ns_cselect_b64 vcc, -1, 0")
            if st0: A("s_waitcnt vmcnt(3)\ns_memrealtime s[94:95]")
            A("s_cmp_lt_u32 s5, s35\ns_cbranch_scc1 L_s2\ns_barrier\nL_s2:\ns_waitcnt lgkmcnt(0)")
            A(f"s_and_b32 s17, s68, 0xfff\ns_bfe_u32 s18, s68, 0x3000c\ns_add_u32 s17, s17, {896-16}\ns_lshl_b32 s17, s17, 13\ns_add_u32 s17, s17, s19\ns_lshl_b32 s19, s21, 10\ns_add_u32 s17, s17, s19")
        if i == T and kprio: A("s_setprio 0")
        if wcount(win) is not None and perm[t] >= nmask:
            if ws1:
                lb = A.label("w"); A(f"s_cbranch_vccz {lb}\ns_waitcnt vmcnt({wcount(win-1)})\n{lb}:")
            A(f"s_waitcnt vmcnt({wcount(win - 1) if (alt1 and i % alt1 == 0) else wcount(win)})")
        ld(wh, t)
        if i == qtrig: A(f"v_mov_b32 v8, 0\nv_mov_b32 v9, 1\ns_mov_b64 exec, 1\nds_max_u32 v8, v9 offset:{L_FK}\ns_mov_b64 exec, -1")
        if i == qtrig2 and qloc: A(f"v_mov_b32 v8, 0\nv_mov_b32 v9, 2\ns_mov_b64 exec, 1\nds_max_u32 v8, v9 offset:{L_FK}\ns_mov_b64 exec, -1")
    viss = NW
    A("v_and_b32 v8, 3, v0\nv_lshlrev_b32 v8, 8, v8\nv_lshrrev_b32 v9, 4, v0\nv_lshl_add_u32 v8, v9, 6, v8\nv_bfe_u32 v9, v0, 2, 2\nv_lshl_add_u32 v8, v9, 4, v8\nv_mov_b32 v9, 0")
    A(f"s_mov_b32 s22, {f2x(128**-0.5*1.4426950408889634)}")
    for t in range(nmask): A(f"s_cmp_gt_u32 s18, {t}\ns_cselect_b32 s{28+t}, 0xff800000, 0")
    stamp(1)
    lspin("sq", L_FQ, 1, 9, 10, 2, lambda: A(f"ds_read_b128 v[4:7], v8 offset:{L_Q}"))
    stamp(2)
    kl = {"landed": T + NW - win - 3}
    DR = lambda t: 8 if t == 0 else KR(t - 1)
    SR = lambda t: (8 + t) if t < 4 else KR((t >> 2) - 1) + (t & 3)
    def M(t):
        if t >= kl["landed"]:
            A(f"s_waitcnt vmcnt({len(hist)-1-t})"); kl["landed"] = t + 1
        A(f"v_mfma_f32_16x16x32_bf16 {v4(DR(t))}, {v4(KR(t))}, v[4:7], 0")
    def AB(t):
        d = DR(t)
        A(f"v_add_f32_dpp v{d}, v{d+1}, v{d} row_shl:4 {DPPF} bound_ctrl:0")
        A(f"v_add_f32_dpp v{d+2}, v{d+3}, v{d+2} row_shl:4 {DPPF} bound_ctrl:0")
    def S(t):
        d = DR(t)
        A(f"v_add_f32_dpp v{SR(t)}, v{d+2}, v{d} row_shl:8 {DPPF} bound_ctrl:0")
    mark0 = len(A.lines)
    if yprio == 2: A("s_cmp_lt_u32 s21, 4\ns_cbranch_scc1 L_yp\ns_setprio 1\nL_yp:")
    M(0); M(1); M(2)
    for t in range(T + 1):
        if t < T: AB(t)
        if t >= 1:
            S(t - 1)
            if vmid and t - 2 >= first_v and (t - 2 - first_v) % vmid == 0:
                ld("V", viss); viss += 1
        if t + 3 < T: M(t + 3)
    TM = KR(nS - 1 + nP)
    Sl = [SR(t) for t in range(T)]
    for t in range(nmask): A(f"v_add_f32 v{Sl[mpos[t]]}, s{28+t}, v{Sl[mpos[t]]}")
    A(f"v_max3_f32 v{TM}, v{Sl[0]}, v{Sl[1]}, v{Sl[2]}")
    A(f"v_max3_f32 v{TM+1}, v{Sl[3]}, v{Sl[4]}, v{Sl[5]}")
    i = 6; k = 0
    while i < T:
        A(f"v_max3_f32 v{TM+k}, v{TM+k}, v{Sl[i]}, v{Sl[i+1]}"); i += 2; k ^= 1
    A(f"v_max_f32 v{TM}, v{TM}, v{TM+1}")
    xrow("v_max_f32", TM, TM + 1, 16); xrow("v_max_f32", TM, TM + 1, 32)
    A(f"v_mul_f32 v{TM}, s22, v{TM}")
    for t in range(T): A(f"v_fma_f32 v{Sl[t]}, v{Sl[t]}, s22, -v{TM}")
    for t in range(T): A(f"v_exp_f32 v{Sl[t]}, v{Sl[t]}")
    if vmid: ld("V", viss); viss += 1
    A(f"v_add_f32 v{TM+1}, v{Sl[0]}, v{Sl[1]}\nv_add_f32 v{TM+2}, v{Sl[2]}, v{Sl[3]}")
    for t in range(4, T): A(f"v_add_f32 v{TM+1+(t&1)}, v{TM+1+(t&1)}, v{Sl[t]}")
    A(f"v_add_f32 v{TM+1}, v{TM+1}, v{TM+2}")
    xrow("v_add_f32", TM + 1, TM + 2, 16); xrow("v_add_f32", TM + 1, TM + 2, 32)
    A(f"s_lshl_b32 s19, s21, 5\nv_lshl_add_u32 v{TM+2}, v0, 3, s19\nv_mov_b32 v4, 0\nv_mov_b32 v5, 1")
    A("s_mov_b64 exec, 0xf")
    A(f"ds_write_b64 v{TM+2}, {v2(TM)} offset:{L_ST}")
    A("s_mov_b64 exec, 1")
    A(f"ds_add_u32 v4, v5 offset:{L_CS}")
    A("s_mov_b64 exec, -1")
    PR = lambda u: KR(nS - 1 + u)
    rem = T % 8
    assert rem in (2, 4)
    GR = [(0, rem)] + [(rem + 8 * u, rem + 8 * u + 8) for u in range(nP - 1)]
    def pack(u):
        for t in range(GR[u][0], GR[u][1], 2): A(f"v_cvt_pk_bf16_f32 v{PR(u)+(t-GR[u][0])//2}, v{Sl[t]}, v{Sl[t+1]}")
    for u in range(nP - 1): pack(u)
    A("s_waitcnt lgkmcnt(0)")
    if rem == 2: A(f"v_mov_b32 v{PR(0)+1}, 0\nv_mov_b32 v{TM+1}, 0\nv_mov_b32 v5, 0")
    stamp(3)
    ACC = ([8] + [KR(i) for i in range(nS - 1)])[:nS - nkeep] + [KR(nS + nP + i) for i in range(nxa)]
    assert len(ACC) == 8
    TT = [TM, 4]
    def pv(u):
        t0, t1 = GR[u]; n = t1 - t0
        for e in range(8):
            Tm = TT[e & 1]
            for p in range(n // 2):
                a = VR(t0 + 2 * p) + (e >> 1); b = VR(t0 + 2 * p + 1) + (e >> 1)
                A(f"v_perm_b32 v{Tm+p}, v{b}, v{a}, s{24+(e&1)}")
            c = "0" if u == 0 else v4(ACC[e])
            if n == 8: A(f"v_mfma_f32_16x16x32_bf16 {v4(ACC[e])}, {v4(Tm)}, {v4(PR(u))}, {c}")
            else: A(f"v_mfma_f32_16x16x16_bf16 {v4(ACC[e])}, {v2(Tm)}, {v2(PR(u))}, {c}")
    ns = len(vslots)
    TA = [VR(t) for t in range(T - ns, min(ns, T - 8))][:8]
    assert len(TA) == 8
    X = PR(0)
    def rescale():
        A(f"v_and_b32 v1, 3, v0\nv_lshlrev_b32 v{X+13}, 3, v1\nv_mov_b32 v{X+10}, 0\nv_mov_b32 v{X+11}, 1\ns_lshl_b32 s19, s21, 5\nv_add_u32 v{X+9}, s19, v{X+13}")
        def rd():
            for w in range(8): A(f"ds_read_b32 v{X+w}, v{X+13} offset:{L_ST+32*w}")
            A(f"ds_read_b32 v{X+8}, v{X+9} offset:{L_ST}")
        lspin("sm", L_CS, 9, X + 10, X + 12, 1, rd)
        A(f"s_mov_b64 exec, 1\nds_add_rtn_u32 v{X+12}, v{X+10}, v{X+11} offset:{L_CT}\ns_mov_b64 exec, -1")
        A(f"v_max3_f32 v{X}, v{X}, v{X+1}, v{X+2}\nv_max3_f32 v{X+3}, v{X+3}, v{X+4}, v{X+5}\nv_max3_f32 v{X}, v{X}, v{X+6}, v{X+7}\nv_max_f32 v{X}, v{X}, v{X+3}")
        A(f"v_sub_f32 v{X}, v{X+8}, v{X}\nv_exp_f32 v{X}, v{X}")
        A(f"v_lshlrev_b32 v1, 6, v1\nv_lshrrev_b32 v{X+13}, 4, v0\nv_lshl_add_u32 v1, v{X+13}, 4, v1")
        for e in range(8):
            for q in range(2): A(f"v_pk_mul_f32 {v2(ACC[e]+2*q)}, {v2(ACC[e]+2*q)}, {v2(X)} op_sel_hi:[1,0]")
        for t in range(T - 8, T, 2): A(f"v_pk_mul_f32 {v2(Sl[t])}, {v2(Sl[t])}, {v2(X)} op_sel_hi:[1,0]")
        pack(nP - 1)
        A(f"s_waitcnt lgkmcnt(0)\nv_readfirstlane_b32 s23, v{X+12}\ns_lshl_b32 s19, s21, 11\nv_add_u32 v1, s19, v1\ns_and_b32 s19, s21, 4\nv_mov_b32 v{X+9}, s19")
    while viss < min(win2, ns):
        ld("V", viss); viss += 1
    done_t = 0
    ends = {g[1] - 1: u for u, g in enumerate(GR[:-1])}
    for L in range(T):
        lastpair = L >= T - 8 and (L - (T - 8)) % 2 == 1
        can = lambda: viss < T and sum(1 for j in range(L + 1, viss) if perm[j] >= nmask) < (bwin if L >= T - burst else win2 + (pre if L in ends else 0)) + (perm[viss] < nmask) and (viss < ns or done_t > viss - ns)
        if can() or L in ends or lastpair:
            A(f"s_waitcnt vmcnt({viss-1-L})")
        while can():
            ld("V", viss); viss += 1
            if viss == T:
                if L > T - 9: A(f"s_mov_b64 exec, 1\nds_add_u32 v{X+10}, v{X+11} offset:{L_CV}\ns_mov_b64 exec, -1")
                else: A(f"v_mov_b32 v1, 1\ns_mov_b64 exec, 1\nds_add_u32 v2, v1 offset:{L_CV}\ns_mov_b64 exec, -1")
        if L in ends:
            pv(ends[L]); done_t = L + 1
            if L == T - 9: rescale()
        if lastpair:
            if L == T - 1: stamp(4)
            p = (L - (T - 8)) // 2
            for e in range(8):
                A(f"v_perm_b32 v{TA[e]+p}, v{VR(L)+(e>>1)}, v{VR(L-1)+(e>>1)}, s{24+(e&1)}")
    for e in range(8): A(f"v_mfma_f32_16x16x32_bf16 {v4(ACC[e])}, {v4(TA[e])}, {v4(PR(nP-1))}, {v4(ACC[e])}")
    assert viss == T
    if nocomp:
        keep = [l for l in A.lines[mark0:] if not l.startswith(("v_mfma", "v_perm_b32", "v_add_f32", "v_exp", "v_fma", "v_max", "v_cvt", "v_permlane"))]
        A.lines[mark0:] = keep
    A("s_mov_b32 exec_lo, 0x000f000f\ns_mov_b32 exec_hi, 0x000f000f")
    for e in range(8): A(f"ds_write_b128 v1, {v4(ACC[e])} offset:{L_OP+e*256}")
    X = PR(0)
    if det: A(f"s_mov_b64 exec, 1\nds_add_u32 v{X+9}, v{X+11} offset:{L_FO}")
    else: A(f"ds_write_b32 v{X+9}, v{X+11} offset:{L_FO}")
    A("s_mov_b64 exec, -1")
    if stamps: A("s_waitcnt lgkmcnt(0)")
    stamp(5)
    A("s_cmp_lg_u32 s23, 0\ns_cbranch_scc1 L_done")
    A("s_setprio 3")
    def a_addr(d, t):
        if lin: A(f"s_lshl_b32 s20, s4, 15\ns_lshr_b32 s19, s5, 4\ns_lshl_b32 s19, s19, 10\ns_add_u32 s20, s20, s19\ns_and_b32 s19, s5, 15\ns_lshl_b32 s19, s19, 4\ns_add_u32 s20, s20, s19\ns_add_u32 s20, s20, {WS_A}")
        else: A(f"s_lshl_b32 s20, s4, 15\ns_lshl_b32 s19, s5, {7 if fl else 6}\ns_add_u32 s20, s20, s19\ns_add_u32 s20, s20, {WS_A}")
        A(f"v_bfe_u32 v{d}, v0, 2, 2\nv_lshlrev_b32 v{d}, 13, v{d}")
        if fl: A(f"v_lshrrev_b32 v{t}, 5, v0\nv_lshl_add_u32 v{d}, v{t}, 12, v{d}\nv_bfe_u32 v{t}, v0, 4, 1\nv_lshl_add_u32 v{d}, v{t}, 6, v{d}")
        else: A(f"v_lshrrev_b32 v{t}, 4, v0\nv_lshl_add_u32 v{d}, v{t}, 11, v{d}")
        A(f"v_and_b32 v{t}, 3, v0\nv_lshl_add_u32 v{d}, v{t}, {8 if lin else 4}, v{d}\nv_add_u32 v{d}, s20, v{d}")
    a_addr(36, 37)
    A(f"v_add_u32 v37, {WS_AL-WS_A}, v36\nv_mov_b32 v38, 0\nv_mov_b32 v39, 1")
    if xl: A(f"ds_read_b32 v29, v38 offset:{L_MK}\ns_waitcnt lgkmcnt(0)\nv_readfirstlane_b32 s26, v29")
    for hf in range(2 if det else 0):
        def rd8():
            for j in range(4): A(f"ds_read_b128 {v4(40+8*j)}, v2 offset:{L_OP+(4*hf+j)*2048}\nds_read_b128 {v4(44+8*j)}, v2 offset:{L_OP+(4*hf+j)*2048+1024}")
        lspin("so", L_FO + 4 * hf, 4, 38, 28, 1 - hf, rd8)
        for q in range(4): A(f"v_pk_add_f32 {v2(40+2*q)}, {v2(40+2*q)}, {v2(48+2*q)}")
        for q in range(4): A(f"v_pk_add_f32 {v2(56+2*q)}, {v2(56+2*q)}, {v2(64+2*q)}")
        for q in range(4): A(f"v_pk_add_f32 {v2((12 if hf == 0 else 40)+2*q)}, {v2(40+2*q)}, {v2(56+2*q)}")
        if hf:
            for q in range(4): A(f"v_pk_add_f32 {v2(12+2*q)}, {v2(12+2*q)}, {v2(40+2*q)}")
    for i in range(0 if det else 8):
        d = 12 if i == 0 else 20
        lspin("so", L_FO + 4 * i, 1, 38, 28, 1 if (calm and i < 6) else 0, lambda: A(f"ds_read_b128 {v4(d)}, v2 offset:{L_OP+i*2048}\nds_read_b128 {v4(d+4)}, v2 offset:{L_OP+i*2048+1024}"))
        if i:
            for q in range(4): A(f"v_pk_add_f32 {v2(12+2*q)}, {v2(12+2*q)}, {v2(20+2*q)}")
    for q in range(4): A(f"v_cvt_pk_bf16_f32 v{12+q}, v{12+2*q}, v{13+2*q}")
    if loc: A(f"global_store_dwordx4 v37, v[12:15], {WS}")
    if xl: A("s_cmp_eq_u32 s26, 0\ns_cbranch_scc1 L_ng2")
    A(f"global_store_dwordx4 v36, v[12:15], {WS} sc1")
    A("L_ng2:")
    A(f"ds_write_b32 v38, v39 offset:{L_FP}")
    stamp(6)
    end_wave()
    blk = A.lines[S0:S1]; del A.lines[S0:S1]; A.lines[STREAM_MARK:STREAM_MARK] = blk

    A("L_nh:")
    A(f"s_cmp_lg_u32 s64, {E_Q}\ns_cbranch_scc1 L_nq")
    A("v_lshlrev_b32 v1, 17, v12\nv_lshl_add_u32 v1, v13, 4, v1")
    A("s_lshl_b32 s20, s3, 20\ns_lshl_b32 s21, s4, 10\ns_add_u32 s20, s20, s21\ns_mov_b32 s26, s65\ns_lshl_b32 s21, s26, 7\ns_add_u32 s20, s20, s21")
    A("s_lshl_b32 s21, s3, 8\nv_lshl_add_u32 v14, v0, 2, s21")
    A("s_waitcnt lgkmcnt(0)")
    srd(8, P_WQ, 512 * 8192)
    A(f"global_load_dwordx4 v[8:11], v2, {sp(P_X)}\nglobal_load_dword v15, v14, {sp(P_X)}")
    for i in range(16):
        A(f"buffer_load_dwordx4 {v4(40+4*i)}, v1, s[8:11], s20 offen {wpol}")
        if i < 15: A("s_add_u32 s20, s20, 8192")
    A(f"s_load_dword s6, {WS}, 0")
    A("s_barrier")
    A(f"s_lshl_b32 s26, s26, 8\ns_lshl_b32 s21, s4, 11\ns_add_u32 s26, s26, s21\ns_add_u32 s26, s26, {WS_Q}")
    A("s_waitcnt vmcnt(16)")
    unpack(32, [8, 9, 10, 11], 4)
    A("v_add_f32 v4, v32, v33")
    for i in range(2, 8): A(f"v_add_f32 v4, v4, v{32+i}")
    wave_reduce("v_add_f32", 4, 5)
    A(f"v_mul_f32 v4, {f2x(1/512)}, v4")
    for i in range(8): A(f"v_sub_f32 v{32+i}, v{32+i}, v4")
    A("v_mul_f32 v6, v32, v32")
    for i in range(1, 8): A(f"v_fmac_f32 v6, v{32+i}, v{32+i}")
    wave_reduce("v_add_f32", 6, 5)
    A(f"v_mov_b32 v5, {f2x(1e-5)}\nv_fmac_f32 v5, {f2x(1/512)}, v6\nv_rsq_f32 v5, v5")
    unpack(8, [15], 1)
    A("v_sub_f32 v8, v8, v4\nv_sub_f32 v9, v9, v4\nv_mul_f32 v8, v8, v5\nv_mul_f32 v9, v9, v5")
    A(f"v_lshlrev_b32 v15, 1, v14\nv_add_u32 v15, {WS_H}, v15\nv_add_u32 v10, 4096, v15")
    mktag()
    A("s_waitcnt vmcnt(0)")
    stamp(1)
    prb("wq")
    gemv_perm(40, 104, 8)
    if hwait: A("v_mov_b32 v4, 0"); lspin("sh", L_FK, 1, 4, 5, 2)
    poll("ph", lambda: [A(f"global_load_dwordx2 {v2(16+2*k)}, v{15 if k<2 else 10}, {WS} offset:{2048*(k&1)} sc1") for k in range(4)],
         lambda: chk_tags([17, 19, 21, 23], 4), hsleep)
    stamp(2)
    prb("h")
    unpack(24, [16, 18, 20, 22], 4)
    A("v_pk_add_f32 v[24:25], v[24:25], v[26:27]\nv_pk_add_f32 v[28:29], v[28:29], v[30:31]")
    A("v_add_f32 v28, 1.0, v28\nv_add_f32 v29, 1.0, v29\nv_pk_fma_f32 v[24:25], v[8:9], v[28:29], v[24:25]")
    A("L_gx:")
    A("v_cvt_pk_bf16_f32 v24, v24, v25")
    A(f"ds_write_b32 v14, v24 offset:{L_X}")
    A("s_lshl_b32 s21, s3, 8\nv_lshl_add_u32 v15, v12, 5, s21")
    A(f"ds_read_b128 v[24:27], v15 offset:{L_X}\nds_read_b128 v[28:31], v15 offset:{L_X+16}")
    A("s_waitcnt lgkmcnt(0)")
    gemv_dot(104, list(range(24, 32)), 32)
    A("s_branch L_gfin")

    A("L_nq:")
    A("s_waitcnt lgkmcnt(0)")
    A(f"s_load_dword s6, {WS}, 0")
    A("s_barrier")
    mktag()
    A("L_role:")
    A("s_cmp_eq_u32 s64, 0\ns_cbranch_scc1 L_qpoll")
    A(f"s_cmp_eq_u32 s64, {E_B}\ns_cbranch_scc1 L_wb")
    A("s_mov_b32 s21, 98304\nv_mul_lo_u32 v1, v12, s21\nv_lshl_add_u32 v1, v13, 4, v1")
    A(f"s_mul_i32 s20, s3, {128*6144}\ns_add_u32 s26, s70, 2\ns_lshl_b32 s26, s26, 10\ns_lshl_b32 s21, s69, 7\ns_add_u32 s26, s26, s21\ns_add_u32 s20, s20, s26")
    A("s_lshl_b32 s21, s3, 8\nv_lshl_add_u32 v14, v0, 2, s21")
    srd(8, P_WM, 512 * 6144)
    A(f"global_load_dword v15, v14, {sp(P_C)}")
    paced([f"buffer_load_dwordx4 {v4(40+4*i)}, v1, s[8:11], s20 offen {wpol}\ns_add_u32 s20, s20, 6144" for i in range(16)], 0)
    A(f"s_lshl_b32 s26, s26, 1\ns_add_u32 s26, s26, {WS_MOD-4096}")
    A("s_waitcnt vmcnt(0)")
    unpack(24, [15], 1); silu(24, 32, 2)
    gemv_perm(40, 104, 8)
    A("s_branch L_gx")
    def dma(loads, w):
        if skipw: return
        for i, l in enumerate(loads):
            if w and i >= w: A(f"s_waitcnt vmcnt({w-1})")
            A(f"s_add_u32 m0, s23, {1024*i}")
            A(l)
    def wo_issue(lo, hi):
        srd(8, P_WO, 4096 * 1024)
        A("v_lshrrev_b32 v1, 3, v0\nv_lshlrev_b32 v1, 10, v1\nv_and_b32 v4, 7, v0\nv_lshl_add_u32 v1, v4, 4, v1")
        A(f"s_lshl_b32 s20, s4, 19\ns_lshl_b32 s21, s3, 17\ns_add_u32 s20, s20, s21\ns_lshl_b32 s21, s65, 7\ns_add_u32 s20, s20, s21\ns_add_u32 s20, s20, {8192*lo}")
        A(f"s_lshl_b32 s23, s3, 14\ns_add_u32 s23, s23, {L_WT+1024*lo}")
        dma([f"buffer_load_dwordx4 v1, s[8:11], s20 offen {wpol} lds\ns_add_u32 s20, s20, 8192" for i in range(lo, hi)], pace)
    def wo_finish(w):
        A(f"s_lshl_b32 s23, s3, 14\ns_add_u32 s23, s23, {L_WT}")
        A("v_bfe_u32 v1, v0, 2, 2\nv_lshlrev_b32 v1, 10, v1\nv_lshrrev_b32 v4, 4, v0\nv_lshl_add_u32 v1, v4, 12, v1\nv_and_b32 v4, 3, v0\nv_lshl_add_u32 v1, v4, 3, v1\nv_add_u32 v1, s23, v1")
        A(f"s_waitcnt vmcnt({w})")
        k = 0
        for c in range(4):
            for nt in range(4):
                for hi in range(2):
                    A(f"ds_read_b64_tr_b16 {v2(104+16*c+4*nt+2*hi)}, v1 offset:{(c+4*hi)*128+nt*32}")
                    k += 1
                    if k >= 12 and k % 4 == 0: A("s_waitcnt lgkmcnt(8)")
        A("s_waitcnt lgkmcnt(0)")
    A("L_wb:")
    if xl:
        A("s_cmp_lg_u32 s3, 0\ns_cbranch_scc1 L_wb1")
        A(f"s_getreg_b32 s20, hwreg(HW_REG_XCC_ID, 0, 4)\nv_mov_b32 v4, s20\nv_mov_b32 v5, s6\ns_lshl_b32 s20, s4, 7\ns_lshl_b32 s21, s65, 3\ns_add_u32 s20, s20, s21\ns_add_u32 s20, s20, {WS_XB}\nv_mov_b32 v6, s20")
        A(f"s_mov_b64 exec, 1\nglobal_store_dwordx2 v6, v[4:5], {WS} sc1\ns_mov_b64 exec, -1\ns_nop 0")
        A("L_wb1:")
    if bp:
        A("s_cmp_eq_u32 s3, 1\ns_cbranch_scc1 L_qpoll\ns_cmp_eq_u32 s3, 2\ns_cbranch_scc1 L_qpoll")
        srd(8, P_WO, 4096 * 1024)
        A("v_lshrrev_b32 v1, 3, v0\nv_lshlrev_b32 v1, 10, v1\nv_and_b32 v4, 7, v0\nv_lshl_add_u32 v1, v4, 4, v1\ns_lshr_b32 s22, s3, 1")
        A(f"s_lshl_b32 s20, s4, 19\ns_lshl_b32 s21, s22, 18\ns_add_u32 s20, s20, s21\ns_lshl_b32 s21, s65, 7\ns_add_u32 s20, s20, s21")
        A(f"s_lshl_b32 s23, s22, 15\ns_add_u32 s23, s23, {L_WT}\ns_mov_b32 s22, 31")
        A(f"L_wbl:\ns_mov_b32 m0, s23\ns_waitcnt vmcnt({bp-1})\nbuffer_load_dwordx4 v1, s[8:11], s20 offen {wpol} lds\ns_add_u32 s20, s20, 8192\ns_add_u32 s23, s23, 1024\ns_sub_u32 s22, s22, 1\ns_cbranch_scc0 L_wbl")
        A(f"v_mov_b32 v4, 0\nv_mov_b32 v5, 1\ns_waitcnt vmcnt(0)\ns_mov_b64 exec, 1\nds_add_u32 v4, v5 offset:{L_CW}\ns_mov_b64 exec, -1")
    elif not bdefer: wo_issue(0, 16); wo_finish(0)
    elif bearly: wo_issue(0, bearly)
    A("L_qpoll:")
    if w1early:
        A(f"s_cmp_lg_u32 s66, {R_C}\ns_cbranch_scc1 L_qp1\ns_mov_b32 s26, s67")
        srd(8, P_W1, 512 * 3584)
        A("v_lshrrev_b32 v1, 2, v0\ns_mov_b32 s20, 3584\nv_mul_lo_u32 v1, v1, s20\nv_and_b32 v12, 3, v0\nv_lshl_add_u32 v1, v12, 4, v1")
        A(f"s_mul_i32 s20, s3, {128*3584}\ns_lshl_b32 s21, s26, 6\ns_add_u32 s20, s20, s21")
        A(f"s_lshl_b32 s23, s3, 14\ns_add_u32 s23, s23, {L_WT}")
        dma([f"buffer_load_dwordx4 v1, s[8:11], s20 offen {w1pol} lds\ns_add_u32 s20, s20, {16*3584}" for i in range(8)], 0)
        A("L_qp1:")
    if nosvc:
        A(f"v_mov_b32 v10, 0\nv_mov_b32 v5, 1\nds_write_b32 v10, v5 offset:{L_FQ}\ns_mov_b64 exec, 1\nds_add_u32 v10, v5 offset:{L_CS}")
        end_wave()
    if tw:
        A("s_cmp_lg_u32 s3, 3\ns_cbranch_scc1 L_tw")
        A(f"s_lshl_b32 s20, s4, 23\ns_mul_i32 s21, s5, {28*8192}\ns_add_u32 s21, s21, s20\ns_add_u32 s20, s20, {896*8192}")
        A(f"v_mov_b32 v4, s21\nv_add_u32 v5, {28*8192-128}, v4\nv_mov_b32 v6, s20\nv_mov_b32 v7, 0\ns_mov_b64 exec, 1")
        A(f"global_load_dword v24, v4, {sp(P_V)} nt\nglobal_load_dword v25, v5, {sp(P_V)} nt\nglobal_load_dword v26, v6, {sp(P_V)} nt\nglobal_load_dword v27, v7, {sp(P_W2)} nt")
        A("s_waitcnt vmcnt(0)\ns_mov_b64 exec, -1\nL_tw:")
    A("v_mov_b32 v10, 0\nv_mov_b32 v23, 0\nv_mov_b32 v35, 64")
    A("s_cmp_lg_u32 s3, 1\ns_cbranch_scc1 L_np")
    A(f"s_lshl_b32 s21, s4, 11\ns_add_u32 s21, s21, {WS_Q}\nv_add_u32 v14, s21, v2")
    lspin("sk", L_FK, 1, 10, 11, 16 if calm else 4)
    def ldq():
        if qloc:
            A(f"ds_read_b32 v11, v10 offset:{L_FK}\ns_waitcnt lgkmcnt(0)\nv_readfirstlane_b32 s21, v11\ns_lshr_b32 s21, s21, 1\ns_and_b32 s21, s21, s7")
            if slowfb: A(f"s_cmp_lt_u32 s7, {spin-slowfb}")
            A(f"s_cselect_b32 s21, 0, {WS_QL-WS_Q}\nv_add_u32 v15, s21, v14")
        for i in range(2): A(f"global_load_dwordx4 {v4(16+4*i)}, v{15 if qloc else 14}, {WS} offset:{1024*i} sc1")
    poll("pq", ldq, lambda: chk_tags([17, 19, 21, 23], 4), qsleep)
    A("v_mov_b32 v17, v18\nv_mov_b32 v21, v22\nv_lshlrev_b32 v14, 3, v0\nv_mov_b32 v5, 1")
    A(f"ds_write_b64 v14, v[16:17] offset:{L_Q}\nds_write_b64 v14, v[20:21] offset:{L_Q+512}")
    A(f"ds_write_b32 v10, v5 offset:{L_FQ}")
    stamp(4)
    A("L_np:")
    if xit == 'np': end_wave()
    A("s_cmp_eq_u32 s3, 2\ns_cbranch_scc1 L_post")
    A("s_cmp_eq_u32 s66, 0\ns_cbranch_scc1 L_done")
    A(f"s_cmp_lg_u32 s66, {R_F}\ns_cbranch_scc1 L_ws")
    A("s_cmp_lg_u32 s3, 0\ns_cbranch_scc1 L_done")
    A("L_ws:")
    lspin("ss0", L_CS, 9, 10, 11, 32 if calm else 16)
    A("s_branch L_pre")
    A("L_done:")
    end_wave()
    A("L_post:")
    a_addr(37, 15)
    A("v_bfe_u32 v36, v0, 2, 2")
    for i in range(4): A(f"v_mov_b32 v{16+i}, -1")
    if xl:
        A(f"v_and_b32 v20, 7, v0\ns_lshl_b32 s20, s4, 7\ns_add_u32 s20, s20, {WS_XB}\nv_lshl_add_u32 v20, v20, 3, s20")
        lspin("sg", L_FK, 1, 10, 11, 32 if calm else 8)
        poll("px", lambda: A(f"global_load_dwordx2 v[22:23], v20, {WS} sc1"), lambda: chk_tags([23], 21), 8)
        A("s_getreg_b32 s20, hwreg(HW_REG_XCC_ID, 0, 4)\nv_cmp_ne_u32 vcc, s20, v22\ns_cbranch_vccz L_ng")
        A(f"v_mov_b32 v5, 1\nds_write_b32 v10, v5 offset:{L_MK}")
    A(f"global_store_dwordx4 v37, v[16:19], {WS} sc1")
    A("L_ng:")
    if loc: A(f"v_add_u32 v39, {WS_AL-WS_A}, v37\nglobal_store_dwordx4 v39, v[16:19], {WS}")
    A("v_lshlrev_b32 v38, 3, v36\nv_mov_b32 v5, 1")
    A(f"s_lshl_b32 s20, s4, 11\ns_lshl_b32 s21, s5, {6 if fl else 4}\ns_add_u32 s20, s20, s21\ns_add_u32 s20, s20, {WS_ST}\nv_lshl_add_u32 v36, v36, {4 if fl else 9}, s20")
    A(f"s_waitcnt vmcnt(0)\ns_mov_b64 exec, 1\nds_add_u32 v10, v5 offset:{L_CS}\ns_mov_b64 exec, -1")
    lspin("ss", L_CS, 9, 10, 11, 16 if calm else 8)
    stamp(1)
    for w in range(8): A(f"ds_read_b64 {v2(40+2*w)}, v38 offset:{L_ST+32*w}")
    A("s_waitcnt lgkmcnt(0)")
    A("v_max3_f32 v56, v40, v42, v44\nv_max3_f32 v56, v56, v46, v48\nv_max3_f32 v56, v56, v50, v52\nv_max_f32 v56, v56, v54")
    for w in range(8): A(f"v_sub_f32 v{28+w}, v{40+2*w}, v56")
    for w in range(8): A(f"v_exp_f32 v{28+w}, v{28+w}")
    A("v_mul_f32 v58, v28, v41")
    for w in range(1, 8): A(f"v_fmac_f32 v58, v{28+w}, v{41+2*w}")
    A("s_getreg_b32 s20, hwreg(HW_REG_XCC_ID, 0, 4)\ns_add_u32 s20, s20, s6\nv_mov_b32 v57, s6\nv_mov_b32 v59, s20")
    A("s_mov_b64 exec, 0x1111")
    A(f"global_store_dwordx4 v36, v[56:59], {WS} sc1")
    A("s_mov_b64 exec, -1")
    stamp(2)
    A(f"s_cmp_eq_u32 s66, 0\ns_cbranch_scc1 L_done\ns_cmp_eq_u32 s66, {R_F}\ns_cbranch_scc1 L_done")
    A("L_pre:")
    if xit == 'pre': end_wave()
    A(f"s_cmp_eq_u32 s66, {R_F}\ns_cbranch_scc1 L_tf")
    A(f"s_cmp_eq_u32 s66, {R_C}\ns_cbranch_scc1 L_tc")
    if bp: lspin("sz", L_CW, 2, 10, 11, 16); wo_finish(0)
    A(f"s_lshl_b32 s20, s4, 11\ns_lshl_b32 s21, s3, {4 if fl else 9}\ns_add_u32 s20, s20, s21\ns_add_u32 s20, s20, {WS_ST}")
    A(f"v_and_b32 v4, 31, v0\nv_lshl_add_u32 v5, v4, {6 if fl else 4}, s20")
    lspin("sb", L_CV, strig, 10, 11, 12 if calm else 4)
    poll("ps", lambda: A(f"global_load_dwordx4 v[40:43], v5, {WS} sc1"), lambda: A("v_subrev_u32 v43, s6, v43\nv_xor_b32 v6, s6, v41\nv_lshrrev_b32 v7, 4, v43\nv_or_b32 v6, v6, v7\nv_cmp_ne_u32 vcc, 0, v6"), 8)
    A("s_getreg_b32 s20, hwreg(HW_REG_XCC_ID, 0, 4)\nv_cmp_eq_u32 vcc, s20, v43")
    A("s_and_b32 s28, vcc_lo, 0xffff\ns_mul_i32 s28, s28, 0x10001\ns_mov_b32 s29, s28\ns_lshr_b32 s30, vcc_lo, 16\ns_mul_i32 s30, s30, 0x10001\ns_mov_b32 s31, s30")
    A("v_mov_b32 v44, v40")
    inrow("v_max_f32", 44, ["row_ror:8", "row_ror:4", "row_ror:2", "row_ror:1"]); xrow("v_max_f32", 44, 45, 16)
    A("v_sub_f32 v40, v40, v44\nv_exp_f32 v40, v40\nv_mul_f32 v44, v40, v42")
    inrow("v_add_f32", 44, ["row_ror:8", "row_ror:4", "row_ror:2", "row_ror:1"]); xrow("v_add_f32", 44, 45, 16)
    A("v_rcp_f32 v44, v44\nv_mul_f32 v40, v40, v44")
    A("s_lshl_b32 s20, s3, 8\nv_lshl_add_u32 v4, v4, 2, s20\nv_lshrrev_b32 v5, 4, v0\nv_lshl_add_u32 v5, v5, 4, s20")
    A(f"ds_write_b32 v4, v40 offset:{L_X}\nds_read_b128 v[12:15], v5 offset:{L_X}\nds_read_b128 v[16:19], v5 offset:{L_X+64}")
    A("v_and_b32 v1, 15, v0\nv_lshrrev_b32 v4, 4, v0\nv_lshlrev_b32 v24, 4, v1\nv_lshl_add_u32 v22, v4, 14, v24\nv_lshlrev_b32 v1, %d, v1\nv_lshl_add_u32 v1, v4, 4, v1" % (7 if fl else 6))
    A(f"s_lshl_b32 s20, s4, 15\ns_lshl_b32 s21, s3, 13\ns_add_u32 s20, s20, s21\ns_add_u32 s20, s20, {WS_A}\nv_add_u32 v1, s20, v{2 if lin else 1}")
    A(f"v_add_u32 v5, {(WS_AL-WS_A) if loc else 0}, v1\nv_cndmask_b32 v6, v1, v5, s[28:29]\nv_cndmask_b32 v7, v1, v5, s[30:31]\nv_add_u32 v8, 4096, v6\nv_add_u32 v9, 4096, v7")
    A("s_lshl_b32 s20, s3, 8\nv_lshl_add_u32 v21, v0, 2, s20")
    A(f"s_lshl_b32 s20, s4, 11\ns_lshl_b32 s21, s67, 8\ns_add_u32 s20, s20, s21\ns_add_u32 s20, s20, {WS_B}\ns_lshl_b32 s21, s3, 16\ns_add_u32 s20, s20, s21\nv_add_u32 v22, s20, v22")
    A("s_waitcnt lgkmcnt(0)")
    stamp(5)
    AR = lambda c, s_: 40 + 16 * s_ + 4 * c
    D = lambda s_, nt: 72 + 16 * s_ + 4 * nt
    def lda(s_):
        for c in range(4): A(f"global_load_dwordx4 {v4(AR(c,s_))}, v{6+s_+(0 if c<2 else 2)}, {WS} offset:{(64*(c&1)+2048*s_) if fl else (2048*(c&1)+1024*s_)} {lpol}")
    def mm(s_, other_done):
        wr = 12 + 4 * s_
        def fin(nt):
            d = D(s_, nt)
            r = [f"v_pk_mul_f32 {v2(d)}, {v2(d)}, {v2(wr)}", f"v_pk_fma_f32 {v2(d)}, {v2(d+2)}, {v2(wr+2)}, {v2(d)}", f"v_add_f32 v{d}, v{d}, v{d+1}"]
            if other_done: r.append(f"v_add_f32 v{D(0,nt)}, v{D(0,nt)}, v{D(1,nt)}")
            return r
        for c in range(4):
            for nt in (0, 2, 1, 3):
                d = D(s_, nt)
                A(f"v_mfma_f32_16x16x32_bf16 {v4(d)}, {v4(AR(c,s_))}, {v4(104+16*c+4*nt)}, {'0' if c==0 else v4(d)}")
        for grp in zip(fin(0), fin(2), fin(1), fin(3)):
            for l in grp: A(l)
        if other_done: A("v_permlane32_swap_b32 v72, v80\nv_add_f32 v72, v72, v80")
    if dry:
        A("s_mov_b64 s[80:81], 0\ns_mov_b64 s[32:33], 0\ns_mov_b64 s[34:35], 0\ns_mov_b32 s84, 0\ns_mov_b64 exec, 0\ns_branch L_pb0")
        A("L_bdr:\ns_cmp_eq_u32 s84, 0\ns_mov_b32 s84, 1\ns_cbranch_scc1 L_pb1\ns_mov_b64 exec, -1")
    A("s_mov_b64 s[80:81], -1")
    if bdefer:
        if bdefer <= 8: lspin("sd", L_CV, bdefer, 10, 11, 1)
        else: lspin("sd", L_FP, 1, 10, 11, 1)
        A("s_setprio 1"); wo_issue(bearly, 16); lda(0); lda(1); A("s_setprio 3"); wo_finish(8)
        stamp(4)
        A(f"s_mov_b32 s7, {spin}\ns_branch L_pa2")
    if atrig: lspin("sa", L_FO + (4 if atrig > 4 else 0), atrig - 4 if atrig > 4 else atrig, 10, 11, 2)
    A(f"s_mov_b32 s7, {spin}\ns_mov_b64 s[32:33], -1\ns_mov_b64 s[34:35], -1")
    A("L_pa:")
    A("s_mov_b64 exec, s[32:33]"); lda(0)
    A("s_mov_b64 exec, s[34:35]"); lda(1)
    A("s_mov_b64 exec, -1")
    A("L_pa2:")
    A("s_waitcnt vmcnt(4)")
    chk_sent(range(40, 56), 23); A("s_mov_b64 s[32:33], vcc")
    A("s_waitcnt vmcnt(0)")
    chk_sent(range(56, 72), 23); A("s_mov_b64 s[34:35], vcc")
    A("s_cbranch_vccz L_pa1\ns_cmp_eq_u64 s[32:33], 0\ns_cbranch_scc1 L_pa0")
    if tsleep: A(f"s_sleep {tsleep}")
    if bhold:
        A("s_mov_b32 s85, s7"); lspin("sy", L_FO + 4 * (bhold - 1), 1, 10, 11, 2); A("s_mov_b32 s7, s85")
    A("s_sub_u32 s7, s7, 1\ns_cbranch_scc0 L_pa")
    for first in (0, 1):
        sec = 1 - first
        A(f"L_pa{first}:")
        mk = sp(32 + 2 * sec)
        A(f"s_cmp_eq_u64 {mk}, 0\ns_cbranch_scc1 L_pb{first}")
        A(f"s_mov_b64 exec, {mk}"); lda(sec); A("s_mov_b64 exec, -1")
        A(f"L_pb{first}:")
        mm(first, False)
        A(f"s_mov_b64 exec, {mk}\ns_cbranch_execz L_pd{first}")
        for _ in range(pd - 1): lda(sec)
        A(f"L_pc{first}:")
        A(f"s_waitcnt vmcnt({4*(pd-1)})")
        chk_sent(range(40 + 16 * sec, 56 + 16 * sec), 23)
        A(f"s_cbranch_vccz L_pd{first}\ns_mov_b64 exec, vcc")
        lda(sec)
        A(f"s_sub_u32 s7, s7, 1\ns_cbranch_scc0 L_pc{first}\ns_waitcnt vmcnt(0)")
        A(f"L_pd{first}:")
        A("s_mov_b64 exec, s[80:81]")
        stamp(6)
        mm(sec, True)
        if first == 0: A("s_branch L_pe")
    A("L_pe:\ns_nop 0")
    A("v_permlane32_swap_b32 v76, v84\nv_add_f32 v76, v76, v84")
    A("v_permlane16_swap_b32 v72, v76\nv_add_f32 v72, v72, v76")
    A(f"ds_write_b32 v21, v72 offset:{L_RED}")
    A("s_waitcnt lgkmcnt(0)")
    if dry: A("s_cbranch_execz L_bnb")
    A("s_barrier")
    A(f"s_cmp_ge_u32 s3, {2 if R == 8 else 1}\ns_cbranch_scc1 L_done")
    A("L_bnb:")
    for w in range(4): A(f"ds_read_b128 {v4(88+4*w)}, v24 offset:{L_RED+256*w}")
    assert R in (4, 8)
    A("s_waitcnt lgkmcnt(2)\nv_pk_add_f32 v[88:89], v[88:89], v[92:93]\nv_pk_add_f32 v[90:91], v[90:91], v[94:95]")
    A("s_waitcnt lgkmcnt(0)\nv_pk_add_f32 v[96:97], v[96:97], v[100:101]\nv_pk_add_f32 v[98:99], v[98:99], v[102:103]")
    A("v_pk_add_f32 v[88:89], v[88:89], v[96:97]\nv_pk_add_f32 v[90:91], v[90:91], v[98:99]")
    if dry: A("s_cbranch_execz L_bdr")
    A(f"global_store_dwordx4 v22, v[88:91], {WS} sc1")
    stamp(7)
    end_wave()
    A("L_tc:")
    A("s_mov_b32 s26, s67")
    srd(8, P_W1, 512 * 3584); srd(12, P_W2, 1792 * 1024)
    A("v_lshrrev_b32 v23, 4, v0\nv_lshlrev_b32 v23, 4, v23")
    A("v_lshrrev_b32 v1, 2, v0\ns_mov_b32 s20, 3584\nv_mul_lo_u32 v1, v1, s20\nv_and_b32 v12, 3, v0\nv_lshl_add_u32 v1, v12, 4, v1")
    A(f"s_mul_i32 s20, s3, {128*3584}\ns_lshl_b32 s21, s26, 6\ns_add_u32 s20, s20, s21")
    A("v_lshlrev_b32 v18, 6, v23\nv_and_b32 v13, 15, v0\nv_lshl_add_u32 v18, v13, 4, v18")
    A("s_lshl_b32 s27, s26, 15\ns_lshl_b32 s21, s3, 8\ns_add_u32 s27, s27, s21")
    A(f"s_lshl_b32 s23, s3, 14\ns_add_u32 s23, s23, {L_WT}")
    if not w1early: dma([f"buffer_load_dwordx4 v1, s[8:11], s20 offen {w1pol} lds\ns_add_u32 s20, s20, {16*3584}" for i in range(8)], 0)
    def w2load():
        A("s_add_u32 s23, s23, 8192")
        dma([f"buffer_load_dwordx4 v18, s[12:15], s27 offen {wpol} lds\ns_add_u32 s27, s27, 4096" for i in range(8)], 0)
    A("v_lshrrev_b32 v12, 4, v0\nv_bfe_u32 v13, v0, 2, 2\nv_and_b32 v14, 3, v0\nv_lshl_add_u32 v14, v14, 3, s23")
    A("v_lshl_add_u32 v1, v12, 9, v14\nv_lshl_add_u32 v1, v13, 6, v1")
    A("v_lshl_add_u32 v19, v12, 10, v14\nv_lshl_add_u32 v19, v13, 8, v19")
    if not w2late: w2load()
    A("v_and_b32 v20, 31, v0\nv_lshlrev_b32 v20, 3, v20\nv_lshrrev_b32 v21, 5, v0\nv_lshl_add_u32 v20, v21, 2, v20")
    A("s_lshl_b32 s20, s3, 8\nv_add_u32 v20, s20, v20")
    A(f"global_load_dword v22, v20, {sp(P_X)}\nglobal_load_dwordx4 v[28:31], v2, {sp(P_X)}")
    A(f"v_lshlrev_b32 v21, 1, v20\nv_add_u32 v21, {WS_MOD}, v21\nv_add_u32 v24, 4096, v21")
    poll("pm", lambda: A(f"global_load_dwordx2 v[40:41], v21, {WS} sc1\nglobal_load_dwordx2 v[42:43], v21, {WS} offset:2048 sc1\nglobal_load_dwordx2 v[44:45], v24, {WS} sc1"),
         lambda: chk_tags([41, 43, 45], 46), 16)
    unpack(4, [22, 40, 44], 3)
    unpack(48, [28, 29, 30, 31], 4)
    A("v_pk_add_f32 v[48:49], v[48:49], v[50:51]\nv_pk_add_f32 v[52:53], v[52:53], v[54:55]\nv_pk_add_f32 v[48:49], v[48:49], v[52:53]\nv_add_f32 v48, v48, v49")
    wave_reduce("v_add_f32", 48, 49)
    A(f"v_mul_f32 v48, {f2x(1/512)}, v48\nv_sub_f32 v4, v4, v48\nv_sub_f32 v5, v5, v48")
    A("v_add_f32 v8, 1.0, v8\nv_add_f32 v9, 1.0, v9\nv_cvt_pk_bf16_f32 v44, v8, v9")
    unpack(8, [44], 1)
    A(f"ds_write_b32 v20, v44 offset:{L_U}\nds_write_b32 v20, v42 offset:{L_U+1024}")
    A("v_add_u32 v21, s20, v23\nv_and_b32 v22, 1, v0\nv_lshl_add_u32 v22, v22, 10, v21")
    for c in range(4): A(f"ds_read_b128 {v4(48+4*c)}, v22 offset:{L_U+64*c}")
    for c in range(4):
        for mt in range(2):
            for hi in range(2):
                A(f"ds_read_b64_tr_b16 {v2(104+8*c+4*mt+2*hi)}, v1 offset:{(32*c+4*hi)*64+mt*32}")
        if c & 1: A("s_waitcnt lgkmcnt(0)")
    for c in range(4):
        for mt in range(2):
            A(f"v_mfma_f32_16x16x32_bf16 {v4(24+4*mt)}, {v4(104+8*c+4*mt)}, {v4(48+4*c)}, {'0' if c==0 else v4(24+4*mt)}")
    A("s_mov_b32 exec_lo, 0x00030003\ns_mov_b32 exec_hi, 0x00030003")
    A(f"ds_write_b128 v22, v[24:27] offset:{L_GS}\nds_write_b128 v22, v[28:31] offset:{L_GS+64}")
    A("s_mov_b64 exec, 1\nv_mov_b32 v33, 1")
    A(f"ds_add_u32 v10, v33 offset:{L_CP}")
    A("s_mov_b64 exec, -1")
    A("v_and_b32 v1, 31, v0\nv_lshlrev_b32 v1, 4, v1\nv_lshrrev_b32 v16, 5, v0\nv_lshl_add_u32 v1, v16, 11, v1")
    A(("s_lshr_b32 s21, s4, 1" if rx else f"s_and_b32 s21, {'s4' if R == 8 else 's26'}, {R-1}") + f"\ns_lshl_b32 s21, s21, 14\ns_lshl_b32 s20, s3, 9\ns_add_u32 s20, s20, s21\ns_add_u32 s20, s20, {WS_B}\nv_add_u32 v1, s20, v1")
    A("v_add_u32 v12, 4096, v1\nv_add_u32 v13, 8192, v1\nv_add_u32 v14, 12288, v1")
    A(f"s_lshl_b32 s20, s3, 8\nv_lshl_add_u32 v22, v16, 2, s20")
    A("v_and_b32 v33, 3, v0\nv_lshlrev_b32 v33, 8, v33\nv_bfe_u32 v32, v0, 3, 1\nv_lshl_add_u32 v32, v32, 6, v33\nv_add_u32 v32, v32, v23")
    A(f"s_mov_b32 s22, {f2x(1/512)}\nv_mov_b32 v34, {f2x(1e-5)}")
    lspin("sp", L_CP, 4, 10, 11, 4, lambda: A(f"ds_read_b128 v[24:27], v32 offset:{L_GS}\nds_read_b128 v[28:31], v32 offset:{L_GS+1024}"))
    for qp in ("[1,0,3,2]", "[2,3,0,1]"):
        for i in range(8): A(f"v_add_f32_dpp v{24+i}, v{24+i}, v{24+i} quad_perm:{qp} {DPPF}")
    if dry:
        A("s_mov_b64 s[80:81], 0\ns_mov_b64 s[82:83], 0\ns_mov_b64 exec, 0\ns_branch L_pbd\nL_cdr:\ns_mov_b64 exec, -1")
    A("s_mov_b64 s[80:81], -1\ns_mov_b32 s82, 0x00010001\ns_mov_b32 s83, 0x00010001")
    stamp(4)
    if calm: lspin("sv0", L_CV, 4, 10, 11, 16)
    if w2late > 1:
        lspin("sv1", L_FO + 4 * (w2late - 2), 1, 10, 11, 2); A("s_setprio 0"); w2load(); A("s_setprio 3")
    else:
        lspin("sv", L_FP, 1, 10, 11, 2)
        if w2late: w2load()
    cs = 13 if cpad else 12
    A(f"s_lshl_b32 s20, s3, {cs+3}\ns_lshl_b32 s21, s26, {cs-6}\ns_add_u32 s20, s20, s21\ns_add_u32 s20, s20, {WS_C}")
    A(f"v_bfe_u32 v35, v0, 2, 3\nv_lshlrev_b32 v35, {cs}, v35\nv_and_b32 v36, 3, v0\nv_lshl_add_u32 v35, v36, 4, v35\nv_add_u32 v35, s20, v35")
    A("s_waitcnt vmcnt(0)")
    for tau in range(8):
        for hi in range(2):
            A(f"ds_read_b64_tr_b16 {v2(136+4*tau+2*hi)}, v19 offset:{8192+hi*4096+tau*32}")
        if tau % 4 == 3: A("s_waitcnt lgkmcnt(0)")
    stamp(5)
    G = 40; Hh = 88
    def gather4(name, base, addr, tmp, sleep):
        if g4:
            A(f"s_mov_b32 s7, {spin}")
            for i in range(4): A(f"global_load_dwordx4 {v4(base+4*i)}, {addr(i)} sc1\ns_mov_b64 {sp(28+2*i)}, -1")
            A(f"L_{name}t:\ns_waitcnt vmcnt(0)\ns_mov_b32 s21, 0")
            for i in range(4):
                A(f"s_mov_b64 exec, {sp(28+2*i)}\ns_cbranch_execz L_{name}s{i}")
                A(f"v_max3_u32 v{tmp}, v{base+4*i}, v{base+4*i+1}, v{base+4*i+2}\nv_max_u32 v{tmp}, v{tmp}, v{base+4*i+3}\nv_cmp_eq_u32 vcc, -1, v{tmp}")
                A(f"s_mov_b64 {sp(28+2*i)}, vcc\ns_cbranch_vccz L_{name}s{i}\ns_mov_b64 exec, vcc\nglobal_load_dwordx4 {v4(base+4*i)}, {addr(i)} sc1\ns_mov_b32 s21, 1")
                A(f"L_{name}s{i}:")
            A(f"s_mov_b64 exec, -1\ns_cmp_eq_u32 s21, 0\ns_cbranch_scc1 L_{name}d\ns_sub_u32 s7, s7, 1\ns_cbranch_scc0 L_{name}t\ns_waitcnt vmcnt(0)")
            A(f"L_{name}d:")
            return
        A(f"s_mov_b32 s7, {spin}")
        for _ in range(pd):
            for i in range(4): A(f"global_load_dwordx4 {v4(base+4*i)}, {addr(i)} sc1")
        A(f"L_{name}t:")
        A(f"s_waitcnt vmcnt({4*(pd-1)})")
        for i in range(4): A(f"v_max3_u32 v{tmp+i}, v{base+4*i}, v{base+4*i+1}, v{base+4*i+2}")
        for i in range(4): A(f"v_max_u32 v{tmp+i}, v{tmp+i}, v{base+4*i+3}")
        A(f"v_max3_u32 v{tmp+4}, v{tmp}, v{tmp+1}, v{tmp+2}\nv_max_u32 v{tmp+4}, v{tmp+4}, v{tmp+3}\nv_cmp_eq_u32 vcc, -1, v{tmp+4}\ns_cbranch_vccz L_{name}d")
        for i in range(4): A(f"v_cmp_eq_u32 {sp(28+2*i)}, -1, v{tmp+i}")
        if sleep: A(f"s_sleep {sleep}")
        for i in range(4):
            A(f"s_or_b64 exec, {sp(28+2*i)}, 1\nglobal_load_dwordx4 {v4(base+4*i)}, {addr(i)} sc1")
        A(f"s_mov_b64 exec, -1\ns_sub_u32 s7, s7, 1\ns_cbranch_scc0 L_{name}t")
        A(f"L_{name}d:")
    gather4("pb", Hh, lambda i: f"v{1 if i==0 else 11+i}, {WS}", 56, csleep)
    stamp(6)
    A(f"v_pk_add_f32 {v2(G)}, {v2(Hh)}, {v2(Hh+4)}\nv_pk_add_f32 {v2(G+2)}, {v2(Hh+2)}, {v2(Hh+6)}\nv_pk_add_f32 {v2(G+8)}, {v2(Hh+8)}, {v2(Hh+12)}\nv_pk_add_f32 {v2(G+10)}, {v2(Hh+10)}, {v2(Hh+14)}")
    A(f"v_pk_add_f32 {v2(G)}, {v2(G)}, {v2(G+8)}\nv_pk_add_f32 {v2(G+2)}, {v2(G+2)}, {v2(G+10)}")
    A(f"v_permlane32_swap_b32 v{G}, v{G+2}\nv_permlane32_swap_b32 v{G+1}, v{G+3}")
    A(f"v_pk_add_f32 {v2(G)}, {v2(G)}, {v2(G+2)}")
    A(f"v_pk_fma_f32 v[4:5], {v2(G)}, v[6:7], v[4:5]")
    A("v_pk_mul_f32 v[6:7], v[4:5], v[8:9]\nv_cvt_pk_bf16_f32 v6, v6, v7")
    A(f"ds_write_b32 v20, v6 offset:{L_U}")
    for c in range(4): A(f"ds_read_b128 {v4(44+4*c)}, v21 offset:{L_U+64*c}")
    A("v_add_f32 v16, v4, v5\nv_mul_f32 v17, v4, v4\nv_fmac_f32 v17, v5, v5")
    A("v_permlane32_swap_b32 v16, v17\nv_add_f32 v16, v16, v17")
    xrow("v_add_f32", 16, 17, 16)
    steps = ["row_ror:8", "row_ror:4", "row_ror:2", "row_ror:1"]
    for c in range(4):
        A(f"s_waitcnt lgkmcnt({3-c})")
        for mt in range(2):
            A(f"v_mfma_f32_16x16x32_bf16 {v4(60+4*mt)}, {v4(104+8*c+4*mt)}, {v4(44+4*c)}, {'0' if c==0 else v4(60+4*mt)}")
        inrow("v_add_f32", 16, [steps[c]])
    A("s_mov_b64 exec, s[82:83]")
    A(f"ds_write_b32 v22, v16 offset:{L_RED+128}")
    A(f"ds_write_b128 v21, v[60:63] offset:{L_RED}\nds_write_b128 v21, v[64:67] offset:{L_RED+64}")
    A("s_mov_b64 exec, s[80:81]")
    A("s_waitcnt lgkmcnt(0)")
    if dry: A("s_cbranch_execz L_cnb")
    A("s_barrier\nL_cnb:")
    A(f"ds_read_b64 v[12:13], v33 offset:{L_RED+128}\nds_read_b128 v[40:43], v32 offset:{L_RED}")
    A("s_waitcnt lgkmcnt(0)")
    for qp in ("[1,0,3,2]", "[2,3,0,1]"):
        for r in (12, 13, 40, 41, 42, 43): A(f"v_add_f32_dpp v{r}, v{r}, v{r} quad_perm:{qp} {DPPF}")
    A("v_mul_f32 v12, s22, v12\nv_fma_f32 v14, v13, s22, v34\nv_fma_f32 v14, -v12, v12, v14\nv_max_f32 v14, v14, v34\nv_rsq_f32 v14, v14")
    for q in range(2): A(f"v_pk_fma_f32 {v2(40+2*q)}, {v2(24+2*q)}, v[12:13], {v2(40+2*q)} op_sel_hi:[1,0,1] neg_lo:[0,1,0] neg_hi:[0,1,0]")
    for q in range(2): A(f"v_pk_fma_f32 {v2(40+2*q)}, {v2(40+2*q)}, v[14:15], {v2(28+2*q)} op_sel_hi:[1,0,1]")
    for q in range(2): A(f"v_cvt_pk_bf16_f32 v{48+q}, v{40+2*q}, v{41+2*q}")
    for q in range(2): A(f"v_pk_max_i16 v{48+q}, v{48+q}, 0")
    for q in range(2): A(f"v_mov_b32_dpp v{50+q}, v{48+q} row_shl:8 {DPPF} bound_ctrl:0")
    for tau in (0, 2, 4, 6, 1, 3, 5, 7): A(f"v_mfma_f32_16x16x32_bf16 {v4(56+4*tau)}, v[48:51], {v4(136+4*tau)}, 0")
    for j in (1, 2, 3): A(f"v_mov_b32 v{56+j}, v{56+8*j}")
    for j in range(4): A(f"v_mov_b32_dpp v{56+j}, v{60+8*j} quad_perm:[0,1,2,3] row_mask:0x2 bank_mask:0xf")
    if dry: A("s_cbranch_execz L_cdr")
    A("s_mov_b32 exec_hi, 0")
    A(f"global_store_dwordx4 v35, v[56:59], {WS} sc1")
    stamp(7)
    end_wave()
    A("L_tf:")
    prb("cs")
    A("s_mov_b32 s26, s67\ns_lshr_b32 s20, s26, 3\ns_lshl_b32 s20, s20, 7\ns_and_b32 s21, s26, 7\ns_lshl_b32 s21, s21, 2\ns_add_u32 s20, s20, s21")
    A("v_and_b32 v4, 3, v0\nv_lshrrev_b32 v5, 4, v0\nv_lshl_add_u32 v4, v5, 5, v4\nv_add_u32 v4, s20, v4\nv_lshlrev_b32 v5, 1, v4")
    A(f"global_load_ushort v8, v5, {sp(P_X)}")
    if tw: A(f"global_load_ushort v33, v5, {sp(P_OUT)}")
    A(f"v_lshrrev_b32 v6, 1, v4\nv_lshlrev_b32 v6, 3, v6\nv_add_u32 v6, {WS_MOD}, v6\nv_add_u32 v7, 6144, v6")
    poll("pg", lambda: A(f"global_load_dwordx2 v[12:13], v6, {WS} sc1\nglobal_load_dwordx2 v[14:15], v7, {WS} sc1"),
         lambda: chk_tags([13, 15], 16), 16)
    A("v_lshlrev_b32 v8, 16, v8")
    A("v_and_b32 v16, 1, v4\nv_cmp_eq_u32 vcc, 0, v16")
    A("v_lshlrev_b32 v16, 16, v12\nv_and_b32 v17, 0xffff0000, v12\nv_cndmask_b32 v9, v17, v16, vcc")
    A("v_lshlrev_b32 v16, 16, v14\nv_and_b32 v17, 0xffff0000, v14\nv_cndmask_b32 v12, v17, v16, vcc")
    A(f"v_bfe_u32 v6, v0, 2, 2\nv_lshlrev_b32 v6, 12, v6\nv_lshl_add_u32 v6, v4, 2, v6\nv_add_u32 v6, {WS_B}, v6")
    if R == 8: A("s_lshl_b32 s20, s4, 14\nv_add_u32 v6, s20, v6")
    if rx: A("s_lshr_b32 s20, s4, 1\ns_lshl_b32 s20, s20, 14\nv_add_u32 v6, s20, v6")
    if cpad: A(f"s_lshl_b32 s20, s26, 13\ns_add_u32 s20, s20, {WS_C}\nv_lshrrev_b32 v7, 2, v0\nv_lshl_add_u32 v7, v7, 6, v2\nv_add_u32 v7, s20, v7\nv_add_u32 v32, 4096, v7")
    else: A(f"s_lshl_b32 s20, s26, 12\ns_add_u32 s20, s20, {WS_C}\nv_add_u32 v7, s20, v2")
    if dry: A("s_mov_b64 exec, 0\ns_branch L_fd\nL_fdr:\ns_mov_b64 exec, -1")
    lspin("sf", L_FP, 1, 10, 11, 16 if calm else 4)
    prb("fp")
    poll("pxb", lambda: A(f"global_load_dword v13, v6, {WS} sc1\nglobal_load_dword v14, v6, {WS} offset:2048 sc1"), lambda: chk_sent([13, 14], 15), xsleep)
    A("v_add_f32 v13, v13, v14")
    inrow("v_add_f32", 13, ["row_ror:8", "row_ror:4"])
    A("v_fma_f32 v8, v9, v13, v8")
    prb("b")
    stamp(6)
    if fdelay: A(f"s_sleep {fdelay}")
    gather4("pc", 40, lambda i: f"v{(7 if i<2 else 32) if cpad else 7}, {WS} offset:{2048*(i&1) if cpad else 1024*i}", 56, fsleep)
    A("L_fd:")
    stamp(7)
    A("v_pk_add_f32 v[16:17], v[40:41], v[44:45]\nv_pk_add_f32 v[18:19], v[42:43], v[46:47]\nv_pk_add_f32 v[24:25], v[48:49], v[52:53]\nv_pk_add_f32 v[26:27], v[50:51], v[54:55]")
    A("v_pk_add_f32 v[16:17], v[16:17], v[24:25]\nv_pk_add_f32 v[18:19], v[18:19], v[26:27]")
    A("v_permlane32_swap_b32 v16, v18\nv_permlane32_swap_b32 v17, v19\nv_pk_add_f32 v[16:17], v[16:17], v[18:19]")
    A("v_permlane16_swap_b32 v16, v17\nv_add_f32 v16, v16, v17")
    inrow("v_add_f32", 16, ["row_ror:8", "row_ror:4"])
    A("v_fma_f32 v16, v12, v16, v8\nv_cvt_pk_bf16_f32 v16, v16, v16")
    if dry: A("s_cbranch_execz L_fdr")
    A("s_mov_b32 exec_lo, 0x000f000f\ns_mov_b32 exec_hi, 0x000f000f")
    A(f"global_store_short v5, v16, {sp(P_OUT)}")
    A("s_cmp_lg_u32 s26, 0\ns_cbranch_scc1 L_tfe")
    A("s_mov_b64 exec, 1\nv_mov_b32 v18, s6")
    A(f"global_store_dword v10, v18, {WS}")
    if fixend:
        prb("end")
        A(f"L_fx:\ns_memrealtime s[98:99]\ns_waitcnt lgkmcnt(0)\ns_sub_u32 s98, s98, {'s94' if probe else 's96'}\ns_cmp_lt_u32 s98, {fixend}\ns_cbranch_scc1 L_fx")
    A("L_tfe:")
    stamp(4)
    end_wave()
    if stamps:
        A("L_stampout:")
        if st0: A("s_waitcnt lgkmcnt(0)\nv_writelane_b32 v3, s90, 0\ns_cmp_lt_u32 s3, 4\ns_cbranch_scc1 L_so9\nv_writelane_b32 v3, s92, 1\nv_writelane_b32 v3, s94, 2\nL_so9:")
        if stamps == 2:
            A("s_cmp_lg_u32 s2, 32\ns_cbranch_scc1 L_exit\ns_and_b32 s20, s3, 11\ns_cbranch_scc1 L_exit")
            A("s_mov_b64 exec, 0xff\ns_lshl_b32 s20, s3, 3\nv_lshl_add_u32 v1, v0, 2, s20")
            A(f"global_store_dword v1, v3, {sp(P_DBG)}\ns_endpgm")
        A("s_mov_b64 exec, 0xff")
        A("s_mul_i32 s20, s2, 12\ns_add_u32 s20, s20, s3\ns_lshl_b32 s20, s20, 5")
        A(f"s_add_u32 s20, s20, {WS_STAMP}")
        A("v_lshl_add_u32 v1, v0, 2, s20")
        A(f"global_store_dword v1, v3, {WS}")
    A("L_exit:\ns_endpgm")
    A(".p2align 6\n.type L_tab,@object\nL_tab:")
    for wg in range(256):
        r = roles[wg & 7, wg >> 3]; skip = T - r['n']
        assert skip < 8, (wg, r)
        A(f".long {(r['pre'] - skip + 16) | skip << 12 | r['e'] << 15 | r['ei'] << 18 | r['l'] << 23 | r['li'] << 25:#x}")
    A(f"L_endcode:\n.fill (24576-(L_endcode-{NAME}))/4, 4, 0xbf800000")
    A('.section .rodata,"a"\n.p2align 6')
    A(f".amdhsa_kernel {NAME}")
    for l in ["next_free_vgpr 168", "next_free_sgpr 102", "accum_offset 168", "group_segment_fixed_size 0", "kernarg_size 104",
              "user_sgpr_count 2", "user_sgpr_kernarg_segment_ptr 1", "system_sgpr_workgroup_id_x 1"]:
        A("  .amdhsa_" + l)
    A(".end_amdhsa_kernel")
    return A.finish()

if __name__ == "__main__":
    out = sys.argv[1]; kw = {}
    for a in sys.argv[2:]:
        k, v = a.split("=", 1)
        try: v = ast.literal_eval(v)
        except Exception: pass
        kw[k] = v
    open(out, "w").write(gen(**kw))
    import json
    roles, T = make_plan(kw.get('plan', 'A'), **{k: v for k, v in kw.items() if k in ('cH','cQ','cM','cB','cC','T','c3','Fx')})
    json.dump([[roles[wg & 7, wg >> 3][k] for k in ('e', 'l', 'n')] for wg in range(256)], open(out + ".roles", "w"))
```

```python
import sys, struct, ast
from asmlib import Asm
NAME = "adaLN_cond__gqa_block_cached__dense_activation_relu__decode_kernel"
def f2x(f): return "0x%08x" % struct.unpack("<I", struct.pack("<f", f))[0]

WS_XB = 0x14000; WS_QL = 0x10000; WS_H = 0x1000; WS_MOD = 0x4000; WS_Q = 0x8000; WS_ST = 0xC000
WS_AL = 0xC0000; WS_A = 0x80000; WS_B = 0x20000; WS_C = 0x40000
WS_STAMP = 0x8000000
L_CG = 0; L_FQ = 4; L_CS = 8; L_CT = 68; L_CP = 16; L_FK = 20; L_CV = 24; L_CW = 28; L_FO = 32; L_MK = 64; L_FP = 12
L_ST = 256; L_Q = 1024; L_GP = 2048; L_X = 3072; L_RED = 4096; L_U = 5120; L_GS = 8192
L_OP = 16384; L_WT = 32768; LDS_SIZE = 98304
DPPF = "row_mask:0xf bank_mask:0xf"
P_X, P_K, P_V, P_WQ, P_WO, P_BX, P_W1, P_W2, P_C, P_WM, P_OUT, P_DBG, P_WS = [36 + 2 * i for i in range(13)]
def sp(n): return f"s[{n}:{n+1}]"
def v4(n): return f"v[{n}:{n+3}]"
def v2(n): return f"v[{n}:{n+1}]"
WS = sp(P_WS)

DOC = '''; ---------------------------------------------------------------------------------------------
; ---------------------------------------------------------------------------------------------'''
E_H, E_Q, E_M, E_B = 1, 2, 3, 4
R_B, R_C, R_F = 1, 2, 3
def make_plan(plan, **pk):
    P = dict(PLANS[plan]); P.update(pk)
    roles = {(x, a): dict(e=0, ei=0, l=0, li=0) for x in range(8) for a in range(32)}
    hi = mi = ci = fi = 0
    for x in range(8):
        a = 0
        for _ in range(P['H'][x]): roles[x, a].update(e=E_H, ei=hi); hi += 1; a += 1
        for c in range(8):
            roles[x, a].update(e=E_Q, ei=c)
            if (x & 1 == P['Fx'] if 'Fx' in P else c in (0, 1, 4, 5)): roles[x, a].update(l=R_F, li=fi); fi += 1
            a += 1
        for c in range(8): roles[x, a].update(e=E_B, ei=c, l=R_B, li=c); a += 1
        for _ in range(P['M'][x]): roles[x, a].update(e=E_M, ei=mi); mi += 1; a += 1
        assert a <= 32
        cand = [b for b in range(31, -1, -1) if roles[x, b]['e'] == 0] + [b for b in range(32) if roles[x, b]['e'] == E_H] + [b for b in range(32) if roles[x, b]['e'] == E_M]
        for b in cand[:P['C'][x]]: roles[x, b].update(l=R_C, li=ci); ci += 1
    assert (hi, mi, ci, fi) == (32, 32, 56, 32), (hi, mi, ci, fi)
    for x in range(8):
        cost = []
        for a in range(32):
            r = roles[x, a]
            c = {0: 0, E_H: P['cH'], E_Q: P['cQ'], E_M: P['cM'], E_B: P['cB']}[r['e']]
            cb = r['ei'] if r['e'] in (E_Q, E_B) else (r['ei'] >> 2)
            if r['e'] and cb == 3: c += P['c3'][r['e']]
            if r['l'] == R_C: c += P['cC']
            cost.append(c)
        n = [max(28, P['T'] - 7)] * 32
        for _ in range(1024 - sum(n)):
            b = min((a for a in range(32) if n[a] < P['T']), key=lambda a: (n[a] + cost[a], -a))
            n[b] += 1
        pre = 0
        for a in range(32):
            roles[x, a].update(n=n[a], pre=pre); pre += n[a] - 28
    T = max(r['n'] for r in roles.values()); T += T & 1
    return roles, T
base = dict(cH=2.0, cQ=3.6, cM=4.2, cB=3.6, cC=4.0, c3={E_H: 0.5, E_Q: 1.7, E_M: 1.5, E_B: 1.0}, T=34)
base2 = dict(cH=1.6, cQ=4.0, cM=4.5, cB=3.4, cC=5.3, c3={E_H: 0.7, E_Q: 2.3, E_M: 1.8, E_B: 2.4}, T=36)
PLANS = {
 'A': dict(base, H=[4]*8, M=[4]*8, C=[7]*8),
 'B': dict(base, H=[8,0,8,0,8,0,8,0], M=[8,0,8,0,8,0,8,0], C=[14,0,14,0,14,0,14,0]),
 'C': dict(base, H=[8,0,8,0,8,0,8,0], M=[8,0,8,0,8,0,8,0], C=[7]*8),
 'D': dict(base, H=[8,8,8,8,0,0,0,0], M=[8,0,8,0,8,0,8,0], C=[14,0,14,0,14,0,14,0]),
 'E': dict(base, H=[8,8,8,8,0,0,0,0], M=[8,0,8,0,8,0,8,0], C=[8,6,8,6,8,6,8,6]),
 'G': dict(base2, H=[8,0,8,0,8,0,8,0], M=[8,0,8,0,8,0,8,0], C=[7]*8),
 'H': dict(base2, H=[8,0,8,0,8,0,8,0], M=[8,0,8,0,8,0,8,0], C=[8,8,8,12,8,2,8,2]),
 'I': dict(base2, H=[8,0,8,8,4,0,4,0], M=[8,0,8,0,8,0,8,0], C=[8,8,8,8,8,4,8,4]),
 'J': dict(base2, H=[8,0,8,0,8,0,8,0], M=[8,0,8,0,8,0,8,0], C=[0,14,0,14,0,14,0,14]),
 'K': dict(base2, H=[8,0,8,0,8,0,8,0], M=[8,0,8,0,8,0,8,0], C=[4,10,4,10,4,10,4,10]),
 'L': dict(base2, H=[8,0,8,0,8,0,8,0], M=[8,0,8,0,8,0,8,0], C=[8,6,8,6,8,6,8,6]),
 'N': dict(base2, H=[8,0,8,0,8,0,8,0], M=[2,6,2,6,2,6,2,6], C=[14,0,14,0,14,0,14,0]),
 'O': dict(base2, H=[0,8,0,8,0,8,0,8], M=[2,6,2,6,2,6,2,6], C=[14,0,14,0,14,0,14,0]),
 'P': dict(base2, H=[4,4,4,4,4,4,4,4], M=[2,6,2,6,2,6,2,6], C=[14,0,14,0,14,0,14,0]),
 'F': dict(base, H=[8,4,8,4,4,0,4,0], M=[8,0,8,0,8,0,8,0], C=[10,4,10,4,10,4,10,4]),
}

def gen(win=5, win2=6, wpol="nt", stamps=0, spin=200000, hsleep=4, qsleep=8, tsleep=1, pace=4, cpre=1, kprio=0, skipw=0, vmid=4, nopoll='', qtrig=22, R=4, cdefer=1, csleep=2, nH=33, nX=31, nL=34, loc=1, lpol='sc1', w1pol='nt', nocomp=0, nosvc=0, sprio=3, nopre=0, nocw=0, lmul=1, xit='', qloc=1, strig=1, qtrig2=38, kpol='nt', vpol='nt', slowfb=0, fixend=0, plan='A', hfirst=1, cpad=1, w2late=1, fsleep=1, dry=0, yprio=0, burst=0, bwin=8, mlate=0, xp=None, lin=1, atrig=0, pre=0, g4=0, alt1=0, alt2=0, tw=0, probe='', det=1, rx=0, fl=0, w1early=1, nohp=0, ws1=0, ws2=0, bp=0, calm=0, ltab=1, st0=0, bhold=0, xl=1, bearly=0, pd=1, fdelay=0, xsleep=4, bdefer=0, hwait=0, **pk):
    A = Asm()
    roles, T = make_plan(plan, **pk)
    hdr = open("cdna_kernels/" + NAME[:-7] + ".s.ref").read().split("; Override")[0]
    A(hdr.rstrip())
    A(f"; @launch grid=(256,1,1) block=(768,1,1) lds={LDS_SIZE}")
    A(DOC)
    A('.amdgcn_target "amdgcn-amd-amdhsa--gfx950"')
    A(f".text\n.globl {NAME}\n.p2align 8\n.type {NAME},@function\n{NAME}:")
    def stamp(k):
        if stamps:
            A("s_memrealtime s[62:63]\ns_waitcnt lgkmcnt(0)")
            A(f"v_writelane_b32 v3, s62, {k}")
    def prb(name):
        if probe == name: A("s_memrealtime s[94:95]\ns_waitcnt lgkmcnt(0)")
    def end_wave():
        if stamps:
            A("s_branch L_stampout")
        else:
            A("s_endpgm")
    def srd(d, p, size):
        A(f"s_mov_b32 s{d}, s{p}\ns_mov_b32 s{d+1}, s{p+1}\ns_mov_b32 s{d+2}, {size}\ns_mov_b32 s{d+3}, 0x20000")
    def poll(name, loads, check, sleep):
        if name in nopoll.split('+'): return
        top = A.label(name); done = A.label(name + "d")
        A(f"s_mov_b32 s7, {spin}")
        A(f"{top}:")
        loads()
        A("s_waitcnt vmcnt(0)")
        check()
        A(f"s_cbranch_vccz {done}")
        A("s_mov_b64 exec, vcc")
        if sleep: A(f"s_sleep {sleep}")
        A("s_sub_u32 s7, s7, 1")
        A(f"s_cbranch_scc0 {top}")
        A(f"{done}:")
        A("s_mov_b64 exec, -1")
    def lspin(name, off, n, vz, vt, sleep=1, extra=None):
        top = A.label(name); done = A.label(name + "d")
        A(f"s_mov_b32 s7, {spin*20}")
        A(f"{top}:")
        A(f"ds_read_b32 v{vt}, v{vz} offset:{off}")
        if extra: extra()
        A("s_waitcnt lgkmcnt(0)")
        A(f"v_cmp_gt_u32 vcc, {n}, v{vt}")
        A(f"s_cbranch_vccz {done}")
        if lmul > 1: sleep = min(127, max(sleep, 1) * lmul)
        if sleep: A(f"s_sleep {sleep}")
        A("s_sub_u32 s7, s7, 1")
        A(f"s_cbranch_scc0 {top}")
        A(f"{done}:")
    def chk_tags(regs, tmp):
        A(f"v_xor_b32 v{tmp}, s6, v{regs[0]}")
        for r in regs[1:]:
            A(f"v_xor_b32 v{tmp+1}, s6, v{r}")
            A(f"v_or_b32 v{tmp}, v{tmp}, v{tmp+1}")
        A(f"v_cmp_ne_u32 vcc, 0, v{tmp}")
    def chk_sent(regs, tmp):
        regs = list(regs)
        if len(regs) == 1:
            A(f"v_cmp_eq_u32 vcc, -1, v{regs[0]}"); return
        if len(regs) == 2:
            A(f"v_max_u32 v{tmp}, v{regs[0]}, v{regs[1]}"); rest = []
        else:
            A(f"v_max3_u32 v{tmp}, v{regs[0]}, v{regs[1]}, v{regs[2]}"); rest = regs[3:]
        while rest:
            if len(rest) == 1:
                A(f"v_max_u32 v{tmp}, v{tmp}, v{rest[0]}"); rest = []
            else:
                A(f"v_max3_u32 v{tmp}, v{tmp}, v{rest[0]}, v{rest[1]}"); rest = rest[2:]
        A(f"v_cmp_eq_u32 vcc, -1, v{tmp}")
    def xrow(op, v, tmp, which):
        A(f"v_mov_b32 v{tmp}, v{v}")
        A(f"v_permlane{which}_swap_b32 v{v}, v{tmp}")
        A(f"{op} v{v}, v{v}, v{tmp}")
    def inrow(op, v, steps):
        for s in steps:
            A(f"{op}_dpp v{v}, v{v}, v{v} {s} {DPPF}")
    def wave_reduce(op, v, tmp):
        inrow(op, v, ["row_ror:8", "row_ror:4", "row_ror:2", "row_ror:1"])
        xrow(op, v, tmp, 16); xrow(op, v, tmp, 32)
    def unpack(dst, src, n):
        for i in range(n):
            A(f"v_lshlrev_b32 v{dst+2*i}, 16, v{src[i]}")
            A(f"v_and_b32 v{dst+2*i+1}, 0xffff0000, v{src[i]}")
    def silu(x, t, n):
        A(f"s_mov_b32 s21, {f2x(-1.4426950408889634)}")
        for i in range(n): A(f"v_mul_f32 v{t+i}, s21, v{x+i}")
        for i in range(n): A(f"v_exp_f32 v{t+i}, v{t+i}")
        for i in range(n): A(f"v_add_f32 v{t+i}, 1.0, v{t+i}")
        for i in range(n): A(f"v_rcp_f32 v{t+i}, v{t+i}")
        for i in range(n): A(f"v_mul_f32 v{x+i}, v{x+i}, v{t+i}")
    def gemv_perm(W, T, npair):
        for u in range(npair):
            for w in range(4):
                a = W + 8 * u + w; b = W + 8 * u + 4 + w
                A(f"v_perm_b32 v{T+8*u+2*w}, v{b}, v{a}, s24")
                A(f"v_perm_b32 v{T+8*u+2*w+1}, v{b}, v{a}, s25")
    def gemv_dot(T, X, acc):
        for u in range(len(X)):
            for e in range(8):
                c = "0" if u == 0 else f"v{acc+e}"
                A(f"v_dot2_f32_bf16 v{acc+e}, v{T+8*u+e}, v{X[u]}, {c}")
    def mktag():
        A("s_waitcnt lgkmcnt(0)\ns_mul_i32 s6, s6, 0x9E3779B1\ns_add_u32 s6, s6, 0x7F4A7C15")
    def paced(loads, w):
        if skipw and (w or skipw > 1): return
        for i, l in enumerate(loads):
            if w and i >= w: A(f"s_waitcnt vmcnt({w-1})")
            A(l)

    if st0: A("s_memrealtime s[90:91]")
    A("s_cmp_ge_u32 s2, 256\ns_cbranch_scc1 L_exit")
    A("s_load_dwordx16 s[36:51], s[0:1], 0")
    rest_ld = "s_load_dwordx8 s[52:59], s[0:1], 64\ns_load_dwordx2 s[60:61], s[0:1], 96\ns_load_dword s68, s[32:33], s34"
    A("s_getpc_b64 s[30:31]\nL_pc:\ns_add_u32 s32, s30, L_tab-L_pc\ns_addc_u32 s33, s31, 0\ns_lshl_b32 s34, s2, 2")
    if not ltab: A(rest_ld)
    A("v_lshrrev_b32 v1, 6, v0\nv_and_b32 v0, 63, v0\nv_readfirstlane_b32 s3, v1")
    A("s_and_b32 s4, s2, 7\ns_lshr_b32 s5, s2, 3")
    if xp: A(f"s_lshl_b32 s4, s4, 2\ns_lshr_b32 s4, {sum(h << (4*i) for i, h in enumerate(xp)):#x}, s4\ns_and_b32 s4, s4, 7")
    if fixend: A("s_memrealtime s[96:97]")
    A("s_mov_b32 s24, 0x05040100\ns_mov_b32 s25, 0x07060302")
    A("v_lshlrev_b32 v2, 4, v0")
    if stamps:
        A("v_mov_b32 v3, 0")
        if not st0: stamp(0)
    A("s_cmp_lt_u32 s3, 4\ns_cbranch_scc1 L_service")
    STREAM_MARK = len(A.lines)
    A("L_service:")
    if ltab: A(rest_ld)
    A(f"s_setprio {sprio}")
    if cpre:
        A(f"s_lshl_b32 s20, s5, 2\ns_add_u32 s20, s20, s3\ns_sub_u32 s20, s20, 104\ns_cmp_ge_u32 s20, (L_endcode-{NAME})/1024\ns_cbranch_scc1 L_ncp")
        A(f"s_sub_u32 s30, s30, L_pc-{NAME}\ns_subb_u32 s31, s31, 0")
        A("s_lshl_b32 s20, s20, 10\nv_add_u32 v14, s20, v2")
        A("global_load_dwordx4 v[164:167], v14, s[30:31]")
        A("L_ncp:")
    A("v_lshrrev_b32 v12, 3, v0\nv_and_b32 v13, 7, v0\nv_mov_b32 v16, 0\nv_mov_b32 v17, 0\nv_mov_b32 v18, 0\nv_mov_b32 v19, 0")
    A("s_mov_b64 exec, 0x1f\nds_write_b128 v2, v[16:19]\ns_mov_b64 exec, -1")
    A("s_waitcnt lgkmcnt(0)")
    A("s_bfe_u32 s64, s68, 0x3000f\ns_bfe_u32 s65, s68, 0x50012\ns_bfe_u32 s66, s68, 0x20017\ns_bfe_u32 s67, s68, 0x60019")
    A("s_lshr_b32 s69, s65, 2\ns_and_b32 s70, s65, 3")
    A(f"s_cmp_lg_u32 s64, {E_H}\ns_cbranch_scc1 L_nh")
    A("s_lshr_b32 s20, s70, 1\ns_lshl_b32 s20, s20, 8\ns_lshl_b32 s21, s3, 6\ns_add_u32 s20, s20, s21")
    A("v_lshl_add_u32 v14, v12, 3, s20")
    A("s_mov_b32 s21, 6144\nv_mul_lo_u32 v1, v14, s21\nv_lshl_add_u32 v1, v13, 4, v1\nv_lshlrev_b32 v14, 1, v14")
    A("s_and_b32 s20, s70, 1\ns_lshl_b32 s20, s20, 10\ns_lshl_b32 s21, s69, 7\ns_add_u32 s20, s20, s21")
    A("s_waitcnt lgkmcnt(0)")
    srd(8, P_WM, 512 * 6144)
    A(f"global_load_dwordx4 v[4:7], v14, {sp(P_C)}")
    for i in range(8):
        A(f"buffer_load_dwordx4 {v4(40+4*i)}, v1, s[8:11], s20 offen {wpol}")
        if i < 7: A("s_add_u32 s20, s20, 6144")
    A(f"s_load_dword s6, {WS}, 0")
    A("s_barrier")
    A("s_lshl_b32 s20, s65, 2\ns_add_u32 s20, s20, s3")
    if cpad: A(f"s_lshl_b32 s21, s20, 11\ns_add_u32 s21, s21, {WS_C}\nv_lshrrev_b32 v14, 2, v0\nv_lshl_add_u32 v14, v14, 6, v2\nv_add_u32 v14, s21, v14")
    else: A(f"s_lshl_b32 s21, s20, 10\ns_add_u32 s21, s21, {WS_C}\nv_add_u32 v14, s21, v2")
    A(f"s_mul_i32 s21, s20, {128*R}\ns_add_u32 s21, s21, {WS_B}\nv_add_u32 v15, s21, v2")
    A("s_cmp_eq_u32 s3, 3\ns_cselect_b32 exec_hi, 0, -1")
    for i in range(4): A(f"v_mov_b32 v{16+i}, -1")
    A("s_mov_b64 exec, -1")
    if nohp: A("s_mov_b64 exec, 1")
    A(f"global_store_dwordx4 v14, v[16:19], {WS} sc1")
    for i in range(4): A(f"v_mov_b32 v{20+i}, -1")
    if R < 8: A(f"s_mov_b32 exec_hi, 0\ns_mov_b32 exec_lo, {(1<<(8*R))-1:#x}")
    A(f"global_store_dwordx4 v15, v[20:23], {WS} sc1")
    A("s_mov_b64 exec, -1")
    A("s_waitcnt vmcnt(10)")
    unpack(24, [4, 5, 6, 7], 4); silu(24, 32, 8)
    for i in range(4): A(f"v_cvt_pk_bf16_f32 v{24+i}, v{24+2*i}, v{25+2*i}")
    mktag()
    A(f"s_and_b32 s26, s70, 1\ns_lshl_b32 s26, s26, 12\ns_lshr_b32 s21, s70, 1\ns_lshl_b32 s21, s21, 11\ns_add_u32 s26, s26, s21\ns_lshl_b32 s21, s69, 8\ns_add_u32 s26, s26, s21\ns_add_u32 s26, s26, {WS_H}")
    A("s_waitcnt vmcnt(2)")
    stamp(1)
    gemv_perm(40, 104, 4)
    gemv_dot(104, [24, 25, 26, 27], 32)
    A("L_gfin:")
    acc = 32
    for e in range(4): A(f"v_permlane32_swap_b32 v{acc+e}, v{acc+e+4}")
    for e in range(4): A(f"v_add_f32 v{acc+e}, v{acc+e}, v{acc+e+4}")
    for e in range(2): A(f"v_permlane16_swap_b32 v{acc+e}, v{acc+e+2}")
    for e in range(2): A(f"v_add_f32 v{acc+e}, v{acc+e}, v{acc+e+2}")
    for e in range(2): A(f"v_add_f32_dpp v{acc+e}, v{acc+e}, v{acc+e} row_ror:8 {DPPF}")
    A("v_lshrrev_b32 v14, 4, v0\nv_lshlrev_b32 v14, 3, v14\nv_lshl_add_u32 v14, v13, 5, v14\ns_lshl_b32 s21, s3, 8\nv_add_u32 v14, s21, v14")
    A(f"ds_write_b64 v14, v[32:33] offset:{L_GP}")
    A("v_mov_b32 v14, 0\nv_mov_b32 v15, 1")
    A("s_waitcnt vmcnt(0)")
    A("s_mov_b64 exec, 1")
    A(f"ds_add_rtn_u32 v15, v14, v15 offset:{L_CG}")
    A("s_mov_b64 exec, -1")
    A("v_lshlrev_b32 v14, 3, v0")
    A("s_waitcnt lgkmcnt(0)")
    A("v_readfirstlane_b32 s21, v15")
    A("s_cmp_lg_u32 s21, 3\ns_cbranch_scc1 L_gdone")
    A("s_mov_b32 exec_hi, 0")
    for w in range(4): A(f"ds_read_b64 {v2(32+2*w)}, v14 offset:{L_GP+256*w}")
    A("v_add_u32 v14, s26, v14")
    A("s_waitcnt lgkmcnt(0)")
    A("v_pk_add_f32 v[32:33], v[32:33], v[34:35]\nv_pk_add_f32 v[36:37], v[36:37], v[38:39]\nv_pk_add_f32 v[32:33], v[32:33], v[36:37]")
    A("v_cvt_pk_bf16_f32 v32, v32, v33\nv_mov_b32 v33, s6")
    if qloc:
        A(f"s_cmp_lg_u32 s64, {E_Q}\ns_cbranch_scc1 L_gnl")
        A(f"v_add_u32 v15, {WS_QL-WS_Q}, v14\nglobal_store_dwordx2 v15, v[32:33], {WS}")
        A("L_gnl:")
    A(f"global_store_dwordx2 v14, v[32:33], {WS} sc1")
    A("s_mov_b64 exec, -1")
    A("L_gdone:")
    stamp(3)
    if mlate: A(f"s_cmp_eq_u32 s64, {E_M}\ns_cbranch_scc1 L_done")
    A("s_branch L_qpoll")

    NM = T - 28; nmask = T - min(r['n'] for r in roles.values())
    NW = 39 - T
    S0 = len(A.lines)
    A("L_stream:")
    if kprio: A(f"s_setprio {kprio}")
    A("s_sub_u32 s21, s3, 4")
    if yprio == 1: A("s_cmp_lt_u32 s21, 4\ns_cbranch_scc1 L_yp\ns_setprio 1\nL_yp:")
    A("v_bfe_u32 v1, v0, 2, 2\nv_lshlrev_b32 v1, 8, v1\nv_lshrrev_b32 v4, 4, v0\nv_lshl_add_u32 v1, v4, 6, v1\nv_and_b32 v4, 3, v0\nv_lshl_add_u32 v1, v4, 4, v1")
    A(f"s_lshl_b32 s19, s4, 23\ns_mul_i32 s16, s5, {28*8192}\ns_add_u32 s16, s16, s19\ns_lshl_b32 s17, s21, 12\ns_add_u32 s16, s16, s17")
    A("s_mov_b32 s10, 0x4000000\ns_mov_b32 s11, 0x20000")
    hcnt = sum(PLANS[plan]['H'][x] << (4 * x) for x in range(8))
    A(f"s_lshl_b32 s17, s4, 2\ns_lshr_b32 s35, {hcnt:#x}, s17\ns_and_b32 s35, s35, {15 if hfirst else 0}")
    A("s_waitcnt lgkmcnt(0)")
    A(f"s_mov_b32 s8, s{P_K}\ns_mov_b32 s9, s{P_K+1}")
    A("s_cmp_ge_u32 s5, s35\ns_cbranch_scc1 L_s1\ns_barrier\nL_s1:")
    KR = lambda t: 168 - 4 * T + 4 * t
    nS = (T + 3) // 4; nP = (T + 7) // 8
    nkeep = nS - (T - 8) // 4
    nxa = 8 - (nS - nkeep)
    first_v = nS - 1 + nP + 1 + nxa
    vslots = [12 + 4 * i for i in range(NW)] + [KR(i) for i in range(first_v, T)]
    VR = lambda t: vslots[t % len(vslots)]
    st = {"cur": None}
    mpos = [6 + (j * (T - 12)) // max(nmask, 1) for j in range(nmask)]
    rest = list(range(NM, NM + 6)) + list(range(nmask, NM)) + list(range(NM + 6, T))
    perm = []
    for t in range(T):
        if t in mpos: perm.append(mpos.index(t))
        else: perm.append(rest.pop(0))
    first_nm = min(t for t in range(T) if perm[t] < NM)
    assert first_nm >= win
    hist = []
    def wcount(w):
        c = 0
        for n_, m_ in enumerate(reversed(hist)):
            if not m_:
                if c == w - 1: return n_
                c += 1
        return None
    def ld(which, t):
        o = perm[t]
        hist.append(o < nmask)
        if o < NM:
            A(f"s_add_u32 s20, s17, {o*8192}"); st["cur"] = None; imm = 0
            if o < nmask: A(f"s_cmp_gt_u32 s18, {o}\ns_cselect_b32 s20, 0x4000000, s20")
        else:
            key = (o - NM) >> 2; imm = ((o - NM) & 3) * 1024
            if st["cur"] != key:
                A(f"s_add_u32 s20, s16, {key*32768}"); st["cur"] = key
        if which == "K": A(f"buffer_load_dwordx4 {v4(KR(t))}, v1, s[8:11], s20 offen offset:{imm} {kpol}")
        else: A(f"buffer_load_dwordx4 {v4(VR(t))}, v2, s[12:15], s20 offen offset:{imm} {vpol}")
    korder = list(range(T))
    seq = [("K", t) for t in korder] + [("V", t) for t in range(NW)]
    for i, (wh, t) in enumerate(seq):
        if i == win:
            if st0: A("s_memrealtime s[92:93]")
            if ltab: A(rest_ld)
            A("s_branch L_body")
            S1 = len(A.lines)
            A("L_body:")
            srd(12, P_V, 0x4000000)
            if ws1: A(f"s_cmp_lt_u32 s21, {ws1}\ns_cselect_b64 vcc, -1, 0")
            if st0: A("s_waitcnt vmcnt(3)\ns_memrealtime s[94:95]")
            A("s_cmp_lt_u32 s5, s35\ns_cbranch_scc1 L_s2\ns_barrier\nL_s2:\ns_waitcnt lgkmcnt(0)")
            A(f"s_and_b32 s17, s68, 0xfff\ns_bfe_u32 s18, s68, 0x3000c\ns_add_u32 s17, s17, {896-16}\ns_lshl_b32 s17, s17, 13\ns_add_u32 s17, s17, s19\ns_lshl_b32 s19, s21, 10\ns_add_u32 s17, s17, s19")
        if i == T and kprio: A("s_setprio 0")
        if wcount(win) is not None and perm[t] >= nmask:
            if ws1:
                lb = A.label("w"); A(f"s_cbranch_vccz {lb}\ns_waitcnt vmcnt({wcount(win-1)})\n{lb}:")
            A(f"s_waitcnt vmcnt({wcount(win - 1) if (alt1 and i % alt1 == 0) else wcount(win)})")
        ld(wh, t)
        if i == qtrig: A(f"v_mov_b32 v8, 0\nv_mov_b32 v9, 1\ns_mov_b64 exec, 1\nds_max_u32 v8, v9 offset:{L_FK}\ns_mov_b64 exec, -1")
        if i == qtrig2 and qloc: A(f"v_mov_b32 v8, 0\nv_mov_b32 v9, 2\ns_mov_b64 exec, 1\nds_max_u32 v8, v9 offset:{L_FK}\ns_mov_b64 exec, -1")
    viss = NW
    A("v_and_b32 v8, 3, v0\nv_lshlrev_b32 v8, 8, v8\nv_lshrrev_b32 v9, 4, v0\nv_lshl_add_u32 v8, v9, 6, v8\nv_bfe_u32 v9, v0, 2, 2\nv_lshl_add_u32 v8, v9, 4, v8\nv_mov_b32 v9, 0")
    A(f"s_mov_b32 s22, {f2x(128**-0.5*1.4426950408889634)}")
    for t in range(nmask): A(f"s_cmp_gt_u32 s18, {t}\ns_cselect_b32 s{28+t}, 0xff800000, 0")
    stamp(1)
    lspin("sq", L_FQ, 1, 9, 10, 2, lambda: A(f"ds_read_b128 v[4:7], v8 offset:{L_Q}"))
    stamp(2)
    kl = {"landed": T + NW - win - 3}
    DR = lambda t: 8 if t == 0 else KR(t - 1)
    SR = lambda t: (8 + t) if t < 4 else KR((t >> 2) - 1) + (t & 3)
    def M(t):
        if t >= kl["landed"]:
            A(f"s_waitcnt vmcnt({len(hist)-1-t})"); kl["landed"] = t + 1
        A(f"v_mfma_f32_16x16x32_bf16 {v4(DR(t))}, {v4(KR(t))}, v[4:7], 0")
    def AB(t):
        d = DR(t)
        A(f"v_add_f32_dpp v{d}, v{d+1}, v{d} row_shl:4 {DPPF} bound_ctrl:0")
        A(f"v_add_f32_dpp v{d+2}, v{d+3}, v{d+2} row_shl:4 {DPPF} bound_ctrl:0")
    def S(t):
        d = DR(t)
        A(f"v_add_f32_dpp v{SR(t)}, v{d+2}, v{d} row_shl:8 {DPPF} bound_ctrl:0")
    mark0 = len(A.lines)
    if yprio == 2: A("s_cmp_lt_u32 s21, 4\ns_cbranch_scc1 L_yp\ns_setprio 1\nL_yp:")
    M(0); M(1); M(2)
    for t in range(T + 1):
        if t < T: AB(t)
        if t >= 1:
            S(t - 1)
            if vmid and t - 2 >= first_v and (t - 2 - first_v) % vmid == 0:
                ld("V", viss); viss += 1
        if t + 3 < T: M(t + 3)
    TM = KR(nS - 1 + nP)
    Sl = [SR(t) for t in range(T)]
    for t in range(nmask): A(f"v_add_f32 v{Sl[mpos[t]]}, s{28+t}, v{Sl[mpos[t]]}")
    A(f"v_max3_f32 v{TM}, v{Sl[0]}, v{Sl[1]}, v{Sl[2]}")
    A(f"v_max3_f32 v{TM+1}, v{Sl[3]}, v{Sl[4]}, v{Sl[5]}")
    i = 6; k = 0
    while i < T:
        A(f"v_max3_f32 v{TM+k}, v{TM+k}, v{Sl[i]}, v{Sl[i+1]}"); i += 2; k ^= 1
    A(f"v_max_f32 v{TM}, v{TM}, v{TM+1}")
    xrow("v_max_f32", TM, TM + 1, 16); xrow("v_max_f32", TM, TM + 1, 32)
    A(f"v_mul_f32 v{TM}, s22, v{TM}")
    for t in range(T): A(f"v_fma_f32 v{Sl[t]}, v{Sl[t]}, s22, -v{TM}")
    for t in range(T): A(f"v_exp_f32 v{Sl[t]}, v{Sl[t]}")
    if vmid: ld("V", viss); viss += 1
    A(f"v_add_f32 v{TM+1}, v{Sl[0]}, v{Sl[1]}\nv_add_f32 v{TM+2}, v{Sl[2]}, v{Sl[3]}")
    for t in range(4, T): A(f"v_add_f32 v{TM+1+(t&1)}, v{TM+1+(t&1)}, v{Sl[t]}")
    A(f"v_add_f32 v{TM+1}, v{TM+1}, v{TM+2}")
    xrow("v_add_f32", TM + 1, TM + 2, 16); xrow("v_add_f32", TM + 1, TM + 2, 32)
    A(f"s_lshl_b32 s19, s21, 5\nv_lshl_add_u32 v{TM+2}, v0, 3, s19\nv_mov_b32 v4, 0\nv_mov_b32 v5, 1")
    A("s_mov_b64 exec, 0xf")
    A(f"ds_write_b64 v{TM+2}, {v2(TM)} offset:{L_ST}")
    A("s_mov_b64 exec, 1")
    A(f"ds_add_u32 v4, v5 offset:{L_CS}")
    A("s_mov_b64 exec, -1")
    PR = lambda u: KR(nS - 1 + u)
    rem = T % 8
    assert rem in (2, 4)
    GR = [(0, rem)] + [(rem + 8 * u, rem + 8 * u + 8) for u in range(nP - 1)]
    def pack(u):
        for t in range(GR[u][0], GR[u][1], 2): A(f"v_cvt_pk_bf16_f32 v{PR(u)+(t-GR[u][0])//2}, v{Sl[t]}, v{Sl[t+1]}")
    for u in range(nP - 1): pack(u)
    A("s_waitcnt lgkmcnt(0)")
    if rem == 2: A(f"v_mov_b32 v{PR(0)+1}, 0\nv_mov_b32 v{TM+1}, 0\nv_mov_b32 v5, 0")
    stamp(3)
    ACC = ([8] + [KR(i) for i in range(nS - 1)])[:nS - nkeep] + [KR(nS + nP + i) for i in range(nxa)]
    assert len(ACC) == 8
    TT = [TM, 4]
    def pv(u):
        t0, t1 = GR[u]; n = t1 - t0
        for e in range(8):
            Tm = TT[e & 1]
            for p in range(n // 2):
                a = VR(t0 + 2 * p) + (e >> 1); b = VR(t0 + 2 * p + 1) + (e >> 1)
                A(f"v_perm_b32 v{Tm+p}, v{b}, v{a}, s{24+(e&1)}")
            c = "0" if u == 0 else v4(ACC[e])
            if n == 8: A(f"v_mfma_f32_16x16x32_bf16 {v4(ACC[e])}, {v4(Tm)}, {v4(PR(u))}, {c}")
            else: A(f"v_mfma_f32_16x16x16_bf16 {v4(ACC[e])}, {v2(Tm)}, {v2(PR(u))}, {c}")
    ns = len(vslots)
    TA = [VR(t) for t in range(T - ns, min(ns, T - 8))][:8]
    assert len(TA) == 8
    X = PR(0)
    def rescale():
        A(f"v_and_b32 v1, 3, v0\nv_lshlrev_b32 v{X+13}, 3, v1\nv_mov_b32 v{X+10}, 0\nv_mov_b32 v{X+11}, 1\ns_lshl_b32 s19, s21, 5\nv_add_u32 v{X+9}, s19, v{X+13}")
        def rd():
            for w in range(8): A(f"ds_read_b32 v{X+w}, v{X+13} offset:{L_ST+32*w}")
            A(f"ds_read_b32 v{X+8}, v{X+9} offset:{L_ST}")
        lspin("sm", L_CS, 9, X + 10, X + 12, 1, rd)
        A(f"s_mov_b64 exec, 1\nds_add_rtn_u32 v{X+12}, v{X+10}, v{X+11} offset:{L_CT}\ns_mov_b64 exec, -1")
        A(f"v_max3_f32 v{X}, v{X}, v{X+1}, v{X+2}\nv_max3_f32 v{X+3}, v{X+3}, v{X+4}, v{X+5}\nv_max3_f32 v{X}, v{X}, v{X+6}, v{X+7}\nv_max_f32 v{X}, v{X}, v{X+3}")
        A(f"v_sub_f32 v{X}, v{X+8}, v{X}\nv_exp_f32 v{X}, v{X}")
        A(f"v_lshlrev_b32 v1, 6, v1\nv_lshrrev_b32 v{X+13}, 4, v0\nv_lshl_add_u32 v1, v{X+13}, 4, v1")
        for e in range(8):
            for q in range(2): A(f"v_pk_mul_f32 {v2(ACC[e]+2*q)}, {v2(ACC[e]+2*q)}, {v2(X)} op_sel_hi:[1,0]")
        for t in range(T - 8, T, 2): A(f"v_pk_mul_f32 {v2(Sl[t])}, {v2(Sl[t])}, {v2(X)} op_sel_hi:[1,0]")
        pack(nP - 1)
        A(f"s_waitcnt lgkmcnt(0)\nv_readfirstlane_b32 s23, v{X+12}\ns_lshl_b32 s19, s21, 11\nv_add_u32 v1, s19, v1\ns_and_b32 s19, s21, 4\nv_mov_b32 v{X+9}, s19")
    while viss < min(win2, ns):
        ld("V", viss); viss += 1
    done_t = 0
    ends = {g[1] - 1: u for u, g in enumerate(GR[:-1])}
    for L in range(T):
        lastpair = L >= T - 8 and (L - (T - 8)) % 2 == 1
        can = lambda: viss < T and sum(1 for j in range(L + 1, viss) if perm[j] >= nmask) < (bwin if L >= T - burst else win2 + (pre if L in ends else 0)) + (perm[viss] < nmask) and (viss < ns or done_t > viss - ns)
        if can() or L in ends or lastpair:
            A(f"s_waitcnt vmcnt({viss-1-L})")
        while can():
            ld("V", viss); viss += 1
            if viss == T:
                if L > T - 9: A(f"s_mov_b64 exec, 1\nds_add_u32 v{X+10}, v{X+11} offset:{L_CV}\ns_mov_b64 exec, -1")
                else: A(f"v_mov_b32 v1, 1\ns_mov_b64 exec, 1\nds_add_u32 v2, v1 offset:{L_CV}\ns_mov_b64 exec, -1")
        if L in ends:
            pv(ends[L]); done_t = L + 1
            if L == T - 9: rescale()
        if lastpair:
            if L == T - 1: stamp(4)
            p = (L - (T - 8)) // 2
            for e in range(8):
                A(f"v_perm_b32 v{TA[e]+p}, v{VR(L)+(e>>1)}, v{VR(L-1)+(e>>1)}, s{24+(e&1)}")
    for e in range(8): A(f"v_mfma_f32_16x16x32_bf16 {v4(ACC[e])}, {v4(TA[e])}, {v4(PR(nP-1))}, {v4(ACC[e])}")
    assert viss == T
    if nocomp:
        keep = [l for l in A.lines[mark0:] if not l.startswith(("v_mfma", "v_perm_b32", "v_add_f32", "v_exp", "v_fma", "v_max", "v_cvt", "v_permlane"))]
        A.lines[mark0:] = keep
    A("s_mov_b32 exec_lo, 0x000f000f\ns_mov_b32 exec_hi, 0x000f000f")
    for e in range(8): A(f"ds_write_b128 v1, {v4(ACC[e])} offset:{L_OP+e*256}")
    X = PR(0)
    if det: A(f"s_mov_b64 exec, 1\nds_add_u32 v{X+9}, v{X+11} offset:{L_FO}")
    else: A(f"ds_write_b32 v{X+9}, v{X+11} offset:{L_FO}")
    A("s_mov_b64 exec, -1")
    if stamps: A("s_waitcnt lgkmcnt(0)")
    stamp(5)
    A("s_cmp_lg_u32 s23, 0\ns_cbranch_scc1 L_done")
    A("s_setprio 3")
    def a_addr(d, t):
        if lin: A(f"s_lshl_b32 s20, s4, 15\ns_lshr_b32 s19, s5, 4\ns_lshl_b32 s19, s19, 10\ns_add_u32 s20, s20, s19\ns_and_b32 s19, s5, 15\ns_lshl_b32 s19, s19, 4\ns_add_u32 s20, s20, s19\ns_add_u32 s20, s20, {WS_A}")
        else: A(f"s_lshl_b32 s20, s4, 15\ns_lshl_b32 s19, s5, {7 if fl else 6}\ns_add_u32 s20, s20, s19\ns_add_u32 s20, s20, {WS_A}")
        A(f"v_bfe_u32 v{d}, v0, 2, 2\nv_lshlrev_b32 v{d}, 13, v{d}")
        if fl: A(f"v_lshrrev_b32 v{t}, 5, v0\nv_lshl_add_u32 v{d}, v{t}, 12, v{d}\nv_bfe_u32 v{t}, v0, 4, 1\nv_lshl_add_u32 v{d}, v{t}, 6, v{d}")
        else: A(f"v_lshrrev_b32 v{t}, 4, v0\nv_lshl_add_u32 v{d}, v{t}, 11, v{d}")
        A(f"v_and_b32 v{t}, 3, v0\nv_lshl_add_u32 v{d}, v{t}, {8 if lin else 4}, v{d}\nv_add_u32 v{d}, s20, v{d}")
    a_addr(36, 37)
    A(f"v_add_u32 v37, {WS_AL-WS_A}, v36\nv_mov_b32 v38, 0\nv_mov_b32 v39, 1")
    if xl: A(f"ds_read_b32 v29, v38 offset:{L_MK}\ns_waitcnt lgkmcnt(0)\nv_readfirstlane_b32 s26, v29")
    for hf in range(2 if det else 0):
        def rd8():
            for j in range(4): A(f"ds_read_b128 {v4(40+8*j)}, v2 offset:{L_OP+(4*hf+j)*2048}\nds_read_b128 {v4(44+8*j)}, v2 offset:{L_OP+(4*hf+j)*2048+1024}")
        lspin("so", L_FO + 4 * hf, 4, 38, 28, 1 - hf, rd8)
        for q in range(4): A(f"v_pk_add_f32 {v2(40+2*q)}, {v2(40+2*q)}, {v2(48+2*q)}")
        for q in range(4): A(f"v_pk_add_f32 {v2(56+2*q)}, {v2(56+2*q)}, {v2(64+2*q)}")
        for q in range(4): A(f"v_pk_add_f32 {v2((12 if hf == 0 else 40)+2*q)}, {v2(40+2*q)}, {v2(56+2*q)}")
        if hf:
            for q in range(4): A(f"v_pk_add_f32 {v2(12+2*q)}, {v2(12+2*q)}, {v2(40+2*q)}")
    for i in range(0 if det else 8):
        d = 12 if i == 0 else 20
        lspin("so", L_FO + 4 * i, 1, 38, 28, 1 if (calm and i < 6) else 0, lambda: A(f"ds_read_b128 {v4(d)}, v2 offset:{L_OP+i*2048}\nds_read_b128 {v4(d+4)}, v2 offset:{L_OP+i*2048+1024}"))
        if i:
            for q in range(4): A(f"v_pk_add_f32 {v2(12+2*q)}, {v2(12+2*q)}, {v2(20+2*q)}")
    for q in range(4): A(f"v_cvt_pk_bf16_f32 v{12+q}, v{12+2*q}, v{13+2*q}")
    if loc: A(f"global_store_dwordx4 v37, v[12:15], {WS}")
    if xl: A("s_cmp_eq_u32 s26, 0\ns_cbranch_scc1 L_ng2")
    A(f"global_store_dwordx4 v36, v[12:15], {WS} sc1")
    A("L_ng2:")
    A(f"ds_write_b32 v38, v39 offset:{L_FP}")
    stamp(6)
    end_wave()
    blk = A.lines[S0:S1]; del A.lines[S0:S1]; A.lines[STREAM_MARK:STREAM_MARK] = blk

    A("L_nh:")
    A(f"s_cmp_lg_u32 s64, {E_Q}\ns_cbranch_scc1 L_nq")
    A("v_lshlrev_b32 v1, 17, v12\nv_lshl_add_u32 v1, v13, 4, v1")
    A("s_lshl_b32 s20, s3, 20\ns_lshl_b32 s21, s4, 10\ns_add_u32 s20, s20, s21\ns_mov_b32 s26, s65\ns_lshl_b32 s21, s26, 7\ns_add_u32 s20, s20, s21")
    A("s_lshl_b32 s21, s3, 8\nv_lshl_add_u32 v14, v0, 2, s21")
    A("s_waitcnt lgkmcnt(0)")
    srd(8, P_WQ, 512 * 8192)
    A(f"global_load_dwordx4 v[8:11], v2, {sp(P_X)}\nglobal_load_dword v15, v14, {sp(P_X)}")
    for i in range(16):
        A(f"buffer_load_dwordx4 {v4(40+4*i)}, v1, s[8:11], s20 offen {wpol}")
        if i < 15: A("s_add_u32 s20, s20, 8192")
    A(f"s_load_dword s6, {WS}, 0")
    A("s_barrier")
    A(f"s_lshl_b32 s26, s26, 8\ns_lshl_b32 s21, s4, 11\ns_add_u32 s26, s26, s21\ns_add_u32 s26, s26, {WS_Q}")
    A("s_waitcnt vmcnt(16)")
    unpack(32, [8, 9, 10, 11], 4)
    A("v_add_f32 v4, v32, v33")
    for i in range(2, 8): A(f"v_add_f32 v4, v4, v{32+i}")
    wave_reduce("v_add_f32", 4, 5)
    A(f"v_mul_f32 v4, {f2x(1/512)}, v4")
    for i in range(8): A(f"v_sub_f32 v{32+i}, v{32+i}, v4")
    A("v_mul_f32 v6, v32, v32")
    for i in range(1, 8): A(f"v_fmac_f32 v6, v{32+i}, v{32+i}")
    wave_reduce("v_add_f32", 6, 5)
    A(f"v_mov_b32 v5, {f2x(1e-5)}\nv_fmac_f32 v5, {f2x(1/512)}, v6\nv_rsq_f32 v5, v5")
    unpack(8, [15], 1)
    A("v_sub_f32 v8, v8, v4\nv_sub_f32 v9, v9, v4\nv_mul_f32 v8, v8, v5\nv_mul_f32 v9, v9, v5")
    A(f"v_lshlrev_b32 v15, 1, v14\nv_add_u32 v15, {WS_H}, v15\nv_add_u32 v10, 4096, v15")
    mktag()
    A("s_waitcnt vmcnt(0)")
    stamp(1)
    prb("wq")
    gemv_perm(40, 104, 8)
    if hwait: A("v_mov_b32 v4, 0"); lspin("sh", L_FK, 1, 4, 5, 2)
    poll("ph", lambda: [A(f"global_load_dwordx2 {v2(16+2*k)}, v{15 if k<2 else 10}, {WS} offset:{2048*(k&1)} sc1") for k in range(4)],
         lambda: chk_tags([17, 19, 21, 23], 4), hsleep)
    stamp(2)
    prb("h")
    unpack(24, [16, 18, 20, 22], 4)
    A("v_pk_add_f32 v[24:25], v[24:25], v[26:27]\nv_pk_add_f32 v[28:29], v[28:29], v[30:31]")
    A("v_add_f32 v28, 1.0, v28\nv_add_f32 v29, 1.0, v29\nv_pk_fma_f32 v[24:25], v[8:9], v[28:29], v[24:25]")
    A("L_gx:")
    A("v_cvt_pk_bf16_f32 v24, v24, v25")
    A(f"ds_write_b32 v14, v24 offset:{L_X}")
    A("s_lshl_b32 s21, s3, 8\nv_lshl_add_u32 v15, v12, 5, s21")
    A(f"ds_read_b128 v[24:27], v15 offset:{L_X}\nds_read_b128 v[28:31], v15 offset:{L_X+16}")
    A("s_waitcnt lgkmcnt(0)")
    gemv_dot(104, list(range(24, 32)), 32)
    A("s_branch L_gfin")

    A("L_nq:")
    A("s_waitcnt lgkmcnt(0)")
    A(f"s_load_dword s6, {WS}, 0")
    mktag()
    A("s_barrier")
    A("L_role:")
    A("s_cmp_eq_u32 s64, 0\ns_cbranch_scc1 L_qpoll")
    A(f"s_cmp_eq_u32 s64, {E_B}\ns_cbranch_scc1 L_wb")
    if mlate:
        A("s_branch L_qpoll\nL_ml:")
        if mlate <= 8: lspin("sl", L_CV, mlate, 10, 11, 4)
        else: lspin("sl", L_FP, 1, 10, 11, 4)
        A("s_setprio 0\nv_lshrrev_b32 v12, 3, v0\nv_and_b32 v13, 7, v0")
    A("s_mov_b32 s21, 98304\nv_mul_lo_u32 v1, v12, s21\nv_lshl_add_u32 v1, v13, 4, v1")
    A(f"s_mul_i32 s20, s3, {128*6144}\ns_add_u32 s26, s70, 2\ns_lshl_b32 s26, s26, 10\ns_lshl_b32 s21, s69, 7\ns_add_u32 s26, s26, s21\ns_add_u32 s20, s20, s26")
    A("s_lshl_b32 s21, s3, 8\nv_lshl_add_u32 v14, v0, 2, s21")
    srd(8, P_WM, 512 * 6144)
    A(f"global_load_dword v15, v14, {sp(P_C)}")
    paced([f"buffer_load_dwordx4 {v4(40+4*i)}, v1, s[8:11], s20 offen {wpol}\ns_add_u32 s20, s20, 6144" for i in range(16)], 0)
    A(f"s_lshl_b32 s26, s26, 1\ns_add_u32 s26, s26, {WS_MOD-4096}")
    A("s_waitcnt vmcnt(0)")
    unpack(24, [15], 1); silu(24, 32, 2)
    gemv_perm(40, 104, 8)
    A("s_branch L_gx")
    def dma(loads, w):
        if skipw: return
        for i, l in enumerate(loads):
            if w and i >= w: A(f"s_waitcnt vmcnt({w-1})")
            A(f"s_add_u32 m0, s23, {1024*i}")
            A(l)
    def wo_issue(lo, hi):
        srd(8, P_WO, 4096 * 1024)
        A("v_lshrrev_b32 v1, 3, v0\nv_lshlrev_b32 v1, 10, v1\nv_and_b32 v4, 7, v0\nv_lshl_add_u32 v1, v4, 4, v1")
        A(f"s_lshl_b32 s20, s4, 19\ns_lshl_b32 s21, s3, 17\ns_add_u32 s20, s20, s21\ns_lshl_b32 s21, s65, 7\ns_add_u32 s20, s20, s21\ns_add_u32 s20, s20, {8192*lo}")
        A(f"s_lshl_b32 s23, s3, 14\ns_add_u32 s23, s23, {L_WT+1024*lo}")
        dma([f"buffer_load_dwordx4 v1, s[8:11], s20 offen {wpol} lds\ns_add_u32 s20, s20, 8192" for i in range(lo, hi)], pace)
    def wo_finish(w):
        A(f"s_lshl_b32 s23, s3, 14\ns_add_u32 s23, s23, {L_WT}")
        A("v_bfe_u32 v1, v0, 2, 2\nv_lshlrev_b32 v1, 10, v1\nv_lshrrev_b32 v4, 4, v0\nv_lshl_add_u32 v1, v4, 12, v1\nv_and_b32 v4, 3, v0\nv_lshl_add_u32 v1, v4, 3, v1\nv_add_u32 v1, s23, v1")
        A(f"s_waitcnt vmcnt({w})")
        k = 0
        for c in range(4):
            for nt in range(4):
                for hi in range(2):
                    A(f"ds_read_b64_tr_b16 {v2(104+16*c+4*nt+2*hi)}, v1 offset:{(c+4*hi)*128+nt*32}")
                    k += 1
                    if k >= 12 and k % 4 == 0: A("s_waitcnt lgkmcnt(8)")
        A("s_waitcnt lgkmcnt(0)")
    A("L_wb:")
    if xl:
        A("s_cmp_lg_u32 s3, 0\ns_cbranch_scc1 L_wb1")
        A(f"s_getreg_b32 s20, hwreg(HW_REG_XCC_ID, 0, 4)\nv_mov_b32 v4, s20\nv_mov_b32 v5, s6\ns_lshl_b32 s20, s4, 7\ns_lshl_b32 s21, s65, 3\ns_add_u32 s20, s20, s21\ns_add_u32 s20, s20, {WS_XB}\nv_mov_b32 v6, s20")
        A(f"s_mov_b64 exec, 1\nglobal_store_dwordx2 v6, v[4:5], {WS} sc1\ns_mov_b64 exec, -1\ns_nop 0")
        A("L_wb1:")
    if bp:
        A("s_cmp_eq_u32 s3, 1\ns_cbranch_scc1 L_qpoll\ns_cmp_eq_u32 s3, 2\ns_cbranch_scc1 L_qpoll")
        srd(8, P_WO, 4096 * 1024)
        A("v_lshrrev_b32 v1, 3, v0\nv_lshlrev_b32 v1, 10, v1\nv_and_b32 v4, 7, v0\nv_lshl_add_u32 v1, v4, 4, v1\ns_lshr_b32 s22, s3, 1")
        A(f"s_lshl_b32 s20, s4, 19\ns_lshl_b32 s21, s22, 18\ns_add_u32 s20, s20, s21\ns_lshl_b32 s21, s65, 7\ns_add_u32 s20, s20, s21")
        A(f"s_lshl_b32 s23, s22, 15\ns_add_u32 s23, s23, {L_WT}\ns_mov_b32 s22, 31")
        A(f"L_wbl:\ns_mov_b32 m0, s23\ns_waitcnt vmcnt({bp-1})\nbuffer_load_dwordx4 v1, s[8:11], s20 offen {wpol} lds\ns_add_u32 s20, s20, 8192\ns_add_u32 s23, s23, 1024\ns_sub_u32 s22, s22, 1\ns_cbranch_scc0 L_wbl")
        A(f"v_mov_b32 v4, 0\nv_mov_b32 v5, 1\ns_waitcnt vmcnt(0)\ns_mov_b64 exec, 1\nds_add_u32 v4, v5 offset:{L_CW}\ns_mov_b64 exec, -1")
    elif not bdefer: wo_issue(0, 16); wo_finish(0)
    elif bearly: wo_issue(0, bearly)
    A("L_qpoll:")
    if w1early:
        A(f"s_cmp_lg_u32 s66, {R_C}\ns_cbranch_scc1 L_qp1\ns_mov_b32 s26, s67")
        srd(8, P_W1, 512 * 3584)
        A("v_lshrrev_b32 v1, 2, v0\ns_mov_b32 s20, 3584\nv_mul_lo_u32 v1, v1, s20\nv_and_b32 v12, 3, v0\nv_lshl_add_u32 v1, v12, 4, v1")
        A(f"s_mul_i32 s20, s3, {128*3584}\ns_lshl_b32 s21, s26, 6\ns_add_u32 s20, s20, s21")
        A(f"s_lshl_b32 s23, s3, 14\ns_add_u32 s23, s23, {L_WT}")
        dma([f"buffer_load_dwordx4 v1, s[8:11], s20 offen {w1pol} lds\ns_add_u32 s20, s20, {16*3584}" for i in range(8)], 0)
        A("L_qp1:")
    if nosvc:
        A(f"v_mov_b32 v10, 0\nv_mov_b32 v5, 1\nds_write_b32 v10, v5 offset:{L_FQ}\ns_mov_b64 exec, 1\nds_add_u32 v10, v5 offset:{L_CS}")
        end_wave()
    if tw:
        A("s_cmp_lg_u32 s3, 3\ns_cbranch_scc1 L_tw")
        A(f"s_lshl_b32 s20, s4, 23\ns_mul_i32 s21, s5, {28*8192}\ns_add_u32 s21, s21, s20\ns_add_u32 s20, s20, {896*8192}")
        A(f"v_mov_b32 v4, s21\nv_add_u32 v5, {28*8192-128}, v4\nv_mov_b32 v6, s20\nv_mov_b32 v7, 0\ns_mov_b64 exec, 1")
        A(f"global_load_dword v24, v4, {sp(P_V)} nt\nglobal_load_dword v25, v5, {sp(P_V)} nt\nglobal_load_dword v26, v6, {sp(P_V)} nt\nglobal_load_dword v27, v7, {sp(P_W2)} nt")
        A("s_waitcnt vmcnt(0)\ns_mov_b64 exec, -1\nL_tw:")
    A("v_mov_b32 v10, 0\nv_mov_b32 v23, 0\nv_mov_b32 v35, 64")
    A("s_cmp_lg_u32 s3, 1\ns_cbranch_scc1 L_np")
    A(f"s_lshl_b32 s21, s4, 11\ns_add_u32 s21, s21, {WS_Q}\nv_add_u32 v14, s21, v2")
    lspin("sk", L_FK, 1, 10, 11, 16 if calm else 4)
    def ldq():
        if qloc:
            A(f"ds_read_b32 v11, v10 offset:{L_FK}\ns_waitcnt lgkmcnt(0)\nv_readfirstlane_b32 s21, v11\ns_lshr_b32 s21, s21, 1\ns_and_b32 s21, s21, s7")
            if slowfb: A(f"s_cmp_lt_u32 s7, {spin-slowfb}")
            A(f"s_cselect_b32 s21, 0, {WS_QL-WS_Q}\nv_add_u32 v15, s21, v14")
        for i in range(2): A(f"global_load_dwordx4 {v4(16+4*i)}, v{15 if qloc else 14}, {WS} offset:{1024*i} sc1")
    poll("pq", ldq, lambda: chk_tags([17, 19, 21, 23], 4), qsleep)
    A("v_mov_b32 v17, v18\nv_mov_b32 v21, v22\nv_lshlrev_b32 v14, 3, v0\nv_mov_b32 v5, 1")
    A(f"ds_write_b64 v14, v[16:17] offset:{L_Q}\nds_write_b64 v14, v[20:21] offset:{L_Q+512}")
    A(f"ds_write_b32 v10, v5 offset:{L_FQ}")
    stamp(4)
    A("L_np:")
    if xit == 'np': end_wave()
    A("s_cmp_eq_u32 s3, 2\ns_cbranch_scc1 L_post")
    if mlate: A(f"s_cmp_eq_u32 s64, {E_M}\ns_cbranch_scc1 L_ml")
    A("s_cmp_eq_u32 s66, 0\ns_cbranch_scc1 L_done")
    A(f"s_cmp_lg_u32 s66, {R_F}\ns_cbranch_scc1 L_ws")
    A("s_cmp_lg_u32 s3, 0\ns_cbranch_scc1 L_done")
    A("L_ws:")
    lspin("ss0", L_CS, 9, 10, 11, 32 if calm else 16)
    A("s_branch L_pre")
    A("L_done:")
    end_wave()
    A("L_post:")
    a_addr(37, 15)
    A("v_bfe_u32 v36, v0, 2, 2")
    for i in range(4): A(f"v_mov_b32 v{16+i}, -1")
    if xl:
        A(f"v_and_b32 v20, 7, v0\ns_lshl_b32 s20, s4, 7\ns_add_u32 s20, s20, {WS_XB}\nv_lshl_add_u32 v20, v20, 3, s20")
        lspin("sg", L_FK, 1, 10, 11, 32 if calm else 8)
        poll("px", lambda: A(f"global_load_dwordx2 v[22:23], v20, {WS} sc1"), lambda: chk_tags([23], 21), 8)
        A("s_getreg_b32 s20, hwreg(HW_REG_XCC_ID, 0, 4)\nv_cmp_ne_u32 vcc, s20, v22\ns_cbranch_vccz L_ng")
        A(f"v_mov_b32 v5, 1\nds_write_b32 v10, v5 offset:{L_MK}")
    A(f"global_store_dwordx4 v37, v[16:19], {WS} sc1")
    A("L_ng:")
    if loc: A(f"v_add_u32 v39, {WS_AL-WS_A}, v37\nglobal_store_dwordx4 v39, v[16:19], {WS}")
    A("v_lshlrev_b32 v38, 3, v36\nv_mov_b32 v5, 1")
    A(f"s_lshl_b32 s20, s4, 11\ns_lshl_b32 s21, s5, {6 if fl else 4}\ns_add_u32 s20, s20, s21\ns_add_u32 s20, s20, {WS_ST}\nv_lshl_add_u32 v36, v36, {4 if fl else 9}, s20")
    A(f"s_waitcnt vmcnt(0)\ns_mov_b64 exec, 1\nds_add_u32 v10, v5 offset:{L_CS}\ns_mov_b64 exec, -1")
    lspin("ss", L_CS, 9, 10, 11, 16 if calm else 8)
    stamp(1)
    for w in range(8): A(f"ds_read_b64 {v2(40+2*w)}, v38 offset:{L_ST+32*w}")
    A("s_waitcnt lgkmcnt(0)")
    A("v_max3_f32 v56, v40, v42, v44\nv_max3_f32 v56, v56, v46, v48\nv_max3_f32 v56, v56, v50, v52\nv_max_f32 v56, v56, v54")
    for w in range(8): A(f"v_sub_f32 v{28+w}, v{40+2*w}, v56")
    for w in range(8): A(f"v_exp_f32 v{28+w}, v{28+w}")
    A("v_mul_f32 v58, v28, v41")
    for w in range(1, 8): A(f"v_fmac_f32 v58, v{28+w}, v{41+2*w}")
    A("s_getreg_b32 s20, hwreg(HW_REG_XCC_ID, 0, 4)\ns_add_u32 s20, s20, s6\nv_mov_b32 v57, s6\nv_mov_b32 v59, s20")
    A("s_mov_b64 exec, 0x1111")
    A(f"global_store_dwordx4 v36, v[56:59], {WS} sc1")
    A("s_mov_b64 exec, -1")
    stamp(2)
    if mlate: A(f"s_cmp_eq_u32 s64, {E_M}\ns_cbranch_scc1 L_ml")
    A(f"s_cmp_eq_u32 s66, 0\ns_cbranch_scc1 L_done\ns_cmp_eq_u32 s66, {R_F}\ns_cbranch_scc1 L_done")
    A("L_pre:")
    if xit == 'pre': end_wave()
    A(f"s_cmp_eq_u32 s66, {R_F}\ns_cbranch_scc1 L_tf")
    A(f"s_cmp_eq_u32 s66, {R_C}\ns_cbranch_scc1 L_tc")
    if bp: lspin("sz", L_CW, 2, 10, 11, 16); wo_finish(0)
    A(f"s_lshl_b32 s20, s4, 11\ns_lshl_b32 s21, s3, {4 if fl else 9}\ns_add_u32 s20, s20, s21\ns_add_u32 s20, s20, {WS_ST}")
    A(f"v_and_b32 v4, 31, v0\nv_lshl_add_u32 v5, v4, {6 if fl else 4}, s20")
    lspin("sb", L_CV, strig, 10, 11, 12 if calm else 4)
    poll("ps", lambda: A(f"global_load_dwordx4 v[40:43], v5, {WS} sc1"), lambda: A("v_subrev_u32 v43, s6, v43\nv_xor_b32 v6, s6, v41\nv_lshrrev_b32 v7, 4, v43\nv_or_b32 v6, v6, v7\nv_cmp_ne_u32 vcc, 0, v6"), 8)
    A("s_getreg_b32 s20, hwreg(HW_REG_XCC_ID, 0, 4)\nv_cmp_eq_u32 vcc, s20, v43")
    A("s_and_b32 s28, vcc_lo, 0xffff\ns_mul_i32 s28, s28, 0x10001\ns_mov_b32 s29, s28\ns_lshr_b32 s30, vcc_lo, 16\ns_mul_i32 s30, s30, 0x10001\ns_mov_b32 s31, s30")
    A("v_mov_b32 v44, v40")
    inrow("v_max_f32", 44, ["row_ror:8", "row_ror:4", "row_ror:2", "row_ror:1"]); xrow("v_max_f32", 44, 45, 16)
    A("v_sub_f32 v40, v40, v44\nv_exp_f32 v40, v40\nv_mul_f32 v44, v40, v42")
    inrow("v_add_f32", 44, ["row_ror:8", "row_ror:4", "row_ror:2", "row_ror:1"]); xrow("v_add_f32", 44, 45, 16)
    A("v_rcp_f32 v44, v44\nv_mul_f32 v40, v40, v44")
    A("s_lshl_b32 s20, s3, 8\nv_lshl_add_u32 v4, v4, 2, s20\nv_lshrrev_b32 v5, 4, v0\nv_lshl_add_u32 v5, v5, 4, s20")
    A(f"ds_write_b32 v4, v40 offset:{L_X}\nds_read_b128 v[12:15], v5 offset:{L_X}\nds_read_b128 v[16:19], v5 offset:{L_X+64}")
    A("v_and_b32 v1, 15, v0\nv_lshrrev_b32 v4, 4, v0\nv_lshlrev_b32 v24, 4, v1\nv_lshl_add_u32 v22, v4, 14, v24\nv_lshlrev_b32 v1, %d, v1\nv_lshl_add_u32 v1, v4, 4, v1" % (7 if fl else 6))
    A(f"s_lshl_b32 s20, s4, 15\ns_lshl_b32 s21, s3, 13\ns_add_u32 s20, s20, s21\ns_add_u32 s20, s20, {WS_A}\nv_add_u32 v1, s20, v{2 if lin else 1}")
    A(f"v_add_u32 v5, {(WS_AL-WS_A) if loc else 0}, v1\nv_cndmask_b32 v6, v1, v5, s[28:29]\nv_cndmask_b32 v7, v1, v5, s[30:31]\nv_add_u32 v8, 4096, v6\nv_add_u32 v9, 4096, v7")
    A("s_lshl_b32 s20, s3, 8\nv_lshl_add_u32 v21, v0, 2, s20")
    A(f"s_lshl_b32 s20, s4, 11\ns_lshl_b32 s21, s67, 8\ns_add_u32 s20, s20, s21\ns_add_u32 s20, s20, {WS_B}\ns_lshl_b32 s21, s3, 16\ns_add_u32 s20, s20, s21\nv_add_u32 v22, s20, v22")
    A("s_waitcnt lgkmcnt(0)")
    stamp(5)
    AR = lambda c, s_: 40 + 16 * s_ + 4 * c
    D = lambda s_, nt: 72 + 16 * s_ + 4 * nt
    def lda(s_):
        for c in range(4): A(f"global_load_dwordx4 {v4(AR(c,s_))}, v{6+s_+(0 if c<2 else 2)}, {WS} offset:{(64*(c&1)+2048*s_) if fl else (2048*(c&1)+1024*s_)} {lpol}")
    def mm(s_, other_done):
        wr = 12 + 4 * s_
        def fin(nt):
            d = D(s_, nt)
            r = [f"v_pk_mul_f32 {v2(d)}, {v2(d)}, {v2(wr)}", f"v_pk_fma_f32 {v2(d)}, {v2(d+2)}, {v2(wr+2)}, {v2(d)}", f"v_add_f32 v{d}, v{d}, v{d+1}"]
            if other_done: r.append(f"v_add_f32 v{D(0,nt)}, v{D(0,nt)}, v{D(1,nt)}")
            return r
        for c in range(4):
            for nt in (0, 2, 1, 3):
                d = D(s_, nt)
                A(f"v_mfma_f32_16x16x32_bf16 {v4(d)}, {v4(AR(c,s_))}, {v4(104+16*c+4*nt)}, {'0' if c==0 else v4(d)}")
        for grp in zip(fin(0), fin(2), fin(1), fin(3)):
            for l in grp: A(l)
        if other_done: A("v_permlane32_swap_b32 v72, v80\nv_add_f32 v72, v72, v80")
    if dry:
        A("s_mov_b64 s[80:81], 0\ns_mov_b64 s[32:33], 0\ns_mov_b64 s[34:35], 0\ns_mov_b32 s84, 0\ns_mov_b64 exec, 0\ns_branch L_pb0")
        A("L_bdr:\ns_cmp_eq_u32 s84, 0\ns_mov_b32 s84, 1\ns_cbranch_scc1 L_pb1\ns_mov_b64 exec, -1")
    A("s_mov_b64 s[80:81], -1")
    if bdefer:
        if bdefer <= 8: lspin("sd", L_CV, bdefer, 10, 11, 1)
        else: lspin("sd", L_FP, 1, 10, 11, 1)
        A("s_setprio 1"); wo_issue(bearly, 16); lda(0); lda(1); A("s_setprio 3"); wo_finish(8)
        stamp(4)
        A(f"s_mov_b32 s7, {spin}\ns_branch L_pa2")
    if atrig: lspin("sa", L_FO + (4 if atrig > 4 else 0), atrig - 4 if atrig > 4 else atrig, 10, 11, 2)
    A(f"s_mov_b32 s7, {spin}\ns_mov_b64 s[32:33], -1\ns_mov_b64 s[34:35], -1")
    A("L_pa:")
    A("s_mov_b64 exec, s[32:33]"); lda(0)
    A("s_mov_b64 exec, s[34:35]"); lda(1)
    A("s_mov_b64 exec, -1")
    A("L_pa2:")
    A("s_waitcnt vmcnt(4)")
    chk_sent(range(40, 56), 23); A("s_mov_b64 s[32:33], vcc")
    A("s_waitcnt vmcnt(0)")
    chk_sent(range(56, 72), 23); A("s_mov_b64 s[34:35], vcc")
    A("s_cbranch_vccz L_pa1\ns_cmp_eq_u64 s[32:33], 0\ns_cbranch_scc1 L_pa0")
    if tsleep: A(f"s_sleep {tsleep}")
    if bhold:
        A("s_mov_b32 s85, s7"); lspin("sy", L_FO + 4 * (bhold - 1), 1, 10, 11, 2); A("s_mov_b32 s7, s85")
    A("s_sub_u32 s7, s7, 1\ns_cbranch_scc0 L_pa")
    for first in (0, 1):
        sec = 1 - first
        A(f"L_pa{first}:")
        mk = sp(32 + 2 * sec)
        A(f"s_cmp_eq_u64 {mk}, 0\ns_cbranch_scc1 L_pb{first}")
        A(f"s_mov_b64 exec, {mk}"); lda(sec); A("s_mov_b64 exec, -1")
        A(f"L_pb{first}:")
        mm(first, False)
        A(f"s_mov_b64 exec, {mk}\ns_cbranch_execz L_pd{first}")
        for _ in range(pd - 1): lda(sec)
        A(f"L_pc{first}:")
        A(f"s_waitcnt vmcnt({4*(pd-1)})")
        chk_sent(range(40 + 16 * sec, 56 + 16 * sec), 23)
        A(f"s_cbranch_vccz L_pd{first}\ns_mov_b64 exec, vcc")
        lda(sec)
        A(f"s_sub_u32 s7, s7, 1\ns_cbranch_scc0 L_pc{first}\ns_waitcnt vmcnt(0)")
        A(f"L_pd{first}:")
        A("s_mov_b64 exec, s[80:81]")
        stamp(6)
        mm(sec, True)
        if first == 0: A("s_branch L_pe")
    A("L_pe:\ns_nop 0")
    A("v_permlane32_swap_b32 v76, v84\nv_add_f32 v76, v76, v84")
    A("v_permlane16_swap_b32 v72, v76\nv_add_f32 v72, v72, v76")
    A(f"ds_write_b32 v21, v72 offset:{L_RED}")
    A("s_waitcnt lgkmcnt(0)")
    if dry: A("s_cbranch_execz L_bnb")
    A("s_barrier")
    A(f"s_cmp_ge_u32 s3, {2 if R == 8 else 1}\ns_cbranch_scc1 L_done")
    A("L_bnb:")
    for w in range(4): A(f"ds_read_b128 {v4(88+4*w)}, v24 offset:{L_RED+256*w}")
    assert R in (4, 8)
    A("s_waitcnt lgkmcnt(2)\nv_pk_add_f32 v[88:89], v[88:89], v[92:93]\nv_pk_add_f32 v[90:91], v[90:91], v[94:95]")
    A("s_waitcnt lgkmcnt(0)\nv_pk_add_f32 v[96:97], v[96:97], v[100:101]\nv_pk_add_f32 v[98:99], v[98:99], v[102:103]")
    A("v_pk_add_f32 v[88:89], v[88:89], v[96:97]\nv_pk_add_f32 v[90:91], v[90:91], v[98:99]")
    if dry: A("s_cbranch_execz L_bdr")
    A(f"global_store_dwordx4 v22, v[88:91], {WS} sc1")
    stamp(7)
    end_wave()
    A("L_tc:")
    A("s_mov_b32 s26, s67")
    srd(8, P_W1, 512 * 3584); srd(12, P_W2, 1792 * 1024)
    A("v_lshrrev_b32 v23, 4, v0\nv_lshlrev_b32 v23, 4, v23")
    A("v_lshrrev_b32 v1, 2, v0\ns_mov_b32 s20, 3584\nv_mul_lo_u32 v1, v1, s20\nv_and_b32 v12, 3, v0\nv_lshl_add_u32 v1, v12, 4, v1")
    A(f"s_mul_i32 s20, s3, {128*3584}\ns_lshl_b32 s21, s26, 6\ns_add_u32 s20, s20, s21")
    A("v_lshlrev_b32 v18, 6, v23\nv_and_b32 v13, 15, v0\nv_lshl_add_u32 v18, v13, 4, v18")
    A("s_lshl_b32 s27, s26, 15\ns_lshl_b32 s21, s3, 8\ns_add_u32 s27, s27, s21")
    A(f"s_lshl_b32 s23, s3, 14\ns_add_u32 s23, s23, {L_WT}")
    if not w1early: dma([f"buffer_load_dwordx4 v1, s[8:11], s20 offen {w1pol} lds\ns_add_u32 s20, s20, {16*3584}" for i in range(8)], 0)
    def w2load():
        A("s_add_u32 s23, s23, 8192")
        dma([f"buffer_load_dwordx4 v18, s[12:15], s27 offen {wpol} lds\ns_add_u32 s27, s27, 4096" for i in range(8)], 0)
    A("v_lshrrev_b32 v12, 4, v0\nv_bfe_u32 v13, v0, 2, 2\nv_and_b32 v14, 3, v0\nv_lshl_add_u32 v14, v14, 3, s23")
    A("v_lshl_add_u32 v1, v12, 9, v14\nv_lshl_add_u32 v1, v13, 6, v1")
    A("v_lshl_add_u32 v19, v12, 10, v14\nv_lshl_add_u32 v19, v13, 8, v19")
    if not w2late: w2load()
    A("v_and_b32 v20, 31, v0\nv_lshlrev_b32 v20, 3, v20\nv_lshrrev_b32 v21, 5, v0\nv_lshl_add_u32 v20, v21, 2, v20")
    A("s_lshl_b32 s20, s3, 8\nv_add_u32 v20, s20, v20")
    A(f"global_load_dword v22, v20, {sp(P_X)}\nglobal_load_dwordx4 v[28:31], v2, {sp(P_X)}")
    A(f"v_lshlrev_b32 v21, 1, v20\nv_add_u32 v21, {WS_MOD}, v21\nv_add_u32 v24, 4096, v21")
    A("s_waitcnt vmcnt(0)")
    for c in range(4):
        for mt in range(2):
            for hi in range(2):
                A(f"ds_read_b64_tr_b16 {v2(104+8*c+4*mt+2*hi)}, v1 offset:{(32*c+4*hi)*64+mt*32}")
        if c & 1: A("s_waitcnt lgkmcnt(0)")
    unpack(4, [22], 1)
    unpack(48, [28, 29, 30, 31], 4)
    A("v_pk_add_f32 v[48:49], v[48:49], v[50:51]\nv_pk_add_f32 v[52:53], v[52:53], v[54:55]\nv_pk_add_f32 v[48:49], v[48:49], v[52:53]\nv_add_f32 v48, v48, v49")
    wave_reduce("v_add_f32", 48, 49)
    A(f"v_mul_f32 v48, {f2x(1/512)}, v48\nv_sub_f32 v4, v4, v48\nv_sub_f32 v5, v5, v48")
    def w2tr():
        for tau in range(8):
            for hi in range(2):
                A(f"ds_read_b64_tr_b16 {v2(136+4*tau+2*hi)}, v19 offset:{8192+hi*4096+tau*32}")
            if tau % 4 == 3: A("s_waitcnt lgkmcnt(0)")
    if mlate:
        lspin("sv0", L_CV, 4, 10, 11, 16); lspin("sv", L_FP, 1, 10, 11, 2); w2load(); A("s_waitcnt vmcnt(0)"); w2tr(); stamp(4)
    poll("pm", lambda: A(f"global_load_dwordx2 v[40:41], v21, {WS} sc1\nglobal_load_dwordx2 v[42:43], v21, {WS} offset:2048 sc1\nglobal_load_dwordx2 v[44:45], v24, {WS} sc1"),
         lambda: chk_tags([41, 43, 45], 46), 2 if mlate else 16)
    unpack(6, [40, 44], 2)
    A("v_add_f32 v8, 1.0, v8\nv_add_f32 v9, 1.0, v9\nv_cvt_pk_bf16_f32 v44, v8, v9")
    unpack(8, [44], 1)
    A(f"ds_write_b32 v20, v44 offset:{L_U}\nds_write_b32 v20, v42 offset:{L_U+1024}")
    A("v_add_u32 v21, s20, v23\nv_and_b32 v22, 1, v0\nv_lshl_add_u32 v22, v22, 10, v21")
    for c in range(4): A(f"ds_read_b128 {v4(48+4*c)}, v22 offset:{L_U+64*c}")
    A("s_waitcnt lgkmcnt(0)")
    for c in range(4):
        for mt in range(2):
            A(f"v_mfma_f32_16x16x32_bf16 {v4(24+4*mt)}, {v4(104+8*c+4*mt)}, {v4(48+4*c)}, {'0' if c==0 else v4(24+4*mt)}")
    A("s_mov_b32 exec_lo, 0x00030003\ns_mov_b32 exec_hi, 0x00030003")
    A(f"ds_write_b128 v22, v[24:27] offset:{L_GS}\nds_write_b128 v22, v[28:31] offset:{L_GS+64}")
    A("s_mov_b64 exec, 1\nv_mov_b32 v33, 1")
    A(f"ds_add_u32 v10, v33 offset:{L_CP}")
    A("s_mov_b64 exec, -1")
    A("v_and_b32 v1, 31, v0\nv_lshlrev_b32 v1, 4, v1\nv_lshrrev_b32 v16, 5, v0\nv_lshl_add_u32 v1, v16, 11, v1")
    A(("s_lshr_b32 s21, s4, 1" if rx else f"s_and_b32 s21, {'s4' if R == 8 else 's26'}, {R-1}") + f"\ns_lshl_b32 s21, s21, 14\ns_lshl_b32 s20, s3, 9\ns_add_u32 s20, s20, s21\ns_add_u32 s20, s20, {WS_B}\nv_add_u32 v1, s20, v1")
    A("v_add_u32 v12, 4096, v1\nv_add_u32 v13, 8192, v1\nv_add_u32 v14, 12288, v1")
    A(f"s_lshl_b32 s20, s3, 8\nv_lshl_add_u32 v22, v16, 2, s20")
    A("v_and_b32 v33, 3, v0\nv_lshlrev_b32 v33, 8, v33\nv_bfe_u32 v32, v0, 3, 1\nv_lshl_add_u32 v32, v32, 6, v33\nv_add_u32 v32, v32, v23")
    A(f"s_mov_b32 s22, {f2x(1/512)}\nv_mov_b32 v34, {f2x(1e-5)}")
    lspin("sp", L_CP, 4, 10, 11, 0 if mlate else 4, lambda: A(f"ds_read_b128 v[24:27], v32 offset:{L_GS}\nds_read_b128 v[28:31], v32 offset:{L_GS+1024}"))
    for qp in ("[1,0,3,2]", "[2,3,0,1]"):
        for i in range(8): A(f"v_add_f32_dpp v{24+i}, v{24+i}, v{24+i} quad_perm:{qp} {DPPF}")
    if dry:
        A("s_mov_b64 s[80:81], 0\ns_mov_b64 s[82:83], 0\ns_mov_b64 exec, 0\ns_branch L_pbd\nL_cdr:\ns_mov_b64 exec, -1")
    A("s_mov_b64 s[80:81], -1\ns_mov_b32 s82, 0x00010001\ns_mov_b32 s83, 0x00010001")
    if not mlate:
        stamp(4)
        lspin("sv0", L_CV, 4, 10, 11, 16); lspin("sv", L_FP, 1, 10, 11, 2)
        if w2late: w2load()
    cs = 13 if cpad else 12
    A(f"s_lshl_b32 s20, s3, {cs+3}\ns_lshl_b32 s21, s26, {cs-6}\ns_add_u32 s20, s20, s21\ns_add_u32 s20, s20, {WS_C}")
    A(f"v_bfe_u32 v35, v0, 2, 3\nv_lshlrev_b32 v35, {cs}, v35\nv_and_b32 v36, 3, v0\nv_lshl_add_u32 v35, v36, 4, v35\nv_add_u32 v35, s20, v35")
    if not mlate: A("s_waitcnt vmcnt(0)"); w2tr()
    stamp(5)
    G = 40; Hh = 88
    def gather4(name, base, addr, tmp, sleep):
        if g4:
            A(f"s_mov_b32 s7, {spin}")
            for i in range(4): A(f"global_load_dwordx4 {v4(base+4*i)}, {addr(i)} sc1\ns_mov_b64 {sp(28+2*i)}, -1")
            A(f"L_{name}t:\ns_waitcnt vmcnt(0)\ns_mov_b32 s21, 0")
            for i in range(4):
                A(f"s_mov_b64 exec, {sp(28+2*i)}\ns_cbranch_execz L_{name}s{i}")
                A(f"v_max3_u32 v{tmp}, v{base+4*i}, v{base+4*i+1}, v{base+4*i+2}\nv_max_u32 v{tmp}, v{tmp}, v{base+4*i+3}\nv_cmp_eq_u32 vcc, -1, v{tmp}")
                A(f"s_mov_b64 {sp(28+2*i)}, vcc\ns_cbranch_vccz L_{name}s{i}\ns_mov_b64 exec, vcc\nglobal_load_dwordx4 {v4(base+4*i)}, {addr(i)} sc1\ns_mov_b32 s21, 1")
                A(f"L_{name}s{i}:")
            A(f"s_mov_b64 exec, -1\ns_cmp_eq_u32 s21, 0\ns_cbranch_scc1 L_{name}d\ns_sub_u32 s7, s7, 1\ns_cbranch_scc0 L_{name}t\ns_waitcnt vmcnt(0)")
            A(f"L_{name}d:")
            return
        A(f"s_mov_b32 s7, {spin}")
        for _ in range(pd):
            for i in range(4): A(f"global_load_dwordx4 {v4(base+4*i)}, {addr(i)} sc1")
        A(f"L_{name}t:")
        A(f"s_waitcnt vmcnt({4*(pd-1)})")
        for i in range(4): A(f"v_max3_u32 v{tmp+i}, v{base+4*i}, v{base+4*i+1}, v{base+4*i+2}")
        for i in range(4): A(f"v_max_u32 v{tmp+i}, v{tmp+i}, v{base+4*i+3}")
        A(f"v_max3_u32 v{tmp+4}, v{tmp}, v{tmp+1}, v{tmp+2}\nv_max_u32 v{tmp+4}, v{tmp+4}, v{tmp+3}\nv_cmp_eq_u32 vcc, -1, v{tmp+4}\ns_cbranch_vccz L_{name}d")
        for i in range(4): A(f"v_cmp_eq_u32 {sp(28+2*i)}, -1, v{tmp+i}")
        if sleep: A(f"s_sleep {sleep}")
        for i in range(4):
            A(f"s_or_b64 exec, {sp(28+2*i)}, 1\nglobal_load_dwordx4 {v4(base+4*i)}, {addr(i)} sc1")
        A(f"s_mov_b64 exec, -1\ns_sub_u32 s7, s7, 1\ns_cbranch_scc0 L_{name}t")
        A(f"L_{name}d:")
    gather4("pb", Hh, lambda i: f"v{1 if i==0 else 11+i}, {WS}", 56, csleep)
    stamp(6)
    A(f"v_pk_add_f32 {v2(G)}, {v2(Hh)}, {v2(Hh+4)}\nv_pk_add_f32 {v2(G+2)}, {v2(Hh+2)}, {v2(Hh+6)}\nv_pk_add_f32 {v2(G+8)}, {v2(Hh+8)}, {v2(Hh+12)}\nv_pk_add_f32 {v2(G+10)}, {v2(Hh+10)}, {v2(Hh+14)}")
    A(f"v_pk_add_f32 {v2(G)}, {v2(G)}, {v2(G+8)}\nv_pk_add_f32 {v2(G+2)}, {v2(G+2)}, {v2(G+10)}")
    A(f"v_permlane32_swap_b32 v{G}, v{G+2}\nv_permlane32_swap_b32 v{G+1}, v{G+3}")
    A(f"v_pk_add_f32 {v2(G)}, {v2(G)}, {v2(G+2)}")
    A(f"v_pk_fma_f32 v[4:5], {v2(G)}, v[6:7], v[4:5]")
    A("v_pk_mul_f32 v[6:7], v[4:5], v[8:9]\nv_cvt_pk_bf16_f32 v6, v6, v7")
    A(f"ds_write_b32 v20, v6 offset:{L_U}")
    for c in range(4): A(f"ds_read_b128 {v4(44+4*c)}, v21 offset:{L_U+64*c}")
    A("v_add_f32 v16, v4, v5\nv_mul_f32 v17, v4, v4\nv_fmac_f32 v17, v5, v5")
    A("v_permlane32_swap_b32 v16, v17\nv_add_f32 v16, v16, v17")
    xrow("v_add_f32", 16, 17, 16)
    steps = ["row_ror:8", "row_ror:4", "row_ror:2", "row_ror:1"]
    for c in range(4):
        A(f"s_waitcnt lgkmcnt({3-c})")
        for mt in range(2):
            A(f"v_mfma_f32_16x16x32_bf16 {v4(60+4*mt)}, {v4(104+8*c+4*mt)}, {v4(44+4*c)}, {'0' if c==0 else v4(60+4*mt)}")
        inrow("v_add_f32", 16, [steps[c]])
    A("s_mov_b64 exec, s[82:83]")
    A(f"ds_write_b32 v22, v16 offset:{L_RED+128}")
    A(f"ds_write_b128 v21, v[60:63] offset:{L_RED}\nds_write_b128 v21, v[64:67] offset:{L_RED+64}")
    A("s_mov_b64 exec, s[80:81]")
    A("s_waitcnt lgkmcnt(0)")
    if dry: A("s_cbranch_execz L_cnb")
    A("s_barrier\nL_cnb:")
    A(f"ds_read_b64 v[12:13], v33 offset:{L_RED+128}\nds_read_b128 v[40:43], v32 offset:{L_RED}")
    A("s_waitcnt lgkmcnt(0)")
    for qp in ("[1,0,3,2]", "[2,3,0,1]"):
        for r in (12, 13, 40, 41, 42, 43): A(f"v_add_f32_dpp v{r}, v{r}, v{r} quad_perm:{qp} {DPPF}")
    A("v_mul_f32 v12, s22, v12\nv_fma_f32 v14, v13, s22, v34\nv_fma_f32 v14, -v12, v12, v14\nv_max_f32 v14, v14, v34\nv_rsq_f32 v14, v14")
    for q in range(2): A(f"v_pk_fma_f32 {v2(40+2*q)}, {v2(24+2*q)}, v[12:13], {v2(40+2*q)} op_sel_hi:[1,0,1] neg_lo:[0,1,0] neg_hi:[0,1,0]")
    for q in range(2): A(f"v_pk_fma_f32 {v2(40+2*q)}, {v2(40+2*q)}, v[14:15], {v2(28+2*q)} op_sel_hi:[1,0,1]")
    for q in range(2): A(f"v_cvt_pk_bf16_f32 v{48+q}, v{40+2*q}, v{41+2*q}")
    for q in range(2): A(f"v_pk_max_i16 v{48+q}, v{48+q}, 0")
    for q in range(2): A(f"v_mov_b32_dpp v{50+q}, v{48+q} row_shl:8 {DPPF} bound_ctrl:0")
    for tau in (0, 2, 4, 6, 1, 3, 5, 7): A(f"v_mfma_f32_16x16x32_bf16 {v4(56+4*tau)}, v[48:51], {v4(136+4*tau)}, 0")
    for j in (1, 2, 3): A(f"v_mov_b32 v{56+j}, v{56+8*j}")
    for j in range(4): A(f"v_mov_b32_dpp v{56+j}, v{60+8*j} quad_perm:[0,1,2,3] row_mask:0x2 bank_mask:0xf")
    if dry: A("s_cbranch_execz L_cdr")
    A("s_mov_b32 exec_hi, 0")
    A(f"global_store_dwordx4 v35, v[56:59], {WS} sc1")
    stamp(7)
    end_wave()
    A("L_tf:")
    prb("cs")
    A("s_mov_b32 s26, s67\ns_lshr_b32 s20, s26, 3\ns_lshl_b32 s20, s20, 7\ns_and_b32 s21, s26, 7\ns_lshl_b32 s21, s21, 2\ns_add_u32 s20, s20, s21")
    A("v_and_b32 v4, 3, v0\nv_lshrrev_b32 v5, 4, v0\nv_lshl_add_u32 v4, v5, 5, v4\nv_add_u32 v4, s20, v4\nv_lshlrev_b32 v5, 1, v4")
    A(f"global_load_ushort v8, v5, {sp(P_X)}")
    if tw: A(f"global_load_ushort v33, v5, {sp(P_OUT)}")
    A(f"v_lshrrev_b32 v6, 1, v4\nv_lshlrev_b32 v6, 3, v6\nv_add_u32 v6, {WS_MOD}, v6\nv_add_u32 v7, 6144, v6")
    if mlate: lspin("sf0", L_FP, 1, 10, 11, 16)
    poll("pg", lambda: A(f"global_load_dwordx2 v[12:13], v6, {WS} sc1\nglobal_load_dwordx2 v[14:15], v7, {WS} sc1"),
         lambda: chk_tags([13, 15], 16), 4 if mlate else 16)
    A("v_lshlrev_b32 v8, 16, v8")
    A("v_and_b32 v16, 1, v4\nv_cmp_eq_u32 vcc, 0, v16")
    A("v_lshlrev_b32 v16, 16, v12\nv_and_b32 v17, 0xffff0000, v12\nv_cndmask_b32 v9, v17, v16, vcc")
    A("v_lshlrev_b32 v16, 16, v14\nv_and_b32 v17, 0xffff0000, v14\nv_cndmask_b32 v12, v17, v16, vcc")
    A(f"v_bfe_u32 v6, v0, 2, 2\nv_lshlrev_b32 v6, 12, v6\nv_lshl_add_u32 v6, v4, 2, v6\nv_add_u32 v6, {WS_B}, v6")
    if R == 8: A("s_lshl_b32 s20, s4, 14\nv_add_u32 v6, s20, v6")
    if rx: A("s_lshr_b32 s20, s4, 1\ns_lshl_b32 s20, s20, 14\nv_add_u32 v6, s20, v6")
    if cpad: A(f"s_lshl_b32 s20, s26, 13\ns_add_u32 s20, s20, {WS_C}\nv_lshrrev_b32 v7, 2, v0\nv_lshl_add_u32 v7, v7, 6, v2\nv_add_u32 v7, s20, v7\nv_add_u32 v32, 4096, v7")
    else: A(f"s_lshl_b32 s20, s26, 12\ns_add_u32 s20, s20, {WS_C}\nv_add_u32 v7, s20, v2")
    if dry: A("s_mov_b64 exec, 0\ns_branch L_fd\nL_fdr:\ns_mov_b64 exec, -1")
    lspin("sf", L_FP, 1, 10, 11, 16 if calm else 4)
    prb("fp")
    poll("pxb", lambda: A(f"global_load_dword v13, v6, {WS} sc1\nglobal_load_dword v14, v6, {WS} offset:2048 sc1"), lambda: chk_sent([13, 14], 15), xsleep)
    A("v_add_f32 v13, v13, v14")
    inrow("v_add_f32", 13, ["row_ror:8", "row_ror:4"])
    A("v_fma_f32 v8, v9, v13, v8")
    prb("b")
    stamp(6)
    if fdelay: A(f"s_sleep {fdelay}")
    gather4("pc", 40, lambda i: f"v{(7 if i<2 else 32) if cpad else 7}, {WS} offset:{2048*(i&1) if cpad else 1024*i}", 56, fsleep)
    A("L_fd:")
    stamp(7)
    A("v_pk_add_f32 v[16:17], v[40:41], v[44:45]\nv_pk_add_f32 v[18:19], v[42:43], v[46:47]\nv_pk_add_f32 v[24:25], v[48:49], v[52:53]\nv_pk_add_f32 v[26:27], v[50:51], v[54:55]")
    A("v_pk_add_f32 v[16:17], v[16:17], v[24:25]\nv_pk_add_f32 v[18:19], v[18:19], v[26:27]")
    A("v_permlane32_swap_b32 v16, v18\nv_permlane32_swap_b32 v17, v19\nv_pk_add_f32 v[16:17], v[16:17], v[18:19]")
    A("v_permlane16_swap_b32 v16, v17\nv_add_f32 v16, v16, v17")
    inrow("v_add_f32", 16, ["row_ror:8", "row_ror:4"])
    A("v_fma_f32 v16, v12, v16, v8\nv_cvt_pk_bf16_f32 v16, v16, v16")
    if dry: A("s_cbranch_execz L_fdr")
    A("s_mov_b32 exec_lo, 0x000f000f\ns_mov_b32 exec_hi, 0x000f000f")
    A(f"global_store_short v5, v16, {sp(P_OUT)}")
    A("s_cmp_lg_u32 s26, 0\ns_cbranch_scc1 L_tfe")
    A("s_mov_b64 exec, 1\nv_mov_b32 v18, s6")
    A(f"global_store_dword v10, v18, {WS}")
    if fixend:
        prb("end")
        A(f"L_fx:\ns_memrealtime s[98:99]\ns_waitcnt lgkmcnt(0)\ns_sub_u32 s98, s98, {'s94' if probe else 's96'}\ns_cmp_lt_u32 s98, {fixend}\ns_cbranch_scc1 L_fx")
    A("L_tfe:")
    stamp(4)
    end_wave()
    if stamps:
        A("L_stampout:")
        if st0: A("s_waitcnt lgkmcnt(0)\nv_writelane_b32 v3, s90, 0\ns_cmp_lt_u32 s3, 4\ns_cbranch_scc1 L_so9\nv_writelane_b32 v3, s92, 1\nv_writelane_b32 v3, s94, 2\nL_so9:")
        if stamps == 2:
            A("s_cmp_lg_u32 s2, 32\ns_cbranch_scc1 L_exit\ns_and_b32 s20, s3, 11\ns_cbranch_scc1 L_exit")
            A("s_mov_b64 exec, 0xff\ns_lshl_b32 s20, s3, 3\nv_lshl_add_u32 v1, v0, 2, s20")
            A(f"global_store_dword v1, v3, {sp(P_DBG)}\ns_endpgm")
        A("s_mov_b64 exec, 0xff")
        A("s_mul_i32 s20, s2, 12\ns_add_u32 s20, s20, s3\ns_lshl_b32 s20, s20, 5")
        A(f"s_add_u32 s20, s20, {WS_STAMP}")
        A("v_lshl_add_u32 v1, v0, 2, s20")
        A(f"global_store_dword v1, v3, {WS}")
    A("L_exit:\ns_endpgm")
    A(".p2align 6\n.type L_tab,@object\nL_tab:")
    for wg in range(256):
        r = roles[(xp[wg & 7] if xp else wg & 7), wg >> 3]; skip = T - r['n']
        assert skip < 8, (wg, r)
        A(f".long {(r['pre'] - skip + 16) | skip << 12 | r['e'] << 15 | r['ei'] << 18 | r['l'] << 23 | r['li'] << 25:#x}")
    A("L_endcode:")
    A('.section .rodata,"a"\n.p2align 6')
    A(f".amdhsa_kernel {NAME}")
    for l in ["next_free_vgpr 168", "next_free_sgpr 102", "accum_offset 168", "group_segment_fixed_size 0", "kernarg_size 104",
              "user_sgpr_count 2", "user_sgpr_kernarg_segment_ptr 1", "system_sgpr_workgroup_id_x 1"]:
        A("  .amdhsa_" + l)
    A(".end_amdhsa_kernel")
    return A.finish()

if __name__ == "__main__":
    out = sys.argv[1]; kw = {}
    for a in sys.argv[2:]:
        k, v = a.split("=", 1)
        try: v = ast.literal_eval(v)
        except Exception: pass
        kw[k] = v
    open(out, "w").write(gen(**kw))
    import json
    roles, T = make_plan(kw.get('plan', 'A'), **{k: v for k, v in kw.items() if k in ('cH','cQ','cM','cB','cC','T','c3','Fx')})
    json.dump([[roles[wg & 7, wg >> 3][k] for k in ('e', 'l', 'n')] for wg in range(256)], open(out + ".roles", "w"))
```

```python
import sys, struct, ast
from asmlib import Asm
NAME = "adaLN_cond__gqa_block_cached__dense_activation_relu__decode_kernel"
def f2x(f): return "0x%08x" % struct.unpack("<I", struct.pack("<f", f))[0]

WS_XB = 0x14000; WS_QL = 0x10000; WS_H = 0x1000; WS_MOD = 0x4000; WS_Q = 0x8000; WS_ST = 0xC000
WS_AL = 0xC0000; WS_A = 0x80000; WS_B = 0x20000; WS_C = 0x40000
WS_STAMP = 0x8000000
L_CG = 0; L_FQ = 4; L_CS = 8; L_CT = 68; L_CP = 16; L_FK = 20; L_CV = 24; L_CW = 28; L_FO = 32; L_MK = 64; L_FP = 12
L_ST = 256; L_Q = 1024; L_GP = 2048; L_X = 3072; L_RED = 4096; L_U = 5120; L_GS = 8192
L_OP = 16384; L_WT = 32768; LDS_SIZE = 98304
DPPF = "row_mask:0xf bank_mask:0xf"
P_X, P_K, P_V, P_WQ, P_WO, P_BX, P_W1, P_W2, P_C, P_WM, P_OUT, P_DBG, P_WS = [36 + 2 * i for i in range(13)]
def sp(n): return f"s[{n}:{n+1}]"
def v4(n): return f"v[{n}:{n+3}]"
def v2(n): return f"v[{n}:{n+1}]"
WS = sp(P_WS)

DOC = '''; ---------------------------------------------------------------------------------------------
; ---------------------------------------------------------------------------------------------'''
E_H, E_Q, E_M, E_B = 1, 2, 3, 4
R_B, R_C, R_F = 1, 2, 3
def make_plan(plan, **pk):
    P = dict(PLANS[plan]); P.update(pk)
    roles = {(x, a): dict(e=0, ei=0, l=0, li=0) for x in range(8) for a in range(32)}
    hi = mi = ci = fi = 0
    for x in range(8):
        a = 0
        for _ in range(P['H'][x]): roles[x, a].update(e=E_H, ei=hi); hi += 1; a += 1
        for c in range(8):
            roles[x, a].update(e=E_Q, ei=c)
            if (x & 1 == P['Fx'] if 'Fx' in P else c in (0, 1, 4, 5)): roles[x, a].update(l=R_F, li=fi); fi += 1
            a += 1
        for c in range(8): roles[x, a].update(e=E_B, ei=c, l=R_B, li=c); a += 1
        for _ in range(P['M'][x]): roles[x, a].update(e=E_M, ei=mi); mi += 1; a += 1
        assert a <= 32
        cand = [b for b in range(31, -1, -1) if roles[x, b]['e'] == 0] + [b for b in range(32) if roles[x, b]['e'] == E_H] + [b for b in range(32) if roles[x, b]['e'] == E_M]
        for b in cand[:P['C'][x]]: roles[x, b].update(l=R_C, li=ci); ci += 1
    assert (hi, mi, ci, fi) == (32, 32, 56, 32), (hi, mi, ci, fi)
    for x in range(8):
        cost = []
        for a in range(32):
            r = roles[x, a]
            c = {0: 0, E_H: P['cH'], E_Q: P['cQ'], E_M: P['cM'], E_B: P['cB']}[r['e']]
            cb = r['ei'] if r['e'] in (E_Q, E_B) else (r['ei'] >> 2)
            if r['e'] and cb == 3: c += P['c3'][r['e']]
            if r['l'] == R_C: c += P['cC']
            cost.append(c)
        n = [max(28, P['T'] - 7)] * 32
        for _ in range(1024 - sum(n)):
            b = min((a for a in range(32) if n[a] < P['T']), key=lambda a: (n[a] + cost[a], -a))
            n[b] += 1
        pre = 0
        for a in range(32):
            roles[x, a].update(n=n[a], pre=pre); pre += n[a] - 28
    T = max(r['n'] for r in roles.values()); T += T & 1
    return roles, T
base = dict(cH=2.0, cQ=3.6, cM=4.2, cB=3.6, cC=4.0, c3={E_H: 0.5, E_Q: 1.7, E_M: 1.5, E_B: 1.0}, T=34)
base2 = dict(cH=1.6, cQ=4.0, cM=4.5, cB=3.4, cC=5.3, c3={E_H: 0.7, E_Q: 2.3, E_M: 1.8, E_B: 2.4}, T=36)
PLANS = {
 'A': dict(base, H=[4]*8, M=[4]*8, C=[7]*8),
 'B': dict(base, H=[8,0,8,0,8,0,8,0], M=[8,0,8,0,8,0,8,0], C=[14,0,14,0,14,0,14,0]),
 'C': dict(base, H=[8,0,8,0,8,0,8,0], M=[8,0,8,0,8,0,8,0], C=[7]*8),
 'D': dict(base, H=[8,8,8,8,0,0,0,0], M=[8,0,8,0,8,0,8,0], C=[14,0,14,0,14,0,14,0]),
 'E': dict(base, H=[8,8,8,8,0,0,0,0], M=[8,0,8,0,8,0,8,0], C=[8,6,8,6,8,6,8,6]),
 'G': dict(base2, H=[8,0,8,0,8,0,8,0], M=[8,0,8,0,8,0,8,0], C=[7]*8),
 'H': dict(base2, H=[8,0,8,0,8,0,8,0], M=[8,0,8,0,8,0,8,0], C=[8,8,8,12,8,2,8,2]),
 'I': dict(base2, H=[8,0,8,8,4,0,4,0], M=[8,0,8,0,8,0,8,0], C=[8,8,8,8,8,4,8,4]),
 'J': dict(base2, H=[8,0,8,0,8,0,8,0], M=[8,0,8,0,8,0,8,0], C=[0,14,0,14,0,14,0,14]),
 'K': dict(base2, H=[8,0,8,0,8,0,8,0], M=[8,0,8,0,8,0,8,0], C=[4,10,4,10,4,10,4,10]),
 'L': dict(base2, H=[8,0,8,0,8,0,8,0], M=[8,0,8,0,8,0,8,0], C=[8,6,8,6,8,6,8,6]),
 'N': dict(base2, H=[8,0,8,0,8,0,8,0], M=[2,6,2,6,2,6,2,6], C=[14,0,14,0,14,0,14,0]),
 'O': dict(base2, H=[0,8,0,8,0,8,0,8], M=[2,6,2,6,2,6,2,6], C=[14,0,14,0,14,0,14,0]),
 'P': dict(base2, H=[4,4,4,4,4,4,4,4], M=[2,6,2,6,2,6,2,6], C=[14,0,14,0,14,0,14,0]),
 'F': dict(base, H=[8,4,8,4,4,0,4,0], M=[8,0,8,0,8,0,8,0], C=[10,4,10,4,10,4,10,4]),
}

def gen(win=5, win2=6, wpol="nt", stamps=0, spin=200000, hsleep=4, qsleep=8, tsleep=1, pace=4, cpre=1, kprio=0, skipw=0, vmid=4, nopoll='', qtrig=22, R=4, cdefer=1, csleep=2, nH=33, nX=31, nL=34, loc=1, lpol='sc1', w1pol='nt', nocomp=0, nosvc=0, sprio=3, nopre=0, nocw=0, lmul=1, xit='', qloc=1, strig=1, qtrig2=38, kpol='nt', vpol='nt', slowfb=0, fixend=0, plan='A', hfirst=1, cpad=1, w2late=1, fsleep=1, dry=0, yprio=0, burst=0, bwin=8, mrg=1, fprio=0, rprio=3, rsl=0, b0at=0, mlate=0, xp=None, lin=1, atrig=0, pre=0, g4=0, alt1=0, alt2=0, tw=0, probe='', det=1, rx=0, fl=0, w1early=1, nohp=0, ws1=0, ws2=0, bp=0, calm=0, ltab=1, st0=0, bhold=0, xl=1, bearly=0, pd=1, fdelay=0, xsleep=4, bdefer=0, hwait=0, **pk):
    A = Asm()
    roles, T = make_plan(plan, **pk)
    hdr = open("cdna_kernels/" + NAME[:-7] + ".s.ref").read().split("; Override")[0]
    A(hdr.rstrip())
    A(f"; @launch grid=(256,1,1) block=(768,1,1) lds={LDS_SIZE}")
    A(DOC)
    A('.amdgcn_target "amdgcn-amd-amdhsa--gfx950"')
    A(f".text\n.globl {NAME}\n.p2align 8\n.type {NAME},@function\n{NAME}:")
    def stamp(k):
        if stamps:
            A("s_memrealtime s[62:63]\ns_waitcnt lgkmcnt(0)")
            A(f"v_writelane_b32 v3, s62, {k}")
    def prb(name):
        if probe == name: A("s_memrealtime s[94:95]\ns_waitcnt lgkmcnt(0)")
    def end_wave():
        if stamps:
            A("s_branch L_stampout")
        else:
            A("s_endpgm")
    def srd(d, p, size):
        A(f"s_mov_b32 s{d}, s{p}\ns_mov_b32 s{d+1}, s{p+1}\ns_mov_b32 s{d+2}, {size}\ns_mov_b32 s{d+3}, 0x20000")
    def poll(name, loads, check, sleep):
        if name in nopoll.split('+'): return
        top = A.label(name); done = A.label(name + "d")
        A(f"s_mov_b32 s7, {spin}")
        A(f"{top}:")
        loads()
        A("s_waitcnt vmcnt(0)")
        check()
        A(f"s_cbranch_vccz {done}")
        A("s_mov_b64 exec, vcc")
        if sleep: A(f"s_sleep {sleep}")
        A("s_sub_u32 s7, s7, 1")
        A(f"s_cbranch_scc0 {top}")
        A(f"{done}:")
        A("s_mov_b64 exec, -1")
    def lspin(name, off, n, vz, vt, sleep=1, extra=None):
        top = A.label(name); done = A.label(name + "d")
        A(f"s_mov_b32 s7, {spin*20}")
        A(f"{top}:")
        A(f"ds_read_b32 v{vt}, v{vz} offset:{off}")
        if extra: extra()
        A("s_waitcnt lgkmcnt(0)")
        A(f"v_cmp_gt_u32 vcc, {n}, v{vt}")
        A(f"s_cbranch_vccz {done}")
        if lmul > 1: sleep = min(127, max(sleep, 1) * lmul)
        if sleep: A(f"s_sleep {sleep}")
        A("s_sub_u32 s7, s7, 1")
        A(f"s_cbranch_scc0 {top}")
        A(f"{done}:")
    def chk_tags(regs, tmp):
        A(f"v_xor_b32 v{tmp}, s6, v{regs[0]}")
        for r in regs[1:]:
            A(f"v_xor_b32 v{tmp+1}, s6, v{r}")
            A(f"v_or_b32 v{tmp}, v{tmp}, v{tmp+1}")
        A(f"v_cmp_ne_u32 vcc, 0, v{tmp}")
    def chk_sent(regs, tmp):
        regs = list(regs)
        if len(regs) == 1:
            A(f"v_cmp_eq_u32 vcc, -1, v{regs[0]}"); return
        if len(regs) == 2:
            A(f"v_max_u32 v{tmp}, v{regs[0]}, v{regs[1]}"); rest = []
        else:
            A(f"v_max3_u32 v{tmp}, v{regs[0]}, v{regs[1]}, v{regs[2]}"); rest = regs[3:]
        while rest:
            if len(rest) == 1:
                A(f"v_max_u32 v{tmp}, v{tmp}, v{rest[0]}"); rest = []
            else:
                A(f"v_max3_u32 v{tmp}, v{tmp}, v{rest[0]}, v{rest[1]}"); rest = rest[2:]
        A(f"v_cmp_eq_u32 vcc, -1, v{tmp}")
    def xrow(op, v, tmp, which):
        A(f"v_mov_b32 v{tmp}, v{v}")
        A(f"v_permlane{which}_swap_b32 v{v}, v{tmp}")
        A(f"{op} v{v}, v{v}, v{tmp}")
    def inrow(op, v, steps):
        for s in steps:
            A(f"{op}_dpp v{v}, v{v}, v{v} {s} {DPPF}")
    def wave_reduce(op, v, tmp):
        inrow(op, v, ["row_ror:8", "row_ror:4", "row_ror:2", "row_ror:1"])
        xrow(op, v, tmp, 16); xrow(op, v, tmp, 32)
    def unpack(dst, src, n):
        for i in range(n):
            A(f"v_lshlrev_b32 v{dst+2*i}, 16, v{src[i]}")
            A(f"v_and_b32 v{dst+2*i+1}, 0xffff0000, v{src[i]}")
    def silu(x, t, n):
        A(f"s_mov_b32 s21, {f2x(-1.4426950408889634)}")
        for i in range(n): A(f"v_mul_f32 v{t+i}, s21, v{x+i}")
        for i in range(n): A(f"v_exp_f32 v{t+i}, v{t+i}")
        for i in range(n): A(f"v_add_f32 v{t+i}, 1.0, v{t+i}")
        for i in range(n): A(f"v_rcp_f32 v{t+i}, v{t+i}")
        for i in range(n): A(f"v_mul_f32 v{x+i}, v{x+i}, v{t+i}")
    def gemv_perm(W, T, npair):
        for u in range(npair):
            for w in range(4):
                a = W + 8 * u + w; b = W + 8 * u + 4 + w
                A(f"v_perm_b32 v{T+8*u+2*w}, v{b}, v{a}, s24")
                A(f"v_perm_b32 v{T+8*u+2*w+1}, v{b}, v{a}, s25")
    def gemv_dot(T, X, acc):
        for u in range(len(X)):
            for e in range(8):
                c = "0" if u == 0 else f"v{acc+e}"
                A(f"v_dot2_f32_bf16 v{acc+e}, v{T+8*u+e}, v{X[u]}, {c}")
    def mktag():
        A("s_waitcnt lgkmcnt(0)\ns_mul_i32 s6, s6, 0x9E3779B1\ns_add_u32 s6, s6, 0x7F4A7C15")
    def paced(loads, w):
        if skipw and (w or skipw > 1): return
        for i, l in enumerate(loads):
            if w and i >= w: A(f"s_waitcnt vmcnt({w-1})")
            A(l)

    if st0: A("s_memrealtime s[90:91]")
    A("s_cmp_ge_u32 s2, 256\ns_cbranch_scc1 L_exit")
    A("s_load_dwordx16 s[36:51], s[0:1], 0")
    rest_ld = "s_load_dwordx8 s[52:59], s[0:1], 64\ns_load_dwordx2 s[60:61], s[0:1], 96\ns_load_dword s68, s[32:33], s34"
    A("s_getpc_b64 s[30:31]\nL_pc:\ns_add_u32 s32, s30, L_tab-L_pc\ns_addc_u32 s33, s31, 0\ns_lshl_b32 s34, s2, 2")
    if not ltab: A(rest_ld)
    A("v_lshrrev_b32 v1, 6, v0\nv_and_b32 v0, 63, v0\nv_readfirstlane_b32 s3, v1")
    A("s_and_b32 s4, s2, 7\ns_lshr_b32 s5, s2, 3")
    if xp: A(f"s_lshl_b32 s4, s4, 2\ns_lshr_b32 s4, {sum(h << (4*i) for i, h in enumerate(xp)):#x}, s4\ns_and_b32 s4, s4, 7")
    if fixend: A("s_memrealtime s[96:97]")
    A("s_mov_b32 s24, 0x05040100\ns_mov_b32 s25, 0x07060302")
    A("v_lshlrev_b32 v2, 4, v0")
    if stamps:
        A("v_mov_b32 v3, 0")
        if not st0: stamp(0)
    A("s_cmp_lt_u32 s3, 4\ns_cbranch_scc1 L_service")
    STREAM_MARK = len(A.lines)
    A("L_service:")
    if ltab: A(rest_ld)
    A(f"s_setprio {sprio}")
    if cpre:
        A(f"s_lshl_b32 s20, s5, 2\ns_add_u32 s20, s20, s3\ns_sub_u32 s20, s20, 104\ns_cmp_ge_u32 s20, (L_endcode-{NAME})/1024\ns_cbranch_scc1 L_ncp")
        A(f"s_sub_u32 s30, s30, L_pc-{NAME}\ns_subb_u32 s31, s31, 0")
        A("s_lshl_b32 s20, s20, 10\nv_add_u32 v14, s20, v2")
        A("global_load_dwordx4 v[164:167], v14, s[30:31]")
        A("L_ncp:")
    A("v_lshrrev_b32 v12, 3, v0\nv_and_b32 v13, 7, v0\nv_mov_b32 v16, 0\nv_mov_b32 v17, 0\nv_mov_b32 v18, 0\nv_mov_b32 v19, 0")
    A("s_mov_b64 exec, 0x1f\nds_write_b128 v2, v[16:19]\ns_mov_b64 exec, -1")
    A("s_waitcnt lgkmcnt(0)")
    A("s_bfe_u32 s64, s68, 0x3000f\ns_bfe_u32 s65, s68, 0x50012\ns_bfe_u32 s66, s68, 0x20017\ns_bfe_u32 s67, s68, 0x60019")
    A("s_lshr_b32 s69, s65, 2\ns_and_b32 s70, s65, 3")
    A(f"s_cmp_lg_u32 s64, {E_H}\ns_cbranch_scc1 L_nh")
    A("s_lshr_b32 s20, s70, 1\ns_lshl_b32 s20, s20, 8\ns_lshl_b32 s21, s3, 6\ns_add_u32 s20, s20, s21")
    A("v_lshl_add_u32 v14, v12, 3, s20")
    A("s_mov_b32 s21, 6144\nv_mul_lo_u32 v1, v14, s21\nv_lshl_add_u32 v1, v13, 4, v1\nv_lshlrev_b32 v14, 1, v14")
    A("s_and_b32 s20, s70, 1\ns_lshl_b32 s20, s20, 10\ns_lshl_b32 s21, s69, 7\ns_add_u32 s20, s20, s21")
    A("s_waitcnt lgkmcnt(0)")
    srd(8, P_WM, 512 * 6144)
    A(f"global_load_dwordx4 v[4:7], v14, {sp(P_C)}")
    for i in range(8):
        A(f"buffer_load_dwordx4 {v4(40+4*i)}, v1, s[8:11], s20 offen {wpol}")
        if i < 7: A("s_add_u32 s20, s20, 6144")
    A(f"s_load_dword s6, {WS}, 0")
    A("s_barrier")
    A("s_lshl_b32 s20, s65, 2\ns_add_u32 s20, s20, s3")
    if cpad: A(f"s_lshl_b32 s21, s20, 11\ns_add_u32 s21, s21, {WS_C}\nv_lshrrev_b32 v14, 2, v0\nv_lshl_add_u32 v14, v14, 6, v2\nv_add_u32 v14, s21, v14")
    else: A(f"s_lshl_b32 s21, s20, 10\ns_add_u32 s21, s21, {WS_C}\nv_add_u32 v14, s21, v2")
    A(f"s_mul_i32 s21, s20, {128*R}\ns_add_u32 s21, s21, {WS_B}\nv_add_u32 v15, s21, v2")
    A("s_cmp_eq_u32 s3, 3\ns_cselect_b32 exec_hi, 0, -1")
    for i in range(4): A(f"v_mov_b32 v{16+i}, -1")
    A("s_mov_b64 exec, -1")
    if nohp: A("s_mov_b64 exec, 1")
    A(f"global_store_dwordx4 v14, v[16:19], {WS} sc1")
    for i in range(4): A(f"v_mov_b32 v{20+i}, -1")
    if R < 8: A(f"s_mov_b32 exec_hi, 0\ns_mov_b32 exec_lo, {(1<<(8*R))-1:#x}")
    A(f"global_store_dwordx4 v15, v[20:23], {WS} sc1")
    A("s_mov_b64 exec, -1")
    A("s_waitcnt vmcnt(10)")
    unpack(24, [4, 5, 6, 7], 4); silu(24, 32, 8)
    for i in range(4): A(f"v_cvt_pk_bf16_f32 v{24+i}, v{24+2*i}, v{25+2*i}")
    mktag()
    A(f"s_and_b32 s26, s70, 1\ns_lshl_b32 s26, s26, 12\ns_lshr_b32 s21, s70, 1\ns_lshl_b32 s21, s21, 11\ns_add_u32 s26, s26, s21\ns_lshl_b32 s21, s69, 8\ns_add_u32 s26, s26, s21\ns_add_u32 s26, s26, {WS_H}")
    A("s_waitcnt vmcnt(2)")
    stamp(1)
    gemv_perm(40, 104, 4)
    gemv_dot(104, [24, 25, 26, 27], 32)
    A("L_gfin:")
    acc = 32
    for e in range(4): A(f"v_permlane32_swap_b32 v{acc+e}, v{acc+e+4}")
    for e in range(4): A(f"v_add_f32 v{acc+e}, v{acc+e}, v{acc+e+4}")
    for e in range(2): A(f"v_permlane16_swap_b32 v{acc+e}, v{acc+e+2}")
    for e in range(2): A(f"v_add_f32 v{acc+e}, v{acc+e}, v{acc+e+2}")
    for e in range(2): A(f"v_add_f32_dpp v{acc+e}, v{acc+e}, v{acc+e} row_ror:8 {DPPF}")
    A("v_lshrrev_b32 v14, 4, v0\nv_lshlrev_b32 v14, 3, v14\nv_lshl_add_u32 v14, v13, 5, v14\ns_lshl_b32 s21, s3, 8\nv_add_u32 v14, s21, v14")
    A(f"ds_write_b64 v14, v[32:33] offset:{L_GP}")
    A("v_mov_b32 v14, 0\nv_mov_b32 v15, 1")
    A("s_waitcnt vmcnt(0)")
    A("s_mov_b64 exec, 1")
    A(f"ds_add_rtn_u32 v15, v14, v15 offset:{L_CG}")
    A("s_mov_b64 exec, -1")
    A("v_lshlrev_b32 v14, 3, v0")
    A("s_waitcnt lgkmcnt(0)")
    A("v_readfirstlane_b32 s21, v15")
    A("s_cmp_lg_u32 s21, 3\ns_cbranch_scc1 L_gdone")
    A("s_mov_b32 exec_hi, 0")
    for w in range(4): A(f"ds_read_b64 {v2(32+2*w)}, v14 offset:{L_GP+256*w}")
    A("v_add_u32 v14, s26, v14")
    A("s_waitcnt lgkmcnt(0)")
    A("v_pk_add_f32 v[32:33], v[32:33], v[34:35]\nv_pk_add_f32 v[36:37], v[36:37], v[38:39]\nv_pk_add_f32 v[32:33], v[32:33], v[36:37]")
    A("v_cvt_pk_bf16_f32 v32, v32, v33\nv_mov_b32 v33, s6")
    if qloc:
        A(f"s_cmp_lg_u32 s64, {E_Q}\ns_cbranch_scc1 L_gnl")
        A(f"v_add_u32 v15, {WS_QL-WS_Q}, v14\nglobal_store_dwordx2 v15, v[32:33], {WS}")
        A("L_gnl:")
    A(f"global_store_dwordx2 v14, v[32:33], {WS} sc1")
    A("s_mov_b64 exec, -1")
    A("L_gdone:")
    stamp(3)
    if mlate: A(f"s_cmp_eq_u32 s64, {E_M}\ns_cbranch_scc1 L_done")
    A("s_branch L_qpoll")

    NM = T - 28; nmask = T - min(r['n'] for r in roles.values())
    NW = 39 - T
    S0 = len(A.lines)
    A("L_stream:")
    if kprio: A(f"s_setprio {kprio}")
    A("s_sub_u32 s21, s3, 4")
    if yprio == 1: A("s_cmp_lt_u32 s21, 4\ns_cbranch_scc1 L_yp\ns_setprio 1\nL_yp:")
    A("v_bfe_u32 v1, v0, 2, 2\nv_lshlrev_b32 v1, 8, v1\nv_lshrrev_b32 v4, 4, v0\nv_lshl_add_u32 v1, v4, 6, v1\nv_and_b32 v4, 3, v0\nv_lshl_add_u32 v1, v4, 4, v1")
    A(f"s_lshl_b32 s19, s4, 23\ns_mul_i32 s16, s5, {28*8192}\ns_add_u32 s16, s16, s19\ns_lshl_b32 s17, s21, 12\ns_add_u32 s16, s16, s17")
    A("s_mov_b32 s10, 0x4000000\ns_mov_b32 s11, 0x20000")
    hcnt = sum(PLANS[plan]['H'][x] << (4 * x) for x in range(8))
    A(f"s_lshl_b32 s17, s4, 2\ns_lshr_b32 s35, {hcnt:#x}, s17\ns_and_b32 s35, s35, {15 if hfirst else 0}")
    A("s_waitcnt lgkmcnt(0)")
    A(f"s_mov_b32 s8, s{P_K}\ns_mov_b32 s9, s{P_K+1}")
    A("s_cmp_ge_u32 s5, s35\ns_cbranch_scc1 L_s1\ns_barrier\nL_s1:")
    KR = lambda t: 168 - 4 * T + 4 * t
    nS = (T + 3) // 4; nP = (T + 7) // 8
    assert T == 34
    first_v = 14
    vslots = [12 + 4 * i for i in range(NW)] + [KR(i) for i in range(first_v, T)]
    VR = lambda t: vslots[t % len(vslots)]
    st = {"cur": None}
    mpos = [6 + (j * (T - 12)) // max(nmask, 1) for j in range(nmask)]
    rest = list(range(NM, NM + 6)) + list(range(nmask, NM)) + list(range(NM + 6, T))
    perm = []
    for t in range(T):
        if t in mpos: perm.append(mpos.index(t))
        else: perm.append(rest.pop(0))
    first_nm = min(t for t in range(T) if perm[t] < NM)
    assert first_nm >= win
    hist = []
    def wcount(w):
        c = 0
        for n_, m_ in enumerate(reversed(hist)):
            if not m_:
                if c == w - 1: return n_
                c += 1
        return None
    def ld(which, t):
        o = perm[t]
        hist.append(o < nmask)
        if o < NM:
            A(f"s_add_u32 s20, s17, {o*8192}"); st["cur"] = None; imm = 0
            if o < nmask: A(f"s_cmp_gt_u32 s18, {o}\ns_cselect_b32 s20, 0x4000000, s20")
        else:
            key = (o - NM) >> 2; imm = ((o - NM) & 3) * 1024
            if st["cur"] != key:
                A(f"s_add_u32 s20, s16, {key*32768}"); st["cur"] = key
        if which == "K": A(f"buffer_load_dwordx4 {v4(KR(t))}, v1, s[8:11], s20 offen offset:{imm} {kpol}")
        else: A(f"buffer_load_dwordx4 {v4(VR(t))}, v2, s[12:15], s20 offen offset:{imm} {vpol}")
    korder = list(range(T))
    seq = [("K", t) for t in korder] + [("V", t) for t in range(NW)]
    for i, (wh, t) in enumerate(seq):
        if i == win:
            if st0: A("s_memrealtime s[92:93]")
            if ltab: A(rest_ld)
            A("s_branch L_body")
            S1 = len(A.lines)
            A("L_body:")
            srd(12, P_V, 0x4000000)
            if ws1: A(f"s_cmp_lt_u32 s21, {ws1}\ns_cselect_b64 vcc, -1, 0")
            if st0: A("s_waitcnt vmcnt(3)\ns_memrealtime s[94:95]")
            if not b0at: A("s_cmp_lt_u32 s5, s35\ns_cbranch_scc1 L_s2\ns_barrier\nL_s2:")
            A("s_waitcnt lgkmcnt(0)")
            A(f"s_and_b32 s17, s68, 0xfff\ns_bfe_u32 s18, s68, 0x3000c\ns_add_u32 s17, s17, {896-16}\ns_lshl_b32 s17, s17, 13\ns_add_u32 s17, s17, s19\ns_lshl_b32 s19, s21, 10\ns_add_u32 s17, s17, s19")
        if b0at and i == win + b0at: A("s_cmp_lt_u32 s5, s35\ns_cbranch_scc1 L_s2\ns_barrier\nL_s2:")
        if i == T and kprio: A("s_setprio 0")
        if wcount(win) is not None and perm[t] >= nmask:
            if ws1:
                lb = A.label("w"); A(f"s_cbranch_vccz {lb}\ns_waitcnt vmcnt({wcount(win-1)})\n{lb}:")
            A(f"s_waitcnt vmcnt({wcount(win - 1) if (alt1 and i % alt1 == 0) else wcount(win)})")
        ld(wh, t)
        if i == qtrig: A(f"v_mov_b32 v8, 0\nv_mov_b32 v9, 1\ns_mov_b64 exec, 1\nds_max_u32 v8, v9 offset:{L_FK}\ns_mov_b64 exec, -1")
        if i == qtrig2 and qloc: A(f"v_mov_b32 v8, 0\nv_mov_b32 v9, 2\ns_mov_b64 exec, 1\nds_max_u32 v8, v9 offset:{L_FK}\ns_mov_b64 exec, -1")
    viss = NW
    A("v_and_b32 v8, 3, v0\nv_lshlrev_b32 v8, 8, v8\nv_lshrrev_b32 v9, 4, v0\nv_lshl_add_u32 v8, v9, 6, v8\nv_bfe_u32 v9, v0, 2, 2\nv_lshl_add_u32 v8, v9, 4, v8\nv_mov_b32 v9, 0")
    A(f"s_mov_b32 s22, {f2x(128**-0.5*1.4426950408889634)}")
    for t in range(nmask): A(f"s_cmp_gt_u32 s18, {t}\ns_cselect_b32 s{28+t}, 0xff800000, 0")
    stamp(1)
    lspin("sq", L_FQ, 1, 9, 10, 2, lambda: A(f"ds_read_b128 v[4:7], v8 offset:{L_Q}"))
    stamp(2)
    kl = {"landed": T + NW - win - 3}
    DR = lambda t: 8 if t == 0 else KR(t - 1)
    SR = lambda t: (8 + t) if t < 4 else KR((t >> 2) - 1) + (t & 3)
    def M(t):
        if t >= kl["landed"]:
            A(f"s_waitcnt vmcnt({len(hist)-1-t})"); kl["landed"] = t + 1
        A(f"v_mfma_f32_16x16x32_bf16 {v4(DR(t))}, {v4(KR(t))}, v[4:7], 0")
    def AB(t):
        d = DR(t)
        A(f"v_add_f32_dpp v{d}, v{d+1}, v{d} row_shl:4 {DPPF} bound_ctrl:0")
        A(f"v_add_f32_dpp v{d+2}, v{d+3}, v{d+2} row_shl:4 {DPPF} bound_ctrl:0")
    def S(t):
        d = DR(t)
        A(f"v_add_f32_dpp v{SR(t)}, v{d+2}, v{d} row_shl:8 {DPPF} bound_ctrl:0")
    mark0 = len(A.lines)
    if yprio == 2: A("s_cmp_lt_u32 s21, 4\ns_cbranch_scc1 L_yp\ns_setprio 1\nL_yp:")
    M(0); M(1); M(2)
    for t in range(T + 1):
        if t < T: AB(t)
        if t >= 1:
            S(t - 1)
            if vmid and t - 2 >= first_v and (t - 2 - first_v) % vmid == 0:
                ld("V", viss); viss += 1
        if t + 3 < T: M(t + 3)
    TM = KR(11)
    Sl = [SR(t) for t in range(T)]
    for t in range(nmask): A(f"v_add_f32 v{Sl[mpos[t]]}, s{28+t}, v{Sl[mpos[t]]}")
    A(f"v_max3_f32 v{TM}, v{Sl[0]}, v{Sl[1]}, v{Sl[2]}")
    A(f"v_max3_f32 v{TM+1}, v{Sl[3]}, v{Sl[4]}, v{Sl[5]}")
    i = 6; k = 0
    while i < T:
        A(f"v_max3_f32 v{TM+k}, v{TM+k}, v{Sl[i]}, v{Sl[i+1]}"); i += 2; k ^= 1
    A(f"v_max_f32 v{TM}, v{TM}, v{TM+1}")
    xrow("v_max_f32", TM, TM + 1, 16); xrow("v_max_f32", TM, TM + 1, 32)
    A(f"v_mul_f32 v{TM}, s22, v{TM}")
    for t in range(T): A(f"v_fma_f32 v{Sl[t]}, v{Sl[t]}, s22, -v{TM}")
    for t in range(T): A(f"v_exp_f32 v{Sl[t]}, v{Sl[t]}")
    if vmid: ld("V", viss); viss += 1
    A(f"v_add_f32 v{TM+1}, v{Sl[0]}, v{Sl[1]}\nv_add_f32 v{TM+2}, v{Sl[2]}, v{Sl[3]}")
    for t in range(4, T): A(f"v_add_f32 v{TM+1+(t&1)}, v{TM+1+(t&1)}, v{Sl[t]}")
    A(f"v_add_f32 v{TM+1}, v{TM+1}, v{TM+2}")
    xrow("v_add_f32", TM + 1, TM + 2, 16); xrow("v_add_f32", TM + 1, TM + 2, 32)
    A(f"s_lshl_b32 s19, s21, 5\nv_lshl_add_u32 v{TM+2}, v0, 3, s19\nv_mov_b32 v4, 0\nv_mov_b32 v5, 1")
    A("s_mov_b64 exec, 0xf")
    A(f"ds_write_b64 v{TM+2}, {v2(TM)} offset:{L_ST}")
    A("s_mov_b64 exec, 1")
    A(f"ds_add_u32 v4, v5 offset:{L_CS}")
    A("s_mov_b64 exec, -1")
    GR = [(0, 2), (2, 10), (10, 18), (18, 26), (26, 34)]
    def pack(u, d):
        for t in range(GR[u][0], GR[u][1], 2): A(f"v_cvt_pk_bf16_f32 v{d+(t-GR[u][0])//2}, v{Sl[t]}, v{Sl[t+1]}")
    for u in range(3): pack(u, KR(8 + u))
    A("s_waitcnt lgkmcnt(0)")
    AC = [8, KR(0)]
    PA = [KR(1), KR(2), KR(12), KR(13)]; PB = [KR(3), KR(4), KR(5), KR(6)]
    TT = [TM, 4]
    def zero(P):
        for j in range(4):
            for i in range(4): A(f"v_mov_b32 v{P[j]+i}, 0")
    def vers(P, src, n=4):
        for j in range(4):
            ctl = "quad_perm:[0,1,2,3]" if j == 0 else f"row_shr:{4*j}"
            for i in range(n): A(f"v_mov_b32_dpp v{P[j]+i}, v{src+i} {ctl} row_mask:0xf bank_mask:{1<<j:#x}")
    zero(PA)
    A(f"v_mov_b32 v{TM+1}, 0\nv_mov_b32 v5, 0")
    stamp(3)
    EO = (0, 4, 1, 5, 2, 6, 3, 7)
    def pv(u):
        t0, t1 = GR[u]; n = t1 - t0
        vers(PA, KR(8 + u), n // 2)
        for k, e in enumerate(EO):
            Tm = TT[k & 1]; ac = AC[e >> 2]
            for p in range(n // 2):
                a = VR(t0 + 2 * p) + (e >> 1); b = VR(t0 + 2 * p + 1) + (e >> 1)
                A(f"v_perm_b32 v{Tm+p}, v{b}, v{a}, s{24+(e&1)}")
            c = "0" if (u == 0 and k < 2) else v4(ac)
            if n == 8: A(f"v_mfma_f32_16x16x32_bf16 {v4(ac)}, {v4(Tm)}, {v4(PA[e&3])}, {c}")
            else: A(f"v_mfma_f32_16x16x16_bf16 {v4(ac)}, {v2(Tm)}, {v2(PA[e&3])}, {c}")
    ns = len(vslots)
    TA = [VR(t) for t in range(T - ns, 18)][:8]
    assert len(TA) == 8
    X = KR(8); ONE = KR(7) + 2; CNT = KR(7) + 3
    def rescale():
        A(f"v_and_b32 v1, 3, v0\nv_lshlrev_b32 v1, 3, v1\nv_mov_b32 v{X+10}, 0\nv_mov_b32 v{ONE}, 1\ns_lshl_b32 s19, s21, 5\nv_add_u32 v{X+9}, s19, v1")
        def rd():
            for w in range(8): A(f"ds_read_b32 v{X+w}, v1 offset:{L_ST+32*w}")
            A(f"ds_read_b32 v{X+8}, v{X+9} offset:{L_ST}")
        lspin("sm", L_CS, 9, X + 10, X + 11, 1, rd)
        A(f"s_mov_b64 exec, 1\nds_add_rtn_u32 v{X+11}, v{X+10}, v{ONE} offset:{L_CT}\ns_mov_b64 exec, -1")
        A(f"v_max3_f32 v{X}, v{X}, v{X+1}, v{X+2}\nv_max3_f32 v{X+3}, v{X+3}, v{X+4}, v{X+5}\nv_max3_f32 v{X}, v{X}, v{X+6}, v{X+7}\nv_max_f32 v{X}, v{X}, v{X+3}")
        A(f"v_sub_f32 v{X}, v{X+8}, v{X}\nv_exp_f32 v{X}, v{X}")
        A(f"s_lshl_b32 s19, s21, 11\nv_add_u32 v1, s19, v2\ns_and_b32 s19, s21, 4\nv_mov_b32 v{CNT}, s19")
        for ac in AC:
            for q in range(2): A(f"v_pk_mul_f32 {v2(ac+2*q)}, {v2(ac+2*q)}, {v2(X)} op_sel_hi:[1,0]")
        for t in range(18, T, 2): A(f"v_pk_mul_f32 {v2(Sl[t])}, {v2(Sl[t])}, {v2(X)} op_sel_hi:[1,0]")
        pack(3, TT[0]); pack(4, TT[1])
        zero(PB); vers(PA, TT[0]); vers(PB, TT[1])
        A(f"s_waitcnt lgkmcnt(0)\nv_readfirstlane_b32 s23, v{X+11}")
    while viss < min(win2, ns):
        ld("V", viss); viss += 1
    done_t = 0
    ends = {g[1] - 1: u for u, g in enumerate(GR[:3])}
    for L in range(T):
        inc = L >= 18 and L % 2 == 1
        can = lambda: viss < T and sum(1 for j in range(L + 1, viss) if perm[j] >= nmask) < (bwin if L >= T - burst else win2 + (pre if L in ends else 0)) + (perm[viss] < nmask) and (viss < ns or done_t > viss - ns)
        if can() or L in ends or inc:
            A(f"s_waitcnt vmcnt({viss-1-L})")
        while can():
            ld("V", viss); viss += 1
            if viss == T:
                assert L > 17
                A(f"s_mov_b64 exec, 1\nds_add_u32 v2, v{ONE} offset:{L_CV}\ns_mov_b64 exec, -1")
        if L in ends:
            pv(ends[L]); done_t = L + 1
            if L == 17: rescale()
        if inc:
            if L == T - 1: stamp(4)
            p = ((L - 18) % 8) // 2
            for e in EO: A(f"v_perm_b32 v{TA[e]+p}, v{VR(L)+(e>>1)}, v{VR(L-1)+(e>>1)}, s{24+(e&1)}")
            if p == 3:
                for e in EO: A(f"v_mfma_f32_16x16x32_bf16 {v4(AC[e>>2])}, {v4(TA[e])}, {v4((PA if L < 26 else PB)[e&3])}, {v4(AC[e>>2])}")
    assert viss == T
    if nocomp:
        keep = [l for l in A.lines[mark0:] if not l.startswith(("v_mfma", "v_perm_b32", "v_add_f32", "v_exp", "v_fma", "v_max", "v_cvt", "v_permlane"))]
        A.lines[mark0:] = keep
    for hf in range(2): A(f"ds_write_b128 v1, {v4(AC[hf])} offset:{L_OP+hf*1024}")
    A(f"s_mov_b64 exec, 1\nds_add_u32 v{CNT}, v{ONE} offset:{L_FO}")
    A("s_mov_b64 exec, -1")
    if stamps: A("s_waitcnt lgkmcnt(0)")
    stamp(5)
    A("s_cmp_lg_u32 s23, 0\ns_cbranch_scc1 L_done")
    A(f"s_setprio {rprio}")
    def a_addr(d, t):
        if lin: A(f"s_lshl_b32 s20, s4, 15\ns_lshr_b32 s19, s5, 4\ns_lshl_b32 s19, s19, 10\ns_add_u32 s20, s20, s19\ns_and_b32 s19, s5, 15\ns_lshl_b32 s19, s19, 4\ns_add_u32 s20, s20, s19\ns_add_u32 s20, s20, {WS_A}")
        else: A(f"s_lshl_b32 s20, s4, 15\ns_lshl_b32 s19, s5, {7 if fl else 6}\ns_add_u32 s20, s20, s19\ns_add_u32 s20, s20, {WS_A}")
        if mrg:
            assert lin
            A(f"v_and_b32 v{d}, 3, v0\nv_lshlrev_b32 v{d}, 13, v{d}\nv_bfe_u32 v{t}, v0, 2, 2\nv_lshl_add_u32 v{d}, v{t}, 11, v{d}\nv_lshrrev_b32 v{t}, 4, v0\nv_lshl_add_u32 v{d}, v{t}, 8, v{d}\nv_add_u32 v{d}, s20, v{d}")
            return
        A(f"v_bfe_u32 v{d}, v0, 2, 2\nv_lshlrev_b32 v{d}, 13, v{d}")
        if fl: A(f"v_lshrrev_b32 v{t}, 5, v0\nv_lshl_add_u32 v{d}, v{t}, 12, v{d}\nv_bfe_u32 v{t}, v0, 4, 1\nv_lshl_add_u32 v{d}, v{t}, 6, v{d}")
        else: A(f"v_lshrrev_b32 v{t}, 4, v0\nv_lshl_add_u32 v{d}, v{t}, 11, v{d}")
        A(f"v_and_b32 v{t}, 3, v0\nv_lshl_add_u32 v{d}, v{t}, {8 if lin else 4}, v{d}\nv_add_u32 v{d}, s20, v{d}")
    a_addr(36, 37)
    A(f"v_add_u32 v37, {WS_AL-WS_A}, v36\nv_mov_b32 v38, 0\nv_mov_b32 v39, 1")
    if xl: A(f"ds_read_b32 v29, v38 offset:{L_MK}\ns_waitcnt lgkmcnt(0)\nv_readfirstlane_b32 s26, v29")
    for hf in range(2 if det else 0):
        def rd8():
            for j in range(4): A(f"ds_read_b128 {v4(40+8*j)}, v2 offset:{L_OP+(4*hf+j)*2048}\nds_read_b128 {v4(44+8*j)}, v2 offset:{L_OP+(4*hf+j)*2048+1024}")
        if rsl and hf: lspin("so3", L_FO + 4, 3, 38, 28, 1)
        lspin("so", L_FO + 4 * hf, 4, 38, 28, 1 - hf, rd8)
        for q in range(4): A(f"v_pk_add_f32 {v2(40+2*q)}, {v2(40+2*q)}, {v2(48+2*q)}")
        for q in range(4): A(f"v_pk_add_f32 {v2(56+2*q)}, {v2(56+2*q)}, {v2(64+2*q)}")
        for q in range(4): A(f"v_pk_add_f32 {v2((12 if hf == 0 else 40)+2*q)}, {v2(40+2*q)}, {v2(56+2*q)}")
        if hf:
            for q in range(4): A(f"v_pk_add_f32 {v2(12+2*q)}, {v2(12+2*q)}, {v2(40+2*q)}")
    for i in range(0 if det else 8):
        d = 12 if i == 0 else 20
        lspin("so", L_FO + 4 * i, 1, 38, 28, 1 if (calm and i < 6) else 0, lambda: A(f"ds_read_b128 {v4(d)}, v2 offset:{L_OP+i*2048}\nds_read_b128 {v4(d+4)}, v2 offset:{L_OP+i*2048+1024}"))
        if i:
            for q in range(4): A(f"v_pk_add_f32 {v2(12+2*q)}, {v2(12+2*q)}, {v2(20+2*q)}")
    for q in range(4): A(f"v_cvt_pk_bf16_f32 v{12+q}, v{12+2*q}, v{13+2*q}")
    if loc: A(f"global_store_dwordx4 v37, v[12:15], {WS}")
    if xl: A("s_cmp_eq_u32 s26, 0\ns_cbranch_scc1 L_ng2")
    A(f"global_store_dwordx4 v36, v[12:15], {WS} sc1")
    A("L_ng2:")
    A(f"ds_write_b32 v38, v39 offset:{L_FP}")
    stamp(6)
    end_wave()
    blk = A.lines[S0:S1]; del A.lines[S0:S1]; A.lines[STREAM_MARK:STREAM_MARK] = blk

    A("L_nh:")
    A(f"s_cmp_lg_u32 s64, {E_Q}\ns_cbranch_scc1 L_nq")
    A("v_lshlrev_b32 v1, 17, v12\nv_lshl_add_u32 v1, v13, 4, v1")
    A("s_lshl_b32 s20, s3, 20\ns_lshl_b32 s21, s4, 10\ns_add_u32 s20, s20, s21\ns_mov_b32 s26, s65\ns_lshl_b32 s21, s26, 7\ns_add_u32 s20, s20, s21")
    A("s_lshl_b32 s21, s3, 8\nv_lshl_add_u32 v14, v0, 2, s21")
    A("s_waitcnt lgkmcnt(0)")
    srd(8, P_WQ, 512 * 8192)
    A(f"global_load_dwordx4 v[8:11], v2, {sp(P_X)}\nglobal_load_dword v15, v14, {sp(P_X)}")
    for i in range(16):
        A(f"buffer_load_dwordx4 {v4(40+4*i)}, v1, s[8:11], s20 offen {wpol}")
        if i < 15: A("s_add_u32 s20, s20, 8192")
    A(f"s_load_dword s6, {WS}, 0")
    A("s_barrier")
    A(f"s_lshl_b32 s26, s26, 8\ns_lshl_b32 s21, s4, 11\ns_add_u32 s26, s26, s21\ns_add_u32 s26, s26, {WS_Q}")
    A("s_waitcnt vmcnt(16)")
    unpack(32, [8, 9, 10, 11], 4)
    A("v_add_f32 v4, v32, v33")
    for i in range(2, 8): A(f"v_add_f32 v4, v4, v{32+i}")
    wave_reduce("v_add_f32", 4, 5)
    A(f"v_mul_f32 v4, {f2x(1/512)}, v4")
    for i in range(8): A(f"v_sub_f32 v{32+i}, v{32+i}, v4")
    A("v_mul_f32 v6, v32, v32")
    for i in range(1, 8): A(f"v_fmac_f32 v6, v{32+i}, v{32+i}")
    wave_reduce("v_add_f32", 6, 5)
    A(f"v_mov_b32 v5, {f2x(1e-5)}\nv_fmac_f32 v5, {f2x(1/512)}, v6\nv_rsq_f32 v5, v5")
    unpack(8, [15], 1)
    A("v_sub_f32 v8, v8, v4\nv_sub_f32 v9, v9, v4\nv_mul_f32 v8, v8, v5\nv_mul_f32 v9, v9, v5")
    A(f"v_lshlrev_b32 v15, 1, v14\nv_add_u32 v15, {WS_H}, v15\nv_add_u32 v10, 4096, v15")
    mktag()
    A("s_waitcnt vmcnt(0)")
    stamp(1)
    prb("wq")
    gemv_perm(40, 104, 8)
    if hwait: A("v_mov_b32 v4, 0"); lspin("sh", L_FK, 1, 4, 5, 2)
    poll("ph", lambda: [A(f"global_load_dwordx2 {v2(16+2*k)}, v{15 if k<2 else 10}, {WS} offset:{2048*(k&1)} sc1") for k in range(4)],
         lambda: chk_tags([17, 19, 21, 23], 4), hsleep)
    stamp(2)
    prb("h")
    unpack(24, [16, 18, 20, 22], 4)
    A("v_pk_add_f32 v[24:25], v[24:25], v[26:27]\nv_pk_add_f32 v[28:29], v[28:29], v[30:31]")
    A("v_add_f32 v28, 1.0, v28\nv_add_f32 v29, 1.0, v29\nv_pk_fma_f32 v[24:25], v[8:9], v[28:29], v[24:25]")
    A("L_gx:")
    A("v_cvt_pk_bf16_f32 v24, v24, v25")
    A(f"ds_write_b32 v14, v24 offset:{L_X}")
    A("s_lshl_b32 s21, s3, 8\nv_lshl_add_u32 v15, v12, 5, s21")
    A(f"ds_read_b128 v[24:27], v15 offset:{L_X}\nds_read_b128 v[28:31], v15 offset:{L_X+16}")
    A("s_waitcnt lgkmcnt(0)")
    gemv_dot(104, list(range(24, 32)), 32)
    A("s_branch L_gfin")

    A("L_nq:")
    A("s_waitcnt lgkmcnt(0)")
    A(f"s_load_dword s6, {WS}, 0")
    mktag()
    A("s_barrier")
    A("L_role:")
    A("s_cmp_eq_u32 s64, 0\ns_cbranch_scc1 L_qpoll")
    A(f"s_cmp_eq_u32 s64, {E_B}\ns_cbranch_scc1 L_wb")
    if mlate:
        A("s_branch L_qpoll\nL_ml:")
        if mlate <= 8: lspin("sl", L_CV, mlate, 10, 11, 4)
        else: lspin("sl", L_FP, 1, 10, 11, 4)
        A("s_setprio 0\nv_lshrrev_b32 v12, 3, v0\nv_and_b32 v13, 7, v0")
    A("s_mov_b32 s21, 98304\nv_mul_lo_u32 v1, v12, s21\nv_lshl_add_u32 v1, v13, 4, v1")
    A(f"s_mul_i32 s20, s3, {128*6144}\ns_add_u32 s26, s70, 2\ns_lshl_b32 s26, s26, 10\ns_lshl_b32 s21, s69, 7\ns_add_u32 s26, s26, s21\ns_add_u32 s20, s20, s26")
    A("s_lshl_b32 s21, s3, 8\nv_lshl_add_u32 v14, v0, 2, s21")
    srd(8, P_WM, 512 * 6144)
    A(f"global_load_dword v15, v14, {sp(P_C)}")
    paced([f"buffer_load_dwordx4 {v4(40+4*i)}, v1, s[8:11], s20 offen {wpol}\ns_add_u32 s20, s20, 6144" for i in range(16)], 0)
    A(f"s_lshl_b32 s26, s26, 1\ns_add_u32 s26, s26, {WS_MOD-4096}")
    A("s_waitcnt vmcnt(0)")
    unpack(24, [15], 1); silu(24, 32, 2)
    gemv_perm(40, 104, 8)
    A("s_branch L_gx")
    def dma(loads, w):
        if skipw: return
        for i, l in enumerate(loads):
            if w and i >= w: A(f"s_waitcnt vmcnt({w-1})")
            A(f"s_add_u32 m0, s23, {1024*i}")
            A(l)
    def wo_issue(lo, hi):
        srd(8, P_WO, 4096 * 1024)
        A("v_lshrrev_b32 v1, 3, v0\nv_lshlrev_b32 v1, 10, v1\nv_and_b32 v4, 7, v0\nv_lshl_add_u32 v1, v4, 4, v1")
        A(f"s_lshl_b32 s20, s4, 19\ns_lshl_b32 s21, s3, 17\ns_add_u32 s20, s20, s21\ns_lshl_b32 s21, s65, 7\ns_add_u32 s20, s20, s21\ns_add_u32 s20, s20, {8192*lo}")
        A(f"s_lshl_b32 s23, s3, 14\ns_add_u32 s23, s23, {L_WT+1024*lo}")
        dma([f"buffer_load_dwordx4 v1, s[8:11], s20 offen {wpol} lds\ns_add_u32 s20, s20, 8192" for i in range(lo, hi)], pace)
    def wo_finish(w):
        A(f"s_lshl_b32 s23, s3, 14\ns_add_u32 s23, s23, {L_WT}")
        A("v_bfe_u32 v1, v0, 2, 2\nv_lshlrev_b32 v1, 10, v1\nv_lshrrev_b32 v4, 4, v0\nv_lshl_add_u32 v1, v4, 12, v1\nv_and_b32 v4, 3, v0\nv_lshl_add_u32 v1, v4, 3, v1\nv_add_u32 v1, s23, v1")
        A(f"s_waitcnt vmcnt({w})")
        k = 0
        for c in range(4):
            for nt in range(4):
                for hi in range(2):
                    A(f"ds_read_b64_tr_b16 {v2(104+16*c+4*nt+2*hi)}, v1 offset:{(c+4*hi)*128+nt*32}")
                    k += 1
                    if k >= 12 and k % 4 == 0: A("s_waitcnt lgkmcnt(8)")
        A("s_waitcnt lgkmcnt(0)")
    A("L_wb:")
    if xl:
        A("s_cmp_lg_u32 s3, 0\ns_cbranch_scc1 L_wb1")
        A(f"s_getreg_b32 s20, hwreg(HW_REG_XCC_ID, 0, 4)\nv_mov_b32 v4, s20\nv_mov_b32 v5, s6\ns_lshl_b32 s20, s4, 7\ns_lshl_b32 s21, s65, 3\ns_add_u32 s20, s20, s21\ns_add_u32 s20, s20, {WS_XB}\nv_mov_b32 v6, s20")
        A(f"s_mov_b64 exec, 1\nglobal_store_dwordx2 v6, v[4:5], {WS} sc1\ns_mov_b64 exec, -1\ns_nop 0")
        A("L_wb1:")
    if bp:
        A("s_cmp_eq_u32 s3, 1\ns_cbranch_scc1 L_qpoll\ns_cmp_eq_u32 s3, 2\ns_cbranch_scc1 L_qpoll")
        srd(8, P_WO, 4096 * 1024)
        A("v_lshrrev_b32 v1, 3, v0\nv_lshlrev_b32 v1, 10, v1\nv_and_b32 v4, 7, v0\nv_lshl_add_u32 v1, v4, 4, v1\ns_lshr_b32 s22, s3, 1")
        A(f"s_lshl_b32 s20, s4, 19\ns_lshl_b32 s21, s22, 18\ns_add_u32 s20, s20, s21\ns_lshl_b32 s21, s65, 7\ns_add_u32 s20, s20, s21")
        A(f"s_lshl_b32 s23, s22, 15\ns_add_u32 s23, s23, {L_WT}\ns_mov_b32 s22, 31")
        A(f"L_wbl:\ns_mov_b32 m0, s23\ns_waitcnt vmcnt({bp-1})\nbuffer_load_dwordx4 v1, s[8:11], s20 offen {wpol} lds\ns_add_u32 s20, s20, 8192\ns_add_u32 s23, s23, 1024\ns_sub_u32 s22, s22, 1\ns_cbranch_scc0 L_wbl")
        A(f"v_mov_b32 v4, 0\nv_mov_b32 v5, 1\ns_waitcnt vmcnt(0)\ns_mov_b64 exec, 1\nds_add_u32 v4, v5 offset:{L_CW}\ns_mov_b64 exec, -1")
    elif not bdefer: wo_issue(0, 16); wo_finish(0)
    elif bearly: wo_issue(0, bearly)
    A("L_qpoll:")
    if w1early:
        A(f"s_cmp_lg_u32 s66, {R_C}\ns_cbranch_scc1 L_qp1\ns_mov_b32 s26, s67")
        srd(8, P_W1, 512 * 3584)
        A("v_lshrrev_b32 v1, 2, v0\ns_mov_b32 s20, 3584\nv_mul_lo_u32 v1, v1, s20\nv_and_b32 v12, 3, v0\nv_lshl_add_u32 v1, v12, 4, v1")
        A(f"s_mul_i32 s20, s3, {128*3584}\ns_lshl_b32 s21, s26, 6\ns_add_u32 s20, s20, s21")
        A(f"s_lshl_b32 s23, s3, 14\ns_add_u32 s23, s23, {L_WT}")
        dma([f"buffer_load_dwordx4 v1, s[8:11], s20 offen {w1pol} lds\ns_add_u32 s20, s20, {16*3584}" for i in range(8)], 0)
        A("L_qp1:")
    if nosvc:
        A(f"v_mov_b32 v10, 0\nv_mov_b32 v5, 1\nds_write_b32 v10, v5 offset:{L_FQ}\ns_mov_b64 exec, 1\nds_add_u32 v10, v5 offset:{L_CS}")
        end_wave()
    if tw:
        A("s_cmp_lg_u32 s3, 3\ns_cbranch_scc1 L_tw")
        A(f"s_lshl_b32 s20, s4, 23\ns_mul_i32 s21, s5, {28*8192}\ns_add_u32 s21, s21, s20\ns_add_u32 s20, s20, {896*8192}")
        A(f"v_mov_b32 v4, s21\nv_add_u32 v5, {28*8192-128}, v4\nv_mov_b32 v6, s20\nv_mov_b32 v7, 0\ns_mov_b64 exec, 1")
        A(f"global_load_dword v24, v4, {sp(P_V)} nt\nglobal_load_dword v25, v5, {sp(P_V)} nt\nglobal_load_dword v26, v6, {sp(P_V)} nt\nglobal_load_dword v27, v7, {sp(P_W2)} nt")
        A("s_waitcnt vmcnt(0)\ns_mov_b64 exec, -1\nL_tw:")
    A("v_mov_b32 v10, 0\nv_mov_b32 v23, 0\nv_mov_b32 v35, 64")
    A("s_cmp_lg_u32 s3, 1\ns_cbranch_scc1 L_np")
    A(f"s_lshl_b32 s21, s4, 11\ns_add_u32 s21, s21, {WS_Q}\nv_add_u32 v14, s21, v2")
    lspin("sk", L_FK, 1, 10, 11, 16 if calm else 4)
    def ldq():
        if qloc:
            A(f"ds_read_b32 v11, v10 offset:{L_FK}\ns_waitcnt lgkmcnt(0)\nv_readfirstlane_b32 s21, v11\ns_lshr_b32 s21, s21, 1\ns_and_b32 s21, s21, s7")
            if slowfb: A(f"s_cmp_lt_u32 s7, {spin-slowfb}")
            A(f"s_cselect_b32 s21, 0, {WS_QL-WS_Q}\nv_add_u32 v15, s21, v14")
        for i in range(2): A(f"global_load_dwordx4 {v4(16+4*i)}, v{15 if qloc else 14}, {WS} offset:{1024*i} sc1")
    poll("pq", ldq, lambda: chk_tags([17, 19, 21, 23], 4), qsleep)
    A("v_mov_b32 v17, v18\nv_mov_b32 v21, v22\nv_lshlrev_b32 v14, 3, v0\nv_mov_b32 v5, 1")
    A(f"ds_write_b64 v14, v[16:17] offset:{L_Q}\nds_write_b64 v14, v[20:21] offset:{L_Q+512}")
    A(f"ds_write_b32 v10, v5 offset:{L_FQ}")
    stamp(4)
    A("L_np:")
    if xit == 'np': end_wave()
    A("s_cmp_eq_u32 s3, 2\ns_cbranch_scc1 L_post")
    if mlate: A(f"s_cmp_eq_u32 s64, {E_M}\ns_cbranch_scc1 L_ml")
    A("s_cmp_eq_u32 s66, 0\ns_cbranch_scc1 L_done")
    A(f"s_cmp_lg_u32 s66, {R_F}\ns_cbranch_scc1 L_ws")
    A("s_cmp_lg_u32 s3, 0\ns_cbranch_scc1 L_done")
    A("L_ws:")
    lspin("ss0", L_CS, 9, 10, 11, 32 if calm else 16)
    A("s_branch L_pre")
    A("L_done:")
    end_wave()
    A("L_post:")
    a_addr(37, 15)
    A("v_bfe_u32 v36, v0, 2, 2")
    for i in range(4): A(f"v_mov_b32 v{16+i}, -1")
    if xl:
        A(f"v_and_b32 v20, 7, v0\ns_lshl_b32 s20, s4, 7\ns_add_u32 s20, s20, {WS_XB}\nv_lshl_add_u32 v20, v20, 3, s20")
        lspin("sg", L_FK, 1, 10, 11, 32 if calm else 8)
        poll("px", lambda: A(f"global_load_dwordx2 v[22:23], v20, {WS} sc1"), lambda: chk_tags([23], 21), 8)
        A("s_getreg_b32 s20, hwreg(HW_REG_XCC_ID, 0, 4)\nv_cmp_ne_u32 vcc, s20, v22\ns_cbranch_vccz L_ng")
        A(f"v_mov_b32 v5, 1\nds_write_b32 v10, v5 offset:{L_MK}")
    A(f"global_store_dwordx4 v37, v[16:19], {WS} sc1")
    A("L_ng:")
    if loc: A(f"v_add_u32 v39, {WS_AL-WS_A}, v37\nglobal_store_dwordx4 v39, v[16:19], {WS}")
    A("v_lshlrev_b32 v38, 3, v36\nv_mov_b32 v5, 1")
    A(f"s_lshl_b32 s20, s4, 11\ns_lshl_b32 s21, s5, {6 if fl else 4}\ns_add_u32 s20, s20, s21\ns_add_u32 s20, s20, {WS_ST}\nv_lshl_add_u32 v36, v36, {4 if fl else 9}, s20")
    A(f"s_waitcnt vmcnt(0)\ns_mov_b64 exec, 1\nds_add_u32 v10, v5 offset:{L_CS}\ns_mov_b64 exec, -1")
    lspin("ss", L_CS, 9, 10, 11, 16 if calm else 8)
    stamp(1)
    for w in range(8): A(f"ds_read_b64 {v2(40+2*w)}, v38 offset:{L_ST+32*w}")
    A("s_waitcnt lgkmcnt(0)")
    A("v_max3_f32 v56, v40, v42, v44\nv_max3_f32 v56, v56, v46, v48\nv_max3_f32 v56, v56, v50, v52\nv_max_f32 v56, v56, v54")
    for w in range(8): A(f"v_sub_f32 v{28+w}, v{40+2*w}, v56")
    for w in range(8): A(f"v_exp_f32 v{28+w}, v{28+w}")
    A("v_mul_f32 v58, v28, v41")
    for w in range(1, 8): A(f"v_fmac_f32 v58, v{28+w}, v{41+2*w}")
    A("s_getreg_b32 s20, hwreg(HW_REG_XCC_ID, 0, 4)\ns_add_u32 s20, s20, s6\nv_mov_b32 v57, s6\nv_mov_b32 v59, s20")
    A("s_mov_b64 exec, 0x1111")
    A(f"global_store_dwordx4 v36, v[56:59], {WS} sc1")
    A("s_mov_b64 exec, -1")
    stamp(2)
    if mlate: A(f"s_cmp_eq_u32 s64, {E_M}\ns_cbranch_scc1 L_ml")
    A(f"s_cmp_eq_u32 s66, 0\ns_cbranch_scc1 L_done\ns_cmp_eq_u32 s66, {R_F}\ns_cbranch_scc1 L_done")
    A("L_pre:")
    if xit == 'pre': end_wave()
    A(f"s_cmp_eq_u32 s66, {R_F}\ns_cbranch_scc1 L_tf")
    A(f"s_cmp_eq_u32 s66, {R_C}\ns_cbranch_scc1 L_tc")
    if bp: lspin("sz", L_CW, 2, 10, 11, 16); wo_finish(0)
    A(f"s_lshl_b32 s20, s4, 11\ns_lshl_b32 s21, s3, {4 if fl else 9}\ns_add_u32 s20, s20, s21\ns_add_u32 s20, s20, {WS_ST}")
    A(f"v_and_b32 v4, 31, v0\nv_lshl_add_u32 v5, v4, {6 if fl else 4}, s20")
    lspin("sb", L_CV, strig, 10, 11, 12 if calm else 4)
    poll("ps", lambda: A(f"global_load_dwordx4 v[40:43], v5, {WS} sc1"), lambda: A("v_subrev_u32 v43, s6, v43\nv_xor_b32 v6, s6, v41\nv_lshrrev_b32 v7, 4, v43\nv_or_b32 v6, v6, v7\nv_cmp_ne_u32 vcc, 0, v6"), 8)
    A("s_getreg_b32 s20, hwreg(HW_REG_XCC_ID, 0, 4)\nv_cmp_eq_u32 vcc, s20, v43")
    A("s_and_b32 s28, vcc_lo, 0xffff\ns_mul_i32 s28, s28, 0x10001\ns_mov_b32 s29, s28\ns_lshr_b32 s30, vcc_lo, 16\ns_mul_i32 s30, s30, 0x10001\ns_mov_b32 s31, s30")
    A("v_mov_b32 v44, v40")
    inrow("v_max_f32", 44, ["row_ror:8", "row_ror:4", "row_ror:2", "row_ror:1"]); xrow("v_max_f32", 44, 45, 16)
    A("v_sub_f32 v40, v40, v44\nv_exp_f32 v40, v40\nv_mul_f32 v44, v40, v42")
    inrow("v_add_f32", 44, ["row_ror:8", "row_ror:4", "row_ror:2", "row_ror:1"]); xrow("v_add_f32", 44, 45, 16)
    A("v_rcp_f32 v44, v44\nv_mul_f32 v40, v40, v44")
    A("s_lshl_b32 s20, s3, 8\nv_lshl_add_u32 v4, v4, 2, s20\nv_lshrrev_b32 v5, 4, v0\nv_lshl_add_u32 v5, v5, 4, s20")
    A(f"ds_write_b32 v4, v40 offset:{L_X}\nds_read_b128 v[12:15], v5 offset:{L_X}\nds_read_b128 v[16:19], v5 offset:{L_X+64}")
    A("v_and_b32 v1, 15, v0\nv_lshrrev_b32 v4, 4, v0\nv_lshlrev_b32 v24, 4, v1\nv_lshl_add_u32 v22, v4, 14, v24\nv_lshlrev_b32 v1, %d, v1\nv_lshl_add_u32 v1, v4, 4, v1" % (7 if fl else 6))
    A(f"s_lshl_b32 s20, s4, 15\ns_lshl_b32 s21, s3, 13\ns_add_u32 s20, s20, s21\ns_add_u32 s20, s20, {WS_A}\nv_add_u32 v1, s20, v{2 if lin else 1}")
    A(f"v_add_u32 v5, {(WS_AL-WS_A) if loc else 0}, v1\nv_cndmask_b32 v6, v1, v5, s[28:29]\nv_cndmask_b32 v7, v1, v5, s[30:31]\nv_add_u32 v8, 4096, v6\nv_add_u32 v9, 4096, v7")
    A("s_lshl_b32 s20, s3, 8\nv_lshl_add_u32 v21, v0, 2, s20")
    A(f"s_lshl_b32 s20, s4, 11\ns_lshl_b32 s21, s67, 8\ns_add_u32 s20, s20, s21\ns_add_u32 s20, s20, {WS_B}\ns_lshl_b32 s21, s3, 16\ns_add_u32 s20, s20, s21\nv_add_u32 v22, s20, v22")
    A("s_waitcnt lgkmcnt(0)")
    stamp(5)
    AR = lambda c, s_: 40 + 16 * s_ + 4 * c
    D = lambda s_, nt: 72 + 16 * s_ + 4 * nt
    def lda(s_):
        for c in range(4): A(f"global_load_dwordx4 {v4(AR(c,s_))}, v{6+s_+(0 if c<2 else 2)}, {WS} offset:{(64*(c&1)+2048*s_) if fl else (2048*(c&1)+1024*s_)} {lpol}")
    def mm(s_, other_done):
        wr = 12 + 4 * s_
        def fin(nt):
            d = D(s_, nt)
            r = [f"v_pk_mul_f32 {v2(d)}, {v2(d)}, {v2(wr)}", f"v_pk_fma_f32 {v2(d)}, {v2(d+2)}, {v2(wr+2)}, {v2(d)}", f"v_add_f32 v{d}, v{d}, v{d+1}"]
            if other_done: r.append(f"v_add_f32 v{D(0,nt)}, v{D(0,nt)}, v{D(1,nt)}")
            return r
        for c in range(4):
            for nt in (0, 2, 1, 3):
                d = D(s_, nt)
                A(f"v_mfma_f32_16x16x32_bf16 {v4(d)}, {v4(AR(c,s_))}, {v4(104+16*c+4*nt)}, {'0' if c==0 else v4(d)}")
        for grp in zip(fin(0), fin(2), fin(1), fin(3)):
            for l in grp: A(l)
        if other_done: A("v_permlane32_swap_b32 v72, v80\nv_add_f32 v72, v72, v80")
    if dry:
        A("s_mov_b64 s[80:81], 0\ns_mov_b64 s[32:33], 0\ns_mov_b64 s[34:35], 0\ns_mov_b32 s84, 0\ns_mov_b64 exec, 0\ns_branch L_pb0")
        A("L_bdr:\ns_cmp_eq_u32 s84, 0\ns_mov_b32 s84, 1\ns_cbranch_scc1 L_pb1\ns_mov_b64 exec, -1")
    A("s_mov_b64 s[80:81], -1")
    if bdefer:
        if bdefer <= 8: lspin("sd", L_CV, bdefer, 10, 11, 1)
        else: lspin("sd", L_FP, 1, 10, 11, 1)
        A("s_setprio 1"); wo_issue(bearly, 16); lda(0); lda(1); A("s_setprio 3"); wo_finish(8)
        stamp(4)
        A(f"s_mov_b32 s7, {spin}\ns_branch L_pa2")
    if atrig: lspin("sa", L_FO + (4 if atrig > 4 else 0), atrig - 4 if atrig > 4 else atrig, 10, 11, 2)
    A(f"s_mov_b32 s7, {spin}\ns_mov_b64 s[32:33], -1\ns_mov_b64 s[34:35], -1")
    A("L_pa:")
    A("s_mov_b64 exec, s[32:33]"); lda(0)
    A("s_mov_b64 exec, s[34:35]"); lda(1)
    A("s_mov_b64 exec, -1")
    A("L_pa2:")
    A("s_waitcnt vmcnt(4)")
    chk_sent(range(40, 56), 23); A("s_mov_b64 s[32:33], vcc")
    A("s_waitcnt vmcnt(0)")
    chk_sent(range(56, 72), 23); A("s_mov_b64 s[34:35], vcc")
    A("s_cbranch_vccz L_pa1\ns_cmp_eq_u64 s[32:33], 0\ns_cbranch_scc1 L_pa0")
    if tsleep: A(f"s_sleep {tsleep}")
    if bhold:
        A("s_mov_b32 s85, s7"); lspin("sy", L_FO + 4 * (bhold - 1), 1, 10, 11, 2); A("s_mov_b32 s7, s85")
    A("s_sub_u32 s7, s7, 1\ns_cbranch_scc0 L_pa")
    for first in (0, 1):
        sec = 1 - first
        A(f"L_pa{first}:")
        mk = sp(32 + 2 * sec)
        A(f"s_cmp_eq_u64 {mk}, 0\ns_cbranch_scc1 L_pb{first}")
        A(f"s_mov_b64 exec, {mk}"); lda(sec); A("s_mov_b64 exec, -1")
        A(f"L_pb{first}:")
        mm(first, False)
        A(f"s_mov_b64 exec, {mk}\ns_cbranch_execz L_pd{first}")
        for _ in range(pd - 1): lda(sec)
        A(f"L_pc{first}:")
        A(f"s_waitcnt vmcnt({4*(pd-1)})")
        chk_sent(range(40 + 16 * sec, 56 + 16 * sec), 23)
        A(f"s_cbranch_vccz L_pd{first}\ns_mov_b64 exec, vcc")
        lda(sec)
        A(f"s_sub_u32 s7, s7, 1\ns_cbranch_scc0 L_pc{first}\ns_waitcnt vmcnt(0)")
        A(f"L_pd{first}:")
        A("s_mov_b64 exec, s[80:81]")
        stamp(6)
        mm(sec, True)
        if first == 0: A("s_branch L_pe")
    A("L_pe:\ns_nop 0")
    A("v_permlane32_swap_b32 v76, v84\nv_add_f32 v76, v76, v84")
    A("v_permlane16_swap_b32 v72, v76\nv_add_f32 v72, v72, v76")
    A(f"ds_write_b32 v21, v72 offset:{L_RED}")
    A("s_waitcnt lgkmcnt(0)")
    if dry: A("s_cbranch_execz L_bnb")
    A("s_barrier")
    A(f"s_cmp_ge_u32 s3, {2 if R == 8 else 1}\ns_cbranch_scc1 L_done")
    A("L_bnb:")
    for w in range(4): A(f"ds_read_b128 {v4(88+4*w)}, v24 offset:{L_RED+256*w}")
    assert R in (4, 8)
    A("s_waitcnt lgkmcnt(2)\nv_pk_add_f32 v[88:89], v[88:89], v[92:93]\nv_pk_add_f32 v[90:91], v[90:91], v[94:95]")
    A("s_waitcnt lgkmcnt(0)\nv_pk_add_f32 v[96:97], v[96:97], v[100:101]\nv_pk_add_f32 v[98:99], v[98:99], v[102:103]")
    A("v_pk_add_f32 v[88:89], v[88:89], v[96:97]\nv_pk_add_f32 v[90:91], v[90:91], v[98:99]")
    if dry: A("s_cbranch_execz L_bdr")
    A(f"global_store_dwordx4 v22, v[88:91], {WS} sc1")
    stamp(7)
    end_wave()
    A("L_tc:")
    A("s_mov_b32 s26, s67")
    srd(8, P_W1, 512 * 3584); srd(12, P_W2, 1792 * 1024)
    A("v_lshrrev_b32 v23, 4, v0\nv_lshlrev_b32 v23, 4, v23")
    A("v_lshrrev_b32 v1, 2, v0\ns_mov_b32 s20, 3584\nv_mul_lo_u32 v1, v1, s20\nv_and_b32 v12, 3, v0\nv_lshl_add_u32 v1, v12, 4, v1")
    A(f"s_mul_i32 s20, s3, {128*3584}\ns_lshl_b32 s21, s26, 6\ns_add_u32 s20, s20, s21")
    A("v_lshlrev_b32 v18, 6, v23\nv_and_b32 v13, 15, v0\nv_lshl_add_u32 v18, v13, 4, v18")
    A("s_lshl_b32 s27, s26, 15\ns_lshl_b32 s21, s3, 8\ns_add_u32 s27, s27, s21")
    A(f"s_lshl_b32 s23, s3, 14\ns_add_u32 s23, s23, {L_WT}")
    if not w1early: dma([f"buffer_load_dwordx4 v1, s[8:11], s20 offen {w1pol} lds\ns_add_u32 s20, s20, {16*3584}" for i in range(8)], 0)
    def w2load():
        A("s_add_u32 s23, s23, 8192")
        dma([f"buffer_load_dwordx4 v18, s[12:15], s27 offen {wpol} lds\ns_add_u32 s27, s27, 4096" for i in range(8)], 0)
    A("v_lshrrev_b32 v12, 4, v0\nv_bfe_u32 v13, v0, 2, 2\nv_and_b32 v14, 3, v0\nv_lshl_add_u32 v14, v14, 3, s23")
    A("v_lshl_add_u32 v1, v12, 9, v14\nv_lshl_add_u32 v1, v13, 6, v1")
    A("v_lshl_add_u32 v19, v12, 10, v14\nv_lshl_add_u32 v19, v13, 8, v19")
    if not w2late: w2load()
    A("v_and_b32 v20, 31, v0\nv_lshlrev_b32 v20, 3, v20\nv_lshrrev_b32 v21, 5, v0\nv_lshl_add_u32 v20, v21, 2, v20")
    A("s_lshl_b32 s20, s3, 8\nv_add_u32 v20, s20, v20")
    A(f"global_load_dword v22, v20, {sp(P_X)}\nglobal_load_dwordx4 v[28:31], v2, {sp(P_X)}")
    A(f"v_lshlrev_b32 v21, 1, v20\nv_add_u32 v21, {WS_MOD}, v21\nv_add_u32 v24, 4096, v21")
    A("s_waitcnt vmcnt(0)")
    for c in range(4):
        for mt in range(2):
            for hi in range(2):
                A(f"ds_read_b64_tr_b16 {v2(104+8*c+4*mt+2*hi)}, v1 offset:{(32*c+4*hi)*64+mt*32}")
        if c & 1: A("s_waitcnt lgkmcnt(0)")
    unpack(4, [22], 1)
    unpack(48, [28, 29, 30, 31], 4)
    A("v_pk_add_f32 v[48:49], v[48:49], v[50:51]\nv_pk_add_f32 v[52:53], v[52:53], v[54:55]\nv_pk_add_f32 v[48:49], v[48:49], v[52:53]\nv_add_f32 v48, v48, v49")
    wave_reduce("v_add_f32", 48, 49)
    A(f"v_mul_f32 v48, {f2x(1/512)}, v48\nv_sub_f32 v4, v4, v48\nv_sub_f32 v5, v5, v48")
    def w2tr():
        for tau in range(8):
            for hi in range(2):
                A(f"ds_read_b64_tr_b16 {v2(136+4*tau+2*hi)}, v19 offset:{8192+hi*4096+tau*32}")
            if tau % 4 == 3: A("s_waitcnt lgkmcnt(0)")
    if mlate:
        lspin("sv0", L_CV, 4, 10, 11, 16); lspin("sv", L_FP, 1, 10, 11, 2); w2load(); A("s_waitcnt vmcnt(0)"); w2tr(); stamp(4)
    poll("pm", lambda: A(f"global_load_dwordx2 v[40:41], v21, {WS} sc1\nglobal_load_dwordx2 v[42:43], v21, {WS} offset:2048 sc1\nglobal_load_dwordx2 v[44:45], v24, {WS} sc1"),
         lambda: chk_tags([41, 43, 45], 46), 2 if mlate else 16)
    unpack(6, [40, 44], 2)
    A("v_add_f32 v8, 1.0, v8\nv_add_f32 v9, 1.0, v9\nv_cvt_pk_bf16_f32 v44, v8, v9")
    unpack(8, [44], 1)
    A(f"ds_write_b32 v20, v44 offset:{L_U}\nds_write_b32 v20, v42 offset:{L_U+1024}")
    A("v_add_u32 v21, s20, v23\nv_and_b32 v22, 1, v0\nv_lshl_add_u32 v22, v22, 10, v21")
    for c in range(4): A(f"ds_read_b128 {v4(48+4*c)}, v22 offset:{L_U+64*c}")
    A("s_waitcnt lgkmcnt(0)")
    for c in range(4):
        for mt in range(2):
            A(f"v_mfma_f32_16x16x32_bf16 {v4(24+4*mt)}, {v4(104+8*c+4*mt)}, {v4(48+4*c)}, {'0' if c==0 else v4(24+4*mt)}")
    A("s_mov_b32 exec_lo, 0x00030003\ns_mov_b32 exec_hi, 0x00030003")
    A(f"ds_write_b128 v22, v[24:27] offset:{L_GS}\nds_write_b128 v22, v[28:31] offset:{L_GS+64}")
    A("s_mov_b64 exec, 1\nv_mov_b32 v33, 1")
    A(f"ds_add_u32 v10, v33 offset:{L_CP}")
    A("s_mov_b64 exec, -1")
    A("v_and_b32 v1, 31, v0\nv_lshlrev_b32 v1, 4, v1\nv_lshrrev_b32 v16, 5, v0\nv_lshl_add_u32 v1, v16, 11, v1")
    A(("s_lshr_b32 s21, s4, 1" if rx else f"s_and_b32 s21, {'s4' if R == 8 else 's26'}, {R-1}") + f"\ns_lshl_b32 s21, s21, 14\ns_lshl_b32 s20, s3, 9\ns_add_u32 s20, s20, s21\ns_add_u32 s20, s20, {WS_B}\nv_add_u32 v1, s20, v1")
    A("v_add_u32 v12, 4096, v1\nv_add_u32 v13, 8192, v1\nv_add_u32 v14, 12288, v1")
    A(f"s_lshl_b32 s20, s3, 8\nv_lshl_add_u32 v22, v16, 2, s20")
    A("v_and_b32 v33, 3, v0\nv_lshlrev_b32 v33, 8, v33\nv_bfe_u32 v32, v0, 3, 1\nv_lshl_add_u32 v32, v32, 6, v33\nv_add_u32 v32, v32, v23")
    A(f"s_mov_b32 s22, {f2x(1/512)}\nv_mov_b32 v34, {f2x(1e-5)}")
    lspin("sp", L_CP, 4, 10, 11, 0 if mlate else 4, lambda: A(f"ds_read_b128 v[24:27], v32 offset:{L_GS}\nds_read_b128 v[28:31], v32 offset:{L_GS+1024}"))
    for qp in ("[1,0,3,2]", "[2,3,0,1]"):
        for i in range(8): A(f"v_add_f32_dpp v{24+i}, v{24+i}, v{24+i} quad_perm:{qp} {DPPF}")
    if dry:
        A("s_mov_b64 s[80:81], 0\ns_mov_b64 s[82:83], 0\ns_mov_b64 exec, 0\ns_branch L_pbd\nL_cdr:\ns_mov_b64 exec, -1")
    A("s_mov_b64 s[80:81], -1\ns_mov_b32 s82, 0x00010001\ns_mov_b32 s83, 0x00010001")
    if not mlate:
        stamp(4)
        lspin("sv0", L_CV, 4, 10, 11, 16); lspin("sv", L_FP, 1, 10, 11, 2)
        if w2late: w2load()
    cs = 13 if cpad else 12
    A(f"s_lshl_b32 s20, s3, {cs+3}\ns_lshl_b32 s21, s26, {cs-6}\ns_add_u32 s20, s20, s21\ns_add_u32 s20, s20, {WS_C}")
    A(f"v_bfe_u32 v35, v0, 2, 3\nv_lshlrev_b32 v35, {cs}, v35\nv_and_b32 v36, 3, v0\nv_lshl_add_u32 v35, v36, 4, v35\nv_add_u32 v35, s20, v35")
    if not mlate: A("s_waitcnt vmcnt(0)"); w2tr()
    stamp(5)
    G = 40; Hh = 88
    def gather4(name, base, addr, tmp, sleep):
        if g4:
            A(f"s_mov_b32 s7, {spin}")
            for i in range(4): A(f"global_load_dwordx4 {v4(base+4*i)}, {addr(i)} sc1\ns_mov_b64 {sp(28+2*i)}, -1")
            A(f"L_{name}t:\ns_waitcnt vmcnt(0)\ns_mov_b32 s21, 0")
            for i in range(4):
                A(f"s_mov_b64 exec, {sp(28+2*i)}\ns_cbranch_execz L_{name}s{i}")
                A(f"v_max3_u32 v{tmp}, v{base+4*i}, v{base+4*i+1}, v{base+4*i+2}\nv_max_u32 v{tmp}, v{tmp}, v{base+4*i+3}\nv_cmp_eq_u32 vcc, -1, v{tmp}")
                A(f"s_mov_b64 {sp(28+2*i)}, vcc\ns_cbranch_vccz L_{name}s{i}\ns_mov_b64 exec, vcc\nglobal_load_dwordx4 {v4(base+4*i)}, {addr(i)} sc1\ns_mov_b32 s21, 1")
                A(f"L_{name}s{i}:")
            A(f"s_mov_b64 exec, -1\ns_cmp_eq_u32 s21, 0\ns_cbranch_scc1 L_{name}d\ns_sub_u32 s7, s7, 1\ns_cbranch_scc0 L_{name}t\ns_waitcnt vmcnt(0)")
            A(f"L_{name}d:")
            return
        A(f"s_mov_b32 s7, {spin}")
        for _ in range(pd):
            for i in range(4): A(f"global_load_dwordx4 {v4(base+4*i)}, {addr(i)} sc1")
        A(f"L_{name}t:")
        A(f"s_waitcnt vmcnt({4*(pd-1)})")
        for i in range(4): A(f"v_max3_u32 v{tmp+i}, v{base+4*i}, v{base+4*i+1}, v{base+4*i+2}")
        for i in range(4): A(f"v_max_u32 v{tmp+i}, v{tmp+i}, v{base+4*i+3}")
        A(f"v_max3_u32 v{tmp+4}, v{tmp}, v{tmp+1}, v{tmp+2}\nv_max_u32 v{tmp+4}, v{tmp+4}, v{tmp+3}\nv_cmp_eq_u32 vcc, -1, v{tmp+4}\ns_cbranch_vccz L_{name}d")
        for i in range(4): A(f"v_cmp_eq_u32 {sp(28+2*i)}, -1, v{tmp+i}")
        if sleep: A(f"s_sleep {sleep}")
        for i in range(4):
            A(f"s_or_b64 exec, {sp(28+2*i)}, 1\nglobal_load_dwordx4 {v4(base+4*i)}, {addr(i)} sc1")
        A(f"s_mov_b64 exec, -1\ns_sub_u32 s7, s7, 1\ns_cbranch_scc0 L_{name}t")
        A(f"L_{name}d:")
    gather4("pb", Hh, lambda i: f"v{1 if i==0 else 11+i}, {WS}", 56, csleep)
    stamp(6)
    A(f"v_pk_add_f32 {v2(G)}, {v2(Hh)}, {v2(Hh+4)}\nv_pk_add_f32 {v2(G+2)}, {v2(Hh+2)}, {v2(Hh+6)}\nv_pk_add_f32 {v2(G+8)}, {v2(Hh+8)}, {v2(Hh+12)}\nv_pk_add_f32 {v2(G+10)}, {v2(Hh+10)}, {v2(Hh+14)}")
    A(f"v_pk_add_f32 {v2(G)}, {v2(G)}, {v2(G+8)}\nv_pk_add_f32 {v2(G+2)}, {v2(G+2)}, {v2(G+10)}")
    A(f"v_permlane32_swap_b32 v{G}, v{G+2}\nv_permlane32_swap_b32 v{G+1}, v{G+3}")
    A(f"v_pk_add_f32 {v2(G)}, {v2(G)}, {v2(G+2)}")
    A(f"v_pk_fma_f32 v[4:5], {v2(G)}, v[6:7], v[4:5]")
    A("v_pk_mul_f32 v[6:7], v[4:5], v[8:9]\nv_cvt_pk_bf16_f32 v6, v6, v7")
    A(f"ds_write_b32 v20, v6 offset:{L_U}")
    for c in range(4): A(f"ds_read_b128 {v4(44+4*c)}, v21 offset:{L_U+64*c}")
    A("v_add_f32 v16, v4, v5\nv_mul_f32 v17, v4, v4\nv_fmac_f32 v17, v5, v5")
    A("v_permlane32_swap_b32 v16, v17\nv_add_f32 v16, v16, v17")
    xrow("v_add_f32", 16, 17, 16)
    steps = ["row_ror:8", "row_ror:4", "row_ror:2", "row_ror:1"]
    for c in range(4):
        A(f"s_waitcnt lgkmcnt({3-c})")
        for mt in range(2):
            A(f"v_mfma_f32_16x16x32_bf16 {v4(60+4*mt)}, {v4(104+8*c+4*mt)}, {v4(44+4*c)}, {'0' if c==0 else v4(60+4*mt)}")
        inrow("v_add_f32", 16, [steps[c]])
    A("s_mov_b64 exec, s[82:83]")
    A(f"ds_write_b32 v22, v16 offset:{L_RED+128}")
    A(f"ds_write_b128 v21, v[60:63] offset:{L_RED}\nds_write_b128 v21, v[64:67] offset:{L_RED+64}")
    A("s_mov_b64 exec, s[80:81]")
    A("s_waitcnt lgkmcnt(0)")
    if dry: A("s_cbranch_execz L_cnb")
    A("s_barrier\nL_cnb:")
    A(f"ds_read_b64 v[12:13], v33 offset:{L_RED+128}\nds_read_b128 v[40:43], v32 offset:{L_RED}")
    A("s_waitcnt lgkmcnt(0)")
    for qp in ("[1,0,3,2]", "[2,3,0,1]"):
        for r in (12, 13, 40, 41, 42, 43): A(f"v_add_f32_dpp v{r}, v{r}, v{r} quad_perm:{qp} {DPPF}")
    A("v_mul_f32 v12, s22, v12\nv_fma_f32 v14, v13, s22, v34\nv_fma_f32 v14, -v12, v12, v14\nv_max_f32 v14, v14, v34\nv_rsq_f32 v14, v14")
    for q in range(2): A(f"v_pk_fma_f32 {v2(40+2*q)}, {v2(24+2*q)}, v[12:13], {v2(40+2*q)} op_sel_hi:[1,0,1] neg_lo:[0,1,0] neg_hi:[0,1,0]")
    for q in range(2): A(f"v_pk_fma_f32 {v2(40+2*q)}, {v2(40+2*q)}, v[14:15], {v2(28+2*q)} op_sel_hi:[1,0,1]")
    for q in range(2): A(f"v_cvt_pk_bf16_f32 v{48+q}, v{40+2*q}, v{41+2*q}")
    for q in range(2): A(f"v_pk_max_i16 v{48+q}, v{48+q}, 0")
    for q in range(2): A(f"v_mov_b32_dpp v{50+q}, v{48+q} row_shl:8 {DPPF} bound_ctrl:0")
    for tau in (0, 2, 4, 6, 1, 3, 5, 7): A(f"v_mfma_f32_16x16x32_bf16 {v4(56+4*tau)}, v[48:51], {v4(136+4*tau)}, 0")
    for j in (1, 2, 3): A(f"v_mov_b32 v{56+j}, v{56+8*j}")
    for j in range(4): A(f"v_mov_b32_dpp v{56+j}, v{60+8*j} quad_perm:[0,1,2,3] row_mask:0x2 bank_mask:0xf")
    if dry: A("s_cbranch_execz L_cdr")
    A("s_mov_b32 exec_hi, 0")
    A(f"global_store_dwordx4 v35, v[56:59], {WS} sc1")
    stamp(7)
    end_wave()
    A("L_tf:")
    prb("cs")
    A("s_mov_b32 s26, s67\ns_lshr_b32 s20, s26, 3\ns_lshl_b32 s20, s20, 7\ns_and_b32 s21, s26, 7\ns_lshl_b32 s21, s21, 2\ns_add_u32 s20, s20, s21")
    A("v_and_b32 v4, 3, v0\nv_lshrrev_b32 v5, 4, v0\nv_lshl_add_u32 v4, v5, 5, v4\nv_add_u32 v4, s20, v4\nv_lshlrev_b32 v5, 1, v4")
    A(f"global_load_ushort v8, v5, {sp(P_X)}")
    if tw: A(f"global_load_ushort v33, v5, {sp(P_OUT)}")
    A(f"v_lshrrev_b32 v6, 1, v4\nv_lshlrev_b32 v6, 3, v6\nv_add_u32 v6, {WS_MOD}, v6\nv_add_u32 v7, 6144, v6")
    if mlate: lspin("sf0", L_FP, 1, 10, 11, 16)
    poll("pg", lambda: A(f"global_load_dwordx2 v[12:13], v6, {WS} sc1\nglobal_load_dwordx2 v[14:15], v7, {WS} sc1"),
         lambda: chk_tags([13, 15], 16), 4 if mlate else 16)
    A("v_lshlrev_b32 v8, 16, v8")
    A("v_and_b32 v16, 1, v4\nv_cmp_eq_u32 vcc, 0, v16")
    A("v_lshlrev_b32 v16, 16, v12\nv_and_b32 v17, 0xffff0000, v12\nv_cndmask_b32 v9, v17, v16, vcc")
    A("v_lshlrev_b32 v16, 16, v14\nv_and_b32 v17, 0xffff0000, v14\nv_cndmask_b32 v12, v17, v16, vcc")
    A(f"v_bfe_u32 v6, v0, 2, 2\nv_lshlrev_b32 v6, 12, v6\nv_lshl_add_u32 v6, v4, 2, v6\nv_add_u32 v6, {WS_B}, v6")
    if R == 8: A("s_lshl_b32 s20, s4, 14\nv_add_u32 v6, s20, v6")
    if rx: A("s_lshr_b32 s20, s4, 1\ns_lshl_b32 s20, s20, 14\nv_add_u32 v6, s20, v6")
    if cpad: A(f"s_lshl_b32 s20, s26, 13\ns_add_u32 s20, s20, {WS_C}\nv_lshrrev_b32 v7, 2, v0\nv_lshl_add_u32 v7, v7, 6, v2\nv_add_u32 v7, s20, v7\nv_add_u32 v32, 4096, v7")
    else: A(f"s_lshl_b32 s20, s26, 12\ns_add_u32 s20, s20, {WS_C}\nv_add_u32 v7, s20, v2")
    if dry: A("s_mov_b64 exec, 0\ns_branch L_fd\nL_fdr:\ns_mov_b64 exec, -1")
    lspin("sf", L_FP, 1, 10, 11, 16 if calm else 4)
    prb("fp")
    poll("pxb", lambda: A(f"global_load_dword v13, v6, {WS} sc1\nglobal_load_dword v14, v6, {WS} offset:2048 sc1"), lambda: chk_sent([13, 14], 15), xsleep)
    A("v_add_f32 v13, v13, v14")
    inrow("v_add_f32", 13, ["row_ror:8", "row_ror:4"])
    A("v_fma_f32 v8, v9, v13, v8")
    prb("b")
    stamp(6)
    if fdelay: A(f"s_sleep {fdelay}")
    gather4("pc", 40, lambda i: f"v{(7 if i<2 else 32) if cpad else 7}, {WS} offset:{2048*(i&1) if cpad else 1024*i}", 56, fsleep)
    A("L_fd:")
    stamp(7)
    A("v_pk_add_f32 v[16:17], v[40:41], v[44:45]\nv_pk_add_f32 v[18:19], v[42:43], v[46:47]\nv_pk_add_f32 v[24:25], v[48:49], v[52:53]\nv_pk_add_f32 v[26:27], v[50:51], v[54:55]")
    A("v_pk_add_f32 v[16:17], v[16:17], v[24:25]\nv_pk_add_f32 v[18:19], v[18:19], v[26:27]")
    A("v_permlane32_swap_b32 v16, v18\nv_permlane32_swap_b32 v17, v19\nv_pk_add_f32 v[16:17], v[16:17], v[18:19]")
    A("v_permlane16_swap_b32 v16, v17\nv_add_f32 v16, v16, v17")
    inrow("v_add_f32", 16, ["row_ror:8", "row_ror:4"])
    A("v_fma_f32 v16, v12, v16, v8\nv_cvt_pk_bf16_f32 v16, v16, v16")
    if dry: A("s_cbranch_execz L_fdr")
    A("s_mov_b32 exec_lo, 0x000f000f\ns_mov_b32 exec_hi, 0x000f000f")
    A(f"global_store_short v5, v16, {sp(P_OUT)}")
    A("s_cmp_lg_u32 s26, 0\ns_cbranch_scc1 L_tfe")
    A("s_mov_b64 exec, 1\nv_mov_b32 v18, s6")
    A(f"global_store_dword v10, v18, {WS}")
    if fixend:
        prb("end")
        A(f"L_fx:\ns_memrealtime s[98:99]\ns_waitcnt lgkmcnt(0)\ns_sub_u32 s98, s98, {'s94' if probe else 's96'}\ns_cmp_lt_u32 s98, {fixend}\ns_cbranch_scc1 L_fx")
    A("L_tfe:")
    stamp(4)
    end_wave()
    if stamps:
        A("L_stampout:")
        if st0: A("s_waitcnt lgkmcnt(0)\nv_writelane_b32 v3, s90, 0\ns_cmp_lt_u32 s3, 4\ns_cbranch_scc1 L_so9\nv_writelane_b32 v3, s92, 1\nv_writelane_b32 v3, s94, 2\nL_so9:")
        if stamps == 2:
            A("s_cmp_lg_u32 s2, 32\ns_cbranch_scc1 L_exit\ns_and_b32 s20, s3, 11\ns_cbranch_scc1 L_exit")
            A("s_mov_b64 exec, 0xff\ns_lshl_b32 s20, s3, 3\nv_lshl_add_u32 v1, v0, 2, s20")
            A(f"global_store_dword v1, v3, {sp(P_DBG)}\ns_endpgm")
        A("s_mov_b64 exec, 0xff")
        A("s_mul_i32 s20, s2, 12\ns_add_u32 s20, s20, s3\ns_lshl_b32 s20, s20, 5")
        A(f"s_add_u32 s20, s20, {WS_STAMP}")
        A("v_lshl_add_u32 v1, v0, 2, s20")
        A(f"global_store_dword v1, v3, {WS}")
    A("L_exit:\ns_endpgm")
    A(".p2align 6\n.type L_tab,@object\nL_tab:")
    for wg in range(256):
        r = roles[(xp[wg & 7] if xp else wg & 7), wg >> 3]; skip = T - r['n']
        assert skip < 8, (wg, r)
        A(f".long {(r['pre'] - skip + 16) | skip << 12 | r['e'] << 15 | r['ei'] << 18 | r['l'] << 23 | r['li'] << 25:#x}")
    A("L_endcode:")
    A('.section .rodata,"a"\n.p2align 6')
    A(f".amdhsa_kernel {NAME}")
    for l in ["next_free_vgpr 168", "next_free_sgpr 102", "accum_offset 168", "group_segment_fixed_size 0", "kernarg_size 104",
              "user_sgpr_count 2", "user_sgpr_kernarg_segment_ptr 1", "system_sgpr_workgroup_id_x 1"]:
        A("  .amdhsa_" + l)
    A(".end_amdhsa_kernel")
    return A.finish()

if __name__ == "__main__":
    out = sys.argv[1]; kw = {}
    for a in sys.argv[2:]:
        k, v = a.split("=", 1)
        try: v = ast.literal_eval(v)
        except Exception: pass
        kw[k] = v
    open(out, "w").write(gen(**kw))
    import json
    roles, T = make_plan(kw.get('plan', 'A'), **{k: v for k, v in kw.items() if k in ('cH','cQ','cM','cB','cC','T','c3','Fx')})
    json.dump([[roles[wg & 7, wg >> 3][k] for k in ('e', 'l', 'n')] for wg in range(256)], open(out + ".roles", "w"))
```

```python
import sys, struct, ast
from asmlib import Asm
NAME = "adaLN_cond__gqa_block_cached__dense_activation_relu__decode_kernel"
def f2x(f): return "0x%08x" % struct.unpack("<I", struct.pack("<f", f))[0]

WS_XB = 0x14000; WS_QL = 0x10000; WS_H = 0x18000; WS_MOD = 0x4000; WS_Q = 0x8000; WS_ST = 0xC000
WS_AL = 0xC0000; WS_A = 0x80000; WS_B = 0x20000; WS_C = 0x40000
WS_STAMP = 0x8000000
L_CG = 0; L_FQ = 4; L_CS = 8; L_CT = 68; L_CP = 16; L_FK = 20; L_CV = 24; L_CW = 28; L_FO = 32; L_MK = 64; L_FP = 12
L_ST = 256; L_Q = 1024; L_GP = 2048; L_X = 3072; L_RED = 4096; L_U = 5120; L_GS = 8192
L_OP = 16384; L_WT = 32768; LDS_SIZE = 98304
DPPF = "row_mask:0xf bank_mask:0xf"
P_X, P_K, P_V, P_WQ, P_WO, P_BX, P_W1, P_W2, P_C, P_WM, P_OUT, P_DBG, P_WS = [36 + 2 * i for i in range(13)]
def sp(n): return f"s[{n}:{n+1}]"
def v4(n): return f"v[{n}:{n+3}]"
def v2(n): return f"v[{n}:{n+1}]"
WS = sp(P_WS)

DOC = '''; ---------------------------------------------------------------------------------------------
; ---------------------------------------------------------------------------------------------'''
E_H, E_Q, E_M, E_B = 1, 2, 3, 4
R_B, R_C, R_F = 1, 2, 3
def make_plan(plan, **pk):
    P = dict(PLANS[plan]); P.update(pk)
    roles = {(x, a): dict(e=0, ei=0, l=0, li=0) for x in range(8) for a in range(32)}
    hi = mi = ci = fi = 0
    for x in range(8):
        a = 0
        for _ in range(P['H'][x]): roles[x, a].update(e=E_H, ei=hi); hi += 1; a += 1
        for c in range(8):
            roles[x, a].update(e=E_Q, ei=c)
            if (x & 1 == P['Fx'] if 'Fx' in P else c in (0, 1, 4, 5)): roles[x, a].update(l=R_F, li=fi); fi += 1
            a += 1
        for c in range(8): roles[x, a].update(e=E_B, ei=c, l=R_B, li=c); a += 1
        for _ in range(P['M'][x]): roles[x, a].update(e=E_M, ei=mi); mi += 1; a += 1
        assert a <= 32
        cand = [b for b in range(31, -1, -1) if roles[x, b]['e'] == 0] + [b for b in range(32) if roles[x, b]['e'] == E_H] + [b for b in range(32) if roles[x, b]['e'] == E_M]
        for b in cand[:P['C'][x]]: roles[x, b].update(l=R_C, li=ci); ci += 1
    assert (hi, mi, ci, fi) == (32, 32, 56, 32), (hi, mi, ci, fi)
    for x in range(8):
        cost = []
        for a in range(32):
            r = roles[x, a]
            c = {0: 0, E_H: P['cH'], E_Q: P['cQ'], E_M: P['cM'], E_B: P['cB']}[r['e']]
            cb = r['ei'] if r['e'] in (E_Q, E_B) else (r['ei'] >> 2)
            if r['e'] and cb == 3: c += P['c3'][r['e']]
            if r['l'] == R_C: c += P['cC']
            cost.append(c)
        n = [max(28, P['T'] - 7)] * 32
        for _ in range(1024 - sum(n)):
            b = min((a for a in range(32) if n[a] < P['T']), key=lambda a: (n[a] + cost[a], -a))
            n[b] += 1
        pre = 0
        for a in range(32):
            roles[x, a].update(n=n[a], pre=pre); pre += n[a] - 28
    T = max(r['n'] for r in roles.values()); T += T & 1
    return roles, T
base = dict(cH=2.0, cQ=3.6, cM=4.2, cB=3.6, cC=4.0, c3={E_H: 0.5, E_Q: 1.7, E_M: 1.5, E_B: 1.0}, T=34)
base2 = dict(cH=1.6, cQ=4.0, cM=4.5, cB=3.4, cC=5.3, c3={E_H: 0.7, E_Q: 2.3, E_M: 1.8, E_B: 2.4}, T=36)
PLANS = {
 'A': dict(base, H=[4]*8, M=[4]*8, C=[7]*8),
 'B': dict(base, H=[8,0,8,0,8,0,8,0], M=[8,0,8,0,8,0,8,0], C=[14,0,14,0,14,0,14,0]),
 'C': dict(base, H=[8,0,8,0,8,0,8,0], M=[8,0,8,0,8,0,8,0], C=[7]*8),
 'D': dict(base, H=[8,8,8,8,0,0,0,0], M=[8,0,8,0,8,0,8,0], C=[14,0,14,0,14,0,14,0]),
 'E': dict(base, H=[8,8,8,8,0,0,0,0], M=[8,0,8,0,8,0,8,0], C=[8,6,8,6,8,6,8,6]),
 'G': dict(base2, H=[8,0,8,0,8,0,8,0], M=[8,0,8,0,8,0,8,0], C=[7]*8),
 'H': dict(base2, H=[8,0,8,0,8,0,8,0], M=[8,0,8,0,8,0,8,0], C=[8,8,8,12,8,2,8,2]),
 'I': dict(base2, H=[8,0,8,8,4,0,4,0], M=[8,0,8,0,8,0,8,0], C=[8,8,8,8,8,4,8,4]),
 'J': dict(base2, H=[8,0,8,0,8,0,8,0], M=[8,0,8,0,8,0,8,0], C=[0,14,0,14,0,14,0,14]),
 'K': dict(base2, H=[8,0,8,0,8,0,8,0], M=[8,0,8,0,8,0,8,0], C=[4,10,4,10,4,10,4,10]),
 'L': dict(base2, H=[8,0,8,0,8,0,8,0], M=[8,0,8,0,8,0,8,0], C=[8,6,8,6,8,6,8,6]),
 'N': dict(base2, H=[8,0,8,0,8,0,8,0], M=[2,6,2,6,2,6,2,6], C=[14,0,14,0,14,0,14,0]),
 'O': dict(base2, H=[0,8,0,8,0,8,0,8], M=[2,6,2,6,2,6,2,6], C=[14,0,14,0,14,0,14,0]),
 'P': dict(base2, H=[4,4,4,4,4,4,4,4], M=[2,6,2,6,2,6,2,6], C=[14,0,14,0,14,0,14,0]),
 'F': dict(base, H=[8,4,8,4,4,0,4,0], M=[8,0,8,0,8,0,8,0], C=[10,4,10,4,10,4,10,4]),
}

def gen(win=5, win2=6, wpol="nt", stamps=0, spin=200000, hsleep=4, qsleep=8, tsleep=1, pace=4, cpre=1, kprio=0, skipw=0, vmid=4, nopoll='', qtrig=22, R=4, cdefer=1, csleep=2, nH=33, nX=31, nL=34, loc=1, lpol='sc1', w1pol='nt', nocomp=0, nosvc=0, sprio=3, nopre=0, nocw=0, lmul=1, xit='', qloc=1, strig=1, qtrig2=38, kpol='nt', vpol='nt', slowfb=0, fixend=0, plan='A', hfirst=1, cpad=1, w2late=1, fsleep=1, dry=0, yprio=0, burst=0, bwin=8, mim=1, mrg=1, fprio=0, rprio=3, rsl=0, b0at=0, mlate=0, xp=None, lin=1, atrig=0, pre=0, g4=0, alt1=0, alt2=0, tw=0, probe='', det=1, rx=0, fl=0, w1early=1, nohp=0, ws1=0, ws2=0, bp=0, calm=0, ltab=1, st0=0, bhold=0, xl=1, bearly=0, pd=1, fdelay=0, xsleep=4, bdefer=0, hwait=0, **pk):
    A = Asm()
    roles, T = make_plan(plan, **pk)
    hdr = open("cdna_kernels/" + NAME[:-7] + ".s.ref").read().split("; Override")[0]
    A(hdr.rstrip())
    A(f"; @launch grid=(256,1,1) block=(768,1,1) lds={LDS_SIZE}")
    A(DOC)
    A('.amdgcn_target "amdgcn-amd-amdhsa--gfx950"')
    A(f".text\n.globl {NAME}\n.p2align 8\n.type {NAME},@function\n{NAME}:")
    def stamp(k):
        if stamps:
            A("s_memrealtime s[62:63]\ns_waitcnt lgkmcnt(0)")
            A(f"v_writelane_b32 v3, s62, {k}")
    def prb(name):
        if probe == name: A("s_memrealtime s[94:95]\ns_waitcnt lgkmcnt(0)")
    def end_wave():
        if stamps:
            A("s_branch L_stampout")
        else:
            A("s_endpgm")
    def srd(d, p, size):
        A(f"s_mov_b32 s{d}, s{p}\ns_mov_b32 s{d+1}, s{p+1}\ns_mov_b32 s{d+2}, {size}\ns_mov_b32 s{d+3}, 0x20000")
    def poll(name, loads, check, sleep):
        if name in nopoll.split('+'): return
        top = A.label(name); done = A.label(name + "d")
        A(f"s_mov_b32 s7, {spin}")
        A(f"{top}:")
        loads()
        A("s_waitcnt vmcnt(0)")
        check()
        A(f"s_cbranch_vccz {done}")
        A("s_mov_b64 exec, vcc")
        if sleep: A(f"s_sleep {sleep}")
        A("s_sub_u32 s7, s7, 1")
        A(f"s_cbranch_scc0 {top}")
        A(f"{done}:")
        A("s_mov_b64 exec, -1")
    def lspin(name, off, n, vz, vt, sleep=1, extra=None):
        top = A.label(name); done = A.label(name + "d")
        A(f"s_mov_b32 s7, {spin*20}")
        A(f"{top}:")
        A(f"ds_read_b32 v{vt}, v{vz} offset:{off}")
        if extra: extra()
        A("s_waitcnt lgkmcnt(0)")
        A(f"v_cmp_gt_u32 vcc, {n}, v{vt}")
        A(f"s_cbranch_vccz {done}")
        if lmul > 1: sleep = min(127, max(sleep, 1) * lmul)
        if sleep: A(f"s_sleep {sleep}")
        A("s_sub_u32 s7, s7, 1")
        A(f"s_cbranch_scc0 {top}")
        A(f"{done}:")
    def chk_tags(regs, tmp):
        A(f"v_xor_b32 v{tmp}, s6, v{regs[0]}")
        for r in regs[1:]:
            A(f"v_xor_b32 v{tmp+1}, s6, v{r}")
            A(f"v_or_b32 v{tmp}, v{tmp}, v{tmp+1}")
        A(f"v_cmp_ne_u32 vcc, 0, v{tmp}")
    def chk_sent(regs, tmp):
        regs = list(regs)
        if len(regs) == 1:
            A(f"v_cmp_eq_u32 vcc, -1, v{regs[0]}"); return
        if len(regs) == 2:
            A(f"v_max_u32 v{tmp}, v{regs[0]}, v{regs[1]}"); rest = []
        else:
            A(f"v_max3_u32 v{tmp}, v{regs[0]}, v{regs[1]}, v{regs[2]}"); rest = regs[3:]
        while rest:
            if len(rest) == 1:
                A(f"v_max_u32 v{tmp}, v{tmp}, v{rest[0]}"); rest = []
            else:
                A(f"v_max3_u32 v{tmp}, v{tmp}, v{rest[0]}, v{rest[1]}"); rest = rest[2:]
        A(f"v_cmp_eq_u32 vcc, -1, v{tmp}")
    def xrow(op, v, tmp, which):
        A(f"v_mov_b32 v{tmp}, v{v}")
        A(f"v_permlane{which}_swap_b32 v{v}, v{tmp}")
        A(f"{op} v{v}, v{v}, v{tmp}")
    def inrow(op, v, steps):
        for s in steps:
            A(f"{op}_dpp v{v}, v{v}, v{v} {s} {DPPF}")
    def wave_reduce(op, v, tmp):
        inrow(op, v, ["row_ror:8", "row_ror:4", "row_ror:2", "row_ror:1"])
        xrow(op, v, tmp, 16); xrow(op, v, tmp, 32)
    def unpack(dst, src, n):
        for i in range(n):
            A(f"v_lshlrev_b32 v{dst+2*i}, 16, v{src[i]}")
            A(f"v_and_b32 v{dst+2*i+1}, 0xffff0000, v{src[i]}")
    def rnd(a, b=None):
        if b is None: A(f"v_cvt_pk_bf16_f32 v{a}, v{a}, v{a}\nv_lshlrev_b32 v{a}, 16, v{a}")
        else: A(f"v_cvt_pk_bf16_f32 v{b}, v{a}, v{b}\nv_lshlrev_b32 v{a}, 16, v{b}\nv_and_b32 v{b}, 0xffff0000, v{b}")
    def silu(x, t, n):
        A(f"s_mov_b32 s21, {f2x(-1.4426950408889634)}")
        for i in range(n): A(f"v_mul_f32 v{t+i}, s21, v{x+i}")
        for i in range(n): A(f"v_exp_f32 v{t+i}, v{t+i}")
        for i in range(n): A(f"v_add_f32 v{t+i}, 1.0, v{t+i}")
        for i in range(n): A(f"v_rcp_f32 v{t+i}, v{t+i}")
        for i in range(n): A(f"v_mul_f32 v{x+i}, v{x+i}, v{t+i}")
    def gemv_perm(W, T, npair):
        for u in range(npair):
            for w in range(4):
                a = W + 8 * u + w; b = W + 8 * u + 4 + w
                A(f"v_perm_b32 v{T+8*u+2*w}, v{b}, v{a}, s24")
                A(f"v_perm_b32 v{T+8*u+2*w+1}, v{b}, v{a}, s25")
    def gemv_dot(T, X, acc):
        for u in range(len(X)):
            for e in range(8):
                c = "0" if u == 0 else f"v{acc+e}"
                A(f"v_dot2_f32_bf16 v{acc+e}, v{T+8*u+e}, v{X[u]}, {c}")
    def mktag():
        A("s_waitcnt lgkmcnt(0)\ns_mul_i32 s6, s6, 0x9E3779B1\ns_add_u32 s6, s6, 0x7F4A7C15")
    def paced(loads, w):
        if skipw and (w or skipw > 1): return
        for i, l in enumerate(loads):
            if w and i >= w: A(f"s_waitcnt vmcnt({w-1})")
            A(l)

    if st0: A("s_memrealtime s[90:91]")
    A("s_cmp_ge_u32 s2, 256\ns_cbranch_scc1 L_exit")
    A("s_load_dwordx16 s[36:51], s[0:1], 0")
    rest_ld = "s_load_dwordx8 s[52:59], s[0:1], 64\ns_load_dwordx2 s[60:61], s[0:1], 96\ns_load_dword s68, s[32:33], s34"
    A("s_getpc_b64 s[30:31]\nL_pc:\ns_add_u32 s32, s30, L_tab-L_pc\ns_addc_u32 s33, s31, 0\ns_lshl_b32 s34, s2, 2")
    if not ltab: A(rest_ld)
    A("v_lshrrev_b32 v1, 6, v0\nv_and_b32 v0, 63, v0\nv_readfirstlane_b32 s3, v1")
    A("s_and_b32 s4, s2, 7\ns_lshr_b32 s5, s2, 3")
    if xp: A(f"s_lshl_b32 s4, s4, 2\ns_lshr_b32 s4, {sum(h << (4*i) for i, h in enumerate(xp)):#x}, s4\ns_and_b32 s4, s4, 7")
    if fixend: A("s_memrealtime s[96:97]")
    A("s_mov_b32 s24, 0x05040100\ns_mov_b32 s25, 0x07060302")
    A("v_lshlrev_b32 v2, 4, v0")
    if stamps:
        A("v_mov_b32 v3, 0")
        if not st0: stamp(0)
    A("s_cmp_lt_u32 s3, 4\ns_cbranch_scc1 L_service")
    STREAM_MARK = len(A.lines)
    A("L_service:")
    if ltab: A(rest_ld)
    A(f"s_setprio {sprio}")
    if cpre:
        A(f"s_lshl_b32 s20, s5, 2\ns_add_u32 s20, s20, s3\ns_sub_u32 s20, s20, 104\ns_cmp_ge_u32 s20, (L_endcode-{NAME})/1024\ns_cbranch_scc1 L_ncp")
        A(f"s_sub_u32 s30, s30, L_pc-{NAME}\ns_subb_u32 s31, s31, 0")
        A("s_lshl_b32 s20, s20, 10\nv_add_u32 v14, s20, v2")
        A("global_load_dwordx4 v[164:167], v14, s[30:31]")
        A("L_ncp:")
    A("v_lshrrev_b32 v12, 3, v0\nv_and_b32 v13, 7, v0\nv_mov_b32 v16, 0\nv_mov_b32 v17, 0\nv_mov_b32 v18, 0\nv_mov_b32 v19, 0")
    A("s_mov_b64 exec, 0x1f\nds_write_b128 v2, v[16:19]\ns_mov_b64 exec, -1")
    A("s_waitcnt lgkmcnt(0)")
    A("s_bfe_u32 s64, s68, 0x3000f\ns_bfe_u32 s65, s68, 0x50012\ns_bfe_u32 s66, s68, 0x20017\ns_bfe_u32 s67, s68, 0x60019")
    A("s_lshr_b32 s69, s65, 2\ns_and_b32 s70, s65, 3")
    A(f"s_cmp_lg_u32 s64, {E_H}\ns_cbranch_scc1 L_nh")
    A("s_lshr_b32 s20, s70, 1\ns_lshl_b32 s20, s20, 8\ns_lshl_b32 s21, s3, 6\ns_add_u32 s20, s20, s21")
    A("v_lshl_add_u32 v14, v12, 3, s20")
    A("s_mov_b32 s21, 6144\nv_mul_lo_u32 v1, v14, s21\nv_lshl_add_u32 v1, v13, 4, v1\nv_lshlrev_b32 v14, 1, v14")
    A("s_and_b32 s20, s70, 1\ns_lshl_b32 s20, s20, 10\ns_lshl_b32 s21, s69, 7\ns_add_u32 s20, s20, s21")
    A("s_waitcnt lgkmcnt(0)")
    srd(8, P_WM, 512 * 6144)
    A(f"global_load_dwordx4 v[4:7], v14, {sp(P_C)}")
    for i in range(8):
        A(f"buffer_load_dwordx4 {v4(40+4*i)}, v1, s[8:11], s20 offen {wpol}")
        if i < 7: A("s_add_u32 s20, s20, 6144")
    A(f"s_load_dword s6, {WS}, 0")
    A("s_barrier")
    A("s_lshl_b32 s20, s65, 2\ns_add_u32 s20, s20, s3")
    if cpad: A(f"s_lshl_b32 s21, s20, 11\ns_add_u32 s21, s21, {WS_C}\nv_lshrrev_b32 v14, 2, v0\nv_lshl_add_u32 v14, v14, 6, v2\nv_add_u32 v14, s21, v14")
    else: A(f"s_lshl_b32 s21, s20, 10\ns_add_u32 s21, s21, {WS_C}\nv_add_u32 v14, s21, v2")
    A(f"s_mul_i32 s21, s20, {128*R}\ns_add_u32 s21, s21, {WS_B}\nv_add_u32 v15, s21, v2")
    A("s_cmp_eq_u32 s3, 3\ns_cselect_b32 exec_hi, 0, -1")
    for i in range(4): A(f"v_mov_b32 v{16+i}, -1")
    A("s_mov_b64 exec, -1")
    if nohp: A("s_mov_b64 exec, 1")
    A(f"global_store_dwordx4 v14, v[16:19], {WS} sc1")
    for i in range(4): A(f"v_mov_b32 v{20+i}, -1")
    if R < 8: A(f"s_mov_b32 exec_hi, 0\ns_mov_b32 exec_lo, {(1<<(8*R))-1:#x}")
    A(f"global_store_dwordx4 v15, v[20:23], {WS} sc1")
    A("s_mov_b64 exec, -1")
    A("s_waitcnt vmcnt(10)")
    unpack(24, [4, 5, 6, 7], 4); silu(24, 32, 8)
    for i in range(4): A(f"v_cvt_pk_bf16_f32 v{24+i}, v{24+2*i}, v{25+2*i}")
    mktag()
    A(f"s_and_b32 s26, s70, 1\ns_lshl_b32 s26, s26, 13\ns_lshr_b32 s21, s70, 1\ns_lshl_b32 s21, s21, 12\ns_add_u32 s26, s26, s21\ns_lshl_b32 s21, s69, 9\ns_add_u32 s26, s26, s21\ns_add_u32 s26, s26, {WS_H}")
    A("s_waitcnt vmcnt(2)")
    stamp(1)
    gemv_perm(40, 104, 4)
    gemv_dot(104, [24, 25, 26, 27], 32)
    A("L_gfin:")
    acc = 32
    for e in range(4): A(f"v_permlane32_swap_b32 v{acc+e}, v{acc+e+4}")
    for e in range(4): A(f"v_add_f32 v{acc+e}, v{acc+e}, v{acc+e+4}")
    for e in range(2): A(f"v_permlane16_swap_b32 v{acc+e}, v{acc+e+2}")
    for e in range(2): A(f"v_add_f32 v{acc+e}, v{acc+e}, v{acc+e+2}")
    for e in range(2): A(f"v_add_f32_dpp v{acc+e}, v{acc+e}, v{acc+e} row_ror:8 {DPPF}")
    A("v_lshrrev_b32 v14, 4, v0\nv_lshlrev_b32 v14, 3, v14\nv_lshl_add_u32 v14, v13, 5, v14\ns_lshl_b32 s21, s3, 8\nv_add_u32 v14, s21, v14")
    A(f"ds_write_b64 v14, v[32:33] offset:{L_GP}")
    A("v_mov_b32 v14, 0\nv_mov_b32 v15, 1")
    A("s_waitcnt vmcnt(0)")
    A("s_mov_b64 exec, 1")
    A(f"ds_add_rtn_u32 v15, v14, v15 offset:{L_CG}")
    A("s_mov_b64 exec, -1")
    A("v_lshlrev_b32 v14, 3, v0")
    A("s_waitcnt lgkmcnt(0)")
    A("v_readfirstlane_b32 s21, v15")
    A("s_cmp_lg_u32 s21, 3\ns_cbranch_scc1 L_gdone")
    A("s_mov_b32 exec_hi, 0")
    for w in range(4): A(f"ds_read_b64 {v2(32+2*w)}, v14 offset:{L_GP+256*w}")
    A("v_add_u32 v14, s26, v14")
    A("s_waitcnt lgkmcnt(0)")
    A("v_pk_add_f32 v[32:33], v[32:33], v[34:35]\nv_pk_add_f32 v[36:37], v[36:37], v[38:39]\nv_pk_add_f32 v[32:33], v[32:33], v[36:37]")
    A(f"s_cmp_lg_u32 s64, {E_H}\ns_cbranch_scc1 L_gnh")
    A(f"v_mov_b32 v34, v33\nv_mov_b32 v33, s6\nv_mov_b32 v35, s6\nv_add_u32 v14, s26, v2\nglobal_store_dwordx4 v14, v[32:35], {WS} sc1\ns_mov_b64 exec, -1\ns_branch L_gdone\nL_gnh:")
    A("v_cvt_pk_bf16_f32 v32, v32, v33\nv_mov_b32 v33, s6")
    if qloc:
        A(f"s_cmp_lg_u32 s64, {E_Q}\ns_cbranch_scc1 L_gnl")
        A(f"v_add_u32 v15, {WS_QL-WS_Q}, v14\nglobal_store_dwordx2 v15, v[32:33], {WS}")
        A("L_gnl:")
    A(f"global_store_dwordx2 v14, v[32:33], {WS} sc1")
    A("s_mov_b64 exec, -1")
    A("L_gdone:")
    stamp(3)
    if mlate: A(f"s_cmp_eq_u32 s64, {E_M}\ns_cbranch_scc1 L_done")
    A("s_branch L_qpoll")

    NM = T - 28; nmask = T - min(r['n'] for r in roles.values())
    NW = 39 - T
    S0 = len(A.lines)
    A("L_stream:")
    if kprio: A(f"s_setprio {kprio}")
    A("s_sub_u32 s21, s3, 4")
    if yprio == 1: A("s_cmp_lt_u32 s21, 4\ns_cbranch_scc1 L_yp\ns_setprio 1\nL_yp:")
    A("v_bfe_u32 v1, v0, 2, 2\nv_lshlrev_b32 v1, 8, v1\nv_lshrrev_b32 v4, 4, v0\nv_lshl_add_u32 v1, v4, 6, v1\nv_and_b32 v4, 3, v0\nv_lshl_add_u32 v1, v4, 4, v1")
    A(f"s_lshl_b32 s19, s4, 23\ns_mul_i32 s16, s5, {28*8192}\ns_add_u32 s16, s16, s19\ns_lshl_b32 s17, s21, 12\ns_add_u32 s16, s16, s17")
    A("s_mov_b32 s10, 0x4000000\ns_mov_b32 s11, 0x20000")
    hcnt = sum(PLANS[plan]['H'][x] << (4 * x) for x in range(8))
    A(f"s_lshl_b32 s17, s4, 2\ns_lshr_b32 s35, {hcnt:#x}, s17\ns_and_b32 s35, s35, {15 if hfirst else 0}")
    A("s_waitcnt lgkmcnt(0)")
    A(f"s_mov_b32 s8, s{P_K}\ns_mov_b32 s9, s{P_K+1}")
    A("s_cmp_ge_u32 s5, s35\ns_cbranch_scc1 L_s1\ns_barrier\nL_s1:")
    KR = lambda t: 168 - 4 * T + 4 * t
    nS = (T + 3) // 4; nP = (T + 7) // 8
    assert T == 34
    first_v = 14
    vslots = [12 + 4 * i for i in range(NW)] + [KR(i) for i in range(first_v, T)]
    VR = lambda t: vslots[t % len(vslots)]
    st = {"cur": None}
    mpos = [6 + (j * (T - 12)) // max(nmask, 1) for j in range(nmask)]
    rest = list(range(NM, NM + 6)) + list(range(nmask, NM)) + list(range(NM + 6, T))
    perm = []
    for t in range(T):
        if t in mpos: perm.append(mpos.index(t))
        else: perm.append(rest.pop(0))
    first_nm = min(t for t in range(T) if perm[t] < NM)
    assert first_nm >= win
    hist = []
    def wcount(w):
        c = 0
        for n_, m_ in enumerate(reversed(hist)):
            if not m_:
                if c == w - 1: return n_
                c += 1
        return None
    def ld(which, t):
        o = perm[t]
        hist.append(o < nmask)
        if o < NM:
            A(f"s_add_u32 s20, s17, {o*8192}"); st["cur"] = None; imm = 0
            if o < nmask: A(f"s_cmp_gt_u32 s18, {o}\ns_cselect_b32 s20, 0x4000000, s20")
        else:
            key = (o - NM) >> 2; imm = ((o - NM) & 3) * 1024
            if st["cur"] != key:
                A(f"s_add_u32 s20, s16, {key*32768}"); st["cur"] = key
        if which == "K": A(f"buffer_load_dwordx4 {v4(KR(t))}, v1, s[8:11], s20 offen offset:{imm} {kpol}")
        else: A(f"buffer_load_dwordx4 {v4(VR(t))}, v2, s[12:15], s20 offen offset:{imm} {vpol}")
    korder = list(range(T))
    seq = [("K", t) for t in korder] + [("V", t) for t in range(NW)]
    for i, (wh, t) in enumerate(seq):
        if i == win:
            if st0: A("s_memrealtime s[92:93]")
            if ltab: A(rest_ld)
            A("s_branch L_body")
            S1 = len(A.lines)
            A("L_body:")
            srd(12, P_V, 0x4000000)
            if ws1: A(f"s_cmp_lt_u32 s21, {ws1}\ns_cselect_b64 vcc, -1, 0")
            if st0: A("s_waitcnt vmcnt(3)\ns_memrealtime s[94:95]")
            if not b0at: A("s_cmp_lt_u32 s5, s35\ns_cbranch_scc1 L_s2\ns_barrier\nL_s2:")
            A("s_waitcnt lgkmcnt(0)")
            A(f"s_and_b32 s17, s68, 0xfff\ns_bfe_u32 s18, s68, 0x3000c\ns_add_u32 s17, s17, {896-16}\ns_lshl_b32 s17, s17, 13\ns_add_u32 s17, s17, s19\ns_lshl_b32 s19, s21, 10\ns_add_u32 s17, s17, s19")
        if b0at and i == win + b0at: A("s_cmp_lt_u32 s5, s35\ns_cbranch_scc1 L_s2\ns_barrier\nL_s2:")
        if i == T and kprio: A("s_setprio 0")
        if wcount(win) is not None and perm[t] >= nmask:
            if ws1:
                lb = A.label("w"); A(f"s_cbranch_vccz {lb}\ns_waitcnt vmcnt({wcount(win-1)})\n{lb}:")
            A(f"s_waitcnt vmcnt({wcount(win - 1) if (alt1 and i % alt1 == 0) else wcount(win)})")
        ld(wh, t)
        if i == qtrig: A(f"v_mov_b32 v8, 0\nv_mov_b32 v9, 1\ns_mov_b64 exec, 1\nds_max_u32 v8, v9 offset:{L_FK}\ns_mov_b64 exec, -1")
        if i == qtrig2 and qloc: A(f"v_mov_b32 v8, 0\nv_mov_b32 v9, 2\ns_mov_b64 exec, 1\nds_max_u32 v8, v9 offset:{L_FK}\ns_mov_b64 exec, -1")
    viss = NW
    A("v_and_b32 v8, 3, v0\nv_lshlrev_b32 v8, 8, v8\nv_lshrrev_b32 v9, 4, v0\nv_lshl_add_u32 v8, v9, 6, v8\nv_bfe_u32 v9, v0, 2, 2\nv_lshl_add_u32 v8, v9, 4, v8\nv_mov_b32 v9, 0")
    if mim: A(f"s_mov_b32 s22, {f2x(1.4426950408889634)}\ns_mov_b32 s26, {f2x(128**-0.5)}\ns_mov_b32 s27, s26")
    else: A(f"s_mov_b32 s22, {f2x(128**-0.5*1.4426950408889634)}")
    for t in range(nmask): A(f"s_cmp_gt_u32 s18, {t}\ns_cselect_b32 s{28+t}, 0xff800000, 0")
    stamp(1)
    lspin("sq", L_FQ, 1, 9, 10, 2, lambda: A(f"ds_read_b128 v[4:7], v8 offset:{L_Q}"))
    stamp(2)
    kl = {"landed": T + NW - win - 3}
    DR = lambda t: 8 if t == 0 else KR(t - 1)
    SR = lambda t: (8 + t) if t < 4 else KR((t >> 2) - 1) + (t & 3)
    def M(t):
        if t >= kl["landed"]:
            A(f"s_waitcnt vmcnt({len(hist)-1-t})"); kl["landed"] = t + 1
        A(f"v_mfma_f32_16x16x32_bf16 {v4(DR(t))}, {v4(KR(t))}, v[4:7], 0")
    def AB(t):
        d = DR(t)
        A(f"v_add_f32_dpp v{d}, v{d+1}, v{d} row_shl:4 {DPPF} bound_ctrl:0")
        A(f"v_add_f32_dpp v{d+2}, v{d+3}, v{d+2} row_shl:4 {DPPF} bound_ctrl:0")
    def S(t):
        d = DR(t)
        A(f"v_add_f32_dpp v{SR(t)}, v{d+2}, v{d} row_shl:8 {DPPF} bound_ctrl:0")
    mark0 = len(A.lines)
    if yprio == 2: A("s_cmp_lt_u32 s21, 4\ns_cbranch_scc1 L_yp\ns_setprio 1\nL_yp:")
    M(0); M(1); M(2)
    for t in range(T + 1):
        if t < T: AB(t)
        if t >= 1:
            S(t - 1)
            if vmid and t - 2 >= first_v and (t - 2 - first_v) % vmid == 0:
                ld("V", viss); viss += 1
        if t + 3 < T: M(t + 3)
    TM = KR(11)
    Sl = [SR(t) for t in range(T)]
    if mim:
        for t in range(0, T, 2): rnd(Sl[t], Sl[t + 1])
        for t in range(0, T, 2): A(f"v_pk_mul_f32 {v2(Sl[t])}, {v2(Sl[t])}, s[26:27]")
        if vmid: ld("V", viss); viss += 1
        for t in range(0, T, 2): rnd(Sl[t], Sl[t + 1])
    for t in range(nmask): A(f"v_add_f32 v{Sl[mpos[t]]}, s{28+t}, v{Sl[mpos[t]]}")
    A(f"v_max3_f32 v{TM}, v{Sl[0]}, v{Sl[1]}, v{Sl[2]}")
    A(f"v_max3_f32 v{TM+1}, v{Sl[3]}, v{Sl[4]}, v{Sl[5]}")
    i = 6; k = 0
    while i < T:
        A(f"v_max3_f32 v{TM+k}, v{TM+k}, v{Sl[i]}, v{Sl[i+1]}"); i += 2; k ^= 1
    A(f"v_max_f32 v{TM}, v{TM}, v{TM+1}")
    xrow("v_max_f32", TM, TM + 1, 16); xrow("v_max_f32", TM, TM + 1, 32)
    A(f"v_mul_f32 v{TM}, s22, v{TM}")
    for t in range(T): A(f"v_fma_f32 v{Sl[t]}, v{Sl[t]}, s22, -v{TM}")
    for t in range(T): A(f"v_exp_f32 v{Sl[t]}, v{Sl[t]}")
    if vmid: ld("V", viss); viss += 1
    A(f"v_add_f32 v{TM+1}, v{Sl[0]}, v{Sl[1]}\nv_add_f32 v{TM+2}, v{Sl[2]}, v{Sl[3]}")
    for t in range(4, T): A(f"v_add_f32 v{TM+1+(t&1)}, v{TM+1+(t&1)}, v{Sl[t]}")
    A(f"v_add_f32 v{TM+1}, v{TM+1}, v{TM+2}")
    xrow("v_add_f32", TM + 1, TM + 2, 16); xrow("v_add_f32", TM + 1, TM + 2, 32)
    A(f"s_lshl_b32 s19, s21, 5\nv_lshl_add_u32 v{TM+2}, v0, 3, s19\nv_mov_b32 v4, 0\nv_mov_b32 v5, 1")
    A("s_mov_b64 exec, 0xf")
    A(f"ds_write_b64 v{TM+2}, {v2(TM)} offset:{L_ST}")
    A("s_mov_b64 exec, 1")
    A(f"ds_add_u32 v4, v5 offset:{L_CS}")
    A("s_mov_b64 exec, -1")
    GR = [(0, 2), (2, 10), (10, 18), (18, 26), (26, 34)]
    def pack(u, d):
        for t in range(GR[u][0], GR[u][1], 2): A(f"v_cvt_pk_bf16_f32 v{d+(t-GR[u][0])//2}, v{Sl[t]}, v{Sl[t+1]}")
    for u in range(3): pack(u, KR(8 + u))
    A("s_waitcnt lgkmcnt(0)")
    AC = [8, KR(0)]
    PA = [KR(1), KR(2), KR(12), KR(13)]; PB = [KR(3), KR(4), KR(5), KR(6)]
    TT = [TM, 4]
    def zero(P):
        for j in range(4):
            for i in range(4): A(f"v_mov_b32 v{P[j]+i}, 0")
    def vers(P, src, n=4):
        for j in range(4):
            ctl = "quad_perm:[0,1,2,3]" if j == 0 else f"row_shr:{4*j}"
            for i in range(n): A(f"v_mov_b32_dpp v{P[j]+i}, v{src+i} {ctl} row_mask:0xf bank_mask:{1<<j:#x}")
    zero(PA)
    A(f"v_mov_b32 v{TM+1}, 0\nv_mov_b32 v5, 0")
    stamp(3)
    EO = (0, 4, 1, 5, 2, 6, 3, 7)
    def pv(u):
        t0, t1 = GR[u]; n = t1 - t0
        vers(PA, KR(8 + u), n // 2)
        for k, e in enumerate(EO):
            Tm = TT[k & 1]; ac = AC[e >> 2]
            for p in range(n // 2):
                a = VR(t0 + 2 * p) + (e >> 1); b = VR(t0 + 2 * p + 1) + (e >> 1)
                A(f"v_perm_b32 v{Tm+p}, v{b}, v{a}, s{24+(e&1)}")
            c = "0" if (u == 0 and k < 2) else v4(ac)
            if n == 8: A(f"v_mfma_f32_16x16x32_bf16 {v4(ac)}, {v4(Tm)}, {v4(PA[e&3])}, {c}")
            else: A(f"v_mfma_f32_16x16x16_bf16 {v4(ac)}, {v2(Tm)}, {v2(PA[e&3])}, {c}")
    ns = len(vslots)
    TA = [VR(t) for t in range(T - ns, 18)][:8]
    assert len(TA) == 8
    X = KR(8); ONE = KR(7) + 2; CNT = KR(7) + 3
    def rescale():
        A(f"v_and_b32 v1, 3, v0\nv_lshlrev_b32 v1, 3, v1\nv_mov_b32 v{X+10}, 0\nv_mov_b32 v{ONE}, 1\ns_lshl_b32 s19, s21, 5\nv_add_u32 v{X+9}, s19, v1")
        def rd():
            for w in range(8): A(f"ds_read_b32 v{X+w}, v1 offset:{L_ST+32*w}")
            A(f"ds_read_b32 v{X+8}, v{X+9} offset:{L_ST}")
        lspin("sm", L_CS, 9, X + 10, X + 11, 1, rd)
        A(f"s_mov_b64 exec, 1\nds_add_rtn_u32 v{X+11}, v{X+10}, v{ONE} offset:{L_CT}\ns_mov_b64 exec, -1")
        A(f"v_max3_f32 v{X}, v{X}, v{X+1}, v{X+2}\nv_max3_f32 v{X+3}, v{X+3}, v{X+4}, v{X+5}\nv_max3_f32 v{X}, v{X}, v{X+6}, v{X+7}\nv_max_f32 v{X}, v{X}, v{X+3}")
        A(f"v_sub_f32 v{X}, v{X+8}, v{X}\nv_exp_f32 v{X}, v{X}")
        A(f"s_lshl_b32 s19, s21, 11\nv_add_u32 v1, s19, v2\ns_and_b32 s19, s21, 4\nv_mov_b32 v{CNT}, s19")
        for ac in AC:
            for q in range(2): A(f"v_pk_mul_f32 {v2(ac+2*q)}, {v2(ac+2*q)}, {v2(X)} op_sel_hi:[1,0]")
        for t in range(18, T, 2): A(f"v_pk_mul_f32 {v2(Sl[t])}, {v2(Sl[t])}, {v2(X)} op_sel_hi:[1,0]")
        pack(3, TT[0]); pack(4, TT[1])
        zero(PB); vers(PA, TT[0]); vers(PB, TT[1])
        A(f"s_waitcnt lgkmcnt(0)\nv_readfirstlane_b32 s23, v{X+11}")
    while viss < min(win2, ns):
        ld("V", viss); viss += 1
    done_t = 0
    ends = {g[1] - 1: u for u, g in enumerate(GR[:3])}
    for L in range(T):
        inc = L >= 18 and L % 2 == 1
        can = lambda: viss < T and sum(1 for j in range(L + 1, viss) if perm[j] >= nmask) < (bwin if L >= T - burst else win2 + (pre if L in ends else 0)) + (perm[viss] < nmask) and (viss < ns or done_t > viss - ns)
        if can() or L in ends or inc:
            A(f"s_waitcnt vmcnt({viss-1-L})")
        while can():
            ld("V", viss); viss += 1
            if viss == T:
                assert L > 17
                A(f"s_mov_b64 exec, 1\nds_add_u32 v2, v{ONE} offset:{L_CV}\ns_mov_b64 exec, -1")
        if L in ends:
            pv(ends[L]); done_t = L + 1
            if L == 17: rescale()
        if inc:
            if L == T - 1: stamp(4)
            p = ((L - 18) % 8) // 2
            for e in EO: A(f"v_perm_b32 v{TA[e]+p}, v{VR(L)+(e>>1)}, v{VR(L-1)+(e>>1)}, s{24+(e&1)}")
            if p == 3:
                for e in EO: A(f"v_mfma_f32_16x16x32_bf16 {v4(AC[e>>2])}, {v4(TA[e])}, {v4((PA if L < 26 else PB)[e&3])}, {v4(AC[e>>2])}")
    assert viss == T
    if nocomp:
        keep = [l for l in A.lines[mark0:] if not l.startswith(("v_mfma", "v_perm_b32", "v_add_f32", "v_exp", "v_fma", "v_max", "v_cvt", "v_permlane"))]
        A.lines[mark0:] = keep
    for hf in range(2): A(f"ds_write_b128 v1, {v4(AC[hf])} offset:{L_OP+hf*1024}")
    A(f"s_mov_b64 exec, 1\nds_add_u32 v{CNT}, v{ONE} offset:{L_FO}")
    A("s_mov_b64 exec, -1")
    if stamps: A("s_waitcnt lgkmcnt(0)")
    stamp(5)
    A("s_cmp_lg_u32 s23, 0\ns_cbranch_scc1 L_done")
    A(f"s_setprio {rprio}")
    def a_addr(d, t):
        if lin: A(f"s_lshl_b32 s20, s4, 15\ns_lshr_b32 s19, s5, 4\ns_lshl_b32 s19, s19, 10\ns_add_u32 s20, s20, s19\ns_and_b32 s19, s5, 15\ns_lshl_b32 s19, s19, 4\ns_add_u32 s20, s20, s19\ns_add_u32 s20, s20, {WS_A}")
        else: A(f"s_lshl_b32 s20, s4, 15\ns_lshl_b32 s19, s5, {7 if fl else 6}\ns_add_u32 s20, s20, s19\ns_add_u32 s20, s20, {WS_A}")
        if mrg:
            assert lin
            A(f"v_and_b32 v{d}, 3, v0\nv_lshlrev_b32 v{d}, 13, v{d}\nv_bfe_u32 v{t}, v0, 2, 2\nv_lshl_add_u32 v{d}, v{t}, 11, v{d}\nv_lshrrev_b32 v{t}, 4, v0\nv_lshl_add_u32 v{d}, v{t}, 8, v{d}\nv_add_u32 v{d}, s20, v{d}")
            return
        A(f"v_bfe_u32 v{d}, v0, 2, 2\nv_lshlrev_b32 v{d}, 13, v{d}")
        if fl: A(f"v_lshrrev_b32 v{t}, 5, v0\nv_lshl_add_u32 v{d}, v{t}, 12, v{d}\nv_bfe_u32 v{t}, v0, 4, 1\nv_lshl_add_u32 v{d}, v{t}, 6, v{d}")
        else: A(f"v_lshrrev_b32 v{t}, 4, v0\nv_lshl_add_u32 v{d}, v{t}, 11, v{d}")
        A(f"v_and_b32 v{t}, 3, v0\nv_lshl_add_u32 v{d}, v{t}, {8 if lin else 4}, v{d}\nv_add_u32 v{d}, s20, v{d}")
    a_addr(36, 37)
    A(f"v_add_u32 v37, {WS_AL-WS_A}, v36\nv_mov_b32 v38, 0\nv_mov_b32 v39, 1")
    if xl: A(f"ds_read_b32 v29, v38 offset:{L_MK}\ns_waitcnt lgkmcnt(0)\nv_readfirstlane_b32 s26, v29")
    for hf in range(2 if det else 0):
        def rd8():
            for j in range(4): A(f"ds_read_b128 {v4(40+8*j)}, v2 offset:{L_OP+(4*hf+j)*2048}\nds_read_b128 {v4(44+8*j)}, v2 offset:{L_OP+(4*hf+j)*2048+1024}")
        if rsl and hf: lspin("so3", L_FO + 4, 3, 38, 28, 1)
        lspin("so", L_FO + 4 * hf, 4, 38, 28, 1 - hf, rd8)
        for q in range(4): A(f"v_pk_add_f32 {v2(40+2*q)}, {v2(40+2*q)}, {v2(48+2*q)}")
        for q in range(4): A(f"v_pk_add_f32 {v2(56+2*q)}, {v2(56+2*q)}, {v2(64+2*q)}")
        for q in range(4): A(f"v_pk_add_f32 {v2((12 if hf == 0 else 40)+2*q)}, {v2(40+2*q)}, {v2(56+2*q)}")
        if hf:
            for q in range(4): A(f"v_pk_add_f32 {v2(12+2*q)}, {v2(12+2*q)}, {v2(40+2*q)}")
    for i in range(0 if det else 8):
        d = 12 if i == 0 else 20
        lspin("so", L_FO + 4 * i, 1, 38, 28, 1 if (calm and i < 6) else 0, lambda: A(f"ds_read_b128 {v4(d)}, v2 offset:{L_OP+i*2048}\nds_read_b128 {v4(d+4)}, v2 offset:{L_OP+i*2048+1024}"))
        if i:
            for q in range(4): A(f"v_pk_add_f32 {v2(12+2*q)}, {v2(12+2*q)}, {v2(20+2*q)}")
    for q in range(4): A(f"v_cvt_pk_bf16_f32 v{12+q}, v{12+2*q}, v{13+2*q}")
    if loc: A(f"global_store_dwordx4 v37, v[12:15], {WS}")
    if xl: A("s_cmp_eq_u32 s26, 0\ns_cbranch_scc1 L_ng2")
    A(f"global_store_dwordx4 v36, v[12:15], {WS} sc1")
    A("L_ng2:")
    A(f"ds_write_b32 v38, v39 offset:{L_FP}")
    stamp(6)
    end_wave()
    blk = A.lines[S0:S1]; del A.lines[S0:S1]; A.lines[STREAM_MARK:STREAM_MARK] = blk

    A("L_nh:")
    A(f"s_cmp_lg_u32 s64, {E_Q}\ns_cbranch_scc1 L_nq")
    A("v_lshlrev_b32 v1, 17, v12\nv_lshl_add_u32 v1, v13, 4, v1")
    A("s_lshl_b32 s20, s3, 20\ns_lshl_b32 s21, s4, 10\ns_add_u32 s20, s20, s21\ns_mov_b32 s26, s65\ns_lshl_b32 s21, s26, 7\ns_add_u32 s20, s20, s21")
    A("s_lshl_b32 s21, s3, 8\nv_lshl_add_u32 v14, v0, 2, s21")
    A("s_waitcnt lgkmcnt(0)")
    srd(8, P_WQ, 512 * 8192)
    A(f"global_load_dwordx4 v[8:11], v2, {sp(P_X)}\nglobal_load_dword v15, v14, {sp(P_X)}")
    for i in range(16):
        A(f"buffer_load_dwordx4 {v4(40+4*i)}, v1, s[8:11], s20 offen {wpol}")
        if i < 15: A("s_add_u32 s20, s20, 8192")
    A(f"s_load_dword s6, {WS}, 0")
    A("s_barrier")
    A(f"s_lshl_b32 s26, s26, 8\ns_lshl_b32 s21, s4, 11\ns_add_u32 s26, s26, s21\ns_add_u32 s26, s26, {WS_Q}")
    A("s_waitcnt vmcnt(16)")
    unpack(32, [8, 9, 10, 11], 4)
    A("v_add_f32 v4, v32, v33")
    for i in range(2, 8): A(f"v_add_f32 v4, v4, v{32+i}")
    wave_reduce("v_add_f32", 4, 5)
    A(f"v_mul_f32 v4, {f2x(1/512)}, v4")
    for i in range(8): A(f"v_sub_f32 v{32+i}, v{32+i}, v4")
    A("v_mul_f32 v6, v32, v32")
    for i in range(1, 8): A(f"v_fmac_f32 v6, v{32+i}, v{32+i}")
    wave_reduce("v_add_f32", 6, 5)
    A(f"v_mul_f32 v5, {f2x(1/512)}, v6"); rnd(4, 5)
    A(f"v_add_f32 v5, {f2x(1e-5)}, v5"); rnd(5)
    A("v_sqrt_f32 v5, v5"); rnd(5)
    A("v_rcp_f32 v5, v5")
    unpack(8, [15], 1)
    A("v_sub_f32 v8, v8, v4\nv_sub_f32 v9, v9, v4"); rnd(8, 9)
    A("v_mul_f32 v8, v8, v5\nv_mul_f32 v9, v9, v5"); rnd(8, 9)
    A(f"v_lshlrev_b32 v15, 2, v14\nv_add_u32 v15, {WS_H}, v15\nv_add_u32 v10, 4096, v15\nv_add_u32 v11, 8192, v15\nv_add_u32 v7, 12288, v15")
    mktag()
    A("s_waitcnt vmcnt(0)")
    stamp(1)
    prb("wq")
    gemv_perm(40, 104, 8)
    if hwait: A("v_mov_b32 v4, 0"); lspin("sh", L_FK, 1, 4, 5, 2)
    poll("ph", lambda: [A(f"global_load_dwordx4 {v4(16+4*k)}, v{(15,10,11,7)[k]}, {WS} sc1") for k in range(4)],
         lambda: chk_tags([17 + 2 * k for k in range(8)], 4), hsleep)
    stamp(2)
    prb("h")
    A("v_add_f32 v16, v16, v20\nv_add_f32 v17, v18, v22\nv_add_f32 v18, v24, v28\nv_add_f32 v19, v26, v30")
    rnd(16, 17); rnd(18, 19)
    A("v_add_f32 v18, 1.0, v18\nv_add_f32 v19, 1.0, v19"); rnd(18, 19)
    A("v_pk_mul_f32 v[24:25], v[8:9], v[18:19]"); rnd(24, 25)
    A("v_pk_add_f32 v[24:25], v[24:25], v[16:17]")
    A("L_gx:")
    A("v_cvt_pk_bf16_f32 v24, v24, v25")
    A(f"ds_write_b32 v14, v24 offset:{L_X}")
    A("s_lshl_b32 s21, s3, 8\nv_lshl_add_u32 v15, v12, 5, s21")
    A(f"ds_read_b128 v[24:27], v15 offset:{L_X}\nds_read_b128 v[28:31], v15 offset:{L_X+16}")
    A("s_waitcnt lgkmcnt(0)")
    gemv_dot(104, list(range(24, 32)), 32)
    A("s_branch L_gfin")

    A("L_nq:")
    A("s_waitcnt lgkmcnt(0)")
    A(f"s_load_dword s6, {WS}, 0")
    mktag()
    A("s_barrier")
    A("L_role:")
    A("s_cmp_eq_u32 s64, 0\ns_cbranch_scc1 L_qpoll")
    A(f"s_cmp_eq_u32 s64, {E_B}\ns_cbranch_scc1 L_wb")
    if mlate:
        A("s_branch L_qpoll\nL_ml:")
        if mlate <= 8: lspin("sl", L_CV, mlate, 10, 11, 4)
        else: lspin("sl", L_FP, 1, 10, 11, 4)
        A("s_setprio 0\nv_lshrrev_b32 v12, 3, v0\nv_and_b32 v13, 7, v0")
    A("s_mov_b32 s21, 98304\nv_mul_lo_u32 v1, v12, s21\nv_lshl_add_u32 v1, v13, 4, v1")
    A(f"s_mul_i32 s20, s3, {128*6144}\ns_add_u32 s26, s70, 2\ns_lshl_b32 s26, s26, 10\ns_lshl_b32 s21, s69, 7\ns_add_u32 s26, s26, s21\ns_add_u32 s20, s20, s26")
    A("s_lshl_b32 s21, s3, 8\nv_lshl_add_u32 v14, v0, 2, s21")
    srd(8, P_WM, 512 * 6144)
    A(f"global_load_dword v15, v14, {sp(P_C)}")
    paced([f"buffer_load_dwordx4 {v4(40+4*i)}, v1, s[8:11], s20 offen {wpol}\ns_add_u32 s20, s20, 6144" for i in range(16)], 0)
    A(f"s_lshl_b32 s26, s26, 1\ns_add_u32 s26, s26, {WS_MOD-4096}")
    A("s_waitcnt vmcnt(0)")
    unpack(24, [15], 1); silu(24, 32, 2)
    gemv_perm(40, 104, 8)
    A("s_branch L_gx")
    def dma(loads, w):
        if skipw: return
        for i, l in enumerate(loads):
            if w and i >= w: A(f"s_waitcnt vmcnt({w-1})")
            A(f"s_add_u32 m0, s23, {1024*i}")
            A(l)
    def wo_issue(lo, hi):
        srd(8, P_WO, 4096 * 1024)
        A("v_lshrrev_b32 v1, 3, v0\nv_lshlrev_b32 v1, 10, v1\nv_and_b32 v4, 7, v0\nv_lshl_add_u32 v1, v4, 4, v1")
        A(f"s_lshl_b32 s20, s4, 19\ns_lshl_b32 s21, s3, 17\ns_add_u32 s20, s20, s21\ns_lshl_b32 s21, s65, 7\ns_add_u32 s20, s20, s21\ns_add_u32 s20, s20, {8192*lo}")
        A(f"s_lshl_b32 s23, s3, 14\ns_add_u32 s23, s23, {L_WT+1024*lo}")
        dma([f"buffer_load_dwordx4 v1, s[8:11], s20 offen {wpol} lds\ns_add_u32 s20, s20, 8192" for i in range(lo, hi)], pace)
    def wo_finish(w):
        A(f"s_lshl_b32 s23, s3, 14\ns_add_u32 s23, s23, {L_WT}")
        A("v_bfe_u32 v1, v0, 2, 2\nv_lshlrev_b32 v1, 10, v1\nv_lshrrev_b32 v4, 4, v0\nv_lshl_add_u32 v1, v4, 12, v1\nv_and_b32 v4, 3, v0\nv_lshl_add_u32 v1, v4, 3, v1\nv_add_u32 v1, s23, v1")
        A(f"s_waitcnt vmcnt({w})")
        k = 0
        for c in range(4):
            for nt in range(4):
                for hi in range(2):
                    A(f"ds_read_b64_tr_b16 {v2(104+16*c+4*nt+2*hi)}, v1 offset:{(c+4*hi)*128+nt*32}")
                    k += 1
                    if k >= 12 and k % 4 == 0: A("s_waitcnt lgkmcnt(8)")
        A("s_waitcnt lgkmcnt(0)")
    A("L_wb:")
    if xl:
        A("s_cmp_lg_u32 s3, 0\ns_cbranch_scc1 L_wb1")
        A(f"s_getreg_b32 s20, hwreg(HW_REG_XCC_ID, 0, 4)\nv_mov_b32 v4, s20\nv_mov_b32 v5, s6\ns_lshl_b32 s20, s4, 7\ns_lshl_b32 s21, s65, 3\ns_add_u32 s20, s20, s21\ns_add_u32 s20, s20, {WS_XB}\nv_mov_b32 v6, s20")
        A(f"s_mov_b64 exec, 1\nglobal_store_dwordx2 v6, v[4:5], {WS} sc1\ns_mov_b64 exec, -1\ns_nop 0")
        A("L_wb1:")
    if bp:
        A("s_cmp_eq_u32 s3, 1\ns_cbranch_scc1 L_qpoll\ns_cmp_eq_u32 s3, 2\ns_cbranch_scc1 L_qpoll")
        srd(8, P_WO, 4096 * 1024)
        A("v_lshrrev_b32 v1, 3, v0\nv_lshlrev_b32 v1, 10, v1\nv_and_b32 v4, 7, v0\nv_lshl_add_u32 v1, v4, 4, v1\ns_lshr_b32 s22, s3, 1")
        A(f"s_lshl_b32 s20, s4, 19\ns_lshl_b32 s21, s22, 18\ns_add_u32 s20, s20, s21\ns_lshl_b32 s21, s65, 7\ns_add_u32 s20, s20, s21")
        A(f"s_lshl_b32 s23, s22, 15\ns_add_u32 s23, s23, {L_WT}\ns_mov_b32 s22, 31")
        A(f"L_wbl:\ns_mov_b32 m0, s23\ns_waitcnt vmcnt({bp-1})\nbuffer_load_dwordx4 v1, s[8:11], s20 offen {wpol} lds\ns_add_u32 s20, s20, 8192\ns_add_u32 s23, s23, 1024\ns_sub_u32 s22, s22, 1\ns_cbranch_scc0 L_wbl")
        A(f"v_mov_b32 v4, 0\nv_mov_b32 v5, 1\ns_waitcnt vmcnt(0)\ns_mov_b64 exec, 1\nds_add_u32 v4, v5 offset:{L_CW}\ns_mov_b64 exec, -1")
    elif not bdefer: wo_issue(0, 16); wo_finish(0)
    elif bearly: wo_issue(0, bearly)
    A("L_qpoll:")
    if w1early:
        A(f"s_cmp_lg_u32 s66, {R_C}\ns_cbranch_scc1 L_qp1\ns_mov_b32 s26, s67")
        srd(8, P_W1, 512 * 3584)
        A("v_lshrrev_b32 v1, 2, v0\ns_mov_b32 s20, 3584\nv_mul_lo_u32 v1, v1, s20\nv_and_b32 v12, 3, v0\nv_lshl_add_u32 v1, v12, 4, v1")
        A(f"s_mul_i32 s20, s3, {128*3584}\ns_lshl_b32 s21, s26, 6\ns_add_u32 s20, s20, s21")
        A(f"s_lshl_b32 s23, s3, 14\ns_add_u32 s23, s23, {L_WT}")
        dma([f"buffer_load_dwordx4 v1, s[8:11], s20 offen {w1pol} lds\ns_add_u32 s20, s20, {16*3584}" for i in range(8)], 0)
        A("L_qp1:")
    if nosvc:
        A(f"v_mov_b32 v10, 0\nv_mov_b32 v5, 1\nds_write_b32 v10, v5 offset:{L_FQ}\ns_mov_b64 exec, 1\nds_add_u32 v10, v5 offset:{L_CS}")
        end_wave()
    if tw:
        A("s_cmp_lg_u32 s3, 3\ns_cbranch_scc1 L_tw")
        A(f"s_lshl_b32 s20, s4, 23\ns_mul_i32 s21, s5, {28*8192}\ns_add_u32 s21, s21, s20\ns_add_u32 s20, s20, {896*8192}")
        A(f"v_mov_b32 v4, s21\nv_add_u32 v5, {28*8192-128}, v4\nv_mov_b32 v6, s20\nv_mov_b32 v7, 0\ns_mov_b64 exec, 1")
        A(f"global_load_dword v24, v4, {sp(P_V)} nt\nglobal_load_dword v25, v5, {sp(P_V)} nt\nglobal_load_dword v26, v6, {sp(P_V)} nt\nglobal_load_dword v27, v7, {sp(P_W2)} nt")
        A("s_waitcnt vmcnt(0)\ns_mov_b64 exec, -1\nL_tw:")
    A("v_mov_b32 v10, 0\nv_mov_b32 v23, 0\nv_mov_b32 v35, 64")
    A("s_cmp_lg_u32 s3, 1\ns_cbranch_scc1 L_np")
    A(f"s_lshl_b32 s21, s4, 11\ns_add_u32 s21, s21, {WS_Q}\nv_add_u32 v14, s21, v2")
    lspin("sk", L_FK, 1, 10, 11, 16 if calm else 4)
    def ldq():
        if qloc:
            A(f"ds_read_b32 v11, v10 offset:{L_FK}\ns_waitcnt lgkmcnt(0)\nv_readfirstlane_b32 s21, v11\ns_lshr_b32 s21, s21, 1\ns_and_b32 s21, s21, s7")
            if slowfb: A(f"s_cmp_lt_u32 s7, {spin-slowfb}")
            A(f"s_cselect_b32 s21, 0, {WS_QL-WS_Q}\nv_add_u32 v15, s21, v14")
        for i in range(2): A(f"global_load_dwordx4 {v4(16+4*i)}, v{15 if qloc else 14}, {WS} offset:{1024*i} sc1")
    poll("pq", ldq, lambda: chk_tags([17, 19, 21, 23], 4), qsleep)
    A("v_mov_b32 v17, v18\nv_mov_b32 v21, v22\nv_lshlrev_b32 v14, 3, v0\nv_mov_b32 v5, 1")
    A(f"ds_write_b64 v14, v[16:17] offset:{L_Q}\nds_write_b64 v14, v[20:21] offset:{L_Q+512}")
    A(f"ds_write_b32 v10, v5 offset:{L_FQ}")
    stamp(4)
    A("L_np:")
    if xit == 'np': end_wave()
    A("s_cmp_eq_u32 s3, 2\ns_cbranch_scc1 L_post")
    if mlate: A(f"s_cmp_eq_u32 s64, {E_M}\ns_cbranch_scc1 L_ml")
    A("s_cmp_eq_u32 s66, 0\ns_cbranch_scc1 L_done")
    A(f"s_cmp_lg_u32 s66, {R_F}\ns_cbranch_scc1 L_ws")
    A("s_cmp_lg_u32 s3, 0\ns_cbranch_scc1 L_done")
    A("L_ws:")
    lspin("ss0", L_CS, 9, 10, 11, 32 if calm else 16)
    A("s_branch L_pre")
    A("L_done:")
    end_wave()
    A("L_post:")
    a_addr(37, 15)
    A("v_bfe_u32 v36, v0, 2, 2")
    for i in range(4): A(f"v_mov_b32 v{16+i}, -1")
    if xl:
        A(f"v_and_b32 v20, 7, v0\ns_lshl_b32 s20, s4, 7\ns_add_u32 s20, s20, {WS_XB}\nv_lshl_add_u32 v20, v20, 3, s20")
        lspin("sg", L_FK, 1, 10, 11, 32 if calm else 8)
        poll("px", lambda: A(f"global_load_dwordx2 v[22:23], v20, {WS} sc1"), lambda: chk_tags([23], 21), 8)
        A("s_getreg_b32 s20, hwreg(HW_REG_XCC_ID, 0, 4)\nv_cmp_ne_u32 vcc, s20, v22\ns_cbranch_vccz L_ng")
        A(f"v_mov_b32 v5, 1\nds_write_b32 v10, v5 offset:{L_MK}")
    A(f"global_store_dwordx4 v37, v[16:19], {WS} sc1")
    A("L_ng:")
    if loc: A(f"v_add_u32 v39, {WS_AL-WS_A}, v37\nglobal_store_dwordx4 v39, v[16:19], {WS}")
    A("v_lshlrev_b32 v38, 3, v36\nv_mov_b32 v5, 1")
    A(f"s_lshl_b32 s20, s4, 11\ns_lshl_b32 s21, s5, {6 if fl else 4}\ns_add_u32 s20, s20, s21\ns_add_u32 s20, s20, {WS_ST}\nv_lshl_add_u32 v36, v36, {4 if fl else 9}, s20")
    A(f"s_waitcnt vmcnt(0)\ns_mov_b64 exec, 1\nds_add_u32 v10, v5 offset:{L_CS}\ns_mov_b64 exec, -1")
    lspin("ss", L_CS, 9, 10, 11, 16 if calm else 8)
    stamp(1)
    for w in range(8): A(f"ds_read_b64 {v2(40+2*w)}, v38 offset:{L_ST+32*w}")
    A("s_waitcnt lgkmcnt(0)")
    A("v_max3_f32 v56, v40, v42, v44\nv_max3_f32 v56, v56, v46, v48\nv_max3_f32 v56, v56, v50, v52\nv_max_f32 v56, v56, v54")
    for w in range(8): A(f"v_sub_f32 v{28+w}, v{40+2*w}, v56")
    for w in range(8): A(f"v_exp_f32 v{28+w}, v{28+w}")
    A("v_mul_f32 v58, v28, v41")
    for w in range(1, 8): A(f"v_fmac_f32 v58, v{28+w}, v{41+2*w}")
    A("s_getreg_b32 s20, hwreg(HW_REG_XCC_ID, 0, 4)\ns_add_u32 s20, s20, s6\nv_mov_b32 v57, s6\nv_mov_b32 v59, s20")
    A("s_mov_b64 exec, 0x1111")
    A(f"global_store_dwordx4 v36, v[56:59], {WS} sc1")
    A("s_mov_b64 exec, -1")
    stamp(2)
    if mlate: A(f"s_cmp_eq_u32 s64, {E_M}\ns_cbranch_scc1 L_ml")
    A(f"s_cmp_eq_u32 s66, 0\ns_cbranch_scc1 L_done\ns_cmp_eq_u32 s66, {R_F}\ns_cbranch_scc1 L_done")
    A("L_pre:")
    if xit == 'pre': end_wave()
    A(f"s_cmp_eq_u32 s66, {R_F}\ns_cbranch_scc1 L_tf")
    A(f"s_cmp_eq_u32 s66, {R_C}\ns_cbranch_scc1 L_tc")
    if bp: lspin("sz", L_CW, 2, 10, 11, 16); wo_finish(0)
    A(f"s_lshl_b32 s20, s4, 11\ns_lshl_b32 s21, s3, {4 if fl else 9}\ns_add_u32 s20, s20, s21\ns_add_u32 s20, s20, {WS_ST}")
    A(f"v_and_b32 v4, 31, v0\nv_lshl_add_u32 v5, v4, {6 if fl else 4}, s20")
    lspin("sb", L_CV, strig, 10, 11, 12 if calm else 4)
    poll("ps", lambda: A(f"global_load_dwordx4 v[40:43], v5, {WS} sc1"), lambda: A("v_subrev_u32 v43, s6, v43\nv_xor_b32 v6, s6, v41\nv_lshrrev_b32 v7, 4, v43\nv_or_b32 v6, v6, v7\nv_cmp_ne_u32 vcc, 0, v6"), 8)
    A("s_getreg_b32 s20, hwreg(HW_REG_XCC_ID, 0, 4)\nv_cmp_eq_u32 vcc, s20, v43")
    A("s_and_b32 s28, vcc_lo, 0xffff\ns_mul_i32 s28, s28, 0x10001\ns_mov_b32 s29, s28\ns_lshr_b32 s30, vcc_lo, 16\ns_mul_i32 s30, s30, 0x10001\ns_mov_b32 s31, s30")
    A("v_mov_b32 v44, v40")
    inrow("v_max_f32", 44, ["row_ror:8", "row_ror:4", "row_ror:2", "row_ror:1"]); xrow("v_max_f32", 44, 45, 16)
    A("v_sub_f32 v40, v40, v44\nv_exp_f32 v40, v40\nv_mul_f32 v44, v40, v42")
    inrow("v_add_f32", 44, ["row_ror:8", "row_ror:4", "row_ror:2", "row_ror:1"]); xrow("v_add_f32", 44, 45, 16)
    A("v_rcp_f32 v44, v44\nv_mul_f32 v40, v40, v44")
    A("s_lshl_b32 s20, s3, 8\nv_lshl_add_u32 v4, v4, 2, s20\nv_lshrrev_b32 v5, 4, v0\nv_lshl_add_u32 v5, v5, 4, s20")
    A(f"ds_write_b32 v4, v40 offset:{L_X}\nds_read_b128 v[12:15], v5 offset:{L_X}\nds_read_b128 v[16:19], v5 offset:{L_X+64}")
    A("v_and_b32 v1, 15, v0\nv_lshrrev_b32 v4, 4, v0\nv_lshlrev_b32 v24, 4, v1\nv_lshl_add_u32 v22, v4, 14, v24\nv_lshlrev_b32 v1, %d, v1\nv_lshl_add_u32 v1, v4, 4, v1" % (7 if fl else 6))
    A(f"s_lshl_b32 s20, s4, 15\ns_lshl_b32 s21, s3, 13\ns_add_u32 s20, s20, s21\ns_add_u32 s20, s20, {WS_A}\nv_add_u32 v1, s20, v{2 if lin else 1}")
    A(f"v_add_u32 v5, {(WS_AL-WS_A) if loc else 0}, v1\nv_cndmask_b32 v6, v1, v5, s[28:29]\nv_cndmask_b32 v7, v1, v5, s[30:31]\nv_add_u32 v8, 4096, v6\nv_add_u32 v9, 4096, v7")
    A("s_lshl_b32 s20, s3, 8\nv_lshl_add_u32 v21, v0, 2, s20")
    A(f"s_lshl_b32 s20, s4, 11\ns_lshl_b32 s21, s67, 8\ns_add_u32 s20, s20, s21\ns_add_u32 s20, s20, {WS_B}\ns_lshl_b32 s21, s3, 16\ns_add_u32 s20, s20, s21\nv_add_u32 v22, s20, v22")
    A("s_waitcnt lgkmcnt(0)")
    stamp(5)
    AR = lambda c, s_: 40 + 16 * s_ + 4 * c
    D = lambda s_, nt: 72 + 16 * s_ + 4 * nt
    def lda(s_):
        for c in range(4): A(f"global_load_dwordx4 {v4(AR(c,s_))}, v{6+s_+(0 if c<2 else 2)}, {WS} offset:{(64*(c&1)+2048*s_) if fl else (2048*(c&1)+1024*s_)} {lpol}")
    def mm(s_, other_done):
        wr = 12 + 4 * s_
        def fin(nt):
            d = D(s_, nt)
            r = [f"v_pk_mul_f32 {v2(d)}, {v2(d)}, {v2(wr)}", f"v_pk_fma_f32 {v2(d)}, {v2(d+2)}, {v2(wr+2)}, {v2(d)}", f"v_add_f32 v{d}, v{d}, v{d+1}"]
            if other_done: r.append(f"v_add_f32 v{D(0,nt)}, v{D(0,nt)}, v{D(1,nt)}")
            return r
        for c in range(4):
            for nt in (0, 2, 1, 3):
                d = D(s_, nt)
                A(f"v_mfma_f32_16x16x32_bf16 {v4(d)}, {v4(AR(c,s_))}, {v4(104+16*c+4*nt)}, {'0' if c==0 else v4(d)}")
        for grp in zip(fin(0), fin(2), fin(1), fin(3)):
            for l in grp: A(l)
        if other_done: A("v_permlane32_swap_b32 v72, v80\nv_add_f32 v72, v72, v80")
    if dry:
        A("s_mov_b64 s[80:81], 0\ns_mov_b64 s[32:33], 0\ns_mov_b64 s[34:35], 0\ns_mov_b32 s84, 0\ns_mov_b64 exec, 0\ns_branch L_pb0")
        A("L_bdr:\ns_cmp_eq_u32 s84, 0\ns_mov_b32 s84, 1\ns_cbranch_scc1 L_pb1\ns_mov_b64 exec, -1")
    A("s_mov_b64 s[80:81], -1")
    if bdefer:
        if bdefer <= 8: lspin("sd", L_CV, bdefer, 10, 11, 1)
        else: lspin("sd", L_FP, 1, 10, 11, 1)
        A("s_setprio 1"); wo_issue(bearly, 16); lda(0); lda(1); A("s_setprio 3"); wo_finish(8)
        stamp(4)
        A(f"s_mov_b32 s7, {spin}\ns_branch L_pa2")
    if atrig: lspin("sa", L_FO + (4 if atrig > 4 else 0), atrig - 4 if atrig > 4 else atrig, 10, 11, 2)
    A(f"s_mov_b32 s7, {spin}\ns_mov_b64 s[32:33], -1\ns_mov_b64 s[34:35], -1")
    A("L_pa:")
    A("s_mov_b64 exec, s[32:33]"); lda(0)
    A("s_mov_b64 exec, s[34:35]"); lda(1)
    A("s_mov_b64 exec, -1")
    A("L_pa2:")
    A("s_waitcnt vmcnt(4)")
    chk_sent(range(40, 56), 23); A("s_mov_b64 s[32:33], vcc")
    A("s_waitcnt vmcnt(0)")
    chk_sent(range(56, 72), 23); A("s_mov_b64 s[34:35], vcc")
    A("s_cbranch_vccz L_pa1\ns_cmp_eq_u64 s[32:33], 0\ns_cbranch_scc1 L_pa0")
    if tsleep: A(f"s_sleep {tsleep}")
    if bhold:
        A("s_mov_b32 s85, s7"); lspin("sy", L_FO + 4 * (bhold - 1), 1, 10, 11, 2); A("s_mov_b32 s7, s85")
    A("s_sub_u32 s7, s7, 1\ns_cbranch_scc0 L_pa")
    for first in (0, 1):
        sec = 1 - first
        A(f"L_pa{first}:")
        mk = sp(32 + 2 * sec)
        A(f"s_cmp_eq_u64 {mk}, 0\ns_cbranch_scc1 L_pb{first}")
        A(f"s_mov_b64 exec, {mk}"); lda(sec); A("s_mov_b64 exec, -1")
        A(f"L_pb{first}:")
        mm(first, False)
        A(f"s_mov_b64 exec, {mk}\ns_cbranch_execz L_pd{first}")
        for _ in range(pd - 1): lda(sec)
        A(f"L_pc{first}:")
        A(f"s_waitcnt vmcnt({4*(pd-1)})")
        chk_sent(range(40 + 16 * sec, 56 + 16 * sec), 23)
        A(f"s_cbranch_vccz L_pd{first}\ns_mov_b64 exec, vcc")
        lda(sec)
        A(f"s_sub_u32 s7, s7, 1\ns_cbranch_scc0 L_pc{first}\ns_waitcnt vmcnt(0)")
        A(f"L_pd{first}:")
        A("s_mov_b64 exec, s[80:81]")
        stamp(6)
        mm(sec, True)
        if first == 0: A("s_branch L_pe")
    A("L_pe:\ns_nop 0")
    A("v_permlane32_swap_b32 v76, v84\nv_add_f32 v76, v76, v84")
    A("v_permlane16_swap_b32 v72, v76\nv_add_f32 v72, v72, v76")
    A(f"ds_write_b32 v21, v72 offset:{L_RED}")
    A("s_waitcnt lgkmcnt(0)")
    if dry: A("s_cbranch_execz L_bnb")
    A("s_barrier")
    A(f"s_cmp_ge_u32 s3, {2 if R == 8 else 1}\ns_cbranch_scc1 L_done")
    A("L_bnb:")
    for w in range(4): A(f"ds_read_b128 {v4(88+4*w)}, v24 offset:{L_RED+256*w}")
    assert R in (4, 8)
    A("s_waitcnt lgkmcnt(2)\nv_pk_add_f32 v[88:89], v[88:89], v[92:93]\nv_pk_add_f32 v[90:91], v[90:91], v[94:95]")
    A("s_waitcnt lgkmcnt(0)\nv_pk_add_f32 v[96:97], v[96:97], v[100:101]\nv_pk_add_f32 v[98:99], v[98:99], v[102:103]")
    A("v_pk_add_f32 v[88:89], v[88:89], v[96:97]\nv_pk_add_f32 v[90:91], v[90:91], v[98:99]")
    if dry: A("s_cbranch_execz L_bdr")
    A(f"global_store_dwordx4 v22, v[88:91], {WS} sc1")
    stamp(7)
    end_wave()
    A("L_tc:")
    A("s_mov_b32 s26, s67")
    srd(8, P_W1, 512 * 3584); srd(12, P_W2, 1792 * 1024)
    A("v_lshrrev_b32 v23, 4, v0\nv_lshlrev_b32 v23, 4, v23")
    A("v_lshrrev_b32 v1, 2, v0\ns_mov_b32 s20, 3584\nv_mul_lo_u32 v1, v1, s20\nv_and_b32 v12, 3, v0\nv_lshl_add_u32 v1, v12, 4, v1")
    A(f"s_mul_i32 s20, s3, {128*3584}\ns_lshl_b32 s21, s26, 6\ns_add_u32 s20, s20, s21")
    A("v_lshlrev_b32 v18, 6, v23\nv_and_b32 v13, 15, v0\nv_lshl_add_u32 v18, v13, 4, v18")
    A("s_lshl_b32 s27, s26, 15\ns_lshl_b32 s21, s3, 8\ns_add_u32 s27, s27, s21")
    A(f"s_lshl_b32 s23, s3, 14\ns_add_u32 s23, s23, {L_WT}")
    if not w1early: dma([f"buffer_load_dwordx4 v1, s[8:11], s20 offen {w1pol} lds\ns_add_u32 s20, s20, {16*3584}" for i in range(8)], 0)
    def w2load():
        A("s_add_u32 s23, s23, 8192")
        dma([f"buffer_load_dwordx4 v18, s[12:15], s27 offen {wpol} lds\ns_add_u32 s27, s27, 4096" for i in range(8)], 0)
    A("v_lshrrev_b32 v12, 4, v0\nv_bfe_u32 v13, v0, 2, 2\nv_and_b32 v14, 3, v0\nv_lshl_add_u32 v14, v14, 3, s23")
    A("v_lshl_add_u32 v1, v12, 9, v14\nv_lshl_add_u32 v1, v13, 6, v1")
    A("v_lshl_add_u32 v19, v12, 10, v14\nv_lshl_add_u32 v19, v13, 8, v19")
    if not w2late: w2load()
    A("v_and_b32 v20, 31, v0\nv_lshlrev_b32 v20, 3, v20\nv_lshrrev_b32 v21, 5, v0\nv_lshl_add_u32 v20, v21, 2, v20")
    A("s_lshl_b32 s20, s3, 8\nv_add_u32 v20, s20, v20")
    A(f"global_load_dword v22, v20, {sp(P_X)}\nglobal_load_dwordx4 v[28:31], v2, {sp(P_X)}")
    A(f"v_lshlrev_b32 v21, 1, v20\nv_add_u32 v21, {WS_MOD}, v21\nv_add_u32 v24, 4096, v21")
    A("s_waitcnt vmcnt(0)")
    for c in range(4):
        for mt in range(2):
            for hi in range(2):
                A(f"ds_read_b64_tr_b16 {v2(104+8*c+4*mt+2*hi)}, v1 offset:{(32*c+4*hi)*64+mt*32}")
        if c & 1: A("s_waitcnt lgkmcnt(0)")
    unpack(4, [22], 1)
    unpack(48, [28, 29, 30, 31], 4)
    A("v_pk_add_f32 v[48:49], v[48:49], v[50:51]\nv_pk_add_f32 v[52:53], v[52:53], v[54:55]\nv_pk_add_f32 v[48:49], v[48:49], v[52:53]\nv_add_f32 v48, v48, v49")
    wave_reduce("v_add_f32", 48, 49)
    A(f"v_mul_f32 v48, {f2x(1/512)}, v48\nv_sub_f32 v4, v4, v48\nv_sub_f32 v5, v5, v48")
    def w2tr():
        for tau in range(8):
            for hi in range(2):
                A(f"ds_read_b64_tr_b16 {v2(136+4*tau+2*hi)}, v19 offset:{8192+hi*4096+tau*32}")
            if tau % 4 == 3: A("s_waitcnt lgkmcnt(0)")
    if mlate:
        lspin("sv0", L_CV, 4, 10, 11, 16); lspin("sv", L_FP, 1, 10, 11, 2); w2load(); A("s_waitcnt vmcnt(0)"); w2tr(); stamp(4)
    poll("pm", lambda: A(f"global_load_dwordx2 v[40:41], v21, {WS} sc1\nglobal_load_dwordx2 v[42:43], v21, {WS} offset:2048 sc1\nglobal_load_dwordx2 v[44:45], v24, {WS} sc1"),
         lambda: chk_tags([41, 43, 45], 46), 2 if mlate else 16)
    unpack(6, [40, 44], 2)
    A("v_add_f32 v8, 1.0, v8\nv_add_f32 v9, 1.0, v9\nv_cvt_pk_bf16_f32 v44, v8, v9")
    unpack(8, [44], 1)
    A(f"ds_write_b32 v20, v44 offset:{L_U}\nds_write_b32 v20, v42 offset:{L_U+1024}")
    A("v_add_u32 v21, s20, v23\nv_and_b32 v22, 1, v0\nv_lshl_add_u32 v22, v22, 10, v21")
    for c in range(4): A(f"ds_read_b128 {v4(48+4*c)}, v22 offset:{L_U+64*c}")
    A("s_waitcnt lgkmcnt(0)")
    for c in range(4):
        for mt in range(2):
            A(f"v_mfma_f32_16x16x32_bf16 {v4(24+4*mt)}, {v4(104+8*c+4*mt)}, {v4(48+4*c)}, {'0' if c==0 else v4(24+4*mt)}")
    A("s_mov_b32 exec_lo, 0x00030003\ns_mov_b32 exec_hi, 0x00030003")
    A(f"ds_write_b128 v22, v[24:27] offset:{L_GS}\nds_write_b128 v22, v[28:31] offset:{L_GS+64}")
    A("s_mov_b64 exec, 1\nv_mov_b32 v33, 1")
    A(f"ds_add_u32 v10, v33 offset:{L_CP}")
    A("s_mov_b64 exec, -1")
    A("v_and_b32 v1, 31, v0\nv_lshlrev_b32 v1, 4, v1\nv_lshrrev_b32 v16, 5, v0\nv_lshl_add_u32 v1, v16, 11, v1")
    A(("s_lshr_b32 s21, s4, 1" if rx else f"s_and_b32 s21, {'s4' if R == 8 else 's26'}, {R-1}") + f"\ns_lshl_b32 s21, s21, 14\ns_lshl_b32 s20, s3, 9\ns_add_u32 s20, s20, s21\ns_add_u32 s20, s20, {WS_B}\nv_add_u32 v1, s20, v1")
    A("v_add_u32 v12, 4096, v1\nv_add_u32 v13, 8192, v1\nv_add_u32 v14, 12288, v1")
    A(f"s_lshl_b32 s20, s3, 8\nv_lshl_add_u32 v22, v16, 2, s20")
    A("v_and_b32 v33, 3, v0\nv_lshlrev_b32 v33, 8, v33\nv_bfe_u32 v32, v0, 3, 1\nv_lshl_add_u32 v32, v32, 6, v33\nv_add_u32 v32, v32, v23")
    A(f"s_mov_b32 s22, {f2x(1/512)}\nv_mov_b32 v34, {f2x(1e-5)}")
    lspin("sp", L_CP, 4, 10, 11, 0 if mlate else 4, lambda: A(f"ds_read_b128 v[24:27], v32 offset:{L_GS}\nds_read_b128 v[28:31], v32 offset:{L_GS+1024}"))
    for qp in ("[1,0,3,2]", "[2,3,0,1]"):
        for i in range(8): A(f"v_add_f32_dpp v{24+i}, v{24+i}, v{24+i} quad_perm:{qp} {DPPF}")
    if dry:
        A("s_mov_b64 s[80:81], 0\ns_mov_b64 s[82:83], 0\ns_mov_b64 exec, 0\ns_branch L_pbd\nL_cdr:\ns_mov_b64 exec, -1")
    A("s_mov_b64 s[80:81], -1\ns_mov_b32 s82, 0x00010001\ns_mov_b32 s83, 0x00010001")
    if not mlate:
        stamp(4)
        lspin("sv0", L_CV, 4, 10, 11, 16); lspin("sv", L_FP, 1, 10, 11, 2)
        if w2late: w2load()
    cs = 13 if cpad else 12
    A(f"s_lshl_b32 s20, s3, {cs+3}\ns_lshl_b32 s21, s26, {cs-6}\ns_add_u32 s20, s20, s21\ns_add_u32 s20, s20, {WS_C}")
    A(f"v_bfe_u32 v35, v0, 2, 3\nv_lshlrev_b32 v35, {cs}, v35\nv_and_b32 v36, 3, v0\nv_lshl_add_u32 v35, v36, 4, v35\nv_add_u32 v35, s20, v35")
    if not mlate: A("s_waitcnt vmcnt(0)"); w2tr()
    stamp(5)
    G = 40; Hh = 88
    def gather4(name, base, addr, tmp, sleep):
        if g4:
            A(f"s_mov_b32 s7, {spin}")
            for i in range(4): A(f"global_load_dwordx4 {v4(base+4*i)}, {addr(i)} sc1\ns_mov_b64 {sp(28+2*i)}, -1")
            A(f"L_{name}t:\ns_waitcnt vmcnt(0)\ns_mov_b32 s21, 0")
            for i in range(4):
                A(f"s_mov_b64 exec, {sp(28+2*i)}\ns_cbranch_execz L_{name}s{i}")
                A(f"v_max3_u32 v{tmp}, v{base+4*i}, v{base+4*i+1}, v{base+4*i+2}\nv_max_u32 v{tmp}, v{tmp}, v{base+4*i+3}\nv_cmp_eq_u32 vcc, -1, v{tmp}")
                A(f"s_mov_b64 {sp(28+2*i)}, vcc\ns_cbranch_vccz L_{name}s{i}\ns_mov_b64 exec, vcc\nglobal_load_dwordx4 {v4(base+4*i)}, {addr(i)} sc1\ns_mov_b32 s21, 1")
                A(f"L_{name}s{i}:")
            A(f"s_mov_b64 exec, -1\ns_cmp_eq_u32 s21, 0\ns_cbranch_scc1 L_{name}d\ns_sub_u32 s7, s7, 1\ns_cbranch_scc0 L_{name}t\ns_waitcnt vmcnt(0)")
            A(f"L_{name}d:")
            return
        A(f"s_mov_b32 s7, {spin}")
        for _ in range(pd):
            for i in range(4): A(f"global_load_dwordx4 {v4(base+4*i)}, {addr(i)} sc1")
        A(f"L_{name}t:")
        A(f"s_waitcnt vmcnt({4*(pd-1)})")
        for i in range(4): A(f"v_max3_u32 v{tmp+i}, v{base+4*i}, v{base+4*i+1}, v{base+4*i+2}")
        for i in range(4): A(f"v_max_u32 v{tmp+i}, v{tmp+i}, v{base+4*i+3}")
        A(f"v_max3_u32 v{tmp+4}, v{tmp}, v{tmp+1}, v{tmp+2}\nv_max_u32 v{tmp+4}, v{tmp+4}, v{tmp+3}\nv_cmp_eq_u32 vcc, -1, v{tmp+4}\ns_cbranch_vccz L_{name}d")
        for i in range(4): A(f"v_cmp_eq_u32 {sp(28+2*i)}, -1, v{tmp+i}")
        if sleep: A(f"s_sleep {sleep}")
        for i in range(4):
            A(f"s_or_b64 exec, {sp(28+2*i)}, 1\nglobal_load_dwordx4 {v4(base+4*i)}, {addr(i)} sc1")
        A(f"s_mov_b64 exec, -1\ns_sub_u32 s7, s7, 1\ns_cbranch_scc0 L_{name}t")
        A(f"L_{name}d:")
    gather4("pb", Hh, lambda i: f"v{1 if i==0 else 11+i}, {WS}", 56, csleep)
    stamp(6)
    A(f"v_pk_add_f32 {v2(G)}, {v2(Hh)}, {v2(Hh+4)}\nv_pk_add_f32 {v2(G+2)}, {v2(Hh+2)}, {v2(Hh+6)}\nv_pk_add_f32 {v2(G+8)}, {v2(Hh+8)}, {v2(Hh+12)}\nv_pk_add_f32 {v2(G+10)}, {v2(Hh+10)}, {v2(Hh+14)}")
    A(f"v_pk_add_f32 {v2(G)}, {v2(G)}, {v2(G+8)}\nv_pk_add_f32 {v2(G+2)}, {v2(G+2)}, {v2(G+10)}")
    A(f"v_permlane32_swap_b32 v{G}, v{G+2}\nv_permlane32_swap_b32 v{G+1}, v{G+3}")
    A(f"v_pk_add_f32 {v2(G)}, {v2(G)}, {v2(G+2)}")
    A(f"v_pk_fma_f32 v[4:5], {v2(G)}, v[6:7], v[4:5]")
    A("v_pk_mul_f32 v[6:7], v[4:5], v[8:9]\nv_cvt_pk_bf16_f32 v6, v6, v7")
    A(f"ds_write_b32 v20, v6 offset:{L_U}")
    for c in range(4): A(f"ds_read_b128 {v4(44+4*c)}, v21 offset:{L_U+64*c}")
    A("v_add_f32 v16, v4, v5\nv_mul_f32 v17, v4, v4\nv_fmac_f32 v17, v5, v5")
    A("v_permlane32_swap_b32 v16, v17\nv_add_f32 v16, v16, v17")
    xrow("v_add_f32", 16, 17, 16)
    steps = ["row_ror:8", "row_ror:4", "row_ror:2", "row_ror:1"]
    for c in range(4):
        A(f"s_waitcnt lgkmcnt({3-c})")
        for mt in range(2):
            A(f"v_mfma_f32_16x16x32_bf16 {v4(60+4*mt)}, {v4(104+8*c+4*mt)}, {v4(44+4*c)}, {'0' if c==0 else v4(60+4*mt)}")
        inrow("v_add_f32", 16, [steps[c]])
    A("s_mov_b64 exec, s[82:83]")
    A(f"ds_write_b32 v22, v16 offset:{L_RED+128}")
    A(f"ds_write_b128 v21, v[60:63] offset:{L_RED}\nds_write_b128 v21, v[64:67] offset:{L_RED+64}")
    A("s_mov_b64 exec, s[80:81]")
    A("s_waitcnt lgkmcnt(0)")
    if dry: A("s_cbranch_execz L_cnb")
    A("s_barrier\nL_cnb:")
    A(f"ds_read_b64 v[12:13], v33 offset:{L_RED+128}\nds_read_b128 v[40:43], v32 offset:{L_RED}")
    A("s_waitcnt lgkmcnt(0)")
    for qp in ("[1,0,3,2]", "[2,3,0,1]"):
        for r in (12, 13, 40, 41, 42, 43): A(f"v_add_f32_dpp v{r}, v{r}, v{r} quad_perm:{qp} {DPPF}")
    A("v_mul_f32 v12, s22, v12\nv_fma_f32 v14, v13, s22, v34\nv_fma_f32 v14, -v12, v12, v14\nv_max_f32 v14, v14, v34\nv_rsq_f32 v14, v14")
    for q in range(2): A(f"v_pk_fma_f32 {v2(40+2*q)}, {v2(24+2*q)}, v[12:13], {v2(40+2*q)} op_sel_hi:[1,0,1] neg_lo:[0,1,0] neg_hi:[0,1,0]")
    for q in range(2): A(f"v_pk_fma_f32 {v2(40+2*q)}, {v2(40+2*q)}, v[14:15], {v2(28+2*q)} op_sel_hi:[1,0,1]")
    for q in range(2): A(f"v_cvt_pk_bf16_f32 v{48+q}, v{40+2*q}, v{41+2*q}")
    for q in range(2): A(f"v_pk_max_i16 v{48+q}, v{48+q}, 0")
    for q in range(2): A(f"v_mov_b32_dpp v{50+q}, v{48+q} row_shl:8 {DPPF} bound_ctrl:0")
    for tau in (0, 2, 4, 6, 1, 3, 5, 7): A(f"v_mfma_f32_16x16x32_bf16 {v4(56+4*tau)}, v[48:51], {v4(136+4*tau)}, 0")
    for j in (1, 2, 3): A(f"v_mov_b32 v{56+j}, v{56+8*j}")
    for j in range(4): A(f"v_mov_b32_dpp v{56+j}, v{60+8*j} quad_perm:[0,1,2,3] row_mask:0x2 bank_mask:0xf")
    if dry: A("s_cbranch_execz L_cdr")
    A("s_mov_b32 exec_hi, 0")
    A(f"global_store_dwordx4 v35, v[56:59], {WS} sc1")
    stamp(7)
    end_wave()
    A("L_tf:")
    prb("cs")
    A("s_mov_b32 s26, s67\ns_lshr_b32 s20, s26, 3\ns_lshl_b32 s20, s20, 7\ns_and_b32 s21, s26, 7\ns_lshl_b32 s21, s21, 2\ns_add_u32 s20, s20, s21")
    A("v_and_b32 v4, 3, v0\nv_lshrrev_b32 v5, 4, v0\nv_lshl_add_u32 v4, v5, 5, v4\nv_add_u32 v4, s20, v4\nv_lshlrev_b32 v5, 1, v4")
    A(f"global_load_ushort v8, v5, {sp(P_X)}")
    if tw: A(f"global_load_ushort v33, v5, {sp(P_OUT)}")
    A(f"v_lshrrev_b32 v6, 1, v4\nv_lshlrev_b32 v6, 3, v6\nv_add_u32 v6, {WS_MOD}, v6\nv_add_u32 v7, 6144, v6")
    if mlate: lspin("sf0", L_FP, 1, 10, 11, 16)
    poll("pg", lambda: A(f"global_load_dwordx2 v[12:13], v6, {WS} sc1\nglobal_load_dwordx2 v[14:15], v7, {WS} sc1"),
         lambda: chk_tags([13, 15], 16), 4 if mlate else 16)
    A("v_lshlrev_b32 v8, 16, v8")
    A("v_and_b32 v16, 1, v4\nv_cmp_eq_u32 vcc, 0, v16")
    A("v_lshlrev_b32 v16, 16, v12\nv_and_b32 v17, 0xffff0000, v12\nv_cndmask_b32 v9, v17, v16, vcc")
    A("v_lshlrev_b32 v16, 16, v14\nv_and_b32 v17, 0xffff0000, v14\nv_cndmask_b32 v12, v17, v16, vcc")
    A(f"v_bfe_u32 v6, v0, 2, 2\nv_lshlrev_b32 v6, 12, v6\nv_lshl_add_u32 v6, v4, 2, v6\nv_add_u32 v6, {WS_B}, v6")
    if R == 8: A("s_lshl_b32 s20, s4, 14\nv_add_u32 v6, s20, v6")
    if rx: A("s_lshr_b32 s20, s4, 1\ns_lshl_b32 s20, s20, 14\nv_add_u32 v6, s20, v6")
    if cpad: A(f"s_lshl_b32 s20, s26, 13\ns_add_u32 s20, s20, {WS_C}\nv_lshrrev_b32 v7, 2, v0\nv_lshl_add_u32 v7, v7, 6, v2\nv_add_u32 v7, s20, v7\nv_add_u32 v32, 4096, v7")
    else: A(f"s_lshl_b32 s20, s26, 12\ns_add_u32 s20, s20, {WS_C}\nv_add_u32 v7, s20, v2")
    if dry: A("s_mov_b64 exec, 0\ns_branch L_fd\nL_fdr:\ns_mov_b64 exec, -1")
    lspin("sf", L_FP, 1, 10, 11, 16 if calm else 4)
    prb("fp")
    poll("pxb", lambda: A(f"global_load_dword v13, v6, {WS} sc1\nglobal_load_dword v14, v6, {WS} offset:2048 sc1"), lambda: chk_sent([13, 14], 15), xsleep)
    A("v_add_f32 v13, v13, v14")
    inrow("v_add_f32", 13, ["row_ror:8", "row_ror:4"])
    A("v_fma_f32 v8, v9, v13, v8")
    prb("b")
    stamp(6)
    if fdelay: A(f"s_sleep {fdelay}")
    gather4("pc", 40, lambda i: f"v{(7 if i<2 else 32) if cpad else 7}, {WS} offset:{2048*(i&1) if cpad else 1024*i}", 56, fsleep)
    A("L_fd:")
    stamp(7)
    A("v_pk_add_f32 v[16:17], v[40:41], v[44:45]\nv_pk_add_f32 v[18:19], v[42:43], v[46:47]\nv_pk_add_f32 v[24:25], v[48:49], v[52:53]\nv_pk_add_f32 v[26:27], v[50:51], v[54:55]")
    A("v_pk_add_f32 v[16:17], v[16:17], v[24:25]\nv_pk_add_f32 v[18:19], v[18:19], v[26:27]")
    A("v_permlane32_swap_b32 v16, v18\nv_permlane32_swap_b32 v17, v19\nv_pk_add_f32 v[16:17], v[16:17], v[18:19]")
    A("v_permlane16_swap_b32 v16, v17\nv_add_f32 v16, v16, v17")
    inrow("v_add_f32", 16, ["row_ror:8", "row_ror:4"])
    A("v_fma_f32 v16, v12, v16, v8\nv_cvt_pk_bf16_f32 v16, v16, v16")
    if dry: A("s_cbranch_execz L_fdr")
    A("s_mov_b32 exec_lo, 0x000f000f\ns_mov_b32 exec_hi, 0x000f000f")
    A(f"global_store_short v5, v16, {sp(P_OUT)}")
    A("s_cmp_lg_u32 s26, 0\ns_cbranch_scc1 L_tfe")
    A("s_mov_b64 exec, 1\nv_mov_b32 v18, s6")
    A(f"global_store_dword v10, v18, {WS}")
    if fixend:
        prb("end")
        A(f"L_fx:\ns_memrealtime s[98:99]\ns_waitcnt lgkmcnt(0)\ns_sub_u32 s98, s98, {'s94' if probe else 's96'}\ns_cmp_lt_u32 s98, {fixend}\ns_cbranch_scc1 L_fx")
    A("L_tfe:")
    stamp(4)
    end_wave()
    if stamps:
        A("L_stampout:")
        if st0: A("s_waitcnt lgkmcnt(0)\nv_writelane_b32 v3, s90, 0\ns_cmp_lt_u32 s3, 4\ns_cbranch_scc1 L_so9\nv_writelane_b32 v3, s92, 1\nv_writelane_b32 v3, s94, 2\nL_so9:")
        if stamps == 2:
            A("s_cmp_lg_u32 s2, 32\ns_cbranch_scc1 L_exit\ns_and_b32 s20, s3, 11\ns_cbranch_scc1 L_exit")
            A("s_mov_b64 exec, 0xff\ns_lshl_b32 s20, s3, 3\nv_lshl_add_u32 v1, v0, 2, s20")
            A(f"global_store_dword v1, v3, {sp(P_DBG)}\ns_endpgm")
        A("s_mov_b64 exec, 0xff")
        A("s_mul_i32 s20, s2, 12\ns_add_u32 s20, s20, s3\ns_lshl_b32 s20, s20, 5")
        A(f"s_add_u32 s20, s20, {WS_STAMP}")
        A("v_lshl_add_u32 v1, v0, 2, s20")
        A(f"global_store_dword v1, v3, {WS}")
    A("L_exit:\ns_endpgm")
    A(".p2align 6\n.type L_tab,@object\nL_tab:")
    for wg in range(256):
        r = roles[(xp[wg & 7] if xp else wg & 7), wg >> 3]; skip = T - r['n']
        assert skip < 8, (wg, r)
        A(f".long {(r['pre'] - skip + 16) | skip << 12 | r['e'] << 15 | r['ei'] << 18 | r['l'] << 23 | r['li'] << 25:#x}")
    A("L_endcode:")
    A('.section .rodata,"a"\n.p2align 6')
    A(f".amdhsa_kernel {NAME}")
    for l in ["next_free_vgpr 168", "next_free_sgpr 102", "accum_offset 168", "group_segment_fixed_size 0", "kernarg_size 104",
              "user_sgpr_count 2", "user_sgpr_kernarg_segment_ptr 1", "system_sgpr_workgroup_id_x 1"]:
        A("  .amdhsa_" + l)
    A(".end_amdhsa_kernel")
    return A.finish()

if __name__ == "__main__":
    out = sys.argv[1]; kw = {}
    for a in sys.argv[2:]:
        k, v = a.split("=", 1)
        try: v = ast.literal_eval(v)
        except Exception: pass
        kw[k] = v
    open(out, "w").write(gen(**kw))
    import json
    roles, T = make_plan(kw.get('plan', 'A'), **{k: v for k, v in kw.items() if k in ('cH','cQ','cM','cB','cC','T','c3','Fx')})
    json.dump([[roles[wg & 7, wg >> 3][k] for k in ('e', 'l', 'n')] for wg in range(256)], open(out + ".roles", "w"))
```

```python
import sys, struct, ast
from asmlib import Asm
NAME = "adaLN_cond__gqa_block_cached__dense_activation_relu__decode_kernel"
def f2x(f): return "0x%08x" % struct.unpack("<I", struct.pack("<f", f))[0]

WS_XB = 0x14000; WS_QL = 0x10000; WS_H = 0x18000; WS_MOD = 0x4000; WS_Q = 0x8000; WS_ST = 0xC000
WS_AL = 0xC0000; WS_A = 0x80000; WS_B = 0x20000; WS_C = 0x40000
WS_STAMP = 0x8000000
L_CG = 0; L_FQ = 4; L_CS = 8; L_CT = 68; L_CP = 16; L_FK = 20; L_CV = 24; L_CW = 28; L_FO = 32; L_MK = 64; L_FP = 12
L_ST = 256; L_Q = 1024; L_GP = 2048; L_X = 3072; L_RED = 4096; L_U = 5120; L_GS = 8192
L_OP = 16384; L_WT = 32768; LDS_SIZE = 98304
DPPF = "row_mask:0xf bank_mask:0xf"
P_X, P_K, P_V, P_WQ, P_WO, P_BX, P_W1, P_W2, P_C, P_WM, P_OUT, P_DBG, P_WS = [36 + 2 * i for i in range(13)]
def sp(n): return f"s[{n}:{n+1}]"
def v4(n): return f"v[{n}:{n+3}]"
def v2(n): return f"v[{n}:{n+1}]"
WS = sp(P_WS)

DOC = '''; ---------------------------------------------------------------------------------------------
; One persistent launch, 256 workgroups (one per CU) x 12 waves.  x = wg&7 = kv head, a = wg>>3 = key split.
;     max, V tiles -> v_perm transpose -> MFMA, workgroup partial summed through LDS and published.
;     H: sa/ca slice of silu(c)@w_mod   Q: LN(x)*(1+ca)+sa, q slice   M: ga/sb/cb/gb slice
;     B: split combine (global softmax weights) + wo slice            C: residual, LN, FFN slice
; ---------------------------------------------------------------------------------------------'''
E_H, E_Q, E_M, E_B = 1, 2, 3, 4
R_B, R_C, R_F = 1, 2, 3
def make_plan(plan, **pk):
    P = dict(PLANS[plan]); P.update(pk)
    roles = {(x, a): dict(e=0, ei=0, l=0, li=0) for x in range(8) for a in range(32)}
    hi = mi = ci = fi = 0
    for x in range(8):
        a = 0
        for _ in range(P['H'][x]): roles[x, a].update(e=E_H, ei=hi); hi += 1; a += 1
        for c in range(8):
            roles[x, a].update(e=E_Q, ei=c)
            if (x & 1 == P['Fx'] if 'Fx' in P else c in (0, 1, 4, 5)): roles[x, a].update(l=R_F, li=fi); fi += 1
            a += 1
        for c in range(8): roles[x, a].update(e=E_B, ei=c, l=R_B, li=c); a += 1
        for _ in range(P['M'][x]): roles[x, a].update(e=E_M, ei=mi); mi += 1; a += 1
        assert a <= 32
        cand = [b for b in range(31, -1, -1) if roles[x, b]['e'] == 0] + [b for b in range(32) if roles[x, b]['e'] == E_H] + [b for b in range(32) if roles[x, b]['e'] == E_M]
        for b in cand[:P['C'][x]]: roles[x, b].update(l=R_C, li=ci); ci += 1
    assert (hi, mi, ci, fi) == (32, 32, 56, 32), (hi, mi, ci, fi)
    for x in range(8):
        cost = []
        for a in range(32):
            r = roles[x, a]
            c = {0: 0, E_H: P['cH'], E_Q: P['cQ'], E_M: P['cM'], E_B: P['cB']}[r['e']]
            cb = r['ei'] if r['e'] in (E_Q, E_B) else (r['ei'] >> 2)
            if r['e'] and cb == 3: c += P['c3'][r['e']]
            if r['l'] == R_C: c += P['cC']
            cost.append(c)
        n = [max(28, P['T'] - 7)] * 32
        for _ in range(1024 - sum(n)):
            b = min((a for a in range(32) if n[a] < P['T']), key=lambda a: (n[a] + cost[a], -a))
            n[b] += 1
        if P.get('adj') and x & 1:
            give = 0
            for a in range(32):
                r = roles[x, a]
                if r['e'] == E_B and (r['ei'] == 3 or r['ei'] >= 8 - P['adj'] + 1): n[a] -= 1; give += 1
            for a in range(32):
                r = roles[x, a]
                if give and r['l'] == R_C and (r['li'] >> 1) % 4 != 3: n[a] += 1; give -= 1
            assert give == 0
        pre = 0
        for a in range(32):
            roles[x, a].update(n=n[a], pre=pre); pre += n[a] - 28
    T = max(r['n'] for r in roles.values()); T += T & 1
    return roles, T
base = dict(cH=2.0, cQ=3.6, cM=4.2, cB=3.6, cC=4.0, c3={E_H: 0.5, E_Q: 1.7, E_M: 1.5, E_B: 1.0}, T=34)
base2 = dict(cH=1.6, cQ=4.0, cM=4.5, cB=3.4, cC=5.3, c3={E_H: 0.7, E_Q: 2.3, E_M: 1.8, E_B: 2.4}, T=36)
PLANS = {
 'A': dict(base, H=[4]*8, M=[4]*8, C=[7]*8),
 'B': dict(base, H=[8,0,8,0,8,0,8,0], M=[8,0,8,0,8,0,8,0], C=[14,0,14,0,14,0,14,0]),
 'C': dict(base, H=[8,0,8,0,8,0,8,0], M=[8,0,8,0,8,0,8,0], C=[7]*8),
 'D': dict(base, H=[8,8,8,8,0,0,0,0], M=[8,0,8,0,8,0,8,0], C=[14,0,14,0,14,0,14,0]),
 'E': dict(base, H=[8,8,8,8,0,0,0,0], M=[8,0,8,0,8,0,8,0], C=[8,6,8,6,8,6,8,6]),
 'G': dict(base2, H=[8,0,8,0,8,0,8,0], M=[8,0,8,0,8,0,8,0], C=[7]*8),
 'H': dict(base2, H=[8,0,8,0,8,0,8,0], M=[8,0,8,0,8,0,8,0], C=[8,8,8,12,8,2,8,2]),
 'I': dict(base2, H=[8,0,8,8,4,0,4,0], M=[8,0,8,0,8,0,8,0], C=[8,8,8,8,8,4,8,4]),
 'J': dict(base2, H=[8,0,8,0,8,0,8,0], M=[8,0,8,0,8,0,8,0], C=[0,14,0,14,0,14,0,14]),
 'K': dict(base2, H=[8,0,8,0,8,0,8,0], M=[8,0,8,0,8,0,8,0], C=[4,10,4,10,4,10,4,10]),
 'L': dict(base2, H=[8,0,8,0,8,0,8,0], M=[8,0,8,0,8,0,8,0], C=[8,6,8,6,8,6,8,6]),
 'N': dict(base2, H=[8,0,8,0,8,0,8,0], M=[2,6,2,6,2,6,2,6], C=[14,0,14,0,14,0,14,0]),
 'O': dict(base2, H=[0,8,0,8,0,8,0,8], M=[2,6,2,6,2,6,2,6], C=[14,0,14,0,14,0,14,0]),
 'P': dict(base2, H=[4,4,4,4,4,4,4,4], M=[2,6,2,6,2,6,2,6], C=[14,0,14,0,14,0,14,0]),
 'S': dict(base2, H=[1,0,1,0,15,0,15,0], M=[15,0,15,0,1,0,1,0], C=[0,16,0,16,0,12,0,12]),
 'U': dict(base2, H=[4,0,4,0,12,0,12,0], M=[12,0,12,0,4,0,4,0], C=[0,16,0,16,0,12,0,12]),
 'F': dict(base, H=[8,4,8,4,4,0,4,0], M=[8,0,8,0,8,0,8,0], C=[10,4,10,4,10,4,10,4]),
}

def gen(win=5, win2=6, wpol="nt", stamps=0, spin=200000, hsleep=4, qsleep=8, tsleep=1, pace=4, cpre=1, kprio=0, skipw=0, vmid=4, nopoll='', qtrig=22, R=4, cdefer=1, csleep=2, nH=33, nX=31, nL=34, loc=1, lpol='sc1', w1pol='nt', nocomp=0, nosvc=0, sprio=3, nopre=0, nocw=0, lmul=1, xit='', qloc=1, strig=1, qtrig2=38, kpol='nt', vpol='nt', slowfb=0, fixend=0, plan='A', hfirst=1, cpad=1, w2late=1, fsleep=1, dry=0, yprio=0, burst=0, bwin=8, xn=0, xmask=0x55, mim=1, mrg=1, fprio=0, rprio=3, rsl=0, b0at=0, mlate=0, xp=None, lin=1, atrig=0, pre=0, g4=0, alt1=0, alt2=0, tw=0, probe='', det=1, rx=0, fl=0, w1early=1, nohp=0, ws1=0, ws2=0, bp=0, calm=0, ltab=1, st0=0, bhold=0, xl=1, bearly=0, pd=1, fdelay=0, xsleep=4, bdefer=0, hwait=0, **pk):
    A = Asm()
    roles, T = make_plan(plan, **pk)
    hdr = open("cdna_kernels/" + NAME[:-7] + ".s.ref").read().split("; Override")[0]
    A(hdr.rstrip())
    A(f"; @launch grid=(256,1,1) block=(768,1,1) lds={LDS_SIZE}")
    A(DOC)
    A('.amdgcn_target "amdgcn-amd-amdhsa--gfx950"')
    A(f".text\n.globl {NAME}\n.p2align 8\n.type {NAME},@function\n{NAME}:")
    def stamp(k):
        if stamps:
            A("s_memrealtime s[62:63]\ns_waitcnt lgkmcnt(0)")
            A(f"v_writelane_b32 v3, s62, {k}")
    def prb(name):
        if probe == name: A("s_memrealtime s[94:95]\ns_waitcnt lgkmcnt(0)")
    def end_wave():
        if stamps:
            A("s_branch L_stampout")
        else:
            A("s_endpgm")
    def srd(d, p, size):
        A(f"s_mov_b32 s{d}, s{p}\ns_mov_b32 s{d+1}, s{p+1}\ns_mov_b32 s{d+2}, {size}\ns_mov_b32 s{d+3}, 0x20000")
    def poll(name, loads, check, sleep):
        if name in nopoll.split('+'): return
        top = A.label(name); done = A.label(name + "d")
        A(f"s_mov_b32 s7, {spin}")
        A(f"{top}:")
        loads()
        A("s_waitcnt vmcnt(0)")
        check()
        A(f"s_cbranch_vccz {done}")
        A("s_mov_b64 exec, vcc")
        if sleep: A(f"s_sleep {sleep}")
        A("s_sub_u32 s7, s7, 1")
        A(f"s_cbranch_scc0 {top}")
        A(f"{done}:")
        A("s_mov_b64 exec, -1")
    def lspin(name, off, n, vz, vt, sleep=1, extra=None):
        top = A.label(name); done = A.label(name + "d")
        A(f"s_mov_b32 s7, {spin*20}")
        A(f"{top}:")
        A(f"ds_read_b32 v{vt}, v{vz} offset:{off}")
        if extra: extra()
        A("s_waitcnt lgkmcnt(0)")
        A(f"v_cmp_gt_u32 vcc, {n}, v{vt}")
        A(f"s_cbranch_vccz {done}")
        if lmul > 1: sleep = min(127, max(sleep, 1) * lmul)
        if sleep: A(f"s_sleep {sleep}")
        A("s_sub_u32 s7, s7, 1")
        A(f"s_cbranch_scc0 {top}")
        A(f"{done}:")
    def chk_tags(regs, tmp):
        A(f"v_xor_b32 v{tmp}, s6, v{regs[0]}")
        for r in regs[1:]:
            A(f"v_xor_b32 v{tmp+1}, s6, v{r}")
            A(f"v_or_b32 v{tmp}, v{tmp}, v{tmp+1}")
        A(f"v_cmp_ne_u32 vcc, 0, v{tmp}")
    def chk_sent(regs, tmp):
        regs = list(regs)
        if len(regs) == 1:
            A(f"v_cmp_eq_u32 vcc, -1, v{regs[0]}"); return
        if len(regs) == 2:
            A(f"v_max_u32 v{tmp}, v{regs[0]}, v{regs[1]}"); rest = []
        else:
            A(f"v_max3_u32 v{tmp}, v{regs[0]}, v{regs[1]}, v{regs[2]}"); rest = regs[3:]
        while rest:
            if len(rest) == 1:
                A(f"v_max_u32 v{tmp}, v{tmp}, v{rest[0]}"); rest = []
            else:
                A(f"v_max3_u32 v{tmp}, v{tmp}, v{rest[0]}, v{rest[1]}"); rest = rest[2:]
        A(f"v_cmp_eq_u32 vcc, -1, v{tmp}")
    def xrow(op, v, tmp, which):
        A(f"v_mov_b32 v{tmp}, v{v}")
        A(f"v_permlane{which}_swap_b32 v{v}, v{tmp}")
        A(f"{op} v{v}, v{v}, v{tmp}")
    def inrow(op, v, steps):
        for s in steps:
            A(f"{op}_dpp v{v}, v{v}, v{v} {s} {DPPF}")
    def wave_reduce(op, v, tmp):
        inrow(op, v, ["row_ror:8", "row_ror:4", "row_ror:2", "row_ror:1"])
        xrow(op, v, tmp, 16); xrow(op, v, tmp, 32)
    def unpack(dst, src, n):
        for i in range(n):
            A(f"v_lshlrev_b32 v{dst+2*i}, 16, v{src[i]}")
            A(f"v_and_b32 v{dst+2*i+1}, 0xffff0000, v{src[i]}")
    def rnd(a, b=None):
        if b is None: A(f"v_cvt_pk_bf16_f32 v{a}, v{a}, v{a}\nv_lshlrev_b32 v{a}, 16, v{a}")
        else: A(f"v_cvt_pk_bf16_f32 v{b}, v{a}, v{b}\nv_lshlrev_b32 v{a}, 16, v{b}\nv_and_b32 v{b}, 0xffff0000, v{b}")
    def silu(x, t, n):
        A(f"s_mov_b32 s21, {f2x(-1.4426950408889634)}")
        for i in range(n): A(f"v_mul_f32 v{t+i}, s21, v{x+i}")
        for i in range(n): A(f"v_exp_f32 v{t+i}, v{t+i}")
        for i in range(n): A(f"v_add_f32 v{t+i}, 1.0, v{t+i}")
        for i in range(n): A(f"v_rcp_f32 v{t+i}, v{t+i}")
        for i in range(n): A(f"v_mul_f32 v{x+i}, v{x+i}, v{t+i}")
    def gemv_perm(W, T, npair):
        for u in range(npair):
            for w in range(4):
                a = W + 8 * u + w; b = W + 8 * u + 4 + w
                A(f"v_perm_b32 v{T+8*u+2*w}, v{b}, v{a}, s24")
                A(f"v_perm_b32 v{T+8*u+2*w+1}, v{b}, v{a}, s25")
    def gemv_dot(T, X, acc):
        for u in range(len(X)):
            for e in range(8):
                c = "0" if u == 0 else f"v{acc+e}"
                A(f"v_dot2_f32_bf16 v{acc+e}, v{T+8*u+e}, v{X[u]}, {c}")
    def mktag():
        A("s_waitcnt lgkmcnt(0)\ns_mul_i32 s6, s6, 0x9E3779B1\ns_add_u32 s6, s6, 0x7F4A7C15")
    def paced(loads, w):
        if skipw and (w or skipw > 1): return
        for i, l in enumerate(loads):
            if w and i >= w: A(f"s_waitcnt vmcnt({w-1})")
            A(l)

    if st0: A("s_memrealtime s[90:91]")
    A("s_cmp_ge_u32 s2, 256\ns_cbranch_scc1 L_exit")
    A("s_load_dwordx16 s[36:51], s[0:1], 0")
    rest_ld = "s_load_dwordx8 s[52:59], s[0:1], 64\ns_load_dwordx2 s[60:61], s[0:1], 96\ns_load_dword s68, s[32:33], s34"
    A("s_getpc_b64 s[30:31]\nL_pc:\ns_add_u32 s32, s30, L_tab-L_pc\ns_addc_u32 s33, s31, 0\ns_lshl_b32 s34, s2, 2")
    if not ltab: A(rest_ld)
    A("v_lshrrev_b32 v1, 6, v0\nv_and_b32 v0, 63, v0\nv_readfirstlane_b32 s3, v1")
    A("s_and_b32 s4, s2, 7\ns_lshr_b32 s5, s2, 3")
    if xp: A(f"s_lshl_b32 s4, s4, 2\ns_lshr_b32 s4, {sum(h << (4*i) for i, h in enumerate(xp)):#x}, s4\ns_and_b32 s4, s4, 7")
    if fixend: A("s_memrealtime s[96:97]")
    A("s_mov_b32 s24, 0x05040100\ns_mov_b32 s25, 0x07060302")
    A("v_lshlrev_b32 v2, 4, v0")
    if stamps:
        A("v_mov_b32 v3, 0")
        if not st0: stamp(0)
    A("s_cmp_lt_u32 s3, 4\ns_cbranch_scc1 L_service")
    STREAM_MARK = len(A.lines)
    A("L_service:")
    if ltab: A(rest_ld)
    A(f"s_setprio {sprio}")
    if cpre:
        A(f"s_lshl_b32 s20, s5, 2\ns_add_u32 s20, s20, s3\ns_sub_u32 s20, s20, 104\ns_cmp_ge_u32 s20, (L_endcode-{NAME})/1024\ns_cbranch_scc1 L_ncp")
        A(f"s_sub_u32 s30, s30, L_pc-{NAME}\ns_subb_u32 s31, s31, 0")
        A("s_lshl_b32 s20, s20, 10\nv_add_u32 v14, s20, v2")
        A("global_load_dwordx4 v[164:167], v14, s[30:31]")
        A("L_ncp:")
    A("v_lshrrev_b32 v12, 3, v0\nv_and_b32 v13, 7, v0\nv_mov_b32 v16, 0\nv_mov_b32 v17, 0\nv_mov_b32 v18, 0\nv_mov_b32 v19, 0")
    A("s_mov_b64 exec, 0x1f\nds_write_b128 v2, v[16:19]\ns_mov_b64 exec, -1")
    A("s_waitcnt lgkmcnt(0)")
    A("s_bfe_u32 s64, s68, 0x3000f\ns_bfe_u32 s65, s68, 0x50012\ns_bfe_u32 s66, s68, 0x20017\ns_bfe_u32 s67, s68, 0x60019")
    A("s_lshr_b32 s69, s65, 2\ns_and_b32 s70, s65, 3")
    A(f"s_cmp_lg_u32 s64, {E_H}\ns_cbranch_scc1 L_nh")
    A("s_lshr_b32 s20, s70, 1\ns_lshl_b32 s20, s20, 8\ns_lshl_b32 s21, s3, 6\ns_add_u32 s20, s20, s21")
    A("v_lshl_add_u32 v14, v12, 3, s20")
    A("s_mov_b32 s21, 6144\nv_mul_lo_u32 v1, v14, s21\nv_lshl_add_u32 v1, v13, 4, v1\nv_lshlrev_b32 v14, 1, v14")
    A("s_and_b32 s20, s70, 1\ns_lshl_b32 s20, s20, 10\ns_lshl_b32 s21, s69, 7\ns_add_u32 s20, s20, s21")
    A("s_waitcnt lgkmcnt(0)")
    srd(8, P_WM, 512 * 6144)
    A(f"global_load_dwordx4 v[4:7], v14, {sp(P_C)}")
    for i in range(8):
        A(f"buffer_load_dwordx4 {v4(40+4*i)}, v1, s[8:11], s20 offen {wpol}")
        if i < 7: A("s_add_u32 s20, s20, 6144")
    A(f"s_load_dword s6, {WS}, 0")
    A("s_barrier")
    A("s_lshl_b32 s20, s65, 2\ns_add_u32 s20, s20, s3")
    if cpad: A(f"s_lshl_b32 s21, s20, 11\ns_add_u32 s21, s21, {WS_C}\nv_lshrrev_b32 v14, 2, v0\nv_lshl_add_u32 v14, v14, 6, v2\nv_add_u32 v14, s21, v14")
    else: A(f"s_lshl_b32 s21, s20, 10\ns_add_u32 s21, s21, {WS_C}\nv_add_u32 v14, s21, v2")
    A(f"s_mul_i32 s21, s20, {128*R}\ns_add_u32 s21, s21, {WS_B}\nv_add_u32 v15, s21, v2")
    A("s_cmp_eq_u32 s3, 3\ns_cselect_b32 exec_hi, 0, -1")
    for i in range(4): A(f"v_mov_b32 v{16+i}, -1")
    A("s_mov_b64 exec, -1")
    if nohp: A("s_mov_b64 exec, 1")
    A(f"global_store_dwordx4 v14, v[16:19], {WS} sc1")
    for i in range(4): A(f"v_mov_b32 v{20+i}, -1")
    if R < 8: A(f"s_mov_b32 exec_hi, 0\ns_mov_b32 exec_lo, {(1<<(8*R))-1:#x}")
    A(f"global_store_dwordx4 v15, v[20:23], {WS} sc1")
    A("s_mov_b64 exec, -1")
    A("s_waitcnt vmcnt(10)")
    unpack(24, [4, 5, 6, 7], 4); silu(24, 32, 8)
    for i in range(4): A(f"v_cvt_pk_bf16_f32 v{24+i}, v{24+2*i}, v{25+2*i}")
    mktag()
    A(f"s_and_b32 s26, s70, 1\ns_lshl_b32 s26, s26, 13\ns_lshr_b32 s21, s70, 1\ns_lshl_b32 s21, s21, 12\ns_add_u32 s26, s26, s21\ns_lshl_b32 s21, s69, 9\ns_add_u32 s26, s26, s21\ns_add_u32 s26, s26, {WS_H}")
    A("s_waitcnt vmcnt(2)")
    stamp(1)
    gemv_perm(40, 104, 4)
    gemv_dot(104, [24, 25, 26, 27], 32)
    A("L_gfin:")
    acc = 32
    for e in range(4): A(f"v_permlane32_swap_b32 v{acc+e}, v{acc+e+4}")
    for e in range(4): A(f"v_add_f32 v{acc+e}, v{acc+e}, v{acc+e+4}")
    for e in range(2): A(f"v_permlane16_swap_b32 v{acc+e}, v{acc+e+2}")
    for e in range(2): A(f"v_add_f32 v{acc+e}, v{acc+e}, v{acc+e+2}")
    for e in range(2): A(f"v_add_f32_dpp v{acc+e}, v{acc+e}, v{acc+e} row_ror:8 {DPPF}")
    A("v_lshrrev_b32 v14, 4, v0\nv_lshlrev_b32 v14, 3, v14\nv_lshl_add_u32 v14, v13, 5, v14\ns_lshl_b32 s21, s3, 8\nv_add_u32 v14, s21, v14")
    A(f"ds_write_b64 v14, v[32:33] offset:{L_GP}")
    A("v_mov_b32 v14, 0\nv_mov_b32 v15, 1")
    A("s_waitcnt vmcnt(0)")
    A("s_mov_b64 exec, 1")
    A(f"ds_add_rtn_u32 v15, v14, v15 offset:{L_CG}")
    A("s_mov_b64 exec, -1")
    A("v_lshlrev_b32 v14, 3, v0")
    A("s_waitcnt lgkmcnt(0)")
    A("v_readfirstlane_b32 s21, v15")
    A("s_cmp_lg_u32 s21, 3\ns_cbranch_scc1 L_gdone")
    A("s_mov_b32 exec_hi, 0")
    for w in range(4): A(f"ds_read_b64 {v2(32+2*w)}, v14 offset:{L_GP+256*w}")
    A("v_add_u32 v14, s26, v14")
    A("s_waitcnt lgkmcnt(0)")
    A("v_pk_add_f32 v[32:33], v[32:33], v[34:35]\nv_pk_add_f32 v[36:37], v[36:37], v[38:39]\nv_pk_add_f32 v[32:33], v[32:33], v[36:37]")
    A(f"s_cmp_lg_u32 s64, {E_H}\ns_cbranch_scc1 L_gnh")
    A(f"v_mov_b32 v34, v33\nv_mov_b32 v33, s6\nv_mov_b32 v35, s6\nv_add_u32 v14, s26, v2\nglobal_store_dwordx4 v14, v[32:35], {WS} sc1\ns_mov_b64 exec, -1\ns_branch L_gdone\nL_gnh:")
    A("v_cvt_pk_bf16_f32 v32, v32, v33\nv_mov_b32 v33, s6")
    if qloc:
        A(f"s_cmp_lg_u32 s64, {E_Q}\ns_cbranch_scc1 L_gnl")
        A(f"v_add_u32 v15, {WS_QL-WS_Q}, v14\nglobal_store_dwordx2 v15, v[32:33], {WS}")
        A("L_gnl:")
    A(f"global_store_dwordx2 v14, v[32:33], {WS} sc1")
    A("s_mov_b64 exec, -1")
    A("L_gdone:")
    stamp(3)
    if mlate: A(f"s_cmp_eq_u32 s64, {E_M}\ns_cbranch_scc1 L_done")
    A("s_branch L_qpoll")

    NM = T - 28; nmask = T - min(r['n'] for r in roles.values())
    NW = 39 - T
    S0 = len(A.lines)
    A("L_stream:")
    if kprio: A(f"s_setprio {kprio}")
    A("s_sub_u32 s21, s3, 4")
    if yprio == 1: A("s_cmp_lt_u32 s21, 4\ns_cbranch_scc1 L_yp\ns_setprio 1\nL_yp:")
    A("v_bfe_u32 v1, v0, 2, 2\nv_lshlrev_b32 v1, 8, v1\nv_lshrrev_b32 v4, 4, v0\nv_lshl_add_u32 v1, v4, 6, v1\nv_and_b32 v4, 3, v0\nv_lshl_add_u32 v1, v4, 4, v1")
    A(f"s_lshl_b32 s19, s4, 23\ns_mul_i32 s16, s5, {28*8192}\ns_add_u32 s16, s16, s19\ns_lshl_b32 s17, s21, 12\ns_add_u32 s16, s16, s17")
    A("s_mov_b32 s10, 0x4000000\ns_mov_b32 s11, 0x20000")
    hcnt = sum(PLANS[plan]['H'][x] << (4 * x) for x in range(8))
    A(f"s_lshl_b32 s17, s4, 2\ns_lshr_b32 s35, {hcnt:#x}, s17\ns_and_b32 s35, s35, {15 if hfirst else 0}")
    A("s_waitcnt lgkmcnt(0)")
    A(f"s_mov_b32 s8, s{P_K}\ns_mov_b32 s9, s{P_K+1}")
    A("s_cmp_ge_u32 s5, s35\ns_cbranch_scc1 L_s1\ns_barrier\nL_s1:")
    KR = lambda t: 168 - 4 * T + 4 * t
    nS = (T + 3) // 4; nP = (T + 7) // 8
    assert T == 34
    first_v = 14
    vslots = [12 + 4 * i for i in range(NW)] + [KR(i) for i in range(first_v, T)]
    VR = lambda t: vslots[t % len(vslots)]
    st = {"cur": None}
    mpos = [6 + (j * (T - 12)) // max(nmask, 1) for j in range(nmask)]
    rest = list(range(NM, NM + 6)) + list(range(nmask, NM)) + list(range(NM + 6, T))
    perm = []
    for t in range(T):
        if t in mpos: perm.append(mpos.index(t))
        else: perm.append(rest.pop(0))
    first_nm = min(t for t in range(T) if perm[t] < NM)
    assert first_nm >= win
    hist = []
    def wcount(w):
        c = 0
        for n_, m_ in enumerate(reversed(hist)):
            if not m_:
                if c == w - 1: return n_
                c += 1
        return None
    def ld(which, t):
        o = perm[t]
        hist.append(o < nmask)
        if o < NM:
            A(f"s_add_u32 s20, s17, {o*8192}"); st["cur"] = None; imm = 0
            if o < nmask: A(f"s_cmp_gt_u32 s18, {o}\ns_cselect_b32 s20, 0x4000000, s20")
        else:
            key = (o - NM) >> 2; imm = ((o - NM) & 3) * 1024
            if st["cur"] != key:
                A(f"s_add_u32 s20, s16, {key*32768}"); st["cur"] = key
        if which == "K": A(f"buffer_load_dwordx4 {v4(KR(t))}, v1, s[8:11], s20 offen offset:{imm} {kpol}")
        else: A(f"buffer_load_dwordx4 {v4(VR(t))}, v2, s[12:15], s20 offen offset:{imm} {vpol}")
    korder = list(range(T))
    seq = [("K", t) for t in korder] + [("V", t) for t in range(NW)]
    for i, (wh, t) in enumerate(seq):
        if i == win:
            if st0: A("s_memrealtime s[92:93]")
            if ltab: A(rest_ld)
            A("s_branch L_body")
            S1 = len(A.lines)
            A("L_body:")
            srd(12, P_V, 0x4000000)
            if ws1: A(f"s_cmp_lt_u32 s21, {ws1}\ns_cselect_b64 vcc, -1, 0")
            if st0: A("s_waitcnt vmcnt(3)\ns_memrealtime s[94:95]")
            if not b0at: A("s_cmp_lt_u32 s5, s35\ns_cbranch_scc1 L_s2\ns_barrier\nL_s2:")
            A("s_waitcnt lgkmcnt(0)")
            A(f"s_and_b32 s17, s68, 0xfff\ns_bfe_u32 s18, s68, 0x3000c\ns_add_u32 s17, s17, {896-16}\ns_lshl_b32 s17, s17, 13\ns_add_u32 s17, s17, s19\ns_lshl_b32 s19, s21, 10\ns_add_u32 s17, s17, s19")
        if b0at and i == win + b0at: A("s_cmp_lt_u32 s5, s35\ns_cbranch_scc1 L_s2\ns_barrier\nL_s2:")
        if i == T and kprio: A("s_setprio 0")
        if wcount(win) is not None and perm[t] >= nmask:
            if xn and 8 <= i < 8 + xn:
                lb = A.label("w"); A(f"s_waitcnt vmcnt({wcount(win+1)})\ns_bitcmp0_b32 {xmask:#x}, s4\ns_cbranch_scc1 {lb}\ns_waitcnt vmcnt({wcount(win)})\n{lb}:")
            else: A(f"s_waitcnt vmcnt({wcount(win)})")
        ld(wh, t)
        if i == qtrig: A(f"v_mov_b32 v8, 0\nv_mov_b32 v9, 1\ns_mov_b64 exec, 1\nds_max_u32 v8, v9 offset:{L_FK}\ns_mov_b64 exec, -1")
        if hwait and i == hwait: A(f"v_mov_b32 v8, 0\nv_mov_b32 v9, 1\ns_mov_b64 exec, 1\nds_write_b32 v8, v9 offset:72\ns_mov_b64 exec, -1")
        if i == qtrig2 and qloc: A(f"v_mov_b32 v8, 0\nv_mov_b32 v9, 2\ns_mov_b64 exec, 1\nds_max_u32 v8, v9 offset:{L_FK}\ns_mov_b64 exec, -1")
    viss = NW
    A("v_and_b32 v8, 3, v0\nv_lshlrev_b32 v8, 8, v8\nv_lshrrev_b32 v9, 4, v0\nv_lshl_add_u32 v8, v9, 6, v8\nv_bfe_u32 v9, v0, 2, 2\nv_lshl_add_u32 v8, v9, 4, v8\nv_mov_b32 v9, 0")
    if mim: A(f"s_mov_b32 s22, {f2x(1.4426950408889634)}\ns_mov_b32 s26, {f2x(128**-0.5)}\ns_mov_b32 s27, s26")
    else: A(f"s_mov_b32 s22, {f2x(128**-0.5*1.4426950408889634)}")
    for t in range(nmask): A(f"s_cmp_gt_u32 s18, {t}\ns_cselect_b32 s{28+t}, 0xff800000, 0")
    stamp(1)
    lspin("sq", L_FQ, 1, 9, 10, 2, lambda: A(f"ds_read_b128 v[4:7], v8 offset:{L_Q}"))
    stamp(2)
    kl = {"landed": T + NW - win - 3}
    DR = lambda t: 8 if t == 0 else KR(t - 1)
    SR = lambda t: (8 + t) if t < 4 else KR((t >> 2) - 1) + (t & 3)
    def M(t):
        if t >= kl["landed"]:
            A(f"s_waitcnt vmcnt({len(hist)-1-t})"); kl["landed"] = t + 1
        A(f"v_mfma_f32_16x16x32_bf16 {v4(DR(t))}, {v4(KR(t))}, v[4:7], 0")
    def AB(t):
        d = DR(t)
        A(f"v_add_f32_dpp v{d}, v{d+1}, v{d} row_shl:4 {DPPF} bound_ctrl:0")
        A(f"v_add_f32_dpp v{d+2}, v{d+3}, v{d+2} row_shl:4 {DPPF} bound_ctrl:0")
    def S(t):
        d = DR(t)
        A(f"v_add_f32_dpp v{SR(t)}, v{d+2}, v{d} row_shl:8 {DPPF} bound_ctrl:0")
    mark0 = len(A.lines)
    if yprio == 2: A("s_cmp_lt_u32 s21, 4\ns_cbranch_scc1 L_yp\ns_setprio 1\nL_yp:")
    M(0); M(1); M(2)
    for t in range(T + 1):
        if t < T: AB(t)
        if t >= 1:
            S(t - 1)
            if vmid and t - 2 >= first_v and (t - 2 - first_v) % vmid == 0:
                ld("V", viss); viss += 1
        if t + 3 < T: M(t + 3)
    TM = KR(11)
    Sl = [SR(t) for t in range(T)]
    if mim:
        for t in range(0, T, 2): rnd(Sl[t], Sl[t + 1])
        for t in range(0, T, 2): A(f"v_pk_mul_f32 {v2(Sl[t])}, {v2(Sl[t])}, s[26:27]")
        if vmid: ld("V", viss); viss += 1
        for t in range(0, T, 2): rnd(Sl[t], Sl[t + 1])
    for t in range(nmask): A(f"v_add_f32 v{Sl[mpos[t]]}, s{28+t}, v{Sl[mpos[t]]}")
    A(f"v_max3_f32 v{TM}, v{Sl[0]}, v{Sl[1]}, v{Sl[2]}")
    A(f"v_max3_f32 v{TM+1}, v{Sl[3]}, v{Sl[4]}, v{Sl[5]}")
    i = 6; k = 0
    while i < T:
        A(f"v_max3_f32 v{TM+k}, v{TM+k}, v{Sl[i]}, v{Sl[i+1]}"); i += 2; k ^= 1
    A(f"v_max_f32 v{TM}, v{TM}, v{TM+1}")
    xrow("v_max_f32", TM, TM + 1, 16); xrow("v_max_f32", TM, TM + 1, 32)
    A(f"v_mul_f32 v{TM}, s22, v{TM}")
    for t in range(T): A(f"v_fma_f32 v{Sl[t]}, v{Sl[t]}, s22, -v{TM}")
    for t in range(T): A(f"v_exp_f32 v{Sl[t]}, v{Sl[t]}")
    if vmid: ld("V", viss); viss += 1
    A(f"v_add_f32 v{TM+1}, v{Sl[0]}, v{Sl[1]}\nv_add_f32 v{TM+2}, v{Sl[2]}, v{Sl[3]}")
    for t in range(4, T): A(f"v_add_f32 v{TM+1+(t&1)}, v{TM+1+(t&1)}, v{Sl[t]}")
    A(f"v_add_f32 v{TM+1}, v{TM+1}, v{TM+2}")
    xrow("v_add_f32", TM + 1, TM + 2, 16); xrow("v_add_f32", TM + 1, TM + 2, 32)
    A(f"s_lshl_b32 s19, s21, 5\nv_lshl_add_u32 v{TM+2}, v0, 3, s19\nv_mov_b32 v4, 0\nv_mov_b32 v5, 1")
    A("s_mov_b64 exec, 0xf")
    A(f"ds_write_b64 v{TM+2}, {v2(TM)} offset:{L_ST}")
    A("s_mov_b64 exec, 1")
    A(f"ds_add_u32 v4, v5 offset:{L_CS}")
    A("s_mov_b64 exec, -1")
    GR = [(0, 2), (2, 10), (10, 18), (18, 26), (26, 34)]
    def pack(u, d):
        for t in range(GR[u][0], GR[u][1], 2): A(f"v_cvt_pk_bf16_f32 v{d+(t-GR[u][0])//2}, v{Sl[t]}, v{Sl[t+1]}")
    for u in range(3): pack(u, KR(8 + u))
    A("s_waitcnt lgkmcnt(0)")
    AC = [8, KR(0)]
    PA = [KR(1), KR(2), KR(12), KR(13)]; PB = [KR(3), KR(4), KR(5), KR(6)]
    TT = [TM, 4]
    def zero(P):
        for j in range(4):
            for i in range(4): A(f"v_mov_b32 v{P[j]+i}, 0")
    def vers(P, src, n=4):
        for j in range(4):
            ctl = "quad_perm:[0,1,2,3]" if j == 0 else f"row_shr:{4*j}"
            for i in range(n): A(f"v_mov_b32_dpp v{P[j]+i}, v{src+i} {ctl} row_mask:0xf bank_mask:{1<<j:#x}")
    zero(PA)
    A(f"v_mov_b32 v{TM+1}, 0\nv_mov_b32 v5, 0")
    stamp(3)
    EO = (0, 4, 1, 5, 2, 6, 3, 7)
    def pv(u):
        t0, t1 = GR[u]; n = t1 - t0
        vers(PA, KR(8 + u), n // 2)
        for k, e in enumerate(EO):
            Tm = TT[k & 1]; ac = AC[e >> 2]
            for p in range(n // 2):
                a = VR(t0 + 2 * p) + (e >> 1); b = VR(t0 + 2 * p + 1) + (e >> 1)
                A(f"v_perm_b32 v{Tm+p}, v{b}, v{a}, s{24+(e&1)}")
            c = "0" if (u == 0 and k < 2) else v4(ac)
            if n == 8: A(f"v_mfma_f32_16x16x32_bf16 {v4(ac)}, {v4(Tm)}, {v4(PA[e&3])}, {c}")
            else: A(f"v_mfma_f32_16x16x16_bf16 {v4(ac)}, {v2(Tm)}, {v2(PA[e&3])}, {c}")
    ns = len(vslots)
    TA = [VR(t) for t in range(T - ns, 18)][:8]
    assert len(TA) == 8
    X = KR(8); ONE = KR(7) + 2; CNT = KR(7) + 3
    def rescale():
        A(f"v_and_b32 v1, 3, v0\nv_lshlrev_b32 v1, 3, v1\nv_mov_b32 v{X+10}, 0\nv_mov_b32 v{ONE}, 1\ns_lshl_b32 s19, s21, 5\nv_add_u32 v{X+9}, s19, v1")
        def rd():
            for w in range(8): A(f"ds_read_b32 v{X+w}, v1 offset:{L_ST+32*w}")
            A(f"ds_read_b32 v{X+8}, v{X+9} offset:{L_ST}")
        lspin("sm", L_CS, 9, X + 10, X + 11, 1, rd)
        A(f"s_mov_b64 exec, 1\nds_add_rtn_u32 v{X+11}, v{X+10}, v{ONE} offset:{L_CT}\ns_mov_b64 exec, -1")
        A(f"v_max3_f32 v{X}, v{X}, v{X+1}, v{X+2}\nv_max3_f32 v{X+3}, v{X+3}, v{X+4}, v{X+5}\nv_max3_f32 v{X}, v{X}, v{X+6}, v{X+7}\nv_max_f32 v{X}, v{X}, v{X+3}")
        A(f"v_sub_f32 v{X}, v{X+8}, v{X}\nv_exp_f32 v{X}, v{X}")
        A(f"s_lshl_b32 s19, s21, 11\nv_add_u32 v1, s19, v2\ns_and_b32 s19, s21, 4\nv_mov_b32 v{CNT}, s19")
        for ac in AC:
            for q in range(2): A(f"v_pk_mul_f32 {v2(ac+2*q)}, {v2(ac+2*q)}, {v2(X)} op_sel_hi:[1,0]")
        for t in range(18, T, 2): A(f"v_pk_mul_f32 {v2(Sl[t])}, {v2(Sl[t])}, {v2(X)} op_sel_hi:[1,0]")
        pack(3, TT[0]); pack(4, TT[1])
        zero(PB); vers(PA, TT[0]); vers(PB, TT[1])
        A(f"s_waitcnt lgkmcnt(0)\nv_readfirstlane_b32 s23, v{X+11}")
    while viss < min(win2, ns):
        ld("V", viss); viss += 1
    done_t = 0
    ends = {g[1] - 1: u for u, g in enumerate(GR[:3])}
    for L in range(T):
        inc = L >= 18 and L % 2 == 1
        can = lambda: viss < T and sum(1 for j in range(L + 1, viss) if perm[j] >= nmask) < (bwin if L >= T - burst else win2 + (pre if L in ends else 0)) + (perm[viss] < nmask) and (viss < ns or done_t > viss - ns)
        if can() or L in ends or inc:
            A(f"s_waitcnt vmcnt({viss-1-L})")
        while can():
            ld("V", viss); viss += 1
            if viss == T:
                assert L > 17
                A(f"s_mov_b64 exec, 1\nds_add_u32 v2, v{ONE} offset:{L_CV}\ns_mov_b64 exec, -1")
        if L in ends:
            pv(ends[L]); done_t = L + 1
            if L == 17: rescale()
        if inc:
            if L == T - 1: stamp(4)
            p = ((L - 18) % 8) // 2
            for e in EO: A(f"v_perm_b32 v{TA[e]+p}, v{VR(L)+(e>>1)}, v{VR(L-1)+(e>>1)}, s{24+(e&1)}")
            if p == 3:
                for e in EO: A(f"v_mfma_f32_16x16x32_bf16 {v4(AC[e>>2])}, {v4(TA[e])}, {v4((PA if L < 26 else PB)[e&3])}, {v4(AC[e>>2])}")
    assert viss == T
    if nocomp:
        keep = [l for l in A.lines[mark0:] if not l.startswith(("v_mfma", "v_perm_b32", "v_add_f32", "v_exp", "v_fma", "v_max", "v_cvt", "v_permlane"))]
        A.lines[mark0:] = keep
    for hf in range(2): A(f"ds_write_b128 v1, {v4(AC[hf])} offset:{L_OP+hf*1024}")
    A(f"s_mov_b64 exec, 1\nds_add_u32 v{CNT}, v{ONE} offset:{L_FO}")
    A("s_mov_b64 exec, -1")
    if stamps: A("s_waitcnt lgkmcnt(0)")
    stamp(5)
    A("s_cmp_lg_u32 s23, 0\ns_cbranch_scc1 L_done")
    A(f"s_setprio {rprio}")
    def a_addr(d, t):
        if lin: A(f"s_lshl_b32 s20, s4, 15\ns_lshr_b32 s19, s5, 4\ns_lshl_b32 s19, s19, 10\ns_add_u32 s20, s20, s19\ns_and_b32 s19, s5, 15\ns_lshl_b32 s19, s19, 4\ns_add_u32 s20, s20, s19\ns_add_u32 s20, s20, {WS_A}")
        else: A(f"s_lshl_b32 s20, s4, 15\ns_lshl_b32 s19, s5, {7 if fl else 6}\ns_add_u32 s20, s20, s19\ns_add_u32 s20, s20, {WS_A}")
        if mrg:
            assert lin
            A(f"v_and_b32 v{d}, 3, v0\nv_lshlrev_b32 v{d}, 13, v{d}\nv_bfe_u32 v{t}, v0, 2, 2\nv_lshl_add_u32 v{d}, v{t}, 11, v{d}\nv_lshrrev_b32 v{t}, 4, v0\nv_lshl_add_u32 v{d}, v{t}, 8, v{d}\nv_add_u32 v{d}, s20, v{d}")
            return
        A(f"v_bfe_u32 v{d}, v0, 2, 2\nv_lshlrev_b32 v{d}, 13, v{d}")
        if fl: A(f"v_lshrrev_b32 v{t}, 5, v0\nv_lshl_add_u32 v{d}, v{t}, 12, v{d}\nv_bfe_u32 v{t}, v0, 4, 1\nv_lshl_add_u32 v{d}, v{t}, 6, v{d}")
        else: A(f"v_lshrrev_b32 v{t}, 4, v0\nv_lshl_add_u32 v{d}, v{t}, 11, v{d}")
        A(f"v_and_b32 v{t}, 3, v0\nv_lshl_add_u32 v{d}, v{t}, {8 if lin else 4}, v{d}\nv_add_u32 v{d}, s20, v{d}")
    a_addr(36, 37)
    A(f"v_add_u32 v37, {WS_AL-WS_A}, v36\nv_mov_b32 v38, 0\nv_mov_b32 v39, 1")
    if xl: A(f"ds_read_b32 v29, v38 offset:{L_MK}\ns_waitcnt lgkmcnt(0)\nv_readfirstlane_b32 s26, v29")
    for hf in range(2 if det else 0):
        def rd8():
            for j in range(4): A(f"ds_read_b128 {v4(40+8*j)}, v2 offset:{L_OP+(4*hf+j)*2048}\nds_read_b128 {v4(44+8*j)}, v2 offset:{L_OP+(4*hf+j)*2048+1024}")
        if rsl and hf: lspin("so3", L_FO + 4, 3, 38, 28, 1)
        lspin("so", L_FO + 4 * hf, 4, 38, 28, 1 - hf, rd8)
        for q in range(4): A(f"v_pk_add_f32 {v2(40+2*q)}, {v2(40+2*q)}, {v2(48+2*q)}")
        for q in range(4): A(f"v_pk_add_f32 {v2(56+2*q)}, {v2(56+2*q)}, {v2(64+2*q)}")
        for q in range(4): A(f"v_pk_add_f32 {v2((12 if hf == 0 else 40)+2*q)}, {v2(40+2*q)}, {v2(56+2*q)}")
        if hf:
            for q in range(4): A(f"v_pk_add_f32 {v2(12+2*q)}, {v2(12+2*q)}, {v2(40+2*q)}")
    for i in range(0 if det else 8):
        d = 12 if i == 0 else 20
        lspin("so", L_FO + 4 * i, 1, 38, 28, 1 if (calm and i < 6) else 0, lambda: A(f"ds_read_b128 {v4(d)}, v2 offset:{L_OP+i*2048}\nds_read_b128 {v4(d+4)}, v2 offset:{L_OP+i*2048+1024}"))
        if i:
            for q in range(4): A(f"v_pk_add_f32 {v2(12+2*q)}, {v2(12+2*q)}, {v2(20+2*q)}")
    for q in range(4): A(f"v_cvt_pk_bf16_f32 v{12+q}, v{12+2*q}, v{13+2*q}")
    if loc: A(f"global_store_dwordx4 v37, v[12:15], {WS}")
    if xl: A("s_cmp_eq_u32 s26, 0\ns_cbranch_scc1 L_ng2")
    A(f"global_store_dwordx4 v36, v[12:15], {WS} sc1")
    A("L_ng2:")
    A(f"ds_write_b32 v38, v39 offset:{L_FP}")
    stamp(6)
    end_wave()
    blk = A.lines[S0:S1]; del A.lines[S0:S1]; A.lines[STREAM_MARK:STREAM_MARK] = blk

    A("L_nh:")
    A(f"s_cmp_lg_u32 s64, {E_Q}\ns_cbranch_scc1 L_nq")
    A("v_lshlrev_b32 v1, 17, v12\nv_lshl_add_u32 v1, v13, 4, v1")
    A("s_lshl_b32 s20, s3, 20\ns_lshl_b32 s21, s4, 10\ns_add_u32 s20, s20, s21\ns_mov_b32 s26, s65\ns_lshl_b32 s21, s26, 7\ns_add_u32 s20, s20, s21")
    A("s_lshl_b32 s21, s3, 8\nv_lshl_add_u32 v14, v0, 2, s21")
    A("s_waitcnt lgkmcnt(0)")
    srd(8, P_WQ, 512 * 8192)
    A(f"global_load_dwordx4 v[8:11], v2, {sp(P_X)}\nglobal_load_dword v15, v14, {sp(P_X)}")
    for i in range(16):
        A(f"buffer_load_dwordx4 {v4(40+4*i)}, v1, s[8:11], s20 offen {wpol}")
        if i < 15: A("s_add_u32 s20, s20, 8192")
    A(f"s_load_dword s6, {WS}, 0")
    A("s_barrier")
    A(f"s_lshl_b32 s26, s26, 8\ns_lshl_b32 s21, s4, 11\ns_add_u32 s26, s26, s21\ns_add_u32 s26, s26, {WS_Q}")
    A("s_waitcnt vmcnt(16)")
    unpack(32, [8, 9, 10, 11], 4)
    A("v_add_f32 v4, v32, v33")
    for i in range(2, 8): A(f"v_add_f32 v4, v4, v{32+i}")
    wave_reduce("v_add_f32", 4, 5)
    A(f"v_mul_f32 v4, {f2x(1/512)}, v4")
    for i in range(8): A(f"v_sub_f32 v{32+i}, v{32+i}, v4")
    A("v_mul_f32 v6, v32, v32")
    for i in range(1, 8): A(f"v_fmac_f32 v6, v{32+i}, v{32+i}")
    wave_reduce("v_add_f32", 6, 5)
    A(f"v_mul_f32 v5, {f2x(1/512)}, v6"); rnd(4, 5)
    A(f"v_add_f32 v5, {f2x(1e-5)}, v5"); rnd(5)
    A("v_sqrt_f32 v5, v5"); rnd(5)
    A("v_rcp_f32 v5, v5")
    unpack(8, [15], 1)
    A("v_sub_f32 v8, v8, v4\nv_sub_f32 v9, v9, v4"); rnd(8, 9)
    A("v_mul_f32 v8, v8, v5\nv_mul_f32 v9, v9, v5"); rnd(8, 9)
    A(f"v_lshlrev_b32 v15, 2, v14\nv_add_u32 v15, {WS_H}, v15\nv_add_u32 v10, 4096, v15\nv_add_u32 v11, 8192, v15\nv_add_u32 v7, 12288, v15")
    mktag()
    A("s_waitcnt vmcnt(0)")
    stamp(1)
    prb("wq")
    gemv_perm(40, 104, 8)
    if hwait: A("v_mov_b32 v4, 0"); lspin("sh", 72, 1, 4, 5, 2)
    poll("ph", lambda: [A(f"global_load_dwordx4 {v4(16+4*k)}, v{(15,10,11,7)[k]}, {WS} sc1") for k in range(4)],
         lambda: chk_tags([17 + 2 * k for k in range(8)], 4), hsleep)
    stamp(2)
    prb("h")
    A("v_add_f32 v16, v16, v20\nv_add_f32 v17, v18, v22\nv_add_f32 v18, v24, v28\nv_add_f32 v19, v26, v30")
    rnd(16, 17); rnd(18, 19)
    A("v_add_f32 v18, 1.0, v18\nv_add_f32 v19, 1.0, v19"); rnd(18, 19)
    A("v_pk_mul_f32 v[24:25], v[8:9], v[18:19]"); rnd(24, 25)
    A("v_pk_add_f32 v[24:25], v[24:25], v[16:17]")
    A("L_gx:")
    A("v_cvt_pk_bf16_f32 v24, v24, v25")
    A(f"ds_write_b32 v14, v24 offset:{L_X}")
    A("s_lshl_b32 s21, s3, 8\nv_lshl_add_u32 v15, v12, 5, s21")
    A(f"ds_read_b128 v[24:27], v15 offset:{L_X}\nds_read_b128 v[28:31], v15 offset:{L_X+16}")
    A("s_waitcnt lgkmcnt(0)")
    gemv_dot(104, list(range(24, 32)), 32)
    A("s_branch L_gfin")

    A("L_nq:")
    A("s_waitcnt lgkmcnt(0)")
    A(f"s_load_dword s6, {WS}, 0")
    mktag()
    A("s_barrier")
    A("L_role:")
    A("s_cmp_eq_u32 s64, 0\ns_cbranch_scc1 L_qpoll")
    A(f"s_cmp_eq_u32 s64, {E_B}\ns_cbranch_scc1 L_wb")
    if mlate:
        A("s_branch L_qpoll\nL_ml:")
        if mlate <= 8: lspin("sl", L_CV, mlate, 10, 11, 4)
        else: lspin("sl", L_FP, 1, 10, 11, 4)
        A("s_setprio 0\nv_lshrrev_b32 v12, 3, v0\nv_and_b32 v13, 7, v0")
    A("s_mov_b32 s21, 98304\nv_mul_lo_u32 v1, v12, s21\nv_lshl_add_u32 v1, v13, 4, v1")
    A(f"s_mul_i32 s20, s3, {128*6144}\ns_add_u32 s26, s70, 2\ns_lshl_b32 s26, s26, 10\ns_lshl_b32 s21, s69, 7\ns_add_u32 s26, s26, s21\ns_add_u32 s20, s20, s26")
    A("s_lshl_b32 s21, s3, 8\nv_lshl_add_u32 v14, v0, 2, s21")
    srd(8, P_WM, 512 * 6144)
    A(f"global_load_dword v15, v14, {sp(P_C)}")
    paced([f"buffer_load_dwordx4 {v4(40+4*i)}, v1, s[8:11], s20 offen {wpol}\ns_add_u32 s20, s20, 6144" for i in range(16)], 0)
    A(f"s_lshl_b32 s26, s26, 1\ns_add_u32 s26, s26, {WS_MOD-4096}")
    A("s_waitcnt vmcnt(0)")
    unpack(24, [15], 1); silu(24, 32, 2)
    gemv_perm(40, 104, 8)
    A("s_branch L_gx")
    def dma(loads, w):
        if skipw: return
        for i, l in enumerate(loads):
            if w and i >= w: A(f"s_waitcnt vmcnt({w-1})")
            A(f"s_add_u32 m0, s23, {1024*i}")
            A(l)
    def wo_issue(lo, hi):
        srd(8, P_WO, 4096 * 1024)
        A("v_lshrrev_b32 v1, 3, v0\nv_lshlrev_b32 v1, 10, v1\nv_and_b32 v4, 7, v0\nv_lshl_add_u32 v1, v4, 4, v1")
        A(f"s_lshl_b32 s20, s4, 19\ns_lshl_b32 s21, s3, 17\ns_add_u32 s20, s20, s21\ns_lshl_b32 s21, s65, 7\ns_add_u32 s20, s20, s21\ns_add_u32 s20, s20, {8192*lo}")
        A(f"s_lshl_b32 s23, s3, 14\ns_add_u32 s23, s23, {L_WT+1024*lo}")
        dma([f"buffer_load_dwordx4 v1, s[8:11], s20 offen {wpol} lds\ns_add_u32 s20, s20, 8192" for i in range(lo, hi)], pace)
    def wo_finish(w):
        A(f"s_lshl_b32 s23, s3, 14\ns_add_u32 s23, s23, {L_WT}")
        A("v_bfe_u32 v1, v0, 2, 2\nv_lshlrev_b32 v1, 10, v1\nv_lshrrev_b32 v4, 4, v0\nv_lshl_add_u32 v1, v4, 12, v1\nv_and_b32 v4, 3, v0\nv_lshl_add_u32 v1, v4, 3, v1\nv_add_u32 v1, s23, v1")
        A(f"s_waitcnt vmcnt({w})")
        k = 0
        for c in range(4):
            for nt in range(4):
                for hi in range(2):
                    A(f"ds_read_b64_tr_b16 {v2(104+16*c+4*nt+2*hi)}, v1 offset:{(c+4*hi)*128+nt*32}")
                    k += 1
                    if k >= 12 and k % 4 == 0: A("s_waitcnt lgkmcnt(8)")
        A("s_waitcnt lgkmcnt(0)")
    A("L_wb:")
    if xl:
        A("s_cmp_lg_u32 s3, 0\ns_cbranch_scc1 L_wb1")
        A(f"s_getreg_b32 s20, hwreg(HW_REG_XCC_ID, 0, 4)\nv_mov_b32 v4, s20\nv_mov_b32 v5, s6\ns_lshl_b32 s20, s4, 7\ns_lshl_b32 s21, s65, 3\ns_add_u32 s20, s20, s21\ns_add_u32 s20, s20, {WS_XB}\nv_mov_b32 v6, s20")
        A(f"s_mov_b64 exec, 1\nglobal_store_dwordx2 v6, v[4:5], {WS} sc1\ns_mov_b64 exec, -1\ns_nop 0")
        A("L_wb1:")
    if bp:
        A("s_cmp_eq_u32 s3, 1\ns_cbranch_scc1 L_qpoll\ns_cmp_eq_u32 s3, 2\ns_cbranch_scc1 L_qpoll")
        srd(8, P_WO, 4096 * 1024)
        A("v_lshrrev_b32 v1, 3, v0\nv_lshlrev_b32 v1, 10, v1\nv_and_b32 v4, 7, v0\nv_lshl_add_u32 v1, v4, 4, v1\ns_lshr_b32 s22, s3, 1")
        A(f"s_lshl_b32 s20, s4, 19\ns_lshl_b32 s21, s22, 18\ns_add_u32 s20, s20, s21\ns_lshl_b32 s21, s65, 7\ns_add_u32 s20, s20, s21")
        A(f"s_lshl_b32 s23, s22, 15\ns_add_u32 s23, s23, {L_WT}\ns_mov_b32 s22, 31")
        A(f"L_wbl:\ns_mov_b32 m0, s23\ns_waitcnt vmcnt({bp-1})\nbuffer_load_dwordx4 v1, s[8:11], s20 offen {wpol} lds\ns_add_u32 s20, s20, 8192\ns_add_u32 s23, s23, 1024\ns_sub_u32 s22, s22, 1\ns_cbranch_scc0 L_wbl")
        A(f"v_mov_b32 v4, 0\nv_mov_b32 v5, 1\ns_waitcnt vmcnt(0)\ns_mov_b64 exec, 1\nds_add_u32 v4, v5 offset:{L_CW}\ns_mov_b64 exec, -1")
    elif not bdefer: wo_issue(0, 16); wo_finish(0)
    elif bearly: wo_issue(0, bearly)
    A("L_qpoll:")
    if w1early:
        A(f"s_cmp_lg_u32 s66, {R_C}\ns_cbranch_scc1 L_qp1\ns_mov_b32 s26, s67")
        srd(8, P_W1, 512 * 3584)
        A("v_lshrrev_b32 v1, 2, v0\ns_mov_b32 s20, 3584\nv_mul_lo_u32 v1, v1, s20\nv_and_b32 v12, 3, v0\nv_lshl_add_u32 v1, v12, 4, v1")
        A(f"s_mul_i32 s20, s3, {128*3584}\ns_lshl_b32 s21, s26, 6\ns_add_u32 s20, s20, s21")
        A(f"s_lshl_b32 s23, s3, 14\ns_add_u32 s23, s23, {L_WT}")
        dma([f"buffer_load_dwordx4 v1, s[8:11], s20 offen {w1pol} lds\ns_add_u32 s20, s20, {16*3584}" for i in range(8)], 0)
        A("L_qp1:")
    if nosvc:
        A(f"v_mov_b32 v10, 0\nv_mov_b32 v5, 1\nds_write_b32 v10, v5 offset:{L_FQ}\ns_mov_b64 exec, 1\nds_add_u32 v10, v5 offset:{L_CS}")
        end_wave()
    if tw:
        A("s_cmp_lg_u32 s3, 3\ns_cbranch_scc1 L_tw")
        A(f"s_lshl_b32 s20, s4, 23\ns_mul_i32 s21, s5, {28*8192}\ns_add_u32 s21, s21, s20\ns_add_u32 s20, s20, {896*8192}")
        A(f"v_mov_b32 v4, s21\nv_add_u32 v5, {28*8192-128}, v4\nv_mov_b32 v6, s20\nv_mov_b32 v7, 0\ns_mov_b64 exec, 1")
        A(f"global_load_dword v24, v4, {sp(P_V)} nt\nglobal_load_dword v25, v5, {sp(P_V)} nt\nglobal_load_dword v26, v6, {sp(P_V)} nt\nglobal_load_dword v27, v7, {sp(P_W2)} nt")
        A("s_waitcnt vmcnt(0)\ns_mov_b64 exec, -1\nL_tw:")
    A("v_mov_b32 v10, 0\nv_mov_b32 v23, 0\nv_mov_b32 v35, 64")
    A("s_cmp_lg_u32 s3, 1\ns_cbranch_scc1 L_np")
    A(f"s_lshl_b32 s21, s4, 11\ns_add_u32 s21, s21, {WS_Q}\nv_add_u32 v14, s21, v2")
    lspin("sk", L_FK, 1, 10, 11, 16 if calm else 4)
    def ldq():
        if qloc:
            A(f"ds_read_b32 v11, v10 offset:{L_FK}\ns_waitcnt lgkmcnt(0)\nv_readfirstlane_b32 s21, v11\ns_lshr_b32 s21, s21, 1\ns_and_b32 s21, s21, s7")
            if slowfb: A(f"s_cmp_lt_u32 s7, {spin-slowfb}")
            A(f"s_cselect_b32 s21, 0, {WS_QL-WS_Q}\nv_add_u32 v15, s21, v14")
        for i in range(2): A(f"global_load_dwordx4 {v4(16+4*i)}, v{15 if qloc else 14}, {WS} offset:{1024*i} sc1")
    poll("pq", ldq, lambda: chk_tags([17, 19, 21, 23], 4), qsleep)
    A("v_mov_b32 v17, v18\nv_mov_b32 v21, v22\nv_lshlrev_b32 v14, 3, v0\nv_mov_b32 v5, 1")
    A(f"ds_write_b64 v14, v[16:17] offset:{L_Q}\nds_write_b64 v14, v[20:21] offset:{L_Q+512}")
    A(f"ds_write_b32 v10, v5 offset:{L_FQ}")
    stamp(4)
    A("L_np:")
    if xit == 'np': end_wave()
    A("s_cmp_eq_u32 s3, 2\ns_cbranch_scc1 L_post")
    if mlate: A(f"s_cmp_eq_u32 s64, {E_M}\ns_cbranch_scc1 L_ml")
    A("s_cmp_eq_u32 s66, 0\ns_cbranch_scc1 L_done")
    A(f"s_cmp_lg_u32 s66, {R_F}\ns_cbranch_scc1 L_ws")
    A("s_cmp_lg_u32 s3, 0\ns_cbranch_scc1 L_done")
    A("L_ws:")
    lspin("ss0", L_CS, 9, 10, 11, 32 if calm else 16)
    A("s_branch L_pre")
    A("L_done:")
    end_wave()
    A("L_post:")
    a_addr(37, 15)
    A("v_bfe_u32 v36, v0, 2, 2")
    for i in range(4): A(f"v_mov_b32 v{16+i}, -1")
    if xl:
        A(f"v_and_b32 v20, 7, v0\ns_lshl_b32 s20, s4, 7\ns_add_u32 s20, s20, {WS_XB}\nv_lshl_add_u32 v20, v20, 3, s20")
        lspin("sg", L_FK, 1, 10, 11, 32 if calm else 8)
        poll("px", lambda: A(f"global_load_dwordx2 v[22:23], v20, {WS} sc1"), lambda: chk_tags([23], 21), 8)
        A("s_getreg_b32 s20, hwreg(HW_REG_XCC_ID, 0, 4)\nv_cmp_ne_u32 vcc, s20, v22\ns_cbranch_vccz L_ng")
        A(f"v_mov_b32 v5, 1\nds_write_b32 v10, v5 offset:{L_MK}")
    A(f"global_store_dwordx4 v37, v[16:19], {WS} sc1")
    A("L_ng:")
    if loc: A(f"v_add_u32 v39, {WS_AL-WS_A}, v37\nglobal_store_dwordx4 v39, v[16:19], {WS}")
    A("v_lshlrev_b32 v38, 3, v36\nv_mov_b32 v5, 1")
    A(f"s_lshl_b32 s20, s4, 11\ns_lshl_b32 s21, s5, {6 if fl else 4}\ns_add_u32 s20, s20, s21\ns_add_u32 s20, s20, {WS_ST}\nv_lshl_add_u32 v36, v36, {4 if fl else 9}, s20")
    A(f"s_waitcnt vmcnt(0)\ns_mov_b64 exec, 1\nds_add_u32 v10, v5 offset:{L_CS}\ns_mov_b64 exec, -1")
    lspin("ss", L_CS, 9, 10, 11, 16 if calm else 8)
    stamp(1)
    for w in range(8): A(f"ds_read_b64 {v2(40+2*w)}, v38 offset:{L_ST+32*w}")
    A("s_waitcnt lgkmcnt(0)")
    A("v_max3_f32 v56, v40, v42, v44\nv_max3_f32 v56, v56, v46, v48\nv_max3_f32 v56, v56, v50, v52\nv_max_f32 v56, v56, v54")
    for w in range(8): A(f"v_sub_f32 v{28+w}, v{40+2*w}, v56")
    for w in range(8): A(f"v_exp_f32 v{28+w}, v{28+w}")
    A("v_mul_f32 v58, v28, v41")
    for w in range(1, 8): A(f"v_fmac_f32 v58, v{28+w}, v{41+2*w}")
    A("s_getreg_b32 s20, hwreg(HW_REG_XCC_ID, 0, 4)\ns_add_u32 s20, s20, s6\nv_mov_b32 v57, s6\nv_mov_b32 v59, s20")
    A("s_mov_b64 exec, 0x1111")
    A(f"global_store_dwordx4 v36, v[56:59], {WS} sc1")
    A("s_mov_b64 exec, -1")
    stamp(2)
    if mlate: A(f"s_cmp_eq_u32 s64, {E_M}\ns_cbranch_scc1 L_ml")
    A(f"s_cmp_eq_u32 s66, 0\ns_cbranch_scc1 L_done\ns_cmp_eq_u32 s66, {R_F}\ns_cbranch_scc1 L_done")
    A("L_pre:")
    if xit == 'pre': end_wave()
    A(f"s_cmp_eq_u32 s66, {R_F}\ns_cbranch_scc1 L_tf")
    A(f"s_cmp_eq_u32 s66, {R_C}\ns_cbranch_scc1 L_tc")
    if bp: lspin("sz", L_CW, 2, 10, 11, 16); wo_finish(0)
    A(f"s_lshl_b32 s20, s4, 11\ns_lshl_b32 s21, s3, {4 if fl else 9}\ns_add_u32 s20, s20, s21\ns_add_u32 s20, s20, {WS_ST}")
    A(f"v_and_b32 v4, 31, v0\nv_lshl_add_u32 v5, v4, {6 if fl else 4}, s20")
    lspin("sb", L_CV, strig, 10, 11, 12 if calm else 4)
    poll("ps", lambda: A(f"global_load_dwordx4 v[40:43], v5, {WS} sc1"), lambda: A("v_subrev_u32 v43, s6, v43\nv_xor_b32 v6, s6, v41\nv_lshrrev_b32 v7, 4, v43\nv_or_b32 v6, v6, v7\nv_cmp_ne_u32 vcc, 0, v6"), 8)
    A("s_getreg_b32 s20, hwreg(HW_REG_XCC_ID, 0, 4)\nv_cmp_eq_u32 vcc, s20, v43")
    A("s_and_b32 s28, vcc_lo, 0xffff\ns_mul_i32 s28, s28, 0x10001\ns_mov_b32 s29, s28\ns_lshr_b32 s30, vcc_lo, 16\ns_mul_i32 s30, s30, 0x10001\ns_mov_b32 s31, s30")
    A("v_mov_b32 v44, v40")
    inrow("v_max_f32", 44, ["row_ror:8", "row_ror:4", "row_ror:2", "row_ror:1"]); xrow("v_max_f32", 44, 45, 16)
    A("v_sub_f32 v40, v40, v44\nv_exp_f32 v40, v40\nv_mul_f32 v44, v40, v42")
    inrow("v_add_f32", 44, ["row_ror:8", "row_ror:4", "row_ror:2", "row_ror:1"]); xrow("v_add_f32", 44, 45, 16)
    A("v_rcp_f32 v44, v44\nv_mul_f32 v40, v40, v44")
    A("s_lshl_b32 s20, s3, 8\nv_lshl_add_u32 v4, v4, 2, s20\nv_lshrrev_b32 v5, 4, v0\nv_lshl_add_u32 v5, v5, 4, s20")
    A(f"ds_write_b32 v4, v40 offset:{L_X}\nds_read_b128 v[12:15], v5 offset:{L_X}\nds_read_b128 v[16:19], v5 offset:{L_X+64}")
    A("v_and_b32 v1, 15, v0\nv_lshrrev_b32 v4, 4, v0\nv_lshlrev_b32 v24, 4, v1\nv_lshl_add_u32 v22, v4, 14, v24\nv_lshlrev_b32 v1, %d, v1\nv_lshl_add_u32 v1, v4, 4, v1" % (7 if fl else 6))
    A(f"s_lshl_b32 s20, s4, 15\ns_lshl_b32 s21, s3, 13\ns_add_u32 s20, s20, s21\ns_add_u32 s20, s20, {WS_A}\nv_add_u32 v1, s20, v{2 if lin else 1}")
    A(f"v_add_u32 v5, {(WS_AL-WS_A) if loc else 0}, v1\nv_cndmask_b32 v6, v1, v5, s[28:29]\nv_cndmask_b32 v7, v1, v5, s[30:31]\nv_add_u32 v8, 4096, v6\nv_add_u32 v9, 4096, v7")
    A("s_lshl_b32 s20, s3, 8\nv_lshl_add_u32 v21, v0, 2, s20")
    A(f"s_lshl_b32 s20, s4, 11\ns_lshl_b32 s21, s67, 8\ns_add_u32 s20, s20, s21\ns_add_u32 s20, s20, {WS_B}\ns_lshl_b32 s21, s3, 16\ns_add_u32 s20, s20, s21\nv_add_u32 v22, s20, v22")
    A("s_waitcnt lgkmcnt(0)")
    stamp(5)
    AR = lambda c, s_: 40 + 16 * s_ + 4 * c
    D = lambda s_, nt: 72 + 16 * s_ + 4 * nt
    def lda(s_):
        for c in range(4): A(f"global_load_dwordx4 {v4(AR(c,s_))}, v{6+s_+(0 if c<2 else 2)}, {WS} offset:{(64*(c&1)+2048*s_) if fl else (2048*(c&1)+1024*s_)} {lpol}")
    def mm(s_, other_done):
        wr = 12 + 4 * s_
        def fin(nt):
            d = D(s_, nt)
            r = [f"v_pk_mul_f32 {v2(d)}, {v2(d)}, {v2(wr)}", f"v_pk_fma_f32 {v2(d)}, {v2(d+2)}, {v2(wr+2)}, {v2(d)}", f"v_add_f32 v{d}, v{d}, v{d+1}"]
            if other_done: r.append(f"v_add_f32 v{D(0,nt)}, v{D(0,nt)}, v{D(1,nt)}")
            return r
        for c in range(4):
            for nt in (0, 2, 1, 3):
                d = D(s_, nt)
                A(f"v_mfma_f32_16x16x32_bf16 {v4(d)}, {v4(AR(c,s_))}, {v4(104+16*c+4*nt)}, {'0' if c==0 else v4(d)}")
        for grp in zip(fin(0), fin(2), fin(1), fin(3)):
            for l in grp: A(l)
        if other_done: A("v_permlane32_swap_b32 v72, v80\nv_add_f32 v72, v72, v80")
    if dry:
        A("s_mov_b64 s[80:81], 0\ns_mov_b64 s[32:33], 0\ns_mov_b64 s[34:35], 0\ns_mov_b32 s84, 0\ns_mov_b64 exec, 0\ns_branch L_pb0")
        A("L_bdr:\ns_cmp_eq_u32 s84, 0\ns_mov_b32 s84, 1\ns_cbranch_scc1 L_pb1\ns_mov_b64 exec, -1")
    A("s_mov_b64 s[80:81], -1")
    if bdefer:
        if bdefer <= 8: lspin("sd", L_CV, bdefer, 10, 11, 1)
        else: lspin("sd", L_FP, 1, 10, 11, 1)
        A("s_setprio 1"); wo_issue(bearly, 16); lda(0); lda(1); A("s_setprio 3"); wo_finish(8)
        stamp(4)
        A(f"s_mov_b32 s7, {spin}\ns_branch L_pa2")
    if atrig: lspin("sa", L_FO + (4 if atrig > 4 else 0), atrig - 4 if atrig > 4 else atrig, 10, 11, 2)
    A(f"s_mov_b32 s7, {spin}\ns_mov_b64 s[32:33], -1\ns_mov_b64 s[34:35], -1")
    A("L_pa:")
    A("s_mov_b64 exec, s[32:33]"); lda(0)
    A("s_mov_b64 exec, s[34:35]"); lda(1)
    A("s_mov_b64 exec, -1")
    A("L_pa2:")
    A("s_waitcnt vmcnt(4)")
    chk_sent(range(40, 56), 23); A("s_mov_b64 s[32:33], vcc")
    A("s_waitcnt vmcnt(0)")
    chk_sent(range(56, 72), 23); A("s_mov_b64 s[34:35], vcc")
    A("s_cbranch_vccz L_pa1\ns_cmp_eq_u64 s[32:33], 0\ns_cbranch_scc1 L_pa0")
    if tsleep: A(f"s_sleep {tsleep}")
    if bhold:
        A("s_mov_b32 s85, s7"); lspin("sy", L_FO + 4 * (bhold - 1), 1, 10, 11, 2); A("s_mov_b32 s7, s85")
    A("s_sub_u32 s7, s7, 1\ns_cbranch_scc0 L_pa")
    for first in (0, 1):
        sec = 1 - first
        A(f"L_pa{first}:")
        mk = sp(32 + 2 * sec)
        A(f"s_cmp_eq_u64 {mk}, 0\ns_cbranch_scc1 L_pb{first}")
        A(f"s_mov_b64 exec, {mk}"); lda(sec); A("s_mov_b64 exec, -1")
        A(f"L_pb{first}:")
        mm(first, False)
        A(f"s_mov_b64 exec, {mk}\ns_cbranch_execz L_pd{first}")
        for _ in range(pd - 1): lda(sec)
        A(f"L_pc{first}:")
        A(f"s_waitcnt vmcnt({4*(pd-1)})")
        chk_sent(range(40 + 16 * sec, 56 + 16 * sec), 23)
        A(f"s_cbranch_vccz L_pd{first}\ns_mov_b64 exec, vcc")
        lda(sec)
        A(f"s_sub_u32 s7, s7, 1\ns_cbranch_scc0 L_pc{first}\ns_waitcnt vmcnt(0)")
        A(f"L_pd{first}:")
        A("s_mov_b64 exec, s[80:81]")
        stamp(6)
        mm(sec, True)
        if first == 0: A("s_branch L_pe")
    A("L_pe:\ns_nop 0")
    A("v_permlane32_swap_b32 v76, v84\nv_add_f32 v76, v76, v84")
    A("v_permlane16_swap_b32 v72, v76\nv_add_f32 v72, v72, v76")
    A(f"ds_write_b32 v21, v72 offset:{L_RED}")
    A("s_waitcnt lgkmcnt(0)")
    if dry: A("s_cbranch_execz L_bnb")
    A("s_barrier")
    A(f"s_cmp_ge_u32 s3, {2 if R == 8 else 1}\ns_cbranch_scc1 L_done")
    A("L_bnb:")
    for w in range(4): A(f"ds_read_b128 {v4(88+4*w)}, v24 offset:{L_RED+256*w}")
    assert R in (4, 8)
    A("s_waitcnt lgkmcnt(2)\nv_pk_add_f32 v[88:89], v[88:89], v[92:93]\nv_pk_add_f32 v[90:91], v[90:91], v[94:95]")
    A("s_waitcnt lgkmcnt(0)\nv_pk_add_f32 v[96:97], v[96:97], v[100:101]\nv_pk_add_f32 v[98:99], v[98:99], v[102:103]")
    A("v_pk_add_f32 v[88:89], v[88:89], v[96:97]\nv_pk_add_f32 v[90:91], v[90:91], v[98:99]")
    if dry: A("s_cbranch_execz L_bdr")
    A(f"global_store_dwordx4 v22, v[88:91], {WS} sc1")
    stamp(7)
    end_wave()
    A("L_tc:")
    A("s_mov_b32 s26, s67")
    srd(8, P_W1, 512 * 3584); srd(12, P_W2, 1792 * 1024)
    A("v_lshrrev_b32 v23, 4, v0\nv_lshlrev_b32 v23, 4, v23")
    A("v_lshrrev_b32 v1, 2, v0\ns_mov_b32 s20, 3584\nv_mul_lo_u32 v1, v1, s20\nv_and_b32 v12, 3, v0\nv_lshl_add_u32 v1, v12, 4, v1")
    A(f"s_mul_i32 s20, s3, {128*3584}\ns_lshl_b32 s21, s26, 6\ns_add_u32 s20, s20, s21")
    A("v_lshlrev_b32 v18, 6, v23\nv_and_b32 v13, 15, v0\nv_lshl_add_u32 v18, v13, 4, v18")
    A("s_lshl_b32 s27, s26, 15\ns_lshl_b32 s21, s3, 8\ns_add_u32 s27, s27, s21")
    A(f"s_lshl_b32 s23, s3, 14\ns_add_u32 s23, s23, {L_WT}")
    if not w1early: dma([f"buffer_load_dwordx4 v1, s[8:11], s20 offen {w1pol} lds\ns_add_u32 s20, s20, {16*3584}" for i in range(8)], 0)
    def w2load():
        A("s_add_u32 s23, s23, 8192")
        dma([f"buffer_load_dwordx4 v18, s[12:15], s27 offen {wpol} lds\ns_add_u32 s27, s27, 4096" for i in range(8)], 0)
    A("v_lshrrev_b32 v12, 4, v0\nv_bfe_u32 v13, v0, 2, 2\nv_and_b32 v14, 3, v0\nv_lshl_add_u32 v14, v14, 3, s23")
    A("v_lshl_add_u32 v1, v12, 9, v14\nv_lshl_add_u32 v1, v13, 6, v1")
    A("v_lshl_add_u32 v19, v12, 10, v14\nv_lshl_add_u32 v19, v13, 8, v19")
    if not w2late: w2load()
    A("v_and_b32 v20, 31, v0\nv_lshlrev_b32 v20, 3, v20\nv_lshrrev_b32 v21, 5, v0\nv_lshl_add_u32 v20, v21, 2, v20")
    A("s_lshl_b32 s20, s3, 8\nv_add_u32 v20, s20, v20")
    A(f"global_load_dword v22, v20, {sp(P_X)}\nglobal_load_dwordx4 v[28:31], v2, {sp(P_X)}")
    A(f"v_lshlrev_b32 v21, 1, v20\nv_add_u32 v21, {WS_MOD}, v21\nv_add_u32 v24, 4096, v21")
    A("s_waitcnt vmcnt(0)")
    for c in range(4):
        for mt in range(2):
            for hi in range(2):
                A(f"ds_read_b64_tr_b16 {v2(104+8*c+4*mt+2*hi)}, v1 offset:{(32*c+4*hi)*64+mt*32}")
        if c & 1: A("s_waitcnt lgkmcnt(0)")
    unpack(4, [22], 1)
    unpack(48, [28, 29, 30, 31], 4)
    A("v_pk_add_f32 v[48:49], v[48:49], v[50:51]\nv_pk_add_f32 v[52:53], v[52:53], v[54:55]\nv_pk_add_f32 v[48:49], v[48:49], v[52:53]\nv_add_f32 v48, v48, v49")
    wave_reduce("v_add_f32", 48, 49)
    A(f"v_mul_f32 v48, {f2x(1/512)}, v48\nv_sub_f32 v4, v4, v48\nv_sub_f32 v5, v5, v48")
    def w2tr():
        for tau in range(8):
            for hi in range(2):
                A(f"ds_read_b64_tr_b16 {v2(136+4*tau+2*hi)}, v19 offset:{8192+hi*4096+tau*32}")
            if tau % 4 == 3: A("s_waitcnt lgkmcnt(0)")
    if mlate:
        lspin("sv0", L_CV, 4, 10, 11, 16); lspin("sv", L_FP, 1, 10, 11, 2); w2load(); A("s_waitcnt vmcnt(0)"); w2tr(); stamp(4)
    poll("pm", lambda: A(f"global_load_dwordx2 v[40:41], v21, {WS} sc1\nglobal_load_dwordx2 v[42:43], v21, {WS} offset:2048 sc1\nglobal_load_dwordx2 v[44:45], v24, {WS} sc1"),
         lambda: chk_tags([41, 43, 45], 46), 2 if mlate else 16)
    unpack(6, [40, 44], 2)
    A("v_add_f32 v8, 1.0, v8\nv_add_f32 v9, 1.0, v9\nv_cvt_pk_bf16_f32 v44, v8, v9")
    unpack(8, [44], 1)
    A(f"ds_write_b32 v20, v44 offset:{L_U}\nds_write_b32 v20, v42 offset:{L_U+1024}")
    A("v_add_u32 v21, s20, v23\nv_and_b32 v22, 1, v0\nv_lshl_add_u32 v22, v22, 10, v21")
    for c in range(4): A(f"ds_read_b128 {v4(48+4*c)}, v22 offset:{L_U+64*c}")
    A("s_waitcnt lgkmcnt(0)")
    for c in range(4):
        for mt in range(2):
            A(f"v_mfma_f32_16x16x32_bf16 {v4(24+4*mt)}, {v4(104+8*c+4*mt)}, {v4(48+4*c)}, {'0' if c==0 else v4(24+4*mt)}")
    A("s_mov_b32 exec_lo, 0x00030003\ns_mov_b32 exec_hi, 0x00030003")
    A(f"ds_write_b128 v22, v[24:27] offset:{L_GS}\nds_write_b128 v22, v[28:31] offset:{L_GS+64}")
    A("s_mov_b64 exec, 1\nv_mov_b32 v33, 1")
    A(f"ds_add_u32 v10, v33 offset:{L_CP}")
    A("s_mov_b64 exec, -1")
    A("v_and_b32 v1, 31, v0\nv_lshlrev_b32 v1, 4, v1\nv_lshrrev_b32 v16, 5, v0\nv_lshl_add_u32 v1, v16, 11, v1")
    A(("s_lshr_b32 s21, s4, 1" if rx else f"s_and_b32 s21, {'s4' if R == 8 else 's26'}, {R-1}") + f"\ns_lshl_b32 s21, s21, 14\ns_lshl_b32 s20, s3, 9\ns_add_u32 s20, s20, s21\ns_add_u32 s20, s20, {WS_B}\nv_add_u32 v1, s20, v1")
    A("v_add_u32 v12, 4096, v1\nv_add_u32 v13, 8192, v1\nv_add_u32 v14, 12288, v1")
    A(f"s_lshl_b32 s20, s3, 8\nv_lshl_add_u32 v22, v16, 2, s20")
    A("v_and_b32 v33, 3, v0\nv_lshlrev_b32 v33, 8, v33\nv_bfe_u32 v32, v0, 3, 1\nv_lshl_add_u32 v32, v32, 6, v33\nv_add_u32 v32, v32, v23")
    A(f"s_mov_b32 s22, {f2x(1/512)}\nv_mov_b32 v34, {f2x(1e-5)}")
    lspin("sp", L_CP, 4, 10, 11, 0 if mlate else 4, lambda: A(f"ds_read_b128 v[24:27], v32 offset:{L_GS}\nds_read_b128 v[28:31], v32 offset:{L_GS+1024}"))
    for qp in ("[1,0,3,2]", "[2,3,0,1]"):
        for i in range(8): A(f"v_add_f32_dpp v{24+i}, v{24+i}, v{24+i} quad_perm:{qp} {DPPF}")
    if dry:
        A("s_mov_b64 s[80:81], 0\ns_mov_b64 s[82:83], 0\ns_mov_b64 exec, 0\ns_branch L_pbd\nL_cdr:\ns_mov_b64 exec, -1")
    A("s_mov_b64 s[80:81], -1\ns_mov_b32 s82, 0x00010001\ns_mov_b32 s83, 0x00010001")
    if not mlate:
        stamp(4)
        lspin("sv0", L_CV, 4, 10, 11, 16); lspin("sv", L_FP, 1, 10, 11, 2)
        if w2late: w2load()
    cs = 13 if cpad else 12
    A(f"s_lshl_b32 s20, s3, {cs+3}\ns_lshl_b32 s21, s26, {cs-6}\ns_add_u32 s20, s20, s21\ns_add_u32 s20, s20, {WS_C}")
    A(f"v_bfe_u32 v35, v0, 2, 3\nv_lshlrev_b32 v35, {cs}, v35\nv_and_b32 v36, 3, v0\nv_lshl_add_u32 v35, v36, 4, v35\nv_add_u32 v35, s20, v35")
    if not mlate: A("s_waitcnt vmcnt(0)"); w2tr()
    stamp(5)
    G = 40; Hh = 88
    def gather4(name, base, addr, tmp, sleep):
        if g4:
            A(f"s_mov_b32 s7, {spin}")
            for i in range(4): A(f"global_load_dwordx4 {v4(base+4*i)}, {addr(i)} sc1\ns_mov_b64 {sp(28+2*i)}, -1")
            A(f"L_{name}t:\ns_waitcnt vmcnt(0)\ns_mov_b32 s21, 0")
            for i in range(4):
                A(f"s_mov_b64 exec, {sp(28+2*i)}\ns_cbranch_execz L_{name}s{i}")
                A(f"v_max3_u32 v{tmp}, v{base+4*i}, v{base+4*i+1}, v{base+4*i+2}\nv_max_u32 v{tmp}, v{tmp}, v{base+4*i+3}\nv_cmp_eq_u32 vcc, -1, v{tmp}")
                A(f"s_mov_b64 {sp(28+2*i)}, vcc\ns_cbranch_vccz L_{name}s{i}\ns_mov_b64 exec, vcc\nglobal_load_dwordx4 {v4(base+4*i)}, {addr(i)} sc1\ns_mov_b32 s21, 1")
                A(f"L_{name}s{i}:")
            A(f"s_mov_b64 exec, -1\ns_cmp_eq_u32 s21, 0\ns_cbranch_scc1 L_{name}d\ns_sub_u32 s7, s7, 1\ns_cbranch_scc0 L_{name}t\ns_waitcnt vmcnt(0)")
            A(f"L_{name}d:")
            return
        A(f"s_mov_b32 s7, {spin}")
        for _ in range(pd):
            for i in range(4): A(f"global_load_dwordx4 {v4(base+4*i)}, {addr(i)} sc1")
        A(f"L_{name}t:")
        A(f"s_waitcnt vmcnt({4*(pd-1)})")
        for i in range(4): A(f"v_max3_u32 v{tmp+i}, v{base+4*i}, v{base+4*i+1}, v{base+4*i+2}")
        for i in range(4): A(f"v_max_u32 v{tmp+i}, v{tmp+i}, v{base+4*i+3}")
        A(f"v_max3_u32 v{tmp+4}, v{tmp}, v{tmp+1}, v{tmp+2}\nv_max_u32 v{tmp+4}, v{tmp+4}, v{tmp+3}\nv_cmp_eq_u32 vcc, -1, v{tmp+4}\ns_cbranch_vccz L_{name}d")
        for i in range(4): A(f"v_cmp_eq_u32 {sp(28+2*i)}, -1, v{tmp+i}")
        if sleep: A(f"s_sleep {sleep}")
        for i in range(4):
            A(f"s_or_b64 exec, {sp(28+2*i)}, 1\nglobal_load_dwordx4 {v4(base+4*i)}, {addr(i)} sc1")
        A(f"s_mov_b64 exec, -1\ns_sub_u32 s7, s7, 1\ns_cbranch_scc0 L_{name}t")
        A(f"L_{name}d:")
    gather4("pb", Hh, lambda i: f"v{1 if i==0 else 11+i}, {WS}", 56, csleep)
    stamp(6)
    A(f"v_pk_add_f32 {v2(G)}, {v2(Hh)}, {v2(Hh+4)}\nv_pk_add_f32 {v2(G+2)}, {v2(Hh+2)}, {v2(Hh+6)}\nv_pk_add_f32 {v2(G+8)}, {v2(Hh+8)}, {v2(Hh+12)}\nv_pk_add_f32 {v2(G+10)}, {v2(Hh+10)}, {v2(Hh+14)}")
    A(f"v_pk_add_f32 {v2(G)}, {v2(G)}, {v2(G+8)}\nv_pk_add_f32 {v2(G+2)}, {v2(G+2)}, {v2(G+10)}")
    A(f"v_permlane32_swap_b32 v{G}, v{G+2}\nv_permlane32_swap_b32 v{G+1}, v{G+3}")
    A(f"v_pk_add_f32 {v2(G)}, {v2(G)}, {v2(G+2)}")
    A(f"v_pk_fma_f32 v[4:5], {v2(G)}, v[6:7], v[4:5]")
    A("v_pk_mul_f32 v[6:7], v[4:5], v[8:9]\nv_cvt_pk_bf16_f32 v6, v6, v7")
    A(f"ds_write_b32 v20, v6 offset:{L_U}")
    for c in range(4): A(f"ds_read_b128 {v4(44+4*c)}, v21 offset:{L_U+64*c}")
    A("v_add_f32 v16, v4, v5\nv_mul_f32 v17, v4, v4\nv_fmac_f32 v17, v5, v5")
    A("v_permlane32_swap_b32 v16, v17\nv_add_f32 v16, v16, v17")
    xrow("v_add_f32", 16, 17, 16)
    steps = ["row_ror:8", "row_ror:4", "row_ror:2", "row_ror:1"]
    for c in range(4):
        A(f"s_waitcnt lgkmcnt({3-c})")
        for mt in range(2):
            A(f"v_mfma_f32_16x16x32_bf16 {v4(60+4*mt)}, {v4(104+8*c+4*mt)}, {v4(44+4*c)}, {'0' if c==0 else v4(60+4*mt)}")
        inrow("v_add_f32", 16, [steps[c]])
    A("s_mov_b64 exec, s[82:83]")
    A(f"ds_write_b32 v22, v16 offset:{L_RED+128}")
    A(f"ds_write_b128 v21, v[60:63] offset:{L_RED}\nds_write_b128 v21, v[64:67] offset:{L_RED+64}")
    A("s_mov_b64 exec, s[80:81]")
    A("s_waitcnt lgkmcnt(0)")
    if dry: A("s_cbranch_execz L_cnb")
    A("s_barrier\nL_cnb:")
    A(f"ds_read_b64 v[12:13], v33 offset:{L_RED+128}\nds_read_b128 v[40:43], v32 offset:{L_RED}")
    A("s_waitcnt lgkmcnt(0)")
    for qp in ("[1,0,3,2]", "[2,3,0,1]"):
        for r in (12, 13, 40, 41, 42, 43): A(f"v_add_f32_dpp v{r}, v{r}, v{r} quad_perm:{qp} {DPPF}")
    A("v_mul_f32 v12, s22, v12\nv_fma_f32 v14, v13, s22, v34\nv_fma_f32 v14, -v12, v12, v14\nv_max_f32 v14, v14, v34\nv_rsq_f32 v14, v14")
    for q in range(2): A(f"v_pk_fma_f32 {v2(40+2*q)}, {v2(24+2*q)}, v[12:13], {v2(40+2*q)} op_sel_hi:[1,0,1] neg_lo:[0,1,0] neg_hi:[0,1,0]")
    for q in range(2): A(f"v_pk_fma_f32 {v2(40+2*q)}, {v2(40+2*q)}, v[14:15], {v2(28+2*q)} op_sel_hi:[1,0,1]")
    for q in range(2): A(f"v_cvt_pk_bf16_f32 v{48+q}, v{40+2*q}, v{41+2*q}")
    for q in range(2): A(f"v_pk_max_i16 v{48+q}, v{48+q}, 0")
    for q in range(2): A(f"v_mov_b32_dpp v{50+q}, v{48+q} row_shl:8 {DPPF} bound_ctrl:0")
    for tau in (0, 2, 4, 6, 1, 3, 5, 7): A(f"v_mfma_f32_16x16x32_bf16 {v4(56+4*tau)}, v[48:51], {v4(136+4*tau)}, 0")
    for j in (1, 2, 3): A(f"v_mov_b32 v{56+j}, v{56+8*j}")
    for j in range(4): A(f"v_mov_b32_dpp v{56+j}, v{60+8*j} quad_perm:[0,1,2,3] row_mask:0x2 bank_mask:0xf")
    if dry: A("s_cbranch_execz L_cdr")
    A("s_mov_b32 exec_hi, 0")
    A(f"global_store_dwordx4 v35, v[56:59], {WS} sc1")
    stamp(7)
    end_wave()
    A("L_tf:")
    prb("cs")
    A("s_mov_b32 s26, s67\ns_lshr_b32 s20, s26, 3\ns_lshl_b32 s20, s20, 7\ns_and_b32 s21, s26, 7\ns_lshl_b32 s21, s21, 2\ns_add_u32 s20, s20, s21")
    A("v_and_b32 v4, 3, v0\nv_lshrrev_b32 v5, 4, v0\nv_lshl_add_u32 v4, v5, 5, v4\nv_add_u32 v4, s20, v4\nv_lshlrev_b32 v5, 1, v4")
    A(f"global_load_ushort v8, v5, {sp(P_X)}")
    if tw: A(f"global_load_ushort v33, v5, {sp(P_OUT)}")
    A(f"v_lshrrev_b32 v6, 1, v4\nv_lshlrev_b32 v6, 3, v6\nv_add_u32 v6, {WS_MOD}, v6\nv_add_u32 v7, 6144, v6")
    if mlate: lspin("sf0", L_FP, 1, 10, 11, 16)
    poll("pg", lambda: A(f"global_load_dwordx2 v[12:13], v6, {WS} sc1\nglobal_load_dwordx2 v[14:15], v7, {WS} sc1"),
         lambda: chk_tags([13, 15], 16), 4 if mlate else 16)
    A("v_lshlrev_b32 v8, 16, v8")
    A("v_and_b32 v16, 1, v4\nv_cmp_eq_u32 vcc, 0, v16")
    A("v_lshlrev_b32 v16, 16, v12\nv_and_b32 v17, 0xffff0000, v12\nv_cndmask_b32 v9, v17, v16, vcc")
    A("v_lshlrev_b32 v16, 16, v14\nv_and_b32 v17, 0xffff0000, v14\nv_cndmask_b32 v12, v17, v16, vcc")
    A(f"v_bfe_u32 v6, v0, 2, 2\nv_lshlrev_b32 v6, 12, v6\nv_lshl_add_u32 v6, v4, 2, v6\nv_add_u32 v6, {WS_B}, v6")
    if R == 8: A("s_lshl_b32 s20, s4, 14\nv_add_u32 v6, s20, v6")
    if rx: A("s_lshr_b32 s20, s4, 1\ns_lshl_b32 s20, s20, 14\nv_add_u32 v6, s20, v6")
    if cpad: A(f"s_lshl_b32 s20, s26, 13\ns_add_u32 s20, s20, {WS_C}\nv_lshrrev_b32 v7, 2, v0\nv_lshl_add_u32 v7, v7, 6, v2\nv_add_u32 v7, s20, v7\nv_add_u32 v32, 4096, v7")
    else: A(f"s_lshl_b32 s20, s26, 12\ns_add_u32 s20, s20, {WS_C}\nv_add_u32 v7, s20, v2")
    if dry: A("s_mov_b64 exec, 0\ns_branch L_fd\nL_fdr:\ns_mov_b64 exec, -1")
    lspin("sf", L_FP, 1, 10, 11, 16 if calm else 4)
    prb("fp")
    poll("pxb", lambda: A(f"global_load_dword v13, v6, {WS} sc1\nglobal_load_dword v14, v6, {WS} offset:2048 sc1"), lambda: chk_sent([13, 14], 15), xsleep)
    A("v_add_f32 v13, v13, v14")
    inrow("v_add_f32", 13, ["row_ror:8", "row_ror:4"])
    A("v_fma_f32 v8, v9, v13, v8")
    prb("b")
    stamp(6)
    if fdelay: A(f"s_sleep {fdelay}")
    gather4("pc", 40, lambda i: f"v{(7 if i<2 else 32) if cpad else 7}, {WS} offset:{2048*(i&1) if cpad else 1024*i}", 56, fsleep)
    A("L_fd:")
    stamp(7)
    A("v_pk_add_f32 v[16:17], v[40:41], v[44:45]\nv_pk_add_f32 v[18:19], v[42:43], v[46:47]\nv_pk_add_f32 v[24:25], v[48:49], v[52:53]\nv_pk_add_f32 v[26:27], v[50:51], v[54:55]")
    A("v_pk_add_f32 v[16:17], v[16:17], v[24:25]\nv_pk_add_f32 v[18:19], v[18:19], v[26:27]")
    A("v_permlane32_swap_b32 v16, v18\nv_permlane32_swap_b32 v17, v19\nv_pk_add_f32 v[16:17], v[16:17], v[18:19]")
    A("v_permlane16_swap_b32 v16, v17\nv_add_f32 v16, v16, v17")
    inrow("v_add_f32", 16, ["row_ror:8", "row_ror:4"])
    A("v_fma_f32 v16, v12, v16, v8\nv_cvt_pk_bf16_f32 v16, v16, v16")
    if dry: A("s_cbranch_execz L_fdr")
    A("s_mov_b32 exec_lo, 0x000f000f\ns_mov_b32 exec_hi, 0x000f000f")
    A(f"global_store_short v5, v16, {sp(P_OUT)}")
    A("s_cmp_lg_u32 s26, 0\ns_cbranch_scc1 L_tfe")
    A("s_mov_b64 exec, 1\nv_mov_b32 v18, s6")
    A(f"global_store_dword v10, v18, {WS}")
    if fixend:
        prb("end")
        A(f"L_fx:\ns_memrealtime s[98:99]\ns_waitcnt lgkmcnt(0)\ns_sub_u32 s98, s98, {'s94' if probe else 's96'}\ns_cmp_lt_u32 s98, {fixend}\ns_cbranch_scc1 L_fx")
    A("L_tfe:")
    stamp(4)
    end_wave()
    if stamps:
        A("L_stampout:")
        if st0: A("s_waitcnt lgkmcnt(0)\nv_writelane_b32 v3, s90, 0\ns_cmp_lt_u32 s3, 4\ns_cbranch_scc1 L_so9\nv_writelane_b32 v3, s92, 1\nv_writelane_b32 v3, s94, 2\nL_so9:")
        if stamps == 2:
            A("s_cmp_lg_u32 s2, 32\ns_cbranch_scc1 L_exit\ns_and_b32 s20, s3, 11\ns_cbranch_scc1 L_exit")
            A("s_mov_b64 exec, 0xff\ns_lshl_b32 s20, s3, 3\nv_lshl_add_u32 v1, v0, 2, s20")
            A(f"global_store_dword v1, v3, {sp(P_DBG)}\ns_endpgm")
        A("s_mov_b64 exec, 0xff")
        A("s_mul_i32 s20, s2, 12\ns_add_u32 s20, s20, s3\ns_lshl_b32 s20, s20, 5")
        A(f"s_add_u32 s20, s20, {WS_STAMP}")
        A("v_lshl_add_u32 v1, v0, 2, s20")
        A(f"global_store_dword v1, v3, {WS}")
    A("L_exit:\ns_endpgm")
    A(".p2align 6\n.type L_tab,@object\nL_tab:")
    for wg in range(256):
        r = roles[(xp[wg & 7] if xp else wg & 7), wg >> 3]; skip = T - r['n']
        assert skip < 8, (wg, r)
        A(f".long {(r['pre'] - skip + 16) | skip << 12 | r['e'] << 15 | r['ei'] << 18 | r['l'] << 23 | r['li'] << 25:#x}")
    A("L_endcode:")
    A('.section .rodata,"a"\n.p2align 6')
    A(f".amdhsa_kernel {NAME}")
    for l in ["next_free_vgpr 168", "next_free_sgpr 102", "accum_offset 168", "group_segment_fixed_size 0", "kernarg_size 104",
              "user_sgpr_count 2", "user_sgpr_kernarg_segment_ptr 1", "system_sgpr_workgroup_id_x 1"]:
        A("  .amdhsa_" + l)
    A(".end_amdhsa_kernel")
    return A.finish()

if __name__ == "__main__":
    out = sys.argv[1]; kw = {}
    for a in sys.argv[2:]:
        k, v = a.split("=", 1)
        try: v = ast.literal_eval(v)
        except Exception: pass
        kw[k] = v
    open(out, "w").write(gen(**kw))
    import json
    roles, T = make_plan(kw.get('plan', 'A'), **{k: v for k, v in kw.items() if k in ('cH','cQ','cM','cB','cC','T','c3','Fx','adj')})
    json.dump([[roles[wg & 7, wg >> 3][k] for k in ('e', 'l', 'n')] for wg in range(256)], open(out + ".roles", "w"))
```

```python
import sys, struct, ast
from asmlib import Asm
NAME = "adaLN_cond__gqa_block_cached__dense_activation_relu__decode_kernel"
def f2x(f): return "0x%08x" % struct.unpack("<I", struct.pack("<f", f))[0]

WS_P = 0x100000; WS_PV = 0x15000; WS_XB = 0x14000; WS_QL = 0x10000; WS_H = 0x18000; WS_MOD = 0x4000; WS_Q = 0x8000; WS_ST = 0xC000
WS_AL = 0xC0000; WS_A = 0x80000; WS_B = 0x20000; WS_C = 0x40000
WS_STAMP = 0x8000000
L_CG = 0; L_FQ = 4; L_CS = 8; L_CT = 68; L_CP = 16; L_FK = 20; L_CV = 24; L_CW = 28; L_FO = 32; L_MK = 64; L_FP = 12
L_ST = 256; L_Q = 1024; L_GP = 2048; L_X = 3072; L_RED = 4096; L_U = 5120; L_GS = 8192
L_OP = 16384; L_WT = 32768; LDS_SIZE = 98304
DPPF = "row_mask:0xf bank_mask:0xf"
P_X, P_K, P_V, P_WQ, P_WO, P_BX, P_W1, P_W2, P_C, P_WM, P_OUT, P_DBG, P_WS = [36 + 2 * i for i in range(13)]
def sp(n): return f"s[{n}:{n+1}]"
def v4(n): return f"v[{n}:{n+3}]"
def v2(n): return f"v[{n}:{n+1}]"
WS = sp(P_WS)

DOC = '''; ---------------------------------------------------------------------------------------------
; One persistent launch, 256 workgroups (one per CU) x 12 waves.  x = wg&7 = kv head, a = wg>>3 = key split.
;     max, V tiles -> v_perm transpose -> MFMA, workgroup partial summed through LDS and published.
;     H: sa/ca slice of silu(c)@w_mod   Q: LN(x)*(1+ca)+sa, q slice   M: ga/sb/cb/gb slice
;     B: split combine (global softmax weights) + wo slice            C: residual, LN, FFN slice
;        vote) so that the two cross-die hand-off buffers sit next to their readers; affects placement only
; ---------------------------------------------------------------------------------------------'''
E_H, E_Q, E_M, E_B, E_P = 1, 2, 3, 4, 5
R_B, R_C, R_F = 1, 2, 3
def make_plan(plan, **pk):
    P = dict(PLANS[plan]); P.update(pk)
    roles = {(x, a): dict(e=0, ei=0, l=0, li=0) for x in range(8) for a in range(32)}
    hi = mi = ci = fi = 0
    for x in range(8):
        a = 0
        for _ in range(P['H'][x]): roles[x, a].update(e=E_H, ei=hi); hi += 1; a += 1
        for c in range(8):
            roles[x, a].update(e=E_Q, ei=c)
            if (x & 1 == P['Fx'] if 'Fx' in P else c in (0, 1, 4, 5)): roles[x, a].update(l=R_F, li=fi); fi += 1
            a += 1
        for c in range(8): roles[x, a].update(e=E_B, ei=c, l=R_B, li=c); a += 1
        for _ in range(P['M'][x]): roles[x, a].update(e=E_M, ei=mi); mi += 1; a += 1
        assert a <= 32
        cand = [b for b in range(31, -1, -1) if roles[x, b]['e'] == 0] + [b for b in range(32) if roles[x, b]['e'] == E_H] + [b for b in range(32) if roles[x, b]['e'] == E_M]
        for b in cand[:P['C'][x]]: roles[x, b].update(l=R_C, li=ci); ci += 1
    assert (hi, mi, ci, fi) == (32, 32, 56, 32), (hi, mi, ci, fi)
    free = [k for k in sorted(roles) if roles[k]['e'] == 0 and roles[k]['l'] == 0]
    assert len(free) >= 8
    for i, k in enumerate(free[:: len(free) // 8][:8]): roles[k].update(e=E_P, ei=i)
    for x in range(8):
        cost = []
        for a in range(32):
            r = roles[x, a]
            c = {0: 0, E_P: 0, E_H: P['cH'], E_Q: P['cQ'], E_M: P['cM'], E_B: P['cB']}[r['e']]
            cb = r['ei'] if r['e'] in (E_Q, E_B) else (r['ei'] >> 2)
            if r['e'] in P['c3'] and cb == 3: c += P['c3'][r['e']]
            if r['l'] == R_C: c += P['cC']
            cost.append(c)
        n = [max(28, P['T'] - 7)] * 32
        for _ in range(1024 - sum(n)):
            b = min((a for a in range(32) if n[a] < P['T']), key=lambda a: (n[a] + cost[a], -a))
            n[b] += 1
        if P.get('adj') and x & 1:
            give = 0
            for a in range(32):
                r = roles[x, a]
                if r['e'] == E_B and (r['ei'] == 3 or r['ei'] >= 8 - P['adj'] + 1): n[a] -= 1; give += 1
            for a in range(32):
                r = roles[x, a]
                if give and r['l'] == R_C and (r['li'] >> 1) % 4 != 3: n[a] += 1; give -= 1
            assert give == 0
        pre = 0
        for a in range(32):
            roles[x, a].update(n=n[a], pre=pre); pre += n[a] - 28
    T = max(r['n'] for r in roles.values()); T += T & 1
    return roles, T
base = dict(cH=2.0, cQ=3.6, cM=4.2, cB=3.6, cC=4.0, c3={E_H: 0.5, E_Q: 1.7, E_M: 1.5, E_B: 1.0}, T=34)
base2 = dict(cH=1.6, cQ=4.0, cM=4.5, cB=3.4, cC=5.3, c3={E_H: 0.7, E_Q: 2.3, E_M: 1.8, E_B: 2.4}, T=36)
PLANS = {
 'A': dict(base, H=[4]*8, M=[4]*8, C=[7]*8),
 'B': dict(base, H=[8,0,8,0,8,0,8,0], M=[8,0,8,0,8,0,8,0], C=[14,0,14,0,14,0,14,0]),
 'C': dict(base, H=[8,0,8,0,8,0,8,0], M=[8,0,8,0,8,0,8,0], C=[7]*8),
 'D': dict(base, H=[8,8,8,8,0,0,0,0], M=[8,0,8,0,8,0,8,0], C=[14,0,14,0,14,0,14,0]),
 'E': dict(base, H=[8,8,8,8,0,0,0,0], M=[8,0,8,0,8,0,8,0], C=[8,6,8,6,8,6,8,6]),
 'G': dict(base2, H=[8,0,8,0,8,0,8,0], M=[8,0,8,0,8,0,8,0], C=[7]*8),
 'H': dict(base2, H=[8,0,8,0,8,0,8,0], M=[8,0,8,0,8,0,8,0], C=[8,8,8,12,8,2,8,2]),
 'I': dict(base2, H=[8,0,8,8,4,0,4,0], M=[8,0,8,0,8,0,8,0], C=[8,8,8,8,8,4,8,4]),
 'J': dict(base2, H=[8,0,8,0,8,0,8,0], M=[8,0,8,0,8,0,8,0], C=[0,14,0,14,0,14,0,14]),
 'K': dict(base2, H=[8,0,8,0,8,0,8,0], M=[8,0,8,0,8,0,8,0], C=[4,10,4,10,4,10,4,10]),
 'L': dict(base2, H=[8,0,8,0,8,0,8,0], M=[8,0,8,0,8,0,8,0], C=[8,6,8,6,8,6,8,6]),
 'N': dict(base2, H=[8,0,8,0,8,0,8,0], M=[2,6,2,6,2,6,2,6], C=[14,0,14,0,14,0,14,0]),
 'O': dict(base2, H=[0,8,0,8,0,8,0,8], M=[2,6,2,6,2,6,2,6], C=[14,0,14,0,14,0,14,0]),
 'P': dict(base2, H=[4,4,4,4,4,4,4,4], M=[2,6,2,6,2,6,2,6], C=[14,0,14,0,14,0,14,0]),
 'S': dict(base2, H=[1,0,1,0,15,0,15,0], M=[15,0,15,0,1,0,1,0], C=[0,16,0,16,0,12,0,12]),
 'U': dict(base2, H=[4,0,4,0,12,0,12,0], M=[12,0,12,0,4,0,4,0], C=[0,16,0,16,0,12,0,12]),
 'F': dict(base, H=[8,4,8,4,4,0,4,0], M=[8,0,8,0,8,0,8,0], C=[10,4,10,4,10,4,10,4]),
}

def gen(win=5, win2=6, wpol="nt", stamps=0, spin=200000, hsleep=4, qsleep=8, tsleep=1, pace=4, cpre=1, kprio=0, skipw=0, vmid=4, nopoll='', qtrig=22, R=4, cdefer=1, csleep=2, nH=33, nX=31, nL=34, loc=1, lpol='sc1', w1pol='nt', nocomp=0, nosvc=0, sprio=3, nopre=0, nocw=0, lmul=1, xit='', qloc=1, strig=1, qtrig2=38, kpol='nt', vpol='nt', slowfb=0, fixend=0, plan='A', hfirst=1, cpad=1, w2late=1, fsleep=1, dry=0, yprio=0, burst=0, bwin=8, amp=0, dbgp=0, pi=None, pn=8, pclip=2000, xn=0, xmask=0x55, mim=1, mrg=1, fprio=0, rprio=3, rsl=0, b0at=0, mlate=0, xp=None, lin=1, atrig=0, pre=0, g4=0, alt1=0, alt2=0, tw=0, probe='', det=1, rx=0, fl=0, w1early=1, nohp=0, ws1=0, ws2=0, bp=0, calm=0, ltab=1, st0=0, bhold=0, xl=1, bearly=0, pd=1, fdelay=0, xsleep=4, bdefer=0, hwait=0, **pk):
    A = Asm()
    roles, T = make_plan(plan, **pk)
    hdr = open("cdna_kernels/" + NAME[:-7] + ".s.ref").read().split("; Override")[0]
    A(hdr.rstrip())
    A(f"; @launch grid=(256,1,1) block=(768,1,1) lds={LDS_SIZE}")
    A(DOC)
    A('.amdgcn_target "amdgcn-amd-amdhsa--gfx950"')
    A(f".text\n.globl {NAME}\n.p2align 8\n.type {NAME},@function\n{NAME}:")
    def stamp(k):
        if stamps:
            A("s_memrealtime s[62:63]\ns_waitcnt lgkmcnt(0)")
            A(f"v_writelane_b32 v3, s62, {k}")
    def prb(name):
        if probe == name: A("s_memrealtime s[94:95]\ns_waitcnt lgkmcnt(0)")
    def end_wave():
        if stamps:
            A("s_branch L_stampout")
        else:
            A("s_endpgm")
    def srd(d, p, size):
        A(f"s_mov_b32 s{d}, s{p}\ns_mov_b32 s{d+1}, s{p+1}\ns_mov_b32 s{d+2}, {size}\ns_mov_b32 s{d+3}, 0x20000")
    def poll(name, loads, check, sleep):
        if name in nopoll.split('+'): return
        top = A.label(name); done = A.label(name + "d")
        A(f"s_mov_b32 s7, {spin}")
        A(f"{top}:")
        loads()
        A("s_waitcnt vmcnt(0)")
        check()
        A(f"s_cbranch_vccz {done}")
        A("s_mov_b64 exec, vcc")
        if sleep: A(f"s_sleep {sleep}")
        A("s_sub_u32 s7, s7, 1")
        A(f"s_cbranch_scc0 {top}")
        A(f"{done}:")
        A("s_mov_b64 exec, -1")
    def lspin(name, off, n, vz, vt, sleep=1, extra=None):
        top = A.label(name); done = A.label(name + "d")
        A(f"s_mov_b32 s7, {spin*20}")
        A(f"{top}:")
        A(f"ds_read_b32 v{vt}, v{vz} offset:{off}")
        if extra: extra()
        A("s_waitcnt lgkmcnt(0)")
        A(f"v_cmp_gt_u32 vcc, {n}, v{vt}")
        A(f"s_cbranch_vccz {done}")
        if lmul > 1: sleep = min(127, max(sleep, 1) * lmul)
        if sleep: A(f"s_sleep {sleep}")
        A("s_sub_u32 s7, s7, 1")
        A(f"s_cbranch_scc0 {top}")
        A(f"{done}:")
    def chk_tags(regs, tmp):
        A(f"v_xor_b32 v{tmp}, s6, v{regs[0]}")
        for r in regs[1:]:
            A(f"v_xor_b32 v{tmp+1}, s6, v{r}")
            A(f"v_or_b32 v{tmp}, v{tmp}, v{tmp+1}")
        A(f"v_cmp_ne_u32 vcc, 0, v{tmp}")
    def chk_sent(regs, tmp):
        regs = list(regs)
        if len(regs) == 1:
            A(f"v_cmp_eq_u32 vcc, -1, v{regs[0]}"); return
        if len(regs) == 2:
            A(f"v_max_u32 v{tmp}, v{regs[0]}, v{regs[1]}"); rest = []
        else:
            A(f"v_max3_u32 v{tmp}, v{regs[0]}, v{regs[1]}, v{regs[2]}"); rest = regs[3:]
        while rest:
            if len(rest) == 1:
                A(f"v_max_u32 v{tmp}, v{tmp}, v{rest[0]}"); rest = []
            else:
                A(f"v_max3_u32 v{tmp}, v{tmp}, v{rest[0]}, v{rest[1]}"); rest = rest[2:]
        A(f"v_cmp_eq_u32 vcc, -1, v{tmp}")
    def xrow(op, v, tmp, which):
        A(f"v_mov_b32 v{tmp}, v{v}")
        A(f"v_permlane{which}_swap_b32 v{v}, v{tmp}")
        A(f"{op} v{v}, v{v}, v{tmp}")
    def inrow(op, v, steps):
        for s in steps:
            A(f"{op}_dpp v{v}, v{v}, v{v} {s} {DPPF}")
    def wave_reduce(op, v, tmp):
        inrow(op, v, ["row_ror:8", "row_ror:4", "row_ror:2", "row_ror:1"])
        xrow(op, v, tmp, 16); xrow(op, v, tmp, 32)
    def unpack(dst, src, n):
        for i in range(n):
            A(f"v_lshlrev_b32 v{dst+2*i}, 16, v{src[i]}")
            A(f"v_and_b32 v{dst+2*i+1}, 0xffff0000, v{src[i]}")
    def rnd(a, b=None):
        if b is None: A(f"v_cvt_pk_bf16_f32 v{a}, v{a}, v{a}\nv_lshlrev_b32 v{a}, 16, v{a}")
        else: A(f"v_cvt_pk_bf16_f32 v{b}, v{a}, v{b}\nv_lshlrev_b32 v{a}, 16, v{b}\nv_and_b32 v{b}, 0xffff0000, v{b}")
    def silu(x, t, n):
        A(f"s_mov_b32 s21, {f2x(-1.4426950408889634)}")
        for i in range(n): A(f"v_mul_f32 v{t+i}, s21, v{x+i}")
        for i in range(n): A(f"v_exp_f32 v{t+i}, v{t+i}")
        for i in range(n): A(f"v_add_f32 v{t+i}, 1.0, v{t+i}")
        for i in range(n): A(f"v_rcp_f32 v{t+i}, v{t+i}")
        for i in range(n): A(f"v_mul_f32 v{x+i}, v{x+i}, v{t+i}")
    def gemv_perm(W, T, npair):
        for u in range(npair):
            for w in range(4):
                a = W + 8 * u + w; b = W + 8 * u + 4 + w
                A(f"v_perm_b32 v{T+8*u+2*w}, v{b}, v{a}, s24")
                A(f"v_perm_b32 v{T+8*u+2*w+1}, v{b}, v{a}, s25")
    def gemv_dot(T, X, acc):
        for u in range(len(X)):
            for e in range(8):
                c = "0" if u == 0 else f"v{acc+e}"
                A(f"v_dot2_f32_bf16 v{acc+e}, v{T+8*u+e}, v{X[u]}, {c}")
    def mktag():
        A("s_waitcnt lgkmcnt(0)\ns_mul_i32 s6, s6, 0x9E3779B1\ns_add_u32 s6, s6, 0x7F4A7C15")
    def paced(loads, w):
        if skipw and (w or skipw > 1): return
        for i, l in enumerate(loads):
            if w and i >= w: A(f"s_waitcnt vmcnt({w-1})")
            A(l)

    if st0: A("s_memrealtime s[90:91]")
    A("s_cmp_ge_u32 s2, 256\ns_cbranch_scc1 L_exit")
    A("s_load_dwordx16 s[36:51], s[0:1], 0")
    rest_ld = "s_load_dwordx8 s[52:59], s[0:1], 64\ns_load_dwordx2 s[60:61], s[0:1], 96\ns_load_dword s68, s[32:33], s34"
    A("s_getpc_b64 s[30:31]\nL_pc:\ns_add_u32 s32, s30, L_tab-L_pc\ns_addc_u32 s33, s31, 0\ns_lshl_b32 s34, s2, 2")
    if not ltab: A(rest_ld)
    A("v_lshrrev_b32 v1, 6, v0\nv_and_b32 v0, 63, v0\nv_readfirstlane_b32 s3, v1")
    A("s_and_b32 s4, s2, 7\ns_lshr_b32 s5, s2, 3")
    if xp: A(f"s_lshl_b32 s4, s4, 2\ns_lshr_b32 s4, {sum(h << (4*i) for i, h in enumerate(xp)):#x}, s4\ns_and_b32 s4, s4, 7")
    if fixend: A("s_memrealtime s[96:97]")
    A("s_mov_b32 s24, 0x05040100\ns_mov_b32 s25, 0x07060302")
    A("v_lshlrev_b32 v2, 4, v0")
    if stamps:
        A("v_mov_b32 v3, 0")
        if not st0: stamp(0)
    A("s_cmp_lt_u32 s3, 4\ns_cbranch_scc1 L_service")
    STREAM_MARK = len(A.lines)
    A("L_service:")
    if ltab: A(rest_ld)
    A(f"s_setprio {sprio}")
    if cpre:
        A(f"s_lshl_b32 s20, s5, 2\ns_add_u32 s20, s20, s3\ns_sub_u32 s20, s20, 104\ns_cmp_ge_u32 s20, (L_endcode-{NAME})/1024\ns_cbranch_scc1 L_ncp")
        A(f"s_sub_u32 s30, s30, L_pc-{NAME}\ns_subb_u32 s31, s31, 0")
        A("s_lshl_b32 s20, s20, 10\nv_add_u32 v14, s20, v2")
        A("global_load_dwordx4 v[164:167], v14, s[30:31]")
        A("L_ncp:")
    A("v_lshrrev_b32 v12, 3, v0\nv_and_b32 v13, 7, v0\nv_mov_b32 v16, 0\nv_mov_b32 v17, 0\nv_mov_b32 v18, 0\nv_mov_b32 v19, 0")
    A("s_mov_b64 exec, 0x1f\nds_write_b128 v2, v[16:19]\ns_mov_b64 exec, -1")
    A("s_waitcnt lgkmcnt(0)")
    A("s_bfe_u32 s64, s68, 0x3000f\ns_bfe_u32 s65, s68, 0x50012\ns_bfe_u32 s66, s68, 0x20017\ns_bfe_u32 s67, s68, 0x60019")
    A("s_lshr_b32 s69, s65, 2\ns_and_b32 s70, s65, 3")
    A(f"s_cmp_lg_u32 s64, {E_H}\ns_cbranch_scc1 L_nh")
    A("s_lshr_b32 s20, s70, 1\ns_lshl_b32 s20, s20, 8\ns_lshl_b32 s21, s3, 6\ns_add_u32 s20, s20, s21")
    A("v_lshl_add_u32 v14, v12, 3, s20")
    A("s_mov_b32 s21, 6144\nv_mul_lo_u32 v1, v14, s21\nv_lshl_add_u32 v1, v13, 4, v1\nv_lshlrev_b32 v14, 1, v14")
    A("s_and_b32 s20, s70, 1\ns_lshl_b32 s20, s20, 10\ns_lshl_b32 s21, s69, 7\ns_add_u32 s20, s20, s21")
    A("s_waitcnt lgkmcnt(0)")
    srd(8, P_WM, 512 * 6144)
    A(f"global_load_dwordx4 v[4:7], v14, {sp(P_C)}")
    for i in range(8):
        A(f"buffer_load_dwordx4 {v4(40+4*i)}, v1, s[8:11], s20 offen {wpol}")
        if i < 7: A("s_add_u32 s20, s20, 6144")
    A(f"s_load_dword s6, {WS}, 0")
    A("s_barrier")
    A("s_lshl_b32 s20, s65, 2\ns_add_u32 s20, s20, s3")
    if cpad: A(f"s_lshl_b32 s21, s20, 11\ns_add_u32 s21, s21, {WS_C}\nv_lshrrev_b32 v14, 2, v0\nv_lshl_add_u32 v14, v14, 6, v2\nv_add_u32 v14, s21, v14")
    else: A(f"s_lshl_b32 s21, s20, 10\ns_add_u32 s21, s21, {WS_C}\nv_add_u32 v14, s21, v2")
    A(f"s_mul_i32 s21, s20, {128*R}\ns_add_u32 s21, s21, {WS_B}\nv_add_u32 v15, s21, v2")
    A("s_cmp_eq_u32 s3, 3\ns_cselect_b32 exec_hi, 0, -1")
    for i in range(4): A(f"v_mov_b32 v{16+i}, -1")
    A("s_mov_b64 exec, -1")
    if nohp: A("s_mov_b64 exec, 1")
    A(f"global_store_dwordx4 v14, v[16:19], {WS} sc1")
    for i in range(4): A(f"v_mov_b32 v{20+i}, -1")
    if R < 8: A(f"s_mov_b32 exec_hi, 0\ns_mov_b32 exec_lo, {(1<<(8*R))-1:#x}")
    A(f"global_store_dwordx4 v15, v[20:23], {WS} sc1")
    A("s_mov_b64 exec, -1")
    A("s_waitcnt vmcnt(10)")
    unpack(24, [4, 5, 6, 7], 4); silu(24, 32, 8)
    for i in range(4): A(f"v_cvt_pk_bf16_f32 v{24+i}, v{24+2*i}, v{25+2*i}")
    mktag()
    A(f"s_and_b32 s26, s70, 1\ns_lshl_b32 s26, s26, 13\ns_lshr_b32 s21, s70, 1\ns_lshl_b32 s21, s21, 12\ns_add_u32 s26, s26, s21\ns_lshl_b32 s21, s69, 9\ns_add_u32 s26, s26, s21\ns_add_u32 s26, s26, {WS_H}")
    A("s_waitcnt vmcnt(2)")
    stamp(1)
    gemv_perm(40, 104, 4)
    gemv_dot(104, [24, 25, 26, 27], 32)
    A("L_gfin:")
    acc = 32
    for e in range(4): A(f"v_permlane32_swap_b32 v{acc+e}, v{acc+e+4}")
    for e in range(4): A(f"v_add_f32 v{acc+e}, v{acc+e}, v{acc+e+4}")
    for e in range(2): A(f"v_permlane16_swap_b32 v{acc+e}, v{acc+e+2}")
    for e in range(2): A(f"v_add_f32 v{acc+e}, v{acc+e}, v{acc+e+2}")
    for e in range(2): A(f"v_add_f32_dpp v{acc+e}, v{acc+e}, v{acc+e} row_ror:8 {DPPF}")
    A("v_lshrrev_b32 v14, 4, v0\nv_lshlrev_b32 v14, 3, v14\nv_lshl_add_u32 v14, v13, 5, v14\ns_lshl_b32 s21, s3, 8\nv_add_u32 v14, s21, v14")
    A(f"ds_write_b64 v14, v[32:33] offset:{L_GP}")
    A("v_mov_b32 v14, 0\nv_mov_b32 v15, 1")
    A("s_waitcnt vmcnt(0)")
    A("s_mov_b64 exec, 1")
    A(f"ds_add_rtn_u32 v15, v14, v15 offset:{L_CG}")
    A("s_mov_b64 exec, -1")
    A("v_lshlrev_b32 v14, 3, v0")
    A("s_waitcnt lgkmcnt(0)")
    A("v_readfirstlane_b32 s21, v15")
    A("s_cmp_lg_u32 s21, 3\ns_cbranch_scc1 L_gdone")
    A("s_mov_b32 exec_hi, 0")
    for w in range(4): A(f"ds_read_b64 {v2(32+2*w)}, v14 offset:{L_GP+256*w}")
    A("v_add_u32 v14, s26, v14")
    A("s_waitcnt lgkmcnt(0)")
    A("v_pk_add_f32 v[32:33], v[32:33], v[34:35]\nv_pk_add_f32 v[36:37], v[36:37], v[38:39]\nv_pk_add_f32 v[32:33], v[32:33], v[36:37]")
    A(f"s_cmp_lg_u32 s64, {E_H}\ns_cbranch_scc1 L_gnh")
    A(f"v_mov_b32 v34, v33\nv_mov_b32 v33, s6\nv_mov_b32 v35, s6\nv_add_u32 v14, s26, v2\nglobal_store_dwordx4 v14, v[32:35], {WS} sc1\ns_mov_b64 exec, -1\ns_branch L_gdone\nL_gnh:")
    A("v_cvt_pk_bf16_f32 v32, v32, v33\nv_mov_b32 v33, s6")
    if qloc:
        A(f"s_cmp_lg_u32 s64, {E_Q}\ns_cbranch_scc1 L_gnl")
        A(f"v_add_u32 v15, {WS_QL-WS_Q}, v14\nglobal_store_dwordx2 v15, v[32:33], {WS}")
        A("L_gnl:")
    A(f"global_store_dwordx2 v14, v[32:33], {WS} sc1")
    A("s_mov_b64 exec, -1")
    A("L_gdone:")
    stamp(3)
    if mlate: A(f"s_cmp_eq_u32 s64, {E_M}\ns_cbranch_scc1 L_done")
    A("s_branch L_qpoll")

    NM = T - 28; nmask = T - min(r['n'] for r in roles.values())
    NW = 39 - T
    S0 = len(A.lines)
    A("L_stream:")
    if kprio: A(f"s_setprio {kprio}")
    A("s_sub_u32 s21, s3, 4")
    if yprio == 1: A("s_cmp_lt_u32 s21, 4\ns_cbranch_scc1 L_yp\ns_setprio 1\nL_yp:")
    A("v_bfe_u32 v1, v0, 2, 2\nv_lshlrev_b32 v1, 8, v1\nv_lshrrev_b32 v4, 4, v0\nv_lshl_add_u32 v1, v4, 6, v1\nv_and_b32 v4, 3, v0\nv_lshl_add_u32 v1, v4, 4, v1")
    A(f"s_lshl_b32 s19, s4, 23\ns_mul_i32 s16, s5, {28*8192}\ns_add_u32 s16, s16, s19\ns_lshl_b32 s17, s21, 12\ns_add_u32 s16, s16, s17")
    A("s_mov_b32 s10, 0x4000000\ns_mov_b32 s11, 0x20000")
    hcnt = sum(PLANS[plan]['H'][x] << (4 * x) for x in range(8))
    A(f"s_lshl_b32 s17, s4, 2\ns_lshr_b32 s35, {hcnt:#x}, s17\ns_and_b32 s35, s35, {15 if hfirst else 0}")
    A("s_waitcnt lgkmcnt(0)")
    A(f"s_mov_b32 s8, s{P_K}\ns_mov_b32 s9, s{P_K+1}")
    A("s_cmp_ge_u32 s5, s35\ns_cbranch_scc1 L_s1\ns_barrier\nL_s1:")
    KR = lambda t: 168 - 4 * T + 4 * t
    nS = (T + 3) // 4; nP = (T + 7) // 8
    assert T == 34
    first_v = 14
    vslots = [12 + 4 * i for i in range(NW)] + [KR(i) for i in range(first_v, T)]
    VR = lambda t: vslots[t % len(vslots)]
    st = {"cur": None}
    mpos = [6 + (j * (T - 12)) // max(nmask, 1) for j in range(nmask)]
    rest = list(range(NM, NM + 6)) + list(range(nmask, NM)) + list(range(NM + 6, T))
    perm = []
    for t in range(T):
        if t in mpos: perm.append(mpos.index(t))
        else: perm.append(rest.pop(0))
    first_nm = min(t for t in range(T) if perm[t] < NM)
    assert first_nm >= win
    hist = []
    def wcount(w):
        c = 0
        for n_, m_ in enumerate(reversed(hist)):
            if not m_:
                if c == w - 1: return n_
                c += 1
        return None
    def ld(which, t):
        o = perm[t]
        hist.append(o < nmask)
        if o < NM:
            A(f"s_add_u32 s20, s17, {o*8192}"); st["cur"] = None; imm = 0
            if o < nmask: A(f"s_cmp_gt_u32 s18, {o}\ns_cselect_b32 s20, 0x4000000, s20")
        else:
            key = (o - NM) >> 2; imm = ((o - NM) & 3) * 1024
            if st["cur"] != key:
                A(f"s_add_u32 s20, s16, {key*32768}"); st["cur"] = key
        if which == "K": A(f"buffer_load_dwordx4 {v4(KR(t))}, v1, s[8:11], s20 offen offset:{imm} {kpol}")
        else: A(f"buffer_load_dwordx4 {v4(VR(t))}, v2, s[12:15], s20 offen offset:{imm} {vpol}")
    korder = list(range(T))
    seq = [("K", t) for t in korder] + [("V", t) for t in range(NW)]
    for i, (wh, t) in enumerate(seq):
        if i == win:
            if st0: A("s_memrealtime s[92:93]")
            if ltab: A(rest_ld)
            A("s_branch L_body")
            S1 = len(A.lines)
            A("L_body:")
            srd(12, P_V, 0x4000000)
            if ws1: A(f"s_cmp_lt_u32 s21, {ws1}\ns_cselect_b64 vcc, -1, 0")
            if st0: A("s_waitcnt vmcnt(3)\ns_memrealtime s[94:95]")
            if not b0at: A("s_cmp_lt_u32 s5, s35\ns_cbranch_scc1 L_s2\ns_barrier\nL_s2:")
            A("s_waitcnt lgkmcnt(0)")
            A(f"s_and_b32 s17, s68, 0xfff\ns_bfe_u32 s18, s68, 0x3000c\ns_add_u32 s17, s17, {896-16}\ns_lshl_b32 s17, s17, 13\ns_add_u32 s17, s17, s19\ns_lshl_b32 s19, s21, 10\ns_add_u32 s17, s17, s19")
        if b0at and i == win + b0at: A("s_cmp_lt_u32 s5, s35\ns_cbranch_scc1 L_s2\ns_barrier\nL_s2:")
        if i == T and kprio: A("s_setprio 0")
        if wcount(win) is not None and perm[t] >= nmask:
            if xn and 8 <= i < 8 + xn:
                lb = A.label("w"); A(f"s_waitcnt vmcnt({wcount(win+1)})\ns_bitcmp0_b32 {xmask:#x}, s4\ns_cbranch_scc1 {lb}\ns_waitcnt vmcnt({wcount(win)})\n{lb}:")
            else: A(f"s_waitcnt vmcnt({wcount(win)})")
        ld(wh, t)
        if i == qtrig: A(f"v_mov_b32 v8, 0\nv_mov_b32 v9, 1\ns_mov_b64 exec, 1\nds_max_u32 v8, v9 offset:{L_FK}\ns_mov_b64 exec, -1")
        if hwait and i == hwait: A(f"v_mov_b32 v8, 0\nv_mov_b32 v9, 1\ns_mov_b64 exec, 1\nds_write_b32 v8, v9 offset:72\ns_mov_b64 exec, -1")
        if i == qtrig2 and qloc: A(f"v_mov_b32 v8, 0\nv_mov_b32 v9, 2\ns_mov_b64 exec, 1\nds_max_u32 v8, v9 offset:{L_FK}\ns_mov_b64 exec, -1")
    viss = NW
    A("v_and_b32 v8, 3, v0\nv_lshlrev_b32 v8, 8, v8\nv_lshrrev_b32 v9, 4, v0\nv_lshl_add_u32 v8, v9, 6, v8\nv_bfe_u32 v9, v0, 2, 2\nv_lshl_add_u32 v8, v9, 4, v8\nv_mov_b32 v9, 0")
    if mim: A(f"s_mov_b32 s22, {f2x(1.4426950408889634)}\ns_mov_b32 s26, {f2x(128**-0.5)}\ns_mov_b32 s27, s26")
    else: A(f"s_mov_b32 s22, {f2x(128**-0.5*1.4426950408889634)}")
    for t in range(nmask): A(f"s_cmp_gt_u32 s18, {t}\ns_cselect_b32 s{28+t}, 0xff800000, 0")
    stamp(1)
    lspin("sq", L_FQ, 1, 9, 10, 2, lambda: A(f"ds_read_b128 v[4:7], v8 offset:{L_Q}"))
    stamp(2)
    kl = {"landed": T + NW - win - 3}
    DR = lambda t: 8 if t == 0 else KR(t - 1)
    SR = lambda t: (8 + t) if t < 4 else KR((t >> 2) - 1) + (t & 3)
    def M(t):
        if t >= kl["landed"]:
            A(f"s_waitcnt vmcnt({len(hist)-1-t})"); kl["landed"] = t + 1
        A(f"v_mfma_f32_16x16x32_bf16 {v4(DR(t))}, {v4(KR(t))}, v[4:7], 0")
    def AB(t):
        d = DR(t)
        A(f"v_add_f32_dpp v{d}, v{d+1}, v{d} row_shl:4 {DPPF} bound_ctrl:0")
        A(f"v_add_f32_dpp v{d+2}, v{d+3}, v{d+2} row_shl:4 {DPPF} bound_ctrl:0")
    def S(t):
        d = DR(t)
        A(f"v_add_f32_dpp v{SR(t)}, v{d+2}, v{d} row_shl:8 {DPPF} bound_ctrl:0")
    mark0 = len(A.lines)
    if yprio == 2: A("s_cmp_lt_u32 s21, 4\ns_cbranch_scc1 L_yp\ns_setprio 1\nL_yp:")
    M(0); M(1); M(2)
    for t in range(T + 1):
        if t < T: AB(t)
        if t >= 1:
            S(t - 1)
            if vmid and t - 2 >= first_v and (t - 2 - first_v) % vmid == 0:
                ld("V", viss); viss += 1
        if t + 3 < T: M(t + 3)
    TM = KR(11)
    Sl = [SR(t) for t in range(T)]
    if mim:
        for t in range(0, T, 2): rnd(Sl[t], Sl[t + 1])
        for t in range(0, T, 2): A(f"v_pk_mul_f32 {v2(Sl[t])}, {v2(Sl[t])}, s[26:27]")
        if vmid: ld("V", viss); viss += 1
        for t in range(0, T, 2): rnd(Sl[t], Sl[t + 1])
    for t in range(nmask): A(f"v_add_f32 v{Sl[mpos[t]]}, s{28+t}, v{Sl[mpos[t]]}")
    A(f"v_max3_f32 v{TM}, v{Sl[0]}, v{Sl[1]}, v{Sl[2]}")
    A(f"v_max3_f32 v{TM+1}, v{Sl[3]}, v{Sl[4]}, v{Sl[5]}")
    i = 6; k = 0
    while i < T:
        A(f"v_max3_f32 v{TM+k}, v{TM+k}, v{Sl[i]}, v{Sl[i+1]}"); i += 2; k ^= 1
    A(f"v_max_f32 v{TM}, v{TM}, v{TM+1}")
    xrow("v_max_f32", TM, TM + 1, 16); xrow("v_max_f32", TM, TM + 1, 32)
    A(f"v_mul_f32 v{TM}, s22, v{TM}")
    for t in range(T): A(f"v_fma_f32 v{Sl[t]}, v{Sl[t]}, s22, -v{TM}")
    for t in range(T): A(f"v_exp_f32 v{Sl[t]}, v{Sl[t]}")
    if vmid: ld("V", viss); viss += 1
    A(f"v_add_f32 v{TM+1}, v{Sl[0]}, v{Sl[1]}\nv_add_f32 v{TM+2}, v{Sl[2]}, v{Sl[3]}")
    for t in range(4, T): A(f"v_add_f32 v{TM+1+(t&1)}, v{TM+1+(t&1)}, v{Sl[t]}")
    A(f"v_add_f32 v{TM+1}, v{TM+1}, v{TM+2}")
    xrow("v_add_f32", TM + 1, TM + 2, 16); xrow("v_add_f32", TM + 1, TM + 2, 32)
    A(f"s_lshl_b32 s19, s21, 5\nv_lshl_add_u32 v{TM+2}, v0, 3, s19\nv_mov_b32 v4, 0\nv_mov_b32 v5, 1")
    A("s_mov_b64 exec, 0xf")
    A(f"ds_write_b64 v{TM+2}, {v2(TM)} offset:{L_ST}")
    A("s_mov_b64 exec, 1")
    A(f"ds_add_u32 v4, v5 offset:{L_CS}")
    A("s_mov_b64 exec, -1")
    GR = [(0, 2), (2, 10), (10, 18), (18, 26), (26, 34)]
    def pack(u, d):
        for t in range(GR[u][0], GR[u][1], 2): A(f"v_cvt_pk_bf16_f32 v{d+(t-GR[u][0])//2}, v{Sl[t]}, v{Sl[t+1]}")
    for u in range(3): pack(u, KR(8 + u))
    A("s_waitcnt lgkmcnt(0)")
    AC = [8, KR(0)]
    PA = [KR(1), KR(2), KR(12), KR(13)]; PB = [KR(3), KR(4), KR(5), KR(6)]
    TT = [TM, 4]
    def zero(P):
        for j in range(4):
            for i in range(4): A(f"v_mov_b32 v{P[j]+i}, 0")
    def vers(P, src, n=4):
        for j in range(4):
            ctl = "quad_perm:[0,1,2,3]" if j == 0 else f"row_shr:{4*j}"
            for i in range(n): A(f"v_mov_b32_dpp v{P[j]+i}, v{src+i} {ctl} row_mask:0xf bank_mask:{1<<j:#x}")
    zero(PA)
    A(f"v_mov_b32 v{TM+1}, 0\nv_mov_b32 v5, 0")
    stamp(3)
    EO = (0, 4, 1, 5, 2, 6, 3, 7)
    def pv(u):
        t0, t1 = GR[u]; n = t1 - t0
        vers(PA, KR(8 + u), n // 2)
        for k, e in enumerate(EO):
            Tm = TT[k & 1]; ac = AC[e >> 2]
            for p in range(n // 2):
                a = VR(t0 + 2 * p) + (e >> 1); b = VR(t0 + 2 * p + 1) + (e >> 1)
                A(f"v_perm_b32 v{Tm+p}, v{b}, v{a}, s{24+(e&1)}")
            c = "0" if (u == 0 and k < 2) else v4(ac)
            if n == 8: A(f"v_mfma_f32_16x16x32_bf16 {v4(ac)}, {v4(Tm)}, {v4(PA[e&3])}, {c}")
            else: A(f"v_mfma_f32_16x16x16_bf16 {v4(ac)}, {v2(Tm)}, {v2(PA[e&3])}, {c}")
    ns = len(vslots)
    TA = [VR(t) for t in range(T - ns, 18)][:8]
    assert len(TA) == 8
    X = KR(8); ONE = KR(7) + 2; CNT = KR(7) + 3
    def rescale():
        A(f"v_and_b32 v1, 3, v0\nv_lshlrev_b32 v1, 3, v1\nv_mov_b32 v{X+10}, 0\nv_mov_b32 v{ONE}, 1\ns_lshl_b32 s19, s21, 5\nv_add_u32 v{X+9}, s19, v1")
        def rd():
            for w in range(8): A(f"ds_read_b32 v{X+w}, v1 offset:{L_ST+32*w}")
            A(f"ds_read_b32 v{X+8}, v{X+9} offset:{L_ST}")
        lspin("sm", L_CS, 9, X + 10, X + 11, 1, rd)
        A(f"s_mov_b64 exec, 1\nds_add_rtn_u32 v{X+11}, v{X+10}, v{ONE} offset:{L_CT}\ns_mov_b64 exec, -1")
        A(f"v_max3_f32 v{X}, v{X}, v{X+1}, v{X+2}\nv_max3_f32 v{X+3}, v{X+3}, v{X+4}, v{X+5}\nv_max3_f32 v{X}, v{X}, v{X+6}, v{X+7}\nv_max_f32 v{X}, v{X}, v{X+3}")
        A(f"v_sub_f32 v{X}, v{X+8}, v{X}\nv_exp_f32 v{X}, v{X}")
        A(f"s_lshl_b32 s19, s21, 11\nv_add_u32 v1, s19, v2\ns_and_b32 s19, s21, 4\nv_mov_b32 v{CNT}, s19")
        for ac in AC:
            for q in range(2): A(f"v_pk_mul_f32 {v2(ac+2*q)}, {v2(ac+2*q)}, {v2(X)} op_sel_hi:[1,0]")
        for t in range(18, T, 2): A(f"v_pk_mul_f32 {v2(Sl[t])}, {v2(Sl[t])}, {v2(X)} op_sel_hi:[1,0]")
        pack(3, TT[0]); pack(4, TT[1])
        zero(PB); vers(PA, TT[0]); vers(PB, TT[1])
        A(f"s_waitcnt lgkmcnt(0)\nv_readfirstlane_b32 s23, v{X+11}")
    while viss < min(win2, ns):
        ld("V", viss); viss += 1
    done_t = 0
    ends = {g[1] - 1: u for u, g in enumerate(GR[:3])}
    for L in range(T):
        inc = L >= 18 and L % 2 == 1
        can = lambda: viss < T and sum(1 for j in range(L + 1, viss) if perm[j] >= nmask) < (bwin if L >= T - burst else win2 + (pre if L in ends else 0)) + (perm[viss] < nmask) and (viss < ns or done_t > viss - ns)
        if can() or L in ends or inc:
            A(f"s_waitcnt vmcnt({viss-1-L})")
        while can():
            ld("V", viss); viss += 1
            if viss == T:
                assert L > 17
                A(f"s_mov_b64 exec, 1\nds_add_u32 v2, v{ONE} offset:{L_CV}\ns_mov_b64 exec, -1")
        if L in ends:
            pv(ends[L]); done_t = L + 1
            if L == 17: rescale()
        if inc:
            if L == T - 1: stamp(4)
            p = ((L - 18) % 8) // 2
            for e in EO: A(f"v_perm_b32 v{TA[e]+p}, v{VR(L)+(e>>1)}, v{VR(L-1)+(e>>1)}, s{24+(e&1)}")
            if p == 3:
                for e in EO: A(f"v_mfma_f32_16x16x32_bf16 {v4(AC[e>>2])}, {v4(TA[e])}, {v4((PA if L < 26 else PB)[e&3])}, {v4(AC[e>>2])}")
    assert viss == T
    if nocomp:
        keep = [l for l in A.lines[mark0:] if not l.startswith(("v_mfma", "v_perm_b32", "v_add_f32", "v_exp", "v_fma", "v_max", "v_cvt", "v_permlane"))]
        A.lines[mark0:] = keep
    for hf in range(2): A(f"ds_write_b128 v1, {v4(AC[hf])} offset:{L_OP+hf*1024}")
    A(f"s_mov_b64 exec, 1\nds_add_u32 v{CNT}, v{ONE} offset:{L_FO}")
    A("s_mov_b64 exec, -1")
    if stamps: A("s_waitcnt lgkmcnt(0)")
    stamp(5)
    A("s_cmp_lg_u32 s23, 0\ns_cbranch_scc1 L_done")
    A(f"s_setprio {rprio}")
    def a_addr(d, t):
        if lin: A(f"s_lshl_b32 s20, s4, 15\ns_lshr_b32 s19, s5, 4\ns_lshl_b32 s19, s19, 10\ns_add_u32 s20, s20, s19\ns_and_b32 s19, s5, 15\ns_lshl_b32 s19, s19, 4\ns_add_u32 s20, s20, s19\ns_add_u32 s20, s20, {WS_A}")
        else: A(f"s_lshl_b32 s20, s4, 15\ns_lshl_b32 s19, s5, {7 if fl else 6}\ns_add_u32 s20, s20, s19\ns_add_u32 s20, s20, {WS_A}")
        if mrg:
            assert lin
            A(f"v_and_b32 v{d}, 3, v0\nv_lshlrev_b32 v{d}, 13, v{d}\nv_bfe_u32 v{t}, v0, 2, 2\nv_lshl_add_u32 v{d}, v{t}, 11, v{d}\nv_lshrrev_b32 v{t}, 4, v0\nv_lshl_add_u32 v{d}, v{t}, 8, v{d}\nv_add_u32 v{d}, s20, v{d}")
            return
        A(f"v_bfe_u32 v{d}, v0, 2, 2\nv_lshlrev_b32 v{d}, 13, v{d}")
        if fl: A(f"v_lshrrev_b32 v{t}, 5, v0\nv_lshl_add_u32 v{d}, v{t}, 12, v{d}\nv_bfe_u32 v{t}, v0, 4, 1\nv_lshl_add_u32 v{d}, v{t}, 6, v{d}")
        else: A(f"v_lshrrev_b32 v{t}, 4, v0\nv_lshl_add_u32 v{d}, v{t}, 11, v{d}")
        A(f"v_and_b32 v{t}, 3, v0\nv_lshl_add_u32 v{d}, v{t}, {8 if lin else 4}, v{d}\nv_add_u32 v{d}, s20, v{d}")
    a_addr(36, 37)
    A(f"v_add_u32 v37, {WS_AL-WS_A}, v36\nv_mov_b32 v38, 0\nv_mov_b32 v39, 1")
    if xl: A(f"ds_read_b32 v29, v38 offset:{L_MK}\ns_waitcnt lgkmcnt(0)\nv_readfirstlane_b32 s26, v29")
    for hf in range(2 if det else 0):
        def rd8():
            for j in range(4): A(f"ds_read_b128 {v4(40+8*j)}, v2 offset:{L_OP+(4*hf+j)*2048}\nds_read_b128 {v4(44+8*j)}, v2 offset:{L_OP+(4*hf+j)*2048+1024}")
        if rsl and hf: lspin("so3", L_FO + 4, 3, 38, 28, 1)
        lspin("so", L_FO + 4 * hf, 4, 38, 28, 1 - hf, rd8)
        for q in range(4): A(f"v_pk_add_f32 {v2(40+2*q)}, {v2(40+2*q)}, {v2(48+2*q)}")
        for q in range(4): A(f"v_pk_add_f32 {v2(56+2*q)}, {v2(56+2*q)}, {v2(64+2*q)}")
        for q in range(4): A(f"v_pk_add_f32 {v2((12 if hf == 0 else 40)+2*q)}, {v2(40+2*q)}, {v2(56+2*q)}")
        if hf:
            for q in range(4): A(f"v_pk_add_f32 {v2(12+2*q)}, {v2(12+2*q)}, {v2(40+2*q)}")
    for i in range(0 if det else 8):
        d = 12 if i == 0 else 20
        lspin("so", L_FO + 4 * i, 1, 38, 28, 1 if (calm and i < 6) else 0, lambda: A(f"ds_read_b128 {v4(d)}, v2 offset:{L_OP+i*2048}\nds_read_b128 {v4(d+4)}, v2 offset:{L_OP+i*2048+1024}"))
        if i:
            for q in range(4): A(f"v_pk_add_f32 {v2(12+2*q)}, {v2(12+2*q)}, {v2(20+2*q)}")
    for q in range(4): A(f"v_cvt_pk_bf16_f32 v{12+q}, v{12+2*q}, v{13+2*q}")
    if loc: A(f"global_store_dwordx4 v37, v[12:15], {WS}")
    if xl: A("s_cmp_eq_u32 s26, 0\ns_cbranch_scc1 L_ng2")
    A(f"global_store_dwordx4 v36, v[12:15], {WS} sc1")
    A("L_ng2:")
    A(f"ds_write_b32 v38, v39 offset:{L_FP}")
    stamp(6)
    end_wave()
    blk = A.lines[S0:S1]; del A.lines[S0:S1]; A.lines[STREAM_MARK:STREAM_MARK] = blk

    A("L_nh:")
    A(f"s_cmp_lg_u32 s64, {E_Q}\ns_cbranch_scc1 L_nq")
    A("v_lshlrev_b32 v1, 17, v12\nv_lshl_add_u32 v1, v13, 4, v1")
    A("s_lshl_b32 s20, s3, 20\ns_lshl_b32 s21, s4, 10\ns_add_u32 s20, s20, s21\ns_mov_b32 s26, s65\ns_lshl_b32 s21, s26, 7\ns_add_u32 s20, s20, s21")
    A("s_lshl_b32 s21, s3, 8\nv_lshl_add_u32 v14, v0, 2, s21")
    A("s_waitcnt lgkmcnt(0)")
    srd(8, P_WQ, 512 * 8192)
    A(f"global_load_dwordx4 v[8:11], v2, {sp(P_X)}\nglobal_load_dword v15, v14, {sp(P_X)}")
    for i in range(16):
        A(f"buffer_load_dwordx4 {v4(40+4*i)}, v1, s[8:11], s20 offen {wpol}")
        if i < 15: A("s_add_u32 s20, s20, 8192")
    A(f"s_load_dword s6, {WS}, 0")
    A("s_barrier")
    A(f"s_lshl_b32 s26, s26, 8\ns_lshl_b32 s21, s4, 11\ns_add_u32 s26, s26, s21\ns_add_u32 s26, s26, {WS_Q}")
    A("s_waitcnt vmcnt(16)")
    unpack(32, [8, 9, 10, 11], 4)
    A("v_add_f32 v4, v32, v33")
    for i in range(2, 8): A(f"v_add_f32 v4, v4, v{32+i}")
    wave_reduce("v_add_f32", 4, 5)
    A(f"v_mul_f32 v4, {f2x(1/512)}, v4")
    for i in range(8): A(f"v_sub_f32 v{32+i}, v{32+i}, v4")
    A("v_mul_f32 v6, v32, v32")
    for i in range(1, 8): A(f"v_fmac_f32 v6, v{32+i}, v{32+i}")
    wave_reduce("v_add_f32", 6, 5)
    A(f"v_mul_f32 v5, {f2x(1/512)}, v6"); rnd(4, 5)
    A(f"v_add_f32 v5, {f2x(1e-5)}, v5"); rnd(5)
    A("v_sqrt_f32 v5, v5"); rnd(5)
    A("v_rcp_f32 v5, v5")
    unpack(8, [15], 1)
    A("v_sub_f32 v8, v8, v4\nv_sub_f32 v9, v9, v4"); rnd(8, 9)
    A("v_mul_f32 v8, v8, v5\nv_mul_f32 v9, v9, v5"); rnd(8, 9)
    A(f"v_lshlrev_b32 v15, 2, v14\nv_add_u32 v15, {WS_H}, v15\nv_add_u32 v10, 4096, v15\nv_add_u32 v11, 8192, v15\nv_add_u32 v7, 12288, v15")
    mktag()
    A("s_waitcnt vmcnt(0)")
    stamp(1)
    prb("wq")
    gemv_perm(40, 104, 8)
    if hwait: A("v_mov_b32 v4, 0"); lspin("sh", 72, 1, 4, 5, 2)
    poll("ph", lambda: [A(f"global_load_dwordx4 {v4(16+4*k)}, v{(15,10,11,7)[k]}, {WS} sc1") for k in range(4)],
         lambda: chk_tags([17 + 2 * k for k in range(8)], 4), hsleep)
    stamp(2)
    prb("h")
    A("v_add_f32 v16, v16, v20\nv_add_f32 v17, v18, v22\nv_add_f32 v18, v24, v28\nv_add_f32 v19, v26, v30")
    rnd(16, 17); rnd(18, 19)
    A("v_add_f32 v18, 1.0, v18\nv_add_f32 v19, 1.0, v19"); rnd(18, 19)
    A("v_pk_mul_f32 v[24:25], v[8:9], v[18:19]"); rnd(24, 25)
    A("v_pk_add_f32 v[24:25], v[24:25], v[16:17]")
    A("L_gx:")
    A("v_cvt_pk_bf16_f32 v24, v24, v25")
    A(f"ds_write_b32 v14, v24 offset:{L_X}")
    A("s_lshl_b32 s21, s3, 8\nv_lshl_add_u32 v15, v12, 5, s21")
    A(f"ds_read_b128 v[24:27], v15 offset:{L_X}\nds_read_b128 v[28:31], v15 offset:{L_X+16}")
    A("s_waitcnt lgkmcnt(0)")
    gemv_dot(104, list(range(24, 32)), 32)
    A("s_branch L_gfin")

    A("L_nq:")
    A("s_waitcnt lgkmcnt(0)")
    A(f"s_load_dword s6, {WS}, 0")
    mktag()
    A("s_barrier")
    A("L_role:")
    A("s_cmp_eq_u32 s64, 0\ns_cbranch_scc1 L_qpoll")
    A(f"s_cmp_eq_u32 s64, {E_B}\ns_cbranch_scc1 L_wb")
    A(f"s_cmp_lg_u32 s64, {E_P}\ns_cbranch_scc1 L_m")
    if pi == 2:
        A("s_cmp_lg_u32 s3, 0\ns_cbranch_scc1 L_qpoll")
        A(f"s_lshl_b32 s20, s65, 14\ns_add_u32 s20, s20, {WS_P}\ns_add_u32 s72, s{P_WS}, s20\ns_addc_u32 s73, s{P_WS+1}, 0")
        A("v_lshlrev_b32 v4, 10, v12\nv_lshl_add_u32 v4, v13, 4, v4\nv_add_u32 v6, 8192, v4")
        A("global_store_dwordx4 v4, v[16:19], s[72:73] sc1\nglobal_store_dwordx4 v6, v[16:19], s[72:73] sc1\ns_waitcnt vmcnt(0)")
        stamp(1)
        A("s_mov_b32 s22, 0\ns_memtime s[76:77]\ns_waitcnt lgkmcnt(0)")
        cur = 76
        for i in range(2 * pn):
            p = (i ^ (i >> 1)) & 1; nx = 154 - cur
            A(f"s_load_dword s74, s[72:73], {8192*p + 1024*(i>>1)}\ns_waitcnt lgkmcnt(0)\ns_memtime s[{nx}:{nx+1}]\ns_waitcnt lgkmcnt(0)\ns_sub_u32 s21, s{nx}, s{cur}")
            A(f"s_min_u32 s21, s21, {pclip}\ns_{'sub' if p else 'add'}_u32 s22, s22, s21")
            cur = nx
        stamp(2)
        A("s_lshr_b32 s21, s22, 31\ns_xor_b32 s21, s21, 1")
        A(f"s_getreg_b32 s20, hwreg(HW_REG_XCC_ID, 2, 1)\ns_xor_b32 s20, s20, s21\nv_mov_b32 v4, s20\nv_mov_b32 v5, s6\ns_lshl_b32 s20, s65, 3\ns_add_u32 s20, s20, {WS_PV}\nv_mov_b32 v6, s20")
        A(f"s_mov_b64 exec, 1\nglobal_store_dwordx2 v6, v[4:5], {WS} sc1\ns_mov_b64 exec, -1")
    A("s_branch L_qpoll\nL_m:")
    if mlate:
        A("s_branch L_qpoll\nL_ml:")
        if mlate <= 8: lspin("sl", L_CV, mlate, 10, 11, 4)
        else: lspin("sl", L_FP, 1, 10, 11, 4)
        A("s_setprio 0\nv_lshrrev_b32 v12, 3, v0\nv_and_b32 v13, 7, v0")
    A("s_mov_b32 s21, 98304\nv_mul_lo_u32 v1, v12, s21\nv_lshl_add_u32 v1, v13, 4, v1")
    A(f"s_mul_i32 s20, s3, {128*6144}\ns_add_u32 s26, s70, 2\ns_lshl_b32 s26, s26, 10\ns_lshl_b32 s21, s69, 7\ns_add_u32 s26, s26, s21\ns_add_u32 s20, s20, s26")
    A("s_lshl_b32 s21, s3, 8\nv_lshl_add_u32 v14, v0, 2, s21")
    srd(8, P_WM, 512 * 6144)
    A(f"global_load_dword v15, v14, {sp(P_C)}")
    paced([f"buffer_load_dwordx4 {v4(40+4*i)}, v1, s[8:11], s20 offen {wpol}\ns_add_u32 s20, s20, 6144" for i in range(16)], 0)
    A(f"s_lshl_b32 s26, s26, 1\ns_add_u32 s26, s26, {WS_MOD-4096}")
    A("s_waitcnt vmcnt(0)")
    unpack(24, [15], 1); silu(24, 32, 2)
    gemv_perm(40, 104, 8)
    A("s_branch L_gx")
    def dma(loads, w):
        if skipw: return
        for i, l in enumerate(loads):
            if w and i >= w: A(f"s_waitcnt vmcnt({w-1})")
            A(f"s_add_u32 m0, s23, {1024*i}")
            A(l)
    def wo_issue(lo, hi):
        srd(8, P_WO, 4096 * 1024)
        A("v_lshrrev_b32 v1, 3, v0\nv_lshlrev_b32 v1, 10, v1\nv_and_b32 v4, 7, v0\nv_lshl_add_u32 v1, v4, 4, v1")
        A(f"s_lshl_b32 s20, s4, 19\ns_lshl_b32 s21, s3, 17\ns_add_u32 s20, s20, s21\ns_lshl_b32 s21, s65, 7\ns_add_u32 s20, s20, s21\ns_add_u32 s20, s20, {8192*lo}")
        A(f"s_lshl_b32 s23, s3, 14\ns_add_u32 s23, s23, {L_WT+1024*lo}")
        dma([f"buffer_load_dwordx4 v1, s[8:11], s20 offen {wpol} lds\ns_add_u32 s20, s20, 8192" for i in range(lo, hi)], pace)
    def wo_finish(w):
        A(f"s_lshl_b32 s23, s3, 14\ns_add_u32 s23, s23, {L_WT}")
        A("v_bfe_u32 v1, v0, 2, 2\nv_lshlrev_b32 v1, 10, v1\nv_lshrrev_b32 v4, 4, v0\nv_lshl_add_u32 v1, v4, 12, v1\nv_and_b32 v4, 3, v0\nv_lshl_add_u32 v1, v4, 3, v1\nv_add_u32 v1, s23, v1")
        A(f"s_waitcnt vmcnt({w})")
        k = 0
        for c in range(4):
            for nt in range(4):
                for hi in range(2):
                    A(f"ds_read_b64_tr_b16 {v2(104+16*c+4*nt+2*hi)}, v1 offset:{(c+4*hi)*128+nt*32}")
                    k += 1
                    if k >= 12 and k % 4 == 0: A("s_waitcnt lgkmcnt(8)")
        A("s_waitcnt lgkmcnt(0)")
    A("L_wb:")
    if xl:
        A("s_cmp_lg_u32 s3, 0\ns_cbranch_scc1 L_wb1")
        A(f"s_getreg_b32 s20, hwreg(HW_REG_XCC_ID, 0, 4)\nv_mov_b32 v4, s20\nv_mov_b32 v5, s6\ns_lshl_b32 s20, s4, 7\ns_lshl_b32 s21, s65, 3\ns_add_u32 s20, s20, s21\ns_add_u32 s20, s20, {WS_XB}\nv_mov_b32 v6, s20")
        A(f"s_mov_b64 exec, 1\nglobal_store_dwordx2 v6, v[4:5], {WS} sc1\ns_mov_b64 exec, -1\ns_nop 0")
        A("L_wb1:")
    if bp:
        A("s_cmp_eq_u32 s3, 1\ns_cbranch_scc1 L_qpoll\ns_cmp_eq_u32 s3, 2\ns_cbranch_scc1 L_qpoll")
        srd(8, P_WO, 4096 * 1024)
        A("v_lshrrev_b32 v1, 3, v0\nv_lshlrev_b32 v1, 10, v1\nv_and_b32 v4, 7, v0\nv_lshl_add_u32 v1, v4, 4, v1\ns_lshr_b32 s22, s3, 1")
        A(f"s_lshl_b32 s20, s4, 19\ns_lshl_b32 s21, s22, 18\ns_add_u32 s20, s20, s21\ns_lshl_b32 s21, s65, 7\ns_add_u32 s20, s20, s21")
        A(f"s_lshl_b32 s23, s22, 15\ns_add_u32 s23, s23, {L_WT}\ns_mov_b32 s22, 31")
        A(f"L_wbl:\ns_mov_b32 m0, s23\ns_waitcnt vmcnt({bp-1})\nbuffer_load_dwordx4 v1, s[8:11], s20 offen {wpol} lds\ns_add_u32 s20, s20, 8192\ns_add_u32 s23, s23, 1024\ns_sub_u32 s22, s22, 1\ns_cbranch_scc0 L_wbl")
        A(f"v_mov_b32 v4, 0\nv_mov_b32 v5, 1\ns_waitcnt vmcnt(0)\ns_mov_b64 exec, 1\nds_add_u32 v4, v5 offset:{L_CW}\ns_mov_b64 exec, -1")
    elif not bdefer: wo_issue(0, 16); wo_finish(0)
    elif bearly: wo_issue(0, bearly)
    A("L_qpoll:")
    if w1early:
        A(f"s_cmp_lg_u32 s66, {R_C}\ns_cbranch_scc1 L_qp1\ns_mov_b32 s26, s67")
        srd(8, P_W1, 512 * 3584)
        A("v_lshrrev_b32 v1, 2, v0\ns_mov_b32 s20, 3584\nv_mul_lo_u32 v1, v1, s20\nv_and_b32 v12, 3, v0\nv_lshl_add_u32 v1, v12, 4, v1")
        A(f"s_mul_i32 s20, s3, {128*3584}\ns_lshl_b32 s21, s26, 6\ns_add_u32 s20, s20, s21")
        A(f"s_lshl_b32 s23, s3, 14\ns_add_u32 s23, s23, {L_WT}")
        dma([f"buffer_load_dwordx4 v1, s[8:11], s20 offen {w1pol} lds\ns_add_u32 s20, s20, {16*3584}" for i in range(8)], 0)
        A("L_qp1:")
    if nosvc:
        A(f"v_mov_b32 v10, 0\nv_mov_b32 v5, 1\nds_write_b32 v10, v5 offset:{L_FQ}\ns_mov_b64 exec, 1\nds_add_u32 v10, v5 offset:{L_CS}")
        end_wave()
    if tw:
        A("s_cmp_lg_u32 s3, 3\ns_cbranch_scc1 L_tw")
        A(f"s_lshl_b32 s20, s4, 23\ns_mul_i32 s21, s5, {28*8192}\ns_add_u32 s21, s21, s20\ns_add_u32 s20, s20, {896*8192}")
        A(f"v_mov_b32 v4, s21\nv_add_u32 v5, {28*8192-128}, v4\nv_mov_b32 v6, s20\nv_mov_b32 v7, 0\ns_mov_b64 exec, 1")
        A(f"global_load_dword v24, v4, {sp(P_V)} nt\nglobal_load_dword v25, v5, {sp(P_V)} nt\nglobal_load_dword v26, v6, {sp(P_V)} nt\nglobal_load_dword v27, v7, {sp(P_W2)} nt")
        A("s_waitcnt vmcnt(0)\ns_mov_b64 exec, -1\nL_tw:")
    A("v_mov_b32 v10, 0\nv_mov_b32 v23, 0\nv_mov_b32 v35, 64")
    A("s_cmp_lg_u32 s3, 1\ns_cbranch_scc1 L_np")
    A(f"s_lshl_b32 s21, s4, 11\ns_add_u32 s21, s21, {WS_Q}\nv_add_u32 v14, s21, v2")
    lspin("sk", L_FK, 1, 10, 11, 16 if calm else 4)
    def ldq():
        if qloc:
            A(f"ds_read_b32 v11, v10 offset:{L_FK}\ns_waitcnt lgkmcnt(0)\nv_readfirstlane_b32 s21, v11\ns_lshr_b32 s21, s21, 1\ns_and_b32 s21, s21, s7")
            if slowfb: A(f"s_cmp_lt_u32 s7, {spin-slowfb}")
            A(f"s_cselect_b32 s21, 0, {WS_QL-WS_Q}\nv_add_u32 v15, s21, v14")
        for i in range(2): A(f"global_load_dwordx4 {v4(16+4*i)}, v{15 if qloc else 14}, {WS} offset:{1024*i} sc1")
    poll("pq", ldq, lambda: chk_tags([17, 19, 21, 23], 4), qsleep)
    A("v_mov_b32 v17, v18\nv_mov_b32 v21, v22\nv_lshlrev_b32 v14, 3, v0\nv_mov_b32 v5, 1")
    A(f"ds_write_b64 v14, v[16:17] offset:{L_Q}\nds_write_b64 v14, v[20:21] offset:{L_Q+512}")
    A(f"ds_write_b32 v10, v5 offset:{L_FQ}")
    stamp(4)
    A("L_np:")
    if xit == 'np': end_wave()
    A("s_cmp_eq_u32 s3, 2\ns_cbranch_scc1 L_post")
    if mlate: A(f"s_cmp_eq_u32 s64, {E_M}\ns_cbranch_scc1 L_ml")
    A("s_cmp_eq_u32 s66, 0\ns_cbranch_scc1 L_done")
    A(f"s_cmp_lg_u32 s66, {R_F}\ns_cbranch_scc1 L_ws")
    A("s_cmp_lg_u32 s3, 0\ns_cbranch_scc1 L_done")
    A("L_ws:")
    lspin("ss0", L_CS, 9, 10, 11, 32 if calm else 16)
    A("s_branch L_pre")
    A("L_done:")
    end_wave()
    A("L_post:")
    a_addr(37, 15)
    A("v_bfe_u32 v36, v0, 2, 2")
    for i in range(4): A(f"v_mov_b32 v{16+i}, -1")
    if xl:
        A(f"v_and_b32 v20, 7, v0\ns_lshl_b32 s20, s4, 7\ns_add_u32 s20, s20, {WS_XB}\nv_lshl_add_u32 v20, v20, 3, s20")
        lspin("sg", L_FK, 1, 10, 11, 32 if calm else 8)
        poll("px", lambda: A(f"global_load_dwordx2 v[22:23], v20, {WS} sc1"), lambda: chk_tags([23], 21), 8)
        A("s_getreg_b32 s20, hwreg(HW_REG_XCC_ID, 0, 4)\nv_cmp_ne_u32 vcc, s20, v22\ns_cbranch_vccz L_ng")
        A(f"v_mov_b32 v5, 1\nds_write_b32 v10, v5 offset:{L_MK}")
    A(f"global_store_dwordx4 v37, v[16:19], {WS} sc1")
    A("L_ng:")
    if loc: A(f"v_add_u32 v39, {WS_AL-WS_A}, v37\nglobal_store_dwordx4 v39, v[16:19], {WS}")
    A("v_lshlrev_b32 v38, 3, v36\nv_mov_b32 v5, 1")
    A(f"s_lshl_b32 s20, s4, 11\ns_lshl_b32 s21, s5, {6 if fl else 4}\ns_add_u32 s20, s20, s21\ns_add_u32 s20, s20, {WS_ST}\nv_lshl_add_u32 v36, v36, {4 if fl else 9}, s20")
    A(f"s_waitcnt vmcnt(0)\ns_mov_b64 exec, 1\nds_add_u32 v10, v5 offset:{L_CS}\ns_mov_b64 exec, -1")
    lspin("ss", L_CS, 9, 10, 11, 16 if calm else 8)
    stamp(1)
    for w in range(8): A(f"ds_read_b64 {v2(40+2*w)}, v38 offset:{L_ST+32*w}")
    A("s_waitcnt lgkmcnt(0)")
    A("v_max3_f32 v56, v40, v42, v44\nv_max3_f32 v56, v56, v46, v48\nv_max3_f32 v56, v56, v50, v52\nv_max_f32 v56, v56, v54")
    for w in range(8): A(f"v_sub_f32 v{28+w}, v{40+2*w}, v56")
    for w in range(8): A(f"v_exp_f32 v{28+w}, v{28+w}")
    A("v_mul_f32 v58, v28, v41")
    for w in range(1, 8): A(f"v_fmac_f32 v58, v{28+w}, v{41+2*w}")
    A("s_getreg_b32 s20, hwreg(HW_REG_XCC_ID, 0, 4)\ns_add_u32 s20, s20, s6\nv_mov_b32 v57, s6\nv_mov_b32 v59, s20")
    A("s_mov_b64 exec, 0x1111")
    A(f"global_store_dwordx4 v36, v[56:59], {WS} sc1")
    A("s_mov_b64 exec, -1")
    stamp(2)
    if mlate: A(f"s_cmp_eq_u32 s64, {E_M}\ns_cbranch_scc1 L_ml")
    A(f"s_cmp_eq_u32 s66, 0\ns_cbranch_scc1 L_done\ns_cmp_eq_u32 s66, {R_F}\ns_cbranch_scc1 L_done")
    A("L_pre:")
    if pi in (0, 1): A(f"s_mov_b32 s71, {pi << 13}")
    if pi == 2:
        A(f"v_and_b32 v4, 7, v0\nv_lshlrev_b32 v4, 3, v4\nv_add_u32 v4, {WS_PV}, v4")
        poll("pv", lambda: A(f"global_load_dwordx2 v[6:7], v4, {WS} sc1"), lambda: chk_tags([7], 5), 16)
        A("v_cmp_ne_u32 vcc, 0, v6\ns_and_b32 s20, vcc_lo, 0xff\ns_bcnt1_i32_b32 s20, s20\ns_cmp_gt_u32 s20, 4\ns_cselect_b32 s71, 0x2000, 0")
    if xit == 'pre': end_wave()
    A(f"s_cmp_eq_u32 s66, {R_F}\ns_cbranch_scc1 L_tf")
    A(f"s_cmp_eq_u32 s66, {R_C}\ns_cbranch_scc1 L_tc")
    if bp: lspin("sz", L_CW, 2, 10, 11, 16); wo_finish(0)
    A(f"s_lshl_b32 s20, s4, 11\ns_lshl_b32 s21, s3, {4 if fl else 9}\ns_add_u32 s20, s20, s21\ns_add_u32 s20, s20, {WS_ST}")
    A(f"v_and_b32 v4, 31, v0\nv_lshl_add_u32 v5, v4, {6 if fl else 4}, s20")
    lspin("sb", L_CV, strig, 10, 11, 12 if calm else 4)
    poll("ps", lambda: A(f"global_load_dwordx4 v[40:43], v5, {WS} sc1"), lambda: A("v_subrev_u32 v43, s6, v43\nv_xor_b32 v6, s6, v41\nv_lshrrev_b32 v7, 4, v43\nv_or_b32 v6, v6, v7\nv_cmp_ne_u32 vcc, 0, v6"), 8)
    A("s_getreg_b32 s20, hwreg(HW_REG_XCC_ID, 0, 4)\nv_cmp_eq_u32 vcc, s20, v43")
    A("s_and_b32 s28, vcc_lo, 0xffff\ns_mul_i32 s28, s28, 0x10001\ns_mov_b32 s29, s28\ns_lshr_b32 s30, vcc_lo, 16\ns_mul_i32 s30, s30, 0x10001\ns_mov_b32 s31, s30")
    A("v_mov_b32 v44, v40")
    inrow("v_max_f32", 44, ["row_ror:8", "row_ror:4", "row_ror:2", "row_ror:1"]); xrow("v_max_f32", 44, 45, 16)
    A("v_sub_f32 v40, v40, v44\nv_exp_f32 v40, v40\nv_mul_f32 v44, v40, v42")
    inrow("v_add_f32", 44, ["row_ror:8", "row_ror:4", "row_ror:2", "row_ror:1"]); xrow("v_add_f32", 44, 45, 16)
    A("v_rcp_f32 v44, v44\nv_mul_f32 v40, v40, v44")
    A("s_lshl_b32 s20, s3, 8\nv_lshl_add_u32 v4, v4, 2, s20\nv_lshrrev_b32 v5, 4, v0\nv_lshl_add_u32 v5, v5, 4, s20")
    A(f"ds_write_b32 v4, v40 offset:{L_X}\nds_read_b128 v[12:15], v5 offset:{L_X}\nds_read_b128 v[16:19], v5 offset:{L_X+64}")
    A("v_and_b32 v1, 15, v0\nv_lshrrev_b32 v4, 4, v0\nv_lshlrev_b32 v24, 4, v1\nv_lshl_add_u32 v22, v4, 14, v24\nv_lshlrev_b32 v1, %d, v1\nv_lshl_add_u32 v1, v4, 4, v1" % (7 if fl else 6))
    A(f"s_lshl_b32 s20, s4, 15\ns_lshl_b32 s21, s3, 13\ns_add_u32 s20, s20, s21\ns_add_u32 s20, s20, {WS_A}\nv_add_u32 v1, s20, v{2 if lin else 1}")
    A(f"v_add_u32 v5, {(WS_AL-WS_A) if loc else 0}, v1\nv_cndmask_b32 v6, v1, v5, s[28:29]\nv_cndmask_b32 v7, v1, v5, s[30:31]\nv_add_u32 v8, 4096, v6\nv_add_u32 v9, 4096, v7")
    A("s_lshl_b32 s20, s3, 8\nv_lshl_add_u32 v21, v0, 2, s20")
    if pi is None: A(f"s_lshl_b32 s20, s4, 11\ns_lshl_b32 s21, s67, 8\ns_add_u32 s20, s20, s21\ns_add_u32 s20, s20, {WS_B}\ns_lshl_b32 s21, s3, 16\ns_add_u32 s20, s20, s21\nv_add_u32 v22, s20, v22")
    else:
        A(f"s_and_b32 s20, s4, 3\ns_lshl_b32 s20, s20, 11\ns_lshr_b32 s21, s4, 2\ns_lshl_b32 s21, s21, 14\ns_add_u32 s20, s20, s21\ns_lshl_b32 s21, s67, 8\ns_add_u32 s20, s20, s21\ns_add_u32 s20, s20, {WS_B}")
        A("v_bfe_u32 v22, v0, 4, 1\nv_lshl_add_u32 v22, v22, 15, v24\nv_lshrrev_b32 v25, 5, v0\nv_lshl_add_u32 v22, v25, 13, v22\nv_add_u32 v22, s20, v22\nv_xor_b32 v22, s71, v22")
    A("s_waitcnt lgkmcnt(0)")
    stamp(5)
    AR = lambda c, s_: 40 + 16 * s_ + 4 * c
    D = lambda s_, nt: 72 + 16 * s_ + 4 * nt
    def lda(s_):
        for c in range(4): A(f"global_load_dwordx4 {v4(AR(c,s_))}, v{6+s_+(0 if c<2 else 2)}, {WS} offset:{(64*(c&1)+2048*s_) if fl else (2048*(c&1)+1024*s_)} {lpol}")
    def mm(s_, other_done):
        wr = 12 + 4 * s_
        def fin(nt):
            d = D(s_, nt)
            r = [f"v_pk_mul_f32 {v2(d)}, {v2(d)}, {v2(wr)}", f"v_pk_fma_f32 {v2(d)}, {v2(d+2)}, {v2(wr+2)}, {v2(d)}", f"v_add_f32 v{d}, v{d}, v{d+1}"]
            if other_done: r.append(f"v_add_f32 v{D(0,nt)}, v{D(0,nt)}, v{D(1,nt)}")
            return r
        for c in range(4):
            for nt in (0, 2, 1, 3):
                d = D(s_, nt)
                A(f"v_mfma_f32_16x16x32_bf16 {v4(d)}, {v4(AR(c,s_))}, {v4(104+16*c+4*nt)}, {'0' if c==0 else v4(d)}")
        for grp in zip(fin(0), fin(2), fin(1), fin(3)):
            for l in grp: A(l)
        if other_done: A("v_permlane32_swap_b32 v72, v80\nv_add_f32 v72, v72, v80")
    if dry:
        A("s_mov_b64 s[80:81], 0\ns_mov_b64 s[32:33], 0\ns_mov_b64 s[34:35], 0\ns_mov_b32 s84, 0\ns_mov_b64 exec, 0\ns_branch L_pb0")
        A("L_bdr:\ns_cmp_eq_u32 s84, 0\ns_mov_b32 s84, 1\ns_cbranch_scc1 L_pb1\ns_mov_b64 exec, -1")
    A("s_mov_b64 s[80:81], -1")
    if bdefer:
        if bdefer <= 8: lspin("sd", L_CV, bdefer, 10, 11, 1)
        else: lspin("sd", L_FP, 1, 10, 11, 1)
        A("s_setprio 1"); wo_issue(bearly, 16); lda(0); lda(1); A("s_setprio 3"); wo_finish(8)
        stamp(4)
        A(f"s_mov_b32 s7, {spin}\ns_branch L_pa2")
    if atrig: lspin("sa", L_FO + (4 if atrig > 4 else 0), atrig - 4 if atrig > 4 else atrig, 10, 11, 2)
    A(f"s_mov_b32 s7, {spin}\ns_mov_b64 s[32:33], -1\ns_mov_b64 s[34:35], -1")
    A("L_pa:")
    A("s_mov_b64 exec, s[32:33]"); lda(0)
    A("s_mov_b64 exec, s[34:35]"); lda(1)
    A("s_mov_b64 exec, -1")
    A("L_pa2:")
    A("s_waitcnt vmcnt(4)")
    chk_sent(range(40, 56), 23); A("s_mov_b64 s[32:33], vcc")
    A("s_waitcnt vmcnt(0)")
    chk_sent(range(56, 72), 23); A("s_mov_b64 s[34:35], vcc")
    A("s_cbranch_vccz L_pa1\ns_cmp_eq_u64 s[32:33], 0\ns_cbranch_scc1 L_pa0")
    if tsleep: A(f"s_sleep {tsleep}")
    if bhold:
        A("s_mov_b32 s85, s7"); lspin("sy", L_FO + 4 * (bhold - 1), 1, 10, 11, 2); A("s_mov_b32 s7, s85")
    A("s_sub_u32 s7, s7, 1\ns_cbranch_scc0 L_pa")
    for first in (0, 1):
        sec = 1 - first
        A(f"L_pa{first}:")
        mk = sp(32 + 2 * sec)
        A(f"s_cmp_eq_u64 {mk}, 0\ns_cbranch_scc1 L_pb{first}")
        A(f"s_mov_b64 exec, {mk}"); lda(sec); A("s_mov_b64 exec, -1")
        A(f"L_pb{first}:")
        mm(first, False)
        A(f"s_mov_b64 exec, {mk}\ns_cbranch_execz L_pd{first}")
        for _ in range(pd - 1): lda(sec)
        A(f"L_pc{first}:")
        A(f"s_waitcnt vmcnt({4*(pd-1)})")
        chk_sent(range(40 + 16 * sec, 56 + 16 * sec), 23)
        A(f"s_cbranch_vccz L_pd{first}\ns_mov_b64 exec, vcc")
        lda(sec)
        A(f"s_sub_u32 s7, s7, 1\ns_cbranch_scc0 L_pc{first}\ns_waitcnt vmcnt(0)")
        A(f"L_pd{first}:")
        A("s_mov_b64 exec, s[80:81]")
        stamp(6)
        mm(sec, True)
        if first == 0: A("s_branch L_pe")
    A("L_pe:\ns_nop 0")
    A("v_permlane32_swap_b32 v76, v84\nv_add_f32 v76, v76, v84")
    A("v_permlane16_swap_b32 v72, v76\nv_add_f32 v72, v72, v76")
    A(f"ds_write_b32 v21, v72 offset:{L_RED}")
    A("s_waitcnt lgkmcnt(0)")
    if dry: A("s_cbranch_execz L_bnb")
    A("s_barrier")
    A(f"s_cmp_ge_u32 s3, {2 if R == 8 else 1}\ns_cbranch_scc1 L_done")
    A("L_bnb:")
    for w in range(4): A(f"ds_read_b128 {v4(88+4*w)}, v24 offset:{L_RED+256*w}")
    assert R in (4, 8)
    A("s_waitcnt lgkmcnt(2)\nv_pk_add_f32 v[88:89], v[88:89], v[92:93]\nv_pk_add_f32 v[90:91], v[90:91], v[94:95]")
    A("s_waitcnt lgkmcnt(0)\nv_pk_add_f32 v[96:97], v[96:97], v[100:101]\nv_pk_add_f32 v[98:99], v[98:99], v[102:103]")
    A("v_pk_add_f32 v[88:89], v[88:89], v[96:97]\nv_pk_add_f32 v[90:91], v[90:91], v[98:99]")
    if dry: A("s_cbranch_execz L_bdr")
    A(f"global_store_dwordx4 v22, v[88:91], {WS} sc1")
    stamp(7)
    end_wave()
    A("L_tc:")
    A("s_mov_b32 s26, s67")
    srd(8, P_W1, 512 * 3584); srd(12, P_W2, 1792 * 1024)
    A("v_lshrrev_b32 v23, 4, v0\nv_lshlrev_b32 v23, 4, v23")
    A("v_lshrrev_b32 v1, 2, v0\ns_mov_b32 s20, 3584\nv_mul_lo_u32 v1, v1, s20\nv_and_b32 v12, 3, v0\nv_lshl_add_u32 v1, v12, 4, v1")
    A(f"s_mul_i32 s20, s3, {128*3584}\ns_lshl_b32 s21, s26, 6\ns_add_u32 s20, s20, s21")
    A("v_lshlrev_b32 v18, 6, v23\nv_and_b32 v13, 15, v0\nv_lshl_add_u32 v18, v13, 4, v18")
    A("s_lshl_b32 s27, s26, 15\ns_lshl_b32 s21, s3, 8\ns_add_u32 s27, s27, s21")
    A(f"s_lshl_b32 s23, s3, 14\ns_add_u32 s23, s23, {L_WT}")
    if not w1early: dma([f"buffer_load_dwordx4 v1, s[8:11], s20 offen {w1pol} lds\ns_add_u32 s20, s20, {16*3584}" for i in range(8)], 0)
    def w2load():
        A("s_add_u32 s23, s23, 8192")
        dma([f"buffer_load_dwordx4 v18, s[12:15], s27 offen {wpol} lds\ns_add_u32 s27, s27, 4096" for i in range(8)], 0)
    A("v_lshrrev_b32 v12, 4, v0\nv_bfe_u32 v13, v0, 2, 2\nv_and_b32 v14, 3, v0\nv_lshl_add_u32 v14, v14, 3, s23")
    A("v_lshl_add_u32 v1, v12, 9, v14\nv_lshl_add_u32 v1, v13, 6, v1")
    A("v_lshl_add_u32 v19, v12, 10, v14\nv_lshl_add_u32 v19, v13, 8, v19")
    if not w2late: w2load()
    A("v_and_b32 v20, 31, v0\nv_lshlrev_b32 v20, 3, v20\nv_lshrrev_b32 v21, 5, v0\nv_lshl_add_u32 v20, v21, 2, v20")
    A("s_lshl_b32 s20, s3, 8\nv_add_u32 v20, s20, v20")
    A(f"global_load_dword v22, v20, {sp(P_X)}\nglobal_load_dwordx4 v[28:31], v2, {sp(P_X)}")
    A(f"v_lshlrev_b32 v21, 1, v20\nv_add_u32 v21, {WS_MOD}, v21\nv_add_u32 v24, 4096, v21")
    A("s_waitcnt vmcnt(0)")
    for c in range(4):
        for mt in range(2):
            for hi in range(2):
                A(f"ds_read_b64_tr_b16 {v2(104+8*c+4*mt+2*hi)}, v1 offset:{(32*c+4*hi)*64+mt*32}")
        if c & 1: A("s_waitcnt lgkmcnt(0)")
    unpack(4, [22], 1)
    unpack(48, [28, 29, 30, 31], 4)
    A("v_pk_add_f32 v[48:49], v[48:49], v[50:51]\nv_pk_add_f32 v[52:53], v[52:53], v[54:55]\nv_pk_add_f32 v[48:49], v[48:49], v[52:53]\nv_add_f32 v48, v48, v49")
    wave_reduce("v_add_f32", 48, 49)
    A(f"v_mul_f32 v48, {f2x(1/512)}, v48\nv_sub_f32 v4, v4, v48\nv_sub_f32 v5, v5, v48")
    def w2tr():
        for tau in range(8):
            for hi in range(2):
                A(f"ds_read_b64_tr_b16 {v2(136+4*tau+2*hi)}, v19 offset:{8192+hi*4096+tau*32}")
            if tau % 4 == 3: A("s_waitcnt lgkmcnt(0)")
    if mlate:
        lspin("sv0", L_CV, 4, 10, 11, 16); lspin("sv", L_FP, 1, 10, 11, 2); w2load(); A("s_waitcnt vmcnt(0)"); w2tr(); stamp(4)
    poll("pm", lambda: A(f"global_load_dwordx2 v[40:41], v21, {WS} sc1\nglobal_load_dwordx2 v[42:43], v21, {WS} offset:2048 sc1\nglobal_load_dwordx2 v[44:45], v24, {WS} sc1"),
         lambda: chk_tags([41, 43, 45], 46), 2 if mlate else 16)
    unpack(6, [40, 44], 2)
    A("v_add_f32 v8, 1.0, v8\nv_add_f32 v9, 1.0, v9\nv_cvt_pk_bf16_f32 v44, v8, v9")
    unpack(8, [44], 1)
    A(f"ds_write_b32 v20, v44 offset:{L_U}\nds_write_b32 v20, v42 offset:{L_U+1024}")
    A("v_add_u32 v21, s20, v23\nv_and_b32 v22, 1, v0\nv_lshl_add_u32 v22, v22, 10, v21")
    for c in range(4): A(f"ds_read_b128 {v4(48+4*c)}, v22 offset:{L_U+64*c}")
    A("s_waitcnt lgkmcnt(0)")
    for c in range(4):
        for mt in range(2):
            A(f"v_mfma_f32_16x16x32_bf16 {v4(24+4*mt)}, {v4(104+8*c+4*mt)}, {v4(48+4*c)}, {'0' if c==0 else v4(24+4*mt)}")
    A("s_mov_b32 exec_lo, 0x00030003\ns_mov_b32 exec_hi, 0x00030003")
    A(f"ds_write_b128 v22, v[24:27] offset:{L_GS}\nds_write_b128 v22, v[28:31] offset:{L_GS+64}")
    A("s_mov_b64 exec, 1\nv_mov_b32 v33, 1")
    A(f"ds_add_u32 v10, v33 offset:{L_CP}")
    A("s_mov_b64 exec, -1")
    A("v_and_b32 v1, 31, v0\nv_lshlrev_b32 v1, 4, v1\nv_lshrrev_b32 v16, 5, v0\nv_lshl_add_u32 v1, v16, 11, v1")
    def bcopy():
        A(f"s_bfe_u32 s20, s4, 0x10001\ns_lshl_b32 s20, s20, 15\ns_lshr_b32 s21, s4, 2\ns_lshl_b32 s21, s21, 13\ns_xor_b32 s21, s21, s71\ns_add_u32 s20, s20, s21\ns_add_u32 s20, s20, {WS_B}")
    if pi is None:
        A(("s_lshr_b32 s21, s4, 1" if rx else f"s_and_b32 s21, {'s4' if R == 8 else 's26'}, {R-1}") + f"\ns_lshl_b32 s21, s21, 14\ns_lshl_b32 s20, s3, 9\ns_add_u32 s20, s20, s21\ns_add_u32 s20, s20, {WS_B}\nv_add_u32 v1, s20, v1")
        A("v_add_u32 v12, 4096, v1\nv_add_u32 v13, 8192, v1\nv_add_u32 v14, 12288, v1")
    else:
        bcopy()
        A("s_lshl_b32 s21, s3, 9\ns_add_u32 s20, s20, s21\nv_add_u32 v1, s20, v1\nv_add_u32 v12, 4096, v1\nv_add_u32 v13, 16384, v1\nv_add_u32 v14, 20480, v1")
    A(f"s_lshl_b32 s20, s3, 8\nv_lshl_add_u32 v22, v16, 2, s20")
    A("v_and_b32 v33, 3, v0\nv_lshlrev_b32 v33, 8, v33\nv_bfe_u32 v32, v0, 3, 1\nv_lshl_add_u32 v32, v32, 6, v33\nv_add_u32 v32, v32, v23")
    A(f"s_mov_b32 s22, {f2x(1/512)}\nv_mov_b32 v34, {f2x(1e-5)}")
    lspin("sp", L_CP, 4, 10, 11, 0 if mlate else 4, lambda: A(f"ds_read_b128 v[24:27], v32 offset:{L_GS}\nds_read_b128 v[28:31], v32 offset:{L_GS+1024}"))
    for qp in ("[1,0,3,2]", "[2,3,0,1]"):
        for i in range(8): A(f"v_add_f32_dpp v{24+i}, v{24+i}, v{24+i} quad_perm:{qp} {DPPF}")
    if dry:
        A("s_mov_b64 s[80:81], 0\ns_mov_b64 s[82:83], 0\ns_mov_b64 exec, 0\ns_branch L_pbd\nL_cdr:\ns_mov_b64 exec, -1")
    A("s_mov_b64 s[80:81], -1\ns_mov_b32 s82, 0x00010001\ns_mov_b32 s83, 0x00010001")
    if not mlate:
        stamp(4)
        lspin("sv0", L_CV, 4, 10, 11, 16); lspin("sv", L_FP, 1, 10, 11, 2)
        if w2late: w2load()
    cs = 13 if cpad else 12
    if pi is None: A(f"s_lshl_b32 s20, s3, {cs+3}\ns_lshl_b32 s21, s26, {cs-6}\ns_add_u32 s20, s20, s21\ns_add_u32 s20, s20, {WS_C}")
    else:
        A(f"s_and_b32 s20, s3, 1\ns_lshl_b32 s20, s20, 17\ns_lshr_b32 s21, s3, 1\ns_lshl_b32 s21, s21, 13\ns_xor_b32 s21, s21, s71\ns_add_u32 s20, s20, s21\ns_lshl_b32 s21, s26, 7\ns_add_u32 s20, s20, s21\ns_add_u32 s20, s20, {WS_C}")
        cs = 14
    A(f"v_bfe_u32 v35, v0, 2, 3\nv_lshlrev_b32 v35, {cs}, v35\nv_and_b32 v36, 3, v0\nv_lshl_add_u32 v35, v36, 4, v35\nv_add_u32 v35, s20, v35")
    if not mlate: A("s_waitcnt vmcnt(0)"); w2tr()
    stamp(5)
    G = 40; Hh = 88
    def gather4(name, base, addr, tmp, sleep):
        if g4:
            A(f"s_mov_b32 s7, {spin}")
            for i in range(4): A(f"global_load_dwordx4 {v4(base+4*i)}, {addr(i)} sc1\ns_mov_b64 {sp(28+2*i)}, -1")
            A(f"L_{name}t:\ns_waitcnt vmcnt(0)\ns_mov_b32 s21, 0")
            for i in range(4):
                A(f"s_mov_b64 exec, {sp(28+2*i)}\ns_cbranch_execz L_{name}s{i}")
                A(f"v_max3_u32 v{tmp}, v{base+4*i}, v{base+4*i+1}, v{base+4*i+2}\nv_max_u32 v{tmp}, v{tmp}, v{base+4*i+3}\nv_cmp_eq_u32 vcc, -1, v{tmp}")
                A(f"s_mov_b64 {sp(28+2*i)}, vcc\ns_cbranch_vccz L_{name}s{i}\ns_mov_b64 exec, vcc\nglobal_load_dwordx4 {v4(base+4*i)}, {addr(i)} sc1\ns_mov_b32 s21, 1")
                A(f"L_{name}s{i}:")
            A(f"s_mov_b64 exec, -1\ns_cmp_eq_u32 s21, 0\ns_cbranch_scc1 L_{name}d\ns_sub_u32 s7, s7, 1\ns_cbranch_scc0 L_{name}t\ns_waitcnt vmcnt(0)")
            A(f"L_{name}d:")
            return
        A(f"s_mov_b32 s7, {spin}")
        for _ in range(pd):
            for i in range(4): A(f"global_load_dwordx4 {v4(base+4*i)}, {addr(i)} sc1")
        A(f"L_{name}t:")
        A(f"s_waitcnt vmcnt({4*(pd-1)})")
        for i in range(4): A(f"v_max3_u32 v{tmp+i}, v{base+4*i}, v{base+4*i+1}, v{base+4*i+2}")
        for i in range(4): A(f"v_max_u32 v{tmp+i}, v{tmp+i}, v{base+4*i+3}")
        A(f"v_max3_u32 v{tmp+4}, v{tmp}, v{tmp+1}, v{tmp+2}\nv_max_u32 v{tmp+4}, v{tmp+4}, v{tmp+3}\nv_cmp_eq_u32 vcc, -1, v{tmp+4}\ns_cbranch_vccz L_{name}d")
        for i in range(4): A(f"v_cmp_eq_u32 {sp(28+2*i)}, -1, v{tmp+i}")
        if sleep: A(f"s_sleep {sleep}")
        for i in range(4):
            A(f"s_or_b64 exec, {sp(28+2*i)}, 1\nglobal_load_dwordx4 {v4(base+4*i)}, {addr(i)} sc1")
        A(f"s_mov_b64 exec, -1\ns_sub_u32 s7, s7, 1\ns_cbranch_scc0 L_{name}t")
        A(f"L_{name}d:")
    gather4("pb", Hh, lambda i: f"v{1 if i==0 else 11+i}, {WS}", 56, csleep)
    stamp(6)
    A(f"v_pk_add_f32 {v2(G)}, {v2(Hh)}, {v2(Hh+4)}\nv_pk_add_f32 {v2(G+2)}, {v2(Hh+2)}, {v2(Hh+6)}\nv_pk_add_f32 {v2(G+8)}, {v2(Hh+8)}, {v2(Hh+12)}\nv_pk_add_f32 {v2(G+10)}, {v2(Hh+10)}, {v2(Hh+14)}")
    A(f"v_pk_add_f32 {v2(G)}, {v2(G)}, {v2(G+8)}\nv_pk_add_f32 {v2(G+2)}, {v2(G+2)}, {v2(G+10)}")
    A(f"v_permlane32_swap_b32 v{G}, v{G+2}\nv_permlane32_swap_b32 v{G+1}, v{G+3}")
    A(f"v_pk_add_f32 {v2(G)}, {v2(G)}, {v2(G+2)}")
    A(f"v_pk_fma_f32 v[4:5], {v2(G)}, v[6:7], v[4:5]")
    A("v_pk_mul_f32 v[6:7], v[4:5], v[8:9]\nv_cvt_pk_bf16_f32 v6, v6, v7")
    A(f"ds_write_b32 v20, v6 offset:{L_U}")
    for c in range(4): A(f"ds_read_b128 {v4(44+4*c)}, v21 offset:{L_U+64*c}")
    A("v_add_f32 v16, v4, v5\nv_mul_f32 v17, v4, v4\nv_fmac_f32 v17, v5, v5")
    A("v_permlane32_swap_b32 v16, v17\nv_add_f32 v16, v16, v17")
    xrow("v_add_f32", 16, 17, 16)
    steps = ["row_ror:8", "row_ror:4", "row_ror:2", "row_ror:1"]
    for c in range(4):
        A(f"s_waitcnt lgkmcnt({3-c})")
        for mt in range(2):
            A(f"v_mfma_f32_16x16x32_bf16 {v4(60+4*mt)}, {v4(104+8*c+4*mt)}, {v4(44+4*c)}, {'0' if c==0 else v4(60+4*mt)}")
        inrow("v_add_f32", 16, [steps[c]])
    A("s_mov_b64 exec, s[82:83]")
    A(f"ds_write_b32 v22, v16 offset:{L_RED+128}")
    A(f"ds_write_b128 v21, v[60:63] offset:{L_RED}\nds_write_b128 v21, v[64:67] offset:{L_RED+64}")
    A("s_mov_b64 exec, s[80:81]")
    A("s_waitcnt lgkmcnt(0)")
    if dry: A("s_cbranch_execz L_cnb")
    A("s_barrier\nL_cnb:")
    A(f"ds_read_b64 v[12:13], v33 offset:{L_RED+128}\nds_read_b128 v[40:43], v32 offset:{L_RED}")
    A("s_waitcnt lgkmcnt(0)")
    for qp in ("[1,0,3,2]", "[2,3,0,1]"):
        for r in (12, 13, 40, 41, 42, 43): A(f"v_add_f32_dpp v{r}, v{r}, v{r} quad_perm:{qp} {DPPF}")
    A("v_mul_f32 v12, s22, v12\nv_fma_f32 v14, v13, s22, v34\nv_fma_f32 v14, -v12, v12, v14\nv_max_f32 v14, v14, v34\nv_rsq_f32 v14, v14")
    for q in range(2): A(f"v_pk_fma_f32 {v2(40+2*q)}, {v2(24+2*q)}, v[12:13], {v2(40+2*q)} op_sel_hi:[1,0,1] neg_lo:[0,1,0] neg_hi:[0,1,0]")
    for q in range(2): A(f"v_pk_fma_f32 {v2(40+2*q)}, {v2(40+2*q)}, v[14:15], {v2(28+2*q)} op_sel_hi:[1,0,1]")
    for q in range(2): A(f"v_cvt_pk_bf16_f32 v{48+q}, v{40+2*q}, v{41+2*q}")
    for q in range(2): A(f"v_pk_max_i16 v{48+q}, v{48+q}, 0")
    for q in range(2): A(f"v_mov_b32_dpp v{50+q}, v{48+q} row_shl:8 {DPPF} bound_ctrl:0")
    for tau in (0, 2, 4, 6, 1, 3, 5, 7): A(f"v_mfma_f32_16x16x32_bf16 {v4(56+4*tau)}, v[48:51], {v4(136+4*tau)}, 0")
    for j in (1, 2, 3): A(f"v_mov_b32 v{56+j}, v{56+8*j}")
    for j in range(4): A(f"v_mov_b32_dpp v{56+j}, v{60+8*j} quad_perm:[0,1,2,3] row_mask:0x2 bank_mask:0xf")
    if dry: A("s_cbranch_execz L_cdr")
    A("s_mov_b32 exec_hi, 0")
    A(f"global_store_dwordx4 v35, v[56:59], {WS} sc1")
    stamp(7)
    end_wave()
    A("L_tf:")
    prb("cs")
    A("s_mov_b32 s26, s67\ns_lshr_b32 s20, s26, 3\ns_lshl_b32 s20, s20, 7\ns_and_b32 s21, s26, 7\ns_lshl_b32 s21, s21, 2\ns_add_u32 s20, s20, s21")
    A("v_and_b32 v4, 3, v0\nv_lshrrev_b32 v5, 4, v0\nv_lshl_add_u32 v4, v5, 5, v4\nv_add_u32 v4, s20, v4\nv_lshlrev_b32 v5, 1, v4")
    A(f"global_load_ushort v8, v5, {sp(P_X)}")
    if tw: A(f"global_load_ushort v33, v5, {sp(P_OUT)}")
    A(f"v_lshrrev_b32 v6, 1, v4\nv_lshlrev_b32 v6, 3, v6\nv_add_u32 v6, {WS_MOD}, v6\nv_add_u32 v7, 6144, v6")
    if mlate: lspin("sf0", L_FP, 1, 10, 11, 16)
    poll("pg", lambda: A(f"global_load_dwordx2 v[12:13], v6, {WS} sc1\nglobal_load_dwordx2 v[14:15], v7, {WS} sc1"),
         lambda: chk_tags([13, 15], 16), 4 if mlate else 16)
    A("v_lshlrev_b32 v8, 16, v8")
    A("v_and_b32 v16, 1, v4\nv_cmp_eq_u32 vcc, 0, v16")
    A("v_lshlrev_b32 v16, 16, v12\nv_and_b32 v17, 0xffff0000, v12\nv_cndmask_b32 v9, v17, v16, vcc")
    A("v_lshlrev_b32 v16, 16, v14\nv_and_b32 v17, 0xffff0000, v14\nv_cndmask_b32 v12, v17, v16, vcc")
    if pi is None:
        A(f"v_bfe_u32 v6, v0, 2, 2\nv_lshlrev_b32 v6, 12, v6\nv_lshl_add_u32 v6, v4, 2, v6\nv_add_u32 v6, {WS_B}, v6")
        if R == 8: A("s_lshl_b32 s20, s4, 14\nv_add_u32 v6, s20, v6")
        if rx: A("s_lshr_b32 s20, s4, 1\ns_lshl_b32 s20, s20, 14\nv_add_u32 v6, s20, v6")
        if cpad: A(f"s_lshl_b32 s20, s26, 13\ns_add_u32 s20, s20, {WS_C}\nv_lshrrev_b32 v7, 2, v0\nv_lshl_add_u32 v7, v7, 6, v2\nv_add_u32 v7, s20, v7\nv_add_u32 v32, 4096, v7")
        else: A(f"s_lshl_b32 s20, s26, 12\ns_add_u32 s20, s20, {WS_C}\nv_add_u32 v7, s20, v2")
    else:
        bcopy()
        A("v_bfe_u32 v6, v0, 2, 1\nv_lshlrev_b32 v6, 12, v6\nv_bfe_u32 v7, v0, 3, 1\nv_lshl_add_u32 v6, v7, 14, v6\nv_lshl_add_u32 v6, v4, 2, v6\nv_add_u32 v6, s20, v6")
        A(f"s_and_b32 s20, s26, 15\ns_lshl_b32 s20, s20, 14\ns_lshr_b32 s21, s26, 4\ns_lshl_b32 s21, s21, 13\ns_xor_b32 s21, s21, s71\ns_add_u32 s20, s20, s21\ns_add_u32 s20, s20, {WS_C}\nv_lshrrev_b32 v7, 2, v0\nv_lshl_add_u32 v7, v7, 6, v2\nv_add_u32 v7, s20, v7\nv_add_u32 v32, 4096, v7")
    if dry: A("s_mov_b64 exec, 0\ns_branch L_fd\nL_fdr:\ns_mov_b64 exec, -1")
    lspin("sf", L_FP, 1, 10, 11, 16 if calm else 4)
    prb("fp")
    poll("pxb", lambda: A(f"global_load_dword v13, v6, {WS} sc1\nglobal_load_dword v14, v6, {WS} offset:2048 sc1"), lambda: chk_sent([13, 14], 15), xsleep)
    A("v_add_f32 v13, v13, v14")
    inrow("v_add_f32", 13, ["row_ror:8", "row_ror:4"])
    A("v_fma_f32 v8, v9, v13, v8")
    prb("b")
    stamp(6)
    if fdelay: A(f"s_sleep {fdelay}")
    gather4("pc", 40, lambda i: f"v{(7 if i<2 else 32) if cpad else 7}, {WS} offset:{2048*(i&1) if cpad else 1024*i}", 56, fsleep)
    A("L_fd:")
    stamp(7)
    A("v_pk_add_f32 v[16:17], v[40:41], v[44:45]\nv_pk_add_f32 v[18:19], v[42:43], v[46:47]\nv_pk_add_f32 v[24:25], v[48:49], v[52:53]\nv_pk_add_f32 v[26:27], v[50:51], v[54:55]")
    A("v_pk_add_f32 v[16:17], v[16:17], v[24:25]\nv_pk_add_f32 v[18:19], v[18:19], v[26:27]")
    A("v_permlane32_swap_b32 v16, v18\nv_permlane32_swap_b32 v17, v19\nv_pk_add_f32 v[16:17], v[16:17], v[18:19]")
    A("v_permlane16_swap_b32 v16, v17\nv_add_f32 v16, v16, v17")
    inrow("v_add_f32", 16, ["row_ror:8", "row_ror:4"])
    A("v_fma_f32 v16, v12, v16, v8\nv_cvt_pk_bf16_f32 v16, v16, v16")
    if dry: A("s_cbranch_execz L_fdr")
    A("s_mov_b32 exec_lo, 0x000f000f\ns_mov_b32 exec_hi, 0x000f000f")
    A(f"global_store_short v5, v16, {sp(P_OUT)}")
    A("s_cmp_lg_u32 s26, 0\ns_cbranch_scc1 L_tfe")
    if dbgp:
        A(f"s_mov_b64 exec, 1\nv_mov_b32 v20, s{P_WS}\nv_mov_b32 v21, s{P_WS+1}\nv_mov_b32 v22, s71\nv_mov_b32 v23, s{P_K}\nglobal_store_dwordx4 v10, v[20:23], {sp(P_DBG)}")
    A("s_mov_b64 exec, 1\nv_mov_b32 v18, s6")
    A(f"global_store_dword v10, v18, {WS}")
    if amp:
        A(f"s_memrealtime s[96:97]\ns_waitcnt lgkmcnt(0)\ns_sub_u32 s94, s96, s94\ns_lshl_b32 s94, s94, {amp}\nL_fy:\ns_memrealtime s[98:99]\ns_waitcnt lgkmcnt(0)\ns_sub_u32 s98, s98, s96\ns_cmp_lt_u32 s98, s94\ns_cbranch_scc1 L_fy")
    if fixend:
        prb("end")
        A(f"L_fx:\ns_memrealtime s[98:99]\ns_waitcnt lgkmcnt(0)\ns_sub_u32 s98, s98, {'s94' if probe else 's96'}\ns_cmp_lt_u32 s98, {fixend}\ns_cbranch_scc1 L_fx")
    A("L_tfe:")
    stamp(4)
    end_wave()
    if stamps:
        A("L_stampout:")
        if st0: A("s_waitcnt lgkmcnt(0)\nv_writelane_b32 v3, s90, 0\ns_cmp_lt_u32 s3, 4\ns_cbranch_scc1 L_so9\nv_writelane_b32 v3, s92, 1\nv_writelane_b32 v3, s94, 2\nL_so9:")
        if stamps == 2:
            A("s_cmp_lg_u32 s2, 32\ns_cbranch_scc1 L_exit\ns_and_b32 s20, s3, 11\ns_cbranch_scc1 L_exit")
            A("s_mov_b64 exec, 0xff\ns_lshl_b32 s20, s3, 3\nv_lshl_add_u32 v1, v0, 2, s20")
            A(f"global_store_dword v1, v3, {sp(P_DBG)}\ns_endpgm")
        A("s_mov_b64 exec, 0xff")
        A("s_mul_i32 s20, s2, 12\ns_add_u32 s20, s20, s3\ns_lshl_b32 s20, s20, 5")
        A(f"s_add_u32 s20, s20, {WS_STAMP}")
        A("v_lshl_add_u32 v1, v0, 2, s20")
        A(f"global_store_dword v1, v3, {WS}")
    A("L_exit:\ns_endpgm")
    A(".p2align 6\n.type L_tab,@object\nL_tab:")
    for wg in range(256):
        r = roles[(xp[wg & 7] if xp else wg & 7), wg >> 3]; skip = T - r['n']
        assert skip < 8, (wg, r)
        A(f".long {(r['pre'] - skip + 16) | skip << 12 | r['e'] << 15 | r['ei'] << 18 | r['l'] << 23 | r['li'] << 25:#x}")
    A("L_endcode:")
    A('.section .rodata,"a"\n.p2align 6')
    A(f".amdhsa_kernel {NAME}")
    for l in ["next_free_vgpr 168", "next_free_sgpr 102", "accum_offset 168", "group_segment_fixed_size 0", "kernarg_size 104",
              "user_sgpr_count 2", "user_sgpr_kernarg_segment_ptr 1", "system_sgpr_workgroup_id_x 1"]:
        A("  .amdhsa_" + l)
    A(".end_amdhsa_kernel")
    return A.finish()

if __name__ == "__main__":
    out = sys.argv[1]; kw = {}
    for a in sys.argv[2:]:
        k, v = a.split("=", 1)
        try: v = ast.literal_eval(v)
        except Exception: pass
        kw[k] = v
    open(out, "w").write(gen(**kw))
    import json
    roles, T = make_plan(kw.get('plan', 'A'), **{k: v for k, v in kw.items() if k in ('cH','cQ','cM','cB','cC','T','c3','Fx','adj')})
    json.dump([[roles[wg & 7, wg >> 3][k] for k in ('e', 'l', 'n')] for wg in range(256)], open(out + ".roles", "w"))
```

```python
import sys, struct, ast
from asmlib import Asm
NAME = "adaLN_cond__gqa_block_cached__dense_activation_relu__decode_kernel"
def f2x(f): return "0x%08x" % struct.unpack("<I", struct.pack("<f", f))[0]

WS_P = 0x180000; WS_PV = 0x15000; WS_XB = 0x14000; WS_QL = 0x10000; WS_H = 0x18000; WS_MOD = 0x4000; WS_Q = 0x8000; WS_ST = 0xC000
WS_AL = 0x140000; WS_A = 0x100000; WS_B = 0x40000; WS_C = 0x80000
WS_STAMP = 0x8000000
L_CG = 0; L_FQ = 4; L_CS = 8; L_CT = 68; L_CP = 16; L_FK = 20; L_CV = 24; L_CW = 28; L_FO = 32; L_MK = 64; L_FP = 12
L_ST = 256; L_Q = 1024; L_GP = 2048; L_X = 3072; L_RED = 4096; L_U = 5120; L_GS = 8192
L_OP = 16384; L_WT = 32768; LDS_SIZE = 98304
DPPF = "row_mask:0xf bank_mask:0xf"
P_X, P_K, P_V, P_WQ, P_WO, P_BX, P_W1, P_W2, P_C, P_WM, P_OUT, P_DBG, P_WS = [36 + 2 * i for i in range(13)]
def sp(n): return f"s[{n}:{n+1}]"
def v4(n): return f"v[{n}:{n+3}]"
def v2(n): return f"v[{n}:{n+1}]"
WS = sp(P_WS)

DOC = '''; ---------------------------------------------------------------------------------------------
; One persistent launch, 256 workgroups (one per CU) x 12 waves.  x = wg&7 = kv head, a = wg>>3 = key split.
;     max, V tiles -> v_perm transpose -> MFMA, workgroup partial summed through LDS and published.
;     H: sa/ca slice of silu(c)@w_mod   Q: LN(x)*(1+ca)+sa, q slice   M: ga/sb/cb/gb slice
;     B: split combine (global softmax weights) + wo slice            C: residual, LN, FFN slice
;        vote) so that the two cross-die hand-off buffers sit next to their readers; affects placement only
; ---------------------------------------------------------------------------------------------'''
E_H, E_Q, E_M, E_B, E_P = 1, 2, 3, 4, 5
R_B, R_C, R_F = 1, 2, 3
def make_plan(plan, **pk):
    P = dict(PLANS[plan]); P.update(pk)
    roles = {(x, a): dict(e=0, ei=0, l=0, li=0) for x in range(8) for a in range(32)}
    hi = mi = ci = fi = 0
    for x in range(8):
        a = 0
        for _ in range(P['H'][x]): roles[x, a].update(e=E_H, ei=hi); hi += 1; a += 1
        for c in range(8):
            roles[x, a].update(e=E_Q, ei=c)
            if (x & 1 == P['Fx'] if 'Fx' in P else c in (0, 1, 4, 5)): roles[x, a].update(l=R_F, li=fi); fi += 1
            a += 1
        for c in range(8): roles[x, a].update(e=E_B, ei=c, l=R_B, li=c); a += 1
        for _ in range(P['M'][x]): roles[x, a].update(e=E_M, ei=mi); mi += 1; a += 1
        assert a <= 32
        cand = [b for b in range(31, -1, -1) if roles[x, b]['e'] == 0] + [b for b in range(32) if roles[x, b]['e'] == E_H] + [b for b in range(32) if roles[x, b]['e'] == E_M]
        for b in cand[:P['C'][x]]: roles[x, b].update(l=R_C, li=ci); ci += 1
    assert (hi, mi, ci, fi) == (32, 32, 56, 32), (hi, mi, ci, fi)
    free = [k for k in sorted(roles) if roles[k]['e'] == 0 and roles[k]['l'] == 0]
    assert len(free) >= 8
    for i, k in enumerate(free[:: len(free) // 8][:8]): roles[k].update(e=E_P, ei=i)
    for x in range(8):
        cost = []
        for a in range(32):
            r = roles[x, a]
            c = {0: 0, E_P: 0, E_H: P['cH'], E_Q: P['cQ'], E_M: P['cM'], E_B: P['cB']}[r['e']]
            cb = r['ei'] if r['e'] in (E_Q, E_B) else (r['ei'] >> 2)
            if r['e'] in P['c3'] and cb == 3: c += P['c3'][r['e']]
            if r['l'] == R_C: c += P['cC']
            cost.append(c)
        n = [max(28, P['T'] - 7)] * 32
        for _ in range(1024 - sum(n)):
            b = min((a for a in range(32) if n[a] < P['T']), key=lambda a: (n[a] + cost[a], -a))
            n[b] += 1
        if P.get('adj') and x & 1:
            give = 0
            for a in range(32):
                r = roles[x, a]
                if r['e'] == E_B and (r['ei'] == 3 or r['ei'] >= 8 - P['adj'] + 1): n[a] -= 1; give += 1
            for a in range(32):
                r = roles[x, a]
                if give and r['l'] == R_C and (r['li'] >> 1) % 4 != 3: n[a] += 1; give -= 1
            assert give == 0
        pre = 0
        for a in range(32):
            roles[x, a].update(n=n[a], pre=pre); pre += n[a] - 28
    T = max(r['n'] for r in roles.values()); T += T & 1
    return roles, T
base = dict(cH=2.0, cQ=3.6, cM=4.2, cB=3.6, cC=4.0, c3={E_H: 0.5, E_Q: 1.7, E_M: 1.5, E_B: 1.0}, T=34)
base2 = dict(cH=1.6, cQ=4.0, cM=4.5, cB=3.4, cC=5.3, c3={E_H: 0.7, E_Q: 2.3, E_M: 1.8, E_B: 2.4}, T=36)
PLANS = {
 'A': dict(base, H=[4]*8, M=[4]*8, C=[7]*8),
 'B': dict(base, H=[8,0,8,0,8,0,8,0], M=[8,0,8,0,8,0,8,0], C=[14,0,14,0,14,0,14,0]),
 'C': dict(base, H=[8,0,8,0,8,0,8,0], M=[8,0,8,0,8,0,8,0], C=[7]*8),
 'D': dict(base, H=[8,8,8,8,0,0,0,0], M=[8,0,8,0,8,0,8,0], C=[14,0,14,0,14,0,14,0]),
 'E': dict(base, H=[8,8,8,8,0,0,0,0], M=[8,0,8,0,8,0,8,0], C=[8,6,8,6,8,6,8,6]),
 'G': dict(base2, H=[8,0,8,0,8,0,8,0], M=[8,0,8,0,8,0,8,0], C=[7]*8),
 'H': dict(base2, H=[8,0,8,0,8,0,8,0], M=[8,0,8,0,8,0,8,0], C=[8,8,8,12,8,2,8,2]),
 'I': dict(base2, H=[8,0,8,8,4,0,4,0], M=[8,0,8,0,8,0,8,0], C=[8,8,8,8,8,4,8,4]),
 'J': dict(base2, H=[8,0,8,0,8,0,8,0], M=[8,0,8,0,8,0,8,0], C=[0,14,0,14,0,14,0,14]),
 'K': dict(base2, H=[8,0,8,0,8,0,8,0], M=[8,0,8,0,8,0,8,0], C=[4,10,4,10,4,10,4,10]),
 'L': dict(base2, H=[8,0,8,0,8,0,8,0], M=[8,0,8,0,8,0,8,0], C=[8,6,8,6,8,6,8,6]),
 'N': dict(base2, H=[8,0,8,0,8,0,8,0], M=[2,6,2,6,2,6,2,6], C=[14,0,14,0,14,0,14,0]),
 'O': dict(base2, H=[0,8,0,8,0,8,0,8], M=[2,6,2,6,2,6,2,6], C=[14,0,14,0,14,0,14,0]),
 'P': dict(base2, H=[4,4,4,4,4,4,4,4], M=[2,6,2,6,2,6,2,6], C=[14,0,14,0,14,0,14,0]),
 'S': dict(base2, H=[1,0,1,0,15,0,15,0], M=[15,0,15,0,1,0,1,0], C=[0,16,0,16,0,12,0,12]),
 'U': dict(base2, H=[4,0,4,0,12,0,12,0], M=[12,0,12,0,4,0,4,0], C=[0,16,0,16,0,12,0,12]),
 'F': dict(base, H=[8,4,8,4,4,0,4,0], M=[8,0,8,0,8,0,8,0], C=[10,4,10,4,10,4,10,4]),
}

def gen(win=5, win2=6, wpol="nt", stamps=0, spin=200000, hsleep=4, qsleep=8, tsleep=1, pace=4, cpre=1, kprio=0, skipw=0, vmid=4, nopoll='', qtrig=22, R=4, cdefer=1, csleep=2, nH=33, nX=31, nL=34, loc=1, lpol='sc1', w1pol='nt', nocomp=0, nosvc=0, sprio=3, nopre=0, nocw=0, lmul=1, xit='', qloc=1, strig=1, qtrig2=38, kpol='nt', vpol='nt', slowfb=0, fixend=0, plan='A', hfirst=1, cpad=1, w2late=1, fsleep=1, dry=0, yprio=0, burst=0, bwin=8, use2=1, p2=0, amp=0, dbgp=0, pi=None, pn=8, pclip=2000, xn=0, xmask=0x55, mim=1, mrg=1, fprio=0, rprio=3, rsl=0, b0at=0, mlate=0, xp=None, lin=1, atrig=0, pre=0, g4=0, alt1=0, alt2=0, tw=0, probe='', det=1, rx=0, fl=0, w1early=1, nohp=0, ws1=0, ws2=0, bp=0, calm=0, ltab=1, st0=0, bhold=0, xl=1, bearly=0, pd=1, fdelay=0, xsleep=4, bdefer=0, hwait=0, **pk):
    A = Asm()
    roles, T = make_plan(plan, **pk)
    hdr = open("cdna_kernels/" + NAME[:-7] + ".s.ref").read().split("; Override")[0]
    A(hdr.rstrip())
    A(f"; @launch grid=(256,1,1) block=(768,1,1) lds={LDS_SIZE}")
    A(DOC)
    A('.amdgcn_target "amdgcn-amd-amdhsa--gfx950"')
    A(f".text\n.globl {NAME}\n.p2align 8\n.type {NAME},@function\n{NAME}:")
    def stamp(k):
        if stamps:
            A("s_memrealtime s[62:63]\ns_waitcnt lgkmcnt(0)")
            A(f"v_writelane_b32 v3, s62, {k}")
    def prb(name):
        if probe == name: A("s_memrealtime s[94:95]\ns_waitcnt lgkmcnt(0)")
    def end_wave():
        if stamps:
            A("s_branch L_stampout")
        else:
            A("s_endpgm")
    def srd(d, p, size):
        A(f"s_mov_b32 s{d}, s{p}\ns_mov_b32 s{d+1}, s{p+1}\ns_mov_b32 s{d+2}, {size}\ns_mov_b32 s{d+3}, 0x20000")
    def poll(name, loads, check, sleep):
        if name in nopoll.split('+'): return
        top = A.label(name); done = A.label(name + "d")
        A(f"s_mov_b32 s7, {spin}")
        A(f"{top}:")
        loads()
        A("s_waitcnt vmcnt(0)")
        check()
        A(f"s_cbranch_vccz {done}")
        A("s_mov_b64 exec, vcc")
        if sleep: A(f"s_sleep {sleep}")
        A("s_sub_u32 s7, s7, 1")
        A(f"s_cbranch_scc0 {top}")
        A(f"{done}:")
        A("s_mov_b64 exec, -1")
    def lspin(name, off, n, vz, vt, sleep=1, extra=None):
        top = A.label(name); done = A.label(name + "d")
        A(f"s_mov_b32 s7, {spin*20}")
        A(f"{top}:")
        A(f"ds_read_b32 v{vt}, v{vz} offset:{off}")
        if extra: extra()
        A("s_waitcnt lgkmcnt(0)")
        A(f"v_cmp_gt_u32 vcc, {n}, v{vt}")
        A(f"s_cbranch_vccz {done}")
        if lmul > 1: sleep = min(127, max(sleep, 1) * lmul)
        if sleep: A(f"s_sleep {sleep}")
        A("s_sub_u32 s7, s7, 1")
        A(f"s_cbranch_scc0 {top}")
        A(f"{done}:")
    def chk_tags(regs, tmp):
        A(f"v_xor_b32 v{tmp}, s6, v{regs[0]}")
        for r in regs[1:]:
            A(f"v_xor_b32 v{tmp+1}, s6, v{r}")
            A(f"v_or_b32 v{tmp}, v{tmp}, v{tmp+1}")
        A(f"v_cmp_ne_u32 vcc, 0, v{tmp}")
    def chk_sent(regs, tmp):
        regs = list(regs)
        if len(regs) == 1:
            A(f"v_cmp_eq_u32 vcc, -1, v{regs[0]}"); return
        if len(regs) == 2:
            A(f"v_max_u32 v{tmp}, v{regs[0]}, v{regs[1]}"); rest = []
        else:
            A(f"v_max3_u32 v{tmp}, v{regs[0]}, v{regs[1]}, v{regs[2]}"); rest = regs[3:]
        while rest:
            if len(rest) == 1:
                A(f"v_max_u32 v{tmp}, v{tmp}, v{rest[0]}"); rest = []
            else:
                A(f"v_max3_u32 v{tmp}, v{tmp}, v{rest[0]}, v{rest[1]}"); rest = rest[2:]
        A(f"v_cmp_eq_u32 vcc, -1, v{tmp}")
    def xrow(op, v, tmp, which):
        A(f"v_mov_b32 v{tmp}, v{v}")
        A(f"v_permlane{which}_swap_b32 v{v}, v{tmp}")
        A(f"{op} v{v}, v{v}, v{tmp}")
    def inrow(op, v, steps):
        for s in steps:
            A(f"{op}_dpp v{v}, v{v}, v{v} {s} {DPPF}")
    def wave_reduce(op, v, tmp):
        inrow(op, v, ["row_ror:8", "row_ror:4", "row_ror:2", "row_ror:1"])
        xrow(op, v, tmp, 16); xrow(op, v, tmp, 32)
    def unpack(dst, src, n):
        for i in range(n):
            A(f"v_lshlrev_b32 v{dst+2*i}, 16, v{src[i]}")
            A(f"v_and_b32 v{dst+2*i+1}, 0xffff0000, v{src[i]}")
    def rnd(a, b=None):
        if b is None: A(f"v_cvt_pk_bf16_f32 v{a}, v{a}, v{a}\nv_lshlrev_b32 v{a}, 16, v{a}")
        else: A(f"v_cvt_pk_bf16_f32 v{b}, v{a}, v{b}\nv_lshlrev_b32 v{a}, 16, v{b}\nv_and_b32 v{b}, 0xffff0000, v{b}")
    def silu(x, t, n):
        A(f"s_mov_b32 s21, {f2x(-1.4426950408889634)}")
        for i in range(n): A(f"v_mul_f32 v{t+i}, s21, v{x+i}")
        for i in range(n): A(f"v_exp_f32 v{t+i}, v{t+i}")
        for i in range(n): A(f"v_add_f32 v{t+i}, 1.0, v{t+i}")
        for i in range(n): A(f"v_rcp_f32 v{t+i}, v{t+i}")
        for i in range(n): A(f"v_mul_f32 v{x+i}, v{x+i}, v{t+i}")
    def gemv_perm(W, T, npair):
        for u in range(npair):
            for w in range(4):
                a = W + 8 * u + w; b = W + 8 * u + 4 + w
                A(f"v_perm_b32 v{T+8*u+2*w}, v{b}, v{a}, s24")
                A(f"v_perm_b32 v{T+8*u+2*w+1}, v{b}, v{a}, s25")
    def gemv_dot(T, X, acc):
        for u in range(len(X)):
            for e in range(8):
                c = "0" if u == 0 else f"v{acc+e}"
                A(f"v_dot2_f32_bf16 v{acc+e}, v{T+8*u+e}, v{X[u]}, {c}")
    def mktag():
        A("s_waitcnt lgkmcnt(0)\ns_mul_i32 s6, s6, 0x9E3779B1\ns_add_u32 s6, s6, 0x7F4A7C15")
    def paced(loads, w):
        if skipw and (w or skipw > 1): return
        for i, l in enumerate(loads):
            if w and i >= w: A(f"s_waitcnt vmcnt({w-1})")
            A(l)

    if st0: A("s_memrealtime s[90:91]")
    A("s_cmp_ge_u32 s2, 256\ns_cbranch_scc1 L_exit")
    A("s_load_dwordx16 s[36:51], s[0:1], 0")
    rest_ld = "s_load_dwordx8 s[52:59], s[0:1], 64\ns_load_dwordx2 s[60:61], s[0:1], 96\ns_load_dword s68, s[32:33], s34"
    A("s_getpc_b64 s[30:31]\nL_pc:\ns_add_u32 s32, s30, L_tab-L_pc\ns_addc_u32 s33, s31, 0\ns_lshl_b32 s34, s2, 2")
    if not ltab: A(rest_ld)
    A("v_lshrrev_b32 v1, 6, v0\nv_and_b32 v0, 63, v0\nv_readfirstlane_b32 s3, v1")
    A("s_and_b32 s4, s2, 7\ns_lshr_b32 s5, s2, 3")
    if xp: A(f"s_lshl_b32 s4, s4, 2\ns_lshr_b32 s4, {sum(h << (4*i) for i, h in enumerate(xp)):#x}, s4\ns_and_b32 s4, s4, 7")
    if fixend: A("s_memrealtime s[96:97]")
    A("s_mov_b32 s24, 0x05040100\ns_mov_b32 s25, 0x07060302")
    A("v_lshlrev_b32 v2, 4, v0")
    if stamps:
        A("v_mov_b32 v3, 0")
        if not st0: stamp(0)
    A("s_cmp_lt_u32 s3, 4\ns_cbranch_scc1 L_service")
    STREAM_MARK = len(A.lines)
    A("L_service:")
    if ltab: A(rest_ld)
    A(f"s_setprio {sprio}")
    if cpre:
        A(f"s_lshl_b32 s20, s5, 2\ns_add_u32 s20, s20, s3\ns_sub_u32 s20, s20, 96\ns_cmp_ge_u32 s20, (L_endcode-{NAME})/1024\ns_cbranch_scc1 L_ncp")
        A(f"s_sub_u32 s30, s30, L_pc-{NAME}\ns_subb_u32 s31, s31, 0")
        A("s_lshl_b32 s20, s20, 10\nv_add_u32 v14, s20, v2")
        A("global_load_dwordx4 v[164:167], v14, s[30:31]")
        A("L_ncp:")
    A("v_lshrrev_b32 v12, 3, v0\nv_and_b32 v13, 7, v0\nv_mov_b32 v16, 0\nv_mov_b32 v17, 0\nv_mov_b32 v18, 0\nv_mov_b32 v19, 0")
    A("s_mov_b64 exec, 0x1f\nds_write_b128 v2, v[16:19]\ns_mov_b64 exec, -1")
    A("s_waitcnt lgkmcnt(0)")
    A("s_bfe_u32 s64, s68, 0x3000f\ns_bfe_u32 s65, s68, 0x50012\ns_bfe_u32 s66, s68, 0x20017\ns_bfe_u32 s67, s68, 0x60019")
    A("s_lshr_b32 s69, s65, 2\ns_and_b32 s70, s65, 3")
    A(f"s_cmp_lg_u32 s64, {E_H}\ns_cbranch_scc1 L_nh")
    A("s_lshr_b32 s20, s70, 1\ns_lshl_b32 s20, s20, 8\ns_lshl_b32 s21, s3, 6\ns_add_u32 s20, s20, s21")
    A("v_lshl_add_u32 v14, v12, 3, s20")
    A("s_mov_b32 s21, 6144\nv_mul_lo_u32 v1, v14, s21\nv_lshl_add_u32 v1, v13, 4, v1\nv_lshlrev_b32 v14, 1, v14")
    A("s_and_b32 s20, s70, 1\ns_lshl_b32 s20, s20, 10\ns_lshl_b32 s21, s69, 7\ns_add_u32 s20, s20, s21")
    A("s_waitcnt lgkmcnt(0)")
    srd(8, P_WM, 512 * 6144)
    A(f"global_load_dwordx4 v[4:7], v14, {sp(P_C)}")
    for i in range(8):
        A(f"buffer_load_dwordx4 {v4(40+4*i)}, v1, s[8:11], s20 offen {wpol}")
        if i < 7: A("s_add_u32 s20, s20, 6144")
    A(f"s_load_dword s6, {WS}, 0")
    A("s_barrier")
    A("s_lshl_b32 s20, s65, 2\ns_add_u32 s20, s20, s3")
    if cpad: A(f"s_lshr_b32 s21, s20, 3\ns_lshl_b32 s21, s21, 15\ns_and_b32 s22, s20, 7\ns_lshl_b32 s22, s22, 11\ns_add_u32 s21, s21, s22\ns_add_u32 s21, s21, {WS_C + (0 if use2 else (p2^1)<<14)}\nv_lshrrev_b32 v14, 2, v0\nv_lshl_add_u32 v14, v14, 6, v2\nv_add_u32 v14, s21, v14\nv_add_u32 v11, 16384, v14")
    else: A(f"s_lshr_b32 s21, s20, 4\ns_lshl_b32 s21, s21, 15\ns_and_b32 s22, s20, 15\ns_lshl_b32 s22, s22, 10\ns_add_u32 s21, s21, s22\ns_add_u32 s21, s21, {WS_C + (0 if use2 else (p2^1)<<14)}\nv_add_u32 v14, s21, v2\nv_add_u32 v11, 16384, v14")
    if use2: A(f"s_lshl_b32 s21, s20, 10\ns_add_u32 s21, s21, {WS_B}\nv_add_u32 v15, s21, v2")
    else: A(f"s_lshr_b32 s21, s20, 5\ns_lshl_b32 s21, s21, 15\ns_and_b32 s22, s20, 31\ns_lshl_b32 s22, s22, 9\ns_add_u32 s21, s21, s22\ns_add_u32 s21, s21, {WS_B + (p2<<14)}\nv_add_u32 v15, s21, v2")
    A("s_cmp_eq_u32 s3, 3\ns_cselect_b32 exec_hi, 0, -1")
    for i in range(4): A(f"v_mov_b32 v{16+i}, -1")
    A("s_mov_b64 exec, -1")
    for i in range(4): A(f"v_mov_b32 v{20+i}, -1")
    A(f"global_store_dwordx4 v14, v[16:19], {WS} sc1")
    if use2: A(f"global_store_dwordx4 v11, v[16:19], {WS} sc1")
    else: A("s_mov_b32 exec_hi, 0")
    A(f"global_store_dwordx4 v15, v[20:23], {WS} sc1\ns_mov_b64 exec, -1")
    A(f"s_waitcnt vmcnt({10+use2})")
    unpack(24, [4, 5, 6, 7], 4); silu(24, 32, 8)
    for i in range(4): A(f"v_cvt_pk_bf16_f32 v{24+i}, v{24+2*i}, v{25+2*i}")
    mktag()
    A(f"s_and_b32 s26, s70, 1\ns_lshl_b32 s26, s26, 13\ns_lshr_b32 s21, s70, 1\ns_lshl_b32 s21, s21, 12\ns_add_u32 s26, s26, s21\ns_lshl_b32 s21, s69, 9\ns_add_u32 s26, s26, s21\ns_add_u32 s26, s26, {WS_H}")
    A(f"s_waitcnt vmcnt({2+use2})")
    stamp(1)
    gemv_perm(40, 104, 4)
    gemv_dot(104, [24, 25, 26, 27], 32)
    A("L_gfin:")
    acc = 32
    for e in range(4): A(f"v_permlane32_swap_b32 v{acc+e}, v{acc+e+4}")
    for e in range(4): A(f"v_add_f32 v{acc+e}, v{acc+e}, v{acc+e+4}")
    for e in range(2): A(f"v_permlane16_swap_b32 v{acc+e}, v{acc+e+2}")
    for e in range(2): A(f"v_add_f32 v{acc+e}, v{acc+e}, v{acc+e+2}")
    for e in range(2): A(f"v_add_f32_dpp v{acc+e}, v{acc+e}, v{acc+e} row_ror:8 {DPPF}")
    A("v_lshrrev_b32 v14, 4, v0\nv_lshlrev_b32 v14, 3, v14\nv_lshl_add_u32 v14, v13, 5, v14\ns_lshl_b32 s21, s3, 8\nv_add_u32 v14, s21, v14")
    A(f"ds_write_b64 v14, v[32:33] offset:{L_GP}")
    A("v_mov_b32 v14, 0\nv_mov_b32 v15, 1")
    A("s_waitcnt vmcnt(0)")
    A("s_mov_b64 exec, 1")
    A(f"ds_add_rtn_u32 v15, v14, v15 offset:{L_CG}")
    A("s_mov_b64 exec, -1")
    A("v_lshlrev_b32 v14, 3, v0")
    A("s_waitcnt lgkmcnt(0)")
    A("v_readfirstlane_b32 s21, v15")
    A("s_cmp_lg_u32 s21, 3\ns_cbranch_scc1 L_gdone")
    A("s_mov_b32 exec_hi, 0")
    for w in range(4): A(f"ds_read_b64 {v2(32+2*w)}, v14 offset:{L_GP+256*w}")
    A("v_add_u32 v14, s26, v14")
    A("s_waitcnt lgkmcnt(0)")
    A("v_pk_add_f32 v[32:33], v[32:33], v[34:35]\nv_pk_add_f32 v[36:37], v[36:37], v[38:39]\nv_pk_add_f32 v[32:33], v[32:33], v[36:37]")
    A(f"s_cmp_lg_u32 s64, {E_H}\ns_cbranch_scc1 L_gnh")
    A(f"v_mov_b32 v34, v33\nv_mov_b32 v33, s6\nv_mov_b32 v35, s6\nv_add_u32 v14, s26, v2\nglobal_store_dwordx4 v14, v[32:35], {WS} sc1\ns_mov_b64 exec, -1\ns_branch L_gdone\nL_gnh:")
    A("v_cvt_pk_bf16_f32 v32, v32, v33\nv_mov_b32 v33, s6")
    if qloc:
        A(f"s_cmp_lg_u32 s64, {E_Q}\ns_cbranch_scc1 L_gnl")
        A(f"v_add_u32 v15, {WS_QL-WS_Q}, v14\nglobal_store_dwordx2 v15, v[32:33], {WS}")
        A("L_gnl:")
    A(f"global_store_dwordx2 v14, v[32:33], {WS} sc1")
    A("s_mov_b64 exec, -1")
    A("L_gdone:")
    stamp(3)
    if mlate: A(f"s_cmp_eq_u32 s64, {E_M}\ns_cbranch_scc1 L_done")
    A("s_branch L_qpoll")

    NM = T - 28; nmask = T - min(r['n'] for r in roles.values())
    NW = 39 - T
    S0 = len(A.lines)
    A("L_stream:")
    if kprio: A(f"s_setprio {kprio}")
    A("s_sub_u32 s21, s3, 4")
    if yprio == 1: A("s_cmp_lt_u32 s21, 4\ns_cbranch_scc1 L_yp\ns_setprio 1\nL_yp:")
    A("v_bfe_u32 v1, v0, 2, 2\nv_lshlrev_b32 v1, 8, v1\nv_lshrrev_b32 v4, 4, v0\nv_lshl_add_u32 v1, v4, 6, v1\nv_and_b32 v4, 3, v0\nv_lshl_add_u32 v1, v4, 4, v1")
    A(f"s_lshl_b32 s19, s4, 23\ns_mul_i32 s16, s5, {28*8192}\ns_add_u32 s16, s16, s19\ns_lshl_b32 s17, s21, 12\ns_add_u32 s16, s16, s17")
    A("s_mov_b32 s10, 0x4000000\ns_mov_b32 s11, 0x20000")
    hcnt = sum(PLANS[plan]['H'][x] << (4 * x) for x in range(8))
    A(f"s_lshl_b32 s17, s4, 2\ns_lshr_b32 s35, {hcnt:#x}, s17\ns_and_b32 s35, s35, {15 if hfirst else 0}")
    A("s_waitcnt lgkmcnt(0)")
    A(f"s_mov_b32 s8, s{P_K}\ns_mov_b32 s9, s{P_K+1}")
    A("s_cmp_ge_u32 s5, s35\ns_cbranch_scc1 L_s1\ns_barrier\nL_s1:")
    KR = lambda t: 168 - 4 * T + 4 * t
    nS = (T + 3) // 4; nP = (T + 7) // 8
    assert T == 34
    first_v = 14
    vslots = [12 + 4 * i for i in range(NW)] + [KR(i) for i in range(first_v, T)]
    VR = lambda t: vslots[t % len(vslots)]
    st = {"cur": None}
    mpos = [6 + (j * (T - 12)) // max(nmask, 1) for j in range(nmask)]
    rest = list(range(NM, NM + 6)) + list(range(nmask, NM)) + list(range(NM + 6, T))
    perm = []
    for t in range(T):
        if t in mpos: perm.append(mpos.index(t))
        else: perm.append(rest.pop(0))
    first_nm = min(t for t in range(T) if perm[t] < NM)
    assert first_nm >= win
    hist = []
    def wcount(w):
        c = 0
        for n_, m_ in enumerate(reversed(hist)):
            if not m_:
                if c == w - 1: return n_
                c += 1
        return None
    def ld(which, t):
        o = perm[t]
        hist.append(o < nmask)
        if o < NM:
            A(f"s_add_u32 s20, s17, {o*8192}"); st["cur"] = None; imm = 0
            if o < nmask: A(f"s_cmp_gt_u32 s18, {o}\ns_cselect_b32 s20, 0x4000000, s20")
        else:
            key = (o - NM) >> 2; imm = ((o - NM) & 3) * 1024
            if st["cur"] != key:
                A(f"s_add_u32 s20, s16, {key*32768}"); st["cur"] = key
        if which == "K": A(f"buffer_load_dwordx4 {v4(KR(t))}, v1, s[8:11], s20 offen offset:{imm} {kpol}")
        else: A(f"buffer_load_dwordx4 {v4(VR(t))}, v2, s[12:15], s20 offen offset:{imm} {vpol}")
    korder = list(range(T))
    seq = [("K", t) for t in korder] + [("V", t) for t in range(NW)]
    for i, (wh, t) in enumerate(seq):
        if i == win:
            if st0: A("s_memrealtime s[92:93]")
            if ltab: A(rest_ld)
            A("s_branch L_body")
            S1 = len(A.lines)
            A("L_body:")
            srd(12, P_V, 0x4000000)
            if ws1: A(f"s_cmp_lt_u32 s21, {ws1}\ns_cselect_b64 vcc, -1, 0")
            if st0: A("s_waitcnt vmcnt(3)\ns_memrealtime s[94:95]")
            if not b0at: A("s_cmp_lt_u32 s5, s35\ns_cbranch_scc1 L_s2\ns_barrier\nL_s2:")
            A("s_waitcnt lgkmcnt(0)")
            A(f"s_and_b32 s17, s68, 0xfff\ns_bfe_u32 s18, s68, 0x3000c\ns_add_u32 s17, s17, {896-16}\ns_lshl_b32 s17, s17, 13\ns_add_u32 s17, s17, s19\ns_lshl_b32 s19, s21, 10\ns_add_u32 s17, s17, s19")
        if b0at and i == win + b0at: A("s_cmp_lt_u32 s5, s35\ns_cbranch_scc1 L_s2\ns_barrier\nL_s2:")
        if i == T and kprio: A("s_setprio 0")
        if wcount(win) is not None and perm[t] >= nmask:
            if xn and 8 <= i < 8 + xn:
                lb = A.label("w"); A(f"s_waitcnt vmcnt({wcount(win+1)})\ns_bitcmp0_b32 {xmask:#x}, s4\ns_cbranch_scc1 {lb}\ns_waitcnt vmcnt({wcount(win)})\n{lb}:")
            else: A(f"s_waitcnt vmcnt({wcount(win)})")
        ld(wh, t)
        if i == qtrig: A(f"v_mov_b32 v8, 0\nv_mov_b32 v9, 1\ns_mov_b64 exec, 1\nds_max_u32 v8, v9 offset:{L_FK}\ns_mov_b64 exec, -1")
        if hwait and i == hwait: A(f"v_mov_b32 v8, 0\nv_mov_b32 v9, 1\ns_mov_b64 exec, 1\nds_write_b32 v8, v9 offset:72\ns_mov_b64 exec, -1")
        if i == qtrig2 and qloc: A(f"v_mov_b32 v8, 0\nv_mov_b32 v9, 2\ns_mov_b64 exec, 1\nds_max_u32 v8, v9 offset:{L_FK}\ns_mov_b64 exec, -1")
    viss = NW
    A("v_and_b32 v8, 3, v0\nv_lshlrev_b32 v8, 8, v8\nv_lshrrev_b32 v9, 4, v0\nv_lshl_add_u32 v8, v9, 6, v8\nv_bfe_u32 v9, v0, 2, 2\nv_lshl_add_u32 v8, v9, 4, v8\nv_mov_b32 v9, 0")
    if mim: A(f"s_mov_b32 s22, {f2x(1.4426950408889634)}\ns_mov_b32 s26, {f2x(128**-0.5)}\ns_mov_b32 s27, s26")
    else: A(f"s_mov_b32 s22, {f2x(128**-0.5*1.4426950408889634)}")
    for t in range(nmask): A(f"s_cmp_gt_u32 s18, {t}\ns_cselect_b32 s{28+t}, 0xff800000, 0")
    stamp(1)
    lspin("sq", L_FQ, 1, 9, 10, 2, lambda: A(f"ds_read_b128 v[4:7], v8 offset:{L_Q}"))
    stamp(2)
    kl = {"landed": T + NW - win - 3}
    DR = lambda t: 8 if t == 0 else KR(t - 1)
    SR = lambda t: (8 + t) if t < 4 else KR((t >> 2) - 1) + (t & 3)
    def M(t):
        if t >= kl["landed"]:
            A(f"s_waitcnt vmcnt({len(hist)-1-t})"); kl["landed"] = t + 1
        A(f"v_mfma_f32_16x16x32_bf16 {v4(DR(t))}, {v4(KR(t))}, v[4:7], 0")
    def AB(t):
        d = DR(t)
        A(f"v_add_f32_dpp v{d}, v{d+1}, v{d} row_shl:4 {DPPF} bound_ctrl:0")
        A(f"v_add_f32_dpp v{d+2}, v{d+3}, v{d+2} row_shl:4 {DPPF} bound_ctrl:0")
    def S(t):
        d = DR(t)
        A(f"v_add_f32_dpp v{SR(t)}, v{d+2}, v{d} row_shl:8 {DPPF} bound_ctrl:0")
    mark0 = len(A.lines)
    if yprio == 2: A("s_cmp_lt_u32 s21, 4\ns_cbranch_scc1 L_yp\ns_setprio 1\nL_yp:")
    M(0); M(1); M(2)
    for t in range(T + 1):
        if t < T: AB(t)
        if t >= 1:
            S(t - 1)
            if vmid and t - 2 >= first_v and (t - 2 - first_v) % vmid == 0:
                ld("V", viss); viss += 1
        if t + 3 < T: M(t + 3)
    TM = KR(11)
    Sl = [SR(t) for t in range(T)]
    if mim:
        for t in range(0, T, 2): rnd(Sl[t], Sl[t + 1])
        for t in range(0, T, 2): A(f"v_pk_mul_f32 {v2(Sl[t])}, {v2(Sl[t])}, s[26:27]")
        if vmid: ld("V", viss); viss += 1
        for t in range(0, T, 2): rnd(Sl[t], Sl[t + 1])
    for t in range(nmask): A(f"v_add_f32 v{Sl[mpos[t]]}, s{28+t}, v{Sl[mpos[t]]}")
    A(f"v_max3_f32 v{TM}, v{Sl[0]}, v{Sl[1]}, v{Sl[2]}")
    A(f"v_max3_f32 v{TM+1}, v{Sl[3]}, v{Sl[4]}, v{Sl[5]}")
    i = 6; k = 0
    while i < T:
        A(f"v_max3_f32 v{TM+k}, v{TM+k}, v{Sl[i]}, v{Sl[i+1]}"); i += 2; k ^= 1
    A(f"v_max_f32 v{TM}, v{TM}, v{TM+1}")
    xrow("v_max_f32", TM, TM + 1, 16); xrow("v_max_f32", TM, TM + 1, 32)
    A(f"v_mul_f32 v{TM}, s22, v{TM}")
    for t in range(T): A(f"v_fma_f32 v{Sl[t]}, v{Sl[t]}, s22, -v{TM}")
    for t in range(T): A(f"v_exp_f32 v{Sl[t]}, v{Sl[t]}")
    if vmid: ld("V", viss); viss += 1
    A(f"v_add_f32 v{TM+1}, v{Sl[0]}, v{Sl[1]}\nv_add_f32 v{TM+2}, v{Sl[2]}, v{Sl[3]}")
    for t in range(4, T): A(f"v_add_f32 v{TM+1+(t&1)}, v{TM+1+(t&1)}, v{Sl[t]}")
    A(f"v_add_f32 v{TM+1}, v{TM+1}, v{TM+2}")
    xrow("v_add_f32", TM + 1, TM + 2, 16); xrow("v_add_f32", TM + 1, TM + 2, 32)
    A(f"s_lshl_b32 s19, s21, 5\nv_lshl_add_u32 v{TM+2}, v0, 3, s19\nv_mov_b32 v4, 0\nv_mov_b32 v5, 1")
    A("s_mov_b64 exec, 0xf")
    A(f"ds_write_b64 v{TM+2}, {v2(TM)} offset:{L_ST}")
    A("s_mov_b64 exec, 1")
    A(f"ds_add_u32 v4, v5 offset:{L_CS}")
    A("s_mov_b64 exec, -1")
    GR = [(0, 2), (2, 10), (10, 18), (18, 26), (26, 34)]
    def pack(u, d):
        for t in range(GR[u][0], GR[u][1], 2): A(f"v_cvt_pk_bf16_f32 v{d+(t-GR[u][0])//2}, v{Sl[t]}, v{Sl[t+1]}")
    for u in range(3): pack(u, KR(8 + u))
    A("s_waitcnt lgkmcnt(0)")
    AC = [8, KR(0)]
    PA = [KR(1), KR(2), KR(12), KR(13)]; PB = [KR(3), KR(4), KR(5), KR(6)]
    TT = [TM, 4]
    def zero(P):
        for j in range(4):
            for i in range(4): A(f"v_mov_b32 v{P[j]+i}, 0")
    def vers(P, src, n=4):
        for j in range(4):
            ctl = "quad_perm:[0,1,2,3]" if j == 0 else f"row_shr:{4*j}"
            for i in range(n): A(f"v_mov_b32_dpp v{P[j]+i}, v{src+i} {ctl} row_mask:0xf bank_mask:{1<<j:#x}")
    zero(PA)
    A(f"v_mov_b32 v{TM+1}, 0\nv_mov_b32 v5, 0")
    stamp(3)
    EO = (0, 4, 1, 5, 2, 6, 3, 7)
    def pv(u):
        t0, t1 = GR[u]; n = t1 - t0
        vers(PA, KR(8 + u), n // 2)
        for k, e in enumerate(EO):
            Tm = TT[k & 1]; ac = AC[e >> 2]
            for p in range(n // 2):
                a = VR(t0 + 2 * p) + (e >> 1); b = VR(t0 + 2 * p + 1) + (e >> 1)
                A(f"v_perm_b32 v{Tm+p}, v{b}, v{a}, s{24+(e&1)}")
            c = "0" if (u == 0 and k < 2) else v4(ac)
            if n == 8: A(f"v_mfma_f32_16x16x32_bf16 {v4(ac)}, {v4(Tm)}, {v4(PA[e&3])}, {c}")
            else: A(f"v_mfma_f32_16x16x16_bf16 {v4(ac)}, {v2(Tm)}, {v2(PA[e&3])}, {c}")
    ns = len(vslots)
    TA = [VR(t) for t in range(T - ns, 18)][:8]
    assert len(TA) == 8
    X = KR(8); ONE = KR(7) + 2; CNT = KR(7) + 3
    def rescale():
        A(f"v_and_b32 v1, 3, v0\nv_lshlrev_b32 v1, 3, v1\nv_mov_b32 v{X+10}, 0\nv_mov_b32 v{ONE}, 1\ns_lshl_b32 s19, s21, 5\nv_add_u32 v{X+9}, s19, v1")
        def rd():
            for w in range(8): A(f"ds_read_b32 v{X+w}, v1 offset:{L_ST+32*w}")
            A(f"ds_read_b32 v{X+8}, v{X+9} offset:{L_ST}")
        lspin("sm", L_CS, 9, X + 10, X + 11, 1, rd)
        A(f"s_mov_b64 exec, 1\nds_add_rtn_u32 v{X+11}, v{X+10}, v{ONE} offset:{L_CT}\ns_mov_b64 exec, -1")
        A(f"v_max3_f32 v{X}, v{X}, v{X+1}, v{X+2}\nv_max3_f32 v{X+3}, v{X+3}, v{X+4}, v{X+5}\nv_max3_f32 v{X}, v{X}, v{X+6}, v{X+7}\nv_max_f32 v{X}, v{X}, v{X+3}")
        A(f"v_sub_f32 v{X}, v{X+8}, v{X}\nv_exp_f32 v{X}, v{X}")
        A(f"s_lshl_b32 s19, s21, 11\nv_add_u32 v1, s19, v2\ns_and_b32 s19, s21, 4\nv_mov_b32 v{CNT}, s19")
        for ac in AC:
            for q in range(2): A(f"v_pk_mul_f32 {v2(ac+2*q)}, {v2(ac+2*q)}, {v2(X)} op_sel_hi:[1,0]")
        for t in range(18, T, 2): A(f"v_pk_mul_f32 {v2(Sl[t])}, {v2(Sl[t])}, {v2(X)} op_sel_hi:[1,0]")
        pack(3, TT[0]); pack(4, TT[1])
        zero(PB); vers(PA, TT[0]); vers(PB, TT[1])
        A(f"s_waitcnt lgkmcnt(0)\nv_readfirstlane_b32 s23, v{X+11}")
    while viss < min(win2, ns):
        ld("V", viss); viss += 1
    done_t = 0
    ends = {g[1] - 1: u for u, g in enumerate(GR[:3])}
    for L in range(T):
        inc = L >= 18 and L % 2 == 1
        can = lambda: viss < T and sum(1 for j in range(L + 1, viss) if perm[j] >= nmask) < (bwin if L >= T - burst else win2 + (pre if L in ends else 0)) + (perm[viss] < nmask) and (viss < ns or done_t > viss - ns)
        if can() or L in ends or inc:
            A(f"s_waitcnt vmcnt({viss-1-L})")
        while can():
            ld("V", viss); viss += 1
            if viss == T:
                assert L > 17
                A(f"s_mov_b64 exec, 1\nds_add_u32 v2, v{ONE} offset:{L_CV}\ns_mov_b64 exec, -1")
        if L in ends:
            pv(ends[L]); done_t = L + 1
            if L == 17: rescale()
        if inc:
            if L == T - 1: stamp(4)
            p = ((L - 18) % 8) // 2
            for e in EO: A(f"v_perm_b32 v{TA[e]+p}, v{VR(L)+(e>>1)}, v{VR(L-1)+(e>>1)}, s{24+(e&1)}")
            if p == 3:
                for e in EO: A(f"v_mfma_f32_16x16x32_bf16 {v4(AC[e>>2])}, {v4(TA[e])}, {v4((PA if L < 26 else PB)[e&3])}, {v4(AC[e>>2])}")
    assert viss == T
    if nocomp:
        keep = [l for l in A.lines[mark0:] if not l.startswith(("v_mfma", "v_perm_b32", "v_add_f32", "v_exp", "v_fma", "v_max", "v_cvt", "v_permlane"))]
        A.lines[mark0:] = keep
    for hf in range(2): A(f"ds_write_b128 v1, {v4(AC[hf])} offset:{L_OP+hf*1024}")
    A(f"s_mov_b64 exec, 1\nds_add_u32 v{CNT}, v{ONE} offset:{L_FO}")
    A("s_mov_b64 exec, -1")
    if stamps: A("s_waitcnt lgkmcnt(0)")
    stamp(5)
    A("s_cmp_lg_u32 s23, 0\ns_cbranch_scc1 L_done")
    A(f"s_setprio {rprio}")
    def a_addr(d, t):
        if lin: A(f"s_lshl_b32 s20, s4, 15\ns_lshr_b32 s19, s5, 4\ns_lshl_b32 s19, s19, 10\ns_add_u32 s20, s20, s19\ns_and_b32 s19, s5, 15\ns_lshl_b32 s19, s19, 4\ns_add_u32 s20, s20, s19\ns_add_u32 s20, s20, {WS_A}")
        else: A(f"s_lshl_b32 s20, s4, 15\ns_lshl_b32 s19, s5, {7 if fl else 6}\ns_add_u32 s20, s20, s19\ns_add_u32 s20, s20, {WS_A}")
        if mrg:
            assert lin
            A(f"v_and_b32 v{d}, 3, v0\nv_lshlrev_b32 v{d}, 13, v{d}\nv_bfe_u32 v{t}, v0, 2, 2\nv_lshl_add_u32 v{d}, v{t}, 11, v{d}\nv_lshrrev_b32 v{t}, 4, v0\nv_lshl_add_u32 v{d}, v{t}, 8, v{d}\nv_add_u32 v{d}, s20, v{d}")
            return
        A(f"v_bfe_u32 v{d}, v0, 2, 2\nv_lshlrev_b32 v{d}, 13, v{d}")
        if fl: A(f"v_lshrrev_b32 v{t}, 5, v0\nv_lshl_add_u32 v{d}, v{t}, 12, v{d}\nv_bfe_u32 v{t}, v0, 4, 1\nv_lshl_add_u32 v{d}, v{t}, 6, v{d}")
        else: A(f"v_lshrrev_b32 v{t}, 4, v0\nv_lshl_add_u32 v{d}, v{t}, 11, v{d}")
        A(f"v_and_b32 v{t}, 3, v0\nv_lshl_add_u32 v{d}, v{t}, {8 if lin else 4}, v{d}\nv_add_u32 v{d}, s20, v{d}")
    a_addr(36, 37)
    A(f"v_add_u32 v37, {WS_AL-WS_A}, v36\nv_mov_b32 v38, 0\nv_mov_b32 v39, 1")
    if xl: A(f"ds_read_b32 v29, v38 offset:{L_MK}\ns_waitcnt lgkmcnt(0)\nv_readfirstlane_b32 s26, v29")
    for hf in range(2 if det else 0):
        def rd8():
            for j in range(4): A(f"ds_read_b128 {v4(40+8*j)}, v2 offset:{L_OP+(4*hf+j)*2048}\nds_read_b128 {v4(44+8*j)}, v2 offset:{L_OP+(4*hf+j)*2048+1024}")
        if rsl and hf: lspin("so3", L_FO + 4, 3, 38, 28, 1)
        lspin("so", L_FO + 4 * hf, 4, 38, 28, 1 - hf, rd8)
        for q in range(4): A(f"v_pk_add_f32 {v2(40+2*q)}, {v2(40+2*q)}, {v2(48+2*q)}")
        for q in range(4): A(f"v_pk_add_f32 {v2(56+2*q)}, {v2(56+2*q)}, {v2(64+2*q)}")
        for q in range(4): A(f"v_pk_add_f32 {v2((12 if hf == 0 else 40)+2*q)}, {v2(40+2*q)}, {v2(56+2*q)}")
        if hf:
            for q in range(4): A(f"v_pk_add_f32 {v2(12+2*q)}, {v2(12+2*q)}, {v2(40+2*q)}")
    for i in range(0 if det else 8):
        d = 12 if i == 0 else 20
        lspin("so", L_FO + 4 * i, 1, 38, 28, 1 if (calm and i < 6) else 0, lambda: A(f"ds_read_b128 {v4(d)}, v2 offset:{L_OP+i*2048}\nds_read_b128 {v4(d+4)}, v2 offset:{L_OP+i*2048+1024}"))
        if i:
            for q in range(4): A(f"v_pk_add_f32 {v2(12+2*q)}, {v2(12+2*q)}, {v2(20+2*q)}")
    for q in range(4): A(f"v_cvt_pk_bf16_f32 v{12+q}, v{12+2*q}, v{13+2*q}")
    if loc: A(f"global_store_dwordx4 v37, v[12:15], {WS}")
    if xl: A("s_cmp_eq_u32 s26, 0\ns_cbranch_scc1 L_ng2")
    A(f"global_store_dwordx4 v36, v[12:15], {WS} sc1")
    A("L_ng2:")
    A(f"ds_write_b32 v38, v39 offset:{L_FP}")
    stamp(6)
    end_wave()
    blk = A.lines[S0:S1]; del A.lines[S0:S1]; A.lines[STREAM_MARK:STREAM_MARK] = blk

    A("L_nh:")
    A(f"s_cmp_lg_u32 s64, {E_Q}\ns_cbranch_scc1 L_nq")
    A("v_lshlrev_b32 v1, 17, v12\nv_lshl_add_u32 v1, v13, 4, v1")
    A("s_lshl_b32 s20, s3, 20\ns_lshl_b32 s21, s4, 10\ns_add_u32 s20, s20, s21\ns_mov_b32 s26, s65\ns_lshl_b32 s21, s26, 7\ns_add_u32 s20, s20, s21")
    A("s_lshl_b32 s21, s3, 8\nv_lshl_add_u32 v14, v0, 2, s21")
    A("s_waitcnt lgkmcnt(0)")
    srd(8, P_WQ, 512 * 8192)
    A(f"global_load_dwordx4 v[8:11], v2, {sp(P_X)}\nglobal_load_dword v15, v14, {sp(P_X)}")
    for i in range(16):
        A(f"buffer_load_dwordx4 {v4(40+4*i)}, v1, s[8:11], s20 offen {wpol}")
        if i < 15: A("s_add_u32 s20, s20, 8192")
    A(f"s_load_dword s6, {WS}, 0")
    A("s_barrier")
    A(f"s_lshl_b32 s26, s26, 8\ns_lshl_b32 s21, s4, 11\ns_add_u32 s26, s26, s21\ns_add_u32 s26, s26, {WS_Q}")
    A("s_waitcnt vmcnt(16)")
    unpack(32, [8, 9, 10, 11], 4)
    A("v_add_f32 v4, v32, v33")
    for i in range(2, 8): A(f"v_add_f32 v4, v4, v{32+i}")
    wave_reduce("v_add_f32", 4, 5)
    A(f"v_mul_f32 v4, {f2x(1/512)}, v4")
    for i in range(8): A(f"v_sub_f32 v{32+i}, v{32+i}, v4")
    A("v_mul_f32 v6, v32, v32")
    for i in range(1, 8): A(f"v_fmac_f32 v6, v{32+i}, v{32+i}")
    wave_reduce("v_add_f32", 6, 5)
    A(f"v_mul_f32 v5, {f2x(1/512)}, v6"); rnd(4, 5)
    A(f"v_add_f32 v5, {f2x(1e-5)}, v5"); rnd(5)
    A("v_sqrt_f32 v5, v5"); rnd(5)
    A("v_rcp_f32 v5, v5")
    unpack(8, [15], 1)
    A("v_sub_f32 v8, v8, v4\nv_sub_f32 v9, v9, v4"); rnd(8, 9)
    A("v_mul_f32 v8, v8, v5\nv_mul_f32 v9, v9, v5"); rnd(8, 9)
    A(f"v_lshlrev_b32 v15, 2, v14\nv_add_u32 v15, {WS_H}, v15\nv_add_u32 v10, 4096, v15\nv_add_u32 v11, 8192, v15\nv_add_u32 v7, 12288, v15")
    mktag()
    A("s_waitcnt vmcnt(0)")
    stamp(1)
    prb("wq")
    gemv_perm(40, 104, 8)
    if hwait: A("v_mov_b32 v4, 0"); lspin("sh", 72, 1, 4, 5, 2)
    poll("ph", lambda: [A(f"global_load_dwordx4 {v4(16+4*k)}, v{(15,10,11,7)[k]}, {WS} sc1") for k in range(4)],
         lambda: chk_tags([17 + 2 * k for k in range(8)], 4), hsleep)
    stamp(2)
    prb("h")
    A("v_add_f32 v16, v16, v20\nv_add_f32 v17, v18, v22\nv_add_f32 v18, v24, v28\nv_add_f32 v19, v26, v30")
    rnd(16, 17); rnd(18, 19)
    A("v_add_f32 v18, 1.0, v18\nv_add_f32 v19, 1.0, v19"); rnd(18, 19)
    A("v_pk_mul_f32 v[24:25], v[8:9], v[18:19]"); rnd(24, 25)
    A("v_pk_add_f32 v[24:25], v[24:25], v[16:17]")
    A("L_gx:")
    A("v_cvt_pk_bf16_f32 v24, v24, v25")
    A(f"ds_write_b32 v14, v24 offset:{L_X}")
    A("s_lshl_b32 s21, s3, 8\nv_lshl_add_u32 v15, v12, 5, s21")
    A(f"ds_read_b128 v[24:27], v15 offset:{L_X}\nds_read_b128 v[28:31], v15 offset:{L_X+16}")
    A("s_waitcnt lgkmcnt(0)")
    gemv_dot(104, list(range(24, 32)), 32)
    A("s_branch L_gfin")

    A("L_nq:")
    A("s_waitcnt lgkmcnt(0)")
    A(f"s_load_dword s6, {WS}, 0")
    mktag()
    A("s_barrier")
    A("L_role:")
    A("s_cmp_eq_u32 s64, 0\ns_cbranch_scc1 L_qpoll")
    A(f"s_cmp_eq_u32 s64, {E_B}\ns_cbranch_scc1 L_wb")
    A(f"s_cmp_lg_u32 s64, {E_P}\ns_cbranch_scc1 L_m")
    if pi == 2:
        A("s_cmp_lg_u32 s3, 0\ns_cbranch_scc1 L_qpoll")
        A(f"s_lshl_b32 s20, s65, 7\ns_add_u32 s20, s20, {WS_P}\ns_add_u32 s72, s{P_WS}, s20\ns_addc_u32 s73, s{P_WS+1}, 0")
        A("v_lshlrev_b32 v4, 10, v12\nv_lshl_add_u32 v4, v13, 4, v4")
        for k in range(4):
            A("global_store_dwordx4 v4, v[16:19], s[72:73] sc1")
            if k < 3: A("v_add_u32 v4, 8192, v4")
        for k in range(4): A(f"s_mov_b32 s{80+k}, -1")
        A("s_waitcnt vmcnt(0)")
        stamp(1)
        A("s_memtime s[76:77]\ns_waitcnt lgkmcnt(0)")
        cur = 76
        for i in range(4 * pn):
            k = (i + (i >> 2)) & 3; nx = 154 - cur
            A(f"s_load_dword s74, s[72:73], {8192*k + 1024*(i>>2)}\ns_waitcnt lgkmcnt(0)\ns_memtime s[{nx}:{nx+1}]\ns_waitcnt lgkmcnt(0)\ns_sub_u32 s21, s{nx}, s{cur}\ns_min_u32 s{80+k}, s{80+k}, s21")
            cur = nx
        stamp(2)
        A("s_add_u32 s20, s80, s82\ns_add_u32 s21, s81, s83\ns_cmp_gt_u32 s20, s21\ns_cselect_b32 s22, 1, 0\ns_cselect_b32 s80, s81, s80\ns_cselect_b32 s82, s83, s82")
        A("s_cmp_gt_u32 s80, s82\ns_cselect_b32 s21, 1, 0")
        A(f"s_getreg_b32 s20, hwreg(HW_REG_XCC_ID, 2, 1)\ns_xor_b32 s22, s22, s20\ns_getreg_b32 s20, hwreg(HW_REG_XCC_ID, 0, 1)\ns_xor_b32 s21, s21, s20\ns_xor_b32 s21, s21, {1 ^ ((WS_P >> 19) & 1)}\ns_lshl_b32 s21, s21, 1\ns_or_b32 s20, s21, s22")
        A(f"v_mov_b32 v4, s20\nv_mov_b32 v5, s6\ns_lshl_b32 s20, s65, 3\ns_add_u32 s20, s20, {WS_PV}\nv_mov_b32 v8, s20")
        A(f"s_mov_b64 exec, 1\nglobal_store_dwordx2 v8, v[4:5], {WS} sc1\ns_mov_b64 exec, -1")
    A("s_branch L_qpoll\nL_m:")
    if mlate:
        A("s_branch L_qpoll\nL_ml:")
        if mlate <= 8: lspin("sl", L_CV, mlate, 10, 11, 4)
        else: lspin("sl", L_FP, 1, 10, 11, 4)
        A("s_setprio 0\nv_lshrrev_b32 v12, 3, v0\nv_and_b32 v13, 7, v0")
    A("s_mov_b32 s21, 98304\nv_mul_lo_u32 v1, v12, s21\nv_lshl_add_u32 v1, v13, 4, v1")
    A(f"s_mul_i32 s20, s3, {128*6144}\ns_add_u32 s26, s70, 2\ns_lshl_b32 s26, s26, 10\ns_lshl_b32 s21, s69, 7\ns_add_u32 s26, s26, s21\ns_add_u32 s20, s20, s26")
    A("s_lshl_b32 s21, s3, 8\nv_lshl_add_u32 v14, v0, 2, s21")
    srd(8, P_WM, 512 * 6144)
    A(f"global_load_dword v15, v14, {sp(P_C)}")
    paced([f"buffer_load_dwordx4 {v4(40+4*i)}, v1, s[8:11], s20 offen {wpol}\ns_add_u32 s20, s20, 6144" for i in range(16)], 0)
    A(f"s_lshl_b32 s26, s26, 1\ns_add_u32 s26, s26, {WS_MOD-4096}")
    A("s_waitcnt vmcnt(0)")
    unpack(24, [15], 1); silu(24, 32, 2)
    gemv_perm(40, 104, 8)
    A("s_branch L_gx")
    def dma(loads, w):
        if skipw: return
        for i, l in enumerate(loads):
            if w and i >= w: A(f"s_waitcnt vmcnt({w-1})")
            A(f"s_add_u32 m0, s23, {1024*i}")
            A(l)
    def wo_issue(lo, hi):
        srd(8, P_WO, 4096 * 1024)
        A("v_lshrrev_b32 v1, 3, v0\nv_lshlrev_b32 v1, 10, v1\nv_and_b32 v4, 7, v0\nv_lshl_add_u32 v1, v4, 4, v1")
        A(f"s_lshl_b32 s20, s4, 19\ns_lshl_b32 s21, s3, 17\ns_add_u32 s20, s20, s21\ns_lshl_b32 s21, s65, 7\ns_add_u32 s20, s20, s21\ns_add_u32 s20, s20, {8192*lo}")
        A(f"s_lshl_b32 s23, s3, 14\ns_add_u32 s23, s23, {L_WT+1024*lo}")
        dma([f"buffer_load_dwordx4 v1, s[8:11], s20 offen {wpol} lds\ns_add_u32 s20, s20, 8192" for i in range(lo, hi)], pace)
    def wo_finish(w):
        A(f"s_lshl_b32 s23, s3, 14\ns_add_u32 s23, s23, {L_WT}")
        A("v_bfe_u32 v1, v0, 2, 2\nv_lshlrev_b32 v1, 10, v1\nv_lshrrev_b32 v4, 4, v0\nv_lshl_add_u32 v1, v4, 12, v1\nv_and_b32 v4, 3, v0\nv_lshl_add_u32 v1, v4, 3, v1\nv_add_u32 v1, s23, v1")
        A(f"s_waitcnt vmcnt({w})")
        k = 0
        for c in range(4):
            for nt in range(4):
                for hi in range(2):
                    A(f"ds_read_b64_tr_b16 {v2(104+16*c+4*nt+2*hi)}, v1 offset:{(c+4*hi)*128+nt*32}")
                    k += 1
                    if k >= 12 and k % 4 == 0: A("s_waitcnt lgkmcnt(8)")
        A("s_waitcnt lgkmcnt(0)")
    A("L_wb:")
    if xl:
        A("s_cmp_lg_u32 s3, 0\ns_cbranch_scc1 L_wb1")
        A(f"s_getreg_b32 s20, hwreg(HW_REG_XCC_ID, 0, 4)\nv_mov_b32 v4, s20\nv_mov_b32 v5, s6\ns_lshl_b32 s20, s4, 7\ns_lshl_b32 s21, s65, 3\ns_add_u32 s20, s20, s21\ns_add_u32 s20, s20, {WS_XB}\nv_mov_b32 v6, s20")
        A(f"s_mov_b64 exec, 1\nglobal_store_dwordx2 v6, v[4:5], {WS} sc1\ns_mov_b64 exec, -1\ns_nop 0")
        A("L_wb1:")
    if bp:
        A("s_cmp_eq_u32 s3, 1\ns_cbranch_scc1 L_qpoll\ns_cmp_eq_u32 s3, 2\ns_cbranch_scc1 L_qpoll")
        srd(8, P_WO, 4096 * 1024)
        A("v_lshrrev_b32 v1, 3, v0\nv_lshlrev_b32 v1, 10, v1\nv_and_b32 v4, 7, v0\nv_lshl_add_u32 v1, v4, 4, v1\ns_lshr_b32 s22, s3, 1")
        A(f"s_lshl_b32 s20, s4, 19\ns_lshl_b32 s21, s22, 18\ns_add_u32 s20, s20, s21\ns_lshl_b32 s21, s65, 7\ns_add_u32 s20, s20, s21")
        A(f"s_lshl_b32 s23, s22, 15\ns_add_u32 s23, s23, {L_WT}\ns_mov_b32 s22, 31")
        A(f"L_wbl:\ns_mov_b32 m0, s23\ns_waitcnt vmcnt({bp-1})\nbuffer_load_dwordx4 v1, s[8:11], s20 offen {wpol} lds\ns_add_u32 s20, s20, 8192\ns_add_u32 s23, s23, 1024\ns_sub_u32 s22, s22, 1\ns_cbranch_scc0 L_wbl")
        A(f"v_mov_b32 v4, 0\nv_mov_b32 v5, 1\ns_waitcnt vmcnt(0)\ns_mov_b64 exec, 1\nds_add_u32 v4, v5 offset:{L_CW}\ns_mov_b64 exec, -1")
    elif not bdefer: wo_issue(0, 16); wo_finish(0)
    elif bearly: wo_issue(0, bearly)
    A("L_qpoll:")
    if w1early:
        A(f"s_cmp_lg_u32 s66, {R_C}\ns_cbranch_scc1 L_qp1\ns_mov_b32 s26, s67")
        srd(8, P_W1, 512 * 3584)
        A("v_lshrrev_b32 v1, 2, v0\ns_mov_b32 s20, 3584\nv_mul_lo_u32 v1, v1, s20\nv_and_b32 v12, 3, v0\nv_lshl_add_u32 v1, v12, 4, v1")
        A(f"s_mul_i32 s20, s3, {128*3584}\ns_lshl_b32 s21, s26, 6\ns_add_u32 s20, s20, s21")
        A(f"s_lshl_b32 s23, s3, 14\ns_add_u32 s23, s23, {L_WT}")
        dma([f"buffer_load_dwordx4 v1, s[8:11], s20 offen {w1pol} lds\ns_add_u32 s20, s20, {16*3584}" for i in range(8)], 0)
        A("L_qp1:")
    if nosvc:
        A(f"v_mov_b32 v10, 0\nv_mov_b32 v5, 1\nds_write_b32 v10, v5 offset:{L_FQ}\ns_mov_b64 exec, 1\nds_add_u32 v10, v5 offset:{L_CS}")
        end_wave()
    if tw:
        A("s_cmp_lg_u32 s3, 3\ns_cbranch_scc1 L_tw")
        A(f"s_lshl_b32 s20, s4, 23\ns_mul_i32 s21, s5, {28*8192}\ns_add_u32 s21, s21, s20\ns_add_u32 s20, s20, {896*8192}")
        A(f"v_mov_b32 v4, s21\nv_add_u32 v5, {28*8192-128}, v4\nv_mov_b32 v6, s20\nv_mov_b32 v7, 0\ns_mov_b64 exec, 1")
        A(f"global_load_dword v24, v4, {sp(P_V)} nt\nglobal_load_dword v25, v5, {sp(P_V)} nt\nglobal_load_dword v26, v6, {sp(P_V)} nt\nglobal_load_dword v27, v7, {sp(P_W2)} nt")
        A("s_waitcnt vmcnt(0)\ns_mov_b64 exec, -1\nL_tw:")
    A("v_mov_b32 v10, 0\nv_mov_b32 v23, 0\nv_mov_b32 v35, 64")
    A("s_cmp_lg_u32 s3, 1\ns_cbranch_scc1 L_np")
    A(f"s_lshl_b32 s21, s4, 11\ns_add_u32 s21, s21, {WS_Q}\nv_add_u32 v14, s21, v2")
    lspin("sk", L_FK, 1, 10, 11, 16 if calm else 4)
    def ldq():
        if qloc:
            A(f"ds_read_b32 v11, v10 offset:{L_FK}\ns_waitcnt lgkmcnt(0)\nv_readfirstlane_b32 s21, v11\ns_lshr_b32 s21, s21, 1\ns_and_b32 s21, s21, s7")
            if slowfb: A(f"s_cmp_lt_u32 s7, {spin-slowfb}")
            A(f"s_cselect_b32 s21, 0, {WS_QL-WS_Q}\nv_add_u32 v15, s21, v14")
        for i in range(2): A(f"global_load_dwordx4 {v4(16+4*i)}, v{15 if qloc else 14}, {WS} offset:{1024*i} sc1")
    poll("pq", ldq, lambda: chk_tags([17, 19, 21, 23], 4), qsleep)
    A("v_mov_b32 v17, v18\nv_mov_b32 v21, v22\nv_lshlrev_b32 v14, 3, v0\nv_mov_b32 v5, 1")
    A(f"ds_write_b64 v14, v[16:17] offset:{L_Q}\nds_write_b64 v14, v[20:21] offset:{L_Q+512}")
    A(f"ds_write_b32 v10, v5 offset:{L_FQ}")
    stamp(4)
    A("L_np:")
    if xit == 'np': end_wave()
    A("s_cmp_eq_u32 s3, 2\ns_cbranch_scc1 L_post")
    if mlate: A(f"s_cmp_eq_u32 s64, {E_M}\ns_cbranch_scc1 L_ml")
    A("s_cmp_eq_u32 s66, 0\ns_cbranch_scc1 L_done")
    A(f"s_cmp_lg_u32 s66, {R_F}\ns_cbranch_scc1 L_ws")
    A("s_cmp_lg_u32 s3, 0\ns_cbranch_scc1 L_done")
    A("L_ws:")
    lspin("ss0", L_CS, 9, 10, 11, 32 if calm else 16)
    A("s_branch L_pre")
    A("L_done:")
    end_wave()
    A("L_post:")
    a_addr(37, 15)
    A("v_bfe_u32 v36, v0, 2, 2")
    for i in range(4): A(f"v_mov_b32 v{16+i}, -1")
    if xl:
        A(f"v_and_b32 v20, 7, v0\ns_lshl_b32 s20, s4, 7\ns_add_u32 s20, s20, {WS_XB}\nv_lshl_add_u32 v20, v20, 3, s20")
        lspin("sg", L_FK, 1, 10, 11, 32 if calm else 8)
        poll("px", lambda: A(f"global_load_dwordx2 v[22:23], v20, {WS} sc1"), lambda: chk_tags([23], 21), 8)
        A("s_getreg_b32 s20, hwreg(HW_REG_XCC_ID, 0, 4)\nv_cmp_ne_u32 vcc, s20, v22\ns_cbranch_vccz L_ng")
        A(f"v_mov_b32 v5, 1\nds_write_b32 v10, v5 offset:{L_MK}")
    A(f"global_store_dwordx4 v37, v[16:19], {WS} sc1")
    A("L_ng:")
    if loc: A(f"v_add_u32 v39, {WS_AL-WS_A}, v37\nglobal_store_dwordx4 v39, v[16:19], {WS}")
    A("v_lshlrev_b32 v38, 3, v36\nv_mov_b32 v5, 1")
    A(f"s_lshl_b32 s20, s4, 11\ns_lshl_b32 s21, s5, {6 if fl else 4}\ns_add_u32 s20, s20, s21\ns_add_u32 s20, s20, {WS_ST}\nv_lshl_add_u32 v36, v36, {4 if fl else 9}, s20")
    A(f"s_waitcnt vmcnt(0)\ns_mov_b64 exec, 1\nds_add_u32 v10, v5 offset:{L_CS}\ns_mov_b64 exec, -1")
    lspin("ss", L_CS, 9, 10, 11, 16 if calm else 8)
    stamp(1)
    for w in range(8): A(f"ds_read_b64 {v2(40+2*w)}, v38 offset:{L_ST+32*w}")
    A("s_waitcnt lgkmcnt(0)")
    A("v_max3_f32 v56, v40, v42, v44\nv_max3_f32 v56, v56, v46, v48\nv_max3_f32 v56, v56, v50, v52\nv_max_f32 v56, v56, v54")
    for w in range(8): A(f"v_sub_f32 v{28+w}, v{40+2*w}, v56")
    for w in range(8): A(f"v_exp_f32 v{28+w}, v{28+w}")
    A("v_mul_f32 v58, v28, v41")
    for w in range(1, 8): A(f"v_fmac_f32 v58, v{28+w}, v{41+2*w}")
    A("s_getreg_b32 s20, hwreg(HW_REG_XCC_ID, 0, 4)\ns_add_u32 s20, s20, s6\nv_mov_b32 v57, s6\nv_mov_b32 v59, s20")
    A("s_mov_b64 exec, 0x1111")
    A(f"global_store_dwordx4 v36, v[56:59], {WS} sc1")
    A("s_mov_b64 exec, -1")
    stamp(2)
    if mlate: A(f"s_cmp_eq_u32 s64, {E_M}\ns_cbranch_scc1 L_ml")
    A(f"s_cmp_eq_u32 s66, 0\ns_cbranch_scc1 L_done\ns_cmp_eq_u32 s66, {R_F}\ns_cbranch_scc1 L_done")
    A("L_pre:")
    assert pi == 2
    A(f"v_and_b32 v37, 7, v0\nv_lshlrev_b32 v37, 3, v37\nv_add_u32 v37, {WS_PV}, v37")
    VL = f"global_load_dwordx2 v[38:39], v37, {WS} sc1"
    def tally():
        A("v_and_b32 v37, 1, v38\nv_cmp_ne_u32 vcc, 0, v37\ns_and_b32 s71, vcc_lo, 0xff\ns_bcnt1_i32_b32 s71, s71\ns_cmp_gt_u32 s71, 4\ns_cselect_b32 s71, 0x2000, 0")
        if use2: A("v_and_b32 v37, 2, v38\nv_cmp_ne_u32 vcc, 0, v37\ns_and_b32 s75, vcc_lo, 0xff\ns_bcnt1_i32_b32 s75, s75\ns_cmp_gt_u32 s75, 4\ns_cselect_b32 s75, 0x4000, 0\ns_or_b32 s71, s71, s75")
        else: A(f"s_or_b32 s71, s71, {p2<<14}")
        A("s_xor_b32 s75, s71, 0x4000")
    if xit == 'pre': end_wave()
    A(f"s_cmp_eq_u32 s66, {R_F}\ns_cbranch_scc1 L_tf")
    A(f"s_cmp_eq_u32 s66, {R_C}\ns_cbranch_scc1 L_tc")
    if bp: lspin("sz", L_CW, 2, 10, 11, 16); wo_finish(0)
    A(f"s_lshl_b32 s20, s4, 11\ns_lshl_b32 s21, s3, {4 if fl else 9}\ns_add_u32 s20, s20, s21\ns_add_u32 s20, s20, {WS_ST}")
    A(f"v_and_b32 v4, 31, v0\nv_lshl_add_u32 v5, v4, {6 if fl else 4}, s20")
    lspin("sb", L_CV, strig, 10, 11, 12 if calm else 4)
    poll("ps", lambda: A(f"global_load_dwordx4 v[40:43], v5, {WS} sc1\n" + VL), lambda: A("v_subrev_u32 v43, s6, v43\nv_xor_b32 v6, s6, v41\nv_lshrrev_b32 v7, 4, v43\nv_or_b32 v6, v6, v7\nv_xor_b32 v7, s6, v39\nv_or_b32 v6, v6, v7\nv_cmp_ne_u32 vcc, 0, v6"), 8)
    tally()
    A("s_getreg_b32 s20, hwreg(HW_REG_XCC_ID, 0, 4)\nv_cmp_eq_u32 vcc, s20, v43")
    A("s_and_b32 s28, vcc_lo, 0xffff\ns_mul_i32 s28, s28, 0x10001\ns_mov_b32 s29, s28\ns_lshr_b32 s30, vcc_lo, 16\ns_mul_i32 s30, s30, 0x10001\ns_mov_b32 s31, s30")
    A("v_mov_b32 v44, v40")
    inrow("v_max_f32", 44, ["row_ror:8", "row_ror:4", "row_ror:2", "row_ror:1"]); xrow("v_max_f32", 44, 45, 16)
    A("v_sub_f32 v40, v40, v44\nv_exp_f32 v40, v40\nv_mul_f32 v44, v40, v42")
    inrow("v_add_f32", 44, ["row_ror:8", "row_ror:4", "row_ror:2", "row_ror:1"]); xrow("v_add_f32", 44, 45, 16)
    A("v_rcp_f32 v44, v44\nv_mul_f32 v40, v40, v44")
    A("s_lshl_b32 s20, s3, 8\nv_lshl_add_u32 v4, v4, 2, s20\nv_lshrrev_b32 v5, 4, v0\nv_lshl_add_u32 v5, v5, 4, s20")
    A(f"ds_write_b32 v4, v40 offset:{L_X}\nds_read_b128 v[12:15], v5 offset:{L_X}\nds_read_b128 v[16:19], v5 offset:{L_X+64}")
    A("v_and_b32 v1, 15, v0\nv_lshrrev_b32 v4, 4, v0\nv_lshlrev_b32 v24, 4, v1\nv_lshl_add_u32 v22, v4, 14, v24\nv_lshlrev_b32 v1, %d, v1\nv_lshl_add_u32 v1, v4, 4, v1" % (7 if fl else 6))
    A(f"s_lshl_b32 s20, s4, 15\ns_lshl_b32 s21, s3, 13\ns_add_u32 s20, s20, s21\ns_add_u32 s20, s20, {WS_A}\nv_add_u32 v1, s20, v{2 if lin else 1}")
    A(f"v_add_u32 v5, {(WS_AL-WS_A) if loc else 0}, v1\nv_cndmask_b32 v6, v1, v5, s[28:29]\nv_cndmask_b32 v7, v1, v5, s[30:31]\nv_add_u32 v8, 4096, v6\nv_add_u32 v9, 4096, v7")
    A("s_lshl_b32 s20, s3, 8\nv_lshl_add_u32 v21, v0, 2, s20")
    if pi is None: A(f"s_lshl_b32 s20, s4, 11\ns_lshl_b32 s21, s67, 8\ns_add_u32 s20, s20, s21\ns_add_u32 s20, s20, {WS_B}\ns_lshl_b32 s21, s3, 16\ns_add_u32 s20, s20, s21\nv_add_u32 v22, s20, v22")
    else:
        A(f"s_and_b32 s20, s4, 3\ns_lshl_b32 s20, s20, 11\ns_lshr_b32 s21, s4, 2\ns_lshl_b32 s21, s21, 15\ns_add_u32 s20, s20, s21\ns_lshl_b32 s21, s67, 8\ns_add_u32 s20, s20, s21\ns_add_u32 s20, s20, {WS_B}")
        A("v_bfe_u32 v22, v0, 4, 1\nv_lshl_add_u32 v22, v22, 16, v24\nv_lshrrev_b32 v25, 5, v0\nv_lshl_add_u32 v22, v25, 13, v22\nv_add_u32 v22, s20, v22\nv_xor_b32 v22, s71, v22")
    A("s_waitcnt lgkmcnt(0)")
    stamp(5)
    AR = lambda c, s_: 40 + 16 * s_ + 4 * c
    D = lambda s_, nt: 72 + 16 * s_ + 4 * nt
    def lda(s_):
        for c in range(4): A(f"global_load_dwordx4 {v4(AR(c,s_))}, v{6+s_+(0 if c<2 else 2)}, {WS} offset:{(64*(c&1)+2048*s_) if fl else (2048*(c&1)+1024*s_)} {lpol}")
    def mm(s_, other_done):
        wr = 12 + 4 * s_
        def fin(nt):
            d = D(s_, nt)
            r = [f"v_pk_mul_f32 {v2(d)}, {v2(d)}, {v2(wr)}", f"v_pk_fma_f32 {v2(d)}, {v2(d+2)}, {v2(wr+2)}, {v2(d)}", f"v_add_f32 v{d}, v{d}, v{d+1}"]
            if other_done: r.append(f"v_add_f32 v{D(0,nt)}, v{D(0,nt)}, v{D(1,nt)}")
            return r
        for c in range(4):
            for nt in (0, 2, 1, 3):
                d = D(s_, nt)
                A(f"v_mfma_f32_16x16x32_bf16 {v4(d)}, {v4(AR(c,s_))}, {v4(104+16*c+4*nt)}, {'0' if c==0 else v4(d)}")
        for grp in zip(fin(0), fin(2), fin(1), fin(3)):
            for l in grp: A(l)
        if other_done: A("v_permlane32_swap_b32 v72, v80\nv_add_f32 v72, v72, v80")
    if dry:
        A("s_mov_b64 s[80:81], 0\ns_mov_b64 s[32:33], 0\ns_mov_b64 s[34:35], 0\ns_mov_b32 s84, 0\ns_mov_b64 exec, 0\ns_branch L_pb0")
        A("L_bdr:\ns_cmp_eq_u32 s84, 0\ns_mov_b32 s84, 1\ns_cbranch_scc1 L_pb1\ns_mov_b64 exec, -1")
    A("s_mov_b64 s[80:81], -1")
    if bdefer:
        if bdefer <= 8: lspin("sd", L_CV, bdefer, 10, 11, 1)
        else: lspin("sd", L_FP, 1, 10, 11, 1)
        A("s_setprio 1"); wo_issue(bearly, 16); lda(0); lda(1); A("s_setprio 3"); wo_finish(8)
        stamp(4)
        A(f"s_mov_b32 s7, {spin}\ns_branch L_pa2")
    if atrig: lspin("sa", L_FO + (4 if atrig > 4 else 0), atrig - 4 if atrig > 4 else atrig, 10, 11, 2)
    A(f"s_mov_b32 s7, {spin}\ns_mov_b64 s[32:33], -1\ns_mov_b64 s[34:35], -1")
    A("L_pa:")
    A("s_mov_b64 exec, s[32:33]"); lda(0)
    A("s_mov_b64 exec, s[34:35]"); lda(1)
    A("s_mov_b64 exec, -1")
    A("L_pa2:")
    A("s_waitcnt vmcnt(4)")
    chk_sent(range(40, 56), 23); A("s_mov_b64 s[32:33], vcc")
    A("s_waitcnt vmcnt(0)")
    chk_sent(range(56, 72), 23); A("s_mov_b64 s[34:35], vcc")
    A("s_cbranch_vccz L_pa1\ns_cmp_eq_u64 s[32:33], 0\ns_cbranch_scc1 L_pa0")
    if tsleep: A(f"s_sleep {tsleep}")
    if bhold:
        A("s_mov_b32 s85, s7"); lspin("sy", L_FO + 4 * (bhold - 1), 1, 10, 11, 2); A("s_mov_b32 s7, s85")
    A("s_sub_u32 s7, s7, 1\ns_cbranch_scc0 L_pa")
    for first in (0, 1):
        sec = 1 - first
        A(f"L_pa{first}:")
        mk = sp(32 + 2 * sec)
        A(f"s_cmp_eq_u64 {mk}, 0\ns_cbranch_scc1 L_pb{first}")
        A(f"s_mov_b64 exec, {mk}"); lda(sec); A("s_mov_b64 exec, -1")
        A(f"L_pb{first}:")
        mm(first, False)
        A(f"s_mov_b64 exec, {mk}\ns_cbranch_execz L_pd{first}")
        for _ in range(pd - 1): lda(sec)
        A(f"L_pc{first}:")
        A(f"s_waitcnt vmcnt({4*(pd-1)})")
        chk_sent(range(40 + 16 * sec, 56 + 16 * sec), 23)
        A(f"s_cbranch_vccz L_pd{first}\ns_mov_b64 exec, vcc")
        lda(sec)
        A(f"s_sub_u32 s7, s7, 1\ns_cbranch_scc0 L_pc{first}\ns_waitcnt vmcnt(0)")
        A(f"L_pd{first}:")
        A("s_mov_b64 exec, s[80:81]")
        stamp(6)
        mm(sec, True)
        if first == 0: A("s_branch L_pe")
    A("L_pe:\ns_nop 0")
    A("v_permlane32_swap_b32 v76, v84\nv_add_f32 v76, v76, v84")
    A("v_permlane16_swap_b32 v72, v76\nv_add_f32 v72, v72, v76")
    A(f"ds_write_b32 v21, v72 offset:{L_RED}")
    A("s_waitcnt lgkmcnt(0)")
    if dry: A("s_cbranch_execz L_bnb")
    A("s_barrier")
    A(f"s_cmp_ge_u32 s3, {2 if R == 8 else 1}\ns_cbranch_scc1 L_done")
    A("L_bnb:")
    for w in range(4): A(f"ds_read_b128 {v4(88+4*w)}, v24 offset:{L_RED+256*w}")
    assert R in (4, 8)
    A("s_waitcnt lgkmcnt(2)\nv_pk_add_f32 v[88:89], v[88:89], v[92:93]\nv_pk_add_f32 v[90:91], v[90:91], v[94:95]")
    A("s_waitcnt lgkmcnt(0)\nv_pk_add_f32 v[96:97], v[96:97], v[100:101]\nv_pk_add_f32 v[98:99], v[98:99], v[102:103]")
    A("v_pk_add_f32 v[88:89], v[88:89], v[96:97]\nv_pk_add_f32 v[90:91], v[90:91], v[98:99]")
    if dry: A("s_cbranch_execz L_bdr")
    A(f"global_store_dwordx4 v22, v[88:91], {WS} sc1")
    stamp(7)
    end_wave()
    A("L_tc:")
    A("s_mov_b32 s26, s67")
    srd(8, P_W1, 512 * 3584); srd(12, P_W2, 1792 * 1024)
    A("v_lshrrev_b32 v23, 4, v0\nv_lshlrev_b32 v23, 4, v23")
    A("v_lshrrev_b32 v1, 2, v0\ns_mov_b32 s20, 3584\nv_mul_lo_u32 v1, v1, s20\nv_and_b32 v12, 3, v0\nv_lshl_add_u32 v1, v12, 4, v1")
    A(f"s_mul_i32 s20, s3, {128*3584}\ns_lshl_b32 s21, s26, 6\ns_add_u32 s20, s20, s21")
    A("v_lshlrev_b32 v18, 6, v23\nv_and_b32 v13, 15, v0\nv_lshl_add_u32 v18, v13, 4, v18")
    A("s_lshl_b32 s27, s26, 15\ns_lshl_b32 s21, s3, 8\ns_add_u32 s27, s27, s21")
    A(f"s_lshl_b32 s23, s3, 14\ns_add_u32 s23, s23, {L_WT}")
    if not w1early: dma([f"buffer_load_dwordx4 v1, s[8:11], s20 offen {w1pol} lds\ns_add_u32 s20, s20, {16*3584}" for i in range(8)], 0)
    def w2load():
        A("s_add_u32 s23, s23, 8192")
        dma([f"buffer_load_dwordx4 v18, s[12:15], s27 offen {wpol} lds\ns_add_u32 s27, s27, 4096" for i in range(8)], 0)
    A("v_lshrrev_b32 v12, 4, v0\nv_bfe_u32 v13, v0, 2, 2\nv_and_b32 v14, 3, v0\nv_lshl_add_u32 v14, v14, 3, s23")
    A("v_lshl_add_u32 v1, v12, 9, v14\nv_lshl_add_u32 v1, v13, 6, v1")
    A("v_lshl_add_u32 v19, v12, 10, v14\nv_lshl_add_u32 v19, v13, 8, v19")
    if not w2late: w2load()
    A("v_and_b32 v20, 31, v0\nv_lshlrev_b32 v20, 3, v20\nv_lshrrev_b32 v21, 5, v0\nv_lshl_add_u32 v20, v21, 2, v20")
    A("s_lshl_b32 s20, s3, 8\nv_add_u32 v20, s20, v20")
    A(f"global_load_dword v22, v20, {sp(P_X)}\nglobal_load_dwordx4 v[28:31], v2, {sp(P_X)}")
    A(f"v_lshlrev_b32 v21, 1, v20\nv_add_u32 v21, {WS_MOD}, v21\nv_add_u32 v24, 4096, v21")
    assert not mlate
    poll("pm", lambda: A(f"global_load_dwordx2 v[40:41], v21, {WS} sc1\nglobal_load_dwordx2 v[42:43], v21, {WS} offset:2048 sc1\nglobal_load_dwordx2 v[44:45], v24, {WS} sc1\n" + VL),
         lambda: chk_tags([41, 43, 45, 39], 46), 2 if mlate else 16)
    tally()
    for c in range(4):
        for mt in range(2):
            for hi in range(2):
                A(f"ds_read_b64_tr_b16 {v2(104+8*c+4*mt+2*hi)}, v1 offset:{(32*c+4*hi)*64+mt*32}")
        if c & 1: A("s_waitcnt lgkmcnt(0)")
    unpack(4, [22], 1)
    unpack(48, [28, 29, 30, 31], 4)
    A("v_pk_add_f32 v[48:49], v[48:49], v[50:51]\nv_pk_add_f32 v[52:53], v[52:53], v[54:55]\nv_pk_add_f32 v[48:49], v[48:49], v[52:53]\nv_add_f32 v48, v48, v49")
    wave_reduce("v_add_f32", 48, 49)
    A(f"v_mul_f32 v48, {f2x(1/512)}, v48\nv_sub_f32 v4, v4, v48\nv_sub_f32 v5, v5, v48")
    def w2tr():
        for tau in range(8):
            for hi in range(2):
                A(f"ds_read_b64_tr_b16 {v2(136+4*tau+2*hi)}, v19 offset:{8192+hi*4096+tau*32}")
            if tau % 4 == 3: A("s_waitcnt lgkmcnt(0)")
    if mlate:
        lspin("sv0", L_CV, 4, 10, 11, 16); lspin("sv", L_FP, 1, 10, 11, 2); w2load(); A("s_waitcnt vmcnt(0)"); w2tr(); stamp(4)
    unpack(6, [40, 44], 2)
    A("v_add_f32 v8, 1.0, v8\nv_add_f32 v9, 1.0, v9\nv_cvt_pk_bf16_f32 v44, v8, v9")
    unpack(8, [44], 1)
    A(f"ds_write_b32 v20, v44 offset:{L_U}\nds_write_b32 v20, v42 offset:{L_U+1024}")
    A("v_add_u32 v21, s20, v23\nv_and_b32 v22, 1, v0\nv_lshl_add_u32 v22, v22, 10, v21")
    for c in range(4): A(f"ds_read_b128 {v4(48+4*c)}, v22 offset:{L_U+64*c}")
    A("s_waitcnt lgkmcnt(0)")
    for c in range(4):
        for mt in range(2):
            A(f"v_mfma_f32_16x16x32_bf16 {v4(24+4*mt)}, {v4(104+8*c+4*mt)}, {v4(48+4*c)}, {'0' if c==0 else v4(24+4*mt)}")
    A("s_mov_b32 exec_lo, 0x00030003\ns_mov_b32 exec_hi, 0x00030003")
    A(f"ds_write_b128 v22, v[24:27] offset:{L_GS}\nds_write_b128 v22, v[28:31] offset:{L_GS+64}")
    A("s_mov_b64 exec, 1\nv_mov_b32 v33, 1")
    A(f"ds_add_u32 v10, v33 offset:{L_CP}")
    A("s_mov_b64 exec, -1")
    A("v_and_b32 v1, 31, v0\nv_lshlrev_b32 v1, 4, v1\nv_lshrrev_b32 v16, 5, v0\nv_lshl_add_u32 v1, v16, 11, v1")
    def bcopy():
        A(f"s_bfe_u32 s20, s4, 0x10001\ns_lshl_b32 s20, s20, 16\ns_lshr_b32 s21, s4, 2\ns_lshl_b32 s21, s21, 13\ns_xor_b32 s21, s21, s71\ns_add_u32 s20, s20, s21\ns_add_u32 s20, s20, {WS_B}")
    if pi is None:
        A(("s_lshr_b32 s21, s4, 1" if rx else f"s_and_b32 s21, {'s4' if R == 8 else 's26'}, {R-1}") + f"\ns_lshl_b32 s21, s21, 14\ns_lshl_b32 s20, s3, 9\ns_add_u32 s20, s20, s21\ns_add_u32 s20, s20, {WS_B}\nv_add_u32 v1, s20, v1")
        A("v_add_u32 v12, 4096, v1\nv_add_u32 v13, 8192, v1\nv_add_u32 v14, 12288, v1")
    else:
        bcopy()
        A("s_lshl_b32 s21, s3, 9\ns_add_u32 s20, s20, s21\nv_add_u32 v1, s20, v1\nv_add_u32 v12, 4096, v1\nv_add_u32 v13, 32768, v1\nv_add_u32 v14, 36864, v1")
    A(f"s_lshl_b32 s20, s3, 8\nv_lshl_add_u32 v22, v16, 2, s20")
    A("v_and_b32 v33, 3, v0\nv_lshlrev_b32 v33, 8, v33\nv_bfe_u32 v32, v0, 3, 1\nv_lshl_add_u32 v32, v32, 6, v33\nv_add_u32 v32, v32, v23")
    A(f"s_mov_b32 s22, {f2x(1/512)}\nv_mov_b32 v34, {f2x(1e-5)}")
    lspin("sp", L_CP, 4, 10, 11, 0 if mlate else 4, lambda: A(f"ds_read_b128 v[24:27], v32 offset:{L_GS}\nds_read_b128 v[28:31], v32 offset:{L_GS+1024}"))
    for qp in ("[1,0,3,2]", "[2,3,0,1]"):
        for i in range(8): A(f"v_add_f32_dpp v{24+i}, v{24+i}, v{24+i} quad_perm:{qp} {DPPF}")
    if dry:
        A("s_mov_b64 s[80:81], 0\ns_mov_b64 s[82:83], 0\ns_mov_b64 exec, 0\ns_branch L_pbd\nL_cdr:\ns_mov_b64 exec, -1")
    A("s_mov_b64 s[80:81], -1\ns_mov_b32 s82, 0x00010001\ns_mov_b32 s83, 0x00010001")
    if not mlate:
        stamp(4)
        lspin("sv0", L_CV, 4, 10, 11, 16); lspin("sv", L_FP, 1, 10, 11, 2)
        if w2late: w2load()
    cs = 13 if cpad else 12
    if pi is None: A(f"s_lshl_b32 s20, s3, {cs+3}\ns_lshl_b32 s21, s26, {cs-6}\ns_add_u32 s20, s20, s21\ns_add_u32 s20, s20, {WS_C}")
    else:
        if cpad: A(f"s_and_b32 s20, s3, 1\ns_lshl_b32 s20, s20, 18\ns_lshr_b32 s21, s3, 1\ns_lshl_b32 s21, s21, 13\ns_xor_b32 s21, s21, s75\ns_add_u32 s20, s20, s21\ns_lshl_b32 s21, s26, 7\ns_add_u32 s20, s20, s21\ns_add_u32 s20, s20, {WS_C}")
        else: A(f"s_and_b32 s20, s3, 1\ns_lshl_b32 s20, s20, 17\ns_lshr_b32 s21, s3, 1\ns_lshl_b32 s21, s21, 13\ns_xor_b32 s21, s21, s75\ns_add_u32 s20, s20, s21\ns_lshl_b32 s21, s26, 6\ns_add_u32 s20, s20, s21\ns_add_u32 s20, s20, {WS_C}")
        cs = 15
    if cpad: A(f"v_bfe_u32 v35, v0, 2, 3\nv_lshlrev_b32 v35, {cs}, v35\nv_and_b32 v36, 3, v0\nv_lshl_add_u32 v35, v36, 4, v35\nv_add_u32 v35, s20, v35")
    else: A("v_bfe_u32 v35, v0, 3, 2\nv_lshlrev_b32 v35, 15, v35\nv_bfe_u32 v36, v0, 2, 1\nv_lshl_add_u32 v35, v36, 12, v35\nv_and_b32 v36, 3, v0\nv_lshl_add_u32 v35, v36, 4, v35\nv_add_u32 v35, s20, v35")
    if not mlate: A("s_waitcnt vmcnt(0)"); w2tr()
    stamp(5)
    G = 40; Hh = 88
    def gather4(name, base, addr, tmp, sleep):
        if g4:
            A(f"s_mov_b32 s7, {spin}")
            for i in range(4): A(f"global_load_dwordx4 {v4(base+4*i)}, {addr(i)} sc1\ns_mov_b64 {sp(28+2*i)}, -1")
            A(f"L_{name}t:\ns_waitcnt vmcnt(0)\ns_mov_b32 s21, 0")
            for i in range(4):
                A(f"s_mov_b64 exec, {sp(28+2*i)}\ns_cbranch_execz L_{name}s{i}")
                A(f"v_max3_u32 v{tmp}, v{base+4*i}, v{base+4*i+1}, v{base+4*i+2}\nv_max_u32 v{tmp}, v{tmp}, v{base+4*i+3}\nv_cmp_eq_u32 vcc, -1, v{tmp}")
                A(f"s_mov_b64 {sp(28+2*i)}, vcc\ns_cbranch_vccz L_{name}s{i}\ns_mov_b64 exec, vcc\nglobal_load_dwordx4 {v4(base+4*i)}, {addr(i)} sc1\ns_mov_b32 s21, 1")
                A(f"L_{name}s{i}:")
            A(f"s_mov_b64 exec, -1\ns_cmp_eq_u32 s21, 0\ns_cbranch_scc1 L_{name}d\ns_sub_u32 s7, s7, 1\ns_cbranch_scc0 L_{name}t\ns_waitcnt vmcnt(0)")
            A(f"L_{name}d:")
            return
        A(f"s_mov_b32 s7, {spin}")
        for _ in range(pd):
            for i in range(4): A(f"global_load_dwordx4 {v4(base+4*i)}, {addr(i)} sc1")
        A(f"L_{name}t:")
        A(f"s_waitcnt vmcnt({4*(pd-1)})")
        for i in range(4): A(f"v_max3_u32 v{tmp+i}, v{base+4*i}, v{base+4*i+1}, v{base+4*i+2}")
        for i in range(4): A(f"v_max_u32 v{tmp+i}, v{tmp+i}, v{base+4*i+3}")
        A(f"v_max3_u32 v{tmp+4}, v{tmp}, v{tmp+1}, v{tmp+2}\nv_max_u32 v{tmp+4}, v{tmp+4}, v{tmp+3}\nv_cmp_eq_u32 vcc, -1, v{tmp+4}\ns_cbranch_vccz L_{name}d")
        for i in range(4): A(f"v_cmp_eq_u32 {sp(28+2*i)}, -1, v{tmp+i}")
        if sleep: A(f"s_sleep {sleep}")
        for i in range(4):
            A(f"s_or_b64 exec, {sp(28+2*i)}, 1\nglobal_load_dwordx4 {v4(base+4*i)}, {addr(i)} sc1")
        A(f"s_mov_b64 exec, -1\ns_sub_u32 s7, s7, 1\ns_cbranch_scc0 L_{name}t")
        A(f"L_{name}d:")
    gather4("pb", Hh, lambda i: f"v{1 if i==0 else 11+i}, {WS}", 56, csleep)
    stamp(6)
    A(f"v_pk_add_f32 {v2(G)}, {v2(Hh)}, {v2(Hh+4)}\nv_pk_add_f32 {v2(G+2)}, {v2(Hh+2)}, {v2(Hh+6)}\nv_pk_add_f32 {v2(G+8)}, {v2(Hh+8)}, {v2(Hh+12)}\nv_pk_add_f32 {v2(G+10)}, {v2(Hh+10)}, {v2(Hh+14)}")
    A(f"v_pk_add_f32 {v2(G)}, {v2(G)}, {v2(G+8)}\nv_pk_add_f32 {v2(G+2)}, {v2(G+2)}, {v2(G+10)}")
    A(f"v_permlane32_swap_b32 v{G}, v{G+2}\nv_permlane32_swap_b32 v{G+1}, v{G+3}")
    A(f"v_pk_add_f32 {v2(G)}, {v2(G)}, {v2(G+2)}")
    A(f"v_pk_fma_f32 v[4:5], {v2(G)}, v[6:7], v[4:5]")
    A("v_pk_mul_f32 v[6:7], v[4:5], v[8:9]\nv_cvt_pk_bf16_f32 v6, v6, v7")
    A(f"ds_write_b32 v20, v6 offset:{L_U}")
    for c in range(4): A(f"ds_read_b128 {v4(44+4*c)}, v21 offset:{L_U+64*c}")
    A("v_add_f32 v16, v4, v5\nv_mul_f32 v17, v4, v4\nv_fmac_f32 v17, v5, v5")
    A("v_permlane32_swap_b32 v16, v17\nv_add_f32 v16, v16, v17")
    xrow("v_add_f32", 16, 17, 16)
    steps = ["row_ror:8", "row_ror:4", "row_ror:2", "row_ror:1"]
    for c in range(4):
        A(f"s_waitcnt lgkmcnt({3-c})")
        for mt in range(2):
            A(f"v_mfma_f32_16x16x32_bf16 {v4(60+4*mt)}, {v4(104+8*c+4*mt)}, {v4(44+4*c)}, {'0' if c==0 else v4(60+4*mt)}")
        inrow("v_add_f32", 16, [steps[c]])
    A("s_mov_b64 exec, s[82:83]")
    A(f"ds_write_b32 v22, v16 offset:{L_RED+128}")
    A(f"ds_write_b128 v21, v[60:63] offset:{L_RED}\nds_write_b128 v21, v[64:67] offset:{L_RED+64}")
    A("s_mov_b64 exec, s[80:81]")
    A("s_waitcnt lgkmcnt(0)")
    if dry: A("s_cbranch_execz L_cnb")
    A("s_barrier\nL_cnb:")
    A(f"ds_read_b64 v[12:13], v33 offset:{L_RED+128}\nds_read_b128 v[40:43], v32 offset:{L_RED}")
    A("s_waitcnt lgkmcnt(0)")
    for qp in ("[1,0,3,2]", "[2,3,0,1]"):
        for r in (12, 13, 40, 41, 42, 43): A(f"v_add_f32_dpp v{r}, v{r}, v{r} quad_perm:{qp} {DPPF}")
    A("v_mul_f32 v12, s22, v12\nv_fma_f32 v14, v13, s22, v34\nv_fma_f32 v14, -v12, v12, v14\nv_max_f32 v14, v14, v34\nv_rsq_f32 v14, v14")
    for q in range(2): A(f"v_pk_fma_f32 {v2(40+2*q)}, {v2(24+2*q)}, v[12:13], {v2(40+2*q)} op_sel_hi:[1,0,1] neg_lo:[0,1,0] neg_hi:[0,1,0]")
    for q in range(2): A(f"v_pk_fma_f32 {v2(40+2*q)}, {v2(40+2*q)}, v[14:15], {v2(28+2*q)} op_sel_hi:[1,0,1]")
    for q in range(2): A(f"v_cvt_pk_bf16_f32 v{48+q}, v{40+2*q}, v{41+2*q}")
    for q in range(2): A(f"v_pk_max_i16 v{48+q}, v{48+q}, 0")
    for q in range(2): A(f"v_mov_b32_dpp v{50+q}, v{48+q} row_shl:8 {DPPF} bound_ctrl:0")
    for tau in (0, 2, 4, 6, 1, 3, 5, 7): A(f"v_mfma_f32_16x16x32_bf16 {v4(56+4*tau)}, v[48:51], {v4(136+4*tau)}, 0")
    for j in (1, 2, 3): A(f"v_mov_b32 v{56+j}, v{56+8*j}")
    for j in range(4): A(f"v_mov_b32_dpp v{56+j}, v{60+8*j} quad_perm:[0,1,2,3] row_mask:0x2 bank_mask:0xf")
    if dry: A("s_cbranch_execz L_cdr")
    A("s_mov_b32 exec_hi, 0")
    A(f"global_store_dwordx4 v35, v[56:59], {WS} sc1")
    stamp(7)
    end_wave()
    A("L_tf:")
    prb("cs")
    A("s_mov_b32 s26, s67\ns_lshr_b32 s20, s26, 3\ns_lshl_b32 s20, s20, 7\ns_and_b32 s21, s26, 7\ns_lshl_b32 s21, s21, 2\ns_add_u32 s20, s20, s21")
    A("v_and_b32 v4, 3, v0\nv_lshrrev_b32 v5, 4, v0\nv_lshl_add_u32 v4, v5, 5, v4\nv_add_u32 v4, s20, v4\nv_lshlrev_b32 v5, 1, v4")
    A(f"global_load_ushort v8, v5, {sp(P_X)}")
    if tw: A(f"global_load_ushort v33, v5, {sp(P_OUT)}")
    A(f"v_lshrrev_b32 v6, 1, v4\nv_lshlrev_b32 v6, 3, v6\nv_add_u32 v6, {WS_MOD}, v6\nv_add_u32 v7, 6144, v6")
    if mlate: lspin("sf0", L_FP, 1, 10, 11, 16)
    poll("pg", lambda: A(f"global_load_dwordx2 v[12:13], v6, {WS} sc1\nglobal_load_dwordx2 v[14:15], v7, {WS} sc1\n" + VL),
         lambda: chk_tags([13, 15, 39], 16), 4 if mlate else 16)
    tally()
    A("v_lshlrev_b32 v8, 16, v8")
    A("v_and_b32 v16, 1, v4\nv_cmp_eq_u32 vcc, 0, v16")
    A("v_lshlrev_b32 v16, 16, v12\nv_and_b32 v17, 0xffff0000, v12\nv_cndmask_b32 v9, v17, v16, vcc")
    A("v_lshlrev_b32 v16, 16, v14\nv_and_b32 v17, 0xffff0000, v14\nv_cndmask_b32 v12, v17, v16, vcc")
    if pi is None:
        A(f"v_bfe_u32 v6, v0, 2, 2\nv_lshlrev_b32 v6, 12, v6\nv_lshl_add_u32 v6, v4, 2, v6\nv_add_u32 v6, {WS_B}, v6")
        if R == 8: A("s_lshl_b32 s20, s4, 14\nv_add_u32 v6, s20, v6")
        if rx: A("s_lshr_b32 s20, s4, 1\ns_lshl_b32 s20, s20, 14\nv_add_u32 v6, s20, v6")
        if cpad: A(f"s_lshl_b32 s20, s26, 13\ns_add_u32 s20, s20, {WS_C}\nv_lshrrev_b32 v7, 2, v0\nv_lshl_add_u32 v7, v7, 6, v2\nv_add_u32 v7, s20, v7\nv_add_u32 v32, 4096, v7")
        else: A(f"s_lshl_b32 s20, s26, 12\ns_add_u32 s20, s20, {WS_C}\nv_add_u32 v7, s20, v2")
    else:
        bcopy()
        A("v_bfe_u32 v6, v0, 2, 1\nv_lshlrev_b32 v6, 12, v6\nv_bfe_u32 v7, v0, 3, 1\nv_lshl_add_u32 v6, v7, 15, v6\nv_lshl_add_u32 v6, v4, 2, v6\nv_add_u32 v6, s20, v6")
        if cpad: A(f"s_and_b32 s20, s26, 15\ns_lshl_b32 s20, s20, 15\ns_lshr_b32 s21, s26, 4\ns_lshl_b32 s21, s21, 13\ns_xor_b32 s21, s21, s75\ns_add_u32 s20, s20, s21\ns_add_u32 s20, s20, {WS_C}\nv_lshrrev_b32 v7, 2, v0\nv_lshl_add_u32 v7, v7, 6, v2\nv_add_u32 v7, s20, v7\nv_add_u32 v32, 4096, v7")
        else: A(f"s_bfe_u32 s20, s26, 0x30001\ns_lshl_b32 s20, s20, 15\ns_and_b32 s21, s26, 1\ns_lshl_b32 s21, s21, 12\ns_add_u32 s20, s20, s21\ns_lshr_b32 s21, s26, 4\ns_lshl_b32 s21, s21, 13\ns_xor_b32 s21, s21, s75\ns_add_u32 s20, s20, s21\ns_add_u32 s20, s20, {WS_C}\nv_add_u32 v7, s20, v2")
    if dry: A("s_mov_b64 exec, 0\ns_branch L_fd\nL_fdr:\ns_mov_b64 exec, -1")
    lspin("sf", L_FP, 1, 10, 11, 16 if calm else 4)
    prb("fp")
    poll("pxb", lambda: A(f"global_load_dword v13, v6, {WS} sc1\nglobal_load_dword v14, v6, {WS} offset:2048 sc1"), lambda: chk_sent([13, 14], 15), xsleep)
    A("v_add_f32 v13, v13, v14")
    inrow("v_add_f32", 13, ["row_ror:8", "row_ror:4"])
    A("v_fma_f32 v8, v9, v13, v8")
    prb("b")
    stamp(6)
    if fdelay: A(f"s_sleep {fdelay}")
    gather4("pc", 40, lambda i: f"v{(7 if i<2 else 32) if cpad else 7}, {WS} offset:{2048*(i&1) if cpad else 1024*i}", 56, fsleep)
    A("L_fd:")
    stamp(7)
    A("v_pk_add_f32 v[16:17], v[40:41], v[44:45]\nv_pk_add_f32 v[18:19], v[42:43], v[46:47]\nv_pk_add_f32 v[24:25], v[48:49], v[52:53]\nv_pk_add_f32 v[26:27], v[50:51], v[54:55]")
    A("v_pk_add_f32 v[16:17], v[16:17], v[24:25]\nv_pk_add_f32 v[18:19], v[18:19], v[26:27]")
    A("v_permlane32_swap_b32 v16, v18\nv_permlane32_swap_b32 v17, v19\nv_pk_add_f32 v[16:17], v[16:17], v[18:19]")
    A("v_permlane16_swap_b32 v16, v17\nv_add_f32 v16, v16, v17")
    inrow("v_add_f32", 16, ["row_ror:8", "row_ror:4"])
    A("v_fma_f32 v16, v12, v16, v8\nv_cvt_pk_bf16_f32 v16, v16, v16")
    if dry: A("s_cbranch_execz L_fdr")
    A("s_mov_b32 exec_lo, 0x000f000f\ns_mov_b32 exec_hi, 0x000f000f")
    A(f"global_store_short v5, v16, {sp(P_OUT)}")
    A("s_cmp_lg_u32 s26, 0\ns_cbranch_scc1 L_tfe")
    if dbgp:
        A(f"s_mov_b64 exec, 1\nv_mov_b32 v20, s{P_WS}\nv_mov_b32 v21, s{P_WS+1}\nv_mov_b32 v22, s71\nv_mov_b32 v23, s{P_K}\nglobal_store_dwordx4 v10, v[20:23], {sp(P_DBG)}")
    A("s_mov_b64 exec, 1\nv_mov_b32 v18, s6")
    A(f"global_store_dword v10, v18, {WS}")
    if amp:
        A(f"s_memrealtime s[96:97]\ns_waitcnt lgkmcnt(0)\ns_sub_u32 s94, s96, s94\ns_lshl_b32 s94, s94, {amp}\nL_fy:\ns_memrealtime s[98:99]\ns_waitcnt lgkmcnt(0)\ns_sub_u32 s98, s98, s96\ns_cmp_lt_u32 s98, s94\ns_cbranch_scc1 L_fy")
    if fixend:
        prb("end")
        A(f"L_fx:\ns_memrealtime s[98:99]\ns_waitcnt lgkmcnt(0)\ns_sub_u32 s98, s98, {'s94' if probe else 's96'}\ns_cmp_lt_u32 s98, {fixend}\ns_cbranch_scc1 L_fx")
    A("L_tfe:")
    stamp(4)
    end_wave()
    if stamps:
        A("L_stampout:")
        if st0: A("s_waitcnt lgkmcnt(0)\nv_writelane_b32 v3, s90, 0\ns_cmp_lt_u32 s3, 4\ns_cbranch_scc1 L_so9\nv_writelane_b32 v3, s92, 1\nv_writelane_b32 v3, s94, 2\nL_so9:")
        if stamps == 2:
            A("s_cmp_lg_u32 s2, 32\ns_cbranch_scc1 L_exit\ns_and_b32 s20, s3, 11\ns_cbranch_scc1 L_exit")
            A("s_mov_b64 exec, 0xff\ns_lshl_b32 s20, s3, 3\nv_lshl_add_u32 v1, v0, 2, s20")
            A(f"global_store_dword v1, v3, {sp(P_DBG)}\ns_endpgm")
        A("s_mov_b64 exec, 0xff")
        A("s_mul_i32 s20, s2, 12\ns_add_u32 s20, s20, s3\ns_lshl_b32 s20, s20, 5")
        A(f"s_add_u32 s20, s20, {WS_STAMP}")
        A("v_lshl_add_u32 v1, v0, 2, s20")
        A(f"global_store_dword v1, v3, {WS}")
    A("L_exit:\ns_endpgm")
    A(".p2align 6\n.type L_tab,@object\nL_tab:")
    for wg in range(256):
        r = roles[(xp[wg & 7] if xp else wg & 7), wg >> 3]; skip = T - r['n']
        assert skip < 8, (wg, r)
        A(f".long {(r['pre'] - skip + 16) | skip << 12 | r['e'] << 15 | r['ei'] << 18 | r['l'] << 23 | r['li'] << 25:#x}")
    A("L_endcode:")
    A('.section .rodata,"a"\n.p2align 6')
    A(f".amdhsa_kernel {NAME}")
    for l in ["next_free_vgpr 168", "next_free_sgpr 102", "accum_offset 168", "group_segment_fixed_size 0", "kernarg_size 104",
              "user_sgpr_count 2", "user_sgpr_kernarg_segment_ptr 1", "system_sgpr_workgroup_id_x 1"]:
        A("  .amdhsa_" + l)
    A(".end_amdhsa_kernel")
    return A.finish()

if __name__ == "__main__":
    out = sys.argv[1]; kw = {}
    for a in sys.argv[2:]:
        k, v = a.split("=", 1)
        try: v = ast.literal_eval(v)
        except Exception: pass
        kw[k] = v
    open(out, "w").write(gen(**kw))
    import json
    roles, T = make_plan(kw.get('plan', 'A'), **{k: v for k, v in kw.items() if k in ('cH','cQ','cM','cB','cC','T','c3','Fx','adj')})
    json.dump([[roles[wg & 7, wg >> 3][k] for k in ('e', 'l', 'n')] for wg in range(256)], open(out + ".roles", "w"))
```

```python
import sys, struct, ast
from asmlib import Asm
NAME = "adaLN_cond__gqa_block_cached__dense_activation_relu__decode_kernel"
def f2x(f): return "0x%08x" % struct.unpack("<I", struct.pack("<f", f))[0]

WS_P = 0x180000; WS_PV = 0x15000; WS_XB = 0x14000; WS_QL = 0x10000; WS_H = 0x18000; WS_MOD = 0x4000; WS_Q = 0x8000; WS_ST = 0xC000
WS_AL = 0x140000; WS_A = 0x100000; WS_B = 0x40000; WS_C = 0x80000
WS_STAMP = 0x8000000
L_CG = 0; L_FQ = 4; L_CS = 8; L_CT = 68; L_CP = 16; L_FK = 20; L_CV = 24; L_CW = 28; L_FO = 32; L_MK = 64; L_FP = 12
L_ST = 256; L_Q = 1024; L_GP = 2048; L_X = 3072; L_RED = 4096; L_U = 5120; L_GS = 8192
L_OP = 16384; L_WT = 32768; LDS_SIZE = 98304
DPPF = "row_mask:0xf bank_mask:0xf"
P_X, P_K, P_V, P_WQ, P_WO, P_BX, P_W1, P_W2, P_C, P_WM, P_OUT, P_DBG, P_WS = [36 + 2 * i for i in range(13)]
def sp(n): return f"s[{n}:{n+1}]"
def v4(n): return f"v[{n}:{n+3}]"
def v2(n): return f"v[{n}:{n+1}]"
WS = sp(P_WS)

DOC = '''; ---------------------------------------------------------------------------------------------
; One persistent launch, 256 workgroups (one per CU) x 12 waves.  x = wg&7 = kv head, a = wg>>3 = key split.
;     max, V tiles -> v_perm transpose -> MFMA, workgroup partial summed through LDS and published.
;     H: sa/ca slice of silu(c)@w_mod   Q: LN(x)*(1+ca)+sa, q slice   M: ga/sb/cb/gb slice
;     B: split combine (global softmax weights) + wo slice            C: residual, LN, FFN slice
;        vote) so that the two cross-die hand-off buffers sit next to their readers; affects placement only
; ---------------------------------------------------------------------------------------------'''
E_H, E_Q, E_M, E_B, E_P = 1, 2, 3, 4, 5
R_B, R_C, R_F = 1, 2, 3
def make_plan(plan, **pk):
    P = dict(PLANS[plan]); P.update(pk)
    roles = {(x, a): dict(e=0, ei=0, l=0, li=0) for x in range(8) for a in range(32)}
    hi = mi = ci = fi = 0
    for x in range(8):
        a = 0
        for _ in range(P['H'][x]): roles[x, a].update(e=E_H, ei=hi); hi += 1; a += 1
        for c in range(8):
            roles[x, a].update(e=E_Q, ei=c)
            if (x & 1 == P['Fx'] if 'Fx' in P else c in (0, 1, 4, 5)): roles[x, a].update(l=R_F, li=fi); fi += 1
            a += 1
        for c in range(8): roles[x, a].update(e=E_B, ei=c, l=R_B, li=c); a += 1
        for _ in range(P['M'][x]): roles[x, a].update(e=E_M, ei=mi); mi += 1; a += 1
        assert a <= 32
        cand = [b for b in range(31, -1, -1) if roles[x, b]['e'] == 0] + [b for b in range(32) if roles[x, b]['e'] == E_H] + [b for b in range(32) if roles[x, b]['e'] == E_M]
        for b in cand[:P['C'][x]]: roles[x, b].update(l=R_C, li=ci); ci += 1
    assert (hi, mi, ci, fi) == (32, 32, 56, 32), (hi, mi, ci, fi)
    free = [k for k in sorted(roles) if roles[k]['e'] == 0 and roles[k]['l'] == 0]
    assert len(free) >= 8
    for i, k in enumerate(free[:: len(free) // 8][:8]): roles[k].update(e=E_P, ei=i)
    for x in range(8):
        cost = []
        for a in range(32):
            r = roles[x, a]
            c = {0: 0, E_P: 0, E_H: P['cH'], E_Q: P['cQ'], E_M: P['cM'], E_B: P['cB']}[r['e']]
            cb = r['ei'] if r['e'] in (E_Q, E_B) else (r['ei'] >> 2)
            if r['e'] in P['c3'] and cb == 3: c += P['c3'][r['e']]
            if r['l'] == R_C: c += P['cC']
            cost.append(c)
        n = [max(28, P['T'] - 7)] * 32
        for _ in range(1024 - sum(n)):
            b = min((a for a in range(32) if n[a] < P['T']), key=lambda a: (n[a] + cost[a], -a))
            n[b] += 1
        if P.get('adj') and x & 1:
            give = 0
            for a in range(32):
                r = roles[x, a]
                if r['e'] == E_B and (r['ei'] == 3 or r['ei'] >= 8 - P['adj'] + 1): n[a] -= 1; give += 1
            for a in range(32):
                r = roles[x, a]
                if give and r['l'] == R_C and (r['li'] >> 1) % 4 != 3: n[a] += 1; give -= 1
            assert give == 0
        pre = 0
        for a in range(32):
            roles[x, a].update(n=n[a], pre=pre); pre += n[a] - 28
    T = max(r['n'] for r in roles.values()); T += T & 1
    return roles, T
base = dict(cH=2.0, cQ=3.6, cM=4.2, cB=3.6, cC=4.0, c3={E_H: 0.5, E_Q: 1.7, E_M: 1.5, E_B: 1.0}, T=34)
base2 = dict(cH=1.6, cQ=4.0, cM=4.5, cB=3.4, cC=5.3, c3={E_H: 0.7, E_Q: 2.3, E_M: 1.8, E_B: 2.4}, T=36)
PLANS = {
 'A': dict(base, H=[4]*8, M=[4]*8, C=[7]*8),
 'B': dict(base, H=[8,0,8,0,8,0,8,0], M=[8,0,8,0,8,0,8,0], C=[14,0,14,0,14,0,14,0]),
 'C': dict(base, H=[8,0,8,0,8,0,8,0], M=[8,0,8,0,8,0,8,0], C=[7]*8),
 'D': dict(base, H=[8,8,8,8,0,0,0,0], M=[8,0,8,0,8,0,8,0], C=[14,0,14,0,14,0,14,0]),
 'E': dict(base, H=[8,8,8,8,0,0,0,0], M=[8,0,8,0,8,0,8,0], C=[8,6,8,6,8,6,8,6]),
 'G': dict(base2, H=[8,0,8,0,8,0,8,0], M=[8,0,8,0,8,0,8,0], C=[7]*8),
 'H': dict(base2, H=[8,0,8,0,8,0,8,0], M=[8,0,8,0,8,0,8,0], C=[8,8,8,12,8,2,8,2]),
 'I': dict(base2, H=[8,0,8,8,4,0,4,0], M=[8,0,8,0,8,0,8,0], C=[8,8,8,8,8,4,8,4]),
 'J': dict(base2, H=[8,0,8,0,8,0,8,0], M=[8,0,8,0,8,0,8,0], C=[0,14,0,14,0,14,0,14]),
 'K': dict(base2, H=[8,0,8,0,8,0,8,0], M=[8,0,8,0,8,0,8,0], C=[4,10,4,10,4,10,4,10]),
 'L': dict(base2, H=[8,0,8,0,8,0,8,0], M=[8,0,8,0,8,0,8,0], C=[8,6,8,6,8,6,8,6]),
 'N': dict(base2, H=[8,0,8,0,8,0,8,0], M=[2,6,2,6,2,6,2,6], C=[14,0,14,0,14,0,14,0]),
 'O': dict(base2, H=[0,8,0,8,0,8,0,8], M=[2,6,2,6,2,6,2,6], C=[14,0,14,0,14,0,14,0]),
 'P': dict(base2, H=[4,4,4,4,4,4,4,4], M=[2,6,2,6,2,6,2,6], C=[14,0,14,0,14,0,14,0]),
 'S': dict(base2, H=[1,0,1,0,15,0,15,0], M=[15,0,15,0,1,0,1,0], C=[0,16,0,16,0,12,0,12]),
 'U': dict(base2, H=[4,0,4,0,12,0,12,0], M=[12,0,12,0,4,0,4,0], C=[0,16,0,16,0,12,0,12]),
 'F': dict(base, H=[8,4,8,4,4,0,4,0], M=[8,0,8,0,8,0,8,0], C=[10,4,10,4,10,4,10,4]),
}

def gen(win=5, win2=6, wpol="nt", stamps=0, spin=8000000, hsleep=4, qsleep=8, tsleep=1, pace=4, cpre=1, kprio=0, skipw=0, vmid=4, nopoll='', qtrig=22, R=4, cdefer=1, csleep=2, nH=33, nX=31, nL=34, loc=1, lpol='sc1', w1pol='nt', nocomp=0, nosvc=0, sprio=3, nopre=0, nocw=0, lmul=1, xit='', qloc=1, strig=1, qtrig2=38, kpol='nt', vpol='nt', slowfb=0, fixend=0, plan='A', hfirst=1, cpad=1, w2late=1, fsleep=1, dry=0, yprio=0, burst=0, bwin=8, osc='', use2=1, p2=0, amp=0, dbgp=0, pi=None, pn=8, pclip=2000, xn=0, xmask=0x55, mim=1, mrg=1, fprio=0, rprio=3, rsl=0, b0at=0, mlate=0, xp=None, lin=1, atrig=0, pre=0, g4=0, alt1=0, alt2=0, tw=0, probe='', det=1, rx=0, fl=0, w1early=1, nohp=0, ws1=0, ws2=0, bp=0, calm=0, ltab=1, st0=0, bhold=0, xl=1, bearly=0, pd=1, fdelay=0, xsleep=4, bdefer=0, hwait=0, **pk):
    A = Asm()
    roles, T = make_plan(plan, **pk)
    hdr = open("cdna_kernels/" + NAME[:-7] + ".s.ref").read().split("; Override")[0]
    A(hdr.rstrip())
    A(f"; @launch grid=(256,1,1) block=(768,1,1) lds={LDS_SIZE}")
    A(DOC)
    A('.amdgcn_target "amdgcn-amd-amdhsa--gfx950"')
    A(f".text\n.globl {NAME}\n.p2align 8\n.type {NAME},@function\n{NAME}:")
    def stamp(k):
        if stamps:
            A("s_memrealtime s[62:63]\ns_waitcnt lgkmcnt(0)")
            A(f"v_writelane_b32 v3, s62, {k}")
    def prb(name):
        if probe == name: A("s_memrealtime s[94:95]\ns_waitcnt lgkmcnt(0)")
    def end_wave():
        if stamps:
            A("s_branch L_stampout")
        else:
            A("s_endpgm")
    def srd(d, p, size):
        A(f"s_mov_b32 s{d}, s{p}\ns_mov_b32 s{d+1}, s{p+1}\ns_mov_b32 s{d+2}, {size}\ns_mov_b32 s{d+3}, 0x20000")
    def poll(name, loads, check, sleep):
        if name in nopoll.split('+'): return
        top = A.label(name); done = A.label(name + "d")
        A(f"s_mov_b32 s7, {spin * 4 // (4 + sleep)}")
        A(f"{top}:")
        loads()
        A("s_waitcnt vmcnt(0)")
        check()
        A(f"s_cbranch_vccz {done}")
        A("s_mov_b64 exec, vcc")
        if sleep: A(f"s_sleep {sleep}")
        A("s_sub_u32 s7, s7, 1")
        A(f"s_cbranch_scc0 {top}")
        A(f"{done}:")
        A("s_mov_b64 exec, -1")
    def lspin(name, off, n, vz, vt, sleep=1, extra=None):
        top = A.label(name); done = A.label(name + "d")
        A(f"s_mov_b32 s7, {spin * 4 // (2 + sleep)}")
        A(f"{top}:")
        A(f"ds_read_b32 v{vt}, v{vz} offset:{off}")
        if extra: extra()
        A("s_waitcnt lgkmcnt(0)")
        A(f"v_cmp_gt_u32 vcc, {n}, v{vt}")
        A(f"s_cbranch_vccz {done}")
        if lmul > 1: sleep = min(127, max(sleep, 1) * lmul)
        if sleep: A(f"s_sleep {sleep}")
        A("s_sub_u32 s7, s7, 1")
        A(f"s_cbranch_scc0 {top}")
        A(f"{done}:")
    def chk_tags(regs, tmp):
        A(f"v_xor_b32 v{tmp}, s6, v{regs[0]}")
        for r in regs[1:]:
            A(f"v_xor_b32 v{tmp+1}, s6, v{r}")
            A(f"v_or_b32 v{tmp}, v{tmp}, v{tmp+1}")
        A(f"v_cmp_ne_u32 vcc, 0, v{tmp}")
    def chk_sent(regs, tmp):
        regs = list(regs)
        if len(regs) == 1:
            A(f"v_cmp_eq_u32 vcc, -1, v{regs[0]}"); return
        if len(regs) == 2:
            A(f"v_max_u32 v{tmp}, v{regs[0]}, v{regs[1]}"); rest = []
        else:
            A(f"v_max3_u32 v{tmp}, v{regs[0]}, v{regs[1]}, v{regs[2]}"); rest = regs[3:]
        while rest:
            if len(rest) == 1:
                A(f"v_max_u32 v{tmp}, v{tmp}, v{rest[0]}"); rest = []
            else:
                A(f"v_max3_u32 v{tmp}, v{tmp}, v{rest[0]}, v{rest[1]}"); rest = rest[2:]
        A(f"v_cmp_eq_u32 vcc, -1, v{tmp}")
    def xrow(op, v, tmp, which):
        A(f"v_mov_b32 v{tmp}, v{v}")
        A(f"v_permlane{which}_swap_b32 v{v}, v{tmp}")
        A(f"{op} v{v}, v{v}, v{tmp}")
    def inrow(op, v, steps):
        for s in steps:
            A(f"{op}_dpp v{v}, v{v}, v{v} {s} {DPPF}")
    def wave_reduce(op, v, tmp):
        inrow(op, v, ["row_ror:8", "row_ror:4", "row_ror:2", "row_ror:1"])
        xrow(op, v, tmp, 16); xrow(op, v, tmp, 32)
    def unpack(dst, src, n):
        for i in range(n):
            A(f"v_lshlrev_b32 v{dst+2*i}, 16, v{src[i]}")
            A(f"v_and_b32 v{dst+2*i+1}, 0xffff0000, v{src[i]}")
    def rnd(a, b=None):
        if b is None: A(f"v_cvt_pk_bf16_f32 v{a}, v{a}, v{a}\nv_lshlrev_b32 v{a}, 16, v{a}")
        else: A(f"v_cvt_pk_bf16_f32 v{b}, v{a}, v{b}\nv_lshlrev_b32 v{a}, 16, v{b}\nv_and_b32 v{b}, 0xffff0000, v{b}")
    def silu(x, t, n):
        A(f"s_mov_b32 s21, {f2x(-1.4426950408889634)}")
        for i in range(n): A(f"v_mul_f32 v{t+i}, s21, v{x+i}")
        for i in range(n): A(f"v_exp_f32 v{t+i}, v{t+i}")
        for i in range(n): A(f"v_add_f32 v{t+i}, 1.0, v{t+i}")
        for i in range(n): A(f"v_rcp_f32 v{t+i}, v{t+i}")
        for i in range(n): A(f"v_mul_f32 v{x+i}, v{x+i}, v{t+i}")
    def gemv_perm(W, T, npair):
        for u in range(npair):
            for w in range(4):
                a = W + 8 * u + w; b = W + 8 * u + 4 + w
                A(f"v_perm_b32 v{T+8*u+2*w}, v{b}, v{a}, s24")
                A(f"v_perm_b32 v{T+8*u+2*w+1}, v{b}, v{a}, s25")
    def gemv_dot(T, X, acc):
        for u in range(len(X)):
            for e in range(8):
                c = "0" if u == 0 else f"v{acc+e}"
                A(f"v_dot2_f32_bf16 v{acc+e}, v{T+8*u+e}, v{X[u]}, {c}")
    def mktag():
        A("s_waitcnt lgkmcnt(0)\ns_mul_i32 s6, s6, 0x9E3779B1\ns_add_u32 s6, s6, 0x7F4A7C15")
    def paced(loads, w):
        if skipw and (w or skipw > 1): return
        for i, l in enumerate(loads):
            if w and i >= w: A(f"s_waitcnt vmcnt({w-1})")
            A(l)

    if st0: A("s_memrealtime s[90:91]")
    if probe == "start": A("s_memrealtime s[94:95]")
    A("s_cmp_ge_u32 s2, 256\ns_cbranch_scc1 L_exit")
    A("s_load_dwordx16 s[36:51], s[0:1], 0")
    rest_ld = "s_load_dwordx8 s[52:59], s[0:1], 64\ns_load_dwordx2 s[60:61], s[0:1], 96\ns_load_dword s68, s[32:33], s34"
    A("s_getpc_b64 s[30:31]\nL_pc:\ns_add_u32 s32, s30, L_tab-L_pc\ns_addc_u32 s33, s31, 0\ns_lshl_b32 s34, s2, 2")
    if not ltab: A(rest_ld)
    A("v_lshrrev_b32 v1, 6, v0\nv_and_b32 v0, 63, v0\nv_readfirstlane_b32 s3, v1")
    A("s_and_b32 s4, s2, 7\ns_lshr_b32 s5, s2, 3")
    if xp: A(f"s_lshl_b32 s4, s4, 2\ns_lshr_b32 s4, {sum(h << (4*i) for i, h in enumerate(xp)):#x}, s4\ns_and_b32 s4, s4, 7")
    if fixend: A("s_memrealtime s[96:97]")
    A("s_mov_b32 s24, 0x05040100\ns_mov_b32 s25, 0x07060302")
    A("v_lshlrev_b32 v2, 4, v0")
    if stamps:
        A("v_mov_b32 v3, 0")
        if not st0: stamp(0)
    A("s_cmp_lt_u32 s3, 4\ns_cbranch_scc1 L_service")
    STREAM_MARK = len(A.lines)
    A("L_service:")
    if ltab: A(rest_ld)
    A(f"s_setprio {sprio}")
    if cpre:
        A(f"s_lshl_b32 s20, s5, 2\ns_add_u32 s20, s20, s3\ns_sub_u32 s20, s20, 96\ns_cmp_ge_u32 s20, (L_endcode-{NAME})/1024\ns_cbranch_scc1 L_ncp")
        A(f"s_sub_u32 s30, s30, L_pc-{NAME}\ns_subb_u32 s31, s31, 0")
        A("s_lshl_b32 s20, s20, 10\nv_add_u32 v14, s20, v2")
        A("global_load_dwordx4 v[164:167], v14, s[30:31]")
        A("L_ncp:")
    A("v_lshrrev_b32 v12, 3, v0\nv_and_b32 v13, 7, v0\nv_mov_b32 v16, 0\nv_mov_b32 v17, 0\nv_mov_b32 v18, 0\nv_mov_b32 v19, 0")
    A("s_mov_b64 exec, 0x1f\nds_write_b128 v2, v[16:19]\ns_mov_b64 exec, -1")
    A("s_waitcnt lgkmcnt(0)")
    A("s_bfe_u32 s64, s68, 0x3000f\ns_bfe_u32 s65, s68, 0x50012\ns_bfe_u32 s66, s68, 0x20017\ns_bfe_u32 s67, s68, 0x60019")
    A("s_lshr_b32 s69, s65, 2\ns_and_b32 s70, s65, 3")
    A(f"s_cmp_lg_u32 s64, {E_H}\ns_cbranch_scc1 L_nh")
    A("s_lshr_b32 s20, s70, 1\ns_lshl_b32 s20, s20, 8\ns_lshl_b32 s21, s3, 6\ns_add_u32 s20, s20, s21")
    A("v_lshl_add_u32 v14, v12, 3, s20")
    A("s_mov_b32 s21, 6144\nv_mul_lo_u32 v1, v14, s21\nv_lshl_add_u32 v1, v13, 4, v1\nv_lshlrev_b32 v14, 1, v14")
    A("s_and_b32 s20, s70, 1\ns_lshl_b32 s20, s20, 10\ns_lshl_b32 s21, s69, 7\ns_add_u32 s20, s20, s21")
    A("s_waitcnt lgkmcnt(0)")
    srd(8, P_WM, 512 * 6144)
    A(f"global_load_dwordx4 v[4:7], v14, {sp(P_C)}")
    for i in range(8):
        A(f"buffer_load_dwordx4 {v4(40+4*i)}, v1, s[8:11], s20 offen {wpol}")
        if i < 7: A("s_add_u32 s20, s20, 6144")
    A(f"s_load_dword s6, {WS}, 0")
    A("s_barrier")
    A("s_lshl_b32 s20, s65, 2\ns_add_u32 s20, s20, s3")
    if cpad: A(f"s_lshr_b32 s21, s20, 3\ns_lshl_b32 s21, s21, 15\ns_and_b32 s22, s20, 7\ns_lshl_b32 s22, s22, 11\ns_add_u32 s21, s21, s22\ns_add_u32 s21, s21, {WS_C + (0 if use2 else (p2^1)<<14)}\nv_lshrrev_b32 v14, 2, v0\nv_lshl_add_u32 v14, v14, 6, v2\nv_add_u32 v14, s21, v14\nv_add_u32 v11, 16384, v14")
    else: A(f"s_lshr_b32 s21, s20, 4\ns_lshl_b32 s21, s21, 15\ns_and_b32 s22, s20, 15\ns_lshl_b32 s22, s22, 10\ns_add_u32 s21, s21, s22\ns_add_u32 s21, s21, {WS_C + (0 if use2 else (p2^1)<<14)}\nv_add_u32 v14, s21, v2\nv_add_u32 v11, 16384, v14")
    if use2: A(f"s_lshl_b32 s21, s20, 10\ns_add_u32 s21, s21, {WS_B}\nv_add_u32 v15, s21, v2")
    else: A(f"s_lshr_b32 s21, s20, 5\ns_lshl_b32 s21, s21, 15\ns_and_b32 s22, s20, 31\ns_lshl_b32 s22, s22, 9\ns_add_u32 s21, s21, s22\ns_add_u32 s21, s21, {WS_B + (p2<<14)}\nv_add_u32 v15, s21, v2")
    A("s_cmp_eq_u32 s3, 3\ns_cselect_b32 exec_hi, 0, -1")
    for i in range(4): A(f"v_mov_b32 v{16+i}, -1")
    A("s_mov_b64 exec, -1")
    for i in range(4): A(f"v_mov_b32 v{20+i}, -1")
    A(f"global_store_dwordx4 v14, v[16:19], {WS} sc1")
    if use2: A(f"global_store_dwordx4 v11, v[16:19], {WS} sc1")
    else: A("s_mov_b32 exec_hi, 0")
    A(f"global_store_dwordx4 v15, v[20:23], {WS} sc1\ns_mov_b64 exec, -1")
    A(f"s_waitcnt vmcnt({10+use2})")
    unpack(24, [4, 5, 6, 7], 4); silu(24, 32, 8)
    for i in range(4): A(f"v_cvt_pk_bf16_f32 v{24+i}, v{24+2*i}, v{25+2*i}")
    mktag()
    A(f"s_and_b32 s26, s70, 1\ns_lshl_b32 s26, s26, 13\ns_lshr_b32 s21, s70, 1\ns_lshl_b32 s21, s21, 12\ns_add_u32 s26, s26, s21\ns_lshl_b32 s21, s69, 9\ns_add_u32 s26, s26, s21\ns_add_u32 s26, s26, {WS_H}")
    A(f"s_waitcnt vmcnt({2+use2})")
    stamp(1)
    gemv_perm(40, 104, 4)
    gemv_dot(104, [24, 25, 26, 27], 32)
    A("L_gfin:")
    acc = 32
    for e in range(4): A(f"v_permlane32_swap_b32 v{acc+e}, v{acc+e+4}")
    for e in range(4): A(f"v_add_f32 v{acc+e}, v{acc+e}, v{acc+e+4}")
    for e in range(2): A(f"v_permlane16_swap_b32 v{acc+e}, v{acc+e+2}")
    for e in range(2): A(f"v_add_f32 v{acc+e}, v{acc+e}, v{acc+e+2}")
    for e in range(2): A(f"v_add_f32_dpp v{acc+e}, v{acc+e}, v{acc+e} row_ror:8 {DPPF}")
    A("v_lshrrev_b32 v14, 4, v0\nv_lshlrev_b32 v14, 3, v14\nv_lshl_add_u32 v14, v13, 5, v14\ns_lshl_b32 s21, s3, 8\nv_add_u32 v14, s21, v14")
    A(f"ds_write_b64 v14, v[32:33] offset:{L_GP}")
    A("v_mov_b32 v14, 0\nv_mov_b32 v15, 1")
    A("s_waitcnt vmcnt(0)")
    A("s_mov_b64 exec, 1")
    A(f"ds_add_rtn_u32 v15, v14, v15 offset:{L_CG}")
    A("s_mov_b64 exec, -1")
    A("v_lshlrev_b32 v14, 3, v0")
    A("s_waitcnt lgkmcnt(0)")
    A("v_readfirstlane_b32 s21, v15")
    A("s_cmp_lg_u32 s21, 3\ns_cbranch_scc1 L_gdone")
    A("s_mov_b32 exec_hi, 0")
    for w in range(4): A(f"ds_read_b64 {v2(32+2*w)}, v14 offset:{L_GP+256*w}")
    A("v_add_u32 v14, s26, v14")
    A("s_waitcnt lgkmcnt(0)")
    A("v_pk_add_f32 v[32:33], v[32:33], v[34:35]\nv_pk_add_f32 v[36:37], v[36:37], v[38:39]\nv_pk_add_f32 v[32:33], v[32:33], v[36:37]")
    A(f"s_cmp_lg_u32 s64, {E_H}\ns_cbranch_scc1 L_gnh")
    A(f"v_mov_b32 v34, v33\nv_mov_b32 v33, s6\nv_mov_b32 v35, s6\nv_add_u32 v14, s26, v2\nglobal_store_dwordx4 v14, v[32:35], {WS} sc1\ns_mov_b64 exec, -1\ns_branch L_gdone\nL_gnh:")
    A("v_cvt_pk_bf16_f32 v32, v32, v33\nv_mov_b32 v33, s6")
    if qloc:
        A(f"s_cmp_lg_u32 s64, {E_Q}\ns_cbranch_scc1 L_gnl")
        A(f"v_add_u32 v15, {WS_QL-WS_Q}, v14\nglobal_store_dwordx2 v15, v[32:33], {WS}")
        A("L_gnl:")
    A(f"global_store_dwordx2 v14, v[32:33], {WS} sc1")
    A("s_mov_b64 exec, -1")
    A("L_gdone:")
    stamp(3)
    if mlate: A(f"s_cmp_eq_u32 s64, {E_M}\ns_cbranch_scc1 L_done")
    A("s_branch L_qpoll")

    NM = T - 28; nmask = T - min(r['n'] for r in roles.values())
    NW = 39 - T
    S0 = len(A.lines)
    A("L_stream:")
    if kprio: A(f"s_setprio {kprio}")
    A("s_sub_u32 s21, s3, 4")
    if yprio == 1: A("s_cmp_lt_u32 s21, 4\ns_cbranch_scc1 L_yp\ns_setprio 1\nL_yp:")
    A("v_bfe_u32 v1, v0, 2, 2\nv_lshlrev_b32 v1, 8, v1\nv_lshrrev_b32 v4, 4, v0\nv_lshl_add_u32 v1, v4, 6, v1\nv_and_b32 v4, 3, v0\nv_lshl_add_u32 v1, v4, 4, v1")
    A(f"s_lshl_b32 s19, s4, 23\ns_mul_i32 s16, s5, {28*8192}\ns_add_u32 s16, s16, s19\ns_lshl_b32 s17, s21, 12\ns_add_u32 s16, s16, s17")
    A("s_mov_b32 s10, 0x4000000\ns_mov_b32 s11, 0x20000")
    hcnt = sum(PLANS[plan]['H'][x] << (4 * x) for x in range(8))
    A(f"s_lshl_b32 s17, s4, 2\ns_lshr_b32 s35, {hcnt:#x}, s17\ns_and_b32 s35, s35, {15 if hfirst else 0}")
    A("s_waitcnt lgkmcnt(0)")
    A(f"s_mov_b32 s8, s{P_K}\ns_mov_b32 s9, s{P_K+1}")
    A("s_cmp_ge_u32 s5, s35\ns_cbranch_scc1 L_s1\ns_barrier\nL_s1:")
    KR = lambda t: 168 - 4 * T + 4 * t
    nS = (T + 3) // 4; nP = (T + 7) // 8
    assert T == 34
    first_v = 14
    vslots = [12 + 4 * i for i in range(NW)] + [KR(i) for i in range(first_v, T)]
    VR = lambda t: vslots[t % len(vslots)]
    st = {"cur": None}
    mpos = [6 + (j * (T - 12)) // max(nmask, 1) for j in range(nmask)]
    rest = list(range(NM, NM + 6)) + list(range(nmask, NM)) + list(range(NM + 6, T))
    perm = []
    for t in range(T):
        if t in mpos: perm.append(mpos.index(t))
        else: perm.append(rest.pop(0))
    first_nm = min(t for t in range(T) if perm[t] < NM)
    assert first_nm >= win
    hist = []
    def wcount(w):
        c = 0
        for n_, m_ in enumerate(reversed(hist)):
            if not m_:
                if c == w - 1: return n_
                c += 1
        return None
    def ld(which, t):
        o = perm[t]
        hist.append(o < nmask)
        if o < NM:
            A(f"s_add_u32 s20, s17, {o*8192}"); st["cur"] = None; imm = 0
            if o < nmask: A(f"s_cmp_gt_u32 s18, {o}\ns_cselect_b32 s20, 0x4000000, s20")
        else:
            key = (o - NM) >> 2; imm = ((o - NM) & 3) * 1024
            if st["cur"] != key:
                A(f"s_add_u32 s20, s16, {key*32768}"); st["cur"] = key
        if which == "K": A(f"buffer_load_dwordx4 {v4(KR(t))}, v1, s[8:11], s20 offen offset:{imm} {kpol}")
        else: A(f"buffer_load_dwordx4 {v4(VR(t))}, v2, s[12:15], s20 offen offset:{imm} {vpol}")
    korder = list(range(T))
    seq = [("K", t) for t in korder] + [("V", t) for t in range(NW)]
    for i, (wh, t) in enumerate(seq):
        if i == win:
            if st0: A("s_memrealtime s[92:93]")
            if ltab: A(rest_ld)
            A("s_branch L_body")
            S1 = len(A.lines)
            A("L_body:")
            srd(12, P_V, 0x4000000)
            if ws1: A(f"s_cmp_lt_u32 s21, {ws1}\ns_cselect_b64 vcc, -1, 0")
            if st0: A("s_waitcnt vmcnt(3)\ns_memrealtime s[94:95]")
            if not b0at: A("s_cmp_lt_u32 s5, s35\ns_cbranch_scc1 L_s2\ns_barrier\nL_s2:")
            A("s_waitcnt lgkmcnt(0)")
            A(f"s_and_b32 s17, s68, 0xfff\ns_bfe_u32 s18, s68, 0x3000c\ns_add_u32 s17, s17, {896-16}\ns_lshl_b32 s17, s17, 13\ns_add_u32 s17, s17, s19\ns_lshl_b32 s19, s21, 10\ns_add_u32 s17, s17, s19")
        if b0at and i == win + b0at: A("s_cmp_lt_u32 s5, s35\ns_cbranch_scc1 L_s2\ns_barrier\nL_s2:")
        if i == T and kprio: A("s_setprio 0")
        if wcount(win) is not None and perm[t] >= nmask:
            if xn and 8 <= i < 8 + xn:
                lb = A.label("w"); A(f"s_waitcnt vmcnt({wcount(win+1)})\ns_bitcmp0_b32 {xmask:#x}, s4\ns_cbranch_scc1 {lb}\ns_waitcnt vmcnt({wcount(win)})\n{lb}:")
            else: A(f"s_waitcnt vmcnt({wcount(win)})")
        ld(wh, t)
        if i == qtrig: A(f"v_mov_b32 v8, 0\nv_mov_b32 v9, 1\ns_mov_b64 exec, 1\nds_max_u32 v8, v9 offset:{L_FK}\ns_mov_b64 exec, -1")
        if hwait and i == hwait: A(f"v_mov_b32 v8, 0\nv_mov_b32 v9, 1\ns_mov_b64 exec, 1\nds_write_b32 v8, v9 offset:72\ns_mov_b64 exec, -1")
        if i == qtrig2 and qloc: A(f"v_mov_b32 v8, 0\nv_mov_b32 v9, 2\ns_mov_b64 exec, 1\nds_max_u32 v8, v9 offset:{L_FK}\ns_mov_b64 exec, -1")
    viss = NW
    A("v_and_b32 v8, 3, v0\nv_lshlrev_b32 v8, 8, v8\nv_lshrrev_b32 v9, 4, v0\nv_lshl_add_u32 v8, v9, 6, v8\nv_bfe_u32 v9, v0, 2, 2\nv_lshl_add_u32 v8, v9, 4, v8\nv_mov_b32 v9, 0")
    if mim: A(f"s_mov_b32 s22, {f2x(1.4426950408889634)}\ns_mov_b32 s26, {f2x(128**-0.5)}\ns_mov_b32 s27, s26")
    else: A(f"s_mov_b32 s22, {f2x(128**-0.5*1.4426950408889634)}")
    for t in range(nmask): A(f"s_cmp_gt_u32 s18, {t}\ns_cselect_b32 s{28+t}, 0xff800000, 0")
    stamp(1)
    lspin("sq", L_FQ, 1, 9, 10, 2, lambda: A(f"ds_read_b128 v[4:7], v8 offset:{L_Q}"))
    stamp(2)
    kl = {"landed": T + NW - win - 3}
    DR = lambda t: 8 if t == 0 else KR(t - 1)
    SR = lambda t: (8 + t) if t < 4 else KR((t >> 2) - 1) + (t & 3)
    def M(t):
        if t >= kl["landed"]:
            A(f"s_waitcnt vmcnt({len(hist)-1-t})"); kl["landed"] = t + 1
        A(f"v_mfma_f32_16x16x32_bf16 {v4(DR(t))}, {v4(KR(t))}, v[4:7], 0")
    def AB(t):
        d = DR(t)
        A(f"v_add_f32_dpp v{d}, v{d+1}, v{d} row_shl:4 {DPPF} bound_ctrl:0")
        A(f"v_add_f32_dpp v{d+2}, v{d+3}, v{d+2} row_shl:4 {DPPF} bound_ctrl:0")
    def S(t):
        d = DR(t)
        A(f"v_add_f32_dpp v{SR(t)}, v{d+2}, v{d} row_shl:8 {DPPF} bound_ctrl:0")
    mark0 = len(A.lines)
    if yprio == 2: A("s_cmp_lt_u32 s21, 4\ns_cbranch_scc1 L_yp\ns_setprio 1\nL_yp:")
    M(0); M(1); M(2)
    for t in range(T + 1):
        if t < T: AB(t)
        if t >= 1:
            S(t - 1)
            if vmid and t - 2 >= first_v and (t - 2 - first_v) % vmid == 0:
                ld("V", viss); viss += 1
        if t + 3 < T: M(t + 3)
    TM = KR(11)
    Sl = [SR(t) for t in range(T)]
    if mim:
        for t in range(0, T, 2): rnd(Sl[t], Sl[t + 1])
        for t in range(0, T, 2): A(f"v_pk_mul_f32 {v2(Sl[t])}, {v2(Sl[t])}, s[26:27]")
        if vmid: ld("V", viss); viss += 1
        for t in range(0, T, 2): rnd(Sl[t], Sl[t + 1])
    for t in range(nmask): A(f"v_add_f32 v{Sl[mpos[t]]}, s{28+t}, v{Sl[mpos[t]]}")
    A(f"v_max3_f32 v{TM}, v{Sl[0]}, v{Sl[1]}, v{Sl[2]}")
    A(f"v_max3_f32 v{TM+1}, v{Sl[3]}, v{Sl[4]}, v{Sl[5]}")
    i = 6; k = 0
    while i < T:
        A(f"v_max3_f32 v{TM+k}, v{TM+k}, v{Sl[i]}, v{Sl[i+1]}"); i += 2; k ^= 1
    A(f"v_max_f32 v{TM}, v{TM}, v{TM+1}")
    xrow("v_max_f32", TM, TM + 1, 16); xrow("v_max_f32", TM, TM + 1, 32)
    A(f"v_mul_f32 v{TM}, s22, v{TM}")
    for t in range(T): A(f"v_fma_f32 v{Sl[t]}, v{Sl[t]}, s22, -v{TM}")
    for t in range(T): A(f"v_exp_f32 v{Sl[t]}, v{Sl[t]}")
    if vmid: ld("V", viss); viss += 1
    A(f"v_add_f32 v{TM+1}, v{Sl[0]}, v{Sl[1]}\nv_add_f32 v{TM+2}, v{Sl[2]}, v{Sl[3]}")
    for t in range(4, T): A(f"v_add_f32 v{TM+1+(t&1)}, v{TM+1+(t&1)}, v{Sl[t]}")
    A(f"v_add_f32 v{TM+1}, v{TM+1}, v{TM+2}")
    xrow("v_add_f32", TM + 1, TM + 2, 16); xrow("v_add_f32", TM + 1, TM + 2, 32)
    A(f"s_lshl_b32 s19, s21, 5\nv_lshl_add_u32 v{TM+2}, v0, 3, s19\nv_mov_b32 v4, 0\nv_mov_b32 v5, 1")
    A("s_mov_b64 exec, 0xf")
    A(f"ds_write_b64 v{TM+2}, {v2(TM)} offset:{L_ST}")
    A("s_mov_b64 exec, 1")
    A(f"ds_add_u32 v4, v5 offset:{L_CS}")
    A("s_mov_b64 exec, -1")
    GR = [(0, 2), (2, 10), (10, 18), (18, 26), (26, 34)]
    def pack(u, d):
        for t in range(GR[u][0], GR[u][1], 2): A(f"v_cvt_pk_bf16_f32 v{d+(t-GR[u][0])//2}, v{Sl[t]}, v{Sl[t+1]}")
    for u in range(3): pack(u, KR(8 + u))
    A("s_waitcnt lgkmcnt(0)")
    AC = [8, KR(0)]
    PA = [KR(1), KR(2), KR(12), KR(13)]; PB = [KR(3), KR(4), KR(5), KR(6)]
    TT = [TM, 4]
    def zero(P):
        for j in range(4):
            for i in range(4): A(f"v_mov_b32 v{P[j]+i}, 0")
    def vers(P, src, n=4):
        for j in range(4):
            ctl = "quad_perm:[0,1,2,3]" if j == 0 else f"row_shr:{4*j}"
            for i in range(n): A(f"v_mov_b32_dpp v{P[j]+i}, v{src+i} {ctl} row_mask:0xf bank_mask:{1<<j:#x}")
    zero(PA)
    A(f"v_mov_b32 v{TM+1}, 0\nv_mov_b32 v5, 0")
    stamp(3)
    EO = (0, 4, 1, 5, 2, 6, 3, 7)
    def pv(u):
        t0, t1 = GR[u]; n = t1 - t0
        vers(PA, KR(8 + u), n // 2)
        for k, e in enumerate(EO):
            Tm = TT[k & 1]; ac = AC[e >> 2]
            for p in range(n // 2):
                a = VR(t0 + 2 * p) + (e >> 1); b = VR(t0 + 2 * p + 1) + (e >> 1)
                A(f"v_perm_b32 v{Tm+p}, v{b}, v{a}, s{24+(e&1)}")
            c = "0" if (u == 0 and k < 2) else v4(ac)
            if n == 8: A(f"v_mfma_f32_16x16x32_bf16 {v4(ac)}, {v4(Tm)}, {v4(PA[e&3])}, {c}")
            else: A(f"v_mfma_f32_16x16x16_bf16 {v4(ac)}, {v2(Tm)}, {v2(PA[e&3])}, {c}")
    ns = len(vslots)
    TA = [VR(t) for t in range(T - ns, 18)][:8]
    assert len(TA) == 8
    X = KR(8); ONE = KR(7) + 2; CNT = KR(7) + 3
    def rescale():
        A(f"v_and_b32 v1, 3, v0\nv_lshlrev_b32 v1, 3, v1\nv_mov_b32 v{X+10}, 0\nv_mov_b32 v{ONE}, 1\ns_lshl_b32 s19, s21, 5\nv_add_u32 v{X+9}, s19, v1")
        def rd():
            for w in range(8): A(f"ds_read_b32 v{X+w}, v1 offset:{L_ST+32*w}")
            A(f"ds_read_b32 v{X+8}, v{X+9} offset:{L_ST}")
        lspin("sm", L_CS, 9, X + 10, X + 11, 1, rd)
        A(f"s_mov_b64 exec, 1\nds_add_rtn_u32 v{X+11}, v{X+10}, v{ONE} offset:{L_CT}\ns_mov_b64 exec, -1")
        A(f"v_max3_f32 v{X}, v{X}, v{X+1}, v{X+2}\nv_max3_f32 v{X+3}, v{X+3}, v{X+4}, v{X+5}\nv_max3_f32 v{X}, v{X}, v{X+6}, v{X+7}\nv_max_f32 v{X}, v{X}, v{X+3}")
        A(f"v_sub_f32 v{X}, v{X+8}, v{X}\nv_exp_f32 v{X}, v{X}")
        A(f"s_lshl_b32 s19, s21, 11\nv_add_u32 v1, s19, v2\ns_and_b32 s19, s21, 4\nv_mov_b32 v{CNT}, s19")
        for ac in AC:
            for q in range(2): A(f"v_pk_mul_f32 {v2(ac+2*q)}, {v2(ac+2*q)}, {v2(X)} op_sel_hi:[1,0]")
        for t in range(18, T, 2): A(f"v_pk_mul_f32 {v2(Sl[t])}, {v2(Sl[t])}, {v2(X)} op_sel_hi:[1,0]")
        pack(3, TT[0]); pack(4, TT[1])
        zero(PB); vers(PA, TT[0]); vers(PB, TT[1])
        A(f"s_waitcnt lgkmcnt(0)\nv_readfirstlane_b32 s23, v{X+11}")
    while viss < min(win2, ns):
        ld("V", viss); viss += 1
    done_t = 0
    ends = {g[1] - 1: u for u, g in enumerate(GR[:3])}
    for L in range(T):
        inc = L >= 18 and L % 2 == 1
        can = lambda: viss < T and sum(1 for j in range(L + 1, viss) if perm[j] >= nmask) < (bwin if L >= T - burst else win2 + (pre if L in ends else 0)) + (perm[viss] < nmask) and (viss < ns or done_t > viss - ns)
        if can() or L in ends or inc:
            A(f"s_waitcnt vmcnt({viss-1-L})")
        while can():
            ld("V", viss); viss += 1
            if viss == T:
                assert L > 17
                A(f"s_mov_b64 exec, 1\nds_add_u32 v2, v{ONE} offset:{L_CV}\ns_mov_b64 exec, -1")
        if L in ends:
            pv(ends[L]); done_t = L + 1
            if L == 17: rescale()
        if inc:
            if L == T - 1: stamp(4)
            p = ((L - 18) % 8) // 2
            for e in EO: A(f"v_perm_b32 v{TA[e]+p}, v{VR(L)+(e>>1)}, v{VR(L-1)+(e>>1)}, s{24+(e&1)}")
            if p == 3:
                for e in EO: A(f"v_mfma_f32_16x16x32_bf16 {v4(AC[e>>2])}, {v4(TA[e])}, {v4((PA if L < 26 else PB)[e&3])}, {v4(AC[e>>2])}")
    assert viss == T
    if nocomp:
        keep = [l for l in A.lines[mark0:] if not l.startswith(("v_mfma", "v_perm_b32", "v_add_f32", "v_exp", "v_fma", "v_max", "v_cvt", "v_permlane"))]
        A.lines[mark0:] = keep
    for hf in range(2): A(f"ds_write_b128 v1, {v4(AC[hf])} offset:{L_OP+hf*1024}")
    A(f"s_mov_b64 exec, 1\nds_add_u32 v{CNT}, v{ONE} offset:{L_FO}")
    A("s_mov_b64 exec, -1")
    if stamps: A("s_waitcnt lgkmcnt(0)")
    stamp(5)
    A("s_cmp_lg_u32 s23, 0\ns_cbranch_scc1 L_done")
    A(f"s_setprio {rprio}")
    def a_addr(d, t):
        if lin: A(f"s_lshl_b32 s20, s4, 15\ns_lshr_b32 s19, s5, 4\ns_lshl_b32 s19, s19, 10\ns_add_u32 s20, s20, s19\ns_and_b32 s19, s5, 15\ns_lshl_b32 s19, s19, 4\ns_add_u32 s20, s20, s19\ns_add_u32 s20, s20, {WS_A}")
        else: A(f"s_lshl_b32 s20, s4, 15\ns_lshl_b32 s19, s5, {7 if fl else 6}\ns_add_u32 s20, s20, s19\ns_add_u32 s20, s20, {WS_A}")
        if mrg:
            assert lin
            A(f"v_and_b32 v{d}, 3, v0\nv_lshlrev_b32 v{d}, 13, v{d}\nv_bfe_u32 v{t}, v0, 2, 2\nv_lshl_add_u32 v{d}, v{t}, 11, v{d}\nv_lshrrev_b32 v{t}, 4, v0\nv_lshl_add_u32 v{d}, v{t}, 8, v{d}\nv_add_u32 v{d}, s20, v{d}")
            return
        A(f"v_bfe_u32 v{d}, v0, 2, 2\nv_lshlrev_b32 v{d}, 13, v{d}")
        if fl: A(f"v_lshrrev_b32 v{t}, 5, v0\nv_lshl_add_u32 v{d}, v{t}, 12, v{d}\nv_bfe_u32 v{t}, v0, 4, 1\nv_lshl_add_u32 v{d}, v{t}, 6, v{d}")
        else: A(f"v_lshrrev_b32 v{t}, 4, v0\nv_lshl_add_u32 v{d}, v{t}, 11, v{d}")
        A(f"v_and_b32 v{t}, 3, v0\nv_lshl_add_u32 v{d}, v{t}, {8 if lin else 4}, v{d}\nv_add_u32 v{d}, s20, v{d}")
    a_addr(36, 37)
    A(f"v_add_u32 v37, {WS_AL-WS_A}, v36\nv_mov_b32 v38, 0\nv_mov_b32 v39, 1")
    if xl: A(f"ds_read_b32 v29, v38 offset:{L_MK}\ns_waitcnt lgkmcnt(0)\nv_readfirstlane_b32 s26, v29")
    for hf in range(2 if det else 0):
        def rd8():
            for j in range(4): A(f"ds_read_b128 {v4(40+8*j)}, v2 offset:{L_OP+(4*hf+j)*2048}\nds_read_b128 {v4(44+8*j)}, v2 offset:{L_OP+(4*hf+j)*2048+1024}")
        if rsl and hf: lspin("so3", L_FO + 4, 3, 38, 28, 1)
        lspin("so", L_FO + 4 * hf, 4, 38, 28, 1 - hf, rd8)
        for q in range(4): A(f"v_pk_add_f32 {v2(40+2*q)}, {v2(40+2*q)}, {v2(48+2*q)}")
        for q in range(4): A(f"v_pk_add_f32 {v2(56+2*q)}, {v2(56+2*q)}, {v2(64+2*q)}")
        for q in range(4): A(f"v_pk_add_f32 {v2((12 if hf == 0 else 40)+2*q)}, {v2(40+2*q)}, {v2(56+2*q)}")
        if hf:
            for q in range(4): A(f"v_pk_add_f32 {v2(12+2*q)}, {v2(12+2*q)}, {v2(40+2*q)}")
    for i in range(0 if det else 8):
        d = 12 if i == 0 else 20
        lspin("so", L_FO + 4 * i, 1, 38, 28, 1 if (calm and i < 6) else 0, lambda: A(f"ds_read_b128 {v4(d)}, v2 offset:{L_OP+i*2048}\nds_read_b128 {v4(d+4)}, v2 offset:{L_OP+i*2048+1024}"))
        if i:
            for q in range(4): A(f"v_pk_add_f32 {v2(12+2*q)}, {v2(12+2*q)}, {v2(20+2*q)}")
    for q in range(4): A(f"v_cvt_pk_bf16_f32 v{12+q}, v{12+2*q}, v{13+2*q}")
    if loc: A(f"global_store_dwordx4 v37, v[12:15], {WS}")
    if xl: A("s_cmp_eq_u32 s26, 0\ns_cbranch_scc1 L_ng2")
    A(f"global_store_dwordx4 v36, v[12:15], {WS} sc1")
    A("L_ng2:")
    A(f"ds_write_b32 v38, v39 offset:{L_FP}")
    stamp(6)
    end_wave()
    blk = A.lines[S0:S1]; del A.lines[S0:S1]; A.lines[STREAM_MARK:STREAM_MARK] = blk

    A("L_nh:")
    A(f"s_cmp_lg_u32 s64, {E_Q}\ns_cbranch_scc1 L_nq")
    A("v_lshlrev_b32 v1, 17, v12\nv_lshl_add_u32 v1, v13, 4, v1")
    A("s_lshl_b32 s20, s3, 20\ns_lshl_b32 s21, s4, 10\ns_add_u32 s20, s20, s21\ns_mov_b32 s26, s65\ns_lshl_b32 s21, s26, 7\ns_add_u32 s20, s20, s21")
    A("s_lshl_b32 s21, s3, 8\nv_lshl_add_u32 v14, v0, 2, s21")
    A("s_waitcnt lgkmcnt(0)")
    srd(8, P_WQ, 512 * 8192)
    A(f"global_load_dwordx4 v[8:11], v2, {sp(P_X)}\nglobal_load_dword v15, v14, {sp(P_X)}")
    for i in range(16):
        A(f"buffer_load_dwordx4 {v4(40+4*i)}, v1, s[8:11], s20 offen {wpol}")
        if i < 15: A("s_add_u32 s20, s20, 8192")
    A(f"s_load_dword s6, {WS}, 0")
    A("s_barrier")
    A(f"s_lshl_b32 s26, s26, 8\ns_lshl_b32 s21, s4, 11\ns_add_u32 s26, s26, s21\ns_add_u32 s26, s26, {WS_Q}")
    A("s_waitcnt vmcnt(16)")
    unpack(32, [8, 9, 10, 11], 4)
    A("v_add_f32 v4, v32, v33")
    for i in range(2, 8): A(f"v_add_f32 v4, v4, v{32+i}")
    wave_reduce("v_add_f32", 4, 5)
    A(f"v_mul_f32 v4, {f2x(1/512)}, v4")
    for i in range(8): A(f"v_sub_f32 v{32+i}, v{32+i}, v4")
    A("v_mul_f32 v6, v32, v32")
    for i in range(1, 8): A(f"v_fmac_f32 v6, v{32+i}, v{32+i}")
    wave_reduce("v_add_f32", 6, 5)
    A(f"v_mul_f32 v5, {f2x(1/512)}, v6"); rnd(4, 5)
    A(f"v_add_f32 v5, {f2x(1e-5)}, v5"); rnd(5)
    A("v_sqrt_f32 v5, v5"); rnd(5)
    A("v_rcp_f32 v5, v5")
    unpack(8, [15], 1)
    A("v_sub_f32 v8, v8, v4\nv_sub_f32 v9, v9, v4"); rnd(8, 9)
    A("v_mul_f32 v8, v8, v5\nv_mul_f32 v9, v9, v5"); rnd(8, 9)
    A(f"v_lshlrev_b32 v15, 2, v14\nv_add_u32 v15, {WS_H}, v15\nv_add_u32 v10, 4096, v15\nv_add_u32 v11, 8192, v15\nv_add_u32 v7, 12288, v15")
    mktag()
    A("s_waitcnt vmcnt(0)")
    stamp(1)
    prb("wq")
    gemv_perm(40, 104, 8)
    if hwait: A("v_mov_b32 v4, 0"); lspin("sh", 72, 1, 4, 5, 2)
    poll("ph", lambda: [A(f"global_load_dwordx4 {v4(16+4*k)}, v{(15,10,11,7)[k]}, {WS} sc1") for k in range(4)],
         lambda: chk_tags([17 + 2 * k for k in range(8)], 4), hsleep)
    stamp(2)
    prb("h")
    A("v_add_f32 v16, v16, v20\nv_add_f32 v17, v18, v22\nv_add_f32 v18, v24, v28\nv_add_f32 v19, v26, v30")
    rnd(16, 17); rnd(18, 19)
    A("v_add_f32 v18, 1.0, v18\nv_add_f32 v19, 1.0, v19"); rnd(18, 19)
    A("v_pk_mul_f32 v[24:25], v[8:9], v[18:19]"); rnd(24, 25)
    A("v_pk_add_f32 v[24:25], v[24:25], v[16:17]")
    A("L_gx:")
    A("v_cvt_pk_bf16_f32 v24, v24, v25")
    A(f"ds_write_b32 v14, v24 offset:{L_X}")
    A("s_lshl_b32 s21, s3, 8\nv_lshl_add_u32 v15, v12, 5, s21")
    A(f"ds_read_b128 v[24:27], v15 offset:{L_X}\nds_read_b128 v[28:31], v15 offset:{L_X+16}")
    A("s_waitcnt lgkmcnt(0)")
    gemv_dot(104, list(range(24, 32)), 32)
    A("s_branch L_gfin")

    A("L_nq:")
    A("s_waitcnt lgkmcnt(0)")
    A(f"s_load_dword s6, {WS}, 0")
    mktag()
    A("s_barrier")
    A("L_role:")
    A("s_cmp_eq_u32 s64, 0\ns_cbranch_scc1 L_qpoll")
    A(f"s_cmp_eq_u32 s64, {E_B}\ns_cbranch_scc1 L_wb")
    A(f"s_cmp_lg_u32 s64, {E_P}\ns_cbranch_scc1 L_m")
    if pi == 2:
        A("s_cmp_lg_u32 s3, 0\ns_cbranch_scc1 L_qpoll")
        A(f"s_lshl_b32 s20, s65, 7\ns_add_u32 s20, s20, {WS_P}\ns_add_u32 s72, s{P_WS}, s20\ns_addc_u32 s73, s{P_WS+1}, 0")
        A("v_lshlrev_b32 v4, 10, v12\nv_lshl_add_u32 v4, v13, 4, v4")
        for k in range(4):
            A("global_store_dwordx4 v4, v[16:19], s[72:73] sc1")
            if k < 3: A("v_add_u32 v4, 8192, v4")
        for k in range(4): A(f"s_mov_b32 s{80+k}, -1")
        A("s_waitcnt vmcnt(0)")
        stamp(1)
        A("s_memtime s[76:77]\ns_waitcnt lgkmcnt(0)")
        cur = 76
        for i in range(4 * pn):
            k = (i + (i >> 2)) & 3; nx = 154 - cur
            A(f"s_load_dword s74, s[72:73], {8192*k + 1024*(i>>2)}\ns_waitcnt lgkmcnt(0)\ns_memtime s[{nx}:{nx+1}]\ns_waitcnt lgkmcnt(0)\ns_sub_u32 s21, s{nx}, s{cur}\ns_min_u32 s{80+k}, s{80+k}, s21")
            cur = nx
        stamp(2)
        A("s_add_u32 s20, s80, s82\ns_add_u32 s21, s81, s83\ns_cmp_gt_u32 s20, s21\ns_cselect_b32 s22, 1, 0\ns_cselect_b32 s80, s81, s80\ns_cselect_b32 s82, s83, s82")
        if not use2: A("s_getreg_b32 s20, hwreg(HW_REG_XCC_ID, 2, 1)\ns_xor_b32 s20, s22, s20")
        if use2: A("s_cmp_gt_u32 s80, s82\ns_cselect_b32 s21, 1, 0")
        if use2: A(f"s_getreg_b32 s20, hwreg(HW_REG_XCC_ID, 2, 1)\ns_xor_b32 s22, s22, s20\ns_getreg_b32 s20, hwreg(HW_REG_XCC_ID, 0, 1)\ns_xor_b32 s21, s21, s20\ns_xor_b32 s21, s21, {1 ^ ((WS_P >> 19) & 1)}\ns_lshl_b32 s21, s21, 1\ns_or_b32 s20, s21, s22")
        A(f"v_mov_b32 v4, s20\nv_mov_b32 v5, s6\ns_lshl_b32 s20, s65, 3\ns_add_u32 s20, s20, {WS_PV}\nv_mov_b32 v8, s20")
        A(f"s_mov_b64 exec, 1\nglobal_store_dwordx2 v8, v[4:5], {WS} sc1\ns_mov_b64 exec, -1")
    A("s_branch L_qpoll\nL_m:")
    if mlate:
        A("s_branch L_qpoll\nL_ml:")
        if mlate <= 8: lspin("sl", L_CV, mlate, 10, 11, 4)
        else: lspin("sl", L_FP, 1, 10, 11, 4)
        A("s_setprio 0\nv_lshrrev_b32 v12, 3, v0\nv_and_b32 v13, 7, v0")
    A("s_mov_b32 s21, 98304\nv_mul_lo_u32 v1, v12, s21\nv_lshl_add_u32 v1, v13, 4, v1")
    A(f"s_mul_i32 s20, s3, {128*6144}\ns_add_u32 s26, s70, 2\ns_lshl_b32 s26, s26, 10\ns_lshl_b32 s21, s69, 7\ns_add_u32 s26, s26, s21\ns_add_u32 s20, s20, s26")
    A("s_lshl_b32 s21, s3, 8\nv_lshl_add_u32 v14, v0, 2, s21")
    srd(8, P_WM, 512 * 6144)
    A(f"global_load_dword v15, v14, {sp(P_C)}")
    paced([f"buffer_load_dwordx4 {v4(40+4*i)}, v1, s[8:11], s20 offen {wpol}\ns_add_u32 s20, s20, 6144" for i in range(16)], 0)
    A(f"s_lshl_b32 s26, s26, 1\ns_add_u32 s26, s26, {WS_MOD-4096}")
    A("s_waitcnt vmcnt(0)")
    unpack(24, [15], 1); silu(24, 32, 2)
    gemv_perm(40, 104, 8)
    A("s_branch L_gx")
    def dma(loads, w):
        if skipw: return
        for i, l in enumerate(loads):
            if w and i >= w: A(f"s_waitcnt vmcnt({w-1})")
            A(f"s_add_u32 m0, s23, {1024*i}")
            A(l)
    def wo_issue(lo, hi):
        srd(8, P_WO, 4096 * 1024)
        A("v_lshrrev_b32 v1, 3, v0\nv_lshlrev_b32 v1, 10, v1\nv_and_b32 v4, 7, v0\nv_lshl_add_u32 v1, v4, 4, v1")
        A(f"s_lshl_b32 s20, s4, 19\ns_lshl_b32 s21, s3, 17\ns_add_u32 s20, s20, s21\ns_lshl_b32 s21, s65, 7\ns_add_u32 s20, s20, s21\ns_add_u32 s20, s20, {8192*lo}")
        A(f"s_lshl_b32 s23, s3, 14\ns_add_u32 s23, s23, {L_WT+1024*lo}")
        dma([f"buffer_load_dwordx4 v1, s[8:11], s20 offen {wpol} lds\ns_add_u32 s20, s20, 8192" for i in range(lo, hi)], pace)
    def wo_finish(w):
        A(f"s_lshl_b32 s23, s3, 14\ns_add_u32 s23, s23, {L_WT}")
        A("v_bfe_u32 v1, v0, 2, 2\nv_lshlrev_b32 v1, 10, v1\nv_lshrrev_b32 v4, 4, v0\nv_lshl_add_u32 v1, v4, 12, v1\nv_and_b32 v4, 3, v0\nv_lshl_add_u32 v1, v4, 3, v1\nv_add_u32 v1, s23, v1")
        A(f"s_waitcnt vmcnt({w})")
        k = 0
        for c in range(4):
            for nt in range(4):
                for hi in range(2):
                    A(f"ds_read_b64_tr_b16 {v2(104+16*c+4*nt+2*hi)}, v1 offset:{(c+4*hi)*128+nt*32}")
                    k += 1
                    if k >= 12 and k % 4 == 0: A("s_waitcnt lgkmcnt(8)")
        A("s_waitcnt lgkmcnt(0)")
    A("L_wb:")
    if xl:
        A("s_cmp_lg_u32 s3, 0\ns_cbranch_scc1 L_wb1")
        A(f"s_getreg_b32 s20, hwreg(HW_REG_XCC_ID, 0, 4)\nv_mov_b32 v4, s20\nv_mov_b32 v5, s6\ns_lshl_b32 s20, s4, 7\ns_lshl_b32 s21, s65, 3\ns_add_u32 s20, s20, s21\ns_add_u32 s20, s20, {WS_XB}\nv_mov_b32 v6, s20")
        A(f"s_mov_b64 exec, 1\nglobal_store_dwordx2 v6, v[4:5], {WS} sc1\ns_mov_b64 exec, -1\ns_nop 0")
        A("L_wb1:")
    if bp:
        A("s_cmp_eq_u32 s3, 1\ns_cbranch_scc1 L_qpoll\ns_cmp_eq_u32 s3, 2\ns_cbranch_scc1 L_qpoll")
        srd(8, P_WO, 4096 * 1024)
        A("v_lshrrev_b32 v1, 3, v0\nv_lshlrev_b32 v1, 10, v1\nv_and_b32 v4, 7, v0\nv_lshl_add_u32 v1, v4, 4, v1\ns_lshr_b32 s22, s3, 1")
        A(f"s_lshl_b32 s20, s4, 19\ns_lshl_b32 s21, s22, 18\ns_add_u32 s20, s20, s21\ns_lshl_b32 s21, s65, 7\ns_add_u32 s20, s20, s21")
        A(f"s_lshl_b32 s23, s22, 15\ns_add_u32 s23, s23, {L_WT}\ns_mov_b32 s22, 31")
        A(f"L_wbl:\ns_mov_b32 m0, s23\ns_waitcnt vmcnt({bp-1})\nbuffer_load_dwordx4 v1, s[8:11], s20 offen {wpol} lds\ns_add_u32 s20, s20, 8192\ns_add_u32 s23, s23, 1024\ns_sub_u32 s22, s22, 1\ns_cbranch_scc0 L_wbl")
        A(f"v_mov_b32 v4, 0\nv_mov_b32 v5, 1\ns_waitcnt vmcnt(0)\ns_mov_b64 exec, 1\nds_add_u32 v4, v5 offset:{L_CW}\ns_mov_b64 exec, -1")
    elif not bdefer: wo_issue(0, 16); wo_finish(0)
    elif bearly: wo_issue(0, bearly)
    A("L_qpoll:")
    if w1early:
        A(f"s_cmp_lg_u32 s66, {R_C}\ns_cbranch_scc1 L_qp1\ns_mov_b32 s26, s67")
        srd(8, P_W1, 512 * 3584)
        A("v_lshrrev_b32 v1, 2, v0\ns_mov_b32 s20, 3584\nv_mul_lo_u32 v1, v1, s20\nv_and_b32 v12, 3, v0\nv_lshl_add_u32 v1, v12, 4, v1")
        A(f"s_mul_i32 s20, s3, {128*3584}\ns_lshl_b32 s21, s26, 6\ns_add_u32 s20, s20, s21")
        A(f"s_lshl_b32 s23, s3, 14\ns_add_u32 s23, s23, {L_WT}")
        dma([f"buffer_load_dwordx4 v1, s[8:11], s20 offen {w1pol} lds\ns_add_u32 s20, s20, {16*3584}" for i in range(8)], 0)
        A("L_qp1:")
    if nosvc:
        A(f"v_mov_b32 v10, 0\nv_mov_b32 v5, 1\nds_write_b32 v10, v5 offset:{L_FQ}\ns_mov_b64 exec, 1\nds_add_u32 v10, v5 offset:{L_CS}")
        end_wave()
    if tw:
        A("s_cmp_lg_u32 s3, 3\ns_cbranch_scc1 L_tw")
        A(f"s_lshl_b32 s20, s4, 23\ns_mul_i32 s21, s5, {28*8192}\ns_add_u32 s21, s21, s20\ns_add_u32 s20, s20, {896*8192}")
        A(f"v_mov_b32 v4, s21\nv_add_u32 v5, {28*8192-128}, v4\nv_mov_b32 v6, s20\nv_mov_b32 v7, 0\ns_mov_b64 exec, 1")
        A(f"global_load_dword v24, v4, {sp(P_V)} nt\nglobal_load_dword v25, v5, {sp(P_V)} nt\nglobal_load_dword v26, v6, {sp(P_V)} nt\nglobal_load_dword v27, v7, {sp(P_W2)} nt")
        A("s_waitcnt vmcnt(0)\ns_mov_b64 exec, -1\nL_tw:")
    A("v_mov_b32 v10, 0\nv_mov_b32 v23, 0\nv_mov_b32 v35, 64")
    A("s_cmp_lg_u32 s3, 1\ns_cbranch_scc1 L_np")
    A(f"s_lshl_b32 s21, s4, 11\ns_add_u32 s21, s21, {WS_Q}\nv_add_u32 v14, s21, v2")
    lspin("sk", L_FK, 1, 10, 11, 16 if calm else 4)
    def ldq():
        if qloc:
            A(f"ds_read_b32 v11, v10 offset:{L_FK}\ns_waitcnt lgkmcnt(0)\nv_readfirstlane_b32 s21, v11\ns_lshr_b32 s21, s21, 1\ns_and_b32 s21, s21, s7")
            if slowfb: A(f"s_cmp_lt_u32 s7, {spin-slowfb}")
            A(f"s_cselect_b32 s21, 0, {WS_QL-WS_Q}\nv_add_u32 v15, s21, v14")
        for i in range(2): A(f"global_load_dwordx4 {v4(16+4*i)}, v{15 if qloc else 14}, {WS} offset:{1024*i} sc1")
    poll("pq", ldq, lambda: chk_tags([17, 19, 21, 23], 4), qsleep)
    A("v_mov_b32 v17, v18\nv_mov_b32 v21, v22\nv_lshlrev_b32 v14, 3, v0\nv_mov_b32 v5, 1")
    A(f"ds_write_b64 v14, v[16:17] offset:{L_Q}\nds_write_b64 v14, v[20:21] offset:{L_Q+512}")
    A(f"ds_write_b32 v10, v5 offset:{L_FQ}")
    stamp(4)
    A("L_np:")
    if xit == 'np': end_wave()
    A("s_cmp_eq_u32 s3, 2\ns_cbranch_scc1 L_post")
    if mlate: A(f"s_cmp_eq_u32 s64, {E_M}\ns_cbranch_scc1 L_ml")
    A("s_cmp_eq_u32 s66, 0\ns_cbranch_scc1 L_done")
    A(f"s_cmp_lg_u32 s66, {R_F}\ns_cbranch_scc1 L_ws")
    A("s_cmp_lg_u32 s3, 0\ns_cbranch_scc1 L_done")
    A("L_ws:")
    lspin("ss0", L_CS, 9, 10, 11, 32 if calm else 16)
    A("s_branch L_pre")
    A("L_done:")
    end_wave()
    A("L_post:")
    a_addr(37, 15)
    A("v_bfe_u32 v36, v0, 2, 2")
    for i in range(4): A(f"v_mov_b32 v{16+i}, -1")
    if xl:
        A(f"v_and_b32 v20, 7, v0\ns_lshl_b32 s20, s4, 7\ns_add_u32 s20, s20, {WS_XB}\nv_lshl_add_u32 v20, v20, 3, s20")
        lspin("sg", L_FK, 1, 10, 11, 32 if calm else 8)
        poll("px", lambda: A(f"global_load_dwordx2 v[22:23], v20, {WS} sc1"), lambda: chk_tags([23], 21), 8)
        A("s_getreg_b32 s20, hwreg(HW_REG_XCC_ID, 0, 4)\nv_cmp_ne_u32 vcc, s20, v22\ns_cbranch_vccz L_ng")
        A(f"v_mov_b32 v5, 1\nds_write_b32 v10, v5 offset:{L_MK}")
    A(f"global_store_dwordx4 v37, v[16:19], {WS} sc1")
    A("L_ng:")
    if loc: A(f"v_add_u32 v39, {WS_AL-WS_A}, v37\nglobal_store_dwordx4 v39, v[16:19], {WS}")
    A("v_lshlrev_b32 v38, 3, v36\nv_mov_b32 v5, 1")
    A(f"s_lshl_b32 s20, s4, 11\ns_lshl_b32 s21, s5, {6 if fl else 4}\ns_add_u32 s20, s20, s21\ns_add_u32 s20, s20, {WS_ST}\nv_lshl_add_u32 v36, v36, {4 if fl else 9}, s20")
    A(f"s_waitcnt vmcnt(0)\ns_mov_b64 exec, 1\nds_add_u32 v10, v5 offset:{L_CS}\ns_mov_b64 exec, -1")
    lspin("ss", L_CS, 9, 10, 11, 16 if calm else 8)
    stamp(1)
    for w in range(8): A(f"ds_read_b64 {v2(40+2*w)}, v38 offset:{L_ST+32*w}")
    A("s_waitcnt lgkmcnt(0)")
    A("v_max3_f32 v56, v40, v42, v44\nv_max3_f32 v56, v56, v46, v48\nv_max3_f32 v56, v56, v50, v52\nv_max_f32 v56, v56, v54")
    for w in range(8): A(f"v_sub_f32 v{28+w}, v{40+2*w}, v56")
    for w in range(8): A(f"v_exp_f32 v{28+w}, v{28+w}")
    A("v_mul_f32 v58, v28, v41")
    for w in range(1, 8): A(f"v_fmac_f32 v58, v{28+w}, v{41+2*w}")
    A("s_getreg_b32 s20, hwreg(HW_REG_XCC_ID, 0, 4)\ns_add_u32 s20, s20, s6\nv_mov_b32 v57, s6\nv_mov_b32 v59, s20")
    A("s_mov_b64 exec, 0x1111")
    A(f"global_store_dwordx4 v36, v[56:59], {WS} sc1")
    A("s_mov_b64 exec, -1")
    stamp(2)
    if mlate: A(f"s_cmp_eq_u32 s64, {E_M}\ns_cbranch_scc1 L_ml")
    A(f"s_cmp_eq_u32 s66, 0\ns_cbranch_scc1 L_done\ns_cmp_eq_u32 s66, {R_F}\ns_cbranch_scc1 L_done")
    A("L_pre:")
    assert pi == 2
    A(f"v_and_b32 v37, 7, v0\nv_lshlrev_b32 v37, 3, v37\nv_add_u32 v37, {WS_PV}, v37")
    VL = f"global_load_dwordx2 v[38:39], v37, {WS} sc1"
    def tally():
        A("v_and_b32 v37, 1, v38\nv_cmp_ne_u32 vcc, 0, v37\ns_and_b32 s71, vcc_lo, 0xff\ns_bcnt1_i32_b32 s71, s71\ns_cmp_gt_u32 s71, 4\ns_cselect_b32 s71, 0x2000, 0")
        if use2: A("v_and_b32 v37, 2, v38\nv_cmp_ne_u32 vcc, 0, v37\ns_and_b32 s75, vcc_lo, 0xff\ns_bcnt1_i32_b32 s75, s75\ns_cmp_gt_u32 s75, 4\ns_cselect_b32 s75, 0x4000, 0\ns_or_b32 s71, s71, s75")
        else: A(f"s_or_b32 s71, s71, {p2<<14}")
        A("s_xor_b32 s75, s71, 0x4000")
    if xit == 'pre': end_wave()
    A(f"s_cmp_eq_u32 s66, {R_F}\ns_cbranch_scc1 L_tf")
    A(f"s_cmp_eq_u32 s66, {R_C}\ns_cbranch_scc1 L_tc")
    if bp: lspin("sz", L_CW, 2, 10, 11, 16); wo_finish(0)
    A(f"s_lshl_b32 s20, s4, 11\ns_lshl_b32 s21, s3, {4 if fl else 9}\ns_add_u32 s20, s20, s21\ns_add_u32 s20, s20, {WS_ST}")
    A(f"v_and_b32 v4, 31, v0\nv_lshl_add_u32 v5, v4, {6 if fl else 4}, s20")
    lspin("sb", L_CV, strig, 10, 11, 12 if calm else 4)
    poll("ps", lambda: A(f"global_load_dwordx4 v[40:43], v5, {WS} sc1\n" + VL), lambda: A("v_subrev_u32 v43, s6, v43\nv_xor_b32 v6, s6, v41\nv_lshrrev_b32 v7, 4, v43\nv_or_b32 v6, v6, v7\nv_xor_b32 v7, s6, v39\nv_or_b32 v6, v6, v7\nv_cmp_ne_u32 vcc, 0, v6"), 8)
    tally()
    A("s_getreg_b32 s20, hwreg(HW_REG_XCC_ID, 0, 4)\nv_cmp_eq_u32 vcc, s20, v43")
    A("s_and_b32 s28, vcc_lo, 0xffff\ns_mul_i32 s28, s28, 0x10001\ns_mov_b32 s29, s28\ns_lshr_b32 s30, vcc_lo, 16\ns_mul_i32 s30, s30, 0x10001\ns_mov_b32 s31, s30")
    A("v_mov_b32 v44, v40")
    inrow("v_max_f32", 44, ["row_ror:8", "row_ror:4", "row_ror:2", "row_ror:1"]); xrow("v_max_f32", 44, 45, 16)
    A("v_sub_f32 v40, v40, v44\nv_exp_f32 v40, v40\nv_mul_f32 v44, v40, v42")
    inrow("v_add_f32", 44, ["row_ror:8", "row_ror:4", "row_ror:2", "row_ror:1"]); xrow("v_add_f32", 44, 45, 16)
    A("v_rcp_f32 v44, v44\nv_mul_f32 v40, v40, v44")
    A("s_lshl_b32 s20, s3, 8\nv_lshl_add_u32 v4, v4, 2, s20\nv_lshrrev_b32 v5, 4, v0\nv_lshl_add_u32 v5, v5, 4, s20")
    A(f"ds_write_b32 v4, v40 offset:{L_X}\nds_read_b128 v[12:15], v5 offset:{L_X}\nds_read_b128 v[16:19], v5 offset:{L_X+64}")
    A("v_and_b32 v1, 15, v0\nv_lshrrev_b32 v4, 4, v0\nv_lshlrev_b32 v24, 4, v1\nv_lshl_add_u32 v22, v4, 14, v24\nv_lshlrev_b32 v1, %d, v1\nv_lshl_add_u32 v1, v4, 4, v1" % (7 if fl else 6))
    A(f"s_lshl_b32 s20, s4, 15\ns_lshl_b32 s21, s3, 13\ns_add_u32 s20, s20, s21\ns_add_u32 s20, s20, {WS_A}\nv_add_u32 v1, s20, v{2 if lin else 1}")
    A(f"v_add_u32 v5, {(WS_AL-WS_A) if loc else 0}, v1\nv_cndmask_b32 v6, v1, v5, s[28:29]\nv_cndmask_b32 v7, v1, v5, s[30:31]\nv_add_u32 v8, 4096, v6\nv_add_u32 v9, 4096, v7")
    A("s_lshl_b32 s20, s3, 8\nv_lshl_add_u32 v21, v0, 2, s20")
    if pi is None: A(f"s_lshl_b32 s20, s4, 11\ns_lshl_b32 s21, s67, 8\ns_add_u32 s20, s20, s21\ns_add_u32 s20, s20, {WS_B}\ns_lshl_b32 s21, s3, 16\ns_add_u32 s20, s20, s21\nv_add_u32 v22, s20, v22")
    else:
        A(f"s_and_b32 s20, s4, 3\ns_lshl_b32 s20, s20, 11\ns_lshr_b32 s21, s4, 2\ns_lshl_b32 s21, s21, 15\ns_add_u32 s20, s20, s21\ns_lshl_b32 s21, s67, 8\ns_add_u32 s20, s20, s21\ns_add_u32 s20, s20, {WS_B}")
        A("v_bfe_u32 v22, v0, 4, 1\nv_lshl_add_u32 v22, v22, 16, v24\nv_lshrrev_b32 v25, 5, v0\nv_lshl_add_u32 v22, v25, 13, v22\nv_add_u32 v22, s20, v22\nv_xor_b32 v22, s71, v22")
    A("s_waitcnt lgkmcnt(0)")
    stamp(5)
    AR = lambda c, s_: 40 + 16 * s_ + 4 * c
    D = lambda s_, nt: 72 + 16 * s_ + 4 * nt
    def lda(s_):
        for c in range(4): A(f"global_load_dwordx4 {v4(AR(c,s_))}, v{6+s_+(0 if c<2 else 2)}, {WS} offset:{(64*(c&1)+2048*s_) if fl else (2048*(c&1)+1024*s_)} {lpol}")
    def mm(s_, other_done):
        wr = 12 + 4 * s_
        def fin(nt):
            d = D(s_, nt)
            r = [f"v_pk_mul_f32 {v2(d)}, {v2(d)}, {v2(wr)}", f"v_pk_fma_f32 {v2(d)}, {v2(d+2)}, {v2(wr+2)}, {v2(d)}", f"v_add_f32 v{d}, v{d}, v{d+1}"]
            if other_done: r.append(f"v_add_f32 v{D(0,nt)}, v{D(0,nt)}, v{D(1,nt)}")
            return r
        for c in range(4):
            for nt in (0, 2, 1, 3):
                d = D(s_, nt)
                A(f"v_mfma_f32_16x16x32_bf16 {v4(d)}, {v4(AR(c,s_))}, {v4(104+16*c+4*nt)}, {'0' if c==0 else v4(d)}")
        for grp in zip(fin(0), fin(2), fin(1), fin(3)):
            for l in grp: A(l)
        if other_done: A("v_permlane32_swap_b32 v72, v80\nv_add_f32 v72, v72, v80")
    if dry:
        A("s_mov_b64 s[80:81], 0\ns_mov_b64 s[32:33], 0\ns_mov_b64 s[34:35], 0\ns_mov_b32 s84, 0\ns_mov_b64 exec, 0\ns_branch L_pb0")
        A("L_bdr:\ns_cmp_eq_u32 s84, 0\ns_mov_b32 s84, 1\ns_cbranch_scc1 L_pb1\ns_mov_b64 exec, -1")
    A("s_mov_b64 s[80:81], -1")
    if bdefer:
        if bdefer <= 8: lspin("sd", L_CV, bdefer, 10, 11, 1)
        else: lspin("sd", L_FP, 1, 10, 11, 1)
        A("s_setprio 1"); wo_issue(bearly, 16); lda(0); lda(1); A("s_setprio 3"); wo_finish(8)
        stamp(4)
        A(f"s_mov_b32 s7, {spin}\ns_branch L_pa2")
    if atrig: lspin("sa", L_FO + (4 if atrig > 4 else 0), atrig - 4 if atrig > 4 else atrig, 10, 11, 2)
    A(f"s_mov_b32 s7, {spin}\ns_mov_b64 s[32:33], -1\ns_mov_b64 s[34:35], -1")
    A("L_pa:")
    A("s_mov_b64 exec, s[32:33]"); lda(0)
    A("s_mov_b64 exec, s[34:35]"); lda(1)
    A("s_mov_b64 exec, -1")
    A("L_pa2:")
    A("s_waitcnt vmcnt(4)")
    chk_sent(range(40, 56), 23); A("s_mov_b64 s[32:33], vcc")
    A("s_waitcnt vmcnt(0)")
    chk_sent(range(56, 72), 23); A("s_mov_b64 s[34:35], vcc")
    A("s_cbranch_vccz L_pa1\ns_cmp_eq_u64 s[32:33], 0\ns_cbranch_scc1 L_pa0")
    if tsleep: A(f"s_sleep {tsleep}")
    if bhold:
        A("s_mov_b32 s85, s7"); lspin("sy", L_FO + 4 * (bhold - 1), 1, 10, 11, 2); A("s_mov_b32 s7, s85")
    A("s_sub_u32 s7, s7, 1\ns_cbranch_scc0 L_pa")
    for first in (0, 1):
        sec = 1 - first
        A(f"L_pa{first}:")
        mk = sp(32 + 2 * sec)
        A(f"s_cmp_eq_u64 {mk}, 0\ns_cbranch_scc1 L_pb{first}")
        A(f"s_mov_b64 exec, {mk}"); lda(sec); A("s_mov_b64 exec, -1")
        A(f"L_pb{first}:")
        mm(first, False)
        A(f"s_mov_b64 exec, {mk}\ns_cbranch_execz L_pd{first}")
        for _ in range(pd - 1): lda(sec)
        A(f"L_pc{first}:")
        A(f"s_waitcnt vmcnt({4*(pd-1)})")
        chk_sent(range(40 + 16 * sec, 56 + 16 * sec), 23)
        A(f"s_cbranch_vccz L_pd{first}\ns_mov_b64 exec, vcc")
        lda(sec)
        A(f"s_sub_u32 s7, s7, 1\ns_cbranch_scc0 L_pc{first}\ns_waitcnt vmcnt(0)")
        A(f"L_pd{first}:")
        A("s_mov_b64 exec, s[80:81]")
        stamp(6)
        mm(sec, True)
        if first == 0: A("s_branch L_pe")
    A("L_pe:\ns_nop 0")
    A("v_permlane32_swap_b32 v76, v84\nv_add_f32 v76, v76, v84")
    A("v_permlane16_swap_b32 v72, v76\nv_add_f32 v72, v72, v76")
    A(f"ds_write_b32 v21, v72 offset:{L_RED}")
    A("s_waitcnt lgkmcnt(0)")
    if dry: A("s_cbranch_execz L_bnb")
    A("s_barrier")
    A(f"s_cmp_ge_u32 s3, {2 if R == 8 else 1}\ns_cbranch_scc1 L_done")
    A("L_bnb:")
    for w in range(4): A(f"ds_read_b128 {v4(88+4*w)}, v24 offset:{L_RED+256*w}")
    assert R in (4, 8)
    A("s_waitcnt lgkmcnt(2)\nv_pk_add_f32 v[88:89], v[88:89], v[92:93]\nv_pk_add_f32 v[90:91], v[90:91], v[94:95]")
    A("s_waitcnt lgkmcnt(0)\nv_pk_add_f32 v[96:97], v[96:97], v[100:101]\nv_pk_add_f32 v[98:99], v[98:99], v[102:103]")
    A("v_pk_add_f32 v[88:89], v[88:89], v[96:97]\nv_pk_add_f32 v[90:91], v[90:91], v[98:99]")
    if dry: A("s_cbranch_execz L_bdr")
    A(f"global_store_dwordx4 v22, v[88:91], {WS} sc1")
    stamp(7)
    end_wave()
    A("L_tc:")
    A("s_mov_b32 s26, s67")
    srd(8, P_W1, 512 * 3584); srd(12, P_W2, 1792 * 1024)
    A("v_lshrrev_b32 v23, 4, v0\nv_lshlrev_b32 v23, 4, v23")
    A("v_lshrrev_b32 v1, 2, v0\ns_mov_b32 s20, 3584\nv_mul_lo_u32 v1, v1, s20\nv_and_b32 v12, 3, v0\nv_lshl_add_u32 v1, v12, 4, v1")
    A(f"s_mul_i32 s20, s3, {128*3584}\ns_lshl_b32 s21, s26, 6\ns_add_u32 s20, s20, s21")
    A("v_lshlrev_b32 v18, 6, v23\nv_and_b32 v13, 15, v0\nv_lshl_add_u32 v18, v13, 4, v18")
    A("s_lshl_b32 s27, s26, 15\ns_lshl_b32 s21, s3, 8\ns_add_u32 s27, s27, s21")
    A(f"s_lshl_b32 s23, s3, 14\ns_add_u32 s23, s23, {L_WT}")
    if not w1early: dma([f"buffer_load_dwordx4 v1, s[8:11], s20 offen {w1pol} lds\ns_add_u32 s20, s20, {16*3584}" for i in range(8)], 0)
    def w2load():
        A("s_add_u32 s23, s23, 8192")
        dma([f"buffer_load_dwordx4 v18, s[12:15], s27 offen {wpol} lds\ns_add_u32 s27, s27, 4096" for i in range(8)], 0)
    A("v_lshrrev_b32 v12, 4, v0\nv_bfe_u32 v13, v0, 2, 2\nv_and_b32 v14, 3, v0\nv_lshl_add_u32 v14, v14, 3, s23")
    A("v_lshl_add_u32 v1, v12, 9, v14\nv_lshl_add_u32 v1, v13, 6, v1")
    A("v_lshl_add_u32 v19, v12, 10, v14\nv_lshl_add_u32 v19, v13, 8, v19")
    if not w2late: w2load()
    A("v_and_b32 v20, 31, v0\nv_lshlrev_b32 v20, 3, v20\nv_lshrrev_b32 v21, 5, v0\nv_lshl_add_u32 v20, v21, 2, v20")
    A("s_lshl_b32 s20, s3, 8\nv_add_u32 v20, s20, v20")
    A(f"global_load_dword v22, v20, {sp(P_X)}\nglobal_load_dwordx4 v[28:31], v2, {sp(P_X)}")
    A(f"v_lshlrev_b32 v21, 1, v20\nv_add_u32 v21, {WS_MOD}, v21\nv_add_u32 v24, 4096, v21")
    assert not mlate
    poll("pm", lambda: A(f"global_load_dwordx2 v[40:41], v21, {WS} sc1\nglobal_load_dwordx2 v[42:43], v21, {WS} offset:2048 sc1\nglobal_load_dwordx2 v[44:45], v24, {WS} sc1\n" + VL),
         lambda: chk_tags([41, 43, 45, 39], 46), 2 if mlate else 16)
    tally()
    for c in range(4):
        for mt in range(2):
            for hi in range(2):
                A(f"ds_read_b64_tr_b16 {v2(104+8*c+4*mt+2*hi)}, v1 offset:{(32*c+4*hi)*64+mt*32}")
        if c & 1: A("s_waitcnt lgkmcnt(0)")
    unpack(4, [22], 1)
    unpack(48, [28, 29, 30, 31], 4)
    A("v_pk_add_f32 v[48:49], v[48:49], v[50:51]\nv_pk_add_f32 v[52:53], v[52:53], v[54:55]\nv_pk_add_f32 v[48:49], v[48:49], v[52:53]\nv_add_f32 v48, v48, v49")
    wave_reduce("v_add_f32", 48, 49)
    A(f"v_mul_f32 v48, {f2x(1/512)}, v48\nv_sub_f32 v4, v4, v48\nv_sub_f32 v5, v5, v48")
    def w2tr():
        for tau in range(8):
            for hi in range(2):
                A(f"ds_read_b64_tr_b16 {v2(136+4*tau+2*hi)}, v19 offset:{8192+hi*4096+tau*32}")
            if tau % 4 == 3: A("s_waitcnt lgkmcnt(0)")
    if mlate:
        lspin("sv0", L_CV, 4, 10, 11, 16); lspin("sv", L_FP, 1, 10, 11, 2); w2load(); A("s_waitcnt vmcnt(0)"); w2tr(); stamp(4)
    unpack(6, [40, 44], 2)
    A("v_add_f32 v8, 1.0, v8\nv_add_f32 v9, 1.0, v9\nv_cvt_pk_bf16_f32 v44, v8, v9")
    unpack(8, [44], 1)
    A(f"ds_write_b32 v20, v44 offset:{L_U}\nds_write_b32 v20, v42 offset:{L_U+1024}")
    A("v_add_u32 v21, s20, v23\nv_and_b32 v22, 1, v0\nv_lshl_add_u32 v22, v22, 10, v21")
    for c in range(4): A(f"ds_read_b128 {v4(48+4*c)}, v22 offset:{L_U+64*c}")
    A("s_waitcnt lgkmcnt(0)")
    for c in range(4):
        for mt in range(2):
            A(f"v_mfma_f32_16x16x32_bf16 {v4(24+4*mt)}, {v4(104+8*c+4*mt)}, {v4(48+4*c)}, {'0' if c==0 else v4(24+4*mt)}")
    A("s_mov_b32 exec_lo, 0x00030003\ns_mov_b32 exec_hi, 0x00030003")
    A(f"ds_write_b128 v22, v[24:27] offset:{L_GS}\nds_write_b128 v22, v[28:31] offset:{L_GS+64}")
    A("s_mov_b64 exec, 1\nv_mov_b32 v33, 1")
    A(f"ds_add_u32 v10, v33 offset:{L_CP}")
    A("s_mov_b64 exec, -1")
    A("v_and_b32 v1, 31, v0\nv_lshlrev_b32 v1, 4, v1\nv_lshrrev_b32 v16, 5, v0\nv_lshl_add_u32 v1, v16, 11, v1")
    def bcopy():
        A(f"s_bfe_u32 s20, s4, 0x10001\ns_lshl_b32 s20, s20, 16\ns_lshr_b32 s21, s4, 2\ns_lshl_b32 s21, s21, 13\ns_xor_b32 s21, s21, s71\ns_add_u32 s20, s20, s21\ns_add_u32 s20, s20, {WS_B}")
    if pi is None:
        A(("s_lshr_b32 s21, s4, 1" if rx else f"s_and_b32 s21, {'s4' if R == 8 else 's26'}, {R-1}") + f"\ns_lshl_b32 s21, s21, 14\ns_lshl_b32 s20, s3, 9\ns_add_u32 s20, s20, s21\ns_add_u32 s20, s20, {WS_B}\nv_add_u32 v1, s20, v1")
        A("v_add_u32 v12, 4096, v1\nv_add_u32 v13, 8192, v1\nv_add_u32 v14, 12288, v1")
    else:
        bcopy()
        A("s_lshl_b32 s21, s3, 9\ns_add_u32 s20, s20, s21\nv_add_u32 v1, s20, v1\nv_add_u32 v12, 4096, v1\nv_add_u32 v13, 32768, v1\nv_add_u32 v14, 36864, v1")
    A(f"s_lshl_b32 s20, s3, 8\nv_lshl_add_u32 v22, v16, 2, s20")
    A("v_and_b32 v33, 3, v0\nv_lshlrev_b32 v33, 8, v33\nv_bfe_u32 v32, v0, 3, 1\nv_lshl_add_u32 v32, v32, 6, v33\nv_add_u32 v32, v32, v23")
    A(f"s_mov_b32 s22, {f2x(1/512)}\nv_mov_b32 v34, {f2x(1e-5)}")
    lspin("sp", L_CP, 4, 10, 11, 0 if mlate else 4, lambda: A(f"ds_read_b128 v[24:27], v32 offset:{L_GS}\nds_read_b128 v[28:31], v32 offset:{L_GS+1024}"))
    for qp in ("[1,0,3,2]", "[2,3,0,1]"):
        for i in range(8): A(f"v_add_f32_dpp v{24+i}, v{24+i}, v{24+i} quad_perm:{qp} {DPPF}")
    if dry:
        A("s_mov_b64 s[80:81], 0\ns_mov_b64 s[82:83], 0\ns_mov_b64 exec, 0\ns_branch L_pbd\nL_cdr:\ns_mov_b64 exec, -1")
    A("s_mov_b64 s[80:81], -1\ns_mov_b32 s82, 0x00010001\ns_mov_b32 s83, 0x00010001")
    if not mlate:
        stamp(4)
        lspin("sv0", L_CV, 4, 10, 11, 16); lspin("sv", L_FP, 1, 10, 11, 2)
        if w2late: w2load()
    cs = 13 if cpad else 12
    if pi is None: A(f"s_lshl_b32 s20, s3, {cs+3}\ns_lshl_b32 s21, s26, {cs-6}\ns_add_u32 s20, s20, s21\ns_add_u32 s20, s20, {WS_C}")
    else:
        if cpad: A(f"s_and_b32 s20, s3, 1\ns_lshl_b32 s20, s20, 18\ns_lshr_b32 s21, s3, 1\ns_lshl_b32 s21, s21, 13\ns_xor_b32 s21, s21, s75\ns_add_u32 s20, s20, s21\ns_lshl_b32 s21, s26, 7\ns_add_u32 s20, s20, s21\ns_add_u32 s20, s20, {WS_C}")
        else: A(f"s_and_b32 s20, s3, 1\ns_lshl_b32 s20, s20, 17\ns_lshr_b32 s21, s3, 1\ns_lshl_b32 s21, s21, 13\ns_xor_b32 s21, s21, s75\ns_add_u32 s20, s20, s21\ns_lshl_b32 s21, s26, 6\ns_add_u32 s20, s20, s21\ns_add_u32 s20, s20, {WS_C}")
        cs = 15
    if cpad: A(f"v_bfe_u32 v35, v0, 2, 3\nv_lshlrev_b32 v35, {cs}, v35\nv_and_b32 v36, 3, v0\nv_lshl_add_u32 v35, v36, 4, v35\nv_add_u32 v35, s20, v35")
    else: A("v_bfe_u32 v35, v0, 3, 2\nv_lshlrev_b32 v35, 15, v35\nv_bfe_u32 v36, v0, 2, 1\nv_lshl_add_u32 v35, v36, 12, v35\nv_and_b32 v36, 3, v0\nv_lshl_add_u32 v35, v36, 4, v35\nv_add_u32 v35, s20, v35")
    if not mlate: A("s_waitcnt vmcnt(0)"); w2tr()
    stamp(5)
    G = 40; Hh = 88
    def gather4(name, base, addr, tmp, sleep):
        if g4:
            A(f"s_mov_b32 s7, {spin}")
            for i in range(4): A(f"global_load_dwordx4 {v4(base+4*i)}, {addr(i)} sc1\ns_mov_b64 {sp(28+2*i)}, -1")
            A(f"L_{name}t:\ns_waitcnt vmcnt(0)\ns_mov_b32 s21, 0")
            for i in range(4):
                A(f"s_mov_b64 exec, {sp(28+2*i)}\ns_cbranch_execz L_{name}s{i}")
                A(f"v_max3_u32 v{tmp}, v{base+4*i}, v{base+4*i+1}, v{base+4*i+2}\nv_max_u32 v{tmp}, v{tmp}, v{base+4*i+3}\nv_cmp_eq_u32 vcc, -1, v{tmp}")
                A(f"s_mov_b64 {sp(28+2*i)}, vcc\ns_cbranch_vccz L_{name}s{i}\ns_mov_b64 exec, vcc\nglobal_load_dwordx4 {v4(base+4*i)}, {addr(i)} sc1\ns_mov_b32 s21, 1")
                A(f"L_{name}s{i}:")
            A(f"s_mov_b64 exec, -1\ns_cmp_eq_u32 s21, 0\ns_cbranch_scc1 L_{name}d\ns_sub_u32 s7, s7, 1\ns_cbranch_scc0 L_{name}t\ns_waitcnt vmcnt(0)")
            A(f"L_{name}d:")
            return
        A(f"s_mov_b32 s7, {spin}")
        for _ in range(pd):
            for i in range(4): A(f"global_load_dwordx4 {v4(base+4*i)}, {addr(i)} sc1")
        A(f"L_{name}t:")
        A(f"s_waitcnt vmcnt({4*(pd-1)})")
        for i in range(4): A(f"v_max3_u32 v{tmp+i}, v{base+4*i}, v{base+4*i+1}, v{base+4*i+2}")
        for i in range(4): A(f"v_max_u32 v{tmp+i}, v{tmp+i}, v{base+4*i+3}")
        A(f"v_max3_u32 v{tmp+4}, v{tmp}, v{tmp+1}, v{tmp+2}\nv_max_u32 v{tmp+4}, v{tmp+4}, v{tmp+3}\nv_cmp_eq_u32 vcc, -1, v{tmp+4}\ns_cbranch_vccz L_{name}d")
        for i in range(4): A(f"v_cmp_eq_u32 {sp(28+2*i)}, -1, v{tmp+i}")
        if sleep: A(f"s_sleep {sleep}")
        for i in range(4):
            A(f"s_or_b64 exec, {sp(28+2*i)}, 1\nglobal_load_dwordx4 {v4(base+4*i)}, {addr(i)} sc1")
        A(f"s_mov_b64 exec, -1\ns_sub_u32 s7, s7, 1\ns_cbranch_scc0 L_{name}t")
        A(f"L_{name}d:")
    gather4("pb", Hh, lambda i: f"v{1 if i==0 else 11+i}, {WS}", 56, csleep)
    stamp(6)
    A(f"v_pk_add_f32 {v2(G)}, {v2(Hh)}, {v2(Hh+4)}\nv_pk_add_f32 {v2(G+2)}, {v2(Hh+2)}, {v2(Hh+6)}\nv_pk_add_f32 {v2(G+8)}, {v2(Hh+8)}, {v2(Hh+12)}\nv_pk_add_f32 {v2(G+10)}, {v2(Hh+10)}, {v2(Hh+14)}")
    A(f"v_pk_add_f32 {v2(G)}, {v2(G)}, {v2(G+8)}\nv_pk_add_f32 {v2(G+2)}, {v2(G+2)}, {v2(G+10)}")
    A(f"v_permlane32_swap_b32 v{G}, v{G+2}\nv_permlane32_swap_b32 v{G+1}, v{G+3}")
    A(f"v_pk_add_f32 {v2(G)}, {v2(G)}, {v2(G+2)}")
    A(f"v_pk_fma_f32 v[4:5], {v2(G)}, v[6:7], v[4:5]")
    A("v_pk_mul_f32 v[6:7], v[4:5], v[8:9]\nv_cvt_pk_bf16_f32 v6, v6, v7")
    A(f"ds_write_b32 v20, v6 offset:{L_U}")
    for c in range(4): A(f"ds_read_b128 {v4(44+4*c)}, v21 offset:{L_U+64*c}")
    A("v_add_f32 v16, v4, v5\nv_mul_f32 v17, v4, v4\nv_fmac_f32 v17, v5, v5")
    A("v_permlane32_swap_b32 v16, v17\nv_add_f32 v16, v16, v17")
    xrow("v_add_f32", 16, 17, 16)
    steps = ["row_ror:8", "row_ror:4", "row_ror:2", "row_ror:1"]
    for c in range(4):
        A(f"s_waitcnt lgkmcnt({3-c})")
        for mt in range(2):
            A(f"v_mfma_f32_16x16x32_bf16 {v4(60+4*mt)}, {v4(104+8*c+4*mt)}, {v4(44+4*c)}, {'0' if c==0 else v4(60+4*mt)}")
        inrow("v_add_f32", 16, [steps[c]])
    A("s_mov_b64 exec, s[82:83]")
    A(f"ds_write_b32 v22, v16 offset:{L_RED+128}")
    A(f"ds_write_b128 v21, v[60:63] offset:{L_RED}\nds_write_b128 v21, v[64:67] offset:{L_RED+64}")
    A("s_mov_b64 exec, s[80:81]")
    A("s_waitcnt lgkmcnt(0)")
    if dry: A("s_cbranch_execz L_cnb")
    A("s_barrier\nL_cnb:")
    A(f"ds_read_b64 v[12:13], v33 offset:{L_RED+128}\nds_read_b128 v[40:43], v32 offset:{L_RED}")
    A("s_waitcnt lgkmcnt(0)")
    for qp in ("[1,0,3,2]", "[2,3,0,1]"):
        for r in (12, 13, 40, 41, 42, 43): A(f"v_add_f32_dpp v{r}, v{r}, v{r} quad_perm:{qp} {DPPF}")
    A("v_mul_f32 v12, s22, v12\nv_fma_f32 v14, v13, s22, v34\nv_fma_f32 v14, -v12, v12, v14\nv_max_f32 v14, v14, v34\nv_rsq_f32 v14, v14")
    for q in range(2): A(f"v_pk_fma_f32 {v2(40+2*q)}, {v2(24+2*q)}, v[12:13], {v2(40+2*q)} op_sel_hi:[1,0,1] neg_lo:[0,1,0] neg_hi:[0,1,0]")
    for q in range(2): A(f"v_pk_fma_f32 {v2(40+2*q)}, {v2(40+2*q)}, v[14:15], {v2(28+2*q)} op_sel_hi:[1,0,1]")
    for q in range(2): A(f"v_cvt_pk_bf16_f32 v{48+q}, v{40+2*q}, v{41+2*q}")
    for q in range(2): A(f"v_pk_max_i16 v{48+q}, v{48+q}, 0")
    for q in range(2): A(f"v_mov_b32_dpp v{50+q}, v{48+q} row_shl:8 {DPPF} bound_ctrl:0")
    for tau in (0, 2, 4, 6, 1, 3, 5, 7): A(f"v_mfma_f32_16x16x32_bf16 {v4(56+4*tau)}, v[48:51], {v4(136+4*tau)}, 0")
    for j in (1, 2, 3): A(f"v_mov_b32 v{56+j}, v{56+8*j}")
    for j in range(4): A(f"v_mov_b32_dpp v{56+j}, v{60+8*j} quad_perm:[0,1,2,3] row_mask:0x2 bank_mask:0xf")
    if dry: A("s_cbranch_execz L_cdr")
    A("s_mov_b32 exec_hi, 0")
    A(f"global_store_dwordx4 v35, v[56:59], {WS} sc1")
    stamp(7)
    end_wave()
    A("L_tf:")
    prb("cs")
    A("s_mov_b32 s26, s67\ns_lshr_b32 s20, s26, 3\ns_lshl_b32 s20, s20, 7\ns_and_b32 s21, s26, 7\ns_lshl_b32 s21, s21, 2\ns_add_u32 s20, s20, s21")
    A("v_and_b32 v4, 3, v0\nv_lshrrev_b32 v5, 4, v0\nv_lshl_add_u32 v4, v5, 5, v4\nv_add_u32 v4, s20, v4\nv_lshlrev_b32 v5, 1, v4")
    A(f"global_load_ushort v8, v5, {sp(P_X)}")
    if tw: A(f"global_load_ushort v33, v5, {sp(P_OUT)}")
    A(f"v_lshrrev_b32 v6, 1, v4\nv_lshlrev_b32 v6, 3, v6\nv_add_u32 v6, {WS_MOD}, v6\nv_add_u32 v7, 6144, v6")
    if mlate: lspin("sf0", L_FP, 1, 10, 11, 16)
    poll("pg", lambda: A(f"global_load_dwordx2 v[12:13], v6, {WS} sc1\nglobal_load_dwordx2 v[14:15], v7, {WS} sc1\n" + VL),
         lambda: chk_tags([13, 15, 39], 16), 4 if mlate else 16)
    tally()
    A("v_lshlrev_b32 v8, 16, v8")
    A("v_and_b32 v16, 1, v4\nv_cmp_eq_u32 vcc, 0, v16")
    A("v_lshlrev_b32 v16, 16, v12\nv_and_b32 v17, 0xffff0000, v12\nv_cndmask_b32 v9, v17, v16, vcc")
    A("v_lshlrev_b32 v16, 16, v14\nv_and_b32 v17, 0xffff0000, v14\nv_cndmask_b32 v12, v17, v16, vcc")
    if pi is None:
        A(f"v_bfe_u32 v6, v0, 2, 2\nv_lshlrev_b32 v6, 12, v6\nv_lshl_add_u32 v6, v4, 2, v6\nv_add_u32 v6, {WS_B}, v6")
        if R == 8: A("s_lshl_b32 s20, s4, 14\nv_add_u32 v6, s20, v6")
        if rx: A("s_lshr_b32 s20, s4, 1\ns_lshl_b32 s20, s20, 14\nv_add_u32 v6, s20, v6")
        if cpad: A(f"s_lshl_b32 s20, s26, 13\ns_add_u32 s20, s20, {WS_C}\nv_lshrrev_b32 v7, 2, v0\nv_lshl_add_u32 v7, v7, 6, v2\nv_add_u32 v7, s20, v7\nv_add_u32 v32, 4096, v7")
        else: A(f"s_lshl_b32 s20, s26, 12\ns_add_u32 s20, s20, {WS_C}\nv_add_u32 v7, s20, v2")
    else:
        bcopy()
        A("v_bfe_u32 v6, v0, 2, 1\nv_lshlrev_b32 v6, 12, v6\nv_bfe_u32 v7, v0, 3, 1\nv_lshl_add_u32 v6, v7, 15, v6\nv_lshl_add_u32 v6, v4, 2, v6\nv_add_u32 v6, s20, v6")
        if cpad: A(f"s_and_b32 s20, s26, 15\ns_lshl_b32 s20, s20, 15\ns_lshr_b32 s21, s26, 4\ns_lshl_b32 s21, s21, 13\ns_xor_b32 s21, s21, s75\ns_add_u32 s20, s20, s21\ns_add_u32 s20, s20, {WS_C}\nv_lshrrev_b32 v7, 2, v0\nv_lshl_add_u32 v7, v7, 6, v2\nv_add_u32 v7, s20, v7\nv_add_u32 v32, 4096, v7")
        else: A(f"s_bfe_u32 s20, s26, 0x30001\ns_lshl_b32 s20, s20, 15\ns_and_b32 s21, s26, 1\ns_lshl_b32 s21, s21, 12\ns_add_u32 s20, s20, s21\ns_lshr_b32 s21, s26, 4\ns_lshl_b32 s21, s21, 13\ns_xor_b32 s21, s21, s75\ns_add_u32 s20, s20, s21\ns_add_u32 s20, s20, {WS_C}\nv_add_u32 v7, s20, v2")
    if dry: A("s_mov_b64 exec, 0\ns_branch L_fd\nL_fdr:\ns_mov_b64 exec, -1")
    lspin("sf", L_FP, 1, 10, 11, 16 if calm else 4)
    prb("fp")
    poll("pxb", lambda: A(f"global_load_dword v13, v6, {WS} sc1\nglobal_load_dword v14, v6, {WS} offset:2048 sc1"), lambda: chk_sent([13, 14], 15), xsleep)
    A("v_add_f32 v13, v13, v14")
    inrow("v_add_f32", 13, ["row_ror:8", "row_ror:4"])
    A("v_fma_f32 v8, v9, v13, v8")
    prb("b")
    stamp(6)
    if fdelay: A(f"s_sleep {fdelay}")
    gather4("pc", 40, lambda i: f"v{(7 if i<2 else 32) if cpad else 7}, {WS} offset:{2048*(i&1) if cpad else 1024*i}", 56, fsleep)
    A("L_fd:")
    stamp(7)
    A("v_pk_add_f32 v[16:17], v[40:41], v[44:45]\nv_pk_add_f32 v[18:19], v[42:43], v[46:47]\nv_pk_add_f32 v[24:25], v[48:49], v[52:53]\nv_pk_add_f32 v[26:27], v[50:51], v[54:55]")
    A("v_pk_add_f32 v[16:17], v[16:17], v[24:25]\nv_pk_add_f32 v[18:19], v[18:19], v[26:27]")
    A("v_permlane32_swap_b32 v16, v18\nv_permlane32_swap_b32 v17, v19\nv_pk_add_f32 v[16:17], v[16:17], v[18:19]")
    A("v_permlane16_swap_b32 v16, v17\nv_add_f32 v16, v16, v17")
    inrow("v_add_f32", 16, ["row_ror:8", "row_ror:4"])
    A("v_fma_f32 v16, v12, v16, v8\nv_cvt_pk_bf16_f32 v16, v16, v16")
    if dry: A("s_cbranch_execz L_fdr")
    A("s_mov_b32 exec_lo, 0x000f000f\ns_mov_b32 exec_hi, 0x000f000f")
    A(f"global_store_short v5, v16, {sp(P_OUT)} {osc}")
    A("s_cmp_lg_u32 s26, 0\ns_cbranch_scc1 L_tfe")
    if dbgp:
        A(f"s_mov_b64 exec, 1\nv_mov_b32 v20, s{P_WS}\nv_mov_b32 v21, s{P_WS+1}\nv_mov_b32 v22, s71\nv_mov_b32 v23, s{P_K}\nglobal_store_dwordx4 v10, v[20:23], {sp(P_DBG)}")
    A("s_mov_b64 exec, 1\nv_mov_b32 v18, s6")
    A(f"global_store_dword v10, v18, {WS} {osc}")
    if amp:
        A(f"s_memrealtime s[96:97]\ns_waitcnt lgkmcnt(0)\ns_sub_u32 s94, s96, s94\ns_lshl_b32 s94, s94, {amp}\nL_fy:\ns_memrealtime s[98:99]\ns_waitcnt lgkmcnt(0)\ns_sub_u32 s98, s98, s96\ns_cmp_lt_u32 s98, s94\ns_cbranch_scc1 L_fy")
    if fixend:
        prb("end")
        A(f"L_fx:\ns_memrealtime s[98:99]\ns_waitcnt lgkmcnt(0)\ns_sub_u32 s98, s98, {'s94' if probe else 's96'}\ns_cmp_lt_u32 s98, {fixend}\ns_cbranch_scc1 L_fx")
    A("L_tfe:")
    stamp(4)
    end_wave()
    if stamps:
        A("L_stampout:")
        if st0: A("s_waitcnt lgkmcnt(0)\nv_writelane_b32 v3, s90, 0\ns_cmp_lt_u32 s3, 4\ns_cbranch_scc1 L_so9\nv_writelane_b32 v3, s92, 1\nv_writelane_b32 v3, s94, 2\nL_so9:")
        if stamps == 2:
            A("s_cmp_lg_u32 s2, 32\ns_cbranch_scc1 L_exit\ns_and_b32 s20, s3, 11\ns_cbranch_scc1 L_exit")
            A("s_mov_b64 exec, 0xff\ns_lshl_b32 s20, s3, 3\nv_lshl_add_u32 v1, v0, 2, s20")
            A(f"global_store_dword v1, v3, {sp(P_DBG)}\ns_endpgm")
        A("s_mov_b64 exec, 0xff")
        A("s_mul_i32 s20, s2, 12\ns_add_u32 s20, s20, s3\ns_lshl_b32 s20, s20, 5")
        A(f"s_add_u32 s20, s20, {WS_STAMP}")
        A("v_lshl_add_u32 v1, v0, 2, s20")
        A(f"global_store_dword v1, v3, {WS}")
    A("L_exit:\ns_endpgm")
    A(".p2align 6\n.type L_tab,@object\nL_tab:")
    for wg in range(256):
        r = roles[(xp[wg & 7] if xp else wg & 7), wg >> 3]; skip = T - r['n']
        assert skip < 8, (wg, r)
        A(f".long {(r['pre'] - skip + 16) | skip << 12 | r['e'] << 15 | r['ei'] << 18 | r['l'] << 23 | r['li'] << 25:#x}")
    A("L_endcode:")
    A('.section .rodata,"a"\n.p2align 6')
    A(f".amdhsa_kernel {NAME}")
    for l in ["next_free_vgpr 168", "next_free_sgpr 102", "accum_offset 168", "group_segment_fixed_size 0", "kernarg_size 104",
              "user_sgpr_count 2", "user_sgpr_kernarg_segment_ptr 1", "system_sgpr_workgroup_id_x 1"]:
        A("  .amdhsa_" + l)
    A(".end_amdhsa_kernel")
    return A.finish()

if __name__ == "__main__":
    out = sys.argv[1]; kw = {}
    for a in sys.argv[2:]:
        k, v = a.split("=", 1)
        try: v = ast.literal_eval(v)
        except Exception: pass
        kw[k] = v
    open(out, "w").write(gen(**kw))
    import json
    roles, T = make_plan(kw.get('plan', 'A'), **{k: v for k, v in kw.items() if k in ('cH','cQ','cM','cB','cC','T','c3','Fx','adj')})
    json.dump([[roles[wg & 7, wg >> 3][k] for k in ('e', 'l', 'n')] for wg in range(256)], open(out + ".roles", "w"))
```

```python
import sys, struct, ast
from asmlib import Asm
NAME = "adaLN_cond__gqa_block_cached__dense_activation_relu__decode_kernel"
def f2x(f): return "0x%08x" % struct.unpack("<I", struct.pack("<f", f))[0]

WS_P = 0x180000; WS_PV = 0x15000; WS_XB = 0x14000; WS_QL = 0x10000; WS_H = 0x18000; WS_MOD = 0x4000; WS_Q = 0x8000; WS_ST = 0xC000
WS_AL = 0x140000; WS_A = 0x100000; WS_B = 0x40000; WS_C = 0x80000
WS_STAMP = 0x8000000
L_CG = 0; L_FQ = 4; L_CS = 8; L_CT = 68; L_CP = 16; L_FK = 20; L_CV = 24; L_CW = 28; L_FO = 32; L_MK = 64; L_FP = 12
L_ST = 256; L_Q = 1024; L_GP = 2048; L_X = 3072; L_RED = 4096; L_U = 5120; L_GS = 8192
L_OP = 16384; L_WT = 32768; LDS_SIZE = 98304
DPPF = "row_mask:0xf bank_mask:0xf"
P_X, P_K, P_V, P_WQ, P_WO, P_BX, P_W1, P_W2, P_C, P_WM, P_OUT, P_DBG, P_WS = [36 + 2 * i for i in range(13)]
def sp(n): return f"s[{n}:{n+1}]"
def v4(n): return f"v[{n}:{n+3}]"
def v2(n): return f"v[{n}:{n+1}]"
WS = sp(P_WS)

DOC = '''; ---------------------------------------------------------------------------------------------
; One persistent launch, 256 workgroups (one per CU) x 12 waves.  x = wg&7 = kv head, a = wg>>3 = key split.
;     max, V tiles -> v_perm transpose -> MFMA, workgroup partial summed through LDS and published.
;     H: sa/ca slice of silu(c)@w_mod   Q: LN(x)*(1+ca)+sa, q slice   M: ga/sb/cb/gb slice
;     B: split combine (global softmax weights) + wo slice            C: residual, LN, FFN slice
;        vote) so that the two cross-die hand-off buffers sit next to their readers; affects placement only
; ---------------------------------------------------------------------------------------------'''
NOTES = {
 "L_stream": "---- stream waves: first K loads go out before anything else",
 "L_service": "---- service waves: role decode, LDS flag init, code prefetch into L2, H role (sa/ca GEMV + sentinel fill)",
 "L_gfin": "---- common GEMV end: lane/wave reduction, last wave publishes the tagged granules",
 "L_body": "---- stream waves: rest of K, wait for q, S = K.q, softmax, P.V, workgroup reduction, publish",
 "L_nh": "---- Q role: LN(x)*(1+ca)+sa with the reference's bf16 roundings, q slice",
 "L_role": "---- P role: one wave compares the latency of a few cold loads from neighbouring 8 KiB blocks of d_ws and votes|which block parity is on which die; the vote only picks where the B and C hand-off buffers live (no output depends on it)",
 "L_m": "---- M role: ga/sb/cb/gb GEMV",
 "L_wb": "---- B role, early part: publish XCC id, wo slice -> LDS -> MFMA operands",
 "L_qpoll": "---- w1 slice (C role), q fetch (wave 1)",
 "L_post": "---- wave 2: sentinel fill of this workgroup's partial slot, workgroup softmax max/sum",
 "L_pre": "---- B role, late part: global softmax weights, gather the 32 partials, x wo, publish",
 "L_tc": "---- C role: residual + LN folded into FFN1, relu, FFN2 partial",
 "L_tf": "---- F role: x2 + gb * sum of FFN partials -> d_out; new tag seed -> ws[0]",
 "L_tab": "per-workgroup word: [11:0] extra-key offset+16, [14:12] skipped slots, [17:15] early role, [22:18] index, [24:23] late role, [30:25] index",
}
E_H, E_Q, E_M, E_B, E_P = 1, 2, 3, 4, 5
R_B, R_C, R_F = 1, 2, 3
def make_plan(plan, **pk):
    P = dict(PLANS[plan]); P.update(pk)
    roles = {(x, a): dict(e=0, ei=0, l=0, li=0) for x in range(8) for a in range(32)}
    hi = mi = ci = fi = 0
    for x in range(8):
        a = 0
        for _ in range(P['H'][x]): roles[x, a].update(e=E_H, ei=hi); hi += 1; a += 1
        for c in range(8):
            roles[x, a].update(e=E_Q, ei=c)
            if (x & 1 == P['Fx'] if 'Fx' in P else c in (0, 1, 4, 5)): roles[x, a].update(l=R_F, li=fi); fi += 1
            a += 1
        for c in range(8): roles[x, a].update(e=E_B, ei=c, l=R_B, li=c); a += 1
        for _ in range(P['M'][x]): roles[x, a].update(e=E_M, ei=mi); mi += 1; a += 1
        assert a <= 32
        cand = [b for b in range(31, -1, -1) if roles[x, b]['e'] == 0] + [b for b in range(32) if roles[x, b]['e'] == E_H] + [b for b in range(32) if roles[x, b]['e'] == E_M]
        for b in cand[:P['C'][x]]: roles[x, b].update(l=R_C, li=ci); ci += 1
    assert (hi, mi, ci, fi) == (32, 32, 56, 32), (hi, mi, ci, fi)
    free = [k for k in sorted(roles) if roles[k]['e'] == 0 and roles[k]['l'] == 0]
    assert len(free) >= 8
    for i, k in enumerate(free[:: len(free) // 8][:8]): roles[k].update(e=E_P, ei=i)
    for x in range(8):
        cost = []
        for a in range(32):
            r = roles[x, a]
            c = {0: 0, E_P: 0, E_H: P['cH'], E_Q: P['cQ'], E_M: P['cM'], E_B: P['cB']}[r['e']]
            cb = r['ei'] if r['e'] in (E_Q, E_B) else (r['ei'] >> 2)
            if r['e'] in P['c3'] and cb == 3: c += P['c3'][r['e']]
            if r['l'] == R_C: c += P['cC']
            cost.append(c)
        n = [max(28, P['T'] - 7)] * 32
        for _ in range(1024 - sum(n)):
            b = min((a for a in range(32) if n[a] < P['T']), key=lambda a: (n[a] + cost[a], -a))
            n[b] += 1
        if P.get('adj') and x & 1:
            give = 0
            for a in range(32):
                r = roles[x, a]
                if r['e'] == E_B and (r['ei'] == 3 or r['ei'] >= 8 - P['adj'] + 1): n[a] -= 1; give += 1
            for a in range(32):
                r = roles[x, a]
                if give and r['l'] == R_C and (r['li'] >> 1) % 4 != 3: n[a] += 1; give -= 1
            assert give == 0
        pre = 0
        for a in range(32):
            roles[x, a].update(n=n[a], pre=pre); pre += n[a] - 28
    T = max(r['n'] for r in roles.values()); T += T & 1
    return roles, T
base = dict(cH=2.0, cQ=3.6, cM=4.2, cB=3.6, cC=4.0, c3={E_H: 0.5, E_Q: 1.7, E_M: 1.5, E_B: 1.0}, T=34)
base2 = dict(cH=1.6, cQ=4.0, cM=4.5, cB=3.4, cC=5.3, c3={E_H: 0.7, E_Q: 2.3, E_M: 1.8, E_B: 2.4}, T=36)
PLANS = {
 'A': dict(base, H=[4]*8, M=[4]*8, C=[7]*8),
 'B': dict(base, H=[8,0,8,0,8,0,8,0], M=[8,0,8,0,8,0,8,0], C=[14,0,14,0,14,0,14,0]),
 'C': dict(base, H=[8,0,8,0,8,0,8,0], M=[8,0,8,0,8,0,8,0], C=[7]*8),
 'D': dict(base, H=[8,8,8,8,0,0,0,0], M=[8,0,8,0,8,0,8,0], C=[14,0,14,0,14,0,14,0]),
 'E': dict(base, H=[8,8,8,8,0,0,0,0], M=[8,0,8,0,8,0,8,0], C=[8,6,8,6,8,6,8,6]),
 'G': dict(base2, H=[8,0,8,0,8,0,8,0], M=[8,0,8,0,8,0,8,0], C=[7]*8),
 'H': dict(base2, H=[8,0,8,0,8,0,8,0], M=[8,0,8,0,8,0,8,0], C=[8,8,8,12,8,2,8,2]),
 'I': dict(base2, H=[8,0,8,8,4,0,4,0], M=[8,0,8,0,8,0,8,0], C=[8,8,8,8,8,4,8,4]),
 'J': dict(base2, H=[8,0,8,0,8,0,8,0], M=[8,0,8,0,8,0,8,0], C=[0,14,0,14,0,14,0,14]),
 'K': dict(base2, H=[8,0,8,0,8,0,8,0], M=[8,0,8,0,8,0,8,0], C=[4,10,4,10,4,10,4,10]),
 'L': dict(base2, H=[8,0,8,0,8,0,8,0], M=[8,0,8,0,8,0,8,0], C=[8,6,8,6,8,6,8,6]),
 'N': dict(base2, H=[8,0,8,0,8,0,8,0], M=[2,6,2,6,2,6,2,6], C=[14,0,14,0,14,0,14,0]),
 'O': dict(base2, H=[0,8,0,8,0,8,0,8], M=[2,6,2,6,2,6,2,6], C=[14,0,14,0,14,0,14,0]),
 'P': dict(base2, H=[4,4,4,4,4,4,4,4], M=[2,6,2,6,2,6,2,6], C=[14,0,14,0,14,0,14,0]),
 'S': dict(base2, H=[1,0,1,0,15,0,15,0], M=[15,0,15,0,1,0,1,0], C=[0,16,0,16,0,12,0,12]),
 'U': dict(base2, H=[4,0,4,0,12,0,12,0], M=[12,0,12,0,4,0,4,0], C=[0,16,0,16,0,12,0,12]),
 'F': dict(base, H=[8,4,8,4,4,0,4,0], M=[8,0,8,0,8,0,8,0], C=[10,4,10,4,10,4,10,4]),
}

def gen(win=5, win2=6, wpol="nt", stamps=0, spin=8000000, hsleep=4, qsleep=8, tsleep=1, pace=4, cpre=1, kprio=0, skipw=0, vmid=4, nopoll='', qtrig=22, R=4, cdefer=1, csleep=2, nH=33, nX=31, nL=34, loc=1, lpol='sc1', w1pol='nt', nocomp=0, nosvc=0, sprio=3, nopre=0, nocw=0, lmul=1, xit='', qloc=1, strig=1, qtrig2=38, kpol='nt', vpol='nt', slowfb=0, fixend=0, plan='A', hfirst=1, cpad=1, w2late=1, fsleep=1, dry=0, yprio=0, burst=0, bwin=8, osc='', use2=1, p2=0, amp=0, dbgp=0, pi=None, pn=8, pclip=2000, xn=0, xmask=0x55, mim=1, mrg=1, fprio=0, rprio=3, rsl=0, b0at=0, mlate=0, xp=None, lin=1, atrig=0, pre=0, g4=0, alt1=0, alt2=0, tw=0, probe='', det=1, rx=0, fl=0, w1early=1, nohp=0, ws1=0, ws2=0, bp=0, calm=0, ltab=1, st0=0, bhold=0, xl=1, bearly=0, pd=1, fdelay=0, xsleep=4, bdefer=0, hwait=0, **pk):
    A = Asm()
    roles, T = make_plan(plan, **pk)
    hdr = open("cdna_kernels/" + NAME[:-7] + ".s.ref").read().split("; Override")[0]
    A(hdr.rstrip())
    A(f"; @launch grid=(256,1,1) block=(768,1,1) lds={LDS_SIZE}")
    A(DOC)
    A('.amdgcn_target "amdgcn-amd-amdhsa--gfx950"')
    A(f".text\n.globl {NAME}\n.p2align 8\n.type {NAME},@function\n{NAME}:")
    def stamp(k):
        if stamps:
            A("s_memrealtime s[62:63]\ns_waitcnt lgkmcnt(0)")
            A(f"v_writelane_b32 v3, s62, {k}")
    def prb(name):
        if probe == name: A("s_memrealtime s[94:95]\ns_waitcnt lgkmcnt(0)")
    def end_wave():
        if stamps:
            A("s_branch L_stampout")
        else:
            A("s_endpgm")
    def srd(d, p, size):
        A(f"s_mov_b32 s{d}, s{p}\ns_mov_b32 s{d+1}, s{p+1}\ns_mov_b32 s{d+2}, {size}\ns_mov_b32 s{d+3}, 0x20000")
    def poll(name, loads, check, sleep):
        if name in nopoll.split('+'): return
        top = A.label(name); done = A.label(name + "d")
        A(f"s_mov_b32 s7, {spin * 4 // (4 + sleep)}")
        A(f"{top}:")
        loads()
        A("s_waitcnt vmcnt(0)")
        check()
        A(f"s_cbranch_vccz {done}")
        A("s_mov_b64 exec, vcc")
        if sleep: A(f"s_sleep {sleep}")
        A("s_sub_u32 s7, s7, 1")
        A(f"s_cbranch_scc0 {top}")
        A(f"{done}:")
        A("s_mov_b64 exec, -1")
    def lspin(name, off, n, vz, vt, sleep=1, extra=None):
        top = A.label(name); done = A.label(name + "d")
        A(f"s_mov_b32 s7, {spin * 4 // (2 + sleep)}")
        A(f"{top}:")
        A(f"ds_read_b32 v{vt}, v{vz} offset:{off}")
        if extra: extra()
        A("s_waitcnt lgkmcnt(0)")
        A(f"v_cmp_gt_u32 vcc, {n}, v{vt}")
        A(f"s_cbranch_vccz {done}")
        if lmul > 1: sleep = min(127, max(sleep, 1) * lmul)
        if sleep: A(f"s_sleep {sleep}")
        A("s_sub_u32 s7, s7, 1")
        A(f"s_cbranch_scc0 {top}")
        A(f"{done}:")
    def chk_tags(regs, tmp):
        A(f"v_xor_b32 v{tmp}, s6, v{regs[0]}")
        for r in regs[1:]:
            A(f"v_xor_b32 v{tmp+1}, s6, v{r}")
            A(f"v_or_b32 v{tmp}, v{tmp}, v{tmp+1}")
        A(f"v_cmp_ne_u32 vcc, 0, v{tmp}")
    def chk_sent(regs, tmp):
        regs = list(regs)
        if len(regs) == 1:
            A(f"v_cmp_eq_u32 vcc, -1, v{regs[0]}"); return
        if len(regs) == 2:
            A(f"v_max_u32 v{tmp}, v{regs[0]}, v{regs[1]}"); rest = []
        else:
            A(f"v_max3_u32 v{tmp}, v{regs[0]}, v{regs[1]}, v{regs[2]}"); rest = regs[3:]
        while rest:
            if len(rest) == 1:
                A(f"v_max_u32 v{tmp}, v{tmp}, v{rest[0]}"); rest = []
            else:
                A(f"v_max3_u32 v{tmp}, v{tmp}, v{rest[0]}, v{rest[1]}"); rest = rest[2:]
        A(f"v_cmp_eq_u32 vcc, -1, v{tmp}")
    def xrow(op, v, tmp, which):
        A(f"v_mov_b32 v{tmp}, v{v}")
        A(f"v_permlane{which}_swap_b32 v{v}, v{tmp}")
        A(f"{op} v{v}, v{v}, v{tmp}")
    def inrow(op, v, steps):
        for s in steps:
            A(f"{op}_dpp v{v}, v{v}, v{v} {s} {DPPF}")
    def wave_reduce(op, v, tmp):
        inrow(op, v, ["row_ror:8", "row_ror:4", "row_ror:2", "row_ror:1"])
        xrow(op, v, tmp, 16); xrow(op, v, tmp, 32)
    def unpack(dst, src, n):
        for i in range(n):
            A(f"v_lshlrev_b32 v{dst+2*i}, 16, v{src[i]}")
            A(f"v_and_b32 v{dst+2*i+1}, 0xffff0000, v{src[i]}")
    def rnd(a, b=None):
        if b is None: A(f"v_cvt_pk_bf16_f32 v{a}, v{a}, v{a}\nv_lshlrev_b32 v{a}, 16, v{a}")
        else: A(f"v_cvt_pk_bf16_f32 v{b}, v{a}, v{b}\nv_lshlrev_b32 v{a}, 16, v{b}\nv_and_b32 v{b}, 0xffff0000, v{b}")
    def silu(x, t, n):
        A(f"s_mov_b32 s21, {f2x(-1.4426950408889634)}")
        for i in range(n): A(f"v_mul_f32 v{t+i}, s21, v{x+i}")
        for i in range(n): A(f"v_exp_f32 v{t+i}, v{t+i}")
        for i in range(n): A(f"v_add_f32 v{t+i}, 1.0, v{t+i}")
        for i in range(n): A(f"v_rcp_f32 v{t+i}, v{t+i}")
        for i in range(n): A(f"v_mul_f32 v{x+i}, v{x+i}, v{t+i}")
    def gemv_perm(W, T, npair):
        for u in range(npair):
            for w in range(4):
                a = W + 8 * u + w; b = W + 8 * u + 4 + w
                A(f"v_perm_b32 v{T+8*u+2*w}, v{b}, v{a}, s24")
                A(f"v_perm_b32 v{T+8*u+2*w+1}, v{b}, v{a}, s25")
    def gemv_dot(T, X, acc):
        for u in range(len(X)):
            for e in range(8):
                c = "0" if u == 0 else f"v{acc+e}"
                A(f"v_dot2_f32_bf16 v{acc+e}, v{T+8*u+e}, v{X[u]}, {c}")
    def mktag():
        A("s_waitcnt lgkmcnt(0)\ns_mul_i32 s6, s6, 0x9E3779B1\ns_add_u32 s6, s6, 0x7F4A7C15")
    def paced(loads, w):
        if skipw and (w or skipw > 1): return
        for i, l in enumerate(loads):
            if w and i >= w: A(f"s_waitcnt vmcnt({w-1})")
            A(l)

    if st0: A("s_memrealtime s[90:91]")
    if probe == "start": A("s_memrealtime s[94:95]")
    A("s_cmp_ge_u32 s2, 256\ns_cbranch_scc1 L_exit")
    A("s_load_dwordx16 s[36:51], s[0:1], 0")
    rest_ld = "s_load_dwordx8 s[52:59], s[0:1], 64\ns_load_dwordx2 s[60:61], s[0:1], 96\ns_load_dword s68, s[32:33], s34"
    A("s_getpc_b64 s[30:31]\nL_pc:\ns_add_u32 s32, s30, L_tab-L_pc\ns_addc_u32 s33, s31, 0\ns_lshl_b32 s34, s2, 2")
    if not ltab: A(rest_ld)
    if cpre >= 2:
        A(f"s_lshr_b32 s5, s2, 3\ns_cmp_lg_u32 s5, {cpre-2}\ns_cbranch_scc1 L_ncp0")
        A(f"v_lshlrev_b32 v1, 7, v0\nv_cmp_gt_u32 vcc, L_endcode-L_pc-4, v1\ns_and_saveexec_b64 s[20:21], vcc\ns_cbranch_execz L_ncp1\nglobal_load_dword v167, v1, s[30:31]\nL_ncp1:\ns_mov_b64 exec, s[20:21]\nL_ncp0:")
    A("v_lshrrev_b32 v1, 6, v0\nv_and_b32 v0, 63, v0\nv_readfirstlane_b32 s3, v1")
    A("s_and_b32 s4, s2, 7\ns_lshr_b32 s5, s2, 3")
    if xp: A(f"s_lshl_b32 s4, s4, 2\ns_lshr_b32 s4, {sum(h << (4*i) for i, h in enumerate(xp)):#x}, s4\ns_and_b32 s4, s4, 7")
    if fixend: A("s_memrealtime s[96:97]")
    A("s_mov_b32 s24, 0x05040100\ns_mov_b32 s25, 0x07060302")
    A("v_lshlrev_b32 v2, 4, v0")
    if stamps:
        A("v_mov_b32 v3, 0")
        if not st0: stamp(0)
    A("s_cmp_lt_u32 s3, 4\ns_cbranch_scc1 L_service")
    STREAM_MARK = len(A.lines)
    A("L_service:")
    if ltab: A(rest_ld)
    A(f"s_setprio {sprio}")
    if cpre == 1:
        A(f"s_lshl_b32 s20, s5, 2\ns_add_u32 s20, s20, s3\ns_sub_u32 s20, s20, 96\ns_cmp_ge_u32 s20, (L_endcode-{NAME})/1024\ns_cbranch_scc1 L_ncp")
        A(f"s_sub_u32 s30, s30, L_pc-{NAME}\ns_subb_u32 s31, s31, 0")
        A("s_lshl_b32 s20, s20, 10\nv_add_u32 v14, s20, v2")
        A("global_load_dwordx4 v[164:167], v14, s[30:31]")
        A("L_ncp:")
    A("v_lshrrev_b32 v12, 3, v0\nv_and_b32 v13, 7, v0\nv_mov_b32 v16, 0\nv_mov_b32 v17, 0\nv_mov_b32 v18, 0\nv_mov_b32 v19, 0")
    A("s_mov_b64 exec, 0x1f\nds_write_b128 v2, v[16:19]\ns_mov_b64 exec, -1")
    A("s_waitcnt lgkmcnt(0)")
    A("s_bfe_u32 s64, s68, 0x3000f\ns_bfe_u32 s65, s68, 0x50012\ns_bfe_u32 s66, s68, 0x20017\ns_bfe_u32 s67, s68, 0x60019")
    A("s_lshr_b32 s69, s65, 2\ns_and_b32 s70, s65, 3")
    A(f"s_cmp_lg_u32 s64, {E_H}\ns_cbranch_scc1 L_nh")
    A("s_lshr_b32 s20, s70, 1\ns_lshl_b32 s20, s20, 8\ns_lshl_b32 s21, s3, 6\ns_add_u32 s20, s20, s21")
    A("v_lshl_add_u32 v14, v12, 3, s20")
    A("s_mov_b32 s21, 6144\nv_mul_lo_u32 v1, v14, s21\nv_lshl_add_u32 v1, v13, 4, v1\nv_lshlrev_b32 v14, 1, v14")
    A("s_and_b32 s20, s70, 1\ns_lshl_b32 s20, s20, 10\ns_lshl_b32 s21, s69, 7\ns_add_u32 s20, s20, s21")
    A("s_waitcnt lgkmcnt(0)")
    srd(8, P_WM, 512 * 6144)
    A(f"global_load_dwordx4 v[4:7], v14, {sp(P_C)}")
    for i in range(8):
        A(f"buffer_load_dwordx4 {v4(40+4*i)}, v1, s[8:11], s20 offen {wpol}")
        if i < 7: A("s_add_u32 s20, s20, 6144")
    A(f"s_load_dword s6, {WS}, 0")
    A("s_barrier")
    A("s_lshl_b32 s20, s65, 2\ns_add_u32 s20, s20, s3")
    if cpad: A(f"s_lshr_b32 s21, s20, 3\ns_lshl_b32 s21, s21, 15\ns_and_b32 s22, s20, 7\ns_lshl_b32 s22, s22, 11\ns_add_u32 s21, s21, s22\ns_add_u32 s21, s21, {WS_C + (0 if use2 else (p2^1)<<14)}\nv_lshrrev_b32 v14, 2, v0\nv_lshl_add_u32 v14, v14, 6, v2\nv_add_u32 v14, s21, v14\nv_add_u32 v11, 16384, v14")
    else: A(f"s_lshr_b32 s21, s20, 4\ns_lshl_b32 s21, s21, 15\ns_and_b32 s22, s20, 15\ns_lshl_b32 s22, s22, 10\ns_add_u32 s21, s21, s22\ns_add_u32 s21, s21, {WS_C + (0 if use2 else (p2^1)<<14)}\nv_add_u32 v14, s21, v2\nv_add_u32 v11, 16384, v14")
    if use2: A(f"s_lshl_b32 s21, s20, 10\ns_add_u32 s21, s21, {WS_B}\nv_add_u32 v15, s21, v2")
    else: A(f"s_lshr_b32 s21, s20, 5\ns_lshl_b32 s21, s21, 15\ns_and_b32 s22, s20, 31\ns_lshl_b32 s22, s22, 9\ns_add_u32 s21, s21, s22\ns_add_u32 s21, s21, {WS_B + (p2<<14)}\nv_add_u32 v15, s21, v2")
    A("s_cmp_eq_u32 s3, 3\ns_cselect_b32 exec_hi, 0, -1")
    for i in range(4): A(f"v_mov_b32 v{16+i}, -1")
    A("s_mov_b64 exec, -1")
    for i in range(4): A(f"v_mov_b32 v{20+i}, -1")
    A(f"global_store_dwordx4 v14, v[16:19], {WS} sc1")
    if use2: A(f"global_store_dwordx4 v11, v[16:19], {WS} sc1")
    else: A("s_mov_b32 exec_hi, 0")
    A(f"global_store_dwordx4 v15, v[20:23], {WS} sc1\ns_mov_b64 exec, -1")
    A(f"s_waitcnt vmcnt({10+use2})")
    unpack(24, [4, 5, 6, 7], 4); silu(24, 32, 8)
    for i in range(4): A(f"v_cvt_pk_bf16_f32 v{24+i}, v{24+2*i}, v{25+2*i}")
    mktag()
    A(f"s_and_b32 s26, s70, 1\ns_lshl_b32 s26, s26, 13\ns_lshr_b32 s21, s70, 1\ns_lshl_b32 s21, s21, 12\ns_add_u32 s26, s26, s21\ns_lshl_b32 s21, s69, 9\ns_add_u32 s26, s26, s21\ns_add_u32 s26, s26, {WS_H}")
    A(f"s_waitcnt vmcnt({2+use2})")
    stamp(1)
    gemv_perm(40, 104, 4)
    gemv_dot(104, [24, 25, 26, 27], 32)
    A("L_gfin:")
    acc = 32
    for e in range(4): A(f"v_permlane32_swap_b32 v{acc+e}, v{acc+e+4}")
    for e in range(4): A(f"v_add_f32 v{acc+e}, v{acc+e}, v{acc+e+4}")
    for e in range(2): A(f"v_permlane16_swap_b32 v{acc+e}, v{acc+e+2}")
    for e in range(2): A(f"v_add_f32 v{acc+e}, v{acc+e}, v{acc+e+2}")
    for e in range(2): A(f"v_add_f32_dpp v{acc+e}, v{acc+e}, v{acc+e} row_ror:8 {DPPF}")
    A("v_lshrrev_b32 v14, 4, v0\nv_lshlrev_b32 v14, 3, v14\nv_lshl_add_u32 v14, v13, 5, v14\ns_lshl_b32 s21, s3, 8\nv_add_u32 v14, s21, v14")
    A(f"ds_write_b64 v14, v[32:33] offset:{L_GP}")
    A("v_mov_b32 v14, 0\nv_mov_b32 v15, 1")
    A("s_waitcnt vmcnt(0)")
    A("s_mov_b64 exec, 1")
    A(f"ds_add_rtn_u32 v15, v14, v15 offset:{L_CG}")
    A("s_mov_b64 exec, -1")
    A("v_lshlrev_b32 v14, 3, v0")
    A("s_waitcnt lgkmcnt(0)")
    A("v_readfirstlane_b32 s21, v15")
    A("s_cmp_lg_u32 s21, 3\ns_cbranch_scc1 L_gdone")
    A("s_mov_b32 exec_hi, 0")
    for w in range(4): A(f"ds_read_b64 {v2(32+2*w)}, v14 offset:{L_GP+256*w}")
    A("v_add_u32 v14, s26, v14")
    A("s_waitcnt lgkmcnt(0)")
    A("v_pk_add_f32 v[32:33], v[32:33], v[34:35]\nv_pk_add_f32 v[36:37], v[36:37], v[38:39]\nv_pk_add_f32 v[32:33], v[32:33], v[36:37]")
    A(f"s_cmp_lg_u32 s64, {E_H}\ns_cbranch_scc1 L_gnh")
    A(f"v_mov_b32 v34, v33\nv_mov_b32 v33, s6\nv_mov_b32 v35, s6\nv_add_u32 v14, s26, v2\nglobal_store_dwordx4 v14, v[32:35], {WS} sc1\ns_mov_b64 exec, -1\ns_branch L_gdone\nL_gnh:")
    A("v_cvt_pk_bf16_f32 v32, v32, v33\nv_mov_b32 v33, s6")
    if qloc:
        A(f"s_cmp_lg_u32 s64, {E_Q}\ns_cbranch_scc1 L_gnl")
        A(f"v_add_u32 v15, {WS_QL-WS_Q}, v14\nglobal_store_dwordx2 v15, v[32:33], {WS}")
        A("L_gnl:")
    A(f"global_store_dwordx2 v14, v[32:33], {WS} sc1")
    A("s_mov_b64 exec, -1")
    A("L_gdone:")
    stamp(3)
    if mlate: A(f"s_cmp_eq_u32 s64, {E_M}\ns_cbranch_scc1 L_done")
    A("s_branch L_qpoll")

    NM = T - 28; nmask = T - min(r['n'] for r in roles.values())
    NW = 39 - T
    S0 = len(A.lines)
    A("L_stream:")
    if kprio: A(f"s_setprio {kprio}")
    A("s_sub_u32 s21, s3, 4")
    if yprio == 1: A("s_cmp_lt_u32 s21, 4\ns_cbranch_scc1 L_yp\ns_setprio 1\nL_yp:")
    A("v_bfe_u32 v1, v0, 2, 2\nv_lshlrev_b32 v1, 8, v1\nv_lshrrev_b32 v4, 4, v0\nv_lshl_add_u32 v1, v4, 6, v1\nv_and_b32 v4, 3, v0\nv_lshl_add_u32 v1, v4, 4, v1")
    A(f"s_lshl_b32 s19, s4, 23\ns_mul_i32 s16, s5, {28*8192}\ns_add_u32 s16, s16, s19\ns_lshl_b32 s17, s21, 12\ns_add_u32 s16, s16, s17")
    A("s_mov_b32 s10, 0x4000000\ns_mov_b32 s11, 0x20000")
    hcnt = sum(PLANS[plan]['H'][x] << (4 * x) for x in range(8))
    A(f"s_lshl_b32 s17, s4, 2\ns_lshr_b32 s35, {hcnt:#x}, s17\ns_and_b32 s35, s35, {15 if hfirst else 0}")
    A("s_waitcnt lgkmcnt(0)")
    A(f"s_mov_b32 s8, s{P_K}\ns_mov_b32 s9, s{P_K+1}")
    A("s_cmp_ge_u32 s5, s35\ns_cbranch_scc1 L_s1\ns_barrier\nL_s1:")
    KR = lambda t: 168 - 4 * T + 4 * t
    nS = (T + 3) // 4; nP = (T + 7) // 8
    assert T == 34
    first_v = 14
    vslots = [12 + 4 * i for i in range(NW)] + [KR(i) for i in range(first_v, T)]
    VR = lambda t: vslots[t % len(vslots)]
    st = {"cur": None}
    mpos = [6 + (j * (T - 12)) // max(nmask, 1) for j in range(nmask)]
    rest = list(range(NM, NM + 6)) + list(range(nmask, NM)) + list(range(NM + 6, T))
    perm = []
    for t in range(T):
        if t in mpos: perm.append(mpos.index(t))
        else: perm.append(rest.pop(0))
    first_nm = min(t for t in range(T) if perm[t] < NM)
    assert first_nm >= win
    hist = []
    def wcount(w):
        c = 0
        for n_, m_ in enumerate(reversed(hist)):
            if not m_:
                if c == w - 1: return n_
                c += 1
        return None
    def ld(which, t):
        o = perm[t]
        hist.append(o < nmask)
        if o < NM:
            A(f"s_add_u32 s20, s17, {o*8192}"); st["cur"] = None; imm = 0
            if o < nmask: A(f"s_cmp_gt_u32 s18, {o}\ns_cselect_b32 s20, 0x4000000, s20")
        else:
            key = (o - NM) >> 2; imm = ((o - NM) & 3) * 1024
            if st["cur"] != key:
                A(f"s_add_u32 s20, s16, {key*32768}"); st["cur"] = key
        if which == "K": A(f"buffer_load_dwordx4 {v4(KR(t))}, v1, s[8:11], s20 offen offset:{imm} {kpol}")
        else: A(f"buffer_load_dwordx4 {v4(VR(t))}, v2, s[12:15], s20 offen offset:{imm} {vpol}")
    korder = list(range(T))
    seq = [("K", t) for t in korder] + [("V", t) for t in range(NW)]
    for i, (wh, t) in enumerate(seq):
        if i == win:
            if st0: A("s_memrealtime s[92:93]")
            if ltab: A(rest_ld)
            A("s_branch L_body")
            S1 = len(A.lines)
            A("L_body:")
            srd(12, P_V, 0x4000000)
            if ws1: A(f"s_cmp_lt_u32 s21, {ws1}\ns_cselect_b64 vcc, -1, 0")
            if st0: A("s_waitcnt vmcnt(3)\ns_memrealtime s[94:95]")
            if not b0at: A("s_cmp_lt_u32 s5, s35\ns_cbranch_scc1 L_s2\ns_barrier\nL_s2:")
            A("s_waitcnt lgkmcnt(0)")
            A(f"s_and_b32 s17, s68, 0xfff\ns_bfe_u32 s18, s68, 0x3000c\ns_add_u32 s17, s17, {896-16}\ns_lshl_b32 s17, s17, 13\ns_add_u32 s17, s17, s19\ns_lshl_b32 s19, s21, 10\ns_add_u32 s17, s17, s19")
        if b0at and i == win + b0at: A("s_cmp_lt_u32 s5, s35\ns_cbranch_scc1 L_s2\ns_barrier\nL_s2:")
        if i == T and kprio: A("s_setprio 0")
        if wcount(win) is not None and perm[t] >= nmask:
            if xn and 8 <= i < 8 + xn:
                lb = A.label("w"); A(f"s_waitcnt vmcnt({wcount(win+1)})\ns_bitcmp0_b32 {xmask:#x}, s4\ns_cbranch_scc1 {lb}\ns_waitcnt vmcnt({wcount(win)})\n{lb}:")
            else: A(f"s_waitcnt vmcnt({wcount(win)})")
        ld(wh, t)
        if i == qtrig: A(f"v_mov_b32 v8, 0\nv_mov_b32 v9, 1\ns_mov_b64 exec, 1\nds_max_u32 v8, v9 offset:{L_FK}\ns_mov_b64 exec, -1")
        if hwait and i == hwait: A(f"v_mov_b32 v8, 0\nv_mov_b32 v9, 1\ns_mov_b64 exec, 1\nds_write_b32 v8, v9 offset:72\ns_mov_b64 exec, -1")
        if i == qtrig2 and qloc: A(f"v_mov_b32 v8, 0\nv_mov_b32 v9, 2\ns_mov_b64 exec, 1\nds_max_u32 v8, v9 offset:{L_FK}\ns_mov_b64 exec, -1")
    viss = NW
    A("v_and_b32 v8, 3, v0\nv_lshlrev_b32 v8, 8, v8\nv_lshrrev_b32 v9, 4, v0\nv_lshl_add_u32 v8, v9, 6, v8\nv_bfe_u32 v9, v0, 2, 2\nv_lshl_add_u32 v8, v9, 4, v8\nv_mov_b32 v9, 0")
    if mim: A(f"s_mov_b32 s22, {f2x(1.4426950408889634)}\ns_mov_b32 s26, {f2x(128**-0.5)}\ns_mov_b32 s27, s26")
    else: A(f"s_mov_b32 s22, {f2x(128**-0.5*1.4426950408889634)}")
    for t in range(nmask): A(f"s_cmp_gt_u32 s18, {t}\ns_cselect_b32 s{28+t}, 0xff800000, 0")
    stamp(1)
    lspin("sq", L_FQ, 1, 9, 10, 2, lambda: A(f"ds_read_b128 v[4:7], v8 offset:{L_Q}"))
    stamp(2)
    kl = {"landed": T + NW - win - 3}
    DR = lambda t: 8 if t == 0 else KR(t - 1)
    SR = lambda t: (8 + t) if t < 4 else KR((t >> 2) - 1) + (t & 3)
    def M(t):
        if t >= kl["landed"]:
            A(f"s_waitcnt vmcnt({len(hist)-1-t})"); kl["landed"] = t + 1
        A(f"v_mfma_f32_16x16x32_bf16 {v4(DR(t))}, {v4(KR(t))}, v[4:7], 0")
    def AB(t):
        d = DR(t)
        A(f"v_add_f32_dpp v{d}, v{d+1}, v{d} row_shl:4 {DPPF} bound_ctrl:0")
        A(f"v_add_f32_dpp v{d+2}, v{d+3}, v{d+2} row_shl:4 {DPPF} bound_ctrl:0")
    def S(t):
        d = DR(t)
        A(f"v_add_f32_dpp v{SR(t)}, v{d+2}, v{d} row_shl:8 {DPPF} bound_ctrl:0")
    mark0 = len(A.lines)
    if yprio == 2: A("s_cmp_lt_u32 s21, 4\ns_cbranch_scc1 L_yp\ns_setprio 1\nL_yp:")
    M(0); M(1); M(2)
    for t in range(T + 1):
        if t < T: AB(t)
        if t >= 1:
            S(t - 1)
            if vmid and t - 2 >= first_v and (t - 2 - first_v) % vmid == 0:
                ld("V", viss); viss += 1
        if t + 3 < T: M(t + 3)
    TM = KR(11)
    Sl = [SR(t) for t in range(T)]
    if mim:
        for t in range(0, T, 2): rnd(Sl[t], Sl[t + 1])
        for t in range(0, T, 2): A(f"v_pk_mul_f32 {v2(Sl[t])}, {v2(Sl[t])}, s[26:27]")
        if vmid: ld("V", viss); viss += 1
        for t in range(0, T, 2): rnd(Sl[t], Sl[t + 1])
    for t in range(nmask): A(f"v_add_f32 v{Sl[mpos[t]]}, s{28+t}, v{Sl[mpos[t]]}")
    A(f"v_max3_f32 v{TM}, v{Sl[0]}, v{Sl[1]}, v{Sl[2]}")
    A(f"v_max3_f32 v{TM+1}, v{Sl[3]}, v{Sl[4]}, v{Sl[5]}")
    i = 6; k = 0
    while i < T:
        A(f"v_max3_f32 v{TM+k}, v{TM+k}, v{Sl[i]}, v{Sl[i+1]}"); i += 2; k ^= 1
    A(f"v_max_f32 v{TM}, v{TM}, v{TM+1}")
    xrow("v_max_f32", TM, TM + 1, 16); xrow("v_max_f32", TM, TM + 1, 32)
    A(f"v_mul_f32 v{TM}, s22, v{TM}")
    for t in range(T): A(f"v_fma_f32 v{Sl[t]}, v{Sl[t]}, s22, -v{TM}")
    for t in range(T): A(f"v_exp_f32 v{Sl[t]}, v{Sl[t]}")
    if vmid: ld("V", viss); viss += 1
    A(f"v_add_f32 v{TM+1}, v{Sl[0]}, v{Sl[1]}\nv_add_f32 v{TM+2}, v{Sl[2]}, v{Sl[3]}")
    for t in range(4, T): A(f"v_add_f32 v{TM+1+(t&1)}, v{TM+1+(t&1)}, v{Sl[t]}")
    A(f"v_add_f32 v{TM+1}, v{TM+1}, v{TM+2}")
    xrow("v_add_f32", TM + 1, TM + 2, 16); xrow("v_add_f32", TM + 1, TM + 2, 32)
    A(f"s_lshl_b32 s19, s21, 5\nv_lshl_add_u32 v{TM+2}, v0, 3, s19\nv_mov_b32 v4, 0\nv_mov_b32 v5, 1")
    A("s_mov_b64 exec, 0xf")
    A(f"ds_write_b64 v{TM+2}, {v2(TM)} offset:{L_ST}")
    A("s_mov_b64 exec, 1")
    A(f"ds_add_u32 v4, v5 offset:{L_CS}")
    A("s_mov_b64 exec, -1")
    GR = [(0, 2), (2, 10), (10, 18), (18, 26), (26, 34)]
    def pack(u, d):
        for t in range(GR[u][0], GR[u][1], 2): A(f"v_cvt_pk_bf16_f32 v{d+(t-GR[u][0])//2}, v{Sl[t]}, v{Sl[t+1]}")
    for u in range(3): pack(u, KR(8 + u))
    A("s_waitcnt lgkmcnt(0)")
    AC = [8, KR(0)]
    PA = [KR(1), KR(2), KR(12), KR(13)]; PB = [KR(3), KR(4), KR(5), KR(6)]
    TT = [TM, 4]
    def zero(P):
        for j in range(4):
            for i in range(4): A(f"v_mov_b32 v{P[j]+i}, 0")
    def vers(P, src, n=4):
        for j in range(4):
            ctl = "quad_perm:[0,1,2,3]" if j == 0 else f"row_shr:{4*j}"
            for i in range(n): A(f"v_mov_b32_dpp v{P[j]+i}, v{src+i} {ctl} row_mask:0xf bank_mask:{1<<j:#x}")
    zero(PA)
    A(f"v_mov_b32 v{TM+1}, 0\nv_mov_b32 v5, 0")
    stamp(3)
    EO = (0, 4, 1, 5, 2, 6, 3, 7)
    def pv(u):
        t0, t1 = GR[u]; n = t1 - t0
        vers(PA, KR(8 + u), n // 2)
        for k, e in enumerate(EO):
            Tm = TT[k & 1]; ac = AC[e >> 2]
            for p in range(n // 2):
                a = VR(t0 + 2 * p) + (e >> 1); b = VR(t0 + 2 * p + 1) + (e >> 1)
                A(f"v_perm_b32 v{Tm+p}, v{b}, v{a}, s{24+(e&1)}")
            c = "0" if (u == 0 and k < 2) else v4(ac)
            if n == 8: A(f"v_mfma_f32_16x16x32_bf16 {v4(ac)}, {v4(Tm)}, {v4(PA[e&3])}, {c}")
            else: A(f"v_mfma_f32_16x16x16_bf16 {v4(ac)}, {v2(Tm)}, {v2(PA[e&3])}, {c}")
    ns = len(vslots)
    TA = [VR(t) for t in range(T - ns, 18)][:8]
    assert len(TA) == 8
    X = KR(8); ONE = KR(7) + 2; CNT = KR(7) + 3
    def rescale():
        A(f"v_and_b32 v1, 3, v0\nv_lshlrev_b32 v1, 3, v1\nv_mov_b32 v{X+10}, 0\nv_mov_b32 v{ONE}, 1\ns_lshl_b32 s19, s21, 5\nv_add_u32 v{X+9}, s19, v1")
        def rd():
            for w in range(8): A(f"ds_read_b32 v{X+w}, v1 offset:{L_ST+32*w}")
            A(f"ds_read_b32 v{X+8}, v{X+9} offset:{L_ST}")
        lspin("sm", L_CS, 9, X + 10, X + 11, 1, rd)
        A(f"s_mov_b64 exec, 1\nds_add_rtn_u32 v{X+11}, v{X+10}, v{ONE} offset:{L_CT}\ns_mov_b64 exec, -1")
        A(f"v_max3_f32 v{X}, v{X}, v{X+1}, v{X+2}\nv_max3_f32 v{X+3}, v{X+3}, v{X+4}, v{X+5}\nv_max3_f32 v{X}, v{X}, v{X+6}, v{X+7}\nv_max_f32 v{X}, v{X}, v{X+3}")
        A(f"v_sub_f32 v{X}, v{X+8}, v{X}\nv_exp_f32 v{X}, v{X}")
        A(f"s_lshl_b32 s19, s21, 11\nv_add_u32 v1, s19, v2\ns_and_b32 s19, s21, 4\nv_mov_b32 v{CNT}, s19")
        for ac in AC:
            for q in range(2): A(f"v_pk_mul_f32 {v2(ac+2*q)}, {v2(ac+2*q)}, {v2(X)} op_sel_hi:[1,0]")
        for t in range(18, T, 2): A(f"v_pk_mul_f32 {v2(Sl[t])}, {v2(Sl[t])}, {v2(X)} op_sel_hi:[1,0]")
        pack(3, TT[0]); pack(4, TT[1])
        zero(PB); vers(PA, TT[0]); vers(PB, TT[1])
        A(f"s_waitcnt lgkmcnt(0)\nv_readfirstlane_b32 s23, v{X+11}")
    while viss < min(win2, ns):
        ld("V", viss); viss += 1
    done_t = 0
    ends = {g[1] - 1: u for u, g in enumerate(GR[:3])}
    for L in range(T):
        inc = L >= 18 and L % 2 == 1
        can = lambda: viss < T and sum(1 for j in range(L + 1, viss) if perm[j] >= nmask) < (bwin if L >= T - burst else win2 + (pre if L in ends else 0)) + (perm[viss] < nmask) and (viss < ns or done_t > viss - ns)
        if can() or L in ends or inc:
            A(f"s_waitcnt vmcnt({viss-1-L})")
        while can():
            ld("V", viss); viss += 1
            if viss == T:
                assert L > 17
                A(f"s_mov_b64 exec, 1\nds_add_u32 v2, v{ONE} offset:{L_CV}\ns_mov_b64 exec, -1")
        if L in ends:
            pv(ends[L]); done_t = L + 1
            if L == 17: rescale()
        if inc:
            if L == T - 1: stamp(4)
            p = ((L - 18) % 8) // 2
            for e in EO: A(f"v_perm_b32 v{TA[e]+p}, v{VR(L)+(e>>1)}, v{VR(L-1)+(e>>1)}, s{24+(e&1)}")
            if p == 3:
                for e in EO: A(f"v_mfma_f32_16x16x32_bf16 {v4(AC[e>>2])}, {v4(TA[e])}, {v4((PA if L < 26 else PB)[e&3])}, {v4(AC[e>>2])}")
    assert viss == T
    if nocomp:
        keep = [l for l in A.lines[mark0:] if not l.startswith(("v_mfma", "v_perm_b32", "v_add_f32", "v_exp", "v_fma", "v_max", "v_cvt", "v_permlane"))]
        A.lines[mark0:] = keep
    for hf in range(2): A(f"ds_write_b128 v1, {v4(AC[hf])} offset:{L_OP+hf*1024}")
    A(f"s_mov_b64 exec, 1\nds_add_u32 v{CNT}, v{ONE} offset:{L_FO}")
    A("s_mov_b64 exec, -1")
    if stamps: A("s_waitcnt lgkmcnt(0)")
    stamp(5)
    A("s_cmp_lg_u32 s23, 0\ns_cbranch_scc1 L_done")
    A(f"s_setprio {rprio}")
    def a_addr(d, t):
        if lin: A(f"s_lshl_b32 s20, s4, 15\ns_lshr_b32 s19, s5, 4\ns_lshl_b32 s19, s19, 10\ns_add_u32 s20, s20, s19\ns_and_b32 s19, s5, 15\ns_lshl_b32 s19, s19, 4\ns_add_u32 s20, s20, s19\ns_add_u32 s20, s20, {WS_A}")
        else: A(f"s_lshl_b32 s20, s4, 15\ns_lshl_b32 s19, s5, {7 if fl else 6}\ns_add_u32 s20, s20, s19\ns_add_u32 s20, s20, {WS_A}")
        if mrg:
            assert lin
            A(f"v_and_b32 v{d}, 3, v0\nv_lshlrev_b32 v{d}, 13, v{d}\nv_bfe_u32 v{t}, v0, 2, 2\nv_lshl_add_u32 v{d}, v{t}, 11, v{d}\nv_lshrrev_b32 v{t}, 4, v0\nv_lshl_add_u32 v{d}, v{t}, 8, v{d}\nv_add_u32 v{d}, s20, v{d}")
            return
        A(f"v_bfe_u32 v{d}, v0, 2, 2\nv_lshlrev_b32 v{d}, 13, v{d}")
        if fl: A(f"v_lshrrev_b32 v{t}, 5, v0\nv_lshl_add_u32 v{d}, v{t}, 12, v{d}\nv_bfe_u32 v{t}, v0, 4, 1\nv_lshl_add_u32 v{d}, v{t}, 6, v{d}")
        else: A(f"v_lshrrev_b32 v{t}, 4, v0\nv_lshl_add_u32 v{d}, v{t}, 11, v{d}")
        A(f"v_and_b32 v{t}, 3, v0\nv_lshl_add_u32 v{d}, v{t}, {8 if lin else 4}, v{d}\nv_add_u32 v{d}, s20, v{d}")
    a_addr(36, 37)
    A(f"v_add_u32 v37, {WS_AL-WS_A}, v36\nv_mov_b32 v38, 0\nv_mov_b32 v39, 1")
    if xl: A(f"ds_read_b32 v29, v38 offset:{L_MK}\ns_waitcnt lgkmcnt(0)\nv_readfirstlane_b32 s26, v29")
    for hf in range(2 if det else 0):
        def rd8():
            for j in range(4): A(f"ds_read_b128 {v4(40+8*j)}, v2 offset:{L_OP+(4*hf+j)*2048}\nds_read_b128 {v4(44+8*j)}, v2 offset:{L_OP+(4*hf+j)*2048+1024}")
        if rsl and hf: lspin("so3", L_FO + 4, 3, 38, 28, 1)
        lspin("so", L_FO + 4 * hf, 4, 38, 28, 1 - hf, rd8)
        for q in range(4): A(f"v_pk_add_f32 {v2(40+2*q)}, {v2(40+2*q)}, {v2(48+2*q)}")
        for q in range(4): A(f"v_pk_add_f32 {v2(56+2*q)}, {v2(56+2*q)}, {v2(64+2*q)}")
        for q in range(4): A(f"v_pk_add_f32 {v2((12 if hf == 0 else 40)+2*q)}, {v2(40+2*q)}, {v2(56+2*q)}")
        if hf:
            for q in range(4): A(f"v_pk_add_f32 {v2(12+2*q)}, {v2(12+2*q)}, {v2(40+2*q)}")
    for i in range(0 if det else 8):
        d = 12 if i == 0 else 20
        lspin("so", L_FO + 4 * i, 1, 38, 28, 1 if (calm and i < 6) else 0, lambda: A(f"ds_read_b128 {v4(d)}, v2 offset:{L_OP+i*2048}\nds_read_b128 {v4(d+4)}, v2 offset:{L_OP+i*2048+1024}"))
        if i:
            for q in range(4): A(f"v_pk_add_f32 {v2(12+2*q)}, {v2(12+2*q)}, {v2(20+2*q)}")
    for q in range(4): A(f"v_cvt_pk_bf16_f32 v{12+q}, v{12+2*q}, v{13+2*q}")
    if loc: A(f"global_store_dwordx4 v37, v[12:15], {WS}")
    if xl: A("s_cmp_eq_u32 s26, 0\ns_cbranch_scc1 L_ng2")
    A(f"global_store_dwordx4 v36, v[12:15], {WS} sc1")
    A("L_ng2:")
    A(f"ds_write_b32 v38, v39 offset:{L_FP}")
    stamp(6)
    end_wave()
    blk = A.lines[S0:S1]; del A.lines[S0:S1]; A.lines[STREAM_MARK:STREAM_MARK] = blk

    A("L_nh:")
    A(f"s_cmp_lg_u32 s64, {E_Q}\ns_cbranch_scc1 L_nq")
    A("v_lshlrev_b32 v1, 17, v12\nv_lshl_add_u32 v1, v13, 4, v1")
    A("s_lshl_b32 s20, s3, 20\ns_lshl_b32 s21, s4, 10\ns_add_u32 s20, s20, s21\ns_mov_b32 s26, s65\ns_lshl_b32 s21, s26, 7\ns_add_u32 s20, s20, s21")
    A("s_lshl_b32 s21, s3, 8\nv_lshl_add_u32 v14, v0, 2, s21")
    A("s_waitcnt lgkmcnt(0)")
    srd(8, P_WQ, 512 * 8192)
    A(f"global_load_dwordx4 v[8:11], v2, {sp(P_X)}\nglobal_load_dword v15, v14, {sp(P_X)}")
    for i in range(16):
        A(f"buffer_load_dwordx4 {v4(40+4*i)}, v1, s[8:11], s20 offen {wpol}")
        if i < 15: A("s_add_u32 s20, s20, 8192")
    A(f"s_load_dword s6, {WS}, 0")
    A("s_barrier")
    A(f"s_lshl_b32 s26, s26, 8\ns_lshl_b32 s21, s4, 11\ns_add_u32 s26, s26, s21\ns_add_u32 s26, s26, {WS_Q}")
    A("s_waitcnt vmcnt(16)")
    unpack(32, [8, 9, 10, 11], 4)
    A("v_add_f32 v4, v32, v33")
    for i in range(2, 8): A(f"v_add_f32 v4, v4, v{32+i}")
    wave_reduce("v_add_f32", 4, 5)
    A(f"v_mul_f32 v4, {f2x(1/512)}, v4")
    for i in range(8): A(f"v_sub_f32 v{32+i}, v{32+i}, v4")
    A("v_mul_f32 v6, v32, v32")
    for i in range(1, 8): A(f"v_fmac_f32 v6, v{32+i}, v{32+i}")
    wave_reduce("v_add_f32", 6, 5)
    A(f"v_mul_f32 v5, {f2x(1/512)}, v6"); rnd(4, 5)
    A(f"v_add_f32 v5, {f2x(1e-5)}, v5"); rnd(5)
    A("v_sqrt_f32 v5, v5"); rnd(5)
    A("v_rcp_f32 v5, v5")
    unpack(8, [15], 1)
    A("v_sub_f32 v8, v8, v4\nv_sub_f32 v9, v9, v4"); rnd(8, 9)
    A("v_mul_f32 v8, v8, v5\nv_mul_f32 v9, v9, v5"); rnd(8, 9)
    A(f"v_lshlrev_b32 v15, 2, v14\nv_add_u32 v15, {WS_H}, v15\nv_add_u32 v10, 4096, v15\nv_add_u32 v11, 8192, v15\nv_add_u32 v7, 12288, v15")
    mktag()
    A("s_waitcnt vmcnt(0)")
    stamp(1)
    prb("wq")
    gemv_perm(40, 104, 8)
    if hwait: A("v_mov_b32 v4, 0"); lspin("sh", 72, 1, 4, 5, 2)
    poll("ph", lambda: [A(f"global_load_dwordx4 {v4(16+4*k)}, v{(15,10,11,7)[k]}, {WS} sc1") for k in range(4)],
         lambda: chk_tags([17 + 2 * k for k in range(8)], 4), hsleep)
    stamp(2)
    prb("h")
    A("v_add_f32 v16, v16, v20\nv_add_f32 v17, v18, v22\nv_add_f32 v18, v24, v28\nv_add_f32 v19, v26, v30")
    rnd(16, 17); rnd(18, 19)
    A("v_add_f32 v18, 1.0, v18\nv_add_f32 v19, 1.0, v19"); rnd(18, 19)
    A("v_pk_mul_f32 v[24:25], v[8:9], v[18:19]"); rnd(24, 25)
    A("v_pk_add_f32 v[24:25], v[24:25], v[16:17]")
    A("L_gx:")
    A("v_cvt_pk_bf16_f32 v24, v24, v25")
    A(f"ds_write_b32 v14, v24 offset:{L_X}")
    A("s_lshl_b32 s21, s3, 8\nv_lshl_add_u32 v15, v12, 5, s21")
    A(f"ds_read_b128 v[24:27], v15 offset:{L_X}\nds_read_b128 v[28:31], v15 offset:{L_X+16}")
    A("s_waitcnt lgkmcnt(0)")
    gemv_dot(104, list(range(24, 32)), 32)
    A("s_branch L_gfin")

    A("L_nq:")
    A("s_waitcnt lgkmcnt(0)")
    A(f"s_load_dword s6, {WS}, 0")
    mktag()
    A("s_barrier")
    A("L_role:")
    A("s_cmp_eq_u32 s64, 0\ns_cbranch_scc1 L_qpoll")
    A(f"s_cmp_eq_u32 s64, {E_B}\ns_cbranch_scc1 L_wb")
    A(f"s_cmp_lg_u32 s64, {E_P}\ns_cbranch_scc1 L_m")
    if pi == 2:
        A("s_cmp_lg_u32 s3, 0\ns_cbranch_scc1 L_qpoll")
        A(f"s_lshl_b32 s20, s65, 7\ns_add_u32 s20, s20, {WS_P}\ns_add_u32 s72, s{P_WS}, s20\ns_addc_u32 s73, s{P_WS+1}, 0")
        A("v_lshlrev_b32 v4, 10, v12\nv_lshl_add_u32 v4, v13, 4, v4")
        for k in range(4):
            A("global_store_dwordx4 v4, v[16:19], s[72:73] sc1")
            if k < 3: A("v_add_u32 v4, 8192, v4")
        for k in range(4): A(f"s_mov_b32 s{80+k}, -1")
        A("s_waitcnt vmcnt(0)")
        stamp(1)
        A("s_memtime s[76:77]\ns_waitcnt lgkmcnt(0)")
        cur = 76
        for i in range(4 * pn):
            k = (i + (i >> 2)) & 3; nx = 154 - cur
            A(f"s_load_dword s74, s[72:73], {8192*k + 1024*(i>>2)}\ns_waitcnt lgkmcnt(0)\ns_memtime s[{nx}:{nx+1}]\ns_waitcnt lgkmcnt(0)\ns_sub_u32 s21, s{nx}, s{cur}\ns_min_u32 s{80+k}, s{80+k}, s21")
            cur = nx
        stamp(2)
        A("s_add_u32 s20, s80, s82\ns_add_u32 s21, s81, s83\ns_cmp_gt_u32 s20, s21\ns_cselect_b32 s22, 1, 0\ns_cselect_b32 s80, s81, s80\ns_cselect_b32 s82, s83, s82")
        if not use2: A("s_getreg_b32 s20, hwreg(HW_REG_XCC_ID, 2, 1)\ns_xor_b32 s20, s22, s20")
        if use2: A("s_cmp_gt_u32 s80, s82\ns_cselect_b32 s21, 1, 0")
        if use2: A(f"s_getreg_b32 s20, hwreg(HW_REG_XCC_ID, 2, 1)\ns_xor_b32 s22, s22, s20\ns_getreg_b32 s20, hwreg(HW_REG_XCC_ID, 0, 1)\ns_xor_b32 s21, s21, s20\ns_xor_b32 s21, s21, {1 ^ ((WS_P >> 19) & 1)}\ns_lshl_b32 s21, s21, 1\ns_or_b32 s20, s21, s22")
        A(f"v_mov_b32 v4, s20\nv_mov_b32 v5, s6\ns_lshl_b32 s20, s65, 3\ns_add_u32 s20, s20, {WS_PV}\nv_mov_b32 v8, s20")
        A(f"s_mov_b64 exec, 1\nglobal_store_dwordx2 v8, v[4:5], {WS} sc1\ns_mov_b64 exec, -1")
    A("s_branch L_qpoll\nL_m:")
    if mlate:
        A("s_branch L_qpoll\nL_ml:")
        if mlate <= 8: lspin("sl", L_CV, mlate, 10, 11, 4)
        else: lspin("sl", L_FP, 1, 10, 11, 4)
        A("s_setprio 0\nv_lshrrev_b32 v12, 3, v0\nv_and_b32 v13, 7, v0")
    A("s_mov_b32 s21, 98304\nv_mul_lo_u32 v1, v12, s21\nv_lshl_add_u32 v1, v13, 4, v1")
    A(f"s_mul_i32 s20, s3, {128*6144}\ns_add_u32 s26, s70, 2\ns_lshl_b32 s26, s26, 10\ns_lshl_b32 s21, s69, 7\ns_add_u32 s26, s26, s21\ns_add_u32 s20, s20, s26")
    A("s_lshl_b32 s21, s3, 8\nv_lshl_add_u32 v14, v0, 2, s21")
    srd(8, P_WM, 512 * 6144)
    A(f"global_load_dword v15, v14, {sp(P_C)}")
    paced([f"buffer_load_dwordx4 {v4(40+4*i)}, v1, s[8:11], s20 offen {wpol}\ns_add_u32 s20, s20, 6144" for i in range(16)], 0)
    A(f"s_lshl_b32 s26, s26, 1\ns_add_u32 s26, s26, {WS_MOD-4096}")
    A("s_waitcnt vmcnt(0)")
    unpack(24, [15], 1); silu(24, 32, 2)
    gemv_perm(40, 104, 8)
    A("s_branch L_gx")
    def dma(loads, w):
        if skipw: return
        for i, l in enumerate(loads):
            if w and i >= w: A(f"s_waitcnt vmcnt({w-1})")
            A(f"s_add_u32 m0, s23, {1024*i}")
            A(l)
    def wo_issue(lo, hi):
        srd(8, P_WO, 4096 * 1024)
        A("v_lshrrev_b32 v1, 3, v0\nv_lshlrev_b32 v1, 10, v1\nv_and_b32 v4, 7, v0\nv_lshl_add_u32 v1, v4, 4, v1")
        A(f"s_lshl_b32 s20, s4, 19\ns_lshl_b32 s21, s3, 17\ns_add_u32 s20, s20, s21\ns_lshl_b32 s21, s65, 7\ns_add_u32 s20, s20, s21\ns_add_u32 s20, s20, {8192*lo}")
        A(f"s_lshl_b32 s23, s3, 14\ns_add_u32 s23, s23, {L_WT+1024*lo}")
        dma([f"buffer_load_dwordx4 v1, s[8:11], s20 offen {wpol} lds\ns_add_u32 s20, s20, 8192" for i in range(lo, hi)], pace)
    def wo_finish(w):
        A(f"s_lshl_b32 s23, s3, 14\ns_add_u32 s23, s23, {L_WT}")
        A("v_bfe_u32 v1, v0, 2, 2\nv_lshlrev_b32 v1, 10, v1\nv_lshrrev_b32 v4, 4, v0\nv_lshl_add_u32 v1, v4, 12, v1\nv_and_b32 v4, 3, v0\nv_lshl_add_u32 v1, v4, 3, v1\nv_add_u32 v1, s23, v1")
        A(f"s_waitcnt vmcnt({w})")
        k = 0
        for c in range(4):
            for nt in range(4):
                for hi in range(2):
                    A(f"ds_read_b64_tr_b16 {v2(104+16*c+4*nt+2*hi)}, v1 offset:{(c+4*hi)*128+nt*32}")
                    k += 1
                    if k >= 12 and k % 4 == 0: A("s_waitcnt lgkmcnt(8)")
        A("s_waitcnt lgkmcnt(0)")
    A("L_wb:")
    if xl:
        A("s_cmp_lg_u32 s3, 0\ns_cbranch_scc1 L_wb1")
        A(f"s_getreg_b32 s20, hwreg(HW_REG_XCC_ID, 0, 4)\nv_mov_b32 v4, s20\nv_mov_b32 v5, s6\ns_lshl_b32 s20, s4, 7\ns_lshl_b32 s21, s65, 3\ns_add_u32 s20, s20, s21\ns_add_u32 s20, s20, {WS_XB}\nv_mov_b32 v6, s20")
        A(f"s_mov_b64 exec, 1\nglobal_store_dwordx2 v6, v[4:5], {WS} sc1\ns_mov_b64 exec, -1\ns_nop 0")
        A("L_wb1:")
    if bp:
        A("s_cmp_eq_u32 s3, 1\ns_cbranch_scc1 L_qpoll\ns_cmp_eq_u32 s3, 2\ns_cbranch_scc1 L_qpoll")
        srd(8, P_WO, 4096 * 1024)
        A("v_lshrrev_b32 v1, 3, v0\nv_lshlrev_b32 v1, 10, v1\nv_and_b32 v4, 7, v0\nv_lshl_add_u32 v1, v4, 4, v1\ns_lshr_b32 s22, s3, 1")
        A(f"s_lshl_b32 s20, s4, 19\ns_lshl_b32 s21, s22, 18\ns_add_u32 s20, s20, s21\ns_lshl_b32 s21, s65, 7\ns_add_u32 s20, s20, s21")
        A(f"s_lshl_b32 s23, s22, 15\ns_add_u32 s23, s23, {L_WT}\ns_mov_b32 s22, 31")
        A(f"L_wbl:\ns_mov_b32 m0, s23\ns_waitcnt vmcnt({bp-1})\nbuffer_load_dwordx4 v1, s[8:11], s20 offen {wpol} lds\ns_add_u32 s20, s20, 8192\ns_add_u32 s23, s23, 1024\ns_sub_u32 s22, s22, 1\ns_cbranch_scc0 L_wbl")
        A(f"v_mov_b32 v4, 0\nv_mov_b32 v5, 1\ns_waitcnt vmcnt(0)\ns_mov_b64 exec, 1\nds_add_u32 v4, v5 offset:{L_CW}\ns_mov_b64 exec, -1")
    elif not bdefer: wo_issue(0, 16); wo_finish(0)
    elif bearly: wo_issue(0, bearly)
    A("L_qpoll:")
    if w1early:
        A(f"s_cmp_lg_u32 s66, {R_C}\ns_cbranch_scc1 L_qp1\ns_mov_b32 s26, s67")
        srd(8, P_W1, 512 * 3584)
        A("v_lshrrev_b32 v1, 2, v0\ns_mov_b32 s20, 3584\nv_mul_lo_u32 v1, v1, s20\nv_and_b32 v12, 3, v0\nv_lshl_add_u32 v1, v12, 4, v1")
        A(f"s_mul_i32 s20, s3, {128*3584}\ns_lshl_b32 s21, s26, 6\ns_add_u32 s20, s20, s21")
        A(f"s_lshl_b32 s23, s3, 14\ns_add_u32 s23, s23, {L_WT}")
        dma([f"buffer_load_dwordx4 v1, s[8:11], s20 offen {w1pol} lds\ns_add_u32 s20, s20, {16*3584}" for i in range(8)], 0)
        A("L_qp1:")
    if nosvc:
        A(f"v_mov_b32 v10, 0\nv_mov_b32 v5, 1\nds_write_b32 v10, v5 offset:{L_FQ}\ns_mov_b64 exec, 1\nds_add_u32 v10, v5 offset:{L_CS}")
        end_wave()
    if tw:
        A("s_cmp_lg_u32 s3, 3\ns_cbranch_scc1 L_tw")
        A(f"s_lshl_b32 s20, s4, 23\ns_mul_i32 s21, s5, {28*8192}\ns_add_u32 s21, s21, s20\ns_add_u32 s20, s20, {896*8192}")
        A(f"v_mov_b32 v4, s21\nv_add_u32 v5, {28*8192-128}, v4\nv_mov_b32 v6, s20\nv_mov_b32 v7, 0\ns_mov_b64 exec, 1")
        A(f"global_load_dword v24, v4, {sp(P_V)} nt\nglobal_load_dword v25, v5, {sp(P_V)} nt\nglobal_load_dword v26, v6, {sp(P_V)} nt\nglobal_load_dword v27, v7, {sp(P_W2)} nt")
        A("s_waitcnt vmcnt(0)\ns_mov_b64 exec, -1\nL_tw:")
    A("v_mov_b32 v10, 0\nv_mov_b32 v23, 0\nv_mov_b32 v35, 64")
    A("s_cmp_lg_u32 s3, 1\ns_cbranch_scc1 L_np")
    A(f"s_lshl_b32 s21, s4, 11\ns_add_u32 s21, s21, {WS_Q}\nv_add_u32 v14, s21, v2")
    lspin("sk", L_FK, 1, 10, 11, 16 if calm else 4)
    def ldq():
        if qloc:
            A(f"ds_read_b32 v11, v10 offset:{L_FK}\ns_waitcnt lgkmcnt(0)\nv_readfirstlane_b32 s21, v11\ns_lshr_b32 s21, s21, 1\ns_and_b32 s21, s21, s7")
            if slowfb: A(f"s_cmp_lt_u32 s7, {spin-slowfb}")
            A(f"s_cselect_b32 s21, 0, {WS_QL-WS_Q}\nv_add_u32 v15, s21, v14")
        for i in range(2): A(f"global_load_dwordx4 {v4(16+4*i)}, v{15 if qloc else 14}, {WS} offset:{1024*i} sc1")
    poll("pq", ldq, lambda: chk_tags([17, 19, 21, 23], 4), qsleep)
    A("v_mov_b32 v17, v18\nv_mov_b32 v21, v22\nv_lshlrev_b32 v14, 3, v0\nv_mov_b32 v5, 1")
    A(f"ds_write_b64 v14, v[16:17] offset:{L_Q}\nds_write_b64 v14, v[20:21] offset:{L_Q+512}")
    A(f"ds_write_b32 v10, v5 offset:{L_FQ}")
    stamp(4)
    A("L_np:")
    if xit == 'np': end_wave()
    A("s_cmp_eq_u32 s3, 2\ns_cbranch_scc1 L_post")
    if mlate: A(f"s_cmp_eq_u32 s64, {E_M}\ns_cbranch_scc1 L_ml")
    A("s_cmp_eq_u32 s66, 0\ns_cbranch_scc1 L_done")
    A(f"s_cmp_lg_u32 s66, {R_F}\ns_cbranch_scc1 L_ws")
    A("s_cmp_lg_u32 s3, 0\ns_cbranch_scc1 L_done")
    A("L_ws:")
    lspin("ss0", L_CS, 9, 10, 11, 32 if calm else 16)
    A("s_branch L_pre")
    A("L_done:")
    end_wave()
    A("L_post:")
    a_addr(37, 15)
    A("v_bfe_u32 v36, v0, 2, 2")
    for i in range(4): A(f"v_mov_b32 v{16+i}, -1")
    if xl:
        A(f"v_and_b32 v20, 7, v0\ns_lshl_b32 s20, s4, 7\ns_add_u32 s20, s20, {WS_XB}\nv_lshl_add_u32 v20, v20, 3, s20")
        lspin("sg", L_FK, 1, 10, 11, 32 if calm else 8)
        poll("px", lambda: A(f"global_load_dwordx2 v[22:23], v20, {WS} sc1"), lambda: chk_tags([23], 21), 8)
        A("s_getreg_b32 s20, hwreg(HW_REG_XCC_ID, 0, 4)\nv_cmp_ne_u32 vcc, s20, v22\ns_cbranch_vccz L_ng")
        A(f"v_mov_b32 v5, 1\nds_write_b32 v10, v5 offset:{L_MK}")
    A(f"global_store_dwordx4 v37, v[16:19], {WS} sc1")
    A("L_ng:")
    if loc: A(f"v_add_u32 v39, {WS_AL-WS_A}, v37\nglobal_store_dwordx4 v39, v[16:19], {WS}")
    A("v_lshlrev_b32 v38, 3, v36\nv_mov_b32 v5, 1")
    A(f"s_lshl_b32 s20, s4, 11\ns_lshl_b32 s21, s5, {6 if fl else 4}\ns_add_u32 s20, s20, s21\ns_add_u32 s20, s20, {WS_ST}\nv_lshl_add_u32 v36, v36, {4 if fl else 9}, s20")
    A(f"s_waitcnt vmcnt(0)\ns_mov_b64 exec, 1\nds_add_u32 v10, v5 offset:{L_CS}\ns_mov_b64 exec, -1")
    lspin("ss", L_CS, 9, 10, 11, 16 if calm else 8)
    stamp(1)
    for w in range(8): A(f"ds_read_b64 {v2(40+2*w)}, v38 offset:{L_ST+32*w}")
    A("s_waitcnt lgkmcnt(0)")
    A("v_max3_f32 v56, v40, v42, v44\nv_max3_f32 v56, v56, v46, v48\nv_max3_f32 v56, v56, v50, v52\nv_max_f32 v56, v56, v54")
    for w in range(8): A(f"v_sub_f32 v{28+w}, v{40+2*w}, v56")
    for w in range(8): A(f"v_exp_f32 v{28+w}, v{28+w}")
    A("v_mul_f32 v58, v28, v41")
    for w in range(1, 8): A(f"v_fmac_f32 v58, v{28+w}, v{41+2*w}")
    A("s_getreg_b32 s20, hwreg(HW_REG_XCC_ID, 0, 4)\ns_add_u32 s20, s20, s6\nv_mov_b32 v57, s6\nv_mov_b32 v59, s20")
    A("s_mov_b64 exec, 0x1111")
    A(f"global_store_dwordx4 v36, v[56:59], {WS} sc1")
    A("s_mov_b64 exec, -1")
    stamp(2)
    if mlate: A(f"s_cmp_eq_u32 s64, {E_M}\ns_cbranch_scc1 L_ml")
    A(f"s_cmp_eq_u32 s66, 0\ns_cbranch_scc1 L_done\ns_cmp_eq_u32 s66, {R_F}\ns_cbranch_scc1 L_done")
    A("L_pre:")
    assert pi == 2
    A(f"v_and_b32 v37, 7, v0\nv_lshlrev_b32 v37, 3, v37\nv_add_u32 v37, {WS_PV}, v37")
    VL = f"global_load_dwordx2 v[38:39], v37, {WS} sc1"
    def tally():
        A("v_and_b32 v37, 1, v38\nv_cmp_ne_u32 vcc, 0, v37\ns_and_b32 s71, vcc_lo, 0xff\ns_bcnt1_i32_b32 s71, s71\ns_cmp_gt_u32 s71, 4\ns_cselect_b32 s71, 0x2000, 0")
        if use2: A("v_and_b32 v37, 2, v38\nv_cmp_ne_u32 vcc, 0, v37\ns_and_b32 s75, vcc_lo, 0xff\ns_bcnt1_i32_b32 s75, s75\ns_cmp_gt_u32 s75, 4\ns_cselect_b32 s75, 0x4000, 0\ns_or_b32 s71, s71, s75")
        else: A(f"s_or_b32 s71, s71, {p2<<14}")
        A("s_xor_b32 s75, s71, 0x4000")
    if xit == 'pre': end_wave()
    A(f"s_cmp_eq_u32 s66, {R_F}\ns_cbranch_scc1 L_tf")
    A(f"s_cmp_eq_u32 s66, {R_C}\ns_cbranch_scc1 L_tc")
    if bp: lspin("sz", L_CW, 2, 10, 11, 16); wo_finish(0)
    A(f"s_lshl_b32 s20, s4, 11\ns_lshl_b32 s21, s3, {4 if fl else 9}\ns_add_u32 s20, s20, s21\ns_add_u32 s20, s20, {WS_ST}")
    A(f"v_and_b32 v4, 31, v0\nv_lshl_add_u32 v5, v4, {6 if fl else 4}, s20")
    lspin("sb", L_CV, strig, 10, 11, 12 if calm else 4)
    poll("ps", lambda: A(f"global_load_dwordx4 v[40:43], v5, {WS} sc1\n" + VL), lambda: A("v_subrev_u32 v43, s6, v43\nv_xor_b32 v6, s6, v41\nv_lshrrev_b32 v7, 4, v43\nv_or_b32 v6, v6, v7\nv_xor_b32 v7, s6, v39\nv_or_b32 v6, v6, v7\nv_cmp_ne_u32 vcc, 0, v6"), 8)
    tally()
    A("s_getreg_b32 s20, hwreg(HW_REG_XCC_ID, 0, 4)\nv_cmp_eq_u32 vcc, s20, v43")
    A("s_and_b32 s28, vcc_lo, 0xffff\ns_mul_i32 s28, s28, 0x10001\ns_mov_b32 s29, s28\ns_lshr_b32 s30, vcc_lo, 16\ns_mul_i32 s30, s30, 0x10001\ns_mov_b32 s31, s30")
    A("v_mov_b32 v44, v40")
    inrow("v_max_f32", 44, ["row_ror:8", "row_ror:4", "row_ror:2", "row_ror:1"]); xrow("v_max_f32", 44, 45, 16)
    A("v_sub_f32 v40, v40, v44\nv_exp_f32 v40, v40\nv_mul_f32 v44, v40, v42")
    inrow("v_add_f32", 44, ["row_ror:8", "row_ror:4", "row_ror:2", "row_ror:1"]); xrow("v_add_f32", 44, 45, 16)
    A("v_rcp_f32 v44, v44\nv_mul_f32 v40, v40, v44")
    A("s_lshl_b32 s20, s3, 8\nv_lshl_add_u32 v4, v4, 2, s20\nv_lshrrev_b32 v5, 4, v0\nv_lshl_add_u32 v5, v5, 4, s20")
    A(f"ds_write_b32 v4, v40 offset:{L_X}\nds_read_b128 v[12:15], v5 offset:{L_X}\nds_read_b128 v[16:19], v5 offset:{L_X+64}")
    A("v_and_b32 v1, 15, v0\nv_lshrrev_b32 v4, 4, v0\nv_lshlrev_b32 v24, 4, v1\nv_lshl_add_u32 v22, v4, 14, v24\nv_lshlrev_b32 v1, %d, v1\nv_lshl_add_u32 v1, v4, 4, v1" % (7 if fl else 6))
    A(f"s_lshl_b32 s20, s4, 15\ns_lshl_b32 s21, s3, 13\ns_add_u32 s20, s20, s21\ns_add_u32 s20, s20, {WS_A}\nv_add_u32 v1, s20, v{2 if lin else 1}")
    A(f"v_add_u32 v5, {(WS_AL-WS_A) if loc else 0}, v1\nv_cndmask_b32 v6, v1, v5, s[28:29]\nv_cndmask_b32 v7, v1, v5, s[30:31]\nv_add_u32 v8, 4096, v6\nv_add_u32 v9, 4096, v7")
    A("s_lshl_b32 s20, s3, 8\nv_lshl_add_u32 v21, v0, 2, s20")
    if pi is None: A(f"s_lshl_b32 s20, s4, 11\ns_lshl_b32 s21, s67, 8\ns_add_u32 s20, s20, s21\ns_add_u32 s20, s20, {WS_B}\ns_lshl_b32 s21, s3, 16\ns_add_u32 s20, s20, s21\nv_add_u32 v22, s20, v22")
    else:
        A(f"s_and_b32 s20, s4, 3\ns_lshl_b32 s20, s20, 11\ns_lshr_b32 s21, s4, 2\ns_lshl_b32 s21, s21, 15\ns_add_u32 s20, s20, s21\ns_lshl_b32 s21, s67, 8\ns_add_u32 s20, s20, s21\ns_add_u32 s20, s20, {WS_B}")
        A("v_bfe_u32 v22, v0, 4, 1\nv_lshl_add_u32 v22, v22, 16, v24\nv_lshrrev_b32 v25, 5, v0\nv_lshl_add_u32 v22, v25, 13, v22\nv_add_u32 v22, s20, v22\nv_xor_b32 v22, s71, v22")
    A("s_waitcnt lgkmcnt(0)")
    stamp(5)
    AR = lambda c, s_: 40 + 16 * s_ + 4 * c
    D = lambda s_, nt: 72 + 16 * s_ + 4 * nt
    def lda(s_):
        for c in range(4): A(f"global_load_dwordx4 {v4(AR(c,s_))}, v{6+s_+(0 if c<2 else 2)}, {WS} offset:{(64*(c&1)+2048*s_) if fl else (2048*(c&1)+1024*s_)} {lpol}")
    def mm(s_, other_done):
        wr = 12 + 4 * s_
        def fin(nt):
            d = D(s_, nt)
            r = [f"v_pk_mul_f32 {v2(d)}, {v2(d)}, {v2(wr)}", f"v_pk_fma_f32 {v2(d)}, {v2(d+2)}, {v2(wr+2)}, {v2(d)}", f"v_add_f32 v{d}, v{d}, v{d+1}"]
            if other_done: r.append(f"v_add_f32 v{D(0,nt)}, v{D(0,nt)}, v{D(1,nt)}")
            return r
        for c in range(4):
            for nt in (0, 2, 1, 3):
                d = D(s_, nt)
                A(f"v_mfma_f32_16x16x32_bf16 {v4(d)}, {v4(AR(c,s_))}, {v4(104+16*c+4*nt)}, {'0' if c==0 else v4(d)}")
        for grp in zip(fin(0), fin(2), fin(1), fin(3)):
            for l in grp: A(l)
        if other_done: A("v_permlane32_swap_b32 v72, v80\nv_add_f32 v72, v72, v80")
    if dry:
        A("s_mov_b64 s[80:81], 0\ns_mov_b64 s[32:33], 0\ns_mov_b64 s[34:35], 0\ns_mov_b32 s84, 0\ns_mov_b64 exec, 0\ns_branch L_pb0")
        A("L_bdr:\ns_cmp_eq_u32 s84, 0\ns_mov_b32 s84, 1\ns_cbranch_scc1 L_pb1\ns_mov_b64 exec, -1")
    A("s_mov_b64 s[80:81], -1")
    if bdefer:
        if bdefer <= 8: lspin("sd", L_CV, bdefer, 10, 11, 1)
        else: lspin("sd", L_FP, 1, 10, 11, 1)
        A("s_setprio 1"); wo_issue(bearly, 16); lda(0); lda(1); A("s_setprio 3"); wo_finish(8)
        stamp(4)
        A(f"s_mov_b32 s7, {spin}\ns_branch L_pa2")
    if atrig: lspin("sa", L_FO + (4 if atrig > 4 else 0), atrig - 4 if atrig > 4 else atrig, 10, 11, 2)
    A(f"s_mov_b32 s7, {spin}\ns_mov_b64 s[32:33], -1\ns_mov_b64 s[34:35], -1")
    A("L_pa:")
    A("s_mov_b64 exec, s[32:33]"); lda(0)
    A("s_mov_b64 exec, s[34:35]"); lda(1)
    A("s_mov_b64 exec, -1")
    A("L_pa2:")
    A("s_waitcnt vmcnt(4)")
    chk_sent(range(40, 56), 23); A("s_mov_b64 s[32:33], vcc")
    A("s_waitcnt vmcnt(0)")
    chk_sent(range(56, 72), 23); A("s_mov_b64 s[34:35], vcc")
    A("s_cbranch_vccz L_pa1\ns_cmp_eq_u64 s[32:33], 0\ns_cbranch_scc1 L_pa0")
    if tsleep: A(f"s_sleep {tsleep}")
    if bhold:
        A("s_mov_b32 s85, s7"); lspin("sy", L_FO + 4 * (bhold - 1), 1, 10, 11, 2); A("s_mov_b32 s7, s85")
    A("s_sub_u32 s7, s7, 1\ns_cbranch_scc0 L_pa")
    for first in (0, 1):
        sec = 1 - first
        A(f"L_pa{first}:")
        mk = sp(32 + 2 * sec)
        A(f"s_cmp_eq_u64 {mk}, 0\ns_cbranch_scc1 L_pb{first}")
        A(f"s_mov_b64 exec, {mk}"); lda(sec); A("s_mov_b64 exec, -1")
        A(f"L_pb{first}:")
        mm(first, False)
        A(f"s_mov_b64 exec, {mk}\ns_cbranch_execz L_pd{first}")
        for _ in range(pd - 1): lda(sec)
        A(f"L_pc{first}:")
        A(f"s_waitcnt vmcnt({4*(pd-1)})")
        chk_sent(range(40 + 16 * sec, 56 + 16 * sec), 23)
        A(f"s_cbranch_vccz L_pd{first}\ns_mov_b64 exec, vcc")
        lda(sec)
        A(f"s_sub_u32 s7, s7, 1\ns_cbranch_scc0 L_pc{first}\ns_waitcnt vmcnt(0)")
        A(f"L_pd{first}:")
        A("s_mov_b64 exec, s[80:81]")
        stamp(6)
        mm(sec, True)
        if first == 0: A("s_branch L_pe")
    A("L_pe:\ns_nop 0")
    A("v_permlane32_swap_b32 v76, v84\nv_add_f32 v76, v76, v84")
    A("v_permlane16_swap_b32 v72, v76\nv_add_f32 v72, v72, v76")
    A(f"ds_write_b32 v21, v72 offset:{L_RED}")
    A("s_waitcnt lgkmcnt(0)")
    if dry: A("s_cbranch_execz L_bnb")
    A("s_barrier")
    A(f"s_cmp_ge_u32 s3, {2 if R == 8 else 1}\ns_cbranch_scc1 L_done")
    A("L_bnb:")
    for w in range(4): A(f"ds_read_b128 {v4(88+4*w)}, v24 offset:{L_RED+256*w}")
    assert R in (4, 8)
    A("s_waitcnt lgkmcnt(2)\nv_pk_add_f32 v[88:89], v[88:89], v[92:93]\nv_pk_add_f32 v[90:91], v[90:91], v[94:95]")
    A("s_waitcnt lgkmcnt(0)\nv_pk_add_f32 v[96:97], v[96:97], v[100:101]\nv_pk_add_f32 v[98:99], v[98:99], v[102:103]")
    A("v_pk_add_f32 v[88:89], v[88:89], v[96:97]\nv_pk_add_f32 v[90:91], v[90:91], v[98:99]")
    if dry: A("s_cbranch_execz L_bdr")
    A(f"global_store_dwordx4 v22, v[88:91], {WS} sc1")
    stamp(7)
    end_wave()
    A("L_tc:")
    A("s_mov_b32 s26, s67")
    srd(8, P_W1, 512 * 3584); srd(12, P_W2, 1792 * 1024)
    A("v_lshrrev_b32 v23, 4, v0\nv_lshlrev_b32 v23, 4, v23")
    A("v_lshrrev_b32 v1, 2, v0\ns_mov_b32 s20, 3584\nv_mul_lo_u32 v1, v1, s20\nv_and_b32 v12, 3, v0\nv_lshl_add_u32 v1, v12, 4, v1")
    A(f"s_mul_i32 s20, s3, {128*3584}\ns_lshl_b32 s21, s26, 6\ns_add_u32 s20, s20, s21")
    A("v_lshlrev_b32 v18, 6, v23\nv_and_b32 v13, 15, v0\nv_lshl_add_u32 v18, v13, 4, v18")
    A("s_lshl_b32 s27, s26, 15\ns_lshl_b32 s21, s3, 8\ns_add_u32 s27, s27, s21")
    A(f"s_lshl_b32 s23, s3, 14\ns_add_u32 s23, s23, {L_WT}")
    if not w1early: dma([f"buffer_load_dwordx4 v1, s[8:11], s20 offen {w1pol} lds\ns_add_u32 s20, s20, {16*3584}" for i in range(8)], 0)
    def w2load():
        A("s_add_u32 s23, s23, 8192")
        dma([f"buffer_load_dwordx4 v18, s[12:15], s27 offen {wpol} lds\ns_add_u32 s27, s27, 4096" for i in range(8)], 0)
    A("v_lshrrev_b32 v12, 4, v0\nv_bfe_u32 v13, v0, 2, 2\nv_and_b32 v14, 3, v0\nv_lshl_add_u32 v14, v14, 3, s23")
    A("v_lshl_add_u32 v1, v12, 9, v14\nv_lshl_add_u32 v1, v13, 6, v1")
    A("v_lshl_add_u32 v19, v12, 10, v14\nv_lshl_add_u32 v19, v13, 8, v19")
    if not w2late: w2load()
    A("v_and_b32 v20, 31, v0\nv_lshlrev_b32 v20, 3, v20\nv_lshrrev_b32 v21, 5, v0\nv_lshl_add_u32 v20, v21, 2, v20")
    A("s_lshl_b32 s20, s3, 8\nv_add_u32 v20, s20, v20")
    A(f"global_load_dword v22, v20, {sp(P_X)}\nglobal_load_dwordx4 v[28:31], v2, {sp(P_X)}")
    A(f"v_lshlrev_b32 v21, 1, v20\nv_add_u32 v21, {WS_MOD}, v21\nv_add_u32 v24, 4096, v21")
    assert not mlate
    poll("pm", lambda: A(f"global_load_dwordx2 v[40:41], v21, {WS} sc1\nglobal_load_dwordx2 v[42:43], v21, {WS} offset:2048 sc1\nglobal_load_dwordx2 v[44:45], v24, {WS} sc1\n" + VL),
         lambda: chk_tags([41, 43, 45, 39], 46), 2 if mlate else 16)
    tally()
    for c in range(4):
        for mt in range(2):
            for hi in range(2):
                A(f"ds_read_b64_tr_b16 {v2(104+8*c+4*mt+2*hi)}, v1 offset:{(32*c+4*hi)*64+mt*32}")
        if c & 1: A("s_waitcnt lgkmcnt(0)")
    unpack(4, [22], 1)
    unpack(48, [28, 29, 30, 31], 4)
    A("v_pk_add_f32 v[48:49], v[48:49], v[50:51]\nv_pk_add_f32 v[52:53], v[52:53], v[54:55]\nv_pk_add_f32 v[48:49], v[48:49], v[52:53]\nv_add_f32 v48, v48, v49")
    wave_reduce("v_add_f32", 48, 49)
    A(f"v_mul_f32 v48, {f2x(1/512)}, v48\nv_sub_f32 v4, v4, v48\nv_sub_f32 v5, v5, v48")
    def w2tr():
        for tau in range(8):
            for hi in range(2):
                A(f"ds_read_b64_tr_b16 {v2(136+4*tau+2*hi)}, v19 offset:{8192+hi*4096+tau*32}")
            if tau % 4 == 3: A("s_waitcnt lgkmcnt(0)")
    if mlate:
        lspin("sv0", L_CV, 4, 10, 11, 16); lspin("sv", L_FP, 1, 10, 11, 2); w2load(); A("s_waitcnt vmcnt(0)"); w2tr(); stamp(4)
    unpack(6, [40, 44], 2)
    A("v_add_f32 v8, 1.0, v8\nv_add_f32 v9, 1.0, v9\nv_cvt_pk_bf16_f32 v44, v8, v9")
    unpack(8, [44], 1)
    A(f"ds_write_b32 v20, v44 offset:{L_U}\nds_write_b32 v20, v42 offset:{L_U+1024}")
    A("v_add_u32 v21, s20, v23\nv_and_b32 v22, 1, v0\nv_lshl_add_u32 v22, v22, 10, v21")
    for c in range(4): A(f"ds_read_b128 {v4(48+4*c)}, v22 offset:{L_U+64*c}")
    A("s_waitcnt lgkmcnt(0)")
    for c in range(4):
        for mt in range(2):
            A(f"v_mfma_f32_16x16x32_bf16 {v4(24+4*mt)}, {v4(104+8*c+4*mt)}, {v4(48+4*c)}, {'0' if c==0 else v4(24+4*mt)}")
    A("s_mov_b32 exec_lo, 0x00030003\ns_mov_b32 exec_hi, 0x00030003")
    A(f"ds_write_b128 v22, v[24:27] offset:{L_GS}\nds_write_b128 v22, v[28:31] offset:{L_GS+64}")
    A("s_mov_b64 exec, 1\nv_mov_b32 v33, 1")
    A(f"ds_add_u32 v10, v33 offset:{L_CP}")
    A("s_mov_b64 exec, -1")
    A("v_and_b32 v1, 31, v0\nv_lshlrev_b32 v1, 4, v1\nv_lshrrev_b32 v16, 5, v0\nv_lshl_add_u32 v1, v16, 11, v1")
    def bcopy():
        A(f"s_bfe_u32 s20, s4, 0x10001\ns_lshl_b32 s20, s20, 16\ns_lshr_b32 s21, s4, 2\ns_lshl_b32 s21, s21, 13\ns_xor_b32 s21, s21, s71\ns_add_u32 s20, s20, s21\ns_add_u32 s20, s20, {WS_B}")
    if pi is None:
        A(("s_lshr_b32 s21, s4, 1" if rx else f"s_and_b32 s21, {'s4' if R == 8 else 's26'}, {R-1}") + f"\ns_lshl_b32 s21, s21, 14\ns_lshl_b32 s20, s3, 9\ns_add_u32 s20, s20, s21\ns_add_u32 s20, s20, {WS_B}\nv_add_u32 v1, s20, v1")
        A("v_add_u32 v12, 4096, v1\nv_add_u32 v13, 8192, v1\nv_add_u32 v14, 12288, v1")
    else:
        bcopy()
        A("s_lshl_b32 s21, s3, 9\ns_add_u32 s20, s20, s21\nv_add_u32 v1, s20, v1\nv_add_u32 v12, 4096, v1\nv_add_u32 v13, 32768, v1\nv_add_u32 v14, 36864, v1")
    A(f"s_lshl_b32 s20, s3, 8\nv_lshl_add_u32 v22, v16, 2, s20")
    A("v_and_b32 v33, 3, v0\nv_lshlrev_b32 v33, 8, v33\nv_bfe_u32 v32, v0, 3, 1\nv_lshl_add_u32 v32, v32, 6, v33\nv_add_u32 v32, v32, v23")
    A(f"s_mov_b32 s22, {f2x(1/512)}\nv_mov_b32 v34, {f2x(1e-5)}")
    lspin("sp", L_CP, 4, 10, 11, 0 if mlate else 4, lambda: A(f"ds_read_b128 v[24:27], v32 offset:{L_GS}\nds_read_b128 v[28:31], v32 offset:{L_GS+1024}"))
    for qp in ("[1,0,3,2]", "[2,3,0,1]"):
        for i in range(8): A(f"v_add_f32_dpp v{24+i}, v{24+i}, v{24+i} quad_perm:{qp} {DPPF}")
    if dry:
        A("s_mov_b64 s[80:81], 0\ns_mov_b64 s[82:83], 0\ns_mov_b64 exec, 0\ns_branch L_pbd\nL_cdr:\ns_mov_b64 exec, -1")
    A("s_mov_b64 s[80:81], -1\ns_mov_b32 s82, 0x00010001\ns_mov_b32 s83, 0x00010001")
    if not mlate:
        stamp(4)
        lspin("sv0", L_CV, 4, 10, 11, 16); lspin("sv", L_FP, 1, 10, 11, 2)
        if w2late: w2load()
    cs = 13 if cpad else 12
    if pi is None: A(f"s_lshl_b32 s20, s3, {cs+3}\ns_lshl_b32 s21, s26, {cs-6}\ns_add_u32 s20, s20, s21\ns_add_u32 s20, s20, {WS_C}")
    else:
        if cpad: A(f"s_and_b32 s20, s3, 1\ns_lshl_b32 s20, s20, 18\ns_lshr_b32 s21, s3, 1\ns_lshl_b32 s21, s21, 13\ns_xor_b32 s21, s21, s75\ns_add_u32 s20, s20, s21\ns_lshl_b32 s21, s26, 7\ns_add_u32 s20, s20, s21\ns_add_u32 s20, s20, {WS_C}")
        else: A(f"s_and_b32 s20, s3, 1\ns_lshl_b32 s20, s20, 17\ns_lshr_b32 s21, s3, 1\ns_lshl_b32 s21, s21, 13\ns_xor_b32 s21, s21, s75\ns_add_u32 s20, s20, s21\ns_lshl_b32 s21, s26, 6\ns_add_u32 s20, s20, s21\ns_add_u32 s20, s20, {WS_C}")
        cs = 15
    if cpad: A(f"v_bfe_u32 v35, v0, 2, 3\nv_lshlrev_b32 v35, {cs}, v35\nv_and_b32 v36, 3, v0\nv_lshl_add_u32 v35, v36, 4, v35\nv_add_u32 v35, s20, v35")
    else: A("v_bfe_u32 v35, v0, 3, 2\nv_lshlrev_b32 v35, 15, v35\nv_bfe_u32 v36, v0, 2, 1\nv_lshl_add_u32 v35, v36, 12, v35\nv_and_b32 v36, 3, v0\nv_lshl_add_u32 v35, v36, 4, v35\nv_add_u32 v35, s20, v35")
    if not mlate: A("s_waitcnt vmcnt(0)"); w2tr()
    stamp(5)
    G = 40; Hh = 88
    def gather4(name, base, addr, tmp, sleep):
        if g4:
            A(f"s_mov_b32 s7, {spin}")
            for i in range(4): A(f"global_load_dwordx4 {v4(base+4*i)}, {addr(i)} sc1\ns_mov_b64 {sp(28+2*i)}, -1")
            A(f"L_{name}t:\ns_waitcnt vmcnt(0)\ns_mov_b32 s21, 0")
            for i in range(4):
                A(f"s_mov_b64 exec, {sp(28+2*i)}\ns_cbranch_execz L_{name}s{i}")
                A(f"v_max3_u32 v{tmp}, v{base+4*i}, v{base+4*i+1}, v{base+4*i+2}\nv_max_u32 v{tmp}, v{tmp}, v{base+4*i+3}\nv_cmp_eq_u32 vcc, -1, v{tmp}")
                A(f"s_mov_b64 {sp(28+2*i)}, vcc\ns_cbranch_vccz L_{name}s{i}\ns_mov_b64 exec, vcc\nglobal_load_dwordx4 {v4(base+4*i)}, {addr(i)} sc1\ns_mov_b32 s21, 1")
                A(f"L_{name}s{i}:")
            A(f"s_mov_b64 exec, -1\ns_cmp_eq_u32 s21, 0\ns_cbranch_scc1 L_{name}d\ns_sub_u32 s7, s7, 1\ns_cbranch_scc0 L_{name}t\ns_waitcnt vmcnt(0)")
            A(f"L_{name}d:")
            return
        A(f"s_mov_b32 s7, {spin}")
        for _ in range(pd):
            for i in range(4): A(f"global_load_dwordx4 {v4(base+4*i)}, {addr(i)} sc1")
        A(f"L_{name}t:")
        A(f"s_waitcnt vmcnt({4*(pd-1)})")
        for i in range(4): A(f"v_max3_u32 v{tmp+i}, v{base+4*i}, v{base+4*i+1}, v{base+4*i+2}")
        for i in range(4): A(f"v_max_u32 v{tmp+i}, v{tmp+i}, v{base+4*i+3}")
        A(f"v_max3_u32 v{tmp+4}, v{tmp}, v{tmp+1}, v{tmp+2}\nv_max_u32 v{tmp+4}, v{tmp+4}, v{tmp+3}\nv_cmp_eq_u32 vcc, -1, v{tmp+4}\ns_cbranch_vccz L_{name}d")
        for i in range(4): A(f"v_cmp_eq_u32 {sp(28+2*i)}, -1, v{tmp+i}")
        if sleep: A(f"s_sleep {sleep}")
        for i in range(4):
            A(f"s_or_b64 exec, {sp(28+2*i)}, 1\nglobal_load_dwordx4 {v4(base+4*i)}, {addr(i)} sc1")
        A(f"s_mov_b64 exec, -1\ns_sub_u32 s7, s7, 1\ns_cbranch_scc0 L_{name}t")
        A(f"L_{name}d:")
    gather4("pb", Hh, lambda i: f"v{1 if i==0 else 11+i}, {WS}", 56, csleep)
    stamp(6)
    A(f"v_pk_add_f32 {v2(G)}, {v2(Hh)}, {v2(Hh+4)}\nv_pk_add_f32 {v2(G+2)}, {v2(Hh+2)}, {v2(Hh+6)}\nv_pk_add_f32 {v2(G+8)}, {v2(Hh+8)}, {v2(Hh+12)}\nv_pk_add_f32 {v2(G+10)}, {v2(Hh+10)}, {v2(Hh+14)}")
    A(f"v_pk_add_f32 {v2(G)}, {v2(G)}, {v2(G+8)}\nv_pk_add_f32 {v2(G+2)}, {v2(G+2)}, {v2(G+10)}")
    A(f"v_permlane32_swap_b32 v{G}, v{G+2}\nv_permlane32_swap_b32 v{G+1}, v{G+3}")
    A(f"v_pk_add_f32 {v2(G)}, {v2(G)}, {v2(G+2)}")
    A(f"v_pk_fma_f32 v[4:5], {v2(G)}, v[6:7], v[4:5]")
    A("v_pk_mul_f32 v[6:7], v[4:5], v[8:9]\nv_cvt_pk_bf16_f32 v6, v6, v7")
    A(f"ds_write_b32 v20, v6 offset:{L_U}")
    for c in range(4): A(f"ds_read_b128 {v4(44+4*c)}, v21 offset:{L_U+64*c}")
    A("v_add_f32 v16, v4, v5\nv_mul_f32 v17, v4, v4\nv_fmac_f32 v17, v5, v5")
    A("v_permlane32_swap_b32 v16, v17\nv_add_f32 v16, v16, v17")
    xrow("v_add_f32", 16, 17, 16)
    steps = ["row_ror:8", "row_ror:4", "row_ror:2", "row_ror:1"]
    for c in range(4):
        A(f"s_waitcnt lgkmcnt({3-c})")
        for mt in range(2):
            A(f"v_mfma_f32_16x16x32_bf16 {v4(60+4*mt)}, {v4(104+8*c+4*mt)}, {v4(44+4*c)}, {'0' if c==0 else v4(60+4*mt)}")
        inrow("v_add_f32", 16, [steps[c]])
    A("s_mov_b64 exec, s[82:83]")
    A(f"ds_write_b32 v22, v16 offset:{L_RED+128}")
    A(f"ds_write_b128 v21, v[60:63] offset:{L_RED}\nds_write_b128 v21, v[64:67] offset:{L_RED+64}")
    A("s_mov_b64 exec, s[80:81]")
    A("s_waitcnt lgkmcnt(0)")
    if dry: A("s_cbranch_execz L_cnb")
    A("s_barrier\nL_cnb:")
    A(f"ds_read_b64 v[12:13], v33 offset:{L_RED+128}\nds_read_b128 v[40:43], v32 offset:{L_RED}")
    A("s_waitcnt lgkmcnt(0)")
    for qp in ("[1,0,3,2]", "[2,3,0,1]"):
        for r in (12, 13, 40, 41, 42, 43): A(f"v_add_f32_dpp v{r}, v{r}, v{r} quad_perm:{qp} {DPPF}")
    A("v_mul_f32 v12, s22, v12\nv_fma_f32 v14, v13, s22, v34\nv_fma_f32 v14, -v12, v12, v14\nv_max_f32 v14, v14, v34\nv_rsq_f32 v14, v14")
    for q in range(2): A(f"v_pk_fma_f32 {v2(40+2*q)}, {v2(24+2*q)}, v[12:13], {v2(40+2*q)} op_sel_hi:[1,0,1] neg_lo:[0,1,0] neg_hi:[0,1,0]")
    for q in range(2): A(f"v_pk_fma_f32 {v2(40+2*q)}, {v2(40+2*q)}, v[14:15], {v2(28+2*q)} op_sel_hi:[1,0,1]")
    for q in range(2): A(f"v_cvt_pk_bf16_f32 v{48+q}, v{40+2*q}, v{41+2*q}")
    for q in range(2): A(f"v_pk_max_i16 v{48+q}, v{48+q}, 0")
    for q in range(2): A(f"v_mov_b32_dpp v{50+q}, v{48+q} row_shl:8 {DPPF} bound_ctrl:0")
    for tau in (0, 2, 4, 6, 1, 3, 5, 7): A(f"v_mfma_f32_16x16x32_bf16 {v4(56+4*tau)}, v[48:51], {v4(136+4*tau)}, 0")
    for j in (1, 2, 3): A(f"v_mov_b32 v{56+j}, v{56+8*j}")
    for j in range(4): A(f"v_mov_b32_dpp v{56+j}, v{60+8*j} quad_perm:[0,1,2,3] row_mask:0x2 bank_mask:0xf")
    if dry: A("s_cbranch_execz L_cdr")
    A("s_mov_b32 exec_hi, 0")
    A(f"global_store_dwordx4 v35, v[56:59], {WS} sc1")
    stamp(7)
    end_wave()
    A("L_tf:")
    prb("cs")
    A("s_mov_b32 s26, s67\ns_lshr_b32 s20, s26, 3\ns_lshl_b32 s20, s20, 7\ns_and_b32 s21, s26, 7\ns_lshl_b32 s21, s21, 2\ns_add_u32 s20, s20, s21")
    A("v_and_b32 v4, 3, v0\nv_lshrrev_b32 v5, 4, v0\nv_lshl_add_u32 v4, v5, 5, v4\nv_add_u32 v4, s20, v4\nv_lshlrev_b32 v5, 1, v4")
    A(f"global_load_ushort v8, v5, {sp(P_X)}")
    if tw: A(f"global_load_ushort v33, v5, {sp(P_OUT)}")
    A(f"v_lshrrev_b32 v6, 1, v4\nv_lshlrev_b32 v6, 3, v6\nv_add_u32 v6, {WS_MOD}, v6\nv_add_u32 v7, 6144, v6")
    if mlate: lspin("sf0", L_FP, 1, 10, 11, 16)
    poll("pg", lambda: A(f"global_load_dwordx2 v[12:13], v6, {WS} sc1\nglobal_load_dwordx2 v[14:15], v7, {WS} sc1\n" + VL),
         lambda: chk_tags([13, 15, 39], 16), 4 if mlate else 16)
    tally()
    A("v_lshlrev_b32 v8, 16, v8")
    A("v_and_b32 v16, 1, v4\nv_cmp_eq_u32 vcc, 0, v16")
    A("v_lshlrev_b32 v16, 16, v12\nv_and_b32 v17, 0xffff0000, v12\nv_cndmask_b32 v9, v17, v16, vcc")
    A("v_lshlrev_b32 v16, 16, v14\nv_and_b32 v17, 0xffff0000, v14\nv_cndmask_b32 v12, v17, v16, vcc")
    if pi is None:
        A(f"v_bfe_u32 v6, v0, 2, 2\nv_lshlrev_b32 v6, 12, v6\nv_lshl_add_u32 v6, v4, 2, v6\nv_add_u32 v6, {WS_B}, v6")
        if R == 8: A("s_lshl_b32 s20, s4, 14\nv_add_u32 v6, s20, v6")
        if rx: A("s_lshr_b32 s20, s4, 1\ns_lshl_b32 s20, s20, 14\nv_add_u32 v6, s20, v6")
        if cpad: A(f"s_lshl_b32 s20, s26, 13\ns_add_u32 s20, s20, {WS_C}\nv_lshrrev_b32 v7, 2, v0\nv_lshl_add_u32 v7, v7, 6, v2\nv_add_u32 v7, s20, v7\nv_add_u32 v32, 4096, v7")
        else: A(f"s_lshl_b32 s20, s26, 12\ns_add_u32 s20, s20, {WS_C}\nv_add_u32 v7, s20, v2")
    else:
        bcopy()
        A("v_bfe_u32 v6, v0, 2, 1\nv_lshlrev_b32 v6, 12, v6\nv_bfe_u32 v7, v0, 3, 1\nv_lshl_add_u32 v6, v7, 15, v6\nv_lshl_add_u32 v6, v4, 2, v6\nv_add_u32 v6, s20, v6")
        if cpad: A(f"s_and_b32 s20, s26, 15\ns_lshl_b32 s20, s20, 15\ns_lshr_b32 s21, s26, 4\ns_lshl_b32 s21, s21, 13\ns_xor_b32 s21, s21, s75\ns_add_u32 s20, s20, s21\ns_add_u32 s20, s20, {WS_C}\nv_lshrrev_b32 v7, 2, v0\nv_lshl_add_u32 v7, v7, 6, v2\nv_add_u32 v7, s20, v7\nv_add_u32 v32, 4096, v7")
        else: A(f"s_bfe_u32 s20, s26, 0x30001\ns_lshl_b32 s20, s20, 15\ns_and_b32 s21, s26, 1\ns_lshl_b32 s21, s21, 12\ns_add_u32 s20, s20, s21\ns_lshr_b32 s21, s26, 4\ns_lshl_b32 s21, s21, 13\ns_xor_b32 s21, s21, s75\ns_add_u32 s20, s20, s21\ns_add_u32 s20, s20, {WS_C}\nv_add_u32 v7, s20, v2")
    if dry: A("s_mov_b64 exec, 0\ns_branch L_fd\nL_fdr:\ns_mov_b64 exec, -1")
    lspin("sf", L_FP, 1, 10, 11, 16 if calm else 4)
    prb("fp")
    poll("pxb", lambda: A(f"global_load_dword v13, v6, {WS} sc1\nglobal_load_dword v14, v6, {WS} offset:2048 sc1"), lambda: chk_sent([13, 14], 15), xsleep)
    A("v_add_f32 v13, v13, v14")
    inrow("v_add_f32", 13, ["row_ror:8", "row_ror:4"])
    A("v_fma_f32 v8, v9, v13, v8")
    prb("b")
    stamp(6)
    if fdelay: A(f"s_sleep {fdelay}")
    gather4("pc", 40, lambda i: f"v{(7 if i<2 else 32) if cpad else 7}, {WS} offset:{2048*(i&1) if cpad else 1024*i}", 56, fsleep)
    A("L_fd:")
    stamp(7)
    A("v_pk_add_f32 v[16:17], v[40:41], v[44:45]\nv_pk_add_f32 v[18:19], v[42:43], v[46:47]\nv_pk_add_f32 v[24:25], v[48:49], v[52:53]\nv_pk_add_f32 v[26:27], v[50:51], v[54:55]")
    A("v_pk_add_f32 v[16:17], v[16:17], v[24:25]\nv_pk_add_f32 v[18:19], v[18:19], v[26:27]")
    A("v_permlane32_swap_b32 v16, v18\nv_permlane32_swap_b32 v17, v19\nv_pk_add_f32 v[16:17], v[16:17], v[18:19]")
    A("v_permlane16_swap_b32 v16, v17\nv_add_f32 v16, v16, v17")
    inrow("v_add_f32", 16, ["row_ror:8", "row_ror:4"])
    A("v_fma_f32 v16, v12, v16, v8\nv_cvt_pk_bf16_f32 v16, v16, v16")
    if dry: A("s_cbranch_execz L_fdr")
    A("s_mov_b32 exec_lo, 0x000f000f\ns_mov_b32 exec_hi, 0x000f000f")
    A(f"global_store_short v5, v16, {sp(P_OUT)} {osc}")
    A("s_cmp_lg_u32 s26, 0\ns_cbranch_scc1 L_tfe")
    if dbgp:
        A(f"s_mov_b64 exec, 1\nv_mov_b32 v20, s{P_WS}\nv_mov_b32 v21, s{P_WS+1}\nv_mov_b32 v22, s71\nv_mov_b32 v23, s{P_K}\nglobal_store_dwordx4 v10, v[20:23], {sp(P_DBG)}")
    A("s_mov_b64 exec, 1\nv_mov_b32 v18, s6")
    A(f"global_store_dword v10, v18, {WS} {osc}")
    if amp:
        A(f"s_memrealtime s[96:97]\ns_waitcnt lgkmcnt(0)\ns_sub_u32 s94, s96, s94\ns_lshl_b32 s94, s94, {amp}\nL_fy:\ns_memrealtime s[98:99]\ns_waitcnt lgkmcnt(0)\ns_sub_u32 s98, s98, s96\ns_cmp_lt_u32 s98, s94\ns_cbranch_scc1 L_fy")
    if fixend:
        prb("end")
        A(f"L_fx:\ns_memrealtime s[98:99]\ns_waitcnt lgkmcnt(0)\ns_sub_u32 s98, s98, {'s94' if probe else 's96'}\ns_cmp_lt_u32 s98, {fixend}\ns_cbranch_scc1 L_fx")
    A("L_tfe:")
    stamp(4)
    end_wave()
    if stamps:
        A("L_stampout:")
        if st0: A("s_waitcnt lgkmcnt(0)\nv_writelane_b32 v3, s90, 0\ns_cmp_lt_u32 s3, 4\ns_cbranch_scc1 L_so9\nv_writelane_b32 v3, s92, 1\nv_writelane_b32 v3, s94, 2\nL_so9:")
        if stamps == 2:
            A("s_cmp_lg_u32 s2, 32\ns_cbranch_scc1 L_exit\ns_and_b32 s20, s3, 11\ns_cbranch_scc1 L_exit")
            A("s_mov_b64 exec, 0xff\ns_lshl_b32 s20, s3, 3\nv_lshl_add_u32 v1, v0, 2, s20")
            A(f"global_store_dword v1, v3, {sp(P_DBG)}\ns_endpgm")
        A("s_mov_b64 exec, 0xff")
        A("s_mul_i32 s20, s2, 12\ns_add_u32 s20, s20, s3\ns_lshl_b32 s20, s20, 5")
        A(f"s_add_u32 s20, s20, {WS_STAMP}")
        A("v_lshl_add_u32 v1, v0, 2, s20")
        A(f"global_store_dword v1, v3, {WS}")
    A("L_exit:\ns_endpgm")
    A(".p2align 6\n.type L_tab,@object\nL_tab:")
    for wg in range(256):
        r = roles[(xp[wg & 7] if xp else wg & 7), wg >> 3]; skip = T - r['n']
        assert skip < 8, (wg, r)
        A(f".long {(r['pre'] - skip + 16) | skip << 12 | r['e'] << 15 | r['ei'] << 18 | r['l'] << 23 | r['li'] << 25:#x}")
    A("L_endcode:")
    A('.section .rodata,"a"\n.p2align 6')
    A(f".amdhsa_kernel {NAME}")
    for l in ["next_free_vgpr 168", "next_free_sgpr 102", "accum_offset 168", "group_segment_fixed_size 0", "kernarg_size 104",
              "user_sgpr_count 2", "user_sgpr_kernarg_segment_ptr 1", "system_sgpr_workgroup_id_x 1"]:
        A("  .amdhsa_" + l)
    A(".end_amdhsa_kernel")
    txt = A.finish()
    for lab, cm in NOTES.items():
        assert ("\n" + lab + ":\n") in txt, lab
        txt = txt.replace("\n" + lab + ":\n", "\n" + "".join("; " + c + "\n" for c in cm.split("|")) + lab + ":\n")
    return txt

if __name__ == "__main__":
    out = sys.argv[1]; kw = {}
    for a in sys.argv[2:]:
        k, v = a.split("=", 1)
        try: v = ast.literal_eval(v)
        except Exception: pass
        kw[k] = v
    open(out, "w").write(gen(**kw))
    import json
    roles, T = make_plan(kw.get('plan', 'A'), **{k: v for k, v in kw.items() if k in ('cH','cQ','cM','cB','cC','T','c3','Fx','adj')})
    json.dump([[roles[wg & 7, wg >> 3][k] for k in ('e', 'l', 'n')] for wg in range(256)], open(out + ".roles", "w"))
```

```python
import sys, struct, ast
from asmlib import Asm
NAME = "adaLN_cond__gqa_block_cached__dense_activation_relu__decode_kernel"
def f2x(f): return "0x%08x" % struct.unpack("<I", struct.pack("<f", f))[0]

WS_P = 0x180000; WS_PV = 0x15000; WS_XB = 0x14000; WS_QL = 0x10000; WS_H = 0x18000; WS_MOD = 0x4000; WS_Q = 0x8000; WS_ST = 0xC000
WS_AL = 0x140000; WS_A = 0x100000; WS_B = 0x40000; WS_C = 0x80000
WS_STAMP = 0x8000000
L_CG = 0; L_FQ = 4; L_CS = 8; L_CT = 68; L_CP = 16; L_FK = 20; L_CV = 24; L_CW = 28; L_FO = 32; L_MK = 64; L_FP = 12
L_ST = 256; L_Q = 1024; L_GP = 2048; L_X = 3072; L_RED = 4096; L_U = 5120; L_GS = 8192
L_OP = 16384; L_WT = 32768; LDS_SIZE = 98304
DPPF = "row_mask:0xf bank_mask:0xf"
P_X, P_K, P_V, P_WQ, P_WO, P_BX, P_W1, P_W2, P_C, P_WM, P_OUT, P_DBG, P_WS = [36 + 2 * i for i in range(13)]
def sp(n): return f"s[{n}:{n+1}]"
def v4(n): return f"v[{n}:{n+3}]"
def v2(n): return f"v[{n}:{n+1}]"
WS = sp(P_WS)

DOC = '''; ---------------------------------------------------------------------------------------------
; One persistent launch, 256 workgroups (one per CU) x 12 waves.  x = wg&7 = kv head, a = wg>>3 = key split.
;     max, V tiles -> v_perm transpose -> MFMA, workgroup partial summed through LDS and published.
;     H: sa/ca slice of silu(c)@w_mod   Q: LN(x)*(1+ca)+sa, q slice   M: ga/sb/cb/gb slice
;     B: split combine (global softmax weights) + wo slice            C: residual, LN, FFN slice
;        vote) so that the two cross-die hand-off buffers sit next to their readers; affects placement only
; ---------------------------------------------------------------------------------------------'''
E_H, E_Q, E_M, E_B, E_P = 1, 2, 3, 4, 5
R_B, R_C, R_F = 1, 2, 3
def make_plan(plan, **pk):
    P = dict(PLANS[plan]); P.update(pk)
    roles = {(x, a): dict(e=0, ei=0, l=0, li=0) for x in range(8) for a in range(32)}
    hi = mi = ci = fi = 0
    for x in range(8):
        a = 0
        for _ in range(P['H'][x]): roles[x, a].update(e=E_H, ei=hi); hi += 1; a += 1
        for c in range(8):
            roles[x, a].update(e=E_Q, ei=c)
            if (x & 1 == P['Fx'] if 'Fx' in P else c in (0, 1, 4, 5)): roles[x, a].update(l=R_F, li=fi); fi += 1
            a += 1
        for c in range(8): roles[x, a].update(e=E_B, ei=c, l=R_B, li=c); a += 1
        for _ in range(P['M'][x]): roles[x, a].update(e=E_M, ei=mi); mi += 1; a += 1
        assert a <= 32
        cand = [b for b in range(31, -1, -1) if roles[x, b]['e'] == 0] + [b for b in range(32) if roles[x, b]['e'] == E_H] + [b for b in range(32) if roles[x, b]['e'] == E_M]
        for b in cand[:P['C'][x]]: roles[x, b].update(l=R_C, li=ci); ci += 1
    assert (hi, mi, ci, fi) == (32, 32, 56, 32), (hi, mi, ci, fi)
    free = [k for k in sorted(roles) if roles[k]['e'] == 0 and roles[k]['l'] == 0]
    assert len(free) >= 8
    for i, k in enumerate(free[:: len(free) // 8][:8]): roles[k].update(e=E_P, ei=i)
    for x in range(8):
        cost = []
        for a in range(32):
            r = roles[x, a]
            c = {0: 0, E_P: 0, E_H: P['cH'], E_Q: P['cQ'], E_M: P['cM'], E_B: P['cB']}[r['e']]
            cb = r['ei'] if r['e'] in (E_Q, E_B) else (r['ei'] >> 2)
            if r['e'] in P['c3'] and cb == 3: c += P['c3'][r['e']]
            if r['l'] == R_C: c += P['cC']
            cost.append(c)
        n = [max(28, P['T'] - 7)] * 32
        for _ in range(1024 - sum(n)):
            b = min((a for a in range(32) if n[a] < P['T']), key=lambda a: (n[a] + cost[a], -a))
            n[b] += 1
        if P.get('adj') and x & 1:
            give = 0
            for a in range(32):
                r = roles[x, a]
                if r['e'] == E_B and (r['ei'] == 3 or r['ei'] >= 8 - P['adj'] + 1): n[a] -= 1; give += 1
            for a in range(32):
                r = roles[x, a]
                if give and r['l'] == R_C and (r['li'] >> 1) % 4 != 3: n[a] += 1; give -= 1
            assert give == 0
        pre = 0
        for a in range(32):
            roles[x, a].update(n=n[a], pre=pre); pre += n[a] - 28
    T = max(r['n'] for r in roles.values()); T += T & 1
    return roles, T
base = dict(cH=2.0, cQ=3.6, cM=4.2, cB=3.6, cC=4.0, c3={E_H: 0.5, E_Q: 1.7, E_M: 1.5, E_B: 1.0}, T=34)
base2 = dict(cH=1.6, cQ=4.0, cM=4.5, cB=3.4, cC=5.3, c3={E_H: 0.7, E_Q: 2.3, E_M: 1.8, E_B: 2.4}, T=36)
PLANS = {
 'A': dict(base, H=[4]*8, M=[4]*8, C=[7]*8),
 'B': dict(base, H=[8,0,8,0,8,0,8,0], M=[8,0,8,0,8,0,8,0], C=[14,0,14,0,14,0,14,0]),
 'C': dict(base, H=[8,0,8,0,8,0,8,0], M=[8,0,8,0,8,0,8,0], C=[7]*8),
 'D': dict(base, H=[8,8,8,8,0,0,0,0], M=[8,0,8,0,8,0,8,0], C=[14,0,14,0,14,0,14,0]),
 'E': dict(base, H=[8,8,8,8,0,0,0,0], M=[8,0,8,0,8,0,8,0], C=[8,6,8,6,8,6,8,6]),
 'G': dict(base2, H=[8,0,8,0,8,0,8,0], M=[8,0,8,0,8,0,8,0], C=[7]*8),
 'H': dict(base2, H=[8,0,8,0,8,0,8,0], M=[8,0,8,0,8,0,8,0], C=[8,8,8,12,8,2,8,2]),
 'I': dict(base2, H=[8,0,8,8,4,0,4,0], M=[8,0,8,0,8,0,8,0], C=[8,8,8,8,8,4,8,4]),
 'J': dict(base2, H=[8,0,8,0,8,0,8,0], M=[8,0,8,0,8,0,8,0], C=[0,14,0,14,0,14,0,14]),
 'K': dict(base2, H=[8,0,8,0,8,0,8,0], M=[8,0,8,0,8,0,8,0], C=[4,10,4,10,4,10,4,10]),
 'L': dict(base2, H=[8,0,8,0,8,0,8,0], M=[8,0,8,0,8,0,8,0], C=[8,6,8,6,8,6,8,6]),
 'N': dict(base2, H=[8,0,8,0,8,0,8,0], M=[2,6,2,6,2,6,2,6], C=[14,0,14,0,14,0,14,0]),
 'O': dict(base2, H=[0,8,0,8,0,8,0,8], M=[2,6,2,6,2,6,2,6], C=[14,0,14,0,14,0,14,0]),
 'P': dict(base2, H=[4,4,4,4,4,4,4,4], M=[2,6,2,6,2,6,2,6], C=[14,0,14,0,14,0,14,0]),
 'S': dict(base2, H=[1,0,1,0,15,0,15,0], M=[15,0,15,0,1,0,1,0], C=[0,16,0,16,0,12,0,12]),
 'U': dict(base2, H=[4,0,4,0,12,0,12,0], M=[12,0,12,0,4,0,4,0], C=[0,16,0,16,0,12,0,12]),
 'F': dict(base, H=[8,4,8,4,4,0,4,0], M=[8,0,8,0,8,0,8,0], C=[10,4,10,4,10,4,10,4]),
}

def gen(win=5, win2=6, wpol="nt", stamps=0, spin=8000000, hsleep=4, qsleep=8, tsleep=1, pace=4, cpre=1, kprio=0, skipw=0, vmid=4, nopoll='', qtrig=22, R=4, cdefer=1, csleep=2, nH=33, nX=31, nL=34, loc=1, lpol='sc1', w1pol='nt', nocomp=0, nosvc=0, sprio=3, nopre=0, nocw=0, lmul=1, xit='', qloc=1, strig=1, qtrig2=38, kpol='nt', vpol='nt', slowfb=0, fixend=0, plan='A', hfirst=1, cpad=1, w2late=1, fsleep=1, dry=0, yprio=0, burst=0, bwin=8, osc='', use2=1, p2=0, amp=0, dbgp=0, pi=None, pn=8, pclip=2000, xn=0, xmask=0x55, mim=1, mrg=1, fprio=0, rprio=3, rsl=0, b0at=0, mlate=0, xp=None, lin=1, atrig=0, pre=0, g4=0, alt1=0, alt2=0, tw=0, probe='', det=1, rx=0, fl=0, w1early=1, nohp=0, ws1=0, ws2=0, bp=0, calm=0, ltab=1, st0=0, bhold=0, xl=1, bearly=0, pd=1, fdelay=0, xsleep=4, bdefer=0, hwait=0, **pk):
    A = Asm()
    roles, T = make_plan(plan, **pk)
    hdr = open("cdna_kernels/" + NAME[:-7] + ".s.ref").read().split("; Override")[0]
    A(hdr.rstrip())
    A(f"; @launch grid=(256,1,1) block=(768,1,1) lds={LDS_SIZE}")
    A(DOC)
    A('.amdgcn_target "amdgcn-amd-amdhsa--gfx950"')
    A(f".text\n.globl {NAME}\n.p2align 8\n.type {NAME},@function\n{NAME}:")
    def stamp(k):
        if stamps:
            A("s_memrealtime s[62:63]\ns_waitcnt lgkmcnt(0)")
            A(f"v_writelane_b32 v3, s62, {k}")
    def prb(name):
        if probe == name: A("s_memrealtime s[94:95]\ns_waitcnt lgkmcnt(0)")
    def end_wave():
        if stamps:
            A("s_branch L_stampout")
        else:
            A("s_endpgm")
    def srd(d, p, size):
        A(f"s_mov_b32 s{d}, s{p}\ns_mov_b32 s{d+1}, s{p+1}\ns_mov_b32 s{d+2}, {size}\ns_mov_b32 s{d+3}, 0x20000")
    def poll(name, loads, check, sleep):
        if name in nopoll.split('+'): return
        top = A.label(name); done = A.label(name + "d")
        A(f"s_mov_b32 s7, {spin * 4 // (4 + sleep)}")
        A(f"{top}:")
        loads()
        A("s_waitcnt vmcnt(0)")
        check()
        A(f"s_cbranch_vccz {done}")
        A("s_mov_b64 exec, vcc")
        if sleep: A(f"s_sleep {sleep}")
        A("s_sub_u32 s7, s7, 1")
        A(f"s_cbranch_scc0 {top}")
        A(f"{done}:")
        A("s_mov_b64 exec, -1")
    def lspin(name, off, n, vz, vt, sleep=1, extra=None):
        top = A.label(name); done = A.label(name + "d")
        A(f"s_mov_b32 s7, {spin * 4 // (2 + sleep)}")
        A(f"{top}:")
        A(f"ds_read_b32 v{vt}, v{vz} offset:{off}")
        if extra: extra()
        A("s_waitcnt lgkmcnt(0)")
        A(f"v_cmp_gt_u32 vcc, {n}, v{vt}")
        A(f"s_cbranch_vccz {done}")
        if lmul > 1: sleep = min(127, max(sleep, 1) * lmul)
        if sleep: A(f"s_sleep {sleep}")
        A("s_sub_u32 s7, s7, 1")
        A(f"s_cbranch_scc0 {top}")
        A(f"{done}:")
    def chk_tags(regs, tmp):
        A(f"v_xor_b32 v{tmp}, s6, v{regs[0]}")
        for r in regs[1:]:
            A(f"v_xor_b32 v{tmp+1}, s6, v{r}")
            A(f"v_or_b32 v{tmp}, v{tmp}, v{tmp+1}")
        A(f"v_cmp_ne_u32 vcc, 0, v{tmp}")
    def chk_sent(regs, tmp):
        regs = list(regs)
        if len(regs) == 1:
            A(f"v_cmp_eq_u32 vcc, -1, v{regs[0]}"); return
        if len(regs) == 2:
            A(f"v_max_u32 v{tmp}, v{regs[0]}, v{regs[1]}"); rest = []
        else:
            A(f"v_max3_u32 v{tmp}, v{regs[0]}, v{regs[1]}, v{regs[2]}"); rest = regs[3:]
        while rest:
            if len(rest) == 1:
                A(f"v_max_u32 v{tmp}, v{tmp}, v{rest[0]}"); rest = []
            else:
                A(f"v_max3_u32 v{tmp}, v{tmp}, v{rest[0]}, v{rest[1]}"); rest = rest[2:]
        A(f"v_cmp_eq_u32 vcc, -1, v{tmp}")
    def xrow(op, v, tmp, which):
        A(f"v_mov_b32 v{tmp}, v{v}")
        A(f"v_permlane{which}_swap_b32 v{v}, v{tmp}")
        A(f"{op} v{v}, v{v}, v{tmp}")
    def inrow(op, v, steps):
        for s in steps:
            A(f"{op}_dpp v{v}, v{v}, v{v} {s} {DPPF}")
    def wave_reduce(op, v, tmp):
        inrow(op, v, ["row_ror:8", "row_ror:4", "row_ror:2", "row_ror:1"])
        xrow(op, v, tmp, 16); xrow(op, v, tmp, 32)
    def unpack(dst, src, n):
        for i in range(n):
            A(f"v_lshlrev_b32 v{dst+2*i}, 16, v{src[i]}")
            A(f"v_and_b32 v{dst+2*i+1}, 0xffff0000, v{src[i]}")
    def rnd(a, b=None):
        if b is None: A(f"v_cvt_pk_bf16_f32 v{a}, v{a}, v{a}\nv_lshlrev_b32 v{a}, 16, v{a}")
        else: A(f"v_cvt_pk_bf16_f32 v{b}, v{a}, v{b}\nv_lshlrev_b32 v{a}, 16, v{b}\nv_and_b32 v{b}, 0xffff0000, v{b}")
    def silu(x, t, n):
        A(f"s_mov_b32 s21, {f2x(-1.4426950408889634)}")
        for i in range(n): A(f"v_mul_f32 v{t+i}, s21, v{x+i}")
        for i in range(n): A(f"v_exp_f32 v{t+i}, v{t+i}")
        for i in range(n): A(f"v_add_f32 v{t+i}, 1.0, v{t+i}")
        for i in range(n): A(f"v_rcp_f32 v{t+i}, v{t+i}")
        for i in range(n): A(f"v_mul_f32 v{x+i}, v{x+i}, v{t+i}")
    def gemv_perm(W, T, npair):
        for u in range(npair):
            for w in range(4):
                a = W + 8 * u + w; b = W + 8 * u + 4 + w
                A(f"v_perm_b32 v{T+8*u+2*w}, v{b}, v{a}, s24")
                A(f"v_perm_b32 v{T+8*u+2*w+1}, v{b}, v{a}, s25")
    def gemv_dot(T, X, acc):
        for u in range(len(X)):
            for e in range(8):
                c = "0" if u == 0 else f"v{acc+e}"
                A(f"v_dot2_f32_bf16 v{acc+e}, v{T+8*u+e}, v{X[u]}, {c}")
    def mktag():
        A("s_waitcnt lgkmcnt(0)\ns_mul_i32 s6, s6, 0x9E3779B1\ns_add_u32 s6, s6, 0x7F4A7C15")
    def paced(loads, w):
        if skipw and (w or skipw > 1): return
        for i, l in enumerate(loads):
            if w and i >= w: A(f"s_waitcnt vmcnt({w-1})")
            A(l)

    if st0: A("s_memrealtime s[90:91]")
    if probe == "start": A("s_memrealtime s[94:95]")
    A("s_cmp_ge_u32 s2, 256\ns_cbranch_scc1 L_exit")
    A("s_load_dwordx16 s[36:51], s[0:1], 0")
    rest_ld = "s_load_dwordx8 s[52:59], s[0:1], 64\ns_load_dwordx2 s[60:61], s[0:1], 96\ns_load_dword s68, s[32:33], s34"
    A("s_getpc_b64 s[30:31]\nL_pc:\ns_add_u32 s32, s30, L_tab-L_pc\ns_addc_u32 s33, s31, 0\ns_lshl_b32 s34, s2, 2")
    if not ltab: A(rest_ld)
    if cpre >= 2:
        A(f"s_lshr_b32 s5, s2, 3\ns_cmp_lg_u32 s5, {cpre-2}\ns_cbranch_scc1 L_ncp0")
        A(f"v_lshlrev_b32 v1, 7, v0\nv_cmp_gt_u32 vcc, L_endcode-L_pc-4, v1\ns_and_saveexec_b64 s[20:21], vcc\ns_cbranch_execz L_ncp1\nglobal_load_dword v167, v1, s[30:31]\nL_ncp1:\ns_mov_b64 exec, s[20:21]\nL_ncp0:")
    A("v_lshrrev_b32 v1, 6, v0\nv_and_b32 v0, 63, v0\nv_readfirstlane_b32 s3, v1")
    A("s_and_b32 s4, s2, 7\ns_lshr_b32 s5, s2, 3")
    if xp: A(f"s_lshl_b32 s4, s4, 2\ns_lshr_b32 s4, {sum(h << (4*i) for i, h in enumerate(xp)):#x}, s4\ns_and_b32 s4, s4, 7")
    if fixend: A("s_memrealtime s[96:97]")
    A("s_mov_b32 s24, 0x05040100\ns_mov_b32 s25, 0x07060302")
    A("v_lshlrev_b32 v2, 4, v0")
    if stamps:
        A("v_mov_b32 v3, 0")
        if not st0: stamp(0)
    A("s_cmp_lt_u32 s3, 4\ns_cbranch_scc1 L_service")
    STREAM_MARK = len(A.lines)
    A("L_service:")
    if ltab: A(rest_ld)
    A(f"s_setprio {sprio}")
    if cpre == 1:
        A(f"s_lshl_b32 s20, s5, 2\ns_add_u32 s20, s20, s3\ns_sub_u32 s20, s20, 96\ns_cmp_ge_u32 s20, (L_endcode-{NAME})/1024\ns_cbranch_scc1 L_ncp")
        A(f"s_sub_u32 s30, s30, L_pc-{NAME}\ns_subb_u32 s31, s31, 0")
        A("s_lshl_b32 s20, s20, 10\nv_add_u32 v14, s20, v2")
        A("global_load_dwordx4 v[164:167], v14, s[30:31]")
        A("L_ncp:")
    A("v_lshrrev_b32 v12, 3, v0\nv_and_b32 v13, 7, v0\nv_mov_b32 v16, 0\nv_mov_b32 v17, 0\nv_mov_b32 v18, 0\nv_mov_b32 v19, 0")
    A("s_mov_b64 exec, 0x1f\nds_write_b128 v2, v[16:19]\ns_mov_b64 exec, -1")
    A("s_waitcnt lgkmcnt(0)")
    A("s_bfe_u32 s64, s68, 0x3000f\ns_bfe_u32 s65, s68, 0x50012\ns_bfe_u32 s66, s68, 0x20017\ns_bfe_u32 s67, s68, 0x60019")
    A("s_lshr_b32 s69, s65, 2\ns_and_b32 s70, s65, 3")
    A(f"s_cmp_lg_u32 s64, {E_H}\ns_cbranch_scc1 L_nh")
    A("s_lshr_b32 s20, s70, 1\ns_lshl_b32 s20, s20, 8\ns_lshl_b32 s21, s3, 6\ns_add_u32 s20, s20, s21")
    A("v_lshl_add_u32 v14, v12, 3, s20")
    A("s_mov_b32 s21, 6144\nv_mul_lo_u32 v1, v14, s21\nv_lshl_add_u32 v1, v13, 4, v1\nv_lshlrev_b32 v14, 1, v14")
    A("s_and_b32 s20, s70, 1\ns_lshl_b32 s20, s20, 10\ns_lshl_b32 s21, s69, 7\ns_add_u32 s20, s20, s21")
    A("s_waitcnt lgkmcnt(0)")
    srd(8, P_WM, 512 * 6144)
    A(f"global_load_dwordx4 v[4:7], v14, {sp(P_C)}")
    for i in range(8):
        A(f"buffer_load_dwordx4 {v4(40+4*i)}, v1, s[8:11], s20 offen {wpol}")
        if i < 7: A("s_add_u32 s20, s20, 6144")
    A(f"s_load_dword s6, {WS}, 0")
    A("s_barrier")
    A("s_lshl_b32 s20, s65, 2\ns_add_u32 s20, s20, s3")
    if cpad: A(f"s_lshr_b32 s21, s20, 3\ns_lshl_b32 s21, s21, 15\ns_and_b32 s22, s20, 7\ns_lshl_b32 s22, s22, 11\ns_add_u32 s21, s21, s22\ns_add_u32 s21, s21, {WS_C + (0 if use2 else (p2^1)<<14)}\nv_lshrrev_b32 v14, 2, v0\nv_lshl_add_u32 v14, v14, 6, v2\nv_add_u32 v14, s21, v14\nv_add_u32 v11, 16384, v14")
    else: A(f"s_lshr_b32 s21, s20, 4\ns_lshl_b32 s21, s21, 15\ns_and_b32 s22, s20, 15\ns_lshl_b32 s22, s22, 10\ns_add_u32 s21, s21, s22\ns_add_u32 s21, s21, {WS_C + (0 if use2 else (p2^1)<<14)}\nv_add_u32 v14, s21, v2\nv_add_u32 v11, 16384, v14")
    if use2: A(f"s_lshl_b32 s21, s20, 10\ns_add_u32 s21, s21, {WS_B}\nv_add_u32 v15, s21, v2")
    else: A(f"s_lshr_b32 s21, s20, 5\ns_lshl_b32 s21, s21, 15\ns_and_b32 s22, s20, 31\ns_lshl_b32 s22, s22, 9\ns_add_u32 s21, s21, s22\ns_add_u32 s21, s21, {WS_B + (p2<<14)}\nv_add_u32 v15, s21, v2")
    A("s_cmp_eq_u32 s3, 3\ns_cselect_b32 exec_hi, 0, -1")
    for i in range(4): A(f"v_mov_b32 v{16+i}, -1")
    A("s_mov_b64 exec, -1")
    for i in range(4): A(f"v_mov_b32 v{20+i}, -1")
    A(f"global_store_dwordx4 v14, v[16:19], {WS} sc1")
    if use2: A(f"global_store_dwordx4 v11, v[16:19], {WS} sc1")
    else: A("s_mov_b32 exec_hi, 0")
    A(f"global_store_dwordx4 v15, v[20:23], {WS} sc1\ns_mov_b64 exec, -1")
    A(f"s_waitcnt vmcnt({10+use2})")
    unpack(24, [4, 5, 6, 7], 4); silu(24, 32, 8)
    for i in range(4): A(f"v_cvt_pk_bf16_f32 v{24+i}, v{24+2*i}, v{25+2*i}")
    mktag()
    A(f"s_and_b32 s26, s70, 1\ns_lshl_b32 s26, s26, 13\ns_lshr_b32 s21, s70, 1\ns_lshl_b32 s21, s21, 12\ns_add_u32 s26, s26, s21\ns_lshl_b32 s21, s69, 9\ns_add_u32 s26, s26, s21\ns_add_u32 s26, s26, {WS_H}")
    A(f"s_waitcnt vmcnt({2+use2})")
    stamp(1)
    gemv_perm(40, 104, 4)
    gemv_dot(104, [24, 25, 26, 27], 32)
    A("L_gfin:")
    acc = 32
    for e in range(4): A(f"v_permlane32_swap_b32 v{acc+e}, v{acc+e+4}")
    for e in range(4): A(f"v_add_f32 v{acc+e}, v{acc+e}, v{acc+e+4}")
    for e in range(2): A(f"v_permlane16_swap_b32 v{acc+e}, v{acc+e+2}")
    for e in range(2): A(f"v_add_f32 v{acc+e}, v{acc+e}, v{acc+e+2}")
    for e in range(2): A(f"v_add_f32_dpp v{acc+e}, v{acc+e}, v{acc+e} row_ror:8 {DPPF}")
    A("v_lshrrev_b32 v14, 4, v0\nv_lshlrev_b32 v14, 3, v14\nv_lshl_add_u32 v14, v13, 5, v14\ns_lshl_b32 s21, s3, 8\nv_add_u32 v14, s21, v14")
    A(f"ds_write_b64 v14, v[32:33] offset:{L_GP}")
    A("v_mov_b32 v14, 0\nv_mov_b32 v15, 1")
    A("s_waitcnt vmcnt(0)")
    A("s_mov_b64 exec, 1")
    A(f"ds_add_rtn_u32 v15, v14, v15 offset:{L_CG}")
    A("s_mov_b64 exec, -1")
    A("v_lshlrev_b32 v14, 3, v0")
    A("s_waitcnt lgkmcnt(0)")
    A("v_readfirstlane_b32 s21, v15")
    A("s_cmp_lg_u32 s21, 3\ns_cbranch_scc1 L_gdone")
    A("s_mov_b32 exec_hi, 0")
    for w in range(4): A(f"ds_read_b64 {v2(32+2*w)}, v14 offset:{L_GP+256*w}")
    A("v_add_u32 v14, s26, v14")
    A("s_waitcnt lgkmcnt(0)")
    A("v_pk_add_f32 v[32:33], v[32:33], v[34:35]\nv_pk_add_f32 v[36:37], v[36:37], v[38:39]\nv_pk_add_f32 v[32:33], v[32:33], v[36:37]")
    A(f"s_cmp_lg_u32 s64, {E_H}\ns_cbranch_scc1 L_gnh")
    A(f"v_mov_b32 v34, v33\nv_mov_b32 v33, s6\nv_mov_b32 v35, s6\nv_add_u32 v14, s26, v2\nglobal_store_dwordx4 v14, v[32:35], {WS} sc1\ns_mov_b64 exec, -1\ns_branch L_gdone\nL_gnh:")
    A("v_cvt_pk_bf16_f32 v32, v32, v33\nv_mov_b32 v33, s6")
    if qloc:
        A(f"s_cmp_lg_u32 s64, {E_Q}\ns_cbranch_scc1 L_gnl")
        A(f"v_add_u32 v15, {WS_QL-WS_Q}, v14\nglobal_store_dwordx2 v15, v[32:33], {WS}")
        A("L_gnl:")
    A(f"global_store_dwordx2 v14, v[32:33], {WS} sc1")
    A("s_mov_b64 exec, -1")
    A("L_gdone:")
    stamp(3)
    if mlate: A(f"s_cmp_eq_u32 s64, {E_M}\ns_cbranch_scc1 L_done")
    A("s_branch L_qpoll")

    NM = T - 28; nmask = T - min(r['n'] for r in roles.values())
    NW = 39 - T
    S0 = len(A.lines)
    A("L_stream:")
    if kprio: A(f"s_setprio {kprio}")
    A("s_sub_u32 s21, s3, 4")
    if yprio == 1: A("s_cmp_lt_u32 s21, 4\ns_cbranch_scc1 L_yp\ns_setprio 1\nL_yp:")
    A("v_bfe_u32 v1, v0, 2, 2\nv_lshlrev_b32 v1, 8, v1\nv_lshrrev_b32 v4, 4, v0\nv_lshl_add_u32 v1, v4, 6, v1\nv_and_b32 v4, 3, v0\nv_lshl_add_u32 v1, v4, 4, v1")
    A(f"s_lshl_b32 s19, s4, 23\ns_mul_i32 s16, s5, {28*8192}\ns_add_u32 s16, s16, s19\ns_lshl_b32 s17, s21, 12\ns_add_u32 s16, s16, s17")
    A("s_mov_b32 s10, 0x4000000\ns_mov_b32 s11, 0x20000")
    hcnt = sum(PLANS[plan]['H'][x] << (4 * x) for x in range(8))
    A(f"s_lshl_b32 s17, s4, 2\ns_lshr_b32 s35, {hcnt:#x}, s17\ns_and_b32 s35, s35, {15 if hfirst else 0}")
    A("s_waitcnt lgkmcnt(0)")
    A(f"s_mov_b32 s8, s{P_K}\ns_mov_b32 s9, s{P_K+1}")
    A("s_cmp_ge_u32 s5, s35\ns_cbranch_scc1 L_s1\ns_barrier\nL_s1:")
    KR = lambda t: 168 - 4 * T + 4 * t
    nS = (T + 3) // 4; nP = (T + 7) // 8
    assert T == 34
    first_v = 14
    vslots = [12 + 4 * i for i in range(NW)] + [KR(i) for i in range(first_v, T)]
    VR = lambda t: vslots[t % len(vslots)]
    st = {"cur": None}
    mpos = [6 + (j * (T - 12)) // max(nmask, 1) for j in range(nmask)]
    rest = list(range(NM, NM + 6)) + list(range(nmask, NM)) + list(range(NM + 6, T))
    perm = []
    for t in range(T):
        if t in mpos: perm.append(mpos.index(t))
        else: perm.append(rest.pop(0))
    first_nm = min(t for t in range(T) if perm[t] < NM)
    assert first_nm >= win
    hist = []
    def wcount(w):
        c = 0
        for n_, m_ in enumerate(reversed(hist)):
            if not m_:
                if c == w - 1: return n_
                c += 1
        return None
    def ld(which, t):
        o = perm[t]
        hist.append(o < nmask)
        if o < NM:
            A(f"s_add_u32 s20, s17, {o*8192}"); st["cur"] = None; imm = 0
            if o < nmask: A(f"s_cmp_gt_u32 s18, {o}\ns_cselect_b32 s20, 0x4000000, s20")
        else:
            key = (o - NM) >> 2; imm = ((o - NM) & 3) * 1024
            if st["cur"] != key:
                A(f"s_add_u32 s20, s16, {key*32768}"); st["cur"] = key
        if which == "K": A(f"buffer_load_dwordx4 {v4(KR(t))}, v1, s[8:11], s20 offen offset:{imm} {kpol}")
        else: A(f"buffer_load_dwordx4 {v4(VR(t))}, v2, s[12:15], s20 offen offset:{imm} {vpol}")
    korder = list(range(T))
    seq = [("K", t) for t in korder] + [("V", t) for t in range(NW)]
    for i, (wh, t) in enumerate(seq):
        if i == win:
            if st0: A("s_memrealtime s[92:93]")
            if ltab: A(rest_ld)
            A("s_branch L_body")
            S1 = len(A.lines)
            A("L_body:")
            srd(12, P_V, 0x4000000)
            if ws1: A(f"s_cmp_lt_u32 s21, {ws1}\ns_cselect_b64 vcc, -1, 0")
            if st0: A("s_waitcnt vmcnt(3)\ns_memrealtime s[94:95]")
            if not b0at: A("s_cmp_lt_u32 s5, s35\ns_cbranch_scc1 L_s2\ns_barrier\nL_s2:")
            A("s_waitcnt lgkmcnt(0)")
            A(f"s_and_b32 s17, s68, 0xfff\ns_bfe_u32 s18, s68, 0x3000c\ns_add_u32 s17, s17, {896-16}\ns_lshl_b32 s17, s17, 13\ns_add_u32 s17, s17, s19\ns_lshl_b32 s19, s21, 10\ns_add_u32 s17, s17, s19")
        if b0at and i == win + b0at: A("s_cmp_lt_u32 s5, s35\ns_cbranch_scc1 L_s2\ns_barrier\nL_s2:")
        if i == T and kprio: A("s_setprio 0")
        if wcount(win) is not None and perm[t] >= nmask:
            if xn and 8 <= i < 8 + xn:
                lb = A.label("w"); A(f"s_waitcnt vmcnt({wcount(win+1)})\ns_bitcmp0_b32 {xmask:#x}, s4\ns_cbranch_scc1 {lb}\ns_waitcnt vmcnt({wcount(win)})\n{lb}:")
            else: A(f"s_waitcnt vmcnt({wcount(win)})")
        ld(wh, t)
        if i == qtrig: A(f"v_mov_b32 v8, 0\nv_mov_b32 v9, 1\ns_mov_b64 exec, 1\nds_max_u32 v8, v9 offset:{L_FK}\ns_mov_b64 exec, -1")
        if hwait and i == hwait: A(f"v_mov_b32 v8, 0\nv_mov_b32 v9, 1\ns_mov_b64 exec, 1\nds_write_b32 v8, v9 offset:72\ns_mov_b64 exec, -1")
        if i == qtrig2 and qloc: A(f"v_mov_b32 v8, 0\nv_mov_b32 v9, 2\ns_mov_b64 exec, 1\nds_max_u32 v8, v9 offset:{L_FK}\ns_mov_b64 exec, -1")
    viss = NW
    A("v_and_b32 v8, 3, v0\nv_lshlrev_b32 v8, 8, v8\nv_lshrrev_b32 v9, 4, v0\nv_lshl_add_u32 v8, v9, 6, v8\nv_bfe_u32 v9, v0, 2, 2\nv_lshl_add_u32 v8, v9, 4, v8\nv_mov_b32 v9, 0")
    if mim: A(f"s_mov_b32 s22, {f2x(1.4426950408889634)}\ns_mov_b32 s26, {f2x(128**-0.5)}\ns_mov_b32 s27, s26")
    else: A(f"s_mov_b32 s22, {f2x(128**-0.5*1.4426950408889634)}")
    for t in range(nmask): A(f"s_cmp_gt_u32 s18, {t}\ns_cselect_b32 s{28+t}, 0xff800000, 0")
    stamp(1)
    lspin("sq", L_FQ, 1, 9, 10, 2, lambda: A(f"ds_read_b128 v[4:7], v8 offset:{L_Q}"))
    stamp(2)
    kl = {"landed": T + NW - win - 3}
    DR = lambda t: 8 if t == 0 else KR(t - 1)
    SR = lambda t: (8 + t) if t < 4 else KR((t >> 2) - 1) + (t & 3)
    def M(t):
        if t >= kl["landed"]:
            A(f"s_waitcnt vmcnt({len(hist)-1-t})"); kl["landed"] = t + 1
        A(f"v_mfma_f32_16x16x32_bf16 {v4(DR(t))}, {v4(KR(t))}, v[4:7], 0")
    def AB(t):
        d = DR(t)
        A(f"v_add_f32_dpp v{d}, v{d+1}, v{d} row_shl:4 {DPPF} bound_ctrl:0")
        A(f"v_add_f32_dpp v{d+2}, v{d+3}, v{d+2} row_shl:4 {DPPF} bound_ctrl:0")
    def S(t):
        d = DR(t)
        A(f"v_add_f32_dpp v{SR(t)}, v{d+2}, v{d} row_shl:8 {DPPF} bound_ctrl:0")
    mark0 = len(A.lines)
    if yprio == 2: A("s_cmp_lt_u32 s21, 4\ns_cbranch_scc1 L_yp\ns_setprio 1\nL_yp:")
    M(0); M(1); M(2)
    for t in range(T + 1):
        if t < T: AB(t)
        if t >= 1:
            S(t - 1)
            if vmid and t - 2 >= first_v and (t - 2 - first_v) % vmid == 0:
                ld("V", viss); viss += 1
        if t + 3 < T: M(t + 3)
    TM = KR(11)
    Sl = [SR(t) for t in range(T)]
    if mim:
        for t in range(0, T, 2): rnd(Sl[t], Sl[t + 1])
        for t in range(0, T, 2): A(f"v_pk_mul_f32 {v2(Sl[t])}, {v2(Sl[t])}, s[26:27]")
        if vmid: ld("V", viss); viss += 1
        for t in range(0, T, 2): rnd(Sl[t], Sl[t + 1])
    for t in range(nmask): A(f"v_add_f32 v{Sl[mpos[t]]}, s{28+t}, v{Sl[mpos[t]]}")
    A(f"v_max3_f32 v{TM}, v{Sl[0]}, v{Sl[1]}, v{Sl[2]}")
    A(f"v_max3_f32 v{TM+1}, v{Sl[3]}, v{Sl[4]}, v{Sl[5]}")
    i = 6; k = 0
    while i < T:
        A(f"v_max3_f32 v{TM+k}, v{TM+k}, v{Sl[i]}, v{Sl[i+1]}"); i += 2; k ^= 1
    A(f"v_max_f32 v{TM}, v{TM}, v{TM+1}")
    xrow("v_max_f32", TM, TM + 1, 16); xrow("v_max_f32", TM, TM + 1, 32)
    A(f"v_mul_f32 v{TM}, s22, v{TM}")
    for t in range(T): A(f"v_fma_f32 v{Sl[t]}, v{Sl[t]}, s22, -v{TM}")
    for t in range(T): A(f"v_exp_f32 v{Sl[t]}, v{Sl[t]}")
    if vmid: ld("V", viss); viss += 1
    A(f"v_add_f32 v{TM+1}, v{Sl[0]}, v{Sl[1]}\nv_add_f32 v{TM+2}, v{Sl[2]}, v{Sl[3]}")
    for t in range(4, T): A(f"v_add_f32 v{TM+1+(t&1)}, v{TM+1+(t&1)}, v{Sl[t]}")
    A(f"v_add_f32 v{TM+1}, v{TM+1}, v{TM+2}")
    xrow("v_add_f32", TM + 1, TM + 2, 16); xrow("v_add_f32", TM + 1, TM + 2, 32)
    A(f"s_lshl_b32 s19, s21, 5\nv_lshl_add_u32 v{TM+2}, v0, 3, s19\nv_mov_b32 v4, 0\nv_mov_b32 v5, 1")
    A("s_mov_b64 exec, 0xf")
    A(f"ds_write_b64 v{TM+2}, {v2(TM)} offset:{L_ST}")
    A("s_mov_b64 exec, 1")
    A(f"ds_add_u32 v4, v5 offset:{L_CS}")
    A("s_mov_b64 exec, -1")
    GR = [(0, 2), (2, 10), (10, 18), (18, 26), (26, 34)]
    def pack(u, d):
        for t in range(GR[u][0], GR[u][1], 2): A(f"v_cvt_pk_bf16_f32 v{d+(t-GR[u][0])//2}, v{Sl[t]}, v{Sl[t+1]}")
    for u in range(3): pack(u, KR(8 + u))
    A("s_waitcnt lgkmcnt(0)")
    AC = [8, KR(0)]
    PA = [KR(1), KR(2), KR(12), KR(13)]; PB = [KR(3), KR(4), KR(5), KR(6)]
    TT = [TM, 4]
    def zero(P):
        for j in range(4):
            for i in range(4): A(f"v_mov_b32 v{P[j]+i}, 0")
    def vers(P, src, n=4):
        for j in range(4):
            ctl = "quad_perm:[0,1,2,3]" if j == 0 else f"row_shr:{4*j}"
            for i in range(n): A(f"v_mov_b32_dpp v{P[j]+i}, v{src+i} {ctl} row_mask:0xf bank_mask:{1<<j:#x}")
    zero(PA)
    A(f"v_mov_b32 v{TM+1}, 0\nv_mov_b32 v5, 0")
    stamp(3)
    EO = (0, 4, 1, 5, 2, 6, 3, 7)
    def pv(u):
        t0, t1 = GR[u]; n = t1 - t0
        vers(PA, KR(8 + u), n // 2)
        for k, e in enumerate(EO):
            Tm = TT[k & 1]; ac = AC[e >> 2]
            for p in range(n // 2):
                a = VR(t0 + 2 * p) + (e >> 1); b = VR(t0 + 2 * p + 1) + (e >> 1)
                A(f"v_perm_b32 v{Tm+p}, v{b}, v{a}, s{24+(e&1)}")
            c = "0" if (u == 0 and k < 2) else v4(ac)
            if n == 8: A(f"v_mfma_f32_16x16x32_bf16 {v4(ac)}, {v4(Tm)}, {v4(PA[e&3])}, {c}")
            else: A(f"v_mfma_f32_16x16x16_bf16 {v4(ac)}, {v2(Tm)}, {v2(PA[e&3])}, {c}")
    ns = len(vslots)
    TA = [VR(t) for t in range(T - ns, 18)][:8]
    assert len(TA) == 8
    X = KR(8); ONE = KR(7) + 2; CNT = KR(7) + 3
    def rescale():
        A(f"v_and_b32 v1, 3, v0\nv_lshlrev_b32 v1, 3, v1\nv_mov_b32 v{X+10}, 0\nv_mov_b32 v{ONE}, 1\ns_lshl_b32 s19, s21, 5\nv_add_u32 v{X+9}, s19, v1")
        def rd():
            for w in range(8): A(f"ds_read_b32 v{X+w}, v1 offset:{L_ST+32*w}")
            A(f"ds_read_b32 v{X+8}, v{X+9} offset:{L_ST}")
        lspin("sm", L_CS, 9, X + 10, X + 11, 1, rd)
        A(f"s_mov_b64 exec, 1\nds_add_rtn_u32 v{X+11}, v{X+10}, v{ONE} offset:{L_CT}\ns_mov_b64 exec, -1")
        A(f"v_max3_f32 v{X}, v{X}, v{X+1}, v{X+2}\nv_max3_f32 v{X+3}, v{X+3}, v{X+4}, v{X+5}\nv_max3_f32 v{X}, v{X}, v{X+6}, v{X+7}\nv_max_f32 v{X}, v{X}, v{X+3}")
        A(f"v_sub_f32 v{X}, v{X+8}, v{X}\nv_exp_f32 v{X}, v{X}")
        A(f"s_lshl_b32 s19, s21, 11\nv_add_u32 v1, s19, v2\ns_and_b32 s19, s21, 4\nv_mov_b32 v{CNT}, s19")
        for ac in AC:
            for q in range(2): A(f"v_pk_mul_f32 {v2(ac+2*q)}, {v2(ac+2*q)}, {v2(X)} op_sel_hi:[1,0]")
        for t in range(18, T, 2): A(f"v_pk_mul_f32 {v2(Sl[t])}, {v2(Sl[t])}, {v2(X)} op_sel_hi:[1,0]")
        pack(3, TT[0]); pack(4, TT[1])
        zero(PB); vers(PA, TT[0]); vers(PB, TT[1])
        A(f"s_waitcnt lgkmcnt(0)\nv_readfirstlane_b32 s23, v{X+11}")
    while viss < min(win2, ns):
        ld("V", viss); viss += 1
    done_t = 0
    ends = {g[1] - 1: u for u, g in enumerate(GR[:3])}
    for L in range(T):
        inc = L >= 18 and L % 2 == 1
        can = lambda: viss < T and sum(1 for j in range(L + 1, viss) if perm[j] >= nmask) < (bwin if L >= T - burst else win2 + (pre if L in ends else 0)) + (perm[viss] < nmask) and (viss < ns or done_t > viss - ns)
        if can() or L in ends or inc:
            A(f"s_waitcnt vmcnt({viss-1-L})")
        while can():
            ld("V", viss); viss += 1
            if viss == T:
                assert L > 17
                A(f"s_mov_b64 exec, 1\nds_add_u32 v2, v{ONE} offset:{L_CV}\ns_mov_b64 exec, -1")
        if L in ends:
            pv(ends[L]); done_t = L + 1
            if L == 17: rescale()
        if inc:
            if L == T - 1: stamp(4)
            p = ((L - 18) % 8) // 2
            for e in EO: A(f"v_perm_b32 v{TA[e]+p}, v{VR(L)+(e>>1)}, v{VR(L-1)+(e>>1)}, s{24+(e&1)}")
            if p == 3:
                for e in EO: A(f"v_mfma_f32_16x16x32_bf16 {v4(AC[e>>2])}, {v4(TA[e])}, {v4((PA if L < 26 else PB)[e&3])}, {v4(AC[e>>2])}")
    assert viss == T
    if nocomp:
        keep = [l for l in A.lines[mark0:] if not l.startswith(("v_mfma", "v_perm_b32", "v_add_f32", "v_exp", "v_fma", "v_max", "v_cvt", "v_permlane"))]
        A.lines[mark0:] = keep
    for hf in range(2): A(f"ds_write_b128 v1, {v4(AC[hf])} offset:{L_OP+hf*1024}")
    A(f"s_mov_b64 exec, 1\nds_add_u32 v{CNT}, v{ONE} offset:{L_FO}")
    A("s_mov_b64 exec, -1")
    if stamps: A("s_waitcnt lgkmcnt(0)")
    stamp(5)
    A("s_cmp_lg_u32 s23, 0\ns_cbranch_scc1 L_done")
    A(f"s_setprio {rprio}")
    def a_addr(d, t):
        if lin: A(f"s_lshl_b32 s20, s4, 15\ns_lshr_b32 s19, s5, 4\ns_lshl_b32 s19, s19, 10\ns_add_u32 s20, s20, s19\ns_and_b32 s19, s5, 15\ns_lshl_b32 s19, s19, 4\ns_add_u32 s20, s20, s19\ns_add_u32 s20, s20, {WS_A}")
        else: A(f"s_lshl_b32 s20, s4, 15\ns_lshl_b32 s19, s5, {7 if fl else 6}\ns_add_u32 s20, s20, s19\ns_add_u32 s20, s20, {WS_A}")
        if mrg:
            assert lin
            A(f"v_and_b32 v{d}, 3, v0\nv_lshlrev_b32 v{d}, 13, v{d}\nv_bfe_u32 v{t}, v0, 2, 2\nv_lshl_add_u32 v{d}, v{t}, 11, v{d}\nv_lshrrev_b32 v{t}, 4, v0\nv_lshl_add_u32 v{d}, v{t}, 8, v{d}\nv_add_u32 v{d}, s20, v{d}")
            return
        A(f"v_bfe_u32 v{d}, v0, 2, 2\nv_lshlrev_b32 v{d}, 13, v{d}")
        if fl: A(f"v_lshrrev_b32 v{t}, 5, v0\nv_lshl_add_u32 v{d}, v{t}, 12, v{d}\nv_bfe_u32 v{t}, v0, 4, 1\nv_lshl_add_u32 v{d}, v{t}, 6, v{d}")
        else: A(f"v_lshrrev_b32 v{t}, 4, v0\nv_lshl_add_u32 v{d}, v{t}, 11, v{d}")
        A(f"v_and_b32 v{t}, 3, v0\nv_lshl_add_u32 v{d}, v{t}, {8 if lin else 4}, v{d}\nv_add_u32 v{d}, s20, v{d}")
    a_addr(36, 37)
    A(f"v_add_u32 v37, {WS_AL-WS_A}, v36\nv_mov_b32 v38, 0\nv_mov_b32 v39, 1")
    if xl: A(f"ds_read_b32 v29, v38 offset:{L_MK}\ns_waitcnt lgkmcnt(0)\nv_readfirstlane_b32 s26, v29")
    for hf in range(2 if det else 0):
        def rd8():
            for j in range(4): A(f"ds_read_b128 {v4(40+8*j)}, v2 offset:{L_OP+(4*hf+j)*2048}\nds_read_b128 {v4(44+8*j)}, v2 offset:{L_OP+(4*hf+j)*2048+1024}")
        if rsl and hf: lspin("so3", L_FO + 4, 3, 38, 28, 1)
        lspin("so", L_FO + 4 * hf, 4, 38, 28, 1 - hf, rd8)
        for q in range(4): A(f"v_pk_add_f32 {v2(40+2*q)}, {v2(40+2*q)}, {v2(48+2*q)}")
        for q in range(4): A(f"v_pk_add_f32 {v2(56+2*q)}, {v2(56+2*q)}, {v2(64+2*q)}")
        for q in range(4): A(f"v_pk_add_f32 {v2((12 if hf == 0 else 40)+2*q)}, {v2(40+2*q)}, {v2(56+2*q)}")
        if hf:
            for q in range(4): A(f"v_pk_add_f32 {v2(12+2*q)}, {v2(12+2*q)}, {v2(40+2*q)}")
    for i in range(0 if det else 8):
        d = 12 if i == 0 else 20
        lspin("so", L_FO + 4 * i, 1, 38, 28, 1 if (calm and i < 6) else 0, lambda: A(f"ds_read_b128 {v4(d)}, v2 offset:{L_OP+i*2048}\nds_read_b128 {v4(d+4)}, v2 offset:{L_OP+i*2048+1024}"))
        if i:
            for q in range(4): A(f"v_pk_add_f32 {v2(12+2*q)}, {v2(12+2*q)}, {v2(20+2*q)}")
    for q in range(4): A(f"v_cvt_pk_bf16_f32 v{12+q}, v{12+2*q}, v{13+2*q}")
    if loc: A(f"global_store_dwordx4 v37, v[12:15], {WS}")
    if xl: A("s_cmp_eq_u32 s26, 0\ns_cbranch_scc1 L_ng2")
    A(f"global_store_dwordx4 v36, v[12:15], {WS} sc1")
    A("L_ng2:")
    A(f"ds_write_b32 v38, v39 offset:{L_FP}")
    stamp(6)
    end_wave()
    blk = A.lines[S0:S1]; del A.lines[S0:S1]; A.lines[STREAM_MARK:STREAM_MARK] = blk

    A("L_nh:")
    A(f"s_cmp_lg_u32 s64, {E_Q}\ns_cbranch_scc1 L_nq")
    A("v_lshlrev_b32 v1, 17, v12\nv_lshl_add_u32 v1, v13, 4, v1")
    A("s_lshl_b32 s20, s3, 20\ns_lshl_b32 s21, s4, 10\ns_add_u32 s20, s20, s21\ns_mov_b32 s26, s65\ns_lshl_b32 s21, s26, 7\ns_add_u32 s20, s20, s21")
    A("s_lshl_b32 s21, s3, 8\nv_lshl_add_u32 v14, v0, 2, s21")
    A("s_waitcnt lgkmcnt(0)")
    srd(8, P_WQ, 512 * 8192)
    A(f"global_load_dwordx4 v[8:11], v2, {sp(P_X)}\nglobal_load_dword v15, v14, {sp(P_X)}")
    for i in range(16):
        A(f"buffer_load_dwordx4 {v4(40+4*i)}, v1, s[8:11], s20 offen {wpol}")
        if i < 15: A("s_add_u32 s20, s20, 8192")
    A(f"s_load_dword s6, {WS}, 0")
    A("s_barrier")
    A(f"s_lshl_b32 s26, s26, 8\ns_lshl_b32 s21, s4, 11\ns_add_u32 s26, s26, s21\ns_add_u32 s26, s26, {WS_Q}")
    A("s_waitcnt vmcnt(16)")
    unpack(32, [8, 9, 10, 11], 4)
    A("v_add_f32 v4, v32, v33")
    for i in range(2, 8): A(f"v_add_f32 v4, v4, v{32+i}")
    wave_reduce("v_add_f32", 4, 5)
    A(f"v_mul_f32 v4, {f2x(1/512)}, v4")
    for i in range(8): A(f"v_sub_f32 v{32+i}, v{32+i}, v4")
    A("v_mul_f32 v6, v32, v32")
    for i in range(1, 8): A(f"v_fmac_f32 v6, v{32+i}, v{32+i}")
    wave_reduce("v_add_f32", 6, 5)
    A(f"v_mul_f32 v5, {f2x(1/512)}, v6"); rnd(4, 5)
    A(f"v_add_f32 v5, {f2x(1e-5)}, v5"); rnd(5)
    A("v_sqrt_f32 v5, v5"); rnd(5)
    A("v_rcp_f32 v5, v5")
    unpack(8, [15], 1)
    A("v_sub_f32 v8, v8, v4\nv_sub_f32 v9, v9, v4"); rnd(8, 9)
    A("v_mul_f32 v8, v8, v5\nv_mul_f32 v9, v9, v5"); rnd(8, 9)
    A(f"v_lshlrev_b32 v15, 2, v14\nv_add_u32 v15, {WS_H}, v15\nv_add_u32 v10, 4096, v15\nv_add_u32 v11, 8192, v15\nv_add_u32 v7, 12288, v15")
    mktag()
    A("s_waitcnt vmcnt(0)")
    stamp(1)
    prb("wq")
    gemv_perm(40, 104, 8)
    if hwait: A("v_mov_b32 v4, 0"); lspin("sh", 72, 1, 4, 5, 2)
    poll("ph", lambda: [A(f"global_load_dwordx4 {v4(16+4*k)}, v{(15,10,11,7)[k]}, {WS} sc1") for k in range(4)],
         lambda: chk_tags([17 + 2 * k for k in range(8)], 4), hsleep)
    stamp(2)
    prb("h")
    A("v_add_f32 v16, v16, v20\nv_add_f32 v17, v18, v22\nv_add_f32 v18, v24, v28\nv_add_f32 v19, v26, v30")
    rnd(16, 17); rnd(18, 19)
    A("v_add_f32 v18, 1.0, v18\nv_add_f32 v19, 1.0, v19"); rnd(18, 19)
    A("v_pk_mul_f32 v[24:25], v[8:9], v[18:19]"); rnd(24, 25)
    A("v_pk_add_f32 v[24:25], v[24:25], v[16:17]")
    A("L_gx:")
    A("v_cvt_pk_bf16_f32 v24, v24, v25")
    A(f"ds_write_b32 v14, v24 offset:{L_X}")
    A("s_lshl_b32 s21, s3, 8\nv_lshl_add_u32 v15, v12, 5, s21")
    A(f"ds_read_b128 v[24:27], v15 offset:{L_X}\nds_read_b128 v[28:31], v15 offset:{L_X+16}")
    A("s_waitcnt lgkmcnt(0)")
    gemv_dot(104, list(range(24, 32)), 32)
    A("s_branch L_gfin")

    A("L_nq:")
    A("s_waitcnt lgkmcnt(0)")
    A(f"s_load_dword s6, {WS}, 0")
    mktag()
    A("s_barrier")
    A("L_role:")
    A("s_cmp_eq_u32 s64, 0\ns_cbranch_scc1 L_qpoll")
    A(f"s_cmp_eq_u32 s64, {E_B}\ns_cbranch_scc1 L_wb")
    A(f"s_cmp_lg_u32 s64, {E_P}\ns_cbranch_scc1 L_m")
    if pi == 2:
        A("s_cmp_lg_u32 s3, 0\ns_cbranch_scc1 L_qpoll")
        A(f"s_lshl_b32 s20, s65, 7\ns_add_u32 s20, s20, {WS_P}\ns_add_u32 s72, s{P_WS}, s20\ns_addc_u32 s73, s{P_WS+1}, 0")
        A("v_lshlrev_b32 v4, 10, v12\nv_lshl_add_u32 v4, v13, 4, v4")
        for k in range(4):
            A("global_store_dwordx4 v4, v[16:19], s[72:73] sc1")
            if k < 3: A("v_add_u32 v4, 8192, v4")
        for k in range(4): A(f"s_mov_b32 s{80+k}, -1")
        A("s_waitcnt vmcnt(0)")
        stamp(1)
        A("s_memtime s[76:77]\ns_waitcnt lgkmcnt(0)")
        cur = 76
        for i in range(4 * pn):
            k = (i + (i >> 2)) & 3; nx = 154 - cur
            A(f"s_load_dword s74, s[72:73], {8192*k + 1024*(i>>2)}\ns_waitcnt lgkmcnt(0)\ns_memtime s[{nx}:{nx+1}]\ns_waitcnt lgkmcnt(0)\ns_sub_u32 s21, s{nx}, s{cur}\ns_min_u32 s{80+k}, s{80+k}, s21")
            cur = nx
        stamp(2)
        A("s_add_u32 s20, s80, s82\ns_add_u32 s21, s81, s83\ns_cmp_gt_u32 s20, s21\ns_cselect_b32 s22, 1, 0\ns_cselect_b32 s80, s81, s80\ns_cselect_b32 s82, s83, s82")
        if not use2: A("s_getreg_b32 s20, hwreg(HW_REG_XCC_ID, 2, 1)\ns_xor_b32 s20, s22, s20")
        if use2: A("s_cmp_gt_u32 s80, s82\ns_cselect_b32 s21, 1, 0")
        if use2: A(f"s_getreg_b32 s20, hwreg(HW_REG_XCC_ID, 2, 1)\ns_xor_b32 s22, s22, s20\ns_getreg_b32 s20, hwreg(HW_REG_XCC_ID, 0, 1)\ns_xor_b32 s21, s21, s20\ns_xor_b32 s21, s21, {1 ^ ((WS_P >> 19) & 1)}\ns_lshl_b32 s21, s21, 1\ns_or_b32 s20, s21, s22")
        A(f"v_mov_b32 v4, s20\nv_mov_b32 v5, s6\ns_lshl_b32 s20, s65, 3\ns_add_u32 s20, s20, {WS_PV}\nv_mov_b32 v8, s20")
        A(f"s_mov_b64 exec, 1\nglobal_store_dwordx2 v8, v[4:5], {WS} sc1\ns_mov_b64 exec, -1")
    A("s_branch L_qpoll\nL_m:")
    if mlate:
        A("s_branch L_qpoll\nL_ml:")
        if mlate <= 8: lspin("sl", L_CV, mlate, 10, 11, 4)
        else: lspin("sl", L_FP, 1, 10, 11, 4)
        A("s_setprio 0\nv_lshrrev_b32 v12, 3, v0\nv_and_b32 v13, 7, v0")
    A("s_mov_b32 s21, 98304\nv_mul_lo_u32 v1, v12, s21\nv_lshl_add_u32 v1, v13, 4, v1")
    A(f"s_mul_i32 s20, s3, {128*6144}\ns_add_u32 s26, s70, 2\ns_lshl_b32 s26, s26, 10\ns_lshl_b32 s21, s69, 7\ns_add_u32 s26, s26, s21\ns_add_u32 s20, s20, s26")
    A("s_lshl_b32 s21, s3, 8\nv_lshl_add_u32 v14, v0, 2, s21")
    srd(8, P_WM, 512 * 6144)
    A(f"global_load_dword v15, v14, {sp(P_C)}")
    paced([f"buffer_load_dwordx4 {v4(40+4*i)}, v1, s[8:11], s20 offen {wpol}\ns_add_u32 s20, s20, 6144" for i in range(16)], 0)
    A(f"s_lshl_b32 s26, s26, 1\ns_add_u32 s26, s26, {WS_MOD-4096}")
    A("s_waitcnt vmcnt(0)")
    unpack(24, [15], 1); silu(24, 32, 2)
    gemv_perm(40, 104, 8)
    A("s_branch L_gx")
    def dma(loads, w):
        if skipw: return
        for i, l in enumerate(loads):
            if w and i >= w: A(f"s_waitcnt vmcnt({w-1})")
            A(f"s_add_u32 m0, s23, {1024*i}")
            A(l)
    def wo_issue(lo, hi):
        srd(8, P_WO, 4096 * 1024)
        A("v_lshrrev_b32 v1, 3, v0\nv_lshlrev_b32 v1, 10, v1\nv_and_b32 v4, 7, v0\nv_lshl_add_u32 v1, v4, 4, v1")
        A(f"s_lshl_b32 s20, s4, 19\ns_lshl_b32 s21, s3, 17\ns_add_u32 s20, s20, s21\ns_lshl_b32 s21, s65, 7\ns_add_u32 s20, s20, s21\ns_add_u32 s20, s20, {8192*lo}")
        A(f"s_lshl_b32 s23, s3, 14\ns_add_u32 s23, s23, {L_WT+1024*lo}")
        dma([f"buffer_load_dwordx4 v1, s[8:11], s20 offen {wpol} lds\ns_add_u32 s20, s20, 8192" for i in range(lo, hi)], pace)
    def wo_finish(w):
        A(f"s_lshl_b32 s23, s3, 14\ns_add_u32 s23, s23, {L_WT}")
        A("v_bfe_u32 v1, v0, 2, 2\nv_lshlrev_b32 v1, 10, v1\nv_lshrrev_b32 v4, 4, v0\nv_lshl_add_u32 v1, v4, 12, v1\nv_and_b32 v4, 3, v0\nv_lshl_add_u32 v1, v4, 3, v1\nv_add_u32 v1, s23, v1")
        A(f"s_waitcnt vmcnt({w})")
        k = 0
        for c in range(4):
            for nt in range(4):
                for hi in range(2):
                    A(f"ds_read_b64_tr_b16 {v2(104+16*c+4*nt+2*hi)}, v1 offset:{(c+4*hi)*128+nt*32}")
                    k += 1
                    if k >= 12 and k % 4 == 0: A("s_waitcnt lgkmcnt(8)")
        A("s_waitcnt lgkmcnt(0)")
    A("L_wb:")
    if xl:
        A("s_cmp_lg_u32 s3, 0\ns_cbranch_scc1 L_wb1")
        A(f"s_getreg_b32 s20, hwreg(HW_REG_XCC_ID, 0, 4)\nv_mov_b32 v4, s20\nv_mov_b32 v5, s6\ns_lshl_b32 s20, s4, 7\ns_lshl_b32 s21, s65, 3\ns_add_u32 s20, s20, s21\ns_add_u32 s20, s20, {WS_XB}\nv_mov_b32 v6, s20")
        A(f"s_mov_b64 exec, 1\nglobal_store_dwordx2 v6, v[4:5], {WS} sc1\ns_mov_b64 exec, -1\ns_nop 0")
        A("L_wb1:")
    if bp:
        A("s_cmp_eq_u32 s3, 1\ns_cbranch_scc1 L_qpoll\ns_cmp_eq_u32 s3, 2\ns_cbranch_scc1 L_qpoll")
        srd(8, P_WO, 4096 * 1024)
        A("v_lshrrev_b32 v1, 3, v0\nv_lshlrev_b32 v1, 10, v1\nv_and_b32 v4, 7, v0\nv_lshl_add_u32 v1, v4, 4, v1\ns_lshr_b32 s22, s3, 1")
        A(f"s_lshl_b32 s20, s4, 19\ns_lshl_b32 s21, s22, 18\ns_add_u32 s20, s20, s21\ns_lshl_b32 s21, s65, 7\ns_add_u32 s20, s20, s21")
        A(f"s_lshl_b32 s23, s22, 15\ns_add_u32 s23, s23, {L_WT}\ns_mov_b32 s22, 31")
        A(f"L_wbl:\ns_mov_b32 m0, s23\ns_waitcnt vmcnt({bp-1})\nbuffer_load_dwordx4 v1, s[8:11], s20 offen {wpol} lds\ns_add_u32 s20, s20, 8192\ns_add_u32 s23, s23, 1024\ns_sub_u32 s22, s22, 1\ns_cbranch_scc0 L_wbl")
        A(f"v_mov_b32 v4, 0\nv_mov_b32 v5, 1\ns_waitcnt vmcnt(0)\ns_mov_b64 exec, 1\nds_add_u32 v4, v5 offset:{L_CW}\ns_mov_b64 exec, -1")
    elif not bdefer: wo_issue(0, 16); wo_finish(0)
    elif bearly: wo_issue(0, bearly)
    A("L_qpoll:")
    if w1early:
        A(f"s_cmp_lg_u32 s66, {R_C}\ns_cbranch_scc1 L_qp1\ns_mov_b32 s26, s67")
        srd(8, P_W1, 512 * 3584)
        A("v_lshrrev_b32 v1, 2, v0\ns_mov_b32 s20, 3584\nv_mul_lo_u32 v1, v1, s20\nv_and_b32 v12, 3, v0\nv_lshl_add_u32 v1, v12, 4, v1")
        A(f"s_mul_i32 s20, s3, {128*3584}\ns_lshl_b32 s21, s26, 6\ns_add_u32 s20, s20, s21")
        A(f"s_lshl_b32 s23, s3, 14\ns_add_u32 s23, s23, {L_WT}")
        dma([f"buffer_load_dwordx4 v1, s[8:11], s20 offen {w1pol} lds\ns_add_u32 s20, s20, {16*3584}" for i in range(8)], 0)
        A("L_qp1:")
    if nosvc:
        A(f"v_mov_b32 v10, 0\nv_mov_b32 v5, 1\nds_write_b32 v10, v5 offset:{L_FQ}\ns_mov_b64 exec, 1\nds_add_u32 v10, v5 offset:{L_CS}")
        end_wave()
    if tw:
        A("s_cmp_lg_u32 s3, 3\ns_cbranch_scc1 L_tw")
        A(f"s_lshl_b32 s20, s4, 23\ns_mul_i32 s21, s5, {28*8192}\ns_add_u32 s21, s21, s20\ns_add_u32 s20, s20, {896*8192}")
        A(f"v_mov_b32 v4, s21\nv_add_u32 v5, {28*8192-128}, v4\nv_mov_b32 v6, s20\nv_mov_b32 v7, 0\ns_mov_b64 exec, 1")
        A(f"global_load_dword v24, v4, {sp(P_V)} nt\nglobal_load_dword v25, v5, {sp(P_V)} nt\nglobal_load_dword v26, v6, {sp(P_V)} nt\nglobal_load_dword v27, v7, {sp(P_W2)} nt")
        A("s_waitcnt vmcnt(0)\ns_mov_b64 exec, -1\nL_tw:")
    A("v_mov_b32 v10, 0\nv_mov_b32 v23, 0\nv_mov_b32 v35, 64")
    A("s_cmp_lg_u32 s3, 1\ns_cbranch_scc1 L_np")
    A(f"s_lshl_b32 s21, s4, 11\ns_add_u32 s21, s21, {WS_Q}\nv_add_u32 v14, s21, v2")
    lspin("sk", L_FK, 1, 10, 11, 16 if calm else 4)
    def ldq():
        if qloc:
            A(f"ds_read_b32 v11, v10 offset:{L_FK}\ns_waitcnt lgkmcnt(0)\nv_readfirstlane_b32 s21, v11\ns_lshr_b32 s21, s21, 1\ns_and_b32 s21, s21, s7")
            if slowfb: A(f"s_cmp_lt_u32 s7, {spin-slowfb}")
            A(f"s_cselect_b32 s21, 0, {WS_QL-WS_Q}\nv_add_u32 v15, s21, v14")
        for i in range(2): A(f"global_load_dwordx4 {v4(16+4*i)}, v{15 if qloc else 14}, {WS} offset:{1024*i} sc1")
    poll("pq", ldq, lambda: chk_tags([17, 19, 21, 23], 4), qsleep)
    A("v_mov_b32 v17, v18\nv_mov_b32 v21, v22\nv_lshlrev_b32 v14, 3, v0\nv_mov_b32 v5, 1")
    A(f"ds_write_b64 v14, v[16:17] offset:{L_Q}\nds_write_b64 v14, v[20:21] offset:{L_Q+512}")
    A(f"ds_write_b32 v10, v5 offset:{L_FQ}")
    stamp(4)
    A("L_np:")
    if xit == 'np': end_wave()
    A("s_cmp_eq_u32 s3, 2\ns_cbranch_scc1 L_post")
    if mlate: A(f"s_cmp_eq_u32 s64, {E_M}\ns_cbranch_scc1 L_ml")
    A("s_cmp_eq_u32 s66, 0\ns_cbranch_scc1 L_done")
    A(f"s_cmp_lg_u32 s66, {R_F}\ns_cbranch_scc1 L_ws")
    A("s_cmp_lg_u32 s3, 0\ns_cbranch_scc1 L_done")
    A("L_ws:")
    lspin("ss0", L_CS, 9, 10, 11, 32 if calm else 16)
    A("s_branch L_pre")
    A("L_done:")
    end_wave()
    A("L_post:")
    a_addr(37, 15)
    A("v_bfe_u32 v36, v0, 2, 2")
    for i in range(4): A(f"v_mov_b32 v{16+i}, -1")
    if xl:
        A(f"v_and_b32 v20, 7, v0\ns_lshl_b32 s20, s4, 7\ns_add_u32 s20, s20, {WS_XB}\nv_lshl_add_u32 v20, v20, 3, s20")
        lspin("sg", L_FK, 1, 10, 11, 32 if calm else 8)
        poll("px", lambda: A(f"global_load_dwordx2 v[22:23], v20, {WS} sc1"), lambda: chk_tags([23], 21), 8)
        A("s_getreg_b32 s20, hwreg(HW_REG_XCC_ID, 0, 4)\nv_cmp_ne_u32 vcc, s20, v22\ns_cbranch_vccz L_ng")
        A(f"v_mov_b32 v5, 1\nds_write_b32 v10, v5 offset:{L_MK}")
    A(f"global_store_dwordx4 v37, v[16:19], {WS} sc1")
    A("L_ng:")
    if loc: A(f"v_add_u32 v39, {WS_AL-WS_A}, v37\nglobal_store_dwordx4 v39, v[16:19], {WS}")
    A("v_lshlrev_b32 v38, 3, v36\nv_mov_b32 v5, 1")
    A(f"s_lshl_b32 s20, s4, 11\ns_lshl_b32 s21, s5, {6 if fl else 4}\ns_add_u32 s20, s20, s21\ns_add_u32 s20, s20, {WS_ST}\nv_lshl_add_u32 v36, v36, {4 if fl else 9}, s20")
    A(f"s_waitcnt vmcnt(0)\ns_mov_b64 exec, 1\nds_add_u32 v10, v5 offset:{L_CS}\ns_mov_b64 exec, -1")
    lspin("ss", L_CS, 9, 10, 11, 16 if calm else 8)
    stamp(1)
    for w in range(8): A(f"ds_read_b64 {v2(40+2*w)}, v38 offset:{L_ST+32*w}")
    A("s_waitcnt lgkmcnt(0)")
    A("v_max3_f32 v56, v40, v42, v44\nv_max3_f32 v56, v56, v46, v48\nv_max3_f32 v56, v56, v50, v52\nv_max_f32 v56, v56, v54")
    for w in range(8): A(f"v_sub_f32 v{28+w}, v{40+2*w}, v56")
    for w in range(8): A(f"v_exp_f32 v{28+w}, v{28+w}")
    A("v_mul_f32 v58, v28, v41")
    for w in range(1, 8): A(f"v_fmac_f32 v58, v{28+w}, v{41+2*w}")
    A("s_getreg_b32 s20, hwreg(HW_REG_XCC_ID, 0, 4)\ns_add_u32 s20, s20, s6\nv_mov_b32 v57, s6\nv_mov_b32 v59, s20")
    A("s_mov_b64 exec, 0x1111")
    A(f"global_store_dwordx4 v36, v[56:59], {WS} sc1")
    A("s_mov_b64 exec, -1")
    stamp(2)
    if mlate: A(f"s_cmp_eq_u32 s64, {E_M}\ns_cbranch_scc1 L_ml")
    A(f"s_cmp_eq_u32 s66, 0\ns_cbranch_scc1 L_done\ns_cmp_eq_u32 s66, {R_F}\ns_cbranch_scc1 L_done")
    A("L_pre:")
    assert pi == 2
    A(f"v_and_b32 v37, 7, v0\nv_lshlrev_b32 v37, 3, v37\nv_add_u32 v37, {WS_PV}, v37")
    VL = f"global_load_dwordx2 v[38:39], v37, {WS} sc1"
    def tally():
        A("v_and_b32 v37, 1, v38\nv_cmp_ne_u32 vcc, 0, v37\ns_and_b32 s71, vcc_lo, 0xff\ns_bcnt1_i32_b32 s71, s71\ns_cmp_gt_u32 s71, 4\ns_cselect_b32 s71, 0x2000, 0")
        if use2: A("v_and_b32 v37, 2, v38\nv_cmp_ne_u32 vcc, 0, v37\ns_and_b32 s75, vcc_lo, 0xff\ns_bcnt1_i32_b32 s75, s75\ns_cmp_gt_u32 s75, 4\ns_cselect_b32 s75, 0x4000, 0\ns_or_b32 s71, s71, s75")
        else: A(f"s_or_b32 s71, s71, {p2<<14}")
        A("s_xor_b32 s75, s71, 0x4000")
    if xit == 'pre': end_wave()
    A(f"s_cmp_eq_u32 s66, {R_F}\ns_cbranch_scc1 L_tf")
    A(f"s_cmp_eq_u32 s66, {R_C}\ns_cbranch_scc1 L_tc")
    if bp: lspin("sz", L_CW, 2, 10, 11, 16); wo_finish(0)
    A(f"s_lshl_b32 s20, s4, 11\ns_lshl_b32 s21, s3, {4 if fl else 9}\ns_add_u32 s20, s20, s21\ns_add_u32 s20, s20, {WS_ST}")
    A(f"v_and_b32 v4, 31, v0\nv_lshl_add_u32 v5, v4, {6 if fl else 4}, s20")
    lspin("sb", L_CV, strig, 10, 11, 12 if calm else 4)
    poll("ps", lambda: A(f"global_load_dwordx4 v[40:43], v5, {WS} sc1\n" + VL), lambda: A("v_subrev_u32 v43, s6, v43\nv_xor_b32 v6, s6, v41\nv_lshrrev_b32 v7, 4, v43\nv_or_b32 v6, v6, v7\nv_xor_b32 v7, s6, v39\nv_or_b32 v6, v6, v7\nv_cmp_ne_u32 vcc, 0, v6"), 8)
    tally()
    A("s_getreg_b32 s20, hwreg(HW_REG_XCC_ID, 0, 4)\nv_cmp_eq_u32 vcc, s20, v43")
    A("s_and_b32 s28, vcc_lo, 0xffff\ns_mul_i32 s28, s28, 0x10001\ns_mov_b32 s29, s28\ns_lshr_b32 s30, vcc_lo, 16\ns_mul_i32 s30, s30, 0x10001\ns_mov_b32 s31, s30")
    A("v_mov_b32 v44, v40")
    inrow("v_max_f32", 44, ["row_ror:8", "row_ror:4", "row_ror:2", "row_ror:1"]); xrow("v_max_f32", 44, 45, 16)
    A("v_sub_f32 v40, v40, v44\nv_exp_f32 v40, v40\nv_mul_f32 v44, v40, v42")
    inrow("v_add_f32", 44, ["row_ror:8", "row_ror:4", "row_ror:2", "row_ror:1"]); xrow("v_add_f32", 44, 45, 16)
    A("v_rcp_f32 v44, v44\nv_mul_f32 v40, v40, v44")
    A("s_lshl_b32 s20, s3, 8\nv_lshl_add_u32 v4, v4, 2, s20\nv_lshrrev_b32 v5, 4, v0\nv_lshl_add_u32 v5, v5, 4, s20")
    A(f"ds_write_b32 v4, v40 offset:{L_X}\nds_read_b128 v[12:15], v5 offset:{L_X}\nds_read_b128 v[16:19], v5 offset:{L_X+64}")
    A("v_and_b32 v1, 15, v0\nv_lshrrev_b32 v4, 4, v0\nv_lshlrev_b32 v24, 4, v1\nv_lshl_add_u32 v22, v4, 14, v24\nv_lshlrev_b32 v1, %d, v1\nv_lshl_add_u32 v1, v4, 4, v1" % (7 if fl else 6))
    A(f"s_lshl_b32 s20, s4, 15\ns_lshl_b32 s21, s3, 13\ns_add_u32 s20, s20, s21\ns_add_u32 s20, s20, {WS_A}\nv_add_u32 v1, s20, v{2 if lin else 1}")
    A(f"v_add_u32 v5, {(WS_AL-WS_A) if loc else 0}, v1\nv_cndmask_b32 v6, v1, v5, s[28:29]\nv_cndmask_b32 v7, v1, v5, s[30:31]\nv_add_u32 v8, 4096, v6\nv_add_u32 v9, 4096, v7")
    A("s_lshl_b32 s20, s3, 8\nv_lshl_add_u32 v21, v0, 2, s20")
    if pi is None: A(f"s_lshl_b32 s20, s4, 11\ns_lshl_b32 s21, s67, 8\ns_add_u32 s20, s20, s21\ns_add_u32 s20, s20, {WS_B}\ns_lshl_b32 s21, s3, 16\ns_add_u32 s20, s20, s21\nv_add_u32 v22, s20, v22")
    else:
        A(f"s_and_b32 s20, s4, 3\ns_lshl_b32 s20, s20, 11\ns_lshr_b32 s21, s4, 2\ns_lshl_b32 s21, s21, 15\ns_add_u32 s20, s20, s21\ns_lshl_b32 s21, s67, 8\ns_add_u32 s20, s20, s21\ns_add_u32 s20, s20, {WS_B}")
        A("v_bfe_u32 v22, v0, 4, 1\nv_lshl_add_u32 v22, v22, 16, v24\nv_lshrrev_b32 v25, 5, v0\nv_lshl_add_u32 v22, v25, 13, v22\nv_add_u32 v22, s20, v22\nv_xor_b32 v22, s71, v22")
    A("s_waitcnt lgkmcnt(0)")
    stamp(5)
    AR = lambda c, s_: 40 + 16 * s_ + 4 * c
    D = lambda s_, nt: 72 + 16 * s_ + 4 * nt
    def lda(s_):
        for c in range(4): A(f"global_load_dwordx4 {v4(AR(c,s_))}, v{6+s_+(0 if c<2 else 2)}, {WS} offset:{(64*(c&1)+2048*s_) if fl else (2048*(c&1)+1024*s_)} {lpol}")
    def mm(s_, other_done):
        wr = 12 + 4 * s_
        def fin(nt):
            d = D(s_, nt)
            r = [f"v_pk_mul_f32 {v2(d)}, {v2(d)}, {v2(wr)}", f"v_pk_fma_f32 {v2(d)}, {v2(d+2)}, {v2(wr+2)}, {v2(d)}", f"v_add_f32 v{d}, v{d}, v{d+1}"]
            if other_done: r.append(f"v_add_f32 v{D(0,nt)}, v{D(0,nt)}, v{D(1,nt)}")
            return r
        for c in range(4):
            for nt in (0, 2, 1, 3):
                d = D(s_, nt)
                A(f"v_mfma_f32_16x16x32_bf16 {v4(d)}, {v4(AR(c,s_))}, {v4(104+16*c+4*nt)}, {'0' if c==0 else v4(d)}")
        for grp in zip(fin(0), fin(2), fin(1), fin(3)):
            for l in grp: A(l)
        if other_done: A("v_permlane32_swap_b32 v72, v80\nv_add_f32 v72, v72, v80")
    if dry:
        A("s_mov_b64 s[80:81], 0\ns_mov_b64 s[32:33], 0\ns_mov_b64 s[34:35], 0\ns_mov_b32 s84, 0\ns_mov_b64 exec, 0\ns_branch L_pb0")
        A("L_bdr:\ns_cmp_eq_u32 s84, 0\ns_mov_b32 s84, 1\ns_cbranch_scc1 L_pb1\ns_mov_b64 exec, -1")
    A("s_mov_b64 s[80:81], -1")
    if bdefer:
        if bdefer <= 8: lspin("sd", L_CV, bdefer, 10, 11, 1)
        else: lspin("sd", L_FP, 1, 10, 11, 1)
        A("s_setprio 1"); wo_issue(bearly, 16); lda(0); lda(1); A("s_setprio 3"); wo_finish(8)
        stamp(4)
        A(f"s_mov_b32 s7, {spin}\ns_branch L_pa2")
    if atrig: lspin("sa", L_FO + (4 if atrig > 4 else 0), atrig - 4 if atrig > 4 else atrig, 10, 11, 2)
    A(f"s_mov_b32 s7, {spin}\ns_mov_b64 s[32:33], -1\ns_mov_b64 s[34:35], -1")
    A("L_pa:")
    A("s_mov_b64 exec, s[32:33]"); lda(0)
    A("s_mov_b64 exec, s[34:35]"); lda(1)
    A("s_mov_b64 exec, -1")
    A("L_pa2:")
    A("s_waitcnt vmcnt(4)")
    chk_sent(range(40, 56), 23); A("s_mov_b64 s[32:33], vcc")
    A("s_waitcnt vmcnt(0)")
    chk_sent(range(56, 72), 23); A("s_mov_b64 s[34:35], vcc")
    A("s_cbranch_vccz L_pa1\ns_cmp_eq_u64 s[32:33], 0\ns_cbranch_scc1 L_pa0")
    if tsleep: A(f"s_sleep {tsleep}")
    if bhold:
        A("s_mov_b32 s85, s7"); lspin("sy", L_FO + 4 * (bhold - 1), 1, 10, 11, 2); A("s_mov_b32 s7, s85")
    A("s_sub_u32 s7, s7, 1\ns_cbranch_scc0 L_pa")
    for first in (0, 1):
        sec = 1 - first
        A(f"L_pa{first}:")
        mk = sp(32 + 2 * sec)
        A(f"s_cmp_eq_u64 {mk}, 0\ns_cbranch_scc1 L_pb{first}")
        A(f"s_mov_b64 exec, {mk}"); lda(sec); A("s_mov_b64 exec, -1")
        A(f"L_pb{first}:")
        mm(first, False)
        A(f"s_mov_b64 exec, {mk}\ns_cbranch_execz L_pd{first}")
        for _ in range(pd - 1): lda(sec)
        A(f"L_pc{first}:")
        A(f"s_waitcnt vmcnt({4*(pd-1)})")
        chk_sent(range(40 + 16 * sec, 56 + 16 * sec), 23)
        A(f"s_cbranch_vccz L_pd{first}\ns_mov_b64 exec, vcc")
        lda(sec)
        A(f"s_sub_u32 s7, s7, 1\ns_cbranch_scc0 L_pc{first}\ns_waitcnt vmcnt(0)")
        A(f"L_pd{first}:")
        A("s_mov_b64 exec, s[80:81]")
        stamp(6)
        mm(sec, True)
        if first == 0: A("s_branch L_pe")
    A("L_pe:\ns_nop 0")
    A("v_permlane32_swap_b32 v76, v84\nv_add_f32 v76, v76, v84")
    A("v_permlane16_swap_b32 v72, v76\nv_add_f32 v72, v72, v76")
    A(f"ds_write_b32 v21, v72 offset:{L_RED}")
    A("s_waitcnt lgkmcnt(0)")
    if dry: A("s_cbranch_execz L_bnb")
    A("s_barrier")
    A(f"s_cmp_ge_u32 s3, {2 if R == 8 else 1}\ns_cbranch_scc1 L_done")
    A("L_bnb:")
    for w in range(4): A(f"ds_read_b128 {v4(88+4*w)}, v24 offset:{L_RED+256*w}")
    assert R in (4, 8)
    A("s_waitcnt lgkmcnt(2)\nv_pk_add_f32 v[88:89], v[88:89], v[92:93]\nv_pk_add_f32 v[90:91], v[90:91], v[94:95]")
    A("s_waitcnt lgkmcnt(0)\nv_pk_add_f32 v[96:97], v[96:97], v[100:101]\nv_pk_add_f32 v[98:99], v[98:99], v[102:103]")
    A("v_pk_add_f32 v[88:89], v[88:89], v[96:97]\nv_pk_add_f32 v[90:91], v[90:91], v[98:99]")
    if dry: A("s_cbranch_execz L_bdr")
    A(f"global_store_dwordx4 v22, v[88:91], {WS} sc1")
    stamp(7)
    end_wave()
    A("L_tc:")
    A("s_mov_b32 s26, s67")
    srd(8, P_W1, 512 * 3584); srd(12, P_W2, 1792 * 1024)
    A("v_lshrrev_b32 v23, 4, v0\nv_lshlrev_b32 v23, 4, v23")
    A("v_lshrrev_b32 v1, 2, v0\ns_mov_b32 s20, 3584\nv_mul_lo_u32 v1, v1, s20\nv_and_b32 v12, 3, v0\nv_lshl_add_u32 v1, v12, 4, v1")
    A(f"s_mul_i32 s20, s3, {128*3584}\ns_lshl_b32 s21, s26, 6\ns_add_u32 s20, s20, s21")
    A("v_lshlrev_b32 v18, 6, v23\nv_and_b32 v13, 15, v0\nv_lshl_add_u32 v18, v13, 4, v18")
    A("s_lshl_b32 s27, s26, 15\ns_lshl_b32 s21, s3, 8\ns_add_u32 s27, s27, s21")
    A(f"s_lshl_b32 s23, s3, 14\ns_add_u32 s23, s23, {L_WT}")
    if not w1early: dma([f"buffer_load_dwordx4 v1, s[8:11], s20 offen {w1pol} lds\ns_add_u32 s20, s20, {16*3584}" for i in range(8)], 0)
    def w2load():
        A("s_add_u32 s23, s23, 8192")
        dma([f"buffer_load_dwordx4 v18, s[12:15], s27 offen {wpol} lds\ns_add_u32 s27, s27, 4096" for i in range(8)], 0)
    A("v_lshrrev_b32 v12, 4, v0\nv_bfe_u32 v13, v0, 2, 2\nv_and_b32 v14, 3, v0\nv_lshl_add_u32 v14, v14, 3, s23")
    A("v_lshl_add_u32 v1, v12, 9, v14\nv_lshl_add_u32 v1, v13, 6, v1")
    A("v_lshl_add_u32 v19, v12, 10, v14\nv_lshl_add_u32 v19, v13, 8, v19")
    if not w2late: w2load()
    A("v_and_b32 v20, 31, v0\nv_lshlrev_b32 v20, 3, v20\nv_lshrrev_b32 v21, 5, v0\nv_lshl_add_u32 v20, v21, 2, v20")
    A("s_lshl_b32 s20, s3, 8\nv_add_u32 v20, s20, v20")
    A(f"global_load_dword v22, v20, {sp(P_X)}\nglobal_load_dwordx4 v[28:31], v2, {sp(P_X)}")
    A(f"v_lshlrev_b32 v21, 1, v20\nv_add_u32 v21, {WS_MOD}, v21\nv_add_u32 v24, 4096, v21")
    assert not mlate
    poll("pm", lambda: A(f"global_load_dwordx2 v[40:41], v21, {WS} sc1\nglobal_load_dwordx2 v[42:43], v21, {WS} offset:2048 sc1\nglobal_load_dwordx2 v[44:45], v24, {WS} sc1\n" + VL),
         lambda: chk_tags([41, 43, 45, 39], 46), 2 if mlate else 16)
    tally()
    for c in range(4):
        for mt in range(2):
            for hi in range(2):
                A(f"ds_read_b64_tr_b16 {v2(104+8*c+4*mt+2*hi)}, v1 offset:{(32*c+4*hi)*64+mt*32}")
        if c & 1: A("s_waitcnt lgkmcnt(0)")
    unpack(4, [22], 1)
    unpack(48, [28, 29, 30, 31], 4)
    A("v_pk_add_f32 v[48:49], v[48:49], v[50:51]\nv_pk_add_f32 v[52:53], v[52:53], v[54:55]\nv_pk_add_f32 v[48:49], v[48:49], v[52:53]\nv_add_f32 v48, v48, v49")
    wave_reduce("v_add_f32", 48, 49)
    A(f"v_mul_f32 v48, {f2x(1/512)}, v48\nv_sub_f32 v4, v4, v48\nv_sub_f32 v5, v5, v48")
    def w2tr():
        for tau in range(8):
            for hi in range(2):
                A(f"ds_read_b64_tr_b16 {v2(136+4*tau+2*hi)}, v19 offset:{8192+hi*4096+tau*32}")
            if tau % 4 == 3: A("s_waitcnt lgkmcnt(0)")
    if mlate:
        lspin("sv0", L_CV, 4, 10, 11, 16); lspin("sv", L_FP, 1, 10, 11, 2); w2load(); A("s_waitcnt vmcnt(0)"); w2tr(); stamp(4)
    unpack(6, [40, 44], 2)
    A("v_add_f32 v8, 1.0, v8\nv_add_f32 v9, 1.0, v9\nv_cvt_pk_bf16_f32 v44, v8, v9")
    unpack(8, [44], 1)
    A(f"ds_write_b32 v20, v44 offset:{L_U}\nds_write_b32 v20, v42 offset:{L_U+1024}")
    A("v_add_u32 v21, s20, v23\nv_and_b32 v22, 1, v0\nv_lshl_add_u32 v22, v22, 10, v21")
    for c in range(4): A(f"ds_read_b128 {v4(48+4*c)}, v22 offset:{L_U+64*c}")
    A("s_waitcnt lgkmcnt(0)")
    for c in range(4):
        for mt in range(2):
            A(f"v_mfma_f32_16x16x32_bf16 {v4(24+4*mt)}, {v4(104+8*c+4*mt)}, {v4(48+4*c)}, {'0' if c==0 else v4(24+4*mt)}")
    A("s_mov_b32 exec_lo, 0x00030003\ns_mov_b32 exec_hi, 0x00030003")
    A(f"ds_write_b128 v22, v[24:27] offset:{L_GS}\nds_write_b128 v22, v[28:31] offset:{L_GS+64}")
    A("s_mov_b64 exec, 1\nv_mov_b32 v33, 1")
    A(f"ds_add_u32 v10, v33 offset:{L_CP}")
    A("s_mov_b64 exec, -1")
    A("v_and_b32 v1, 31, v0\nv_lshlrev_b32 v1, 4, v1\nv_lshrrev_b32 v16, 5, v0\nv_lshl_add_u32 v1, v16, 11, v1")
    def bcopy():
        A(f"s_bfe_u32 s20, s4, 0x10001\ns_lshl_b32 s20, s20, 16\ns_lshr_b32 s21, s4, 2\ns_lshl_b32 s21, s21, 13\ns_xor_b32 s21, s21, s71\ns_add_u32 s20, s20, s21\ns_add_u32 s20, s20, {WS_B}")
    if pi is None:
        A(("s_lshr_b32 s21, s4, 1" if rx else f"s_and_b32 s21, {'s4' if R == 8 else 's26'}, {R-1}") + f"\ns_lshl_b32 s21, s21, 14\ns_lshl_b32 s20, s3, 9\ns_add_u32 s20, s20, s21\ns_add_u32 s20, s20, {WS_B}\nv_add_u32 v1, s20, v1")
        A("v_add_u32 v12, 4096, v1\nv_add_u32 v13, 8192, v1\nv_add_u32 v14, 12288, v1")
    else:
        bcopy()
        A("s_lshl_b32 s21, s3, 9\ns_add_u32 s20, s20, s21\nv_add_u32 v1, s20, v1\nv_add_u32 v12, 4096, v1\nv_add_u32 v13, 32768, v1\nv_add_u32 v14, 36864, v1")
    A(f"s_lshl_b32 s20, s3, 8\nv_lshl_add_u32 v22, v16, 2, s20")
    A("v_and_b32 v33, 3, v0\nv_lshlrev_b32 v33, 8, v33\nv_bfe_u32 v32, v0, 3, 1\nv_lshl_add_u32 v32, v32, 6, v33\nv_add_u32 v32, v32, v23")
    A(f"s_mov_b32 s22, {f2x(1/512)}\nv_mov_b32 v34, {f2x(1e-5)}")
    lspin("sp", L_CP, 4, 10, 11, 0 if mlate else 4, lambda: A(f"ds_read_b128 v[24:27], v32 offset:{L_GS}\nds_read_b128 v[28:31], v32 offset:{L_GS+1024}"))
    for qp in ("[1,0,3,2]", "[2,3,0,1]"):
        for i in range(8): A(f"v_add_f32_dpp v{24+i}, v{24+i}, v{24+i} quad_perm:{qp} {DPPF}")
    if dry:
        A("s_mov_b64 s[80:81], 0\ns_mov_b64 s[82:83], 0\ns_mov_b64 exec, 0\ns_branch L_pbd\nL_cdr:\ns_mov_b64 exec, -1")
    A("s_mov_b64 s[80:81], -1\ns_mov_b32 s82, 0x00010001\ns_mov_b32 s83, 0x00010001")
    if not mlate:
        stamp(4)
        lspin("sv0", L_CV, 4, 10, 11, 16); lspin("sv", L_FP, 1, 10, 11, 2)
        if w2late: w2load()
    cs = 13 if cpad else 12
    if pi is None: A(f"s_lshl_b32 s20, s3, {cs+3}\ns_lshl_b32 s21, s26, {cs-6}\ns_add_u32 s20, s20, s21\ns_add_u32 s20, s20, {WS_C}")
    else:
        if cpad: A(f"s_and_b32 s20, s3, 1\ns_lshl_b32 s20, s20, 18\ns_lshr_b32 s21, s3, 1\ns_lshl_b32 s21, s21, 13\ns_xor_b32 s21, s21, s75\ns_add_u32 s20, s20, s21\ns_lshl_b32 s21, s26, 7\ns_add_u32 s20, s20, s21\ns_add_u32 s20, s20, {WS_C}")
        else: A(f"s_and_b32 s20, s3, 1\ns_lshl_b32 s20, s20, 17\ns_lshr_b32 s21, s3, 1\ns_lshl_b32 s21, s21, 13\ns_xor_b32 s21, s21, s75\ns_add_u32 s20, s20, s21\ns_lshl_b32 s21, s26, 6\ns_add_u32 s20, s20, s21\ns_add_u32 s20, s20, {WS_C}")
        cs = 15
    if cpad: A(f"v_bfe_u32 v35, v0, 2, 3\nv_lshlrev_b32 v35, {cs}, v35\nv_and_b32 v36, 3, v0\nv_lshl_add_u32 v35, v36, 4, v35\nv_add_u32 v35, s20, v35")
    else: A("v_bfe_u32 v35, v0, 3, 2\nv_lshlrev_b32 v35, 15, v35\nv_bfe_u32 v36, v0, 2, 1\nv_lshl_add_u32 v35, v36, 12, v35\nv_and_b32 v36, 3, v0\nv_lshl_add_u32 v35, v36, 4, v35\nv_add_u32 v35, s20, v35")
    if not mlate: A("s_waitcnt vmcnt(0)"); w2tr()
    stamp(5)
    G = 40; Hh = 88
    def gather4(name, base, addr, tmp, sleep):
        if g4:
            A(f"s_mov_b32 s7, {spin}")
            for i in range(4): A(f"global_load_dwordx4 {v4(base+4*i)}, {addr(i)} sc1\ns_mov_b64 {sp(28+2*i)}, -1")
            A(f"L_{name}t:\ns_waitcnt vmcnt(0)\ns_mov_b32 s21, 0")
            for i in range(4):
                A(f"s_mov_b64 exec, {sp(28+2*i)}\ns_cbranch_execz L_{name}s{i}")
                A(f"v_max3_u32 v{tmp}, v{base+4*i}, v{base+4*i+1}, v{base+4*i+2}\nv_max_u32 v{tmp}, v{tmp}, v{base+4*i+3}\nv_cmp_eq_u32 vcc, -1, v{tmp}")
                A(f"s_mov_b64 {sp(28+2*i)}, vcc\ns_cbranch_vccz L_{name}s{i}\ns_mov_b64 exec, vcc\nglobal_load_dwordx4 {v4(base+4*i)}, {addr(i)} sc1\ns_mov_b32 s21, 1")
                A(f"L_{name}s{i}:")
            A(f"s_mov_b64 exec, -1\ns_cmp_eq_u32 s21, 0\ns_cbranch_scc1 L_{name}d\ns_sub_u32 s7, s7, 1\ns_cbranch_scc0 L_{name}t\ns_waitcnt vmcnt(0)")
            A(f"L_{name}d:")
            return
        A(f"s_mov_b32 s7, {spin}")
        for _ in range(pd):
            for i in range(4): A(f"global_load_dwordx4 {v4(base+4*i)}, {addr(i)} sc1")
        A(f"L_{name}t:")
        A(f"s_waitcnt vmcnt({4*(pd-1)})")
        for i in range(4): A(f"v_max3_u32 v{tmp+i}, v{base+4*i}, v{base+4*i+1}, v{base+4*i+2}")
        for i in range(4): A(f"v_max_u32 v{tmp+i}, v{tmp+i}, v{base+4*i+3}")
        A(f"v_max3_u32 v{tmp+4}, v{tmp}, v{tmp+1}, v{tmp+2}\nv_max_u32 v{tmp+4}, v{tmp+4}, v{tmp+3}\nv_cmp_eq_u32 vcc, -1, v{tmp+4}\ns_cbranch_vccz L_{name}d")
        for i in range(4): A(f"v_cmp_eq_u32 {sp(28+2*i)}, -1, v{tmp+i}")
        if sleep: A(f"s_sleep {sleep}")
        for i in range(4):
            A(f"s_or_b64 exec, {sp(28+2*i)}, 1\nglobal_load_dwordx4 {v4(base+4*i)}, {addr(i)} sc1")
        A(f"s_mov_b64 exec, -1\ns_sub_u32 s7, s7, 1\ns_cbranch_scc0 L_{name}t")
        A(f"L_{name}d:")
    gather4("pb", Hh, lambda i: f"v{1 if i==0 else 11+i}, {WS}", 56, csleep)
    stamp(6)
    A(f"v_pk_add_f32 {v2(G)}, {v2(Hh)}, {v2(Hh+4)}\nv_pk_add_f32 {v2(G+2)}, {v2(Hh+2)}, {v2(Hh+6)}\nv_pk_add_f32 {v2(G+8)}, {v2(Hh+8)}, {v2(Hh+12)}\nv_pk_add_f32 {v2(G+10)}, {v2(Hh+10)}, {v2(Hh+14)}")
    A(f"v_pk_add_f32 {v2(G)}, {v2(G)}, {v2(G+8)}\nv_pk_add_f32 {v2(G+2)}, {v2(G+2)}, {v2(G+10)}")
    A(f"v_permlane32_swap_b32 v{G}, v{G+2}\nv_permlane32_swap_b32 v{G+1}, v{G+3}")
    A(f"v_pk_add_f32 {v2(G)}, {v2(G)}, {v2(G+2)}")
    A(f"v_pk_fma_f32 v[4:5], {v2(G)}, v[6:7], v[4:5]")
    A("v_pk_mul_f32 v[6:7], v[4:5], v[8:9]\nv_cvt_pk_bf16_f32 v6, v6, v7")
    A(f"ds_write_b32 v20, v6 offset:{L_U}")
    for c in range(4): A(f"ds_read_b128 {v4(44+4*c)}, v21 offset:{L_U+64*c}")
    A("v_add_f32 v16, v4, v5\nv_mul_f32 v17, v4, v4\nv_fmac_f32 v17, v5, v5")
    A("v_permlane32_swap_b32 v16, v17\nv_add_f32 v16, v16, v17")
    xrow("v_add_f32", 16, 17, 16)
    steps = ["row_ror:8", "row_ror:4", "row_ror:2", "row_ror:1"]
    for c in range(4):
        A(f"s_waitcnt lgkmcnt({3-c})")
        for mt in range(2):
            A(f"v_mfma_f32_16x16x32_bf16 {v4(60+4*mt)}, {v4(104+8*c+4*mt)}, {v4(44+4*c)}, {'0' if c==0 else v4(60+4*mt)}")
        inrow("v_add_f32", 16, [steps[c]])
    A("s_mov_b64 exec, s[82:83]")
    A(f"ds_write_b32 v22, v16 offset:{L_RED+128}")
    A(f"ds_write_b128 v21, v[60:63] offset:{L_RED}\nds_write_b128 v21, v[64:67] offset:{L_RED+64}")
    A("s_mov_b64 exec, s[80:81]")
    A("s_waitcnt lgkmcnt(0)")
    if dry: A("s_cbranch_execz L_cnb")
    A("s_barrier\nL_cnb:")
    A(f"ds_read_b64 v[12:13], v33 offset:{L_RED+128}\nds_read_b128 v[40:43], v32 offset:{L_RED}")
    A("s_waitcnt lgkmcnt(0)")
    for qp in ("[1,0,3,2]", "[2,3,0,1]"):
        for r in (12, 13, 40, 41, 42, 43): A(f"v_add_f32_dpp v{r}, v{r}, v{r} quad_perm:{qp} {DPPF}")
    A("v_mul_f32 v12, s22, v12\nv_fma_f32 v14, v13, s22, v34\nv_fma_f32 v14, -v12, v12, v14\nv_max_f32 v14, v14, v34\nv_rsq_f32 v14, v14")
    for q in range(2): A(f"v_pk_fma_f32 {v2(40+2*q)}, {v2(24+2*q)}, v[12:13], {v2(40+2*q)} op_sel_hi:[1,0,1] neg_lo:[0,1,0] neg_hi:[0,1,0]")
    for q in range(2): A(f"v_pk_fma_f32 {v2(40+2*q)}, {v2(40+2*q)}, v[14:15], {v2(28+2*q)} op_sel_hi:[1,0,1]")
    for q in range(2): A(f"v_cvt_pk_bf16_f32 v{48+q}, v{40+2*q}, v{41+2*q}")
    for q in range(2): A(f"v_pk_max_i16 v{48+q}, v{48+q}, 0")
    for q in range(2): A(f"v_mov_b32_dpp v{50+q}, v{48+q} row_shl:8 {DPPF} bound_ctrl:0")
    for tau in (0, 2, 4, 6, 1, 3, 5, 7): A(f"v_mfma_f32_16x16x32_bf16 {v4(56+4*tau)}, v[48:51], {v4(136+4*tau)}, 0")
    for j in (1, 2, 3): A(f"v_mov_b32 v{56+j}, v{56+8*j}")
    for j in range(4): A(f"v_mov_b32_dpp v{56+j}, v{60+8*j} quad_perm:[0,1,2,3] row_mask:0x2 bank_mask:0xf")
    if dry: A("s_cbranch_execz L_cdr")
    A("s_mov_b32 exec_hi, 0")
    A(f"global_store_dwordx4 v35, v[56:59], {WS} sc1")
    stamp(7)
    end_wave()
    A("L_tf:")
    prb("cs")
    A("s_mov_b32 s26, s67\ns_lshr_b32 s20, s26, 3\ns_lshl_b32 s20, s20, 7\ns_and_b32 s21, s26, 7\ns_lshl_b32 s21, s21, 2\ns_add_u32 s20, s20, s21")
    A("v_and_b32 v4, 3, v0\nv_lshrrev_b32 v5, 4, v0\nv_lshl_add_u32 v4, v5, 5, v4\nv_add_u32 v4, s20, v4\nv_lshlrev_b32 v5, 1, v4")
    A(f"global_load_ushort v8, v5, {sp(P_X)}")
    if tw: A(f"global_load_ushort v33, v5, {sp(P_OUT)}")
    A(f"v_lshrrev_b32 v6, 1, v4\nv_lshlrev_b32 v6, 3, v6\nv_add_u32 v6, {WS_MOD}, v6\nv_add_u32 v7, 6144, v6")
    if mlate: lspin("sf0", L_FP, 1, 10, 11, 16)
    poll("pg", lambda: A(f"global_load_dwordx2 v[12:13], v6, {WS} sc1\nglobal_load_dwordx2 v[14:15], v7, {WS} sc1\n" + VL),
         lambda: chk_tags([13, 15, 39], 16), 4 if mlate else 16)
    tally()
    A("v_lshlrev_b32 v8, 16, v8")
    A("v_and_b32 v16, 1, v4\nv_cmp_eq_u32 vcc, 0, v16")
    A("v_lshlrev_b32 v16, 16, v12\nv_and_b32 v17, 0xffff0000, v12\nv_cndmask_b32 v9, v17, v16, vcc")
    A("v_lshlrev_b32 v16, 16, v14\nv_and_b32 v17, 0xffff0000, v14\nv_cndmask_b32 v12, v17, v16, vcc")
    if pi is None:
        A(f"v_bfe_u32 v6, v0, 2, 2\nv_lshlrev_b32 v6, 12, v6\nv_lshl_add_u32 v6, v4, 2, v6\nv_add_u32 v6, {WS_B}, v6")
        if R == 8: A("s_lshl_b32 s20, s4, 14\nv_add_u32 v6, s20, v6")
        if rx: A("s_lshr_b32 s20, s4, 1\ns_lshl_b32 s20, s20, 14\nv_add_u32 v6, s20, v6")
        if cpad: A(f"s_lshl_b32 s20, s26, 13\ns_add_u32 s20, s20, {WS_C}\nv_lshrrev_b32 v7, 2, v0\nv_lshl_add_u32 v7, v7, 6, v2\nv_add_u32 v7, s20, v7\nv_add_u32 v32, 4096, v7")
        else: A(f"s_lshl_b32 s20, s26, 12\ns_add_u32 s20, s20, {WS_C}\nv_add_u32 v7, s20, v2")
    else:
        bcopy()
        A("v_bfe_u32 v6, v0, 2, 1\nv_lshlrev_b32 v6, 12, v6\nv_bfe_u32 v7, v0, 3, 1\nv_lshl_add_u32 v6, v7, 15, v6\nv_lshl_add_u32 v6, v4, 2, v6\nv_add_u32 v6, s20, v6")
        if cpad: A(f"s_and_b32 s20, s26, 15\ns_lshl_b32 s20, s20, 15\ns_lshr_b32 s21, s26, 4\ns_lshl_b32 s21, s21, 13\ns_xor_b32 s21, s21, s75\ns_add_u32 s20, s20, s21\ns_add_u32 s20, s20, {WS_C}\nv_lshrrev_b32 v7, 2, v0\nv_lshl_add_u32 v7, v7, 6, v2\nv_add_u32 v7, s20, v7\nv_add_u32 v32, 4096, v7")
        else: A(f"s_bfe_u32 s20, s26, 0x30001\ns_lshl_b32 s20, s20, 15\ns_and_b32 s21, s26, 1\ns_lshl_b32 s21, s21, 12\ns_add_u32 s20, s20, s21\ns_lshr_b32 s21, s26, 4\ns_lshl_b32 s21, s21, 13\ns_xor_b32 s21, s21, s75\ns_add_u32 s20, s20, s21\ns_add_u32 s20, s20, {WS_C}\nv_add_u32 v7, s20, v2")
    if dry: A("s_mov_b64 exec, 0\ns_branch L_fd\nL_fdr:\ns_mov_b64 exec, -1")
    lspin("sf", L_FP, 1, 10, 11, 16 if calm else 4)
    prb("fp")
    poll("pxb", lambda: A(f"global_load_dword v13, v6, {WS} sc1\nglobal_load_dword v14, v6, {WS} offset:2048 sc1"), lambda: chk_sent([13, 14], 15), xsleep)
    A("v_add_f32 v13, v13, v14")
    inrow("v_add_f32", 13, ["row_ror:8", "row_ror:4"])
    A("v_fma_f32 v8, v9, v13, v8")
    prb("b")
    stamp(6)
    if fdelay: A(f"s_sleep {fdelay}")
    gather4("pc", 40, lambda i: f"v{(7 if i<2 else 32) if cpad else 7}, {WS} offset:{2048*(i&1) if cpad else 1024*i}", 56, fsleep)
    A("L_fd:")
    stamp(7)
    A("v_pk_add_f32 v[16:17], v[40:41], v[44:45]\nv_pk_add_f32 v[18:19], v[42:43], v[46:47]\nv_pk_add_f32 v[24:25], v[48:49], v[52:53]\nv_pk_add_f32 v[26:27], v[50:51], v[54:55]")
    A("v_pk_add_f32 v[16:17], v[16:17], v[24:25]\nv_pk_add_f32 v[18:19], v[18:19], v[26:27]")
    A("v_permlane32_swap_b32 v16, v18\nv_permlane32_swap_b32 v17, v19\nv_pk_add_f32 v[16:17], v[16:17], v[18:19]")
    A("v_permlane16_swap_b32 v16, v17\nv_add_f32 v16, v16, v17")
    inrow("v_add_f32", 16, ["row_ror:8", "row_ror:4"])
    A("v_fma_f32 v16, v12, v16, v8\nv_cvt_pk_bf16_f32 v16, v16, v16")
    if dry: A("s_cbranch_execz L_fdr")
    A("s_mov_b32 exec_lo, 0x000f000f\ns_mov_b32 exec_hi, 0x000f000f")
    A(f"global_store_short v5, v16, {sp(P_OUT)} {osc}")
    A("s_cmp_lg_u32 s26, 0\ns_cbranch_scc1 L_tfe")
    if dbgp:
        A(f"s_mov_b64 exec, 1\nv_mov_b32 v20, s{P_WS}\nv_mov_b32 v21, s{P_WS+1}\nv_mov_b32 v22, s71\nv_mov_b32 v23, s{P_K}\nglobal_store_dwordx4 v10, v[20:23], {sp(P_DBG)}")
    A("s_mov_b64 exec, 1\nv_mov_b32 v18, s6")
    A(f"global_store_dword v10, v18, {WS} {osc}")
    if amp:
        A(f"s_memrealtime s[96:97]\ns_waitcnt lgkmcnt(0)\ns_sub_u32 s94, s96, s94\ns_lshl_b32 s94, s94, {amp}\nL_fy:\ns_memrealtime s[98:99]\ns_waitcnt lgkmcnt(0)\ns_sub_u32 s98, s98, s96\ns_cmp_lt_u32 s98, s94\ns_cbranch_scc1 L_fy")
    if fixend:
        prb("end")
        A(f"L_fx:\ns_memrealtime s[98:99]\ns_waitcnt lgkmcnt(0)\ns_sub_u32 s98, s98, {'s94' if probe else 's96'}\ns_cmp_lt_u32 s98, {fixend}\ns_cbranch_scc1 L_fx")
    A("L_tfe:")
    stamp(4)
    end_wave()
    if stamps:
        A("L_stampout:")
        if st0: A("s_waitcnt lgkmcnt(0)\nv_writelane_b32 v3, s90, 0\ns_cmp_lt_u32 s3, 4\ns_cbranch_scc1 L_so9\nv_writelane_b32 v3, s92, 1\nv_writelane_b32 v3, s94, 2\nL_so9:")
        if stamps == 2:
            A("s_cmp_lg_u32 s2, 32\ns_cbranch_scc1 L_exit\ns_and_b32 s20, s3, 11\ns_cbranch_scc1 L_exit")
            A("s_mov_b64 exec, 0xff\ns_lshl_b32 s20, s3, 3\nv_lshl_add_u32 v1, v0, 2, s20")
            A(f"global_store_dword v1, v3, {sp(P_DBG)}\ns_endpgm")
        A("s_mov_b64 exec, 0xff")
        A("s_mul_i32 s20, s2, 12\ns_add_u32 s20, s20, s3\ns_lshl_b32 s20, s20, 5")
        A(f"s_add_u32 s20, s20, {WS_STAMP}")
        A("v_lshl_add_u32 v1, v0, 2, s20")
        A(f"global_store_dword v1, v3, {WS}")
    A("L_exit:\ns_endpgm")
    A(".p2align 6\n.type L_tab,@object\nL_tab:")
    for wg in range(256):
        r = roles[(xp[wg & 7] if xp else wg & 7), wg >> 3]; skip = T - r['n']
        assert skip < 8, (wg, r)
        A(f".long {(r['pre'] - skip + 16) | skip << 12 | r['e'] << 15 | r['ei'] << 18 | r['l'] << 23 | r['li'] << 25:#x}")
    A("L_endcode:")
    A('.section .rodata,"a"\n.p2align 6')
    A(f".amdhsa_kernel {NAME}")
    for l in ["next_free_vgpr 168", "next_free_sgpr 102", "accum_offset 168", "group_segment_fixed_size 0", "kernarg_size 104",
              "user_sgpr_count 2", "user_sgpr_kernarg_segment_ptr 1", "system_sgpr_workgroup_id_x 1"]:
        A("  .amdhsa_" + l)
    A(".end_amdhsa_kernel")
    return A.finish()

if __name__ == "__main__":
    out = sys.argv[1]; kw = {}
    for a in sys.argv[2:]:
        k, v = a.split("=", 1)
        try: v = ast.literal_eval(v)
        except Exception: pass
        kw[k] = v
    open(out, "w").write(gen(**kw))
    import json
    roles, T = make_plan(kw.get('plan', 'A'), **{k: v for k, v in kw.items() if k in ('cH','cQ','cM','cB','cC','T','c3','Fx','adj')})
    json.dump([[roles[wg & 7, wg >> 3][k] for k in ('e', 'l', 'n')] for wg in range(256)], open(out + ".roles", "w"))
```

```python
import sys, struct, ast
from asmlib import Asm
NAME = "adaLN_cond__gqa_block_cached__dense_activation_relu__decode_kernel"
def f2x(f): return "0x%08x" % struct.unpack("<I", struct.pack("<f", f))[0]

WS_P = 0x180000; WS_PV = 0x15000; WS_XB = 0x14000; WS_QL = 0x10000; WS_H = 0x18000; WS_MOD = 0x4000; WS_Q = 0x8000; WS_ST = 0xC000
WS_AL = 0x140000; WS_A = 0x100000; WS_B = 0x40000; WS_C = 0x80000
WS_STAMP = 0x8000000
L_CG = 0; L_FQ = 4; L_CS = 8; L_CT = 68; L_CP = 16; L_FK = 20; L_CV = 24; L_CW = 28; L_FO = 32; L_MK = 64; L_FP = 12
L_ST = 256; L_Q = 1024; L_GP = 2048; L_X = 3072; L_RED = 4096; L_U = 5120; L_GS = 8192
L_OP = 16384; L_WT = 32768; LDS_SIZE = 98304
DPPF = "row_mask:0xf bank_mask:0xf"
P_X, P_K, P_V, P_WQ, P_WO, P_BX, P_W1, P_W2, P_C, P_WM, P_OUT, P_DBG, P_WS = [36 + 2 * i for i in range(13)]
def sp(n): return f"s[{n}:{n+1}]"
def v4(n): return f"v[{n}:{n+3}]"
def v2(n): return f"v[{n}:{n+1}]"
WS = sp(P_WS)

DOC = '''; ---------------------------------------------------------------------------------------------
; One persistent launch, 256 workgroups (one per CU) x 12 waves.  x = wg&7 = kv head, a = wg>>3 = key split.
;     max, V tiles -> v_perm transpose -> MFMA, workgroup partial summed through LDS and published.
;     H: sa/ca slice of silu(c)@w_mod   Q: LN(x)*(1+ca)+sa, q slice   M: ga/sb/cb/gb slice
;     B: split combine (global softmax weights) + wo slice            C: residual, LN, FFN slice
;        vote) so that the two cross-die hand-off buffers sit next to their readers; affects placement only
; ---------------------------------------------------------------------------------------------'''
NOTES = {
 "L_stream": "---- stream waves: first K loads go out before anything else",
 "L_service": "---- service waves: role decode, LDS flag init, code prefetch into L2, H role (sa/ca GEMV + sentinel fill)",
 "L_gfin": "---- common GEMV end: lane/wave reduction, last wave publishes the tagged granules",
 "L_body": "---- stream waves: rest of K, wait for q, S = K.q, softmax, P.V, workgroup reduction, publish",
 "L_nh": "---- Q role: LN(x)*(1+ca)+sa with the reference's bf16 roundings, q slice",
 "L_role": "---- P role: one wave compares the latency of a few cold loads from neighbouring 8 KiB blocks of d_ws and votes|which block parity is on which die; the vote only picks where the B and C hand-off buffers live (no output depends on it)",
 "L_m": "---- M role: ga/sb/cb/gb GEMV",
 "L_wb": "---- B role, early part: publish XCC id, wo slice -> LDS -> MFMA operands",
 "L_qpoll": "---- w1 slice (C role), q fetch (wave 1)",
 "L_post": "---- wave 2: sentinel fill of this workgroup's partial slot, workgroup softmax max/sum",
 "L_pre": "---- B role, late part: global softmax weights, gather the 32 partials, x wo, publish",
 "L_tc": "---- C role: residual + LN folded into FFN1, relu, FFN2 partial",
 "L_tf": "---- F role: x2 + gb * sum of FFN partials -> d_out; new tag seed -> ws[0]",
 "L_tab": "per-workgroup word: [11:0] extra-key offset+16, [14:12] skipped slots, [17:15] early role, [22:18] index, [24:23] late role, [30:25] index",
}
E_H, E_Q, E_M, E_B, E_P = 1, 2, 3, 4, 5
R_B, R_C, R_F = 1, 2, 3
def make_plan(plan, **pk):
    P = dict(PLANS[plan]); P.update(pk)
    roles = {(x, a): dict(e=0, ei=0, l=0, li=0) for x in range(8) for a in range(32)}
    hi = mi = ci = fi = 0
    for x in range(8):
        a = 0
        for _ in range(P['H'][x]): roles[x, a].update(e=E_H, ei=hi); hi += 1; a += 1
        for c in range(8):
            roles[x, a].update(e=E_Q, ei=c)
            if (x & 1 == P['Fx'] if 'Fx' in P else c in (0, 1, 4, 5)): roles[x, a].update(l=R_F, li=fi); fi += 1
            a += 1
        for c in range(8): roles[x, a].update(e=E_B, ei=c, l=R_B, li=c); a += 1
        for _ in range(P['M'][x]): roles[x, a].update(e=E_M, ei=mi); mi += 1; a += 1
        assert a <= 32
        cand = [b for b in range(31, -1, -1) if roles[x, b]['e'] == 0] + [b for b in range(32) if roles[x, b]['e'] == E_H] + [b for b in range(32) if roles[x, b]['e'] == E_M]
        for b in cand[:P['C'][x]]: roles[x, b].update(l=R_C, li=ci); ci += 1
    assert (hi, mi, ci, fi) == (32, 32, 56, 32), (hi, mi, ci, fi)
    free = [k for k in sorted(roles) if roles[k]['e'] == 0 and roles[k]['l'] == 0]
    assert len(free) >= 8
    for i, k in enumerate(free[:: len(free) // 8][:8]): roles[k].update(e=E_P, ei=i)
    for x in range(8):
        cost = []
        for a in range(32):
            r = roles[x, a]
            c = {0: 0, E_P: 0, E_H: P['cH'], E_Q: P['cQ'], E_M: P['cM'], E_B: P['cB']}[r['e']]
            cb = r['ei'] if r['e'] in (E_Q, E_B) else (r['ei'] >> 2)
            if r['e'] in P['c3'] and cb == 3: c += P['c3'][r['e']]
            if r['l'] == R_C: c += P['cC']
            cost.append(c)
        n = [max(28, P['T'] - 7)] * 32
        for _ in range(1024 - sum(n)):
            b = min((a for a in range(32) if n[a] < P['T']), key=lambda a: (n[a] + cost[a], -a))
            n[b] += 1
        if P.get('adj') and x & 1:
            give = 0
            for a in range(32):
                r = roles[x, a]
                if r['e'] == E_B and (r['ei'] == 3 or r['ei'] >= 8 - P['adj'] + 1): n[a] -= 1; give += 1
            for a in range(32):
                r = roles[x, a]
                if give and r['l'] == R_C and (r['li'] >> 1) % 4 != 3: n[a] += 1; give -= 1
            assert give == 0
        pre = 0
        for a in range(32):
            roles[x, a].update(n=n[a], pre=pre); pre += n[a] - 28
    T = max(r['n'] for r in roles.values()); T += T & 1
    return roles, T
base = dict(cH=2.0, cQ=3.6, cM=4.2, cB=3.6, cC=4.0, c3={E_H: 0.5, E_Q: 1.7, E_M: 1.5, E_B: 1.0}, T=34)
base2 = dict(cH=1.6, cQ=4.0, cM=4.5, cB=3.4, cC=5.3, c3={E_H: 0.7, E_Q: 2.3, E_M: 1.8, E_B: 2.4}, T=36)
PLANS = {
 'A': dict(base, H=[4]*8, M=[4]*8, C=[7]*8),
 'B': dict(base, H=[8,0,8,0,8,0,8,0], M=[8,0,8,0,8,0,8,0], C=[14,0,14,0,14,0,14,0]),
 'C': dict(base, H=[8,0,8,0,8,0,8,0], M=[8,0,8,0,8,0,8,0], C=[7]*8),
 'D': dict(base, H=[8,8,8,8,0,0,0,0], M=[8,0,8,0,8,0,8,0], C=[14,0,14,0,14,0,14,0]),
 'E': dict(base, H=[8,8,8,8,0,0,0,0], M=[8,0,8,0,8,0,8,0], C=[8,6,8,6,8,6,8,6]),
 'G': dict(base2, H=[8,0,8,0,8,0,8,0], M=[8,0,8,0,8,0,8,0], C=[7]*8),
 'H': dict(base2, H=[8,0,8,0,8,0,8,0], M=[8,0,8,0,8,0,8,0], C=[8,8,8,12,8,2,8,2]),
 'I': dict(base2, H=[8,0,8,8,4,0,4,0], M=[8,0,8,0,8,0,8,0], C=[8,8,8,8,8,4,8,4]),
 'J': dict(base2, H=[8,0,8,0,8,0,8,0], M=[8,0,8,0,8,0,8,0], C=[0,14,0,14,0,14,0,14]),
 'K': dict(base2, H=[8,0,8,0,8,0,8,0], M=[8,0,8,0,8,0,8,0], C=[4,10,4,10,4,10,4,10]),
 'L': dict(base2, H=[8,0,8,0,8,0,8,0], M=[8,0,8,0,8,0,8,0], C=[8,6,8,6,8,6,8,6]),
 'N': dict(base2, H=[8,0,8,0,8,0,8,0], M=[2,6,2,6,2,6,2,6], C=[14,0,14,0,14,0,14,0]),
 'O': dict(base2, H=[0,8,0,8,0,8,0,8], M=[2,6,2,6,2,6,2,6], C=[14,0,14,0,14,0,14,0]),
 'P': dict(base2, H=[4,4,4,4,4,4,4,4], M=[2,6,2,6,2,6,2,6], C=[14,0,14,0,14,0,14,0]),
 'S': dict(base2, H=[1,0,1,0,15,0,15,0], M=[15,0,15,0,1,0,1,0], C=[0,16,0,16,0,12,0,12]),
 'U': dict(base2, H=[4,0,4,0,12,0,12,0], M=[12,0,12,0,4,0,4,0], C=[0,16,0,16,0,12,0,12]),
 'F': dict(base, H=[8,4,8,4,4,0,4,0], M=[8,0,8,0,8,0,8,0], C=[10,4,10,4,10,4,10,4]),
}

def gen(win=5, win2=6, wpol="nt", stamps=0, spin=8000000, hsleep=4, qsleep=8, tsleep=1, pace=4, cpre=1, kprio=0, skipw=0, vmid=4, nopoll='', qtrig=22, R=4, cdefer=1, csleep=2, nH=33, nX=31, nL=34, loc=1, lpol='sc1', w1pol='nt', nocomp=0, nosvc=0, sprio=3, nopre=0, nocw=0, lmul=1, xit='', qloc=1, strig=1, qtrig2=38, kpol='nt', vpol='nt', slowfb=0, fixend=0, plan='A', hfirst=1, cpad=1, w2late=1, fsleep=1, dry=0, yprio=0, burst=0, bwin=8, amp2=0, osc='', use2=1, p2=0, amp=0, dbgp=0, pi=None, pn=8, pclip=2000, xn=0, xmask=0x55, mim=1, mrg=1, fprio=0, rprio=3, rsl=0, b0at=0, mlate=0, xp=None, lin=1, atrig=0, pre=0, g4=0, alt1=0, alt2=0, tw=0, probe='', det=1, rx=0, fl=0, w1early=1, nohp=0, ws1=0, ws2=0, bp=0, calm=0, ltab=1, st0=0, bhold=0, xl=1, bearly=0, pd=1, fdelay=0, xsleep=4, bdefer=0, hwait=0, **pk):
    A = Asm()
    roles, T = make_plan(plan, **pk)
    hdr = open("cdna_kernels/" + NAME[:-7] + ".s.ref").read().split("; Override")[0]
    A(hdr.rstrip())
    A(f"; @launch grid=(256,1,1) block=(768,1,1) lds={LDS_SIZE}")
    A(DOC)
    A('.amdgcn_target "amdgcn-amd-amdhsa--gfx950"')
    A(f".text\n.globl {NAME}\n.p2align 8\n.type {NAME},@function\n{NAME}:")
    def stamp(k):
        if stamps:
            A("s_memrealtime s[62:63]\ns_waitcnt lgkmcnt(0)")
            A(f"v_writelane_b32 v3, s62, {k}")
    def prb(name):
        if probe == name: A("s_memrealtime s[94:95]\ns_waitcnt lgkmcnt(0)")
    def end_wave():
        if stamps:
            A("s_branch L_stampout")
        else:
            A("s_endpgm")
    def srd(d, p, size):
        A(f"s_mov_b32 s{d}, s{p}\ns_mov_b32 s{d+1}, s{p+1}\ns_mov_b32 s{d+2}, {size}\ns_mov_b32 s{d+3}, 0x20000")
    def poll(name, loads, check, sleep):
        if name in nopoll.split('+'): return
        top = A.label(name); done = A.label(name + "d")
        A(f"s_mov_b32 s7, {spin * 4 // (4 + sleep)}")
        A(f"{top}:")
        loads()
        A("s_waitcnt vmcnt(0)")
        check()
        A(f"s_cbranch_vccz {done}")
        A("s_mov_b64 exec, vcc")
        if sleep: A(f"s_sleep {sleep}")
        A("s_sub_u32 s7, s7, 1")
        A(f"s_cbranch_scc0 {top}")
        A(f"{done}:")
        A("s_mov_b64 exec, -1")
    def lspin(name, off, n, vz, vt, sleep=1, extra=None):
        top = A.label(name); done = A.label(name + "d")
        A(f"s_mov_b32 s7, {spin * 4 // (2 + sleep)}")
        A(f"{top}:")
        A(f"ds_read_b32 v{vt}, v{vz} offset:{off}")
        if extra: extra()
        A("s_waitcnt lgkmcnt(0)")
        A(f"v_cmp_gt_u32 vcc, {n}, v{vt}")
        A(f"s_cbranch_vccz {done}")
        if lmul > 1: sleep = min(127, max(sleep, 1) * lmul)
        if sleep: A(f"s_sleep {sleep}")
        A("s_sub_u32 s7, s7, 1")
        A(f"s_cbranch_scc0 {top}")
        A(f"{done}:")
    def chk_tags(regs, tmp):
        A(f"v_xor_b32 v{tmp}, s6, v{regs[0]}")
        for r in regs[1:]:
            A(f"v_xor_b32 v{tmp+1}, s6, v{r}")
            A(f"v_or_b32 v{tmp}, v{tmp}, v{tmp+1}")
        A(f"v_cmp_ne_u32 vcc, 0, v{tmp}")
    def chk_sent(regs, tmp):
        regs = list(regs)
        if len(regs) == 1:
            A(f"v_cmp_eq_u32 vcc, -1, v{regs[0]}"); return
        if len(regs) == 2:
            A(f"v_max_u32 v{tmp}, v{regs[0]}, v{regs[1]}"); rest = []
        else:
            A(f"v_max3_u32 v{tmp}, v{regs[0]}, v{regs[1]}, v{regs[2]}"); rest = regs[3:]
        while rest:
            if len(rest) == 1:
                A(f"v_max_u32 v{tmp}, v{tmp}, v{rest[0]}"); rest = []
            else:
                A(f"v_max3_u32 v{tmp}, v{tmp}, v{rest[0]}, v{rest[1]}"); rest = rest[2:]
        A(f"v_cmp_eq_u32 vcc, -1, v{tmp}")
    def xrow(op, v, tmp, which):
        A(f"v_mov_b32 v{tmp}, v{v}")
        A(f"v_permlane{which}_swap_b32 v{v}, v{tmp}")
        A(f"{op} v{v}, v{v}, v{tmp}")
    def inrow(op, v, steps):
        for s in steps:
            A(f"{op}_dpp v{v}, v{v}, v{v} {s} {DPPF}")
    def wave_reduce(op, v, tmp):
        inrow(op, v, ["row_ror:8", "row_ror:4", "row_ror:2", "row_ror:1"])
        xrow(op, v, tmp, 16); xrow(op, v, tmp, 32)
    def unpack(dst, src, n):
        for i in range(n):
            A(f"v_lshlrev_b32 v{dst+2*i}, 16, v{src[i]}")
            A(f"v_and_b32 v{dst+2*i+1}, 0xffff0000, v{src[i]}")
    def rnd(a, b=None):
        if b is None: A(f"v_cvt_pk_bf16_f32 v{a}, v{a}, v{a}\nv_lshlrev_b32 v{a}, 16, v{a}")
        else: A(f"v_cvt_pk_bf16_f32 v{b}, v{a}, v{b}\nv_lshlrev_b32 v{a}, 16, v{b}\nv_and_b32 v{b}, 0xffff0000, v{b}")
    def silu(x, t, n):
        A(f"s_mov_b32 s21, {f2x(-1.4426950408889634)}")
        for i in range(n): A(f"v_mul_f32 v{t+i}, s21, v{x+i}")
        for i in range(n): A(f"v_exp_f32 v{t+i}, v{t+i}")
        for i in range(n): A(f"v_add_f32 v{t+i}, 1.0, v{t+i}")
        for i in range(n): A(f"v_rcp_f32 v{t+i}, v{t+i}")
        for i in range(n): A(f"v_mul_f32 v{x+i}, v{x+i}, v{t+i}")
    def gemv_perm(W, T, npair):
        for u in range(npair):
            for w in range(4):
                a = W + 8 * u + w; b = W + 8 * u + 4 + w
                A(f"v_perm_b32 v{T+8*u+2*w}, v{b}, v{a}, s24")
                A(f"v_perm_b32 v{T+8*u+2*w+1}, v{b}, v{a}, s25")
    def gemv_dot(T, X, acc):
        for u in range(len(X)):
            for e in range(8):
                c = "0" if u == 0 else f"v{acc+e}"
                A(f"v_dot2_f32_bf16 v{acc+e}, v{T+8*u+e}, v{X[u]}, {c}")
    def mktag():
        A("s_waitcnt lgkmcnt(0)\ns_mul_i32 s6, s6, 0x9E3779B1\ns_add_u32 s6, s6, 0x7F4A7C15")
    def paced(loads, w):
        if skipw and (w or skipw > 1): return
        for i, l in enumerate(loads):
            if w and i >= w: A(f"s_waitcnt vmcnt({w-1})")
            A(l)

    if st0: A("s_memrealtime s[90:91]")
    if probe == "start": A("s_memrealtime s[94:95]")
    if amp2: A("s_memrealtime s[92:93]")
    A("s_cmp_ge_u32 s2, 256\ns_cbranch_scc1 L_exit")
    A("s_load_dwordx16 s[36:51], s[0:1], 0")
    rest_ld = "s_load_dwordx8 s[52:59], s[0:1], 64\ns_load_dwordx2 s[60:61], s[0:1], 96\ns_load_dword s68, s[32:33], s34"
    A("s_getpc_b64 s[30:31]\nL_pc:\ns_add_u32 s32, s30, L_tab-L_pc\ns_addc_u32 s33, s31, 0\ns_lshl_b32 s34, s2, 2")
    if not ltab: A(rest_ld)
    if cpre >= 2:
        A(f"s_lshr_b32 s5, s2, 3\ns_cmp_lg_u32 s5, {cpre-2}\ns_cbranch_scc1 L_ncp0")
        A(f"v_lshlrev_b32 v1, 7, v0\nv_cmp_gt_u32 vcc, L_endcode-L_pc-4, v1\ns_and_saveexec_b64 s[20:21], vcc\ns_cbranch_execz L_ncp1\nglobal_load_dword v167, v1, s[30:31]\nL_ncp1:\ns_mov_b64 exec, s[20:21]\nL_ncp0:")
    A("v_lshrrev_b32 v1, 6, v0\nv_and_b32 v0, 63, v0\nv_readfirstlane_b32 s3, v1")
    A("s_and_b32 s4, s2, 7\ns_lshr_b32 s5, s2, 3")
    if xp: A(f"s_lshl_b32 s4, s4, 2\ns_lshr_b32 s4, {sum(h << (4*i) for i, h in enumerate(xp)):#x}, s4\ns_and_b32 s4, s4, 7")
    if fixend: A("s_memrealtime s[96:97]")
    A("s_mov_b32 s24, 0x05040100\ns_mov_b32 s25, 0x07060302")
    A("v_lshlrev_b32 v2, 4, v0")
    if stamps:
        A("v_mov_b32 v3, 0")
        if not st0: stamp(0)
    A("s_cmp_lt_u32 s3, 4\ns_cbranch_scc1 L_service")
    STREAM_MARK = len(A.lines)
    A("L_service:")
    if ltab: A(rest_ld)
    A(f"s_setprio {sprio}")
    if cpre == 1:
        A(f"s_lshl_b32 s20, s5, 2\ns_add_u32 s20, s20, s3\ns_sub_u32 s20, s20, 96\ns_cmp_ge_u32 s20, (L_endcode-{NAME})/1024\ns_cbranch_scc1 L_ncp")
        A(f"s_sub_u32 s30, s30, L_pc-{NAME}\ns_subb_u32 s31, s31, 0")
        A("s_lshl_b32 s20, s20, 10\nv_add_u32 v14, s20, v2")
        A("global_load_dwordx4 v[164:167], v14, s[30:31]")
        A("L_ncp:")
    A("v_lshrrev_b32 v12, 3, v0\nv_and_b32 v13, 7, v0\nv_mov_b32 v16, 0\nv_mov_b32 v17, 0\nv_mov_b32 v18, 0\nv_mov_b32 v19, 0")
    A("s_mov_b64 exec, 0x1f\nds_write_b128 v2, v[16:19]\ns_mov_b64 exec, -1")
    A("s_waitcnt lgkmcnt(0)")
    prb("ka")
    A("s_bfe_u32 s64, s68, 0x3000f\ns_bfe_u32 s65, s68, 0x50012\ns_bfe_u32 s66, s68, 0x20017\ns_bfe_u32 s67, s68, 0x60019")
    A("s_lshr_b32 s69, s65, 2\ns_and_b32 s70, s65, 3")
    A(f"s_cmp_lg_u32 s64, {E_H}\ns_cbranch_scc1 L_nh")
    A("s_lshr_b32 s20, s70, 1\ns_lshl_b32 s20, s20, 8\ns_lshl_b32 s21, s3, 6\ns_add_u32 s20, s20, s21")
    A("v_lshl_add_u32 v14, v12, 3, s20")
    A("s_mov_b32 s21, 6144\nv_mul_lo_u32 v1, v14, s21\nv_lshl_add_u32 v1, v13, 4, v1\nv_lshlrev_b32 v14, 1, v14")
    A("s_and_b32 s20, s70, 1\ns_lshl_b32 s20, s20, 10\ns_lshl_b32 s21, s69, 7\ns_add_u32 s20, s20, s21")
    A("s_waitcnt lgkmcnt(0)")
    srd(8, P_WM, 512 * 6144)
    A(f"global_load_dwordx4 v[4:7], v14, {sp(P_C)}")
    for i in range(8):
        A(f"buffer_load_dwordx4 {v4(40+4*i)}, v1, s[8:11], s20 offen {wpol}")
        if i < 7: A("s_add_u32 s20, s20, 6144")
    A(f"s_load_dword s6, {WS}, 0")
    A("s_barrier")
    A("s_lshl_b32 s20, s65, 2\ns_add_u32 s20, s20, s3")
    if cpad: A(f"s_lshr_b32 s21, s20, 3\ns_lshl_b32 s21, s21, 15\ns_and_b32 s22, s20, 7\ns_lshl_b32 s22, s22, 11\ns_add_u32 s21, s21, s22\ns_add_u32 s21, s21, {WS_C + (0 if use2 else (p2^1)<<14)}\nv_lshrrev_b32 v14, 2, v0\nv_lshl_add_u32 v14, v14, 6, v2\nv_add_u32 v14, s21, v14\nv_add_u32 v11, 16384, v14")
    else: A(f"s_lshr_b32 s21, s20, 4\ns_lshl_b32 s21, s21, 15\ns_and_b32 s22, s20, 15\ns_lshl_b32 s22, s22, 10\ns_add_u32 s21, s21, s22\ns_add_u32 s21, s21, {WS_C + (0 if use2 else (p2^1)<<14)}\nv_add_u32 v14, s21, v2\nv_add_u32 v11, 16384, v14")
    if use2: A(f"s_lshl_b32 s21, s20, 10\ns_add_u32 s21, s21, {WS_B}\nv_add_u32 v15, s21, v2")
    else: A(f"s_lshr_b32 s21, s20, 5\ns_lshl_b32 s21, s21, 15\ns_and_b32 s22, s20, 31\ns_lshl_b32 s22, s22, 9\ns_add_u32 s21, s21, s22\ns_add_u32 s21, s21, {WS_B + (p2<<14)}\nv_add_u32 v15, s21, v2")
    A("s_cmp_eq_u32 s3, 3\ns_cselect_b32 exec_hi, 0, -1")
    for i in range(4): A(f"v_mov_b32 v{16+i}, -1")
    A("s_mov_b64 exec, -1")
    for i in range(4): A(f"v_mov_b32 v{20+i}, -1")
    A(f"global_store_dwordx4 v14, v[16:19], {WS} sc1")
    if use2: A(f"global_store_dwordx4 v11, v[16:19], {WS} sc1")
    else: A("s_mov_b32 exec_hi, 0")
    A(f"global_store_dwordx4 v15, v[20:23], {WS} sc1\ns_mov_b64 exec, -1")
    A(f"s_waitcnt vmcnt({10+use2})")
    unpack(24, [4, 5, 6, 7], 4); silu(24, 32, 8)
    for i in range(4): A(f"v_cvt_pk_bf16_f32 v{24+i}, v{24+2*i}, v{25+2*i}")
    mktag()
    A(f"s_and_b32 s26, s70, 1\ns_lshl_b32 s26, s26, 13\ns_lshr_b32 s21, s70, 1\ns_lshl_b32 s21, s21, 12\ns_add_u32 s26, s26, s21\ns_lshl_b32 s21, s69, 9\ns_add_u32 s26, s26, s21\ns_add_u32 s26, s26, {WS_H}")
    A(f"s_waitcnt vmcnt({2+use2})")
    stamp(1)
    gemv_perm(40, 104, 4)
    gemv_dot(104, [24, 25, 26, 27], 32)
    A("L_gfin:")
    acc = 32
    for e in range(4): A(f"v_permlane32_swap_b32 v{acc+e}, v{acc+e+4}")
    for e in range(4): A(f"v_add_f32 v{acc+e}, v{acc+e}, v{acc+e+4}")
    for e in range(2): A(f"v_permlane16_swap_b32 v{acc+e}, v{acc+e+2}")
    for e in range(2): A(f"v_add_f32 v{acc+e}, v{acc+e}, v{acc+e+2}")
    for e in range(2): A(f"v_add_f32_dpp v{acc+e}, v{acc+e}, v{acc+e} row_ror:8 {DPPF}")
    A("v_lshrrev_b32 v14, 4, v0\nv_lshlrev_b32 v14, 3, v14\nv_lshl_add_u32 v14, v13, 5, v14\ns_lshl_b32 s21, s3, 8\nv_add_u32 v14, s21, v14")
    A(f"ds_write_b64 v14, v[32:33] offset:{L_GP}")
    A("v_mov_b32 v14, 0\nv_mov_b32 v15, 1")
    A("s_waitcnt vmcnt(0)")
    A("s_mov_b64 exec, 1")
    A(f"ds_add_rtn_u32 v15, v14, v15 offset:{L_CG}")
    A("s_mov_b64 exec, -1")
    A("v_lshlrev_b32 v14, 3, v0")
    A("s_waitcnt lgkmcnt(0)")
    A("v_readfirstlane_b32 s21, v15")
    A("s_cmp_lg_u32 s21, 3\ns_cbranch_scc1 L_gdone")
    A("s_mov_b32 exec_hi, 0")
    for w in range(4): A(f"ds_read_b64 {v2(32+2*w)}, v14 offset:{L_GP+256*w}")
    A("v_add_u32 v14, s26, v14")
    A("s_waitcnt lgkmcnt(0)")
    A("v_pk_add_f32 v[32:33], v[32:33], v[34:35]\nv_pk_add_f32 v[36:37], v[36:37], v[38:39]\nv_pk_add_f32 v[32:33], v[32:33], v[36:37]")
    A(f"s_cmp_lg_u32 s64, {E_H}\ns_cbranch_scc1 L_gnh")
    A(f"v_mov_b32 v34, v33\nv_mov_b32 v33, s6\nv_mov_b32 v35, s6\nv_add_u32 v14, s26, v2\nglobal_store_dwordx4 v14, v[32:35], {WS} sc1\ns_mov_b64 exec, -1\ns_branch L_gdone\nL_gnh:")
    A("v_cvt_pk_bf16_f32 v32, v32, v33\nv_mov_b32 v33, s6")
    if qloc:
        A(f"s_cmp_lg_u32 s64, {E_Q}\ns_cbranch_scc1 L_gnl")
        A(f"v_add_u32 v15, {WS_QL-WS_Q}, v14\nglobal_store_dwordx2 v15, v[32:33], {WS}")
        A("L_gnl:")
    A(f"global_store_dwordx2 v14, v[32:33], {WS} sc1")
    A("s_mov_b64 exec, -1")
    A("L_gdone:")
    stamp(3)
    if mlate: A(f"s_cmp_eq_u32 s64, {E_M}\ns_cbranch_scc1 L_done")
    A("s_branch L_qpoll")

    NM = T - 28; nmask = T - min(r['n'] for r in roles.values())
    NW = 39 - T
    S0 = len(A.lines)
    A("L_stream:")
    if kprio: A(f"s_setprio {kprio}")
    A("s_sub_u32 s21, s3, 4")
    if yprio == 1: A("s_cmp_lt_u32 s21, 4\ns_cbranch_scc1 L_yp\ns_setprio 1\nL_yp:")
    A("v_bfe_u32 v1, v0, 2, 2\nv_lshlrev_b32 v1, 8, v1\nv_lshrrev_b32 v4, 4, v0\nv_lshl_add_u32 v1, v4, 6, v1\nv_and_b32 v4, 3, v0\nv_lshl_add_u32 v1, v4, 4, v1")
    A(f"s_lshl_b32 s19, s4, 23\ns_mul_i32 s16, s5, {28*8192}\ns_add_u32 s16, s16, s19\ns_lshl_b32 s17, s21, 12\ns_add_u32 s16, s16, s17")
    A("s_mov_b32 s10, 0x4000000\ns_mov_b32 s11, 0x20000")
    hcnt = sum(PLANS[plan]['H'][x] << (4 * x) for x in range(8))
    A(f"s_lshl_b32 s17, s4, 2\ns_lshr_b32 s35, {hcnt:#x}, s17\ns_and_b32 s35, s35, {15 if hfirst else 0}")
    A("s_waitcnt lgkmcnt(0)")
    A(f"s_mov_b32 s8, s{P_K}\ns_mov_b32 s9, s{P_K+1}")
    A("s_cmp_ge_u32 s5, s35\ns_cbranch_scc1 L_s1\ns_barrier\nL_s1:")
    KR = lambda t: 168 - 4 * T + 4 * t
    nS = (T + 3) // 4; nP = (T + 7) // 8
    assert T == 34
    first_v = 14
    vslots = [12 + 4 * i for i in range(NW)] + [KR(i) for i in range(first_v, T)]
    VR = lambda t: vslots[t % len(vslots)]
    st = {"cur": None}
    mpos = [6 + (j * (T - 12)) // max(nmask, 1) for j in range(nmask)]
    rest = list(range(NM, NM + 6)) + list(range(nmask, NM)) + list(range(NM + 6, T))
    perm = []
    for t in range(T):
        if t in mpos: perm.append(mpos.index(t))
        else: perm.append(rest.pop(0))
    first_nm = min(t for t in range(T) if perm[t] < NM)
    assert first_nm >= win
    hist = []
    def wcount(w):
        c = 0
        for n_, m_ in enumerate(reversed(hist)):
            if not m_:
                if c == w - 1: return n_
                c += 1
        return None
    def ld(which, t):
        o = perm[t]
        hist.append(o < nmask)
        if o < NM:
            A(f"s_add_u32 s20, s17, {o*8192}"); st["cur"] = None; imm = 0
            if o < nmask: A(f"s_cmp_gt_u32 s18, {o}\ns_cselect_b32 s20, 0x4000000, s20")
        else:
            key = (o - NM) >> 2; imm = ((o - NM) & 3) * 1024
            if st["cur"] != key:
                A(f"s_add_u32 s20, s16, {key*32768}"); st["cur"] = key
        if which == "K": A(f"buffer_load_dwordx4 {v4(KR(t))}, v1, s[8:11], s20 offen offset:{imm} {kpol}")
        else: A(f"buffer_load_dwordx4 {v4(VR(t))}, v2, s[12:15], s20 offen offset:{imm} {vpol}")
    korder = list(range(T))
    seq = [("K", t) for t in korder] + [("V", t) for t in range(NW)]
    for i, (wh, t) in enumerate(seq):
        if i == win:
            if st0: A("s_memrealtime s[92:93]")
            if ltab: A(rest_ld)
            A("s_branch L_body")
            S1 = len(A.lines)
            A("L_body:")
            srd(12, P_V, 0x4000000)
            if ws1: A(f"s_cmp_lt_u32 s21, {ws1}\ns_cselect_b64 vcc, -1, 0")
            if st0: A("s_waitcnt vmcnt(3)\ns_memrealtime s[94:95]")
            if not b0at: A("s_cmp_lt_u32 s5, s35\ns_cbranch_scc1 L_s2\ns_barrier\nL_s2:")
            A("s_waitcnt lgkmcnt(0)")
            A(f"s_and_b32 s17, s68, 0xfff\ns_bfe_u32 s18, s68, 0x3000c\ns_add_u32 s17, s17, {896-16}\ns_lshl_b32 s17, s17, 13\ns_add_u32 s17, s17, s19\ns_lshl_b32 s19, s21, 10\ns_add_u32 s17, s17, s19")
        if b0at and i == win + b0at: A("s_cmp_lt_u32 s5, s35\ns_cbranch_scc1 L_s2\ns_barrier\nL_s2:")
        if i == T and kprio: A("s_setprio 0")
        if wcount(win) is not None and perm[t] >= nmask:
            if xn and 8 <= i < 8 + xn:
                lb = A.label("w"); A(f"s_waitcnt vmcnt({wcount(win+1)})\ns_bitcmp0_b32 {xmask:#x}, s4\ns_cbranch_scc1 {lb}\ns_waitcnt vmcnt({wcount(win)})\n{lb}:")
            else: A(f"s_waitcnt vmcnt({wcount(win)})")
        ld(wh, t)
        if i == qtrig: A(f"v_mov_b32 v8, 0\nv_mov_b32 v9, 1\ns_mov_b64 exec, 1\nds_max_u32 v8, v9 offset:{L_FK}\ns_mov_b64 exec, -1")
        if hwait and i == hwait: A(f"v_mov_b32 v8, 0\nv_mov_b32 v9, 1\ns_mov_b64 exec, 1\nds_write_b32 v8, v9 offset:72\ns_mov_b64 exec, -1")
        if i == qtrig2 and qloc: A(f"v_mov_b32 v8, 0\nv_mov_b32 v9, 2\ns_mov_b64 exec, 1\nds_max_u32 v8, v9 offset:{L_FK}\ns_mov_b64 exec, -1")
    viss = NW
    A("v_and_b32 v8, 3, v0\nv_lshlrev_b32 v8, 8, v8\nv_lshrrev_b32 v9, 4, v0\nv_lshl_add_u32 v8, v9, 6, v8\nv_bfe_u32 v9, v0, 2, 2\nv_lshl_add_u32 v8, v9, 4, v8\nv_mov_b32 v9, 0")
    if mim: A(f"s_mov_b32 s22, {f2x(1.4426950408889634)}\ns_mov_b32 s26, {f2x(128**-0.5)}\ns_mov_b32 s27, s26")
    else: A(f"s_mov_b32 s22, {f2x(128**-0.5*1.4426950408889634)}")
    for t in range(nmask): A(f"s_cmp_gt_u32 s18, {t}\ns_cselect_b32 s{28+t}, 0xff800000, 0")
    stamp(1)
    lspin("sq", L_FQ, 1, 9, 10, 2, lambda: A(f"ds_read_b128 v[4:7], v8 offset:{L_Q}"))
    stamp(2)
    kl = {"landed": T + NW - win - 3}
    DR = lambda t: 8 if t == 0 else KR(t - 1)
    SR = lambda t: (8 + t) if t < 4 else KR((t >> 2) - 1) + (t & 3)
    def M(t):
        if t >= kl["landed"]:
            A(f"s_waitcnt vmcnt({len(hist)-1-t})"); kl["landed"] = t + 1
        A(f"v_mfma_f32_16x16x32_bf16 {v4(DR(t))}, {v4(KR(t))}, v[4:7], 0")
    def AB(t):
        d = DR(t)
        A(f"v_add_f32_dpp v{d}, v{d+1}, v{d} row_shl:4 {DPPF} bound_ctrl:0")
        A(f"v_add_f32_dpp v{d+2}, v{d+3}, v{d+2} row_shl:4 {DPPF} bound_ctrl:0")
    def S(t):
        d = DR(t)
        A(f"v_add_f32_dpp v{SR(t)}, v{d+2}, v{d} row_shl:8 {DPPF} bound_ctrl:0")
    mark0 = len(A.lines)
    if yprio == 2: A("s_cmp_lt_u32 s21, 4\ns_cbranch_scc1 L_yp\ns_setprio 1\nL_yp:")
    M(0); M(1); M(2)
    for t in range(T + 1):
        if t < T: AB(t)
        if t >= 1:
            S(t - 1)
            if vmid and t - 2 >= first_v and (t - 2 - first_v) % vmid == 0:
                ld("V", viss); viss += 1
        if t + 3 < T: M(t + 3)
    TM = KR(11)
    Sl = [SR(t) for t in range(T)]
    if mim:
        for t in range(0, T, 2): rnd(Sl[t], Sl[t + 1])
        for t in range(0, T, 2): A(f"v_pk_mul_f32 {v2(Sl[t])}, {v2(Sl[t])}, s[26:27]")
        if vmid: ld("V", viss); viss += 1
        for t in range(0, T, 2): rnd(Sl[t], Sl[t + 1])
    for t in range(nmask): A(f"v_add_f32 v{Sl[mpos[t]]}, s{28+t}, v{Sl[mpos[t]]}")
    A(f"v_max3_f32 v{TM}, v{Sl[0]}, v{Sl[1]}, v{Sl[2]}")
    A(f"v_max3_f32 v{TM+1}, v{Sl[3]}, v{Sl[4]}, v{Sl[5]}")
    i = 6; k = 0
    while i < T:
        A(f"v_max3_f32 v{TM+k}, v{TM+k}, v{Sl[i]}, v{Sl[i+1]}"); i += 2; k ^= 1
    A(f"v_max_f32 v{TM}, v{TM}, v{TM+1}")
    xrow("v_max_f32", TM, TM + 1, 16); xrow("v_max_f32", TM, TM + 1, 32)
    A(f"v_mul_f32 v{TM}, s22, v{TM}")
    for t in range(T): A(f"v_fma_f32 v{Sl[t]}, v{Sl[t]}, s22, -v{TM}")
    for t in range(T): A(f"v_exp_f32 v{Sl[t]}, v{Sl[t]}")
    if vmid: ld("V", viss); viss += 1
    A(f"v_add_f32 v{TM+1}, v{Sl[0]}, v{Sl[1]}\nv_add_f32 v{TM+2}, v{Sl[2]}, v{Sl[3]}")
    for t in range(4, T): A(f"v_add_f32 v{TM+1+(t&1)}, v{TM+1+(t&1)}, v{Sl[t]}")
    A(f"v_add_f32 v{TM+1}, v{TM+1}, v{TM+2}")
    xrow("v_add_f32", TM + 1, TM + 2, 16); xrow("v_add_f32", TM + 1, TM + 2, 32)
    A(f"s_lshl_b32 s19, s21, 5\nv_lshl_add_u32 v{TM+2}, v0, 3, s19\nv_mov_b32 v4, 0\nv_mov_b32 v5, 1")
    A("s_mov_b64 exec, 0xf")
    A(f"ds_write_b64 v{TM+2}, {v2(TM)} offset:{L_ST}")
    A("s_mov_b64 exec, 1")
    A(f"ds_add_u32 v4, v5 offset:{L_CS}")
    A("s_mov_b64 exec, -1")
    GR = [(0, 2), (2, 10), (10, 18), (18, 26), (26, 34)]
    def pack(u, d):
        for t in range(GR[u][0], GR[u][1], 2): A(f"v_cvt_pk_bf16_f32 v{d+(t-GR[u][0])//2}, v{Sl[t]}, v{Sl[t+1]}")
    for u in range(3): pack(u, KR(8 + u))
    A("s_waitcnt lgkmcnt(0)")
    AC = [8, KR(0)]
    PA = [KR(1), KR(2), KR(12), KR(13)]; PB = [KR(3), KR(4), KR(5), KR(6)]
    TT = [TM, 4]
    def zero(P):
        for j in range(4):
            for i in range(4): A(f"v_mov_b32 v{P[j]+i}, 0")
    def vers(P, src, n=4):
        for j in range(4):
            ctl = "quad_perm:[0,1,2,3]" if j == 0 else f"row_shr:{4*j}"
            for i in range(n): A(f"v_mov_b32_dpp v{P[j]+i}, v{src+i} {ctl} row_mask:0xf bank_mask:{1<<j:#x}")
    zero(PA)
    A(f"v_mov_b32 v{TM+1}, 0\nv_mov_b32 v5, 0")
    stamp(3)
    EO = (0, 4, 1, 5, 2, 6, 3, 7)
    def pv(u):
        t0, t1 = GR[u]; n = t1 - t0
        vers(PA, KR(8 + u), n // 2)
        for k, e in enumerate(EO):
            Tm = TT[k & 1]; ac = AC[e >> 2]
            for p in range(n // 2):
                a = VR(t0 + 2 * p) + (e >> 1); b = VR(t0 + 2 * p + 1) + (e >> 1)
                A(f"v_perm_b32 v{Tm+p}, v{b}, v{a}, s{24+(e&1)}")
            c = "0" if (u == 0 and k < 2) else v4(ac)
            if n == 8: A(f"v_mfma_f32_16x16x32_bf16 {v4(ac)}, {v4(Tm)}, {v4(PA[e&3])}, {c}")
            else: A(f"v_mfma_f32_16x16x16_bf16 {v4(ac)}, {v2(Tm)}, {v2(PA[e&3])}, {c}")
    ns = len(vslots)
    TA = [VR(t) for t in range(T - ns, 18)][:8]
    assert len(TA) == 8
    X = KR(8); ONE = KR(7) + 2; CNT = KR(7) + 3
    def rescale():
        A(f"v_and_b32 v1, 3, v0\nv_lshlrev_b32 v1, 3, v1\nv_mov_b32 v{X+10}, 0\nv_mov_b32 v{ONE}, 1\ns_lshl_b32 s19, s21, 5\nv_add_u32 v{X+9}, s19, v1")
        def rd():
            for w in range(8): A(f"ds_read_b32 v{X+w}, v1 offset:{L_ST+32*w}")
            A(f"ds_read_b32 v{X+8}, v{X+9} offset:{L_ST}")
        lspin("sm", L_CS, 9, X + 10, X + 11, 1, rd)
        A(f"s_mov_b64 exec, 1\nds_add_rtn_u32 v{X+11}, v{X+10}, v{ONE} offset:{L_CT}\ns_mov_b64 exec, -1")
        A(f"v_max3_f32 v{X}, v{X}, v{X+1}, v{X+2}\nv_max3_f32 v{X+3}, v{X+3}, v{X+4}, v{X+5}\nv_max3_f32 v{X}, v{X}, v{X+6}, v{X+7}\nv_max_f32 v{X}, v{X}, v{X+3}")
        A(f"v_sub_f32 v{X}, v{X+8}, v{X}\nv_exp_f32 v{X}, v{X}")
        A(f"s_lshl_b32 s19, s21, 11\nv_add_u32 v1, s19, v2\ns_and_b32 s19, s21, 4\nv_mov_b32 v{CNT}, s19")
        for ac in AC:
            for q in range(2): A(f"v_pk_mul_f32 {v2(ac+2*q)}, {v2(ac+2*q)}, {v2(X)} op_sel_hi:[1,0]")
        for t in range(18, T, 2): A(f"v_pk_mul_f32 {v2(Sl[t])}, {v2(Sl[t])}, {v2(X)} op_sel_hi:[1,0]")
        pack(3, TT[0]); pack(4, TT[1])
        zero(PB); vers(PA, TT[0]); vers(PB, TT[1])
        A(f"s_waitcnt lgkmcnt(0)\nv_readfirstlane_b32 s23, v{X+11}")
    while viss < min(win2, ns):
        ld("V", viss); viss += 1
    done_t = 0
    ends = {g[1] - 1: u for u, g in enumerate(GR[:3])}
    for L in range(T):
        inc = L >= 18 and L % 2 == 1
        can = lambda: viss < T and sum(1 for j in range(L + 1, viss) if perm[j] >= nmask) < (bwin if L >= T - burst else win2 + (pre if L in ends else 0)) + (perm[viss] < nmask) and (viss < ns or done_t > viss - ns)
        if can() or L in ends or inc:
            A(f"s_waitcnt vmcnt({viss-1-L})")
        while can():
            ld("V", viss); viss += 1
            if viss == T:
                assert L > 17
                A(f"s_mov_b64 exec, 1\nds_add_u32 v2, v{ONE} offset:{L_CV}\ns_mov_b64 exec, -1")
        if L in ends:
            pv(ends[L]); done_t = L + 1
            if L == 17: rescale()
        if inc:
            if L == T - 1: stamp(4)
            p = ((L - 18) % 8) // 2
            for e in EO: A(f"v_perm_b32 v{TA[e]+p}, v{VR(L)+(e>>1)}, v{VR(L-1)+(e>>1)}, s{24+(e&1)}")
            if p == 3:
                for e in EO: A(f"v_mfma_f32_16x16x32_bf16 {v4(AC[e>>2])}, {v4(TA[e])}, {v4((PA if L < 26 else PB)[e&3])}, {v4(AC[e>>2])}")
    assert viss == T
    if nocomp:
        keep = [l for l in A.lines[mark0:] if not l.startswith(("v_mfma", "v_perm_b32", "v_add_f32", "v_exp", "v_fma", "v_max", "v_cvt", "v_permlane"))]
        A.lines[mark0:] = keep
    for hf in range(2): A(f"ds_write_b128 v1, {v4(AC[hf])} offset:{L_OP+hf*1024}")
    A(f"s_mov_b64 exec, 1\nds_add_u32 v{CNT}, v{ONE} offset:{L_FO}")
    A("s_mov_b64 exec, -1")
    if stamps: A("s_waitcnt lgkmcnt(0)")
    stamp(5)
    A("s_cmp_lg_u32 s23, 0\ns_cbranch_scc1 L_done")
    A(f"s_setprio {rprio}")
    def a_addr(d, t):
        if lin: A(f"s_lshl_b32 s20, s4, 15\ns_lshr_b32 s19, s5, 4\ns_lshl_b32 s19, s19, 10\ns_add_u32 s20, s20, s19\ns_and_b32 s19, s5, 15\ns_lshl_b32 s19, s19, 4\ns_add_u32 s20, s20, s19\ns_add_u32 s20, s20, {WS_A}")
        else: A(f"s_lshl_b32 s20, s4, 15\ns_lshl_b32 s19, s5, {7 if fl else 6}\ns_add_u32 s20, s20, s19\ns_add_u32 s20, s20, {WS_A}")
        if mrg:
            assert lin
            A(f"v_and_b32 v{d}, 3, v0\nv_lshlrev_b32 v{d}, 13, v{d}\nv_bfe_u32 v{t}, v0, 2, 2\nv_lshl_add_u32 v{d}, v{t}, 11, v{d}\nv_lshrrev_b32 v{t}, 4, v0\nv_lshl_add_u32 v{d}, v{t}, 8, v{d}\nv_add_u32 v{d}, s20, v{d}")
            return
        A(f"v_bfe_u32 v{d}, v0, 2, 2\nv_lshlrev_b32 v{d}, 13, v{d}")
        if fl: A(f"v_lshrrev_b32 v{t}, 5, v0\nv_lshl_add_u32 v{d}, v{t}, 12, v{d}\nv_bfe_u32 v{t}, v0, 4, 1\nv_lshl_add_u32 v{d}, v{t}, 6, v{d}")
        else: A(f"v_lshrrev_b32 v{t}, 4, v0\nv_lshl_add_u32 v{d}, v{t}, 11, v{d}")
        A(f"v_and_b32 v{t}, 3, v0\nv_lshl_add_u32 v{d}, v{t}, {8 if lin else 4}, v{d}\nv_add_u32 v{d}, s20, v{d}")
    a_addr(36, 37)
    A(f"v_add_u32 v37, {WS_AL-WS_A}, v36\nv_mov_b32 v38, 0\nv_mov_b32 v39, 1")
    if xl: A(f"ds_read_b32 v29, v38 offset:{L_MK}\ns_waitcnt lgkmcnt(0)\nv_readfirstlane_b32 s26, v29")
    for hf in range(2 if det else 0):
        def rd8():
            for j in range(4): A(f"ds_read_b128 {v4(40+8*j)}, v2 offset:{L_OP+(4*hf+j)*2048}\nds_read_b128 {v4(44+8*j)}, v2 offset:{L_OP+(4*hf+j)*2048+1024}")
        if rsl and hf: lspin("so3", L_FO + 4, 3, 38, 28, 1)
        lspin("so", L_FO + 4 * hf, 4, 38, 28, 1 - hf, rd8)
        for q in range(4): A(f"v_pk_add_f32 {v2(40+2*q)}, {v2(40+2*q)}, {v2(48+2*q)}")
        for q in range(4): A(f"v_pk_add_f32 {v2(56+2*q)}, {v2(56+2*q)}, {v2(64+2*q)}")
        for q in range(4): A(f"v_pk_add_f32 {v2((12 if hf == 0 else 40)+2*q)}, {v2(40+2*q)}, {v2(56+2*q)}")
        if hf:
            for q in range(4): A(f"v_pk_add_f32 {v2(12+2*q)}, {v2(12+2*q)}, {v2(40+2*q)}")
    for i in range(0 if det else 8):
        d = 12 if i == 0 else 20
        lspin("so", L_FO + 4 * i, 1, 38, 28, 1 if (calm and i < 6) else 0, lambda: A(f"ds_read_b128 {v4(d)}, v2 offset:{L_OP+i*2048}\nds_read_b128 {v4(d+4)}, v2 offset:{L_OP+i*2048+1024}"))
        if i:
            for q in range(4): A(f"v_pk_add_f32 {v2(12+2*q)}, {v2(12+2*q)}, {v2(20+2*q)}")
    for q in range(4): A(f"v_cvt_pk_bf16_f32 v{12+q}, v{12+2*q}, v{13+2*q}")
    if loc: A(f"global_store_dwordx4 v37, v[12:15], {WS}")
    if xl: A("s_cmp_eq_u32 s26, 0\ns_cbranch_scc1 L_ng2")
    A(f"global_store_dwordx4 v36, v[12:15], {WS} sc1")
    A("L_ng2:")
    A(f"ds_write_b32 v38, v39 offset:{L_FP}")
    stamp(6)
    end_wave()
    blk = A.lines[S0:S1]; del A.lines[S0:S1]; A.lines[STREAM_MARK:STREAM_MARK] = blk

    A("L_nh:")
    A(f"s_cmp_lg_u32 s64, {E_Q}\ns_cbranch_scc1 L_nq")
    A("v_lshlrev_b32 v1, 17, v12\nv_lshl_add_u32 v1, v13, 4, v1")
    A("s_lshl_b32 s20, s3, 20\ns_lshl_b32 s21, s4, 10\ns_add_u32 s20, s20, s21\ns_mov_b32 s26, s65\ns_lshl_b32 s21, s26, 7\ns_add_u32 s20, s20, s21")
    A("s_lshl_b32 s21, s3, 8\nv_lshl_add_u32 v14, v0, 2, s21")
    A("s_waitcnt lgkmcnt(0)")
    prb("qi")
    srd(8, P_WQ, 512 * 8192)
    A(f"global_load_dwordx4 v[8:11], v2, {sp(P_X)}\nglobal_load_dword v15, v14, {sp(P_X)}")
    for i in range(16):
        A(f"buffer_load_dwordx4 {v4(40+4*i)}, v1, s[8:11], s20 offen {wpol}")
        if i < 15: A("s_add_u32 s20, s20, 8192")
    A(f"s_load_dword s6, {WS}, 0")
    A("s_barrier")
    A(f"s_lshl_b32 s26, s26, 8\ns_lshl_b32 s21, s4, 11\ns_add_u32 s26, s26, s21\ns_add_u32 s26, s26, {WS_Q}")
    A("s_waitcnt vmcnt(16)")
    prb("x")
    unpack(32, [8, 9, 10, 11], 4)
    A("v_add_f32 v4, v32, v33")
    for i in range(2, 8): A(f"v_add_f32 v4, v4, v{32+i}")
    wave_reduce("v_add_f32", 4, 5)
    A(f"v_mul_f32 v4, {f2x(1/512)}, v4")
    for i in range(8): A(f"v_sub_f32 v{32+i}, v{32+i}, v4")
    A("v_mul_f32 v6, v32, v32")
    for i in range(1, 8): A(f"v_fmac_f32 v6, v{32+i}, v{32+i}")
    wave_reduce("v_add_f32", 6, 5)
    A(f"v_mul_f32 v5, {f2x(1/512)}, v6"); rnd(4, 5)
    A(f"v_add_f32 v5, {f2x(1e-5)}, v5"); rnd(5)
    A("v_sqrt_f32 v5, v5"); rnd(5)
    A("v_rcp_f32 v5, v5")
    unpack(8, [15], 1)
    A("v_sub_f32 v8, v8, v4\nv_sub_f32 v9, v9, v4"); rnd(8, 9)
    A("v_mul_f32 v8, v8, v5\nv_mul_f32 v9, v9, v5"); rnd(8, 9)
    A(f"v_lshlrev_b32 v15, 2, v14\nv_add_u32 v15, {WS_H}, v15\nv_add_u32 v10, 4096, v15\nv_add_u32 v11, 8192, v15\nv_add_u32 v7, 12288, v15")
    mktag()
    A("s_waitcnt vmcnt(0)")
    stamp(1)
    prb("wq")
    gemv_perm(40, 104, 8)
    if hwait: A("v_mov_b32 v4, 0"); lspin("sh", 72, 1, 4, 5, 2)
    poll("ph", lambda: [A(f"global_load_dwordx4 {v4(16+4*k)}, v{(15,10,11,7)[k]}, {WS} sc1") for k in range(4)],
         lambda: chk_tags([17 + 2 * k for k in range(8)], 4), hsleep)
    stamp(2)
    prb("h")
    A("v_add_f32 v16, v16, v20\nv_add_f32 v17, v18, v22\nv_add_f32 v18, v24, v28\nv_add_f32 v19, v26, v30")
    rnd(16, 17); rnd(18, 19)
    A("v_add_f32 v18, 1.0, v18\nv_add_f32 v19, 1.0, v19"); rnd(18, 19)
    A("v_pk_mul_f32 v[24:25], v[8:9], v[18:19]"); rnd(24, 25)
    A("v_pk_add_f32 v[24:25], v[24:25], v[16:17]")
    A("L_gx:")
    A("v_cvt_pk_bf16_f32 v24, v24, v25")
    A(f"ds_write_b32 v14, v24 offset:{L_X}")
    A("s_lshl_b32 s21, s3, 8\nv_lshl_add_u32 v15, v12, 5, s21")
    A(f"ds_read_b128 v[24:27], v15 offset:{L_X}\nds_read_b128 v[28:31], v15 offset:{L_X+16}")
    A("s_waitcnt lgkmcnt(0)")
    gemv_dot(104, list(range(24, 32)), 32)
    A("s_branch L_gfin")

    A("L_nq:")
    A("s_waitcnt lgkmcnt(0)")
    A(f"s_load_dword s6, {WS}, 0")
    mktag()
    A("s_barrier")
    A("L_role:")
    A("s_cmp_eq_u32 s64, 0\ns_cbranch_scc1 L_qpoll")
    A(f"s_cmp_eq_u32 s64, {E_B}\ns_cbranch_scc1 L_wb")
    A(f"s_cmp_lg_u32 s64, {E_P}\ns_cbranch_scc1 L_m")
    if pi == 2:
        A("s_cmp_lg_u32 s3, 0\ns_cbranch_scc1 L_qpoll")
        A(f"s_lshl_b32 s20, s65, 7\ns_add_u32 s20, s20, {WS_P}\ns_add_u32 s72, s{P_WS}, s20\ns_addc_u32 s73, s{P_WS+1}, 0")
        A("v_lshlrev_b32 v4, 10, v12\nv_lshl_add_u32 v4, v13, 4, v4")
        for k in range(4):
            A("global_store_dwordx4 v4, v[16:19], s[72:73] sc1")
            if k < 3: A("v_add_u32 v4, 8192, v4")
        for k in range(4): A(f"s_mov_b32 s{80+k}, -1")
        A("s_waitcnt vmcnt(0)")
        stamp(1)
        A("s_memtime s[76:77]\ns_waitcnt lgkmcnt(0)")
        cur = 76
        for i in range(4 * pn):
            k = (i + (i >> 2)) & 3; nx = 154 - cur
            A(f"s_load_dword s74, s[72:73], {8192*k + 1024*(i>>2)}\ns_waitcnt lgkmcnt(0)\ns_memtime s[{nx}:{nx+1}]\ns_waitcnt lgkmcnt(0)\ns_sub_u32 s21, s{nx}, s{cur}\ns_min_u32 s{80+k}, s{80+k}, s21")
            cur = nx
        stamp(2)
        A("s_add_u32 s20, s80, s82\ns_add_u32 s21, s81, s83\ns_cmp_gt_u32 s20, s21\ns_cselect_b32 s22, 1, 0\ns_cselect_b32 s80, s81, s80\ns_cselect_b32 s82, s83, s82")
        if not use2: A("s_getreg_b32 s20, hwreg(HW_REG_XCC_ID, 2, 1)\ns_xor_b32 s20, s22, s20")
        if use2: A("s_cmp_gt_u32 s80, s82\ns_cselect_b32 s21, 1, 0")
        if use2: A(f"s_getreg_b32 s20, hwreg(HW_REG_XCC_ID, 2, 1)\ns_xor_b32 s22, s22, s20\ns_getreg_b32 s20, hwreg(HW_REG_XCC_ID, 0, 1)\ns_xor_b32 s21, s21, s20\ns_xor_b32 s21, s21, {1 ^ ((WS_P >> 19) & 1)}\ns_lshl_b32 s21, s21, 1\ns_or_b32 s20, s21, s22")
        A(f"v_mov_b32 v4, s20\nv_mov_b32 v5, s6\ns_lshl_b32 s20, s65, 3\ns_add_u32 s20, s20, {WS_PV}\nv_mov_b32 v8, s20")
        A(f"s_mov_b64 exec, 1\nglobal_store_dwordx2 v8, v[4:5], {WS} sc1\ns_mov_b64 exec, -1")
    A("s_branch L_qpoll\nL_m:")
    if mlate:
        A("s_branch L_qpoll\nL_ml:")
        if mlate <= 8: lspin("sl", L_CV, mlate, 10, 11, 4)
        else: lspin("sl", L_FP, 1, 10, 11, 4)
        A("s_setprio 0\nv_lshrrev_b32 v12, 3, v0\nv_and_b32 v13, 7, v0")
    A("s_mov_b32 s21, 98304\nv_mul_lo_u32 v1, v12, s21\nv_lshl_add_u32 v1, v13, 4, v1")
    A(f"s_mul_i32 s20, s3, {128*6144}\ns_add_u32 s26, s70, 2\ns_lshl_b32 s26, s26, 10\ns_lshl_b32 s21, s69, 7\ns_add_u32 s26, s26, s21\ns_add_u32 s20, s20, s26")
    A("s_lshl_b32 s21, s3, 8\nv_lshl_add_u32 v14, v0, 2, s21")
    srd(8, P_WM, 512 * 6144)
    A(f"global_load_dword v15, v14, {sp(P_C)}")
    paced([f"buffer_load_dwordx4 {v4(40+4*i)}, v1, s[8:11], s20 offen {wpol}\ns_add_u32 s20, s20, 6144" for i in range(16)], 0)
    A(f"s_lshl_b32 s26, s26, 1\ns_add_u32 s26, s26, {WS_MOD-4096}")
    A("s_waitcnt vmcnt(0)")
    unpack(24, [15], 1); silu(24, 32, 2)
    gemv_perm(40, 104, 8)
    A("s_branch L_gx")
    def dma(loads, w):
        if skipw: return
        for i, l in enumerate(loads):
            if w and i >= w: A(f"s_waitcnt vmcnt({w-1})")
            A(f"s_add_u32 m0, s23, {1024*i}")
            A(l)
    def wo_issue(lo, hi):
        srd(8, P_WO, 4096 * 1024)
        A("v_lshrrev_b32 v1, 3, v0\nv_lshlrev_b32 v1, 10, v1\nv_and_b32 v4, 7, v0\nv_lshl_add_u32 v1, v4, 4, v1")
        A(f"s_lshl_b32 s20, s4, 19\ns_lshl_b32 s21, s3, 17\ns_add_u32 s20, s20, s21\ns_lshl_b32 s21, s65, 7\ns_add_u32 s20, s20, s21\ns_add_u32 s20, s20, {8192*lo}")
        A(f"s_lshl_b32 s23, s3, 14\ns_add_u32 s23, s23, {L_WT+1024*lo}")
        dma([f"buffer_load_dwordx4 v1, s[8:11], s20 offen {wpol} lds\ns_add_u32 s20, s20, 8192" for i in range(lo, hi)], pace)
    def wo_finish(w):
        A(f"s_lshl_b32 s23, s3, 14\ns_add_u32 s23, s23, {L_WT}")
        A("v_bfe_u32 v1, v0, 2, 2\nv_lshlrev_b32 v1, 10, v1\nv_lshrrev_b32 v4, 4, v0\nv_lshl_add_u32 v1, v4, 12, v1\nv_and_b32 v4, 3, v0\nv_lshl_add_u32 v1, v4, 3, v1\nv_add_u32 v1, s23, v1")
        A(f"s_waitcnt vmcnt({w})")
        k = 0
        for c in range(4):
            for nt in range(4):
                for hi in range(2):
                    A(f"ds_read_b64_tr_b16 {v2(104+16*c+4*nt+2*hi)}, v1 offset:{(c+4*hi)*128+nt*32}")
                    k += 1
                    if k >= 12 and k % 4 == 0: A("s_waitcnt lgkmcnt(8)")
        A("s_waitcnt lgkmcnt(0)")
    A("L_wb:")
    if xl:
        A("s_cmp_lg_u32 s3, 0\ns_cbranch_scc1 L_wb1")
        A(f"s_getreg_b32 s20, hwreg(HW_REG_XCC_ID, 0, 4)\nv_mov_b32 v4, s20\nv_mov_b32 v5, s6\ns_lshl_b32 s20, s4, 7\ns_lshl_b32 s21, s65, 3\ns_add_u32 s20, s20, s21\ns_add_u32 s20, s20, {WS_XB}\nv_mov_b32 v6, s20")
        A(f"s_mov_b64 exec, 1\nglobal_store_dwordx2 v6, v[4:5], {WS} sc1\ns_mov_b64 exec, -1\ns_nop 0")
        A("L_wb1:")
    if bp:
        A("s_cmp_eq_u32 s3, 1\ns_cbranch_scc1 L_qpoll\ns_cmp_eq_u32 s3, 2\ns_cbranch_scc1 L_qpoll")
        srd(8, P_WO, 4096 * 1024)
        A("v_lshrrev_b32 v1, 3, v0\nv_lshlrev_b32 v1, 10, v1\nv_and_b32 v4, 7, v0\nv_lshl_add_u32 v1, v4, 4, v1\ns_lshr_b32 s22, s3, 1")
        A(f"s_lshl_b32 s20, s4, 19\ns_lshl_b32 s21, s22, 18\ns_add_u32 s20, s20, s21\ns_lshl_b32 s21, s65, 7\ns_add_u32 s20, s20, s21")
        A(f"s_lshl_b32 s23, s22, 15\ns_add_u32 s23, s23, {L_WT}\ns_mov_b32 s22, 31")
        A(f"L_wbl:\ns_mov_b32 m0, s23\ns_waitcnt vmcnt({bp-1})\nbuffer_load_dwordx4 v1, s[8:11], s20 offen {wpol} lds\ns_add_u32 s20, s20, 8192\ns_add_u32 s23, s23, 1024\ns_sub_u32 s22, s22, 1\ns_cbranch_scc0 L_wbl")
        A(f"v_mov_b32 v4, 0\nv_mov_b32 v5, 1\ns_waitcnt vmcnt(0)\ns_mov_b64 exec, 1\nds_add_u32 v4, v5 offset:{L_CW}\ns_mov_b64 exec, -1")
    elif not bdefer: wo_issue(0, 16); wo_finish(0)
    elif bearly: wo_issue(0, bearly)
    A("L_qpoll:")
    if w1early:
        A(f"s_cmp_lg_u32 s66, {R_C}\ns_cbranch_scc1 L_qp1\ns_mov_b32 s26, s67")
        srd(8, P_W1, 512 * 3584)
        A("v_lshrrev_b32 v1, 2, v0\ns_mov_b32 s20, 3584\nv_mul_lo_u32 v1, v1, s20\nv_and_b32 v12, 3, v0\nv_lshl_add_u32 v1, v12, 4, v1")
        A(f"s_mul_i32 s20, s3, {128*3584}\ns_lshl_b32 s21, s26, 6\ns_add_u32 s20, s20, s21")
        A(f"s_lshl_b32 s23, s3, 14\ns_add_u32 s23, s23, {L_WT}")
        dma([f"buffer_load_dwordx4 v1, s[8:11], s20 offen {w1pol} lds\ns_add_u32 s20, s20, {16*3584}" for i in range(8)], 0)
        A("L_qp1:")
    if nosvc:
        A(f"v_mov_b32 v10, 0\nv_mov_b32 v5, 1\nds_write_b32 v10, v5 offset:{L_FQ}\ns_mov_b64 exec, 1\nds_add_u32 v10, v5 offset:{L_CS}")
        end_wave()
    if tw:
        A("s_cmp_lg_u32 s3, 3\ns_cbranch_scc1 L_tw")
        A(f"s_lshl_b32 s20, s4, 23\ns_mul_i32 s21, s5, {28*8192}\ns_add_u32 s21, s21, s20\ns_add_u32 s20, s20, {896*8192}")
        A(f"v_mov_b32 v4, s21\nv_add_u32 v5, {28*8192-128}, v4\nv_mov_b32 v6, s20\nv_mov_b32 v7, 0\ns_mov_b64 exec, 1")
        A(f"global_load_dword v24, v4, {sp(P_V)} nt\nglobal_load_dword v25, v5, {sp(P_V)} nt\nglobal_load_dword v26, v6, {sp(P_V)} nt\nglobal_load_dword v27, v7, {sp(P_W2)} nt")
        A("s_waitcnt vmcnt(0)\ns_mov_b64 exec, -1\nL_tw:")
    A("v_mov_b32 v10, 0\nv_mov_b32 v23, 0\nv_mov_b32 v35, 64")
    A("s_cmp_lg_u32 s3, 1\ns_cbranch_scc1 L_np")
    A(f"s_lshl_b32 s21, s4, 11\ns_add_u32 s21, s21, {WS_Q}\nv_add_u32 v14, s21, v2")
    lspin("sk", L_FK, 1, 10, 11, 16 if calm else 4)
    def ldq():
        if qloc:
            A(f"ds_read_b32 v11, v10 offset:{L_FK}\ns_waitcnt lgkmcnt(0)\nv_readfirstlane_b32 s21, v11\ns_lshr_b32 s21, s21, 1\ns_and_b32 s21, s21, s7")
            if slowfb: A(f"s_cmp_lt_u32 s7, {spin-slowfb}")
            A(f"s_cselect_b32 s21, 0, {WS_QL-WS_Q}\nv_add_u32 v15, s21, v14")
        for i in range(2): A(f"global_load_dwordx4 {v4(16+4*i)}, v{15 if qloc else 14}, {WS} offset:{1024*i} sc1")
    poll("pq", ldq, lambda: chk_tags([17, 19, 21, 23], 4), qsleep)
    A("v_mov_b32 v17, v18\nv_mov_b32 v21, v22\nv_lshlrev_b32 v14, 3, v0\nv_mov_b32 v5, 1")
    A(f"ds_write_b64 v14, v[16:17] offset:{L_Q}\nds_write_b64 v14, v[20:21] offset:{L_Q+512}")
    A(f"ds_write_b32 v10, v5 offset:{L_FQ}")
    stamp(4)
    A("L_np:")
    if xit == 'np': end_wave()
    A("s_cmp_eq_u32 s3, 2\ns_cbranch_scc1 L_post")
    if mlate: A(f"s_cmp_eq_u32 s64, {E_M}\ns_cbranch_scc1 L_ml")
    A("s_cmp_eq_u32 s66, 0\ns_cbranch_scc1 L_done")
    A(f"s_cmp_lg_u32 s66, {R_F}\ns_cbranch_scc1 L_ws")
    A("s_cmp_lg_u32 s3, 0\ns_cbranch_scc1 L_done")
    A("L_ws:")
    lspin("ss0", L_CS, 9, 10, 11, 32 if calm else 16)
    A("s_branch L_pre")
    A("L_done:")
    end_wave()
    A("L_post:")
    a_addr(37, 15)
    A("v_bfe_u32 v36, v0, 2, 2")
    for i in range(4): A(f"v_mov_b32 v{16+i}, -1")
    if xl:
        A(f"v_and_b32 v20, 7, v0\ns_lshl_b32 s20, s4, 7\ns_add_u32 s20, s20, {WS_XB}\nv_lshl_add_u32 v20, v20, 3, s20")
        lspin("sg", L_FK, 1, 10, 11, 32 if calm else 8)
        poll("px", lambda: A(f"global_load_dwordx2 v[22:23], v20, {WS} sc1"), lambda: chk_tags([23], 21), 8)
        A("s_getreg_b32 s20, hwreg(HW_REG_XCC_ID, 0, 4)\nv_cmp_ne_u32 vcc, s20, v22\ns_cbranch_vccz L_ng")
        A(f"v_mov_b32 v5, 1\nds_write_b32 v10, v5 offset:{L_MK}")
    A(f"global_store_dwordx4 v37, v[16:19], {WS} sc1")
    A("L_ng:")
    if loc: A(f"v_add_u32 v39, {WS_AL-WS_A}, v37\nglobal_store_dwordx4 v39, v[16:19], {WS}")
    A("v_lshlrev_b32 v38, 3, v36\nv_mov_b32 v5, 1")
    A(f"s_lshl_b32 s20, s4, 11\ns_lshl_b32 s21, s5, {6 if fl else 4}\ns_add_u32 s20, s20, s21\ns_add_u32 s20, s20, {WS_ST}\nv_lshl_add_u32 v36, v36, {4 if fl else 9}, s20")
    A(f"s_waitcnt vmcnt(0)\ns_mov_b64 exec, 1\nds_add_u32 v10, v5 offset:{L_CS}\ns_mov_b64 exec, -1")
    lspin("ss", L_CS, 9, 10, 11, 16 if calm else 8)
    stamp(1)
    for w in range(8): A(f"ds_read_b64 {v2(40+2*w)}, v38 offset:{L_ST+32*w}")
    A("s_waitcnt lgkmcnt(0)")
    A("v_max3_f32 v56, v40, v42, v44\nv_max3_f32 v56, v56, v46, v48\nv_max3_f32 v56, v56, v50, v52\nv_max_f32 v56, v56, v54")
    for w in range(8): A(f"v_sub_f32 v{28+w}, v{40+2*w}, v56")
    for w in range(8): A(f"v_exp_f32 v{28+w}, v{28+w}")
    A("v_mul_f32 v58, v28, v41")
    for w in range(1, 8): A(f"v_fmac_f32 v58, v{28+w}, v{41+2*w}")
    A("s_getreg_b32 s20, hwreg(HW_REG_XCC_ID, 0, 4)\ns_add_u32 s20, s20, s6\nv_mov_b32 v57, s6\nv_mov_b32 v59, s20")
    A("s_mov_b64 exec, 0x1111")
    A(f"global_store_dwordx4 v36, v[56:59], {WS} sc1")
    A("s_mov_b64 exec, -1")
    stamp(2)
    if mlate: A(f"s_cmp_eq_u32 s64, {E_M}\ns_cbranch_scc1 L_ml")
    A(f"s_cmp_eq_u32 s66, 0\ns_cbranch_scc1 L_done\ns_cmp_eq_u32 s66, {R_F}\ns_cbranch_scc1 L_done")
    A("L_pre:")
    assert pi == 2
    A(f"v_and_b32 v37, 7, v0\nv_lshlrev_b32 v37, 3, v37\nv_add_u32 v37, {WS_PV}, v37")
    VL = f"global_load_dwordx2 v[38:39], v37, {WS} sc1"
    def tally():
        A("v_and_b32 v37, 1, v38\nv_cmp_ne_u32 vcc, 0, v37\ns_and_b32 s71, vcc_lo, 0xff\ns_bcnt1_i32_b32 s71, s71\ns_cmp_gt_u32 s71, 4\ns_cselect_b32 s71, 0x2000, 0")
        if use2: A("v_and_b32 v37, 2, v38\nv_cmp_ne_u32 vcc, 0, v37\ns_and_b32 s75, vcc_lo, 0xff\ns_bcnt1_i32_b32 s75, s75\ns_cmp_gt_u32 s75, 4\ns_cselect_b32 s75, 0x4000, 0\ns_or_b32 s71, s71, s75")
        else: A(f"s_or_b32 s71, s71, {p2<<14}")
        A("s_xor_b32 s75, s71, 0x4000")
    if xit == 'pre': end_wave()
    A(f"s_cmp_eq_u32 s66, {R_F}\ns_cbranch_scc1 L_tf")
    A(f"s_cmp_eq_u32 s66, {R_C}\ns_cbranch_scc1 L_tc")
    if bp: lspin("sz", L_CW, 2, 10, 11, 16); wo_finish(0)
    A(f"s_lshl_b32 s20, s4, 11\ns_lshl_b32 s21, s3, {4 if fl else 9}\ns_add_u32 s20, s20, s21\ns_add_u32 s20, s20, {WS_ST}")
    A(f"v_and_b32 v4, 31, v0\nv_lshl_add_u32 v5, v4, {6 if fl else 4}, s20")
    lspin("sb", L_CV, strig, 10, 11, 12 if calm else 4)
    poll("ps", lambda: A(f"global_load_dwordx4 v[40:43], v5, {WS} sc1\n" + VL), lambda: A("v_subrev_u32 v43, s6, v43\nv_xor_b32 v6, s6, v41\nv_lshrrev_b32 v7, 4, v43\nv_or_b32 v6, v6, v7\nv_xor_b32 v7, s6, v39\nv_or_b32 v6, v6, v7\nv_cmp_ne_u32 vcc, 0, v6"), 8)
    tally()
    A("s_getreg_b32 s20, hwreg(HW_REG_XCC_ID, 0, 4)\nv_cmp_eq_u32 vcc, s20, v43")
    A("s_and_b32 s28, vcc_lo, 0xffff\ns_mul_i32 s28, s28, 0x10001\ns_mov_b32 s29, s28\ns_lshr_b32 s30, vcc_lo, 16\ns_mul_i32 s30, s30, 0x10001\ns_mov_b32 s31, s30")
    A("v_mov_b32 v44, v40")
    inrow("v_max_f32", 44, ["row_ror:8", "row_ror:4", "row_ror:2", "row_ror:1"]); xrow("v_max_f32", 44, 45, 16)
    A("v_sub_f32 v40, v40, v44\nv_exp_f32 v40, v40\nv_mul_f32 v44, v40, v42")
    inrow("v_add_f32", 44, ["row_ror:8", "row_ror:4", "row_ror:2", "row_ror:1"]); xrow("v_add_f32", 44, 45, 16)
    A("v_rcp_f32 v44, v44\nv_mul_f32 v40, v40, v44")
    A("s_lshl_b32 s20, s3, 8\nv_lshl_add_u32 v4, v4, 2, s20\nv_lshrrev_b32 v5, 4, v0\nv_lshl_add_u32 v5, v5, 4, s20")
    A(f"ds_write_b32 v4, v40 offset:{L_X}\nds_read_b128 v[12:15], v5 offset:{L_X}\nds_read_b128 v[16:19], v5 offset:{L_X+64}")
    A("v_and_b32 v1, 15, v0\nv_lshrrev_b32 v4, 4, v0\nv_lshlrev_b32 v24, 4, v1\nv_lshl_add_u32 v22, v4, 14, v24\nv_lshlrev_b32 v1, %d, v1\nv_lshl_add_u32 v1, v4, 4, v1" % (7 if fl else 6))
    A(f"s_lshl_b32 s20, s4, 15\ns_lshl_b32 s21, s3, 13\ns_add_u32 s20, s20, s21\ns_add_u32 s20, s20, {WS_A}\nv_add_u32 v1, s20, v{2 if lin else 1}")
    A(f"v_add_u32 v5, {(WS_AL-WS_A) if loc else 0}, v1\nv_cndmask_b32 v6, v1, v5, s[28:29]\nv_cndmask_b32 v7, v1, v5, s[30:31]\nv_add_u32 v8, 4096, v6\nv_add_u32 v9, 4096, v7")
    A("s_lshl_b32 s20, s3, 8\nv_lshl_add_u32 v21, v0, 2, s20")
    if pi is None: A(f"s_lshl_b32 s20, s4, 11\ns_lshl_b32 s21, s67, 8\ns_add_u32 s20, s20, s21\ns_add_u32 s20, s20, {WS_B}\ns_lshl_b32 s21, s3, 16\ns_add_u32 s20, s20, s21\nv_add_u32 v22, s20, v22")
    else:
        A(f"s_and_b32 s20, s4, 3\ns_lshl_b32 s20, s20, 11\ns_lshr_b32 s21, s4, 2\ns_lshl_b32 s21, s21, 15\ns_add_u32 s20, s20, s21\ns_lshl_b32 s21, s67, 8\ns_add_u32 s20, s20, s21\ns_add_u32 s20, s20, {WS_B}")
        A("v_bfe_u32 v22, v0, 4, 1\nv_lshl_add_u32 v22, v22, 16, v24\nv_lshrrev_b32 v25, 5, v0\nv_lshl_add_u32 v22, v25, 13, v22\nv_add_u32 v22, s20, v22\nv_xor_b32 v22, s71, v22")
    A("s_waitcnt lgkmcnt(0)")
    stamp(5)
    AR = lambda c, s_: 40 + 16 * s_ + 4 * c
    D = lambda s_, nt: 72 + 16 * s_ + 4 * nt
    def lda(s_):
        for c in range(4): A(f"global_load_dwordx4 {v4(AR(c,s_))}, v{6+s_+(0 if c<2 else 2)}, {WS} offset:{(64*(c&1)+2048*s_) if fl else (2048*(c&1)+1024*s_)} {lpol}")
    def mm(s_, other_done):
        wr = 12 + 4 * s_
        def fin(nt):
            d = D(s_, nt)
            r = [f"v_pk_mul_f32 {v2(d)}, {v2(d)}, {v2(wr)}", f"v_pk_fma_f32 {v2(d)}, {v2(d+2)}, {v2(wr+2)}, {v2(d)}", f"v_add_f32 v{d}, v{d}, v{d+1}"]
            if other_done: r.append(f"v_add_f32 v{D(0,nt)}, v{D(0,nt)}, v{D(1,nt)}")
            return r
        for c in range(4):
            for nt in (0, 2, 1, 3):
                d = D(s_, nt)
                A(f"v_mfma_f32_16x16x32_bf16 {v4(d)}, {v4(AR(c,s_))}, {v4(104+16*c+4*nt)}, {'0' if c==0 else v4(d)}")
        for grp in zip(fin(0), fin(2), fin(1), fin(3)):
            for l in grp: A(l)
        if other_done: A("v_permlane32_swap_b32 v72, v80\nv_add_f32 v72, v72, v80")
    if dry:
        A("s_mov_b64 s[80:81], 0\ns_mov_b64 s[32:33], 0\ns_mov_b64 s[34:35], 0\ns_mov_b32 s84, 0\ns_mov_b64 exec, 0\ns_branch L_pb0")
        A("L_bdr:\ns_cmp_eq_u32 s84, 0\ns_mov_b32 s84, 1\ns_cbranch_scc1 L_pb1\ns_mov_b64 exec, -1")
    A("s_mov_b64 s[80:81], -1")
    if bdefer:
        if bdefer <= 8: lspin("sd", L_CV, bdefer, 10, 11, 1)
        else: lspin("sd", L_FP, 1, 10, 11, 1)
        A("s_setprio 1"); wo_issue(bearly, 16); lda(0); lda(1); A("s_setprio 3"); wo_finish(8)
        stamp(4)
        A(f"s_mov_b32 s7, {spin}\ns_branch L_pa2")
    if atrig: lspin("sa", L_FO + (4 if atrig > 4 else 0), atrig - 4 if atrig > 4 else atrig, 10, 11, 2)
    A(f"s_mov_b32 s7, {spin}\ns_mov_b64 s[32:33], -1\ns_mov_b64 s[34:35], -1")
    A("L_pa:")
    A("s_mov_b64 exec, s[32:33]"); lda(0)
    A("s_mov_b64 exec, s[34:35]"); lda(1)
    A("s_mov_b64 exec, -1")
    A("L_pa2:")
    A("s_waitcnt vmcnt(4)")
    chk_sent(range(40, 56), 23); A("s_mov_b64 s[32:33], vcc")
    A("s_waitcnt vmcnt(0)")
    chk_sent(range(56, 72), 23); A("s_mov_b64 s[34:35], vcc")
    A("s_cbranch_vccz L_pa1\ns_cmp_eq_u64 s[32:33], 0\ns_cbranch_scc1 L_pa0")
    if tsleep: A(f"s_sleep {tsleep}")
    if bhold:
        A("s_mov_b32 s85, s7"); lspin("sy", L_FO + 4 * (bhold - 1), 1, 10, 11, 2); A("s_mov_b32 s7, s85")
    A("s_sub_u32 s7, s7, 1\ns_cbranch_scc0 L_pa")
    for first in (0, 1):
        sec = 1 - first
        A(f"L_pa{first}:")
        mk = sp(32 + 2 * sec)
        A(f"s_cmp_eq_u64 {mk}, 0\ns_cbranch_scc1 L_pb{first}")
        A(f"s_mov_b64 exec, {mk}"); lda(sec); A("s_mov_b64 exec, -1")
        A(f"L_pb{first}:")
        mm(first, False)
        A(f"s_mov_b64 exec, {mk}\ns_cbranch_execz L_pd{first}")
        for _ in range(pd - 1): lda(sec)
        A(f"L_pc{first}:")
        A(f"s_waitcnt vmcnt({4*(pd-1)})")
        chk_sent(range(40 + 16 * sec, 56 + 16 * sec), 23)
        A(f"s_cbranch_vccz L_pd{first}\ns_mov_b64 exec, vcc")
        lda(sec)
        A(f"s_sub_u32 s7, s7, 1\ns_cbranch_scc0 L_pc{first}\ns_waitcnt vmcnt(0)")
        A(f"L_pd{first}:")
        A("s_mov_b64 exec, s[80:81]")
        stamp(6)
        mm(sec, True)
        if first == 0: A("s_branch L_pe")
    A("L_pe:\ns_nop 0")
    A("v_permlane32_swap_b32 v76, v84\nv_add_f32 v76, v76, v84")
    A("v_permlane16_swap_b32 v72, v76\nv_add_f32 v72, v72, v76")
    A(f"ds_write_b32 v21, v72 offset:{L_RED}")
    A("s_waitcnt lgkmcnt(0)")
    if dry: A("s_cbranch_execz L_bnb")
    A("s_barrier")
    A(f"s_cmp_ge_u32 s3, {2 if R == 8 else 1}\ns_cbranch_scc1 L_done")
    A("L_bnb:")
    for w in range(4): A(f"ds_read_b128 {v4(88+4*w)}, v24 offset:{L_RED+256*w}")
    assert R in (4, 8)
    A("s_waitcnt lgkmcnt(2)\nv_pk_add_f32 v[88:89], v[88:89], v[92:93]\nv_pk_add_f32 v[90:91], v[90:91], v[94:95]")
    A("s_waitcnt lgkmcnt(0)\nv_pk_add_f32 v[96:97], v[96:97], v[100:101]\nv_pk_add_f32 v[98:99], v[98:99], v[102:103]")
    A("v_pk_add_f32 v[88:89], v[88:89], v[96:97]\nv_pk_add_f32 v[90:91], v[90:91], v[98:99]")
    if dry: A("s_cbranch_execz L_bdr")
    A(f"global_store_dwordx4 v22, v[88:91], {WS} sc1")
    stamp(7)
    end_wave()
    A("L_tc:")
    A("s_mov_b32 s26, s67")
    srd(8, P_W1, 512 * 3584); srd(12, P_W2, 1792 * 1024)
    A("v_lshrrev_b32 v23, 4, v0\nv_lshlrev_b32 v23, 4, v23")
    A("v_lshrrev_b32 v1, 2, v0\ns_mov_b32 s20, 3584\nv_mul_lo_u32 v1, v1, s20\nv_and_b32 v12, 3, v0\nv_lshl_add_u32 v1, v12, 4, v1")
    A(f"s_mul_i32 s20, s3, {128*3584}\ns_lshl_b32 s21, s26, 6\ns_add_u32 s20, s20, s21")
    A("v_lshlrev_b32 v18, 6, v23\nv_and_b32 v13, 15, v0\nv_lshl_add_u32 v18, v13, 4, v18")
    A("s_lshl_b32 s27, s26, 15\ns_lshl_b32 s21, s3, 8\ns_add_u32 s27, s27, s21")
    A(f"s_lshl_b32 s23, s3, 14\ns_add_u32 s23, s23, {L_WT}")
    if not w1early: dma([f"buffer_load_dwordx4 v1, s[8:11], s20 offen {w1pol} lds\ns_add_u32 s20, s20, {16*3584}" for i in range(8)], 0)
    def w2load():
        A("s_add_u32 s23, s23, 8192")
        dma([f"buffer_load_dwordx4 v18, s[12:15], s27 offen {wpol} lds\ns_add_u32 s27, s27, 4096" for i in range(8)], 0)
    A("v_lshrrev_b32 v12, 4, v0\nv_bfe_u32 v13, v0, 2, 2\nv_and_b32 v14, 3, v0\nv_lshl_add_u32 v14, v14, 3, s23")
    A("v_lshl_add_u32 v1, v12, 9, v14\nv_lshl_add_u32 v1, v13, 6, v1")
    A("v_lshl_add_u32 v19, v12, 10, v14\nv_lshl_add_u32 v19, v13, 8, v19")
    if not w2late: w2load()
    A("v_and_b32 v20, 31, v0\nv_lshlrev_b32 v20, 3, v20\nv_lshrrev_b32 v21, 5, v0\nv_lshl_add_u32 v20, v21, 2, v20")
    A("s_lshl_b32 s20, s3, 8\nv_add_u32 v20, s20, v20")
    A(f"global_load_dword v22, v20, {sp(P_X)}\nglobal_load_dwordx4 v[28:31], v2, {sp(P_X)}")
    A(f"v_lshlrev_b32 v21, 1, v20\nv_add_u32 v21, {WS_MOD}, v21\nv_add_u32 v24, 4096, v21")
    assert not mlate
    poll("pm", lambda: A(f"global_load_dwordx2 v[40:41], v21, {WS} sc1\nglobal_load_dwordx2 v[42:43], v21, {WS} offset:2048 sc1\nglobal_load_dwordx2 v[44:45], v24, {WS} sc1\n" + VL),
         lambda: chk_tags([41, 43, 45, 39], 46), 2 if mlate else 16)
    tally()
    for c in range(4):
        for mt in range(2):
            for hi in range(2):
                A(f"ds_read_b64_tr_b16 {v2(104+8*c+4*mt+2*hi)}, v1 offset:{(32*c+4*hi)*64+mt*32}")
        if c & 1: A("s_waitcnt lgkmcnt(0)")
    unpack(4, [22], 1)
    unpack(48, [28, 29, 30, 31], 4)
    A("v_pk_add_f32 v[48:49], v[48:49], v[50:51]\nv_pk_add_f32 v[52:53], v[52:53], v[54:55]\nv_pk_add_f32 v[48:49], v[48:49], v[52:53]\nv_add_f32 v48, v48, v49")
    wave_reduce("v_add_f32", 48, 49)
    A(f"v_mul_f32 v48, {f2x(1/512)}, v48\nv_sub_f32 v4, v4, v48\nv_sub_f32 v5, v5, v48")
    def w2tr():
        for tau in range(8):
            for hi in range(2):
                A(f"ds_read_b64_tr_b16 {v2(136+4*tau+2*hi)}, v19 offset:{8192+hi*4096+tau*32}")
            if tau % 4 == 3: A("s_waitcnt lgkmcnt(0)")
    if mlate:
        lspin("sv0", L_CV, 4, 10, 11, 16); lspin("sv", L_FP, 1, 10, 11, 2); w2load(); A("s_waitcnt vmcnt(0)"); w2tr(); stamp(4)
    unpack(6, [40, 44], 2)
    A("v_add_f32 v8, 1.0, v8\nv_add_f32 v9, 1.0, v9\nv_cvt_pk_bf16_f32 v44, v8, v9")
    unpack(8, [44], 1)
    A(f"ds_write_b32 v20, v44 offset:{L_U}\nds_write_b32 v20, v42 offset:{L_U+1024}")
    A("v_add_u32 v21, s20, v23\nv_and_b32 v22, 1, v0\nv_lshl_add_u32 v22, v22, 10, v21")
    for c in range(4): A(f"ds_read_b128 {v4(48+4*c)}, v22 offset:{L_U+64*c}")
    A("s_waitcnt lgkmcnt(0)")
    for c in range(4):
        for mt in range(2):
            A(f"v_mfma_f32_16x16x32_bf16 {v4(24+4*mt)}, {v4(104+8*c+4*mt)}, {v4(48+4*c)}, {'0' if c==0 else v4(24+4*mt)}")
    A("s_mov_b32 exec_lo, 0x00030003\ns_mov_b32 exec_hi, 0x00030003")
    A(f"ds_write_b128 v22, v[24:27] offset:{L_GS}\nds_write_b128 v22, v[28:31] offset:{L_GS+64}")
    A("s_mov_b64 exec, 1\nv_mov_b32 v33, 1")
    A(f"ds_add_u32 v10, v33 offset:{L_CP}")
    A("s_mov_b64 exec, -1")
    A("v_and_b32 v1, 31, v0\nv_lshlrev_b32 v1, 4, v1\nv_lshrrev_b32 v16, 5, v0\nv_lshl_add_u32 v1, v16, 11, v1")
    def bcopy():
        A(f"s_bfe_u32 s20, s4, 0x10001\ns_lshl_b32 s20, s20, 16\ns_lshr_b32 s21, s4, 2\ns_lshl_b32 s21, s21, 13\ns_xor_b32 s21, s21, s71\ns_add_u32 s20, s20, s21\ns_add_u32 s20, s20, {WS_B}")
    if pi is None:
        A(("s_lshr_b32 s21, s4, 1" if rx else f"s_and_b32 s21, {'s4' if R == 8 else 's26'}, {R-1}") + f"\ns_lshl_b32 s21, s21, 14\ns_lshl_b32 s20, s3, 9\ns_add_u32 s20, s20, s21\ns_add_u32 s20, s20, {WS_B}\nv_add_u32 v1, s20, v1")
        A("v_add_u32 v12, 4096, v1\nv_add_u32 v13, 8192, v1\nv_add_u32 v14, 12288, v1")
    else:
        bcopy()
        A("s_lshl_b32 s21, s3, 9\ns_add_u32 s20, s20, s21\nv_add_u32 v1, s20, v1\nv_add_u32 v12, 4096, v1\nv_add_u32 v13, 32768, v1\nv_add_u32 v14, 36864, v1")
    A(f"s_lshl_b32 s20, s3, 8\nv_lshl_add_u32 v22, v16, 2, s20")
    A("v_and_b32 v33, 3, v0\nv_lshlrev_b32 v33, 8, v33\nv_bfe_u32 v32, v0, 3, 1\nv_lshl_add_u32 v32, v32, 6, v33\nv_add_u32 v32, v32, v23")
    A(f"s_mov_b32 s22, {f2x(1/512)}\nv_mov_b32 v34, {f2x(1e-5)}")
    lspin("sp", L_CP, 4, 10, 11, 0 if mlate else 4, lambda: A(f"ds_read_b128 v[24:27], v32 offset:{L_GS}\nds_read_b128 v[28:31], v32 offset:{L_GS+1024}"))
    for qp in ("[1,0,3,2]", "[2,3,0,1]"):
        for i in range(8): A(f"v_add_f32_dpp v{24+i}, v{24+i}, v{24+i} quad_perm:{qp} {DPPF}")
    if dry:
        A("s_mov_b64 s[80:81], 0\ns_mov_b64 s[82:83], 0\ns_mov_b64 exec, 0\ns_branch L_pbd\nL_cdr:\ns_mov_b64 exec, -1")
    A("s_mov_b64 s[80:81], -1\ns_mov_b32 s82, 0x00010001\ns_mov_b32 s83, 0x00010001")
    if not mlate:
        stamp(4)
        lspin("sv0", L_CV, 4, 10, 11, 16); lspin("sv", L_FP, 1, 10, 11, 2)
        if w2late: w2load()
    cs = 13 if cpad else 12
    if pi is None: A(f"s_lshl_b32 s20, s3, {cs+3}\ns_lshl_b32 s21, s26, {cs-6}\ns_add_u32 s20, s20, s21\ns_add_u32 s20, s20, {WS_C}")
    else:
        if cpad: A(f"s_and_b32 s20, s3, 1\ns_lshl_b32 s20, s20, 18\ns_lshr_b32 s21, s3, 1\ns_lshl_b32 s21, s21, 13\ns_xor_b32 s21, s21, s75\ns_add_u32 s20, s20, s21\ns_lshl_b32 s21, s26, 7\ns_add_u32 s20, s20, s21\ns_add_u32 s20, s20, {WS_C}")
        else: A(f"s_and_b32 s20, s3, 1\ns_lshl_b32 s20, s20, 17\ns_lshr_b32 s21, s3, 1\ns_lshl_b32 s21, s21, 13\ns_xor_b32 s21, s21, s75\ns_add_u32 s20, s20, s21\ns_lshl_b32 s21, s26, 6\ns_add_u32 s20, s20, s21\ns_add_u32 s20, s20, {WS_C}")
        cs = 15
    if cpad: A(f"v_bfe_u32 v35, v0, 2, 3\nv_lshlrev_b32 v35, {cs}, v35\nv_and_b32 v36, 3, v0\nv_lshl_add_u32 v35, v36, 4, v35\nv_add_u32 v35, s20, v35")
    else: A("v_bfe_u32 v35, v0, 3, 2\nv_lshlrev_b32 v35, 15, v35\nv_bfe_u32 v36, v0, 2, 1\nv_lshl_add_u32 v35, v36, 12, v35\nv_and_b32 v36, 3, v0\nv_lshl_add_u32 v35, v36, 4, v35\nv_add_u32 v35, s20, v35")
    if not mlate: A("s_waitcnt vmcnt(0)"); w2tr()
    stamp(5)
    G = 40; Hh = 88
    def gather4(name, base, addr, tmp, sleep):
        if g4:
            A(f"s_mov_b32 s7, {spin}")
            for i in range(4): A(f"global_load_dwordx4 {v4(base+4*i)}, {addr(i)} sc1\ns_mov_b64 {sp(28+2*i)}, -1")
            A(f"L_{name}t:\ns_waitcnt vmcnt(0)\ns_mov_b32 s21, 0")
            for i in range(4):
                A(f"s_mov_b64 exec, {sp(28+2*i)}\ns_cbranch_execz L_{name}s{i}")
                A(f"v_max3_u32 v{tmp}, v{base+4*i}, v{base+4*i+1}, v{base+4*i+2}\nv_max_u32 v{tmp}, v{tmp}, v{base+4*i+3}\nv_cmp_eq_u32 vcc, -1, v{tmp}")
                A(f"s_mov_b64 {sp(28+2*i)}, vcc\ns_cbranch_vccz L_{name}s{i}\ns_mov_b64 exec, vcc\nglobal_load_dwordx4 {v4(base+4*i)}, {addr(i)} sc1\ns_mov_b32 s21, 1")
                A(f"L_{name}s{i}:")
            A(f"s_mov_b64 exec, -1\ns_cmp_eq_u32 s21, 0\ns_cbranch_scc1 L_{name}d\ns_sub_u32 s7, s7, 1\ns_cbranch_scc0 L_{name}t\ns_waitcnt vmcnt(0)")
            A(f"L_{name}d:")
            return
        A(f"s_mov_b32 s7, {spin}")
        for _ in range(pd):
            for i in range(4): A(f"global_load_dwordx4 {v4(base+4*i)}, {addr(i)} sc1")
        A(f"L_{name}t:")
        A(f"s_waitcnt vmcnt({4*(pd-1)})")
        for i in range(4): A(f"v_max3_u32 v{tmp+i}, v{base+4*i}, v{base+4*i+1}, v{base+4*i+2}")
        for i in range(4): A(f"v_max_u32 v{tmp+i}, v{tmp+i}, v{base+4*i+3}")
        A(f"v_max3_u32 v{tmp+4}, v{tmp}, v{tmp+1}, v{tmp+2}\nv_max_u32 v{tmp+4}, v{tmp+4}, v{tmp+3}\nv_cmp_eq_u32 vcc, -1, v{tmp+4}\ns_cbranch_vccz L_{name}d")
        for i in range(4): A(f"v_cmp_eq_u32 {sp(28+2*i)}, -1, v{tmp+i}")
        if sleep: A(f"s_sleep {sleep}")
        for i in range(4):
            A(f"s_or_b64 exec, {sp(28+2*i)}, 1\nglobal_load_dwordx4 {v4(base+4*i)}, {addr(i)} sc1")
        A(f"s_mov_b64 exec, -1\ns_sub_u32 s7, s7, 1\ns_cbranch_scc0 L_{name}t")
        A(f"L_{name}d:")
    gather4("pb", Hh, lambda i: f"v{1 if i==0 else 11+i}, {WS}", 56, csleep)
    stamp(6)
    A(f"v_pk_add_f32 {v2(G)}, {v2(Hh)}, {v2(Hh+4)}\nv_pk_add_f32 {v2(G+2)}, {v2(Hh+2)}, {v2(Hh+6)}\nv_pk_add_f32 {v2(G+8)}, {v2(Hh+8)}, {v2(Hh+12)}\nv_pk_add_f32 {v2(G+10)}, {v2(Hh+10)}, {v2(Hh+14)}")
    A(f"v_pk_add_f32 {v2(G)}, {v2(G)}, {v2(G+8)}\nv_pk_add_f32 {v2(G+2)}, {v2(G+2)}, {v2(G+10)}")
    A(f"v_permlane32_swap_b32 v{G}, v{G+2}\nv_permlane32_swap_b32 v{G+1}, v{G+3}")
    A(f"v_pk_add_f32 {v2(G)}, {v2(G)}, {v2(G+2)}")
    A(f"v_pk_fma_f32 v[4:5], {v2(G)}, v[6:7], v[4:5]")
    A("v_pk_mul_f32 v[6:7], v[4:5], v[8:9]\nv_cvt_pk_bf16_f32 v6, v6, v7")
    A(f"ds_write_b32 v20, v6 offset:{L_U}")
    for c in range(4): A(f"ds_read_b128 {v4(44+4*c)}, v21 offset:{L_U+64*c}")
    A("v_add_f32 v16, v4, v5\nv_mul_f32 v17, v4, v4\nv_fmac_f32 v17, v5, v5")
    A("v_permlane32_swap_b32 v16, v17\nv_add_f32 v16, v16, v17")
    xrow("v_add_f32", 16, 17, 16)
    steps = ["row_ror:8", "row_ror:4", "row_ror:2", "row_ror:1"]
    for c in range(4):
        A(f"s_waitcnt lgkmcnt({3-c})")
        for mt in range(2):
            A(f"v_mfma_f32_16x16x32_bf16 {v4(60+4*mt)}, {v4(104+8*c+4*mt)}, {v4(44+4*c)}, {'0' if c==0 else v4(60+4*mt)}")
        inrow("v_add_f32", 16, [steps[c]])
    A("s_mov_b64 exec, s[82:83]")
    A(f"ds_write_b32 v22, v16 offset:{L_RED+128}")
    A(f"ds_write_b128 v21, v[60:63] offset:{L_RED}\nds_write_b128 v21, v[64:67] offset:{L_RED+64}")
    A("s_mov_b64 exec, s[80:81]")
    A("s_waitcnt lgkmcnt(0)")
    if dry: A("s_cbranch_execz L_cnb")
    A("s_barrier\nL_cnb:")
    A(f"ds_read_b64 v[12:13], v33 offset:{L_RED+128}\nds_read_b128 v[40:43], v32 offset:{L_RED}")
    A("s_waitcnt lgkmcnt(0)")
    for qp in ("[1,0,3,2]", "[2,3,0,1]"):
        for r in (12, 13, 40, 41, 42, 43): A(f"v_add_f32_dpp v{r}, v{r}, v{r} quad_perm:{qp} {DPPF}")
    A("v_mul_f32 v12, s22, v12\nv_fma_f32 v14, v13, s22, v34\nv_fma_f32 v14, -v12, v12, v14\nv_max_f32 v14, v14, v34\nv_rsq_f32 v14, v14")
    for q in range(2): A(f"v_pk_fma_f32 {v2(40+2*q)}, {v2(24+2*q)}, v[12:13], {v2(40+2*q)} op_sel_hi:[1,0,1] neg_lo:[0,1,0] neg_hi:[0,1,0]")
    for q in range(2): A(f"v_pk_fma_f32 {v2(40+2*q)}, {v2(40+2*q)}, v[14:15], {v2(28+2*q)} op_sel_hi:[1,0,1]")
    for q in range(2): A(f"v_cvt_pk_bf16_f32 v{48+q}, v{40+2*q}, v{41+2*q}")
    for q in range(2): A(f"v_pk_max_i16 v{48+q}, v{48+q}, 0")
    for q in range(2): A(f"v_mov_b32_dpp v{50+q}, v{48+q} row_shl:8 {DPPF} bound_ctrl:0")
    for tau in (0, 2, 4, 6, 1, 3, 5, 7): A(f"v_mfma_f32_16x16x32_bf16 {v4(56+4*tau)}, v[48:51], {v4(136+4*tau)}, 0")
    for j in (1, 2, 3): A(f"v_mov_b32 v{56+j}, v{56+8*j}")
    for j in range(4): A(f"v_mov_b32_dpp v{56+j}, v{60+8*j} quad_perm:[0,1,2,3] row_mask:0x2 bank_mask:0xf")
    if dry: A("s_cbranch_execz L_cdr")
    A("s_mov_b32 exec_hi, 0")
    A(f"global_store_dwordx4 v35, v[56:59], {WS} sc1")
    stamp(7)
    end_wave()
    A("L_tf:")
    prb("cs")
    A("s_mov_b32 s26, s67\ns_lshr_b32 s20, s26, 3\ns_lshl_b32 s20, s20, 7\ns_and_b32 s21, s26, 7\ns_lshl_b32 s21, s21, 2\ns_add_u32 s20, s20, s21")
    A("v_and_b32 v4, 3, v0\nv_lshrrev_b32 v5, 4, v0\nv_lshl_add_u32 v4, v5, 5, v4\nv_add_u32 v4, s20, v4\nv_lshlrev_b32 v5, 1, v4")
    A(f"global_load_ushort v8, v5, {sp(P_X)}")
    if tw: A(f"global_load_ushort v33, v5, {sp(P_OUT)}")
    A(f"v_lshrrev_b32 v6, 1, v4\nv_lshlrev_b32 v6, 3, v6\nv_add_u32 v6, {WS_MOD}, v6\nv_add_u32 v7, 6144, v6")
    if mlate: lspin("sf0", L_FP, 1, 10, 11, 16)
    poll("pg", lambda: A(f"global_load_dwordx2 v[12:13], v6, {WS} sc1\nglobal_load_dwordx2 v[14:15], v7, {WS} sc1\n" + VL),
         lambda: chk_tags([13, 15, 39], 16), 4 if mlate else 16)
    tally()
    A("v_lshlrev_b32 v8, 16, v8")
    A("v_and_b32 v16, 1, v4\nv_cmp_eq_u32 vcc, 0, v16")
    A("v_lshlrev_b32 v16, 16, v12\nv_and_b32 v17, 0xffff0000, v12\nv_cndmask_b32 v9, v17, v16, vcc")
    A("v_lshlrev_b32 v16, 16, v14\nv_and_b32 v17, 0xffff0000, v14\nv_cndmask_b32 v12, v17, v16, vcc")
    if pi is None:
        A(f"v_bfe_u32 v6, v0, 2, 2\nv_lshlrev_b32 v6, 12, v6\nv_lshl_add_u32 v6, v4, 2, v6\nv_add_u32 v6, {WS_B}, v6")
        if R == 8: A("s_lshl_b32 s20, s4, 14\nv_add_u32 v6, s20, v6")
        if rx: A("s_lshr_b32 s20, s4, 1\ns_lshl_b32 s20, s20, 14\nv_add_u32 v6, s20, v6")
        if cpad: A(f"s_lshl_b32 s20, s26, 13\ns_add_u32 s20, s20, {WS_C}\nv_lshrrev_b32 v7, 2, v0\nv_lshl_add_u32 v7, v7, 6, v2\nv_add_u32 v7, s20, v7\nv_add_u32 v32, 4096, v7")
        else: A(f"s_lshl_b32 s20, s26, 12\ns_add_u32 s20, s20, {WS_C}\nv_add_u32 v7, s20, v2")
    else:
        bcopy()
        A("v_bfe_u32 v6, v0, 2, 1\nv_lshlrev_b32 v6, 12, v6\nv_bfe_u32 v7, v0, 3, 1\nv_lshl_add_u32 v6, v7, 15, v6\nv_lshl_add_u32 v6, v4, 2, v6\nv_add_u32 v6, s20, v6")
        if cpad: A(f"s_and_b32 s20, s26, 15\ns_lshl_b32 s20, s20, 15\ns_lshr_b32 s21, s26, 4\ns_lshl_b32 s21, s21, 13\ns_xor_b32 s21, s21, s75\ns_add_u32 s20, s20, s21\ns_add_u32 s20, s20, {WS_C}\nv_lshrrev_b32 v7, 2, v0\nv_lshl_add_u32 v7, v7, 6, v2\nv_add_u32 v7, s20, v7\nv_add_u32 v32, 4096, v7")
        else: A(f"s_bfe_u32 s20, s26, 0x30001\ns_lshl_b32 s20, s20, 15\ns_and_b32 s21, s26, 1\ns_lshl_b32 s21, s21, 12\ns_add_u32 s20, s20, s21\ns_lshr_b32 s21, s26, 4\ns_lshl_b32 s21, s21, 13\ns_xor_b32 s21, s21, s75\ns_add_u32 s20, s20, s21\ns_add_u32 s20, s20, {WS_C}\nv_add_u32 v7, s20, v2")
    if dry: A("s_mov_b64 exec, 0\ns_branch L_fd\nL_fdr:\ns_mov_b64 exec, -1")
    lspin("sf", L_FP, 1, 10, 11, 16 if calm else 4)
    prb("fp")
    poll("pxb", lambda: A(f"global_load_dword v13, v6, {WS} sc1\nglobal_load_dword v14, v6, {WS} offset:2048 sc1"), lambda: chk_sent([13, 14], 15), xsleep)
    A("v_add_f32 v13, v13, v14")
    inrow("v_add_f32", 13, ["row_ror:8", "row_ror:4"])
    A("v_fma_f32 v8, v9, v13, v8")
    prb("b")
    stamp(6)
    if fdelay: A(f"s_sleep {fdelay}")
    gather4("pc", 40, lambda i: f"v{(7 if i<2 else 32) if cpad else 7}, {WS} offset:{2048*(i&1) if cpad else 1024*i}", 56, fsleep)
    A("L_fd:")
    stamp(7)
    A("v_pk_add_f32 v[16:17], v[40:41], v[44:45]\nv_pk_add_f32 v[18:19], v[42:43], v[46:47]\nv_pk_add_f32 v[24:25], v[48:49], v[52:53]\nv_pk_add_f32 v[26:27], v[50:51], v[54:55]")
    A("v_pk_add_f32 v[16:17], v[16:17], v[24:25]\nv_pk_add_f32 v[18:19], v[18:19], v[26:27]")
    A("v_permlane32_swap_b32 v16, v18\nv_permlane32_swap_b32 v17, v19\nv_pk_add_f32 v[16:17], v[16:17], v[18:19]")
    A("v_permlane16_swap_b32 v16, v17\nv_add_f32 v16, v16, v17")
    inrow("v_add_f32", 16, ["row_ror:8", "row_ror:4"])
    A("v_fma_f32 v16, v12, v16, v8\nv_cvt_pk_bf16_f32 v16, v16, v16")
    if dry: A("s_cbranch_execz L_fdr")
    A("s_mov_b32 exec_lo, 0x000f000f\ns_mov_b32 exec_hi, 0x000f000f")
    A(f"global_store_short v5, v16, {sp(P_OUT)} {osc}")
    A("s_cmp_lg_u32 s26, 0\ns_cbranch_scc1 L_tfe")
    if dbgp:
        A(f"s_mov_b64 exec, 1\nv_mov_b32 v20, s{P_WS}\nv_mov_b32 v21, s{P_WS+1}\nv_mov_b32 v22, s71\nv_mov_b32 v23, s{P_K}\nglobal_store_dwordx4 v10, v[20:23], {sp(P_DBG)}")
    A("s_mov_b64 exec, 1\nv_mov_b32 v18, s6")
    A(f"global_store_dword v10, v18, {WS} {osc}")
    if amp2:
        A(f"s_memrealtime s[96:97]\ns_waitcnt lgkmcnt(0)\ns_sub_u32 s94, s94, s92\ns_lshl_b32 s94, s94, {amp2}\nL_fz:\ns_memrealtime s[98:99]\ns_waitcnt lgkmcnt(0)\ns_sub_u32 s98, s98, s96\ns_cmp_lt_u32 s98, s94\ns_cbranch_scc1 L_fz")
    if amp:
        A(f"s_memrealtime s[96:97]\ns_waitcnt lgkmcnt(0)\ns_sub_u32 s94, s96, s94\ns_lshl_b32 s94, s94, {amp}\nL_fy:\ns_memrealtime s[98:99]\ns_waitcnt lgkmcnt(0)\ns_sub_u32 s98, s98, s96\ns_cmp_lt_u32 s98, s94\ns_cbranch_scc1 L_fy")
    if fixend:
        prb("end")
        A(f"L_fx:\ns_memrealtime s[98:99]\ns_waitcnt lgkmcnt(0)\ns_sub_u32 s98, s98, {'s94' if probe else 's96'}\ns_cmp_lt_u32 s98, {fixend}\ns_cbranch_scc1 L_fx")
    A("L_tfe:")
    stamp(4)
    end_wave()
    if stamps:
        A("L_stampout:")
        if st0: A("s_waitcnt lgkmcnt(0)\nv_writelane_b32 v3, s90, 0\ns_cmp_lt_u32 s3, 4\ns_cbranch_scc1 L_so9\nv_writelane_b32 v3, s92, 1\nv_writelane_b32 v3, s94, 2\nL_so9:")
        if stamps == 2:
            A("s_cmp_lg_u32 s2, 32\ns_cbranch_scc1 L_exit\ns_and_b32 s20, s3, 11\ns_cbranch_scc1 L_exit")
            A("s_mov_b64 exec, 0xff\ns_lshl_b32 s20, s3, 3\nv_lshl_add_u32 v1, v0, 2, s20")
            A(f"global_store_dword v1, v3, {sp(P_DBG)}\ns_endpgm")
        A("s_mov_b64 exec, 0xff")
        A("s_mul_i32 s20, s2, 12\ns_add_u32 s20, s20, s3\ns_lshl_b32 s20, s20, 5")
        A(f"s_add_u32 s20, s20, {WS_STAMP}")
        A("v_lshl_add_u32 v1, v0, 2, s20")
        A(f"global_store_dword v1, v3, {WS}")
    A("L_exit:\ns_endpgm")
    A(".p2align 6\n.type L_tab,@object\nL_tab:")
    for wg in range(256):
        r = roles[(xp[wg & 7] if xp else wg & 7), wg >> 3]; skip = T - r['n']
        assert skip < 8, (wg, r)
        A(f".long {(r['pre'] - skip + 16) | skip << 12 | r['e'] << 15 | r['ei'] << 18 | r['l'] << 23 | r['li'] << 25:#x}")
    A("L_endcode:")
    A('.section .rodata,"a"\n.p2align 6')
    A(f".amdhsa_kernel {NAME}")
    for l in ["next_free_vgpr 168", "next_free_sgpr 102", "accum_offset 168", "group_segment_fixed_size 0", "kernarg_size 104",
              "user_sgpr_count 2", "user_sgpr_kernarg_segment_ptr 1", "system_sgpr_workgroup_id_x 1"]:
        A("  .amdhsa_" + l)
    A(".end_amdhsa_kernel")
    txt = A.finish()
    for lab, cm in NOTES.items():
        assert ("\n" + lab + ":\n") in txt, lab
        txt = txt.replace("\n" + lab + ":\n", "\n" + "".join("; " + c + "\n" for c in cm.split("|")) + lab + ":\n")
    return txt

if __name__ == "__main__":
    out = sys.argv[1]; kw = {}
    for a in sys.argv[2:]:
        k, v = a.split("=", 1)
        try: v = ast.literal_eval(v)
        except Exception: pass
        kw[k] = v
    open(out, "w").write(gen(**kw))
    import json
    roles, T = make_plan(kw.get('plan', 'A'), **{k: v for k, v in kw.items() if k in ('cH','cQ','cM','cB','cC','T','c3','Fx','adj')})
    json.dump([[roles[wg & 7, wg >> 3][k] for k in ('e', 'l', 'n')] for wg in range(256)], open(out + ".roles", "w"))
```

```python
import sys, struct, ast
from asmlib import Asm
NAME = "adaLN_cond__gqa_block_cached__dense_activation_relu__decode_kernel"
def f2x(f): return "0x%08x" % struct.unpack("<I", struct.pack("<f", f))[0]

WS_P = 0x180000; WS_PV = 0x15000; WS_XB = 0x14000; WS_QL = 0x10000; WS_H = 0x18000; WS_MOD = 0x4000; WS_Q = 0x8000; WS_ST = 0xC000
WS_AL = 0x140000; WS_A = 0x100000; WS_B = 0x40000; WS_C = 0x80000
WS_STAMP = 0x8000000
L_CG = 0; L_FQ = 4; L_CS = 8; L_CT = 68; L_CP = 16; L_FK = 20; L_CV = 24; L_CW = 28; L_FO = 32; L_MK = 64; L_FP = 12
L_ST = 256; L_Q = 1024; L_GP = 2048; L_X = 3072; L_RED = 4096; L_U = 5120; L_GS = 8192
L_OP = 16384; L_WT = 32768; LDS_SIZE = 98304
DPPF = "row_mask:0xf bank_mask:0xf"
P_X, P_K, P_V, P_WQ, P_WO, P_BX, P_W1, P_W2, P_C, P_WM, P_OUT, P_DBG, P_WS = [36 + 2 * i for i in range(13)]
def sp(n): return f"s[{n}:{n+1}]"
def v4(n): return f"v[{n}:{n+3}]"
def v2(n): return f"v[{n}:{n+1}]"
WS = sp(P_WS)

DOC = '''; ---------------------------------------------------------------------------------------------
; One persistent launch, 256 workgroups (one per CU) x 12 waves.  x = wg&7 = kv head, a = wg>>3 = key split.
;     max, V tiles -> v_perm transpose -> MFMA, workgroup partial summed through LDS and published.
;     H: sa/ca slice of silu(c)@w_mod   Q: LN(x)*(1+ca)+sa, q slice   M: ga/sb/cb/gb slice
;     B: split combine (global softmax weights) + wo slice            C: residual, LN, FFN slice
;        vote) so that the two cross-die hand-off buffers sit next to their readers; affects placement only
; ---------------------------------------------------------------------------------------------'''
NOTES = {
 "L_stream": "---- stream waves: first K loads go out before anything else",
 "L_service": "---- service waves: role decode, LDS flag init, code prefetch into L2, H role (sa/ca GEMV + sentinel fill)",
 "L_gfin": "---- common GEMV end: lane/wave reduction, last wave publishes the tagged granules",
 "L_body": "---- stream waves: rest of K, wait for q, S = K.q, softmax, P.V, workgroup reduction, publish",
 "L_nh": "---- Q role: LN(x)*(1+ca)+sa with the reference's bf16 roundings, q slice",
 "L_role": "---- P role: one wave compares the latency of a few cold loads from neighbouring 8 KiB blocks of d_ws and votes|which block parity is on which die; the vote only picks where the B and C hand-off buffers live (no output depends on it)",
 "L_m": "---- M role: ga/sb/cb/gb GEMV",
 "L_wb": "---- B role, early part: publish XCC id, wo slice -> LDS -> MFMA operands",
 "L_qpoll": "---- w1 slice (C role), q fetch (wave 1)",
 "L_post": "---- wave 2: sentinel fill of this workgroup's partial slot, workgroup softmax max/sum",
 "L_pre": "---- B role, late part: global softmax weights, gather the 32 partials, x wo, publish",
 "L_tc": "---- C role: residual + LN folded into FFN1, relu, FFN2 partial",
 "L_tf": "---- F role: x2 + gb * sum of FFN partials -> d_out; new tag seed -> ws[0]",
 "L_tab": "per-workgroup word: [11:0] extra-key offset+16, [14:12] skipped slots, [17:15] early role, [22:18] index, [24:23] late role, [30:25] index",
}
E_H, E_Q, E_M, E_B, E_P = 1, 2, 3, 4, 5
R_B, R_C, R_F = 1, 2, 3
def make_plan(plan, **pk):
    P = dict(PLANS[plan]); P.update(pk)
    roles = {(x, a): dict(e=0, ei=0, l=0, li=0) for x in range(8) for a in range(32)}
    hi = mi = ci = fi = 0
    for x in range(8):
        a = 0
        for _ in range(P['H'][x]): roles[x, a].update(e=E_H, ei=hi); hi += 1; a += 1
        for c in range(8):
            roles[x, a].update(e=E_Q, ei=c)
            if (x & 1 == P['Fx'] if 'Fx' in P else c in (0, 1, 4, 5)): roles[x, a].update(l=R_F, li=fi); fi += 1
            a += 1
        for c in range(8): roles[x, a].update(e=E_B, ei=c, l=R_B, li=c); a += 1
        for _ in range(P['M'][x]): roles[x, a].update(e=E_M, ei=mi); mi += 1; a += 1
        assert a <= 32
        cand = [b for b in range(31, -1, -1) if roles[x, b]['e'] == 0] + [b for b in range(32) if roles[x, b]['e'] == E_H] + [b for b in range(32) if roles[x, b]['e'] == E_M]
        for b in cand[:P['C'][x]]: roles[x, b].update(l=R_C, li=ci); ci += 1
    assert (hi, mi, ci, fi) == (32, 32, 56, 32), (hi, mi, ci, fi)
    free = [k for k in sorted(roles) if roles[k]['e'] == 0 and roles[k]['l'] == 0]
    assert len(free) >= 8
    for i, k in enumerate(free[:: len(free) // 8][:8]): roles[k].update(e=E_P, ei=i)
    for x in range(8):
        cost = []
        for a in range(32):
            r = roles[x, a]
            c = {0: 0, E_P: 0, E_H: P['cH'], E_Q: P['cQ'], E_M: P['cM'], E_B: P['cB']}[r['e']]
            cb = r['ei'] if r['e'] in (E_Q, E_B) else (r['ei'] >> 2)
            if r['e'] in P['c3'] and cb == 3: c += P['c3'][r['e']]
            if r['l'] == R_C: c += P['cC']
            cost.append(c)
        n = [max(28, P['T'] - 7)] * 32
        for _ in range(1024 - sum(n)):
            b = min((a for a in range(32) if n[a] < P['T']), key=lambda a: (n[a] + cost[a], -a))
            n[b] += 1
        if P.get('adj') and x & 1:
            give = 0
            for a in range(32):
                r = roles[x, a]
                if r['e'] == E_B and (r['ei'] == 3 or r['ei'] >= 8 - P['adj'] + 1): n[a] -= 1; give += 1
            for a in range(32):
                r = roles[x, a]
                if give and r['l'] == R_C and (r['li'] >> 1) % 4 != 3: n[a] += 1; give -= 1
            assert give == 0
        pre = 0
        for a in range(32):
            roles[x, a].update(n=n[a], pre=pre); pre += n[a] - 28
    T = max(r['n'] for r in roles.values()); T += T & 1
    return roles, T
base = dict(cH=2.0, cQ=3.6, cM=4.2, cB=3.6, cC=4.0, c3={E_H: 0.5, E_Q: 1.7, E_M: 1.5, E_B: 1.0}, T=34)
base2 = dict(cH=1.6, cQ=4.0, cM=4.5, cB=3.4, cC=5.3, c3={E_H: 0.7, E_Q: 2.3, E_M: 1.8, E_B: 2.4}, T=36)
PLANS = {
 'A': dict(base, H=[4]*8, M=[4]*8, C=[7]*8),
 'B': dict(base, H=[8,0,8,0,8,0,8,0], M=[8,0,8,0,8,0,8,0], C=[14,0,14,0,14,0,14,0]),
 'C': dict(base, H=[8,0,8,0,8,0,8,0], M=[8,0,8,0,8,0,8,0], C=[7]*8),
 'D': dict(base, H=[8,8,8,8,0,0,0,0], M=[8,0,8,0,8,0,8,0], C=[14,0,14,0,14,0,14,0]),
 'E': dict(base, H=[8,8,8,8,0,0,0,0], M=[8,0,8,0,8,0,8,0], C=[8,6,8,6,8,6,8,6]),
 'G': dict(base2, H=[8,0,8,0,8,0,8,0], M=[8,0,8,0,8,0,8,0], C=[7]*8),
 'H': dict(base2, H=[8,0,8,0,8,0,8,0], M=[8,0,8,0,8,0,8,0], C=[8,8,8,12,8,2,8,2]),
 'I': dict(base2, H=[8,0,8,8,4,0,4,0], M=[8,0,8,0,8,0,8,0], C=[8,8,8,8,8,4,8,4]),
 'J': dict(base2, H=[8,0,8,0,8,0,8,0], M=[8,0,8,0,8,0,8,0], C=[0,14,0,14,0,14,0,14]),
 'K': dict(base2, H=[8,0,8,0,8,0,8,0], M=[8,0,8,0,8,0,8,0], C=[4,10,4,10,4,10,4,10]),
 'L': dict(base2, H=[8,0,8,0,8,0,8,0], M=[8,0,8,0,8,0,8,0], C=[8,6,8,6,8,6,8,6]),
 'N': dict(base2, H=[8,0,8,0,8,0,8,0], M=[2,6,2,6,2,6,2,6], C=[14,0,14,0,14,0,14,0]),
 'O': dict(base2, H=[0,8,0,8,0,8,0,8], M=[2,6,2,6,2,6,2,6], C=[14,0,14,0,14,0,14,0]),
 'P': dict(base2, H=[4,4,4,4,4,4,4,4], M=[2,6,2,6,2,6,2,6], C=[14,0,14,0,14,0,14,0]),
 'S': dict(base2, H=[1,0,1,0,15,0,15,0], M=[15,0,15,0,1,0,1,0], C=[0,16,0,16,0,12,0,12]),
 'U': dict(base2, H=[4,0,4,0,12,0,12,0], M=[12,0,12,0,4,0,4,0], C=[0,16,0,16,0,12,0,12]),
 'F': dict(base, H=[8,4,8,4,4,0,4,0], M=[8,0,8,0,8,0,8,0], C=[10,4,10,4,10,4,10,4]),
}

def gen(win=5, win2=6, wpol="nt", stamps=0, spin=8000000, hsleep=4, qsleep=8, tsleep=1, pace=4, cpre=1, kprio=0, skipw=0, vmid=4, nopoll='', qtrig=22, R=4, cdefer=1, csleep=2, nH=33, nX=31, nL=34, loc=1, lpol='sc1', w1pol='nt', nocomp=0, nosvc=0, sprio=3, nopre=0, nocw=0, lmul=1, xit='', qloc=1, strig=1, qtrig2=38, kpol='nt', vpol='nt', slowfb=0, fixend=0, plan='A', hfirst=1, cpad=1, w2late=1, fsleep=1, dry=0, yprio=0, burst=0, bwin=8, nearb=1, amp2=0, osc='', use2=1, p2=0, amp=0, dbgp=0, pi=None, pn=8, pclip=2000, xn=0, xmask=0x55, mim=1, mrg=1, fprio=0, rprio=3, rsl=0, b0at=0, mlate=0, xp=None, lin=1, atrig=0, pre=0, g4=0, alt1=0, alt2=0, tw=0, probe='', det=1, rx=0, fl=0, w1early=1, nohp=0, ws1=0, ws2=0, bp=0, calm=0, ltab=1, st0=0, bhold=0, xl=1, bearly=0, pd=1, fdelay=0, xsleep=4, bdefer=0, hwait=0, **pk):
    A = Asm()
    roles, T = make_plan(plan, **pk)
    hdr = open("cdna_kernels/" + NAME[:-7] + ".s.ref").read().split("; Override")[0]
    A(hdr.rstrip())
    A(f"; @launch grid=(256,1,1) block=(768,1,1) lds={LDS_SIZE}")
    A(DOC)
    A('.amdgcn_target "amdgcn-amd-amdhsa--gfx950"')
    A(f".text\n.globl {NAME}\n.p2align 8\n.type {NAME},@function\n{NAME}:")
    def stamp(k):
        if stamps:
            A("s_memrealtime s[62:63]\ns_waitcnt lgkmcnt(0)")
            A(f"v_writelane_b32 v3, s62, {k}")
    def prb(name):
        if probe == name: A("s_memrealtime s[94:95]\ns_waitcnt lgkmcnt(0)")
    def end_wave():
        if stamps:
            A("s_branch L_stampout")
        else:
            A("s_endpgm")
    def srd(d, p, size):
        A(f"s_mov_b32 s{d}, s{p}\ns_mov_b32 s{d+1}, s{p+1}\ns_mov_b32 s{d+2}, {size}\ns_mov_b32 s{d+3}, 0x20000")
    def poll(name, loads, check, sleep):
        if name in nopoll.split('+'): return
        top = A.label(name); done = A.label(name + "d")
        A(f"s_mov_b32 s7, {spin * 4 // (4 + sleep)}")
        A(f"{top}:")
        loads()
        A("s_waitcnt vmcnt(0)")
        check()
        A(f"s_cbranch_vccz {done}")
        A("s_mov_b64 exec, vcc")
        if sleep: A(f"s_sleep {sleep}")
        A("s_sub_u32 s7, s7, 1")
        A(f"s_cbranch_scc0 {top}")
        A(f"{done}:")
        A("s_mov_b64 exec, -1")
    def lspin(name, off, n, vz, vt, sleep=1, extra=None):
        top = A.label(name); done = A.label(name + "d")
        A(f"s_mov_b32 s7, {spin * 4 // (2 + sleep)}")
        A(f"{top}:")
        A(f"ds_read_b32 v{vt}, v{vz} offset:{off}")
        if extra: extra()
        A("s_waitcnt lgkmcnt(0)")
        A(f"v_cmp_gt_u32 vcc, {n}, v{vt}")
        A(f"s_cbranch_vccz {done}")
        if lmul > 1: sleep = min(127, max(sleep, 1) * lmul)
        if sleep: A(f"s_sleep {sleep}")
        A("s_sub_u32 s7, s7, 1")
        A(f"s_cbranch_scc0 {top}")
        A(f"{done}:")
    def chk_tags(regs, tmp):
        A(f"v_xor_b32 v{tmp}, s6, v{regs[0]}")
        for r in regs[1:]:
            A(f"v_xor_b32 v{tmp+1}, s6, v{r}")
            A(f"v_or_b32 v{tmp}, v{tmp}, v{tmp+1}")
        A(f"v_cmp_ne_u32 vcc, 0, v{tmp}")
    def chk_sent(regs, tmp):
        regs = list(regs)
        if len(regs) == 1:
            A(f"v_cmp_eq_u32 vcc, -1, v{regs[0]}"); return
        if len(regs) == 2:
            A(f"v_max_u32 v{tmp}, v{regs[0]}, v{regs[1]}"); rest = []
        else:
            A(f"v_max3_u32 v{tmp}, v{regs[0]}, v{regs[1]}, v{regs[2]}"); rest = regs[3:]
        while rest:
            if len(rest) == 1:
                A(f"v_max_u32 v{tmp}, v{tmp}, v{rest[0]}"); rest = []
            else:
                A(f"v_max3_u32 v{tmp}, v{tmp}, v{rest[0]}, v{rest[1]}"); rest = rest[2:]
        A(f"v_cmp_eq_u32 vcc, -1, v{tmp}")
    def xrow(op, v, tmp, which):
        A(f"v_mov_b32 v{tmp}, v{v}")
        A(f"v_permlane{which}_swap_b32 v{v}, v{tmp}")
        A(f"{op} v{v}, v{v}, v{tmp}")
    def inrow(op, v, steps):
        for s in steps:
            A(f"{op}_dpp v{v}, v{v}, v{v} {s} {DPPF}")
    def wave_reduce(op, v, tmp):
        inrow(op, v, ["row_ror:8", "row_ror:4", "row_ror:2", "row_ror:1"])
        xrow(op, v, tmp, 16); xrow(op, v, tmp, 32)
    def unpack(dst, src, n):
        for i in range(n):
            A(f"v_lshlrev_b32 v{dst+2*i}, 16, v{src[i]}")
            A(f"v_and_b32 v{dst+2*i+1}, 0xffff0000, v{src[i]}")
    def rnd(a, b=None):
        if b is None: A(f"v_cvt_pk_bf16_f32 v{a}, v{a}, v{a}\nv_lshlrev_b32 v{a}, 16, v{a}")
        else: A(f"v_cvt_pk_bf16_f32 v{b}, v{a}, v{b}\nv_lshlrev_b32 v{a}, 16, v{b}\nv_and_b32 v{b}, 0xffff0000, v{b}")
    def silu(x, t, n):
        A(f"s_mov_b32 s21, {f2x(-1.4426950408889634)}")
        for i in range(n): A(f"v_mul_f32 v{t+i}, s21, v{x+i}")
        for i in range(n): A(f"v_exp_f32 v{t+i}, v{t+i}")
        for i in range(n): A(f"v_add_f32 v{t+i}, 1.0, v{t+i}")
        for i in range(n): A(f"v_rcp_f32 v{t+i}, v{t+i}")
        for i in range(n): A(f"v_mul_f32 v{x+i}, v{x+i}, v{t+i}")
    def gemv_perm(W, T, npair):
        for u in range(npair):
            for w in range(4):
                a = W + 8 * u + w; b = W + 8 * u + 4 + w
                A(f"v_perm_b32 v{T+8*u+2*w}, v{b}, v{a}, s24")
                A(f"v_perm_b32 v{T+8*u+2*w+1}, v{b}, v{a}, s25")
    def gemv_dot(T, X, acc):
        for u in range(len(X)):
            for e in range(8):
                c = "0" if u == 0 else f"v{acc+e}"
                A(f"v_dot2_f32_bf16 v{acc+e}, v{T+8*u+e}, v{X[u]}, {c}")
    def mktag():
        A("s_waitcnt lgkmcnt(0)\ns_mul_i32 s6, s6, 0x9E3779B1\ns_add_u32 s6, s6, 0x7F4A7C15")
    def paced(loads, w):
        if skipw and (w or skipw > 1): return
        for i, l in enumerate(loads):
            if w and i >= w: A(f"s_waitcnt vmcnt({w-1})")
            A(l)

    if st0: A("s_memrealtime s[90:91]")
    if probe == "start": A("s_memrealtime s[94:95]")
    if amp2: A("s_memrealtime s[92:93]")
    A("s_cmp_ge_u32 s2, 256\ns_cbranch_scc1 L_exit")
    A("s_load_dwordx16 s[36:51], s[0:1], 0")
    rest_ld = "s_load_dwordx8 s[52:59], s[0:1], 64\ns_load_dwordx2 s[60:61], s[0:1], 96\ns_load_dword s68, s[32:33], s34"
    A("s_getpc_b64 s[30:31]\nL_pc:\ns_add_u32 s32, s30, L_tab-L_pc\ns_addc_u32 s33, s31, 0\ns_lshl_b32 s34, s2, 2")
    if not ltab: A(rest_ld)
    if cpre >= 2:
        A(f"s_lshr_b32 s5, s2, 3\ns_cmp_lg_u32 s5, {cpre-2}\ns_cbranch_scc1 L_ncp0")
        A(f"v_lshlrev_b32 v1, 7, v0\nv_cmp_gt_u32 vcc, L_endcode-L_pc-4, v1\ns_and_saveexec_b64 s[20:21], vcc\ns_cbranch_execz L_ncp1\nglobal_load_dword v167, v1, s[30:31]\nL_ncp1:\ns_mov_b64 exec, s[20:21]\nL_ncp0:")
    A("v_lshrrev_b32 v1, 6, v0\nv_and_b32 v0, 63, v0\nv_readfirstlane_b32 s3, v1")
    A("s_and_b32 s4, s2, 7\ns_lshr_b32 s5, s2, 3")
    if xp: A(f"s_lshl_b32 s4, s4, 2\ns_lshr_b32 s4, {sum(h << (4*i) for i, h in enumerate(xp)):#x}, s4\ns_and_b32 s4, s4, 7")
    if fixend: A("s_memrealtime s[96:97]")
    A("s_mov_b32 s24, 0x05040100\ns_mov_b32 s25, 0x07060302")
    A("v_lshlrev_b32 v2, 4, v0")
    if stamps:
        A("v_mov_b32 v3, 0")
        if not st0: stamp(0)
    A("s_cmp_lt_u32 s3, 4\ns_cbranch_scc1 L_service")
    STREAM_MARK = len(A.lines)
    A("L_service:")
    if ltab: A(rest_ld)
    A(f"s_setprio {sprio}")
    if cpre == 1:
        A(f"s_lshl_b32 s20, s5, 2\ns_add_u32 s20, s20, s3\ns_sub_u32 s20, s20, 96\ns_cmp_ge_u32 s20, (L_endcode-{NAME})/1024\ns_cbranch_scc1 L_ncp")
        A(f"s_sub_u32 s30, s30, L_pc-{NAME}\ns_subb_u32 s31, s31, 0")
        A("s_lshl_b32 s20, s20, 10\nv_add_u32 v14, s20, v2")
        A("global_load_dwordx4 v[164:167], v14, s[30:31]")
        A("L_ncp:")
    A("v_lshrrev_b32 v12, 3, v0\nv_and_b32 v13, 7, v0\nv_mov_b32 v16, 0\nv_mov_b32 v17, 0\nv_mov_b32 v18, 0\nv_mov_b32 v19, 0")
    A("s_mov_b64 exec, 0x1f\nds_write_b128 v2, v[16:19]\ns_mov_b64 exec, -1")
    A("s_waitcnt lgkmcnt(0)")
    prb("ka")
    A("s_bfe_u32 s64, s68, 0x3000f\ns_bfe_u32 s65, s68, 0x50012\ns_bfe_u32 s66, s68, 0x20017\ns_bfe_u32 s67, s68, 0x60019")
    A("s_lshr_b32 s69, s65, 2\ns_and_b32 s70, s65, 3")
    if nearb:
        A(f"s_cmp_eq_u32 s64, {E_H}\ns_cbranch_scc1 L_h\ns_cmp_eq_u32 s64, {E_Q}\ns_cbranch_scc1 L_nh")
        A(f"s_load_dword s6, {WS}, 0"); mktag(); A("s_barrier\ns_branch L_role\nL_h:")
    else: A(f"s_cmp_lg_u32 s64, {E_H}\ns_cbranch_scc1 L_nh")
    A("s_lshr_b32 s20, s70, 1\ns_lshl_b32 s20, s20, 8\ns_lshl_b32 s21, s3, 6\ns_add_u32 s20, s20, s21")
    A("v_lshl_add_u32 v14, v12, 3, s20")
    A("s_mov_b32 s21, 6144\nv_mul_lo_u32 v1, v14, s21\nv_lshl_add_u32 v1, v13, 4, v1\nv_lshlrev_b32 v14, 1, v14")
    A("s_and_b32 s20, s70, 1\ns_lshl_b32 s20, s20, 10\ns_lshl_b32 s21, s69, 7\ns_add_u32 s20, s20, s21")
    A("s_waitcnt lgkmcnt(0)")
    srd(8, P_WM, 512 * 6144)
    A(f"global_load_dwordx4 v[4:7], v14, {sp(P_C)}")
    for i in range(8):
        A(f"buffer_load_dwordx4 {v4(40+4*i)}, v1, s[8:11], s20 offen {wpol}")
        if i < 7: A("s_add_u32 s20, s20, 6144")
    A(f"s_load_dword s6, {WS}, 0")
    A("s_barrier")
    A("s_lshl_b32 s20, s65, 2\ns_add_u32 s20, s20, s3")
    if cpad: A(f"s_lshr_b32 s21, s20, 3\ns_lshl_b32 s21, s21, 15\ns_and_b32 s22, s20, 7\ns_lshl_b32 s22, s22, 11\ns_add_u32 s21, s21, s22\ns_add_u32 s21, s21, {WS_C + (0 if use2 else (p2^1)<<14)}\nv_lshrrev_b32 v14, 2, v0\nv_lshl_add_u32 v14, v14, 6, v2\nv_add_u32 v14, s21, v14\nv_add_u32 v11, 16384, v14")
    else: A(f"s_lshr_b32 s21, s20, 4\ns_lshl_b32 s21, s21, 15\ns_and_b32 s22, s20, 15\ns_lshl_b32 s22, s22, 10\ns_add_u32 s21, s21, s22\ns_add_u32 s21, s21, {WS_C + (0 if use2 else (p2^1)<<14)}\nv_add_u32 v14, s21, v2\nv_add_u32 v11, 16384, v14")
    if use2: A(f"s_lshl_b32 s21, s20, 10\ns_add_u32 s21, s21, {WS_B}\nv_add_u32 v15, s21, v2")
    else: A(f"s_lshr_b32 s21, s20, 5\ns_lshl_b32 s21, s21, 15\ns_and_b32 s22, s20, 31\ns_lshl_b32 s22, s22, 9\ns_add_u32 s21, s21, s22\ns_add_u32 s21, s21, {WS_B + (p2<<14)}\nv_add_u32 v15, s21, v2")
    A("s_cmp_eq_u32 s3, 3\ns_cselect_b32 exec_hi, 0, -1")
    for i in range(4): A(f"v_mov_b32 v{16+i}, -1")
    A("s_mov_b64 exec, -1")
    for i in range(4): A(f"v_mov_b32 v{20+i}, -1")
    A(f"global_store_dwordx4 v14, v[16:19], {WS} sc1")
    if use2: A(f"global_store_dwordx4 v11, v[16:19], {WS} sc1")
    else: A("s_mov_b32 exec_hi, 0")
    A(f"global_store_dwordx4 v15, v[20:23], {WS} sc1\ns_mov_b64 exec, -1")
    A(f"s_waitcnt vmcnt({10+use2})")
    unpack(24, [4, 5, 6, 7], 4); silu(24, 32, 8)
    for i in range(4): A(f"v_cvt_pk_bf16_f32 v{24+i}, v{24+2*i}, v{25+2*i}")
    mktag()
    A(f"s_and_b32 s26, s70, 1\ns_lshl_b32 s26, s26, 13\ns_lshr_b32 s21, s70, 1\ns_lshl_b32 s21, s21, 12\ns_add_u32 s26, s26, s21\ns_lshl_b32 s21, s69, 9\ns_add_u32 s26, s26, s21\ns_add_u32 s26, s26, {WS_H}")
    A(f"s_waitcnt vmcnt({2+use2})")
    stamp(1)
    gemv_perm(40, 104, 4)
    gemv_dot(104, [24, 25, 26, 27], 32)
    A("L_gfin:")
    acc = 32
    for e in range(4): A(f"v_permlane32_swap_b32 v{acc+e}, v{acc+e+4}")
    for e in range(4): A(f"v_add_f32 v{acc+e}, v{acc+e}, v{acc+e+4}")
    for e in range(2): A(f"v_permlane16_swap_b32 v{acc+e}, v{acc+e+2}")
    for e in range(2): A(f"v_add_f32 v{acc+e}, v{acc+e}, v{acc+e+2}")
    for e in range(2): A(f"v_add_f32_dpp v{acc+e}, v{acc+e}, v{acc+e} row_ror:8 {DPPF}")
    A("v_lshrrev_b32 v14, 4, v0\nv_lshlrev_b32 v14, 3, v14\nv_lshl_add_u32 v14, v13, 5, v14\ns_lshl_b32 s21, s3, 8\nv_add_u32 v14, s21, v14")
    A(f"ds_write_b64 v14, v[32:33] offset:{L_GP}")
    A("v_mov_b32 v14, 0\nv_mov_b32 v15, 1")
    A("s_waitcnt vmcnt(0)")
    A("s_mov_b64 exec, 1")
    A(f"ds_add_rtn_u32 v15, v14, v15 offset:{L_CG}")
    A("s_mov_b64 exec, -1")
    A("v_lshlrev_b32 v14, 3, v0")
    A("s_waitcnt lgkmcnt(0)")
    A("v_readfirstlane_b32 s21, v15")
    A("s_cmp_lg_u32 s21, 3\ns_cbranch_scc1 L_gdone")
    A("s_mov_b32 exec_hi, 0")
    for w in range(4): A(f"ds_read_b64 {v2(32+2*w)}, v14 offset:{L_GP+256*w}")
    A("v_add_u32 v14, s26, v14")
    A("s_waitcnt lgkmcnt(0)")
    A("v_pk_add_f32 v[32:33], v[32:33], v[34:35]\nv_pk_add_f32 v[36:37], v[36:37], v[38:39]\nv_pk_add_f32 v[32:33], v[32:33], v[36:37]")
    A(f"s_cmp_lg_u32 s64, {E_H}\ns_cbranch_scc1 L_gnh")
    A(f"v_mov_b32 v34, v33\nv_mov_b32 v33, s6\nv_mov_b32 v35, s6\nv_add_u32 v14, s26, v2\nglobal_store_dwordx4 v14, v[32:35], {WS} sc1\ns_mov_b64 exec, -1\ns_branch L_gdone\nL_gnh:")
    A("v_cvt_pk_bf16_f32 v32, v32, v33\nv_mov_b32 v33, s6")
    if qloc:
        A(f"s_cmp_lg_u32 s64, {E_Q}\ns_cbranch_scc1 L_gnl")
        A(f"v_add_u32 v15, {WS_QL-WS_Q}, v14\nglobal_store_dwordx2 v15, v[32:33], {WS}")
        A("L_gnl:")
    A(f"global_store_dwordx2 v14, v[32:33], {WS} sc1")
    A("s_mov_b64 exec, -1")
    A("L_gdone:")
    stamp(3)
    if mlate: A(f"s_cmp_eq_u32 s64, {E_M}\ns_cbranch_scc1 L_done")
    A("s_branch L_qpoll")

    NM = T - 28; nmask = T - min(r['n'] for r in roles.values())
    NW = 39 - T
    S0 = len(A.lines)
    A("L_stream:")
    if kprio: A(f"s_setprio {kprio}")
    A("s_sub_u32 s21, s3, 4")
    if yprio == 1: A("s_cmp_lt_u32 s21, 4\ns_cbranch_scc1 L_yp\ns_setprio 1\nL_yp:")
    A("v_bfe_u32 v1, v0, 2, 2\nv_lshlrev_b32 v1, 8, v1\nv_lshrrev_b32 v4, 4, v0\nv_lshl_add_u32 v1, v4, 6, v1\nv_and_b32 v4, 3, v0\nv_lshl_add_u32 v1, v4, 4, v1")
    A(f"s_lshl_b32 s19, s4, 23\ns_mul_i32 s16, s5, {28*8192}\ns_add_u32 s16, s16, s19\ns_lshl_b32 s17, s21, 12\ns_add_u32 s16, s16, s17")
    A("s_mov_b32 s10, 0x4000000\ns_mov_b32 s11, 0x20000")
    hcnt = sum(PLANS[plan]['H'][x] << (4 * x) for x in range(8))
    A(f"s_lshl_b32 s17, s4, 2\ns_lshr_b32 s35, {hcnt:#x}, s17\ns_and_b32 s35, s35, {15 if hfirst else 0}")
    A("s_waitcnt lgkmcnt(0)")
    A(f"s_mov_b32 s8, s{P_K}\ns_mov_b32 s9, s{P_K+1}")
    A("s_cmp_ge_u32 s5, s35\ns_cbranch_scc1 L_s1\ns_barrier\nL_s1:")
    KR = lambda t: 168 - 4 * T + 4 * t
    nS = (T + 3) // 4; nP = (T + 7) // 8
    assert T == 34
    first_v = 14
    vslots = [12 + 4 * i for i in range(NW)] + [KR(i) for i in range(first_v, T)]
    VR = lambda t: vslots[t % len(vslots)]
    st = {"cur": None}
    mpos = [6 + (j * (T - 12)) // max(nmask, 1) for j in range(nmask)]
    rest = list(range(NM, NM + 6)) + list(range(nmask, NM)) + list(range(NM + 6, T))
    perm = []
    for t in range(T):
        if t in mpos: perm.append(mpos.index(t))
        else: perm.append(rest.pop(0))
    first_nm = min(t for t in range(T) if perm[t] < NM)
    assert first_nm >= win
    hist = []
    def wcount(w):
        c = 0
        for n_, m_ in enumerate(reversed(hist)):
            if not m_:
                if c == w - 1: return n_
                c += 1
        return None
    def ld(which, t):
        o = perm[t]
        hist.append(o < nmask)
        if o < NM:
            A(f"s_add_u32 s20, s17, {o*8192}"); st["cur"] = None; imm = 0
            if o < nmask: A(f"s_cmp_gt_u32 s18, {o}\ns_cselect_b32 s20, 0x4000000, s20")
        else:
            key = (o - NM) >> 2; imm = ((o - NM) & 3) * 1024
            if st["cur"] != key:
                A(f"s_add_u32 s20, s16, {key*32768}"); st["cur"] = key
        if which == "K": A(f"buffer_load_dwordx4 {v4(KR(t))}, v1, s[8:11], s20 offen offset:{imm} {kpol}")
        else: A(f"buffer_load_dwordx4 {v4(VR(t))}, v2, s[12:15], s20 offen offset:{imm} {vpol}")
    korder = list(range(T))
    seq = [("K", t) for t in korder] + [("V", t) for t in range(NW)]
    for i, (wh, t) in enumerate(seq):
        if i == win:
            if st0: A("s_memrealtime s[92:93]")
            if ltab: A(rest_ld)
            A("s_branch L_body")
            S1 = len(A.lines)
            A("L_body:")
            srd(12, P_V, 0x4000000)
            if ws1: A(f"s_cmp_lt_u32 s21, {ws1}\ns_cselect_b64 vcc, -1, 0")
            if st0: A("s_waitcnt vmcnt(3)\ns_memrealtime s[94:95]")
            if not b0at: A("s_cmp_lt_u32 s5, s35\ns_cbranch_scc1 L_s2\ns_barrier\nL_s2:")
            A("s_waitcnt lgkmcnt(0)")
            A(f"s_and_b32 s17, s68, 0xfff\ns_bfe_u32 s18, s68, 0x3000c\ns_add_u32 s17, s17, {896-16}\ns_lshl_b32 s17, s17, 13\ns_add_u32 s17, s17, s19\ns_lshl_b32 s19, s21, 10\ns_add_u32 s17, s17, s19")
        if b0at and i == win + b0at: A("s_cmp_lt_u32 s5, s35\ns_cbranch_scc1 L_s2\ns_barrier\nL_s2:")
        if i == T and kprio: A("s_setprio 0")
        if wcount(win) is not None and perm[t] >= nmask:
            if xn and 8 <= i < 8 + xn:
                lb = A.label("w"); A(f"s_waitcnt vmcnt({wcount(win+1)})\ns_bitcmp0_b32 {xmask:#x}, s4\ns_cbranch_scc1 {lb}\ns_waitcnt vmcnt({wcount(win)})\n{lb}:")
            else: A(f"s_waitcnt vmcnt({wcount(win)})")
        ld(wh, t)
        if i == qtrig: A(f"v_mov_b32 v8, 0\nv_mov_b32 v9, 1\ns_mov_b64 exec, 1\nds_max_u32 v8, v9 offset:{L_FK}\ns_mov_b64 exec, -1")
        if hwait and i == hwait: A(f"v_mov_b32 v8, 0\nv_mov_b32 v9, 1\ns_mov_b64 exec, 1\nds_write_b32 v8, v9 offset:72\ns_mov_b64 exec, -1")
        if i == qtrig2 and qloc: A(f"v_mov_b32 v8, 0\nv_mov_b32 v9, 2\ns_mov_b64 exec, 1\nds_max_u32 v8, v9 offset:{L_FK}\ns_mov_b64 exec, -1")
    viss = NW
    A("v_and_b32 v8, 3, v0\nv_lshlrev_b32 v8, 8, v8\nv_lshrrev_b32 v9, 4, v0\nv_lshl_add_u32 v8, v9, 6, v8\nv_bfe_u32 v9, v0, 2, 2\nv_lshl_add_u32 v8, v9, 4, v8\nv_mov_b32 v9, 0")
    if mim: A(f"s_mov_b32 s22, {f2x(1.4426950408889634)}\ns_mov_b32 s26, {f2x(128**-0.5)}\ns_mov_b32 s27, s26")
    else: A(f"s_mov_b32 s22, {f2x(128**-0.5*1.4426950408889634)}")
    for t in range(nmask): A(f"s_cmp_gt_u32 s18, {t}\ns_cselect_b32 s{28+t}, 0xff800000, 0")
    stamp(1)
    lspin("sq", L_FQ, 1, 9, 10, 2, lambda: A(f"ds_read_b128 v[4:7], v8 offset:{L_Q}"))
    stamp(2)
    kl = {"landed": T + NW - win - 3}
    DR = lambda t: 8 if t == 0 else KR(t - 1)
    SR = lambda t: (8 + t) if t < 4 else KR((t >> 2) - 1) + (t & 3)
    def M(t):
        if t >= kl["landed"]:
            A(f"s_waitcnt vmcnt({len(hist)-1-t})"); kl["landed"] = t + 1
        A(f"v_mfma_f32_16x16x32_bf16 {v4(DR(t))}, {v4(KR(t))}, v[4:7], 0")
    def AB(t):
        d = DR(t)
        A(f"v_add_f32_dpp v{d}, v{d+1}, v{d} row_shl:4 {DPPF} bound_ctrl:0")
        A(f"v_add_f32_dpp v{d+2}, v{d+3}, v{d+2} row_shl:4 {DPPF} bound_ctrl:0")
    def S(t):
        d = DR(t)
        A(f"v_add_f32_dpp v{SR(t)}, v{d+2}, v{d} row_shl:8 {DPPF} bound_ctrl:0")
    mark0 = len(A.lines)
    if yprio == 2: A("s_cmp_lt_u32 s21, 4\ns_cbranch_scc1 L_yp\ns_setprio 1\nL_yp:")
    M(0); M(1); M(2)
    for t in range(T + 1):
        if t < T: AB(t)
        if t >= 1:
            S(t - 1)
            if vmid and t - 2 >= first_v and (t - 2 - first_v) % vmid == 0:
                ld("V", viss); viss += 1
        if t + 3 < T: M(t + 3)
    TM = KR(11)
    Sl = [SR(t) for t in range(T)]
    if mim:
        for t in range(0, T, 2): rnd(Sl[t], Sl[t + 1])
        for t in range(0, T, 2): A(f"v_pk_mul_f32 {v2(Sl[t])}, {v2(Sl[t])}, s[26:27]")
        if vmid: ld("V", viss); viss += 1
        for t in range(0, T, 2): rnd(Sl[t], Sl[t + 1])
    for t in range(nmask): A(f"v_add_f32 v{Sl[mpos[t]]}, s{28+t}, v{Sl[mpos[t]]}")
    A(f"v_max3_f32 v{TM}, v{Sl[0]}, v{Sl[1]}, v{Sl[2]}")
    A(f"v_max3_f32 v{TM+1}, v{Sl[3]}, v{Sl[4]}, v{Sl[5]}")
    i = 6; k = 0
    while i < T:
        A(f"v_max3_f32 v{TM+k}, v{TM+k}, v{Sl[i]}, v{Sl[i+1]}"); i += 2; k ^= 1
    A(f"v_max_f32 v{TM}, v{TM}, v{TM+1}")
    xrow("v_max_f32", TM, TM + 1, 16); xrow("v_max_f32", TM, TM + 1, 32)
    A(f"v_mul_f32 v{TM}, s22, v{TM}")
    for t in range(T): A(f"v_fma_f32 v{Sl[t]}, v{Sl[t]}, s22, -v{TM}")
    for t in range(T): A(f"v_exp_f32 v{Sl[t]}, v{Sl[t]}")
    if vmid: ld("V", viss); viss += 1
    A(f"v_add_f32 v{TM+1}, v{Sl[0]}, v{Sl[1]}\nv_add_f32 v{TM+2}, v{Sl[2]}, v{Sl[3]}")
    for t in range(4, T): A(f"v_add_f32 v{TM+1+(t&1)}, v{TM+1+(t&1)}, v{Sl[t]}")
    A(f"v_add_f32 v{TM+1}, v{TM+1}, v{TM+2}")
    xrow("v_add_f32", TM + 1, TM + 2, 16); xrow("v_add_f32", TM + 1, TM + 2, 32)
    A(f"s_lshl_b32 s19, s21, 5\nv_lshl_add_u32 v{TM+2}, v0, 3, s19\nv_mov_b32 v4, 0\nv_mov_b32 v5, 1")
    A("s_mov_b64 exec, 0xf")
    A(f"ds_write_b64 v{TM+2}, {v2(TM)} offset:{L_ST}")
    A("s_mov_b64 exec, 1")
    A(f"ds_add_u32 v4, v5 offset:{L_CS}")
    A("s_mov_b64 exec, -1")
    GR = [(0, 2), (2, 10), (10, 18), (18, 26), (26, 34)]
    def pack(u, d):
        for t in range(GR[u][0], GR[u][1], 2): A(f"v_cvt_pk_bf16_f32 v{d+(t-GR[u][0])//2}, v{Sl[t]}, v{Sl[t+1]}")
    for u in range(3): pack(u, KR(8 + u))
    A("s_waitcnt lgkmcnt(0)")
    AC = [8, KR(0)]
    PA = [KR(1), KR(2), KR(12), KR(13)]; PB = [KR(3), KR(4), KR(5), KR(6)]
    TT = [TM, 4]
    def zero(P):
        for j in range(4):
            for i in range(4): A(f"v_mov_b32 v{P[j]+i}, 0")
    def vers(P, src, n=4):
        for j in range(4):
            ctl = "quad_perm:[0,1,2,3]" if j == 0 else f"row_shr:{4*j}"
            for i in range(n): A(f"v_mov_b32_dpp v{P[j]+i}, v{src+i} {ctl} row_mask:0xf bank_mask:{1<<j:#x}")
    zero(PA)
    A(f"v_mov_b32 v{TM+1}, 0\nv_mov_b32 v5, 0")
    stamp(3)
    EO = (0, 4, 1, 5, 2, 6, 3, 7)
    def pv(u):
        t0, t1 = GR[u]; n = t1 - t0
        vers(PA, KR(8 + u), n // 2)
        for k, e in enumerate(EO):
            Tm = TT[k & 1]; ac = AC[e >> 2]
            for p in range(n // 2):
                a = VR(t0 + 2 * p) + (e >> 1); b = VR(t0 + 2 * p + 1) + (e >> 1)
                A(f"v_perm_b32 v{Tm+p}, v{b}, v{a}, s{24+(e&1)}")
            c = "0" if (u == 0 and k < 2) else v4(ac)
            if n == 8: A(f"v_mfma_f32_16x16x32_bf16 {v4(ac)}, {v4(Tm)}, {v4(PA[e&3])}, {c}")
            else: A(f"v_mfma_f32_16x16x16_bf16 {v4(ac)}, {v2(Tm)}, {v2(PA[e&3])}, {c}")
    ns = len(vslots)
    TA = [VR(t) for t in range(T - ns, 18)][:8]
    assert len(TA) == 8
    X = KR(8); ONE = KR(7) + 2; CNT = KR(7) + 3
    def rescale():
        A(f"v_and_b32 v1, 3, v0\nv_lshlrev_b32 v1, 3, v1\nv_mov_b32 v{X+10}, 0\nv_mov_b32 v{ONE}, 1\ns_lshl_b32 s19, s21, 5\nv_add_u32 v{X+9}, s19, v1")
        def rd():
            for w in range(8): A(f"ds_read_b32 v{X+w}, v1 offset:{L_ST+32*w}")
            A(f"ds_read_b32 v{X+8}, v{X+9} offset:{L_ST}")
        lspin("sm", L_CS, 9, X + 10, X + 11, 1, rd)
        A(f"s_mov_b64 exec, 1\nds_add_rtn_u32 v{X+11}, v{X+10}, v{ONE} offset:{L_CT}\ns_mov_b64 exec, -1")
        A(f"v_max3_f32 v{X}, v{X}, v{X+1}, v{X+2}\nv_max3_f32 v{X+3}, v{X+3}, v{X+4}, v{X+5}\nv_max3_f32 v{X}, v{X}, v{X+6}, v{X+7}\nv_max_f32 v{X}, v{X}, v{X+3}")
        A(f"v_sub_f32 v{X}, v{X+8}, v{X}\nv_exp_f32 v{X}, v{X}")
        A(f"s_lshl_b32 s19, s21, 11\nv_add_u32 v1, s19, v2\ns_and_b32 s19, s21, 4\nv_mov_b32 v{CNT}, s19")
        for ac in AC:
            for q in range(2): A(f"v_pk_mul_f32 {v2(ac+2*q)}, {v2(ac+2*q)}, {v2(X)} op_sel_hi:[1,0]")
        for t in range(18, T, 2): A(f"v_pk_mul_f32 {v2(Sl[t])}, {v2(Sl[t])}, {v2(X)} op_sel_hi:[1,0]")
        pack(3, TT[0]); pack(4, TT[1])
        zero(PB); vers(PA, TT[0]); vers(PB, TT[1])
        A(f"s_waitcnt lgkmcnt(0)\nv_readfirstlane_b32 s23, v{X+11}")
    while viss < min(win2, ns):
        ld("V", viss); viss += 1
    done_t = 0
    ends = {g[1] - 1: u for u, g in enumerate(GR[:3])}
    for L in range(T):
        inc = L >= 18 and L % 2 == 1
        can = lambda: viss < T and sum(1 for j in range(L + 1, viss) if perm[j] >= nmask) < (bwin if L >= T - burst else win2 + (pre if L in ends else 0)) + (perm[viss] < nmask) and (viss < ns or done_t > viss - ns)
        if can() or L in ends or inc:
            A(f"s_waitcnt vmcnt({viss-1-L})")
        while can():
            ld("V", viss); viss += 1
            if viss == T:
                assert L > 17
                A(f"s_mov_b64 exec, 1\nds_add_u32 v2, v{ONE} offset:{L_CV}\ns_mov_b64 exec, -1")
        if L in ends:
            pv(ends[L]); done_t = L + 1
            if L == 17: rescale()
        if inc:
            if L == T - 1: stamp(4)
            p = ((L - 18) % 8) // 2
            for e in EO: A(f"v_perm_b32 v{TA[e]+p}, v{VR(L)+(e>>1)}, v{VR(L-1)+(e>>1)}, s{24+(e&1)}")
            if p == 3:
                for e in EO: A(f"v_mfma_f32_16x16x32_bf16 {v4(AC[e>>2])}, {v4(TA[e])}, {v4((PA if L < 26 else PB)[e&3])}, {v4(AC[e>>2])}")
    assert viss == T
    if nocomp:
        keep = [l for l in A.lines[mark0:] if not l.startswith(("v_mfma", "v_perm_b32", "v_add_f32", "v_exp", "v_fma", "v_max", "v_cvt", "v_permlane"))]
        A.lines[mark0:] = keep
    for hf in range(2): A(f"ds_write_b128 v1, {v4(AC[hf])} offset:{L_OP+hf*1024}")
    A(f"s_mov_b64 exec, 1\nds_add_u32 v{CNT}, v{ONE} offset:{L_FO}")
    A("s_mov_b64 exec, -1")
    if stamps: A("s_waitcnt lgkmcnt(0)")
    stamp(5)
    A("s_cmp_lg_u32 s23, 0\ns_cbranch_scc1 L_done")
    A(f"s_setprio {rprio}")
    def a_addr(d, t):
        if lin: A(f"s_lshl_b32 s20, s4, 15\ns_lshr_b32 s19, s5, 4\ns_lshl_b32 s19, s19, 10\ns_add_u32 s20, s20, s19\ns_and_b32 s19, s5, 15\ns_lshl_b32 s19, s19, 4\ns_add_u32 s20, s20, s19\ns_add_u32 s20, s20, {WS_A}")
        else: A(f"s_lshl_b32 s20, s4, 15\ns_lshl_b32 s19, s5, {7 if fl else 6}\ns_add_u32 s20, s20, s19\ns_add_u32 s20, s20, {WS_A}")
        if mrg:
            assert lin
            A(f"v_and_b32 v{d}, 3, v0\nv_lshlrev_b32 v{d}, 13, v{d}\nv_bfe_u32 v{t}, v0, 2, 2\nv_lshl_add_u32 v{d}, v{t}, 11, v{d}\nv_lshrrev_b32 v{t}, 4, v0\nv_lshl_add_u32 v{d}, v{t}, 8, v{d}\nv_add_u32 v{d}, s20, v{d}")
            return
        A(f"v_bfe_u32 v{d}, v0, 2, 2\nv_lshlrev_b32 v{d}, 13, v{d}")
        if fl: A(f"v_lshrrev_b32 v{t}, 5, v0\nv_lshl_add_u32 v{d}, v{t}, 12, v{d}\nv_bfe_u32 v{t}, v0, 4, 1\nv_lshl_add_u32 v{d}, v{t}, 6, v{d}")
        else: A(f"v_lshrrev_b32 v{t}, 4, v0\nv_lshl_add_u32 v{d}, v{t}, 11, v{d}")
        A(f"v_and_b32 v{t}, 3, v0\nv_lshl_add_u32 v{d}, v{t}, {8 if lin else 4}, v{d}\nv_add_u32 v{d}, s20, v{d}")
    a_addr(36, 37)
    A(f"v_add_u32 v37, {WS_AL-WS_A}, v36\nv_mov_b32 v38, 0\nv_mov_b32 v39, 1")
    if xl: A(f"ds_read_b32 v29, v38 offset:{L_MK}\ns_waitcnt lgkmcnt(0)\nv_readfirstlane_b32 s26, v29")
    for hf in range(2 if det else 0):
        def rd8():
            for j in range(4): A(f"ds_read_b128 {v4(40+8*j)}, v2 offset:{L_OP+(4*hf+j)*2048}\nds_read_b128 {v4(44+8*j)}, v2 offset:{L_OP+(4*hf+j)*2048+1024}")
        if rsl and hf: lspin("so3", L_FO + 4, 3, 38, 28, 1)
        lspin("so", L_FO + 4 * hf, 4, 38, 28, 1 - hf, rd8)
        for q in range(4): A(f"v_pk_add_f32 {v2(40+2*q)}, {v2(40+2*q)}, {v2(48+2*q)}")
        for q in range(4): A(f"v_pk_add_f32 {v2(56+2*q)}, {v2(56+2*q)}, {v2(64+2*q)}")
        for q in range(4): A(f"v_pk_add_f32 {v2((12 if hf == 0 else 40)+2*q)}, {v2(40+2*q)}, {v2(56+2*q)}")
        if hf:
            for q in range(4): A(f"v_pk_add_f32 {v2(12+2*q)}, {v2(12+2*q)}, {v2(40+2*q)}")
    for i in range(0 if det else 8):
        d = 12 if i == 0 else 20
        lspin("so", L_FO + 4 * i, 1, 38, 28, 1 if (calm and i < 6) else 0, lambda: A(f"ds_read_b128 {v4(d)}, v2 offset:{L_OP+i*2048}\nds_read_b128 {v4(d+4)}, v2 offset:{L_OP+i*2048+1024}"))
        if i:
            for q in range(4): A(f"v_pk_add_f32 {v2(12+2*q)}, {v2(12+2*q)}, {v2(20+2*q)}")
    for q in range(4): A(f"v_cvt_pk_bf16_f32 v{12+q}, v{12+2*q}, v{13+2*q}")
    if loc: A(f"global_store_dwordx4 v37, v[12:15], {WS}")
    if xl: A("s_cmp_eq_u32 s26, 0\ns_cbranch_scc1 L_ng2")
    A(f"global_store_dwordx4 v36, v[12:15], {WS} sc1")
    A("L_ng2:")
    A(f"ds_write_b32 v38, v39 offset:{L_FP}")
    stamp(6)
    end_wave()
    blk = A.lines[S0:S1]; del A.lines[S0:S1]; A.lines[STREAM_MARK:STREAM_MARK] = blk

    A("L_nh:")
    if not nearb: A(f"s_cmp_lg_u32 s64, {E_Q}\ns_cbranch_scc1 L_nq")
    A("v_lshlrev_b32 v1, 17, v12\nv_lshl_add_u32 v1, v13, 4, v1")
    A("s_lshl_b32 s20, s3, 20\ns_lshl_b32 s21, s4, 10\ns_add_u32 s20, s20, s21\ns_mov_b32 s26, s65\ns_lshl_b32 s21, s26, 7\ns_add_u32 s20, s20, s21")
    A("s_lshl_b32 s21, s3, 8\nv_lshl_add_u32 v14, v0, 2, s21")
    A("s_waitcnt lgkmcnt(0)")
    prb("qi")
    srd(8, P_WQ, 512 * 8192)
    A(f"global_load_dwordx4 v[8:11], v2, {sp(P_X)}\nglobal_load_dword v15, v14, {sp(P_X)}")
    for i in range(16):
        A(f"buffer_load_dwordx4 {v4(40+4*i)}, v1, s[8:11], s20 offen {wpol}")
        if i < 15: A("s_add_u32 s20, s20, 8192")
    A(f"s_load_dword s6, {WS}, 0")
    A("s_barrier")
    A(f"s_lshl_b32 s26, s26, 8\ns_lshl_b32 s21, s4, 11\ns_add_u32 s26, s26, s21\ns_add_u32 s26, s26, {WS_Q}")
    A("s_waitcnt vmcnt(16)")
    prb("x")
    unpack(32, [8, 9, 10, 11], 4)
    A("v_add_f32 v4, v32, v33")
    for i in range(2, 8): A(f"v_add_f32 v4, v4, v{32+i}")
    wave_reduce("v_add_f32", 4, 5)
    A(f"v_mul_f32 v4, {f2x(1/512)}, v4")
    for i in range(8): A(f"v_sub_f32 v{32+i}, v{32+i}, v4")
    A("v_mul_f32 v6, v32, v32")
    for i in range(1, 8): A(f"v_fmac_f32 v6, v{32+i}, v{32+i}")
    wave_reduce("v_add_f32", 6, 5)
    A(f"v_mul_f32 v5, {f2x(1/512)}, v6"); rnd(4, 5)
    A(f"v_add_f32 v5, {f2x(1e-5)}, v5"); rnd(5)
    A("v_sqrt_f32 v5, v5"); rnd(5)
    A("v_rcp_f32 v5, v5")
    unpack(8, [15], 1)
    A("v_sub_f32 v8, v8, v4\nv_sub_f32 v9, v9, v4"); rnd(8, 9)
    A("v_mul_f32 v8, v8, v5\nv_mul_f32 v9, v9, v5"); rnd(8, 9)
    A(f"v_lshlrev_b32 v15, 2, v14\nv_add_u32 v15, {WS_H}, v15\nv_add_u32 v10, 4096, v15\nv_add_u32 v11, 8192, v15\nv_add_u32 v7, 12288, v15")
    mktag()
    A("s_waitcnt vmcnt(0)")
    stamp(1)
    prb("wq")
    gemv_perm(40, 104, 8)
    if hwait: A("v_mov_b32 v4, 0"); lspin("sh", 72, 1, 4, 5, 2)
    poll("ph", lambda: [A(f"global_load_dwordx4 {v4(16+4*k)}, v{(15,10,11,7)[k]}, {WS} sc1") for k in range(4)],
         lambda: chk_tags([17 + 2 * k for k in range(8)], 4), hsleep)
    stamp(2)
    prb("h")
    A("v_add_f32 v16, v16, v20\nv_add_f32 v17, v18, v22\nv_add_f32 v18, v24, v28\nv_add_f32 v19, v26, v30")
    rnd(16, 17); rnd(18, 19)
    A("v_add_f32 v18, 1.0, v18\nv_add_f32 v19, 1.0, v19"); rnd(18, 19)
    A("v_pk_mul_f32 v[24:25], v[8:9], v[18:19]"); rnd(24, 25)
    A("v_pk_add_f32 v[24:25], v[24:25], v[16:17]")
    A("L_gx:")
    A("v_cvt_pk_bf16_f32 v24, v24, v25")
    A(f"ds_write_b32 v14, v24 offset:{L_X}")
    A("s_lshl_b32 s21, s3, 8\nv_lshl_add_u32 v15, v12, 5, s21")
    A(f"ds_read_b128 v[24:27], v15 offset:{L_X}\nds_read_b128 v[28:31], v15 offset:{L_X+16}")
    A("s_waitcnt lgkmcnt(0)")
    gemv_dot(104, list(range(24, 32)), 32)
    A("s_branch L_gfin")

    if not nearb:
        A("L_nq:")
        A("s_waitcnt lgkmcnt(0)")
        A(f"s_load_dword s6, {WS}, 0")
        mktag()
        A("s_barrier")
    A("L_role:")
    A("s_cmp_eq_u32 s64, 0\ns_cbranch_scc1 L_qpoll")
    A(f"s_cmp_eq_u32 s64, {E_B}\ns_cbranch_scc1 L_wb")
    A(f"s_cmp_lg_u32 s64, {E_P}\ns_cbranch_scc1 L_m")
    if pi == 2:
        A("s_cmp_lg_u32 s3, 0\ns_cbranch_scc1 L_qpoll")
        A(f"s_lshl_b32 s20, s65, 7\ns_add_u32 s20, s20, {WS_P}\ns_add_u32 s72, s{P_WS}, s20\ns_addc_u32 s73, s{P_WS+1}, 0")
        A("v_lshlrev_b32 v4, 10, v12\nv_lshl_add_u32 v4, v13, 4, v4")
        for k in range(4):
            A("global_store_dwordx4 v4, v[16:19], s[72:73] sc1")
            if k < 3: A("v_add_u32 v4, 8192, v4")
        for k in range(4): A(f"s_mov_b32 s{80+k}, -1")
        A("s_waitcnt vmcnt(0)")
        stamp(1)
        A("s_memtime s[76:77]\ns_waitcnt lgkmcnt(0)")
        cur = 76
        for i in range(4 * pn):
            k = (i + (i >> 2)) & 3; nx = 154 - cur
            A(f"s_load_dword s74, s[72:73], {8192*k + 1024*(i>>2)}\ns_waitcnt lgkmcnt(0)\ns_memtime s[{nx}:{nx+1}]\ns_waitcnt lgkmcnt(0)\ns_sub_u32 s21, s{nx}, s{cur}\ns_min_u32 s{80+k}, s{80+k}, s21")
            cur = nx
        stamp(2)
        A("s_add_u32 s20, s80, s82\ns_add_u32 s21, s81, s83\ns_cmp_gt_u32 s20, s21\ns_cselect_b32 s22, 1, 0\ns_cselect_b32 s80, s81, s80\ns_cselect_b32 s82, s83, s82")
        if not use2: A("s_getreg_b32 s20, hwreg(HW_REG_XCC_ID, 2, 1)\ns_xor_b32 s20, s22, s20")
        if use2: A("s_cmp_gt_u32 s80, s82\ns_cselect_b32 s21, 1, 0")
        if use2: A(f"s_getreg_b32 s20, hwreg(HW_REG_XCC_ID, 2, 1)\ns_xor_b32 s22, s22, s20\ns_getreg_b32 s20, hwreg(HW_REG_XCC_ID, 0, 1)\ns_xor_b32 s21, s21, s20\ns_xor_b32 s21, s21, {1 ^ ((WS_P >> 19) & 1)}\ns_lshl_b32 s21, s21, 1\ns_or_b32 s20, s21, s22")
        A(f"v_mov_b32 v4, s20\nv_mov_b32 v5, s6\ns_lshl_b32 s20, s65, 3\ns_add_u32 s20, s20, {WS_PV}\nv_mov_b32 v8, s20")
        A(f"s_mov_b64 exec, 1\nglobal_store_dwordx2 v8, v[4:5], {WS} sc1\ns_mov_b64 exec, -1")
    A("s_branch L_qpoll\nL_m:")
    if mlate:
        A("s_branch L_qpoll\nL_ml:")
        if mlate <= 8: lspin("sl", L_CV, mlate, 10, 11, 4)
        else: lspin("sl", L_FP, 1, 10, 11, 4)
        A("s_setprio 0\nv_lshrrev_b32 v12, 3, v0\nv_and_b32 v13, 7, v0")
    A("s_mov_b32 s21, 98304\nv_mul_lo_u32 v1, v12, s21\nv_lshl_add_u32 v1, v13, 4, v1")
    A(f"s_mul_i32 s20, s3, {128*6144}\ns_add_u32 s26, s70, 2\ns_lshl_b32 s26, s26, 10\ns_lshl_b32 s21, s69, 7\ns_add_u32 s26, s26, s21\ns_add_u32 s20, s20, s26")
    A("s_lshl_b32 s21, s3, 8\nv_lshl_add_u32 v14, v0, 2, s21")
    srd(8, P_WM, 512 * 6144)
    A(f"global_load_dword v15, v14, {sp(P_C)}")
    paced([f"buffer_load_dwordx4 {v4(40+4*i)}, v1, s[8:11], s20 offen {wpol}\ns_add_u32 s20, s20, 6144" for i in range(16)], 0)
    A(f"s_lshl_b32 s26, s26, 1\ns_add_u32 s26, s26, {WS_MOD-4096}")
    A("s_waitcnt vmcnt(0)")
    unpack(24, [15], 1); silu(24, 32, 2)
    gemv_perm(40, 104, 8)
    A("s_branch L_gx")
    def dma(loads, w):
        if skipw: return
        for i, l in enumerate(loads):
            if w and i >= w: A(f"s_waitcnt vmcnt({w-1})")
            A(f"s_add_u32 m0, s23, {1024*i}")
            A(l)
    def wo_issue(lo, hi):
        srd(8, P_WO, 4096 * 1024)
        A("v_lshrrev_b32 v1, 3, v0\nv_lshlrev_b32 v1, 10, v1\nv_and_b32 v4, 7, v0\nv_lshl_add_u32 v1, v4, 4, v1")
        A(f"s_lshl_b32 s20, s4, 19\ns_lshl_b32 s21, s3, 17\ns_add_u32 s20, s20, s21\ns_lshl_b32 s21, s65, 7\ns_add_u32 s20, s20, s21\ns_add_u32 s20, s20, {8192*lo}")
        A(f"s_lshl_b32 s23, s3, 14\ns_add_u32 s23, s23, {L_WT+1024*lo}")
        dma([f"buffer_load_dwordx4 v1, s[8:11], s20 offen {wpol} lds\ns_add_u32 s20, s20, 8192" for i in range(lo, hi)], pace)
    def wo_finish(w):
        A(f"s_lshl_b32 s23, s3, 14\ns_add_u32 s23, s23, {L_WT}")
        A("v_bfe_u32 v1, v0, 2, 2\nv_lshlrev_b32 v1, 10, v1\nv_lshrrev_b32 v4, 4, v0\nv_lshl_add_u32 v1, v4, 12, v1\nv_and_b32 v4, 3, v0\nv_lshl_add_u32 v1, v4, 3, v1\nv_add_u32 v1, s23, v1")
        A(f"s_waitcnt vmcnt({w})")
        k = 0
        for c in range(4):
            for nt in range(4):
                for hi in range(2):
                    A(f"ds_read_b64_tr_b16 {v2(104+16*c+4*nt+2*hi)}, v1 offset:{(c+4*hi)*128+nt*32}")
                    k += 1
                    if k >= 12 and k % 4 == 0: A("s_waitcnt lgkmcnt(8)")
        A("s_waitcnt lgkmcnt(0)")
    A("L_wb:")
    if xl:
        A("s_cmp_lg_u32 s3, 0\ns_cbranch_scc1 L_wb1")
        A(f"s_getreg_b32 s20, hwreg(HW_REG_XCC_ID, 0, 4)\nv_mov_b32 v4, s20\nv_mov_b32 v5, s6\ns_lshl_b32 s20, s4, 7\ns_lshl_b32 s21, s65, 3\ns_add_u32 s20, s20, s21\ns_add_u32 s20, s20, {WS_XB}\nv_mov_b32 v6, s20")
        A(f"s_mov_b64 exec, 1\nglobal_store_dwordx2 v6, v[4:5], {WS} sc1\ns_mov_b64 exec, -1\ns_nop 0")
        A("L_wb1:")
    if bp:
        A("s_cmp_eq_u32 s3, 1\ns_cbranch_scc1 L_qpoll\ns_cmp_eq_u32 s3, 2\ns_cbranch_scc1 L_qpoll")
        srd(8, P_WO, 4096 * 1024)
        A("v_lshrrev_b32 v1, 3, v0\nv_lshlrev_b32 v1, 10, v1\nv_and_b32 v4, 7, v0\nv_lshl_add_u32 v1, v4, 4, v1\ns_lshr_b32 s22, s3, 1")
        A(f"s_lshl_b32 s20, s4, 19\ns_lshl_b32 s21, s22, 18\ns_add_u32 s20, s20, s21\ns_lshl_b32 s21, s65, 7\ns_add_u32 s20, s20, s21")
        A(f"s_lshl_b32 s23, s22, 15\ns_add_u32 s23, s23, {L_WT}\ns_mov_b32 s22, 31")
        A(f"L_wbl:\ns_mov_b32 m0, s23\ns_waitcnt vmcnt({bp-1})\nbuffer_load_dwordx4 v1, s[8:11], s20 offen {wpol} lds\ns_add_u32 s20, s20, 8192\ns_add_u32 s23, s23, 1024\ns_sub_u32 s22, s22, 1\ns_cbranch_scc0 L_wbl")
        A(f"v_mov_b32 v4, 0\nv_mov_b32 v5, 1\ns_waitcnt vmcnt(0)\ns_mov_b64 exec, 1\nds_add_u32 v4, v5 offset:{L_CW}\ns_mov_b64 exec, -1")
    elif not bdefer: wo_issue(0, 16); wo_finish(0)
    elif bearly: wo_issue(0, bearly)
    A("L_qpoll:")
    if w1early:
        A(f"s_cmp_lg_u32 s66, {R_C}\ns_cbranch_scc1 L_qp1\ns_mov_b32 s26, s67")
        srd(8, P_W1, 512 * 3584)
        A("v_lshrrev_b32 v1, 2, v0\ns_mov_b32 s20, 3584\nv_mul_lo_u32 v1, v1, s20\nv_and_b32 v12, 3, v0\nv_lshl_add_u32 v1, v12, 4, v1")
        A(f"s_mul_i32 s20, s3, {128*3584}\ns_lshl_b32 s21, s26, 6\ns_add_u32 s20, s20, s21")
        A(f"s_lshl_b32 s23, s3, 14\ns_add_u32 s23, s23, {L_WT}")
        dma([f"buffer_load_dwordx4 v1, s[8:11], s20 offen {w1pol} lds\ns_add_u32 s20, s20, {16*3584}" for i in range(8)], 0)
        A("L_qp1:")
    if nosvc:
        A(f"v_mov_b32 v10, 0\nv_mov_b32 v5, 1\nds_write_b32 v10, v5 offset:{L_FQ}\ns_mov_b64 exec, 1\nds_add_u32 v10, v5 offset:{L_CS}")
        end_wave()
    if tw:
        A("s_cmp_lg_u32 s3, 3\ns_cbranch_scc1 L_tw")
        A(f"s_lshl_b32 s20, s4, 23\ns_mul_i32 s21, s5, {28*8192}\ns_add_u32 s21, s21, s20\ns_add_u32 s20, s20, {896*8192}")
        A(f"v_mov_b32 v4, s21\nv_add_u32 v5, {28*8192-128}, v4\nv_mov_b32 v6, s20\nv_mov_b32 v7, 0\ns_mov_b64 exec, 1")
        A(f"global_load_dword v24, v4, {sp(P_V)} nt\nglobal_load_dword v25, v5, {sp(P_V)} nt\nglobal_load_dword v26, v6, {sp(P_V)} nt\nglobal_load_dword v27, v7, {sp(P_W2)} nt")
        A("s_waitcnt vmcnt(0)\ns_mov_b64 exec, -1\nL_tw:")
    A("v_mov_b32 v10, 0\nv_mov_b32 v23, 0\nv_mov_b32 v35, 64")
    A("s_cmp_lg_u32 s3, 1\ns_cbranch_scc1 L_np")
    A(f"s_lshl_b32 s21, s4, 11\ns_add_u32 s21, s21, {WS_Q}\nv_add_u32 v14, s21, v2")
    lspin("sk", L_FK, 1, 10, 11, 16 if calm else 4)
    def ldq():
        if qloc:
            A(f"ds_read_b32 v11, v10 offset:{L_FK}\ns_waitcnt lgkmcnt(0)\nv_readfirstlane_b32 s21, v11\ns_lshr_b32 s21, s21, 1\ns_and_b32 s21, s21, s7")
            if slowfb: A(f"s_cmp_lt_u32 s7, {spin-slowfb}")
            A(f"s_cselect_b32 s21, 0, {WS_QL-WS_Q}\nv_add_u32 v15, s21, v14")
        for i in range(2): A(f"global_load_dwordx4 {v4(16+4*i)}, v{15 if qloc else 14}, {WS} offset:{1024*i} sc1")
    poll("pq", ldq, lambda: chk_tags([17, 19, 21, 23], 4), qsleep)
    A("v_mov_b32 v17, v18\nv_mov_b32 v21, v22\nv_lshlrev_b32 v14, 3, v0\nv_mov_b32 v5, 1")
    A(f"ds_write_b64 v14, v[16:17] offset:{L_Q}\nds_write_b64 v14, v[20:21] offset:{L_Q+512}")
    A(f"ds_write_b32 v10, v5 offset:{L_FQ}")
    stamp(4)
    A("L_np:")
    if xit == 'np': end_wave()
    A("s_cmp_eq_u32 s3, 2\ns_cbranch_scc1 L_post")
    if mlate: A(f"s_cmp_eq_u32 s64, {E_M}\ns_cbranch_scc1 L_ml")
    A("s_cmp_eq_u32 s66, 0\ns_cbranch_scc1 L_done")
    A(f"s_cmp_lg_u32 s66, {R_F}\ns_cbranch_scc1 L_ws")
    A("s_cmp_lg_u32 s3, 0\ns_cbranch_scc1 L_done")
    A("L_ws:")
    lspin("ss0", L_CS, 9, 10, 11, 32 if calm else 16)
    A("s_branch L_pre")
    A("L_done:")
    end_wave()
    A("L_post:")
    a_addr(37, 15)
    A("v_bfe_u32 v36, v0, 2, 2")
    for i in range(4): A(f"v_mov_b32 v{16+i}, -1")
    if xl:
        A(f"v_and_b32 v20, 7, v0\ns_lshl_b32 s20, s4, 7\ns_add_u32 s20, s20, {WS_XB}\nv_lshl_add_u32 v20, v20, 3, s20")
        lspin("sg", L_FK, 1, 10, 11, 32 if calm else 8)
        poll("px", lambda: A(f"global_load_dwordx2 v[22:23], v20, {WS} sc1"), lambda: chk_tags([23], 21), 8)
        A("s_getreg_b32 s20, hwreg(HW_REG_XCC_ID, 0, 4)\nv_cmp_ne_u32 vcc, s20, v22\ns_cbranch_vccz L_ng")
        A(f"v_mov_b32 v5, 1\nds_write_b32 v10, v5 offset:{L_MK}")
    A(f"global_store_dwordx4 v37, v[16:19], {WS} sc1")
    A("L_ng:")
    if loc: A(f"v_add_u32 v39, {WS_AL-WS_A}, v37\nglobal_store_dwordx4 v39, v[16:19], {WS}")
    A("v_lshlrev_b32 v38, 3, v36\nv_mov_b32 v5, 1")
    A(f"s_lshl_b32 s20, s4, 11\ns_lshl_b32 s21, s5, {6 if fl else 4}\ns_add_u32 s20, s20, s21\ns_add_u32 s20, s20, {WS_ST}\nv_lshl_add_u32 v36, v36, {4 if fl else 9}, s20")
    A(f"s_waitcnt vmcnt(0)\ns_mov_b64 exec, 1\nds_add_u32 v10, v5 offset:{L_CS}\ns_mov_b64 exec, -1")
    lspin("ss", L_CS, 9, 10, 11, 16 if calm else 8)
    stamp(1)
    for w in range(8): A(f"ds_read_b64 {v2(40+2*w)}, v38 offset:{L_ST+32*w}")
    A("s_waitcnt lgkmcnt(0)")
    A("v_max3_f32 v56, v40, v42, v44\nv_max3_f32 v56, v56, v46, v48\nv_max3_f32 v56, v56, v50, v52\nv_max_f32 v56, v56, v54")
    for w in range(8): A(f"v_sub_f32 v{28+w}, v{40+2*w}, v56")
    for w in range(8): A(f"v_exp_f32 v{28+w}, v{28+w}")
    A("v_mul_f32 v58, v28, v41")
    for w in range(1, 8): A(f"v_fmac_f32 v58, v{28+w}, v{41+2*w}")
    A("s_getreg_b32 s20, hwreg(HW_REG_XCC_ID, 0, 4)\ns_add_u32 s20, s20, s6\nv_mov_b32 v57, s6\nv_mov_b32 v59, s20")
    A("s_mov_b64 exec, 0x1111")
    A(f"global_store_dwordx4 v36, v[56:59], {WS} sc1")
    A("s_mov_b64 exec, -1")
    stamp(2)
    if mlate: A(f"s_cmp_eq_u32 s64, {E_M}\ns_cbranch_scc1 L_ml")
    A(f"s_cmp_eq_u32 s66, 0\ns_cbranch_scc1 L_done\ns_cmp_eq_u32 s66, {R_F}\ns_cbranch_scc1 L_done")
    A("L_pre:")
    assert pi == 2
    A(f"v_and_b32 v37, 7, v0\nv_lshlrev_b32 v37, 3, v37\nv_add_u32 v37, {WS_PV}, v37")
    VL = f"global_load_dwordx2 v[38:39], v37, {WS} sc1"
    def tally():
        A("v_and_b32 v37, 1, v38\nv_cmp_ne_u32 vcc, 0, v37\ns_and_b32 s71, vcc_lo, 0xff\ns_bcnt1_i32_b32 s71, s71\ns_cmp_gt_u32 s71, 4\ns_cselect_b32 s71, 0x2000, 0")
        if use2: A("v_and_b32 v37, 2, v38\nv_cmp_ne_u32 vcc, 0, v37\ns_and_b32 s75, vcc_lo, 0xff\ns_bcnt1_i32_b32 s75, s75\ns_cmp_gt_u32 s75, 4\ns_cselect_b32 s75, 0x4000, 0\ns_or_b32 s71, s71, s75")
        else: A(f"s_or_b32 s71, s71, {p2<<14}")
        A("s_xor_b32 s75, s71, 0x4000")
    if xit == 'pre': end_wave()
    A(f"s_cmp_eq_u32 s66, {R_F}\ns_cbranch_scc1 L_tf")
    A(f"s_cmp_eq_u32 s66, {R_C}\ns_cbranch_scc1 L_tc")
    if bp: lspin("sz", L_CW, 2, 10, 11, 16); wo_finish(0)
    A(f"s_lshl_b32 s20, s4, 11\ns_lshl_b32 s21, s3, {4 if fl else 9}\ns_add_u32 s20, s20, s21\ns_add_u32 s20, s20, {WS_ST}")
    A(f"v_and_b32 v4, 31, v0\nv_lshl_add_u32 v5, v4, {6 if fl else 4}, s20")
    lspin("sb", L_CV, strig, 10, 11, 12 if calm else 4)
    poll("ps", lambda: A(f"global_load_dwordx4 v[40:43], v5, {WS} sc1\n" + VL), lambda: A("v_subrev_u32 v43, s6, v43\nv_xor_b32 v6, s6, v41\nv_lshrrev_b32 v7, 4, v43\nv_or_b32 v6, v6, v7\nv_xor_b32 v7, s6, v39\nv_or_b32 v6, v6, v7\nv_cmp_ne_u32 vcc, 0, v6"), 8)
    tally()
    A("s_getreg_b32 s20, hwreg(HW_REG_XCC_ID, 0, 4)\nv_cmp_eq_u32 vcc, s20, v43")
    A("s_and_b32 s28, vcc_lo, 0xffff\ns_mul_i32 s28, s28, 0x10001\ns_mov_b32 s29, s28\ns_lshr_b32 s30, vcc_lo, 16\ns_mul_i32 s30, s30, 0x10001\ns_mov_b32 s31, s30")
    A("v_mov_b32 v44, v40")
    inrow("v_max_f32", 44, ["row_ror:8", "row_ror:4", "row_ror:2", "row_ror:1"]); xrow("v_max_f32", 44, 45, 16)
    A("v_sub_f32 v40, v40, v44\nv_exp_f32 v40, v40\nv_mul_f32 v44, v40, v42")
    inrow("v_add_f32", 44, ["row_ror:8", "row_ror:4", "row_ror:2", "row_ror:1"]); xrow("v_add_f32", 44, 45, 16)
    A("v_rcp_f32 v44, v44\nv_mul_f32 v40, v40, v44")
    A("s_lshl_b32 s20, s3, 8\nv_lshl_add_u32 v4, v4, 2, s20\nv_lshrrev_b32 v5, 4, v0\nv_lshl_add_u32 v5, v5, 4, s20")
    A(f"ds_write_b32 v4, v40 offset:{L_X}\nds_read_b128 v[12:15], v5 offset:{L_X}\nds_read_b128 v[16:19], v5 offset:{L_X+64}")
    A("v_and_b32 v1, 15, v0\nv_lshrrev_b32 v4, 4, v0\nv_lshlrev_b32 v24, 4, v1\nv_lshl_add_u32 v22, v4, 14, v24\nv_lshlrev_b32 v1, %d, v1\nv_lshl_add_u32 v1, v4, 4, v1" % (7 if fl else 6))
    A(f"s_lshl_b32 s20, s4, 15\ns_lshl_b32 s21, s3, 13\ns_add_u32 s20, s20, s21\ns_add_u32 s20, s20, {WS_A}\nv_add_u32 v1, s20, v{2 if lin else 1}")
    A(f"v_add_u32 v5, {(WS_AL-WS_A) if loc else 0}, v1\nv_cndmask_b32 v6, v1, v5, s[28:29]\nv_cndmask_b32 v7, v1, v5, s[30:31]\nv_add_u32 v8, 4096, v6\nv_add_u32 v9, 4096, v7")
    A("s_lshl_b32 s20, s3, 8\nv_lshl_add_u32 v21, v0, 2, s20")
    if pi is None: A(f"s_lshl_b32 s20, s4, 11\ns_lshl_b32 s21, s67, 8\ns_add_u32 s20, s20, s21\ns_add_u32 s20, s20, {WS_B}\ns_lshl_b32 s21, s3, 16\ns_add_u32 s20, s20, s21\nv_add_u32 v22, s20, v22")
    else:
        A(f"s_and_b32 s20, s4, 3\ns_lshl_b32 s20, s20, 11\ns_lshr_b32 s21, s4, 2\ns_lshl_b32 s21, s21, 15\ns_add_u32 s20, s20, s21\ns_lshl_b32 s21, s67, 8\ns_add_u32 s20, s20, s21\ns_add_u32 s20, s20, {WS_B}")
        A("v_bfe_u32 v22, v0, 4, 1\nv_lshl_add_u32 v22, v22, 16, v24\nv_lshrrev_b32 v25, 5, v0\nv_lshl_add_u32 v22, v25, 13, v22\nv_add_u32 v22, s20, v22\nv_xor_b32 v22, s71, v22")
    A("s_waitcnt lgkmcnt(0)")
    stamp(5)
    AR = lambda c, s_: 40 + 16 * s_ + 4 * c
    D = lambda s_, nt: 72 + 16 * s_ + 4 * nt
    def lda(s_):
        for c in range(4): A(f"global_load_dwordx4 {v4(AR(c,s_))}, v{6+s_+(0 if c<2 else 2)}, {WS} offset:{(64*(c&1)+2048*s_) if fl else (2048*(c&1)+1024*s_)} {lpol}")
    def mm(s_, other_done):
        wr = 12 + 4 * s_
        def fin(nt):
            d = D(s_, nt)
            r = [f"v_pk_mul_f32 {v2(d)}, {v2(d)}, {v2(wr)}", f"v_pk_fma_f32 {v2(d)}, {v2(d+2)}, {v2(wr+2)}, {v2(d)}", f"v_add_f32 v{d}, v{d}, v{d+1}"]
            if other_done: r.append(f"v_add_f32 v{D(0,nt)}, v{D(0,nt)}, v{D(1,nt)}")
            return r
        for c in range(4):
            for nt in (0, 2, 1, 3):
                d = D(s_, nt)
                A(f"v_mfma_f32_16x16x32_bf16 {v4(d)}, {v4(AR(c,s_))}, {v4(104+16*c+4*nt)}, {'0' if c==0 else v4(d)}")
        for grp in zip(fin(0), fin(2), fin(1), fin(3)):
            for l in grp: A(l)
        if other_done: A("v_permlane32_swap_b32 v72, v80\nv_add_f32 v72, v72, v80")
    if dry:
        A("s_mov_b64 s[80:81], 0\ns_mov_b64 s[32:33], 0\ns_mov_b64 s[34:35], 0\ns_mov_b32 s84, 0\ns_mov_b64 exec, 0\ns_branch L_pb0")
        A("L_bdr:\ns_cmp_eq_u32 s84, 0\ns_mov_b32 s84, 1\ns_cbranch_scc1 L_pb1\ns_mov_b64 exec, -1")
    A("s_mov_b64 s[80:81], -1")
    if bdefer:
        if bdefer <= 8: lspin("sd", L_CV, bdefer, 10, 11, 1)
        else: lspin("sd", L_FP, 1, 10, 11, 1)
        A("s_setprio 1"); wo_issue(bearly, 16); lda(0); lda(1); A("s_setprio 3"); wo_finish(8)
        stamp(4)
        A(f"s_mov_b32 s7, {spin}\ns_branch L_pa2")
    if atrig: lspin("sa", L_FO + (4 if atrig > 4 else 0), atrig - 4 if atrig > 4 else atrig, 10, 11, 2)
    A(f"s_mov_b32 s7, {spin}\ns_mov_b64 s[32:33], -1\ns_mov_b64 s[34:35], -1")
    A("L_pa:")
    A("s_mov_b64 exec, s[32:33]"); lda(0)
    A("s_mov_b64 exec, s[34:35]"); lda(1)
    A("s_mov_b64 exec, -1")
    A("L_pa2:")
    A("s_waitcnt vmcnt(4)")
    chk_sent(range(40, 56), 23); A("s_mov_b64 s[32:33], vcc")
    A("s_waitcnt vmcnt(0)")
    chk_sent(range(56, 72), 23); A("s_mov_b64 s[34:35], vcc")
    A("s_cbranch_vccz L_pa1\ns_cmp_eq_u64 s[32:33], 0\ns_cbranch_scc1 L_pa0")
    if tsleep: A(f"s_sleep {tsleep}")
    if bhold:
        A("s_mov_b32 s85, s7"); lspin("sy", L_FO + 4 * (bhold - 1), 1, 10, 11, 2); A("s_mov_b32 s7, s85")
    A("s_sub_u32 s7, s7, 1\ns_cbranch_scc0 L_pa")
    for first in (0, 1):
        sec = 1 - first
        A(f"L_pa{first}:")
        mk = sp(32 + 2 * sec)
        A(f"s_cmp_eq_u64 {mk}, 0\ns_cbranch_scc1 L_pb{first}")
        A(f"s_mov_b64 exec, {mk}"); lda(sec); A("s_mov_b64 exec, -1")
        A(f"L_pb{first}:")
        mm(first, False)
        A(f"s_mov_b64 exec, {mk}\ns_cbranch_execz L_pd{first}")
        for _ in range(pd - 1): lda(sec)
        A(f"L_pc{first}:")
        A(f"s_waitcnt vmcnt({4*(pd-1)})")
        chk_sent(range(40 + 16 * sec, 56 + 16 * sec), 23)
        A(f"s_cbranch_vccz L_pd{first}\ns_mov_b64 exec, vcc")
        lda(sec)
        A(f"s_sub_u32 s7, s7, 1\ns_cbranch_scc0 L_pc{first}\ns_waitcnt vmcnt(0)")
        A(f"L_pd{first}:")
        A("s_mov_b64 exec, s[80:81]")
        stamp(6)
        mm(sec, True)
        if first == 0: A("s_branch L_pe")
    A("L_pe:\ns_nop 0")
    A("v_permlane32_swap_b32 v76, v84\nv_add_f32 v76, v76, v84")
    A("v_permlane16_swap_b32 v72, v76\nv_add_f32 v72, v72, v76")
    A(f"ds_write_b32 v21, v72 offset:{L_RED}")
    A("s_waitcnt lgkmcnt(0)")
    if dry: A("s_cbranch_execz L_bnb")
    A("s_barrier")
    A(f"s_cmp_ge_u32 s3, {2 if R == 8 else 1}\ns_cbranch_scc1 L_done")
    A("L_bnb:")
    for w in range(4): A(f"ds_read_b128 {v4(88+4*w)}, v24 offset:{L_RED+256*w}")
    assert R in (4, 8)
    A("s_waitcnt lgkmcnt(2)\nv_pk_add_f32 v[88:89], v[88:89], v[92:93]\nv_pk_add_f32 v[90:91], v[90:91], v[94:95]")
    A("s_waitcnt lgkmcnt(0)\nv_pk_add_f32 v[96:97], v[96:97], v[100:101]\nv_pk_add_f32 v[98:99], v[98:99], v[102:103]")
    A("v_pk_add_f32 v[88:89], v[88:89], v[96:97]\nv_pk_add_f32 v[90:91], v[90:91], v[98:99]")
    if dry: A("s_cbranch_execz L_bdr")
    A(f"global_store_dwordx4 v22, v[88:91], {WS} sc1")
    stamp(7)
    end_wave()
    A("L_tc:")
    A("s_mov_b32 s26, s67")
    srd(8, P_W1, 512 * 3584); srd(12, P_W2, 1792 * 1024)
    A("v_lshrrev_b32 v23, 4, v0\nv_lshlrev_b32 v23, 4, v23")
    A("v_lshrrev_b32 v1, 2, v0\ns_mov_b32 s20, 3584\nv_mul_lo_u32 v1, v1, s20\nv_and_b32 v12, 3, v0\nv_lshl_add_u32 v1, v12, 4, v1")
    A(f"s_mul_i32 s20, s3, {128*3584}\ns_lshl_b32 s21, s26, 6\ns_add_u32 s20, s20, s21")
    A("v_lshlrev_b32 v18, 6, v23\nv_and_b32 v13, 15, v0\nv_lshl_add_u32 v18, v13, 4, v18")
    A("s_lshl_b32 s27, s26, 15\ns_lshl_b32 s21, s3, 8\ns_add_u32 s27, s27, s21")
    A(f"s_lshl_b32 s23, s3, 14\ns_add_u32 s23, s23, {L_WT}")
    if not w1early: dma([f"buffer_load_dwordx4 v1, s[8:11], s20 offen {w1pol} lds\ns_add_u32 s20, s20, {16*3584}" for i in range(8)], 0)
    def w2load():
        A("s_add_u32 s23, s23, 8192")
        dma([f"buffer_load_dwordx4 v18, s[12:15], s27 offen {wpol} lds\ns_add_u32 s27, s27, 4096" for i in range(8)], 0)
    A("v_lshrrev_b32 v12, 4, v0\nv_bfe_u32 v13, v0, 2, 2\nv_and_b32 v14, 3, v0\nv_lshl_add_u32 v14, v14, 3, s23")
    A("v_lshl_add_u32 v1, v12, 9, v14\nv_lshl_add_u32 v1, v13, 6, v1")
    A("v_lshl_add_u32 v19, v12, 10, v14\nv_lshl_add_u32 v19, v13, 8, v19")
    if not w2late: w2load()
    A("v_and_b32 v20, 31, v0\nv_lshlrev_b32 v20, 3, v20\nv_lshrrev_b32 v21, 5, v0\nv_lshl_add_u32 v20, v21, 2, v20")
    A("s_lshl_b32 s20, s3, 8\nv_add_u32 v20, s20, v20")
    A(f"global_load_dword v22, v20, {sp(P_X)}\nglobal_load_dwordx4 v[28:31], v2, {sp(P_X)}")
    A(f"v_lshlrev_b32 v21, 1, v20\nv_add_u32 v21, {WS_MOD}, v21\nv_add_u32 v24, 4096, v21")
    assert not mlate
    poll("pm", lambda: A(f"global_load_dwordx2 v[40:41], v21, {WS} sc1\nglobal_load_dwordx2 v[42:43], v21, {WS} offset:2048 sc1\nglobal_load_dwordx2 v[44:45], v24, {WS} sc1\n" + VL),
         lambda: chk_tags([41, 43, 45, 39], 46), 2 if mlate else 16)
    tally()
    for c in range(4):
        for mt in range(2):
            for hi in range(2):
                A(f"ds_read_b64_tr_b16 {v2(104+8*c+4*mt+2*hi)}, v1 offset:{(32*c+4*hi)*64+mt*32}")
        if c & 1: A("s_waitcnt lgkmcnt(0)")
    unpack(4, [22], 1)
    unpack(48, [28, 29, 30, 31], 4)
    A("v_pk_add_f32 v[48:49], v[48:49], v[50:51]\nv_pk_add_f32 v[52:53], v[52:53], v[54:55]\nv_pk_add_f32 v[48:49], v[48:49], v[52:53]\nv_add_f32 v48, v48, v49")
    wave_reduce("v_add_f32", 48, 49)
    A(f"v_mul_f32 v48, {f2x(1/512)}, v48\nv_sub_f32 v4, v4, v48\nv_sub_f32 v5, v5, v48")
    def w2tr():
        for tau in range(8):
            for hi in range(2):
                A(f"ds_read_b64_tr_b16 {v2(136+4*tau+2*hi)}, v19 offset:{8192+hi*4096+tau*32}")
            if tau % 4 == 3: A("s_waitcnt lgkmcnt(0)")
    if mlate:
        lspin("sv0", L_CV, 4, 10, 11, 16); lspin("sv", L_FP, 1, 10, 11, 2); w2load(); A("s_waitcnt vmcnt(0)"); w2tr(); stamp(4)
    unpack(6, [40, 44], 2)
    A("v_add_f32 v8, 1.0, v8\nv_add_f32 v9, 1.0, v9\nv_cvt_pk_bf16_f32 v44, v8, v9")
    unpack(8, [44], 1)
    A(f"ds_write_b32 v20, v44 offset:{L_U}\nds_write_b32 v20, v42 offset:{L_U+1024}")
    A("v_add_u32 v21, s20, v23\nv_and_b32 v22, 1, v0\nv_lshl_add_u32 v22, v22, 10, v21")
    for c in range(4): A(f"ds_read_b128 {v4(48+4*c)}, v22 offset:{L_U+64*c}")
    A("s_waitcnt lgkmcnt(0)")
    for c in range(4):
        for mt in range(2):
            A(f"v_mfma_f32_16x16x32_bf16 {v4(24+4*mt)}, {v4(104+8*c+4*mt)}, {v4(48+4*c)}, {'0' if c==0 else v4(24+4*mt)}")
    A("s_mov_b32 exec_lo, 0x00030003\ns_mov_b32 exec_hi, 0x00030003")
    A(f"ds_write_b128 v22, v[24:27] offset:{L_GS}\nds_write_b128 v22, v[28:31] offset:{L_GS+64}")
    A("s_mov_b64 exec, 1\nv_mov_b32 v33, 1")
    A(f"ds_add_u32 v10, v33 offset:{L_CP}")
    A("s_mov_b64 exec, -1")
    A("v_and_b32 v1, 31, v0\nv_lshlrev_b32 v1, 4, v1\nv_lshrrev_b32 v16, 5, v0\nv_lshl_add_u32 v1, v16, 11, v1")
    def bcopy():
        A(f"s_bfe_u32 s20, s4, 0x10001\ns_lshl_b32 s20, s20, 16\ns_lshr_b32 s21, s4, 2\ns_lshl_b32 s21, s21, 13\ns_xor_b32 s21, s21, s71\ns_add_u32 s20, s20, s21\ns_add_u32 s20, s20, {WS_B}")
    if pi is None:
        A(("s_lshr_b32 s21, s4, 1" if rx else f"s_and_b32 s21, {'s4' if R == 8 else 's26'}, {R-1}") + f"\ns_lshl_b32 s21, s21, 14\ns_lshl_b32 s20, s3, 9\ns_add_u32 s20, s20, s21\ns_add_u32 s20, s20, {WS_B}\nv_add_u32 v1, s20, v1")
        A("v_add_u32 v12, 4096, v1\nv_add_u32 v13, 8192, v1\nv_add_u32 v14, 12288, v1")
    else:
        bcopy()
        A("s_lshl_b32 s21, s3, 9\ns_add_u32 s20, s20, s21\nv_add_u32 v1, s20, v1\nv_add_u32 v12, 4096, v1\nv_add_u32 v13, 32768, v1\nv_add_u32 v14, 36864, v1")
    A(f"s_lshl_b32 s20, s3, 8\nv_lshl_add_u32 v22, v16, 2, s20")
    A("v_and_b32 v33, 3, v0\nv_lshlrev_b32 v33, 8, v33\nv_bfe_u32 v32, v0, 3, 1\nv_lshl_add_u32 v32, v32, 6, v33\nv_add_u32 v32, v32, v23")
    A(f"s_mov_b32 s22, {f2x(1/512)}\nv_mov_b32 v34, {f2x(1e-5)}")
    lspin("sp", L_CP, 4, 10, 11, 0 if mlate else 4, lambda: A(f"ds_read_b128 v[24:27], v32 offset:{L_GS}\nds_read_b128 v[28:31], v32 offset:{L_GS+1024}"))
    for qp in ("[1,0,3,2]", "[2,3,0,1]"):
        for i in range(8): A(f"v_add_f32_dpp v{24+i}, v{24+i}, v{24+i} quad_perm:{qp} {DPPF}")
    if dry:
        A("s_mov_b64 s[80:81], 0\ns_mov_b64 s[82:83], 0\ns_mov_b64 exec, 0\ns_branch L_pbd\nL_cdr:\ns_mov_b64 exec, -1")
    A("s_mov_b64 s[80:81], -1\ns_mov_b32 s82, 0x00010001\ns_mov_b32 s83, 0x00010001")
    if not mlate:
        stamp(4)
        lspin("sv0", L_CV, 4, 10, 11, 16); lspin("sv", L_FP, 1, 10, 11, 2)
        if w2late: w2load()
    cs = 13 if cpad else 12
    if pi is None: A(f"s_lshl_b32 s20, s3, {cs+3}\ns_lshl_b32 s21, s26, {cs-6}\ns_add_u32 s20, s20, s21\ns_add_u32 s20, s20, {WS_C}")
    else:
        if cpad: A(f"s_and_b32 s20, s3, 1\ns_lshl_b32 s20, s20, 18\ns_lshr_b32 s21, s3, 1\ns_lshl_b32 s21, s21, 13\ns_xor_b32 s21, s21, s75\ns_add_u32 s20, s20, s21\ns_lshl_b32 s21, s26, 7\ns_add_u32 s20, s20, s21\ns_add_u32 s20, s20, {WS_C}")
        else: A(f"s_and_b32 s20, s3, 1\ns_lshl_b32 s20, s20, 17\ns_lshr_b32 s21, s3, 1\ns_lshl_b32 s21, s21, 13\ns_xor_b32 s21, s21, s75\ns_add_u32 s20, s20, s21\ns_lshl_b32 s21, s26, 6\ns_add_u32 s20, s20, s21\ns_add_u32 s20, s20, {WS_C}")
        cs = 15
    if cpad: A(f"v_bfe_u32 v35, v0, 2, 3\nv_lshlrev_b32 v35, {cs}, v35\nv_and_b32 v36, 3, v0\nv_lshl_add_u32 v35, v36, 4, v35\nv_add_u32 v35, s20, v35")
    else: A("v_bfe_u32 v35, v0, 3, 2\nv_lshlrev_b32 v35, 15, v35\nv_bfe_u32 v36, v0, 2, 1\nv_lshl_add_u32 v35, v36, 12, v35\nv_and_b32 v36, 3, v0\nv_lshl_add_u32 v35, v36, 4, v35\nv_add_u32 v35, s20, v35")
    if not mlate: A("s_waitcnt vmcnt(0)"); w2tr()
    stamp(5)
    G = 40; Hh = 88
    def gather4(name, base, addr, tmp, sleep):
        if g4:
            A(f"s_mov_b32 s7, {spin}")
            for i in range(4): A(f"global_load_dwordx4 {v4(base+4*i)}, {addr(i)} sc1\ns_mov_b64 {sp(28+2*i)}, -1")
            A(f"L_{name}t:\ns_waitcnt vmcnt(0)\ns_mov_b32 s21, 0")
            for i in range(4):
                A(f"s_mov_b64 exec, {sp(28+2*i)}\ns_cbranch_execz L_{name}s{i}")
                A(f"v_max3_u32 v{tmp}, v{base+4*i}, v{base+4*i+1}, v{base+4*i+2}\nv_max_u32 v{tmp}, v{tmp}, v{base+4*i+3}\nv_cmp_eq_u32 vcc, -1, v{tmp}")
                A(f"s_mov_b64 {sp(28+2*i)}, vcc\ns_cbranch_vccz L_{name}s{i}\ns_mov_b64 exec, vcc\nglobal_load_dwordx4 {v4(base+4*i)}, {addr(i)} sc1\ns_mov_b32 s21, 1")
                A(f"L_{name}s{i}:")
            A(f"s_mov_b64 exec, -1\ns_cmp_eq_u32 s21, 0\ns_cbranch_scc1 L_{name}d\ns_sub_u32 s7, s7, 1\ns_cbranch_scc0 L_{name}t\ns_waitcnt vmcnt(0)")
            A(f"L_{name}d:")
            return
        A(f"s_mov_b32 s7, {spin}")
        for _ in range(pd):
            for i in range(4): A(f"global_load_dwordx4 {v4(base+4*i)}, {addr(i)} sc1")
        A(f"L_{name}t:")
        A(f"s_waitcnt vmcnt({4*(pd-1)})")
        for i in range(4): A(f"v_max3_u32 v{tmp+i}, v{base+4*i}, v{base+4*i+1}, v{base+4*i+2}")
        for i in range(4): A(f"v_max_u32 v{tmp+i}, v{tmp+i}, v{base+4*i+3}")
        A(f"v_max3_u32 v{tmp+4}, v{tmp}, v{tmp+1}, v{tmp+2}\nv_max_u32 v{tmp+4}, v{tmp+4}, v{tmp+3}\nv_cmp_eq_u32 vcc, -1, v{tmp+4}\ns_cbranch_vccz L_{name}d")
        for i in range(4): A(f"v_cmp_eq_u32 {sp(28+2*i)}, -1, v{tmp+i}")
        if sleep: A(f"s_sleep {sleep}")
        for i in range(4):
            A(f"s_or_b64 exec, {sp(28+2*i)}, 1\nglobal_load_dwordx4 {v4(base+4*i)}, {addr(i)} sc1")
        A(f"s_mov_b64 exec, -1\ns_sub_u32 s7, s7, 1\ns_cbranch_scc0 L_{name}t")
        A(f"L_{name}d:")
    gather4("pb", Hh, lambda i: f"v{1 if i==0 else 11+i}, {WS}", 56, csleep)
    stamp(6)
    A(f"v_pk_add_f32 {v2(G)}, {v2(Hh)}, {v2(Hh+4)}\nv_pk_add_f32 {v2(G+2)}, {v2(Hh+2)}, {v2(Hh+6)}\nv_pk_add_f32 {v2(G+8)}, {v2(Hh+8)}, {v2(Hh+12)}\nv_pk_add_f32 {v2(G+10)}, {v2(Hh+10)}, {v2(Hh+14)}")
    A(f"v_pk_add_f32 {v2(G)}, {v2(G)}, {v2(G+8)}\nv_pk_add_f32 {v2(G+2)}, {v2(G+2)}, {v2(G+10)}")
    A(f"v_permlane32_swap_b32 v{G}, v{G+2}\nv_permlane32_swap_b32 v{G+1}, v{G+3}")
    A(f"v_pk_add_f32 {v2(G)}, {v2(G)}, {v2(G+2)}")
    A(f"v_pk_fma_f32 v[4:5], {v2(G)}, v[6:7], v[4:5]")
    A("v_pk_mul_f32 v[6:7], v[4:5], v[8:9]\nv_cvt_pk_bf16_f32 v6, v6, v7")
    A(f"ds_write_b32 v20, v6 offset:{L_U}")
    for c in range(4): A(f"ds_read_b128 {v4(44+4*c)}, v21 offset:{L_U+64*c}")
    A("v_add_f32 v16, v4, v5\nv_mul_f32 v17, v4, v4\nv_fmac_f32 v17, v5, v5")
    A("v_permlane32_swap_b32 v16, v17\nv_add_f32 v16, v16, v17")
    xrow("v_add_f32", 16, 17, 16)
    steps = ["row_ror:8", "row_ror:4", "row_ror:2", "row_ror:1"]
    for c in range(4):
        A(f"s_waitcnt lgkmcnt({3-c})")
        for mt in range(2):
            A(f"v_mfma_f32_16x16x32_bf16 {v4(60+4*mt)}, {v4(104+8*c+4*mt)}, {v4(44+4*c)}, {'0' if c==0 else v4(60+4*mt)}")
        inrow("v_add_f32", 16, [steps[c]])
    A("s_mov_b64 exec, s[82:83]")
    A(f"ds_write_b32 v22, v16 offset:{L_RED+128}")
    A(f"ds_write_b128 v21, v[60:63] offset:{L_RED}\nds_write_b128 v21, v[64:67] offset:{L_RED+64}")
    A("s_mov_b64 exec, s[80:81]")
    A("s_waitcnt lgkmcnt(0)")
    if dry: A("s_cbranch_execz L_cnb")
    A("s_barrier\nL_cnb:")
    A(f"ds_read_b64 v[12:13], v33 offset:{L_RED+128}\nds_read_b128 v[40:43], v32 offset:{L_RED}")
    A("s_waitcnt lgkmcnt(0)")
    for qp in ("[1,0,3,2]", "[2,3,0,1]"):
        for r in (12, 13, 40, 41, 42, 43): A(f"v_add_f32_dpp v{r}, v{r}, v{r} quad_perm:{qp} {DPPF}")
    A("v_mul_f32 v12, s22, v12\nv_fma_f32 v14, v13, s22, v34\nv_fma_f32 v14, -v12, v12, v14\nv_max_f32 v14, v14, v34\nv_rsq_f32 v14, v14")
    for q in range(2): A(f"v_pk_fma_f32 {v2(40+2*q)}, {v2(24+2*q)}, v[12:13], {v2(40+2*q)} op_sel_hi:[1,0,1] neg_lo:[0,1,0] neg_hi:[0,1,0]")
    for q in range(2): A(f"v_pk_fma_f32 {v2(40+2*q)}, {v2(40+2*q)}, v[14:15], {v2(28+2*q)} op_sel_hi:[1,0,1]")
    for q in range(2): A(f"v_cvt_pk_bf16_f32 v{48+q}, v{40+2*q}, v{41+2*q}")
    for q in range(2): A(f"v_pk_max_i16 v{48+q}, v{48+q}, 0")
    for q in range(2): A(f"v_mov_b32_dpp v{50+q}, v{48+q} row_shl:8 {DPPF} bound_ctrl:0")
    for tau in (0, 2, 4, 6, 1, 3, 5, 7): A(f"v_mfma_f32_16x16x32_bf16 {v4(56+4*tau)}, v[48:51], {v4(136+4*tau)}, 0")
    for j in (1, 2, 3): A(f"v_mov_b32 v{56+j}, v{56+8*j}")
    for j in range(4): A(f"v_mov_b32_dpp v{56+j}, v{60+8*j} quad_perm:[0,1,2,3] row_mask:0x2 bank_mask:0xf")
    if dry: A("s_cbranch_execz L_cdr")
    A("s_mov_b32 exec_hi, 0")
    A(f"global_store_dwordx4 v35, v[56:59], {WS} sc1")
    stamp(7)
    end_wave()
    A("L_tf:")
    prb("cs")
    A("s_mov_b32 s26, s67\ns_lshr_b32 s20, s26, 3\ns_lshl_b32 s20, s20, 7\ns_and_b32 s21, s26, 7\ns_lshl_b32 s21, s21, 2\ns_add_u32 s20, s20, s21")
    A("v_and_b32 v4, 3, v0\nv_lshrrev_b32 v5, 4, v0\nv_lshl_add_u32 v4, v5, 5, v4\nv_add_u32 v4, s20, v4\nv_lshlrev_b32 v5, 1, v4")
    A(f"global_load_ushort v8, v5, {sp(P_X)}")
    if tw: A(f"global_load_ushort v33, v5, {sp(P_OUT)}")
    A(f"v_lshrrev_b32 v6, 1, v4\nv_lshlrev_b32 v6, 3, v6\nv_add_u32 v6, {WS_MOD}, v6\nv_add_u32 v7, 6144, v6")
    if mlate: lspin("sf0", L_FP, 1, 10, 11, 16)
    poll("pg", lambda: A(f"global_load_dwordx2 v[12:13], v6, {WS} sc1\nglobal_load_dwordx2 v[14:15], v7, {WS} sc1\n" + VL),
         lambda: chk_tags([13, 15, 39], 16), 4 if mlate else 16)
    tally()
    A("v_lshlrev_b32 v8, 16, v8")
    A("v_and_b32 v16, 1, v4\nv_cmp_eq_u32 vcc, 0, v16")
    A("v_lshlrev_b32 v16, 16, v12\nv_and_b32 v17, 0xffff0000, v12\nv_cndmask_b32 v9, v17, v16, vcc")
    A("v_lshlrev_b32 v16, 16, v14\nv_and_b32 v17, 0xffff0000, v14\nv_cndmask_b32 v12, v17, v16, vcc")
    if pi is None:
        A(f"v_bfe_u32 v6, v0, 2, 2\nv_lshlrev_b32 v6, 12, v6\nv_lshl_add_u32 v6, v4, 2, v6\nv_add_u32 v6, {WS_B}, v6")
        if R == 8: A("s_lshl_b32 s20, s4, 14\nv_add_u32 v6, s20, v6")
        if rx: A("s_lshr_b32 s20, s4, 1\ns_lshl_b32 s20, s20, 14\nv_add_u32 v6, s20, v6")
        if cpad: A(f"s_lshl_b32 s20, s26, 13\ns_add_u32 s20, s20, {WS_C}\nv_lshrrev_b32 v7, 2, v0\nv_lshl_add_u32 v7, v7, 6, v2\nv_add_u32 v7, s20, v7\nv_add_u32 v32, 4096, v7")
        else: A(f"s_lshl_b32 s20, s26, 12\ns_add_u32 s20, s20, {WS_C}\nv_add_u32 v7, s20, v2")
    else:
        bcopy()
        A("v_bfe_u32 v6, v0, 2, 1\nv_lshlrev_b32 v6, 12, v6\nv_bfe_u32 v7, v0, 3, 1\nv_lshl_add_u32 v6, v7, 15, v6\nv_lshl_add_u32 v6, v4, 2, v6\nv_add_u32 v6, s20, v6")
        if cpad: A(f"s_and_b32 s20, s26, 15\ns_lshl_b32 s20, s20, 15\ns_lshr_b32 s21, s26, 4\ns_lshl_b32 s21, s21, 13\ns_xor_b32 s21, s21, s75\ns_add_u32 s20, s20, s21\ns_add_u32 s20, s20, {WS_C}\nv_lshrrev_b32 v7, 2, v0\nv_lshl_add_u32 v7, v7, 6, v2\nv_add_u32 v7, s20, v7\nv_add_u32 v32, 4096, v7")
        else: A(f"s_bfe_u32 s20, s26, 0x30001\ns_lshl_b32 s20, s20, 15\ns_and_b32 s21, s26, 1\ns_lshl_b32 s21, s21, 12\ns_add_u32 s20, s20, s21\ns_lshr_b32 s21, s26, 4\ns_lshl_b32 s21, s21, 13\ns_xor_b32 s21, s21, s75\ns_add_u32 s20, s20, s21\ns_add_u32 s20, s20, {WS_C}\nv_add_u32 v7, s20, v2")
    if dry: A("s_mov_b64 exec, 0\ns_branch L_fd\nL_fdr:\ns_mov_b64 exec, -1")
    lspin("sf", L_FP, 1, 10, 11, 16 if calm else 4)
    prb("fp")
    poll("pxb", lambda: A(f"global_load_dword v13, v6, {WS} sc1\nglobal_load_dword v14, v6, {WS} offset:2048 sc1"), lambda: chk_sent([13, 14], 15), xsleep)
    A("v_add_f32 v13, v13, v14")
    inrow("v_add_f32", 13, ["row_ror:8", "row_ror:4"])
    A("v_fma_f32 v8, v9, v13, v8")
    prb("b")
    stamp(6)
    if fdelay: A(f"s_sleep {fdelay}")
    gather4("pc", 40, lambda i: f"v{(7 if i<2 else 32) if cpad else 7}, {WS} offset:{2048*(i&1) if cpad else 1024*i}", 56, fsleep)
    A("L_fd:")
    stamp(7)
    A("v_pk_add_f32 v[16:17], v[40:41], v[44:45]\nv_pk_add_f32 v[18:19], v[42:43], v[46:47]\nv_pk_add_f32 v[24:25], v[48:49], v[52:53]\nv_pk_add_f32 v[26:27], v[50:51], v[54:55]")
    A("v_pk_add_f32 v[16:17], v[16:17], v[24:25]\nv_pk_add_f32 v[18:19], v[18:19], v[26:27]")
    A("v_permlane32_swap_b32 v16, v18\nv_permlane32_swap_b32 v17, v19\nv_pk_add_f32 v[16:17], v[16:17], v[18:19]")
    A("v_permlane16_swap_b32 v16, v17\nv_add_f32 v16, v16, v17")
    inrow("v_add_f32", 16, ["row_ror:8", "row_ror:4"])
    A("v_fma_f32 v16, v12, v16, v8\nv_cvt_pk_bf16_f32 v16, v16, v16")
    if dry: A("s_cbranch_execz L_fdr")
    A("s_mov_b32 exec_lo, 0x000f000f\ns_mov_b32 exec_hi, 0x000f000f")
    A(f"global_store_short v5, v16, {sp(P_OUT)} {osc}")
    A("s_cmp_lg_u32 s26, 0\ns_cbranch_scc1 L_tfe")
    if dbgp:
        A(f"s_mov_b64 exec, 1\nv_mov_b32 v20, s{P_WS}\nv_mov_b32 v21, s{P_WS+1}\nv_mov_b32 v22, s71\nv_mov_b32 v23, s{P_K}\nglobal_store_dwordx4 v10, v[20:23], {sp(P_DBG)}")
    A("s_mov_b64 exec, 1\nv_mov_b32 v18, s6")
    A(f"global_store_dword v10, v18, {WS} {osc}")
    if amp2:
        A(f"s_memrealtime s[96:97]\ns_waitcnt lgkmcnt(0)\ns_sub_u32 s94, s94, s92\ns_lshl_b32 s94, s94, {amp2}\nL_fz:\ns_memrealtime s[98:99]\ns_waitcnt lgkmcnt(0)\ns_sub_u32 s98, s98, s96\ns_cmp_lt_u32 s98, s94\ns_cbranch_scc1 L_fz")
    if amp:
        A(f"s_memrealtime s[96:97]\ns_waitcnt lgkmcnt(0)\ns_sub_u32 s94, s96, s94\ns_lshl_b32 s94, s94, {amp}\nL_fy:\ns_memrealtime s[98:99]\ns_waitcnt lgkmcnt(0)\ns_sub_u32 s98, s98, s96\ns_cmp_lt_u32 s98, s94\ns_cbranch_scc1 L_fy")
    if fixend:
        prb("end")
        A(f"L_fx:\ns_memrealtime s[98:99]\ns_waitcnt lgkmcnt(0)\ns_sub_u32 s98, s98, {'s94' if probe else 's96'}\ns_cmp_lt_u32 s98, {fixend}\ns_cbranch_scc1 L_fx")
    A("L_tfe:")
    stamp(4)
    end_wave()
    if stamps:
        A("L_stampout:")
        if st0: A("s_waitcnt lgkmcnt(0)\nv_writelane_b32 v3, s90, 0\ns_cmp_lt_u32 s3, 4\ns_cbranch_scc1 L_so9\nv_writelane_b32 v3, s92, 1\nv_writelane_b32 v3, s94, 2\nL_so9:")
        if stamps == 2:
            A("s_cmp_lg_u32 s2, 32\ns_cbranch_scc1 L_exit\ns_and_b32 s20, s3, 11\ns_cbranch_scc1 L_exit")
            A("s_mov_b64 exec, 0xff\ns_lshl_b32 s20, s3, 3\nv_lshl_add_u32 v1, v0, 2, s20")
            A(f"global_store_dword v1, v3, {sp(P_DBG)}\ns_endpgm")
        A("s_mov_b64 exec, 0xff")
        A("s_mul_i32 s20, s2, 12\ns_add_u32 s20, s20, s3\ns_lshl_b32 s20, s20, 5")
        A(f"s_add_u32 s20, s20, {WS_STAMP}")
        A("v_lshl_add_u32 v1, v0, 2, s20")
        A(f"global_store_dword v1, v3, {WS}")
    A("L_exit:\ns_endpgm")
    A(".p2align 6\n.type L_tab,@object\nL_tab:")
    for wg in range(256):
        r = roles[(xp[wg & 7] if xp else wg & 7), wg >> 3]; skip = T - r['n']
        assert skip < 8, (wg, r)
        A(f".long {(r['pre'] - skip + 16) | skip << 12 | r['e'] << 15 | r['ei'] << 18 | r['l'] << 23 | r['li'] << 25:#x}")
    A("L_endcode:")
    A('.section .rodata,"a"\n.p2align 6')
    A(f".amdhsa_kernel {NAME}")
    for l in ["next_free_vgpr 168", "next_free_sgpr 102", "accum_offset 168", "group_segment_fixed_size 0", "kernarg_size 104",
              "user_sgpr_count 2", "user_sgpr_kernarg_segment_ptr 1", "system_sgpr_workgroup_id_x 1"]:
        A("  .amdhsa_" + l)
    A(".end_amdhsa_kernel")
    txt = A.finish()
    for lab, cm in NOTES.items():
        assert ("\n" + lab + ":\n") in txt, lab
        txt = txt.replace("\n" + lab + ":\n", "\n" + "".join("; " + c + "\n" for c in cm.split("|")) + lab + ":\n")
    return txt

if __name__ == "__main__":
    out = sys.argv[1]; kw = {}
    for a in sys.argv[2:]:
        k, v = a.split("=", 1)
        try: v = ast.literal_eval(v)
        except Exception: pass
        kw[k] = v
    open(out, "w").write(gen(**kw))
    import json
    roles, T = make_plan(kw.get('plan', 'A'), **{k: v for k, v in kw.items() if k in ('cH','cQ','cM','cB','cC','T','c3','Fx','adj')})
    json.dump([[roles[wg & 7, wg >> 3][k] for k in ('e', 'l', 'n')] for wg in range(256)], open(out + ".roles", "w"))
```

```python
import sys, struct, ast
from asmlib import Asm
NAME = "adaLN_cond__gqa_block_cached__dense_activation_relu__decode_kernel"
def f2x(f): return "0x%08x" % struct.unpack("<I", struct.pack("<f", f))[0]

WS_P = 0x180000; WS_PV = 0x15000; WS_XB = 0x14000; WS_QL = 0x10000; WS_H = 0x18000; WS_MOD = 0x4000; WS_Q = 0x8000; WS_ST = 0xC000
WS_AL = 0x140000; WS_A = 0x100000; WS_B = 0x40000; WS_C = 0x80000
WS_STAMP = 0x8000000
L_CG = 0; L_FQ = 4; L_CS = 8; L_CT = 68; L_CP = 16; L_FK = 20; L_CV = 24; L_CW = 28; L_FO = 32; L_MK = 64; L_FP = 12
L_ST = 256; L_Q = 1024; L_GP = 2048; L_X = 3072; L_RED = 4096; L_U = 5120; L_GS = 8192
L_OP = 16384; L_WT = 32768; LDS_SIZE = 98304
DPPF = "row_mask:0xf bank_mask:0xf"
P_X, P_K, P_V, P_WQ, P_WO, P_BX, P_W1, P_W2, P_C, P_WM, P_OUT, P_DBG, P_WS = [36 + 2 * i for i in range(13)]
def sp(n): return f"s[{n}:{n+1}]"
def v4(n): return f"v[{n}:{n+3}]"
def v2(n): return f"v[{n}:{n+1}]"
WS = sp(P_WS)

DOC = '''; ---------------------------------------------------------------------------------------------
; One persistent launch, 256 workgroups (one per CU) x 12 waves.  x = wg&7 = kv head, a = wg>>3 = key split.
;     max, V tiles -> v_perm transpose -> MFMA, workgroup partial summed through LDS and published.
;     H: sa/ca slice of silu(c)@w_mod   Q: LN(x)*(1+ca)+sa, q slice   M: ga/sb/cb/gb slice
;     B: split combine (global softmax weights) + wo slice            C: residual, LN, FFN slice
;        vote) so that the two cross-die hand-off buffers sit next to their readers; affects placement only
; ---------------------------------------------------------------------------------------------'''
NOTES = {
 "L_stream": "---- stream waves: first K loads go out before anything else",
 "L_service": "---- service waves: role decode, LDS flag init, code prefetch into L2, H role (sa/ca GEMV + sentinel fill)",
 "L_gfin": "---- common GEMV end: lane/wave reduction, last wave publishes the tagged granules",
 "L_body": "---- stream waves: rest of K, wait for q, S = K.q, softmax, P.V, workgroup reduction, publish",
 "L_nh": "---- Q role: LN(x)*(1+ca)+sa with the reference's bf16 roundings, q slice",
 "L_role": "---- P role: one wave compares the latency of a few cold loads from neighbouring 8 KiB blocks of d_ws and votes|which block parity is on which die; the vote only picks where the B and C hand-off buffers live (no output depends on it)",
 "L_m": "---- M role: ga/sb/cb/gb GEMV",
 "L_wb": "---- B role, early part: publish XCC id, wo slice -> LDS -> MFMA operands",
 "L_qpoll": "---- w1 slice (C role), q fetch (wave 1)",
 "L_post": "---- wave 2: sentinel fill of this workgroup's partial slot, workgroup softmax max/sum",
 "L_pre": "---- B role, late part: global softmax weights, gather the 32 partials, x wo, publish",
 "L_tc": "---- C role: residual + LN folded into FFN1, relu, FFN2 partial",
 "L_tf": "---- F role: x2 + gb * sum of FFN partials -> d_out; new tag seed -> ws[0]",
 "L_tab": "per-workgroup word: [11:0] extra-key offset+16, [14:12] skipped slots, [17:15] early role, [22:18] index, [24:23] late role, [30:25] index",
}
E_H, E_Q, E_M, E_B, E_P = 1, 2, 3, 4, 5
R_B, R_C, R_F = 1, 2, 3
def make_plan(plan, **pk):
    P = dict(PLANS[plan]); P.update(pk)
    roles = {(x, a): dict(e=0, ei=0, l=0, li=0) for x in range(8) for a in range(32)}
    hi = mi = ci = fi = 0
    for x in range(8):
        a = 0
        for _ in range(P['H'][x]): roles[x, a].update(e=E_H, ei=hi); hi += 1; a += 1
        for c in range(8):
            roles[x, a].update(e=E_Q, ei=c)
            if (x & 1 == P['Fx'] if 'Fx' in P else c in (0, 1, 4, 5)): roles[x, a].update(l=R_F, li=fi); fi += 1
            a += 1
        for c in range(8): roles[x, a].update(e=E_B, ei=c, l=R_B, li=c); a += 1
        for _ in range(P['M'][x]): roles[x, a].update(e=E_M, ei=mi); mi += 1; a += 1
        assert a <= 32
        cand = [b for b in range(31, -1, -1) if roles[x, b]['e'] == 0] + [b for b in range(32) if roles[x, b]['e'] == E_H] + [b for b in range(32) if roles[x, b]['e'] == E_M]
        for b in cand[:P['C'][x]]: roles[x, b].update(l=R_C, li=ci); ci += 1
    assert (hi, mi, ci, fi) == (32, 32, 56, 32), (hi, mi, ci, fi)
    free = [k for k in sorted(roles) if roles[k]['e'] == 0 and roles[k]['l'] == 0]
    assert len(free) >= 8
    for i, k in enumerate(free[:: len(free) // 8][:8]): roles[k].update(e=E_P, ei=i)
    for x in range(8):
        cost = []
        for a in range(32):
            r = roles[x, a]
            c = {0: 0, E_P: 0, E_H: P['cH'], E_Q: P['cQ'], E_M: P['cM'], E_B: P['cB']}[r['e']]
            cb = r['ei'] if r['e'] in (E_Q, E_B) else (r['ei'] >> 2)
            if r['e'] in P['c3'] and cb == 3: c += P['c3'][r['e']]
            if r['l'] == R_C: c += P['cC'] + (P.get('cC3', 0) if (r['li'] >> 1) % 4 == 3 else 0)
            cost.append(c)
        n = [max(28, P['T'] - 7)] * 32
        for _ in range(1024 - sum(n)):
            b = min((a for a in range(32) if n[a] < P['T']), key=lambda a: (n[a] + cost[a], -a))
            n[b] += 1
        if P.get('adj') and x & 1:
            give = 0
            for a in range(32):
                r = roles[x, a]
                if r['e'] == E_B and (r['ei'] == 3 or r['ei'] >= 8 - P['adj'] + 1): n[a] -= 1; give += 1
            for a in range(32):
                r = roles[x, a]
                if give and r['l'] == R_C and (r['li'] >> 1) % 4 != 3: n[a] += 1; give -= 1
            assert give == 0
        pre = 0
        for a in range(32):
            roles[x, a].update(n=n[a], pre=pre); pre += n[a] - 28
    T = max(r['n'] for r in roles.values()); T += T & 1
    return roles, T
base = dict(cH=2.0, cQ=3.6, cM=4.2, cB=3.6, cC=4.0, c3={E_H: 0.5, E_Q: 1.7, E_M: 1.5, E_B: 1.0}, T=34)
base2 = dict(cH=1.6, cQ=4.0, cM=4.5, cB=3.4, cC=5.3, c3={E_H: 0.7, E_Q: 2.3, E_M: 1.8, E_B: 2.4}, T=36)
PLANS = {
 'A': dict(base, H=[4]*8, M=[4]*8, C=[7]*8),
 'B': dict(base, H=[8,0,8,0,8,0,8,0], M=[8,0,8,0,8,0,8,0], C=[14,0,14,0,14,0,14,0]),
 'C': dict(base, H=[8,0,8,0,8,0,8,0], M=[8,0,8,0,8,0,8,0], C=[7]*8),
 'D': dict(base, H=[8,8,8,8,0,0,0,0], M=[8,0,8,0,8,0,8,0], C=[14,0,14,0,14,0,14,0]),
 'E': dict(base, H=[8,8,8,8,0,0,0,0], M=[8,0,8,0,8,0,8,0], C=[8,6,8,6,8,6,8,6]),
 'G': dict(base2, H=[8,0,8,0,8,0,8,0], M=[8,0,8,0,8,0,8,0], C=[7]*8),
 'H': dict(base2, H=[8,0,8,0,8,0,8,0], M=[8,0,8,0,8,0,8,0], C=[8,8,8,12,8,2,8,2]),
 'I': dict(base2, H=[8,0,8,8,4,0,4,0], M=[8,0,8,0,8,0,8,0], C=[8,8,8,8,8,4,8,4]),
 'J': dict(base2, H=[8,0,8,0,8,0,8,0], M=[8,0,8,0,8,0,8,0], C=[0,14,0,14,0,14,0,14]),
 'K': dict(base2, H=[8,0,8,0,8,0,8,0], M=[8,0,8,0,8,0,8,0], C=[4,10,4,10,4,10,4,10]),
 'L': dict(base2, H=[8,0,8,0,8,0,8,0], M=[8,0,8,0,8,0,8,0], C=[8,6,8,6,8,6,8,6]),
 'N': dict(base2, H=[8,0,8,0,8,0,8,0], M=[2,6,2,6,2,6,2,6], C=[14,0,14,0,14,0,14,0]),
 'O': dict(base2, H=[0,8,0,8,0,8,0,8], M=[2,6,2,6,2,6,2,6], C=[14,0,14,0,14,0,14,0]),
 'P': dict(base2, H=[4,4,4,4,4,4,4,4], M=[2,6,2,6,2,6,2,6], C=[14,0,14,0,14,0,14,0]),
 'S': dict(base2, H=[1,0,1,0,15,0,15,0], M=[15,0,15,0,1,0,1,0], C=[0,16,0,16,0,12,0,12]),
 'U': dict(base2, H=[4,0,4,0,12,0,12,0], M=[12,0,12,0,4,0,4,0], C=[0,16,0,16,0,12,0,12]),
 'F': dict(base, H=[8,4,8,4,4,0,4,0], M=[8,0,8,0,8,0,8,0], C=[10,4,10,4,10,4,10,4]),
}

def gen(win=5, win2=6, wpol="nt", stamps=0, spin=8000000, hsleep=4, qsleep=8, tsleep=1, pace=4, cpre=1, kprio=0, skipw=0, vmid=4, nopoll='', qtrig=22, R=4, cdefer=1, csleep=2, nH=33, nX=31, nL=34, loc=1, lpol='sc1', w1pol='nt', nocomp=0, nosvc=0, sprio=3, nopre=0, nocw=0, lmul=1, xit='', qloc=1, strig=1, qtrig2=38, kpol='nt', vpol='nt', slowfb=0, fixend=0, plan='A', hfirst=1, cpad=1, w2late=1, fsleep=1, dry=0, yprio=0, burst=0, bwin=8, wdel='', wat=8, nearb=1, amp2=0, osc='', use2=1, p2=0, amp=0, dbgp=0, pi=None, pn=8, pclip=2000, xn=0, xmask=0x55, mim=1, mrg=1, fprio=0, rprio=3, rsl=0, b0at=0, mlate=0, xp=None, lin=1, atrig=0, pre=0, g4=0, alt1=0, alt2=0, tw=0, probe='', det=1, rx=0, fl=0, w1early=1, nohp=0, ws1=0, ws2=0, bp=0, calm=0, ltab=1, st0=0, bhold=0, xl=1, bearly=0, pd=1, fdelay=0, xsleep=4, bdefer=0, hwait=0, **pk):
    A = Asm()
    roles, T = make_plan(plan, **pk)
    hdr = open("cdna_kernels/" + NAME[:-7] + ".s.ref").read().split("; Override")[0]
    A(hdr.rstrip())
    A(f"; @launch grid=(256,1,1) block=(768,1,1) lds={LDS_SIZE}")
    A(DOC)
    A('.amdgcn_target "amdgcn-amd-amdhsa--gfx950"')
    A(f".text\n.globl {NAME}\n.p2align 8\n.type {NAME},@function\n{NAME}:")
    def stamp(k):
        if stamps:
            A("s_memrealtime s[62:63]\ns_waitcnt lgkmcnt(0)")
            A(f"v_writelane_b32 v3, s62, {k}")
    def prb(name):
        if probe == name: A("s_memrealtime s[94:95]\ns_waitcnt lgkmcnt(0)")
    def end_wave():
        if stamps:
            A("s_branch L_stampout")
        else:
            A("s_endpgm")
    def srd(d, p, size):
        A(f"s_mov_b32 s{d}, s{p}\ns_mov_b32 s{d+1}, s{p+1}\ns_mov_b32 s{d+2}, {size}\ns_mov_b32 s{d+3}, 0x20000")
    def poll(name, loads, check, sleep):
        if name in nopoll.split('+'): return
        top = A.label(name); done = A.label(name + "d")
        A(f"s_mov_b32 s7, {spin * 4 // (4 + sleep)}")
        A(f"{top}:")
        loads()
        A("s_waitcnt vmcnt(0)")
        check()
        A(f"s_cbranch_vccz {done}")
        A("s_mov_b64 exec, vcc")
        if sleep: A(f"s_sleep {sleep}")
        A("s_sub_u32 s7, s7, 1")
        A(f"s_cbranch_scc0 {top}")
        A(f"{done}:")
        A("s_mov_b64 exec, -1")
    def lspin(name, off, n, vz, vt, sleep=1, extra=None):
        top = A.label(name); done = A.label(name + "d")
        A(f"s_mov_b32 s7, {spin * 4 // (2 + sleep)}")
        A(f"{top}:")
        A(f"ds_read_b32 v{vt}, v{vz} offset:{off}")
        if extra: extra()
        A("s_waitcnt lgkmcnt(0)")
        A(f"v_cmp_gt_u32 vcc, {n}, v{vt}")
        A(f"s_cbranch_vccz {done}")
        if lmul > 1: sleep = min(127, max(sleep, 1) * lmul)
        if sleep: A(f"s_sleep {sleep}")
        A("s_sub_u32 s7, s7, 1")
        A(f"s_cbranch_scc0 {top}")
        A(f"{done}:")
    def chk_tags(regs, tmp):
        A(f"v_xor_b32 v{tmp}, s6, v{regs[0]}")
        for r in regs[1:]:
            A(f"v_xor_b32 v{tmp+1}, s6, v{r}")
            A(f"v_or_b32 v{tmp}, v{tmp}, v{tmp+1}")
        A(f"v_cmp_ne_u32 vcc, 0, v{tmp}")
    def chk_sent(regs, tmp):
        regs = list(regs)
        if len(regs) == 1:
            A(f"v_cmp_eq_u32 vcc, -1, v{regs[0]}"); return
        if len(regs) == 2:
            A(f"v_max_u32 v{tmp}, v{regs[0]}, v{regs[1]}"); rest = []
        else:
            A(f"v_max3_u32 v{tmp}, v{regs[0]}, v{regs[1]}, v{regs[2]}"); rest = regs[3:]
        while rest:
            if len(rest) == 1:
                A(f"v_max_u32 v{tmp}, v{tmp}, v{rest[0]}"); rest = []
            else:
                A(f"v_max3_u32 v{tmp}, v{tmp}, v{rest[0]}, v{rest[1]}"); rest = rest[2:]
        A(f"v_cmp_eq_u32 vcc, -1, v{tmp}")
    def xrow(op, v, tmp, which):
        A(f"v_mov_b32 v{tmp}, v{v}")
        A(f"v_permlane{which}_swap_b32 v{v}, v{tmp}")
        A(f"{op} v{v}, v{v}, v{tmp}")
    def inrow(op, v, steps):
        for s in steps:
            A(f"{op}_dpp v{v}, v{v}, v{v} {s} {DPPF}")
    def wave_reduce(op, v, tmp):
        inrow(op, v, ["row_ror:8", "row_ror:4", "row_ror:2", "row_ror:1"])
        xrow(op, v, tmp, 16); xrow(op, v, tmp, 32)
    def unpack(dst, src, n):
        for i in range(n):
            A(f"v_lshlrev_b32 v{dst+2*i}, 16, v{src[i]}")
            A(f"v_and_b32 v{dst+2*i+1}, 0xffff0000, v{src[i]}")
    def rnd(a, b=None):
        if b is None: A(f"v_cvt_pk_bf16_f32 v{a}, v{a}, v{a}\nv_lshlrev_b32 v{a}, 16, v{a}")
        else: A(f"v_cvt_pk_bf16_f32 v{b}, v{a}, v{b}\nv_lshlrev_b32 v{a}, 16, v{b}\nv_and_b32 v{b}, 0xffff0000, v{b}")
    def silu(x, t, n):
        A(f"s_mov_b32 s21, {f2x(-1.4426950408889634)}")
        for i in range(n): A(f"v_mul_f32 v{t+i}, s21, v{x+i}")
        for i in range(n): A(f"v_exp_f32 v{t+i}, v{t+i}")
        for i in range(n): A(f"v_add_f32 v{t+i}, 1.0, v{t+i}")
        for i in range(n): A(f"v_rcp_f32 v{t+i}, v{t+i}")
        for i in range(n): A(f"v_mul_f32 v{x+i}, v{x+i}, v{t+i}")
    def gemv_perm(W, T, npair):
        for u in range(npair):
            for w in range(4):
                a = W + 8 * u + w; b = W + 8 * u + 4 + w
                A(f"v_perm_b32 v{T+8*u+2*w}, v{b}, v{a}, s24")
                A(f"v_perm_b32 v{T+8*u+2*w+1}, v{b}, v{a}, s25")
    def gemv_dot(T, X, acc):
        for u in range(len(X)):
            for e in range(8):
                c = "0" if u == 0 else f"v{acc+e}"
                A(f"v_dot2_f32_bf16 v{acc+e}, v{T+8*u+e}, v{X[u]}, {c}")
    def mktag():
        A("s_waitcnt lgkmcnt(0)\ns_mul_i32 s6, s6, 0x9E3779B1\ns_add_u32 s6, s6, 0x7F4A7C15")
    def paced(loads, w):
        if skipw and (w or skipw > 1): return
        for i, l in enumerate(loads):
            if w and i >= w: A(f"s_waitcnt vmcnt({w-1})")
            A(l)

    if st0: A("s_memrealtime s[90:91]")
    if probe == "start": A("s_memrealtime s[94:95]")
    if amp2: A("s_memrealtime s[92:93]")
    A("s_cmp_ge_u32 s2, 256\ns_cbranch_scc1 L_exit")
    A("s_load_dwordx16 s[36:51], s[0:1], 0")
    rest_ld = "s_load_dwordx8 s[52:59], s[0:1], 64\ns_load_dwordx2 s[60:61], s[0:1], 96\ns_load_dword s68, s[32:33], s34"
    A("s_getpc_b64 s[30:31]\nL_pc:\ns_add_u32 s32, s30, L_tab-L_pc\ns_addc_u32 s33, s31, 0\ns_lshl_b32 s34, s2, 2")
    if not ltab: A(rest_ld)
    if cpre >= 2:
        A(f"s_lshr_b32 s5, s2, 3\ns_cmp_lg_u32 s5, {cpre-2}\ns_cbranch_scc1 L_ncp0")
        A(f"v_lshlrev_b32 v1, 7, v0\nv_cmp_gt_u32 vcc, L_endcode-L_pc-4, v1\ns_and_saveexec_b64 s[20:21], vcc\ns_cbranch_execz L_ncp1\nglobal_load_dword v167, v1, s[30:31]\nL_ncp1:\ns_mov_b64 exec, s[20:21]\nL_ncp0:")
    A("v_lshrrev_b32 v1, 6, v0\nv_and_b32 v0, 63, v0\nv_readfirstlane_b32 s3, v1")
    A("s_and_b32 s4, s2, 7\ns_lshr_b32 s5, s2, 3")
    if xp: A(f"s_lshl_b32 s4, s4, 2\ns_lshr_b32 s4, {sum(h << (4*i) for i, h in enumerate(xp)):#x}, s4\ns_and_b32 s4, s4, 7")
    if fixend: A("s_memrealtime s[96:97]")
    A("s_mov_b32 s24, 0x05040100\ns_mov_b32 s25, 0x07060302")
    A("v_lshlrev_b32 v2, 4, v0")
    if stamps:
        A("v_mov_b32 v3, 0")
        if not st0: stamp(0)
    A("s_cmp_lt_u32 s3, 4\ns_cbranch_scc1 L_service")
    STREAM_MARK = len(A.lines)
    A("L_service:")
    if ltab: A(rest_ld)
    A(f"s_setprio {sprio}")
    if cpre == 1:
        A(f"s_lshl_b32 s20, s5, 2\ns_add_u32 s20, s20, s3\ns_sub_u32 s20, s20, 96\ns_cmp_ge_u32 s20, (L_endcode-{NAME})/1024\ns_cbranch_scc1 L_ncp")
        A(f"s_sub_u32 s30, s30, L_pc-{NAME}\ns_subb_u32 s31, s31, 0")
        A("s_lshl_b32 s20, s20, 10\nv_add_u32 v14, s20, v2")
        A("global_load_dwordx4 v[164:167], v14, s[30:31]")
        A("L_ncp:")
    A("v_lshrrev_b32 v12, 3, v0\nv_and_b32 v13, 7, v0\nv_mov_b32 v16, 0\nv_mov_b32 v17, 0\nv_mov_b32 v18, 0\nv_mov_b32 v19, 0")
    A("s_mov_b64 exec, 0x1f\nds_write_b128 v2, v[16:19]\ns_mov_b64 exec, -1")
    A("s_waitcnt lgkmcnt(0)")
    prb("ka")
    A("s_bfe_u32 s64, s68, 0x3000f\ns_bfe_u32 s65, s68, 0x50012\ns_bfe_u32 s66, s68, 0x20017\ns_bfe_u32 s67, s68, 0x60019")
    A("s_lshr_b32 s69, s65, 2\ns_and_b32 s70, s65, 3")
    if nearb:
        A(f"s_cmp_eq_u32 s64, {E_H}\ns_cbranch_scc1 L_h\ns_cmp_eq_u32 s64, {E_Q}\ns_cbranch_scc1 L_nh")
        A(f"s_load_dword s6, {WS}, 0"); mktag(); A("s_barrier\ns_branch L_role\nL_h:")
    else: A(f"s_cmp_lg_u32 s64, {E_H}\ns_cbranch_scc1 L_nh")
    A("s_lshr_b32 s20, s70, 1\ns_lshl_b32 s20, s20, 8\ns_lshl_b32 s21, s3, 6\ns_add_u32 s20, s20, s21")
    A("v_lshl_add_u32 v14, v12, 3, s20")
    A("s_mov_b32 s21, 6144\nv_mul_lo_u32 v1, v14, s21\nv_lshl_add_u32 v1, v13, 4, v1\nv_lshlrev_b32 v14, 1, v14")
    A("s_and_b32 s20, s70, 1\ns_lshl_b32 s20, s20, 10\ns_lshl_b32 s21, s69, 7\ns_add_u32 s20, s20, s21")
    A("s_waitcnt lgkmcnt(0)")
    srd(8, P_WM, 512 * 6144)
    A(f"global_load_dwordx4 v[4:7], v14, {sp(P_C)}")
    for i in range(8):
        A(f"buffer_load_dwordx4 {v4(40+4*i)}, v1, s[8:11], s20 offen {wpol}")
        if i < 7: A("s_add_u32 s20, s20, 6144")
    A(f"s_load_dword s6, {WS}, 0")
    A("s_barrier")
    A("s_lshl_b32 s20, s65, 2\ns_add_u32 s20, s20, s3")
    if cpad: A(f"s_lshr_b32 s21, s20, 3\ns_lshl_b32 s21, s21, 15\ns_and_b32 s22, s20, 7\ns_lshl_b32 s22, s22, 11\ns_add_u32 s21, s21, s22\ns_add_u32 s21, s21, {WS_C + (0 if use2 else (p2^1)<<14)}\nv_lshrrev_b32 v14, 2, v0\nv_lshl_add_u32 v14, v14, 6, v2\nv_add_u32 v14, s21, v14\nv_add_u32 v11, 16384, v14")
    else: A(f"s_lshr_b32 s21, s20, 4\ns_lshl_b32 s21, s21, 15\ns_and_b32 s22, s20, 15\ns_lshl_b32 s22, s22, 10\ns_add_u32 s21, s21, s22\ns_add_u32 s21, s21, {WS_C + (0 if use2 else (p2^1)<<14)}\nv_add_u32 v14, s21, v2\nv_add_u32 v11, 16384, v14")
    if use2: A(f"s_lshl_b32 s21, s20, 10\ns_add_u32 s21, s21, {WS_B}\nv_add_u32 v15, s21, v2")
    else: A(f"s_lshr_b32 s21, s20, 5\ns_lshl_b32 s21, s21, 15\ns_and_b32 s22, s20, 31\ns_lshl_b32 s22, s22, 9\ns_add_u32 s21, s21, s22\ns_add_u32 s21, s21, {WS_B + (p2<<14)}\nv_add_u32 v15, s21, v2")
    A("s_cmp_eq_u32 s3, 3\ns_cselect_b32 exec_hi, 0, -1")
    for i in range(4): A(f"v_mov_b32 v{16+i}, -1")
    A("s_mov_b64 exec, -1")
    for i in range(4): A(f"v_mov_b32 v{20+i}, -1")
    A(f"global_store_dwordx4 v14, v[16:19], {WS} sc1")
    if use2: A(f"global_store_dwordx4 v11, v[16:19], {WS} sc1")
    else: A("s_mov_b32 exec_hi, 0")
    A(f"global_store_dwordx4 v15, v[20:23], {WS} sc1\ns_mov_b64 exec, -1")
    A(f"s_waitcnt vmcnt({10+use2})")
    unpack(24, [4, 5, 6, 7], 4); silu(24, 32, 8)
    for i in range(4): A(f"v_cvt_pk_bf16_f32 v{24+i}, v{24+2*i}, v{25+2*i}")
    mktag()
    A(f"s_and_b32 s26, s70, 1\ns_lshl_b32 s26, s26, 13\ns_lshr_b32 s21, s70, 1\ns_lshl_b32 s21, s21, 12\ns_add_u32 s26, s26, s21\ns_lshl_b32 s21, s69, 9\ns_add_u32 s26, s26, s21\ns_add_u32 s26, s26, {WS_H}")
    A(f"s_waitcnt vmcnt({2+use2})")
    stamp(1)
    gemv_perm(40, 104, 4)
    gemv_dot(104, [24, 25, 26, 27], 32)
    A("L_gfin:")
    acc = 32
    for e in range(4): A(f"v_permlane32_swap_b32 v{acc+e}, v{acc+e+4}")
    for e in range(4): A(f"v_add_f32 v{acc+e}, v{acc+e}, v{acc+e+4}")
    for e in range(2): A(f"v_permlane16_swap_b32 v{acc+e}, v{acc+e+2}")
    for e in range(2): A(f"v_add_f32 v{acc+e}, v{acc+e}, v{acc+e+2}")
    for e in range(2): A(f"v_add_f32_dpp v{acc+e}, v{acc+e}, v{acc+e} row_ror:8 {DPPF}")
    A("v_lshrrev_b32 v14, 4, v0\nv_lshlrev_b32 v14, 3, v14\nv_lshl_add_u32 v14, v13, 5, v14\ns_lshl_b32 s21, s3, 8\nv_add_u32 v14, s21, v14")
    A(f"ds_write_b64 v14, v[32:33] offset:{L_GP}")
    A("v_mov_b32 v14, 0\nv_mov_b32 v15, 1")
    A("s_waitcnt vmcnt(0)")
    A("s_mov_b64 exec, 1")
    A(f"ds_add_rtn_u32 v15, v14, v15 offset:{L_CG}")
    A("s_mov_b64 exec, -1")
    A("v_lshlrev_b32 v14, 3, v0")
    A("s_waitcnt lgkmcnt(0)")
    A("v_readfirstlane_b32 s21, v15")
    A("s_cmp_lg_u32 s21, 3\ns_cbranch_scc1 L_gdone")
    A("s_mov_b32 exec_hi, 0")
    for w in range(4): A(f"ds_read_b64 {v2(32+2*w)}, v14 offset:{L_GP+256*w}")
    A("v_add_u32 v14, s26, v14")
    A("s_waitcnt lgkmcnt(0)")
    A("v_pk_add_f32 v[32:33], v[32:33], v[34:35]\nv_pk_add_f32 v[36:37], v[36:37], v[38:39]\nv_pk_add_f32 v[32:33], v[32:33], v[36:37]")
    A(f"s_cmp_lg_u32 s64, {E_H}\ns_cbranch_scc1 L_gnh")
    A(f"v_mov_b32 v34, v33\nv_mov_b32 v33, s6\nv_mov_b32 v35, s6\nv_add_u32 v14, s26, v2\nglobal_store_dwordx4 v14, v[32:35], {WS} sc1\ns_mov_b64 exec, -1\ns_branch L_gdone\nL_gnh:")
    A("v_cvt_pk_bf16_f32 v32, v32, v33\nv_mov_b32 v33, s6")
    if qloc:
        A(f"s_cmp_lg_u32 s64, {E_Q}\ns_cbranch_scc1 L_gnl")
        A(f"v_add_u32 v15, {WS_QL-WS_Q}, v14\nglobal_store_dwordx2 v15, v[32:33], {WS}")
        A("L_gnl:")
    A(f"global_store_dwordx2 v14, v[32:33], {WS} sc1")
    A("s_mov_b64 exec, -1")
    A("L_gdone:")
    stamp(3)
    if mlate: A(f"s_cmp_eq_u32 s64, {E_M}\ns_cbranch_scc1 L_done")
    A("s_branch L_qpoll")

    NM = T - 28; nmask = T - min(r['n'] for r in roles.values())
    NW = 39 - T
    S0 = len(A.lines)
    A("L_stream:")
    if kprio: A(f"s_setprio {kprio}")
    A("s_sub_u32 s21, s3, 4")
    if yprio == 1: A("s_cmp_lt_u32 s21, 4\ns_cbranch_scc1 L_yp\ns_setprio 1\nL_yp:")
    A("v_bfe_u32 v1, v0, 2, 2\nv_lshlrev_b32 v1, 8, v1\nv_lshrrev_b32 v4, 4, v0\nv_lshl_add_u32 v1, v4, 6, v1\nv_and_b32 v4, 3, v0\nv_lshl_add_u32 v1, v4, 4, v1")
    A(f"s_lshl_b32 s19, s4, 23\ns_mul_i32 s16, s5, {28*8192}\ns_add_u32 s16, s16, s19\ns_lshl_b32 s17, s21, 12\ns_add_u32 s16, s16, s17")
    A("s_mov_b32 s10, 0x4000000\ns_mov_b32 s11, 0x20000")
    hcnt = sum(PLANS[plan]['H'][x] << (4 * x) for x in range(8))
    A(f"s_lshl_b32 s17, s4, 2\ns_lshr_b32 s35, {hcnt:#x}, s17\ns_and_b32 s35, s35, {15 if hfirst else 0}")
    A("s_waitcnt lgkmcnt(0)")
    A(f"s_mov_b32 s8, s{P_K}\ns_mov_b32 s9, s{P_K+1}")
    A("s_cmp_ge_u32 s5, s35\ns_cbranch_scc1 L_s1\ns_barrier\nL_s1:")
    KR = lambda t: 168 - 4 * T + 4 * t
    nS = (T + 3) // 4; nP = (T + 7) // 8
    assert T == 34
    first_v = 14
    vslots = [12 + 4 * i for i in range(NW)] + [KR(i) for i in range(first_v, T)]
    VR = lambda t: vslots[t % len(vslots)]
    st = {"cur": None}
    mpos = [6 + (j * (T - 12)) // max(nmask, 1) for j in range(nmask)]
    rest = list(range(NM, NM + 6)) + list(range(nmask, NM)) + list(range(NM + 6, T))
    perm = []
    for t in range(T):
        if t in mpos: perm.append(mpos.index(t))
        else: perm.append(rest.pop(0))
    first_nm = min(t for t in range(T) if perm[t] < NM)
    assert first_nm >= win
    hist = []
    def wcount(w):
        c = 0
        for n_, m_ in enumerate(reversed(hist)):
            if not m_:
                if c == w - 1: return n_
                c += 1
        return None
    def ld(which, t):
        o = perm[t]
        hist.append(o < nmask)
        if o < NM:
            A(f"s_add_u32 s20, s17, {o*8192}"); st["cur"] = None; imm = 0
            if o < nmask: A(f"s_cmp_gt_u32 s18, {o}\ns_cselect_b32 s20, 0x4000000, s20")
        else:
            key = (o - NM) >> 2; imm = ((o - NM) & 3) * 1024
            if st["cur"] != key:
                A(f"s_add_u32 s20, s16, {key*32768}"); st["cur"] = key
        if which == "K": A(f"buffer_load_dwordx4 {v4(KR(t))}, v1, s[8:11], s20 offen offset:{imm} {kpol}")
        else: A(f"buffer_load_dwordx4 {v4(VR(t))}, v2, s[12:15], s20 offen offset:{imm} {vpol}")
    korder = list(range(T))
    seq = [("K", t) for t in korder] + [("V", t) for t in range(NW)]
    for i, (wh, t) in enumerate(seq):
        if i == win:
            if st0: A("s_memrealtime s[92:93]")
            if ltab: A(rest_ld)
            A("s_branch L_body")
            S1 = len(A.lines)
            A("L_body:")
            srd(12, P_V, 0x4000000)
            if ws1: A(f"s_cmp_lt_u32 s21, {ws1}\ns_cselect_b64 vcc, -1, 0")
            if st0: A("s_waitcnt vmcnt(3)\ns_memrealtime s[94:95]")
            if not b0at: A("s_cmp_lt_u32 s5, s35\ns_cbranch_scc1 L_s2\ns_barrier\nL_s2:")
            A("s_waitcnt lgkmcnt(0)")
            A(f"s_and_b32 s17, s68, 0xfff\ns_bfe_u32 s18, s68, 0x3000c\ns_add_u32 s17, s17, {896-16}\ns_lshl_b32 s17, s17, 13\ns_add_u32 s17, s17, s19\ns_lshl_b32 s19, s21, 10\ns_add_u32 s17, s17, s19")
        if b0at and i == win + b0at: A("s_cmp_lt_u32 s5, s35\ns_cbranch_scc1 L_s2\ns_barrier\nL_s2:")
        if i == T and kprio: A("s_setprio 0")
        if wcount(win) is not None and perm[t] >= nmask:
            if xn and 8 <= i < 8 + xn:
                lb = A.label("w"); A(f"s_waitcnt vmcnt({wcount(win+1)})\ns_bitcmp0_b32 {xmask:#x}, s4\ns_cbranch_scc1 {lb}\ns_waitcnt vmcnt({wcount(win)})\n{lb}:")
            else: A(f"s_waitcnt vmcnt({wcount(win)})")
        ld(wh, t)
        if i == qtrig: A(f"v_mov_b32 v8, 0\nv_mov_b32 v9, 1\ns_mov_b64 exec, 1\nds_max_u32 v8, v9 offset:{L_FK}\ns_mov_b64 exec, -1")
        if wdel and i == wat: A(f"v_mov_b32 v8, 0\nv_mov_b32 v9, 1\ns_mov_b64 exec, 1\nds_write_b32 v8, v9 offset:76\ns_mov_b64 exec, -1")
        if hwait and i == hwait: A(f"v_mov_b32 v8, 0\nv_mov_b32 v9, 1\ns_mov_b64 exec, 1\nds_write_b32 v8, v9 offset:72\ns_mov_b64 exec, -1")
        if i == qtrig2 and qloc: A(f"v_mov_b32 v8, 0\nv_mov_b32 v9, 2\ns_mov_b64 exec, 1\nds_max_u32 v8, v9 offset:{L_FK}\ns_mov_b64 exec, -1")
    viss = NW
    A("v_and_b32 v8, 3, v0\nv_lshlrev_b32 v8, 8, v8\nv_lshrrev_b32 v9, 4, v0\nv_lshl_add_u32 v8, v9, 6, v8\nv_bfe_u32 v9, v0, 2, 2\nv_lshl_add_u32 v8, v9, 4, v8\nv_mov_b32 v9, 0")
    if mim: A(f"s_mov_b32 s22, {f2x(1.4426950408889634)}\ns_mov_b32 s26, {f2x(128**-0.5)}\ns_mov_b32 s27, s26")
    else: A(f"s_mov_b32 s22, {f2x(128**-0.5*1.4426950408889634)}")
    for t in range(nmask): A(f"s_cmp_gt_u32 s18, {t}\ns_cselect_b32 s{28+t}, 0xff800000, 0")
    stamp(1)
    lspin("sq", L_FQ, 1, 9, 10, 2, lambda: A(f"ds_read_b128 v[4:7], v8 offset:{L_Q}"))
    stamp(2)
    kl = {"landed": T + NW - win - 3}
    DR = lambda t: 8 if t == 0 else KR(t - 1)
    SR = lambda t: (8 + t) if t < 4 else KR((t >> 2) - 1) + (t & 3)
    def M(t):
        if t >= kl["landed"]:
            A(f"s_waitcnt vmcnt({len(hist)-1-t})"); kl["landed"] = t + 1
        A(f"v_mfma_f32_16x16x32_bf16 {v4(DR(t))}, {v4(KR(t))}, v[4:7], 0")
    def AB(t):
        d = DR(t)
        A(f"v_add_f32_dpp v{d}, v{d+1}, v{d} row_shl:4 {DPPF} bound_ctrl:0")
        A(f"v_add_f32_dpp v{d+2}, v{d+3}, v{d+2} row_shl:4 {DPPF} bound_ctrl:0")
    def S(t):
        d = DR(t)
        A(f"v_add_f32_dpp v{SR(t)}, v{d+2}, v{d} row_shl:8 {DPPF} bound_ctrl:0")
    mark0 = len(A.lines)
    if yprio == 2: A("s_cmp_lt_u32 s21, 4\ns_cbranch_scc1 L_yp\ns_setprio 1\nL_yp:")
    M(0); M(1); M(2)
    for t in range(T + 1):
        if t < T: AB(t)
        if t >= 1:
            S(t - 1)
            if vmid and t - 2 >= first_v and (t - 2 - first_v) % vmid == 0:
                ld("V", viss); viss += 1
        if t + 3 < T: M(t + 3)
    TM = KR(11)
    Sl = [SR(t) for t in range(T)]
    if mim:
        for t in range(0, T, 2): rnd(Sl[t], Sl[t + 1])
        for t in range(0, T, 2): A(f"v_pk_mul_f32 {v2(Sl[t])}, {v2(Sl[t])}, s[26:27]")
        if vmid: ld("V", viss); viss += 1
        for t in range(0, T, 2): rnd(Sl[t], Sl[t + 1])
    for t in range(nmask): A(f"v_add_f32 v{Sl[mpos[t]]}, s{28+t}, v{Sl[mpos[t]]}")
    A(f"v_max3_f32 v{TM}, v{Sl[0]}, v{Sl[1]}, v{Sl[2]}")
    A(f"v_max3_f32 v{TM+1}, v{Sl[3]}, v{Sl[4]}, v{Sl[5]}")
    i = 6; k = 0
    while i < T:
        A(f"v_max3_f32 v{TM+k}, v{TM+k}, v{Sl[i]}, v{Sl[i+1]}"); i += 2; k ^= 1
    A(f"v_max_f32 v{TM}, v{TM}, v{TM+1}")
    xrow("v_max_f32", TM, TM + 1, 16); xrow("v_max_f32", TM, TM + 1, 32)
    A(f"v_mul_f32 v{TM}, s22, v{TM}")
    for t in range(T): A(f"v_fma_f32 v{Sl[t]}, v{Sl[t]}, s22, -v{TM}")
    for t in range(T): A(f"v_exp_f32 v{Sl[t]}, v{Sl[t]}")
    if vmid: ld("V", viss); viss += 1
    A(f"v_add_f32 v{TM+1}, v{Sl[0]}, v{Sl[1]}\nv_add_f32 v{TM+2}, v{Sl[2]}, v{Sl[3]}")
    for t in range(4, T): A(f"v_add_f32 v{TM+1+(t&1)}, v{TM+1+(t&1)}, v{Sl[t]}")
    A(f"v_add_f32 v{TM+1}, v{TM+1}, v{TM+2}")
    xrow("v_add_f32", TM + 1, TM + 2, 16); xrow("v_add_f32", TM + 1, TM + 2, 32)
    A(f"s_lshl_b32 s19, s21, 5\nv_lshl_add_u32 v{TM+2}, v0, 3, s19\nv_mov_b32 v4, 0\nv_mov_b32 v5, 1")
    A("s_mov_b64 exec, 0xf")
    A(f"ds_write_b64 v{TM+2}, {v2(TM)} offset:{L_ST}")
    A("s_mov_b64 exec, 1")
    A(f"ds_add_u32 v4, v5 offset:{L_CS}")
    A("s_mov_b64 exec, -1")
    GR = [(0, 2), (2, 10), (10, 18), (18, 26), (26, 34)]
    def pack(u, d):
        for t in range(GR[u][0], GR[u][1], 2): A(f"v_cvt_pk_bf16_f32 v{d+(t-GR[u][0])//2}, v{Sl[t]}, v{Sl[t+1]}")
    for u in range(3): pack(u, KR(8 + u))
    A("s_waitcnt lgkmcnt(0)")
    AC = [8, KR(0)]
    PA = [KR(1), KR(2), KR(12), KR(13)]; PB = [KR(3), KR(4), KR(5), KR(6)]
    TT = [TM, 4]
    def zero(P):
        for j in range(4):
            for i in range(4): A(f"v_mov_b32 v{P[j]+i}, 0")
    def vers(P, src, n=4):
        for j in range(4):
            ctl = "quad_perm:[0,1,2,3]" if j == 0 else f"row_shr:{4*j}"
            for i in range(n): A(f"v_mov_b32_dpp v{P[j]+i}, v{src+i} {ctl} row_mask:0xf bank_mask:{1<<j:#x}")
    zero(PA)
    A(f"v_mov_b32 v{TM+1}, 0\nv_mov_b32 v5, 0")
    stamp(3)
    EO = (0, 4, 1, 5, 2, 6, 3, 7)
    def pv(u):
        t0, t1 = GR[u]; n = t1 - t0
        vers(PA, KR(8 + u), n // 2)
        for k, e in enumerate(EO):
            Tm = TT[k & 1]; ac = AC[e >> 2]
            for p in range(n // 2):
                a = VR(t0 + 2 * p) + (e >> 1); b = VR(t0 + 2 * p + 1) + (e >> 1)
                A(f"v_perm_b32 v{Tm+p}, v{b}, v{a}, s{24+(e&1)}")
            c = "0" if (u == 0 and k < 2) else v4(ac)
            if n == 8: A(f"v_mfma_f32_16x16x32_bf16 {v4(ac)}, {v4(Tm)}, {v4(PA[e&3])}, {c}")
            else: A(f"v_mfma_f32_16x16x16_bf16 {v4(ac)}, {v2(Tm)}, {v2(PA[e&3])}, {c}")
    ns = len(vslots)
    TA = [VR(t) for t in range(T - ns, 18)][:8]
    assert len(TA) == 8
    X = KR(8); ONE = KR(7) + 2; CNT = KR(7) + 3
    def rescale():
        A(f"v_and_b32 v1, 3, v0\nv_lshlrev_b32 v1, 3, v1\nv_mov_b32 v{X+10}, 0\nv_mov_b32 v{ONE}, 1\ns_lshl_b32 s19, s21, 5\nv_add_u32 v{X+9}, s19, v1")
        def rd():
            for w in range(8): A(f"ds_read_b32 v{X+w}, v1 offset:{L_ST+32*w}")
            A(f"ds_read_b32 v{X+8}, v{X+9} offset:{L_ST}")
        lspin("sm", L_CS, 9, X + 10, X + 11, 1, rd)
        A(f"s_mov_b64 exec, 1\nds_add_rtn_u32 v{X+11}, v{X+10}, v{ONE} offset:{L_CT}\ns_mov_b64 exec, -1")
        A(f"v_max3_f32 v{X}, v{X}, v{X+1}, v{X+2}\nv_max3_f32 v{X+3}, v{X+3}, v{X+4}, v{X+5}\nv_max3_f32 v{X}, v{X}, v{X+6}, v{X+7}\nv_max_f32 v{X}, v{X}, v{X+3}")
        A(f"v_sub_f32 v{X}, v{X+8}, v{X}\nv_exp_f32 v{X}, v{X}")
        A(f"s_lshl_b32 s19, s21, 11\nv_add_u32 v1, s19, v2\ns_and_b32 s19, s21, 4\nv_mov_b32 v{CNT}, s19")
        for ac in AC:
            for q in range(2): A(f"v_pk_mul_f32 {v2(ac+2*q)}, {v2(ac+2*q)}, {v2(X)} op_sel_hi:[1,0]")
        for t in range(18, T, 2): A(f"v_pk_mul_f32 {v2(Sl[t])}, {v2(Sl[t])}, {v2(X)} op_sel_hi:[1,0]")
        pack(3, TT[0]); pack(4, TT[1])
        zero(PB); vers(PA, TT[0]); vers(PB, TT[1])
        A(f"s_waitcnt lgkmcnt(0)\nv_readfirstlane_b32 s23, v{X+11}")
    while viss < min(win2, ns):
        ld("V", viss); viss += 1
    done_t = 0
    ends = {g[1] - 1: u for u, g in enumerate(GR[:3])}
    for L in range(T):
        inc = L >= 18 and L % 2 == 1
        can = lambda: viss < T and sum(1 for j in range(L + 1, viss) if perm[j] >= nmask) < (bwin if L >= T - burst else win2 + (pre if L in ends else 0)) + (perm[viss] < nmask) and (viss < ns or done_t > viss - ns)
        if can() or L in ends or inc:
            A(f"s_waitcnt vmcnt({viss-1-L})")
        while can():
            ld("V", viss); viss += 1
            if viss == T:
                assert L > 17
                A(f"s_mov_b64 exec, 1\nds_add_u32 v2, v{ONE} offset:{L_CV}\ns_mov_b64 exec, -1")
        if L in ends:
            pv(ends[L]); done_t = L + 1
            if L == 17: rescale()
        if inc:
            if L == T - 1: stamp(4)
            p = ((L - 18) % 8) // 2
            for e in EO: A(f"v_perm_b32 v{TA[e]+p}, v{VR(L)+(e>>1)}, v{VR(L-1)+(e>>1)}, s{24+(e&1)}")
            if p == 3:
                for e in EO: A(f"v_mfma_f32_16x16x32_bf16 {v4(AC[e>>2])}, {v4(TA[e])}, {v4((PA if L < 26 else PB)[e&3])}, {v4(AC[e>>2])}")
    assert viss == T
    if nocomp:
        keep = [l for l in A.lines[mark0:] if not l.startswith(("v_mfma", "v_perm_b32", "v_add_f32", "v_exp", "v_fma", "v_max", "v_cvt", "v_permlane"))]
        A.lines[mark0:] = keep
    for hf in range(2): A(f"ds_write_b128 v1, {v4(AC[hf])} offset:{L_OP+hf*1024}")
    A(f"s_mov_b64 exec, 1\nds_add_u32 v{CNT}, v{ONE} offset:{L_FO}")
    A("s_mov_b64 exec, -1")
    if stamps: A("s_waitcnt lgkmcnt(0)")
    stamp(5)
    A("s_cmp_lg_u32 s23, 0\ns_cbranch_scc1 L_done")
    A(f"s_setprio {rprio}")
    def a_addr(d, t):
        if lin: A(f"s_lshl_b32 s20, s4, 15\ns_lshr_b32 s19, s5, 4\ns_lshl_b32 s19, s19, 10\ns_add_u32 s20, s20, s19\ns_and_b32 s19, s5, 15\ns_lshl_b32 s19, s19, 4\ns_add_u32 s20, s20, s19\ns_add_u32 s20, s20, {WS_A}")
        else: A(f"s_lshl_b32 s20, s4, 15\ns_lshl_b32 s19, s5, {7 if fl else 6}\ns_add_u32 s20, s20, s19\ns_add_u32 s20, s20, {WS_A}")
        if mrg:
            assert lin
            A(f"v_and_b32 v{d}, 3, v0\nv_lshlrev_b32 v{d}, 13, v{d}\nv_bfe_u32 v{t}, v0, 2, 2\nv_lshl_add_u32 v{d}, v{t}, 11, v{d}\nv_lshrrev_b32 v{t}, 4, v0\nv_lshl_add_u32 v{d}, v{t}, 8, v{d}\nv_add_u32 v{d}, s20, v{d}")
            return
        A(f"v_bfe_u32 v{d}, v0, 2, 2\nv_lshlrev_b32 v{d}, 13, v{d}")
        if fl: A(f"v_lshrrev_b32 v{t}, 5, v0\nv_lshl_add_u32 v{d}, v{t}, 12, v{d}\nv_bfe_u32 v{t}, v0, 4, 1\nv_lshl_add_u32 v{d}, v{t}, 6, v{d}")
        else: A(f"v_lshrrev_b32 v{t}, 4, v0\nv_lshl_add_u32 v{d}, v{t}, 11, v{d}")
        A(f"v_and_b32 v{t}, 3, v0\nv_lshl_add_u32 v{d}, v{t}, {8 if lin else 4}, v{d}\nv_add_u32 v{d}, s20, v{d}")
    a_addr(36, 37)
    A(f"v_add_u32 v37, {WS_AL-WS_A}, v36\nv_mov_b32 v38, 0\nv_mov_b32 v39, 1")
    if xl: A(f"ds_read_b32 v29, v38 offset:{L_MK}\ns_waitcnt lgkmcnt(0)\nv_readfirstlane_b32 s26, v29")
    for hf in range(2 if det else 0):
        def rd8():
            for j in range(4): A(f"ds_read_b128 {v4(40+8*j)}, v2 offset:{L_OP+(4*hf+j)*2048}\nds_read_b128 {v4(44+8*j)}, v2 offset:{L_OP+(4*hf+j)*2048+1024}")
        if rsl and hf: lspin("so3", L_FO + 4, 3, 38, 28, 1)
        lspin("so", L_FO + 4 * hf, 4, 38, 28, 1 - hf, rd8)
        for q in range(4): A(f"v_pk_add_f32 {v2(40+2*q)}, {v2(40+2*q)}, {v2(48+2*q)}")
        for q in range(4): A(f"v_pk_add_f32 {v2(56+2*q)}, {v2(56+2*q)}, {v2(64+2*q)}")
        for q in range(4): A(f"v_pk_add_f32 {v2((12 if hf == 0 else 40)+2*q)}, {v2(40+2*q)}, {v2(56+2*q)}")
        if hf:
            for q in range(4): A(f"v_pk_add_f32 {v2(12+2*q)}, {v2(12+2*q)}, {v2(40+2*q)}")
    for i in range(0 if det else 8):
        d = 12 if i == 0 else 20
        lspin("so", L_FO + 4 * i, 1, 38, 28, 1 if (calm and i < 6) else 0, lambda: A(f"ds_read_b128 {v4(d)}, v2 offset:{L_OP+i*2048}\nds_read_b128 {v4(d+4)}, v2 offset:{L_OP+i*2048+1024}"))
        if i:
            for q in range(4): A(f"v_pk_add_f32 {v2(12+2*q)}, {v2(12+2*q)}, {v2(20+2*q)}")
    for q in range(4): A(f"v_cvt_pk_bf16_f32 v{12+q}, v{12+2*q}, v{13+2*q}")
    if loc: A(f"global_store_dwordx4 v37, v[12:15], {WS}")
    if xl: A("s_cmp_eq_u32 s26, 0\ns_cbranch_scc1 L_ng2")
    A(f"global_store_dwordx4 v36, v[12:15], {WS} sc1")
    A("L_ng2:")
    A(f"ds_write_b32 v38, v39 offset:{L_FP}")
    stamp(6)
    end_wave()
    blk = A.lines[S0:S1]; del A.lines[S0:S1]; A.lines[STREAM_MARK:STREAM_MARK] = blk

    A("L_nh:")
    if not nearb: A(f"s_cmp_lg_u32 s64, {E_Q}\ns_cbranch_scc1 L_nq")
    A("v_lshlrev_b32 v1, 17, v12\nv_lshl_add_u32 v1, v13, 4, v1")
    A("s_lshl_b32 s20, s3, 20\ns_lshl_b32 s21, s4, 10\ns_add_u32 s20, s20, s21\ns_mov_b32 s26, s65\ns_lshl_b32 s21, s26, 7\ns_add_u32 s20, s20, s21")
    A("s_lshl_b32 s21, s3, 8\nv_lshl_add_u32 v14, v0, 2, s21")
    A("s_waitcnt lgkmcnt(0)")
    prb("qi")
    srd(8, P_WQ, 512 * 8192)
    A(f"global_load_dwordx4 v[8:11], v2, {sp(P_X)}\nglobal_load_dword v15, v14, {sp(P_X)}")
    for i in range(16):
        A(f"buffer_load_dwordx4 {v4(40+4*i)}, v1, s[8:11], s20 offen {wpol}")
        if i < 15: A("s_add_u32 s20, s20, 8192")
    A(f"s_load_dword s6, {WS}, 0")
    A("s_barrier")
    A(f"s_lshl_b32 s26, s26, 8\ns_lshl_b32 s21, s4, 11\ns_add_u32 s26, s26, s21\ns_add_u32 s26, s26, {WS_Q}")
    A("s_waitcnt vmcnt(16)")
    prb("x")
    unpack(32, [8, 9, 10, 11], 4)
    A("v_add_f32 v4, v32, v33")
    for i in range(2, 8): A(f"v_add_f32 v4, v4, v{32+i}")
    wave_reduce("v_add_f32", 4, 5)
    A(f"v_mul_f32 v4, {f2x(1/512)}, v4")
    for i in range(8): A(f"v_sub_f32 v{32+i}, v{32+i}, v4")
    A("v_mul_f32 v6, v32, v32")
    for i in range(1, 8): A(f"v_fmac_f32 v6, v{32+i}, v{32+i}")
    wave_reduce("v_add_f32", 6, 5)
    A(f"v_mul_f32 v5, {f2x(1/512)}, v6"); rnd(4, 5)
    A(f"v_add_f32 v5, {f2x(1e-5)}, v5"); rnd(5)
    A("v_sqrt_f32 v5, v5"); rnd(5)
    A("v_rcp_f32 v5, v5")
    unpack(8, [15], 1)
    A("v_sub_f32 v8, v8, v4\nv_sub_f32 v9, v9, v4"); rnd(8, 9)
    A("v_mul_f32 v8, v8, v5\nv_mul_f32 v9, v9, v5"); rnd(8, 9)
    A(f"v_lshlrev_b32 v15, 2, v14\nv_add_u32 v15, {WS_H}, v15\nv_add_u32 v10, 4096, v15\nv_add_u32 v11, 8192, v15\nv_add_u32 v7, 12288, v15")
    mktag()
    A("s_waitcnt vmcnt(0)")
    stamp(1)
    prb("wq")
    gemv_perm(40, 104, 8)
    if hwait: A("v_mov_b32 v4, 0"); lspin("sh", 72, 1, 4, 5, 2)
    poll("ph", lambda: [A(f"global_load_dwordx4 {v4(16+4*k)}, v{(15,10,11,7)[k]}, {WS} sc1") for k in range(4)],
         lambda: chk_tags([17 + 2 * k for k in range(8)], 4), hsleep)
    stamp(2)
    prb("h")
    A("v_add_f32 v16, v16, v20\nv_add_f32 v17, v18, v22\nv_add_f32 v18, v24, v28\nv_add_f32 v19, v26, v30")
    rnd(16, 17); rnd(18, 19)
    A("v_add_f32 v18, 1.0, v18\nv_add_f32 v19, 1.0, v19"); rnd(18, 19)
    A("v_pk_mul_f32 v[24:25], v[8:9], v[18:19]"); rnd(24, 25)
    A("v_pk_add_f32 v[24:25], v[24:25], v[16:17]")
    A("L_gx:")
    A("v_cvt_pk_bf16_f32 v24, v24, v25")
    A(f"ds_write_b32 v14, v24 offset:{L_X}")
    A("s_lshl_b32 s21, s3, 8\nv_lshl_add_u32 v15, v12, 5, s21")
    A(f"ds_read_b128 v[24:27], v15 offset:{L_X}\nds_read_b128 v[28:31], v15 offset:{L_X+16}")
    A("s_waitcnt lgkmcnt(0)")
    gemv_dot(104, list(range(24, 32)), 32)
    A("s_branch L_gfin")

    if not nearb:
        A("L_nq:")
        A("s_waitcnt lgkmcnt(0)")
        A(f"s_load_dword s6, {WS}, 0")
        mktag()
        A("s_barrier")
    A("L_role:")
    A("s_cmp_eq_u32 s64, 0\ns_cbranch_scc1 L_qpoll")
    A(f"s_cmp_eq_u32 s64, {E_B}\ns_cbranch_scc1 L_wb")
    A(f"s_cmp_lg_u32 s64, {E_P}\ns_cbranch_scc1 L_m")
    if pi == 2:
        A("s_cmp_lg_u32 s3, 0\ns_cbranch_scc1 L_qpoll")
        A(f"s_lshl_b32 s20, s65, 7\ns_add_u32 s20, s20, {WS_P}\ns_add_u32 s72, s{P_WS}, s20\ns_addc_u32 s73, s{P_WS+1}, 0")
        A("v_lshlrev_b32 v4, 10, v12\nv_lshl_add_u32 v4, v13, 4, v4")
        for k in range(4):
            A("global_store_dwordx4 v4, v[16:19], s[72:73] sc1")
            if k < 3: A("v_add_u32 v4, 8192, v4")
        for k in range(4): A(f"s_mov_b32 s{80+k}, -1")
        A("s_waitcnt vmcnt(0)")
        stamp(1)
        A("s_memtime s[76:77]\ns_waitcnt lgkmcnt(0)")
        cur = 76
        for i in range(4 * pn):
            k = (i + (i >> 2)) & 3; nx = 154 - cur
            A(f"s_load_dword s74, s[72:73], {8192*k + 1024*(i>>2)}\ns_waitcnt lgkmcnt(0)\ns_memtime s[{nx}:{nx+1}]\ns_waitcnt lgkmcnt(0)\ns_sub_u32 s21, s{nx}, s{cur}\ns_min_u32 s{80+k}, s{80+k}, s21")
            cur = nx
        stamp(2)
        A("s_add_u32 s20, s80, s82\ns_add_u32 s21, s81, s83\ns_cmp_gt_u32 s20, s21\ns_cselect_b32 s22, 1, 0\ns_cselect_b32 s80, s81, s80\ns_cselect_b32 s82, s83, s82")
        if not use2: A("s_getreg_b32 s20, hwreg(HW_REG_XCC_ID, 2, 1)\ns_xor_b32 s20, s22, s20")
        if use2: A("s_cmp_gt_u32 s80, s82\ns_cselect_b32 s21, 1, 0")
        if use2: A(f"s_getreg_b32 s20, hwreg(HW_REG_XCC_ID, 2, 1)\ns_xor_b32 s22, s22, s20\ns_getreg_b32 s20, hwreg(HW_REG_XCC_ID, 0, 1)\ns_xor_b32 s21, s21, s20\ns_xor_b32 s21, s21, {1 ^ ((WS_P >> 19) & 1)}\ns_lshl_b32 s21, s21, 1\ns_or_b32 s20, s21, s22")
        A(f"v_mov_b32 v4, s20\nv_mov_b32 v5, s6\ns_lshl_b32 s20, s65, 3\ns_add_u32 s20, s20, {WS_PV}\nv_mov_b32 v8, s20")
        A(f"s_mov_b64 exec, 1\nglobal_store_dwordx2 v8, v[4:5], {WS} sc1\ns_mov_b64 exec, -1")
    A("s_branch L_qpoll\nL_m:")
    if 'M' in wdel: lspin("dm", 76, 1, 16, 4, 4)
    if mlate:
        A("s_branch L_qpoll\nL_ml:")
        if mlate <= 8: lspin("sl", L_CV, mlate, 10, 11, 4)
        else: lspin("sl", L_FP, 1, 10, 11, 4)
        A("s_setprio 0\nv_lshrrev_b32 v12, 3, v0\nv_and_b32 v13, 7, v0")
    A("s_mov_b32 s21, 98304\nv_mul_lo_u32 v1, v12, s21\nv_lshl_add_u32 v1, v13, 4, v1")
    A(f"s_mul_i32 s20, s3, {128*6144}\ns_add_u32 s26, s70, 2\ns_lshl_b32 s26, s26, 10\ns_lshl_b32 s21, s69, 7\ns_add_u32 s26, s26, s21\ns_add_u32 s20, s20, s26")
    A("s_lshl_b32 s21, s3, 8\nv_lshl_add_u32 v14, v0, 2, s21")
    srd(8, P_WM, 512 * 6144)
    A(f"global_load_dword v15, v14, {sp(P_C)}")
    paced([f"buffer_load_dwordx4 {v4(40+4*i)}, v1, s[8:11], s20 offen {wpol}\ns_add_u32 s20, s20, 6144" for i in range(16)], 0)
    A(f"s_lshl_b32 s26, s26, 1\ns_add_u32 s26, s26, {WS_MOD-4096}")
    A("s_waitcnt vmcnt(0)")
    unpack(24, [15], 1); silu(24, 32, 2)
    gemv_perm(40, 104, 8)
    A("s_branch L_gx")
    def dma(loads, w):
        if skipw: return
        for i, l in enumerate(loads):
            if w and i >= w: A(f"s_waitcnt vmcnt({w-1})")
            A(f"s_add_u32 m0, s23, {1024*i}")
            A(l)
    def wo_issue(lo, hi):
        srd(8, P_WO, 4096 * 1024)
        A("v_lshrrev_b32 v1, 3, v0\nv_lshlrev_b32 v1, 10, v1\nv_and_b32 v4, 7, v0\nv_lshl_add_u32 v1, v4, 4, v1")
        A(f"s_lshl_b32 s20, s4, 19\ns_lshl_b32 s21, s3, 17\ns_add_u32 s20, s20, s21\ns_lshl_b32 s21, s65, 7\ns_add_u32 s20, s20, s21\ns_add_u32 s20, s20, {8192*lo}")
        A(f"s_lshl_b32 s23, s3, 14\ns_add_u32 s23, s23, {L_WT+1024*lo}")
        dma([f"buffer_load_dwordx4 v1, s[8:11], s20 offen {wpol} lds\ns_add_u32 s20, s20, 8192" for i in range(lo, hi)], pace)
    def wo_finish(w):
        A(f"s_lshl_b32 s23, s3, 14\ns_add_u32 s23, s23, {L_WT}")
        A("v_bfe_u32 v1, v0, 2, 2\nv_lshlrev_b32 v1, 10, v1\nv_lshrrev_b32 v4, 4, v0\nv_lshl_add_u32 v1, v4, 12, v1\nv_and_b32 v4, 3, v0\nv_lshl_add_u32 v1, v4, 3, v1\nv_add_u32 v1, s23, v1")
        A(f"s_waitcnt vmcnt({w})")
        k = 0
        for c in range(4):
            for nt in range(4):
                for hi in range(2):
                    A(f"ds_read_b64_tr_b16 {v2(104+16*c+4*nt+2*hi)}, v1 offset:{(c+4*hi)*128+nt*32}")
                    k += 1
                    if k >= 12 and k % 4 == 0: A("s_waitcnt lgkmcnt(8)")
        A("s_waitcnt lgkmcnt(0)")
    A("L_wb:")
    if xl:
        A("s_cmp_lg_u32 s3, 0\ns_cbranch_scc1 L_wb1")
        A(f"s_getreg_b32 s20, hwreg(HW_REG_XCC_ID, 0, 4)\nv_mov_b32 v4, s20\nv_mov_b32 v5, s6\ns_lshl_b32 s20, s4, 7\ns_lshl_b32 s21, s65, 3\ns_add_u32 s20, s20, s21\ns_add_u32 s20, s20, {WS_XB}\nv_mov_b32 v6, s20")
        A(f"s_mov_b64 exec, 1\nglobal_store_dwordx2 v6, v[4:5], {WS} sc1\ns_mov_b64 exec, -1\ns_nop 0")
        A("L_wb1:")
    if bp:
        A("s_cmp_eq_u32 s3, 1\ns_cbranch_scc1 L_qpoll\ns_cmp_eq_u32 s3, 2\ns_cbranch_scc1 L_qpoll")
        srd(8, P_WO, 4096 * 1024)
        A("v_lshrrev_b32 v1, 3, v0\nv_lshlrev_b32 v1, 10, v1\nv_and_b32 v4, 7, v0\nv_lshl_add_u32 v1, v4, 4, v1\ns_lshr_b32 s22, s3, 1")
        A(f"s_lshl_b32 s20, s4, 19\ns_lshl_b32 s21, s22, 18\ns_add_u32 s20, s20, s21\ns_lshl_b32 s21, s65, 7\ns_add_u32 s20, s20, s21")
        A(f"s_lshl_b32 s23, s22, 15\ns_add_u32 s23, s23, {L_WT}\ns_mov_b32 s22, 31")
        A(f"L_wbl:\ns_mov_b32 m0, s23\ns_waitcnt vmcnt({bp-1})\nbuffer_load_dwordx4 v1, s[8:11], s20 offen {wpol} lds\ns_add_u32 s20, s20, 8192\ns_add_u32 s23, s23, 1024\ns_sub_u32 s22, s22, 1\ns_cbranch_scc0 L_wbl")
        A(f"v_mov_b32 v4, 0\nv_mov_b32 v5, 1\ns_waitcnt vmcnt(0)\ns_mov_b64 exec, 1\nds_add_u32 v4, v5 offset:{L_CW}\ns_mov_b64 exec, -1")
    elif not bdefer:
        if 'B' in wdel: lspin("db", 76, 1, 16, 4, 4)
        wo_issue(0, 16); wo_finish(0)
    elif bearly: wo_issue(0, bearly)
    A("L_qpoll:")
    if w1early:
        A(f"s_cmp_lg_u32 s66, {R_C}\ns_cbranch_scc1 L_qp1\ns_mov_b32 s26, s67")
        if 'C' in wdel: A("v_mov_b32 v16, 0"); lspin("dc", 76, 1, 16, 4, 4)
        srd(8, P_W1, 512 * 3584)
        A("v_lshrrev_b32 v1, 2, v0\ns_mov_b32 s20, 3584\nv_mul_lo_u32 v1, v1, s20\nv_and_b32 v12, 3, v0\nv_lshl_add_u32 v1, v12, 4, v1")
        A(f"s_mul_i32 s20, s3, {128*3584}\ns_lshl_b32 s21, s26, 6\ns_add_u32 s20, s20, s21")
        A(f"s_lshl_b32 s23, s3, 14\ns_add_u32 s23, s23, {L_WT}")
        dma([f"buffer_load_dwordx4 v1, s[8:11], s20 offen {w1pol} lds\ns_add_u32 s20, s20, {16*3584}" for i in range(8)], 0)
        A("L_qp1:")
    if nosvc:
        A(f"v_mov_b32 v10, 0\nv_mov_b32 v5, 1\nds_write_b32 v10, v5 offset:{L_FQ}\ns_mov_b64 exec, 1\nds_add_u32 v10, v5 offset:{L_CS}")
        end_wave()
    if tw:
        A("s_cmp_lg_u32 s3, 3\ns_cbranch_scc1 L_tw")
        A(f"s_lshl_b32 s20, s4, 23\ns_mul_i32 s21, s5, {28*8192}\ns_add_u32 s21, s21, s20\ns_add_u32 s20, s20, {896*8192}")
        A(f"v_mov_b32 v4, s21\nv_add_u32 v5, {28*8192-128}, v4\nv_mov_b32 v6, s20\nv_mov_b32 v7, 0\ns_mov_b64 exec, 1")
        A(f"global_load_dword v24, v4, {sp(P_V)} nt\nglobal_load_dword v25, v5, {sp(P_V)} nt\nglobal_load_dword v26, v6, {sp(P_V)} nt\nglobal_load_dword v27, v7, {sp(P_W2)} nt")
        A("s_waitcnt vmcnt(0)\ns_mov_b64 exec, -1\nL_tw:")
    A("v_mov_b32 v10, 0\nv_mov_b32 v23, 0\nv_mov_b32 v35, 64")
    A("s_cmp_lg_u32 s3, 1\ns_cbranch_scc1 L_np")
    A(f"s_lshl_b32 s21, s4, 11\ns_add_u32 s21, s21, {WS_Q}\nv_add_u32 v14, s21, v2")
    lspin("sk", L_FK, 1, 10, 11, 16 if calm else 4)
    def ldq():
        if qloc:
            A(f"ds_read_b32 v11, v10 offset:{L_FK}\ns_waitcnt lgkmcnt(0)\nv_readfirstlane_b32 s21, v11\ns_lshr_b32 s21, s21, 1\ns_and_b32 s21, s21, s7")
            if slowfb: A(f"s_cmp_lt_u32 s7, {spin-slowfb}")
            A(f"s_cselect_b32 s21, 0, {WS_QL-WS_Q}\nv_add_u32 v15, s21, v14")
        for i in range(2): A(f"global_load_dwordx4 {v4(16+4*i)}, v{15 if qloc else 14}, {WS} offset:{1024*i} sc1")
    poll("pq", ldq, lambda: chk_tags([17, 19, 21, 23], 4), qsleep)
    A("v_mov_b32 v17, v18\nv_mov_b32 v21, v22\nv_lshlrev_b32 v14, 3, v0\nv_mov_b32 v5, 1")
    A(f"ds_write_b64 v14, v[16:17] offset:{L_Q}\nds_write_b64 v14, v[20:21] offset:{L_Q+512}")
    A(f"ds_write_b32 v10, v5 offset:{L_FQ}")
    stamp(4)
    A("L_np:")
    if xit == 'np': end_wave()
    A("s_cmp_eq_u32 s3, 2\ns_cbranch_scc1 L_post")
    if mlate: A(f"s_cmp_eq_u32 s64, {E_M}\ns_cbranch_scc1 L_ml")
    A("s_cmp_eq_u32 s66, 0\ns_cbranch_scc1 L_done")
    A(f"s_cmp_lg_u32 s66, {R_F}\ns_cbranch_scc1 L_ws")
    A("s_cmp_lg_u32 s3, 0\ns_cbranch_scc1 L_done")
    A("L_ws:")
    lspin("ss0", L_CS, 9, 10, 11, 32 if calm else 16)
    A("s_branch L_pre")
    A("L_done:")
    end_wave()
    A("L_post:")
    a_addr(37, 15)
    A("v_bfe_u32 v36, v0, 2, 2")
    for i in range(4): A(f"v_mov_b32 v{16+i}, -1")
    if xl:
        A(f"v_and_b32 v20, 7, v0\ns_lshl_b32 s20, s4, 7\ns_add_u32 s20, s20, {WS_XB}\nv_lshl_add_u32 v20, v20, 3, s20")
        lspin("sg", L_FK, 1, 10, 11, 32 if calm else 8)
        poll("px", lambda: A(f"global_load_dwordx2 v[22:23], v20, {WS} sc1"), lambda: chk_tags([23], 21), 8)
        A("s_getreg_b32 s20, hwreg(HW_REG_XCC_ID, 0, 4)\nv_cmp_ne_u32 vcc, s20, v22\ns_cbranch_vccz L_ng")
        A(f"v_mov_b32 v5, 1\nds_write_b32 v10, v5 offset:{L_MK}")
    A(f"global_store_dwordx4 v37, v[16:19], {WS} sc1")
    A("L_ng:")
    if loc: A(f"v_add_u32 v39, {WS_AL-WS_A}, v37\nglobal_store_dwordx4 v39, v[16:19], {WS}")
    A("v_lshlrev_b32 v38, 3, v36\nv_mov_b32 v5, 1")
    A(f"s_lshl_b32 s20, s4, 11\ns_lshl_b32 s21, s5, {6 if fl else 4}\ns_add_u32 s20, s20, s21\ns_add_u32 s20, s20, {WS_ST}\nv_lshl_add_u32 v36, v36, {4 if fl else 9}, s20")
    A(f"s_waitcnt vmcnt(0)\ns_mov_b64 exec, 1\nds_add_u32 v10, v5 offset:{L_CS}\ns_mov_b64 exec, -1")
    lspin("ss", L_CS, 9, 10, 11, 16 if calm else 8)
    stamp(1)
    for w in range(8): A(f"ds_read_b64 {v2(40+2*w)}, v38 offset:{L_ST+32*w}")
    A("s_waitcnt lgkmcnt(0)")
    A("v_max3_f32 v56, v40, v42, v44\nv_max3_f32 v56, v56, v46, v48\nv_max3_f32 v56, v56, v50, v52\nv_max_f32 v56, v56, v54")
    for w in range(8): A(f"v_sub_f32 v{28+w}, v{40+2*w}, v56")
    for w in range(8): A(f"v_exp_f32 v{28+w}, v{28+w}")
    A("v_mul_f32 v58, v28, v41")
    for w in range(1, 8): A(f"v_fmac_f32 v58, v{28+w}, v{41+2*w}")
    A("s_getreg_b32 s20, hwreg(HW_REG_XCC_ID, 0, 4)\ns_add_u32 s20, s20, s6\nv_mov_b32 v57, s6\nv_mov_b32 v59, s20")
    A("s_mov_b64 exec, 0x1111")
    A(f"global_store_dwordx4 v36, v[56:59], {WS} sc1")
    A("s_mov_b64 exec, -1")
    stamp(2)
    if mlate: A(f"s_cmp_eq_u32 s64, {E_M}\ns_cbranch_scc1 L_ml")
    A(f"s_cmp_eq_u32 s66, 0\ns_cbranch_scc1 L_done\ns_cmp_eq_u32 s66, {R_F}\ns_cbranch_scc1 L_done")
    A("L_pre:")
    assert pi == 2
    A(f"v_and_b32 v37, 7, v0\nv_lshlrev_b32 v37, 3, v37\nv_add_u32 v37, {WS_PV}, v37")
    VL = f"global_load_dwordx2 v[38:39], v37, {WS} sc1"
    def tally():
        A("v_and_b32 v37, 1, v38\nv_cmp_ne_u32 vcc, 0, v37\ns_and_b32 s71, vcc_lo, 0xff\ns_bcnt1_i32_b32 s71, s71\ns_cmp_gt_u32 s71, 4\ns_cselect_b32 s71, 0x2000, 0")
        if use2: A("v_and_b32 v37, 2, v38\nv_cmp_ne_u32 vcc, 0, v37\ns_and_b32 s75, vcc_lo, 0xff\ns_bcnt1_i32_b32 s75, s75\ns_cmp_gt_u32 s75, 4\ns_cselect_b32 s75, 0x4000, 0\ns_or_b32 s71, s71, s75")
        else: A(f"s_or_b32 s71, s71, {p2<<14}")
        A("s_xor_b32 s75, s71, 0x4000")
    if xit == 'pre': end_wave()
    A(f"s_cmp_eq_u32 s66, {R_F}\ns_cbranch_scc1 L_tf")
    A(f"s_cmp_eq_u32 s66, {R_C}\ns_cbranch_scc1 L_tc")
    if bp: lspin("sz", L_CW, 2, 10, 11, 16); wo_finish(0)
    A(f"s_lshl_b32 s20, s4, 11\ns_lshl_b32 s21, s3, {4 if fl else 9}\ns_add_u32 s20, s20, s21\ns_add_u32 s20, s20, {WS_ST}")
    A(f"v_and_b32 v4, 31, v0\nv_lshl_add_u32 v5, v4, {6 if fl else 4}, s20")
    lspin("sb", L_CV, strig, 10, 11, 12 if calm else 4)
    poll("ps", lambda: A(f"global_load_dwordx4 v[40:43], v5, {WS} sc1\n" + VL), lambda: A("v_subrev_u32 v43, s6, v43\nv_xor_b32 v6, s6, v41\nv_lshrrev_b32 v7, 4, v43\nv_or_b32 v6, v6, v7\nv_xor_b32 v7, s6, v39\nv_or_b32 v6, v6, v7\nv_cmp_ne_u32 vcc, 0, v6"), 8)
    tally()
    A("s_getreg_b32 s20, hwreg(HW_REG_XCC_ID, 0, 4)\nv_cmp_eq_u32 vcc, s20, v43")
    A("s_and_b32 s28, vcc_lo, 0xffff\ns_mul_i32 s28, s28, 0x10001\ns_mov_b32 s29, s28\ns_lshr_b32 s30, vcc_lo, 16\ns_mul_i32 s30, s30, 0x10001\ns_mov_b32 s31, s30")
    A("v_mov_b32 v44, v40")
    inrow("v_max_f32", 44, ["row_ror:8", "row_ror:4", "row_ror:2", "row_ror:1"]); xrow("v_max_f32", 44, 45, 16)
    A("v_sub_f32 v40, v40, v44\nv_exp_f32 v40, v40\nv_mul_f32 v44, v40, v42")
    inrow("v_add_f32", 44, ["row_ror:8", "row_ror:4", "row_ror:2", "row_ror:1"]); xrow("v_add_f32", 44, 45, 16)
    A("v_rcp_f32 v44, v44\nv_mul_f32 v40, v40, v44")
    A("s_lshl_b32 s20, s3, 8\nv_lshl_add_u32 v4, v4, 2, s20\nv_lshrrev_b32 v5, 4, v0\nv_lshl_add_u32 v5, v5, 4, s20")
    A(f"ds_write_b32 v4, v40 offset:{L_X}\nds_read_b128 v[12:15], v5 offset:{L_X}\nds_read_b128 v[16:19], v5 offset:{L_X+64}")
    A("v_and_b32 v1, 15, v0\nv_lshrrev_b32 v4, 4, v0\nv_lshlrev_b32 v24, 4, v1\nv_lshl_add_u32 v22, v4, 14, v24\nv_lshlrev_b32 v1, %d, v1\nv_lshl_add_u32 v1, v4, 4, v1" % (7 if fl else 6))
    A(f"s_lshl_b32 s20, s4, 15\ns_lshl_b32 s21, s3, 13\ns_add_u32 s20, s20, s21\ns_add_u32 s20, s20, {WS_A}\nv_add_u32 v1, s20, v{2 if lin else 1}")
    A(f"v_add_u32 v5, {(WS_AL-WS_A) if loc else 0}, v1\nv_cndmask_b32 v6, v1, v5, s[28:29]\nv_cndmask_b32 v7, v1, v5, s[30:31]\nv_add_u32 v8, 4096, v6\nv_add_u32 v9, 4096, v7")
    A("s_lshl_b32 s20, s3, 8\nv_lshl_add_u32 v21, v0, 2, s20")
    if pi is None: A(f"s_lshl_b32 s20, s4, 11\ns_lshl_b32 s21, s67, 8\ns_add_u32 s20, s20, s21\ns_add_u32 s20, s20, {WS_B}\ns_lshl_b32 s21, s3, 16\ns_add_u32 s20, s20, s21\nv_add_u32 v22, s20, v22")
    else:
        A(f"s_and_b32 s20, s4, 3\ns_lshl_b32 s20, s20, 11\ns_lshr_b32 s21, s4, 2\ns_lshl_b32 s21, s21, 15\ns_add_u32 s20, s20, s21\ns_lshl_b32 s21, s67, 8\ns_add_u32 s20, s20, s21\ns_add_u32 s20, s20, {WS_B}")
        A("v_bfe_u32 v22, v0, 4, 1\nv_lshl_add_u32 v22, v22, 16, v24\nv_lshrrev_b32 v25, 5, v0\nv_lshl_add_u32 v22, v25, 13, v22\nv_add_u32 v22, s20, v22\nv_xor_b32 v22, s71, v22")
    A("s_waitcnt lgkmcnt(0)")
    stamp(5)
    AR = lambda c, s_: 40 + 16 * s_ + 4 * c
    D = lambda s_, nt: 72 + 16 * s_ + 4 * nt
    def lda(s_):
        for c in range(4): A(f"global_load_dwordx4 {v4(AR(c,s_))}, v{6+s_+(0 if c<2 else 2)}, {WS} offset:{(64*(c&1)+2048*s_) if fl else (2048*(c&1)+1024*s_)} {lpol}")
    def mm(s_, other_done):
        wr = 12 + 4 * s_
        def fin(nt):
            d = D(s_, nt)
            r = [f"v_pk_mul_f32 {v2(d)}, {v2(d)}, {v2(wr)}", f"v_pk_fma_f32 {v2(d)}, {v2(d+2)}, {v2(wr+2)}, {v2(d)}", f"v_add_f32 v{d}, v{d}, v{d+1}"]
            if other_done: r.append(f"v_add_f32 v{D(0,nt)}, v{D(0,nt)}, v{D(1,nt)}")
            return r
        for c in range(4):
            for nt in (0, 2, 1, 3):
                d = D(s_, nt)
                A(f"v_mfma_f32_16x16x32_bf16 {v4(d)}, {v4(AR(c,s_))}, {v4(104+16*c+4*nt)}, {'0' if c==0 else v4(d)}")
        for grp in zip(fin(0), fin(2), fin(1), fin(3)):
            for l in grp: A(l)
        if other_done: A("v_permlane32_swap_b32 v72, v80\nv_add_f32 v72, v72, v80")
    if dry:
        A("s_mov_b64 s[80:81], 0\ns_mov_b64 s[32:33], 0\ns_mov_b64 s[34:35], 0\ns_mov_b32 s84, 0\ns_mov_b64 exec, 0\ns_branch L_pb0")
        A("L_bdr:\ns_cmp_eq_u32 s84, 0\ns_mov_b32 s84, 1\ns_cbranch_scc1 L_pb1\ns_mov_b64 exec, -1")
    A("s_mov_b64 s[80:81], -1")
    if bdefer:
        if bdefer <= 8: lspin("sd", L_CV, bdefer, 10, 11, 1)
        else: lspin("sd", L_FP, 1, 10, 11, 1)
        A("s_setprio 1"); wo_issue(bearly, 16); lda(0); lda(1); A("s_setprio 3"); wo_finish(8)
        stamp(4)
        A(f"s_mov_b32 s7, {spin}\ns_branch L_pa2")
    if atrig: lspin("sa", L_FO + (4 if atrig > 4 else 0), atrig - 4 if atrig > 4 else atrig, 10, 11, 2)
    A(f"s_mov_b32 s7, {spin}\ns_mov_b64 s[32:33], -1\ns_mov_b64 s[34:35], -1")
    A("L_pa:")
    A("s_mov_b64 exec, s[32:33]"); lda(0)
    A("s_mov_b64 exec, s[34:35]"); lda(1)
    A("s_mov_b64 exec, -1")
    A("L_pa2:")
    A("s_waitcnt vmcnt(4)")
    chk_sent(range(40, 56), 23); A("s_mov_b64 s[32:33], vcc")
    A("s_waitcnt vmcnt(0)")
    chk_sent(range(56, 72), 23); A("s_mov_b64 s[34:35], vcc")
    A("s_cbranch_vccz L_pa1\ns_cmp_eq_u64 s[32:33], 0\ns_cbranch_scc1 L_pa0")
    if tsleep: A(f"s_sleep {tsleep}")
    if bhold:
        A("s_mov_b32 s85, s7"); lspin("sy", L_FO + 4 * (bhold - 1), 1, 10, 11, 2); A("s_mov_b32 s7, s85")
    A("s_sub_u32 s7, s7, 1\ns_cbranch_scc0 L_pa")
    for first in (0, 1):
        sec = 1 - first
        A(f"L_pa{first}:")
        mk = sp(32 + 2 * sec)
        A(f"s_cmp_eq_u64 {mk}, 0\ns_cbranch_scc1 L_pb{first}")
        A(f"s_mov_b64 exec, {mk}"); lda(sec); A("s_mov_b64 exec, -1")
        A(f"L_pb{first}:")
        mm(first, False)
        A(f"s_mov_b64 exec, {mk}\ns_cbranch_execz L_pd{first}")
        for _ in range(pd - 1): lda(sec)
        A(f"L_pc{first}:")
        A(f"s_waitcnt vmcnt({4*(pd-1)})")
        chk_sent(range(40 + 16 * sec, 56 + 16 * sec), 23)
        A(f"s_cbranch_vccz L_pd{first}\ns_mov_b64 exec, vcc")
        lda(sec)
        A(f"s_sub_u32 s7, s7, 1\ns_cbranch_scc0 L_pc{first}\ns_waitcnt vmcnt(0)")
        A(f"L_pd{first}:")
        A("s_mov_b64 exec, s[80:81]")
        stamp(6)
        mm(sec, True)
        if first == 0: A("s_branch L_pe")
    A("L_pe:\ns_nop 0")
    A("v_permlane32_swap_b32 v76, v84\nv_add_f32 v76, v76, v84")
    A("v_permlane16_swap_b32 v72, v76\nv_add_f32 v72, v72, v76")
    A(f"ds_write_b32 v21, v72 offset:{L_RED}")
    A("s_waitcnt lgkmcnt(0)")
    if dry: A("s_cbranch_execz L_bnb")
    A("s_barrier")
    A(f"s_cmp_ge_u32 s3, {2 if R == 8 else 1}\ns_cbranch_scc1 L_done")
    A("L_bnb:")
    for w in range(4): A(f"ds_read_b128 {v4(88+4*w)}, v24 offset:{L_RED+256*w}")
    assert R in (4, 8)
    A("s_waitcnt lgkmcnt(2)\nv_pk_add_f32 v[88:89], v[88:89], v[92:93]\nv_pk_add_f32 v[90:91], v[90:91], v[94:95]")
    A("s_waitcnt lgkmcnt(0)\nv_pk_add_f32 v[96:97], v[96:97], v[100:101]\nv_pk_add_f32 v[98:99], v[98:99], v[102:103]")
    A("v_pk_add_f32 v[88:89], v[88:89], v[96:97]\nv_pk_add_f32 v[90:91], v[90:91], v[98:99]")
    if dry: A("s_cbranch_execz L_bdr")
    A(f"global_store_dwordx4 v22, v[88:91], {WS} sc1")
    stamp(7)
    end_wave()
    A("L_tc:")
    A("s_mov_b32 s26, s67")
    srd(8, P_W1, 512 * 3584); srd(12, P_W2, 1792 * 1024)
    A("v_lshrrev_b32 v23, 4, v0\nv_lshlrev_b32 v23, 4, v23")
    A("v_lshrrev_b32 v1, 2, v0\ns_mov_b32 s20, 3584\nv_mul_lo_u32 v1, v1, s20\nv_and_b32 v12, 3, v0\nv_lshl_add_u32 v1, v12, 4, v1")
    A(f"s_mul_i32 s20, s3, {128*3584}\ns_lshl_b32 s21, s26, 6\ns_add_u32 s20, s20, s21")
    A("v_lshlrev_b32 v18, 6, v23\nv_and_b32 v13, 15, v0\nv_lshl_add_u32 v18, v13, 4, v18")
    A("s_lshl_b32 s27, s26, 15\ns_lshl_b32 s21, s3, 8\ns_add_u32 s27, s27, s21")
    A(f"s_lshl_b32 s23, s3, 14\ns_add_u32 s23, s23, {L_WT}")
    if not w1early: dma([f"buffer_load_dwordx4 v1, s[8:11], s20 offen {w1pol} lds\ns_add_u32 s20, s20, {16*3584}" for i in range(8)], 0)
    def w2load():
        A("s_add_u32 s23, s23, 8192")
        dma([f"buffer_load_dwordx4 v18, s[12:15], s27 offen {wpol} lds\ns_add_u32 s27, s27, 4096" for i in range(8)], 0)
    A("v_lshrrev_b32 v12, 4, v0\nv_bfe_u32 v13, v0, 2, 2\nv_and_b32 v14, 3, v0\nv_lshl_add_u32 v14, v14, 3, s23")
    A("v_lshl_add_u32 v1, v12, 9, v14\nv_lshl_add_u32 v1, v13, 6, v1")
    A("v_lshl_add_u32 v19, v12, 10, v14\nv_lshl_add_u32 v19, v13, 8, v19")
    if not w2late: w2load()
    A("v_and_b32 v20, 31, v0\nv_lshlrev_b32 v20, 3, v20\nv_lshrrev_b32 v21, 5, v0\nv_lshl_add_u32 v20, v21, 2, v20")
    A("s_lshl_b32 s20, s3, 8\nv_add_u32 v20, s20, v20")
    A(f"global_load_dword v22, v20, {sp(P_X)}\nglobal_load_dwordx4 v[28:31], v2, {sp(P_X)}")
    A(f"v_lshlrev_b32 v21, 1, v20\nv_add_u32 v21, {WS_MOD}, v21\nv_add_u32 v24, 4096, v21")
    assert not mlate
    poll("pm", lambda: A(f"global_load_dwordx2 v[40:41], v21, {WS} sc1\nglobal_load_dwordx2 v[42:43], v21, {WS} offset:2048 sc1\nglobal_load_dwordx2 v[44:45], v24, {WS} sc1\n" + VL),
         lambda: chk_tags([41, 43, 45, 39], 46), 2 if mlate else 16)
    tally()
    for c in range(4):
        for mt in range(2):
            for hi in range(2):
                A(f"ds_read_b64_tr_b16 {v2(104+8*c+4*mt+2*hi)}, v1 offset:{(32*c+4*hi)*64+mt*32}")
        if c & 1: A("s_waitcnt lgkmcnt(0)")
    unpack(4, [22], 1)
    unpack(48, [28, 29, 30, 31], 4)
    A("v_pk_add_f32 v[48:49], v[48:49], v[50:51]\nv_pk_add_f32 v[52:53], v[52:53], v[54:55]\nv_pk_add_f32 v[48:49], v[48:49], v[52:53]\nv_add_f32 v48, v48, v49")
    wave_reduce("v_add_f32", 48, 49)
    A(f"v_mul_f32 v48, {f2x(1/512)}, v48\nv_sub_f32 v4, v4, v48\nv_sub_f32 v5, v5, v48")
    def w2tr():
        for tau in range(8):
            for hi in range(2):
                A(f"ds_read_b64_tr_b16 {v2(136+4*tau+2*hi)}, v19 offset:{8192+hi*4096+tau*32}")
            if tau % 4 == 3: A("s_waitcnt lgkmcnt(0)")
    if mlate:
        lspin("sv0", L_CV, 4, 10, 11, 16); lspin("sv", L_FP, 1, 10, 11, 2); w2load(); A("s_waitcnt vmcnt(0)"); w2tr(); stamp(4)
    unpack(6, [40, 44], 2)
    A("v_add_f32 v8, 1.0, v8\nv_add_f32 v9, 1.0, v9\nv_cvt_pk_bf16_f32 v44, v8, v9")
    unpack(8, [44], 1)
    A(f"ds_write_b32 v20, v44 offset:{L_U}\nds_write_b32 v20, v42 offset:{L_U+1024}")
    A("v_add_u32 v21, s20, v23\nv_and_b32 v22, 1, v0\nv_lshl_add_u32 v22, v22, 10, v21")
    for c in range(4): A(f"ds_read_b128 {v4(48+4*c)}, v22 offset:{L_U+64*c}")
    A("s_waitcnt lgkmcnt(0)")
    for c in range(4):
        for mt in range(2):
            A(f"v_mfma_f32_16x16x32_bf16 {v4(24+4*mt)}, {v4(104+8*c+4*mt)}, {v4(48+4*c)}, {'0' if c==0 else v4(24+4*mt)}")
    A("s_mov_b32 exec_lo, 0x00030003\ns_mov_b32 exec_hi, 0x00030003")
    A(f"ds_write_b128 v22, v[24:27] offset:{L_GS}\nds_write_b128 v22, v[28:31] offset:{L_GS+64}")
    A("s_mov_b64 exec, 1\nv_mov_b32 v33, 1")
    A(f"ds_add_u32 v10, v33 offset:{L_CP}")
    A("s_mov_b64 exec, -1")
    A("v_and_b32 v1, 31, v0\nv_lshlrev_b32 v1, 4, v1\nv_lshrrev_b32 v16, 5, v0\nv_lshl_add_u32 v1, v16, 11, v1")
    def bcopy():
        A(f"s_bfe_u32 s20, s4, 0x10001\ns_lshl_b32 s20, s20, 16\ns_lshr_b32 s21, s4, 2\ns_lshl_b32 s21, s21, 13\ns_xor_b32 s21, s21, s71\ns_add_u32 s20, s20, s21\ns_add_u32 s20, s20, {WS_B}")
    if pi is None:
        A(("s_lshr_b32 s21, s4, 1" if rx else f"s_and_b32 s21, {'s4' if R == 8 else 's26'}, {R-1}") + f"\ns_lshl_b32 s21, s21, 14\ns_lshl_b32 s20, s3, 9\ns_add_u32 s20, s20, s21\ns_add_u32 s20, s20, {WS_B}\nv_add_u32 v1, s20, v1")
        A("v_add_u32 v12, 4096, v1\nv_add_u32 v13, 8192, v1\nv_add_u32 v14, 12288, v1")
    else:
        bcopy()
        A("s_lshl_b32 s21, s3, 9\ns_add_u32 s20, s20, s21\nv_add_u32 v1, s20, v1\nv_add_u32 v12, 4096, v1\nv_add_u32 v13, 32768, v1\nv_add_u32 v14, 36864, v1")
    A(f"s_lshl_b32 s20, s3, 8\nv_lshl_add_u32 v22, v16, 2, s20")
    A("v_and_b32 v33, 3, v0\nv_lshlrev_b32 v33, 8, v33\nv_bfe_u32 v32, v0, 3, 1\nv_lshl_add_u32 v32, v32, 6, v33\nv_add_u32 v32, v32, v23")
    A(f"s_mov_b32 s22, {f2x(1/512)}\nv_mov_b32 v34, {f2x(1e-5)}")
    lspin("sp", L_CP, 4, 10, 11, 0 if mlate else 4, lambda: A(f"ds_read_b128 v[24:27], v32 offset:{L_GS}\nds_read_b128 v[28:31], v32 offset:{L_GS+1024}"))
    for qp in ("[1,0,3,2]", "[2,3,0,1]"):
        for i in range(8): A(f"v_add_f32_dpp v{24+i}, v{24+i}, v{24+i} quad_perm:{qp} {DPPF}")
    if dry:
        A("s_mov_b64 s[80:81], 0\ns_mov_b64 s[82:83], 0\ns_mov_b64 exec, 0\ns_branch L_pbd\nL_cdr:\ns_mov_b64 exec, -1")
    A("s_mov_b64 s[80:81], -1\ns_mov_b32 s82, 0x00010001\ns_mov_b32 s83, 0x00010001")
    if not mlate:
        stamp(4)
        lspin("sv0", L_CV, 4, 10, 11, 16); lspin("sv", L_FP, 1, 10, 11, 2)
        if w2late: w2load()
    cs = 13 if cpad else 12
    if pi is None: A(f"s_lshl_b32 s20, s3, {cs+3}\ns_lshl_b32 s21, s26, {cs-6}\ns_add_u32 s20, s20, s21\ns_add_u32 s20, s20, {WS_C}")
    else:
        if cpad: A(f"s_and_b32 s20, s3, 1\ns_lshl_b32 s20, s20, 18\ns_lshr_b32 s21, s3, 1\ns_lshl_b32 s21, s21, 13\ns_xor_b32 s21, s21, s75\ns_add_u32 s20, s20, s21\ns_lshl_b32 s21, s26, 7\ns_add_u32 s20, s20, s21\ns_add_u32 s20, s20, {WS_C}")
        else: A(f"s_and_b32 s20, s3, 1\ns_lshl_b32 s20, s20, 17\ns_lshr_b32 s21, s3, 1\ns_lshl_b32 s21, s21, 13\ns_xor_b32 s21, s21, s75\ns_add_u32 s20, s20, s21\ns_lshl_b32 s21, s26, 6\ns_add_u32 s20, s20, s21\ns_add_u32 s20, s20, {WS_C}")
        cs = 15
    if cpad: A(f"v_bfe_u32 v35, v0, 2, 3\nv_lshlrev_b32 v35, {cs}, v35\nv_and_b32 v36, 3, v0\nv_lshl_add_u32 v35, v36, 4, v35\nv_add_u32 v35, s20, v35")
    else: A("v_bfe_u32 v35, v0, 3, 2\nv_lshlrev_b32 v35, 15, v35\nv_bfe_u32 v36, v0, 2, 1\nv_lshl_add_u32 v35, v36, 12, v35\nv_and_b32 v36, 3, v0\nv_lshl_add_u32 v35, v36, 4, v35\nv_add_u32 v35, s20, v35")
    if not mlate: A("s_waitcnt vmcnt(0)"); w2tr()
    stamp(5)
    G = 40; Hh = 88
    def gather4(name, base, addr, tmp, sleep):
        if g4:
            A(f"s_mov_b32 s7, {spin}")
            for i in range(4): A(f"global_load_dwordx4 {v4(base+4*i)}, {addr(i)} sc1\ns_mov_b64 {sp(28+2*i)}, -1")
            A(f"L_{name}t:\ns_waitcnt vmcnt(0)\ns_mov_b32 s21, 0")
            for i in range(4):
                A(f"s_mov_b64 exec, {sp(28+2*i)}\ns_cbranch_execz L_{name}s{i}")
                A(f"v_max3_u32 v{tmp}, v{base+4*i}, v{base+4*i+1}, v{base+4*i+2}\nv_max_u32 v{tmp}, v{tmp}, v{base+4*i+3}\nv_cmp_eq_u32 vcc, -1, v{tmp}")
                A(f"s_mov_b64 {sp(28+2*i)}, vcc\ns_cbranch_vccz L_{name}s{i}\ns_mov_b64 exec, vcc\nglobal_load_dwordx4 {v4(base+4*i)}, {addr(i)} sc1\ns_mov_b32 s21, 1")
                A(f"L_{name}s{i}:")
            A(f"s_mov_b64 exec, -1\ns_cmp_eq_u32 s21, 0\ns_cbranch_scc1 L_{name}d\ns_sub_u32 s7, s7, 1\ns_cbranch_scc0 L_{name}t\ns_waitcnt vmcnt(0)")
            A(f"L_{name}d:")
            return
        A(f"s_mov_b32 s7, {spin}")
        for _ in range(pd):
            for i in range(4): A(f"global_load_dwordx4 {v4(base+4*i)}, {addr(i)} sc1")
        A(f"L_{name}t:")
        A(f"s_waitcnt vmcnt({4*(pd-1)})")
        for i in range(4): A(f"v_max3_u32 v{tmp+i}, v{base+4*i}, v{base+4*i+1}, v{base+4*i+2}")
        for i in range(4): A(f"v_max_u32 v{tmp+i}, v{tmp+i}, v{base+4*i+3}")
        A(f"v_max3_u32 v{tmp+4}, v{tmp}, v{tmp+1}, v{tmp+2}\nv_max_u32 v{tmp+4}, v{tmp+4}, v{tmp+3}\nv_cmp_eq_u32 vcc, -1, v{tmp+4}\ns_cbranch_vccz L_{name}d")
        for i in range(4): A(f"v_cmp_eq_u32 {sp(28+2*i)}, -1, v{tmp+i}")
        if sleep: A(f"s_sleep {sleep}")
        for i in range(4):
            A(f"s_or_b64 exec, {sp(28+2*i)}, 1\nglobal_load_dwordx4 {v4(base+4*i)}, {addr(i)} sc1")
        A(f"s_mov_b64 exec, -1\ns_sub_u32 s7, s7, 1\ns_cbranch_scc0 L_{name}t")
        A(f"L_{name}d:")
    gather4("pb", Hh, lambda i: f"v{1 if i==0 else 11+i}, {WS}", 56, csleep)
    stamp(6)
    A(f"v_pk_add_f32 {v2(G)}, {v2(Hh)}, {v2(Hh+4)}\nv_pk_add_f32 {v2(G+2)}, {v2(Hh+2)}, {v2(Hh+6)}\nv_pk_add_f32 {v2(G+8)}, {v2(Hh+8)}, {v2(Hh+12)}\nv_pk_add_f32 {v2(G+10)}, {v2(Hh+10)}, {v2(Hh+14)}")
    A(f"v_pk_add_f32 {v2(G)}, {v2(G)}, {v2(G+8)}\nv_pk_add_f32 {v2(G+2)}, {v2(G+2)}, {v2(G+10)}")
    A(f"v_permlane32_swap_b32 v{G}, v{G+2}\nv_permlane32_swap_b32 v{G+1}, v{G+3}")
    A(f"v_pk_add_f32 {v2(G)}, {v2(G)}, {v2(G+2)}")
    A(f"v_pk_fma_f32 v[4:5], {v2(G)}, v[6:7], v[4:5]")
    A("v_pk_mul_f32 v[6:7], v[4:5], v[8:9]\nv_cvt_pk_bf16_f32 v6, v6, v7")
    A(f"ds_write_b32 v20, v6 offset:{L_U}")
    for c in range(4): A(f"ds_read_b128 {v4(44+4*c)}, v21 offset:{L_U+64*c}")
    A("v_add_f32 v16, v4, v5\nv_mul_f32 v17, v4, v4\nv_fmac_f32 v17, v5, v5")
    A("v_permlane32_swap_b32 v16, v17\nv_add_f32 v16, v16, v17")
    xrow("v_add_f32", 16, 17, 16)
    steps = ["row_ror:8", "row_ror:4", "row_ror:2", "row_ror:1"]
    for c in range(4):
        A(f"s_waitcnt lgkmcnt({3-c})")
        for mt in range(2):
            A(f"v_mfma_f32_16x16x32_bf16 {v4(60+4*mt)}, {v4(104+8*c+4*mt)}, {v4(44+4*c)}, {'0' if c==0 else v4(60+4*mt)}")
        inrow("v_add_f32", 16, [steps[c]])
    A("s_mov_b64 exec, s[82:83]")
    A(f"ds_write_b32 v22, v16 offset:{L_RED+128}")
    A(f"ds_write_b128 v21, v[60:63] offset:{L_RED}\nds_write_b128 v21, v[64:67] offset:{L_RED+64}")
    A("s_mov_b64 exec, s[80:81]")
    A("s_waitcnt lgkmcnt(0)")
    if dry: A("s_cbranch_execz L_cnb")
    A("s_barrier\nL_cnb:")
    A(f"ds_read_b64 v[12:13], v33 offset:{L_RED+128}\nds_read_b128 v[40:43], v32 offset:{L_RED}")
    A("s_waitcnt lgkmcnt(0)")
    for qp in ("[1,0,3,2]", "[2,3,0,1]"):
        for r in (12, 13, 40, 41, 42, 43): A(f"v_add_f32_dpp v{r}, v{r}, v{r} quad_perm:{qp} {DPPF}")
    A("v_mul_f32 v12, s22, v12\nv_fma_f32 v14, v13, s22, v34\nv_fma_f32 v14, -v12, v12, v14\nv_max_f32 v14, v14, v34\nv_rsq_f32 v14, v14")
    for q in range(2): A(f"v_pk_fma_f32 {v2(40+2*q)}, {v2(24+2*q)}, v[12:13], {v2(40+2*q)} op_sel_hi:[1,0,1] neg_lo:[0,1,0] neg_hi:[0,1,0]")
    for q in range(2): A(f"v_pk_fma_f32 {v2(40+2*q)}, {v2(40+2*q)}, v[14:15], {v2(28+2*q)} op_sel_hi:[1,0,1]")
    for q in range(2): A(f"v_cvt_pk_bf16_f32 v{48+q}, v{40+2*q}, v{41+2*q}")
    for q in range(2): A(f"v_pk_max_i16 v{48+q}, v{48+q}, 0")
    for q in range(2): A(f"v_mov_b32_dpp v{50+q}, v{48+q} row_shl:8 {DPPF} bound_ctrl:0")
    for tau in (0, 2, 4, 6, 1, 3, 5, 7): A(f"v_mfma_f32_16x16x32_bf16 {v4(56+4*tau)}, v[48:51], {v4(136+4*tau)}, 0")
    for j in (1, 2, 3): A(f"v_mov_b32 v{56+j}, v{56+8*j}")
    for j in range(4): A(f"v_mov_b32_dpp v{56+j}, v{60+8*j} quad_perm:[0,1,2,3] row_mask:0x2 bank_mask:0xf")
    if dry: A("s_cbranch_execz L_cdr")
    A("s_mov_b32 exec_hi, 0")
    A(f"global_store_dwordx4 v35, v[56:59], {WS} sc1")
    stamp(7)
    end_wave()
    A("L_tf:")
    prb("cs")
    A("s_mov_b32 s26, s67\ns_lshr_b32 s20, s26, 3\ns_lshl_b32 s20, s20, 7\ns_and_b32 s21, s26, 7\ns_lshl_b32 s21, s21, 2\ns_add_u32 s20, s20, s21")
    A("v_and_b32 v4, 3, v0\nv_lshrrev_b32 v5, 4, v0\nv_lshl_add_u32 v4, v5, 5, v4\nv_add_u32 v4, s20, v4\nv_lshlrev_b32 v5, 1, v4")
    A(f"global_load_ushort v8, v5, {sp(P_X)}")
    if tw: A(f"global_load_ushort v33, v5, {sp(P_OUT)}")
    A(f"v_lshrrev_b32 v6, 1, v4\nv_lshlrev_b32 v6, 3, v6\nv_add_u32 v6, {WS_MOD}, v6\nv_add_u32 v7, 6144, v6")
    if mlate: lspin("sf0", L_FP, 1, 10, 11, 16)
    poll("pg", lambda: A(f"global_load_dwordx2 v[12:13], v6, {WS} sc1\nglobal_load_dwordx2 v[14:15], v7, {WS} sc1\n" + VL),
         lambda: chk_tags([13, 15, 39], 16), 4 if mlate else 16)
    tally()
    A("v_lshlrev_b32 v8, 16, v8")
    A("v_and_b32 v16, 1, v4\nv_cmp_eq_u32 vcc, 0, v16")
    A("v_lshlrev_b32 v16, 16, v12\nv_and_b32 v17, 0xffff0000, v12\nv_cndmask_b32 v9, v17, v16, vcc")
    A("v_lshlrev_b32 v16, 16, v14\nv_and_b32 v17, 0xffff0000, v14\nv_cndmask_b32 v12, v17, v16, vcc")
    if pi is None:
        A(f"v_bfe_u32 v6, v0, 2, 2\nv_lshlrev_b32 v6, 12, v6\nv_lshl_add_u32 v6, v4, 2, v6\nv_add_u32 v6, {WS_B}, v6")
        if R == 8: A("s_lshl_b32 s20, s4, 14\nv_add_u32 v6, s20, v6")
        if rx: A("s_lshr_b32 s20, s4, 1\ns_lshl_b32 s20, s20, 14\nv_add_u32 v6, s20, v6")
        if cpad: A(f"s_lshl_b32 s20, s26, 13\ns_add_u32 s20, s20, {WS_C}\nv_lshrrev_b32 v7, 2, v0\nv_lshl_add_u32 v7, v7, 6, v2\nv_add_u32 v7, s20, v7\nv_add_u32 v32, 4096, v7")
        else: A(f"s_lshl_b32 s20, s26, 12\ns_add_u32 s20, s20, {WS_C}\nv_add_u32 v7, s20, v2")
    else:
        bcopy()
        A("v_bfe_u32 v6, v0, 2, 1\nv_lshlrev_b32 v6, 12, v6\nv_bfe_u32 v7, v0, 3, 1\nv_lshl_add_u32 v6, v7, 15, v6\nv_lshl_add_u32 v6, v4, 2, v6\nv_add_u32 v6, s20, v6")
        if cpad: A(f"s_and_b32 s20, s26, 15\ns_lshl_b32 s20, s20, 15\ns_lshr_b32 s21, s26, 4\ns_lshl_b32 s21, s21, 13\ns_xor_b32 s21, s21, s75\ns_add_u32 s20, s20, s21\ns_add_u32 s20, s20, {WS_C}\nv_lshrrev_b32 v7, 2, v0\nv_lshl_add_u32 v7, v7, 6, v2\nv_add_u32 v7, s20, v7\nv_add_u32 v32, 4096, v7")
        else: A(f"s_bfe_u32 s20, s26, 0x30001\ns_lshl_b32 s20, s20, 15\ns_and_b32 s21, s26, 1\ns_lshl_b32 s21, s21, 12\ns_add_u32 s20, s20, s21\ns_lshr_b32 s21, s26, 4\ns_lshl_b32 s21, s21, 13\ns_xor_b32 s21, s21, s75\ns_add_u32 s20, s20, s21\ns_add_u32 s20, s20, {WS_C}\nv_add_u32 v7, s20, v2")
    if dry: A("s_mov_b64 exec, 0\ns_branch L_fd\nL_fdr:\ns_mov_b64 exec, -1")
    lspin("sf", L_FP, 1, 10, 11, 16 if calm else 4)
    prb("fp")
    poll("pxb", lambda: A(f"global_load_dword v13, v6, {WS} sc1\nglobal_load_dword v14, v6, {WS} offset:2048 sc1"), lambda: chk_sent([13, 14], 15), xsleep)
    A("v_add_f32 v13, v13, v14")
    inrow("v_add_f32", 13, ["row_ror:8", "row_ror:4"])
    A("v_fma_f32 v8, v9, v13, v8")
    prb("b")
    stamp(6)
    if fdelay: A(f"s_sleep {fdelay}")
    gather4("pc", 40, lambda i: f"v{(7 if i<2 else 32) if cpad else 7}, {WS} offset:{2048*(i&1) if cpad else 1024*i}", 56, fsleep)
    A("L_fd:")
    stamp(7)
    A("v_pk_add_f32 v[16:17], v[40:41], v[44:45]\nv_pk_add_f32 v[18:19], v[42:43], v[46:47]\nv_pk_add_f32 v[24:25], v[48:49], v[52:53]\nv_pk_add_f32 v[26:27], v[50:51], v[54:55]")
    A("v_pk_add_f32 v[16:17], v[16:17], v[24:25]\nv_pk_add_f32 v[18:19], v[18:19], v[26:27]")
    A("v_permlane32_swap_b32 v16, v18\nv_permlane32_swap_b32 v17, v19\nv_pk_add_f32 v[16:17], v[16:17], v[18:19]")
    A("v_permlane16_swap_b32 v16, v17\nv_add_f32 v16, v16, v17")
    inrow("v_add_f32", 16, ["row_ror:8", "row_ror:4"])
    A("v_fma_f32 v16, v12, v16, v8\nv_cvt_pk_bf16_f32 v16, v16, v16")
    if dry: A("s_cbranch_execz L_fdr")
    A("s_mov_b32 exec_lo, 0x000f000f\ns_mov_b32 exec_hi, 0x000f000f")
    A(f"global_store_short v5, v16, {sp(P_OUT)} {osc}")
    A("s_cmp_lg_u32 s26, 0\ns_cbranch_scc1 L_tfe")
    if dbgp:
        A(f"s_mov_b64 exec, 1\nv_mov_b32 v20, s{P_WS}\nv_mov_b32 v21, s{P_WS+1}\nv_mov_b32 v22, s71\nv_mov_b32 v23, s{P_K}\nglobal_store_dwordx4 v10, v[20:23], {sp(P_DBG)}")
    A("s_mov_b64 exec, 1\nv_mov_b32 v18, s6")
    A(f"global_store_dword v10, v18, {WS} {osc}")
    if amp2:
        A(f"s_memrealtime s[96:97]\ns_waitcnt lgkmcnt(0)\ns_sub_u32 s94, s94, s92\ns_lshl_b32 s94, s94, {amp2}\nL_fz:\ns_memrealtime s[98:99]\ns_waitcnt lgkmcnt(0)\ns_sub_u32 s98, s98, s96\ns_cmp_lt_u32 s98, s94\ns_cbranch_scc1 L_fz")
    if amp:
        A(f"s_memrealtime s[96:97]\ns_waitcnt lgkmcnt(0)\ns_sub_u32 s94, s96, s94\ns_lshl_b32 s94, s94, {amp}\nL_fy:\ns_memrealtime s[98:99]\ns_waitcnt lgkmcnt(0)\ns_sub_u32 s98, s98, s96\ns_cmp_lt_u32 s98, s94\ns_cbranch_scc1 L_fy")
    if fixend:
        prb("end")
        A(f"L_fx:\ns_memrealtime s[98:99]\ns_waitcnt lgkmcnt(0)\ns_sub_u32 s98, s98, {'s94' if probe else 's96'}\ns_cmp_lt_u32 s98, {fixend}\ns_cbranch_scc1 L_fx")
    A("L_tfe:")
    stamp(4)
    end_wave()
    if stamps:
        A("L_stampout:")
        if st0: A("s_waitcnt lgkmcnt(0)\nv_writelane_b32 v3, s90, 0\ns_cmp_lt_u32 s3, 4\ns_cbranch_scc1 L_so9\nv_writelane_b32 v3, s92, 1\nv_writelane_b32 v3, s94, 2\nL_so9:")
        if stamps == 2:
            A("s_cmp_lg_u32 s2, 32\ns_cbranch_scc1 L_exit\ns_and_b32 s20, s3, 11\ns_cbranch_scc1 L_exit")
            A("s_mov_b64 exec, 0xff\ns_lshl_b32 s20, s3, 3\nv_lshl_add_u32 v1, v0, 2, s20")
            A(f"global_store_dword v1, v3, {sp(P_DBG)}\ns_endpgm")
        A("s_mov_b64 exec, 0xff")
        A("s_mul_i32 s20, s2, 12\ns_add_u32 s20, s20, s3\ns_lshl_b32 s20, s20, 5")
        A(f"s_add_u32 s20, s20, {WS_STAMP}")
        A("v_lshl_add_u32 v1, v0, 2, s20")
        A(f"global_store_dword v1, v3, {WS}")
    A("L_exit:\ns_endpgm")
    A(".p2align 6\n.type L_tab,@object\nL_tab:")
    for wg in range(256):
        r = roles[(xp[wg & 7] if xp else wg & 7), wg >> 3]; skip = T - r['n']
        assert skip < 8, (wg, r)
        A(f".long {(r['pre'] - skip + 16) | skip << 12 | r['e'] << 15 | r['ei'] << 18 | r['l'] << 23 | r['li'] << 25:#x}")
    A("L_endcode:")
    A('.section .rodata,"a"\n.p2align 6')
    A(f".amdhsa_kernel {NAME}")
    for l in ["next_free_vgpr 168", "next_free_sgpr 102", "accum_offset 168", "group_segment_fixed_size 0", "kernarg_size 104",
              "user_sgpr_count 2", "user_sgpr_kernarg_segment_ptr 1", "system_sgpr_workgroup_id_x 1"]:
        A("  .amdhsa_" + l)
    A(".end_amdhsa_kernel")
    txt = A.finish()
    for lab, cm in NOTES.items():
        assert ("\n" + lab + ":\n") in txt, lab
        txt = txt.replace("\n" + lab + ":\n", "\n" + "".join("; " + c + "\n" for c in cm.split("|")) + lab + ":\n")
    return txt

if __name__ == "__main__":
    out = sys.argv[1]; kw = {}
    for a in sys.argv[2:]:
        k, v = a.split("=", 1)
        try: v = ast.literal_eval(v)
        except Exception: pass
        kw[k] = v
    open(out, "w").write(gen(**kw))
    import json
    roles, T = make_plan(kw.get('plan', 'A'), **{k: v for k, v in kw.items() if k in ('cH','cQ','cM','cB','cC','T','c3','Fx','adj','cC3')})
    json.dump([[roles[wg & 7, wg >> 3][k] for k in ('e', 'l', 'n')] for wg in range(256)], open(out + ".roles", "w"))
```
